```python
import torch

def _softmax(x, axis=-1):
    return torch.softmax(x, dim=axis)
def _gelu(x):
    return torch.nn.functional.gelu(x, approximate="tanh")
def _silu(x):
    return torch.nn.functional.silu(x)
def _sigmoid(x):
    return torch.sigmoid(x)
def _layernorm(x, axis=-1, eps=1e-5):
    m = x.mean(dim=axis, keepdim=True)
    v = x.var(dim=axis, keepdim=True, unbiased=False)
    return (x - m) / torch.sqrt(v + eps)
def _scatter_add(tgt, idx, src, axis=0):
    return tgt.clone().index_add_(axis, idx, src)
def _segment_sum(src, seg, n):
    out = torch.zeros((n,) + src.shape[1:], dtype=src.dtype)
    return out.index_add_(0, seg, src)
def _pad(x, pw):
    flat = tuple(v for pair in reversed(pw) for v in pair)
    return torch.nn.functional.pad(x, flat)

kernel_name = 'gated_mix__linear_kernel_hedgehog__swiglu_ffn__prompt'

def setup_inputs():

    _w = (lambda a: (lambda t: t.to(torch.bfloat16) if t.is_floating_point() else t)(torch.as_tensor(a)))
    def _A_setup():
        B, S, D, H = 1, 2048, 640, 32
        Dh = D // H
        return {
            "x": _w((lambda *s: torch.randn(*s, dtype=torch.bfloat16) * 0.05)(B, S, D)),
            "wqkv": _w((lambda *s: torch.randn(*s, dtype=torch.bfloat16) * 0.8)(D, 3 * D)),
            "w_phi": _w((lambda *s: torch.randn(*s, dtype=torch.bfloat16) * 0.8)(H, Dh, Dh) * (Dh ** -0.5)),
            "wo": _w((lambda *s: torch.randn(*s, dtype=torch.bfloat16) * 0.05)(D, D)),
        }
    _A_in = _A_setup()

    def _B_setup():
        B, S, D, F = 1, 2048, 640, 1728
        return {
            "x": _w((lambda *s: torch.randn(*s, dtype=torch.bfloat16) * 0.05)(B, S, D)),
            "w_gate": _w((lambda *s: torch.randn(*s, dtype=torch.bfloat16) * 0.05)(D, F)),
            "w_up": _w((lambda *s: torch.randn(*s, dtype=torch.bfloat16) * 0.05)(D, F)),
            "w_down": _w((lambda *s: torch.randn(*s, dtype=torch.bfloat16) * 0.05)(F, D)),
        }
    _B_in = _B_setup()

    return {
        "A_x": _A_in["x"],
        "A_wqkv": _A_in["wqkv"],
        "A_w_phi": _A_in["w_phi"],
        "A_wo": _A_in["wo"],
        "B_x": _B_in["x"],
        "B_w_gate": _B_in["w_gate"],
        "B_w_up": _B_in["w_up"],
        "B_w_down": _B_in["w_down"],
        "gate_w": _w((lambda *s: torch.randn(*s, dtype=torch.bfloat16) * 0.05)(640) * 16.0),
    }

def reference(A_x, A_wqkv, A_w_phi, A_wo, B_x, B_w_gate, B_w_up, B_w_down, gate_w):
    def _A_ref(x, wqkv, w_phi, wo):
        B, S, D = x.shape
        H = 32; Dh = D // H
        qkv = (lambda x, *d: x.permute(*d))((x @ wqkv).reshape(B, S, 3, H, Dh), 2, 0, 3, 1, 4)
        q, k, v = qkv[0], qkv[1], qkv[2]
        pq = torch.einsum("bhsd,hdf->bhsf", q, w_phi)
        pk = torch.einsum("bhsd,hdf->bhsf", k, w_phi)
        phi_q = torch.concatenate([_softmax(pq, axis=-1), _softmax(-pq, axis=-1)], axis=-1)
        phi_k = torch.concatenate([_softmax(pk, axis=-1), _softmax(-pk, axis=-1)], axis=-1)
        kv = torch.einsum("bhsf,bhsd->bhfd", phi_k, v)
        z  = torch.einsum("bhsf->bhf", phi_k)
        num = torch.einsum("bhqf,bhfd->bhqd", phi_q, kv)
        den = torch.einsum("bhqf,bhf->bhq", phi_q, z)[..., None] + 1e-6
        o = num / den
        return (lambda x, *d: x.permute(*d))(o, 0, 2, 1, 3).reshape(B, S, D) @ wo

    def _B_ref(x, w_gate, w_up, w_down):
        g = _silu(x @ w_gate)
        u = x @ w_up
        return (g * u) @ w_down

    x = A_x
    g = _sigmoid((x * gate_w).sum(-1, keepdims=True))
    a = _A_ref(x, A_wqkv, A_w_phi, A_wo)
    b = _B_ref(x, B_w_gate, B_w_up, B_w_down)
    return g * a + (1 - g) * b
```

```python
import re
class R:
    def __init__(s, kind, lo, n=1): s.kind, s.lo, s.n = kind, lo, n
    def __str__(s): return f"{s.kind}{s.lo}" if s.n == 1 else f"{s.kind}[{s.lo}:{s.lo+s.n-1}]"
    __repr__ = __str__
    def __getitem__(s, i):
        if isinstance(i, slice):
            a = i.start or 0; b = i.stop if i.stop is not None else s.n
            assert 0 <= a < b <= s.n, (a, b, s.n)
            return R(s.kind, s.lo + a, b - a)
        assert 0 <= i < s.n, (i, s.n)
        return R(s.kind, s.lo + i, 1)
    def sub(s, a, n): return s[a:a+n]
def V(lo, n=1): return R('v', lo, n)
def S(lo, n=1): return R('s', lo, n)

class Alloc:
    def __init__(s, kind, lo, hi): s.kind, s.p, s.hi = kind, lo, hi; s.max = lo
    def __call__(s, n=1, align=None):
        if align is None: align = 1 if n == 1 else (2 if n == 2 else 4)
        s.p = (s.p + align - 1) // align * align
        r = R(s.kind, s.p, n); s.p += n
        assert s.p <= s.hi, f"out of {s.kind} regs"
        s.max = max(s.max, s.p)
        return r
    def mark(s): return s.p
    def reset(s, m): s.p = m

_reg = re.compile(r'^(-|\|)?(?:abs\()?([vsa])(?:(\d+)|\[(\d+):(\d+)\])\)?\|?$')
def parse_op(o):
    o = o.strip()
    m = _reg.match(o)
    if m:
        k = m.group(2)
        if m.group(3) is not None: lo = hi = int(m.group(3))
        else: lo, hi = int(m.group(4)), int(m.group(5))
        return {(k, i) for i in range(lo, hi + 1)}
    if o == 'vcc': return {('s', 106), ('s', 107)}
    if o == 'vcc_lo': return {('s', 106)}
    if o == 'vcc_hi': return {('s', 107)}
    if o == 'm0': return {('s', 124)}
    if o == 'exec': return {('s', 126), ('s', 127)}
    if o == 'exec_lo': return {('s', 126)}
    if o == 'exec_hi': return {('s', 127)}
    return set()
TRANS = ('v_exp_f32', 'v_log_f32', 'v_rcp_f32', 'v_rsq_f32', 'v_sqrt_f32', 'v_sin_f32', 'v_cos_f32', 'v_rcp_iflag_f32')
class Ins:
    def __init__(s, text):
        s.text = text
        t = text.split(';')[0].strip()
        s.kind = None; s.w = set(); s.r = set(); s.states = 1
        s.mn = ''
        if not t or t.endswith(':') or t.startswith('.'):
            s.kind = 'label' if t.endswith(':') else 'none'; s.states = 0; return
        p = t.split(None, 1); mn = p[0]; s.mn = mn
        rest = p[1] if len(p) > 1 else ''
        mods = ''
        mm = re.search(r'\s(op_sel|op_sel_hi|neg_lo|neg_hi|quad_perm):', rest)
        if mm: mods = rest[mm.start():]; rest = rest[:mm.start()]
        ops = [x.strip() for x in rest.split(',')] if rest else []
        if ops:
            last = ops[-1].split(None, 1)
            ops[-1] = last[0]
            mods = (last[1] if len(last) > 1 else '') + mods
        s.mods = mods
        P = [parse_op(o) for o in ops]
        U = lambda l: set().union(*l) if l else set()
        if mn == 's_nop': s.kind = 'salu'; s.states = int(ops[0], 0) + 1
        elif mn.startswith('v_mfma'):
            s.kind = 'mfma'; s.w = P[0]; s.a = P[1]; s.b = P[2]; s.c = P[3]; s.r = U(P[1:4])
            s.passes = 8 if '32x32' in mn else 4
        elif mn.startswith('v_'):
            s.kind = 'valu'
            s.trans = any(mn.startswith(x) for x in TRANS)
            s.dpp = 'dpp' in mn or 'row_' in mods or 'quad_perm' in mods
            if mn.startswith('v_permlane') and 'swap' in mn: s.w = U(P[:2]); s.r = U(P[:2])
            elif mn.startswith(('v_add_co', 'v_sub_co', 'v_addc_co', 'v_subb_co', 'v_mad_u64')): s.w = U(P[:2]); s.r = U(P[2:])
            else:
                s.w = P[0]; s.r = U(P[1:])
                if mn.startswith(('v_fmac', 'v_dot2c', 'v_pk_fmac', 'v_writelane')) or s.dpp: s.r |= P[0]
                if mn.startswith('v_cndmask') and len(ops) == 3: s.r |= parse_op('vcc')
        elif mn.startswith('ds_'):
            s.kind = 'ds'
            if mn.startswith(('ds_read', 'ds_bpermute', 'ds_permute', 'ds_swizzle')) or '_rtn' in mn: s.w = P[0]; s.r = U(P[1:])
            else: s.r = U(P)
        elif mn.startswith(('buffer_', 'global_')):
            s.kind = 'vmem'
            s.lds = (' lds' in (' ' + mods)) or 'load_lds' in mn
            s.store = 'store' in mn or 'atomic' in mn
            s.data = set()
            if mn in ('buffer_wbl2', 'buffer_inv'): pass
            elif s.lds: s.r = U(P) | parse_op('m0')
            elif mn.startswith('buffer_'):
                if s.store:
                    s.r = U(P); s.data = P[0]
                    if 'atomic' in mn and 'sc0' in mods: s.w = P[0]
                else: s.w = P[0]; s.r = U(P[1:])
            else:
                if 'store' in mn: s.r = U(P); s.data = P[1]
                elif 'atomic' in mn:
                    if 'sc0' in mods: s.w = P[0]; s.r = U(P[1:])
                    else: s.r = U(P)
                else: s.w = P[0]; s.r = U(P[1:])
            s.wide = s.store and ('x3' in mn or 'x4' in mn)
        elif mn.startswith('s_'):
            s.kind = 'salu'
            if mn.startswith(('s_cmp', 's_cbranch', 's_branch', 's_waitcnt', 's_barrier', 's_endpgm', 's_setprio', 's_sleep', 's_bitcmp')): s.r = U(P)
            else:
                s.w = P[0] if P else set(); s.r = U(P[1:])
                if 'saveexec' in mn: s.w |= parse_op('exec')
        else: raise ValueError('unknown instr ' + text)

def vg(x): return {r for r in x if r[0] in 'va'}
def sg(x): return {r for r in x if r[0] == 's'}
def need(p, c):
    n = 0
    if p.kind == 'valu':
        pw = vg(p.w); ps = sg(p.w)
        if c.kind == 'mfma' and pw & c.r: n = max(n, 2)
        if c.kind in ('valu', 'mfma') and p.trans and pw & c.r: n = max(n, 1)
        if c.kind in ('vmem', 'ds') and p.trans and pw & c.r: n = max(n, 1)
        if c.kind == 'valu':
            if c.mn.startswith(('v_readfirstlane', 'v_readlane')) and pw & c.r: n = max(n, 1)
            if c.mn.startswith('v_permlane') and pw & c.r: n = max(n, 2)
            if c.dpp and pw & c.r: n = max(n, 2)
            if ps & c.r: n = max(n, 4 if c.mn.startswith(('v_readlane', 'v_writelane', 'v_div_fmas')) else 2)
        if c.kind == 'vmem' and ps & c.r: n = max(n, 5)
        if p.mn.startswith('v_dot') and c.kind in ('valu','mfma','vmem','ds') and pw & (c.r | c.w) and not (c.mn == p.mn and c.w == p.w): n = max(n, 3)
        if c.kind == 'salu' and ps & c.r: n = max(n, 1)
    elif p.kind == 'mfma':
        big = {4: 8, 8: 12}[p.passes]
        if c.kind == 'mfma':
            if p.w & (c.a | c.b): n = max(n, big)
            if p.w & c.c and not (p.w == c.c and p.passes == c.passes): n = max(n, big - 2)
            if p.w & c.w and not (p.w == c.w): n = max(n, big - 2)
        elif c.kind in ('valu', 'vmem', 'ds'):
            if p.w & (c.r | c.w): n = max(n, big)
            if c.kind == 'valu' and p.c & c.w: n = max(n, {4: 3, 8: 7}[p.passes])
    elif p.kind == 'salu':
        if ('s', 124) in p.w and c.kind == 'vmem' and c.lds: n = max(n, 1)
    elif p.kind == 'vmem':
        if p.wide and p.data & c.w: n = max(n, 2 if c.kind == 'valu' else 1)
    return n

class Asm:
    def __init__(s): s.ins = []; s.uid = 0
    def __call__(s, text):
        for l in text.split('\n'):
            l = l.strip()
            if l: s.ins.append(Ins(l))
    def label(s, name): s.ins.append(Ins(name + ':'))
    def newlabel(s, p='L'): s.uid += 1; return f"{p}_{s.uid}"
    def finalize(s):
        out = []
        src = {}
        for i, x in enumerate(s.ins):
            if x.mn.startswith(('s_cbranch', 's_branch')):
                src.setdefault(x.text.split(';')[0].split()[1], []).append(i)
        def req(hist, c):
            worst = 0; d = 0
            for p in reversed(hist):
                if d > 20: break
                if p.states == 0: continue
                n = need(p, c)
                if n - d > worst: worst = n - d
                d += p.states
            return worst
        nnop = 0
        alt = []
        for i, c in enumerate(s.ins):
            if c.kind == 'label':
                name = c.text.split(':')[0].strip()
                for j in src.get(name, []):
                    alt.append(list(s.ins[max(0, j - 24):j + 1]))
                out.append(c); continue
            if c.states:
                w = req(out[-40:], c)
                for h in alt: w = max(w, req(h, c))
                if w > 0:
                    nop = Ins(f"s_nop {w-1}"); out.append(nop); nnop += 1
                    for h in alt: h.append(nop)
                for h in alt: h.append(c)
                alt = [h for h in alt if len(h) < 70]
            out.append(c)
            if c.mn in ('s_branch', 's_endpgm'):
                out.append(Ins('; ---'))
                brk = Ins('; (unreachable fallthrough)'); brk.states = 100; brk.kind = 'none2'; out.append(brk)
                alt = []
        s.nnop = nnop
        return '\n'.join(('' if x.kind == 'label' else '  ') + x.text for x in out) + '\n'

class VmTrack:
    def __init__(s): s.q = []
    def issue(s, tag): s.q.append(tag)
    def wait_for(s, pred):
        last = -1
        for i, t in enumerate(s.q):
            if pred(t): last = i
        n = len(s.q) - 1 - last
        s.q = s.q[last + 1:]
        return n
```

```python
import sys
sys.path.insert(0, 'gen')
from asmlib import *
NAME = 'gated_mix__linear_kernel_hedgehog__swiglu_ffn__prompt'
AP = 0; BP = 0xA00000; PHIQ = 0xD00000; KVACC = 0x1200000; GOFF = 0x1240000; FLAGS = 0x1250000; STAMP = 0x1300000; WSZ = 0x1600000
LOG2E = 0x3fb8aa3b; NLOG2E = 0xbfb8aa3b
OPT = dict(stamp=False)

pX, pQKV, pPHI, pWO, pBX, pWG, pWU, pWD = [S(16 + 2 * i, 2) for i in range(8)]
pGW, pOUT, pDBG, pWS = [S(32 + 2 * i, 2) for i in range(4)]
sWV = S(3)
rX, rW, rWS, rA, rB = S(40, 4), S(44, 4), S(48, 4), S(52, 4), S(56, 4)
sC = S(60, 2)

def srd(a, d, base, size):
    a(f"s_mov_b32 {d[0]}, {base[0]}")
    a(f"s_and_b32 {d[1]}, {base[1]}, 0xffff")
    a(f"s_mov_b32 {d[2]}, {size}")
    a(f"s_mov_b32 {d[3]}, 0x20000")

def prologue(a, end, nwg=256):
    a(f"s_cmp_ge_u32 s2, {nwg}")
    a(f"s_cbranch_scc1 {end}")
    a("s_load_dwordx16 s[16:31], s[0:1], 0")
    a("s_load_dwordx8 s[32:39], s[0:1], 64")
    a("v_lshrrev_b32 v1, 6, v0")
    a(f"v_readfirstlane_b32 {sWV}, v1")

def stamp(a, idx, kern):
    if not OPT['stamp']: return
    a("s_memrealtime s[90:91]")
    a("s_memtime s[92:93]")
    a("s_waitcnt lgkmcnt(0)")
    a(f"s_mov_b32 s{94}, s90")
    a(f"v_writelane_b32 v255, s90, {2*idx}")
    a(f"v_writelane_b32 v255, s92, {2*idx+1}")
def stamp_flush(a, kern):
    if not OPT['stamp']: return
    a("s_lshl_b32 s90, s2, 3")
    a(f"s_add_u32 s90, s90, {sWV}")
    a("s_lshl_b32 s90, s90, 8")
    a(f"s_add_u32 s90, s90, {STAMP + kern*0x80000}")
    a("v_mbcnt_lo_u32_b32 v254, -1, 0")
    a("v_mbcnt_hi_u32_b32 v254, -1, v254")
    a("v_lshlrev_b32 v254, 2, v254")
    a(f"buffer_store_dword v255, v254, {rWS}, s90 offen")

def interleave(a, mains, sides):
    for i, m in enumerate(mains):
        a(m)
        for x in sides.get(i, []):
            if callable(x): x()
            else: a(x)

def softmax_unit(a, P, E, M, T):
    a(f"v_max3_f32 {M[0]}, {P[0]}, {P[1]}, {P[2]}")
    a(f"v_min3_f32 {M[1]}, {P[0]}, {P[1]}, {P[2]}")
    for i in range(3, 19, 2):
        a(f"v_max3_f32 {M[0]}, {M[0]}, {P[i]}, {P[i+1]}")
        a(f"v_min3_f32 {M[1]}, {M[1]}, {P[i]}, {P[i+1]}")
    a(f"v_max_f32 {M[0]}, {M[0]}, {P[19]}")
    a(f"v_min_f32 {M[1]}, {M[1]}, {P[19]}")
    a(f"v_pk_mul_f32 {M}, {M}, {sC}")
    for i in range(0, 20, 2):
        a(f"v_pk_fma_f32 {E[i:i+2]}, {P[i:i+2]}, {sC}, {M} op_sel_hi:[1,1,0] neg_lo:[0,0,1] neg_hi:[0,0,1]")
        a(f"v_pk_fma_f32 {E[20+i:22+i]}, {P[i:i+2]}, {sC}, {M} op_sel:[0,0,1] neg_lo:[1,0,0] neg_hi:[1,0,0]")
    for i in range(40):
        a(f"v_exp_f32 {E[i]}, {E[i]}")
    a(f"v_pk_add_f32 {T[0:2]}, {E[0:2]}, {E[2:4]}")
    a(f"v_pk_add_f32 {T[2:4]}, {E[20:22]}, {E[22:24]}")
    for i in range(4, 20, 2):
        a(f"v_pk_add_f32 {T[0:2]}, {T[0:2]}, {E[i:i+2]}")
        a(f"v_pk_add_f32 {T[2:4]}, {T[2:4]}, {E[20+i:22+i]}")
    a(f"v_add_f32 {T[0]}, {T[0]}, {T[1]}")
    a(f"v_add_f32 {T[1]}, {T[2]}, {T[3]}")
    a(f"v_rcp_f32 {T[0]}, {T[0]}")
    a(f"v_rcp_f32 {T[1]}, {T[1]}")
    for i in range(0, 20, 2):
        a(f"v_pk_mul_f32 {E[i:i+2]}, {E[i:i+2]}, {T[0:2]} op_sel_hi:[1,0]")
        a(f"v_pk_mul_f32 {E[20+i:22+i]}, {E[20+i:22+i]}, {T[0:2]} op_sel:[0,1]")
    for i in range(20):
        a(f"v_cvt_pk_bf16_f32 {P[i]}, {E[2*i]}, {E[2*i+1]}")

XSLOT = 32768; WB = 98304

def kernel_p1(a):
    END = 'P1_END'
    prologue(a, END)
    lane = V(0)
    va = Alloc('v', 1, 250)
    tid = va(); t0, t1, t2, t3, t4 = va(), va(), va(), va(), va()
    vx = [va() for _ in range(4)]
    xa = [[va() for kk in range(2)] for hi in range(2)]
    vqd, vr, vc, vl15 = va(), va(), va(), va()
    sSL, sRB, sXO, sWO, sM, sT0, sT1, sT2, sT3, sRG, sHI = [S(62 + i) for i in range(11)]
    a(f"v_mov_b32 {tid}, v0")
    a(f"v_and_b32 {lane}, 63, v0")
    stamp(a, 0, 1)
    a(f"s_and_b32 {sT0}, s2, 7")
    a(f"s_lshr_b32 {sT1}, s2, 3")
    a(f"s_and_b32 {sRB}, {sT0}, 1")
    a(f"s_lshl_b32 {sRB}, {sRB}, 2")
    a(f"s_lshr_b32 {sT2}, {sT1}, 3")
    a(f"s_add_u32 {sRB}, {sRB}, {sT2}")
    a(f"s_lshr_b32 {sSL}, {sT0}, 1")
    a(f"s_lshl_b32 {sSL}, {sSL}, 3")
    a(f"s_and_b32 {sT2}, {sT1}, 7")
    a(f"s_add_u32 {sSL}, {sSL}, {sT2}")
    a(f"s_and_b32 {sRG}, {sWV}, 3")
    a(f"s_lshr_b32 {sHI}, {sWV}, 2")
    a(f"s_mov_b32 {sC[0]}, {LOG2E:#x}")
    a(f"s_mov_b32 {sC[1]}, {LOG2E:#x}")
    a(f"v_lshrrev_b32 {vqd}, 4, {lane}")
    a(f"v_bfe_u32 {vr}, {lane}, 2, 2")
    a(f"v_and_b32 {vc}, 3, {lane}")
    a(f"v_and_b32 {vl15}, 15, {lane}")
    a(f"v_lshrrev_b32 {t0}, 3, {lane}")
    a(f"v_mul_u32_u24 {t0}, 1280, {t0}")
    a(f"v_and_b32 {t1}, 7, {lane}")
    a(f"v_xor_b32 {t1}, {t1}, {vqd}")
    a(f"v_lshl_add_u32 {vx[0]}, {t1}, 4, {t0}")
    a(f"v_xor_b32 {t1}, 4, {t1}")
    a(f"v_lshl_add_u32 {vx[1]}, {t1}, 4, {t0}")
    a(f"v_add_u32 {vx[1]}, {8*1280-1024}, {vx[1]}")
    a(f"v_add_u32 {vx[2]}, {16*1280-2048}, {vx[0]}")
    a(f"v_add_u32 {vx[3]}, {16*1280-2048}, {vx[1]}")
    a(f"v_lshrrev_b32 {t0}, 1, {vl15}")
    a(f"v_xor_b32 {t0}, {t0}, {vqd}")
    a(f"v_lshlrev_b32 {t0}, 4, {t0}")
    a(f"v_lshl_add_u32 {t0}, {vl15}, 7, {t0}")
    a(f"s_lshl_b32 {sT0}, {sRG}, 13")
    a(f"v_add_u32 {xa[0][0]}, {sT0}, {t0}")
    a(f"v_xor_b32 {xa[0][1]}, 64, {xa[0][0]}")
    a(f"v_add_u32 {xa[1][0]}, 0x10000, {xa[0][0]}")
    a(f"v_add_u32 {xa[1][1]}, 0x10000, {xa[0][1]}")
    a(f"s_mul_i32 {sXO}, {sRB}, {256*1280}")
    a(f"s_mul_i32 {sT0}, {sWV}, {32*1280}")
    a(f"s_add_u32 {sXO}, {sXO}, {sT0}")
    a(f"s_lshl_b32 {sM}, {sWV}, 12")
    a("s_waitcnt lgkmcnt(0)")
    srd(a, rX, pX, 2048 * 1280)
    srd(a, rWS, pWS, WSZ)
    a(f"s_cmp_ge_u32 {sSL}, 30")
    a("s_cbranch_scc1 P1_SPARE")
    a(f"s_cmp_ge_u32 {sSL}, 18")
    a("s_cbranch_scc1 P1_QKV")
    common = va.mark()

    def x_dma(vm, blk, half):
        l = [f"s_add_u32 m0, {sM}, {(blk % 3) * XSLOT}", f"s_add_u32 {sT3}, {sXO}, {blk*128}"]
        for n in (2 * half, 2 * half + 1):
            l.append(f"buffer_load_dwordx4 {vx[n]}, {rX}, {sT3} offen offset:{n*1024} lds")
            vm.issue(('X', blk))
        return l
    def x_reads(XF, step):
        blk, kk = step // 2, step % 2
        sl = blk % 3
        return [f"ds_read_b128 {XF[tt]}, {xa[sl // 2][kk]} offset:{(sl % 2) * XSLOT + tt * 2048}" for tt in range(4)]

    vw = [va(), va()]
    wa = [va(), va(), va()]
    XF = [[va(4) for tt in range(4)] for b in range(2)]
    WF = [[va(4) for c in range(6)] for b in range(2)]
    ACC = [[va(4) for tt in range(4)] for c in range(6)]
    sMW = S(73)
    vm = VmTrack()
    for l in x_dma(vm, 0, 0) + x_dma(vm, 0, 1): a(l)
    a(f"s_bitcmp1_b32 {sWV}, 0")
    a(f"s_cselect_b32 {rW[0]}, {pWU[0]}, {pWG[0]}")
    a(f"s_cselect_b32 {rW[1]}, {pWU[1]}, {pWG[1]}")
    a(f"s_and_b32 {rW[1]}, {rW[1]}, 0xffff")
    a(f"s_mov_b32 {rW[2]}, {640*3456}")
    a(f"s_mov_b32 {rW[3]}, 0x20000")
    a(f"s_bfe_u32 {sT0}, {sWV}, 0x10001")
    a(f"s_lshl_b32 {sT1}, {sT0}, 1")
    for n in range(2):
        a(f"v_add_u32 {t0}, {64*n}, {lane}")
        a(f"v_mul_u32_u24 {t1}, 43, {t0}")
        a(f"v_lshrrev_b32 {t1}, 9, {t1}")
        a(f"v_mul_u32_u24 {t2}, 12, {t1}")
        a(f"v_sub_u32 {t2}, {t0}, {t2}")
        a(f"v_lshrrev_b32 {t3}, 2, {t2}")
        a(f"v_cmp_eq_u32 vcc, 1, {t3}")
        a(f"v_mov_b32 {t3}, {sT1}")
        a(f"v_mov_b32 {t4}, {sT0}")
        a(f"v_cndmask_b32 {t3}, {t3}, {t4}, vcc")
        a(f"v_xor_b32 {t2}, {t2}, {t3}")
        a(f"v_mul_u32_u24 {t1}, 3456, {t1}")
        a(f"v_lshl_add_u32 {vw[n]}, {t2}, 4, {t1}")
        if n: a(f"v_subrev_u32 {vw[n]}, 1024, {vw[n]}")
    a(f"s_lshr_b32 {sT0}, {sWV}, 1")
    a(f"s_mul_i32 {sWO}, {sT0}, {8*3456}")
    a(f"s_mul_i32 {sT1}, {sSL}, 192")
    a(f"s_add_u32 {sWO}, {sWO}, {sT1}")
    a(f"s_mul_i32 {sMW}, {sT0}, 1536")
    a(f"s_and_b32 {sT1}, {sWV}, 1")
    a(f"s_mul_i32 {sT1}, {sT1}, 6144")
    a(f"s_add_u32 {sMW}, {sMW}, {sT1}")
    def w_dma(step):
        l = [f"s_add_u32 m0, {sMW}, {WB + (step % 5) * 12288}", f"s_add_u32 {sT2}, {sWO}, {step*110592}",
             f"buffer_load_dwordx4 {vw[0]}, {rW}, {sT2} offen lds",
             "s_mov_b32 exec_hi, 0",
             f"buffer_load_dwordx4 {vw[1]}, {rW}, {sT2} offen offset:1024 lds",
             "s_mov_b32 exec_hi, -1"]
        vm.issue(('W', step)); vm.issue(('W', step))
        return l
    for l in w_dma(0) + w_dma(1) + x_dma(vm, 1, 0) + x_dma(vm, 1, 1) + w_dma(2) + w_dma(3) + x_dma(vm, 2, 0) + x_dma(vm, 2, 1) + w_dma(4): a(l)
    a(f"v_lshl_add_u32 {t0}, {vqd}, 3, {vr}")
    a(f"v_mul_u32_u24 {t0}, 192, {t0}")
    a(f"v_add_u32 {t0}, {WB}, {t0}")
    a(f"v_and_b32 {t1}, 1, {vqd}")
    a(f"v_lshlrev_b32 {t2}, 5, {t1}")
    a(f"v_lshl_add_u32 {t2}, {vc}, 3, {t2}")
    a(f"s_lshl_b32 {sT0}, {sHI}, 7")
    a(f"v_add3_u32 {wa[0]}, {t0}, {t2}, {sT0}")
    a(f"v_xor_b32 {wa[1]}, 32, {wa[0]}")
    a(f"v_and_b32 {t2}, 2, {vc}")
    a(f"v_add_u32 {t2}, {sHI}, {t2}")
    a(f"v_xor_b32 {t2}, {t2}, {t1}")
    a(f"v_lshlrev_b32 {t2}, 4, {t2}")
    a(f"v_and_b32 {t3}, 1, {vc}")
    a(f"v_lshl_add_u32 {t2}, {t3}, 3, {t2}")
    a(f"v_add3_u32 {wa[2]}, {t0}, {t2}, 64")
    def w_reads(WFb, step):
        l = []
        for m in range(2):
            for i in range(3):
                for rd in range(2):
                    l.append(f"ds_read_b64_tr_b16 {WFb[m*3+i][2*rd:2*rd+2]}, {wa[i]} offset:{(step % 5) * 12288 + m * 6144 + rd * 768}")
        return l
    n = vm.wait_for(lambda t: t in (('X', 0), ('W', 0)))
    a(f"s_waitcnt vmcnt({n})")
    a("s_barrier")
    stamp(a, 1, 1)
    for l in x_reads(XF[0], 0) + w_reads(WF[0], 0): a(l)
    for j in range(20):
        cur, nxt = j & 1, (j & 1) ^ 1
        if j < 19:
            n = vm.wait_for(lambda t: t in (('X', (j + 1) // 2), ('W', j + 1)))
            a(f"s_waitcnt vmcnt({n}) lgkmcnt(0)")
            a("s_barrier")
        else:
            a("s_waitcnt lgkmcnt(0)")
        mains = []
        for c in range(6):
            for tt in range(4):
                cc = '0' if j == 0 else str(ACC[c][tt])
                mains.append(f"v_mfma_f32_16x16x32_bf16 {ACC[c][tt]}, {WF[cur][c]}, {XF[cur][tt]}, {cc}")
        sides = {}
        if j < 19:
            rd = x_reads(XF[nxt], j + 1) + w_reads(WF[nxt], j + 1)
            for i, l in enumerate(rd): sides.setdefault(i, []).append(l)
            xb = (j + 5) // 2 if j >= 1 else 99
            xb = (j - 1) // 2 + 3 if j >= 1 else 99
            if xb <= 9: sides.setdefault(16, []).extend(x_dma(vm, xb, (j - 1) % 2))
            if j + 5 <= 19: sides.setdefault(19, []).extend(w_dma(j + 5))
        interleave(a, mains, sides)
    stamp(a, 2, 1)
    sN = S(74, 2)
    a(f"s_mov_b32 {sN[0]}, {NLOG2E:#x}")
    a(f"s_mov_b32 {sN[1]}, {NLOG2E:#x}")
    a(f"s_lshl_b32 {sT0}, {sRB}, 2")
    a(f"s_add_u32 {sT0}, {sT0}, {sRG}")
    a(f"s_mul_i32 {sT0}, {sT0}, 74")
    a(f"s_mul_i32 {sT1}, {sSL}, 3")
    a(f"s_add_u32 {sT0}, {sT0}, {sT1}")
    a(f"s_lshl_b32 {sT0}, {sT0}, 12")
    a(f"s_lshl_b32 {sT1}, {sHI}, 13")
    a(f"s_add_u32 {sT1}, {sT0}, {sT1}")
    a(f"s_lshl_b32 {sT2}, {sHI}, 9")
    a(f"s_add_u32 {sT2}, {sT2}, {sT0}")
    a(f"s_add_u32 {sT2}, {sT2}, 4096")
    a(f"v_lshlrev_b32 {t0}, 4, {lane}")
    a(f"v_and_b32 {t1}, 31, {lane}")
    a(f"v_lshlrev_b32 {t1}, 4, {t1}")
    a(f"v_lshrrev_b32 {t2}, 5, {lane}")
    a(f"v_lshl_add_u32 {t1}, {t2}, 10, {t1}")
    tmp = [XF[0][i] for i in range(4)] + [XF[1][i] for i in range(4)]
    outs = [WF[b][c] for b in range(2) for c in range(6)]
    def silu(G, U, T, dst2):
        for h in range(2):
            a(f"v_pk_mul_f32 {T[2*h:2*h+2]}, {G[2*h:2*h+2]}, {sN}")
        for k in range(4): a(f"v_exp_f32 {T[k]}, {T[k]}")
        for h in range(2):
            a(f"v_pk_mul_f32 {G[2*h:2*h+2]}, {G[2*h:2*h+2]}, {U[2*h:2*h+2]}")
        for h in range(2):
            a(f"v_pk_add_f32 {T[2*h:2*h+2]}, {T[2*h:2*h+2]}, 1.0 op_sel_hi:[1,0]")
        for k in range(4): a(f"v_rcp_f32 {T[k]}, {T[k]}")
        for h in range(2):
            a(f"v_pk_mul_f32 {G[2*h:2*h+2]}, {G[2*h:2*h+2]}, {T[2*h:2*h+2]}")
        for h in range(2):
            a(f"v_cvt_pk_bf16_f32 {dst2[h]}, {G[2*h]}, {G[2*h+1]}")
    for tt in range(4):
        o = outs[tt]
        silu(ACC[0][tt], ACC[3][tt], tmp[0], o[0:2])
        silu(ACC[1][tt], ACC[4][tt], tmp[1], o[2:4])
        a(f"buffer_store_dwordx4 {o}, {t0}, {rWS}, {sT1} offen offset:{tt*1024}")
    for tp in range(2):
        o = outs[4 + tp]
        silu(ACC[2][2*tp], ACC[5][2*tp], tmp[0], o[0:2])
        silu(ACC[2][2*tp+1], ACC[5][2*tp+1], tmp[1], o[2:4])
        a(f"v_permlane32_swap_b32 {o[0]}, {o[2]}")
        a(f"v_permlane32_swap_b32 {o[1]}, {o[3]}")
        a(f"buffer_store_dwordx4 {o}, {t1}, {rWS}, {sT2} offen offset:{tp*2048}")
    stamp(a, 3, 1)
    if OPT['stamp']:
        a("s_waitcnt vmcnt(0)")
        stamp(a, 4, 1)
    stamp_flush(a, 1)
    a("s_endpgm")

    a.label('P1_QKV')
    va.reset(common)
    vm = VmTrack()
    vw = [va(), va(), va()]
    wa = va(); pa = va()
    WP = va(4)
    XF = [[va(4) for tt in range(4)] for b in range(2)]
    WF = [[va(4) for c in range(5)] for b in range(2)]
    ACC = [va(20) for tt in range(4)]
    PF = [[va(4) if s < 2 else va(2) for s in range(3)] for t in range(5)]
    sC0, sC1, sLo, sHi2, sISQ, sHB = [S(73 + i) for i in range(6)]
    sMW = S(79)
    PHW = 131072; ZERO = 139264; PHB = 0; VVB = 86016
    for l in x_dma(vm, 0, 0) + x_dma(vm, 0, 1): a(l)
    srd(a, rW, pQKV, 640 * 3840)
    srd(a, rA, pPHI, 32 * 800)
    a(f"s_sub_u32 {sT0}, {sSL}, 18")
    a(f"s_mul_i32 {sC0}, {sT0}, 160")
    a(f"s_add_u32 {sC1}, {sC0}, 2560")
    a(f"s_add_u32 {sC0}, {sC0}, 1280")
    a(f"s_lshl_b32 {sHB}, {sT0}, 2")
    a(f"s_sub_u32 {sT0}, {sSL}, 26")
    a(f"s_mul_i32 {sT1}, {sT0}, 320")
    a(f"s_add_u32 {sT2}, {sT1}, 160")
    a(f"s_lshl_b32 {sT0}, {sT0}, 3")
    a(f"s_cmp_ge_u32 {sSL}, 26")
    a(f"s_cselect_b32 {sC0}, {sT1}, {sC0}")
    a(f"s_cselect_b32 {sC1}, {sT2}, {sC1}")
    a(f"s_cselect_b32 {sHB}, {sT0}, {sHB}")
    a(f"s_cselect_b32 {sISQ}, 1, 0")
    a(f"s_bitcmp1_b32 {sWV}, 0")
    a(f"s_cselect_b32 {sLo}, {sC1}, {sC0}")
    a(f"s_cselect_b32 {sHi2}, {sC0}, {sC1}")
    a(f"s_sub_u32 {sHi2}, {sHi2}, 160")
    for n in range(3):
        a(f"v_add_u32 {t0}, {64*n}, {lane}")
        a(f"v_mul_u32_u24 {t1}, 205, {t0}")
        a(f"v_lshrrev_b32 {t1}, 12, {t1}")
        a(f"v_mul_u32_u24 {t2}, 20, {t1}")
        a(f"v_sub_u32 {t2}, {t0}, {t2}")
        a(f"v_cmp_le_u32 vcc, 10, {t2}")
        a(f"v_mov_b32 {t3}, {sLo}")
        a(f"v_mov_b32 {t4}, {sHi2}")
        a(f"v_cndmask_b32 {t3}, {t3}, {t4}, vcc")
        a(f"v_mul_u32_u24 {t1}, 3840, {t1}")
        a(f"v_lshl_add_u32 {t1}, {t2}, 4, {t1}")
        a(f"v_add_u32 {vw[n]}, {t1}, {t3}")
        if n: a(f"v_subrev_u32 {vw[n]}, {1024*n}, {vw[n]}")
    a(f"s_mul_i32 {sWO}, {sWV}, {8*3840}")
    a(f"s_mul_i32 {sMW}, {sWV}, 2560")
    def w_dma2(blk):
        l = [f"s_add_u32 m0, {sMW}, {WB + (blk % 3) * 20480}", f"s_add_u32 {sT2}, {sWO}, {blk*245760}",
             f"buffer_load_dwordx4 {vw[0]}, {rW}, {sT2} offen lds",
             f"buffer_load_dwordx4 {vw[1]}, {rW}, {sT2} offen offset:1024 lds",
             "s_mov_b32 exec_hi, 0",
             f"buffer_load_dwordx4 {vw[2]}, {rW}, {sT2} offen offset:2048 lds",
             "s_mov_b32 exec_hi, -1"]
        for _ in range(3): vm.issue(('W', blk))
        return l
    for l in w_dma2(0) + x_dma(vm, 1, 0) + x_dma(vm, 1, 1) + w_dma2(1) + x_dma(vm, 2, 0) + x_dma(vm, 2, 1) + w_dma2(2): a(l)
    a(f"v_lshlrev_b32 {t0}, 4, {tid}")
    a(f"s_mul_i32 {sT0}, {sHB}, 800")
    a(f"v_add_u32 {t0}, {sT0}, {t0}")
    a(f"buffer_load_dwordx4 {WP}, {t0}, {rA}, 0 offen"); vm.issue(('P', 0))
    a(f"v_lshl_add_u32 {t0}, {vqd}, 3, {vr}")
    a(f"v_mul_u32_u24 {t0}, 320, {t0}")
    a(f"v_and_b32 {t1}, 1, {vqd}")
    a(f"v_xor_b32 {t1}, {sHI}, {t1}")
    a(f"v_mul_u32_u24 {t1}, 160, {t1}")
    a(f"v_mul_u32_u24 {t2}, 40, {vc}")
    a(f"v_add3_u32 {t0}, {t0}, {t1}, {t2}")
    a(f"v_add_u32 {wa}, {WB}, {t0}")
    a(f"s_and_b32 {sT0}, {sHI}, {sISQ}")
    a(f"s_mul_i32 {sT0}, {sT0}, 3200")
    a(f"s_add_u32 {sT0}, {sT0}, {PHW}")
    a(f"v_mul_u32_u24 {t0}, 800, {vqd}")
    a(f"v_add_u32 {t0}, {sT0}, {t0}")
    a(f"v_mov_b32 {t1}, {ZERO}")
    a(f"v_cmp_eq_u32 vcc, {vc}, {vqd}")
    a(f"v_cndmask_b32 {t0}, {t1}, {t0}, vcc")
    a(f"v_mul_u32_u24 {t1}, 40, {vr}")
    a(f"v_add_u32 {pa}, {t0}, {t1}")
    def w_reads2(WFb, step):
        blk, kk = step // 2, step % 2
        return [f"ds_read_b64_tr_b16 {WFb[t][2*rd:2*rd+2]}, {wa} offset:{(blk % 3) * 20480 + kk * 10240 + rd * 1280 + 8 * t}" for t in range(5) for rd in range(2)]
    n = vm.wait_for(lambda t: t in (('X', 0), ('W', 0)))
    a(f"s_waitcnt vmcnt({n})")
    a("s_barrier")
    stamp(a, 1, 1)
    for l in x_reads(XF[0], 0) + w_reads2(WF[0], 0): a(l)
    for j in range(20):
        cur, nxt = j & 1, (j & 1) ^ 1
        if j % 2 == 1:
            if j < 19:
                n = vm.wait_for(lambda t: t in (('X', (j + 1) // 2), ('W', (j + 1) // 2)))
                a(f"s_waitcnt vmcnt({n}) lgkmcnt(0)")
            else: a("s_waitcnt lgkmcnt(0)")
            a("s_barrier")
        else:
            a("s_waitcnt lgkmcnt(0)")
        mains = []
        for t in range(5):
            for tt in range(4):
                d = ACC[tt][4*t:4*t+4]
                mains.append(f"v_mfma_f32_16x16x32_bf16 {d}, {WF[cur][t]}, {XF[cur][tt]}, {'0' if j == 0 else d}")
        sides = {}
        if j < 19:
            rd = x_reads(XF[nxt], j + 1) + w_reads2(WF[nxt], j + 1)
            for i, l in enumerate(rd): sides.setdefault(i, []).append(l)
            xb = (j - 1) // 2 + 3 if j >= 1 else 99
            if xb <= 9:
                if j % 2 == 1:
                    sides.setdefault(14, []).extend(x_dma(vm, xb, 0)); sides.setdefault(17, []).extend(x_dma(vm, xb, 1))
                else:
                    sides.setdefault(14, []).extend(w_dma2(xb))
            if j == 17:
                sides.setdefault(14, []).extend([f"v_lshlrev_b32 {t0}, 4, {tid}", f"v_add_u32 {t0}, {PHW}, {t0}",
                    f"v_lshlrev_b32 {t1}, 2, {tid}", f"v_add_u32 {t1}, {ZERO}, {t1}", f"v_mov_b32 {t2}, 0",
                    f"ds_write_b128 {t0}, {WP}", f"ds_write_b32 {t1}, {t2}"])
        else:
            rd = []
            for t in range(5):
                for s in range(3):
                    for r_ in range(2 if s < 2 else 1):
                        rd.append(f"ds_read_b64_tr_b16 {PF[t][s][2*r_:2*r_+2]}, {pa} offset:{s*320 + r_*160 + t*8}")
            for i, l in enumerate(rd): sides.setdefault(i * 20 // 25, []).append(l)
        interleave(a, mains, sides)
    stamp(a, 2, 1)
    fb = XF[0][0].lo
    E = V(fb, 40); P = V(fb + 40, 20); QB = V(fb + 60, 10); M = V(fb + 70, 2)
    assert fb + 72 <= ACC[0].lo
    T = WP
    a(f"s_andn2_b32 {sT0}, {sHI}, {sISQ}")
    a(f"s_cmp_eq_u32 {sT0}, 1")
    a("s_cbranch_scc1 P1_VWAVE")
    a(f"s_lshl_b32 {sT0}, {sRB}, 2")
    a(f"s_add_u32 {sT0}, {sT0}, {sRG}")
    a(f"s_lshl_b32 {sT0}, {sT0}, 5")
    a(f"s_lshr_b32 {sT1}, {sHB}, 2")
    a(f"s_add_u32 {sT0}, {sT0}, {sT1}")
    a(f"s_add_u32 {sT0}, {sT0}, {sHI}")
    a(f"s_mul_i32 {sT0}, {sT0}, 5120")
    a(f"s_add_u32 {sT0}, {sT0}, {PHIQ}")
    a(f"v_lshlrev_b32 {t0}, 4, {lane}")
    a(f"v_add_u32 {t1}, 4096, {t0}")
    a(f"s_mul_i32 {sT1}, {sRG}, {64*336}")
    a(f"v_mul_u32_u24 {t2}, 336, {vl15}")
    a(f"v_mul_u32_u24 {t3}, 80, {vqd}")
    a(f"v_add3_u32 {t2}, {t2}, {t3}, {sT1}")
    a("s_waitcnt lgkmcnt(0)")
    for tt in range(4):
        for i in range(10):
            a(f"v_cvt_pk_bf16_f32 {QB[i]}, {ACC[tt][2*i]}, {ACC[tt][2*i+1]}")
        for s in range(3):
            for t in range(5):
                d = P[4*t:4*t+4]
                if s < 2: a(f"v_mfma_f32_16x16x32_bf16 {d}, {PF[t][s]}, {QB[4*s:4*s+4]}, {'0' if s == 0 else d}")
                else: a(f"v_mfma_f32_16x16x16_bf16 {d}, {PF[t][s]}, {QB[8:10]}, {d}")
        softmax_unit(a, P, E, M, T)
        lk, ln = a.newlabel('P1_K'), a.newlabel('P1_N')
        a(f"s_cmp_eq_u32 {sISQ}, 0")
        a(f"s_cbranch_scc1 {lk}")
        for s in range(5):
            if s < 4: a(f"buffer_store_dwordx4 {P[4*s:4*s+4]}, {t0}, {rWS}, {sT0} offen offset:{s*1024}")
            else: a(f"buffer_store_dwordx4 {P[4*s:4*s+4]}, {t1}, {rWS}, {sT0} offen")
        a(f"s_add_u32 {sT0}, {sT0}, {8*5120}")
        a(f"s_branch {ln}")
        a.label(lk)
        for s in range(5):
            a(f"ds_write_b128 {t2}, {P[4*s:4*s+4]} offset:{PHB + tt*5376 + 16*s}")
        a.label(ln)
        a("s_nop 1")
    a(f"s_cmp_eq_u32 {sISQ}, 0")
    a("s_cbranch_scc1 P1_KVJOIN")
    stamp(a, 3, 1)
    if OPT['stamp']:
        a("s_waitcnt vmcnt(0)")
        stamp(a, 4, 1)
    stamp_flush(a, 1)
    a("s_endpgm")
    a.label('P1_VWAVE')
    a(f"s_mul_i32 {sT1}, {sRG}, {64*176}")
    a(f"s_add_u32 {sT1}, {sT1}, {VVB}")
    a(f"v_mul_u32_u24 {t2}, 176, {vl15}")
    a(f"v_add_u32 {t1}, {sT1}, {t2}")
    a(f"v_mul_u32_u24 {t3}, 40, {vqd}")
    a(f"v_add_u32 {t2}, {t1}, {t3}")
    a(f"v_mov_b32 {M[0]}, 0x3f80")
    a(f"v_mov_b32 {M[1]}, 0")
    for tt in range(4):
        q = E[10*tt:10*tt+10]
        for i in range(10):
            a(f"v_cvt_pk_bf16_f32 {q[i]}, {ACC[tt][2*i]}, {ACC[tt][2*i+1]}")
        for i in range(5):
            a(f"ds_write_b64 {t2}, {q[2*i:2*i+2]} offset:{tt*2816 + 8*i}")
        a(f"ds_write_b64 {t1}, {M} offset:{tt*2816 + 160}")
    a.label('P1_KVJOIN')
    a(f"v_lshl_add_u32 {t0}, {vqd}, 3, {vr}")
    a(f"v_mul_u32_u24 {t1}, 336, {t0}")
    a(f"s_mul_i32 {sT0}, {sRG}, 80")
    a(f"v_lshl_add_u32 {t1}, {vc}, 3, {t1}")
    a(f"v_add_u32 {t1}, {sT0}, {t1}")
    a(f"v_add_u32 {t2}, 43008, {t1}")
    a(f"v_mul_u32_u24 {t0}, 176, {t0}")
    a(f"s_mul_i32 {sT0}, {sRG}, 40")
    a(f"s_lshl_b32 {sT1}, {sHI}, 5")
    a(f"s_add_u32 {sT0}, {sT0}, {sT1}")
    a(f"v_lshl_add_u32 {t3}, {vc}, 3, {sT0}")
    a(f"v_mul_u32_u24 {t4}, {sHI}, {vc}")
    a(f"v_cmp_ne_u32 vcc, 0, {t4}")
    a(f"v_mov_b32 {t4}, 160")
    a(f"v_cndmask_b32 {t3}, {t3}, {t4}, vcc")
    a(f"v_add_u32 {t3}, {VVB}, {t3}")
    a(f"v_add_u32 {t3}, {t0}, {t3}")
    a("s_waitcnt lgkmcnt(0)")
    a("s_barrier")
    KA = [[V(ACC[0].lo + (b*4 + f)*4, 4) for f in range(4)] for b in range(2)]
    KD = [V(ACC[0].lo + 32 + 4*f, 4) for f in range(3)]
    def kv_reads(b, s):
        l = []
        for f in range(3):
            for rd in range(2):
                l.append(f"ds_read_b64_tr_b16 {KA[b][f][2*rd:2*rd+2]}, {t1 if s < 4 else t2} offset:{(s % 4)*10752 + rd*1344 + f*32}")
        for rd in range(2):
            l.append(f"ds_read_b64_tr_b16 {KA[b][3][2*rd:2*rd+2]}, {t3} offset:{s*5632 + rd*704}")
        return l
    for l in kv_reads(0, 0): a(l)
    for s in range(8):
        if s < 7:
            for l in kv_reads((s + 1) & 1, s + 1): a(l)
            a("s_waitcnt lgkmcnt(8)")
        else: a("s_waitcnt lgkmcnt(0)")
        for f in range(3):
            a(f"v_mfma_f32_16x16x32_bf16 {KD[f]}, {KA[s&1][f]}, {KA[s&1][3]}, {'0' if s == 0 else KD[f]}")
    a(f"s_add_u32 {sT0}, {sHB}, {sRG}")
    a(f"s_lshl_b32 {sT0}, {sT0}, 1")
    a(f"s_add_u32 {sT0}, {sT0}, {sHI}")
    a(f"s_mul_i32 {sT0}, {sT0}, 3072")
    a(f"s_add_u32 {sT0}, {sT0}, {KVACC}")
    a(f"v_lshlrev_b32 {t0}, 2, {lane}")
    for f in range(3):
        if f == 2: a("s_mov_b32 exec_hi, 0")
        for j in range(4):
            a(f"buffer_atomic_add_f32 {KD[f][j]}, {t0}, {rWS}, {sT0} offen offset:{f*1024 + j*256}")
    a("s_mov_b32 exec_hi, -1")
    stamp(a, 3, 1)
    if OPT['stamp']:
        a("s_waitcnt vmcnt(0)")
        stamp(a, 4, 1)
    stamp_flush(a, 1)
    a("s_endpgm")

    a.label('P1_SPARE')
    va.reset(common)
    sSP, sU, sSO, sST = S(73), S(74), S(75), S(76)
    vf = [va() for _ in range(5)]; vat = [va() for _ in range(5)]
    rf = [va() for _ in range(5)]; rat = [va(), va()]
    vst = va(); vst4 = va()
    FR = [va(4) for _ in range(5)]
    GW = [va(4) for _ in range(5)]
    GX = [[va(4) for i in range(5)] for g in range(4)]
    GA = [va() for g in range(4)]
    srd(a, rA, pWD, 1728 * 1280)
    srd(a, rB, pWO, 640 * 1280)
    srd(a, rW, pGW, 1280)
    a(f"s_sub_u32 {sSP}, {sSL}, 30")
    a(f"s_lshl_b32 {sSP}, {sSP}, 3")
    a(f"s_add_u32 {sSP}, {sSP}, {sRB}")
    a(f"s_lshl_b32 {sT0}, {sWV}, 2")
    a(f"s_mul_i32 {sT1}, {sWV}, 20")
    for n in range(5):
        a(f"v_add_u32 {t0}, {64*n}, {lane}")
        a(f"v_mul_u32_u24 {t1}, 205, {t0}")
        a(f"v_lshrrev_b32 {t1}, 14, {t1}")
        a(f"v_mul_u32_u24 {t2}, 80, {t1}")
        a(f"v_sub_u32 {t2}, {t0}, {t2}")
        a(f"v_add_u32 {t1}, {sT0}, {t1}")
        a(f"v_and_b32 {t3}, 7, {t1}")
        a(f"v_lshlrev_b32 {t3}, 1, {t3}")
        a(f"v_xor_b32 {t2}, {t2}, {t3}")
        a(f"v_mul_u32_u24 {t1}, 1280, {t1}")
        a(f"v_lshl_add_u32 {vf[n]}, {t2}, 4, {t1}")
        if n % 4: a(f"v_subrev_u32 {vf[n]}, {1024*(n%4)}, {vf[n]}")
        a(f"v_add_u32 {t1}, {4*n}, {vqd}")
        a(f"v_add_u32 {t1}, {sT1}, {t1}")
        a(f"v_and_b32 {t3}, 7, {t1}")
        a(f"v_lshlrev_b32 {t3}, 1, {t3}")
        a(f"v_xor_b32 {t2}, {vl15}, {t3}")
        a(f"v_mul_u32_u24 {t1}, 1280, {t1}")
        a(f"v_lshl_add_u32 {vat[n]}, {t2}, 4, {t1}")
        if n % 4: a(f"v_subrev_u32 {vat[n]}, {1024*(n%4)}, {vat[n]}")
    a(f"s_mul_i32 {sM}, {sWV}, 5120")
    def u_dma(buf, typ):
        if typ == 'F':
            a(f"s_mul_i32 {sSO}, {sU}, 40960")
            vv, rr = vf, rA
        else:
            a(f"s_sub_u32 {sT2}, {sU}, 54")
            a(f"s_mul_i32 {sT3}, {sT2}, 52")
            a(f"s_lshr_b32 {sT3}, {sT3}, 8")
            a(f"s_mul_i32 {sSO}, {sT3}, {160*1280 - 5*256}")
            a(f"s_lshl_b32 {sT2}, {sT2}, 8")
            a(f"s_add_u32 {sSO}, {sSO}, {sT2}")
            vv, rr = vat, rB
        a(f"s_add_u32 m0, {sM}, {buf*40960}")
        for n in range(4):
            a(f"buffer_load_dwordx4 {vv[n]}, {rr}, {sSO} offen offset:{n*1024} lds")
        a(f"s_add_u32 m0, {sM}, {buf*40960 + 4096}")
        a(f"buffer_load_dwordx4 {vv[4]}, {rr}, {sSO} offen lds")
    def dyn(it, fn):
        a(f"s_add_u32 {sU}, {sSP}, {16*it}")
        if it <= 2: fn('F')
        elif it == 3:
            l1, l2 = a.newlabel('SP'), a.newlabel('SP')
            a(f"s_cmp_ge_u32 {sU}, 54"); a(f"s_cbranch_scc1 {l1}")
            fn('F'); a(f"s_branch {l2}"); a.label(l1); fn('A'); a.label(l2)
        else: fn('A')
    for it in range(4): dyn(it, lambda typ: u_dma(it, typ))
    a(f"v_lshlrev_b32 {t0}, 4, {vl15}")
    for i in range(5): a(f"buffer_load_dwordx4 {GW[i]}, {t0}, {rW}, 0 offen offset:{i*256}")
    a(f"v_mul_u32_u24 {t1}, 1280, {vqd}")
    a(f"v_add_u32 {t0}, {t0}, {t1}")
    a(f"s_lshl_b32 {sT2}, {sSP}, 3")
    a(f"s_add_u32 {sT2}, {sT2}, {sWV}")
    a(f"s_mul_i32 {sT2}, {sT2}, {16*1280}")
    for g in range(4):
        for i in range(5): a(f"buffer_load_dwordx4 {GX[g][i]}, {t0}, {rX}, {sT2} offen offset:{i*256}")
        if g < 3: a(f"s_add_u32 {sT2}, {sT2}, {4*1280}")
    a(f"v_lshl_add_u32 {t0}, {vqd}, 2, {vr}")
    a(f"v_and_b32 {t1}, 7, {t0}")
    a(f"v_lshlrev_b32 {t1}, 1, {t1}")
    a(f"v_mul_u32_u24 {t0}, 1280, {t0}")
    a(f"v_and_b32 {t2}, 1, {vc}")
    a(f"v_lshl_add_u32 {t0}, {t2}, 3, {t0}")
    a(f"v_lshrrev_b32 {t3}, 1, {vc}")
    a(f"s_mul_i32 {sT0}, {sWV}, 10")
    a(f"v_add_u32 {t4}, {sT0}, {t3}")
    for j in range(5):
        a(f"v_add_u32 {rf[j]}, {2*j}, {t4}")
        a(f"v_xor_b32 {rf[j]}, {rf[j]}, {t1}")
        a(f"v_lshl_add_u32 {rf[j]}, {rf[j]}, 4, {t0}")
    a(f"v_mul_u32_u24 {t0}, 20, {vqd}")
    a(f"v_add_u32 {t0}, {t0}, {vr}")
    a(f"v_lshlrev_b32 {t0}, 8, {t0}")
    a(f"v_lshl_add_u32 {t0}, {t2}, 3, {t0}")
    a(f"s_lshl_b32 {sT0}, {sWV}, 1")
    a(f"v_add_u32 {t4}, {sT0}, {t3}")
    a(f"v_xor_b32 {t4}, {t4}, {t1}")
    a(f"v_lshl_add_u32 {rat[0]}, {t4}, 4, {t0}")
    a(f"v_xor_b32 {rat[1]}, 128, {rat[0]}")
    a(f"v_lshlrev_b32 {vst}, 4, {lane}")
    a(f"v_add_u32 {vst4}, 4096, {vst}")
    def u_proc(buf, typ):
        if typ == 'F':
            for j in range(5):
                a(f"v_add_u32 {t0}, {buf*40960}, {rf[j]}")
                for rd in range(2):
                    a(f"ds_read_b64_tr_b16 {FR[j][2*rd:2*rd+2]}, {t0} offset:{rd*20480}")
            a(f"s_mul_i32 {sST}, {sWV}, 74")
            a(f"s_add_u32 {sST}, {sST}, {sU}")
            a(f"s_mul_i32 {sST}, {sST}, 5120")
            a(f"s_add_u32 {sST}, {sST}, {BP}")
            a("s_waitcnt lgkmcnt(0)")
            for j in range(5):
                if j < 4: a(f"buffer_store_dwordx4 {FR[j]}, {vst}, {rWS}, {sST} offen offset:{j*1024}")
                else: a(f"buffer_store_dwordx4 {FR[j]}, {vst4}, {rWS}, {sST} offen")
        else:
            bases = [(0, 4), (8, 12), (16, 96), (80, 84), (88, 92)]
            a(f"v_add_u32 {t0}, {buf*40960}, {rat[0]}")
            a(f"v_add_u32 {t1}, {buf*40960}, {rat[1]}")
            for s5 in range(5):
                for rd in range(2):
                    b = bases[s5][rd]
                    a(f"ds_read_b64_tr_b16 {FR[s5][2*rd:2*rd+2]}, {t1 if b % 8 else t0} offset:{b*256}")
            a(f"s_sub_u32 {sT2}, {sU}, 54")
            a(f"s_mul_i32 {sT3}, {sT2}, 52")
            a(f"s_lshr_b32 {sT3}, {sT3}, 8")
            a(f"s_mul_i32 {sT0}, {sT3}, 5")
            a(f"s_sub_u32 {sT2}, {sT2}, {sT0}")
            a(f"s_lshl_b32 {sT2}, {sT2}, 3")
            a(f"s_add_u32 {sT2}, {sT2}, {sWV}")
            a(f"s_mul_i32 {sT1}, {sT2}, 52")
            a(f"s_lshr_b32 {sT1}, {sT1}, 8")
            a(f"s_mul_i32 {sST}, {sT1}, 5")
            a(f"s_sub_u32 {sT2}, {sT2}, {sST}")
            a(f"s_mul_i32 {sST}, {sT1}, 74")
            a(f"s_add_u32 {sST}, {sST}, {sT0}")
            a(f"s_add_u32 {sST}, {sST}, 54")
            a(f"s_mul_i32 {sST}, {sST}, 5120")
            a(f"s_lshl_b32 {sT2}, {sT2}, 10")
            a(f"s_add_u32 {sST}, {sST}, {sT2}")
            a(f"s_add_u32 {sST}, {sST}, {BP}")
            a("s_waitcnt lgkmcnt(0)")
            for s5 in range(5):
                a(f"buffer_store_dwordx4 {FR[s5]}, {vst}, {rWS}, {sST} offen")
                if s5 < 4: a(f"s_add_u32 {sST}, {sST}, 5120")
    a("s_waitcnt vmcnt(40)")
    a("s_barrier")
    dyn(0, lambda typ: u_proc(0, typ))
    a("s_barrier")
    lsk = a.newlabel('SPK')
    a(f"s_cmp_ge_u32 {sSP}, 10")
    a(f"s_cbranch_scc1 {lsk}")
    dyn(4, lambda typ: u_dma(0, typ))
    a.label(lsk)
    a("s_waitcnt vmcnt(30)")
    a("s_barrier")
    for it in range(1, 4):
        dyn(it, lambda typ: u_proc(it, typ))
    a("s_waitcnt vmcnt(0)")
    a("s_barrier")
    lsk = a.newlabel('SPK')
    a(f"s_cmp_ge_u32 {sSP}, 10")
    a(f"s_cbranch_scc1 {lsk}")
    dyn(4, lambda typ: u_proc(0, typ))
    a.label(lsk)
    for g in range(4): a(f"v_mov_b32 {GA[g]}, 0")
    for i in range(5):
        for k in range(4):
            for g in range(4):
                a(f"v_dot2c_f32_bf16 {GA[g]}, {GX[g][i][k]}, {GW[i][k]}")
    for sh in (8, 4, 2, 1):
        for g in range(4):
            a(f"v_add_f32_dpp {GA[g]}, {GA[g]}, {GA[g]} row_ror:{sh} row_mask:0xf bank_mask:0xf")
    for g in range(4):
        a(f"v_mul_f32 {GA[g]}, {NLOG2E:#x}, {GA[g]}")
        a(f"v_exp_f32 {GA[g]}, {GA[g]}")
        a(f"v_add_f32 {GA[g]}, 1.0, {GA[g]}")
        a(f"v_rcp_f32 {GA[g]}, {GA[g]}")
    a(f"s_lshl_b32 {sT2}, {sSP}, 3")
    a(f"s_add_u32 {sT2}, {sT2}, {sWV}")
    a(f"s_lshl_b32 {sT2}, {sT2}, 6")
    a(f"s_add_u32 {sT2}, {sT2}, {GOFF}")
    a(f"v_lshlrev_b32 {t0}, 2, {vqd}")
    a(f"v_cmp_eq_u32 vcc, 0, {vl15}")
    a("s_and_saveexec_b64 s[80:81], vcc")
    for g in range(4):
        a(f"buffer_store_dword {GA[g]}, {t0}, {rWS}, {sT2} offen offset:{g*16}")
    a("s_mov_b64 exec, s[80:81]")
    stamp(a, 3, 1)
    if OPT['stamp']:
        a("s_waitcnt vmcnt(0)")
        stamp(a, 4, 1)
    stamp_flush(a, 1)
    a.label(END)
    a("s_endpgm")

def kernel_zero(a):
    END = 'Z_END'
    prologue(a, END, 24)
    a("s_waitcnt lgkmcnt(0)")
    srd(a, rWS, pWS, WSZ)
    a("v_lshlrev_b32 v1, 4, v0")
    a("s_lshl_b32 s62, s2, 13")
    a(f"s_add_u32 s62, s62, {KVACC}")
    for i in range(4): a(f"v_mov_b32 v{4+i}, 0")
    a(f"buffer_store_dwordx4 v[4:7], v1, {rWS}, s62 offen")
    a.label(END)
    a("s_endpgm")

def kernel_o(a):
    END = 'O_END'
    prologue(a, END)
    lane = V(0)
    va = Alloc('v', 1, 250)
    tid = va(); t0, t1, t2, t3 = va(), va(), va(), va()
    vqd, vr, vc, vl15, vg_, ka = va(), va(), va(), va(), va(), va()
    KL = [va(4) for _ in range(3)]
    PH = [va(4) for _ in range(5)]
    AF = [[va(4) for s in range(5)] for b in range(2)]
    D = [va(4) for _ in range(6)]
    O = va(12)
    sRB, sCG, sT0, sT1, sT2 = [S(62 + i) for i in range(5)]
    KVB = 0; ZERO = 12288
    a(f"v_mov_b32 {tid}, v0")
    a(f"v_and_b32 {lane}, 63, v0")
    stamp(a, 0, 2)
    a(f"s_and_b32 {sT0}, s2, 7")
    a(f"s_lshr_b32 {sT1}, s2, 3")
    a(f"s_lshl_b32 {sRB}, {sT0}, 2")
    a(f"s_lshr_b32 {sT2}, {sT1}, 3")
    a(f"s_add_u32 {sRB}, {sRB}, {sT2}")
    a(f"s_and_b32 {sCG}, {sT1}, 7")
    a(f"v_lshrrev_b32 {vqd}, 4, {lane}")
    a(f"v_bfe_u32 {vr}, {lane}, 2, 2")
    a(f"v_and_b32 {vc}, 3, {lane}")
    a(f"v_and_b32 {vl15}, 15, {lane}")
    a(f"v_lshlrev_b32 {t0}, 4, {lane}")
    a(f"v_add_u32 {t1}, 4096, {t0}")
    a("s_waitcnt lgkmcnt(0)")
    srd(a, rWS, pWS, WSZ)
    a(f"s_lshl_b32 {sT0}, {sCG}, 3")
    a(f"s_add_u32 {sT0}, {sT0}, {sWV}")
    a(f"s_mul_i32 {sT0}, {sT0}, 3072")
    a(f"s_add_u32 {sT0}, {sT0}, {KVACC}")
    for f in range(3): a(f"buffer_load_dwordx4 {KL[f]}, {t0}, {rWS}, {sT0} offen offset:{f*1024}")
    a(f"s_and_b32 {sT2}, {sWV}, 3")
    a(f"s_lshl_b32 {sT0}, {sRB}, 2")
    a(f"s_add_u32 {sT0}, {sT0}, {sT2}")
    a(f"s_lshl_b32 {sT1}, {sT0}, 3")
    a(f"s_add_u32 {sT1}, {sT1}, {sCG}")
    a(f"s_mul_i32 {sT1}, {sT1}, 5120")
    a(f"s_add_u32 {sT1}, {sT1}, {PHIQ}")
    for s in range(5):
        if s < 4: a(f"buffer_load_dwordx4 {PH[s]}, {t0}, {rWS}, {sT1} offen offset:{s*1024}")
        else: a(f"buffer_load_dwordx4 {PH[s]}, {t1}, {rWS}, {sT1} offen")
    a(f"s_lshl_b32 {sT0}, {sT0}, 6")
    a(f"s_add_u32 {sT0}, {sT0}, {GOFF}")
    a(f"v_lshlrev_b32 {t2}, 2, {vl15}")
    a(f"buffer_load_dword {vg_}, {t2}, {rWS}, {sT0} offen")
    a(f"v_lshlrev_b32 {t2}, 3, {tid}")
    a(f"v_mov_b32 {O[0]}, 0"); a(f"v_mov_b32 {O[1]}, 0")
    a(f"ds_write_b64 {t2}, {O[0:2]} offset:{ZERO}")
    a(f"v_lshl_add_u32 {t2}, {vr}, 2, {vqd}")
    a(f"v_lshlrev_b32 {t2}, 6, {t2}")
    a(f"v_lshl_add_u32 {t2}, {vc}, 3, {t2}")
    a(f"s_lshr_b32 {sT0}, {sWV}, 1")
    a(f"s_mul_i32 {sT0}, {sT0}, 3072")
    a(f"s_and_b32 {sT1}, {sWV}, 1")
    a(f"s_lshl_b32 {sT1}, {sT1}, 5")
    a(f"s_add_u32 {sT0}, {sT0}, {sT1}")
    a(f"v_add_u32 {t2}, {sT0}, {t2}")
    a(f"v_mul_u32_u24 {t3}, 3072, {vqd}")
    a(f"v_mov_b32 {ka}, {ZERO}")
    a(f"v_cmp_eq_u32 vcc, {vc}, {vqd}")
    a(f"v_cndmask_b32 {ka}, {ka}, {t3}, vcc")
    a(f"v_lshl_add_u32 {ka}, {vr}, 6, {ka}")
    a("s_waitcnt vmcnt(6)")
    for f in range(3):
        a(f"v_cvt_pk_bf16_f32 {KL[f][0]}, {KL[f][0]}, {KL[f][1]}")
        a(f"v_cvt_pk_bf16_f32 {KL[f][1]}, {KL[f][2]}, {KL[f][3]}")
        a(f"ds_write_b64 {t2}, {KL[f][0:2]} offset:{KVB + f*1024}")
    a("s_waitcnt lgkmcnt(0)")
    a("s_barrier")
    a(f"s_cmp_ge_u32 {sWV}, 4")
    a(f"s_cbranch_scc1 {END}")
    def rd(b, t):
        for s in range(5):
            for r_ in range(2):
                a(f"ds_read_b64_tr_b16 {AF[b][s][2*r_:2*r_+2]}, {ka} offset:{s*512 + r_*256 + t*8}")
    order = [5, 0, 1, 2, 3, 4]
    rd(0, order[0])
    a("s_waitcnt vmcnt(0)")
    for i, t in enumerate(order):
        if i < 5:
            rd((i + 1) & 1, order[i + 1]); a("s_waitcnt lgkmcnt(10)")
        else: a("s_waitcnt lgkmcnt(0)")
        for s in range(5):
            a(f"v_mfma_f32_16x16x32_bf16 {D[t]}, {AF[i&1][s]}, {PH[s]}, {'0' if s == 0 else D[t]}")
    a(f"v_add_f32 {t2}, 0x358637bd, {D[5][0]}")
    a(f"v_rcp_f32 {t2}, {t2}")
    a(f"v_mul_f32 {t2}, {t2}, {vg_}")
    for t in range(5):
        for j in range(4): a(f"v_mul_f32 {D[t][j]}, {D[t][j]}, {t2}")
        a(f"v_cvt_pk_bf16_f32 {O[2*t]}, {D[t][0]}, {D[t][1]}")
        a(f"v_cvt_pk_bf16_f32 {O[2*t+1]}, {D[t][2]}, {D[t][3]}")
    a(f"s_mul_i32 {sT0}, {sRB}, 74")
    a(f"s_lshr_b32 {sT1}, {sCG}, 1")
    a(f"s_mul_i32 {sT1}, {sT1}, 5")
    a(f"s_add_u32 {sT0}, {sT0}, {sT1}")
    a(f"s_add_u32 {sT0}, {sT0}, 54")
    a(f"s_lshl_b32 {sT0}, {sT0}, 2")
    a(f"s_add_u32 {sT0}, {sT0}, {sWV}")
    a(f"s_lshl_b32 {sT0}, {sT0}, 10")
    a(f"s_and_b32 {sT1}, {sCG}, 1")
    a(f"s_mul_i32 {sT2}, {sT1}, {3*4096}")
    a(f"s_add_u32 {sT2}, {sT2}, {sT0}")
    a(f"buffer_store_dwordx4 {O[0:4]}, {t0}, {rWS}, {sT2} offen")
    a(f"buffer_store_dwordx4 {O[4:8]}, {t1}, {rWS}, {sT2} offen")
    a(f"s_lshl_b32 {sT1}, {sT1}, 3")
    a(f"s_add_u32 {sT0}, {sT0}, {sT1}")
    a(f"s_add_u32 {sT0}, {sT0}, 8192")
    a(f"buffer_store_dwordx2 {O[8:10]}, {t0}, {rWS}, {sT0} offen")
    stamp(a, 3, 2)
    stamp_flush(a, 2)
    a.label(END)
    a("s_endpgm")

def kernel_p2(a):
    END = 'P2_END'
    prologue(a, END)
    lane = V(0)
    va = Alloc('v', 1, 250)
    tid = va(); t0, t1, t2, t3 = va(), va(), va(), va()
    vo, vo4 = va(), va()
    G = [va() for _ in range(4)]
    NB = 4
    AF = [[va(4) for tt in range(4)] for b in range(NB)]
    BF = [[va(4) for j in range(5)] for b in range(NB)]
    ACC = [[va(4) for j in range(5)] for tt in range(4)]
    sRB, sCG, sT0, sT1, sT2, sA, sB, sA2, sB2 = [S(62 + i) for i in range(9)]
    rOUT = S(72, 4)
    a(f"v_mov_b32 {tid}, v0")
    a(f"v_and_b32 {lane}, 63, v0")
    stamp(a, 0, 3)
    a(f"s_and_b32 {sT0}, s2, 7")
    a(f"s_lshr_b32 {sT1}, s2, 3")
    a(f"s_lshl_b32 {sRB}, {sT0}, 2")
    a(f"s_lshr_b32 {sT2}, {sT1}, 3")
    a(f"s_add_u32 {sRB}, {sRB}, {sT2}")
    a(f"s_and_b32 {sCG}, {sT1}, 7")
    a(f"v_lshlrev_b32 {vo}, 4, {lane}")
    a(f"v_add_u32 {vo4}, 4096, {vo}")
    a(f"s_mul_i32 {sT0}, {sRB}, 74")
    a(f"s_add_u32 {sA}, {sT0}, {sWV}")
    a(f"s_lshl_b32 {sA}, {sA}, 12")
    a(f"s_mul_i32 {sT1}, {sCG}, 74")
    a(f"s_add_u32 {sB}, {sT1}, {sWV}")
    a(f"s_mul_i32 {sB}, {sB}, 5120")
    a(f"s_add_u32 {sB}, {sB}, {BP}")
    a(f"s_add_u32 {sT2}, {sWV}, 2")
    a(f"s_and_b32 {sT2}, {sT2}, 7")
    a(f"s_add_u32 {sA2}, {sT0}, {sT2}")
    a(f"s_add_u32 {sA2}, {sA2}, 54")
    a(f"s_lshl_b32 {sA2}, {sA2}, 12")
    a(f"s_add_u32 {sB2}, {sT1}, {sT2}")
    a(f"s_add_u32 {sB2}, {sB2}, 54")
    a(f"s_mul_i32 {sB2}, {sB2}, 5120")
    a(f"s_add_u32 {sB2}, {sB2}, {BP}")
    a("s_waitcnt lgkmcnt(0)")
    srd(a, rWS, pWS, WSZ)
    srd(a, rA, pWS, WSZ)
    srd(a, rB, pWS, WSZ)
    srd(a, rOUT, pOUT, 2048 * 1280)
    a(f"s_cmp_lt_u32 {sWV}, 6")
    a(f"s_cselect_b32 {rA[2]}, {WSZ}, 0")
    a(f"s_cmp_lt_u32 {sT2}, 4")
    a(f"s_cselect_b32 {rB[2]}, {WSZ}, 0")
    vm = VmTrack()
    a(f"v_and_b32 {t0}, 15, {lane}")
    a(f"v_lshlrev_b32 {t0}, 2, {t0}")
    a(f"s_lshl_b32 {sT0}, {sRB}, 8")
    a(f"s_add_u32 {sT0}, {sT0}, {GOFF}")
    for tt in range(4):
        a(f"buffer_load_dword {G[tt]}, {t0}, {rWS}, {sT0} offen offset:{tt*64}"); vm.issue('g')
    def loads(slot):
        b = slot % NB
        l = []
        if slot < 7: sa, sb, i = sA, sB, slot
        else: sa, sb, i = sA2, sB2, slot - 7
        r = rA if slot == 6 else (rB if slot == 9 else rWS)
        l.append(f"s_add_u32 {sT0}, {sa}, {i*8*4096}")
        l.append(f"s_add_u32 {sT1}, {sb}, {i*8*5120}")
        for tt in range(4):
            l.append(f"buffer_load_dwordx4 {AF[b][tt]}, {vo}, {r}, {sT0} offen offset:{tt*1024}"); vm.issue(slot)
        for j in range(5):
            if j < 4: l.append(f"buffer_load_dwordx4 {BF[b][j]}, {vo}, {r}, {sT1} offen offset:{j*1024}")
            else: l.append(f"buffer_load_dwordx4 {BF[b][j]}, {vo4}, {r}, {sT1} offen")
            vm.issue(slot)
        return l
    for s in range(NB):
        for l in loads(s): a(l)
    for slot in range(10):
        b = slot % NB
        n = vm.wait_for(lambda t: t == slot)
        a(f"s_waitcnt vmcnt({n})")
        if slot == 0: stamp(a, 1, 3)
        for j in range(5):
            for tt in range(4):
                d = ACC[tt][j]
                a(f"v_mfma_f32_16x16x32_bf16 {d}, {BF[b][j]}, {AF[b][tt]}, {'0' if slot == 0 else d}")
        if slot + NB < 10:
            for l in loads(slot + NB): a(l)
        if slot == 6:
            for tt in range(4):
                a(f"v_sub_f32 {G[tt]}, 1.0, {G[tt]}")
            for tt in range(4):
                for j in range(5):
                    for k in range(4): a(f"v_mul_f32 {ACC[tt][j][k]}, {ACC[tt][j][k]}, {G[tt]}")
    stamp(a, 2, 3)
    a(f"s_mul_i32 {sT0}, {sWV}, 20480")
    a(f"v_add_u32 {t0}, {sT0}, {vo}")
    for tt in range(4):
        for j in range(5):
            a(f"ds_write_b128 {t0}, {ACC[tt][j]} offset:{(tt*5+j)*1024}")
    a("s_waitcnt lgkmcnt(0)")
    a("s_barrier")
    RD = [V(AF[0][0].lo + 4*i, 4) for i in range(16)]
    a(f"s_mul_i32 {sT0}, {sRB}, {64*1280}")
    a(f"s_mul_i32 {sT1}, {sCG}, 160")
    a(f"s_add_u32 {sT0}, {sT0}, {sT1}")
    for rnd in range(2):
        if rnd == 1:
            a(f"s_cmp_ge_u32 {sWV}, 2")
            a(f"s_cbranch_scc1 P2_FIN")
            a(f"v_add_u32 {tid}, 512, {tid}")
        a(f"v_mul_u32_u24 {t0}, 205, {tid}")
        a(f"v_lshrrev_b32 {t0}, 11, {t0}")
        a(f"v_mul_u32_u24 {t1}, 10, {t0}")
        a(f"v_sub_u32 {t1}, {tid}, {t1}")
        a(f"v_lshrrev_b32 {t2}, 4, {t0}")
        a(f"v_mul_u32_u24 {t2}, 5120, {t2}")
        a(f"v_lshl_add_u32 {t2}, {t1}, 9, {t2}")
        a(f"v_and_b32 {t3}, 15, {t0}")
        a(f"v_lshl_add_u32 {t2}, {t3}, 4, {t2}")
        a(f"v_add_u32 {t3}, {3*20480}, {t2}")
        a(f"v_add_u32 {vo4}, {6*20480}, {t2}")
        a(f"v_mul_u32_u24 {t0}, 1280, {t0}")
        a(f"v_lshl_add_u32 {t0}, {t1}, 4, {t0}")
        for w in range(8):
            base = (t2, t3, vo4)[w // 3]
            for h in range(2):
                a(f"ds_read_b128 {RD[2*w+h]}, {base} offset:{(w % 3)*20480 + h*256}")
            if w == 6: a("s_waitcnt lgkmcnt(8)")
        for w in range(1, 8):
            if w == 3: a("s_waitcnt lgkmcnt(0)")
            for h in range(2):
                for k in range(2):
                    a(f"v_pk_add_f32 {RD[h][2*k:2*k+2]}, {RD[h][2*k:2*k+2]}, {RD[2*w+h][2*k:2*k+2]}")
        for h in range(2):
            for k in range(2):
                a(f"v_cvt_pk_bf16_f32 {RD[2][2*h+k]}, {RD[h][2*k]}, {RD[h][2*k+1]}")
        a(f"buffer_store_dwordx4 {RD[2]}, {t0}, {rOUT}, {sT0} offen")
        a("s_nop 1")
    a.label('P2_FIN')
    stamp(a, 3, 3)
    if OPT['stamp']:
        a("s_waitcnt vmcnt(0)")
        stamp(a, 4, 3)
    stamp_flush(a, 3)
    a.label(END)
    a("s_endpgm")

def build(kernels):
    hdr = open(f'cdna_kernels/{NAME}.s.ref').read().split('; Override launch')[0]
    out = hdr
    for name, fn, grid, blk, lds in kernels:
        out += f"; @launch kernel={name} grid=({grid},1,1) block=({blk},1,1) lds={lds}\n"
    out += '.amdgcn_target "amdgcn-amd-amdhsa--gfx950"\n.text\n'
    for name, fn, grid, blk, lds in kernels:
        a = Asm(); fn(a)
        out += f".globl {name}\n.p2align 8\n.type {name},@function\n{name}:\n" + a.finalize()
        print(name, 'instrs', len(a.ins), 'nops', a.nnop, file=sys.stderr)
    out += '.section .rodata,"a"\n'
    for name, fn, grid, blk, lds in kernels:
        out += f""".p2align 6
.amdhsa_kernel {name}
  .amdhsa_next_free_vgpr 256
  .amdhsa_next_free_sgpr 102
  .amdhsa_accum_offset 256
  .amdhsa_group_segment_fixed_size 0
  .amdhsa_kernarg_size 96
  .amdhsa_user_sgpr_count 2
  .amdhsa_user_sgpr_kernarg_segment_ptr 1
  .amdhsa_system_sgpr_workgroup_id_x 1
.end_amdhsa_kernel
"""
    return out

if __name__ == '__main__':
    outp = sys.argv[1]
    for o in sys.argv[2:]:
        k, v = o.split('='); OPT[k] = int(v)
    ks = [('zero_kernel', kernel_zero, 24, 512, 0), ('p1_kernel', kernel_p1, 256, 512, 163840),
          ('o_kernel', kernel_o, 256, 512, 16384), ('p2_kernel', kernel_p2, 256, 512, 163840)]
    open(outp, 'w').write(build(ks))
```

```python
import sys
sys.path.insert(0, 'gen')
from asmlib import *
NAME = 'gated_mix__linear_kernel_hedgehog__swiglu_ffn__prompt'
AP = 0; BP = 0xA00000; PQ = 0xD00000; KVACC = 0x1200000; FH = 0x1230000; FK = 0x1232000; ZEND = 0x1234000
GOFF = 0x1240000; DUMMY = 0x1250000; STAMP = 0x1300000; WSZ = 0x1600000
LOG2E = 0x3fb8aa3b; NLOG2E = 0xbfb8aa3b
OPT = dict(stamp=0, touch=1, bs="{'p0':(0,2),'p1':(2,5),3:(5,8),7:(8,10)}", pp=0, spnt='', rot2=1, slp=1, early=1, btouch=1, atf='sc1', cpf=0)
ST = 'sc1'; LD = 'sc1'

pX, pQKV, pPHI, pWO, pBX, pWG, pWU, pWD = [S(16 + 2 * i, 2) for i in range(8)]
pGW, pOUT, pDBG, pWS = [S(32 + 2 * i, 2) for i in range(4)]
sWV = S(3)
rX, rW, rWS, rA, rB = S(40, 4), S(44, 4), S(48, 4), S(52, 4), S(56, 4)
sC = S(60, 2)
rDBG = S(84, 4)
sFLAG = S(88); sTO = S(89); sNEED = S(7)
GOD = 0x1000
sP = S(14, 2)
XSLOT = 32768; WB = 98304
GWB = 159744; CNT = 161024; ZERO = 161280; KVB = 147456

def srd(a, d, base, size):
    a(f"s_mov_b32 {d[0]}, {base[0]}")
    a(f"s_and_b32 {d[1]}, {base[1]}, 0xffff")
    a(f"s_mov_b32 {d[2]}, {size}")
    a(f"s_mov_b32 {d[3]}, 0x20000")

def sstamp(a, j):
    if OPT['stamp'] != 3: return
    if j > 0: a(f"v_writelane_b32 v255, s92, {40 + j - 1}")
    a("s_memtime s[92:93]")
def stamp(a, idx):
    if not OPT['stamp']: return
    if OPT['stamp'] >= 2 and idx not in (2, 11): return
    a("s_memrealtime s[90:91]")
    a("s_memtime s[92:93]")
    a("s_waitcnt lgkmcnt(0)")
    a(f"v_writelane_b32 v255, s90, {2*idx}")
    a(f"v_writelane_b32 v255, s92, {2*idx+1}")
def stamp_flush(a):
    if not OPT['stamp']: return
    a("v_writelane_b32 v255, s10, 0"); a("v_writelane_b32 v255, s12, 1")
    a("s_lshl_b32 s90, s2, 3")
    a(f"s_add_u32 s90, s90, {sWV}")
    a("s_lshl_b32 s90, s90, 8")
    a(f"s_add_u32 s90, s90, {STAMP + 0x80000}")
    a("v_lshlrev_b32 v254, 2, v0")
    a(f"buffer_store_dword v255, v254, {rWS}, s90 offen")

def vpoll(a, vzero, soff, off, tmp):
    L, D = a.newlabel('POLL'), a.newlabel('POLLD')
    a(f"s_mov_b32 {sTO}, 0x80000")
    a.label(L)
    a(f"buffer_load_dword {tmp}, {vzero}, {rWS}, {soff} offen offset:{off} sc1")
    a("s_waitcnt vmcnt(0)")
    a(f"v_cmp_eq_u32 vcc, 0, {tmp}")
    a("s_nop 0")
    a(f"s_cbranch_vccz {D}")
    a(f"s_sleep {OPT['slp']}")
    a(f"s_sub_u32 {sTO}, {sTO}, 1")
    a(f"s_cbranch_scc0 {L}")
    a.label(D)
def arrive(a, soff, need, z, one, nyounger=0):
    D = a.newlabel('ARR')
    a(f"v_mov_b32 {z}, 0"); a(f"v_mov_b32 {one}, 1")
    a(f"s_waitcnt vmcnt({nyounger})")
    a("s_mov_b64 exec, 1")
    a(f"buffer_atomic_add {one}, {z}, {rWS}, {soff} offen sc0 sc1")
    a("s_waitcnt vmcnt(0)")
    a(f"v_readfirstlane_b32 {sP[0]}, {one}")
    a(f"s_add_u32 {sP[1]}, {soff}, {GOD}")
    a(f"s_cmp_lg_u32 {sP[0]}, {need}")
    a(f"s_cbranch_scc1 {D}")
    a(f"buffer_store_dword {one}, {z}, {rWS}, {sP[1]} offen sc1")
    a.label(D)
    a("s_mov_b64 exec, -1")
def init_poll(a, reg):
    L, D = a.newlabel('POLL'), a.newlabel('POLLD')
    a(f"s_mov_b32 {sTO}, 0x80000")
    a.label(L)
    a(f"v_mov_b32 {reg}, 0")
    a(f"buffer_load_dword {reg}, {reg}, {rDBG}, 0 offen sc1")
    a("s_waitcnt vmcnt(0)")
    a(f"v_readfirstlane_b32 {sP[0]}, {reg}")
    a(f"s_cmp_ge_u32 {sP[0]}, 16")
    a(f"s_cbranch_scc1 {D}")
    a("s_sleep 4")
    a(f"s_sub_u32 {sTO}, {sTO}, 1")
    a(f"s_cbranch_scc0 {L}")
    a.label(D)

def softmax_unit(a, P, E, M, T, O, side=None):
    side = list(side or [])
    a(f"v_max3_f32 {M[0]}, {P[0]}, {P[1]}, {P[2]}")
    a(f"v_min3_f32 {M[2]}, {P[0]}, {P[1]}, {P[2]}")
    for i in range(3, 19, 2):
        a(f"v_max3_f32 {M[0]}, {M[0]}, {P[i]}, {P[i+1]}")
        a(f"v_min3_f32 {M[2]}, {M[2]}, {P[i]}, {P[i+1]}")
    a(f"v_max_f32 {M[0]}, {M[0]}, {P[19]}")
    a(f"v_min_f32 {M[2]}, {M[2]}, {P[19]}")
    a(f"v_mul_f32 {M[0]}, {sC[0]}, {M[0]}")
    a(f"v_mul_f32 {M[2]}, {sC[0]}, {M[2]}")
    for i in range(0, 20, 2):
        a(f"v_pk_fma_f32 {E[i:i+2]}, {P[i:i+2]}, {sC}, {M[0:2]} op_sel_hi:[1,1,0] neg_lo:[0,0,1] neg_hi:[0,0,1]")
        a(f"v_pk_fma_f32 {E[20+i:22+i]}, {P[i:i+2]}, {sC}, {M[2:4]} op_sel_hi:[1,1,0] neg_lo:[1,0,0] neg_hi:[1,0,0]")
    for i in range(40):
        a(f"v_exp_f32 {E[i]}, {E[i]}")
        if side and i % 2 == 1: a(side.pop(0))
    for l in side: a(l)
    a(f"v_pk_add_f32 {T[0:2]}, {E[0:2]}, {E[2:4]}")
    a(f"v_pk_add_f32 {T[2:4]}, {E[20:22]}, {E[22:24]}")
    for i in range(4, 20, 2):
        a(f"v_pk_add_f32 {T[0:2]}, {T[0:2]}, {E[i:i+2]}")
        a(f"v_pk_add_f32 {T[2:4]}, {T[2:4]}, {E[20+i:22+i]}")
    a(f"v_add_f32 {T[0]}, {T[0]}, {T[1]}")
    a(f"v_add_f32 {T[2]}, {T[2]}, {T[3]}")
    a(f"v_rcp_f32 {T[0]}, {T[0]}")
    a(f"v_rcp_f32 {T[2]}, {T[2]}")
    for i in range(0, 20, 2):
        a(f"v_pk_mul_f32 {E[i:i+2]}, {E[i:i+2]}, {T[0:2]} op_sel_hi:[1,0]")
        a(f"v_pk_mul_f32 {E[20+i:22+i]}, {E[20+i:22+i]}, {T[2:4]} op_sel_hi:[1,0]")
    for i in range(20):
        a(f"v_cvt_pk_bf16_f32 {O[i]}, {E[2*i]}, {E[2*i+1]}")

def kernel(a):
    END = 'K_END'
    BS = eval(OPT['bs'])
    a("s_cmp_ge_u32 s2, 256")
    a(f"s_cbranch_scc1 {END}")
    if OPT['stamp']:
        a("s_memrealtime s[10:11]"); a("s_memtime s[12:13]"); a("v_mov_b32 v255, 0")
    a("s_load_dwordx16 s[16:31], s[0:1], 0")
    a("s_load_dwordx8 s[32:39], s[0:1], 64")
    lane = V(0)
    tid, t0, t1, t2, t3, t4 = V(1), V(2), V(3), V(4), V(5), V(6)
    vqd, vr, vc, vl15 = V(7), V(8), V(9), V(10)
    vx = [V(11 + i) for i in range(4)]
    xa = [[V(15), V(16)], [V(17), V(18)]]
    tdum = V(19); ta = V(20, 2); tb = V(22, 2)
    R0 = 24
    sTY, sRB, sXK, sWK, sM, sT0, sT1, sT2, sT3, sRG, sHI, sID, sMW, sC8, sR4 = [S(62 + i) for i in range(15)]
    a(f"v_lshrrev_b32 {t0}, 6, v0")
    a(f"v_mov_b32 {tid}, v0")
    a(f"v_readfirstlane_b32 {sWV}, {t0}")
    a(f"v_and_b32 {lane}, 63, v0")
    a(f"s_bfe_u32 {sC8}, s2, 0x30003")
    a(f"s_lshr_b32 {sR4}, s2, 6")
    a(f"s_and_b32 {sRB}, s2, 1")
    a(f"s_lshl_b32 {sRB}, {sRB}, 2")
    a(f"s_add_u32 {sRB}, {sRB}, {sR4}")
    a(f"s_bfe_u32 {sT0}, s2, 0x20001")
    a(f"s_and_b32 {sRG}, {sWV}, 3")
    a(f"s_lshr_b32 {sHI}, {sWV}, 2")
    a(f"v_lshrrev_b32 {vqd}, 4, {lane}")
    a(f"v_bfe_u32 {vr}, {lane}, 2, 2")
    a(f"v_and_b32 {vc}, 3, {lane}")
    a(f"v_and_b32 {vl15}, 15, {lane}")
    a(f"v_lshrrev_b32 {t0}, 3, {lane}")
    a(f"v_mul_u32_u24 {t0}, 1280, {t0}")
    a(f"v_and_b32 {t1}, 7, {lane}")
    a(f"v_xor_b32 {t1}, {t1}, {vqd}")
    a(f"v_lshl_add_u32 {vx[0]}, {t1}, 4, {t0}")
    a(f"v_xor_b32 {t1}, 4, {t1}")
    a(f"v_lshl_add_u32 {vx[1]}, {t1}, 4, {t0}")
    a(f"v_add_u32 {vx[1]}, {8*1280-1024}, {vx[1]}")
    a(f"v_add_u32 {vx[2]}, {16*1280-2048}, {vx[0]}")
    a(f"v_add_u32 {vx[3]}, {16*1280-2048}, {vx[1]}")
    a(f"s_mul_i32 {sXK}, {sRB}, {256*1280}")
    a(f"s_mul_i32 {sT1}, {sWV}, {32*1280}")
    a(f"s_add_u32 {sXK}, {sXK}, {sT1}")
    a(f"s_lshl_b32 {sM}, {sWV}, 12")
    a(f"v_lshlrev_b32 {t2}, 3, {tid}")
    a(f"v_min_u32 {t2}, {163840 - CNT - 8}, {t2}")
    a(f"v_add_u32 {t2}, {CNT}, {t2}")
    a(f"v_mov_b32 {ta[0]}, 0"); a(f"v_mov_b32 {ta[1]}, 0")
    a(f"ds_write_b64 {t2}, {ta}")
    a(f"s_mul_i32 {sID}, {sT0}, 9"); a(f"s_add_u32 {sID}, {sID}, 1"); a(f"s_lshr_b32 {sID}, {sID}, 1")
    a(f"s_add_u32 {sID}, {sID}, {sC8}"); a(f"s_sub_u32 {sID}, {sID}, 3")
    a(f"s_and_b32 {sT1}, {sT0}, 1"); a(f"s_add_u32 {sT1}, {sT1}, {sC8}")
    a(f"s_mov_b32 {sC[0]}, {LOG2E:#x}")
    a(f"s_mov_b32 {sC[1]}, {LOG2E:#x}")
    a("s_waitcnt lgkmcnt(0)")
    srd(a, rX, pX, 2048 * 1280)
    srd(a, rWS, pWS, WSZ)
    srd(a, rDBG, pDBG, 256)
    if OPT['cpf']:
        a(f"s_cmp_lg_u32 {sWV}, 7"); a("s_cbranch_scc1 NOCPF")
        a("s_getpc_b64 s[4:5]")
        a("s_and_b32 s4, s4, 0xffffff00")
        a("s_lshr_b32 s6, s2, 3"); a(f"s_mul_i32 s6, s6, {OPT['cpf']*128}")
        a(f"v_lshlrev_b32 {t0}, 7, {lane}"); a(f"v_add_u32 {t0}, s6, {t0}")
        a(f"s_mov_b64 exec, {(1 << OPT['cpf']) - 1:#x}")
        a(f"global_load_dword v31, {t0}, s[4:5]")
        a("s_mov_b64 exec, -1")
        a.label("NOCPF")
    a(f"s_cmp_lt_u32 {sC8}, 3")
    a("s_cbranch_scc1 R_QKV")
    a(f"s_cmp_eq_u32 {sT1}, 8")
    a("s_cbranch_scc1 R_SPARE")

    def x_dma(vm, blk, half):
        l = [f"s_add_u32 m0, {sM}, {(blk % 3) * XSLOT}"]
        if half == 0 and blk > 0: l.append(f"s_add_u32 {sXK}, {sXK}, 128")
        for n in (2 * half, 2 * half + 1):
            l.append(f"buffer_load_dwordx4 {vx[n]}, {rX}, {sXK} offen offset:{n*1024} lds")
            vm.issue(('X', blk))
        return l
    def x_addr_setup():
        a(f"v_lshrrev_b32 {t0}, 1, {vl15}")
        a(f"v_xor_b32 {t0}, {t0}, {vqd}")
        a(f"v_lshlrev_b32 {t0}, 4, {t0}")
        a(f"v_lshl_add_u32 {t0}, {vl15}, 7, {t0}")
        a(f"s_lshl_b32 {sT0}, {sRG}, 13")
        a(f"v_add_u32 {xa[0][0]}, {sT0}, {t0}")
        a(f"v_xor_b32 {xa[0][1]}, 64, {xa[0][0]}")
        a(f"v_add_u32 {xa[1][0]}, 0x10000, {xa[0][0]}")
        a(f"v_add_u32 {xa[1][1]}, 0x10000, {xa[0][1]}")
    def x_reads(XF, step):
        blk, kk = step // 2, step % 2
        sl = blk % 3
        return [f"ds_read_b128 {XF[tt]}, {xa[sl // 2][kk]} offset:{(sl % 2) * XSLOT + tt * 2048}" for tt in range(4)]
    def burst(vm, b0, b1):
        if not OPT['touch']: return []
        l = []
        for st, reg in ((0, ta), (5, tb)):
            lo, hi = max(b0, st) - st, min(b1, st + 5) - st
            if lo >= hi: continue
            m = ((1 << (12 * hi)) - 1) & ~((1 << (12 * lo)) - 1)
            l += [f"s_mov_b32 exec_lo, {m & 0xffffffff:#x}", f"s_mov_b32 exec_hi, {m >> 32:#x}", f"global_load_dword {tdum}, {reg}, off"]
            vm.issue('T')
        l.append("s_mov_b64 exec, -1")
        return l
    def touch_setup(pw0, pw1, rowbytes, off0, off1, seg):
        if not OPT['touch']: return
        l12, bi = tb[0], tb[1]; tinc = tdum
        a(f"v_mul_u32_u24 {bi}, 43, {lane}"); a(f"v_lshrrev_b32 {bi}, 9, {bi}")
        a(f"v_mul_u32_u24 {l12}, 12, {bi}"); a(f"v_sub_u32 {l12}, {lane}, {l12}")
        a(f"s_lshl_b32 {sT2}, {sRB}, 3"); a(f"s_add_u32 {sT2}, {sT2}, {sC8}"); a(f"s_lshl_b32 {sT2}, {sT2}, 3"); a(f"s_add_u32 {sT2}, {sT2}, {sWV}")
        a(f"s_mul_i32 {sT2}, {sT2}, {4*1280}")
        a(f"v_mul_u32_u24 {t0}, 1280, {l12}")
        a(f"v_add_u32 {t0}, {sT2}, {t0}")
        a(f"s_lshl_b32 {sT0}, {sR4}, 3"); a(f"s_add_u32 {sT0}, {sT0}, {sWV}"); a(f"s_mul_i32 {sT0}, {sT0}, {2*rowbytes}")
        a(f"v_subrev_u32 {t1}, 4, {l12}")
        a(f"v_bfe_u32 {t2}, {t1}, 2, 1")
        a(f"v_mul_u32_u24 {t2}, {rowbytes}, {t2}")
        a(f"v_and_b32 {t3}, 1, {t1}")
        a(f"v_mul_u32_u24 {t3}, {seg-4}, {t3}")
        a(f"v_add3_u32 {t2}, {t2}, {t3}, {sT0}")
        a(f"v_and_b32 {t3}, 2, {t1}")
        a(f"v_cmp_eq_u32 vcc, 0, {t3}")
        a(f"v_mov_b32 {t3}, {off1}"); a(f"v_mov_b32 {t4}, {off0}")
        a(f"v_cndmask_b32 {t3}, {t3}, {t4}, vcc")
        a(f"v_add_u32 {t2}, {t2}, {t3}")
        a(f"v_mov_b32 {t3}, {pw1[0]}"); a(f"v_mov_b32 {t4}, {pw0[0]}"); a(f"v_cndmask_b32 {ta[0]}, {t3}, {t4}, vcc")
        a(f"v_mov_b32 {t3}, {pw1[1]}"); a(f"v_mov_b32 {t4}, {pw0[1]}"); a(f"v_cndmask_b32 {ta[1]}, {t3}, {t4}, vcc")
        a(f"v_cmp_gt_u32 vcc, 4, {l12}")
        a(f"v_mov_b32 {t3}, {pX[0]}"); a(f"v_mov_b32 {t4}, {pX[1]}")
        a(f"v_cndmask_b32 {t2}, {t2}, {t0}, vcc")
        a(f"v_cndmask_b32 {ta[0]}, {ta[0]}, {t3}, vcc")
        a(f"v_cndmask_b32 {ta[1]}, {ta[1]}, {t4}, vcc")
        a(f"v_mov_b32 {t3}, {64*rowbytes}"); a(f"v_mov_b32 {t4}, 128"); a(f"v_cndmask_b32 {tinc}, {t3}, {t4}, vcc")
        a(f"v_mad_u32_u24 {t2}, {tinc}, {bi}, {t2}")
        a(f"v_add_co_u32 {ta[0]}, vcc, {ta[0]}, {t2}")
        a(f"v_mul_u32_u24 {t2}, 5, {tinc}")
        a(f"v_addc_co_u32 {ta[1]}, vcc, 0, {ta[1]}, vcc")
        a(f"v_add_co_u32 {tb[0]}, vcc, {ta[0]}, {t2}")
        a(f"v_addc_co_u32 {tb[1]}, vcc, 0, {ta[1]}, vcc")
    def step_body(mains, lblk, pre=[]):
        for l in pre: a(l)
        if not lblk:
            for m in mains: a(m)
            return
        if OPT['pp'] == 2:
            rds = [l for l in lblk if l.startswith('ds_read')]; oth = [l for l in lblk if not l.startswith('ds_read')]
            l1, l2 = a.newlabel('PP'), a.newlabel('PP')
            if oth:
                a(f"s_cmp_eq_u32 {sHI}, 0"); a(f"s_cbranch_scc1 {l1}")
                for l in oth: a(l)
                a.label(l1)
            k = 0
            for i, m in enumerate(mains):
                a(m)
                while k < len(rds) and k < (i + 1) * max(1, -(-len(rds) // len(mains))):
                    a(rds[k]); k += 1
            if oth:
                a(f"s_cmp_eq_u32 {sHI}, 0"); a(f"s_cbranch_scc0 {l2}")
                for l in oth: a(l)
                a.label(l2)
        elif OPT['pp']:
            l1, l2 = a.newlabel('PP'), a.newlabel('PP')
            a(f"s_cmp_eq_u32 {sHI}, 0"); a(f"s_cbranch_scc1 {l1}")
            for l in lblk: l() if callable(l) else a(l)
            a.label(l1)
            for m in mains: a(m)
            a(f"s_cmp_eq_u32 {sHI}, 0"); a(f"s_cbranch_scc0 {l2}")
            for l in lblk: l() if callable(l) else a(l)
            a.label(l2)
        else:
            k = 0
            for i, m in enumerate(mains):
                a(m)
                while k < len(lblk) and k < (i + 1) * len(lblk) // len(mains) + 1:
                    l = lblk[k]; l() if callable(l) else a(l); k += 1
    def init_check_issue(reg):
        return [f"v_mov_b32 {reg}, 0", f"buffer_load_dword {reg}, {reg}, {rDBG}, 0 offen sc1"]
    def init_check(reg):
        ok = a.newlabel('INITOK')
        a(f"v_readfirstlane_b32 {sP[0]}, {reg}")
        a(f"s_cmp_ge_u32 {sP[0]}, 16")
        a(f"s_cbranch_scc1 {ok}")
        init_poll(a, reg)
        a.label(ok)
    sR6, sCG, sAB, sBB, sBc, sBe, sBl, sLim = [S(94 + i) for i in range(8)]
    vo, vo4 = V(20), V(21)
    BRb = [208, 228, 32, 52]
    BR = [[V(BRb[b] + 4 * j, 4) for j in range(5)] for b in range(4)]
    def p2_setup():
        l = [f"s_and_b32 {sR6}, s2, 7", f"s_lshl_b32 {sR6}, {sR6}, 2", "s_lshr_b32 s4, s2, 6", f"s_add_u32 {sR6}, {sR6}, s4",
             f"s_bfe_u32 {sCG}, s2, 0x30003", f"v_lshlrev_b32 {vo}, 4, {lane}", f"v_add_u32 {vo4}, 4096, {vo}",
             f"s_mul_i32 {sAB}, {sR6}, {74*4096}", f"s_mul_i32 {sBB}, {sCG}, {74*5120}", f"s_add_u32 {sBB}, {sBB}, {BP}",
             f"s_mov_b32 {rB[0]}, {pWS[0]}", f"s_and_b32 {rB[1]}, {pWS[1]}, 0xffff", f"s_mov_b32 {rB[2]}, {WSZ}", f"s_mov_b32 {rB[3]}, 0x20000",
             f"s_mul_i32 s4, {sCG}, {5 if OPT['rot2'] else 0}", "s_and_b32 s4, s4, -4",
             f"s_lshl_b32 s5, {sCG}, 1", f"s_and_b32 s5, s5, {-4 if OPT['rot2'] else 0}", "s_add_u32 s5, s5, 40",
             f"s_cmp_eq_u32 {sHI}, 0\ns_cselect_b32 {sBc}, s5, s4\ns_cselect_b32 {sBe}, 56, 40\ns_cselect_b32 {sBl}, 16, 40",
             f"s_add_u32 {sBc}, {sBc}, {sRG}", f"s_mov_b32 {sLim}, 54"]
        return l
    def b_adv():
        return [f"s_add_u32 {sBc}, {sBc}, 4", f"s_sub_u32 s5, {sBc}, {sBl}", f"s_cmp_ge_u32 {sBc}, {sBe}\ns_cselect_b32 {sBc}, s5, {sBc}"]
    def b_addr():
        return [f"s_mul_i32 s4, {sBc}, 5120", f"s_add_u32 s4, s4, {sBB}", f"s_cmp_lt_u32 {sBc}, {sLim}\ns_cselect_b32 {rB[2]}, {WSZ}, 0"]
    def b_reg(vm, b, tag):
        l = b_addr()
        for j in range(5):
            if j < 4: l.append(f"buffer_load_dwordx4 {BR[b][j]}, {vo}, {rB}, s4 offen offset:{j*1024} {LD}")
            else: l.append(f"buffer_load_dwordx4 {BR[b][j]}, {vo4}, {rB}, s4 offen {LD}")
            vm.issue(tag)
        return l + b_adv()
    def b_switch():
        return [f"s_mul_i32 s4, {sCG}, {5 if OPT['rot2'] else 0}", "s_lshr_b32 s4, s4, 3", "s_lshl_b32 s4, s4, 2", f"s_add_u32 s4, s4, {sRG}", "s_add_u32 s4, s4, 54",
                f"s_cmp_eq_u32 {sHI}, 0\ns_cselect_b32 {sBc}, s4, {sBc}\ns_cselect_b32 {sBe}, 74, 40\ns_cselect_b32 {sBl}, 20, 40", f"s_mov_b32 {sLim}, 100",
                f"s_mul_i32 s6, {sWV}, 15360"]
    def b_lds(vm, k):
        l = b_addr() + [f"s_add_u32 m0, s6, {k*5120}"]
        for j in range(4):
            l.append(f"buffer_load_dwordx4 {vo}, {rB}, s4 offen offset:{j*1024} {LD} lds"); vm.issue('BL')
        l.append(f"s_add_u32 m0, s6, {k*5120 + 4096}")
        l.append(f"buffer_load_dwordx4 {vo4}, {rB}, s4 offen {LD} lds"); vm.issue('BL')
        return l + b_adv()
    def b_touch(vm):
        if not OPT['btouch']: return []
        vm.issue('T'); vm.issue('T')
        return ["s_lshr_b32 s4, s2, 6", "s_lshl_b32 s4, s4, 3", f"s_add_u32 s4, s4, {sWV}", f"s_mul_i32 s4, s4, {93*128}", f"s_add_u32 s4, s4, {sBB}",
                f"v_lshlrev_b32 {V(22)}, 7, {lane}", f"buffer_load_dword {tdum}, {V(22)}, {rWS}, s4 offen {LD}", f"s_add_u32 s4, s4, 8192",
                f"s_mov_b64 exec, 0x1fffffff\nbuffer_load_dword {tdum}, {V(22)}, {rWS}, s4 offen {LD}\ns_mov_b64 exec, -1"]
    def flag_store(need):
        stamp(a, 3)
        arrive(a, sFLAG, need, t0, t1)
        a("s_setprio 0")
        stamp(a, 4)

    vw = [V(R0), V(R0 + 1)]; wa = [V(R0 + 2), V(R0 + 3), V(R0 + 4)]; vchk = V(R0 + 5)
    FB = [32, 72]
    XF = [[V(FB[b] + 4 * tt, 4) for tt in range(4)] for b in range(2)]
    WF = [[V(FB[b] + 16 + 4 * c, 4) for c in range(6)] for b in range(2)]
    ACC = [[V(112 + (c * 4 + tt) * 4, 4) for tt in range(4)] for c in range(6)]
    vm = VmTrack()
    a(f"s_mul_i32 {sT3}, {sID}, 192")
    touch_setup(pWG, pWU, 3456, sT3, sT3, 192)
    for l in burst(vm, *BS['p0']): a(l)
    a(f"s_bitcmp1_b32 {sWV}, 0")
    a(f"s_cselect_b32 {rW[0]}, {pWU[0]}, {pWG[0]}")
    a(f"s_cselect_b32 {rW[1]}, {pWU[1]}, {pWG[1]}")
    a(f"s_and_b32 {rW[1]}, {rW[1]}, 0xffff")
    a(f"s_mov_b32 {rW[2]}, {640*3456}")
    a(f"s_mov_b32 {rW[3]}, 0x20000")
    a(f"s_bfe_u32 {sT0}, {sWV}, 0x10001")
    a(f"s_lshl_b32 {sT1}, {sT0}, 1")
    for n in range(2):
        a(f"v_add_u32 {t0}, {64*n}, {lane}")
        a(f"v_mul_u32_u24 {t1}, 43, {t0}")
        a(f"v_lshrrev_b32 {t1}, 9, {t1}")
        a(f"v_mul_u32_u24 {t2}, 12, {t1}")
        a(f"v_sub_u32 {t2}, {t0}, {t2}")
        a(f"v_lshrrev_b32 {t3}, 2, {t2}")
        a(f"v_cmp_eq_u32 vcc, 1, {t3}")
        a(f"v_mov_b32 {t3}, {sT1}")
        a(f"v_mov_b32 {t4}, {sT0}")
        a(f"v_cndmask_b32 {t3}, {t3}, {t4}, vcc")
        a(f"v_xor_b32 {t2}, {t2}, {t3}")
        a(f"v_mul_u32_u24 {t1}, 3456, {t1}")
        a(f"v_lshl_add_u32 {vw[n]}, {t2}, 4, {t1}")
        if n: a(f"v_subrev_u32 {vw[n]}, 1024, {vw[n]}")
    a(f"s_lshr_b32 {sT0}, {sWV}, 1")
    a(f"s_mul_i32 {sWK}, {sT0}, {8*3456}")
    a(f"s_add_u32 {sWK}, {sWK}, {sT3}")
    a(f"s_mul_i32 {sMW}, {sT0}, 1536")
    a(f"s_and_b32 {sT1}, {sWV}, 1")
    a(f"s_mul_i32 {sT1}, {sT1}, 6144")
    a(f"s_add_u32 {sMW}, {sMW}, {sT1}")
    def w_dma(step):
        l = [f"s_add_u32 m0, {sMW}, {WB + (step % 5) * 12288}"] + ([f"s_add_u32 {sWK}, {sWK}, 110592"] if step else []) + [
             f"buffer_load_dwordx4 {vw[0]}, {rW}, {sWK} offen lds",
             "s_mov_b32 exec_hi, 0\n"
             f"buffer_load_dwordx4 {vw[1]}, {rW}, {sWK} offen offset:1024 lds\n"
             "s_mov_b32 exec_hi, -1"]
        vm.issue(('W', step)); vm.issue(('W', step))
        return l
    if OPT['touch']: a("s_barrier")
    for l in x_dma(vm, 0, 0) + x_dma(vm, 0, 1) + w_dma(0) + w_dma(1): a(l)
    x_addr_setup()
    a(f"v_lshl_add_u32 {t0}, {vqd}, 3, {vr}")
    a(f"v_mul_u32_u24 {t0}, 192, {t0}")
    a(f"v_add_u32 {t0}, {WB}, {t0}")
    a(f"v_and_b32 {t1}, 1, {vqd}")
    a(f"v_lshlrev_b32 {t2}, 5, {t1}")
    a(f"v_lshl_add_u32 {t2}, {vc}, 3, {t2}")
    a(f"s_lshl_b32 {sT0}, {sHI}, 7")
    a(f"v_add3_u32 {wa[0]}, {t0}, {t2}, {sT0}")
    a(f"v_xor_b32 {wa[1]}, 32, {wa[0]}")
    a(f"v_and_b32 {t2}, 2, {vc}")
    a(f"v_add_u32 {t2}, {sHI}, {t2}")
    a(f"v_xor_b32 {t2}, {t2}, {t1}")
    a(f"v_lshlrev_b32 {t2}, 4, {t2}")
    a(f"v_and_b32 {t3}, 1, {vc}")
    a(f"v_lshl_add_u32 {t2}, {t3}, 3, {t2}")
    a(f"v_add3_u32 {wa[2]}, {t0}, {t2}, 64")
    def w_reads(WFb, step):
        return [f"ds_read_b64_tr_b16 {WFb[m*3+i][2*rd:2*rd+2]}, {wa[i]} offset:{(step % 5) * 12288 + m * 6144 + rd * 768}"
                for m in range(2) for i in range(3) for rd in range(2)]
    if 'p1' in BS:
        a("s_barrier")
        for l in burst(vm, *BS['p1']): a(l)
    n = vm.wait_for(lambda t: t in (('X', 0), ('W', 0)))
    a(f"s_waitcnt vmcnt({n})")
    a("s_barrier")
    stamp(a, 1)
    for l in x_reads(XF[0], 0) + w_reads(WF[0], 0): a(l)
    for l in x_dma(vm, 1, 0) + x_dma(vm, 1, 1) + w_dma(2): a(l)
    for j in range(20):
        cur, nxt = j & 1, (j & 1) ^ 1
        if j < 19:
            n = vm.wait_for(lambda t: t in (('X', (j + 1) // 2), ('W', j + 1)) or (j == 15 and t == 'chk'))
            a(f"s_waitcnt vmcnt({n}) lgkmcnt(0)")
        else:
            a("s_waitcnt lgkmcnt(0)")
        if j == 15: init_check(vchk)
        a("s_barrier")
        sstamp(a, j)
        mains = [f"v_mfma_f32_16x16x32_bf16 {ACC[c][tt]}, {WF[cur][c]}, {XF[cur][tt]}, {'0' if j == 0 else ACC[c][tt]}" for c in range(6) for tt in range(4)]
        pre = burst(vm, *BS[j]) if j in BS else []
        lblk = []
        if j < 19:
            lblk += x_reads(XF[nxt], j + 1) + w_reads(WF[nxt], j + 1)
            if j == 0: lblk += w_dma(3) + x_dma(vm, 2, 0) + x_dma(vm, 2, 1) + w_dma(4)
            xb = (j - 1) // 2 + 3 if j >= 1 else 99
            if xb <= 9: lblk += x_dma(vm, xb, (j - 1) % 2)
            if j == 13: lblk += init_check_issue(vchk); vm.issue('chk')
            if j + 5 <= 19: lblk += w_dma(j + 5)
            if OPT['early']:
                if j == 15: lblk += p2_setup() + b_touch(vm)
                if j == 17: lblk += b_reg(vm, 0, 'B')
                if j == 18: lblk += b_reg(vm, 1, 'B')
        elif OPT['early']:
            lblk += b_reg(vm, 2, 'B') + b_reg(vm, 3, 'B') + b_switch()
        step_body(mains, lblk, pre)
    stamp(a, 2)
    a("s_setprio 2")
    sN = S(78, 2)
    a(f"s_mov_b32 {sN[0]}, {NLOG2E:#x}")
    a(f"s_mov_b32 {sN[1]}, {NLOG2E:#x}")
    a(f"s_lshl_b32 {sT3}, {sRB}, 2")
    a(f"s_add_u32 {sT3}, {sT3}, {sRG}")
    a(f"s_mul_i32 {sT0}, {sT3}, 74")
    a(f"s_mul_i32 {sT1}, {sID}, 3")
    a(f"s_add_u32 {sT0}, {sT0}, {sT1}")
    a(f"s_lshl_b32 {sT0}, {sT0}, 12")
    a(f"s_lshl_b32 {sT1}, {sHI}, 13")
    a(f"s_add_u32 {sT1}, {sT0}, {sT1}")
    a(f"s_lshl_b32 {sT2}, {sHI}, 9")
    a(f"s_add_u32 {sT2}, {sT2}, {sT0}")
    a(f"s_add_u32 {sT2}, {sT2}, 4096")
    a(f"s_lshl_b32 {sFLAG}, {sT3}, 7")
    a(f"s_add_u32 {sFLAG}, {sFLAG}, {FH}")
    a(f"v_lshlrev_b32 {t0}, 4, {lane}")
    a(f"v_and_b32 {t1}, 31, {lane}")
    a(f"v_lshlrev_b32 {t1}, 4, {t1}")
    a(f"v_lshrrev_b32 {t2}, 5, {lane}")
    a(f"v_lshl_add_u32 {t1}, {t2}, 10, {t1}")
    tmp = [V(FB[1] + 4 * i, 4) for i in range(2)]
    outs = [V(FB[1] + 8 + 4 * i, 4) for i in range(6)]
    def silu2(G0, U0, G1, U1, o):
        GU = ((G0, U0, tmp[0]), (G1, U1, tmp[1]))
        for G, U, T in GU:
            for h in range(2): a(f"v_pk_mul_f32 {T[2*h:2*h+2]}, {G[2*h:2*h+2]}, {sN}")
        for G, U, T in GU:
            for k in range(4): a(f"v_exp_f32 {T[k]}, {T[k]}")
        for G, U, T in GU:
            for h in range(2): a(f"v_pk_mul_f32 {G[2*h:2*h+2]}, {G[2*h:2*h+2]}, {U[2*h:2*h+2]}")
        for G, U, T in GU:
            for h in range(2): a(f"v_pk_add_f32 {T[2*h:2*h+2]}, {T[2*h:2*h+2]}, 1.0 op_sel_hi:[1,0]")
        for G, U, T in GU:
            for k in range(4): a(f"v_rcp_f32 {T[k]}, {T[k]}")
        for G, U, T in GU:
            for h in range(2): a(f"v_pk_mul_f32 {G[2*h:2*h+2]}, {G[2*h:2*h+2]}, {T[2*h:2*h+2]}")
        for q, (G, U, T) in enumerate(GU):
            for h in range(2): a(f"v_cvt_pk_bf16_f32 {o[2*q+h]}, {G[2*h]}, {G[2*h+1]}")
    for tt in range(4):
        o = outs[tt]
        if OPT['early'] and tt < 3:
            for l in b_lds(vm, tt): a(l)
        silu2(ACC[0][tt], ACC[3][tt], ACC[1][tt], ACC[4][tt], o)
        a(f"buffer_store_dwordx4 {o}, {t0}, {rWS}, {sT1} offen offset:{tt*1024} {ST}")
    for tp in range(2):
        o = outs[4 + tp]
        silu2(ACC[2][2*tp], ACC[5][2*tp], ACC[2][2*tp+1], ACC[5][2*tp+1], o)
        a(f"v_permlane32_swap_b32 {o[0]}, {o[2]}")
        a(f"v_permlane32_swap_b32 {o[1]}, {o[3]}")
        a(f"buffer_store_dwordx4 {o}, {t1}, {rWS}, {sT2} offen offset:{tp*2048} {ST}")
    flag_store(35)
    a("s_branch " + ('P2_GO' if OPT['early'] else 'P2_ALL'))

    a.label('R_QKV')
    vm = VmTrack()
    vw = [V(R0), V(R0 + 1), V(R0 + 2)]; wa = V(R0 + 3); pa = V(R0 + 4); vchk = V(R0 + 5); vgw = V(R0 + 6)
    FB = [32, 68]
    XF = [[V(FB[b] + 4 * tt, 4) for tt in range(4)] for b in range(2)]
    WF = [[V(FB[b] + 16 + 4 * c, 4) for c in range(5)] for b in range(2)]
    ACC = [V(104 + 20 * tt, 20) for tt in range(4)]
    pf4 = [V(32 + 4 * i, 4) for i in range(9)] + [V(196, 4)]
    pf2 = [V(200, 2), V(202, 2), V(204, 2), V(206, 2), V(248, 2)]
    PF = [[pf4[2 * t], pf4[2 * t + 1], pf2[t]] for t in range(5)]
    WP = V(184, 4); GWF = V(188, 4); GA = V(192, 4)
    sC0, sC1, sLo, sHi2, sISQ, sHB, sGD = [S(77 + i) for i in range(7)]
    PHW = 135168; PHB = 0; VVB = 90112; PS = 352
    srd(a, rW, pQKV, 640 * 3840)
    srd(a, rA, pPHI, 32 * 800)
    srd(a, rB, pGW, 1280)
    a(f"s_lshl_b32 {sID}, {sT0}, 1"); a(f"s_add_u32 {sID}, {sID}, {sC8}")
    a(f"s_mul_i32 {sC0}, {sID}, 160")
    a(f"s_add_u32 {sC1}, {sC0}, 2560")
    a(f"s_add_u32 {sC0}, {sC0}, 1280")
    a(f"s_lshl_b32 {sHB}, {sID}, 2")
    a(f"s_mul_i32 {sT1}, {sT0}, 320")
    a(f"s_add_u32 {sT2}, {sT1}, 160")
    a(f"s_lshl_b32 {sT3}, {sT0}, 3")
    a(f"s_cmp_eq_u32 {sC8}, 2")
    a(f"s_cselect_b32 {sC0}, {sT1}, {sC0}")
    a(f"s_cselect_b32 {sC1}, {sT2}, {sC1}")
    a(f"s_cselect_b32 {sHB}, {sT3}, {sHB}")
    a(f"s_cselect_b32 {sISQ}, 1, 0")
    a(f"s_or_b32 {sGD}, {sT0}, {sHI}")
    a(f"s_cmp_eq_u32 {sGD}, 0")
    a(f"s_cselect_b32 {sGD}, {sISQ}, 0")
    a(f"s_bitcmp1_b32 {sWV}, 0")
    a(f"s_cselect_b32 {sLo}, {sC1}, {sC0}")
    a(f"s_cselect_b32 {sHi2}, {sC0}, {sC1}")
    a(f"s_sub_u32 {sHi2}, {sHi2}, 160")
    touch_setup(pQKV, pQKV, 3840, sC0, sC1, 160)
    for l in burst(vm, *BS['p0']): a(l)
    for n in range(3):
        a(f"v_add_u32 {t0}, {64*n}, {lane}")
        a(f"v_mul_u32_u24 {t1}, 205, {t0}")
        a(f"v_lshrrev_b32 {t1}, 12, {t1}")
        a(f"v_mul_u32_u24 {t2}, 20, {t1}")
        a(f"v_sub_u32 {t2}, {t0}, {t2}")
        a(f"v_cmp_le_u32 vcc, 10, {t2}")
        a(f"v_mov_b32 {t3}, {sLo}")
        a(f"v_mov_b32 {t4}, {sHi2}")
        a(f"v_cndmask_b32 {t3}, {t3}, {t4}, vcc")
        a(f"v_mul_u32_u24 {t1}, 3840, {t1}")
        a(f"v_lshl_add_u32 {t1}, {t2}, 4, {t1}")
        a(f"v_add_u32 {vw[n]}, {t1}, {t3}")
        if n: a(f"v_subrev_u32 {vw[n]}, {1024*n}, {vw[n]}")
    a(f"s_mul_i32 {sWK}, {sWV}, {8*3840}")
    a(f"s_mul_i32 {sMW}, {sWV}, 2560")
    def w_dma2(blk):
        l = [f"s_add_u32 m0, {sMW}, {WB + (blk % 3) * 20480}"] + ([f"s_add_u32 {sWK}, {sWK}, 245760"] if blk else []) + [
             f"buffer_load_dwordx4 {vw[0]}, {rW}, {sWK} offen lds",
             f"buffer_load_dwordx4 {vw[1]}, {rW}, {sWK} offen offset:1024 lds",
             "s_mov_b32 exec_hi, 0\n"
             f"buffer_load_dwordx4 {vw[2]}, {rW}, {sWK} offen offset:2048 lds\n"
             "s_mov_b32 exec_hi, -1"]
        for _ in range(3): vm.issue(('W', blk))
        return l
    a(f"s_mul_i32 {sT0}, {sWV}, 160")
    a(f"v_lshl_add_u32 {t0}, {lane}, 4, {sT0}")
    a(f"s_add_u32 m0, {sT0}, {GWB}")
    a("s_mov_b64 exec, 0x3ff")
    a(f"buffer_load_dwordx4 {t0}, {rB}, 0 offen lds"); vm.issue(('W', 0))
    a("s_mov_b64 exec, -1")
    a(f"v_lshlrev_b32 {t0}, 4, {tid}")
    a(f"s_mul_i32 {sT0}, {sHB}, 800")
    a(f"v_add_u32 {t0}, {sT0}, {t0}")
    a(f"buffer_load_dwordx4 {WP}, {t0}, {rA}, 0 offen"); vm.issue(('P', 0))
    if OPT['touch']: a("s_barrier")
    for l in x_dma(vm, 0, 0) + x_dma(vm, 0, 1) + w_dma2(0): a(l)
    x_addr_setup()
    a(f"v_lshl_add_u32 {t0}, {vqd}, 3, {vr}")
    a(f"v_mul_u32_u24 {t0}, 320, {t0}")
    a(f"v_and_b32 {t1}, 1, {vqd}")
    a(f"v_xor_b32 {t1}, {sHI}, {t1}")
    a(f"v_mul_u32_u24 {t1}, 160, {t1}")
    a(f"v_mul_u32_u24 {t2}, 40, {vc}")
    a(f"v_add3_u32 {t0}, {t0}, {t1}, {t2}")
    a(f"v_add_u32 {wa}, {WB}, {t0}")
    a(f"s_and_b32 {sT0}, {sHI}, {sISQ}")
    a(f"s_mul_i32 {sT0}, {sT0}, 3200")
    a(f"s_add_u32 {sT0}, {sT0}, {PHW}")
    a(f"v_mul_u32_u24 {t0}, 800, {vqd}")
    a(f"v_add_u32 {t0}, {sT0}, {t0}")
    a(f"v_mov_b32 {t1}, {ZERO}")
    a(f"v_cmp_eq_u32 vcc, {vc}, {vqd}")
    a(f"v_cndmask_b32 {t0}, {t1}, {t0}, vcc")
    a(f"v_mul_u32_u24 {t1}, 40, {vr}")
    a(f"v_add_u32 {pa}, {t0}, {t1}")
    a(f"v_lshlrev_b32 {vgw}, 4, {vqd}")
    a(f"v_add_u32 {vgw}, {GWB}, {vgw}")
    for g in range(4): a(f"v_mov_b32 {GA[g]}, 0")
    def w_reads2(WFb, step):
        blk, kk = step // 2, step % 2
        return [f"ds_read_b64_tr_b16 {WFb[t][2*rd:2*rd+2]}, {wa} offset:{(blk % 3) * 20480 + kk * 10240 + rd * 1280 + 8 * t}" for t in range(5) for rd in range(2)]
    if 'p1' in BS:
        a("s_barrier")
        for l in burst(vm, *BS['p1']): a(l)
    n = vm.wait_for(lambda t: t in (('X', 0), ('W', 0)))
    a(f"s_waitcnt vmcnt({n})")
    a("s_barrier")
    stamp(a, 1)
    for l in x_reads(XF[0], 0) + w_reads2(WF[0], 0): a(l)
    a(f"ds_read_b128 {GWF}, {vgw}")
    for l in x_dma(vm, 1, 0) + x_dma(vm, 1, 1) + w_dma2(1): a(l)
    for j in range(20):
        cur, nxt = j & 1, (j & 1) ^ 1
        if j % 2 == 1:
            if j < 19:
                n = vm.wait_for(lambda t: t in (('X', (j + 1) // 2), ('W', (j + 1) // 2)) or (j == 17 and t == 'chk'))
                a(f"s_waitcnt vmcnt({n}) lgkmcnt(0)")
            else: a("s_waitcnt lgkmcnt(0)")
            if j == 17: init_check(vchk)
            a("s_barrier")
        else:
            a("s_waitcnt lgkmcnt(0)")
            if OPT['pp']: a("s_barrier")
        sstamp(a, j)
        mains = [f"v_mfma_f32_16x16x32_bf16 {ACC[tt][4*t:4*t+4]}, {WF[cur][t]}, {XF[cur][tt]}, {'0' if j == 0 else ACC[tt][4*t:4*t+4]}" for t in range(5) for tt in range(4)]
        pre = burst(vm, *BS[j]) if j in BS else []
        lblk = []
        if j < 19:
            lblk += x_reads(XF[nxt], j + 1) + w_reads2(WF[nxt], j + 1)
            if j == 0: lblk += x_dma(vm, 2, 0) + x_dma(vm, 2, 1) + w_dma2(2)
            xb = (j - 1) // 2 + 3 if j >= 1 else 99
            if xb <= 9:
                if j % 2 == 1: lblk += x_dma(vm, xb, 0) + x_dma(vm, xb, 1)
                else: lblk += w_dma2(xb)
            if j == 15: lblk += init_check_issue(vchk); vm.issue('chk')
            if j == 17:
                lblk += [f"v_lshlrev_b32 {t0}, 4, {tid}", f"v_add_u32 {t0}, {PHW}, {t0}", f"ds_write_b128 {t0}, {WP}"] + p2_setup()
        else:
            for t in range(5):
                for s in range(3):
                    for r_ in range(2 if s < 2 else 1):
                        lblk.append(f"ds_read_b64_tr_b16 {PF[t][s][2*r_:2*r_+2]}, {pa} offset:{s*320 + r_*160 + t*8}")
        step_body(mains, lblk, pre)
        lg = a.newlabel('GD')
        a(f"s_cmp_eq_u32 {sGD}, 0"); a(f"s_cbranch_scc1 {lg}")
        for k in range(4):
            for tt in range(4): a(f"v_dot2c_f32_bf16 {GA[tt]}, {XF[cur][tt][k]}, {GWF[k]}")
        if j < 19: a(f"ds_read_b128 {GWF}, {vgw} offset:{(j+1)*64}")
        a.label(lg)
    stamp(a, 2)
    a("s_setprio 2")
    QB = V(68, 40); P = V(108, 20); E = V(128, 40); O = V(168, 20); M = V(250, 4); T = V(188, 4); ONE = V(192, 2)
    sCNT = S(8); sOUT = S(9)
    def cvt_tile(dst, tt):
        for i in range(10): a(f"v_cvt_pk_bf16_f32 {dst[i]}, {ACC[tt][2*i]}, {ACC[tt][2*i+1]}")
    def pk_list(q):
        l = []
        for s_ in range(3):
            for t in range(5):
                d = P[4*t:4*t+4]
                if s_ < 2: l.append(f"v_mfma_f32_16x16x32_bf16 {d}, {PF[t][s_]}, {q[4*s_:4*s_+4]}, {'0' if s_ == 0 else d}")
                else: l.append(f"v_mfma_f32_16x16x16_bf16 {d}, {PF[t][s_]}, {q[8:10]}, {d}")
        return l
    a(f"s_lshl_b32 {sT3}, {sRB}, 2")
    a(f"s_add_u32 {sT3}, {sT3}, {sRG}")
    a(f"s_cmp_eq_u32 {sISQ}, 0")
    a("s_cbranch_scc1 R_KV")
    for tt in range(4): cvt_tile(QB[10*tt:10*tt+10], tt)
    a("s_waitcnt lgkmcnt(0)")
    for l in pk_list(QB[0:10]): a(l)
    a(f"s_lshr_b32 {sT1}, {sHB}, 2")
    a(f"s_add_u32 {sT1}, {sT1}, {sHI}")
    a(f"s_lshl_b32 {sOUT}, {sT3}, 5")
    a(f"s_add_u32 {sOUT}, {sOUT}, {sT1}")
    a(f"s_mul_i32 {sOUT}, {sOUT}, 5120")
    a(f"s_add_u32 {sOUT}, {sOUT}, {PQ}")
    a(f"s_lshl_b32 {sFLAG}, {sT3}, 7")
    a(f"s_add_u32 {sFLAG}, {sFLAG}, {FH + 4}")
    a(f"s_mov_b32 {sCNT}, 4")
    a(f"s_cmp_eq_u32 {sGD}, 0"); a(f"s_cbranch_scc1 R_SMX")
    for g in range(4): a(f"v_mov_b32 {GWF[g]}, {GA[g]}")
    for g in range(4): a(f"v_permlane32_swap_b32 {GWF[g]}, {GA[g]}")
    for g in range(4): a(f"v_add_f32 {GA[g]}, {GA[g]}, {GWF[g]}")
    for g in range(4): a(f"v_mov_b32 {GWF[g]}, {GA[g]}")
    for g in range(4): a(f"v_permlane16_swap_b32 {GWF[g]}, {GA[g]}")
    for g in range(4): a(f"v_add_f32 {GA[g]}, {GA[g]}, {GWF[g]}")
    for g in range(4): a(f"v_mul_f32 {GA[g]}, {NLOG2E:#x}, {GA[g]}")
    for g in range(4): a(f"v_exp_f32 {GA[g]}, {GA[g]}")
    for g in range(4): a(f"v_add_f32 {GA[g]}, 1.0, {GA[g]}")
    for g in range(4): a(f"v_rcp_f32 {GA[g]}, {GA[g]}")
    a(f"s_lshl_b32 {sT2}, {sT3}, 8")
    a(f"s_add_u32 {sT2}, {sT2}, {GOFF}")
    a("s_mov_b64 exec, 0xffff")
    a(f"buffer_store_dwordx4 {GA}, {vo}, {rWS}, {sT2} offen {ST}")
    a("s_mov_b64 exec, -1")
    a("s_branch R_SMX")
    a.label('R_KV')
    a(f"s_lshl_b32 {sT1}, {sRG}, 1"); a(f"s_add_u32 {sT0}, {sT1}, 1"); a(f"s_mul_i32 {sT0}, {sT0}, {32*PS}")
    a(f"v_add_u32 {t0}, {sT0}, {vo}")
    a(f"s_mov_b32 {sCNT}, 2")
    a(f"s_cmp_eq_u32 {sHI}, 1")
    a("s_cbranch_scc1 R_V")
    cvt_tile(QB[0:10], 0)
    cvt_tile(QB[20:30], 2); cvt_tile(QB[30:40], 3)
    for i in range(5): a(f"ds_write_b128 {t0}, {QB[20+4*i:24+4*i]} offset:{i*1024}")
    cvt_tile(QB[10:20], 1)
    a("s_waitcnt lgkmcnt(0)")
    a("s_barrier")
    for l in pk_list(QB[0:10]): a(l)
    a("s_branch R_KV2")
    a.label('R_V')
    VBt = {3: V(88, 10), 0: V(98, 10), 1: V(168, 10), 2: V(178, 10)}
    for tt in (3, 0, 1, 2): cvt_tile(VBt[tt], tt)
    a(f"s_mul_i32 {sT2}, {sRG}, {64*176}")
    a(f"s_add_u32 {sT2}, {sT2}, {VVB}")
    a(f"v_mul_u32_u24 {t2}, 176, {vl15}")
    a(f"v_add_u32 {t1}, {sT2}, {t2}")
    a(f"v_mul_u32_u24 {t3}, 40, {vqd}")
    a(f"v_add_u32 {t2}, {t1}, {t3}")
    a(f"v_mov_b32 {ONE[0]}, 0x3f80")
    a(f"v_mov_b32 {ONE[1]}, 0")
    a("s_barrier")
    for i in range(5): a(f"ds_read_b128 {QB[4*i:4*i+4]}, {t0} offset:{i*1024}")
    side = []
    for tt in (3, 0, 1, 2):
        for i in range(5): side.append(f"ds_write_b64 {t2}, {VBt[tt][2*i:2*i+2]} offset:{tt*2816 + 8*i}")
        side.append(f"ds_write_b64 {t1}, {ONE} offset:{tt*2816 + 160}")
    for i in range(9): a(side.pop(0))
    a("s_waitcnt lgkmcnt(9)")
    for l in pk_list(QB[0:10]): a(l); a(side.pop(0))
    a.label('R_KV2')
    a(f"s_add_u32 {sT1}, {sT1}, {sHI}"); a(f"s_mul_i32 {sT1}, {sT1}, {32*PS}")
    a(f"v_mul_u32_u24 {t4}, {PS}, {vl15}")
    a(f"v_mul_u32_u24 {t3}, 80, {vqd}")
    a(f"v_add3_u32 {t4}, {t4}, {t3}, {sT1}")
    stamp(a, 12)
    a.label('R_SMX')
    for l in b_reg(vm, 0, 'B') + b_reg(vm, 1, 'B'): a(l)
    a.label('R_SML')
    softmax_unit(a, P, E, M, T, O, pk_list(QB[10:20]) + ["s_waitcnt lgkmcnt(0)"] + [f"v_mov_b64 {QB[10+2*i:12+2*i]}, {QB[20+2*i:22+2*i]}" for i in range(10)])
    a(f"s_cmp_eq_u32 {sISQ}, 0")
    a("s_cbranch_scc1 R_SMK")
    for s_ in range(5):
        if s_ < 4: a(f"buffer_store_dwordx4 {O[4*s_:4*s_+4]}, {vo}, {rWS}, {sOUT} offen offset:{s_*1024} {ST}")
        else: a(f"buffer_store_dwordx4 {O[4*s_:4*s_+4]}, {vo4}, {rWS}, {sOUT} offen {ST}")
    a(f"s_add_u32 {sOUT}, {sOUT}, {8*5120}")
    a(f"s_sub_u32 {sCNT}, {sCNT}, 1")
    a(f"s_cmp_lg_u32 {sCNT}, 0")
    a("s_cbranch_scc1 R_SML")
    flag_store(7)
    a("s_branch P2_B23")
    a.label('R_SMK')
    for s_ in range(5): a(f"ds_write_b128 {t4}, {O[4*s_:4*s_+4]} offset:{PHB + 16*s_}")
    a(f"v_add_u32 {t4}, {16*PS}, {t4}")
    a(f"s_sub_u32 {sCNT}, {sCNT}, 1")
    a(f"s_cmp_lg_u32 {sCNT}, 0")
    a("s_cbranch_scc1 R_SML")
    a(f"v_lshl_add_u32 {t0}, {vqd}, 2, {vr}")
    a(f"v_mul_u32_u24 {t1}, {PS}, {t0}")
    a(f"s_mul_i32 {sT0}, {sRG}, 80")
    a(f"v_lshl_add_u32 {t1}, {vc}, 3, {t1}")
    a(f"v_add_u32 {t1}, {sT0}, {t1}")
    a(f"v_add_u32 {t2}, {128*PS}, {t1}")
    a(f"v_mul_u32_u24 {t0}, 176, {t0}")
    a(f"s_mul_i32 {sT0}, {sRG}, 40")
    a(f"s_lshl_b32 {sT1}, {sHI}, 5")
    a(f"s_add_u32 {sT0}, {sT0}, {sT1}")
    a(f"v_lshl_add_u32 {t3}, {vc}, 3, {sT0}")
    a(f"v_mul_u32_u24 {t4}, {sHI}, {vc}")
    a(f"v_cmp_ne_u32 vcc, 0, {t4}")
    a(f"v_mov_b32 {t4}, 160")
    a(f"v_cndmask_b32 {t3}, {t3}, {t4}, vcc")
    a(f"v_add_u32 {t3}, {VVB}, {t3}")
    a(f"v_add_u32 {t3}, {t0}, {t3}")
    stamp(a, 13)
    a("s_waitcnt lgkmcnt(0)")
    a("s_barrier")
    stamp(a, 14)
    KA = [[V(72 + (b*4 + f)*4, 4) for f in range(4)] for b in range(3)]
    KD = [V(128 + 4*f, 4) for f in range(3)]
    def kv_reads(b, s):
        l = []
        for rd in range(2):
            l.append(f"ds_read_b64_tr_b16 {KA[b][3][2*rd:2*rd+2]}, {t3} offset:{s*5632 + rd*2816}")
        for f in range(3):
            for rd in range(2):
                l.append(f"ds_read_b64_tr_b16 {KA[b][f][2*rd:2*rd+2]}, {t1 if s < 4 else t2} offset:{(s % 4)*32*PS + rd*16*PS + f*32}")
        return l
    allr = [l for s in range(8) for l in kv_reads(s % 3, s)]
    pos = 0
    for s in range(8):
        for f in range(3):
            needr = s * 8 + 2 + 2 * (f + 1)
            lim = min(len(allr), needr + 12, (s + 2) * 8 + (2 + 2 * f if False else 0) + 8 - 8 + 0) if False else min(len(allr), needr + 12)
            lim = min(lim, (s + 3) * 8)
            while pos < lim: a(allr[pos]); pos += 1
            a(f"s_waitcnt lgkmcnt({pos - needr})")
            a(f"v_mfma_f32_16x16x32_bf16 {KD[f]}, {KA[s%3][f]}, {KA[s%3][3]}, {'0' if s == 0 else KD[f]}")
    stamp(a, 15)
    a(f"s_add_u32 {sT0}, {sHB}, {sRG}")
    a(f"s_lshl_b32 {sT0}, {sT0}, 1")
    a(f"s_add_u32 {sT0}, {sT0}, {sHI}")
    a(f"s_mul_i32 {sT0}, {sT0}, 3072")
    a(f"s_add_u32 {sT0}, {sT0}, {KVACC}")
    a(f"s_lshl_b32 {sFLAG}, {sID}, 7")
    a(f"s_add_u32 {sFLAG}, {sFLAG}, {FK}")
    a(f"v_lshlrev_b32 {t2}, 2, {lane}")
    for f in range(3):
        if f == 2: a("s_mov_b32 exec_hi, 0")
        for j in range(4):
            a(f"buffer_atomic_add_f32 {KD[f][j]}, {t2}, {rWS}, {sT0} offen offset:{f*1024 + j*256} {OPT['atf']}")
    a("s_mov_b32 exec_hi, -1")
    stamp(a, 3)
    a("s_waitcnt vmcnt(0)")
    a("s_barrier")
    a(f"s_cmp_lg_u32 {sWV}, 7")
    a("s_cbranch_scc1 R_KV3")
    arrive(a, sFLAG, 7, t0, t1)
    a.label('R_KV3')
    a("s_setprio 0")
    stamp(a, 4)
    a("s_branch P2_B23")

    a.label('R_SPARE')
    sSP, sU, sSO, sST = S(77), S(78), S(79), S(80)
    va = Alloc('v', 11, 250)
    vf = [va() for _ in range(5)]; vat = [va() for _ in range(5)]
    rf = [va() for _ in range(5)]; rat = [va(), va()]
    vst = va(); vst4 = va()
    FR = [[va(4) for _ in range(5)] for b in range(2)]
    Z4 = va(4)
    NT = OPT['spnt']
    srd(a, rA, pWD, 1728 * 1280)
    srd(a, rB, pWO, 640 * 1280)
    a(f"s_lshr_b32 {sSP}, {sT0}, 1")
    a(f"s_lshl_b32 {sSP}, {sSP}, 3")
    a(f"s_add_u32 {sSP}, {sSP}, {sRB}")
    a(f"s_lshl_b32 {sT0}, {sWV}, 2")
    a(f"s_mul_i32 {sT1}, {sWV}, 20")
    for n in range(5):
        a(f"v_add_u32 {t0}, {64*n}, {lane}")
        a(f"v_mul_u32_u24 {t1}, 205, {t0}")
        a(f"v_lshrrev_b32 {t1}, 14, {t1}")
        a(f"v_mul_u32_u24 {t2}, 80, {t1}")
        a(f"v_sub_u32 {t2}, {t0}, {t2}")
        a(f"v_add_u32 {t1}, {sT0}, {t1}")
        a(f"v_and_b32 {t3}, 7, {t1}")
        a(f"v_lshlrev_b32 {t3}, 1, {t3}")
        a(f"v_xor_b32 {t2}, {t2}, {t3}")
        a(f"v_mul_u32_u24 {t1}, 1280, {t1}")
        a(f"v_lshl_add_u32 {vf[n]}, {t2}, 4, {t1}")
        if n % 4: a(f"v_subrev_u32 {vf[n]}, {1024*(n%4)}, {vf[n]}")
    a(f"s_mul_i32 {sM}, {sWV}, 5120")
    def u_dma(buf, typ):
        if typ == 'F':
            a(f"s_mul_i32 {sSO}, {sU}, 40960")
            vv, rr = vf, rA
        else:
            a(f"s_sub_u32 {sT2}, {sU}, 54")
            a(f"s_mul_i32 {sT3}, {sT2}, 52")
            a(f"s_lshr_b32 {sT3}, {sT3}, 8")
            a(f"s_mul_i32 {sSO}, {sT3}, {160*1280 - 5*256}")
            a(f"s_lshl_b32 {sT2}, {sT2}, 8")
            a(f"s_add_u32 {sSO}, {sSO}, {sT2}")
            vv, rr = vat, rB
        a(f"s_add_u32 m0, {sM}, {buf*40960}")
        for n in range(4):
            a(f"buffer_load_dwordx4 {vv[n]}, {rr}, {sSO} offen offset:{n*1024} {NT} lds")
        a(f"s_add_u32 m0, {sM}, {buf*40960 + 4096}")
        a(f"buffer_load_dwordx4 {vv[4]}, {rr}, {sSO} offen {NT} lds")
    def dyn(it, fn):
        if it == 4:
            a(f"s_add_u32 {sU}, {sSP}, 64"); a(f"s_min_u32 {sU}, {sU}, 73"); fn('A'); return
        a(f"s_add_u32 {sU}, {sSP}, {16*it}")
        if it <= 2: fn('F')
        else:
            l1, l2 = a.newlabel('SP'), a.newlabel('SP')
            a(f"s_cmp_ge_u32 {sU}, 54"); a(f"s_cbranch_scc1 {l1}")
            fn('F'); a(f"s_branch {l2}"); a.label(l1); fn('A'); a.label(l2)
    for it in range(3): dyn(it, lambda typ: u_dma(it, typ))
    a(f"v_lshlrev_b32 {t0}, 4, {tid}")
    for i in range(4): a(f"v_mov_b32 {Z4[i]}, 0")
    a(f"s_mul_i32 {sT2}, {sSP}, 13312")
    a(f"s_add_u32 {sT2}, {sT2}, {KVACC}")
    a(f"buffer_store_dwordx4 {Z4}, {t0}, {rWS}, {sT2} offen {ST}")
    a(f"s_add_u32 {sT2}, {sT2}, {13312 - 8192}")
    a(f"buffer_store_dwordx4 {Z4}, {t0}, {rWS}, {sT2} offen {ST}")
    for n in range(5):
        a(f"v_add_u32 {t1}, {4*n}, {vqd}")
        a(f"v_add_u32 {t1}, {sT1}, {t1}")
        a(f"v_and_b32 {t3}, 7, {t1}")
        a(f"v_lshlrev_b32 {t3}, 1, {t3}")
        a(f"v_xor_b32 {t2}, {vl15}, {t3}")
        a(f"v_mul_u32_u24 {t1}, 1280, {t1}")
        a(f"v_lshl_add_u32 {vat[n]}, {t2}, 4, {t1}")
        if n % 4: a(f"v_subrev_u32 {vat[n]}, {1024*(n%4)}, {vat[n]}")
    a(f"v_lshl_add_u32 {t0}, {vqd}, 2, {vr}")
    a(f"v_and_b32 {t1}, 7, {t0}")
    a(f"v_lshlrev_b32 {t1}, 1, {t1}")
    a(f"v_mul_u32_u24 {t0}, 1280, {t0}")
    a(f"v_and_b32 {t2}, 1, {vc}")
    a(f"v_lshl_add_u32 {t0}, {t2}, 3, {t0}")
    a(f"v_lshrrev_b32 {t3}, 1, {vc}")
    a(f"s_mul_i32 {sT0}, {sWV}, 10")
    a(f"v_add_u32 {t4}, {sT0}, {t3}")
    for j in range(5):
        a(f"v_add_u32 {rf[j]}, {2*j}, {t4}")
        a(f"v_xor_b32 {rf[j]}, {rf[j]}, {t1}")
        a(f"v_lshl_add_u32 {rf[j]}, {rf[j]}, 4, {t0}")
    a(f"v_mul_u32_u24 {t0}, 20, {vqd}")
    a(f"v_add_u32 {t0}, {t0}, {vr}")
    a(f"v_lshlrev_b32 {t0}, 8, {t0}")
    a(f"v_lshl_add_u32 {t0}, {t2}, 3, {t0}")
    a(f"s_lshl_b32 {sT0}, {sWV}, 1")
    a(f"v_add_u32 {t4}, {sT0}, {t3}")
    a(f"v_xor_b32 {t4}, {t4}, {t1}")
    a(f"v_lshl_add_u32 {rat[0]}, {t4}, 4, {t0}")
    a(f"v_xor_b32 {rat[1]}, 128, {rat[0]}")
    a(f"v_lshlrev_b32 {vst}, 4, {lane}")
    a(f"v_add_u32 {vst4}, 4096, {vst}")
    def u_proc(buf, typ, F):
        if typ == 'F':
            for j in range(5):
                a(f"v_add_u32 {t0}, {buf*40960}, {rf[j]}")
                for rd in range(2):
                    a(f"ds_read_b64_tr_b16 {F[j][2*rd:2*rd+2]}, {t0} offset:{rd*20480}")
            a(f"s_mul_i32 {sST}, {sWV}, 74")
            a(f"s_add_u32 {sST}, {sST}, {sU}")
            a(f"s_mul_i32 {sST}, {sST}, 5120")
            a(f"s_add_u32 {sST}, {sST}, {BP}")
            a("s_waitcnt lgkmcnt(0)")
            for j in range(5):
                if j < 4: a(f"buffer_store_dwordx4 {F[j]}, {vst}, {rWS}, {sST} offen offset:{j*1024} {ST}")
                else: a(f"buffer_store_dwordx4 {F[j]}, {vst4}, {rWS}, {sST} offen {ST}")
        else:
            bases = [(0, 4), (8, 12), (16, 96), (80, 84), (88, 92)]
            a(f"v_add_u32 {t0}, {buf*40960}, {rat[0]}")
            a(f"v_add_u32 {t1}, {buf*40960}, {rat[1]}")
            for s5 in range(5):
                for rd in range(2):
                    b = bases[s5][rd]
                    a(f"ds_read_b64_tr_b16 {F[s5][2*rd:2*rd+2]}, {t1 if b % 8 else t0} offset:{b*256}")
            a(f"s_sub_u32 {sT2}, {sU}, 54")
            a(f"s_mul_i32 {sT3}, {sT2}, 52")
            a(f"s_lshr_b32 {sT3}, {sT3}, 8")
            a(f"s_mul_i32 {sT0}, {sT3}, 5")
            a(f"s_sub_u32 {sT2}, {sT2}, {sT0}")
            a(f"s_lshl_b32 {sT2}, {sT2}, 3")
            a(f"s_add_u32 {sT2}, {sT2}, {sWV}")
            a(f"s_mul_i32 {sT1}, {sT2}, 52")
            a(f"s_lshr_b32 {sT1}, {sT1}, 8")
            a(f"s_mul_i32 {sST}, {sT1}, 5")
            a(f"s_sub_u32 {sT2}, {sT2}, {sST}")
            a(f"s_mul_i32 {sST}, {sT1}, 74")
            a(f"s_add_u32 {sST}, {sST}, {sT0}")
            a(f"s_add_u32 {sST}, {sST}, 54")
            a(f"s_mul_i32 {sST}, {sST}, 5120")
            a(f"s_lshl_b32 {sT2}, {sT2}, 10")
            a(f"s_add_u32 {sST}, {sST}, {sT2}")
            a(f"s_add_u32 {sST}, {sST}, {BP}")
            a("s_waitcnt lgkmcnt(0)")
            for s5 in range(5):
                a(f"buffer_store_dwordx4 {F[s5]}, {vst}, {rWS}, {sST} offen {ST}")
                if s5 < 4: a(f"s_add_u32 {sST}, {sST}, 5120")
    vm = VmTrack()
    for t in ['D0']*5 + ['D1']*5 + ['D2']*5 + ['Z']*2: vm.issue(t)
    for it in range(5):
        n = vm.wait_for(lambda t: t == f'D{it}')
        a(f"s_waitcnt vmcnt({n})")
        a("s_barrier")
        if it in (1, 2):
            dyn(it + 2, lambda typ: u_dma(it - 1, typ))
            for _ in range(5): vm.issue(f'D{it+2}')
        dyn(it, lambda typ: u_proc(it % 3, typ, FR[it & 1]))
        for _ in range(5): vm.issue('S')
    a("s_waitcnt vmcnt(0)")
    a("s_barrier")
    lsk = a.newlabel('SPD')
    a(f"s_cmp_lg_u32 {sWV}, 0"); a(f"s_cbranch_scc1 {lsk}")
    a(f"v_mov_b32 {t0}, 0"); a(f"v_mov_b32 {t1}, 1")
    a("s_mov_b64 exec, 1")
    a(f"buffer_atomic_add {t1}, {t0}, {rDBG}, 0 offen sc1")
    a("s_mov_b64 exec, -1")
    a.label(lsk)
    stamp(a, 2)
    init_poll(a, t1)

    vm = VmTrack()
    sLATE = S(8)
    a.label('P2_ALL')
    for l in p2_setup(): a(l)
    for b in range(2):
        for l in b_reg(vm, b, 'B'): a(l)
    a.label('P2_B23')
    a(f"s_mov_b32 {sLATE}, 1")
    a(f"s_cmp_eq_u32 {sHI}, 0")
    a("s_cbranch_scc1 P2_GO2")
    def late_b():
        for b in range(2, 4):
            for l in b_reg(vm, b, 'B'): a(l)
        for l in b_switch(): a(l)
        for k in range(3):
            for l in b_lds(vm, k): a(l)
    late_b()
    a.label('P2_GO')
    a(f"s_mov_b32 {sLATE}, 0")
    a.label('P2_GO2')
    vG = V(16, 4); vf4 = V(11); ka = V(12); kw = V(13); vmk = V(14); vbl = V(15); G2 = V(24, 8)
    ACC = [[V(72 + (tt * 5 + j) * 4, 4) for j in range(5)] for tt in range(4)]
    ARl = [V(152 + 4 * i, 4) for i in range(14)] + [V(248, 4), V(24, 4)]
    AR = [ARl[4*b:4*b+4] for b in range(4)]
    sAc, sFHo = S(77), S(78)
    rOUT = rX
    a(f"v_mov_b32 {vf4}, 0")
    a(f"s_mul_i32 {sT0}, {sWV}, 15360")
    a(f"v_add_u32 {vbl}, {sT0}, {vo}")
    srd(a, rA, pWS, WSZ)
    srd(a, rOUT, pOUT, 2048 * 1280)
    def seg_init(cnt, first, mul, sh):
        a(f"s_mul_i32 {cnt}, {sCG}, {mul if OPT['rot2'] else 0}"); a(f"s_lshr_b32 {cnt}, {cnt}, {sh}")
        a(f"s_lshl_b32 {cnt}, {cnt}, 2"); a(f"s_add_u32 {cnt}, {cnt}, {sRG}"); a(f"s_add_u32 {cnt}, {cnt}, {first}")
    def adv(cnt, first, n):
        return [f"s_add_u32 {cnt}, {cnt}, 4", f"s_sub_u32 {sT3}, {cnt}, {4*n}", f"s_cmp_ge_u32 {cnt}, {first + 4*n}", f"s_cselect_b32 {cnt}, {sT3}, {cnt}"]
    def a_loads(b, tag, chk):
        l = [f"s_lshl_b32 {sT0}, {sAc}, 12", f"s_add_u32 {sT0}, {sT0}, {sAB}"]
        r = rWS
        if chk: l += [f"s_cmp_lt_u32 {sAc}, 54", f"s_cselect_b32 {rA[2]}, {WSZ}, 0"]; r = rA
        for tt in range(4):
            l.append(f"buffer_load_dwordx4 {AR[b][tt]}, {vo}, {r}, {sT0} offen offset:{tt*1024} {LD}"); vm.issue(tag)
        return l
    def b_fromlds(k):
        return [f"ds_read_b128 {BR[k][j]}, {vbl} offset:{k*5120 + j*1024}" for j in range(5)]
    def mm(b, first):
        for j in range(5):
            for tt in range(4):
                d = ACC[tt][j]
                a(f"v_mfma_f32_16x16x32_bf16 {d}, {BR[b][j]}, {AR[b][tt]}, {'0' if first else d}")
    def scale():
        GG = [V(2, 2), V(4, 2), V(28, 2), V(30, 2)]
        for tt in range(4): a(f"v_sub_f32 {GG[tt][0]}, 1.0, {vG[tt]}")
        for tt in range(4):
            for j in range(5):
                for h in range(2):
                    a(f"v_pk_mul_f32 {ACC[tt][j][2*h:2*h+2]}, {ACC[tt][j][2*h:2*h+2]}, {GG[tt]} op_sel_hi:[1,0]")
    def g_load():
        a(f"s_lshl_b32 {sT0}, {sR6}, 8"); a(f"s_add_u32 {sT0}, {sT0}, {GOFF}")
        a(f"v_lshlrev_b32 {t0}, 4, {vl15}")
        a(f"buffer_load_dwordx4 {vG}, {t0}, {rWS}, {sT0} offen {LD}")
    a(f"s_lshl_b32 {sFHo}, {sR6}, 7"); a(f"s_add_u32 {sFHo}, {sFHo}, {FH + GOD}")
    a(f"s_cmp_eq_u32 {sHI}, 0")
    a("s_cbranch_scc1 P2_C")
    seg_init(sAc, 0, 5, 2)
    vpoll(a, vf4, sFHo, 4, t1)
    vpoll(a, vf4, sFHo, 0, t1)
    vm = VmTrack()
    stamp(a, 5)
    for s in range(4):
        for l in a_loads(s, ('A', s), False) + adv(sAc, 0, 10): a(l)
    g_load(); vm.issue('g')
    for s in range(10):
        n = vm.wait_for(lambda t: t in (('A', s), ('B', s)))
        a(f"s_waitcnt vmcnt({n})" + (" lgkmcnt(0)" if s == 4 else ""))
        if s == 0: stamp(a, 6)
        mm(s % 4, s == 0)
        if s + 4 < 10:
            for l in a_loads(s % 4, ('A', s + 4), False) + adv(sAc, 0, 10): a(l)
            for l in (b_fromlds(s) if s < 3 else b_reg(vm, s % 4, ('B', s + 4))): a(l)
    scale()
    a("s_branch P2_RED")
    a.label('P2_C')
    seg_init(sAc, 40, 1, 1)
    P = V(72, 20); E = V(92, 40); M = V(132, 4); T = V(136, 4)
    vpoll(a, vf4, sFHo, 4, t1)
    a(f"s_lshl_b32 {sT0}, {sR6}, 2"); a(f"s_add_u32 {sT0}, {sT0}, {sRG}")
    a(f"s_lshl_b32 {sT0}, {sT0}, 3"); a(f"s_add_u32 {sT0}, {sT0}, {sCG}")
    a(f"s_mul_i32 {sT0}, {sT0}, 5120"); a(f"s_add_u32 {sT0}, {sT0}, {PQ}")
    for s in range(5):
        if s < 4: a(f"buffer_load_dwordx4 {P[4*s:4*s+4]}, {vo}, {rWS}, {sT0} offen offset:{s*1024} {LD}")
        else: a(f"buffer_load_dwordx4 {P[4*s:4*s+4]}, {vo4}, {rWS}, {sT0} offen {LD}")
    g_load()
    a(f"v_lshl_add_u32 {kw}, {vr}, 2, {vqd}")
    a(f"v_lshlrev_b32 {kw}, 6, {kw}")
    a(f"v_lshl_add_u32 {kw}, {vc}, 3, {kw}")
    a(f"s_mul_i32 {sT0}, {sRG}, 3072"); a(f"s_add_u32 {sT0}, {sT0}, {KVB}")
    a(f"v_add_u32 {kw}, {sT0}, {kw}")
    a(f"v_mul_u32_u24 {t3}, 3072, {vqd}")
    a(f"v_lshl_add_u32 {t3}, {vr}, 6, {t3}")
    a(f"v_add_u32 {t3}, {KVB}, {t3}")
    a(f"v_mov_b32 {ka}, {ZERO}")
    a(f"v_cmp_eq_u32 vcc, {vc}, {vqd}")
    a(f"v_cndmask_b32 {ka}, {ka}, {t3}, vcc")
    stamp(a, 5)
    a(f"s_lshl_b32 {sT2}, {sCG}, 7"); a(f"s_add_u32 {sT2}, {sT2}, {FK + GOD}")
    vpoll(a, vf4, sT2, 0, t1)
    vm = VmTrack()
    stamp(a, 6)
    KL = [V(92 + 4 * i, 4) for i in range(6)]
    a(f"s_lshl_b32 {sT0}, {sCG}, 2"); a(f"s_add_u32 {sT0}, {sT0}, {sRG}")
    a(f"s_mul_i32 {sT0}, {sT0}, 6144"); a(f"s_add_u32 {sT0}, {sT0}, {KVACC}")
    for i in range(6):
        if i < 4: a(f"buffer_load_dwordx4 {KL[i]}, {vo}, {rWS}, {sT0} offen offset:{i*1024} {LD}")
        else: a(f"buffer_load_dwordx4 {KL[i]}, {vo4}, {rWS}, {sT0} offen offset:{(i-4)*1024} {LD}")
    a(f"v_mov_b32 {t3}, {vG[0]}")
    for k in range(1, 4):
        a(f"s_cmp_eq_u32 {sRG}, {k}"); a("s_cselect_b64 vcc, -1, 0"); a(f"v_cndmask_b32 {t3}, {t3}, {vG[k]}, vcc")
    for i in range(6):
        a(f"s_waitcnt vmcnt({5-i})")
        a(f"v_cvt_pk_bf16_f32 {KL[i][0]}, {KL[i][0]}, {KL[i][1]}")
        a(f"v_cvt_pk_bf16_f32 {KL[i][1]}, {KL[i][2]}, {KL[i][3]}")
        a(f"ds_write_b64 {kw}, {KL[i][0:2]} offset:{(i % 3)*1024 + (i // 3)*32}")
    a(f"v_mov_b32 {t0}, {CNT}"); a(f"v_mov_b32 {t1}, 1")
    a("s_waitcnt lgkmcnt(0)")
    a("s_mov_b64 exec, 1")
    a(f"ds_add_u32 {t0}, {t1}")
    a("s_mov_b64 exec, -1")
    L = a.newlabel('CSP')
    a.label(L)
    a(f"ds_read_b32 {t1}, {t0}")
    a("s_waitcnt lgkmcnt(0)")
    a(f"v_readfirstlane_b32 {sT0}, {t1}")
    a(f"s_cmp_lt_u32 {sT0}, 4")
    a(f"s_cbranch_scc1 {L}")
    stamp(a, 16)
    AF = [[V(92 + (b * 5 + s) * 4, 4) for s in range(5)] for b in range(2)]
    D = [V(152 + 4 * t, 4) for t in range(6)]
    O = V(132, 12)
    def rd(b, t):
        for s in range(5):
            for r_ in range(2):
                a(f"ds_read_b64_tr_b16 {AF[b][s][2*r_:2*r_+2]}, {ka} offset:{s*512 + r_*256 + t*8}")
    order = [5, 0, 1, 2, 3, 4]
    rd(0, order[0])
    for i, t in enumerate(order):
        if i < 5:
            rd((i + 1) & 1, order[i + 1]); a("s_waitcnt lgkmcnt(10)")
        else: a("s_waitcnt lgkmcnt(0)")
        for s in range(5):
            a(f"v_mfma_f32_16x16x32_bf16 {D[t]}, {AF[i&1][s]}, {P[4*s:4*s+4]}, {'0' if s == 0 else D[t]}")
    a(f"v_add_f32 {t2}, 0x358637bd, {D[5][0]}")
    a(f"v_rcp_f32 {t2}, {t2}")
    a(f"v_mul_f32 {t2}, {t2}, {t3}")
    for t in range(5):
        for h in range(2): a(f"v_pk_mul_f32 {D[t][2*h:2*h+2]}, {D[t][2*h:2*h+2]}, {V(t2.lo, 2)} op_sel_hi:[1,0]")
        a(f"v_cvt_pk_bf16_f32 {O[2*t]}, {D[t][0]}, {D[t][1]}")
        a(f"v_cvt_pk_bf16_f32 {O[2*t+1]}, {D[t][2]}, {D[t][3]}")
    a(f"s_lshr_b32 {sT1}, {sCG}, 1")
    a(f"s_mul_i32 {sT1}, {sT1}, 5")
    a(f"s_add_u32 {sT0}, {sT1}, 54")
    a(f"s_lshl_b32 {sT0}, {sT0}, 2")
    a(f"s_add_u32 {sT0}, {sT0}, {sRG}")
    a(f"s_lshl_b32 {sT0}, {sT0}, 10")
    a(f"s_add_u32 {sT0}, {sT0}, {sAB}")
    a(f"s_and_b32 {sT1}, {sCG}, 1")
    a(f"s_mul_i32 {sT2}, {sT1}, {3*4096}")
    a(f"s_add_u32 {sT2}, {sT2}, {sT0}")
    a(f"buffer_store_dwordx4 {O[0:4]}, {vo}, {rWS}, {sT2} offen {ST}")
    a(f"buffer_store_dwordx4 {O[4:8]}, {vo4}, {rWS}, {sT2} offen {ST}")
    a(f"s_lshl_b32 {sT1}, {sT1}, 3")
    a(f"s_add_u32 {sT0}, {sT0}, {sT1}")
    a(f"s_add_u32 {sT0}, {sT0}, 8192")
    a(f"buffer_store_dwordx2 {O[8:10]}, {vo}, {rWS}, {sT0} offen {ST}")
    stamp(a, 17)
    a(f"s_sub_u32 {sT2}, {sFHo}, {GOD - 8}")
    a(f"buffer_load_dword {t3}, {vf4}, {rWS}, {sFHo} offen sc1")
    arrive(a, sT2, 31, t0, t1, 1)
    a(f"v_cmp_eq_u32 vcc, 0, {t3}")
    a("s_nop 0")
    a("s_cbranch_vccz P2_HOK")
    vpoll(a, vf4, sFHo, 0, t1)
    a.label('P2_HOK')
    stamp(a, 7)
    a(f"s_cmp_eq_u32 {sLATE}, 0")
    a("s_cbranch_scc1 P2_NL")
    late_b()
    a.label('P2_NL')
    vm = VmTrack()
    for s in range(4):
        for l in a_loads(s, ('A', s), True) + adv(sAc, 40, 4): a(l)
    seg_init(sAc, 54, 5, 3)
    for s in range(4):
        n = vm.wait_for(lambda t: t == ('A', s))
        a(f"s_waitcnt vmcnt({n})")
        mm(s, s == 0)
        for l in (b_fromlds(s) if s < 3 else b_reg(vm, 3, ('B', 7))): a(l)
    scale()
    stamp(a, 8)
    vpoll(a, vf4, sFHo, 8, t4)
    vm = VmTrack()
    stamp(a, 9)
    for s in range(4):
        for l in a_loads(s, ('A', 4 + s), False) + adv(sAc, 54, 5): a(l)
    for s in range(4, 9):
        n = vm.wait_for(lambda t: t in (('A', s), ('B', s)))
        a(f"s_waitcnt vmcnt({n})" + (" lgkmcnt(0)" if s == 4 else ""))
        mm(s % 4, False)
        if s == 4:
            for l in a_loads(0, ('A', 8), False) + b_reg(vm, 0, ('B', 8)): a(l)
    a.label('P2_RED')
    stamp(a, 10)
    a(f"s_mul_i32 {sT0}, {sWV}, 20480")
    a(f"v_add_u32 {t0}, {sT0}, {vo}")
    a("s_barrier")
    for tt in range(4):
        for j in range(5):
            a(f"ds_write_b128 {t0}, {ACC[tt][j]} offset:{(tt*5+j)*1024}")
    a(f"v_lshlrev_b32 {t2}, 9, {vqd}")
    a(f"v_lshl_add_u32 {t2}, {vl15}, 4, {t2}")
    a(f"s_mul_i32 {sT0}, {sRG}, 5120"); a(f"s_lshl_b32 {sT1}, {sHI}, 11"); a(f"s_add_u32 {sT1}, {sT1}, {sT0}")
    a(f"v_add_u32 {t2}, {sT1}, {t2}")
    a(f"v_add_u32 {t3}, {3*20480}, {t2}")
    a(f"v_add_u32 {t4}, {6*20480}, {t2}")
    a(f"v_mul_u32_u24 {t1}, 1280, {vl15}")
    a(f"v_lshl_add_u32 {kw}, {vqd}, 3, {t1}")
    a(f"v_lshl_add_u32 {t1}, {vqd}, 4, {t1}")
    a(f"s_lshl_b32 {sT2}, {sR6}, 2"); a(f"s_add_u32 {sT2}, {sT2}, {sRG}"); a(f"s_mul_i32 {sT2}, {sT2}, {16*1280}")
    a(f"s_mul_i32 {sT1}, {sCG}, 160"); a(f"s_add_u32 {sT2}, {sT2}, {sT1}")
    a(f"s_lshl_b32 {sT1}, {sHI}, 6"); a(f"s_add_u32 {sT1}, {sT1}, {sT2}")
    a(f"s_add_u32 {sT0}, {sT0}, 4096")
    a(f"v_add_u32 {vo4}, {sT0}, {vo}")
    a(f"v_add_u32 {vf4}, {3*20480}, {vo4}")
    a(f"v_add_u32 {ka}, {6*20480}, {vo4}")
    a("s_waitcnt lgkmcnt(0)")
    a("s_barrier")
    RD = [V(152 + 4*i, 4) for i in range(24)]
    for w in range(8):
        base = (t2, t3, t4)[w // 3]
        for h in range(2):
            a(f"ds_read_b128 {RD[2*w+h]}, {base} offset:{(w % 3)*20480 + h*256}")
    for w in range(1, 8):
        a(f"s_waitcnt lgkmcnt({min(15, 14 - 2*w)})")
        for h in range(2):
            for k in range(2):
                a(f"v_pk_add_f32 {RD[h][2*k:2*k+2]}, {RD[h][2*k:2*k+2]}, {RD[2*w+h][2*k:2*k+2]}")
    a(f"s_cmp_eq_u32 {sHI}, 1")
    a("s_cbranch_scc1 P2_S1")
    for w in range(8):
        base = (vo4, vf4, ka)[w // 3]
        a(f"ds_read_b128 {RD[16+w]}, {base} offset:{(w % 3)*20480}")
    a.label('P2_S1')
    for h in range(2):
        for k in range(2):
            a(f"v_cvt_pk_bf16_f32 {RD[2][2*h+k]}, {RD[h][2*k]}, {RD[h][2*k+1]}")
    a(f"buffer_store_dwordx4 {RD[2]}, {t1}, {rOUT}, {sT1} offen")
    a(f"s_cmp_eq_u32 {sHI}, 1")
    a("s_cbranch_scc1 P2_FIN")
    for w in range(1, 8):
        a(f"s_waitcnt lgkmcnt({7 - w})")
        for k in range(2):
            a(f"v_pk_add_f32 {RD[16][2*k:2*k+2]}, {RD[16][2*k:2*k+2]}, {RD[16+w][2*k:2*k+2]}")
    for k in range(2): a(f"v_cvt_pk_bf16_f32 {RD[17][k]}, {RD[16][2*k]}, {RD[16][2*k+1]}")
    a(f"buffer_store_dwordx2 {RD[17][0:2]}, {kw}, {rOUT}, {sT2} offen offset:128")
    a.label('P2_FIN')
    if OPT['stamp']:
        a("s_waitcnt vmcnt(0)")
        stamp(a, 11)
    stamp_flush(a)
    a.label(END)
    a("s_endpgm")

def build():
    hdr = open(f'cdna_kernels/{NAME}.s.ref').read().split('; Override launch')[0]
    name = NAME + '_kernel'
    out = hdr + "; @launch grid=(256,1,1) block=(512,1,1) lds=163840\n"
    out += '.amdgcn_target "amdgcn-amd-amdhsa--gfx950"\n.text\n'
    a = Asm(); kernel(a)
    out += f".globl {name}\n.p2align 8\n.type {name},@function\n{name}:\n" + a.finalize()
    print('instrs', len(a.ins), 'nops', a.nnop, file=sys.stderr)
    out += f""".section .rodata,"a"
.p2align 6
.amdhsa_kernel {name}
  .amdhsa_next_free_vgpr 256
  .amdhsa_next_free_sgpr 102
  .amdhsa_accum_offset 256
  .amdhsa_group_segment_fixed_size 0
  .amdhsa_kernarg_size 96
  .amdhsa_user_sgpr_count 2
  .amdhsa_user_sgpr_kernarg_segment_ptr 1
  .amdhsa_system_sgpr_workgroup_id_x 1
.end_amdhsa_kernel
"""
    return out

if __name__ == '__main__':
    outp = sys.argv[1]
    for o in sys.argv[2:]:
        k, v = o.split('=', 1); OPT[k] = int(v) if v.isdigit() else v
    open(outp, 'w').write(build())
```

```python
import sys
sys.path.insert(0, 'gen')
from asmlib import *
NAME = 'gated_mix__linear_kernel_hedgehog__swiglu_ffn__prompt'
AP = 0; BP = 0xA00000; PQ = 0xD00000; KVACC = 0x1200000; FH = 0x1230000; FK = 0x1232000; ZEND = 0x1234000
GOFF = 0x1240000; DUMMY = 0x1250000; STAMP = 0x1300000; WSZ = 0x1600000
LOG2E = 0x3fb8aa3b; NLOG2E = 0xbfb8aa3b
OPT = dict(stamp=0, touch=1, bs="{'p0':(0,2),'p1':(2,5),3:(5,8),7:(8,10)}", pp=0, spnt='', rot2=1, slp=1, early=1, btouch=1, atf='sc1', cpf=0, dbgt=0, ost='')
ST = 'sc1'; LD = 'sc1'

pX, pQKV, pPHI, pWO, pBX, pWG, pWU, pWD = [S(16 + 2 * i, 2) for i in range(8)]
pGW, pOUT, pDBG, pWS = [S(32 + 2 * i, 2) for i in range(4)]
sWV = S(3)
rX, rW, rWS, rA, rB = S(40, 4), S(44, 4), S(48, 4), S(52, 4), S(56, 4)
sC = S(60, 2)
rDBG = S(84, 4)
sFLAG = S(88); sTO = S(89); sNEED = S(7)
GOD = 0x1000
sP = S(14, 2)
XSLOT = 32768; WB = 98304
GWB = 159744; CNT = 161024; ZERO = 161280; KVB = 147456

def srd(a, d, base, size):
    a(f"s_mov_b32 {d[0]}, {base[0]}")
    a(f"s_and_b32 {d[1]}, {base[1]}, 0xffff")
    a(f"s_mov_b32 {d[2]}, {size}")
    a(f"s_mov_b32 {d[3]}, 0x20000")

def sstamp(a, j):
    if OPT['stamp'] != 3: return
    if j > 0: a(f"v_writelane_b32 v255, s92, {40 + j - 1}")
    a("s_memtime s[92:93]")
def stamp(a, idx):
    if not OPT['stamp']: return
    if OPT['stamp'] >= 2 and idx not in (2, 11): return
    a("s_memrealtime s[90:91]")
    a("s_memtime s[92:93]")
    a("s_waitcnt lgkmcnt(0)")
    a(f"v_writelane_b32 v255, s90, {2*idx}")
    a(f"v_writelane_b32 v255, s92, {2*idx+1}")
def stamp_flush(a):
    if not OPT['stamp']: return
    if OPT['dbgt']:
        a("s_not_b32 s90, s10"); a("v_writelane_b32 v255, s90, 0")
        a("v_lshlrev_b32 v254, 1, v0"); a("v_add_u32 v254, 8, v254")
        a("s_mov_b32 exec_lo, 0x05555555"); a("s_mov_b32 exec_hi, 0")
        a(f"buffer_atomic_umax v255, v254, {rDBG}, 0 offen sc1")
        a("s_mov_b64 exec, -1")
        return
    a("v_writelane_b32 v255, s10, 0"); a("v_writelane_b32 v255, s12, 1")
    a("s_lshl_b32 s90, s2, 3")
    a(f"s_add_u32 s90, s90, {sWV}")
    a("s_lshl_b32 s90, s90, 8")
    a(f"s_add_u32 s90, s90, {STAMP + 0x80000}")
    a("v_lshlrev_b32 v254, 2, v0")
    a(f"buffer_store_dword v255, v254, {rWS}, s90 offen")

def vpoll(a, vzero, soff, off, tmp):
    L, D = a.newlabel('POLL'), a.newlabel('POLLD')
    a(f"s_mov_b32 {sTO}, 0x80000")
    a.label(L)
    a(f"buffer_load_dword {tmp}, {vzero}, {rWS}, {soff} offen offset:{off} sc1")
    a("s_waitcnt vmcnt(0)")
    a(f"v_cmp_eq_u32 vcc, 0, {tmp}")
    a("s_nop 0")
    a(f"s_cbranch_vccz {D}")
    a(f"s_sleep {OPT['slp']}")
    a(f"s_sub_u32 {sTO}, {sTO}, 1")
    a(f"s_cbranch_scc0 {L}")
    a.label(D)
def arrive(a, soff, need, z, one, nyounger=0):
    D = a.newlabel('ARR')
    a(f"v_mov_b32 {z}, 0"); a(f"v_mov_b32 {one}, 1")
    a(f"s_waitcnt vmcnt({nyounger})")
    a("s_mov_b64 exec, 1")
    a(f"buffer_atomic_add {one}, {z}, {rWS}, {soff} offen sc0 sc1")
    a("s_waitcnt vmcnt(0)")
    a(f"v_readfirstlane_b32 {sP[0]}, {one}")
    a(f"s_add_u32 {sP[1]}, {soff}, {GOD}")
    a(f"s_cmp_lg_u32 {sP[0]}, {need}")
    a(f"s_cbranch_scc1 {D}")
    a(f"buffer_store_dword {one}, {z}, {rWS}, {sP[1]} offen sc1")
    a.label(D)
    a("s_mov_b64 exec, -1")
def init_poll(a, reg):
    L, D = a.newlabel('POLL'), a.newlabel('POLLD')
    a(f"s_mov_b32 {sTO}, 0x80000")
    a.label(L)
    a(f"v_mov_b32 {reg}, 0")
    a(f"buffer_load_dword {reg}, {reg}, {rDBG}, 0 offen sc1")
    a("s_waitcnt vmcnt(0)")
    a(f"v_readfirstlane_b32 {sP[0]}, {reg}")
    a(f"s_cmp_ge_u32 {sP[0]}, 16")
    a(f"s_cbranch_scc1 {D}")
    a("s_sleep 4")
    a(f"s_sub_u32 {sTO}, {sTO}, 1")
    a(f"s_cbranch_scc0 {L}")
    a.label(D)

def softmax_unit(a, P, E, M, T, O, side=None):
    side = list(side or [])
    a(f"v_max3_f32 {M[0]}, {P[0]}, {P[1]}, {P[2]}")
    a(f"v_min3_f32 {M[2]}, {P[0]}, {P[1]}, {P[2]}")
    for i in range(3, 19, 2):
        a(f"v_max3_f32 {M[0]}, {M[0]}, {P[i]}, {P[i+1]}")
        a(f"v_min3_f32 {M[2]}, {M[2]}, {P[i]}, {P[i+1]}")
    a(f"v_max_f32 {M[0]}, {M[0]}, {P[19]}")
    a(f"v_min_f32 {M[2]}, {M[2]}, {P[19]}")
    a(f"v_mul_f32 {M[0]}, {sC[0]}, {M[0]}")
    a(f"v_mul_f32 {M[2]}, {sC[0]}, {M[2]}")
    for i in range(0, 20, 2):
        a(f"v_pk_fma_f32 {E[i:i+2]}, {P[i:i+2]}, {sC}, {M[0:2]} op_sel_hi:[1,1,0] neg_lo:[0,0,1] neg_hi:[0,0,1]")
        a(f"v_pk_fma_f32 {E[20+i:22+i]}, {P[i:i+2]}, {sC}, {M[2:4]} op_sel_hi:[1,1,0] neg_lo:[1,0,0] neg_hi:[1,0,0]")
    for i in range(40):
        a(f"v_exp_f32 {E[i]}, {E[i]}")
        if side and i % 2 == 1: a(side.pop(0))
    for l in side: a(l)
    a(f"v_pk_add_f32 {T[0:2]}, {E[0:2]}, {E[2:4]}")
    a(f"v_pk_add_f32 {T[2:4]}, {E[20:22]}, {E[22:24]}")
    for i in range(4, 20, 2):
        a(f"v_pk_add_f32 {T[0:2]}, {T[0:2]}, {E[i:i+2]}")
        a(f"v_pk_add_f32 {T[2:4]}, {T[2:4]}, {E[20+i:22+i]}")
    a(f"v_add_f32 {T[0]}, {T[0]}, {T[1]}")
    a(f"v_add_f32 {T[2]}, {T[2]}, {T[3]}")
    a(f"v_rcp_f32 {T[0]}, {T[0]}")
    a(f"v_rcp_f32 {T[2]}, {T[2]}")
    for i in range(0, 20, 2):
        a(f"v_pk_mul_f32 {E[i:i+2]}, {E[i:i+2]}, {T[0:2]} op_sel_hi:[1,0]")
        a(f"v_pk_mul_f32 {E[20+i:22+i]}, {E[20+i:22+i]}, {T[2:4]} op_sel_hi:[1,0]")
    for i in range(20):
        a(f"v_cvt_pk_bf16_f32 {O[i]}, {E[2*i]}, {E[2*i+1]}")

def kernel(a):
    END = 'K_END'
    BS = eval(OPT['bs'])
    a("s_cmp_ge_u32 s2, 256")
    a(f"s_cbranch_scc1 {END}")
    if OPT['stamp']:
        a("s_memrealtime s[10:11]"); a("s_memtime s[12:13]"); a("v_mov_b32 v255, 0")
    a("s_load_dwordx16 s[16:31], s[0:1], 0")
    a("s_load_dwordx8 s[32:39], s[0:1], 64")
    lane = V(0)
    tid, t0, t1, t2, t3, t4 = V(1), V(2), V(3), V(4), V(5), V(6)
    vqd, vr, vc, vl15 = V(7), V(8), V(9), V(10)
    vx = [V(11 + i) for i in range(4)]
    xa = [[V(15), V(16)], [V(17), V(18)]]
    tdum = V(19); ta = V(20, 2); tb = V(22, 2)
    R0 = 24
    sTY, sRB, sXK, sWK, sM, sT0, sT1, sT2, sT3, sRG, sHI, sID, sMW, sC8, sR4 = [S(62 + i) for i in range(15)]
    a(f"v_lshrrev_b32 {t0}, 6, v0")
    a(f"v_mov_b32 {tid}, v0")
    a(f"v_readfirstlane_b32 {sWV}, {t0}")
    a(f"v_and_b32 {lane}, 63, v0")
    a(f"s_bfe_u32 {sC8}, s2, 0x30003")
    a(f"s_lshr_b32 {sR4}, s2, 6")
    a(f"s_and_b32 {sRB}, s2, 1")
    a(f"s_lshl_b32 {sRB}, {sRB}, 2")
    a(f"s_add_u32 {sRB}, {sRB}, {sR4}")
    a(f"s_bfe_u32 {sT0}, s2, 0x20001")
    a(f"s_and_b32 {sRG}, {sWV}, 3")
    a(f"s_lshr_b32 {sHI}, {sWV}, 2")
    a(f"v_lshrrev_b32 {vqd}, 4, {lane}")
    a(f"v_bfe_u32 {vr}, {lane}, 2, 2")
    a(f"v_and_b32 {vc}, 3, {lane}")
    a(f"v_and_b32 {vl15}, 15, {lane}")
    a(f"v_lshrrev_b32 {t0}, 3, {lane}")
    a(f"v_mul_u32_u24 {t0}, 1280, {t0}")
    a(f"v_and_b32 {t1}, 7, {lane}")
    a(f"v_xor_b32 {t1}, {t1}, {vqd}")
    a(f"v_lshl_add_u32 {vx[0]}, {t1}, 4, {t0}")
    a(f"v_xor_b32 {t1}, 4, {t1}")
    a(f"v_lshl_add_u32 {vx[1]}, {t1}, 4, {t0}")
    a(f"v_add_u32 {vx[1]}, {8*1280-1024}, {vx[1]}")
    a(f"v_add_u32 {vx[2]}, {16*1280-2048}, {vx[0]}")
    a(f"v_add_u32 {vx[3]}, {16*1280-2048}, {vx[1]}")
    a(f"s_mul_i32 {sXK}, {sRB}, {256*1280}")
    a(f"s_mul_i32 {sT1}, {sWV}, {32*1280}")
    a(f"s_add_u32 {sXK}, {sXK}, {sT1}")
    a(f"s_lshl_b32 {sM}, {sWV}, 12")
    a(f"v_lshlrev_b32 {t2}, 3, {tid}")
    a(f"v_min_u32 {t2}, {163840 - CNT - 8}, {t2}")
    a(f"v_add_u32 {t2}, {CNT}, {t2}")
    a(f"v_mov_b32 {ta[0]}, 0"); a(f"v_mov_b32 {ta[1]}, 0")
    a(f"ds_write_b64 {t2}, {ta}")
    a(f"s_mul_i32 {sID}, {sT0}, 9"); a(f"s_add_u32 {sID}, {sID}, 1"); a(f"s_lshr_b32 {sID}, {sID}, 1")
    a(f"s_add_u32 {sID}, {sID}, {sC8}"); a(f"s_sub_u32 {sID}, {sID}, 3")
    a(f"s_and_b32 {sT1}, {sT0}, 1"); a(f"s_add_u32 {sT1}, {sT1}, {sC8}")
    a(f"s_mov_b32 {sC[0]}, {LOG2E:#x}")
    a(f"s_mov_b32 {sC[1]}, {LOG2E:#x}")
    a("s_waitcnt lgkmcnt(0)")
    srd(a, rX, pX, 2048 * 1280)
    srd(a, rWS, pWS, WSZ)
    srd(a, rDBG, pDBG, 256)
    if OPT['cpf']:
        a(f"s_cmp_lg_u32 {sWV}, 7"); a("s_cbranch_scc1 NOCPF")
        a("s_getpc_b64 s[4:5]")
        a("s_and_b32 s4, s4, 0xffffff00")
        a("s_lshr_b32 s6, s2, 3"); a(f"s_mul_i32 s6, s6, {OPT['cpf']*128}")
        a(f"v_lshlrev_b32 {t0}, 7, {lane}"); a(f"v_add_u32 {t0}, s6, {t0}")
        a(f"s_mov_b64 exec, {(1 << OPT['cpf']) - 1:#x}")
        a(f"global_load_dword v31, {t0}, s[4:5]")
        a("s_mov_b64 exec, -1")
        a.label("NOCPF")
    a(f"s_cmp_lt_u32 {sC8}, 3")
    a("s_cbranch_scc1 R_QKV")
    a(f"s_cmp_eq_u32 {sT1}, 8")
    a("s_cbranch_scc1 R_SPARE")

    def x_dma(vm, blk, half):
        l = [f"s_add_u32 m0, {sM}, {(blk % 3) * XSLOT}"]
        if half == 0 and blk > 0: l.append(f"s_add_u32 {sXK}, {sXK}, 128")
        for n in (2 * half, 2 * half + 1):
            l.append(f"buffer_load_dwordx4 {vx[n]}, {rX}, {sXK} offen offset:{n*1024} lds")
            vm.issue(('X', blk))
        return l
    def x_addr_setup():
        a(f"v_lshrrev_b32 {t0}, 1, {vl15}")
        a(f"v_xor_b32 {t0}, {t0}, {vqd}")
        a(f"v_lshlrev_b32 {t0}, 4, {t0}")
        a(f"v_lshl_add_u32 {t0}, {vl15}, 7, {t0}")
        a(f"s_lshl_b32 {sT0}, {sRG}, 13")
        a(f"v_add_u32 {xa[0][0]}, {sT0}, {t0}")
        a(f"v_xor_b32 {xa[0][1]}, 64, {xa[0][0]}")
        a(f"v_add_u32 {xa[1][0]}, 0x10000, {xa[0][0]}")
        a(f"v_add_u32 {xa[1][1]}, 0x10000, {xa[0][1]}")
    def x_reads(XF, step):
        blk, kk = step // 2, step % 2
        sl = blk % 3
        return [f"ds_read_b128 {XF[tt]}, {xa[sl // 2][kk]} offset:{(sl % 2) * XSLOT + tt * 2048}" for tt in range(4)]
    def burst(vm, b0, b1):
        if not OPT['touch']: return []
        l = []
        for st, reg in ((0, ta), (5, tb)):
            lo, hi = max(b0, st) - st, min(b1, st + 5) - st
            if lo >= hi: continue
            m = ((1 << (12 * hi)) - 1) & ~((1 << (12 * lo)) - 1)
            l += [f"s_mov_b32 exec_lo, {m & 0xffffffff:#x}", f"s_mov_b32 exec_hi, {m >> 32:#x}", f"global_load_dword {tdum}, {reg}, off"]
            vm.issue('T')
        l.append("s_mov_b64 exec, -1")
        return l
    def touch_setup(pw0, pw1, rowbytes, off0, off1, seg):
        if not OPT['touch']: return
        l12, bi = tb[0], tb[1]; tinc = tdum
        a(f"v_mul_u32_u24 {bi}, 43, {lane}"); a(f"v_lshrrev_b32 {bi}, 9, {bi}")
        a(f"v_mul_u32_u24 {l12}, 12, {bi}"); a(f"v_sub_u32 {l12}, {lane}, {l12}")
        a(f"s_lshl_b32 {sT2}, {sRB}, 3"); a(f"s_add_u32 {sT2}, {sT2}, {sC8}"); a(f"s_lshl_b32 {sT2}, {sT2}, 3"); a(f"s_add_u32 {sT2}, {sT2}, {sWV}")
        a(f"s_mul_i32 {sT2}, {sT2}, {4*1280}")
        a(f"v_mul_u32_u24 {t0}, 1280, {l12}")
        a(f"v_add_u32 {t0}, {sT2}, {t0}")
        a(f"s_lshl_b32 {sT0}, {sR4}, 3"); a(f"s_add_u32 {sT0}, {sT0}, {sWV}"); a(f"s_mul_i32 {sT0}, {sT0}, {2*rowbytes}")
        a(f"v_subrev_u32 {t1}, 4, {l12}")
        a(f"v_bfe_u32 {t2}, {t1}, 2, 1")
        a(f"v_mul_u32_u24 {t2}, {rowbytes}, {t2}")
        a(f"v_and_b32 {t3}, 1, {t1}")
        a(f"v_mul_u32_u24 {t3}, {seg-4}, {t3}")
        a(f"v_add3_u32 {t2}, {t2}, {t3}, {sT0}")
        a(f"v_and_b32 {t3}, 2, {t1}")
        a(f"v_cmp_eq_u32 vcc, 0, {t3}")
        a(f"v_mov_b32 {t3}, {off1}"); a(f"v_mov_b32 {t4}, {off0}")
        a(f"v_cndmask_b32 {t3}, {t3}, {t4}, vcc")
        a(f"v_add_u32 {t2}, {t2}, {t3}")
        a(f"v_mov_b32 {t3}, {pw1[0]}"); a(f"v_mov_b32 {t4}, {pw0[0]}"); a(f"v_cndmask_b32 {ta[0]}, {t3}, {t4}, vcc")
        a(f"v_mov_b32 {t3}, {pw1[1]}"); a(f"v_mov_b32 {t4}, {pw0[1]}"); a(f"v_cndmask_b32 {ta[1]}, {t3}, {t4}, vcc")
        a(f"v_cmp_gt_u32 vcc, 4, {l12}")
        a(f"v_mov_b32 {t3}, {pX[0]}"); a(f"v_mov_b32 {t4}, {pX[1]}")
        a(f"v_cndmask_b32 {t2}, {t2}, {t0}, vcc")
        a(f"v_cndmask_b32 {ta[0]}, {ta[0]}, {t3}, vcc")
        a(f"v_cndmask_b32 {ta[1]}, {ta[1]}, {t4}, vcc")
        a(f"v_mov_b32 {t3}, {64*rowbytes}"); a(f"v_mov_b32 {t4}, 128"); a(f"v_cndmask_b32 {tinc}, {t3}, {t4}, vcc")
        a(f"v_mad_u32_u24 {t2}, {tinc}, {bi}, {t2}")
        a(f"v_add_co_u32 {ta[0]}, vcc, {ta[0]}, {t2}")
        a(f"v_mul_u32_u24 {t2}, 5, {tinc}")
        a(f"v_addc_co_u32 {ta[1]}, vcc, 0, {ta[1]}, vcc")
        a(f"v_add_co_u32 {tb[0]}, vcc, {ta[0]}, {t2}")
        a(f"v_addc_co_u32 {tb[1]}, vcc, 0, {ta[1]}, vcc")
    def step_body(mains, lblk, pre=[]):
        for l in pre: a(l)
        if not lblk:
            for m in mains: a(m)
            return
        if OPT['pp'] == 2:
            rds = [l for l in lblk if l.startswith('ds_read')]; oth = [l for l in lblk if not l.startswith('ds_read')]
            l1, l2 = a.newlabel('PP'), a.newlabel('PP')
            if oth:
                a(f"s_cmp_eq_u32 {sHI}, 0"); a(f"s_cbranch_scc1 {l1}")
                for l in oth: a(l)
                a.label(l1)
            k = 0
            for i, m in enumerate(mains):
                a(m)
                while k < len(rds) and k < (i + 1) * max(1, -(-len(rds) // len(mains))):
                    a(rds[k]); k += 1
            if oth:
                a(f"s_cmp_eq_u32 {sHI}, 0"); a(f"s_cbranch_scc0 {l2}")
                for l in oth: a(l)
                a.label(l2)
        elif OPT['pp']:
            l1, l2 = a.newlabel('PP'), a.newlabel('PP')
            a(f"s_cmp_eq_u32 {sHI}, 0"); a(f"s_cbranch_scc1 {l1}")
            for l in lblk: l() if callable(l) else a(l)
            a.label(l1)
            for m in mains: a(m)
            a(f"s_cmp_eq_u32 {sHI}, 0"); a(f"s_cbranch_scc0 {l2}")
            for l in lblk: l() if callable(l) else a(l)
            a.label(l2)
        else:
            k = 0
            for i, m in enumerate(mains):
                a(m)
                while k < len(lblk) and k < (i + 1) * len(lblk) // len(mains) + 1:
                    l = lblk[k]; l() if callable(l) else a(l); k += 1
    def init_check_issue(reg):
        return [f"v_mov_b32 {reg}, 0", f"buffer_load_dword {reg}, {reg}, {rDBG}, 0 offen sc1"]
    def init_check(reg):
        ok = a.newlabel('INITOK')
        a(f"v_readfirstlane_b32 {sP[0]}, {reg}")
        a(f"s_cmp_ge_u32 {sP[0]}, 16")
        a(f"s_cbranch_scc1 {ok}")
        init_poll(a, reg)
        a.label(ok)
    sR6, sCG, sAB, sBB, sBc, sBe, sBl, sLim = [S(94 + i) for i in range(8)]
    vo, vo4 = V(20), V(21)
    BRb = [208, 228, 32, 52]
    BR = [[V(BRb[b] + 4 * j, 4) for j in range(5)] for b in range(4)]
    def p2_setup():
        l = [f"s_and_b32 {sR6}, s2, 7", f"s_lshl_b32 {sR6}, {sR6}, 2", "s_lshr_b32 s4, s2, 6", f"s_add_u32 {sR6}, {sR6}, s4",
             f"s_bfe_u32 {sCG}, s2, 0x30003", f"v_lshlrev_b32 {vo}, 4, {lane}", f"v_add_u32 {vo4}, 4096, {vo}",
             f"s_mul_i32 {sAB}, {sR6}, {74*4096}", f"s_mul_i32 {sBB}, {sCG}, {74*5120}", f"s_add_u32 {sBB}, {sBB}, {BP}",
             f"s_mov_b32 {rB[0]}, {pWS[0]}", f"s_and_b32 {rB[1]}, {pWS[1]}, 0xffff", f"s_mov_b32 {rB[2]}, {WSZ}", f"s_mov_b32 {rB[3]}, 0x20000",
             f"s_mul_i32 s4, {sCG}, {5 if OPT['rot2'] else 0}", "s_and_b32 s4, s4, -4",
             f"s_lshl_b32 s5, {sCG}, 1", f"s_and_b32 s5, s5, {-4 if OPT['rot2'] else 0}", "s_add_u32 s5, s5, 40",
             f"s_cmp_eq_u32 {sHI}, 0\ns_cselect_b32 {sBc}, s5, s4\ns_cselect_b32 {sBe}, 56, 40\ns_cselect_b32 {sBl}, 16, 40",
             f"s_add_u32 {sBc}, {sBc}, {sRG}", f"s_mov_b32 {sLim}, 54"]
        return l
    def b_adv():
        return [f"s_add_u32 {sBc}, {sBc}, 4", f"s_sub_u32 s5, {sBc}, {sBl}", f"s_cmp_ge_u32 {sBc}, {sBe}\ns_cselect_b32 {sBc}, s5, {sBc}"]
    def b_addr():
        return [f"s_mul_i32 s4, {sBc}, 5120", f"s_add_u32 s4, s4, {sBB}", f"s_cmp_lt_u32 {sBc}, {sLim}\ns_cselect_b32 {rB[2]}, {WSZ}, 0"]
    def b_reg(vm, b, tag):
        l = b_addr()
        for j in range(5):
            if j < 4: l.append(f"buffer_load_dwordx4 {BR[b][j]}, {vo}, {rB}, s4 offen offset:{j*1024} {LD}")
            else: l.append(f"buffer_load_dwordx4 {BR[b][j]}, {vo4}, {rB}, s4 offen {LD}")
            vm.issue(tag)
        return l + b_adv()
    def b_switch():
        return [f"s_mul_i32 s4, {sCG}, {5 if OPT['rot2'] else 0}", "s_lshr_b32 s4, s4, 3", "s_lshl_b32 s4, s4, 2", f"s_add_u32 s4, s4, {sRG}", "s_add_u32 s4, s4, 54",
                f"s_cmp_eq_u32 {sHI}, 0\ns_cselect_b32 {sBc}, s4, {sBc}\ns_cselect_b32 {sBe}, 74, 40\ns_cselect_b32 {sBl}, 20, 40", f"s_mov_b32 {sLim}, 100",
                f"s_mul_i32 s6, {sWV}, 15360"]
    def b_lds(vm, k):
        l = b_addr() + [f"s_add_u32 m0, s6, {k*5120}"]
        for j in range(4):
            l.append(f"buffer_load_dwordx4 {vo}, {rB}, s4 offen offset:{j*1024} {LD} lds"); vm.issue('BL')
        l.append(f"s_add_u32 m0, s6, {k*5120 + 4096}")
        l.append(f"buffer_load_dwordx4 {vo4}, {rB}, s4 offen {LD} lds"); vm.issue('BL')
        return l + b_adv()
    def b_touch(vm):
        if not OPT['btouch']: return []
        vm.issue('T'); vm.issue('T')
        return ["s_lshr_b32 s4, s2, 6", "s_lshl_b32 s4, s4, 3", f"s_add_u32 s4, s4, {sWV}", f"s_mul_i32 s4, s4, {93*128}", f"s_add_u32 s4, s4, {sBB}",
                f"v_lshlrev_b32 {V(22)}, 7, {lane}", f"buffer_load_dword {tdum}, {V(22)}, {rWS}, s4 offen {LD}", f"s_add_u32 s4, s4, 8192",
                f"s_mov_b64 exec, 0x1fffffff\nbuffer_load_dword {tdum}, {V(22)}, {rWS}, s4 offen {LD}\ns_mov_b64 exec, -1"]
    def flag_store(need):
        stamp(a, 3)
        arrive(a, sFLAG, need, t0, t1)
        a("s_setprio 0")
        stamp(a, 4)

    vw = [V(R0), V(R0 + 1)]; wa = [V(R0 + 2), V(R0 + 3), V(R0 + 4)]; vchk = V(R0 + 5)
    FB = [32, 72]
    XF = [[V(FB[b] + 4 * tt, 4) for tt in range(4)] for b in range(2)]
    WF = [[V(FB[b] + 16 + 4 * c, 4) for c in range(6)] for b in range(2)]
    ACC = [[V(112 + (c * 4 + tt) * 4, 4) for tt in range(4)] for c in range(6)]
    vm = VmTrack()
    a(f"s_mul_i32 {sT3}, {sID}, 192")
    touch_setup(pWG, pWU, 3456, sT3, sT3, 192)
    for l in burst(vm, *BS['p0']): a(l)
    a(f"s_bitcmp1_b32 {sWV}, 0")
    a(f"s_cselect_b32 {rW[0]}, {pWU[0]}, {pWG[0]}")
    a(f"s_cselect_b32 {rW[1]}, {pWU[1]}, {pWG[1]}")
    a(f"s_and_b32 {rW[1]}, {rW[1]}, 0xffff")
    a(f"s_mov_b32 {rW[2]}, {640*3456}")
    a(f"s_mov_b32 {rW[3]}, 0x20000")
    a(f"s_bfe_u32 {sT0}, {sWV}, 0x10001")
    a(f"s_lshl_b32 {sT1}, {sT0}, 1")
    for n in range(2):
        a(f"v_add_u32 {t0}, {64*n}, {lane}")
        a(f"v_mul_u32_u24 {t1}, 43, {t0}")
        a(f"v_lshrrev_b32 {t1}, 9, {t1}")
        a(f"v_mul_u32_u24 {t2}, 12, {t1}")
        a(f"v_sub_u32 {t2}, {t0}, {t2}")
        a(f"v_lshrrev_b32 {t3}, 2, {t2}")
        a(f"v_cmp_eq_u32 vcc, 1, {t3}")
        a(f"v_mov_b32 {t3}, {sT1}")
        a(f"v_mov_b32 {t4}, {sT0}")
        a(f"v_cndmask_b32 {t3}, {t3}, {t4}, vcc")
        a(f"v_xor_b32 {t2}, {t2}, {t3}")
        a(f"v_mul_u32_u24 {t1}, 3456, {t1}")
        a(f"v_lshl_add_u32 {vw[n]}, {t2}, 4, {t1}")
        if n: a(f"v_subrev_u32 {vw[n]}, 1024, {vw[n]}")
    a(f"s_lshr_b32 {sT0}, {sWV}, 1")
    a(f"s_mul_i32 {sWK}, {sT0}, {8*3456}")
    a(f"s_add_u32 {sWK}, {sWK}, {sT3}")
    a(f"s_mul_i32 {sMW}, {sT0}, 1536")
    a(f"s_and_b32 {sT1}, {sWV}, 1")
    a(f"s_mul_i32 {sT1}, {sT1}, 6144")
    a(f"s_add_u32 {sMW}, {sMW}, {sT1}")
    def w_dma(step):
        l = [f"s_add_u32 m0, {sMW}, {WB + (step % 5) * 12288}"] + ([f"s_add_u32 {sWK}, {sWK}, 110592"] if step else []) + [
             f"buffer_load_dwordx4 {vw[0]}, {rW}, {sWK} offen lds",
             "s_mov_b32 exec_hi, 0\n"
             f"buffer_load_dwordx4 {vw[1]}, {rW}, {sWK} offen offset:1024 lds\n"
             "s_mov_b32 exec_hi, -1"]
        vm.issue(('W', step)); vm.issue(('W', step))
        return l
    if OPT['touch']: a("s_barrier")
    for l in x_dma(vm, 0, 0) + x_dma(vm, 0, 1) + w_dma(0) + w_dma(1): a(l)
    x_addr_setup()
    a(f"v_lshl_add_u32 {t0}, {vqd}, 3, {vr}")
    a(f"v_mul_u32_u24 {t0}, 192, {t0}")
    a(f"v_add_u32 {t0}, {WB}, {t0}")
    a(f"v_and_b32 {t1}, 1, {vqd}")
    a(f"v_lshlrev_b32 {t2}, 5, {t1}")
    a(f"v_lshl_add_u32 {t2}, {vc}, 3, {t2}")
    a(f"s_lshl_b32 {sT0}, {sHI}, 7")
    a(f"v_add3_u32 {wa[0]}, {t0}, {t2}, {sT0}")
    a(f"v_xor_b32 {wa[1]}, 32, {wa[0]}")
    a(f"v_and_b32 {t2}, 2, {vc}")
    a(f"v_add_u32 {t2}, {sHI}, {t2}")
    a(f"v_xor_b32 {t2}, {t2}, {t1}")
    a(f"v_lshlrev_b32 {t2}, 4, {t2}")
    a(f"v_and_b32 {t3}, 1, {vc}")
    a(f"v_lshl_add_u32 {t2}, {t3}, 3, {t2}")
    a(f"v_add3_u32 {wa[2]}, {t0}, {t2}, 64")
    def w_reads(WFb, step):
        return [f"ds_read_b64_tr_b16 {WFb[m*3+i][2*rd:2*rd+2]}, {wa[i]} offset:{(step % 5) * 12288 + m * 6144 + rd * 768}"
                for m in range(2) for i in range(3) for rd in range(2)]
    if 'p1' in BS:
        a("s_barrier")
        for l in burst(vm, *BS['p1']): a(l)
    n = vm.wait_for(lambda t: t in (('X', 0), ('W', 0)))
    a(f"s_waitcnt vmcnt({n})")
    a("s_barrier")
    stamp(a, 1)
    for l in x_reads(XF[0], 0) + w_reads(WF[0], 0): a(l)
    for l in x_dma(vm, 1, 0) + x_dma(vm, 1, 1) + w_dma(2): a(l)
    for j in range(20):
        cur, nxt = j & 1, (j & 1) ^ 1
        if j < 19:
            n = vm.wait_for(lambda t: t in (('X', (j + 1) // 2), ('W', j + 1)) or (j == 15 and t == 'chk'))
            a(f"s_waitcnt vmcnt({n}) lgkmcnt(0)")
        else:
            a("s_waitcnt lgkmcnt(0)")
        if j == 15: init_check(vchk)
        a("s_barrier")
        sstamp(a, j)
        mains = [f"v_mfma_f32_16x16x32_bf16 {ACC[c][tt]}, {WF[cur][c]}, {XF[cur][tt]}, {'0' if j == 0 else ACC[c][tt]}" for c in range(6) for tt in range(4)]
        pre = burst(vm, *BS[j]) if j in BS else []
        lblk = []
        if j < 19:
            lblk += x_reads(XF[nxt], j + 1) + w_reads(WF[nxt], j + 1)
            if j == 0: lblk += w_dma(3) + x_dma(vm, 2, 0) + x_dma(vm, 2, 1) + w_dma(4)
            xb = (j - 1) // 2 + 3 if j >= 1 else 99
            if xb <= 9: lblk += x_dma(vm, xb, (j - 1) % 2)
            if j == 13: lblk += init_check_issue(vchk); vm.issue('chk')
            if j + 5 <= 19: lblk += w_dma(j + 5)
            if OPT['early']:
                if j == 15: lblk += p2_setup() + b_touch(vm)
                if j == 17: lblk += b_reg(vm, 0, 'B')
                if j == 18: lblk += b_reg(vm, 1, 'B')
        elif OPT['early']:
            lblk += b_reg(vm, 2, 'B') + b_reg(vm, 3, 'B') + b_switch()
        step_body(mains, lblk, pre)
    stamp(a, 2)
    a("s_setprio 2")
    sN = S(78, 2)
    a(f"s_mov_b32 {sN[0]}, {NLOG2E:#x}")
    a(f"s_mov_b32 {sN[1]}, {NLOG2E:#x}")
    a(f"s_lshl_b32 {sT3}, {sRB}, 2")
    a(f"s_add_u32 {sT3}, {sT3}, {sRG}")
    a(f"s_mul_i32 {sT0}, {sT3}, 74")
    a(f"s_mul_i32 {sT1}, {sID}, 3")
    a(f"s_add_u32 {sT0}, {sT0}, {sT1}")
    a(f"s_lshl_b32 {sT0}, {sT0}, 12")
    a(f"s_lshl_b32 {sT1}, {sHI}, 13")
    a(f"s_add_u32 {sT1}, {sT0}, {sT1}")
    a(f"s_lshl_b32 {sT2}, {sHI}, 9")
    a(f"s_add_u32 {sT2}, {sT2}, {sT0}")
    a(f"s_add_u32 {sT2}, {sT2}, 4096")
    a(f"s_lshl_b32 {sFLAG}, {sT3}, 7")
    a(f"s_add_u32 {sFLAG}, {sFLAG}, {FH}")
    a(f"v_lshlrev_b32 {t0}, 4, {lane}")
    a(f"v_and_b32 {t1}, 31, {lane}")
    a(f"v_lshlrev_b32 {t1}, 4, {t1}")
    a(f"v_lshrrev_b32 {t2}, 5, {lane}")
    a(f"v_lshl_add_u32 {t1}, {t2}, 10, {t1}")
    tmp = [V(FB[1] + 4 * i, 4) for i in range(2)]
    outs = [V(FB[1] + 8 + 4 * i, 4) for i in range(6)]
    def silu2(G0, U0, G1, U1, o):
        GU = ((G0, U0, tmp[0]), (G1, U1, tmp[1]))
        for G, U, T in GU:
            for h in range(2): a(f"v_pk_mul_f32 {T[2*h:2*h+2]}, {G[2*h:2*h+2]}, {sN}")
        for G, U, T in GU:
            for k in range(4): a(f"v_exp_f32 {T[k]}, {T[k]}")
        for G, U, T in GU:
            for h in range(2): a(f"v_pk_mul_f32 {G[2*h:2*h+2]}, {G[2*h:2*h+2]}, {U[2*h:2*h+2]}")
        for G, U, T in GU:
            for h in range(2): a(f"v_pk_add_f32 {T[2*h:2*h+2]}, {T[2*h:2*h+2]}, 1.0 op_sel_hi:[1,0]")
        for G, U, T in GU:
            for k in range(4): a(f"v_rcp_f32 {T[k]}, {T[k]}")
        for G, U, T in GU:
            for h in range(2): a(f"v_pk_mul_f32 {G[2*h:2*h+2]}, {G[2*h:2*h+2]}, {T[2*h:2*h+2]}")
        for q, (G, U, T) in enumerate(GU):
            for h in range(2): a(f"v_cvt_pk_bf16_f32 {o[2*q+h]}, {G[2*h]}, {G[2*h+1]}")
    for tt in range(4):
        o = outs[tt]
        if OPT['early'] and tt < 3:
            for l in b_lds(vm, tt): a(l)
        silu2(ACC[0][tt], ACC[3][tt], ACC[1][tt], ACC[4][tt], o)
        a(f"buffer_store_dwordx4 {o}, {t0}, {rWS}, {sT1} offen offset:{tt*1024} {ST}")
    for tp in range(2):
        o = outs[4 + tp]
        silu2(ACC[2][2*tp], ACC[5][2*tp], ACC[2][2*tp+1], ACC[5][2*tp+1], o)
        a(f"v_permlane32_swap_b32 {o[0]}, {o[2]}")
        a(f"v_permlane32_swap_b32 {o[1]}, {o[3]}")
        a(f"buffer_store_dwordx4 {o}, {t1}, {rWS}, {sT2} offen offset:{tp*2048} {ST}")
    flag_store(35)
    a("s_branch " + ('P2_GO' if OPT['early'] else 'P2_ALL'))

    a.label('R_QKV')
    vm = VmTrack()
    vw = [V(R0), V(R0 + 1), V(R0 + 2)]; wa = V(R0 + 3); pa = V(R0 + 4); vchk = V(R0 + 5); vgw = V(R0 + 6)
    FB = [32, 68]
    XF = [[V(FB[b] + 4 * tt, 4) for tt in range(4)] for b in range(2)]
    WF = [[V(FB[b] + 16 + 4 * c, 4) for c in range(5)] for b in range(2)]
    ACC = [V(104 + 20 * tt, 20) for tt in range(4)]
    pf4 = [V(32 + 4 * i, 4) for i in range(9)] + [V(196, 4)]
    pf2 = [V(200, 2), V(202, 2), V(204, 2), V(206, 2), V(248, 2)]
    PF = [[pf4[2 * t], pf4[2 * t + 1], pf2[t]] for t in range(5)]
    WP = V(184, 4); GWF = V(188, 4); GA = V(192, 4)
    sC0, sC1, sLo, sHi2, sISQ, sHB, sGD = [S(77 + i) for i in range(7)]
    PHW = 135168; PHB = 0; VVB = 90112; PS = 352
    srd(a, rW, pQKV, 640 * 3840)
    srd(a, rA, pPHI, 32 * 800)
    srd(a, rB, pGW, 1280)
    a(f"s_lshl_b32 {sID}, {sT0}, 1"); a(f"s_add_u32 {sID}, {sID}, {sC8}")
    a(f"s_mul_i32 {sC0}, {sID}, 160")
    a(f"s_add_u32 {sC1}, {sC0}, 2560")
    a(f"s_add_u32 {sC0}, {sC0}, 1280")
    a(f"s_lshl_b32 {sHB}, {sID}, 2")
    a(f"s_mul_i32 {sT1}, {sT0}, 320")
    a(f"s_add_u32 {sT2}, {sT1}, 160")
    a(f"s_lshl_b32 {sT3}, {sT0}, 3")
    a(f"s_cmp_eq_u32 {sC8}, 2")
    a(f"s_cselect_b32 {sC0}, {sT1}, {sC0}")
    a(f"s_cselect_b32 {sC1}, {sT2}, {sC1}")
    a(f"s_cselect_b32 {sHB}, {sT3}, {sHB}")
    a(f"s_cselect_b32 {sISQ}, 1, 0")
    a(f"s_or_b32 {sGD}, {sT0}, {sHI}")
    a(f"s_cmp_eq_u32 {sGD}, 0")
    a(f"s_cselect_b32 {sGD}, {sISQ}, 0")
    a(f"s_bitcmp1_b32 {sWV}, 0")
    a(f"s_cselect_b32 {sLo}, {sC1}, {sC0}")
    a(f"s_cselect_b32 {sHi2}, {sC0}, {sC1}")
    a(f"s_sub_u32 {sHi2}, {sHi2}, 160")
    touch_setup(pQKV, pQKV, 3840, sC0, sC1, 160)
    for l in burst(vm, *BS['p0']): a(l)
    for n in range(3):
        a(f"v_add_u32 {t0}, {64*n}, {lane}")
        a(f"v_mul_u32_u24 {t1}, 205, {t0}")
        a(f"v_lshrrev_b32 {t1}, 12, {t1}")
        a(f"v_mul_u32_u24 {t2}, 20, {t1}")
        a(f"v_sub_u32 {t2}, {t0}, {t2}")
        a(f"v_cmp_le_u32 vcc, 10, {t2}")
        a(f"v_mov_b32 {t3}, {sLo}")
        a(f"v_mov_b32 {t4}, {sHi2}")
        a(f"v_cndmask_b32 {t3}, {t3}, {t4}, vcc")
        a(f"v_mul_u32_u24 {t1}, 3840, {t1}")
        a(f"v_lshl_add_u32 {t1}, {t2}, 4, {t1}")
        a(f"v_add_u32 {vw[n]}, {t1}, {t3}")
        if n: a(f"v_subrev_u32 {vw[n]}, {1024*n}, {vw[n]}")
    a(f"s_mul_i32 {sWK}, {sWV}, {8*3840}")
    a(f"s_mul_i32 {sMW}, {sWV}, 2560")
    def w_dma2(blk):
        l = [f"s_add_u32 m0, {sMW}, {WB + (blk % 3) * 20480}"] + ([f"s_add_u32 {sWK}, {sWK}, 245760"] if blk else []) + [
             f"buffer_load_dwordx4 {vw[0]}, {rW}, {sWK} offen lds",
             f"buffer_load_dwordx4 {vw[1]}, {rW}, {sWK} offen offset:1024 lds",
             "s_mov_b32 exec_hi, 0\n"
             f"buffer_load_dwordx4 {vw[2]}, {rW}, {sWK} offen offset:2048 lds\n"
             "s_mov_b32 exec_hi, -1"]
        for _ in range(3): vm.issue(('W', blk))
        return l
    a(f"s_mul_i32 {sT0}, {sWV}, 160")
    a(f"v_lshl_add_u32 {t0}, {lane}, 4, {sT0}")
    a(f"s_add_u32 m0, {sT0}, {GWB}")
    a("s_mov_b64 exec, 0x3ff")
    a(f"buffer_load_dwordx4 {t0}, {rB}, 0 offen lds"); vm.issue(('W', 0))
    a("s_mov_b64 exec, -1")
    a(f"v_lshlrev_b32 {t0}, 4, {tid}")
    a(f"s_mul_i32 {sT0}, {sHB}, 800")
    a(f"v_add_u32 {t0}, {sT0}, {t0}")
    a(f"buffer_load_dwordx4 {WP}, {t0}, {rA}, 0 offen"); vm.issue(('P', 0))
    if OPT['touch']: a("s_barrier")
    for l in x_dma(vm, 0, 0) + x_dma(vm, 0, 1) + w_dma2(0): a(l)
    x_addr_setup()
    a(f"v_lshl_add_u32 {t0}, {vqd}, 3, {vr}")
    a(f"v_mul_u32_u24 {t0}, 320, {t0}")
    a(f"v_and_b32 {t1}, 1, {vqd}")
    a(f"v_xor_b32 {t1}, {sHI}, {t1}")
    a(f"v_mul_u32_u24 {t1}, 160, {t1}")
    a(f"v_mul_u32_u24 {t2}, 40, {vc}")
    a(f"v_add3_u32 {t0}, {t0}, {t1}, {t2}")
    a(f"v_add_u32 {wa}, {WB}, {t0}")
    a(f"s_and_b32 {sT0}, {sHI}, {sISQ}")
    a(f"s_mul_i32 {sT0}, {sT0}, 3200")
    a(f"s_add_u32 {sT0}, {sT0}, {PHW}")
    a(f"v_mul_u32_u24 {t0}, 800, {vqd}")
    a(f"v_add_u32 {t0}, {sT0}, {t0}")
    a(f"v_mov_b32 {t1}, {ZERO}")
    a(f"v_cmp_eq_u32 vcc, {vc}, {vqd}")
    a(f"v_cndmask_b32 {t0}, {t1}, {t0}, vcc")
    a(f"v_mul_u32_u24 {t1}, 40, {vr}")
    a(f"v_add_u32 {pa}, {t0}, {t1}")
    a(f"v_lshlrev_b32 {vgw}, 4, {vqd}")
    a(f"v_add_u32 {vgw}, {GWB}, {vgw}")
    for g in range(4): a(f"v_mov_b32 {GA[g]}, 0")
    def w_reads2(WFb, step):
        blk, kk = step // 2, step % 2
        return [f"ds_read_b64_tr_b16 {WFb[t][2*rd:2*rd+2]}, {wa} offset:{(blk % 3) * 20480 + kk * 10240 + rd * 1280 + 8 * t}" for t in range(5) for rd in range(2)]
    if 'p1' in BS:
        a("s_barrier")
        for l in burst(vm, *BS['p1']): a(l)
    n = vm.wait_for(lambda t: t in (('X', 0), ('W', 0)))
    a(f"s_waitcnt vmcnt({n})")
    a("s_barrier")
    stamp(a, 1)
    for l in x_reads(XF[0], 0) + w_reads2(WF[0], 0): a(l)
    a(f"ds_read_b128 {GWF}, {vgw}")
    for l in x_dma(vm, 1, 0) + x_dma(vm, 1, 1) + w_dma2(1): a(l)
    for j in range(20):
        cur, nxt = j & 1, (j & 1) ^ 1
        if j % 2 == 1:
            if j < 19:
                n = vm.wait_for(lambda t: t in (('X', (j + 1) // 2), ('W', (j + 1) // 2)) or (j == 17 and t == 'chk'))
                a(f"s_waitcnt vmcnt({n}) lgkmcnt(0)")
            else: a("s_waitcnt lgkmcnt(0)")
            if j == 17: init_check(vchk)
            a("s_barrier")
        else:
            a("s_waitcnt lgkmcnt(0)")
            if OPT['pp']: a("s_barrier")
        sstamp(a, j)
        mains = [f"v_mfma_f32_16x16x32_bf16 {ACC[tt][4*t:4*t+4]}, {WF[cur][t]}, {XF[cur][tt]}, {'0' if j == 0 else ACC[tt][4*t:4*t+4]}" for t in range(5) for tt in range(4)]
        pre = burst(vm, *BS[j]) if j in BS else []
        lblk = []
        if j < 19:
            lblk += x_reads(XF[nxt], j + 1) + w_reads2(WF[nxt], j + 1)
            if j == 0: lblk += x_dma(vm, 2, 0) + x_dma(vm, 2, 1) + w_dma2(2)
            xb = (j - 1) // 2 + 3 if j >= 1 else 99
            if xb <= 9:
                if j % 2 == 1: lblk += x_dma(vm, xb, 0) + x_dma(vm, xb, 1)
                else: lblk += w_dma2(xb)
            if j == 15: lblk += init_check_issue(vchk); vm.issue('chk')
            if j == 17:
                lblk += [f"v_lshlrev_b32 {t0}, 4, {tid}", f"v_add_u32 {t0}, {PHW}, {t0}", f"ds_write_b128 {t0}, {WP}"] + p2_setup()
        else:
            for t in range(5):
                for s in range(3):
                    for r_ in range(2 if s < 2 else 1):
                        lblk.append(f"ds_read_b64_tr_b16 {PF[t][s][2*r_:2*r_+2]}, {pa} offset:{s*320 + r_*160 + t*8}")
        step_body(mains, lblk, pre)
        lg = a.newlabel('GD')
        a(f"s_cmp_eq_u32 {sGD}, 0"); a(f"s_cbranch_scc1 {lg}")
        for k in range(4):
            for tt in range(4): a(f"v_dot2c_f32_bf16 {GA[tt]}, {XF[cur][tt][k]}, {GWF[k]}")
        if j < 19: a(f"ds_read_b128 {GWF}, {vgw} offset:{(j+1)*64}")
        a.label(lg)
    stamp(a, 2)
    a("s_setprio 2")
    QB = V(68, 40); P = V(108, 20); E = V(128, 40); O = V(168, 20); M = V(250, 4); T = V(188, 4); ONE = V(192, 2)
    sCNT = S(8); sOUT = S(9)
    def cvt_tile(dst, tt):
        for i in range(10): a(f"v_cvt_pk_bf16_f32 {dst[i]}, {ACC[tt][2*i]}, {ACC[tt][2*i+1]}")
    def pk_list(q):
        l = []
        for s_ in range(3):
            for t in range(5):
                d = P[4*t:4*t+4]
                if s_ < 2: l.append(f"v_mfma_f32_16x16x32_bf16 {d}, {PF[t][s_]}, {q[4*s_:4*s_+4]}, {'0' if s_ == 0 else d}")
                else: l.append(f"v_mfma_f32_16x16x16_bf16 {d}, {PF[t][s_]}, {q[8:10]}, {d}")
        return l
    a(f"s_lshl_b32 {sT3}, {sRB}, 2")
    a(f"s_add_u32 {sT3}, {sT3}, {sRG}")
    a(f"s_cmp_eq_u32 {sISQ}, 0")
    a("s_cbranch_scc1 R_KV")
    for tt in range(4): cvt_tile(QB[10*tt:10*tt+10], tt)
    a("s_waitcnt lgkmcnt(0)")
    for l in pk_list(QB[0:10]): a(l)
    a(f"s_lshr_b32 {sT1}, {sHB}, 2")
    a(f"s_add_u32 {sT1}, {sT1}, {sHI}")
    a(f"s_lshl_b32 {sOUT}, {sT3}, 5")
    a(f"s_add_u32 {sOUT}, {sOUT}, {sT1}")
    a(f"s_mul_i32 {sOUT}, {sOUT}, 5120")
    a(f"s_add_u32 {sOUT}, {sOUT}, {PQ}")
    a(f"s_lshl_b32 {sFLAG}, {sT3}, 7")
    a(f"s_add_u32 {sFLAG}, {sFLAG}, {FH + 4}")
    a(f"s_mov_b32 {sCNT}, 4")
    a(f"s_cmp_eq_u32 {sGD}, 0"); a(f"s_cbranch_scc1 R_SMX")
    for g in range(4): a(f"v_mov_b32 {GWF[g]}, {GA[g]}")
    for g in range(4): a(f"v_permlane32_swap_b32 {GWF[g]}, {GA[g]}")
    for g in range(4): a(f"v_add_f32 {GA[g]}, {GA[g]}, {GWF[g]}")
    for g in range(4): a(f"v_mov_b32 {GWF[g]}, {GA[g]}")
    for g in range(4): a(f"v_permlane16_swap_b32 {GWF[g]}, {GA[g]}")
    for g in range(4): a(f"v_add_f32 {GA[g]}, {GA[g]}, {GWF[g]}")
    for g in range(4): a(f"v_mul_f32 {GA[g]}, {NLOG2E:#x}, {GA[g]}")
    for g in range(4): a(f"v_exp_f32 {GA[g]}, {GA[g]}")
    for g in range(4): a(f"v_add_f32 {GA[g]}, 1.0, {GA[g]}")
    for g in range(4): a(f"v_rcp_f32 {GA[g]}, {GA[g]}")
    a(f"s_lshl_b32 {sT2}, {sT3}, 8")
    a(f"s_add_u32 {sT2}, {sT2}, {GOFF}")
    a("s_mov_b64 exec, 0xffff")
    a(f"buffer_store_dwordx4 {GA}, {vo}, {rWS}, {sT2} offen {ST}")
    a("s_mov_b64 exec, -1")
    a("s_branch R_SMX")
    a.label('R_KV')
    a(f"s_lshl_b32 {sT1}, {sRG}, 1"); a(f"s_add_u32 {sT0}, {sT1}, 1"); a(f"s_mul_i32 {sT0}, {sT0}, {32*PS}")
    a(f"v_add_u32 {t0}, {sT0}, {vo}")
    a(f"s_mov_b32 {sCNT}, 2")
    a(f"s_cmp_eq_u32 {sHI}, 1")
    a("s_cbranch_scc1 R_V")
    cvt_tile(QB[0:10], 0)
    cvt_tile(QB[20:30], 2); cvt_tile(QB[30:40], 3)
    for i in range(5): a(f"ds_write_b128 {t0}, {QB[20+4*i:24+4*i]} offset:{i*1024}")
    cvt_tile(QB[10:20], 1)
    a("s_waitcnt lgkmcnt(0)")
    a("s_barrier")
    for l in pk_list(QB[0:10]): a(l)
    a("s_branch R_KV2")
    a.label('R_V')
    VBt = {3: V(88, 10), 0: V(98, 10), 1: V(168, 10), 2: V(178, 10)}
    for tt in (3, 0, 1, 2): cvt_tile(VBt[tt], tt)
    a(f"s_mul_i32 {sT2}, {sRG}, {64*176}")
    a(f"s_add_u32 {sT2}, {sT2}, {VVB}")
    a(f"v_mul_u32_u24 {t2}, 176, {vl15}")
    a(f"v_add_u32 {t1}, {sT2}, {t2}")
    a(f"v_mul_u32_u24 {t3}, 40, {vqd}")
    a(f"v_add_u32 {t2}, {t1}, {t3}")
    a(f"v_mov_b32 {ONE[0]}, 0x3f80")
    a(f"v_mov_b32 {ONE[1]}, 0")
    a("s_barrier")
    for i in range(5): a(f"ds_read_b128 {QB[4*i:4*i+4]}, {t0} offset:{i*1024}")
    side = []
    for tt in (3, 0, 1, 2):
        for i in range(5): side.append(f"ds_write_b64 {t2}, {VBt[tt][2*i:2*i+2]} offset:{tt*2816 + 8*i}")
        side.append(f"ds_write_b64 {t1}, {ONE} offset:{tt*2816 + 160}")
    for i in range(9): a(side.pop(0))
    a("s_waitcnt lgkmcnt(9)")
    for l in pk_list(QB[0:10]): a(l); a(side.pop(0))
    a.label('R_KV2')
    a(f"s_add_u32 {sT1}, {sT1}, {sHI}"); a(f"s_mul_i32 {sT1}, {sT1}, {32*PS}")
    a(f"v_mul_u32_u24 {t4}, {PS}, {vl15}")
    a(f"v_mul_u32_u24 {t3}, 80, {vqd}")
    a(f"v_add3_u32 {t4}, {t4}, {t3}, {sT1}")
    stamp(a, 12)
    a.label('R_SMX')
    for l in b_reg(vm, 0, 'B') + b_reg(vm, 1, 'B'): a(l)
    a.label('R_SML')
    softmax_unit(a, P, E, M, T, O, pk_list(QB[10:20]) + ["s_waitcnt lgkmcnt(0)"] + [f"v_mov_b64 {QB[10+2*i:12+2*i]}, {QB[20+2*i:22+2*i]}" for i in range(10)])
    a(f"s_cmp_eq_u32 {sISQ}, 0")
    a("s_cbranch_scc1 R_SMK")
    for s_ in range(5):
        if s_ < 4: a(f"buffer_store_dwordx4 {O[4*s_:4*s_+4]}, {vo}, {rWS}, {sOUT} offen offset:{s_*1024} {ST}")
        else: a(f"buffer_store_dwordx4 {O[4*s_:4*s_+4]}, {vo4}, {rWS}, {sOUT} offen {ST}")
    a(f"s_add_u32 {sOUT}, {sOUT}, {8*5120}")
    a(f"s_sub_u32 {sCNT}, {sCNT}, 1")
    a(f"s_cmp_lg_u32 {sCNT}, 0")
    a("s_cbranch_scc1 R_SML")
    flag_store(7)
    a("s_branch P2_B23")
    a.label('R_SMK')
    for s_ in range(5): a(f"ds_write_b128 {t4}, {O[4*s_:4*s_+4]} offset:{PHB + 16*s_}")
    a(f"v_add_u32 {t4}, {16*PS}, {t4}")
    a(f"s_sub_u32 {sCNT}, {sCNT}, 1")
    a(f"s_cmp_lg_u32 {sCNT}, 0")
    a("s_cbranch_scc1 R_SML")
    a(f"v_lshl_add_u32 {t0}, {vqd}, 2, {vr}")
    a(f"v_mul_u32_u24 {t1}, {PS}, {t0}")
    a(f"s_mul_i32 {sT0}, {sRG}, 80")
    a(f"v_lshl_add_u32 {t1}, {vc}, 3, {t1}")
    a(f"v_add_u32 {t1}, {sT0}, {t1}")
    a(f"v_add_u32 {t2}, {128*PS}, {t1}")
    a(f"v_mul_u32_u24 {t0}, 176, {t0}")
    a(f"s_mul_i32 {sT0}, {sRG}, 40")
    a(f"s_lshl_b32 {sT1}, {sHI}, 5")
    a(f"s_add_u32 {sT0}, {sT0}, {sT1}")
    a(f"v_lshl_add_u32 {t3}, {vc}, 3, {sT0}")
    a(f"v_mul_u32_u24 {t4}, {sHI}, {vc}")
    a(f"v_cmp_ne_u32 vcc, 0, {t4}")
    a(f"v_mov_b32 {t4}, 160")
    a(f"v_cndmask_b32 {t3}, {t3}, {t4}, vcc")
    a(f"v_add_u32 {t3}, {VVB}, {t3}")
    a(f"v_add_u32 {t3}, {t0}, {t3}")
    stamp(a, 13)
    a("s_waitcnt lgkmcnt(0)")
    a("s_barrier")
    stamp(a, 14)
    KA = [[V(72 + (b*4 + f)*4, 4) for f in range(4)] for b in range(3)]
    KD = [V(128 + 4*f, 4) for f in range(3)]
    def kv_reads(b, s):
        l = []
        for rd in range(2):
            l.append(f"ds_read_b64_tr_b16 {KA[b][3][2*rd:2*rd+2]}, {t3} offset:{s*5632 + rd*2816}")
        for f in range(3):
            for rd in range(2):
                l.append(f"ds_read_b64_tr_b16 {KA[b][f][2*rd:2*rd+2]}, {t1 if s < 4 else t2} offset:{(s % 4)*32*PS + rd*16*PS + f*32}")
        return l
    allr = [l for s in range(8) for l in kv_reads(s % 3, s)]
    pos = 0
    for s in range(8):
        for f in range(3):
            needr = s * 8 + 2 + 2 * (f + 1)
            lim = min(len(allr), needr + 12, (s + 2) * 8 + (2 + 2 * f if False else 0) + 8 - 8 + 0) if False else min(len(allr), needr + 12)
            lim = min(lim, (s + 3) * 8)
            while pos < lim: a(allr[pos]); pos += 1
            a(f"s_waitcnt lgkmcnt({pos - needr})")
            a(f"v_mfma_f32_16x16x32_bf16 {KD[f]}, {KA[s%3][f]}, {KA[s%3][3]}, {'0' if s == 0 else KD[f]}")
    stamp(a, 15)
    a(f"s_add_u32 {sT0}, {sHB}, {sRG}")
    a(f"s_lshl_b32 {sT0}, {sT0}, 1")
    a(f"s_add_u32 {sT0}, {sT0}, {sHI}")
    a(f"s_mul_i32 {sT0}, {sT0}, 3072")
    a(f"s_add_u32 {sT0}, {sT0}, {KVACC}")
    a(f"s_lshl_b32 {sFLAG}, {sID}, 7")
    a(f"s_add_u32 {sFLAG}, {sFLAG}, {FK}")
    a(f"v_lshlrev_b32 {t2}, 2, {lane}")
    for f in range(3):
        if f == 2: a("s_mov_b32 exec_hi, 0")
        for j in range(4):
            a(f"buffer_atomic_add_f32 {KD[f][j]}, {t2}, {rWS}, {sT0} offen offset:{f*1024 + j*256} {OPT['atf']}")
    a("s_mov_b32 exec_hi, -1")
    stamp(a, 3)
    a("s_waitcnt vmcnt(0)")
    a("s_barrier")
    a(f"s_cmp_lg_u32 {sWV}, 7")
    a("s_cbranch_scc1 R_KV3")
    arrive(a, sFLAG, 7, t0, t1)
    a.label('R_KV3')
    a("s_setprio 0")
    stamp(a, 4)
    a("s_branch P2_B23")

    a.label('R_SPARE')
    sSP, sU, sSO, sST = S(77), S(78), S(79), S(80)
    va = Alloc('v', 11, 250)
    vf = [va() for _ in range(5)]; vat = [va() for _ in range(5)]
    rf = [va() for _ in range(5)]; rat = [va(), va()]
    vst = va(); vst4 = va()
    FR = [[va(4) for _ in range(5)] for b in range(2)]
    Z4 = va(4)
    NT = OPT['spnt']
    srd(a, rA, pWD, 1728 * 1280)
    srd(a, rB, pWO, 640 * 1280)
    a(f"s_lshr_b32 {sSP}, {sT0}, 1")
    a(f"s_lshl_b32 {sSP}, {sSP}, 3")
    a(f"s_add_u32 {sSP}, {sSP}, {sRB}")
    a(f"s_lshl_b32 {sT0}, {sWV}, 2")
    a(f"s_mul_i32 {sT1}, {sWV}, 20")
    for n in range(5):
        a(f"v_add_u32 {t0}, {64*n}, {lane}")
        a(f"v_mul_u32_u24 {t1}, 205, {t0}")
        a(f"v_lshrrev_b32 {t1}, 14, {t1}")
        a(f"v_mul_u32_u24 {t2}, 80, {t1}")
        a(f"v_sub_u32 {t2}, {t0}, {t2}")
        a(f"v_add_u32 {t1}, {sT0}, {t1}")
        a(f"v_and_b32 {t3}, 7, {t1}")
        a(f"v_lshlrev_b32 {t3}, 1, {t3}")
        a(f"v_xor_b32 {t2}, {t2}, {t3}")
        a(f"v_mul_u32_u24 {t1}, 1280, {t1}")
        a(f"v_lshl_add_u32 {vf[n]}, {t2}, 4, {t1}")
        if n % 4: a(f"v_subrev_u32 {vf[n]}, {1024*(n%4)}, {vf[n]}")
    a(f"s_mul_i32 {sM}, {sWV}, 5120")
    def u_dma(buf, typ):
        if typ == 'F':
            a(f"s_mul_i32 {sSO}, {sU}, 40960")
            vv, rr = vf, rA
        else:
            a(f"s_sub_u32 {sT2}, {sU}, 54")
            a(f"s_mul_i32 {sT3}, {sT2}, 52")
            a(f"s_lshr_b32 {sT3}, {sT3}, 8")
            a(f"s_mul_i32 {sSO}, {sT3}, {160*1280 - 5*256}")
            a(f"s_lshl_b32 {sT2}, {sT2}, 8")
            a(f"s_add_u32 {sSO}, {sSO}, {sT2}")
            vv, rr = vat, rB
        a(f"s_add_u32 m0, {sM}, {buf*40960}")
        for n in range(4):
            a(f"buffer_load_dwordx4 {vv[n]}, {rr}, {sSO} offen offset:{n*1024} {NT} lds")
        a(f"s_add_u32 m0, {sM}, {buf*40960 + 4096}")
        a(f"buffer_load_dwordx4 {vv[4]}, {rr}, {sSO} offen {NT} lds")
    def dyn(it, fn):
        if it == 4:
            a(f"s_add_u32 {sU}, {sSP}, 64"); a(f"s_min_u32 {sU}, {sU}, 73"); fn('A'); return
        a(f"s_add_u32 {sU}, {sSP}, {16*it}")
        if it <= 2: fn('F')
        else:
            l1, l2 = a.newlabel('SP'), a.newlabel('SP')
            a(f"s_cmp_ge_u32 {sU}, 54"); a(f"s_cbranch_scc1 {l1}")
            fn('F'); a(f"s_branch {l2}"); a.label(l1); fn('A'); a.label(l2)
    for it in range(3): dyn(it, lambda typ: u_dma(it, typ))
    a(f"v_lshlrev_b32 {t0}, 4, {tid}")
    for i in range(4): a(f"v_mov_b32 {Z4[i]}, 0")
    a(f"s_mul_i32 {sT2}, {sSP}, 13312")
    a(f"s_add_u32 {sT2}, {sT2}, {KVACC}")
    a(f"buffer_store_dwordx4 {Z4}, {t0}, {rWS}, {sT2} offen {ST}")
    a(f"s_add_u32 {sT2}, {sT2}, {13312 - 8192}")
    a(f"buffer_store_dwordx4 {Z4}, {t0}, {rWS}, {sT2} offen {ST}")
    for n in range(5):
        a(f"v_add_u32 {t1}, {4*n}, {vqd}")
        a(f"v_add_u32 {t1}, {sT1}, {t1}")
        a(f"v_and_b32 {t3}, 7, {t1}")
        a(f"v_lshlrev_b32 {t3}, 1, {t3}")
        a(f"v_xor_b32 {t2}, {vl15}, {t3}")
        a(f"v_mul_u32_u24 {t1}, 1280, {t1}")
        a(f"v_lshl_add_u32 {vat[n]}, {t2}, 4, {t1}")
        if n % 4: a(f"v_subrev_u32 {vat[n]}, {1024*(n%4)}, {vat[n]}")
    a(f"v_lshl_add_u32 {t0}, {vqd}, 2, {vr}")
    a(f"v_and_b32 {t1}, 7, {t0}")
    a(f"v_lshlrev_b32 {t1}, 1, {t1}")
    a(f"v_mul_u32_u24 {t0}, 1280, {t0}")
    a(f"v_and_b32 {t2}, 1, {vc}")
    a(f"v_lshl_add_u32 {t0}, {t2}, 3, {t0}")
    a(f"v_lshrrev_b32 {t3}, 1, {vc}")
    a(f"s_mul_i32 {sT0}, {sWV}, 10")
    a(f"v_add_u32 {t4}, {sT0}, {t3}")
    for j in range(5):
        a(f"v_add_u32 {rf[j]}, {2*j}, {t4}")
        a(f"v_xor_b32 {rf[j]}, {rf[j]}, {t1}")
        a(f"v_lshl_add_u32 {rf[j]}, {rf[j]}, 4, {t0}")
    a(f"v_mul_u32_u24 {t0}, 20, {vqd}")
    a(f"v_add_u32 {t0}, {t0}, {vr}")
    a(f"v_lshlrev_b32 {t0}, 8, {t0}")
    a(f"v_lshl_add_u32 {t0}, {t2}, 3, {t0}")
    a(f"s_lshl_b32 {sT0}, {sWV}, 1")
    a(f"v_add_u32 {t4}, {sT0}, {t3}")
    a(f"v_xor_b32 {t4}, {t4}, {t1}")
    a(f"v_lshl_add_u32 {rat[0]}, {t4}, 4, {t0}")
    a(f"v_xor_b32 {rat[1]}, 128, {rat[0]}")
    a(f"v_lshlrev_b32 {vst}, 4, {lane}")
    a(f"v_add_u32 {vst4}, 4096, {vst}")
    def u_proc(buf, typ, F):
        if typ == 'F':
            for j in range(5):
                a(f"v_add_u32 {t0}, {buf*40960}, {rf[j]}")
                for rd in range(2):
                    a(f"ds_read_b64_tr_b16 {F[j][2*rd:2*rd+2]}, {t0} offset:{rd*20480}")
            a(f"s_mul_i32 {sST}, {sWV}, 74")
            a(f"s_add_u32 {sST}, {sST}, {sU}")
            a(f"s_mul_i32 {sST}, {sST}, 5120")
            a(f"s_add_u32 {sST}, {sST}, {BP}")
            a("s_waitcnt lgkmcnt(0)")
            for j in range(5):
                if j < 4: a(f"buffer_store_dwordx4 {F[j]}, {vst}, {rWS}, {sST} offen offset:{j*1024} {ST}")
                else: a(f"buffer_store_dwordx4 {F[j]}, {vst4}, {rWS}, {sST} offen {ST}")
        else:
            bases = [(0, 4), (8, 12), (16, 96), (80, 84), (88, 92)]
            a(f"v_add_u32 {t0}, {buf*40960}, {rat[0]}")
            a(f"v_add_u32 {t1}, {buf*40960}, {rat[1]}")
            for s5 in range(5):
                for rd in range(2):
                    b = bases[s5][rd]
                    a(f"ds_read_b64_tr_b16 {F[s5][2*rd:2*rd+2]}, {t1 if b % 8 else t0} offset:{b*256}")
            a(f"s_sub_u32 {sT2}, {sU}, 54")
            a(f"s_mul_i32 {sT3}, {sT2}, 52")
            a(f"s_lshr_b32 {sT3}, {sT3}, 8")
            a(f"s_mul_i32 {sT0}, {sT3}, 5")
            a(f"s_sub_u32 {sT2}, {sT2}, {sT0}")
            a(f"s_lshl_b32 {sT2}, {sT2}, 3")
            a(f"s_add_u32 {sT2}, {sT2}, {sWV}")
            a(f"s_mul_i32 {sT1}, {sT2}, 52")
            a(f"s_lshr_b32 {sT1}, {sT1}, 8")
            a(f"s_mul_i32 {sST}, {sT1}, 5")
            a(f"s_sub_u32 {sT2}, {sT2}, {sST}")
            a(f"s_mul_i32 {sST}, {sT1}, 74")
            a(f"s_add_u32 {sST}, {sST}, {sT0}")
            a(f"s_add_u32 {sST}, {sST}, 54")
            a(f"s_mul_i32 {sST}, {sST}, 5120")
            a(f"s_lshl_b32 {sT2}, {sT2}, 10")
            a(f"s_add_u32 {sST}, {sST}, {sT2}")
            a(f"s_add_u32 {sST}, {sST}, {BP}")
            a("s_waitcnt lgkmcnt(0)")
            for s5 in range(5):
                a(f"buffer_store_dwordx4 {F[s5]}, {vst}, {rWS}, {sST} offen {ST}")
                if s5 < 4: a(f"s_add_u32 {sST}, {sST}, 5120")
    vm = VmTrack()
    for t in ['D0']*5 + ['D1']*5 + ['D2']*5 + ['Z']*2: vm.issue(t)
    for it in range(5):
        n = vm.wait_for(lambda t: t == f'D{it}')
        a(f"s_waitcnt vmcnt({n})")
        a("s_barrier")
        if it in (1, 2):
            dyn(it + 2, lambda typ: u_dma(it - 1, typ))
            for _ in range(5): vm.issue(f'D{it+2}')
        dyn(it, lambda typ: u_proc(it % 3, typ, FR[it & 1]))
        for _ in range(5): vm.issue('S')
    a("s_waitcnt vmcnt(0)")
    a("s_barrier")
    lsk = a.newlabel('SPD')
    a(f"s_cmp_lg_u32 {sWV}, 0"); a(f"s_cbranch_scc1 {lsk}")
    a(f"v_mov_b32 {t0}, 0"); a(f"v_mov_b32 {t1}, 1")
    a("s_mov_b64 exec, 1")
    a(f"buffer_atomic_add {t1}, {t0}, {rDBG}, 0 offen sc1")
    a("s_mov_b64 exec, -1")
    a.label(lsk)
    stamp(a, 2)
    init_poll(a, t1)

    vm = VmTrack()
    sLATE = S(8)
    a.label('P2_ALL')
    for l in p2_setup(): a(l)
    for b in range(2):
        for l in b_reg(vm, b, 'B'): a(l)
    a.label('P2_B23')
    a(f"s_mov_b32 {sLATE}, 1")
    a(f"s_cmp_eq_u32 {sHI}, 0")
    a("s_cbranch_scc1 P2_GO2")
    def late_b():
        for b in range(2, 4):
            for l in b_reg(vm, b, 'B'): a(l)
        for l in b_switch(): a(l)
        for k in range(3):
            for l in b_lds(vm, k): a(l)
    late_b()
    a.label('P2_GO')
    a(f"s_mov_b32 {sLATE}, 0")
    a.label('P2_GO2')
    vG = V(16, 4); vf4 = V(11); ka = V(12); kw = V(13); vmk = V(14); vbl = V(15); G2 = V(24, 8)
    ACC = [[V(72 + (tt * 5 + j) * 4, 4) for j in range(5)] for tt in range(4)]
    ARl = [V(152 + 4 * i, 4) for i in range(14)] + [V(248, 4), V(24, 4)]
    AR = [ARl[4*b:4*b+4] for b in range(4)]
    sAc, sFHo = S(77), S(78)
    rOUT = rX
    a(f"v_mov_b32 {vf4}, 0")
    a(f"s_mul_i32 {sT0}, {sWV}, 15360")
    a(f"v_add_u32 {vbl}, {sT0}, {vo}")
    srd(a, rA, pWS, WSZ)
    srd(a, rOUT, pOUT, 2048 * 1280)
    def seg_init(cnt, first, mul, sh):
        a(f"s_mul_i32 {cnt}, {sCG}, {mul if OPT['rot2'] else 0}"); a(f"s_lshr_b32 {cnt}, {cnt}, {sh}")
        a(f"s_lshl_b32 {cnt}, {cnt}, 2"); a(f"s_add_u32 {cnt}, {cnt}, {sRG}"); a(f"s_add_u32 {cnt}, {cnt}, {first}")
    def adv(cnt, first, n):
        return [f"s_add_u32 {cnt}, {cnt}, 4", f"s_sub_u32 {sT3}, {cnt}, {4*n}", f"s_cmp_ge_u32 {cnt}, {first + 4*n}", f"s_cselect_b32 {cnt}, {sT3}, {cnt}"]
    def a_loads(b, tag, chk):
        l = [f"s_lshl_b32 {sT0}, {sAc}, 12", f"s_add_u32 {sT0}, {sT0}, {sAB}"]
        r = rWS
        if chk: l += [f"s_cmp_lt_u32 {sAc}, 54", f"s_cselect_b32 {rA[2]}, {WSZ}, 0"]; r = rA
        for tt in range(4):
            l.append(f"buffer_load_dwordx4 {AR[b][tt]}, {vo}, {r}, {sT0} offen offset:{tt*1024} {LD}"); vm.issue(tag)
        return l
    def b_fromlds(k):
        return [f"ds_read_b128 {BR[k][j]}, {vbl} offset:{k*5120 + j*1024}" for j in range(5)]
    def mm(b, first):
        for j in range(5):
            for tt in range(4):
                d = ACC[tt][j]
                a(f"v_mfma_f32_16x16x32_bf16 {d}, {BR[b][j]}, {AR[b][tt]}, {'0' if first else d}")
    def scale():
        GG = [V(2, 2), V(4, 2), V(28, 2), V(30, 2)]
        for tt in range(4): a(f"v_sub_f32 {GG[tt][0]}, 1.0, {vG[tt]}")
        for tt in range(4):
            for j in range(5):
                for h in range(2):
                    a(f"v_pk_mul_f32 {ACC[tt][j][2*h:2*h+2]}, {ACC[tt][j][2*h:2*h+2]}, {GG[tt]} op_sel_hi:[1,0]")
    def g_load():
        a(f"s_lshl_b32 {sT0}, {sR6}, 8"); a(f"s_add_u32 {sT0}, {sT0}, {GOFF}")
        a(f"v_lshlrev_b32 {t0}, 4, {vl15}")
        a(f"buffer_load_dwordx4 {vG}, {t0}, {rWS}, {sT0} offen {LD}")
    a(f"s_lshl_b32 {sFHo}, {sR6}, 7"); a(f"s_add_u32 {sFHo}, {sFHo}, {FH + GOD}")
    a(f"s_cmp_eq_u32 {sHI}, 0")
    a("s_cbranch_scc1 P2_C")
    seg_init(sAc, 0, 5, 2)
    vpoll(a, vf4, sFHo, 4, t1)
    vpoll(a, vf4, sFHo, 0, t1)
    vm = VmTrack()
    stamp(a, 5)
    for s in range(4):
        for l in a_loads(s, ('A', s), False) + adv(sAc, 0, 10): a(l)
    g_load(); vm.issue('g')
    for s in range(10):
        n = vm.wait_for(lambda t: t in (('A', s), ('B', s)))
        a(f"s_waitcnt vmcnt({n})" + (" lgkmcnt(0)" if s == 4 else ""))
        if s == 0: stamp(a, 6)
        mm(s % 4, s == 0)
        if s + 4 < 10:
            for l in a_loads(s % 4, ('A', s + 4), False) + adv(sAc, 0, 10): a(l)
            for l in (b_fromlds(s) if s < 3 else b_reg(vm, s % 4, ('B', s + 4))): a(l)
    scale()
    a("s_branch P2_RED")
    a.label('P2_C')
    seg_init(sAc, 40, 1, 1)
    P = V(72, 20); E = V(92, 40); M = V(132, 4); T = V(136, 4)
    vpoll(a, vf4, sFHo, 4, t1)
    a(f"s_lshl_b32 {sT0}, {sR6}, 2"); a(f"s_add_u32 {sT0}, {sT0}, {sRG}")
    a(f"s_lshl_b32 {sT0}, {sT0}, 3"); a(f"s_add_u32 {sT0}, {sT0}, {sCG}")
    a(f"s_mul_i32 {sT0}, {sT0}, 5120"); a(f"s_add_u32 {sT0}, {sT0}, {PQ}")
    for s in range(5):
        if s < 4: a(f"buffer_load_dwordx4 {P[4*s:4*s+4]}, {vo}, {rWS}, {sT0} offen offset:{s*1024} {LD}")
        else: a(f"buffer_load_dwordx4 {P[4*s:4*s+4]}, {vo4}, {rWS}, {sT0} offen {LD}")
    g_load()
    a(f"v_lshl_add_u32 {kw}, {vr}, 2, {vqd}")
    a(f"v_lshlrev_b32 {kw}, 6, {kw}")
    a(f"v_lshl_add_u32 {kw}, {vc}, 3, {kw}")
    a(f"s_mul_i32 {sT0}, {sRG}, 3072"); a(f"s_add_u32 {sT0}, {sT0}, {KVB}")
    a(f"v_add_u32 {kw}, {sT0}, {kw}")
    a(f"v_mul_u32_u24 {t3}, 3072, {vqd}")
    a(f"v_lshl_add_u32 {t3}, {vr}, 6, {t3}")
    a(f"v_add_u32 {t3}, {KVB}, {t3}")
    a(f"v_mov_b32 {ka}, {ZERO}")
    a(f"v_cmp_eq_u32 vcc, {vc}, {vqd}")
    a(f"v_cndmask_b32 {ka}, {ka}, {t3}, vcc")
    stamp(a, 5)
    a(f"s_lshl_b32 {sT2}, {sCG}, 7"); a(f"s_add_u32 {sT2}, {sT2}, {FK + GOD}")
    vpoll(a, vf4, sT2, 0, t1)
    vm = VmTrack()
    stamp(a, 6)
    KL = [V(92 + 4 * i, 4) for i in range(6)]
    a(f"s_lshl_b32 {sT0}, {sCG}, 2"); a(f"s_add_u32 {sT0}, {sT0}, {sRG}")
    a(f"s_mul_i32 {sT0}, {sT0}, 6144"); a(f"s_add_u32 {sT0}, {sT0}, {KVACC}")
    for i in range(6):
        if i < 4: a(f"buffer_load_dwordx4 {KL[i]}, {vo}, {rWS}, {sT0} offen offset:{i*1024} {LD}")
        else: a(f"buffer_load_dwordx4 {KL[i]}, {vo4}, {rWS}, {sT0} offen offset:{(i-4)*1024} {LD}")
    a(f"v_mov_b32 {t3}, {vG[0]}")
    for k in range(1, 4):
        a(f"s_cmp_eq_u32 {sRG}, {k}"); a("s_cselect_b64 vcc, -1, 0"); a(f"v_cndmask_b32 {t3}, {t3}, {vG[k]}, vcc")
    for i in range(6):
        a(f"s_waitcnt vmcnt({5-i})")
        a(f"v_cvt_pk_bf16_f32 {KL[i][0]}, {KL[i][0]}, {KL[i][1]}")
        a(f"v_cvt_pk_bf16_f32 {KL[i][1]}, {KL[i][2]}, {KL[i][3]}")
        a(f"ds_write_b64 {kw}, {KL[i][0:2]} offset:{(i % 3)*1024 + (i // 3)*32}")
    a(f"v_mov_b32 {t0}, {CNT}"); a(f"v_mov_b32 {t1}, 1")
    a("s_waitcnt lgkmcnt(0)")
    a("s_mov_b64 exec, 1")
    a(f"ds_add_u32 {t0}, {t1}")
    a("s_mov_b64 exec, -1")
    L = a.newlabel('CSP')
    a.label(L)
    a(f"ds_read_b32 {t1}, {t0}")
    a("s_waitcnt lgkmcnt(0)")
    a(f"v_readfirstlane_b32 {sT0}, {t1}")
    a(f"s_cmp_lt_u32 {sT0}, 4")
    a(f"s_cbranch_scc1 {L}")
    stamp(a, 16)
    AF = [[V(92 + (b * 5 + s) * 4, 4) for s in range(5)] for b in range(2)]
    D = [V(152 + 4 * t, 4) for t in range(6)]
    O = V(132, 12)
    def rd(b, t):
        for s in range(5):
            for r_ in range(2):
                a(f"ds_read_b64_tr_b16 {AF[b][s][2*r_:2*r_+2]}, {ka} offset:{s*512 + r_*256 + t*8}")
    order = [5, 0, 1, 2, 3, 4]
    rd(0, order[0])
    for i, t in enumerate(order):
        if i < 5:
            rd((i + 1) & 1, order[i + 1]); a("s_waitcnt lgkmcnt(10)")
        else: a("s_waitcnt lgkmcnt(0)")
        for s in range(5):
            a(f"v_mfma_f32_16x16x32_bf16 {D[t]}, {AF[i&1][s]}, {P[4*s:4*s+4]}, {'0' if s == 0 else D[t]}")
    a(f"v_add_f32 {t2}, 0x358637bd, {D[5][0]}")
    a(f"v_rcp_f32 {t2}, {t2}")
    a(f"v_mul_f32 {t2}, {t2}, {t3}")
    for t in range(5):
        for h in range(2): a(f"v_pk_mul_f32 {D[t][2*h:2*h+2]}, {D[t][2*h:2*h+2]}, {V(t2.lo, 2)} op_sel_hi:[1,0]")
        a(f"v_cvt_pk_bf16_f32 {O[2*t]}, {D[t][0]}, {D[t][1]}")
        a(f"v_cvt_pk_bf16_f32 {O[2*t+1]}, {D[t][2]}, {D[t][3]}")
    a(f"s_lshr_b32 {sT1}, {sCG}, 1")
    a(f"s_mul_i32 {sT1}, {sT1}, 5")
    a(f"s_add_u32 {sT0}, {sT1}, 54")
    a(f"s_lshl_b32 {sT0}, {sT0}, 2")
    a(f"s_add_u32 {sT0}, {sT0}, {sRG}")
    a(f"s_lshl_b32 {sT0}, {sT0}, 10")
    a(f"s_add_u32 {sT0}, {sT0}, {sAB}")
    a(f"s_and_b32 {sT1}, {sCG}, 1")
    a(f"s_mul_i32 {sT2}, {sT1}, {3*4096}")
    a(f"s_add_u32 {sT2}, {sT2}, {sT0}")
    a(f"buffer_store_dwordx4 {O[0:4]}, {vo}, {rWS}, {sT2} offen {ST}")
    a(f"buffer_store_dwordx4 {O[4:8]}, {vo4}, {rWS}, {sT2} offen {ST}")
    a(f"s_lshl_b32 {sT1}, {sT1}, 3")
    a(f"s_add_u32 {sT0}, {sT0}, {sT1}")
    a(f"s_add_u32 {sT0}, {sT0}, 8192")
    a(f"buffer_store_dwordx2 {O[8:10]}, {vo}, {rWS}, {sT0} offen {ST}")
    stamp(a, 17)
    a(f"s_sub_u32 {sT2}, {sFHo}, {GOD - 8}")
    a(f"buffer_load_dword {t3}, {vf4}, {rWS}, {sFHo} offen sc1")
    arrive(a, sT2, 31, t0, t1, 1)
    a(f"v_cmp_eq_u32 vcc, 0, {t3}")
    a("s_nop 0")
    a("s_cbranch_vccz P2_HOK")
    vpoll(a, vf4, sFHo, 0, t1)
    a.label('P2_HOK')
    stamp(a, 7)
    a(f"s_cmp_eq_u32 {sLATE}, 0")
    a("s_cbranch_scc1 P2_NL")
    late_b()
    a.label('P2_NL')
    vm = VmTrack()
    for s in range(4):
        for l in a_loads(s, ('A', s), True) + adv(sAc, 40, 4): a(l)
    seg_init(sAc, 54, 5, 3)
    for s in range(4):
        n = vm.wait_for(lambda t: t == ('A', s))
        a(f"s_waitcnt vmcnt({n})")
        mm(s, s == 0)
        for l in (b_fromlds(s) if s < 3 else b_reg(vm, 3, ('B', 7))): a(l)
    scale()
    stamp(a, 8)
    vpoll(a, vf4, sFHo, 8, t4)
    vm = VmTrack()
    stamp(a, 9)
    for s in range(4):
        for l in a_loads(s, ('A', 4 + s), False) + adv(sAc, 54, 5): a(l)
    for s in range(4, 9):
        n = vm.wait_for(lambda t: t in (('A', s), ('B', s)))
        a(f"s_waitcnt vmcnt({n})" + (" lgkmcnt(0)" if s == 4 else ""))
        mm(s % 4, False)
        if s == 4:
            for l in a_loads(0, ('A', 8), False) + b_reg(vm, 0, ('B', 8)): a(l)
    a.label('P2_RED')
    stamp(a, 10)
    a(f"s_mul_i32 {sT0}, {sWV}, 20480")
    a(f"v_add_u32 {t0}, {sT0}, {vo}")
    a("s_barrier")
    for tt in range(4):
        for j in range(5):
            a(f"ds_write_b128 {t0}, {ACC[tt][j]} offset:{(tt*5+j)*1024}")
    a(f"v_lshlrev_b32 {t2}, 9, {vqd}")
    a(f"v_lshl_add_u32 {t2}, {vl15}, 4, {t2}")
    a(f"s_mul_i32 {sT0}, {sRG}, 5120"); a(f"s_lshl_b32 {sT1}, {sHI}, 11"); a(f"s_add_u32 {sT1}, {sT1}, {sT0}")
    a(f"v_add_u32 {t2}, {sT1}, {t2}")
    a(f"v_add_u32 {t3}, {3*20480}, {t2}")
    a(f"v_add_u32 {t4}, {6*20480}, {t2}")
    a(f"v_mul_u32_u24 {t1}, 1280, {vl15}")
    a(f"v_lshl_add_u32 {kw}, {vqd}, 3, {t1}")
    a(f"v_lshl_add_u32 {t1}, {vqd}, 4, {t1}")
    a(f"s_lshl_b32 {sT2}, {sR6}, 2"); a(f"s_add_u32 {sT2}, {sT2}, {sRG}"); a(f"s_mul_i32 {sT2}, {sT2}, {16*1280}")
    a(f"s_mul_i32 {sT1}, {sCG}, 160"); a(f"s_add_u32 {sT2}, {sT2}, {sT1}")
    a(f"s_lshl_b32 {sT1}, {sHI}, 6"); a(f"s_add_u32 {sT1}, {sT1}, {sT2}")
    a(f"s_add_u32 {sT0}, {sT0}, 4096")
    a(f"v_add_u32 {vo4}, {sT0}, {vo}")
    a(f"v_add_u32 {vf4}, {3*20480}, {vo4}")
    a(f"v_add_u32 {ka}, {6*20480}, {vo4}")
    a("s_waitcnt lgkmcnt(0)")
    a("s_barrier")
    RD = [V(152 + 4*i, 4) for i in range(24)]
    for w in range(8):
        base = (t2, t3, t4)[w // 3]
        for h in range(2):
            a(f"ds_read_b128 {RD[2*w+h]}, {base} offset:{(w % 3)*20480 + h*256}")
    for w in range(1, 8):
        a(f"s_waitcnt lgkmcnt({min(15, 14 - 2*w)})")
        for h in range(2):
            for k in range(2):
                a(f"v_pk_add_f32 {RD[h][2*k:2*k+2]}, {RD[h][2*k:2*k+2]}, {RD[2*w+h][2*k:2*k+2]}")
    a(f"s_cmp_eq_u32 {sHI}, 1")
    a("s_cbranch_scc1 P2_S1")
    for w in range(8):
        base = (vo4, vf4, ka)[w // 3]
        a(f"ds_read_b128 {RD[16+w]}, {base} offset:{(w % 3)*20480}")
    a.label('P2_S1')
    for h in range(2):
        for k in range(2):
            a(f"v_cvt_pk_bf16_f32 {RD[2][2*h+k]}, {RD[h][2*k]}, {RD[h][2*k+1]}")
    a(f"buffer_store_dwordx4 {RD[2]}, {t1}, {rOUT}, {sT1} offen {OPT['ost']}")
    a(f"s_cmp_eq_u32 {sHI}, 1")
    a("s_cbranch_scc1 P2_FIN")
    for w in range(1, 8):
        a(f"s_waitcnt lgkmcnt({7 - w})")
        for k in range(2):
            a(f"v_pk_add_f32 {RD[16][2*k:2*k+2]}, {RD[16][2*k:2*k+2]}, {RD[16+w][2*k:2*k+2]}")
    for k in range(2): a(f"v_cvt_pk_bf16_f32 {RD[17][k]}, {RD[16][2*k]}, {RD[16][2*k+1]}")
    a(f"buffer_store_dwordx2 {RD[17][0:2]}, {kw}, {rOUT}, {sT2} offen offset:128 {OPT['ost']}")
    a.label('P2_FIN')
    if OPT['stamp']:
        a("s_waitcnt vmcnt(0)")
        stamp(a, 11)
    stamp_flush(a)
    a.label(END)
    a("s_endpgm")

def build():
    hdr = open(f'cdna_kernels/{NAME}.s.ref').read().split('; Override launch')[0]
    name = NAME + '_kernel'
    out = hdr + "; @launch grid=(256,1,1) block=(512,1,1) lds=163840\n"
    out += '.amdgcn_target "amdgcn-amd-amdhsa--gfx950"\n.text\n'
    a = Asm(); kernel(a)
    out += f".globl {name}\n.p2align 8\n.type {name},@function\n{name}:\n" + a.finalize()
    print('instrs', len(a.ins), 'nops', a.nnop, file=sys.stderr)
    out += f""".section .rodata,"a"
.p2align 6
.amdhsa_kernel {name}
  .amdhsa_next_free_vgpr 256
  .amdhsa_next_free_sgpr 102
  .amdhsa_accum_offset 256
  .amdhsa_group_segment_fixed_size 0
  .amdhsa_kernarg_size 96
  .amdhsa_user_sgpr_count 2
  .amdhsa_user_sgpr_kernarg_segment_ptr 1
  .amdhsa_system_sgpr_workgroup_id_x 1
.end_amdhsa_kernel
"""
    return out

if __name__ == '__main__':
    outp = sys.argv[1]
    for o in sys.argv[2:]:
        k, v = o.split('=', 1); OPT[k] = int(v) if v.isdigit() else v
    open(outp, 'w').write(build())
```

```python
import sys
sys.path.insert(0, 'gen')
from asmlib import *
NAME = 'gated_mix__linear_kernel_hedgehog__swiglu_ffn__prompt'
AP = 0; BP = 0xA00000; PQ = 0xD00000; KVACC = 0x1200000; FH = 0x1230000; FK = 0x1232000; ZEND = 0x1234000
GOFF = 0x1240000; DUMMY = 0x1250000; STAMP = 0x1300000; WSZ = 0x1600000
LOG2E = 0x3fb8aa3b; NLOG2E = 0xbfb8aa3b
OPT = dict(stamp=0, touch=0, bs="{'p0':(0,2),'p1':(2,5),3:(5,8),7:(8,10)}", pp=0, spnt='', rot2=0, slp=1, early=1, btouch=0, atf='sc1', cpf=0, il=4, qbar=0, prio=0, dbgt=0, ost='nt')
ST = 'sc1'; LD = 'sc1'

pX, pQKV, pPHI, pWO, pBX, pWG, pWU, pWD = [S(16 + 2 * i, 2) for i in range(8)]
pGW, pOUT, pDBG, pWS = [S(32 + 2 * i, 2) for i in range(4)]
sWV = S(3)
rX, rW, rWS, rA, rB = S(40, 4), S(44, 4), S(48, 4), S(52, 4), S(56, 4)
sC = S(60, 2)
rDBG = S(84, 4)
sFLAG = S(88); sTO = S(89); sNEED = S(7)
GOD = 0x1000
sP = S(14, 2)
XSLOT = 32768; WB = 98304
GWB = 159744; CNT = 161024; ZERO = 161280; KVB = 147456

def srd(a, d, base, size):
    a(f"s_mov_b32 {d[0]}, {base[0]}")
    a(f"s_and_b32 {d[1]}, {base[1]}, 0xffff")
    a(f"s_mov_b32 {d[2]}, {size}")
    a(f"s_mov_b32 {d[3]}, 0x20000")

def sstamp(a, j):
    if OPT['stamp'] != 3: return
    if j > 0: a(f"v_writelane_b32 v255, s92, {40 + j - 1}")
    a("s_memtime s[92:93]")
def stamp(a, idx):
    if not OPT['stamp']: return
    if OPT['stamp'] >= 2 and idx not in (2, 11): return
    a("s_memrealtime s[90:91]")
    a("s_memtime s[92:93]")
    a("s_waitcnt lgkmcnt(0)")
    a(f"v_writelane_b32 v255, s90, {2*idx}")
    a(f"v_writelane_b32 v255, s92, {2*idx+1}")
def stamp_flush(a):
    if not OPT['stamp']: return
    if OPT['dbgt']:
        a("s_not_b32 s90, s10"); a("v_writelane_b32 v255, s90, 0")
        a("v_lshlrev_b32 v254, 1, v0"); a("v_add_u32 v254, 8, v254")
        a("s_mov_b32 exec_lo, 0x05555555"); a("s_mov_b32 exec_hi, 0")
        a(f"buffer_atomic_umax v255, v254, {rDBG}, 0 offen sc1")
        a("s_mov_b64 exec, -1")
        return
    a("v_writelane_b32 v255, s10, 0"); a("v_writelane_b32 v255, s12, 1")
    a("s_lshl_b32 s90, s2, 3")
    a(f"s_add_u32 s90, s90, {sWV}")
    a("s_lshl_b32 s90, s90, 8")
    a(f"s_add_u32 s90, s90, {STAMP + 0x80000}")
    a("v_lshlrev_b32 v254, 2, v0")
    a(f"buffer_store_dword v255, v254, {rWS}, s90 offen")

def vpoll(a, vzero, soff, off, tmp):
    L, D = a.newlabel('POLL'), a.newlabel('POLLD')
    a(f"s_mov_b32 {sTO}, 0x80000")
    a.label(L)
    a(f"buffer_load_dword {tmp}, {vzero}, {rWS}, {soff} offen offset:{off} sc1")
    a("s_waitcnt vmcnt(0)")
    a(f"v_cmp_eq_u32 vcc, 0, {tmp}")
    a("s_nop 0")
    a(f"s_cbranch_vccz {D}")
    a(f"s_sleep {OPT['slp']}")
    a(f"s_sub_u32 {sTO}, {sTO}, 1")
    a(f"s_cbranch_scc0 {L}")
    a.label(D)
def arrive(a, soff, need, z, one, nyounger=0):
    D = a.newlabel('ARR')
    a(f"v_mov_b32 {z}, 0"); a(f"v_mov_b32 {one}, 1")
    a(f"s_waitcnt vmcnt({nyounger})")
    a("s_mov_b64 exec, 1")
    a(f"buffer_atomic_add {one}, {z}, {rWS}, {soff} offen sc0 sc1")
    a("s_waitcnt vmcnt(0)")
    a(f"v_readfirstlane_b32 {sP[0]}, {one}")
    a(f"s_add_u32 {sP[1]}, {soff}, {GOD}")
    a(f"s_cmp_lg_u32 {sP[0]}, {need}")
    a(f"s_cbranch_scc1 {D}")
    a(f"buffer_store_dword {one}, {z}, {rWS}, {sP[1]} offen sc1")
    a.label(D)
    a("s_mov_b64 exec, -1")
def init_poll(a, reg):
    L, D = a.newlabel('POLL'), a.newlabel('POLLD')
    a(f"s_mov_b32 {sTO}, 0x80000")
    a.label(L)
    a(f"v_mov_b32 {reg}, 0")
    a(f"buffer_load_dword {reg}, {reg}, {rDBG}, 0 offen sc1")
    a("s_waitcnt vmcnt(0)")
    a(f"v_readfirstlane_b32 {sP[0]}, {reg}")
    a(f"s_cmp_ge_u32 {sP[0]}, 16")
    a(f"s_cbranch_scc1 {D}")
    a("s_sleep 4")
    a(f"s_sub_u32 {sTO}, {sTO}, 1")
    a(f"s_cbranch_scc0 {L}")
    a.label(D)

def softmax_unit(a, P, E, M, T, O, side=None):
    side = list(side or [])
    a(f"v_max3_f32 {M[0]}, {P[0]}, {P[1]}, {P[2]}")
    a(f"v_min3_f32 {M[2]}, {P[0]}, {P[1]}, {P[2]}")
    for i in range(3, 19, 2):
        a(f"v_max3_f32 {M[0]}, {M[0]}, {P[i]}, {P[i+1]}")
        a(f"v_min3_f32 {M[2]}, {M[2]}, {P[i]}, {P[i+1]}")
    a(f"v_max_f32 {M[0]}, {M[0]}, {P[19]}")
    a(f"v_min_f32 {M[2]}, {M[2]}, {P[19]}")
    a(f"v_mul_f32 {M[0]}, {sC[0]}, {M[0]}")
    a(f"v_mul_f32 {M[2]}, {sC[0]}, {M[2]}")
    for i in range(0, 20, 2):
        a(f"v_pk_fma_f32 {E[i:i+2]}, {P[i:i+2]}, {sC}, {M[0:2]} op_sel_hi:[1,1,0] neg_lo:[0,0,1] neg_hi:[0,0,1]")
        a(f"v_pk_fma_f32 {E[20+i:22+i]}, {P[i:i+2]}, {sC}, {M[2:4]} op_sel_hi:[1,1,0] neg_lo:[1,0,0] neg_hi:[1,0,0]")
    for i in range(40):
        a(f"v_exp_f32 {E[i]}, {E[i]}")
        if side and i % 2 == 1: a(side.pop(0))
    for l in side: a(l)
    a(f"v_pk_add_f32 {T[0:2]}, {E[0:2]}, {E[2:4]}")
    a(f"v_pk_add_f32 {T[2:4]}, {E[20:22]}, {E[22:24]}")
    for i in range(4, 20, 2):
        a(f"v_pk_add_f32 {T[0:2]}, {T[0:2]}, {E[i:i+2]}")
        a(f"v_pk_add_f32 {T[2:4]}, {T[2:4]}, {E[20+i:22+i]}")
    a(f"v_add_f32 {T[0]}, {T[0]}, {T[1]}")
    a(f"v_add_f32 {T[2]}, {T[2]}, {T[3]}")
    a(f"v_rcp_f32 {T[0]}, {T[0]}")
    a(f"v_rcp_f32 {T[2]}, {T[2]}")
    for i in range(0, 20, 2):
        a(f"v_pk_mul_f32 {E[i:i+2]}, {E[i:i+2]}, {T[0:2]} op_sel_hi:[1,0]")
        a(f"v_pk_mul_f32 {E[20+i:22+i]}, {E[20+i:22+i]}, {T[2:4]} op_sel_hi:[1,0]")
    for i in range(20):
        a(f"v_cvt_pk_bf16_f32 {O[i]}, {E[2*i]}, {E[2*i+1]}")

def kernel(a):
    END = 'K_END'
    BS = eval(OPT['bs'])
    a("s_cmp_ge_u32 s2, 256")
    a(f"s_cbranch_scc1 {END}")
    if OPT['stamp']:
        a("s_memrealtime s[10:11]"); a("s_memtime s[12:13]"); a("v_mov_b32 v255, 0")
    a("s_load_dwordx16 s[16:31], s[0:1], 0")
    a("s_load_dwordx8 s[32:39], s[0:1], 64")
    lane = V(0)
    tid, t0, t1, t2, t3, t4 = V(1), V(2), V(3), V(4), V(5), V(6)
    vqd, vr, vc, vl15 = V(7), V(8), V(9), V(10)
    vx = [V(11 + i) for i in range(4)]
    xa = [[V(15), V(16)], [V(17), V(18)]]
    tdum = V(19); ta = V(20, 2); tb = V(22, 2)
    R0 = 24
    sTY, sRB, sXK, sWK, sM, sT0, sT1, sT2, sT3, sRG, sHI, sID, sMW, sC8, sR4 = [S(62 + i) for i in range(15)]
    a(f"v_lshrrev_b32 {t0}, 6, v0")
    a(f"v_mov_b32 {tid}, v0")
    a(f"v_readfirstlane_b32 {sWV}, {t0}")
    a(f"v_and_b32 {lane}, 63, v0")
    a(f"s_bfe_u32 {sC8}, s2, 0x30003")
    a(f"s_lshr_b32 {sR4}, s2, 6")
    a(f"s_and_b32 {sRB}, s2, 1")
    a(f"s_lshl_b32 {sRB}, {sRB}, 2")
    a(f"s_add_u32 {sRB}, {sRB}, {sR4}")
    a(f"s_bfe_u32 {sT0}, s2, 0x20001")
    a(f"s_and_b32 {sRG}, {sWV}, 3")
    a(f"s_lshr_b32 {sHI}, {sWV}, 2")
    a(f"v_lshrrev_b32 {vqd}, 4, {lane}")
    a(f"v_bfe_u32 {vr}, {lane}, 2, 2")
    a(f"v_and_b32 {vc}, 3, {lane}")
    a(f"v_and_b32 {vl15}, 15, {lane}")
    a(f"v_lshrrev_b32 {t0}, 3, {lane}")
    a(f"v_mul_u32_u24 {t0}, 1280, {t0}")
    a(f"v_and_b32 {t1}, 7, {lane}")
    a(f"v_xor_b32 {t1}, {t1}, {vqd}")
    a(f"v_lshl_add_u32 {vx[0]}, {t1}, 4, {t0}")
    a(f"v_xor_b32 {t1}, 4, {t1}")
    a(f"v_lshl_add_u32 {vx[1]}, {t1}, 4, {t0}")
    a(f"v_add_u32 {vx[1]}, {8*1280-1024}, {vx[1]}")
    a(f"v_add_u32 {vx[2]}, {16*1280-2048}, {vx[0]}")
    a(f"v_add_u32 {vx[3]}, {16*1280-2048}, {vx[1]}")
    a(f"s_mul_i32 {sXK}, {sRB}, {256*1280}")
    a(f"s_mul_i32 {sT1}, {sWV}, {32*1280}")
    a(f"s_add_u32 {sXK}, {sXK}, {sT1}")
    a(f"s_lshl_b32 {sM}, {sWV}, 12")
    a(f"v_lshlrev_b32 {t2}, 3, {tid}")
    a(f"v_min_u32 {t2}, {163840 - CNT - 8}, {t2}")
    a(f"v_add_u32 {t2}, {CNT}, {t2}")
    a(f"v_mov_b32 {ta[0]}, 0"); a(f"v_mov_b32 {ta[1]}, 0")
    a(f"ds_write_b64 {t2}, {ta}")
    a(f"s_mul_i32 {sID}, {sT0}, 9"); a(f"s_add_u32 {sID}, {sID}, 1"); a(f"s_lshr_b32 {sID}, {sID}, 1")
    a(f"s_add_u32 {sID}, {sID}, {sC8}"); a(f"s_sub_u32 {sID}, {sID}, 3")
    a(f"s_and_b32 {sT1}, {sT0}, 1"); a(f"s_add_u32 {sT1}, {sT1}, {sC8}")
    a(f"s_mov_b32 {sC[0]}, {LOG2E:#x}")
    a(f"s_mov_b32 {sC[1]}, {LOG2E:#x}")
    a("s_waitcnt lgkmcnt(0)")
    srd(a, rX, pX, 2048 * 1280)
    srd(a, rWS, pWS, WSZ)
    srd(a, rDBG, pDBG, 256)
    if OPT['cpf']:
        a(f"s_cmp_lg_u32 {sWV}, 7"); a("s_cbranch_scc1 NOCPF")
        a("s_getpc_b64 s[4:5]")
        a("s_and_b32 s4, s4, 0xffffff00")
        a("s_lshr_b32 s6, s2, 3"); a(f"s_mul_i32 s6, s6, {OPT['cpf']*128}")
        a(f"v_lshlrev_b32 {t0}, 7, {lane}"); a(f"v_add_u32 {t0}, s6, {t0}")
        a(f"s_mov_b64 exec, {(1 << OPT['cpf']) - 1:#x}")
        a(f"global_load_dword v31, {t0}, s[4:5]")
        a("s_mov_b64 exec, -1")
        a.label("NOCPF")
    if OPT['prio']:
        a(f"s_cmp_eq_u32 {sHI}, 0"); a("s_cbranch_scc1 NOPRIO"); a("s_setprio 1"); a.label("NOPRIO")
    a(f"s_cmp_lt_u32 {sC8}, 3")
    a("s_cbranch_scc1 R_QKV")
    a(f"s_cmp_eq_u32 {sT1}, 8")
    a("s_cbranch_scc1 R_SPARE")

    def x_dma(vm, blk, half):
        l = [f"s_add_u32 m0, {sM}, {(blk % 3) * XSLOT}"]
        if half == 0 and blk > 0: l.append(f"s_add_u32 {sXK}, {sXK}, 128")
        for n in (2 * half, 2 * half + 1):
            l.append(f"buffer_load_dwordx4 {vx[n]}, {rX}, {sXK} offen offset:{n*1024} lds")
            vm.issue(('X', blk))
        return l
    def x_addr_setup():
        a(f"v_lshrrev_b32 {t0}, 1, {vl15}")
        a(f"v_xor_b32 {t0}, {t0}, {vqd}")
        a(f"v_lshlrev_b32 {t0}, 4, {t0}")
        a(f"v_lshl_add_u32 {t0}, {vl15}, 7, {t0}")
        a(f"s_lshl_b32 {sT0}, {sRG}, 13")
        a(f"v_add_u32 {xa[0][0]}, {sT0}, {t0}")
        a(f"v_xor_b32 {xa[0][1]}, 64, {xa[0][0]}")
        a(f"v_add_u32 {xa[1][0]}, 0x10000, {xa[0][0]}")
        a(f"v_add_u32 {xa[1][1]}, 0x10000, {xa[0][1]}")
    def x_reads(XF, step):
        blk, kk = step // 2, step % 2
        sl = blk % 3
        return [f"ds_read_b128 {XF[tt]}, {xa[sl // 2][kk]} offset:{(sl % 2) * XSLOT + tt * 2048}" for tt in range(4)]
    def burst(vm, b0, b1):
        if not OPT['touch']: return []
        l = []
        for st, reg in ((0, ta), (5, tb)):
            lo, hi = max(b0, st) - st, min(b1, st + 5) - st
            if lo >= hi: continue
            m = ((1 << (12 * hi)) - 1) & ~((1 << (12 * lo)) - 1)
            l += [f"s_mov_b32 exec_lo, {m & 0xffffffff:#x}", f"s_mov_b32 exec_hi, {m >> 32:#x}", f"global_load_dword {tdum}, {reg}, off"]
            vm.issue('T')
        l.append("s_mov_b64 exec, -1")
        return l
    def touch_setup(pw0, pw1, rowbytes, off0, off1, seg):
        if not OPT['touch']: return
        l12, bi = tb[0], tb[1]; tinc = tdum
        a(f"v_mul_u32_u24 {bi}, 43, {lane}"); a(f"v_lshrrev_b32 {bi}, 9, {bi}")
        a(f"v_mul_u32_u24 {l12}, 12, {bi}"); a(f"v_sub_u32 {l12}, {lane}, {l12}")
        a(f"s_lshl_b32 {sT2}, {sRB}, 3"); a(f"s_add_u32 {sT2}, {sT2}, {sC8}"); a(f"s_lshl_b32 {sT2}, {sT2}, 3"); a(f"s_add_u32 {sT2}, {sT2}, {sWV}")
        a(f"s_mul_i32 {sT2}, {sT2}, {4*1280}")
        a(f"v_mul_u32_u24 {t0}, 1280, {l12}")
        a(f"v_add_u32 {t0}, {sT2}, {t0}")
        a(f"s_lshl_b32 {sT0}, {sR4}, 3"); a(f"s_add_u32 {sT0}, {sT0}, {sWV}"); a(f"s_mul_i32 {sT0}, {sT0}, {2*rowbytes}")
        a(f"v_subrev_u32 {t1}, 4, {l12}")
        a(f"v_bfe_u32 {t2}, {t1}, 2, 1")
        a(f"v_mul_u32_u24 {t2}, {rowbytes}, {t2}")
        a(f"v_and_b32 {t3}, 1, {t1}")
        a(f"v_mul_u32_u24 {t3}, {seg-4}, {t3}")
        a(f"v_add3_u32 {t2}, {t2}, {t3}, {sT0}")
        a(f"v_and_b32 {t3}, 2, {t1}")
        a(f"v_cmp_eq_u32 vcc, 0, {t3}")
        a(f"v_mov_b32 {t3}, {off1}"); a(f"v_mov_b32 {t4}, {off0}")
        a(f"v_cndmask_b32 {t3}, {t3}, {t4}, vcc")
        a(f"v_add_u32 {t2}, {t2}, {t3}")
        a(f"v_mov_b32 {t3}, {pw1[0]}"); a(f"v_mov_b32 {t4}, {pw0[0]}"); a(f"v_cndmask_b32 {ta[0]}, {t3}, {t4}, vcc")
        a(f"v_mov_b32 {t3}, {pw1[1]}"); a(f"v_mov_b32 {t4}, {pw0[1]}"); a(f"v_cndmask_b32 {ta[1]}, {t3}, {t4}, vcc")
        a(f"v_cmp_gt_u32 vcc, 4, {l12}")
        a(f"v_mov_b32 {t3}, {pX[0]}"); a(f"v_mov_b32 {t4}, {pX[1]}")
        a(f"v_cndmask_b32 {t2}, {t2}, {t0}, vcc")
        a(f"v_cndmask_b32 {ta[0]}, {ta[0]}, {t3}, vcc")
        a(f"v_cndmask_b32 {ta[1]}, {ta[1]}, {t4}, vcc")
        a(f"v_mov_b32 {t3}, {64*rowbytes}"); a(f"v_mov_b32 {t4}, 128"); a(f"v_cndmask_b32 {tinc}, {t3}, {t4}, vcc")
        a(f"v_mad_u32_u24 {t2}, {tinc}, {bi}, {t2}")
        a(f"v_add_co_u32 {ta[0]}, vcc, {ta[0]}, {t2}")
        a(f"v_mul_u32_u24 {t2}, 5, {tinc}")
        a(f"v_addc_co_u32 {ta[1]}, vcc, 0, {ta[1]}, vcc")
        a(f"v_add_co_u32 {tb[0]}, vcc, {ta[0]}, {t2}")
        a(f"v_addc_co_u32 {tb[1]}, vcc, 0, {ta[1]}, vcc")
    def step_body(mains, lblk, pre=[]):
        for l in pre: a(l)
        if not lblk:
            for m in mains: a(m)
            return
        if OPT['pp'] == 2:
            rds = [l for l in lblk if l.startswith('ds_read')]; oth = [l for l in lblk if not l.startswith('ds_read')]
            l1, l2 = a.newlabel('PP'), a.newlabel('PP')
            if oth:
                a(f"s_cmp_eq_u32 {sHI}, 0"); a(f"s_cbranch_scc1 {l1}")
                for l in oth: a(l)
                a.label(l1)
            k = 0
            for i, m in enumerate(mains):
                a(m)
                while k < len(rds) and k < (i + 1) * max(1, -(-len(rds) // len(mains))):
                    a(rds[k]); k += 1
            if oth:
                a(f"s_cmp_eq_u32 {sHI}, 0"); a(f"s_cbranch_scc0 {l2}")
                for l in oth: a(l)
                a.label(l2)
        elif OPT['pp']:
            l1, l2 = a.newlabel('PP'), a.newlabel('PP')
            a(f"s_cmp_eq_u32 {sHI}, 0"); a(f"s_cbranch_scc1 {l1}")
            for l in lblk: l() if callable(l) else a(l)
            a.label(l1)
            for m in mains: a(m)
            a(f"s_cmp_eq_u32 {sHI}, 0"); a(f"s_cbranch_scc0 {l2}")
            for l in lblk: l() if callable(l) else a(l)
            a.label(l2)
        else:
            rds = [l for l in lblk if l.startswith('ds_read')]; oth = [l for l in lblk if not l.startswith('ds_read')]
            units = []; cur = []
            for l in oth:
                cur.append(l)
                if 'buffer_' in l or 'ds_write' in l: units.append(cur); cur = []
            if cur: units.append(cur)
            n = len(mains); mode = OPT['il']
            pos = {}
            if mode == 0:
                seq = [[r] for r in rds] + units
                for k, u in enumerate(seq): pos.setdefault(min(n - 1, k * n // max(len(seq), n)), []).extend(u)
            elif mode == 1:
                for k, u in enumerate(units): pos.setdefault(min(n - 1, 2 * k), []).extend(u)
                for k, r in enumerate(rds): pos.setdefault(min(n - 1, k * min(n, len(rds)) // len(rds) if len(rds) > n else k), []).append(r)
            elif mode == 2:
                for k, r in enumerate(rds): pos.setdefault(min(n - 1, k // 2), []).append(r)
                for k, u in enumerate(units): pos.setdefault(min(n - 1, len(rds) // 2 + 2 * k), []).extend(u)
            elif mode == 3:
                for k, u in enumerate(units): pos.setdefault(min(n - 1, 1 + k * (2 * n // 3) // max(1, len(units))), []).extend(u)
                for k, r in enumerate(rds): pos.setdefault(min(n - 1, k * min(n, len(rds)) // len(rds) if len(rds) > n else k), []).append(r)
            elif mode == 4:
                k = 0
                for i in range(n):
                    while k < len(lblk) and k < (i + 1) * len(lblk) // n + 1:
                        pos.setdefault(i, []).append(lblk[k]); k += 1
            for i, m in enumerate(mains):
                a(m)
                for l in pos.get(i, []): a(l)
    def init_check_issue(reg):
        return [f"v_mov_b32 {reg}, 0", f"buffer_load_dword {reg}, {reg}, {rDBG}, 0 offen sc1"]
    def init_check(reg):
        ok = a.newlabel('INITOK')
        a(f"v_readfirstlane_b32 {sP[0]}, {reg}")
        a(f"s_cmp_ge_u32 {sP[0]}, 16")
        a(f"s_cbranch_scc1 {ok}")
        init_poll(a, reg)
        a.label(ok)
    sR6, sCG, sAB, sBB, sSB, sSR, sSN, sLim = [S(94 + i) for i in range(8)]
    sLB = S(6)
    vo, vo4 = V(20), V(21)
    BRb = [208, 228, 32, 52]
    BR = [[V(BRb[b] + 4 * j, 4) for j in range(5)] for b in range(4)]
    RSZ = 35840
    def p2_setup():
        r = OPT['rot2']
        return [f"s_and_b32 {sR6}, s2, 7", f"s_lshl_b32 {sR6}, {sR6}, 2", "s_lshr_b32 s4, s2, 6", f"s_add_u32 {sR6}, {sR6}, s4",
             f"s_bfe_u32 {sCG}, s2, 0x30003", f"v_lshlrev_b32 {vo}, 4, {lane}", f"v_add_u32 {vo4}, 4096, {vo}",
             f"s_mul_i32 {sAB}, {sR6}, {74*4096}", f"s_mul_i32 {sBB}, {sCG}, {74*5120}", f"s_add_u32 {sBB}, {sBB}, {BP}",
             f"s_mov_b32 {rB[0]}, {pWS[0]}", f"s_and_b32 {rB[1]}, {pWS[1]}, 0xffff", f"s_mov_b32 {rB[2]}, {WSZ}", f"s_mov_b32 {rB[3]}, 0x20000",
             f"s_mul_i32 s4, {sCG}, {7*r}", "s_lshr_b32 s4, s4, 2",
             f"s_mul_i32 s5, {sCG}, {5*r}", "s_lshr_b32 s5, s5, 3",
             f"s_mul_i32 {sLB}, {sRG}, {RSZ}",
             f"s_cmp_eq_u32 {sHI}, 0\ns_cselect_b32 {sSR}, s5, s4\ns_cselect_b32 {sSN}, 5, 14\ns_cselect_b32 {sSB}, 54, 0\ns_cselect_b32 {sLim}, 100, 54\ns_cselect_b32 s4, 30720, 0",
             f"s_add_u32 {sSB}, {sSB}, {sRG}", f"s_add_u32 {sLB}, {sLB}, s4"]
    def step_of(i, d, tmp):
        return [f"s_add_u32 {d}, {sSR}, {i}", f"s_sub_u32 {tmp}, {d}, {sSN}", f"s_cmp_ge_u32 {d}, {sSN}\ns_cselect_b32 {d}, {tmp}, {d}",
                f"s_lshl2_add_u32 {d}, {d}, {sSB}"]
    def b_addr(i):
        return step_of(i, 's4', 's5') + [f"s_cmp_lt_u32 s4, {sLim}\ns_cselect_b32 {rB[2]}, {WSZ}, 0", f"s_mul_i32 s4, s4, 5120", f"s_add_u32 s4, s4, {sBB}"]
    def b_reg(vm, i, tag):
        b = i % 4
        l = b_addr(i)
        for j in range(5):
            if j < 4: l.append(f"buffer_load_dwordx4 {BR[b][j]}, {vo}, {rB}, s4 offen offset:{j*1024} {LD}")
            else: l.append(f"buffer_load_dwordx4 {BR[b][j]}, {vo4}, {rB}, s4 offen {LD}")
            vm.issue(tag)
        return l
    GL = [4, 6, 7, 9, 10, 12]
    def b_lds(vm, k):
        k -= 4
        i = GL[k]
        l = b_addr(i) + [f"s_add_u32 m0, {sLB}, {k*5120}"]
        for j in range(4):
            l.append(f"buffer_load_dwordx4 {vo}, {rB}, s4 offen offset:{j*1024} {LD} lds"); vm.issue('BL')
        l.append(f"s_add_u32 m0, {sLB}, {k*5120 + 4096}")
        l.append(f"buffer_load_dwordx4 {vo4}, {rB}, s4 offen {LD} lds"); vm.issue('BL')
        return l
    def b_lds_hi(vm, lst):
        lb = a.newlabel('BLH')
        a(f"s_cmp_eq_u32 {sHI}, 0"); a(f"s_cbranch_scc1 {lb}")
        for i in lst:
            for l in b_lds(vm, i): a(l)
        a.label(lb)
    sPF = S(8)
    def b_touch(vm):
        if not OPT['btouch']: return []
        vm.issue('T'); vm.issue('T')
        return ["s_lshr_b32 s4, s2, 6", "s_lshl_b32 s4, s4, 3", f"s_add_u32 s4, s4, {sWV}", f"s_mul_i32 s4, s4, {93*128}", f"s_add_u32 s4, s4, {sBB}",
                f"v_lshlrev_b32 {V(22)}, 7, {lane}", f"buffer_load_dword {tdum}, {V(22)}, {rWS}, s4 offen {LD}", f"s_add_u32 s4, s4, 8192",
                f"s_mov_b64 exec, 0x1fffffff\nbuffer_load_dword {tdum}, {V(22)}, {rWS}, s4 offen {LD}\ns_mov_b64 exec, -1"]
    def flag_store(need):
        stamp(a, 3)
        arrive(a, sFLAG, need, t0, t1)
        a("s_setprio 0")
        stamp(a, 4)

    vw = [V(R0), V(R0 + 1)]; wa = [V(R0 + 2), V(R0 + 3), V(R0 + 4)]; vchk = V(R0 + 5)
    FB = [32, 72]
    XF = [[V(FB[b] + 4 * tt, 4) for tt in range(4)] for b in range(2)]
    WF = [[V(FB[b] + 16 + 4 * c, 4) for c in range(6)] for b in range(2)]
    ACC = [[V(112 + (c * 4 + tt) * 4, 4) for tt in range(4)] for c in range(6)]
    vm = VmTrack()
    a(f"s_mul_i32 {sT3}, {sID}, 192")
    touch_setup(pWG, pWU, 3456, sT3, sT3, 192)
    for l in burst(vm, *BS['p0']): a(l)
    a(f"s_bitcmp1_b32 {sWV}, 0")
    a(f"s_cselect_b32 {rW[0]}, {pWU[0]}, {pWG[0]}")
    a(f"s_cselect_b32 {rW[1]}, {pWU[1]}, {pWG[1]}")
    a(f"s_and_b32 {rW[1]}, {rW[1]}, 0xffff")
    a(f"s_mov_b32 {rW[2]}, {640*3456}")
    a(f"s_mov_b32 {rW[3]}, 0x20000")
    a(f"s_bfe_u32 {sT0}, {sWV}, 0x10001")
    a(f"s_lshl_b32 {sT1}, {sT0}, 1")
    for n in range(2):
        a(f"v_add_u32 {t0}, {64*n}, {lane}")
        a(f"v_mul_u32_u24 {t1}, 43, {t0}")
        a(f"v_lshrrev_b32 {t1}, 9, {t1}")
        a(f"v_mul_u32_u24 {t2}, 12, {t1}")
        a(f"v_sub_u32 {t2}, {t0}, {t2}")
        a(f"v_lshrrev_b32 {t3}, 2, {t2}")
        a(f"v_cmp_eq_u32 vcc, 1, {t3}")
        a(f"v_mov_b32 {t3}, {sT1}")
        a(f"v_mov_b32 {t4}, {sT0}")
        a(f"v_cndmask_b32 {t3}, {t3}, {t4}, vcc")
        a(f"v_xor_b32 {t2}, {t2}, {t3}")
        a(f"v_mul_u32_u24 {t1}, 3456, {t1}")
        a(f"v_lshl_add_u32 {vw[n]}, {t2}, 4, {t1}")
        if n: a(f"v_subrev_u32 {vw[n]}, 1024, {vw[n]}")
    a(f"s_lshr_b32 {sT0}, {sWV}, 1")
    a(f"s_mul_i32 {sWK}, {sT0}, {8*3456}")
    a(f"s_add_u32 {sWK}, {sWK}, {sT3}")
    a(f"s_mul_i32 {sMW}, {sT0}, 1536")
    a(f"s_and_b32 {sT1}, {sWV}, 1")
    a(f"s_mul_i32 {sT1}, {sT1}, 6144")
    a(f"s_add_u32 {sMW}, {sMW}, {sT1}")
    def w_dma(step):
        l = [f"s_add_u32 m0, {sMW}, {WB + (step % 5) * 12288}"] + ([f"s_add_u32 {sWK}, {sWK}, 110592"] if step else []) + [
             f"buffer_load_dwordx4 {vw[0]}, {rW}, {sWK} offen lds",
             "s_mov_b32 exec_hi, 0\n"
             f"buffer_load_dwordx4 {vw[1]}, {rW}, {sWK} offen offset:1024 lds\n"
             "s_mov_b32 exec_hi, -1"]
        vm.issue(('W', step)); vm.issue(('W', step))
        return l
    if OPT['touch']: a("s_barrier")
    for l in x_dma(vm, 0, 0) + x_dma(vm, 0, 1) + w_dma(0) + w_dma(1): a(l)
    x_addr_setup()
    a(f"v_lshl_add_u32 {t0}, {vqd}, 3, {vr}")
    a(f"v_mul_u32_u24 {t0}, 192, {t0}")
    a(f"v_add_u32 {t0}, {WB}, {t0}")
    a(f"v_and_b32 {t1}, 1, {vqd}")
    a(f"v_lshlrev_b32 {t2}, 5, {t1}")
    a(f"v_lshl_add_u32 {t2}, {vc}, 3, {t2}")
    a(f"s_lshl_b32 {sT0}, {sHI}, 7")
    a(f"v_add3_u32 {wa[0]}, {t0}, {t2}, {sT0}")
    a(f"v_xor_b32 {wa[1]}, 32, {wa[0]}")
    a(f"v_and_b32 {t2}, 2, {vc}")
    a(f"v_add_u32 {t2}, {sHI}, {t2}")
    a(f"v_xor_b32 {t2}, {t2}, {t1}")
    a(f"v_lshlrev_b32 {t2}, 4, {t2}")
    a(f"v_and_b32 {t3}, 1, {vc}")
    a(f"v_lshl_add_u32 {t2}, {t3}, 3, {t2}")
    a(f"v_add3_u32 {wa[2]}, {t0}, {t2}, 64")
    def w_reads(WFb, step):
        return [f"ds_read_b64_tr_b16 {WFb[m*3+i][2*rd:2*rd+2]}, {wa[i]} offset:{(step % 5) * 12288 + m * 6144 + rd * 768}"
                for m in range(2) for i in range(3) for rd in range(2)]
    if 'p1' in BS:
        a("s_barrier")
        for l in burst(vm, *BS['p1']): a(l)
    n = vm.wait_for(lambda t: t in (('X', 0), ('W', 0)))
    a(f"s_waitcnt vmcnt({n})")
    a("s_barrier")
    stamp(a, 1)
    for l in x_reads(XF[0], 0) + w_reads(WF[0], 0): a(l)
    for l in x_dma(vm, 1, 0) + x_dma(vm, 1, 1) + w_dma(2): a(l)
    for j in range(20):
        cur, nxt = j & 1, (j & 1) ^ 1
        if j < 19:
            n = vm.wait_for(lambda t: t in (('X', (j + 1) // 2), ('W', j + 1)) or (j == 15 and t == 'chk'))
            a(f"s_waitcnt vmcnt({n}) lgkmcnt(0)")
        else:
            a("s_waitcnt lgkmcnt(0)")
        if j == 15: init_check(vchk)
        a("s_barrier")
        sstamp(a, j)
        mains = [f"v_mfma_f32_16x16x32_bf16 {ACC[c][tt]}, {WF[cur][c]}, {XF[cur][tt]}, {'0' if j == 0 else ACC[c][tt]}" for c in range(6) for tt in range(4)]
        pre = burst(vm, *BS[j]) if j in BS else []
        lblk = []
        if j < 19:
            lblk += x_reads(XF[nxt], j + 1) + w_reads(WF[nxt], j + 1)
            if j == 0: lblk += w_dma(3) + x_dma(vm, 2, 0) + x_dma(vm, 2, 1) + w_dma(4)
            xb = (j - 1) // 2 + 3 if j >= 1 else 99
            if xb <= 9: lblk += x_dma(vm, xb, (j - 1) % 2)
            if j == 13: lblk += init_check_issue(vchk); vm.issue('chk')
            if j + 5 <= 19: lblk += w_dma(j + 5)
            if OPT['early']:
                if j == 15: lblk += p2_setup() + b_touch(vm)
                if j == 17: lblk += b_reg(vm, 0, 'B')
                if j == 18: lblk += b_reg(vm, 1, 'B')
        elif OPT['early']:
            lblk += b_reg(vm, 2, 'B') + b_reg(vm, 3, 'B')
        step_body(mains, lblk, pre)
    stamp(a, 2)
    a("s_setprio 2")
    sN = S(78, 2)
    a(f"s_mov_b32 {sN[0]}, {NLOG2E:#x}")
    a(f"s_mov_b32 {sN[1]}, {NLOG2E:#x}")
    a(f"s_lshl_b32 {sT3}, {sRB}, 2")
    a(f"s_add_u32 {sT3}, {sT3}, {sRG}")
    a(f"s_mul_i32 {sT0}, {sT3}, 74")
    a(f"s_mul_i32 {sT1}, {sID}, 3")
    a(f"s_add_u32 {sT0}, {sT0}, {sT1}")
    a(f"s_lshl_b32 {sT0}, {sT0}, 12")
    a(f"s_lshl_b32 {sT1}, {sHI}, 13")
    a(f"s_add_u32 {sT1}, {sT0}, {sT1}")
    a(f"s_lshl_b32 {sT2}, {sHI}, 9")
    a(f"s_add_u32 {sT2}, {sT2}, {sT0}")
    a(f"s_add_u32 {sT2}, {sT2}, 4096")
    a(f"s_lshl_b32 {sFLAG}, {sT3}, 7")
    a(f"s_add_u32 {sFLAG}, {sFLAG}, {FH}")
    a(f"v_lshlrev_b32 {t0}, 4, {lane}")
    a(f"v_and_b32 {t1}, 31, {lane}")
    a(f"v_lshlrev_b32 {t1}, 4, {t1}")
    a(f"v_lshrrev_b32 {t2}, 5, {lane}")
    a(f"v_lshl_add_u32 {t1}, {t2}, 10, {t1}")
    tmp = [V(FB[1] + 4 * i, 4) for i in range(2)]
    outs = [V(FB[1] + 8 + 4 * i, 4) for i in range(6)]
    def silu2(G0, U0, G1, U1, o):
        GU = ((G0, U0, tmp[0]), (G1, U1, tmp[1]))
        for G, U, T in GU:
            for h in range(2): a(f"v_pk_mul_f32 {T[2*h:2*h+2]}, {G[2*h:2*h+2]}, {sN}")
        for G, U, T in GU:
            for k in range(4): a(f"v_exp_f32 {T[k]}, {T[k]}")
        for G, U, T in GU:
            for h in range(2): a(f"v_pk_mul_f32 {G[2*h:2*h+2]}, {G[2*h:2*h+2]}, {U[2*h:2*h+2]}")
        for G, U, T in GU:
            for h in range(2): a(f"v_pk_add_f32 {T[2*h:2*h+2]}, {T[2*h:2*h+2]}, 1.0 op_sel_hi:[1,0]")
        for G, U, T in GU:
            for k in range(4): a(f"v_rcp_f32 {T[k]}, {T[k]}")
        for G, U, T in GU:
            for h in range(2): a(f"v_pk_mul_f32 {G[2*h:2*h+2]}, {G[2*h:2*h+2]}, {T[2*h:2*h+2]}")
        for q, (G, U, T) in enumerate(GU):
            for h in range(2): a(f"v_cvt_pk_bf16_f32 {o[2*q+h]}, {G[2*h]}, {G[2*h+1]}")
    for tt in range(4):
        o = outs[tt]
        if OPT['early']:
            if tt == 0:
                for l in b_lds(vm, 4): a(l)
                b_lds_hi(vm, [5])
            elif tt < 3: b_lds_hi(vm, [4 + 2*tt, 5 + 2*tt])
        silu2(ACC[0][tt], ACC[3][tt], ACC[1][tt], ACC[4][tt], o)
        a(f"buffer_store_dwordx4 {o}, {t0}, {rWS}, {sT1} offen offset:{tt*1024} {ST}")
    for tp in range(2):
        o = outs[4 + tp]
        silu2(ACC[2][2*tp], ACC[5][2*tp], ACC[2][2*tp+1], ACC[5][2*tp+1], o)
        a(f"v_permlane32_swap_b32 {o[0]}, {o[2]}")
        a(f"v_permlane32_swap_b32 {o[1]}, {o[3]}")
        a(f"buffer_store_dwordx4 {o}, {t1}, {rWS}, {sT2} offen offset:{tp*2048} {ST}")
    flag_store(35)
    a(f"s_mov_b32 {sPF}, {0 if OPT['early'] else 7}")
    a("s_branch P2")

    a.label('R_QKV')
    vm = VmTrack()
    vw = [V(R0), V(R0 + 1), V(R0 + 2)]; wa = V(R0 + 3); pa = V(R0 + 4); vchk = V(R0 + 5); vgw = V(R0 + 6)
    FB = [32, 68]
    XF = [[V(FB[b] + 4 * tt, 4) for tt in range(4)] for b in range(2)]
    WF = [[V(FB[b] + 16 + 4 * c, 4) for c in range(5)] for b in range(2)]
    ACC = [V(104 + 20 * tt, 20) for tt in range(4)]
    pf4 = [V(32 + 4 * i, 4) for i in range(9)] + [V(196, 4)]
    pf2 = [V(200, 2), V(202, 2), V(204, 2), V(206, 2), V(248, 2)]
    PF = [[pf4[2 * t], pf4[2 * t + 1], pf2[t]] for t in range(5)]
    WP = V(184, 4); GWF = V(188, 4); GA = V(192, 4)
    sC0, sC1, sLo, sHi2, sISQ, sHB, sGD = [S(77 + i) for i in range(7)]
    PHW = 135168; PHB = 0; VVB = 90112; PS = 352
    srd(a, rW, pQKV, 640 * 3840)
    srd(a, rA, pPHI, 32 * 800)
    a(f"s_lshl_b32 {sID}, {sT0}, 1"); a(f"s_add_u32 {sID}, {sID}, {sC8}")
    a(f"s_mul_i32 {sC0}, {sID}, 160")
    a(f"s_add_u32 {sC1}, {sC0}, 2560")
    a(f"s_add_u32 {sC0}, {sC0}, 1280")
    a(f"s_lshl_b32 {sHB}, {sID}, 2")
    a(f"s_mul_i32 {sT1}, {sT0}, 320")
    a(f"s_add_u32 {sT2}, {sT1}, 160")
    a(f"s_lshl_b32 {sT3}, {sT0}, 3")
    a(f"s_cmp_eq_u32 {sC8}, 2")
    a(f"s_cselect_b32 {sC0}, {sT1}, {sC0}")
    a(f"s_cselect_b32 {sC1}, {sT2}, {sC1}")
    a(f"s_cselect_b32 {sHB}, {sT3}, {sHB}")
    a(f"s_cselect_b32 {sISQ}, 1, 0")
    a(f"s_bitcmp1_b32 {sWV}, 0")
    a(f"s_cselect_b32 {sLo}, {sC1}, {sC0}")
    a(f"s_cselect_b32 {sHi2}, {sC0}, {sC1}")
    a(f"s_sub_u32 {sHi2}, {sHi2}, 160")
    touch_setup(pQKV, pQKV, 3840, sC0, sC1, 160)
    for l in burst(vm, *BS['p0']): a(l)
    for n in range(3):
        a(f"v_add_u32 {t0}, {64*n}, {lane}")
        a(f"v_mul_u32_u24 {t1}, 205, {t0}")
        a(f"v_lshrrev_b32 {t1}, 12, {t1}")
        a(f"v_mul_u32_u24 {t2}, 20, {t1}")
        a(f"v_sub_u32 {t2}, {t0}, {t2}")
        a(f"v_cmp_le_u32 vcc, 10, {t2}")
        a(f"v_mov_b32 {t3}, {sLo}")
        a(f"v_mov_b32 {t4}, {sHi2}")
        a(f"v_cndmask_b32 {t3}, {t3}, {t4}, vcc")
        a(f"v_mul_u32_u24 {t1}, 3840, {t1}")
        a(f"v_lshl_add_u32 {t1}, {t2}, 4, {t1}")
        a(f"v_add_u32 {vw[n]}, {t1}, {t3}")
        if n: a(f"v_subrev_u32 {vw[n]}, {1024*n}, {vw[n]}")
    a(f"s_mul_i32 {sWK}, {sWV}, {8*3840}")
    a(f"s_mul_i32 {sMW}, {sWV}, 2560")
    def w_dma2(blk):
        l = [f"s_add_u32 m0, {sMW}, {WB + (blk % 3) * 20480}"] + ([f"s_add_u32 {sWK}, {sWK}, 245760"] if blk else []) + [
             f"buffer_load_dwordx4 {vw[0]}, {rW}, {sWK} offen lds",
             f"buffer_load_dwordx4 {vw[1]}, {rW}, {sWK} offen offset:1024 lds",
             "s_mov_b32 exec_hi, 0\n"
             f"buffer_load_dwordx4 {vw[2]}, {rW}, {sWK} offen offset:2048 lds\n"
             "s_mov_b32 exec_hi, -1"]
        for _ in range(3): vm.issue(('W', blk))
        return l
    a(f"v_lshlrev_b32 {t0}, 4, {tid}")
    a(f"s_mul_i32 {sT0}, {sHB}, 800")
    a(f"v_add_u32 {t0}, {sT0}, {t0}")
    a(f"buffer_load_dwordx4 {WP}, {t0}, {rA}, 0 offen"); vm.issue(('P', 0))
    if OPT['touch']: a("s_barrier")
    for l in x_dma(vm, 0, 0) + x_dma(vm, 0, 1) + w_dma2(0): a(l)
    x_addr_setup()
    a(f"v_lshl_add_u32 {t0}, {vqd}, 3, {vr}")
    a(f"v_mul_u32_u24 {t0}, 320, {t0}")
    a(f"v_and_b32 {t1}, 1, {vqd}")
    a(f"v_xor_b32 {t1}, {sHI}, {t1}")
    a(f"v_mul_u32_u24 {t1}, 160, {t1}")
    a(f"v_mul_u32_u24 {t2}, 40, {vc}")
    a(f"v_add3_u32 {t0}, {t0}, {t1}, {t2}")
    a(f"v_add_u32 {wa}, {WB}, {t0}")
    a(f"s_and_b32 {sT0}, {sHI}, {sISQ}")
    a(f"s_mul_i32 {sT0}, {sT0}, 3200")
    a(f"s_add_u32 {sT0}, {sT0}, {PHW}")
    a(f"v_mul_u32_u24 {t0}, 800, {vqd}")
    a(f"v_add_u32 {t0}, {sT0}, {t0}")
    a(f"v_mov_b32 {t1}, {ZERO}")
    a(f"v_cmp_eq_u32 vcc, {vc}, {vqd}")
    a(f"v_cndmask_b32 {t0}, {t1}, {t0}, vcc")
    a(f"v_mul_u32_u24 {t1}, 40, {vr}")
    a(f"v_add_u32 {pa}, {t0}, {t1}")
    def w_reads2(WFb, step):
        blk, kk = step // 2, step % 2
        return [f"ds_read_b64_tr_b16 {WFb[t][2*rd:2*rd+2]}, {wa} offset:{(blk % 3) * 20480 + kk * 10240 + rd * 1280 + 8 * t}" for t in range(5) for rd in range(2)]
    if 'p1' in BS:
        a("s_barrier")
        for l in burst(vm, *BS['p1']): a(l)
    n = vm.wait_for(lambda t: t in (('X', 0), ('W', 0)))
    a(f"s_waitcnt vmcnt({n})")
    a("s_barrier")
    stamp(a, 1)
    for l in x_reads(XF[0], 0) + w_reads2(WF[0], 0): a(l)
    for l in x_dma(vm, 1, 0) + x_dma(vm, 1, 1) + w_dma2(1): a(l)
    for j in range(20):
        cur, nxt = j & 1, (j & 1) ^ 1
        if j % 2 == 1:
            if j < 19:
                n = vm.wait_for(lambda t: t in (('X', (j + 1) // 2), ('W', (j + 1) // 2)) or (j == 17 and t == 'chk'))
                a(f"s_waitcnt vmcnt({n}) lgkmcnt(0)")
            else: a("s_waitcnt lgkmcnt(0)")
            if j == 17: init_check(vchk)
            a("s_barrier")
        else:
            a("s_waitcnt lgkmcnt(0)")
            if OPT['pp'] or OPT['qbar']: a("s_barrier")
        sstamp(a, j)
        mains = [f"v_mfma_f32_16x16x32_bf16 {ACC[tt][4*t:4*t+4]}, {WF[cur][t]}, {XF[cur][tt]}, {'0' if j == 0 else ACC[tt][4*t:4*t+4]}" for t in range(5) for tt in range(4)]
        pre = burst(vm, *BS[j]) if j in BS else []
        lblk = []
        if j < 19:
            lblk += x_reads(XF[nxt], j + 1) + w_reads2(WF[nxt], j + 1)
            if j == 0: lblk += x_dma(vm, 2, 0) + x_dma(vm, 2, 1) + w_dma2(2)
            xb = (j - 1) // 2 + 3 if j >= 1 else 99
            if xb <= 9:
                if j % 2 == 1: lblk += x_dma(vm, xb, 0) + x_dma(vm, xb, 1)
                else: lblk += w_dma2(xb)
            if j == 15: lblk += init_check_issue(vchk); vm.issue('chk')
            if j == 17:
                lblk += [f"v_lshlrev_b32 {t0}, 4, {tid}", f"v_add_u32 {t0}, {PHW}, {t0}", f"ds_write_b128 {t0}, {WP}"] + p2_setup()
        else:
            for t in range(5):
                for s in range(3):
                    for r_ in range(2 if s < 2 else 1):
                        lblk.append(f"ds_read_b64_tr_b16 {PF[t][s][2*r_:2*r_+2]}, {pa} offset:{s*320 + r_*160 + t*8}")
        step_body(mains, lblk, pre)
    stamp(a, 2)
    a("s_setprio 2")
    QB = V(68, 40); P = V(108, 20); E = V(128, 40); O = V(168, 20); M = V(250, 4); T = V(188, 4); ONE = V(192, 2)
    sCNT = S(8); sOUT = S(9)
    def cvt_tile(dst, tt):
        for i in range(10): a(f"v_cvt_pk_bf16_f32 {dst[i]}, {ACC[tt][2*i]}, {ACC[tt][2*i+1]}")
    def pk_list(q, P=P):
        l = []
        for s_ in range(3):
            for t in range(5):
                d = P[4*t:4*t+4]
                if s_ < 2: l.append(f"v_mfma_f32_16x16x32_bf16 {d}, {PF[t][s_]}, {q[4*s_:4*s_+4]}, {'0' if s_ == 0 else d}")
                else: l.append(f"v_mfma_f32_16x16x16_bf16 {d}, {PF[t][s_]}, {q[8:10]}, {d}")
        return l
    a(f"s_lshl_b32 {sT3}, {sRB}, 2")
    a(f"s_add_u32 {sT3}, {sT3}, {sRG}")
    a(f"s_cmp_eq_u32 {sISQ}, 0")
    a("s_cbranch_scc1 R_KV")
    for tt in range(4): cvt_tile(QB[10*tt:10*tt+10], tt)
    a("s_waitcnt lgkmcnt(0)")
    a("s_barrier")
    PT = [V(108 + 20*i, 20) for i in range(4)]
    a(f"s_lshr_b32 {sT1}, {sHB}, 2")
    a(f"s_add_u32 {sT1}, {sT1}, {sHI}")
    a(f"s_lshl_b32 {sOUT}, {sT3}, 3")
    a(f"s_add_u32 {sOUT}, {sOUT}, {sT1}")
    a(f"s_mul_i32 {sOUT}, {sOUT}, 10240")
    a(f"s_add_u32 {sOUT}, {sOUT}, {PQ}")
    a(f"s_add_u32 {sT0}, {sOUT}, 8192")
    a(f"s_lshl_b32 {sFLAG}, {sT3}, 7")
    a(f"s_add_u32 {sFLAG}, {sFLAG}, {FH + 4}")
    QO = [V(208 + 8*i, 8) for i in range(4)]; QT = [V(240, 4), V(244, 4)]
    def q_out(tt):
        l = [f"v_cvt_pk_bf16_f32 {QO[tt][i] if i < 8 else QT[tt//2][2*(tt%2) + i - 8]}, {PT[tt][2*i]}, {PT[tt][2*i+1]}" for i in range(10)]
        for h in range(2): l.append(f"buffer_store_dwordx4 {QO[tt][4*h:4*h+4]}, {vo if tt < 2 else vo4}, {rWS}, {sOUT} offen offset:{(tt%2)*2048 + h*1024} {ST}")
        if tt % 2: l.append(f"buffer_store_dwordx4 {QT[tt//2]}, {vo}, {rWS}, {sT0} offen offset:{(tt//2)*1024} {ST}")
        return l
    for tt in range(4):
        side = q_out(tt - 1) if tt else []
        for i, l in enumerate(pk_list(QB[10*tt:10*tt+10], PT[tt])):
            a(l)
            if i >= 2 and side: a(side.pop(0))
    for l in q_out(3): a(l)
    flag_store(11)
    a(f"s_mov_b32 {sPF}, 7")
    a("s_branch P2")
    a.label('R_KV')
    a(f"s_lshl_b32 {sT1}, {sRG}, 1"); a(f"s_add_u32 {sT0}, {sT1}, 1"); a(f"s_mul_i32 {sT0}, {sT0}, {32*PS}")
    a(f"v_add_u32 {t0}, {sT0}, {vo}")
    a(f"s_mov_b32 {sCNT}, 2")
    a(f"s_cmp_eq_u32 {sHI}, 1")
    a("s_cbranch_scc1 R_V")
    cvt_tile(QB[0:10], 0)
    cvt_tile(QB[20:30], 2); cvt_tile(QB[30:40], 3)
    for i in range(5): a(f"ds_write_b128 {t0}, {QB[20+4*i:24+4*i]} offset:{i*1024}")
    cvt_tile(QB[10:20], 1)
    a("s_waitcnt lgkmcnt(0)")
    a("s_barrier")
    for l in pk_list(QB[0:10]): a(l)
    a("s_branch R_KV2")
    a.label('R_V')
    VBt = {3: V(88, 10), 0: V(98, 10), 1: V(168, 10), 2: V(178, 10)}
    for tt in (3, 0, 1, 2): cvt_tile(VBt[tt], tt)
    a(f"s_mul_i32 {sT2}, {sRG}, {64*176}")
    a(f"s_add_u32 {sT2}, {sT2}, {VVB}")
    a(f"v_mul_u32_u24 {t2}, 176, {vl15}")
    a(f"v_add_u32 {t1}, {sT2}, {t2}")
    a(f"v_mul_u32_u24 {t3}, 40, {vqd}")
    a(f"v_add_u32 {t2}, {t1}, {t3}")
    a(f"v_mov_b32 {ONE[0]}, 0x3f80")
    a(f"v_mov_b32 {ONE[1]}, 0")
    a("s_barrier")
    for i in range(5): a(f"ds_read_b128 {QB[4*i:4*i+4]}, {t0} offset:{i*1024}")
    side = []
    for tt in (3, 0, 1, 2):
        for i in range(5): side.append(f"ds_write_b64 {t2}, {VBt[tt][2*i:2*i+2]} offset:{tt*2816 + 8*i}")
        side.append(f"ds_write_b64 {t1}, {ONE} offset:{tt*2816 + 160}")
    for i in range(9): a(side.pop(0))
    a("s_waitcnt lgkmcnt(9)")
    for l in pk_list(QB[0:10]): a(l); a(side.pop(0))
    a.label('R_KV2')
    a(f"s_add_u32 {sT1}, {sT1}, {sHI}"); a(f"s_mul_i32 {sT1}, {sT1}, {32*PS}")
    a(f"v_mul_u32_u24 {t4}, {PS}, {vl15}")
    a(f"v_mul_u32_u24 {t3}, 80, {vqd}")
    a(f"v_add3_u32 {t4}, {t4}, {t3}, {sT1}")
    stamp(a, 12)
    for l in b_reg(vm, 0, 'B') + b_reg(vm, 1, 'B'): a(l)
    a.label('R_SML')
    softmax_unit(a, P, E, M, T, O, pk_list(QB[10:20]) + ["s_waitcnt lgkmcnt(0)"])
    for s_ in range(5): a(f"ds_write_b128 {t4}, {O[4*s_:4*s_+4]} offset:{PHB + 16*s_}")
    a(f"v_add_u32 {t4}, {16*PS}, {t4}")
    a(f"s_sub_u32 {sCNT}, {sCNT}, 1")
    a(f"s_cmp_lg_u32 {sCNT}, 0")
    a("s_cbranch_scc1 R_SML")
    for l in b_reg(vm, 2, 'B') + b_reg(vm, 3, 'B'): a(l)
    a(f"v_lshl_add_u32 {t0}, {vqd}, 2, {vr}")
    a(f"v_mul_u32_u24 {t1}, {PS}, {t0}")
    a(f"s_mul_i32 {sT0}, {sRG}, 80")
    a(f"v_lshl_add_u32 {t1}, {vc}, 3, {t1}")
    a(f"v_add_u32 {t1}, {sT0}, {t1}")
    a(f"v_add_u32 {t2}, {128*PS}, {t1}")
    a(f"v_mul_u32_u24 {t0}, 176, {t0}")
    a(f"s_mul_i32 {sT0}, {sRG}, 40")
    a(f"s_lshl_b32 {sT1}, {sHI}, 5")
    a(f"s_add_u32 {sT0}, {sT0}, {sT1}")
    a(f"v_lshl_add_u32 {t3}, {vc}, 3, {sT0}")
    a(f"v_mul_u32_u24 {t4}, {sHI}, {vc}")
    a(f"v_cmp_ne_u32 vcc, 0, {t4}")
    a(f"v_mov_b32 {t4}, 160")
    a(f"v_cndmask_b32 {t3}, {t3}, {t4}, vcc")
    a(f"v_add_u32 {t3}, {VVB}, {t3}")
    a(f"v_add_u32 {t3}, {t0}, {t3}")
    stamp(a, 13)
    a("s_waitcnt lgkmcnt(0)")
    a("s_barrier")
    stamp(a, 14)
    KA = [[V(72 + (b*4 + f)*4, 4) for f in range(4)] for b in range(3)]
    KD = [V(128 + 4*f, 4) for f in range(3)]
    def kv_reads(b, s):
        l = []
        for rd in range(2):
            l.append(f"ds_read_b64_tr_b16 {KA[b][3][2*rd:2*rd+2]}, {t3} offset:{s*5632 + rd*2816}")
        for f in range(3):
            for rd in range(2):
                l.append(f"ds_read_b64_tr_b16 {KA[b][f][2*rd:2*rd+2]}, {t1 if s < 4 else t2} offset:{(s % 4)*32*PS + rd*16*PS + f*32}")
        return l
    allr = [l for s in range(8) for l in kv_reads(s % 3, s)]
    pos = 0
    for s in range(8):
        for f in range(3):
            needr = s * 8 + 2 + 2 * (f + 1)
            lim = min(len(allr), needr + 12, (s + 2) * 8 + (2 + 2 * f if False else 0) + 8 - 8 + 0) if False else min(len(allr), needr + 12)
            lim = min(lim, (s + 3) * 8)
            while pos < lim: a(allr[pos]); pos += 1
            a(f"s_waitcnt lgkmcnt({pos - needr})")
            a(f"v_mfma_f32_16x16x32_bf16 {KD[f]}, {KA[s%3][f]}, {KA[s%3][3]}, {'0' if s == 0 else KD[f]}")
    stamp(a, 15)
    a(f"s_add_u32 {sT0}, {sHB}, {sRG}")
    a(f"s_lshl_b32 {sT0}, {sT0}, 1")
    a(f"s_add_u32 {sT0}, {sT0}, {sHI}")
    a(f"s_mul_i32 {sT0}, {sT0}, 3072")
    a(f"s_add_u32 {sT0}, {sT0}, {KVACC}")
    a(f"s_lshl_b32 {sFLAG}, {sID}, 7")
    a(f"s_add_u32 {sFLAG}, {sFLAG}, {FK}")
    a(f"v_lshlrev_b32 {t2}, 2, {lane}")
    for f in range(3):
        if f == 2: a("s_mov_b32 exec_hi, 0")
        for j in range(4):
            a(f"buffer_atomic_add_f32 {KD[f][j]}, {t2}, {rWS}, {sT0} offen offset:{f*1024 + j*256} {OPT['atf']}")
    a("s_mov_b32 exec_hi, -1")
    a("s_barrier")
    stamp(a, 3)
    a(f"v_mov_b32 {t0}, {CNT}"); a(f"v_mov_b32 {t1}, 1")
    a("s_waitcnt vmcnt(0)")
    a("s_mov_b64 exec, 1")
    a(f"ds_add_rtn_u32 {t1}, {t0}, {t1} offset:12")
    a("s_waitcnt lgkmcnt(0)")
    a(f"v_readfirstlane_b32 {sT0}, {t1}")
    a("s_mov_b64 exec, -1")
    a(f"s_cmp_lg_u32 {sT0}, 7")
    a("s_cbranch_scc1 R_KV3")
    arrive(a, sFLAG, 7, t0, t1)
    a.label('R_KV3')
    a("s_setprio 0")
    stamp(a, 4)
    a(f"s_mov_b32 {sPF}, 4")
    a("s_branch P2")

    a.label('R_SPARE')
    sSP, sU, sSO, sST = S(77), S(78), S(79), S(80)
    va = Alloc('v', 11, 250)
    vf = [va() for _ in range(5)]; vat = [va() for _ in range(5)]
    rf = [va() for _ in range(5)]; rat = [va(), va()]
    vst = va(); vst4 = va()
    FR = [[va(4) for _ in range(5)] for b in range(2)]
    Z4 = va(4)
    NT = OPT['spnt']
    srd(a, rA, pWD, 1728 * 1280)
    srd(a, rB, pWO, 640 * 1280)
    a(f"s_lshr_b32 {sSP}, {sT0}, 1")
    a(f"s_lshl_b32 {sSP}, {sSP}, 3")
    a(f"s_add_u32 {sSP}, {sSP}, {sRB}")
    a(f"s_lshl_b32 {sT0}, {sWV}, 2")
    a(f"s_mul_i32 {sT1}, {sWV}, 20")
    for n in range(5):
        a(f"v_add_u32 {t0}, {64*n}, {lane}")
        a(f"v_mul_u32_u24 {t1}, 205, {t0}")
        a(f"v_lshrrev_b32 {t1}, 14, {t1}")
        a(f"v_mul_u32_u24 {t2}, 80, {t1}")
        a(f"v_sub_u32 {t2}, {t0}, {t2}")
        a(f"v_add_u32 {t1}, {sT0}, {t1}")
        a(f"v_and_b32 {t3}, 7, {t1}")
        a(f"v_lshlrev_b32 {t3}, 1, {t3}")
        a(f"v_xor_b32 {t2}, {t2}, {t3}")
        a(f"v_mul_u32_u24 {t1}, 1280, {t1}")
        a(f"v_lshl_add_u32 {vf[n]}, {t2}, 4, {t1}")
        if n % 4: a(f"v_subrev_u32 {vf[n]}, {1024*(n%4)}, {vf[n]}")
    a(f"s_mul_i32 {sM}, {sWV}, 5120")
    def u_dma(buf, typ):
        if typ == 'F':
            a(f"s_mul_i32 {sSO}, {sU}, 40960")
            vv, rr = vf, rA
        else:
            a(f"s_sub_u32 {sT2}, {sU}, 54")
            a(f"s_mul_i32 {sT3}, {sT2}, 52")
            a(f"s_lshr_b32 {sT3}, {sT3}, 8")
            a(f"s_mul_i32 {sSO}, {sT3}, {160*1280 - 5*256}")
            a(f"s_lshl_b32 {sT2}, {sT2}, 8")
            a(f"s_add_u32 {sSO}, {sSO}, {sT2}")
            vv, rr = vat, rB
        a(f"s_add_u32 m0, {sM}, {buf*40960}")
        for n in range(4):
            a(f"buffer_load_dwordx4 {vv[n]}, {rr}, {sSO} offen offset:{n*1024} {NT} lds")
        a(f"s_add_u32 m0, {sM}, {buf*40960 + 4096}")
        a(f"buffer_load_dwordx4 {vv[4]}, {rr}, {sSO} offen {NT} lds")
    def dyn(it, fn):
        if it == 4:
            a(f"s_add_u32 {sU}, {sSP}, 64"); a(f"s_min_u32 {sU}, {sU}, 73"); fn('A'); return
        a(f"s_add_u32 {sU}, {sSP}, {16*it}")
        if it <= 2: fn('F')
        else:
            l1, l2 = a.newlabel('SP'), a.newlabel('SP')
            a(f"s_cmp_ge_u32 {sU}, 54"); a(f"s_cbranch_scc1 {l1}")
            fn('F'); a(f"s_branch {l2}"); a.label(l1); fn('A'); a.label(l2)
    for it in range(3): dyn(it, lambda typ: u_dma(it, typ))
    a(f"v_lshlrev_b32 {t0}, 4, {tid}")
    for i in range(4): a(f"v_mov_b32 {Z4[i]}, 0")
    a(f"s_mul_i32 {sT2}, {sSP}, 13312")
    a(f"s_add_u32 {sT2}, {sT2}, {KVACC}")
    a(f"buffer_store_dwordx4 {Z4}, {t0}, {rWS}, {sT2} offen {ST}")
    a(f"s_add_u32 {sT2}, {sT2}, {13312 - 8192}")
    a(f"buffer_store_dwordx4 {Z4}, {t0}, {rWS}, {sT2} offen {ST}")
    for n in range(5):
        a(f"v_add_u32 {t1}, {4*n}, {vqd}")
        a(f"v_add_u32 {t1}, {sT1}, {t1}")
        a(f"v_and_b32 {t3}, 7, {t1}")
        a(f"v_lshlrev_b32 {t3}, 1, {t3}")
        a(f"v_xor_b32 {t2}, {vl15}, {t3}")
        a(f"v_mul_u32_u24 {t1}, 1280, {t1}")
        a(f"v_lshl_add_u32 {vat[n]}, {t2}, 4, {t1}")
        if n % 4: a(f"v_subrev_u32 {vat[n]}, {1024*(n%4)}, {vat[n]}")
    a(f"v_lshl_add_u32 {t0}, {vqd}, 2, {vr}")
    a(f"v_and_b32 {t1}, 7, {t0}")
    a(f"v_lshlrev_b32 {t1}, 1, {t1}")
    a(f"v_mul_u32_u24 {t0}, 1280, {t0}")
    a(f"v_and_b32 {t2}, 1, {vc}")
    a(f"v_lshl_add_u32 {t0}, {t2}, 3, {t0}")
    a(f"v_lshrrev_b32 {t3}, 1, {vc}")
    a(f"s_mul_i32 {sT0}, {sWV}, 10")
    a(f"v_add_u32 {t4}, {sT0}, {t3}")
    for j in range(5):
        a(f"v_add_u32 {rf[j]}, {2*j}, {t4}")
        a(f"v_xor_b32 {rf[j]}, {rf[j]}, {t1}")
        a(f"v_lshl_add_u32 {rf[j]}, {rf[j]}, 4, {t0}")
    a(f"v_mul_u32_u24 {t0}, 20, {vqd}")
    a(f"v_add_u32 {t0}, {t0}, {vr}")
    a(f"v_lshlrev_b32 {t0}, 8, {t0}")
    a(f"v_lshl_add_u32 {t0}, {t2}, 3, {t0}")
    a(f"s_lshl_b32 {sT0}, {sWV}, 1")
    a(f"v_add_u32 {t4}, {sT0}, {t3}")
    a(f"v_xor_b32 {t4}, {t4}, {t1}")
    a(f"v_lshl_add_u32 {rat[0]}, {t4}, 4, {t0}")
    a(f"v_xor_b32 {rat[1]}, 128, {rat[0]}")
    a(f"v_lshlrev_b32 {vst}, 4, {lane}")
    a(f"v_add_u32 {vst4}, 4096, {vst}")
    def u_proc(buf, typ, F):
        if typ == 'F':
            for j in range(5):
                a(f"v_add_u32 {t0}, {buf*40960}, {rf[j]}")
                for rd in range(2):
                    a(f"ds_read_b64_tr_b16 {F[j][2*rd:2*rd+2]}, {t0} offset:{rd*20480}")
            a(f"s_mul_i32 {sST}, {sWV}, 74")
            a(f"s_add_u32 {sST}, {sST}, {sU}")
            a(f"s_mul_i32 {sST}, {sST}, 5120")
            a(f"s_add_u32 {sST}, {sST}, {BP}")
            a("s_waitcnt lgkmcnt(0)")
            for j in range(5):
                if j < 4: a(f"buffer_store_dwordx4 {F[j]}, {vst}, {rWS}, {sST} offen offset:{j*1024} {ST}")
                else: a(f"buffer_store_dwordx4 {F[j]}, {vst4}, {rWS}, {sST} offen {ST}")
        else:
            bases = [(0, 4), (8, 12), (16, 96), (80, 84), (88, 92)]
            a(f"v_add_u32 {t0}, {buf*40960}, {rat[0]}")
            a(f"v_add_u32 {t1}, {buf*40960}, {rat[1]}")
            for s5 in range(5):
                for rd in range(2):
                    b = bases[s5][rd]
                    a(f"ds_read_b64_tr_b16 {F[s5][2*rd:2*rd+2]}, {t1 if b % 8 else t0} offset:{b*256}")
            a(f"s_sub_u32 {sT2}, {sU}, 54")
            a(f"s_mul_i32 {sT3}, {sT2}, 52")
            a(f"s_lshr_b32 {sT3}, {sT3}, 8")
            a(f"s_mul_i32 {sT0}, {sT3}, 5")
            a(f"s_sub_u32 {sT2}, {sT2}, {sT0}")
            a(f"s_lshl_b32 {sT2}, {sT2}, 3")
            a(f"s_add_u32 {sT2}, {sT2}, {sWV}")
            a(f"s_mul_i32 {sT1}, {sT2}, 52")
            a(f"s_lshr_b32 {sT1}, {sT1}, 8")
            a(f"s_mul_i32 {sST}, {sT1}, 5")
            a(f"s_sub_u32 {sT2}, {sT2}, {sST}")
            a(f"s_mul_i32 {sST}, {sT1}, 74")
            a(f"s_add_u32 {sST}, {sST}, {sT0}")
            a(f"s_add_u32 {sST}, {sST}, 54")
            a(f"s_mul_i32 {sST}, {sST}, 5120")
            a(f"s_lshl_b32 {sT2}, {sT2}, 10")
            a(f"s_add_u32 {sST}, {sST}, {sT2}")
            a(f"s_add_u32 {sST}, {sST}, {BP}")
            a("s_waitcnt lgkmcnt(0)")
            for s5 in range(5):
                a(f"buffer_store_dwordx4 {F[s5]}, {vst}, {rWS}, {sST} offen {ST}")
                if s5 < 4: a(f"s_add_u32 {sST}, {sST}, 5120")
    vm = VmTrack()
    for t in ['D0']*5 + ['D1']*5 + ['D2']*5 + ['Z']*2: vm.issue(t)
    for it in range(5):
        n = vm.wait_for(lambda t: t == f'D{it}')
        a(f"s_waitcnt vmcnt({n})")
        a("s_barrier")
        if it in (1, 2):
            dyn(it + 2, lambda typ: u_dma(it - 1, typ))
            for _ in range(5): vm.issue(f'D{it+2}')
        dyn(it, lambda typ: u_proc(it % 3, typ, FR[it & 1]))
        for _ in range(5): vm.issue('S')
    a("s_waitcnt vmcnt(0)")
    a("s_barrier")
    lsk = a.newlabel('SPD')
    a(f"s_cmp_lg_u32 {sWV}, 0"); a(f"s_cbranch_scc1 {lsk}")
    a(f"v_mov_b32 {t0}, 0"); a(f"v_mov_b32 {t1}, 1")
    a("s_mov_b64 exec, 1")
    a(f"buffer_atomic_add {t1}, {t0}, {rDBG}, 0 offen sc1")
    a("s_mov_b64 exec, -1")
    a.label(lsk)
    stamp(a, 2)
    GW = [V(72 + 4*i, 4) for i in range(5)]
    GX = [[V(96 + (g*5 + i)*4, 4) for i in range(5)] for g in range(4)]
    GA = [V(92 + g) for g in range(4)]
    srd(a, rW, pGW, 1280)
    a(f"v_lshlrev_b32 {t0}, 4, {vl15}")
    for i in range(5): a(f"buffer_load_dwordx4 {GW[i]}, {t0}, {rW}, 0 offen offset:{i*256}")
    a(f"v_mul_u32_u24 {t1}, 1280, {vqd}")
    a(f"v_add_u32 {t0}, {t0}, {t1}")
    a(f"s_lshl_b32 {sT3}, {sSP}, 3")
    a(f"s_add_u32 {sT3}, {sT3}, {sWV}")
    a(f"s_mul_i32 {sT2}, {sT3}, {16*1280}")
    for g in range(4):
        for i in range(5): a(f"buffer_load_dwordx4 {GX[g][i]}, {t0}, {rX}, {sT2} offen offset:{i*256}")
        if g < 3: a(f"s_add_u32 {sT2}, {sT2}, {4*1280}")
    for g in range(4): a(f"v_mov_b32 {GA[g]}, 0")
    init_poll(a, t1)
    for i in range(5):
        for k in range(4):
            for g in range(4): a(f"v_dot2c_f32_bf16 {GA[g]}, {GX[g][i][k]}, {GW[i][k]}")
    for sh in (8, 4, 2, 1):
        for g in range(4): a(f"v_add_f32_dpp {GA[g]}, {GA[g]}, {GA[g]} row_ror:{sh} row_mask:0xf bank_mask:0xf")
    for g in range(4): a(f"v_mul_f32 {GA[g]}, {NLOG2E:#x}, {GA[g]}")
    for g in range(4): a(f"v_exp_f32 {GA[g]}, {GA[g]}")
    for g in range(4): a(f"v_add_f32 {GA[g]}, 1.0, {GA[g]}")
    for g in range(4): a(f"v_rcp_f32 {GA[g]}, {GA[g]}")
    a(f"v_mov_b32 {t2}, {GA[0]}")
    for g in range(1, 4):
        a(f"v_cmp_eq_u32 vcc, {g}, {vl15}"); a(f"v_cndmask_b32 {t2}, {t2}, {GA[g]}, vcc")
    a(f"v_lshl_add_u32 {t0}, {vl15}, 2, {vqd}")
    a(f"v_lshlrev_b32 {t3}, 2, {t0}")
    a(f"s_lshl_b32 {sT2}, {sT3}, 6"); a(f"s_add_u32 {sT2}, {sT2}, {GOFF}")
    a("s_mov_b32 exec_lo, 0x000f000f"); a("s_mov_b32 exec_hi, 0x000f000f")
    a(f"buffer_store_dword {t2}, {t3}, {rWS}, {sT2} offen {ST}")
    a("s_mov_b64 exec, -1")
    a(f"s_lshr_b32 {sFLAG}, {sT3}, 2"); a(f"s_lshl_b32 {sFLAG}, {sFLAG}, 7"); a(f"s_add_u32 {sFLAG}, {sFLAG}, {FH + 4}")
    flag_store(11)

    vm = VmTrack()
    a(f"s_mov_b32 {sPF}, 7")
    a.label('P2')
    a(f"s_bitcmp0_b32 {sPF}, 0"); a("s_cbranch_scc1 P2_E1")
    for l in p2_setup() + b_reg(vm, 0, 'B') + b_reg(vm, 1, 'B'): a(l)
    a.label('P2_E1')
    a(f"s_bitcmp0_b32 {sPF}, 1"); a("s_cbranch_scc1 P2_E2")
    for l in b_reg(vm, 2, 'B') + b_reg(vm, 3, 'B'): a(l)
    a.label('P2_E2')
    a(f"s_bitcmp0_b32 {sPF}, 2"); a("s_cbranch_scc1 P2_GO")
    for l in b_lds(vm, 4): a(l)
    b_lds_hi(vm, range(5, 10))
    a.label('P2_GO')
    vG = V(16, 4); vz = V(11); ka = V(12); kw = V(13); vbl = V(15); vcn = V(14)
    ACC = [[V(72 + (tt * 5 + j) * 4, 4) for j in range(5)] for tt in range(4)]
    ARl = [V(152 + 4 * i, 4) for i in range(14)] + [V(248, 4), V(24, 4)]
    AR = [ARl[4*b:4*b+4] for b in range(4)]
    sFHo = S(78)
    rOUT = rX
    a(f"v_mov_b32 {vz}, 0")
    a(f"v_mov_b32 {vcn}, {CNT}")
    a(f"v_add_u32 {vbl}, {sLB}, {vo}")
    srd(a, rA, pWS, WSZ)
    def a_loads(i, tag, vts=None):
        b = i % 4
        l = step_of(i, sT0, sT1) + [f"s_cmp_lt_u32 {sT0}, {sLim}\ns_cselect_b32 {rA[2]}, {WSZ}, 0", f"s_lshl_b32 {sT0}, {sT0}, 12", f"s_add_u32 {sT0}, {sT0}, {sAB}"]
        for tt in range(4):
            if vts: l.append(f"buffer_load_dwordx4 {AR[b][tt]}, {vts[tt]}, {rA}, {sT0} offen {LD}")
            else: l.append(f"buffer_load_dwordx4 {AR[b][tt]}, {vo}, {rA}, {sT0} offen offset:{tt*1024} {LD}")
            vm.issue(tag)
        return l
    def b_fromlds(i):
        return [f"ds_read_b128 {BR[i % 4][j]}, {vbl} offset:{GL.index(i)*5120 + j*1024}" for j in range(5)]
    def mm(b, zero, side=[]):
        side = list(side)
        for j in range(5):
            for tt in range(4):
                d = ACC[tt][j]
                a(f"v_mfma_f32_16x16x32_bf16 {d}, {BR[b][j]}, {AR[b][tt]}, {'0' if tt in zero else d}")
                while side and side[0].startswith('s_'): a(side.pop(0))
                if side and tt % 2 == 1: a(side.pop(0))
        for l in side: a(l)
    def g_load():
        a(f"s_lshl_b32 {sT0}, {sR6}, 8"); a(f"s_add_u32 {sT0}, {sT0}, {GOFF}")
        a(f"v_lshlrev_b32 {t0}, 4, {vl15}")
        a(f"buffer_load_dwordx4 {vG}, {t0}, {rWS}, {sT0} offen {LD}")
    def lds_signal(off):
        a(f"v_mov_b32 {t1}, 1")
        a("s_waitcnt lgkmcnt(0)")
        a("s_mov_b64 exec, 1")
        a(f"ds_add_u32 {vcn}, {t1} offset:{off}")
        a("s_mov_b64 exec, -1")
    def lds_wait(off, n):
        L = a.newlabel('LW')
        a.label(L)
        a(f"ds_read_b32 {t1}, {vcn} offset:{off}")
        a("s_waitcnt lgkmcnt(0)")
        a(f"v_readfirstlane_b32 {sT0}, {t1}")
        a(f"s_cmp_lt_u32 {sT0}, {n}")
        a(f"s_cbranch_scc1 {L}")
    a(f"s_lshl_b32 {sFHo}, {sR6}, 7"); a(f"s_add_u32 {sFHo}, {sFHo}, {FH + GOD}")
    a(f"s_cmp_eq_u32 {sHI}, 0")
    a("s_cbranch_scc1 P2_C")
    vpoll(a, vz, sFHo, 0, t1)
    vm = VmTrack()
    stamp(a, 5)
    if OPT['stamp'] == 4: a("s_memtime s[92:93]")
    for s in range(4):
        for l in a_loads(s, ('A', s)): a(l)
    for s in range(14):
        n = vm.wait_for(lambda t: t in (('A', s), ('B', s)))
        a(f"s_waitcnt vmcnt({n})" + (f" lgkmcnt({5*sum(1 for x in (s+1, s+2) if x in GL)})" if s in GL else ""))
        if s == 0: stamp(a, 6)
        if OPT['stamp'] == 4:
            a("s_waitcnt lgkmcnt(0)")
            a(f"v_writelane_b32 v255, s92, {40 + s}")
            a("s_memtime s[92:93]")
        side = []
        if 1 <= s and s + 3 < 14:
            side = a_loads(s + 3, ('A', s + 3)) + (b_fromlds(s + 3) if s + 3 in GL else b_reg(vm, s + 3, ('B', s + 3)))
        if s < 13: mm(s % 4, range(4) if s == 0 else [], side)
        else:
            for tt in range(4):
                for j in range(5):
                    d = ACC[tt][j]
                    a(f"v_mfma_f32_16x16x32_bf16 {d}, {BR[1][j]}, {AR[1][tt]}, {d}")
                    if tt >= 2: a(f"ds_write_b128 {vbl}, {ACC[tt-2][j]} offset:{((tt-2)*5+j)*1024}")
            for tt in (2, 3):
                for j in range(5): a(f"ds_write_b128 {vbl}, {ACC[tt][j]} offset:{(tt*5+j)*1024}")
    lds_signal(4)
    stamp(a, 10)
    a("s_branch P2_FIN")
    a.label('P2_C')
    P = V(72, 20)
    a("s_setprio 3")
    srd(a, rOUT, pOUT, 2048 * 1280)
    vpoll(a, vz, sFHo, 4, t1)
    PB = V(176, 12); PU = V(152, 20)
    a(f"s_lshl_b32 {sT0}, {sR6}, 3"); a(f"s_add_u32 {sT0}, {sT0}, {sCG}")
    a(f"s_mul_i32 {sT0}, {sT0}, 10240"); a(f"s_add_u32 {sT0}, {sT0}, {PQ}")
    a(f"s_lshl_b32 {sT1}, {sRG}, 11"); a(f"s_add_u32 {sT1}, {sT1}, {sT0}")
    for h in range(2): a(f"buffer_load_dwordx4 {PB[4*h:4*h+4]}, {vo}, {rWS}, {sT1} offen offset:{h*1024} {LD}")
    a(f"s_lshr_b32 {sT1}, {sRG}, 1"); a(f"s_lshl_b32 {sT1}, {sT1}, 10"); a(f"s_add_u32 {sT0}, {sT0}, {sT1}")
    a(f"s_and_b32 {sT1}, {sRG}, 1"); a(f"s_lshl_b32 {sT1}, {sT1}, 3"); a(f"s_add_u32 {sT0}, {sT0}, {sT1}"); a(f"s_add_u32 {sT0}, {sT0}, 8192")
    a(f"buffer_load_dwordx2 {PB[8:10]}, {vo}, {rWS}, {sT0} offen {LD}")
    a(f"s_lshl_b32 {sT0}, {sR6}, 2"); a(f"s_add_u32 {sT0}, {sT0}, {sRG}"); a(f"s_lshl_b32 {sT0}, {sT0}, 6"); a(f"s_add_u32 {sT0}, {sT0}, {GOFF}")
    a(f"v_lshlrev_b32 {t0}, 2, {vl15}")
    a(f"buffer_load_dword {t3}, {t0}, {rWS}, {sT0} offen {LD}")
    a(f"v_lshl_add_u32 {kw}, {vr}, 2, {vqd}")
    a(f"v_lshlrev_b32 {kw}, 6, {kw}")
    a(f"v_lshl_add_u32 {kw}, {vc}, 3, {kw}")
    a(f"s_mul_i32 {sT0}, {sRG}, 3088"); a(f"s_add_u32 {sT0}, {sT0}, {KVB}")
    a(f"v_add_u32 {kw}, {sT0}, {kw}")
    a(f"v_mul_u32_u24 {t4}, 3088, {vqd}")
    a(f"v_lshl_add_u32 {t4}, {vr}, 6, {t4}")
    a(f"v_add_u32 {t4}, {KVB}, {t4}")
    a(f"v_mov_b32 {ka}, {ZERO + 8}")
    a(f"v_cmp_eq_u32 vcc, {vc}, {vqd}")
    a(f"v_cndmask_b32 {ka}, {ka}, {t4}, vcc")
    VT = [V(16), V(17), V(18), V(19)]
    for i in range(4):
        a(f"s_add_u32 {sT0}, {sRG}, {i}"); a(f"s_and_b32 {sT0}, {sT0}, 3"); a(f"s_lshl_b32 {sT0}, {sT0}, 10")
        a(f"v_add_u32 {VT[i]}, {sT0}, {vo}")
    a("s_waitcnt vmcnt(0)")
    for i in range(10):
        a(f"v_lshlrev_b32 {PU[2*i]}, 16, {PB[i]}")
        a(f"v_and_b32 {PU[2*i+1]}, 0xffff0000, {PB[i]}")
    softmax_unit(a, PU, V(92, 40), V(132, 4), V(136, 4), P)
    stamp(a, 5)
    a("s_setprio 3")
    a(f"s_lshl_b32 {sT2}, {sCG}, 7"); a(f"s_add_u32 {sT2}, {sT2}, {FK + GOD}")
    a(f"s_lshl_b32 {sT3}, {sCG}, 2"); a(f"s_add_u32 {sT3}, {sT3}, {sRG}")
    a(f"s_mul_i32 {sT3}, {sT3}, 6144"); a(f"s_add_u32 {sT3}, {sT3}, {KVACC}")
    vpoll(a, vz, sT2, 0, t1)
    stamp(a, 6)
    KL = [V(92 + 4 * i, 4) for i in range(6)]
    for i in range(6):
        if i < 4: a(f"buffer_load_dwordx4 {KL[i]}, {vo}, {rWS}, {sT3} offen offset:{i*1024} {LD}")
        else: a(f"buffer_load_dwordx4 {KL[i]}, {vo4}, {rWS}, {sT3} offen offset:{(i-4)*1024} {LD}")
    sO1, sO2 = S(79), S(80)
    a(f"s_lshr_b32 {sT1}, {sCG}, 1")
    a(f"s_mul_i32 {sT1}, {sT1}, 5")
    a(f"s_add_u32 {sO2}, {sT1}, 54")
    a(f"s_lshl_b32 {sO2}, {sO2}, 2")
    a(f"s_add_u32 {sO2}, {sO2}, {sRG}")
    a(f"s_lshl_b32 {sO2}, {sO2}, 10")
    a(f"s_add_u32 {sO2}, {sO2}, {sAB}")
    a(f"s_and_b32 {sT1}, {sCG}, 1")
    a(f"s_mul_i32 {sO1}, {sT1}, {3*4096}")
    a(f"s_add_u32 {sO1}, {sO1}, {sO2}")
    a(f"s_lshl_b32 {sT1}, {sT1}, 3")
    a(f"s_add_u32 {sO2}, {sO2}, {sT1}")
    a(f"s_add_u32 {sO2}, {sO2}, 8192")
    for i in range(6):
        a(f"s_waitcnt vmcnt({5-i})")
        a(f"v_cvt_pk_bf16_f32 {KL[i][0]}, {KL[i][0]}, {KL[i][1]}")
        a(f"v_cvt_pk_bf16_f32 {KL[i][1]}, {KL[i][2]}, {KL[i][3]}")
        a(f"ds_write_b64 {kw}, {KL[i][0:2]} offset:{(i % 3)*1024 + (i // 3)*32}")
    lds_signal(0)
    lds_wait(0, 4)
    stamp(a, 16)
    AFl = [V(92 + 4 * i, 4) for i in range(15)]
    D = [V(152 + 4 * t, 4) for t in range(6)]
    O = V(176, 12)
    order = [5, 0, 1, 2, 3, 4]
    fr = [(t, s) for t in order for s in range(5)]
    def rdl(k):
        t, s_ = fr[k]
        return [f"ds_read_b64_tr_b16 {AFl[k % 15][2*r_:2*r_+2]}, {ka} offset:{s_*512 + r_*256 + t*8}" for r_ in range(2)]
    AH = 6
    for k in range(AH):
        for l in rdl(k): a(l)
    def fin(t):
        for h in range(2): a(f"v_pk_mul_f32 {D[t][2*h:2*h+2]}, {D[t][2*h:2*h+2]}, {V(t2.lo, 2)} op_sel_hi:[1,0]")
        a(f"v_cvt_pk_bf16_f32 {O[2*t]}, {D[t][0]}, {D[t][1]}")
        a(f"v_cvt_pk_bf16_f32 {O[2*t+1]}, {D[t][2]}, {D[t][3]}")
    for k in range(30):
        t, s_ = fr[k]
        if k + AH < 30:
            for l in rdl(k + AH): a(l)
        a(f"s_waitcnt lgkmcnt({2 * min(AH, 29 - k)})")
        a(f"v_mfma_f32_16x16x32_bf16 {D[t]}, {AFl[k % 15]}, {P[4*s_:4*s_+4]}, {'0' if s_ == 0 else D[t]}")
        if k == 8:
            a(f"v_add_f32 {t2}, 0x358637bd, {D[5][0]}")
            a(f"v_rcp_f32 {t2}, {t2}")
        if k == 9: a(f"v_mul_f32 {t2}, {t2}, {t3}"); a(f"v_sub_f32 {V(22)}, 1.0, {t3}")
        if k in (13, 18, 23, 28): fin((k - 13) // 5)
        if k == 19: a(f"buffer_store_dwordx4 {O[0:4]}, {vo}, {rWS}, {sO1} offen {ST}")
    a(f"buffer_store_dwordx4 {O[4:8]}, {vo4}, {rWS}, {sO1} offen {ST}")
    fin(4)
    a(f"buffer_store_dwordx2 {O[8:10]}, {vo}, {rWS}, {sO2} offen {ST}")
    stamp(a, 17)
    a(f"s_sub_u32 {sT2}, {sFHo}, {GOD - 8}")
    arrive(a, sT2, 31, t0, t1)
    stamp(a, 7)
    XB = [V(28), V(29), V(30)]; XW = V(31); GB = [V(12), V(13)]
    for q in range(1, 4):
        a(f"s_sub_u32 {sT0}, {sRG}, {q}"); a(f"s_and_b32 {sT0}, {sT0}, 3"); a(f"s_mul_i32 {sT0}, {sT0}, {RSZ}")
        a(f"s_add_u32 {sT0}, {sT0}, {20480 + (q-1)*5120}")
        a(f"v_add_u32 {XB[q-1]}, {sT0}, {vo}")
    a(f"v_subrev_u32 {XW}, {30720 - 20480}, {vbl}")
    a(f"s_mul_i32 {sT0}, {sRG}, 5120"); a(f"v_add_u32 {GB[0]}, {sT0}, {vo}"); a(f"v_add_u32 {GB[1]}, {2*RSZ}, {GB[0]}")
    a(f"v_mul_u32_u24 {t0}, 1280, {vl15}")
    a(f"v_lshl_add_u32 {t0}, {vqd}, 3, {t0}")
    a(f"s_lshl_b32 {sT2}, {sR6}, 2"); a(f"s_add_u32 {sT2}, {sT2}, {sRG}"); a(f"s_mul_i32 {sT2}, {sT2}, {16*1280}")
    a(f"s_mul_i32 {sT3}, {sCG}, 160"); a(f"s_add_u32 {sT2}, {sT2}, {sT3}")
    vpoll(a, vz, sFHo, 8, t4)
    vm = VmTrack()
    stamp(a, 9)
    for s in range(4):
        for l in a_loads(s, ('A', s), VT): a(l)
    lds_wait(4, 4)
    stamp(a, 8)
    for w in range(4):
        for j in range(5): a(f"ds_read_b128 {ACC[w][j]}, {GB[w // 2]} offset:{(w % 2)*RSZ + j*1024}")
        if w == 2: a("s_waitcnt lgkmcnt(5)")
        if w == 2:
            for j in range(5):
                for h in range(2): a(f"v_pk_add_f32 {ACC[0][j][2*h:2*h+2]}, {ACC[0][j][2*h:2*h+2]}, {ACC[1][j][2*h:2*h+2]}")
    for w in (2, 3):
        a(f"s_waitcnt lgkmcnt({5 if w == 2 else 0})")
        for j in range(5):
            for h in range(2): a(f"v_pk_add_f32 {ACC[0][j][2*h:2*h+2]}, {ACC[0][j][2*h:2*h+2]}, {ACC[w][j][2*h:2*h+2]}")
    for j in range(5):
        for h in range(2): a(f"v_pk_mul_f32 {ACC[0][j][2*h:2*h+2]}, {ACC[0][j][2*h:2*h+2]}, {V(22, 2)} op_sel_hi:[1,0]")
    for s in range(5):
        n = vm.wait_for(lambda t: t == ('A', s))
        a(f"s_waitcnt vmcnt({n})" + (" lgkmcnt(0)" if s == 4 else ""))
        if s < 4: mm(s % 4, [1, 2, 3] if s == 0 else [], a_loads(4, ('A', 4), VT) + b_fromlds(4) if s == 1 else [])
        else:
            for tt in (1, 2, 3, 0):
                for j in range(5):
                    d = ACC[tt][j]
                    a(f"v_mfma_f32_16x16x32_bf16 {d}, {BR[0][j]}, {AR[0][tt]}, {d}")
                    pt = {1: None, 2: None, 3: 1, 0: 2}[tt]
                    if pt: a(f"ds_write_b128 {XW}, {ACC[pt][j]} offset:{(pt-1)*5120 + j*1024}")
            for j in range(5): a(f"ds_write_b128 {XW}, {ACC[3][j]} offset:{2*5120 + j*1024}")
    stamp(a, 10)
    lds_signal(8)
    lds_wait(8, 4)
    RD = [V(152 + 4*i, 4) for i in range(14)] + [V(208, 4)]
    for q in range(3):
        for j in range(5): a(f"ds_read_b128 {RD[q*5+j]}, {XB[q]} offset:{j*1024}")
    for q in range(3):
        a(f"s_waitcnt lgkmcnt({10 - 5*q})")
        for j in range(5):
            for h in range(2): a(f"v_pk_add_f32 {ACC[0][j][2*h:2*h+2]}, {ACC[0][j][2*h:2*h+2]}, {RD[q*5+j][2*h:2*h+2]}")
            if q == 2:
                a(f"v_cvt_pk_bf16_f32 {ACC[1][j][0]}, {ACC[0][j][0]}, {ACC[0][j][1]}")
                a(f"v_cvt_pk_bf16_f32 {ACC[1][j][1]}, {ACC[0][j][2]}, {ACC[0][j][3]}")
                a(f"buffer_store_dwordx2 {ACC[1][j][0:2]}, {t0}, {rOUT}, {sT2} offen offset:{j*32} {OPT['ost']}")
    a.label('P2_FIN')
    if OPT['stamp']:
        a("s_waitcnt vmcnt(0)")
        stamp(a, 11)
    stamp_flush(a)
    a.label(END)
    a("s_endpgm")

def build():
    hdr = open(f'cdna_kernels/{NAME}.s.ref').read().split('; Override launch')[0]
    name = NAME + '_kernel'
    out = hdr + "; @launch grid=(256,1,1) block=(512,1,1) lds=163840\n"
    out += '.amdgcn_target "amdgcn-amd-amdhsa--gfx950"\n.text\n'
    a = Asm(); kernel(a)
    out += f".globl {name}\n.p2align 8\n.type {name},@function\n{name}:\n" + a.finalize()
    print('instrs', len(a.ins), 'nops', a.nnop, file=sys.stderr)
    out += f""".section .rodata,"a"
.p2align 6
.amdhsa_kernel {name}
  .amdhsa_next_free_vgpr 256
  .amdhsa_next_free_sgpr 102
  .amdhsa_accum_offset 256
  .amdhsa_group_segment_fixed_size 0
  .amdhsa_kernarg_size 96
  .amdhsa_user_sgpr_count 2
  .amdhsa_user_sgpr_kernarg_segment_ptr 1
  .amdhsa_system_sgpr_workgroup_id_x 1
.end_amdhsa_kernel
"""
    return out

if __name__ == '__main__':
    outp = sys.argv[1]
    for o in sys.argv[2:]:
        k, v = o.split('=', 1); OPT[k] = int(v) if v.isdigit() else v
    open(outp, 'w').write(build())
```

```python
import sys
sys.path.insert(0, 'gen')
from asmlib import *
NAME = 'gated_mix__linear_kernel_hedgehog__swiglu_ffn__prompt'
AP = 0; BP = 0xA00000; PQ = 0xD00000; KVACC = 0x1200000; FH = 0x1230000; FK = 0x1232000; ZEND = 0x1234000
GOFF = 0x1240000; DUMMY = 0x1250000; STAMP = 0x1300000; WSZ = 0x1600000
LOG2E = 0x3fb8aa3b; NLOG2E = 0xbfb8aa3b
OPT = dict(stamp=0, touch=0, bs="{'p0':(0,2),'p1':(2,5),3:(5,8),7:(8,10)}", pp=0, spnt='', rot2=0, slp=1, early=1, btouch=0, atf='sc1', cpf=0, xfl='', wfl='', il=4, qbar=0, prio=0, dbgt=0, ost='nt')
ST = 'sc1'; LD = 'sc1'

pX, pQKV, pPHI, pWO, pBX, pWG, pWU, pWD = [S(16 + 2 * i, 2) for i in range(8)]
pGW, pOUT, pDBG, pWS = [S(32 + 2 * i, 2) for i in range(4)]
sWV = S(3)
rX, rW, rWS, rA, rB = S(40, 4), S(44, 4), S(48, 4), S(52, 4), S(56, 4)
sC = S(60, 2)
rDBG = S(84, 4)
sFLAG = S(88); sTO = S(89); sNEED = S(7)
GOD = 0x1000
sP = S(14, 2)
XSLOT = 32768; WB = 98304
GWB = 159744; CNT = 161024; ZERO = 161280; KVB = 147456

def srd(a, d, base, size):
    a(f"s_mov_b32 {d[0]}, {base[0]}")
    a(f"s_and_b32 {d[1]}, {base[1]}, 0xffff")
    a(f"s_mov_b32 {d[2]}, {size}")
    a(f"s_mov_b32 {d[3]}, 0x20000")

def sstamp(a, j):
    if OPT['stamp'] != 3: return
    if j > 0: a(f"v_writelane_b32 v255, s92, {40 + j - 1}")
    a("s_memtime s[92:93]")
def stamp(a, idx):
    if not OPT['stamp']: return
    if OPT['stamp'] >= 2 and idx not in (2, 11): return
    a("s_memrealtime s[90:91]")
    a("s_memtime s[92:93]")
    a("s_waitcnt lgkmcnt(0)")
    a(f"v_writelane_b32 v255, s90, {2*idx}")
    a(f"v_writelane_b32 v255, s92, {2*idx+1}")
def stamp_flush(a):
    if not OPT['stamp']: return
    if OPT['dbgt']:
        a("s_not_b32 s90, s10"); a("v_writelane_b32 v255, s90, 0")
        a("v_lshlrev_b32 v254, 1, v0"); a("v_add_u32 v254, 8, v254")
        a("s_mov_b32 exec_lo, 0x05555555"); a("s_mov_b32 exec_hi, 0")
        a(f"buffer_atomic_umax v255, v254, {rDBG}, 0 offen sc1")
        a("s_mov_b64 exec, -1")
        return
    a("v_writelane_b32 v255, s10, 0"); a("v_writelane_b32 v255, s12, 1")
    a("s_lshl_b32 s90, s2, 3")
    a(f"s_add_u32 s90, s90, {sWV}")
    a("s_lshl_b32 s90, s90, 8")
    a(f"s_add_u32 s90, s90, {STAMP + 0x80000}")
    a("v_lshlrev_b32 v254, 2, v0")
    a(f"buffer_store_dword v255, v254, {rWS}, s90 offen")

def vpoll(a, vzero, soff, off, tmp):
    L, D = a.newlabel('POLL'), a.newlabel('POLLD')
    a(f"s_mov_b32 {sTO}, 0x80000")
    a.label(L)
    a(f"buffer_load_dword {tmp}, {vzero}, {rWS}, {soff} offen offset:{off} sc1")
    a("s_waitcnt vmcnt(0)")
    a(f"v_cmp_eq_u32 vcc, 0, {tmp}")
    a("s_nop 0")
    a(f"s_cbranch_vccz {D}")
    a(f"s_sleep {OPT['slp']}")
    a(f"s_sub_u32 {sTO}, {sTO}, 1")
    a(f"s_cbranch_scc0 {L}")
    a.label(D)
def arrive(a, soff, need, z, one, nyounger=0):
    D = a.newlabel('ARR')
    a(f"v_mov_b32 {z}, 0"); a(f"v_mov_b32 {one}, 1")
    a(f"s_waitcnt vmcnt({nyounger})")
    a("s_mov_b64 exec, 1")
    a(f"buffer_atomic_add {one}, {z}, {rWS}, {soff} offen sc0 sc1")
    a("s_waitcnt vmcnt(0)")
    a(f"v_readfirstlane_b32 {sP[0]}, {one}")
    a(f"s_add_u32 {sP[1]}, {soff}, {GOD}")
    a(f"s_cmp_lg_u32 {sP[0]}, {need}")
    a(f"s_cbranch_scc1 {D}")
    a(f"buffer_store_dword {one}, {z}, {rWS}, {sP[1]} offen sc1")
    a.label(D)
    a("s_mov_b64 exec, -1")
def init_poll(a, reg):
    L, D = a.newlabel('POLL'), a.newlabel('POLLD')
    a(f"s_mov_b32 {sTO}, 0x80000")
    a.label(L)
    a(f"v_mov_b32 {reg}, 0")
    a(f"buffer_load_dword {reg}, {reg}, {rDBG}, 0 offen sc1")
    a("s_waitcnt vmcnt(0)")
    a(f"v_readfirstlane_b32 {sP[0]}, {reg}")
    a(f"s_cmp_ge_u32 {sP[0]}, 16")
    a(f"s_cbranch_scc1 {D}")
    a("s_sleep 4")
    a(f"s_sub_u32 {sTO}, {sTO}, 1")
    a(f"s_cbranch_scc0 {L}")
    a.label(D)

def softmax_unit(a, P, E, M, T, O, side=None):
    side = list(side or [])
    a(f"v_max3_f32 {M[0]}, {P[0]}, {P[1]}, {P[2]}")
    a(f"v_min3_f32 {M[2]}, {P[0]}, {P[1]}, {P[2]}")
    for i in range(3, 19, 2):
        a(f"v_max3_f32 {M[0]}, {M[0]}, {P[i]}, {P[i+1]}")
        a(f"v_min3_f32 {M[2]}, {M[2]}, {P[i]}, {P[i+1]}")
    a(f"v_max_f32 {M[0]}, {M[0]}, {P[19]}")
    a(f"v_min_f32 {M[2]}, {M[2]}, {P[19]}")
    a(f"v_mul_f32 {M[0]}, {sC[0]}, {M[0]}")
    a(f"v_mul_f32 {M[2]}, {sC[0]}, {M[2]}")
    for i in range(0, 20, 2):
        a(f"v_pk_fma_f32 {E[i:i+2]}, {P[i:i+2]}, {sC}, {M[0:2]} op_sel_hi:[1,1,0] neg_lo:[0,0,1] neg_hi:[0,0,1]")
        a(f"v_pk_fma_f32 {E[20+i:22+i]}, {P[i:i+2]}, {sC}, {M[2:4]} op_sel_hi:[1,1,0] neg_lo:[1,0,0] neg_hi:[1,0,0]")
    for i in range(40):
        a(f"v_exp_f32 {E[i]}, {E[i]}")
        if side and i % 2 == 1: a(side.pop(0))
    for l in side: a(l)
    a(f"v_pk_add_f32 {T[0:2]}, {E[0:2]}, {E[2:4]}")
    a(f"v_pk_add_f32 {T[2:4]}, {E[20:22]}, {E[22:24]}")
    for i in range(4, 20, 2):
        a(f"v_pk_add_f32 {T[0:2]}, {T[0:2]}, {E[i:i+2]}")
        a(f"v_pk_add_f32 {T[2:4]}, {T[2:4]}, {E[20+i:22+i]}")
    a(f"v_add_f32 {T[0]}, {T[0]}, {T[1]}")
    a(f"v_add_f32 {T[2]}, {T[2]}, {T[3]}")
    a(f"v_rcp_f32 {T[0]}, {T[0]}")
    a(f"v_rcp_f32 {T[2]}, {T[2]}")
    for i in range(0, 20, 2):
        a(f"v_pk_mul_f32 {E[i:i+2]}, {E[i:i+2]}, {T[0:2]} op_sel_hi:[1,0]")
        a(f"v_pk_mul_f32 {E[20+i:22+i]}, {E[20+i:22+i]}, {T[2:4]} op_sel_hi:[1,0]")
    for i in range(20):
        a(f"v_cvt_pk_bf16_f32 {O[i]}, {E[2*i]}, {E[2*i+1]}")

def kernel(a):
    END = 'K_END'
    BS = eval(OPT['bs'])
    a("s_cmp_ge_u32 s2, 256")
    a(f"s_cbranch_scc1 {END}")
    if OPT['stamp']:
        a("s_memrealtime s[10:11]"); a("s_memtime s[12:13]"); a("v_mov_b32 v255, 0")
    a("s_load_dwordx16 s[16:31], s[0:1], 0")
    a("s_load_dwordx8 s[32:39], s[0:1], 64")
    lane = V(0)
    tid, t0, t1, t2, t3, t4 = V(1), V(2), V(3), V(4), V(5), V(6)
    vqd, vr, vc, vl15 = V(7), V(8), V(9), V(10)
    vx = [V(11 + i) for i in range(4)]
    xa = [[V(15), V(16)], [V(17), V(18)]]
    tdum = V(19); ta = V(20, 2); tb = V(22, 2)
    R0 = 24
    sTY, sRB, sXK, sWK, sM, sT0, sT1, sT2, sT3, sRG, sHI, sID, sMW, sC8, sR4 = [S(62 + i) for i in range(15)]
    a(f"v_lshrrev_b32 {t0}, 6, v0")
    a(f"v_mov_b32 {tid}, v0")
    a(f"v_readfirstlane_b32 {sWV}, {t0}")
    a(f"v_and_b32 {lane}, 63, v0")
    a(f"s_bfe_u32 {sC8}, s2, 0x30003")
    a(f"s_lshr_b32 {sR4}, s2, 6")
    a(f"s_and_b32 {sRB}, s2, 1")
    a(f"s_lshl_b32 {sRB}, {sRB}, 2")
    a(f"s_add_u32 {sRB}, {sRB}, {sR4}")
    a(f"s_bfe_u32 {sT0}, s2, 0x20001")
    a(f"s_and_b32 {sRG}, {sWV}, 3")
    a(f"s_lshr_b32 {sHI}, {sWV}, 2")
    a(f"v_lshrrev_b32 {vqd}, 4, {lane}")
    a(f"v_bfe_u32 {vr}, {lane}, 2, 2")
    a(f"v_and_b32 {vc}, 3, {lane}")
    a(f"v_and_b32 {vl15}, 15, {lane}")
    a(f"v_lshrrev_b32 {t0}, 3, {lane}")
    a(f"v_mul_u32_u24 {t0}, 1280, {t0}")
    a(f"v_and_b32 {t1}, 7, {lane}")
    a(f"v_xor_b32 {t1}, {t1}, {vqd}")
    a(f"v_lshl_add_u32 {vx[0]}, {t1}, 4, {t0}")
    a(f"v_xor_b32 {t1}, 4, {t1}")
    a(f"v_lshl_add_u32 {vx[1]}, {t1}, 4, {t0}")
    a(f"v_add_u32 {vx[1]}, {8*1280-1024}, {vx[1]}")
    a(f"v_add_u32 {vx[2]}, {16*1280-2048}, {vx[0]}")
    a(f"v_add_u32 {vx[3]}, {16*1280-2048}, {vx[1]}")
    a(f"s_mul_i32 {sXK}, {sRB}, {256*1280}")
    a(f"s_mul_i32 {sT1}, {sWV}, {32*1280}")
    a(f"s_add_u32 {sXK}, {sXK}, {sT1}")
    a(f"s_lshl_b32 {sM}, {sWV}, 12")
    a(f"v_lshlrev_b32 {t2}, 3, {tid}")
    a(f"v_min_u32 {t2}, {163840 - CNT - 8}, {t2}")
    a(f"v_add_u32 {t2}, {CNT}, {t2}")
    a(f"v_mov_b32 {ta[0]}, 0"); a(f"v_mov_b32 {ta[1]}, 0")
    a(f"ds_write_b64 {t2}, {ta}")
    a(f"s_mul_i32 {sID}, {sT0}, 9"); a(f"s_add_u32 {sID}, {sID}, 1"); a(f"s_lshr_b32 {sID}, {sID}, 1")
    a(f"s_add_u32 {sID}, {sID}, {sC8}"); a(f"s_sub_u32 {sID}, {sID}, 3")
    a(f"s_and_b32 {sT1}, {sT0}, 1"); a(f"s_add_u32 {sT1}, {sT1}, {sC8}")
    a(f"s_mov_b32 {sC[0]}, {LOG2E:#x}")
    a(f"s_mov_b32 {sC[1]}, {LOG2E:#x}")
    a("s_waitcnt lgkmcnt(0)")
    srd(a, rX, pX, 2048 * 1280)
    srd(a, rWS, pWS, WSZ)
    srd(a, rDBG, pDBG, 256)
    if OPT['cpf']:
        a(f"s_cmp_lg_u32 {sWV}, 7"); a("s_cbranch_scc1 NOCPF")
        a("s_getpc_b64 s[4:5]")
        a("s_and_b32 s4, s4, 0xffffff00")
        a("s_lshr_b32 s6, s2, 3"); a(f"s_mul_i32 s6, s6, {OPT['cpf']*128}")
        a(f"v_lshlrev_b32 {t0}, 7, {lane}"); a(f"v_add_u32 {t0}, s6, {t0}")
        a(f"s_mov_b64 exec, {(1 << OPT['cpf']) - 1:#x}")
        a(f"global_load_dword v31, {t0}, s[4:5]")
        a("s_mov_b64 exec, -1")
        a.label("NOCPF")
    if OPT['prio']:
        a(f"s_cmp_eq_u32 {sHI}, 0"); a("s_cbranch_scc1 NOPRIO"); a("s_setprio 1"); a.label("NOPRIO")
    a(f"s_cmp_lt_u32 {sC8}, 3")
    a("s_cbranch_scc1 R_QKV")
    a(f"s_cmp_eq_u32 {sT1}, 8")
    a("s_cbranch_scc1 R_SPARE")

    def x_dma(vm, blk, half):
        l = [f"s_add_u32 m0, {sM}, {(blk % 3) * XSLOT}"]
        if half == 0 and blk > 0: l.append(f"s_add_u32 {sXK}, {sXK}, 128")
        for n in (2 * half, 2 * half + 1):
            l.append(f"buffer_load_dwordx4 {vx[n]}, {rX}, {sXK} offen offset:{n*1024} {OPT['xfl']} lds")
            vm.issue(('X', blk))
        return l
    def x_addr_setup():
        a(f"v_lshrrev_b32 {t0}, 1, {vl15}")
        a(f"v_xor_b32 {t0}, {t0}, {vqd}")
        a(f"v_lshlrev_b32 {t0}, 4, {t0}")
        a(f"v_lshl_add_u32 {t0}, {vl15}, 7, {t0}")
        a(f"s_lshl_b32 {sT0}, {sRG}, 13")
        a(f"v_add_u32 {xa[0][0]}, {sT0}, {t0}")
        a(f"v_xor_b32 {xa[0][1]}, 64, {xa[0][0]}")
        a(f"v_add_u32 {xa[1][0]}, 0x10000, {xa[0][0]}")
        a(f"v_add_u32 {xa[1][1]}, 0x10000, {xa[0][1]}")
    def x_reads(XF, step):
        blk, kk = step // 2, step % 2
        sl = blk % 3
        return [f"ds_read_b128 {XF[tt]}, {xa[sl // 2][kk]} offset:{(sl % 2) * XSLOT + tt * 2048}" for tt in range(4)]
    def burst(vm, b0, b1):
        if not OPT['touch']: return []
        l = []
        for st, reg in ((0, ta), (5, tb)):
            lo, hi = max(b0, st) - st, min(b1, st + 5) - st
            if lo >= hi: continue
            m = ((1 << (12 * hi)) - 1) & ~((1 << (12 * lo)) - 1)
            l += [f"s_mov_b32 exec_lo, {m & 0xffffffff:#x}", f"s_mov_b32 exec_hi, {m >> 32:#x}", f"global_load_dword {tdum}, {reg}, off"]
            vm.issue('T')
        l.append("s_mov_b64 exec, -1")
        return l
    def touch_setup(pw0, pw1, rowbytes, off0, off1, seg):
        if not OPT['touch']: return
        l12, bi = tb[0], tb[1]; tinc = tdum
        a(f"v_mul_u32_u24 {bi}, 43, {lane}"); a(f"v_lshrrev_b32 {bi}, 9, {bi}")
        a(f"v_mul_u32_u24 {l12}, 12, {bi}"); a(f"v_sub_u32 {l12}, {lane}, {l12}")
        a(f"s_lshl_b32 {sT2}, {sRB}, 3"); a(f"s_add_u32 {sT2}, {sT2}, {sC8}"); a(f"s_lshl_b32 {sT2}, {sT2}, 3"); a(f"s_add_u32 {sT2}, {sT2}, {sWV}")
        a(f"s_mul_i32 {sT2}, {sT2}, {4*1280}")
        a(f"v_mul_u32_u24 {t0}, 1280, {l12}")
        a(f"v_add_u32 {t0}, {sT2}, {t0}")
        a(f"s_lshl_b32 {sT0}, {sR4}, 3"); a(f"s_add_u32 {sT0}, {sT0}, {sWV}"); a(f"s_mul_i32 {sT0}, {sT0}, {2*rowbytes}")
        a(f"v_subrev_u32 {t1}, 4, {l12}")
        a(f"v_bfe_u32 {t2}, {t1}, 2, 1")
        a(f"v_mul_u32_u24 {t2}, {rowbytes}, {t2}")
        a(f"v_and_b32 {t3}, 1, {t1}")
        a(f"v_mul_u32_u24 {t3}, {seg-4}, {t3}")
        a(f"v_add3_u32 {t2}, {t2}, {t3}, {sT0}")
        a(f"v_and_b32 {t3}, 2, {t1}")
        a(f"v_cmp_eq_u32 vcc, 0, {t3}")
        a(f"v_mov_b32 {t3}, {off1}"); a(f"v_mov_b32 {t4}, {off0}")
        a(f"v_cndmask_b32 {t3}, {t3}, {t4}, vcc")
        a(f"v_add_u32 {t2}, {t2}, {t3}")
        a(f"v_mov_b32 {t3}, {pw1[0]}"); a(f"v_mov_b32 {t4}, {pw0[0]}"); a(f"v_cndmask_b32 {ta[0]}, {t3}, {t4}, vcc")
        a(f"v_mov_b32 {t3}, {pw1[1]}"); a(f"v_mov_b32 {t4}, {pw0[1]}"); a(f"v_cndmask_b32 {ta[1]}, {t3}, {t4}, vcc")
        a(f"v_cmp_gt_u32 vcc, 4, {l12}")
        a(f"v_mov_b32 {t3}, {pX[0]}"); a(f"v_mov_b32 {t4}, {pX[1]}")
        a(f"v_cndmask_b32 {t2}, {t2}, {t0}, vcc")
        a(f"v_cndmask_b32 {ta[0]}, {ta[0]}, {t3}, vcc")
        a(f"v_cndmask_b32 {ta[1]}, {ta[1]}, {t4}, vcc")
        a(f"v_mov_b32 {t3}, {64*rowbytes}"); a(f"v_mov_b32 {t4}, 128"); a(f"v_cndmask_b32 {tinc}, {t3}, {t4}, vcc")
        a(f"v_mad_u32_u24 {t2}, {tinc}, {bi}, {t2}")
        a(f"v_add_co_u32 {ta[0]}, vcc, {ta[0]}, {t2}")
        a(f"v_mul_u32_u24 {t2}, 5, {tinc}")
        a(f"v_addc_co_u32 {ta[1]}, vcc, 0, {ta[1]}, vcc")
        a(f"v_add_co_u32 {tb[0]}, vcc, {ta[0]}, {t2}")
        a(f"v_addc_co_u32 {tb[1]}, vcc, 0, {ta[1]}, vcc")
    def step_body(mains, lblk, pre=[]):
        for l in pre: a(l)
        if not lblk:
            for m in mains: a(m)
            return
        if OPT['pp'] == 2:
            rds = [l for l in lblk if l.startswith('ds_read')]; oth = [l for l in lblk if not l.startswith('ds_read')]
            l1, l2 = a.newlabel('PP'), a.newlabel('PP')
            if oth:
                a(f"s_cmp_eq_u32 {sHI}, 0"); a(f"s_cbranch_scc1 {l1}")
                for l in oth: a(l)
                a.label(l1)
            k = 0
            for i, m in enumerate(mains):
                a(m)
                while k < len(rds) and k < (i + 1) * max(1, -(-len(rds) // len(mains))):
                    a(rds[k]); k += 1
            if oth:
                a(f"s_cmp_eq_u32 {sHI}, 0"); a(f"s_cbranch_scc0 {l2}")
                for l in oth: a(l)
                a.label(l2)
        elif OPT['pp']:
            l1, l2 = a.newlabel('PP'), a.newlabel('PP')
            a(f"s_cmp_eq_u32 {sHI}, 0"); a(f"s_cbranch_scc1 {l1}")
            for l in lblk: l() if callable(l) else a(l)
            a.label(l1)
            for m in mains: a(m)
            a(f"s_cmp_eq_u32 {sHI}, 0"); a(f"s_cbranch_scc0 {l2}")
            for l in lblk: l() if callable(l) else a(l)
            a.label(l2)
        else:
            rds = [l for l in lblk if l.startswith('ds_read')]; oth = [l for l in lblk if not l.startswith('ds_read')]
            units = []; cur = []
            for l in oth:
                cur.append(l)
                if 'buffer_' in l or 'ds_write' in l: units.append(cur); cur = []
            if cur: units.append(cur)
            n = len(mains); mode = OPT['il']
            pos = {}
            if mode == 0:
                seq = [[r] for r in rds] + units
                for k, u in enumerate(seq): pos.setdefault(min(n - 1, k * n // max(len(seq), n)), []).extend(u)
            elif mode == 1:
                for k, u in enumerate(units): pos.setdefault(min(n - 1, 2 * k), []).extend(u)
                for k, r in enumerate(rds): pos.setdefault(min(n - 1, k * min(n, len(rds)) // len(rds) if len(rds) > n else k), []).append(r)
            elif mode == 2:
                for k, r in enumerate(rds): pos.setdefault(min(n - 1, k // 2), []).append(r)
                for k, u in enumerate(units): pos.setdefault(min(n - 1, len(rds) // 2 + 2 * k), []).extend(u)
            elif mode == 3:
                for k, u in enumerate(units): pos.setdefault(min(n - 1, 1 + k * (2 * n // 3) // max(1, len(units))), []).extend(u)
                for k, r in enumerate(rds): pos.setdefault(min(n - 1, k * min(n, len(rds)) // len(rds) if len(rds) > n else k), []).append(r)
            elif mode == 4:
                k = 0
                for i in range(n):
                    while k < len(lblk) and k < (i + 1) * len(lblk) // n + 1:
                        pos.setdefault(i, []).append(lblk[k]); k += 1
            for i, m in enumerate(mains):
                a(m)
                for l in pos.get(i, []): a(l)
    def init_check_issue(reg):
        return [f"v_mov_b32 {reg}, 0", f"buffer_load_dword {reg}, {reg}, {rDBG}, 0 offen sc1"]
    def init_check(reg):
        ok = a.newlabel('INITOK')
        a(f"v_readfirstlane_b32 {sP[0]}, {reg}")
        a(f"s_cmp_ge_u32 {sP[0]}, 16")
        a(f"s_cbranch_scc1 {ok}")
        init_poll(a, reg)
        a.label(ok)
    sR6, sCG, sAB, sBB, sSB, sSR, sSN, sLim = [S(94 + i) for i in range(8)]
    sLB = S(6)
    vo, vo4 = V(20), V(21)
    BRb = [208, 228, 32, 52]
    BR = [[V(BRb[b] + 4 * j, 4) for j in range(5)] for b in range(4)]
    RSZ = 35840
    def p2_setup():
        r = OPT['rot2']
        return [f"s_and_b32 {sR6}, s2, 7", f"s_lshl_b32 {sR6}, {sR6}, 2", "s_lshr_b32 s4, s2, 6", f"s_add_u32 {sR6}, {sR6}, s4",
             f"s_bfe_u32 {sCG}, s2, 0x30003", f"v_lshlrev_b32 {vo}, 4, {lane}", f"v_add_u32 {vo4}, 4096, {vo}",
             f"s_mul_i32 {sAB}, {sR6}, {74*4096}", f"s_mul_i32 {sBB}, {sCG}, {74*5120}", f"s_add_u32 {sBB}, {sBB}, {BP}",
             f"s_mov_b32 {rB[0]}, {pWS[0]}", f"s_and_b32 {rB[1]}, {pWS[1]}, 0xffff", f"s_mov_b32 {rB[2]}, {WSZ}", f"s_mov_b32 {rB[3]}, 0x20000",
             f"s_mul_i32 s4, {sCG}, {7*r}", "s_lshr_b32 s4, s4, 2",
             f"s_mul_i32 s5, {sCG}, {5*r}", "s_lshr_b32 s5, s5, 3",
             f"s_mul_i32 {sLB}, {sRG}, {RSZ}",
             f"s_cmp_eq_u32 {sHI}, 0\ns_cselect_b32 {sSR}, s5, s4\ns_cselect_b32 {sSN}, 5, 14\ns_cselect_b32 {sSB}, 54, 0\ns_cselect_b32 {sLim}, 100, 54\ns_cselect_b32 s4, 30720, 0",
             f"s_add_u32 {sSB}, {sSB}, {sRG}", f"s_add_u32 {sLB}, {sLB}, s4"]
    def step_of(i, d, tmp):
        return [f"s_add_u32 {d}, {sSR}, {i}", f"s_sub_u32 {tmp}, {d}, {sSN}", f"s_cmp_ge_u32 {d}, {sSN}\ns_cselect_b32 {d}, {tmp}, {d}",
                f"s_lshl2_add_u32 {d}, {d}, {sSB}"]
    def b_addr(i):
        return step_of(i, 's4', 's5') + [f"s_cmp_lt_u32 s4, {sLim}\ns_cselect_b32 {rB[2]}, {WSZ}, 0", f"s_mul_i32 s4, s4, 5120", f"s_add_u32 s4, s4, {sBB}"]
    def b_reg(vm, i, tag):
        b = i % 4
        l = b_addr(i)
        for j in range(5):
            if j < 4: l.append(f"buffer_load_dwordx4 {BR[b][j]}, {vo}, {rB}, s4 offen offset:{j*1024} {LD}")
            else: l.append(f"buffer_load_dwordx4 {BR[b][j]}, {vo4}, {rB}, s4 offen {LD}")
            vm.issue(tag)
        return l
    GL = [4, 6, 7, 9, 10, 12]
    def b_lds(vm, k):
        k -= 4
        i = GL[k]
        l = b_addr(i) + [f"s_add_u32 m0, {sLB}, {k*5120}"]
        for j in range(4):
            l.append(f"buffer_load_dwordx4 {vo}, {rB}, s4 offen offset:{j*1024} {LD} lds"); vm.issue('BL')
        l.append(f"s_add_u32 m0, {sLB}, {k*5120 + 4096}")
        l.append(f"buffer_load_dwordx4 {vo4}, {rB}, s4 offen {LD} lds"); vm.issue('BL')
        return l
    def b_lds_hi(vm, lst):
        lb = a.newlabel('BLH')
        a(f"s_cmp_eq_u32 {sHI}, 0"); a(f"s_cbranch_scc1 {lb}")
        for i in lst:
            for l in b_lds(vm, i): a(l)
        a.label(lb)
    sPF = S(8)
    def b_touch(vm):
        if not OPT['btouch']: return []
        vm.issue('T'); vm.issue('T')
        return ["s_lshr_b32 s4, s2, 6", "s_lshl_b32 s4, s4, 3", f"s_add_u32 s4, s4, {sWV}", f"s_mul_i32 s4, s4, {93*128}", f"s_add_u32 s4, s4, {sBB}",
                f"v_lshlrev_b32 {V(22)}, 7, {lane}", f"buffer_load_dword {tdum}, {V(22)}, {rWS}, s4 offen {LD}", f"s_add_u32 s4, s4, 8192",
                f"s_mov_b64 exec, 0x1fffffff\nbuffer_load_dword {tdum}, {V(22)}, {rWS}, s4 offen {LD}\ns_mov_b64 exec, -1"]
    def flag_store(need):
        stamp(a, 3)
        arrive(a, sFLAG, need, t0, t1)
        a("s_setprio 0")
        stamp(a, 4)

    vw = [V(R0), V(R0 + 1)]; wa = [V(R0 + 2), V(R0 + 3), V(R0 + 4)]; vchk = V(R0 + 5)
    FB = [32, 72]
    XF = [[V(FB[b] + 4 * tt, 4) for tt in range(4)] for b in range(2)]
    WF = [[V(FB[b] + 16 + 4 * c, 4) for c in range(6)] for b in range(2)]
    ACC = [[V(112 + (c * 4 + tt) * 4, 4) for tt in range(4)] for c in range(6)]
    vm = VmTrack()
    a(f"s_mul_i32 {sT3}, {sID}, 192")
    touch_setup(pWG, pWU, 3456, sT3, sT3, 192)
    for l in burst(vm, *BS['p0']): a(l)
    a(f"s_bitcmp1_b32 {sWV}, 0")
    a(f"s_cselect_b32 {rW[0]}, {pWU[0]}, {pWG[0]}")
    a(f"s_cselect_b32 {rW[1]}, {pWU[1]}, {pWG[1]}")
    a(f"s_and_b32 {rW[1]}, {rW[1]}, 0xffff")
    a(f"s_mov_b32 {rW[2]}, {640*3456}")
    a(f"s_mov_b32 {rW[3]}, 0x20000")
    a(f"s_bfe_u32 {sT0}, {sWV}, 0x10001")
    a(f"s_lshl_b32 {sT1}, {sT0}, 1")
    for n in range(2):
        a(f"v_add_u32 {t0}, {64*n}, {lane}")
        a(f"v_mul_u32_u24 {t1}, 43, {t0}")
        a(f"v_lshrrev_b32 {t1}, 9, {t1}")
        a(f"v_mul_u32_u24 {t2}, 12, {t1}")
        a(f"v_sub_u32 {t2}, {t0}, {t2}")
        a(f"v_lshrrev_b32 {t3}, 2, {t2}")
        a(f"v_cmp_eq_u32 vcc, 1, {t3}")
        a(f"v_mov_b32 {t3}, {sT1}")
        a(f"v_mov_b32 {t4}, {sT0}")
        a(f"v_cndmask_b32 {t3}, {t3}, {t4}, vcc")
        a(f"v_xor_b32 {t2}, {t2}, {t3}")
        a(f"v_mul_u32_u24 {t1}, 3456, {t1}")
        a(f"v_lshl_add_u32 {vw[n]}, {t2}, 4, {t1}")
        if n: a(f"v_subrev_u32 {vw[n]}, 1024, {vw[n]}")
    a(f"s_lshr_b32 {sT0}, {sWV}, 1")
    a(f"s_mul_i32 {sWK}, {sT0}, {8*3456}")
    a(f"s_add_u32 {sWK}, {sWK}, {sT3}")
    a(f"s_mul_i32 {sMW}, {sT0}, 1536")
    a(f"s_and_b32 {sT1}, {sWV}, 1")
    a(f"s_mul_i32 {sT1}, {sT1}, 6144")
    a(f"s_add_u32 {sMW}, {sMW}, {sT1}")
    def w_dma(step):
        l = [f"s_add_u32 m0, {sMW}, {WB + (step % 5) * 12288}"] + ([f"s_add_u32 {sWK}, {sWK}, 110592"] if step else []) + [
             f"buffer_load_dwordx4 {vw[0]}, {rW}, {sWK} offen {OPT['wfl']} lds",
             "s_mov_b32 exec_hi, 0\n"
             f"buffer_load_dwordx4 {vw[1]}, {rW}, {sWK} offen offset:1024 {OPT['wfl']} lds\n"
             "s_mov_b32 exec_hi, -1"]
        vm.issue(('W', step)); vm.issue(('W', step))
        return l
    if OPT['touch']: a("s_barrier")
    for l in x_dma(vm, 0, 0) + x_dma(vm, 0, 1) + w_dma(0) + w_dma(1): a(l)
    x_addr_setup()
    a(f"v_lshl_add_u32 {t0}, {vqd}, 3, {vr}")
    a(f"v_mul_u32_u24 {t0}, 192, {t0}")
    a(f"v_add_u32 {t0}, {WB}, {t0}")
    a(f"v_and_b32 {t1}, 1, {vqd}")
    a(f"v_lshlrev_b32 {t2}, 5, {t1}")
    a(f"v_lshl_add_u32 {t2}, {vc}, 3, {t2}")
    a(f"s_lshl_b32 {sT0}, {sHI}, 7")
    a(f"v_add3_u32 {wa[0]}, {t0}, {t2}, {sT0}")
    a(f"v_xor_b32 {wa[1]}, 32, {wa[0]}")
    a(f"v_and_b32 {t2}, 2, {vc}")
    a(f"v_add_u32 {t2}, {sHI}, {t2}")
    a(f"v_xor_b32 {t2}, {t2}, {t1}")
    a(f"v_lshlrev_b32 {t2}, 4, {t2}")
    a(f"v_and_b32 {t3}, 1, {vc}")
    a(f"v_lshl_add_u32 {t2}, {t3}, 3, {t2}")
    a(f"v_add3_u32 {wa[2]}, {t0}, {t2}, 64")
    def w_reads(WFb, step):
        return [f"ds_read_b64_tr_b16 {WFb[m*3+i][2*rd:2*rd+2]}, {wa[i]} offset:{(step % 5) * 12288 + m * 6144 + rd * 768}"
                for m in range(2) for i in range(3) for rd in range(2)]
    if 'p1' in BS:
        a("s_barrier")
        for l in burst(vm, *BS['p1']): a(l)
    n = vm.wait_for(lambda t: t in (('X', 0), ('W', 0)))
    a(f"s_waitcnt vmcnt({n})")
    a("s_barrier")
    stamp(a, 1)
    for l in x_reads(XF[0], 0) + w_reads(WF[0], 0): a(l)
    for l in x_dma(vm, 1, 0) + x_dma(vm, 1, 1) + w_dma(2): a(l)
    for j in range(20):
        cur, nxt = j & 1, (j & 1) ^ 1
        if j < 19:
            n = vm.wait_for(lambda t: t in (('X', (j + 1) // 2), ('W', j + 1)) or (j == 15 and t == 'chk'))
            a(f"s_waitcnt vmcnt({n}) lgkmcnt(0)")
        else:
            a("s_waitcnt lgkmcnt(0)")
        if j == 15: init_check(vchk)
        a("s_barrier")
        sstamp(a, j)
        mains = [f"v_mfma_f32_16x16x32_bf16 {ACC[c][tt]}, {WF[cur][c]}, {XF[cur][tt]}, {'0' if j == 0 else ACC[c][tt]}" for c in range(6) for tt in range(4)]
        pre = burst(vm, *BS[j]) if j in BS else []
        lblk = []
        if j < 19:
            lblk += x_reads(XF[nxt], j + 1) + w_reads(WF[nxt], j + 1)
            if j == 0: lblk += w_dma(3) + x_dma(vm, 2, 0) + x_dma(vm, 2, 1) + w_dma(4)
            xb = (j - 1) // 2 + 3 if j >= 1 else 99
            if xb <= 9: lblk += x_dma(vm, xb, (j - 1) % 2)
            if j == 13: lblk += init_check_issue(vchk); vm.issue('chk')
            if j + 5 <= 19: lblk += w_dma(j + 5)
            if OPT['early']:
                if j == 15: lblk += p2_setup() + b_touch(vm)
                if j == 17: lblk += b_reg(vm, 0, 'B')
                if j == 18: lblk += b_reg(vm, 1, 'B')
        elif OPT['early']:
            lblk += b_reg(vm, 2, 'B') + b_reg(vm, 3, 'B')
        step_body(mains, lblk, pre)
    stamp(a, 2)
    a("s_setprio 2")
    sN = S(78, 2)
    a(f"s_mov_b32 {sN[0]}, {NLOG2E:#x}")
    a(f"s_mov_b32 {sN[1]}, {NLOG2E:#x}")
    a(f"s_lshl_b32 {sT3}, {sRB}, 2")
    a(f"s_add_u32 {sT3}, {sT3}, {sRG}")
    a(f"s_mul_i32 {sT0}, {sT3}, 74")
    a(f"s_mul_i32 {sT1}, {sID}, 3")
    a(f"s_add_u32 {sT0}, {sT0}, {sT1}")
    a(f"s_lshl_b32 {sT0}, {sT0}, 12")
    a(f"s_lshl_b32 {sT1}, {sHI}, 13")
    a(f"s_add_u32 {sT1}, {sT0}, {sT1}")
    a(f"s_lshl_b32 {sT2}, {sHI}, 9")
    a(f"s_add_u32 {sT2}, {sT2}, {sT0}")
    a(f"s_add_u32 {sT2}, {sT2}, 4096")
    a(f"s_lshl_b32 {sFLAG}, {sT3}, 7")
    a(f"s_add_u32 {sFLAG}, {sFLAG}, {FH}")
    a(f"v_lshlrev_b32 {t0}, 4, {lane}")
    a(f"v_and_b32 {t1}, 31, {lane}")
    a(f"v_lshlrev_b32 {t1}, 4, {t1}")
    a(f"v_lshrrev_b32 {t2}, 5, {lane}")
    a(f"v_lshl_add_u32 {t1}, {t2}, 10, {t1}")
    tmp = [V(FB[1] + 4 * i, 4) for i in range(2)]
    outs = [V(FB[1] + 8 + 4 * i, 4) for i in range(6)]
    def silu2(G0, U0, G1, U1, o):
        GU = ((G0, U0, tmp[0]), (G1, U1, tmp[1]))
        for G, U, T in GU:
            for h in range(2): a(f"v_pk_mul_f32 {T[2*h:2*h+2]}, {G[2*h:2*h+2]}, {sN}")
        for G, U, T in GU:
            for k in range(4): a(f"v_exp_f32 {T[k]}, {T[k]}")
        for G, U, T in GU:
            for h in range(2): a(f"v_pk_mul_f32 {G[2*h:2*h+2]}, {G[2*h:2*h+2]}, {U[2*h:2*h+2]}")
        for G, U, T in GU:
            for h in range(2): a(f"v_pk_add_f32 {T[2*h:2*h+2]}, {T[2*h:2*h+2]}, 1.0 op_sel_hi:[1,0]")
        for G, U, T in GU:
            for k in range(4): a(f"v_rcp_f32 {T[k]}, {T[k]}")
        for G, U, T in GU:
            for h in range(2): a(f"v_pk_mul_f32 {G[2*h:2*h+2]}, {G[2*h:2*h+2]}, {T[2*h:2*h+2]}")
        for q, (G, U, T) in enumerate(GU):
            for h in range(2): a(f"v_cvt_pk_bf16_f32 {o[2*q+h]}, {G[2*h]}, {G[2*h+1]}")
    for tt in range(4):
        o = outs[tt]
        if OPT['early']:
            if tt == 0:
                for l in b_lds(vm, 4): a(l)
                b_lds_hi(vm, [5])
            elif tt < 3: b_lds_hi(vm, [4 + 2*tt, 5 + 2*tt])
        silu2(ACC[0][tt], ACC[3][tt], ACC[1][tt], ACC[4][tt], o)
        a(f"buffer_store_dwordx4 {o}, {t0}, {rWS}, {sT1} offen offset:{tt*1024} {ST}")
    for tp in range(2):
        o = outs[4 + tp]
        silu2(ACC[2][2*tp], ACC[5][2*tp], ACC[2][2*tp+1], ACC[5][2*tp+1], o)
        a(f"v_permlane32_swap_b32 {o[0]}, {o[2]}")
        a(f"v_permlane32_swap_b32 {o[1]}, {o[3]}")
        a(f"buffer_store_dwordx4 {o}, {t1}, {rWS}, {sT2} offen offset:{tp*2048} {ST}")
    flag_store(35)
    a(f"s_mov_b32 {sPF}, {0 if OPT['early'] else 7}")
    a("s_branch P2")

    a.label('R_QKV')
    vm = VmTrack()
    vw = [V(R0), V(R0 + 1), V(R0 + 2)]; wa = V(R0 + 3); pa = V(R0 + 4); vchk = V(R0 + 5); vgw = V(R0 + 6)
    FB = [32, 68]
    XF = [[V(FB[b] + 4 * tt, 4) for tt in range(4)] for b in range(2)]
    WF = [[V(FB[b] + 16 + 4 * c, 4) for c in range(5)] for b in range(2)]
    ACC = [V(104 + 20 * tt, 20) for tt in range(4)]
    pf4 = [V(32 + 4 * i, 4) for i in range(9)] + [V(196, 4)]
    pf2 = [V(200, 2), V(202, 2), V(204, 2), V(206, 2), V(248, 2)]
    PF = [[pf4[2 * t], pf4[2 * t + 1], pf2[t]] for t in range(5)]
    WP = V(184, 4); GWF = V(188, 4); GA = V(192, 4)
    sC0, sC1, sLo, sHi2, sISQ, sHB, sGD = [S(77 + i) for i in range(7)]
    PHW = 135168; PHB = 0; VVB = 90112; PS = 352
    srd(a, rW, pQKV, 640 * 3840)
    srd(a, rA, pPHI, 32 * 800)
    a(f"s_lshl_b32 {sID}, {sT0}, 1"); a(f"s_add_u32 {sID}, {sID}, {sC8}")
    a(f"s_mul_i32 {sC0}, {sID}, 160")
    a(f"s_add_u32 {sC1}, {sC0}, 2560")
    a(f"s_add_u32 {sC0}, {sC0}, 1280")
    a(f"s_lshl_b32 {sHB}, {sID}, 2")
    a(f"s_mul_i32 {sT1}, {sT0}, 320")
    a(f"s_add_u32 {sT2}, {sT1}, 160")
    a(f"s_lshl_b32 {sT3}, {sT0}, 3")
    a(f"s_cmp_eq_u32 {sC8}, 2")
    a(f"s_cselect_b32 {sC0}, {sT1}, {sC0}")
    a(f"s_cselect_b32 {sC1}, {sT2}, {sC1}")
    a(f"s_cselect_b32 {sHB}, {sT3}, {sHB}")
    a(f"s_cselect_b32 {sISQ}, 1, 0")
    a(f"s_bitcmp1_b32 {sWV}, 0")
    a(f"s_cselect_b32 {sLo}, {sC1}, {sC0}")
    a(f"s_cselect_b32 {sHi2}, {sC0}, {sC1}")
    a(f"s_sub_u32 {sHi2}, {sHi2}, 160")
    touch_setup(pQKV, pQKV, 3840, sC0, sC1, 160)
    for l in burst(vm, *BS['p0']): a(l)
    for n in range(3):
        a(f"v_add_u32 {t0}, {64*n}, {lane}")
        a(f"v_mul_u32_u24 {t1}, 205, {t0}")
        a(f"v_lshrrev_b32 {t1}, 12, {t1}")
        a(f"v_mul_u32_u24 {t2}, 20, {t1}")
        a(f"v_sub_u32 {t2}, {t0}, {t2}")
        a(f"v_cmp_le_u32 vcc, 10, {t2}")
        a(f"v_mov_b32 {t3}, {sLo}")
        a(f"v_mov_b32 {t4}, {sHi2}")
        a(f"v_cndmask_b32 {t3}, {t3}, {t4}, vcc")
        a(f"v_mul_u32_u24 {t1}, 3840, {t1}")
        a(f"v_lshl_add_u32 {t1}, {t2}, 4, {t1}")
        a(f"v_add_u32 {vw[n]}, {t1}, {t3}")
        if n: a(f"v_subrev_u32 {vw[n]}, {1024*n}, {vw[n]}")
    a(f"s_mul_i32 {sWK}, {sWV}, {8*3840}")
    a(f"s_mul_i32 {sMW}, {sWV}, 2560")
    def w_dma2(blk):
        l = [f"s_add_u32 m0, {sMW}, {WB + (blk % 3) * 20480}"] + ([f"s_add_u32 {sWK}, {sWK}, 245760"] if blk else []) + [
             f"buffer_load_dwordx4 {vw[0]}, {rW}, {sWK} offen {OPT['wfl']} lds",
             f"buffer_load_dwordx4 {vw[1]}, {rW}, {sWK} offen offset:1024 {OPT['wfl']} lds",
             "s_mov_b32 exec_hi, 0\n"
             f"buffer_load_dwordx4 {vw[2]}, {rW}, {sWK} offen offset:2048 {OPT['wfl']} lds\n"
             "s_mov_b32 exec_hi, -1"]
        for _ in range(3): vm.issue(('W', blk))
        return l
    a(f"v_lshlrev_b32 {t0}, 4, {tid}")
    a(f"s_mul_i32 {sT0}, {sHB}, 800")
    a(f"v_add_u32 {t0}, {sT0}, {t0}")
    a(f"buffer_load_dwordx4 {WP}, {t0}, {rA}, 0 offen"); vm.issue(('P', 0))
    if OPT['touch']: a("s_barrier")
    for l in x_dma(vm, 0, 0) + x_dma(vm, 0, 1) + w_dma2(0): a(l)
    x_addr_setup()
    a(f"v_lshl_add_u32 {t0}, {vqd}, 3, {vr}")
    a(f"v_mul_u32_u24 {t0}, 320, {t0}")
    a(f"v_and_b32 {t1}, 1, {vqd}")
    a(f"v_xor_b32 {t1}, {sHI}, {t1}")
    a(f"v_mul_u32_u24 {t1}, 160, {t1}")
    a(f"v_mul_u32_u24 {t2}, 40, {vc}")
    a(f"v_add3_u32 {t0}, {t0}, {t1}, {t2}")
    a(f"v_add_u32 {wa}, {WB}, {t0}")
    a(f"s_and_b32 {sT0}, {sHI}, {sISQ}")
    a(f"s_mul_i32 {sT0}, {sT0}, 3200")
    a(f"s_add_u32 {sT0}, {sT0}, {PHW}")
    a(f"v_mul_u32_u24 {t0}, 800, {vqd}")
    a(f"v_add_u32 {t0}, {sT0}, {t0}")
    a(f"v_mov_b32 {t1}, {ZERO}")
    a(f"v_cmp_eq_u32 vcc, {vc}, {vqd}")
    a(f"v_cndmask_b32 {t0}, {t1}, {t0}, vcc")
    a(f"v_mul_u32_u24 {t1}, 40, {vr}")
    a(f"v_add_u32 {pa}, {t0}, {t1}")
    def w_reads2(WFb, step):
        blk, kk = step // 2, step % 2
        return [f"ds_read_b64_tr_b16 {WFb[t][2*rd:2*rd+2]}, {wa} offset:{(blk % 3) * 20480 + kk * 10240 + rd * 1280 + 8 * t}" for t in range(5) for rd in range(2)]
    if 'p1' in BS:
        a("s_barrier")
        for l in burst(vm, *BS['p1']): a(l)
    n = vm.wait_for(lambda t: t in (('X', 0), ('W', 0)))
    a(f"s_waitcnt vmcnt({n})")
    a("s_barrier")
    stamp(a, 1)
    for l in x_reads(XF[0], 0) + w_reads2(WF[0], 0): a(l)
    for l in x_dma(vm, 1, 0) + x_dma(vm, 1, 1) + w_dma2(1): a(l)
    for j in range(20):
        cur, nxt = j & 1, (j & 1) ^ 1
        if j % 2 == 1:
            if j < 19:
                n = vm.wait_for(lambda t: t in (('X', (j + 1) // 2), ('W', (j + 1) // 2)) or (j == 17 and t == 'chk'))
                a(f"s_waitcnt vmcnt({n}) lgkmcnt(0)")
            else: a("s_waitcnt lgkmcnt(0)")
            if j == 17: init_check(vchk)
            a("s_barrier")
        else:
            a("s_waitcnt lgkmcnt(0)")
            if OPT['pp'] or OPT['qbar']: a("s_barrier")
        sstamp(a, j)
        mains = [f"v_mfma_f32_16x16x32_bf16 {ACC[tt][4*t:4*t+4]}, {WF[cur][t]}, {XF[cur][tt]}, {'0' if j == 0 else ACC[tt][4*t:4*t+4]}" for t in range(5) for tt in range(4)]
        pre = burst(vm, *BS[j]) if j in BS else []
        lblk = []
        if j < 19:
            lblk += x_reads(XF[nxt], j + 1) + w_reads2(WF[nxt], j + 1)
            if j == 0: lblk += x_dma(vm, 2, 0) + x_dma(vm, 2, 1) + w_dma2(2)
            xb = (j - 1) // 2 + 3 if j >= 1 else 99
            if xb <= 9:
                if j % 2 == 1: lblk += x_dma(vm, xb, 0) + x_dma(vm, xb, 1)
                else: lblk += w_dma2(xb)
            if j == 15: lblk += init_check_issue(vchk); vm.issue('chk')
            if j == 17:
                lblk += [f"v_lshlrev_b32 {t0}, 4, {tid}", f"v_add_u32 {t0}, {PHW}, {t0}", f"ds_write_b128 {t0}, {WP}"] + p2_setup()
        else:
            for t in range(5):
                for s in range(3):
                    for r_ in range(2 if s < 2 else 1):
                        lblk.append(f"ds_read_b64_tr_b16 {PF[t][s][2*r_:2*r_+2]}, {pa} offset:{s*320 + r_*160 + t*8}")
        step_body(mains, lblk, pre)
    stamp(a, 2)
    a("s_setprio 2")
    QB = V(68, 40); P = V(108, 20); E = V(128, 40); O = V(168, 20); M = V(250, 4); T = V(188, 4); ONE = V(192, 2)
    sCNT = S(8); sOUT = S(9)
    def cvt_tile(dst, tt):
        for i in range(10): a(f"v_cvt_pk_bf16_f32 {dst[i]}, {ACC[tt][2*i]}, {ACC[tt][2*i+1]}")
    def pk_list(q, P=P):
        l = []
        for s_ in range(3):
            for t in range(5):
                d = P[4*t:4*t+4]
                if s_ < 2: l.append(f"v_mfma_f32_16x16x32_bf16 {d}, {PF[t][s_]}, {q[4*s_:4*s_+4]}, {'0' if s_ == 0 else d}")
                else: l.append(f"v_mfma_f32_16x16x16_bf16 {d}, {PF[t][s_]}, {q[8:10]}, {d}")
        return l
    a(f"s_lshl_b32 {sT3}, {sRB}, 2")
    a(f"s_add_u32 {sT3}, {sT3}, {sRG}")
    a(f"s_cmp_eq_u32 {sISQ}, 0")
    a("s_cbranch_scc1 R_KV")
    for tt in range(4): cvt_tile(QB[10*tt:10*tt+10], tt)
    a("s_waitcnt lgkmcnt(0)")
    a("s_barrier")
    PT = [V(108 + 20*i, 20) for i in range(4)]
    a(f"s_lshr_b32 {sT1}, {sHB}, 2")
    a(f"s_add_u32 {sT1}, {sT1}, {sHI}")
    a(f"s_lshl_b32 {sOUT}, {sT3}, 3")
    a(f"s_add_u32 {sOUT}, {sOUT}, {sT1}")
    a(f"s_mul_i32 {sOUT}, {sOUT}, 10240")
    a(f"s_add_u32 {sOUT}, {sOUT}, {PQ}")
    a(f"s_add_u32 {sT0}, {sOUT}, 8192")
    a(f"s_lshl_b32 {sFLAG}, {sT3}, 7")
    a(f"s_add_u32 {sFLAG}, {sFLAG}, {FH + 4}")
    QO = [V(208 + 8*i, 8) for i in range(4)]; QT = [V(240, 4), V(244, 4)]
    def q_out(tt):
        l = [f"v_cvt_pk_bf16_f32 {QO[tt][i] if i < 8 else QT[tt//2][2*(tt%2) + i - 8]}, {PT[tt][2*i]}, {PT[tt][2*i+1]}" for i in range(10)]
        for h in range(2): l.append(f"buffer_store_dwordx4 {QO[tt][4*h:4*h+4]}, {vo if tt < 2 else vo4}, {rWS}, {sOUT} offen offset:{(tt%2)*2048 + h*1024} {ST}")
        if tt % 2: l.append(f"buffer_store_dwordx4 {QT[tt//2]}, {vo}, {rWS}, {sT0} offen offset:{(tt//2)*1024} {ST}")
        return l
    for tt in range(4):
        side = q_out(tt - 1) if tt else []
        for i, l in enumerate(pk_list(QB[10*tt:10*tt+10], PT[tt])):
            a(l)
            if i >= 2 and side: a(side.pop(0))
    for l in q_out(3): a(l)
    flag_store(11)
    a(f"s_mov_b32 {sPF}, 7")
    a("s_branch P2")
    a.label('R_KV')
    a(f"s_lshl_b32 {sT1}, {sRG}, 1"); a(f"s_add_u32 {sT0}, {sT1}, 1"); a(f"s_mul_i32 {sT0}, {sT0}, {32*PS}")
    a(f"v_add_u32 {t0}, {sT0}, {vo}")
    a(f"s_mov_b32 {sCNT}, 2")
    a(f"s_cmp_eq_u32 {sHI}, 1")
    a("s_cbranch_scc1 R_V")
    cvt_tile(QB[0:10], 0)
    cvt_tile(QB[20:30], 2); cvt_tile(QB[30:40], 3)
    for i in range(5): a(f"ds_write_b128 {t0}, {QB[20+4*i:24+4*i]} offset:{i*1024}")
    cvt_tile(QB[10:20], 1)
    a("s_waitcnt lgkmcnt(0)")
    a("s_barrier")
    for l in pk_list(QB[0:10]): a(l)
    a("s_branch R_KV2")
    a.label('R_V')
    VBt = {3: V(88, 10), 0: V(98, 10), 1: V(168, 10), 2: V(178, 10)}
    for tt in (3, 0, 1, 2): cvt_tile(VBt[tt], tt)
    a(f"s_mul_i32 {sT2}, {sRG}, {64*176}")
    a(f"s_add_u32 {sT2}, {sT2}, {VVB}")
    a(f"v_mul_u32_u24 {t2}, 176, {vl15}")
    a(f"v_add_u32 {t1}, {sT2}, {t2}")
    a(f"v_mul_u32_u24 {t3}, 40, {vqd}")
    a(f"v_add_u32 {t2}, {t1}, {t3}")
    a(f"v_mov_b32 {ONE[0]}, 0x3f80")
    a(f"v_mov_b32 {ONE[1]}, 0")
    a("s_barrier")
    for i in range(5): a(f"ds_read_b128 {QB[4*i:4*i+4]}, {t0} offset:{i*1024}")
    side = []
    for tt in (3, 0, 1, 2):
        for i in range(5): side.append(f"ds_write_b64 {t2}, {VBt[tt][2*i:2*i+2]} offset:{tt*2816 + 8*i}")
        side.append(f"ds_write_b64 {t1}, {ONE} offset:{tt*2816 + 160}")
    for i in range(9): a(side.pop(0))
    a("s_waitcnt lgkmcnt(9)")
    for l in pk_list(QB[0:10]): a(l); a(side.pop(0))
    a.label('R_KV2')
    a(f"s_add_u32 {sT1}, {sT1}, {sHI}"); a(f"s_mul_i32 {sT1}, {sT1}, {32*PS}")
    a(f"v_mul_u32_u24 {t4}, {PS}, {vl15}")
    a(f"v_mul_u32_u24 {t3}, 80, {vqd}")
    a(f"v_add3_u32 {t4}, {t4}, {t3}, {sT1}")
    stamp(a, 12)
    for l in b_reg(vm, 0, 'B') + b_reg(vm, 1, 'B'): a(l)
    a.label('R_SML')
    softmax_unit(a, P, E, M, T, O, pk_list(QB[10:20]) + ["s_waitcnt lgkmcnt(0)"])
    for s_ in range(5): a(f"ds_write_b128 {t4}, {O[4*s_:4*s_+4]} offset:{PHB + 16*s_}")
    a(f"v_add_u32 {t4}, {16*PS}, {t4}")
    a(f"s_sub_u32 {sCNT}, {sCNT}, 1")
    a(f"s_cmp_lg_u32 {sCNT}, 0")
    a("s_cbranch_scc1 R_SML")
    for l in b_reg(vm, 2, 'B') + b_reg(vm, 3, 'B'): a(l)
    a(f"v_lshl_add_u32 {t0}, {vqd}, 2, {vr}")
    a(f"v_mul_u32_u24 {t1}, {PS}, {t0}")
    a(f"s_mul_i32 {sT0}, {sRG}, 80")
    a(f"v_lshl_add_u32 {t1}, {vc}, 3, {t1}")
    a(f"v_add_u32 {t1}, {sT0}, {t1}")
    a(f"v_add_u32 {t2}, {128*PS}, {t1}")
    a(f"v_mul_u32_u24 {t0}, 176, {t0}")
    a(f"s_mul_i32 {sT0}, {sRG}, 40")
    a(f"s_lshl_b32 {sT1}, {sHI}, 5")
    a(f"s_add_u32 {sT0}, {sT0}, {sT1}")
    a(f"v_lshl_add_u32 {t3}, {vc}, 3, {sT0}")
    a(f"v_mul_u32_u24 {t4}, {sHI}, {vc}")
    a(f"v_cmp_ne_u32 vcc, 0, {t4}")
    a(f"v_mov_b32 {t4}, 160")
    a(f"v_cndmask_b32 {t3}, {t3}, {t4}, vcc")
    a(f"v_add_u32 {t3}, {VVB}, {t3}")
    a(f"v_add_u32 {t3}, {t0}, {t3}")
    stamp(a, 13)
    a("s_waitcnt lgkmcnt(0)")
    a("s_barrier")
    stamp(a, 14)
    KA = [[V(72 + (b*4 + f)*4, 4) for f in range(4)] for b in range(3)]
    KD = [V(128 + 4*f, 4) for f in range(3)]
    def kv_reads(b, s):
        l = []
        for rd in range(2):
            l.append(f"ds_read_b64_tr_b16 {KA[b][3][2*rd:2*rd+2]}, {t3} offset:{s*5632 + rd*2816}")
        for f in range(3):
            for rd in range(2):
                l.append(f"ds_read_b64_tr_b16 {KA[b][f][2*rd:2*rd+2]}, {t1 if s < 4 else t2} offset:{(s % 4)*32*PS + rd*16*PS + f*32}")
        return l
    allr = [l for s in range(8) for l in kv_reads(s % 3, s)]
    pos = 0
    for s in range(8):
        for f in range(3):
            needr = s * 8 + 2 + 2 * (f + 1)
            lim = min(len(allr), needr + 12, (s + 2) * 8 + (2 + 2 * f if False else 0) + 8 - 8 + 0) if False else min(len(allr), needr + 12)
            lim = min(lim, (s + 3) * 8)
            while pos < lim: a(allr[pos]); pos += 1
            a(f"s_waitcnt lgkmcnt({pos - needr})")
            a(f"v_mfma_f32_16x16x32_bf16 {KD[f]}, {KA[s%3][f]}, {KA[s%3][3]}, {'0' if s == 0 else KD[f]}")
    stamp(a, 15)
    a(f"s_add_u32 {sT0}, {sHB}, {sRG}")
    a(f"s_lshl_b32 {sT0}, {sT0}, 1")
    a(f"s_add_u32 {sT0}, {sT0}, {sHI}")
    a(f"s_mul_i32 {sT0}, {sT0}, 3072")
    a(f"s_add_u32 {sT0}, {sT0}, {KVACC}")
    a(f"s_lshl_b32 {sFLAG}, {sID}, 7")
    a(f"s_add_u32 {sFLAG}, {sFLAG}, {FK}")
    a(f"v_lshlrev_b32 {t2}, 2, {lane}")
    for f in range(3):
        if f == 2: a("s_mov_b32 exec_hi, 0")
        for j in range(4):
            a(f"buffer_atomic_add_f32 {KD[f][j]}, {t2}, {rWS}, {sT0} offen offset:{f*1024 + j*256} {OPT['atf']}")
    a("s_mov_b32 exec_hi, -1")
    a("s_barrier")
    stamp(a, 3)
    a(f"v_mov_b32 {t0}, {CNT}"); a(f"v_mov_b32 {t1}, 1")
    a("s_waitcnt vmcnt(0)")
    a("s_mov_b64 exec, 1")
    a(f"ds_add_rtn_u32 {t1}, {t0}, {t1} offset:12")
    a("s_waitcnt lgkmcnt(0)")
    a(f"v_readfirstlane_b32 {sT0}, {t1}")
    a("s_mov_b64 exec, -1")
    a(f"s_cmp_lg_u32 {sT0}, 7")
    a("s_cbranch_scc1 R_KV3")
    arrive(a, sFLAG, 7, t0, t1)
    a.label('R_KV3')
    a("s_setprio 0")
    stamp(a, 4)
    a(f"s_mov_b32 {sPF}, 4")
    a("s_branch P2")

    a.label('R_SPARE')
    sSP, sU, sSO, sST = S(77), S(78), S(79), S(80)
    va = Alloc('v', 11, 250)
    vf = [va() for _ in range(5)]; vat = [va() for _ in range(5)]
    rf = [va() for _ in range(5)]; rat = [va(), va()]
    vst = va(); vst4 = va()
    FR = [[va(4) for _ in range(5)] for b in range(2)]
    Z4 = va(4)
    NT = OPT['spnt']
    srd(a, rA, pWD, 1728 * 1280)
    srd(a, rB, pWO, 640 * 1280)
    a(f"s_lshr_b32 {sSP}, {sT0}, 1")
    a(f"s_lshl_b32 {sSP}, {sSP}, 3")
    a(f"s_add_u32 {sSP}, {sSP}, {sRB}")
    a(f"s_lshl_b32 {sT0}, {sWV}, 2")
    a(f"s_mul_i32 {sT1}, {sWV}, 20")
    for n in range(5):
        a(f"v_add_u32 {t0}, {64*n}, {lane}")
        a(f"v_mul_u32_u24 {t1}, 205, {t0}")
        a(f"v_lshrrev_b32 {t1}, 14, {t1}")
        a(f"v_mul_u32_u24 {t2}, 80, {t1}")
        a(f"v_sub_u32 {t2}, {t0}, {t2}")
        a(f"v_add_u32 {t1}, {sT0}, {t1}")
        a(f"v_and_b32 {t3}, 7, {t1}")
        a(f"v_lshlrev_b32 {t3}, 1, {t3}")
        a(f"v_xor_b32 {t2}, {t2}, {t3}")
        a(f"v_mul_u32_u24 {t1}, 1280, {t1}")
        a(f"v_lshl_add_u32 {vf[n]}, {t2}, 4, {t1}")
        if n % 4: a(f"v_subrev_u32 {vf[n]}, {1024*(n%4)}, {vf[n]}")
    a(f"s_mul_i32 {sM}, {sWV}, 5120")
    def u_dma(buf, typ):
        if typ == 'F':
            a(f"s_mul_i32 {sSO}, {sU}, 40960")
            vv, rr = vf, rA
        else:
            a(f"s_sub_u32 {sT2}, {sU}, 54")
            a(f"s_mul_i32 {sT3}, {sT2}, 52")
            a(f"s_lshr_b32 {sT3}, {sT3}, 8")
            a(f"s_mul_i32 {sSO}, {sT3}, {160*1280 - 5*256}")
            a(f"s_lshl_b32 {sT2}, {sT2}, 8")
            a(f"s_add_u32 {sSO}, {sSO}, {sT2}")
            vv, rr = vat, rB
        a(f"s_add_u32 m0, {sM}, {buf*40960}")
        for n in range(4):
            a(f"buffer_load_dwordx4 {vv[n]}, {rr}, {sSO} offen offset:{n*1024} {NT} lds")
        a(f"s_add_u32 m0, {sM}, {buf*40960 + 4096}")
        a(f"buffer_load_dwordx4 {vv[4]}, {rr}, {sSO} offen {NT} lds")
    def dyn(it, fn):
        if it == 4:
            a(f"s_add_u32 {sU}, {sSP}, 64"); a(f"s_min_u32 {sU}, {sU}, 73"); fn('A'); return
        a(f"s_add_u32 {sU}, {sSP}, {16*it}")
        if it <= 2: fn('F')
        else:
            l1, l2 = a.newlabel('SP'), a.newlabel('SP')
            a(f"s_cmp_ge_u32 {sU}, 54"); a(f"s_cbranch_scc1 {l1}")
            fn('F'); a(f"s_branch {l2}"); a.label(l1); fn('A'); a.label(l2)
    for it in range(3): dyn(it, lambda typ: u_dma(it, typ))
    a(f"v_lshlrev_b32 {t0}, 4, {tid}")
    for i in range(4): a(f"v_mov_b32 {Z4[i]}, 0")
    a(f"s_mul_i32 {sT2}, {sSP}, 13312")
    a(f"s_add_u32 {sT2}, {sT2}, {KVACC}")
    a(f"buffer_store_dwordx4 {Z4}, {t0}, {rWS}, {sT2} offen {ST}")
    a(f"s_add_u32 {sT2}, {sT2}, {13312 - 8192}")
    a(f"buffer_store_dwordx4 {Z4}, {t0}, {rWS}, {sT2} offen {ST}")
    for n in range(5):
        a(f"v_add_u32 {t1}, {4*n}, {vqd}")
        a(f"v_add_u32 {t1}, {sT1}, {t1}")
        a(f"v_and_b32 {t3}, 7, {t1}")
        a(f"v_lshlrev_b32 {t3}, 1, {t3}")
        a(f"v_xor_b32 {t2}, {vl15}, {t3}")
        a(f"v_mul_u32_u24 {t1}, 1280, {t1}")
        a(f"v_lshl_add_u32 {vat[n]}, {t2}, 4, {t1}")
        if n % 4: a(f"v_subrev_u32 {vat[n]}, {1024*(n%4)}, {vat[n]}")
    a(f"v_lshl_add_u32 {t0}, {vqd}, 2, {vr}")
    a(f"v_and_b32 {t1}, 7, {t0}")
    a(f"v_lshlrev_b32 {t1}, 1, {t1}")
    a(f"v_mul_u32_u24 {t0}, 1280, {t0}")
    a(f"v_and_b32 {t2}, 1, {vc}")
    a(f"v_lshl_add_u32 {t0}, {t2}, 3, {t0}")
    a(f"v_lshrrev_b32 {t3}, 1, {vc}")
    a(f"s_mul_i32 {sT0}, {sWV}, 10")
    a(f"v_add_u32 {t4}, {sT0}, {t3}")
    for j in range(5):
        a(f"v_add_u32 {rf[j]}, {2*j}, {t4}")
        a(f"v_xor_b32 {rf[j]}, {rf[j]}, {t1}")
        a(f"v_lshl_add_u32 {rf[j]}, {rf[j]}, 4, {t0}")
    a(f"v_mul_u32_u24 {t0}, 20, {vqd}")
    a(f"v_add_u32 {t0}, {t0}, {vr}")
    a(f"v_lshlrev_b32 {t0}, 8, {t0}")
    a(f"v_lshl_add_u32 {t0}, {t2}, 3, {t0}")
    a(f"s_lshl_b32 {sT0}, {sWV}, 1")
    a(f"v_add_u32 {t4}, {sT0}, {t3}")
    a(f"v_xor_b32 {t4}, {t4}, {t1}")
    a(f"v_lshl_add_u32 {rat[0]}, {t4}, 4, {t0}")
    a(f"v_xor_b32 {rat[1]}, 128, {rat[0]}")
    a(f"v_lshlrev_b32 {vst}, 4, {lane}")
    a(f"v_add_u32 {vst4}, 4096, {vst}")
    def u_proc(buf, typ, F):
        if typ == 'F':
            for j in range(5):
                a(f"v_add_u32 {t0}, {buf*40960}, {rf[j]}")
                for rd in range(2):
                    a(f"ds_read_b64_tr_b16 {F[j][2*rd:2*rd+2]}, {t0} offset:{rd*20480}")
            a(f"s_mul_i32 {sST}, {sWV}, 74")
            a(f"s_add_u32 {sST}, {sST}, {sU}")
            a(f"s_mul_i32 {sST}, {sST}, 5120")
            a(f"s_add_u32 {sST}, {sST}, {BP}")
            a("s_waitcnt lgkmcnt(0)")
            for j in range(5):
                if j < 4: a(f"buffer_store_dwordx4 {F[j]}, {vst}, {rWS}, {sST} offen offset:{j*1024} {ST}")
                else: a(f"buffer_store_dwordx4 {F[j]}, {vst4}, {rWS}, {sST} offen {ST}")
        else:
            bases = [(0, 4), (8, 12), (16, 96), (80, 84), (88, 92)]
            a(f"v_add_u32 {t0}, {buf*40960}, {rat[0]}")
            a(f"v_add_u32 {t1}, {buf*40960}, {rat[1]}")
            for s5 in range(5):
                for rd in range(2):
                    b = bases[s5][rd]
                    a(f"ds_read_b64_tr_b16 {F[s5][2*rd:2*rd+2]}, {t1 if b % 8 else t0} offset:{b*256}")
            a(f"s_sub_u32 {sT2}, {sU}, 54")
            a(f"s_mul_i32 {sT3}, {sT2}, 52")
            a(f"s_lshr_b32 {sT3}, {sT3}, 8")
            a(f"s_mul_i32 {sT0}, {sT3}, 5")
            a(f"s_sub_u32 {sT2}, {sT2}, {sT0}")
            a(f"s_lshl_b32 {sT2}, {sT2}, 3")
            a(f"s_add_u32 {sT2}, {sT2}, {sWV}")
            a(f"s_mul_i32 {sT1}, {sT2}, 52")
            a(f"s_lshr_b32 {sT1}, {sT1}, 8")
            a(f"s_mul_i32 {sST}, {sT1}, 5")
            a(f"s_sub_u32 {sT2}, {sT2}, {sST}")
            a(f"s_mul_i32 {sST}, {sT1}, 74")
            a(f"s_add_u32 {sST}, {sST}, {sT0}")
            a(f"s_add_u32 {sST}, {sST}, 54")
            a(f"s_mul_i32 {sST}, {sST}, 5120")
            a(f"s_lshl_b32 {sT2}, {sT2}, 10")
            a(f"s_add_u32 {sST}, {sST}, {sT2}")
            a(f"s_add_u32 {sST}, {sST}, {BP}")
            a("s_waitcnt lgkmcnt(0)")
            for s5 in range(5):
                a(f"buffer_store_dwordx4 {F[s5]}, {vst}, {rWS}, {sST} offen {ST}")
                if s5 < 4: a(f"s_add_u32 {sST}, {sST}, 5120")
    vm = VmTrack()
    for t in ['D0']*5 + ['D1']*5 + ['D2']*5 + ['Z']*2: vm.issue(t)
    for it in range(5):
        n = vm.wait_for(lambda t: t == f'D{it}')
        a(f"s_waitcnt vmcnt({n})")
        a("s_barrier")
        if it in (1, 2):
            dyn(it + 2, lambda typ: u_dma(it - 1, typ))
            for _ in range(5): vm.issue(f'D{it+2}')
        dyn(it, lambda typ: u_proc(it % 3, typ, FR[it & 1]))
        for _ in range(5): vm.issue('S')
    a("s_waitcnt vmcnt(0)")
    a("s_barrier")
    lsk = a.newlabel('SPD')
    a(f"s_cmp_lg_u32 {sWV}, 0"); a(f"s_cbranch_scc1 {lsk}")
    a(f"v_mov_b32 {t0}, 0"); a(f"v_mov_b32 {t1}, 1")
    a("s_mov_b64 exec, 1")
    a(f"buffer_atomic_add {t1}, {t0}, {rDBG}, 0 offen sc1")
    a("s_mov_b64 exec, -1")
    a.label(lsk)
    stamp(a, 2)
    GW = [V(72 + 4*i, 4) for i in range(5)]
    GX = [[V(96 + (g*5 + i)*4, 4) for i in range(5)] for g in range(4)]
    GA = [V(92 + g) for g in range(4)]
    srd(a, rW, pGW, 1280)
    a(f"v_lshlrev_b32 {t0}, 4, {vl15}")
    for i in range(5): a(f"buffer_load_dwordx4 {GW[i]}, {t0}, {rW}, 0 offen offset:{i*256}")
    a(f"v_mul_u32_u24 {t1}, 1280, {vqd}")
    a(f"v_add_u32 {t0}, {t0}, {t1}")
    a(f"s_lshl_b32 {sT3}, {sSP}, 3")
    a(f"s_add_u32 {sT3}, {sT3}, {sWV}")
    a(f"s_mul_i32 {sT2}, {sT3}, {16*1280}")
    for g in range(4):
        for i in range(5): a(f"buffer_load_dwordx4 {GX[g][i]}, {t0}, {rX}, {sT2} offen offset:{i*256}")
        if g < 3: a(f"s_add_u32 {sT2}, {sT2}, {4*1280}")
    for g in range(4): a(f"v_mov_b32 {GA[g]}, 0")
    init_poll(a, t1)
    for i in range(5):
        for k in range(4):
            for g in range(4): a(f"v_dot2c_f32_bf16 {GA[g]}, {GX[g][i][k]}, {GW[i][k]}")
    for sh in (8, 4, 2, 1):
        for g in range(4): a(f"v_add_f32_dpp {GA[g]}, {GA[g]}, {GA[g]} row_ror:{sh} row_mask:0xf bank_mask:0xf")
    for g in range(4): a(f"v_mul_f32 {GA[g]}, {NLOG2E:#x}, {GA[g]}")
    for g in range(4): a(f"v_exp_f32 {GA[g]}, {GA[g]}")
    for g in range(4): a(f"v_add_f32 {GA[g]}, 1.0, {GA[g]}")
    for g in range(4): a(f"v_rcp_f32 {GA[g]}, {GA[g]}")
    a(f"v_mov_b32 {t2}, {GA[0]}")
    for g in range(1, 4):
        a(f"v_cmp_eq_u32 vcc, {g}, {vl15}"); a(f"v_cndmask_b32 {t2}, {t2}, {GA[g]}, vcc")
    a(f"v_lshl_add_u32 {t0}, {vl15}, 2, {vqd}")
    a(f"v_lshlrev_b32 {t3}, 2, {t0}")
    a(f"s_lshl_b32 {sT2}, {sT3}, 6"); a(f"s_add_u32 {sT2}, {sT2}, {GOFF}")
    a("s_mov_b32 exec_lo, 0x000f000f"); a("s_mov_b32 exec_hi, 0x000f000f")
    a(f"buffer_store_dword {t2}, {t3}, {rWS}, {sT2} offen {ST}")
    a("s_mov_b64 exec, -1")
    a(f"s_lshr_b32 {sFLAG}, {sT3}, 2"); a(f"s_lshl_b32 {sFLAG}, {sFLAG}, 7"); a(f"s_add_u32 {sFLAG}, {sFLAG}, {FH + 4}")
    flag_store(11)

    vm = VmTrack()
    a(f"s_mov_b32 {sPF}, 7")
    a.label('P2')
    a(f"s_bitcmp0_b32 {sPF}, 0"); a("s_cbranch_scc1 P2_E1")
    for l in p2_setup() + b_reg(vm, 0, 'B') + b_reg(vm, 1, 'B'): a(l)
    a.label('P2_E1')
    a(f"s_bitcmp0_b32 {sPF}, 1"); a("s_cbranch_scc1 P2_E2")
    for l in b_reg(vm, 2, 'B') + b_reg(vm, 3, 'B'): a(l)
    a.label('P2_E2')
    a(f"s_bitcmp0_b32 {sPF}, 2"); a("s_cbranch_scc1 P2_GO")
    for l in b_lds(vm, 4): a(l)
    b_lds_hi(vm, range(5, 10))
    a.label('P2_GO')
    vG = V(16, 4); vz = V(11); ka = V(12); kw = V(13); vbl = V(15); vcn = V(14)
    ACC = [[V(72 + (tt * 5 + j) * 4, 4) for j in range(5)] for tt in range(4)]
    ARl = [V(152 + 4 * i, 4) for i in range(14)] + [V(248, 4), V(24, 4)]
    AR = [ARl[4*b:4*b+4] for b in range(4)]
    sFHo = S(78)
    rOUT = rX
    a(f"v_mov_b32 {vz}, 0")
    a(f"v_mov_b32 {vcn}, {CNT}")
    a(f"v_add_u32 {vbl}, {sLB}, {vo}")
    srd(a, rA, pWS, WSZ)
    def a_loads(i, tag, vts=None):
        b = i % 4
        l = step_of(i, sT0, sT1) + [f"s_cmp_lt_u32 {sT0}, {sLim}\ns_cselect_b32 {rA[2]}, {WSZ}, 0", f"s_lshl_b32 {sT0}, {sT0}, 12", f"s_add_u32 {sT0}, {sT0}, {sAB}"]
        for tt in range(4):
            if vts: l.append(f"buffer_load_dwordx4 {AR[b][tt]}, {vts[tt]}, {rA}, {sT0} offen {LD}")
            else: l.append(f"buffer_load_dwordx4 {AR[b][tt]}, {vo}, {rA}, {sT0} offen offset:{tt*1024} {LD}")
            vm.issue(tag)
        return l
    def b_fromlds(i):
        return [f"ds_read_b128 {BR[i % 4][j]}, {vbl} offset:{GL.index(i)*5120 + j*1024}" for j in range(5)]
    def mm(b, zero, side=[]):
        side = list(side)
        for j in range(5):
            for tt in range(4):
                d = ACC[tt][j]
                a(f"v_mfma_f32_16x16x32_bf16 {d}, {BR[b][j]}, {AR[b][tt]}, {'0' if tt in zero else d}")
                while side and side[0].startswith('s_'): a(side.pop(0))
                if side and tt % 2 == 1: a(side.pop(0))
        for l in side: a(l)
    def g_load():
        a(f"s_lshl_b32 {sT0}, {sR6}, 8"); a(f"s_add_u32 {sT0}, {sT0}, {GOFF}")
        a(f"v_lshlrev_b32 {t0}, 4, {vl15}")
        a(f"buffer_load_dwordx4 {vG}, {t0}, {rWS}, {sT0} offen {LD}")
    def lds_signal(off):
        a(f"v_mov_b32 {t1}, 1")
        a("s_waitcnt lgkmcnt(0)")
        a("s_mov_b64 exec, 1")
        a(f"ds_add_u32 {vcn}, {t1} offset:{off}")
        a("s_mov_b64 exec, -1")
    def lds_wait(off, n):
        L = a.newlabel('LW')
        a.label(L)
        a(f"ds_read_b32 {t1}, {vcn} offset:{off}")
        a("s_waitcnt lgkmcnt(0)")
        a(f"v_readfirstlane_b32 {sT0}, {t1}")
        a(f"s_cmp_lt_u32 {sT0}, {n}")
        a(f"s_cbranch_scc1 {L}")
    a(f"s_lshl_b32 {sFHo}, {sR6}, 7"); a(f"s_add_u32 {sFHo}, {sFHo}, {FH + GOD}")
    a(f"s_cmp_eq_u32 {sHI}, 0")
    a("s_cbranch_scc1 P2_C")
    vpoll(a, vz, sFHo, 0, t1)
    vm = VmTrack()
    stamp(a, 5)
    if OPT['stamp'] == 4: a("s_memtime s[92:93]")
    for s in range(4):
        for l in a_loads(s, ('A', s)): a(l)
    for s in range(14):
        n = vm.wait_for(lambda t: t in (('A', s), ('B', s)))
        a(f"s_waitcnt vmcnt({n})" + (f" lgkmcnt({5*sum(1 for x in (s+1, s+2) if x in GL)})" if s in GL else ""))
        if s == 0: stamp(a, 6)
        if OPT['stamp'] == 4:
            a("s_waitcnt lgkmcnt(0)")
            a(f"v_writelane_b32 v255, s92, {40 + s}")
            a("s_memtime s[92:93]")
        side = []
        if 1 <= s and s + 3 < 14:
            side = a_loads(s + 3, ('A', s + 3)) + (b_fromlds(s + 3) if s + 3 in GL else b_reg(vm, s + 3, ('B', s + 3)))
        if s < 13: mm(s % 4, range(4) if s == 0 else [], side)
        else:
            for tt in range(4):
                for j in range(5):
                    d = ACC[tt][j]
                    a(f"v_mfma_f32_16x16x32_bf16 {d}, {BR[1][j]}, {AR[1][tt]}, {d}")
                    if tt >= 2: a(f"ds_write_b128 {vbl}, {ACC[tt-2][j]} offset:{((tt-2)*5+j)*1024}")
            for tt in (2, 3):
                for j in range(5): a(f"ds_write_b128 {vbl}, {ACC[tt][j]} offset:{(tt*5+j)*1024}")
    lds_signal(4)
    stamp(a, 10)
    a("s_branch P2_FIN")
    a.label('P2_C')
    P = V(72, 20)
    a("s_setprio 3")
    srd(a, rOUT, pOUT, 2048 * 1280)
    vpoll(a, vz, sFHo, 4, t1)
    PB = V(176, 12); PU = V(152, 20)
    a(f"s_lshl_b32 {sT0}, {sR6}, 3"); a(f"s_add_u32 {sT0}, {sT0}, {sCG}")
    a(f"s_mul_i32 {sT0}, {sT0}, 10240"); a(f"s_add_u32 {sT0}, {sT0}, {PQ}")
    a(f"s_lshl_b32 {sT1}, {sRG}, 11"); a(f"s_add_u32 {sT1}, {sT1}, {sT0}")
    for h in range(2): a(f"buffer_load_dwordx4 {PB[4*h:4*h+4]}, {vo}, {rWS}, {sT1} offen offset:{h*1024} {LD}")
    a(f"s_lshr_b32 {sT1}, {sRG}, 1"); a(f"s_lshl_b32 {sT1}, {sT1}, 10"); a(f"s_add_u32 {sT0}, {sT0}, {sT1}")
    a(f"s_and_b32 {sT1}, {sRG}, 1"); a(f"s_lshl_b32 {sT1}, {sT1}, 3"); a(f"s_add_u32 {sT0}, {sT0}, {sT1}"); a(f"s_add_u32 {sT0}, {sT0}, 8192")
    a(f"buffer_load_dwordx2 {PB[8:10]}, {vo}, {rWS}, {sT0} offen {LD}")
    a(f"s_lshl_b32 {sT0}, {sR6}, 2"); a(f"s_add_u32 {sT0}, {sT0}, {sRG}"); a(f"s_lshl_b32 {sT0}, {sT0}, 6"); a(f"s_add_u32 {sT0}, {sT0}, {GOFF}")
    a(f"v_lshlrev_b32 {t0}, 2, {vl15}")
    a(f"buffer_load_dword {t3}, {t0}, {rWS}, {sT0} offen {LD}")
    a(f"v_lshl_add_u32 {kw}, {vr}, 2, {vqd}")
    a(f"v_lshlrev_b32 {kw}, 6, {kw}")
    a(f"v_lshl_add_u32 {kw}, {vc}, 3, {kw}")
    a(f"s_mul_i32 {sT0}, {sRG}, 3088"); a(f"s_add_u32 {sT0}, {sT0}, {KVB}")
    a(f"v_add_u32 {kw}, {sT0}, {kw}")
    a(f"v_mul_u32_u24 {t4}, 3088, {vqd}")
    a(f"v_lshl_add_u32 {t4}, {vr}, 6, {t4}")
    a(f"v_add_u32 {t4}, {KVB}, {t4}")
    a(f"v_mov_b32 {ka}, {ZERO + 8}")
    a(f"v_cmp_eq_u32 vcc, {vc}, {vqd}")
    a(f"v_cndmask_b32 {ka}, {ka}, {t4}, vcc")
    VT = [V(16), V(17), V(18), V(19)]
    for i in range(4):
        a(f"s_add_u32 {sT0}, {sRG}, {i}"); a(f"s_and_b32 {sT0}, {sT0}, 3"); a(f"s_lshl_b32 {sT0}, {sT0}, 10")
        a(f"v_add_u32 {VT[i]}, {sT0}, {vo}")
    a("s_waitcnt vmcnt(0)")
    for i in range(10):
        a(f"v_lshlrev_b32 {PU[2*i]}, 16, {PB[i]}")
        a(f"v_and_b32 {PU[2*i+1]}, 0xffff0000, {PB[i]}")
    softmax_unit(a, PU, V(92, 40), V(132, 4), V(136, 4), P)
    stamp(a, 5)
    a("s_setprio 3")
    a(f"s_lshl_b32 {sT2}, {sCG}, 7"); a(f"s_add_u32 {sT2}, {sT2}, {FK + GOD}")
    a(f"s_lshl_b32 {sT3}, {sCG}, 2"); a(f"s_add_u32 {sT3}, {sT3}, {sRG}")
    a(f"s_mul_i32 {sT3}, {sT3}, 6144"); a(f"s_add_u32 {sT3}, {sT3}, {KVACC}")
    vpoll(a, vz, sT2, 0, t1)
    stamp(a, 6)
    KL = [V(92 + 4 * i, 4) for i in range(6)]
    for i in range(6):
        if i < 4: a(f"buffer_load_dwordx4 {KL[i]}, {vo}, {rWS}, {sT3} offen offset:{i*1024} {LD}")
        else: a(f"buffer_load_dwordx4 {KL[i]}, {vo4}, {rWS}, {sT3} offen offset:{(i-4)*1024} {LD}")
    sO1, sO2 = S(79), S(80)
    a(f"s_lshr_b32 {sT1}, {sCG}, 1")
    a(f"s_mul_i32 {sT1}, {sT1}, 5")
    a(f"s_add_u32 {sO2}, {sT1}, 54")
    a(f"s_lshl_b32 {sO2}, {sO2}, 2")
    a(f"s_add_u32 {sO2}, {sO2}, {sRG}")
    a(f"s_lshl_b32 {sO2}, {sO2}, 10")
    a(f"s_add_u32 {sO2}, {sO2}, {sAB}")
    a(f"s_and_b32 {sT1}, {sCG}, 1")
    a(f"s_mul_i32 {sO1}, {sT1}, {3*4096}")
    a(f"s_add_u32 {sO1}, {sO1}, {sO2}")
    a(f"s_lshl_b32 {sT1}, {sT1}, 3")
    a(f"s_add_u32 {sO2}, {sO2}, {sT1}")
    a(f"s_add_u32 {sO2}, {sO2}, 8192")
    for i in range(6):
        a(f"s_waitcnt vmcnt({5-i})")
        a(f"v_cvt_pk_bf16_f32 {KL[i][0]}, {KL[i][0]}, {KL[i][1]}")
        a(f"v_cvt_pk_bf16_f32 {KL[i][1]}, {KL[i][2]}, {KL[i][3]}")
        a(f"ds_write_b64 {kw}, {KL[i][0:2]} offset:{(i % 3)*1024 + (i // 3)*32}")
    lds_signal(0)
    lds_wait(0, 4)
    stamp(a, 16)
    AFl = [V(92 + 4 * i, 4) for i in range(15)]
    D = [V(152 + 4 * t, 4) for t in range(6)]
    O = V(176, 12)
    order = [5, 0, 1, 2, 3, 4]
    fr = [(t, s) for t in order for s in range(5)]
    def rdl(k):
        t, s_ = fr[k]
        return [f"ds_read_b64_tr_b16 {AFl[k % 15][2*r_:2*r_+2]}, {ka} offset:{s_*512 + r_*256 + t*8}" for r_ in range(2)]
    AH = 6
    for k in range(AH):
        for l in rdl(k): a(l)
    def fin(t):
        for h in range(2): a(f"v_pk_mul_f32 {D[t][2*h:2*h+2]}, {D[t][2*h:2*h+2]}, {V(t2.lo, 2)} op_sel_hi:[1,0]")
        a(f"v_cvt_pk_bf16_f32 {O[2*t]}, {D[t][0]}, {D[t][1]}")
        a(f"v_cvt_pk_bf16_f32 {O[2*t+1]}, {D[t][2]}, {D[t][3]}")
    for k in range(30):
        t, s_ = fr[k]
        if k + AH < 30:
            for l in rdl(k + AH): a(l)
        a(f"s_waitcnt lgkmcnt({2 * min(AH, 29 - k)})")
        a(f"v_mfma_f32_16x16x32_bf16 {D[t]}, {AFl[k % 15]}, {P[4*s_:4*s_+4]}, {'0' if s_ == 0 else D[t]}")
        if k == 8:
            a(f"v_add_f32 {t2}, 0x358637bd, {D[5][0]}")
            a(f"v_rcp_f32 {t2}, {t2}")
        if k == 9: a(f"v_mul_f32 {t2}, {t2}, {t3}"); a(f"v_sub_f32 {V(22)}, 1.0, {t3}")
        if k in (13, 18, 23, 28): fin((k - 13) // 5)
        if k == 19: a(f"buffer_store_dwordx4 {O[0:4]}, {vo}, {rWS}, {sO1} offen {ST}")
    a(f"buffer_store_dwordx4 {O[4:8]}, {vo4}, {rWS}, {sO1} offen {ST}")
    fin(4)
    a(f"buffer_store_dwordx2 {O[8:10]}, {vo}, {rWS}, {sO2} offen {ST}")
    stamp(a, 17)
    a(f"s_sub_u32 {sT2}, {sFHo}, {GOD - 8}")
    arrive(a, sT2, 31, t0, t1)
    stamp(a, 7)
    XB = [V(28), V(29), V(30)]; XW = V(31); GB = [V(12), V(13)]
    for q in range(1, 4):
        a(f"s_sub_u32 {sT0}, {sRG}, {q}"); a(f"s_and_b32 {sT0}, {sT0}, 3"); a(f"s_mul_i32 {sT0}, {sT0}, {RSZ}")
        a(f"s_add_u32 {sT0}, {sT0}, {20480 + (q-1)*5120}")
        a(f"v_add_u32 {XB[q-1]}, {sT0}, {vo}")
    a(f"v_subrev_u32 {XW}, {30720 - 20480}, {vbl}")
    a(f"s_mul_i32 {sT0}, {sRG}, 5120"); a(f"v_add_u32 {GB[0]}, {sT0}, {vo}"); a(f"v_add_u32 {GB[1]}, {2*RSZ}, {GB[0]}")
    a(f"v_mul_u32_u24 {t0}, 1280, {vl15}")
    a(f"v_lshl_add_u32 {t0}, {vqd}, 3, {t0}")
    a(f"s_lshl_b32 {sT2}, {sR6}, 2"); a(f"s_add_u32 {sT2}, {sT2}, {sRG}"); a(f"s_mul_i32 {sT2}, {sT2}, {16*1280}")
    a(f"s_mul_i32 {sT3}, {sCG}, 160"); a(f"s_add_u32 {sT2}, {sT2}, {sT3}")
    vpoll(a, vz, sFHo, 8, t4)
    vm = VmTrack()
    stamp(a, 9)
    for s in range(4):
        for l in a_loads(s, ('A', s), VT): a(l)
    lds_wait(4, 4)
    stamp(a, 8)
    for w in range(4):
        for j in range(5): a(f"ds_read_b128 {ACC[w][j]}, {GB[w // 2]} offset:{(w % 2)*RSZ + j*1024}")
        if w == 2: a("s_waitcnt lgkmcnt(5)")
        if w == 2:
            for j in range(5):
                for h in range(2): a(f"v_pk_add_f32 {ACC[0][j][2*h:2*h+2]}, {ACC[0][j][2*h:2*h+2]}, {ACC[1][j][2*h:2*h+2]}")
    for w in (2, 3):
        a(f"s_waitcnt lgkmcnt({5 if w == 2 else 0})")
        for j in range(5):
            for h in range(2): a(f"v_pk_add_f32 {ACC[0][j][2*h:2*h+2]}, {ACC[0][j][2*h:2*h+2]}, {ACC[w][j][2*h:2*h+2]}")
    for j in range(5):
        for h in range(2): a(f"v_pk_mul_f32 {ACC[0][j][2*h:2*h+2]}, {ACC[0][j][2*h:2*h+2]}, {V(22, 2)} op_sel_hi:[1,0]")
    for s in range(5):
        n = vm.wait_for(lambda t: t == ('A', s))
        a(f"s_waitcnt vmcnt({n})" + (" lgkmcnt(0)" if s == 4 else ""))
        if s < 4: mm(s % 4, [1, 2, 3] if s == 0 else [], a_loads(4, ('A', 4), VT) + b_fromlds(4) if s == 1 else [])
        else:
            for tt in (1, 2, 3, 0):
                for j in range(5):
                    d = ACC[tt][j]
                    a(f"v_mfma_f32_16x16x32_bf16 {d}, {BR[0][j]}, {AR[0][tt]}, {d}")
                    pt = {1: None, 2: None, 3: 1, 0: 2}[tt]
                    if pt: a(f"ds_write_b128 {XW}, {ACC[pt][j]} offset:{(pt-1)*5120 + j*1024}")
            for j in range(5): a(f"ds_write_b128 {XW}, {ACC[3][j]} offset:{2*5120 + j*1024}")
    stamp(a, 10)
    lds_signal(8)
    lds_wait(8, 4)
    RD = [V(152 + 4*i, 4) for i in range(14)] + [V(208, 4)]
    for q in range(3):
        for j in range(5): a(f"ds_read_b128 {RD[q*5+j]}, {XB[q]} offset:{j*1024}")
    for q in range(3):
        a(f"s_waitcnt lgkmcnt({10 - 5*q})")
        for j in range(5):
            for h in range(2): a(f"v_pk_add_f32 {ACC[0][j][2*h:2*h+2]}, {ACC[0][j][2*h:2*h+2]}, {RD[q*5+j][2*h:2*h+2]}")
            if q == 2:
                a(f"v_cvt_pk_bf16_f32 {ACC[1][j][0]}, {ACC[0][j][0]}, {ACC[0][j][1]}")
                a(f"v_cvt_pk_bf16_f32 {ACC[1][j][1]}, {ACC[0][j][2]}, {ACC[0][j][3]}")
                a(f"buffer_store_dwordx2 {ACC[1][j][0:2]}, {t0}, {rOUT}, {sT2} offen offset:{j*32} {OPT['ost']}")
    a.label('P2_FIN')
    if OPT['stamp']:
        a("s_waitcnt vmcnt(0)")
        stamp(a, 11)
    stamp_flush(a)
    a.label(END)
    a("s_endpgm")

def build():
    hdr = open(f'cdna_kernels/{NAME}.s.ref').read().split('; Override launch')[0]
    name = NAME + '_kernel'
    out = hdr + "; @launch grid=(256,1,1) block=(512,1,1) lds=163840\n"
    out += '.amdgcn_target "amdgcn-amd-amdhsa--gfx950"\n.text\n'
    a = Asm(); kernel(a)
    out += f".globl {name}\n.p2align 8\n.type {name},@function\n{name}:\n" + a.finalize()
    print('instrs', len(a.ins), 'nops', a.nnop, file=sys.stderr)
    out += f""".section .rodata,"a"
.p2align 6
.amdhsa_kernel {name}
  .amdhsa_next_free_vgpr 256
  .amdhsa_next_free_sgpr 102
  .amdhsa_accum_offset 256
  .amdhsa_group_segment_fixed_size 0
  .amdhsa_kernarg_size 96
  .amdhsa_user_sgpr_count 2
  .amdhsa_user_sgpr_kernarg_segment_ptr 1
  .amdhsa_system_sgpr_workgroup_id_x 1
.end_amdhsa_kernel
"""
    return out

if __name__ == '__main__':
    outp = sys.argv[1]
    for o in sys.argv[2:]:
        k, v = o.split('=', 1); OPT[k] = int(v) if v.isdigit() else v
    open(outp, 'w').write(build())
```

```python
import sys
sys.path.insert(0, 'gen')
from asmlib import *
NAME = 'gated_mix__linear_kernel_hedgehog__swiglu_ffn__prompt'
AP = 0; BP = 0xA00000; PQ = 0xD00000; KVACC = 0x1200000; FH = 0x1230000; FK = 0x1232000; FP = 0x1234000; ZEND = 0x1235000
GOFF = 0x1240000; DUMMY = 0x1250000; STAMP = 0x1300000; WSZ = 0x1600000
LOG2E = 0x3fb8aa3b; NLOG2E = 0xbfb8aa3b
OPT = dict(stamp=0, touch=2, bs="{'p0':(0,2),'p1':(2,5),3:(5,8),7:(8,10)}", pp=0, spnt='', rot2=0, slp=1, early=1, btouch=0, atf='sc1', cpf=12, nobar=18, chk=14, sent=1, bt=0, tsl=4, rsl=8, cprio2=0, at=0, kh=0, cprio=0, oh1=19, gdel=0, fill=0, spst='sc1', t2a='[0]', t2b='[2]', t2f='{1:(4,6),2:(5,3),4:(6,4),6:(7,5),7:(8,6),8:(9,3)}', t2q='{}', xfl='', wfl='', il=4, qbar=0, prio=0, dbgt=0, ost='nt')
ST = 'sc1'; LD = 'sc1'

pX, pQKV, pPHI, pWO, pBX, pWG, pWU, pWD = [S(16 + 2 * i, 2) for i in range(8)]
pGW, pOUT, pDBG, pWS = [S(32 + 2 * i, 2) for i in range(4)]
sWV = S(3)
rX, rW, rWS, rA, rB = S(40, 4), S(44, 4), S(48, 4), S(52, 4), S(56, 4)
sC = S(60, 2)
rDBG = S(84, 4)
sFLAG = S(88); sTO = S(89); sNEED = S(7)
GOD = 0x1000
sP = S(14, 2)
XSLOT = 32768; WB = 98304
GWB = 159744; CNT = 161024; ZERO = 161280; KVB = 147456

def srd(a, d, base, size):
    a(f"s_mov_b32 {d[0]}, {base[0]}")
    a(f"s_and_b32 {d[1]}, {base[1]}, 0xffff")
    a(f"s_mov_b32 {d[2]}, {size}")
    a(f"s_mov_b32 {d[3]}, 0x20000")

def sstamp(a, j):
    if OPT['stamp'] != 3: return
    if j > 0: a(f"v_writelane_b32 v255, s92, {40 + j - 1}")
    a("s_memtime s[92:93]")
def stamp(a, idx):
    if not OPT['stamp']: return
    if OPT['stamp'] >= 2 and idx not in (2, 11): return
    a("s_memrealtime s[90:91]")
    a("s_memtime s[92:93]")
    a("s_waitcnt lgkmcnt(0)")
    a(f"v_writelane_b32 v255, s90, {2*idx}")
    a(f"v_writelane_b32 v255, s92, {2*idx+1}")
def stamp_flush(a):
    if not OPT['stamp']: return
    if OPT['dbgt']:
        a("s_not_b32 s90, s10"); a("v_writelane_b32 v255, s90, 0")
        a("v_lshlrev_b32 v254, 1, v0"); a("v_add_u32 v254, 8, v254")
        a("s_mov_b32 exec_lo, 0x05555555"); a("s_mov_b32 exec_hi, 0")
        a(f"buffer_atomic_umax v255, v254, {rDBG}, 0 offen sc1")
        a("s_mov_b64 exec, -1")
        return
    a("v_writelane_b32 v255, s10, 0"); a("v_writelane_b32 v255, s12, 1")
    a("s_lshl_b32 s90, s2, 3")
    a(f"s_add_u32 s90, s90, {sWV}")
    a("s_lshl_b32 s90, s90, 8")
    a(f"s_add_u32 s90, s90, {STAMP + 0x80000}")
    a("v_lshlrev_b32 v254, 2, v0")
    a(f"buffer_store_dword v255, v254, {rWS}, s90 offen")

def vpoll(a, vzero, soff, off, tmp, extra=None, slp=None):
    L, D = a.newlabel('POLL'), a.newlabel('POLLD')
    a(f"s_mov_b32 {sTO}, 0x80000")
    a.label(L)
    if extra: a(extra)
    a(f"buffer_load_dword {tmp}, {vzero}, {rWS}, {soff} offen offset:{off} sc1")
    a("s_waitcnt vmcnt(0)")
    a(f"v_cmp_eq_u32 vcc, 0, {tmp}")
    a("s_nop 0")
    a(f"s_cbranch_vccz {D}")
    a(f"s_sleep {slp or OPT['slp']}")
    a(f"s_sub_u32 {sTO}, {sTO}, 1")
    a(f"s_cbranch_scc0 {L}")
    a.label(D)
def arrive(a, soff, need, z, one, nyounger=0):
    D = a.newlabel('ARR')
    a(f"v_mov_b32 {z}, 0"); a(f"v_mov_b32 {one}, 1")
    a(f"s_waitcnt vmcnt({nyounger})")
    a("s_mov_b64 exec, 1")
    a(f"buffer_atomic_add {one}, {z}, {rWS}, {soff} offen sc0 sc1")
    a("s_waitcnt vmcnt(0)")
    a(f"v_readfirstlane_b32 {sP[0]}, {one}")
    a(f"s_add_u32 {sP[1]}, {soff}, {GOD}")
    a(f"s_cmp_lg_u32 {sP[0]}, {need}")
    a(f"s_cbranch_scc1 {D}")
    a(f"buffer_store_dword {one}, {z}, {rWS}, {sP[1]} offen sc1")
    a.label(D)
    a("s_mov_b64 exec, -1")
def init_poll(a, reg, off):
    L, D = a.newlabel('POLL'), a.newlabel('POLLD')
    a(f"s_mov_b32 {sTO}, 0x80000")
    a.label(L)
    a(f"v_mov_b32 {reg}, 0")
    a(f"buffer_load_dword {reg}, {reg}, {rDBG}, 0 offen offset:{off} sc1")
    a("s_waitcnt vmcnt(0)")
    a(f"v_readfirstlane_b32 {sP[0]}, {reg}")
    a(f"s_cmp_lg_u32 {sP[0]}, 0")
    a(f"s_cbranch_scc1 {D}")
    a("s_sleep 2")
    a(f"s_sub_u32 {sTO}, {sTO}, 1")
    a(f"s_cbranch_scc0 {L}")
    a.label(D)

def softmax_unit(a, P, E, M, T, O, side=None):
    side = list(side or [])
    a(f"v_max3_f32 {M[0]}, {P[0]}, {P[1]}, {P[2]}")
    a(f"v_min3_f32 {M[2]}, {P[0]}, {P[1]}, {P[2]}")
    for i in range(3, 19, 2):
        a(f"v_max3_f32 {M[0]}, {M[0]}, {P[i]}, {P[i+1]}")
        a(f"v_min3_f32 {M[2]}, {M[2]}, {P[i]}, {P[i+1]}")
    a(f"v_max_f32 {M[0]}, {M[0]}, {P[19]}")
    a(f"v_min_f32 {M[2]}, {M[2]}, {P[19]}")
    a(f"v_mul_f32 {M[0]}, {sC[0]}, {M[0]}")
    a(f"v_mul_f32 {M[2]}, {sC[0]}, {M[2]}")
    for i in range(0, 20, 2):
        a(f"v_pk_fma_f32 {E[i:i+2]}, {P[i:i+2]}, {sC}, {M[0:2]} op_sel_hi:[1,1,0] neg_lo:[0,0,1] neg_hi:[0,0,1]")
        a(f"v_pk_fma_f32 {E[20+i:22+i]}, {P[i:i+2]}, {sC}, {M[2:4]} op_sel_hi:[1,1,0] neg_lo:[1,0,0] neg_hi:[1,0,0]")
    for i in range(40):
        a(f"v_exp_f32 {E[i]}, {E[i]}")
        if side and i % 2 == 1: a(side.pop(0))
    for l in side: a(l)
    a(f"v_pk_add_f32 {T[0:2]}, {E[0:2]}, {E[2:4]}")
    a(f"v_pk_add_f32 {T[2:4]}, {E[20:22]}, {E[22:24]}")
    for i in range(4, 20, 2):
        a(f"v_pk_add_f32 {T[0:2]}, {T[0:2]}, {E[i:i+2]}")
        a(f"v_pk_add_f32 {T[2:4]}, {T[2:4]}, {E[20+i:22+i]}")
    a(f"v_add_f32 {T[0]}, {T[0]}, {T[1]}")
    a(f"v_add_f32 {T[2]}, {T[2]}, {T[3]}")
    a(f"v_rcp_f32 {T[0]}, {T[0]}")
    a(f"v_rcp_f32 {T[2]}, {T[2]}")
    for i in range(0, 20, 2):
        a(f"v_pk_mul_f32 {E[i:i+2]}, {E[i:i+2]}, {T[0:2]} op_sel_hi:[1,0]")
        a(f"v_pk_mul_f32 {E[20+i:22+i]}, {E[20+i:22+i]}, {T[2:4]} op_sel_hi:[1,0]")
    for i in range(20):
        a(f"v_cvt_pk_bf16_f32 {O[i]}, {E[2*i]}, {E[2*i+1]}")

def kernel(a):
    END = 'K_END'
    BS = eval(OPT['bs'])
    a("s_cmp_ge_u32 s2, 256")
    a(f"s_cbranch_scc1 {END}")
    if OPT['stamp']:
        a("s_memrealtime s[10:11]"); a("s_memtime s[12:13]"); a("v_mov_b32 v255, 0")
    a("s_load_dwordx16 s[16:31], s[0:1], 0")
    a("s_load_dwordx8 s[32:39], s[0:1], 64")
    lane = V(0)
    tid, t0, t1, t2, t3, t4 = V(1), V(2), V(3), V(4), V(5), V(6)
    vqd, vr, vc, vl15 = V(7), V(8), V(9), V(10)
    vx = [V(11 + i) for i in range(4)]
    xa = [[V(15), V(16)], [V(17), V(18)]]
    tdum = V(19); ta = V(20, 2); tb = V(22, 2)
    R0 = 24
    sTY, sRB, sXK, sWK, sM, sT0, sT1, sT2, sT3, sRG, sHI, sID, sMW, sC8, sR4 = [S(62 + i) for i in range(15)]
    a(f"v_lshrrev_b32 {t0}, 6, v0")
    a(f"v_mov_b32 {tid}, v0")
    a(f"v_readfirstlane_b32 {sWV}, {t0}")
    a(f"v_and_b32 {lane}, 63, v0")
    a(f"s_bfe_u32 {sC8}, s2, 0x30003")
    a(f"s_lshr_b32 {sR4}, s2, 6")
    a(f"s_and_b32 {sRB}, s2, 1")
    a(f"s_lshl_b32 {sRB}, {sRB}, 2")
    a(f"s_add_u32 {sRB}, {sRB}, {sR4}")
    a(f"s_bfe_u32 {sT0}, s2, 0x20001")
    a(f"s_and_b32 {sRG}, {sWV}, 3")
    a(f"s_lshr_b32 {sHI}, {sWV}, 2")
    a(f"v_lshrrev_b32 {vqd}, 4, {lane}")
    a(f"v_bfe_u32 {vr}, {lane}, 2, 2")
    a(f"v_and_b32 {vc}, 3, {lane}")
    a(f"v_and_b32 {vl15}, 15, {lane}")
    a(f"v_lshrrev_b32 {t0}, 3, {lane}")
    a(f"v_mul_u32_u24 {t0}, 1280, {t0}")
    a(f"v_and_b32 {t1}, 7, {lane}")
    a(f"v_xor_b32 {t1}, {t1}, {vqd}")
    a(f"v_lshl_add_u32 {vx[0]}, {t1}, 4, {t0}")
    a(f"v_xor_b32 {t1}, 4, {t1}")
    a(f"v_lshl_add_u32 {vx[1]}, {t1}, 4, {t0}")
    a(f"v_add_u32 {vx[1]}, {8*1280-1024}, {vx[1]}")
    a(f"v_add_u32 {vx[2]}, {16*1280-2048}, {vx[0]}")
    a(f"v_add_u32 {vx[3]}, {16*1280-2048}, {vx[1]}")
    a(f"s_mul_i32 {sXK}, {sRB}, {256*1280}")
    a(f"s_mul_i32 {sT1}, {sWV}, {32*1280}")
    a(f"s_add_u32 {sXK}, {sXK}, {sT1}")
    a(f"s_lshl_b32 {sM}, {sWV}, 12")
    a(f"v_lshlrev_b32 {t2}, 3, {tid}")
    a(f"v_min_u32 {t2}, {163840 - CNT - 8}, {t2}")
    a(f"v_add_u32 {t2}, {CNT}, {t2}")
    a(f"v_mov_b32 {ta[0]}, 0"); a(f"v_mov_b32 {ta[1]}, 0")
    a(f"ds_write_b64 {t2}, {ta}")
    a(f"s_mul_i32 {sID}, {sT0}, 9"); a(f"s_add_u32 {sID}, {sID}, 1"); a(f"s_lshr_b32 {sID}, {sID}, 1")
    a(f"s_add_u32 {sID}, {sID}, {sC8}"); a(f"s_sub_u32 {sID}, {sID}, 3")
    a(f"s_and_b32 {sT1}, {sT0}, 1"); a(f"s_add_u32 {sT1}, {sT1}, {sC8}")
    a(f"s_mov_b32 {sC[0]}, {LOG2E:#x}")
    a(f"s_mov_b32 {sC[1]}, {LOG2E:#x}")
    a("s_waitcnt lgkmcnt(0)")
    srd(a, rX, pX, 2048 * 1280)
    srd(a, rWS, pWS, WSZ)
    srd(a, rDBG, pDBG, 256)
    if OPT['cpf']:
        a(f"s_cmp_lg_u32 {sWV}, 7"); a("s_cbranch_scc1 NOCPF")
        a("s_getpc_b64 s[4:5]")
        a.label("CPF_PC")
        a("s_lshr_b32 s6, s2, 3"); a(f"s_mul_i32 s6, s6, {OPT['cpf']*128}")
        a(f"v_lshlrev_b32 {t0}, 7, {lane}"); a(f"v_add_u32 {t0}, s6, {t0}")
        a(f"v_min_u32 {t0}, K_LAST-CPF_PC, {t0}")
        a(f"s_mov_b64 exec, {(1 << OPT['cpf']) - 1:#x}")
        a(f"global_load_dword v31, {t0}, s[4:5]")
        a("s_mov_b64 exec, -1")
        a.label("NOCPF")
    rT = S(80, 4) if False else rA
    sU1, sU2, sBK = S(100), S(101), S(95)
    vt1, vt2 = V(22), V(23)
    T2 = OPT['touch'] == 2
    def t2_all(b0):
        return [f"s_mul_i32 s4, {sBK}, {b0}", f"s_add_u32 s4, s4, {sU2}",
                f"v_add_u32 v21, s4, {vt2}", f"s_mov_b64 exec, 0xff\nbuffer_load_dword {tdum}, v21, {rTT}, 0 offen\ns_mov_b64 exec, -1"]
    def t2_one(b, c8v):
        lb = a.newlabel('T2')
        return [f"s_cmp_lg_u32 {sC8}, {c8v}\ns_cbranch_scc1 {lb}\ns_mul_i32 s4, {sBK}, {b}\ns_add_u32 s4, s4, {sU1}\nv_add_u32 v21, s4, {vt1}\ns_mov_b32 exec_hi, 0\n"
                f"buffer_load_dword {tdum}, v21, {rTT}, 0 offen\ns_mov_b64 exec, -1\n{lb}:"]
    rTT = S(96, 4)
    if T2:
        assert OPT['stamp'] in (0, 2) or True
        a(f"s_lshr_b32 s4, {sWV}, 1")
        a("s_cmp_eq_u32 s4, 1")
        a(f"s_cselect_b32 {rTT[0]}, {pQKV[0]}, {pX[0]}"); a(f"s_cselect_b32 {rTT[1]}, {pQKV[1]}, {pX[1]}")
        a(f"s_mov_b32 {rTT[2]}, {2048*1280}"); a(f"s_movk_i32 {sBK}, 128")
        a(f"s_cselect_b32 {rTT[2]}, {640*3840}, {rTT[2]}"); a(f"s_cselect_b32 {sBK}, {64*3840}, {sBK}")
        a("s_cmp_eq_u32 s4, 2")
        a(f"s_cselect_b32 {rTT[0]}, {pWG[0]}, {rTT[0]}"); a(f"s_cselect_b32 {rTT[1]}, {pWG[1]}, {rTT[1]}")
        a("s_cmp_eq_u32 s4, 3")
        a(f"s_cselect_b32 {rTT[0]}, {pWU[0]}, {rTT[0]}"); a(f"s_cselect_b32 {rTT[1]}, {pWU[1]}, {rTT[1]}")
        a("s_cmp_ge_u32 s4, 2")
        a(f"s_cselect_b32 {rTT[2]}, {640*3456}, {rTT[2]}"); a(f"s_cselect_b32 {sBK}, {64*3456}, {sBK}")
        a(f"s_and_b32 {rTT[1]}, {rTT[1]}, 0xffff"); a(f"s_mov_b32 {rTT[3]}, 0x20000")
        a("s_cmp_eq_u32 s4, 0")
        a("s_movk_i32 s7, 128"); a("s_cselect_b32 s5, 1280, s7"); a("s_cselect_b32 s6, 640, s7"); a("s_cselect_b32 s7, 512, 0")
        a(f"v_mul_u32_u24 {vt1}, s5, {lane}")
        a(f"v_mul_u32_u24 {vt2}, s6, {lane}")
        a(f"v_and_b32 {t0}, 1, {lane}"); a(f"v_mul_u32_u24 {t0}, s7, {t0}"); a(f"v_sub_u32 {vt2}, {vt2}, {t0}")
        a(f"s_and_b32 s4, {sWV}, 1")
        a(f"s_lshl_b32 {sU2}, s2, 1"); a(f"s_add_u32 {sU2}, {sU2}, s4"); a(f"s_lshl_b32 {sU2}, {sU2}, 3"); a(f"s_mul_i32 {sU2}, {sU2}, s6")
        a(f"s_and_b32 {sU1}, s2, 7"); a(f"s_lshl_b32 {sU1}, {sU1}, 2"); a(f"s_add_u32 {sU1}, {sU1}, {sR4}")
        a(f"s_lshl_b32 {sU1}, {sU1}, 1"); a(f"s_add_u32 {sU1}, {sU1}, s4"); a(f"s_lshl_b32 {sU1}, {sU1}, 5"); a(f"s_mul_i32 {sU1}, {sU1}, s5")
        for b0 in eval(OPT['t2a']):
            for l in t2_all(b0): a(l)
    if OPT['prio']:
        a(f"s_cmp_eq_u32 {sHI}, 0"); a("s_cbranch_scc1 NOPRIO"); a("s_setprio 1"); a.label("NOPRIO")
    a(f"s_cmp_lt_u32 {sC8}, 3")
    a("s_cbranch_scc1 R_QKV")
    a(f"s_cmp_eq_u32 {sT1}, 8")
    a("s_cbranch_scc1 R_SPARE")

    def x_dma(vm, blk, half):
        l = [f"s_add_u32 m0, {sM}, {(blk % 3) * XSLOT}"]
        if half == 0 and blk > 0: l.append(f"s_add_u32 {sXK}, {sXK}, 128")
        for n in (2 * half, 2 * half + 1):
            l.append(f"buffer_load_dwordx4 {vx[n]}, {rX}, {sXK} offen offset:{n*1024} {OPT['xfl']} lds")
            vm.issue(('X', blk))
        return l
    def x_addr_setup():
        a(f"v_lshrrev_b32 {t0}, 1, {vl15}")
        a(f"v_xor_b32 {t0}, {t0}, {vqd}")
        a(f"v_lshlrev_b32 {t0}, 4, {t0}")
        a(f"v_lshl_add_u32 {t0}, {vl15}, 7, {t0}")
        a(f"s_lshl_b32 {sT0}, {sRG}, 13")
        a(f"v_add_u32 {xa[0][0]}, {sT0}, {t0}")
        a(f"v_xor_b32 {xa[0][1]}, 64, {xa[0][0]}")
        a(f"v_add_u32 {xa[1][0]}, 0x10000, {xa[0][0]}")
        a(f"v_add_u32 {xa[1][1]}, 0x10000, {xa[0][1]}")
    def x_reads(XF, step):
        blk, kk = step // 2, step % 2
        sl = blk % 3
        return [f"ds_read_b128 {XF[tt]}, {xa[sl // 2][kk]} offset:{(sl % 2) * XSLOT + tt * 2048}" for tt in range(4)]
    def burst(vm, b0, b1):
        if OPT['touch'] != 1: return []
        l = []
        for st, reg in ((0, ta), (5, tb)):
            lo, hi = max(b0, st) - st, min(b1, st + 5) - st
            if lo >= hi: continue
            m = ((1 << (12 * hi)) - 1) & ~((1 << (12 * lo)) - 1)
            l += [f"s_mov_b32 exec_lo, {m & 0xffffffff:#x}", f"s_mov_b32 exec_hi, {m >> 32:#x}", f"global_load_dword {tdum}, {reg}, off"]
            vm.issue('T')
        l.append("s_mov_b64 exec, -1")
        return l
    def touch_setup(pw0, pw1, rowbytes, off0, off1, seg):
        if OPT['touch'] != 1: return
        l12, bi = tb[0], tb[1]; tinc = tdum
        a(f"v_mul_u32_u24 {bi}, 43, {lane}"); a(f"v_lshrrev_b32 {bi}, 9, {bi}")
        a(f"v_mul_u32_u24 {l12}, 12, {bi}"); a(f"v_sub_u32 {l12}, {lane}, {l12}")
        a(f"s_lshl_b32 {sT2}, {sRB}, 3"); a(f"s_add_u32 {sT2}, {sT2}, {sC8}"); a(f"s_lshl_b32 {sT2}, {sT2}, 3"); a(f"s_add_u32 {sT2}, {sT2}, {sWV}")
        a(f"s_mul_i32 {sT2}, {sT2}, {4*1280}")
        a(f"v_mul_u32_u24 {t0}, 1280, {l12}")
        a(f"v_add_u32 {t0}, {sT2}, {t0}")
        a(f"s_lshl_b32 {sT0}, {sR4}, 3"); a(f"s_add_u32 {sT0}, {sT0}, {sWV}"); a(f"s_mul_i32 {sT0}, {sT0}, {2*rowbytes}")
        a(f"v_subrev_u32 {t1}, 4, {l12}")
        a(f"v_bfe_u32 {t2}, {t1}, 2, 1")
        a(f"v_mul_u32_u24 {t2}, {rowbytes}, {t2}")
        a(f"v_and_b32 {t3}, 1, {t1}")
        a(f"v_mul_u32_u24 {t3}, {seg-4}, {t3}")
        a(f"v_add3_u32 {t2}, {t2}, {t3}, {sT0}")
        a(f"v_and_b32 {t3}, 2, {t1}")
        a(f"v_cmp_eq_u32 vcc, 0, {t3}")
        a(f"v_mov_b32 {t3}, {off1}"); a(f"v_mov_b32 {t4}, {off0}")
        a(f"v_cndmask_b32 {t3}, {t3}, {t4}, vcc")
        a(f"v_add_u32 {t2}, {t2}, {t3}")
        a(f"v_mov_b32 {t3}, {pw1[0]}"); a(f"v_mov_b32 {t4}, {pw0[0]}"); a(f"v_cndmask_b32 {ta[0]}, {t3}, {t4}, vcc")
        a(f"v_mov_b32 {t3}, {pw1[1]}"); a(f"v_mov_b32 {t4}, {pw0[1]}"); a(f"v_cndmask_b32 {ta[1]}, {t3}, {t4}, vcc")
        a(f"v_cmp_gt_u32 vcc, 4, {l12}")
        a(f"v_mov_b32 {t3}, {pX[0]}"); a(f"v_mov_b32 {t4}, {pX[1]}")
        a(f"v_cndmask_b32 {t2}, {t2}, {t0}, vcc")
        a(f"v_cndmask_b32 {ta[0]}, {ta[0]}, {t3}, vcc")
        a(f"v_cndmask_b32 {ta[1]}, {ta[1]}, {t4}, vcc")
        a(f"v_mov_b32 {t3}, {64*rowbytes}"); a(f"v_mov_b32 {t4}, 128"); a(f"v_cndmask_b32 {tinc}, {t3}, {t4}, vcc")
        a(f"v_mad_u32_u24 {t2}, {tinc}, {bi}, {t2}")
        a(f"v_add_co_u32 {ta[0]}, vcc, {ta[0]}, {t2}")
        a(f"v_mul_u32_u24 {t2}, 5, {tinc}")
        a(f"v_addc_co_u32 {ta[1]}, vcc, 0, {ta[1]}, vcc")
        a(f"v_add_co_u32 {tb[0]}, vcc, {ta[0]}, {t2}")
        a(f"v_addc_co_u32 {tb[1]}, vcc, 0, {ta[1]}, vcc")
    def step_body(mains, lblk, pre=[]):
        for l in pre: a(l)
        if not lblk:
            for m in mains: a(m)
            return
        if OPT['pp'] == 2:
            rds = [l for l in lblk if l.startswith('ds_read')]; oth = [l for l in lblk if not l.startswith('ds_read')]
            l1, l2 = a.newlabel('PP'), a.newlabel('PP')
            if oth:
                a(f"s_cmp_eq_u32 {sHI}, 0"); a(f"s_cbranch_scc1 {l1}")
                for l in oth: a(l)
                a.label(l1)
            k = 0
            for i, m in enumerate(mains):
                a(m)
                while k < len(rds) and k < (i + 1) * max(1, -(-len(rds) // len(mains))):
                    a(rds[k]); k += 1
            if oth:
                a(f"s_cmp_eq_u32 {sHI}, 0"); a(f"s_cbranch_scc0 {l2}")
                for l in oth: a(l)
                a.label(l2)
        elif OPT['pp']:
            l1, l2 = a.newlabel('PP'), a.newlabel('PP')
            a(f"s_cmp_eq_u32 {sHI}, 0"); a(f"s_cbranch_scc1 {l1}")
            for l in lblk: l() if callable(l) else a(l)
            a.label(l1)
            for m in mains: a(m)
            a(f"s_cmp_eq_u32 {sHI}, 0"); a(f"s_cbranch_scc0 {l2}")
            for l in lblk: l() if callable(l) else a(l)
            a.label(l2)
        else:
            rds = [l for l in lblk if l.startswith('ds_read')]; oth = [l for l in lblk if not l.startswith('ds_read')]
            units = []; cur = []
            for l in oth:
                cur.append(l)
                if 'buffer_' in l or 'ds_write' in l: units.append(cur); cur = []
            if cur: units.append(cur)
            n = len(mains); mode = OPT['il']
            pos = {}
            if mode == 0:
                seq = [[r] for r in rds] + units
                for k, u in enumerate(seq): pos.setdefault(min(n - 1, k * n // max(len(seq), n)), []).extend(u)
            elif mode == 1:
                for k, u in enumerate(units): pos.setdefault(min(n - 1, 2 * k), []).extend(u)
                for k, r in enumerate(rds): pos.setdefault(min(n - 1, k * min(n, len(rds)) // len(rds) if len(rds) > n else k), []).append(r)
            elif mode == 2:
                for k, r in enumerate(rds): pos.setdefault(min(n - 1, k // 2), []).append(r)
                for k, u in enumerate(units): pos.setdefault(min(n - 1, len(rds) // 2 + 2 * k), []).extend(u)
            elif mode == 3:
                for k, u in enumerate(units): pos.setdefault(min(n - 1, 1 + k * (2 * n // 3) // max(1, len(units))), []).extend(u)
                for k, r in enumerate(rds): pos.setdefault(min(n - 1, k * min(n, len(rds)) // len(rds) if len(rds) > n else k), []).append(r)
            elif mode == 4:
                k = 0
                for i in range(n):
                    while k < len(lblk) and k < (i + 1) * len(lblk) // n + 1:
                        pos.setdefault(i, []).append(lblk[k]); k += 1
            for i, m in enumerate(mains):
                a(m)
                for l in pos.get(i, []): a(l)
    def init_check_issue(reg, off=128):
        return [f"v_mov_b32 {reg}, 0", f"buffer_load_dword {reg}, {reg}, {rDBG}, 0 offen offset:{off} sc1"]
    def init_check(reg, off=128):
        ok = a.newlabel('INITOK')
        a(f"v_readfirstlane_b32 {sP[0]}, {reg}")
        a(f"s_cmp_lg_u32 {sP[0]}, 0")
        a(f"s_cbranch_scc1 {ok}")
        init_poll(a, reg, off)
        a.label(ok)
    sR6, sCG, sAo, sBg, sBo, sLC, sH2, sRX = [S(94 + i) for i in range(8)]
    vo, vo4 = V(20), V(21)
    vS2 = V(30)
    sO1, sO2 = S(79), S(80)
    BRb = [208, 228, 32, 52]
    BR = [[V(BRb[b] + 4 * j, 4) for j in range(5)] for b in range(4)]
    GL = [4, 6, 7, 9]; LR = [2, 5, 3, 4]; CR = [0, 1, 6]
    GRP = {0:0, 1:1, 2:2, 3:3, 4:8, 6:9, 7:10, 9:11, 5:12, 8:13}
    CB0 = 38 * 5120; CA0 = 38 * 4096
    def p2_setup():
        return [f"s_and_b32 {sR6}, s2, 7", f"s_lshl_b32 {sR6}, {sR6}, 2", "s_lshr_b32 s4, s2, 6", f"s_add_u32 {sR6}, {sR6}, s4",
             f"s_bfe_u32 {sCG}, s2, 0x30003", f"s_lshl1_add_u32 {sCG}, s4, {sCG}", f"s_and_b32 {sCG}, {sCG}, 7", f"v_lshlrev_b32 {vo}, 4, {lane}", f"v_add_u32 {vo4}, 4096, {vo}",
             f"s_mul_i32 {sBg}, {sCG}, 74", f"s_add_u32 {sBg}, {sBg}, {sRG}", f"s_mul_i32 {sBg}, {sBg}, 5120", f"s_add_u32 {sBg}, {sBg}, {BP}",
             f"s_mov_b32 {rB[0]}, {pWS[0]}", f"s_and_b32 {rB[1]}, {pWS[1]}, 0xffff", f"s_mul_i32 {rB[2]}, {sHI}, {WSZ}", f"s_mov_b32 {rB[3]}, 0x20000",
             f"s_mul_i32 {sLC}, {sRG}, 5120", f"s_lshl_b32 {sH2}, {sHI}, 11", f"s_mul_i32 {sRX}, {sHI}, 20480",
             f"s_xor_b32 s4, {sHI}, 1", f"s_mul_i32 {sBo}, s4, {16*5120}", f"s_add_u32 {sBo}, {sBo}, {sBg}",
             f"s_mul_i32 {sAo}, {sR6}, 74", f"s_mul_i32 s4, s4, 16", f"s_add_u32 {sAo}, {sAo}, s4", f"s_add_u32 {sAo}, {sAo}, {sRG}", f"s_lshl_b32 {sAo}, {sAo}, 12",
             f"s_lshr_b32 s4, {sCG}, 1", "s_mul_i32 s4, s4, 5", f"s_mul_i32 {sO2}, {sR6}, 74", f"s_add_u32 {sO2}, {sO2}, s4", f"s_add_u32 {sO2}, {sO2}, 54",
             f"s_lshl2_add_u32 {sO2}, {sO2}, {sRG}", f"s_lshl_b32 {sO2}, {sO2}, 10", f"s_and_b32 s4, {sCG}, 1", f"s_mul_i32 {sO1}, s4, {3*4096}",
             f"s_add_u32 {sO1}, {sO1}, {sO2}", f"s_lshl3_add_u32 {sO2}, s4, {sO2}", f"s_add_u32 {sO2}, {sO2}, 8192"]
    def poison(R4):
        if not OPT['sent']: return []
        lb = a.newlabel('PO')
        return [f"s_cmp_eq_u32 {sHI}, 1\ns_cbranch_scc1 {lb}\n" + "\n".join(f"v_mov_b32 {R4[i]}, -1" for i in range(4)) +
                f"\nbuffer_store_dwordx4 {R4}, {vo}, {rWS}, {sO1} offen {ST}\nbuffer_store_dwordx4 {R4}, {vo4}, {rWS}, {sO1} offen {ST}"
                f"\nbuffer_store_dwordx2 {R4[0:2]}, {vo}, {rWS}, {sO2} offen {ST}\n{lb}:"]
    def b_reg(vm, i, tag, r=None, grp=None, ext=0):
        b = i % 4; r = r or rWS; grp = i if grp is None else grp
        l = [f"s_add_u32 s4, {sBo}, {grp*20480 + ext}"]
        for j in range(5):
            if j < 4: l.append(f"buffer_load_dwordx4 {BR[b][j]}, {vo}, {r}, s4 offen offset:{j*1024} {LD}")
            else: l.append(f"buffer_load_dwordx4 {BR[b][j]}, {vo4}, {r}, s4 offen {LD}")
            vm.issue(tag)
        return l
    def b_row(vm, base, grp, row, extra=None, ext=0):
        l = [f"s_add_u32 s4, {base}, {grp*20480 + ext}", f"s_add_u32 s5, {sLC}, {row*20480}"]
        if extra: l += [f"s_add_u32 s4, s4, {extra}", f"s_add_u32 s5, s5, {extra}"]
        l.append("s_mov_b32 m0, s5")
        for j in range(4):
            l.append(f"buffer_load_dwordx4 {vo}, {rWS}, s4 offen offset:{j*1024} {LD} lds"); vm.issue('BL')
        l.append("s_add_u32 m0, s5, 4096")
        l.append(f"buffer_load_dwordx4 {vo4}, {rWS}, s4 offen {LD} lds"); vm.issue('BL')
        return l
    def b_row_half(vm, k):
        l = [f"s_add_u32 s4, {sBg}, {GRP[GL[k]]*20480}", f"s_add_u32 s5, {sLC}, {LR[k]*20480}", f"s_add_u32 s4, s4, {sH2}", f"s_add_u32 m0, s5, {sH2}"]
        for j in range(3):
            l.append(f"buffer_load_dwordx4 {vo}, {rWS}, s4 offen offset:{j*1024} {LD} lds"); vm.issue('BL')
        return l
    sPF = S(8)
    def flag_store(need):
        a(f"s_mov_b32 {sNEED}, {need}")

    vw = [V(R0), V(R0 + 1)]; wa = [V(R0 + 2), V(R0 + 3), V(R0 + 4)]; vchk = V(R0 + 5)
    FB = [32, 72]
    XF = [[V(FB[b] + 4 * tt, 4) for tt in range(4)] for b in range(2)]
    WF = [[V(FB[b] + 16 + 4 * c, 4) for c in range(6)] for b in range(2)]
    ACC = [[V(112 + (c * 4 + tt) * 4, 4) for tt in range(4)] for c in range(6)]
    vm = VmTrack()
    a(f"s_mul_i32 {sT3}, {sID}, 192")
    touch_setup(pWG, pWU, 3456, sT3, sT3, 192)
    for l in burst(vm, *BS['p0']): a(l)
    a(f"s_bitcmp1_b32 {sWV}, 0")
    a(f"s_cselect_b32 {rW[0]}, {pWU[0]}, {pWG[0]}")
    a(f"s_cselect_b32 {rW[1]}, {pWU[1]}, {pWG[1]}")
    a(f"s_and_b32 {rW[1]}, {rW[1]}, 0xffff")
    a(f"s_mov_b32 {rW[2]}, {640*3456}")
    a(f"s_mov_b32 {rW[3]}, 0x20000")
    a(f"s_bfe_u32 {sT0}, {sWV}, 0x10001")
    a(f"s_lshl_b32 {sT1}, {sT0}, 1")
    for n in range(2):
        a(f"v_add_u32 {t0}, {64*n}, {lane}")
        a(f"v_mul_u32_u24 {t1}, 43, {t0}")
        a(f"v_lshrrev_b32 {t1}, 9, {t1}")
        a(f"v_mul_u32_u24 {t2}, 12, {t1}")
        a(f"v_sub_u32 {t2}, {t0}, {t2}")
        a(f"v_lshrrev_b32 {t3}, 2, {t2}")
        a(f"v_cmp_eq_u32 vcc, 1, {t3}")
        a(f"v_mov_b32 {t3}, {sT1}")
        a(f"v_mov_b32 {t4}, {sT0}")
        a(f"v_cndmask_b32 {t3}, {t3}, {t4}, vcc")
        a(f"v_xor_b32 {t2}, {t2}, {t3}")
        a(f"v_mul_u32_u24 {t1}, 3456, {t1}")
        a(f"v_lshl_add_u32 {vw[n]}, {t2}, 4, {t1}")
        if n: a(f"v_subrev_u32 {vw[n]}, 1024, {vw[n]}")
    a(f"s_lshr_b32 {sT0}, {sWV}, 1")
    a(f"s_mul_i32 {sWK}, {sT0}, {8*3456}")
    a(f"s_add_u32 {sWK}, {sWK}, {sT3}")
    a(f"s_mul_i32 {sMW}, {sT0}, 1536")
    a(f"s_and_b32 {sT1}, {sWV}, 1")
    a(f"s_mul_i32 {sT1}, {sT1}, 6144")
    a(f"s_add_u32 {sMW}, {sMW}, {sT1}")
    def w_dma(step):
        l = [f"s_add_u32 m0, {sMW}, {WB + (step % 5) * 12288}"] + ([f"s_add_u32 {sWK}, {sWK}, 110592"] if step else []) + [
             f"buffer_load_dwordx4 {vw[0]}, {rW}, {sWK} offen {OPT['wfl']} lds",
             "s_mov_b32 exec_hi, 0\n"
             f"buffer_load_dwordx4 {vw[1]}, {rW}, {sWK} offen offset:1024 {OPT['wfl']} lds\n"
             "s_mov_b32 exec_hi, -1"]
        vm.issue(('W', step)); vm.issue(('W', step))
        return l
    if OPT['touch']: a("s_barrier")
    for l in x_dma(vm, 0, 0) + x_dma(vm, 0, 1) + w_dma(0) + w_dma(1): a(l)
    x_addr_setup()
    a(f"v_lshl_add_u32 {t0}, {vqd}, 3, {vr}")
    a(f"v_mul_u32_u24 {t0}, 192, {t0}")
    a(f"v_add_u32 {t0}, {WB}, {t0}")
    a(f"v_and_b32 {t1}, 1, {vqd}")
    a(f"v_lshlrev_b32 {t2}, 5, {t1}")
    a(f"v_lshl_add_u32 {t2}, {vc}, 3, {t2}")
    a(f"s_lshl_b32 {sT0}, {sHI}, 7")
    a(f"v_add3_u32 {wa[0]}, {t0}, {t2}, {sT0}")
    a(f"v_xor_b32 {wa[1]}, 32, {wa[0]}")
    a(f"v_and_b32 {t2}, 2, {vc}")
    a(f"v_add_u32 {t2}, {sHI}, {t2}")
    a(f"v_xor_b32 {t2}, {t2}, {t1}")
    a(f"v_lshlrev_b32 {t2}, 4, {t2}")
    a(f"v_and_b32 {t3}, 1, {vc}")
    a(f"v_lshl_add_u32 {t2}, {t3}, 3, {t2}")
    a(f"v_add3_u32 {wa[2]}, {t0}, {t2}, 64")
    def w_reads(WFb, step):
        return [f"ds_read_b64_tr_b16 {WFb[m*3+i][2*rd:2*rd+2]}, {wa[i]} offset:{(step % 5) * 12288 + m * 6144 + rd * 768}"
                for m in range(2) for i in range(3) for rd in range(2)]
    if 'p1' in BS:
        a("s_barrier")
        for l in burst(vm, *BS['p1']): a(l)
        if T2:
            for b0 in eval(OPT['t2b']):
                for l in t2_all(b0): a(l)
                vm.issue('T')
    n = vm.wait_for(lambda t: t in (('X', 0), ('W', 0)))
    a(f"s_waitcnt vmcnt({n})")
    a("s_barrier")
    stamp(a, 1)
    for l in x_reads(XF[0], 0) + w_reads(WF[0], 0): a(l)
    if OPT['fill'] == 0:
        for l in x_dma(vm, 1, 0) + x_dma(vm, 1, 1) + w_dma(2): a(l)
    fq = []
    for st in range(2, 20):
        if st % 2 == 0:
            b = st // 2
            fq += [('X', b, 0, max(0, 2*(b-3)+1)), ('X', b, 1, max(0, 2*(b-3)+1))]
        fq.append(('W', st, 0, max(0, st - 5)))
    for j in range(20):
        cur, nxt = j & 1, (j & 1) ^ 1
        CHK = OPT['chk']
        NB = OPT['nobar']
        if j < NB:
            n = vm.wait_for(lambda t: t in (('X', (j + 1) // 2), ('W', j + 1)) or (j == CHK and t == 'chk') or (j == NB - 1 and t[0] in 'XW'))
            a(f"s_waitcnt vmcnt({n}) lgkmcnt(0)")
            if j == CHK: init_check(vchk)
            a("s_barrier")
        else:
            a("s_waitcnt lgkmcnt(0)")
        sstamp(a, j)
        mains = [f"v_mfma_f32_16x16x32_bf16 {ACC[c][tt]}, {WF[cur][c]}, {XF[cur][tt]}, {'0' if j == 0 else ACC[c][tt]}" for c in range(6) for tt in range(4)]
        pre = burst(vm, *BS[j]) if j in BS else []
        lblk = []
        if j < 19:
            lblk += x_reads(XF[nxt], j + 1) + w_reads(WF[nxt], j + 1)
            if OPT['fill']:
                cnt = OPT['fill'] + (1 if j == 0 else 0)
                while cnt and fq and fq[0][3] <= j:
                    it = fq.pop(0); cnt -= 1
                    lblk += x_dma(vm, it[1], it[2]) if it[0] == 'X' else w_dma(it[1])
            if j == 0 and not OPT['fill']: lblk += w_dma(3) + x_dma(vm, 2, 0) + x_dma(vm, 2, 1) + w_dma(4)
            xb = (j - 1) // 2 + 3 if j >= 1 else 99
            if xb <= 9 and not OPT['fill']: lblk += x_dma(vm, xb, (j - 1) % 2)
            if T2 and j in eval(OPT['t2f']): lblk += t2_one(*eval(OPT['t2f'])[j])
            if j == CHK - 2: lblk += init_check_issue(vchk); vm.issue('chk')
            if j + 5 <= 19 and not OPT['fill']: lblk += w_dma(j + 5)
            if j == 10: lblk += p2_setup()
            if j == 11: lblk += poison(V(248, 4))
            if j == CHK: hq = b_reg(VmTrack(), 0, 'B') + b_reg(VmTrack(), 1, 'B'); hq = [hq[0:3], hq[3:5], [hq[5]] + hq[6:8], hq[8:10], hq[10:12]]
            JJ = [CHK, CHK + 1, 15, 16, 18] if CHK < 14 else [14, 15, 16, 17, 18]
            if j in JJ:
                q = JJ.index(j)
                if not hq[q][0].startswith('s_'): lblk.append(f"s_add_u32 s4, {sBo}, {0 if q < 3 else 20480}")
                lblk += hq[q]; vm.issue('B'); vm.issue('B')
            if j == 15: lblk += b_row_half(vm, 0)
            if j == 16: lblk += b_row_half(vm, 1)
            if j == 17: lblk += b_row(vm, sBg, GRP[GL[2]], LR[2], sRX)
        else:
            lblk += b_reg(vm, 2, 'B') + b_reg(vm, 3, 'B')
        step_body(mains, lblk, pre)
    stamp(a, 2)
    a("s_setprio 2")
    sN = S(82, 2)
    a(f"s_mov_b32 {sN[0]}, {NLOG2E:#x}")
    a(f"s_mov_b32 {sN[1]}, {NLOG2E:#x}")
    a(f"s_lshl_b32 {sT3}, {sRB}, 2")
    a(f"s_add_u32 {sT3}, {sT3}, {sRG}")
    a(f"s_mul_i32 {sT0}, {sT3}, 74")
    a(f"s_mul_i32 {sT1}, {sID}, 3")
    a(f"s_add_u32 {sT0}, {sT0}, {sT1}")
    a(f"s_lshl_b32 {sT0}, {sT0}, 12")
    a(f"s_lshl_b32 {sT1}, {sHI}, 13")
    a(f"s_add_u32 {sT1}, {sT0}, {sT1}")
    a(f"s_lshl_b32 {sT2}, {sHI}, 9")
    a(f"s_add_u32 {sT2}, {sT2}, {sT0}")
    a(f"s_add_u32 {sT2}, {sT2}, 4096")
    a(f"s_lshl_b32 {sFLAG}, {sT3}, 7")
    a(f"s_add_u32 {sFLAG}, {sFLAG}, {FH}")
    a(f"v_lshlrev_b32 {t0}, 4, {lane}")
    a(f"v_and_b32 {t1}, 31, {lane}")
    a(f"v_lshlrev_b32 {t1}, 4, {t1}")
    a(f"v_lshrrev_b32 {t2}, 5, {lane}")
    a(f"v_lshl_add_u32 {t1}, {t2}, 10, {t1}")
    tmp = [V(FB[1] + 4 * i, 4) for i in range(2)]
    outs = [V(FB[1] + 8 + 4 * i, 4) for i in range(6)]
    def silu2(G0, U0, G1, U1, o):
        GU = ((G0, U0, tmp[0]), (G1, U1, tmp[1]))
        for G, U, T in GU:
            for h in range(2): a(f"v_pk_mul_f32 {T[2*h:2*h+2]}, {G[2*h:2*h+2]}, {sN}")
        for G, U, T in GU:
            for k in range(4): a(f"v_exp_f32 {T[k]}, {T[k]}")
        for G, U, T in GU:
            for h in range(2): a(f"v_pk_mul_f32 {G[2*h:2*h+2]}, {G[2*h:2*h+2]}, {U[2*h:2*h+2]}")
        for G, U, T in GU:
            for h in range(2): a(f"v_pk_add_f32 {T[2*h:2*h+2]}, {T[2*h:2*h+2]}, 1.0 op_sel_hi:[1,0]")
        for G, U, T in GU:
            for k in range(4): a(f"v_rcp_f32 {T[k]}, {T[k]}")
        for G, U, T in GU:
            for h in range(2): a(f"v_pk_mul_f32 {G[2*h:2*h+2]}, {G[2*h:2*h+2]}, {T[2*h:2*h+2]}")
        for q, (G, U, T) in enumerate(GU):
            for h in range(2): a(f"v_cvt_pk_bf16_f32 {o[2*q+h]}, {G[2*h]}, {G[2*h+1]}")
    for tt in range(4):
        o = outs[tt]
        silu2(ACC[0][tt], ACC[3][tt], ACC[1][tt], ACC[4][tt], o)
        a(f"buffer_store_dwordx4 {o}, {t0}, {rWS}, {sT1} offen offset:{tt*1024} {ST}")
    for tp in range(2):
        o = outs[4 + tp]
        silu2(ACC[2][2*tp], ACC[5][2*tp], ACC[2][2*tp+1], ACC[5][2*tp+1], o)
        a(f"v_permlane32_swap_b32 {o[0]}, {o[2]}")
        a(f"v_permlane32_swap_b32 {o[1]}, {o[3]}")
        a(f"buffer_store_dwordx4 {o}, {t1}, {rWS}, {sT2} offen offset:{tp*2048} {ST}")
    flag_store(35)
    a(f"s_mov_b32 {sPF}, 0")
    a("s_branch P2")

    a.label('R_QKV')
    vm = VmTrack()
    vw = [V(R0), V(R0 + 1), V(R0 + 2)]; wa = V(R0 + 3); pa = V(R0 + 4); vchk = V(R0 + 5); vgw = V(R0 + 6)
    FB = [32, 68]
    XF = [[V(FB[b] + 4 * tt, 4) for tt in range(4)] for b in range(2)]
    WF = [[V(FB[b] + 16 + 4 * c, 4) for c in range(5)] for b in range(2)]
    ACC = [V(104 + 20 * tt, 20) for tt in range(4)]
    pf4 = [V(32 + 4 * i, 4) for i in range(9)] + [V(196, 4)]
    pf2 = [V(200, 2), V(202, 2), V(204, 2), V(206, 2), V(248, 2)]
    PF = [[pf4[2 * t], pf4[2 * t + 1], pf2[t]] for t in range(5)]
    WP = V(184, 4); GWF = V(188, 4); GA = V(192, 4)
    sC0, sC1, sLo, sHi2, sISQ, sHB, sGD = [S(77 + i) for i in range(7)]
    PHW = 135168; PHB = 0; VVB = 90112; PS = 352
    srd(a, rW, pQKV, 640 * 3840)
    srd(a, rA, pPHI, 32 * 800)
    a(f"s_lshl_b32 {sID}, {sT0}, 1"); a(f"s_add_u32 {sID}, {sID}, {sC8}")
    a(f"s_mul_i32 {sC0}, {sID}, 160")
    a(f"s_add_u32 {sC1}, {sC0}, 2560")
    a(f"s_add_u32 {sC0}, {sC0}, 1280")
    a(f"s_lshl_b32 {sHB}, {sID}, 2")
    a(f"s_mul_i32 {sT1}, {sT0}, 320")
    a(f"s_add_u32 {sT2}, {sT1}, 160")
    a(f"s_lshl_b32 {sT3}, {sT0}, 3")
    a(f"s_cmp_eq_u32 {sC8}, 2")
    a(f"s_cselect_b32 {sC0}, {sT1}, {sC0}")
    a(f"s_cselect_b32 {sC1}, {sT2}, {sC1}")
    a(f"s_cselect_b32 {sHB}, {sT3}, {sHB}")
    a(f"s_cselect_b32 {sISQ}, 1, 0")
    a(f"s_bitcmp1_b32 {sWV}, 0")
    a(f"s_cselect_b32 {sLo}, {sC1}, {sC0}")
    a(f"s_cselect_b32 {sHi2}, {sC0}, {sC1}")
    a(f"s_sub_u32 {sHi2}, {sHi2}, 160")
    touch_setup(pQKV, pQKV, 3840, sC0, sC1, 160)
    for l in burst(vm, *BS['p0']): a(l)
    for n in range(3):
        a(f"v_add_u32 {t0}, {64*n}, {lane}")
        a(f"v_mul_u32_u24 {t1}, 205, {t0}")
        a(f"v_lshrrev_b32 {t1}, 12, {t1}")
        a(f"v_mul_u32_u24 {t2}, 20, {t1}")
        a(f"v_sub_u32 {t2}, {t0}, {t2}")
        a(f"v_cmp_le_u32 vcc, 10, {t2}")
        a(f"v_mov_b32 {t3}, {sLo}")
        a(f"v_mov_b32 {t4}, {sHi2}")
        a(f"v_cndmask_b32 {t3}, {t3}, {t4}, vcc")
        a(f"v_mul_u32_u24 {t1}, 3840, {t1}")
        a(f"v_lshl_add_u32 {t1}, {t2}, 4, {t1}")
        a(f"v_add_u32 {vw[n]}, {t1}, {t3}")
        if n: a(f"v_subrev_u32 {vw[n]}, {1024*n}, {vw[n]}")
    a(f"s_mul_i32 {sWK}, {sWV}, {8*3840}")
    a(f"s_mul_i32 {sMW}, {sWV}, 2560")
    def w_dma2(blk):
        l = [f"s_add_u32 m0, {sMW}, {WB + (blk % 3) * 20480}"] + ([f"s_add_u32 {sWK}, {sWK}, 245760"] if blk else []) + [
             f"buffer_load_dwordx4 {vw[0]}, {rW}, {sWK} offen {OPT['wfl']} lds",
             f"buffer_load_dwordx4 {vw[1]}, {rW}, {sWK} offen offset:1024 {OPT['wfl']} lds",
             "s_mov_b32 exec_hi, 0\n"
             f"buffer_load_dwordx4 {vw[2]}, {rW}, {sWK} offen offset:2048 {OPT['wfl']} lds\n"
             "s_mov_b32 exec_hi, -1"]
        for _ in range(3): vm.issue(('W', blk))
        return l
    a(f"v_lshlrev_b32 {t0}, 4, {tid}")
    a(f"s_mul_i32 {sT0}, {sHB}, 800")
    a(f"v_add_u32 {t0}, {sT0}, {t0}")
    a(f"buffer_load_dwordx4 {WP}, {t0}, {rA}, 0 offen"); vm.issue(('P', 0))
    if OPT['touch']: a("s_barrier")
    for l in x_dma(vm, 0, 0) + x_dma(vm, 0, 1) + w_dma2(0): a(l)
    x_addr_setup()
    a(f"v_lshl_add_u32 {t0}, {vqd}, 3, {vr}")
    a(f"v_mul_u32_u24 {t0}, 320, {t0}")
    a(f"v_and_b32 {t1}, 1, {vqd}")
    a(f"v_xor_b32 {t1}, {sHI}, {t1}")
    a(f"v_mul_u32_u24 {t1}, 160, {t1}")
    a(f"v_mul_u32_u24 {t2}, 40, {vc}")
    a(f"v_add3_u32 {t0}, {t0}, {t1}, {t2}")
    a(f"v_add_u32 {wa}, {WB}, {t0}")
    a(f"s_and_b32 {sT0}, {sHI}, {sISQ}")
    a(f"s_mul_i32 {sT0}, {sT0}, 3200")
    a(f"s_add_u32 {sT0}, {sT0}, {PHW}")
    a(f"v_mul_u32_u24 {t0}, 800, {vqd}")
    a(f"v_add_u32 {t0}, {sT0}, {t0}")
    a(f"v_mov_b32 {t1}, {ZERO}")
    a(f"v_cmp_eq_u32 vcc, {vc}, {vqd}")
    a(f"v_cndmask_b32 {t0}, {t1}, {t0}, vcc")
    a(f"v_mul_u32_u24 {t1}, 40, {vr}")
    a(f"v_add_u32 {pa}, {t0}, {t1}")
    def w_reads2(WFb, step):
        blk, kk = step // 2, step % 2
        return [f"ds_read_b64_tr_b16 {WFb[t][2*rd:2*rd+2]}, {wa} offset:{(blk % 3) * 20480 + kk * 10240 + rd * 1280 + 8 * t}" for t in range(5) for rd in range(2)]
    if 'p1' in BS:
        a("s_barrier")
        for l in burst(vm, *BS['p1']): a(l)
        if T2:
            for b0 in eval(OPT['t2b']):
                for l in t2_all(b0): a(l)
                vm.issue('T')
    n = vm.wait_for(lambda t: t in (('X', 0), ('W', 0)))
    a(f"s_waitcnt vmcnt({n})")
    a("s_barrier")
    stamp(a, 1)
    for l in x_reads(XF[0], 0) + w_reads2(WF[0], 0): a(l)
    if OPT['fill'] == 0:
        for l in x_dma(vm, 1, 0) + x_dma(vm, 1, 1) + w_dma2(1): a(l)
    fq = []
    for b in range(1, 10):
        fq += [('X', b, max(0, 2*(b-3)+1)), ('W', b, max(0, 2*(b-3)+1))]
    for j in range(20):
        cur, nxt = j & 1, (j & 1) ^ 1
        if j % 2 == 1:
            if j < 19:
                n = vm.wait_for(lambda t: t in (('X', (j + 1) // 2), ('W', (j + 1) // 2)) or (j == 17 and t == 'chk'))
                a(f"s_waitcnt vmcnt({n}) lgkmcnt(0)")
            else: a("s_waitcnt lgkmcnt(0)")
            if j == 17: init_check(vchk)
            a("s_barrier")
        else:
            a("s_waitcnt lgkmcnt(0)")
            if OPT['pp'] or OPT['qbar']: a("s_barrier")
        sstamp(a, j)
        mains = [f"v_mfma_f32_16x16x32_bf16 {ACC[tt][4*t:4*t+4]}, {WF[cur][t]}, {XF[cur][tt]}, {'0' if j == 0 else ACC[tt][4*t:4*t+4]}" for t in range(5) for tt in range(4)]
        pre = burst(vm, *BS[j]) if j in BS else []
        lblk = []
        if j < 19:
            lblk += x_reads(XF[nxt], j + 1) + w_reads2(WF[nxt], j + 1)
            if OPT['fill']:
                cnt = 2 if j in (0, 1, 3, 5) else 1
                while cnt and fq and fq[0][2] <= j:
                    it = fq.pop(0); cnt -= 1
                    lblk += x_dma(vm, it[1], 0) + x_dma(vm, it[1], 1) if it[0] == 'X' else w_dma2(it[1])
            if j == 0 and not OPT['fill']: lblk += x_dma(vm, 2, 0) + x_dma(vm, 2, 1) + w_dma2(2)
            xb = (j - 1) // 2 + 3 if j >= 1 else 99
            if xb <= 9 and not OPT['fill']:
                if j % 2 == 1: lblk += x_dma(vm, xb, 0) + x_dma(vm, xb, 1)
                else: lblk += w_dma2(xb)
            if T2 and j in eval(OPT['t2q']): lblk += t2_one(*eval(OPT['t2q'])[j])
            if j == 15: lblk += init_check_issue(vchk); vm.issue('chk')
            if j == 17:
                lblk += [f"v_lshlrev_b32 {t0}, 4, {tid}", f"v_add_u32 {t0}, {PHW}, {t0}", f"ds_write_b128 {t0}, {WP}"]
            if j == 10: lblk += p2_setup()
            if j == 12: lblk += poison(V(208, 4))

        else:
            for t in range(5):
                for s in range(3):
                    for r_ in range(2 if s < 2 else 1):
                        lblk.append(f"ds_read_b64_tr_b16 {PF[t][s][2*r_:2*r_+2]}, {pa} offset:{s*320 + r_*160 + t*8}")
        step_body(mains, lblk, pre)
    stamp(a, 2)
    a("s_setprio 2")
    QB = V(68, 40); P = V(108, 20); E = V(128, 40); O = V(168, 20); M = V(250, 4); T = V(188, 4); ONE = V(192, 2)
    sCNT = S(8); sOUT = S(9)
    def cvt_tile(dst, tt):
        for i in range(10): a(f"v_cvt_pk_bf16_f32 {dst[i]}, {ACC[tt][2*i]}, {ACC[tt][2*i+1]}")
    def pk_list(q, P=P):
        l = []
        for s_ in range(3):
            for t in range(5):
                d = P[4*t:4*t+4]
                if s_ < 2: l.append(f"v_mfma_f32_16x16x32_bf16 {d}, {PF[t][s_]}, {q[4*s_:4*s_+4]}, {'0' if s_ == 0 else d}")
                else: l.append(f"v_mfma_f32_16x16x16_bf16 {d}, {PF[t][s_]}, {q[8:10]}, {d}")
        return l
    a(f"s_lshl_b32 {sT3}, {sRB}, 2")
    a(f"s_add_u32 {sT3}, {sT3}, {sRG}")
    a(f"s_cmp_eq_u32 {sISQ}, 0")
    a("s_cbranch_scc1 R_KV")
    for tt in range(4): cvt_tile(QB[10*tt:10*tt+10], tt)
    a("s_waitcnt vmcnt(0) lgkmcnt(0)")
    PT = [V(108 + 20*i, 20) for i in range(4)]
    a(f"s_lshr_b32 {sT1}, {sHB}, 2")
    a(f"s_add_u32 {sT1}, {sT1}, {sHI}")
    a(f"s_lshl_b32 {sOUT}, {sT3}, 3")
    a(f"s_add_u32 {sOUT}, {sOUT}, {sT1}")
    a(f"s_mul_i32 {sOUT}, {sOUT}, 10240")
    a(f"s_add_u32 {sOUT}, {sOUT}, {PQ}")
    a(f"s_add_u32 {sT0}, {sOUT}, 8192")
    a(f"s_lshl_b32 {sFLAG}, {sT3}, 7")
    a(f"s_add_u32 {sFLAG}, {sFLAG}, {FH + 4}")
    QO = [V(208 + 8*i, 8) for i in range(4)]; QT = [V(240, 4), V(244, 4)]
    def q_out(tt):
        l = [f"v_cvt_pk_bf16_f32 {QO[tt][i] if i < 8 else QT[tt//2][2*(tt%2) + i - 8]}, {PT[tt][2*i]}, {PT[tt][2*i+1]}" for i in range(10)]
        for h in range(2): l.append(f"buffer_store_dwordx4 {QO[tt][4*h:4*h+4]}, {vo if tt < 2 else vo4}, {rWS}, {sOUT} offen offset:{(tt%2)*2048 + h*1024} {ST}")
        if tt % 2: l.append(f"buffer_store_dwordx4 {QT[tt//2]}, {vo}, {rWS}, {sT0} offen offset:{(tt//2)*1024} {ST}")
        return l
    for tt in range(4):
        side = q_out(tt - 1) if tt else []
        for i, l in enumerate(pk_list(QB[10*tt:10*tt+10], PT[tt])):
            a(l)
            if i >= 2 and side: a(side.pop(0))
    for l in q_out(3): a(l)
    flag_store(11)
    a(f"s_mov_b32 {sPF}, 6")
    a("s_branch P2")
    a.label('R_KV')
    a(f"s_lshl_b32 {sT1}, {sRG}, 1"); a(f"s_add_u32 {sT0}, {sT1}, 1"); a(f"s_mul_i32 {sT0}, {sT0}, {32*PS}")
    a(f"v_add_u32 {t0}, {sT0}, {vo}")
    a(f"s_mov_b32 {sCNT}, 2")
    a(f"s_cmp_eq_u32 {sHI}, 1")
    a("s_cbranch_scc1 R_V")
    cvt_tile(QB[0:10], 0)
    cvt_tile(QB[20:30], 2); cvt_tile(QB[30:40], 3)
    for i in range(5): a(f"ds_write_b128 {t0}, {QB[20+4*i:24+4*i]} offset:{i*1024}")
    cvt_tile(QB[10:20], 1)
    a("s_waitcnt lgkmcnt(0)")
    a("s_barrier")
    for l in pk_list(QB[0:10]): a(l)
    a("s_branch R_KV2")
    a.label('R_V')
    VBt = {3: V(88, 10), 0: V(98, 10), 1: V(168, 10), 2: V(178, 10)}
    for tt in (3, 0, 1, 2): cvt_tile(VBt[tt], tt)
    a(f"s_mul_i32 {sT2}, {sRG}, {64*176}")
    a(f"s_add_u32 {sT2}, {sT2}, {VVB}")
    a(f"v_mul_u32_u24 {t2}, 176, {vl15}")
    a(f"v_add_u32 {t1}, {sT2}, {t2}")
    a(f"v_mul_u32_u24 {t3}, 40, {vqd}")
    a(f"v_add_u32 {t2}, {t1}, {t3}")
    a(f"v_mov_b32 {ONE[0]}, 0x3f80")
    a(f"v_mov_b32 {ONE[1]}, 0")
    a("s_barrier")
    for i in range(5): a(f"ds_read_b128 {QB[4*i:4*i+4]}, {t0} offset:{i*1024}")
    side = []
    for tt in (3, 0, 1, 2):
        for i in range(5): side.append(f"ds_write_b64 {t2}, {VBt[tt][2*i:2*i+2]} offset:{tt*2816 + 8*i}")
        side.append(f"ds_write_b64 {t1}, {ONE} offset:{tt*2816 + 160}")
    for i in range(9): a(side.pop(0))
    a("s_waitcnt lgkmcnt(9)")
    for l in pk_list(QB[0:10]): a(l); a(side.pop(0))
    a.label('R_KV2')
    a(f"s_add_u32 {sT1}, {sT1}, {sHI}"); a(f"s_mul_i32 {sT1}, {sT1}, {32*PS}")
    a(f"v_mul_u32_u24 {t4}, {PS}, {vl15}")
    a(f"v_mul_u32_u24 {t3}, 80, {vqd}")
    a(f"v_add3_u32 {t4}, {t4}, {t3}, {sT1}")
    stamp(a, 12)
    for u in range(2):
        if u == 0:
            bl = b_reg(vm, 0, 'B') + b_reg(vm, 1, 'B'); pl = pk_list(QB[10:20])
            sd = [pl[i] + ("\n" + bl[i] if i < len(bl) else "") for i in range(15)]
        else: sd = b_reg(vm, 2, 'B') + b_reg(vm, 3, 'B')
        softmax_unit(a, P, E, M, T, O, sd + ["s_waitcnt lgkmcnt(0)"])
        for s_ in range(5): a(f"ds_write_b128 {t4}, {O[4*s_:4*s_+4]} offset:{PHB + u*16*PS + 16*s_}")
    a(f"v_lshl_add_u32 {t0}, {vqd}, 2, {vr}")
    a(f"v_mul_u32_u24 {t1}, {PS}, {t0}")
    a(f"s_mul_i32 {sT0}, {sRG}, 80")
    a(f"v_lshl_add_u32 {t1}, {vc}, 3, {t1}")
    a(f"v_add_u32 {t1}, {sT0}, {t1}")
    a(f"v_add_u32 {t2}, {128*PS}, {t1}")
    a(f"v_mul_u32_u24 {t0}, 176, {t0}")
    a(f"s_mul_i32 {sT0}, {sRG}, 40")
    a(f"s_mul_i32 {sT1}, {sHI}, 24")
    a(f"s_add_u32 {sT0}, {sT0}, {sT1}")
    a(f"v_lshl_add_u32 {t3}, {vc}, 3, {sT0}")
    a(f"v_mul_u32_u24 {t4}, {sHI}, {vc}")
    a(f"v_cmp_lt_u32 vcc, 1, {t4}")
    a(f"v_mov_b32 {t4}, 160")
    a(f"v_cndmask_b32 {t3}, {t3}, {t4}, vcc")
    a(f"v_add_u32 {t3}, {VVB}, {t3}")
    a(f"v_add_u32 {t3}, {t0}, {t3}")
    stamp(a, 13)
    a("s_waitcnt lgkmcnt(0)")
    a("s_barrier")
    stamp(a, 14)
    a(f"s_lshl_b32 {sFLAG}, {sID}, 7"); a(f"s_add_u32 {sFLAG}, {sFLAG}, {FK}")
    def k_hint():
        a("v_mov_b32 v29, 1"); a("v_mov_b32 v11, 0")
        a(f"s_cmp_lg_u32 {sWV}, 7"); a("s_cbranch_scc1 KH1")
        a("s_mov_b64 exec, 1"); a(f"buffer_atomic_add v29, v11, {rWS}, {sFLAG} offen sc0 sc1"); a("s_mov_b64 exec, -1")
        a.label('KH1')
    if OPT['kh'] == 0: k_hint()
    KA = [[V(72 + (b*4 + f)*4, 4) for f in range(4)] for b in range(3)]
    KD = [V(128 + 4*f, 4) for f in range(3)]
    def kv_reads(b, s):
        l = []
        for rd in range(2):
            l.append(f"ds_read_b64_tr_b16 {KA[b][3][2*rd:2*rd+2]}, {t3} offset:{s*5632 + rd*2816}")
        for f in range(3):
            for rd in range(2):
                l.append(f"ds_read_b64_tr_b16 {KA[b][f][2*rd:2*rd+2]}, {t1 if s < 4 else t2} offset:{(s % 4)*32*PS + rd*16*PS + f*32}")
        return l
    allr = [l for s in range(8) for l in kv_reads(s % 3, s)]
    pos = 0
    for s in range(8):
        for f in range(3):
            needr = s * 8 + 2 + 2 * (f + 1)
            lim = min(len(allr), needr + 12, (s + 2) * 8 + (2 + 2 * f if False else 0) + 8 - 8 + 0) if False else min(len(allr), needr + 12)
            lim = min(lim, (s + 3) * 8)
            while pos < lim: a(allr[pos]); pos += 1
            a(f"s_waitcnt lgkmcnt({pos - needr})")
            a(f"v_mfma_f32_16x16x32_bf16 {KD[f]}, {KA[s%3][f]}, {KA[s%3][3]}, {'0' if s == 0 else KD[f]}")
    stamp(a, 15)
    a(f"s_add_u32 {sT0}, {sHB}, {sRG}")
    a(f"s_lshl_b32 {sT0}, {sT0}, 1")
    a(f"s_add_u32 {sT0}, {sT0}, {sHI}")
    a(f"s_mul_i32 {sT0}, {sT0}, 3072")
    a(f"s_add_u32 {sT0}, {sT0}, {KVACC}")
    if OPT['kh'] == 1: k_hint()
    def k_go(n):
        a(f"s_cmp_lg_u32 {sWV}, 7"); a("s_cbranch_scc1 KH2")
        a(f"s_waitcnt vmcnt({n})")
        a("v_cmp_eq_u32 vcc, 7, v29"); a(f"s_add_u32 s4, {sFLAG}, {GOD}"); a("s_and_b64 exec, vcc, 1")
        a(f"buffer_store_dword v29, v11, {rWS}, s4 offen sc1"); a("s_mov_b64 exec, -1")
        a.label('KH2')
    if OPT['kh'] == 0: k_go(0)
    a(f"v_lshlrev_b32 {t2}, 2, {lane}")
    a(f"v_cmp_eq_u32 vcc, 15, {vl15}")
    for f in range(3):
        for j in range(4): a(f"v_cndmask_b32 {KD[f][j]}, {KD[f][j]}, 1.0, vcc")
    for f in range(3):
        if f == 2: a("s_mov_b32 exec_hi, 0")
        for j in range(4):
            a(f"buffer_atomic_add_f32 {KD[f][j]}, {t2}, {rWS}, {sT0} offen offset:{f*1024 + j*256} {OPT['atf']}")
    a("s_mov_b32 exec_hi, -1")
    if OPT['kh'] == 1: k_go(12)
    flag_store(-1)
    a(f"s_mov_b32 {sPF}, 4")
    a("s_branch P2")

    a.label('R_SPARE')
    sSP, sU, sSO, sST = S(77), S(78), S(79), S(80)
    va = Alloc('v', 176, 250)
    vf = [va() for _ in range(5)]; vat = [va() for _ in range(5)]
    rf = [va() for _ in range(5)]; rat = [va(), va()]
    vst = va(); vst4 = va()
    FR = [[va(4) for _ in range(5)] for b in range(2)]
    Z4 = va(4)
    NT = OPT['spnt']
    if T2:
        for b0 in eval(OPT['t2b']):
            for l in t2_all(b0): a(l)
    srd(a, rA, pWD, 1728 * 1280)
    srd(a, rB, pWO, 640 * 1280)
    a(f"s_lshr_b32 {sSP}, {sT0}, 1")
    a(f"s_lshl_b32 {sSP}, {sSP}, 3")
    a(f"s_add_u32 {sSP}, {sSP}, {sRB}")
    a(f"s_lshl_b32 {sT0}, {sWV}, 2")
    a(f"s_mul_i32 {sT1}, {sWV}, 20")
    for n in range(5):
        a(f"v_add_u32 {t0}, {64*n}, {lane}")
        a(f"v_mul_u32_u24 {t1}, 205, {t0}")
        a(f"v_lshrrev_b32 {t1}, 14, {t1}")
        a(f"v_mul_u32_u24 {t2}, 80, {t1}")
        a(f"v_sub_u32 {t2}, {t0}, {t2}")
        a(f"v_add_u32 {t1}, {sT0}, {t1}")
        a(f"v_and_b32 {t3}, 7, {t1}")
        a(f"v_lshlrev_b32 {t3}, 1, {t3}")
        a(f"v_xor_b32 {t2}, {t2}, {t3}")
        a(f"v_mul_u32_u24 {t1}, 1280, {t1}")
        a(f"v_lshl_add_u32 {vf[n]}, {t2}, 4, {t1}")
        if n % 4: a(f"v_subrev_u32 {vf[n]}, {1024*(n%4)}, {vf[n]}")
    a(f"s_mul_i32 {sM}, {sWV}, 5120")
    def u_dma(buf, typ):
        if typ == 'F':
            a(f"s_mul_i32 {sSO}, {sU}, 40960")
            vv, rr = vf, rA
        else:
            a(f"s_sub_u32 {sT2}, {sU}, 54")
            a(f"s_mul_i32 {sT3}, {sT2}, 52")
            a(f"s_lshr_b32 {sT3}, {sT3}, 8")
            a(f"s_mul_i32 {sSO}, {sT3}, {160*1280 - 5*256}")
            a(f"s_lshl_b32 {sT2}, {sT2}, 8")
            a(f"s_add_u32 {sSO}, {sSO}, {sT2}")
            vv, rr = vat, rB
        a(f"s_add_u32 m0, {sM}, {buf*40960}")
        for n in range(4):
            a(f"buffer_load_dwordx4 {vv[n]}, {rr}, {sSO} offen offset:{n*1024} {NT} lds")
        a(f"s_add_u32 m0, {sM}, {buf*40960 + 4096}")
        a(f"buffer_load_dwordx4 {vv[4]}, {rr}, {sSO} offen {NT} lds")
    def dyn(it, fn):
        if it == 4:
            a(f"s_add_u32 {sU}, {sSP}, 64"); a(f"s_min_u32 {sU}, {sU}, 73"); fn('A'); return
        a(f"s_add_u32 {sU}, {sSP}, {16*it}")
        if it <= 2: fn('F')
        else:
            l1, l2 = a.newlabel('SP'), a.newlabel('SP')
            a(f"s_cmp_ge_u32 {sU}, 54"); a(f"s_cbranch_scc1 {l1}")
            fn('F'); a(f"s_branch {l2}"); a.label(l1); fn('A'); a.label(l2)
    for it in range(3): dyn(it, lambda typ: u_dma(it, typ))
    a(f"v_lshlrev_b32 {t0}, 4, {tid}")
    for i in range(4): a(f"v_mov_b32 {Z4[i]}, 0")
    a(f"s_mul_i32 {sT2}, {sSP}, 13568")
    a(f"s_add_u32 {sT2}, {sT2}, {KVACC}")
    a(f"buffer_store_dwordx4 {Z4}, {t0}, {rWS}, {sT2} offen {ST}")
    a(f"s_add_u32 {sT2}, {sT2}, {13568 - 8192}")
    a(f"buffer_store_dwordx4 {Z4}, {t0}, {rWS}, {sT2} offen {ST}")
    for n in range(5):
        a(f"v_add_u32 {t1}, {4*n}, {vqd}")
        a(f"v_add_u32 {t1}, {sT1}, {t1}")
        a(f"v_and_b32 {t3}, 7, {t1}")
        a(f"v_lshlrev_b32 {t3}, 1, {t3}")
        a(f"v_xor_b32 {t2}, {vl15}, {t3}")
        a(f"v_mul_u32_u24 {t1}, 1280, {t1}")
        a(f"v_lshl_add_u32 {vat[n]}, {t2}, 4, {t1}")
        if n % 4: a(f"v_subrev_u32 {vat[n]}, {1024*(n%4)}, {vat[n]}")
    a(f"v_lshl_add_u32 {t0}, {vqd}, 2, {vr}")
    a(f"v_and_b32 {t1}, 7, {t0}")
    a(f"v_lshlrev_b32 {t1}, 1, {t1}")
    a(f"v_mul_u32_u24 {t0}, 1280, {t0}")
    a(f"v_and_b32 {t2}, 1, {vc}")
    a(f"v_lshl_add_u32 {t0}, {t2}, 3, {t0}")
    a(f"v_lshrrev_b32 {t3}, 1, {vc}")
    a(f"s_mul_i32 {sT0}, {sWV}, 10")
    a(f"v_add_u32 {t4}, {sT0}, {t3}")
    for j in range(5):
        a(f"v_add_u32 {rf[j]}, {2*j}, {t4}")
        a(f"v_xor_b32 {rf[j]}, {rf[j]}, {t1}")
        a(f"v_lshl_add_u32 {rf[j]}, {rf[j]}, 4, {t0}")
    a(f"v_mul_u32_u24 {t0}, 20, {vqd}")
    a(f"v_add_u32 {t0}, {t0}, {vr}")
    a(f"v_lshlrev_b32 {t0}, 8, {t0}")
    a(f"v_lshl_add_u32 {t0}, {t2}, 3, {t0}")
    a(f"s_lshl_b32 {sT0}, {sWV}, 1")
    a(f"v_add_u32 {t4}, {sT0}, {t3}")
    a(f"v_xor_b32 {t4}, {t4}, {t1}")
    a(f"v_lshl_add_u32 {rat[0]}, {t4}, 4, {t0}")
    a(f"v_xor_b32 {rat[1]}, 128, {rat[0]}")
    a(f"v_lshlrev_b32 {vst}, 4, {lane}")
    a(f"v_add_u32 {vst4}, 4096, {vst}")
    def u_proc(buf, typ, F):
        if typ == 'F':
            for j in range(5):
                a(f"v_add_u32 {t0}, {buf*40960}, {rf[j]}")
                for rd in range(2):
                    a(f"ds_read_b64_tr_b16 {F[j][2*rd:2*rd+2]}, {t0} offset:{rd*20480}")
            a(f"s_mul_i32 {sST}, {sWV}, 74")
            a(f"s_add_u32 {sST}, {sST}, {sU}")
            a(f"s_mul_i32 {sST}, {sST}, 5120")
            a(f"s_add_u32 {sST}, {sST}, {BP}")
            a("s_waitcnt lgkmcnt(0)")
            for j in range(5):
                if j < 4: a(f"buffer_store_dwordx4 {F[j]}, {vst}, {rWS}, {sST} offen offset:{j*1024} {ST}")
                else: a(f"buffer_store_dwordx4 {F[j]}, {vst4}, {rWS}, {sST} offen {ST}")
        else:
            bases = [(0, 4), (8, 12), (16, 96), (80, 84), (88, 92)]
            a(f"v_add_u32 {t0}, {buf*40960}, {rat[0]}")
            a(f"v_add_u32 {t1}, {buf*40960}, {rat[1]}")
            for s5 in range(5):
                for rd in range(2):
                    b = bases[s5][rd]
                    a(f"ds_read_b64_tr_b16 {F[s5][2*rd:2*rd+2]}, {t1 if b % 8 else t0} offset:{b*256}")
            a(f"s_sub_u32 {sT2}, {sU}, 54")
            a(f"s_mul_i32 {sT3}, {sT2}, 52")
            a(f"s_lshr_b32 {sT3}, {sT3}, 8")
            a(f"s_mul_i32 {sT0}, {sT3}, 5")
            a(f"s_sub_u32 {sT2}, {sT2}, {sT0}")
            a(f"s_lshl_b32 {sT2}, {sT2}, 3")
            a(f"s_add_u32 {sT2}, {sT2}, {sWV}")
            a(f"s_mul_i32 {sT1}, {sT2}, 52")
            a(f"s_lshr_b32 {sT1}, {sT1}, 8")
            a(f"s_mul_i32 {sST}, {sT1}, 5")
            a(f"s_sub_u32 {sT2}, {sT2}, {sST}")
            a(f"s_mul_i32 {sST}, {sT1}, 74")
            a(f"s_add_u32 {sST}, {sST}, {sT0}")
            a(f"s_add_u32 {sST}, {sST}, 54")
            a(f"s_mul_i32 {sST}, {sST}, 5120")
            a(f"s_lshl_b32 {sT2}, {sT2}, 10")
            a(f"s_add_u32 {sST}, {sST}, {sT2}")
            a(f"s_add_u32 {sST}, {sST}, {BP}")
            a("s_waitcnt lgkmcnt(0)")
            for s5 in range(5):
                a(f"buffer_store_dwordx4 {F[s5]}, {vst}, {rWS}, {sST} offen {ST}")
                if s5 < 4: a(f"s_add_u32 {sST}, {sST}, 5120")
    vm = VmTrack()
    for t in ['D0']*5 + ['D1']*5 + ['D2']*5 + ['Z']*2: vm.issue(t)
    def sp_signal(k):
        lsk = a.newlabel('SPD')
        a(f"s_cmp_lg_u32 {sWV}, 7"); a(f"s_cbranch_scc1 {lsk}")
        a(f"v_mov_b32 {t2}, 0"); a(f"v_mov_b32 {t3}, 1")
        a("s_mov_b64 exec, 1")
        a(f"buffer_atomic_add {t3}, {t2}, {rDBG}, 0 offen offset:{4*k} sc0 sc1")
        a("s_waitcnt vmcnt(0)")
        a(f"v_cmp_eq_u32 vcc, 15, {t3}")
        a("s_and_b64 exec, exec, vcc")
        a(f"buffer_store_dword {t3}, {t2}, {rDBG}, 0 offen offset:{128 + 4*k} sc1")
        a("s_mov_b64 exec, -1")
        a.label(lsk)
    for it in range(5):
        n = vm.wait_for(lambda t: t == f'D{it}' or (it == 3 and t == 'S2'))
        a(f"s_waitcnt vmcnt({n})")
        a("s_barrier")
        if it == 3: sp_signal(0); stamp(a, 1)
        dyn(it, lambda typ: u_proc(it % 3, typ, FR[it & 1]))
        for _ in range(5): vm.issue(f'S{it}')
        if it in (1, 2):
            dyn(it + 2, lambda typ: u_dma(it - 1, typ))
            for _ in range(5): vm.issue(f'D{it+2}')
    a("s_waitcnt vmcnt(0)")
    a("s_barrier")
    sp_signal(1)
    stamp(a, 2)
    GW = [V(72 + 4*i, 4) for i in range(5)]
    GX = [[V(96 + (g*5 + i)*4, 4) for i in range(5)] for g in range(4)]
    GA = [V(92 + g) for g in range(4)]
    srd(a, rW, pGW, 1280)
    a(f"v_lshlrev_b32 {t0}, 4, {vl15}")
    for i in range(5): a(f"buffer_load_dwordx4 {GW[i]}, {t0}, {rW}, 0 offen offset:{i*256}")
    a(f"v_mul_u32_u24 {t1}, 1280, {vqd}")
    a(f"v_add_u32 {t0}, {t0}, {t1}")
    a(f"s_lshl_b32 {sT3}, {sSP}, 3")
    a(f"s_add_u32 {sT3}, {sT3}, {sWV}")
    a(f"s_mul_i32 {sT2}, {sT3}, {16*1280}")
    for g in range(4):
        for i in range(5): a(f"buffer_load_dwordx4 {GX[g][i]}, {t0}, {rX}, {sT2} offen offset:{i*256}")
        if g < 3: a(f"s_add_u32 {sT2}, {sT2}, {4*1280}")
    for g in range(4): a(f"v_mov_b32 {GA[g]}, 0")
    init_poll(a, t1, 128)
    for i in range(5):
        for k in range(4):
            for g in range(4): a(f"v_dot2c_f32_bf16 {GA[g]}, {GX[g][i][k]}, {GW[i][k]}")
    for sh in (8, 4, 2, 1):
        for g in range(4): a(f"v_add_f32_dpp {GA[g]}, {GA[g]}, {GA[g]} row_ror:{sh} row_mask:0xf bank_mask:0xf")
    for g in range(4): a(f"v_mul_f32 {GA[g]}, {NLOG2E:#x}, {GA[g]}")
    for g in range(4): a(f"v_exp_f32 {GA[g]}, {GA[g]}")
    for g in range(4): a(f"v_add_f32 {GA[g]}, 1.0, {GA[g]}")
    for g in range(4): a(f"v_rcp_f32 {GA[g]}, {GA[g]}")
    a(f"v_mov_b32 {t2}, {GA[0]}")
    for g in range(1, 4):
        a(f"v_cmp_eq_u32 vcc, {g}, {vl15}"); a(f"v_cndmask_b32 {t2}, {t2}, {GA[g]}, vcc")
    a(f"v_lshl_add_u32 {t0}, {vl15}, 2, {vqd}")
    a(f"v_lshlrev_b32 {t3}, 2, {t0}")
    a(f"s_lshl_b32 {sT2}, {sT3}, 6"); a(f"s_add_u32 {sT2}, {sT2}, {GOFF}")
    a("s_mov_b32 exec_lo, 0x000f000f"); a("s_mov_b32 exec_hi, 0x000f000f")
    a(f"buffer_store_dword {t2}, {t3}, {rWS}, {sT2} offen {ST}")
    a("s_mov_b64 exec, -1")
    a(f"s_lshr_b32 {sFLAG}, {sT3}, 2"); a(f"s_lshl_b32 {sFLAG}, {sFLAG}, 7"); a(f"s_add_u32 {sFLAG}, {sFLAG}, {FH + 4}")
    flag_store(11)

    vm = VmTrack()
    a(f"s_mov_b32 {sPF}, 7")
    a.label('P2')
    stamp(a, 3)
    a(f"s_bitcmp0_b32 {sPF}, 0"); a("s_cbranch_scc1 P2_E1")
    for l in p2_setup() + poison(V(208, 4)): a(l)
    a.label('P2_E1')
    vG = V(16, 4); vz = V(11); ka = V(12); kw = V(13); vbl = V(15); vcn = V(14)
    ACC = [[V(72 + (tt * 5 + j) * 4, 4) for j in range(5)] for tt in range(4)]
    ARl = [V(152 + 4 * i, 4) for i in range(14)] + [V(248, 4), V(24, 4)]
    AR = [ARl[4*b:4*b+4] for b in range(4)]
    sFHo = S(78)
    rOUT = rX
    a(f"v_mov_b32 {vz}, 0")
    a(f"v_mov_b32 {vcn}, {CNT}")
    a(f"v_add_u32 {vbl}, {sLC}, {vo}")
    vbl2 = V(23)
    a(f"v_add_u32 {vbl2}, {3*20480}, {vbl}")
    def lrow(row, j):
        return (vbl, row*20480 + j*1024) if row < 3 else (vbl2, (row-3)*20480 + j*1024)
    def a_loads(i, tag, vts=None, r=None):
        b = i % 4; r = r or rWS
        l = [f"s_add_u32 {sT0}, {sAo}, {((i*16384 if i < 4 else CA0 + (i-4)*16384) if vts else GRP[i]*16384)}"]
        for tt in range(4):
            if vts: l.append(f"buffer_load_dwordx4 {AR[b][tt]}, {vts[tt]}, {r}, {sT0} offen {LD}")
            else: l.append(f"buffer_load_dwordx4 {AR[b][tt]}, {vo}, {r}, {sT0} offen offset:{tt*1024} {LD}")
            vm.issue(tag)
        return l
    def b_fromlds(i, row):
        return ["ds_read_b128 %s, %s offset:%d" % ((BR[i % 4][j],) + lrow(row, j)) for j in range(5)]
    def mm(b, zero, side=[]):
        side = list(side)
        for j in range(5):
            for tt in range(4):
                d = ACC[tt][j]
                a(f"v_mfma_f32_16x16x32_bf16 {d}, {BR[b][j]}, {AR[b][tt]}, {'0' if tt in zero else d}")
                while side and side[0].startswith('s_'): a(side.pop(0))
                if side and tt % 2 == 1: a(side.pop(0))
        for l in side: a(l)
    def g_load():
        a(f"s_lshl_b32 {sT0}, {sR6}, 8"); a(f"s_add_u32 {sT0}, {sT0}, {GOFF}")
        a(f"v_lshlrev_b32 {t0}, 4, {vl15}")
        a(f"buffer_load_dwordx4 {vG}, {t0}, {rWS}, {sT0} offen {LD}")
    def lds_signal(off):
        a(f"v_mov_b32 {t1}, 1")
        a("s_waitcnt lgkmcnt(0)")
        a("s_mov_b64 exec, 1")
        a(f"ds_add_u32 {vcn}, {t1} offset:{off}")
        a("s_mov_b64 exec, -1")
    def lds_wait(off, n):
        L = a.newlabel('LW')
        a.label(L)
        a(f"ds_read_b32 {t1}, {vcn} offset:{off}")
        a("s_waitcnt lgkmcnt(0)")
        a(f"v_readfirstlane_b32 {sT0}, {t1}")
        a(f"s_cmp_ge_u32 {sT0}, {n}")
        a(f"s_cbranch_scc1 {L}d")
        a("s_sleep 1")
        a(f"s_branch {L}")
        a.label(L + 'd')
    vAT = V(29); vFQ = V(28)
    a(f"s_lshl_b32 {sFHo}, {sR6}, 7"); a(f"s_add_u32 {sFHo}, {sFHo}, {FH + GOD}")
    a(f"buffer_load_dword {vS2}, {vz}, {rDBG}, 0 offen offset:132 sc1")
    a(f"buffer_load_dword {vFQ}, {vz}, {rWS}, {sFHo} offen offset:4 sc1")
    a(f"v_mov_b32 {vAT}, 1"); a(f"v_mov_b32 {t1}, 1")
    a("s_waitcnt vmcnt(0) lgkmcnt(0)")
    a("s_mov_b64 exec, 1")
    a(f"ds_add_rtn_u32 {t1}, {vcn}, {t1} offset:16")
    a(f"s_cmp_eq_u32 {sPF}, 4"); a("s_cbranch_scc1 P2_A2")
    a(f"buffer_atomic_add {vAT}, {vz}, {rWS}, {sFLAG} offen sc0 sc1")
    a.label('P2_A2')
    a("s_mov_b64 exec, -1")
    def go_logic(n, st=True):
        lb = a.newlabel('GO')
        a(f"s_waitcnt vmcnt({n})")
        a(f"v_readfirstlane_b32 {sP[0]}, {vAT}")
        a(f"s_add_u32 {sP[1]}, {sFLAG}, {GOD}")
        a(f"s_cmp_lg_u32 {sP[0]}, {sNEED}")
        a(f"s_cbranch_scc1 {lb}")
        a("s_mov_b64 exec, 1")
        a(f"buffer_store_dword {vAT}, {vz}, {rWS}, {sP[1]} offen sc1")
        a("s_mov_b64 exec, -1")
        a.label(lb)
        if st: stamp(a, 4)
    a(f"s_cmp_eq_u32 {sHI}, 0")
    a("s_cbranch_scc1 P2_C")
    go_logic(0)
    a("s_setprio 0")
    init_check(vS2, 132)
    if OPT['bt']:
        a("s_lshr_b32 s4, s2, 6"); a(f"s_lshl2_add_u32 s4, s4, {sRG}"); a(f"s_mul_i32 s4, s4, {65*128}")
        a(f"s_mul_i32 s5, {sCG}, {74*5120}"); a("s_add_u32 s4, s4, s5"); a(f"s_add_u32 s4, s4, {BP + 48*5120}")
        a(f"v_lshlrev_b32 {t2}, 7, {lane}")
        a(f"buffer_load_dword {t3}, {t2}, {rWS}, s4 offen sc1")
    a(f"s_cmp_lt_u32 {sRG}, 2"); a(f"s_cselect_b32 {rB[2]}, {WSZ}, 0")
    a(f"s_cmp_lt_u32 {sPF}, 6"); a("s_cbranch_scc1 P2_E2")
    for b in range(4):
        for l in b_reg(vm, b, 'B'): a(l)
    lds_wait(16, 8)
    for k in range(4):
        for l in b_row(vm, sBg, GRP[GL[k]], LR[k]): a(l)
    a.label('P2_E2')
    lds_wait(16, 8)
    for k in range(3):
        for l in b_row(vm, sBg, k, CR[k], None, 54*5120): a(l)
    a(f"s_cmp_eq_u32 {sPF}, 4"); a("s_cbranch_scc1 P2_GK")
    NG = 10
    for variant in (0, 1):
        GLv = GL if variant == 0 else []
        if variant == 1: a.label('P2_GK')
        if OPT['at']:
            a(f"s_mul_i32 {sT1}, {sR6}, {74*4096}"); a(f"s_lshl2_add_u32 {sT2}, {sCG}, {sRG}"); a(f"s_mul_i32 {sT2}, {sT2}, {54*128}"); a(f"s_add_u32 {sT1}, {sT1}, {sT2}")
            a(f"v_lshlrev_b32 {t2}, 7, {lane}")
        if OPT['at'] == 3: vpoll(a, vz, sFHo, 0, t1, f"s_mov_b32 exec_hi, 0x3fffff\nbuffer_load_dword {t3}, {t2}, {rWS}, {sT1} offen sc1\ns_mov_b32 exec_hi, -1", OPT['tsl'])
        else: vpoll(a, vz, sFHo, 0, t1)
        lds_signal(20)
        vm = VmTrack()
        stamp(a, 5)
        if OPT['at'] == 1:
            a("s_mov_b32 exec_hi, 0x3fffff"); a(f"buffer_load_dword {t3}, {t2}, {rWS}, {sT1} offen sc1"); a("s_mov_b32 exec_hi, -1")
        if OPT['stamp'] == 4: a("s_memtime s[92:93]")
        for s in range(4):
            for l in a_loads(s, ('A', s)): a(l)
            if OPT['at'] == 2 and s == 0:
                a("s_mov_b32 exec_hi, 0x3fffff"); a(f"buffer_load_dword {t3}, {t2}, {rWS}, {sT1} offen sc1"); a("s_mov_b32 exec_hi, -1"); vm.issue('T')
        for s in range(NG - 1):
            n = vm.wait_for(lambda t: t in (('A', s), ('B', s)))
            a(f"s_waitcnt vmcnt({n})" + (f" lgkmcnt({5*sum(1 for x in (s+1, s+2) if x in GLv)})" if s in GLv else ""))
            if s == 0: stamp(a, 6)
            if OPT['stamp'] == 4:
                a("s_waitcnt lgkmcnt(0)")
                a(f"v_writelane_b32 v255, s92, {40 + s}")
                a("s_memtime s[92:93]")
            side = []
            if 1 <= s and s + 3 < NG:
                rr = rB if GRP[s + 3] == 13 else None
                side = a_loads(s + 3, ('A', s + 3), None, rr) + (b_fromlds(s + 3, LR[GLv.index(s + 3)]) if s + 3 in GLv else b_reg(vm, s + 3, ('B', s + 3), rr, GRP[s + 3]))
            mm(s % 4, range(4) if s == 0 else [], side)
        if variant == 0: a("s_branch P2_GL")
    a.label('P2_GL')
    a("s_waitcnt vmcnt(0) lgkmcnt(0)")
    for tt in range(4):
        for j in range(5):
            d = ACC[tt][j]
            a(f"v_mfma_f32_16x16x32_bf16 {d}, {BR[1][j]}, {AR[1][tt]}, {d}")
            if tt >= 2: a("ds_write_b128 %s, %s offset:%d" % (lrow(tt, j)[0], ACC[tt-2][j], lrow(tt, j)[1]))
    for tt in (2, 3):
        for j in range(5): a("ds_write_b128 %s, %s offset:%d" % (lrow(tt+2, j)[0], ACC[tt][j], lrow(tt+2, j)[1]))
    lds_signal(4)
    stamp(a, 10)
    a("s_branch P2_FIN")
    a.label('P2_C')
    P = V(72, 20)
    a("s_setprio 3")
    a(f"v_cmp_ne_u32 vcc, 0, {vFQ}"); a("s_nop 0"); a("s_cbranch_vccnz P2_C1")
    go_logic(0)
    a(f"s_mov_b32 {sNEED}, -1")
    vpoll(a, vz, sFHo, 4, t1)
    a.label('P2_C1')
    PB = V(176, 12); PU = V(152, 20)
    a(f"s_lshl_b32 {sT0}, {sR6}, 3"); a(f"s_add_u32 {sT0}, {sT0}, {sCG}")
    a(f"s_mul_i32 {sT0}, {sT0}, 10240"); a(f"s_add_u32 {sT0}, {sT0}, {PQ}")
    a(f"s_lshl_b32 {sT1}, {sRG}, 11"); a(f"s_add_u32 {sT1}, {sT1}, {sT0}")
    for h in range(2): a(f"buffer_load_dwordx4 {PB[4*h:4*h+4]}, {vo}, {rWS}, {sT1} offen offset:{h*1024} {LD}")
    a(f"s_lshr_b32 {sT1}, {sRG}, 1"); a(f"s_lshl_b32 {sT1}, {sT1}, 10"); a(f"s_add_u32 {sT0}, {sT0}, {sT1}")
    a(f"s_and_b32 {sT1}, {sRG}, 1"); a(f"s_lshl_b32 {sT1}, {sT1}, 3"); a(f"s_add_u32 {sT0}, {sT0}, {sT1}"); a(f"s_add_u32 {sT0}, {sT0}, 8192")
    a(f"buffer_load_dwordx2 {PB[8:10]}, {vo}, {rWS}, {sT0} offen {LD}")
    GV = [V(22), V(252), V(10), V(8)]
    GLd = [t3, V(188), V(189), V(190)]
    a(f"v_lshlrev_b32 {t0}, 2, {vl15}")
    for i in range(4):
        a(f"s_add_u32 {sT0}, {sRG}, {i}"); a(f"s_and_b32 {sT0}, {sT0}, 3"); a(f"s_lshl2_add_u32 {sT0}, {sR6}, {sT0}")
        a(f"s_lshl_b32 {sT0}, {sT0}, 6"); a(f"s_add_u32 {sT0}, {sT0}, {GOFF}")
        a(f"buffer_load_dword {GLd[i]}, {t0}, {rWS}, {sT0} offen {LD}")
    go_logic(7)
    srd(a, rOUT, pOUT, 2048 * 1280)
    a(f"v_lshl_add_u32 {kw}, {vr}, 2, {vqd}")
    a(f"v_lshlrev_b32 {kw}, 6, {kw}")
    a(f"v_lshl_add_u32 {kw}, {vc}, 3, {kw}")
    a(f"s_mul_i32 {sT0}, {sRG}, 3088"); a(f"s_add_u32 {sT0}, {sT0}, {KVB}")
    a(f"v_add_u32 {kw}, {sT0}, {kw}")
    a(f"v_mul_u32_u24 {t4}, 3088, {vqd}")
    a(f"v_lshl_add_u32 {t4}, {vr}, 6, {t4}")
    a(f"v_add_u32 {t4}, {KVB}, {t4}")
    a(f"v_mov_b32 {ka}, {ZERO + 8}")
    a(f"v_cmp_eq_u32 vcc, {vc}, {vqd}")
    a(f"v_cndmask_b32 {ka}, {ka}, {t4}, vcc")
    VT = [V(16), V(17), V(18), V(19)]
    for i in range(4):
        a(f"s_add_u32 {sT0}, {sRG}, {i}"); a(f"s_and_b32 {sT0}, {sT0}, 3"); a(f"s_lshl_b32 {sT0}, {sT0}, 10")
        a(f"v_add_u32 {VT[i]}, {sT0}, {vo}")
    a("s_waitcnt vmcnt(0)")
    for i in range(10):
        a(f"v_lshlrev_b32 {PU[2*i]}, 16, {PB[i]}")
        a(f"v_and_b32 {PU[2*i+1]}, 0xffff0000, {PB[i]}")
    softmax_unit(a, PU, V(92, 40), V(132, 4), V(136, 4), P)
    stamp(a, 5)
    init_check(vS2, 132)
    lds_wait(16, 8)
    a(f"s_lshl_b32 {sT2}, {sCG}, 7"); a(f"s_add_u32 {sT2}, {sT2}, {FK + GOD}")
    a(f"s_lshl_b32 {sT3}, {sCG}, 2"); a(f"s_add_u32 {sT3}, {sT3}, {sRG}")
    a(f"s_mul_i32 {sT3}, {sT3}, 6144"); a(f"s_add_u32 {sT3}, {sT3}, {KVACC}")
    sNB = S(81)
    def cb(i): return b_reg(vm, i, 'B') if i < 4 else b_row(vm, sBo, i - 4, CR[i - 4], None, CB0)
    a(f"s_cmp_lt_u32 {sPF}, 6"); a("s_cbranch_scc1 P2_K4")
    for i in range(4):
        a(f"s_mov_b32 {sNB}, {i}")
        a(f"buffer_load_dword {t1}, {vz}, {rWS}, {sT2} offen sc1")
        a("s_waitcnt vmcnt(0)")
        a(f"v_cmp_ne_u32 vcc, 0, {t1}"); a("s_nop 0"); a("s_cbranch_vccnz P2_KGO")
        for l in cb(i): a(l)
    a.label('P2_K4')
    a(f"s_mov_b32 {sNB}, 4")
    vpoll(a, vz, sT2, 0, t1)
    a.label('P2_KGO')
    stamp(a, 6)
    KL = [V(92 + 4 * i, 4) for i in range(6)]
    a(f"s_mov_b32 {sTO}, 0x80000")
    a("s_mov_b32 s82, 0x41000000")
    a.label('KVRETRY')
    for i in range(6):
        if i < 4: a(f"buffer_load_dwordx4 {KL[i]}, {vo}, {rWS}, {sT3} offen offset:{i*1024} {LD}")
        else: a(f"buffer_load_dwordx4 {KL[i]}, {vo4}, {rWS}, {sT3} offen offset:{(i-4)*1024} {LD}")
    for i in range(6):
        a(f"s_waitcnt vmcnt({5-i})")
        a(f"v_cvt_pk_bf16_f32 {KL[i][0]}, {KL[i][0]}, {KL[i][1]}")
        a(f"v_cvt_pk_bf16_f32 {KL[i][1]}, {KL[i][2]}, {KL[i][3]}")
        a(f"ds_write_b64 {kw}, {KL[i][0:2]} offset:{(i % 3)*1024 + (i // 3)*32}")
    a(f"v_min3_f32 {t1}, {KL[0][3]}, {KL[1][3]}, {KL[3][3]}")
    a(f"v_min_f32 {t4}, {KL[2][3]}, {KL[5][3]}")
    a(f"v_min_f32 {t1}, {t1}, {KL[4][3]}")
    a(f"v_cmp_neq_f32 vcc, s82, {t4}")
    a(f"v_cmp_neq_f32 {sP}, s82, {t1}")
    a("s_and_b32 s4, vcc_lo, 0x00880088"); a("s_and_b32 s5, vcc_hi, 0x00880088"); a("s_or_b32 s4, s4, s5")
    a(f"s_or_b32 s5, {sP[0]}, {sP[1]}"); a("s_and_b32 s5, s5, 0x88888888"); a("s_or_b32 s4, s4, s5")
    a("s_cbranch_scc0 KVOK")
    a("s_waitcnt lgkmcnt(0)")
    a("s_sleep 4")
    a(f"s_sub_u32 {sTO}, {sTO}, 1")
    a("s_cbranch_scc0 KVRETRY")
    a.label('KVOK')
    lds_signal(0)
    lds_wait(0, 4)
    stamp(a, 16)
    AFl = [V(92 + 4 * i, 4) for i in range(15)]
    D = [V(152 + 4 * t, 4) for t in range(6)]
    O = V(176, 12)
    order = [5, 0, 1, 2, 3, 4]
    fr = [(t, s) for t in order for s in range(5)]
    def rdl(k):
        t, s_ = fr[k]
        return [f"ds_read_b64_tr_b16 {AFl[k % 15][2*r_:2*r_+2]}, {ka} offset:{s_*512 + r_*256 + (t*8 if t < 3 else t*8 + 8)}" for r_ in range(2)]
    AH = 6
    for k in range(AH):
        for l in rdl(k): a(l)
    def fin(t):
        for h in range(2): a(f"v_pk_mul_f32 {D[t][2*h:2*h+2]}, {D[t][2*h:2*h+2]}, {V(t2.lo, 2)} op_sel_hi:[1,0]")
        a(f"v_cvt_pk_bf16_f32 {O[2*t]}, {D[t][0]}, {D[t][1]}")
        a(f"v_cvt_pk_bf16_f32 {O[2*t+1]}, {D[t][2]}, {D[t][3]}")
    for k in range(30):
        t, s_ = fr[k]
        if k + AH < 30:
            for l in rdl(k + AH): a(l)
        a(f"s_waitcnt lgkmcnt({2 * min(AH, 29 - k)})")
        a(f"v_mfma_f32_16x16x32_bf16 {D[t]}, {AFl[k % 15]}, {P[4*s_:4*s_+4]}, {'0' if s_ == 0 else D[t]}")
        if OPT['sent'] and k == OPT['oh1']:
            a(f"s_sub_u32 {sFLAG}, {sFHo}, {GOD - 8}"); a(f"s_mov_b32 {sNEED}, 31"); a(f"v_mov_b32 {vAT}, 1")
            a("s_mov_b64 exec, 1"); a(f"buffer_atomic_add {vAT}, {vz}, {rWS}, {sFLAG} offen sc0 sc1"); a("s_mov_b64 exec, -1")
        if k == 8:
            a(f"v_add_f32 {t2}, 0x358637bd, {D[5][0]}")
            a(f"v_rcp_f32 {t2}, {t2}")
        if k == 9: a(f"v_mul_f32 {t2}, {t2}, {t3}")
        if k in (13, 18, 23, 28): fin((k - 13) // 5)
        if k == 19: a(f"buffer_store_dwordx4 {O[0:4]}, {vo}, {rWS}, {sO1} offen {ST}")
    a(f"buffer_store_dwordx4 {O[4:8]}, {vo4}, {rWS}, {sO1} offen {ST}")
    fin(4)
    a(f"buffer_store_dwordx2 {O[8:10]}, {vo}, {rWS}, {sO2} offen {ST}")
    stamp(a, 17)
    if not OPT['sent']:
        a(f"s_sub_u32 {sT2}, {sFHo}, {GOD - 8}")
        arrive(a, sT2, 31, t0, t1)
    else: go_logic(3 if OPT['oh1'] < 20 else 2, False)
    stamp(a, 7)
    a(f"buffer_load_dword {t4}, {vz}, {rWS}, {sFHo} offen sc1")
    for i in range(4):
        lb = a.newlabel('CB')
        a(f"s_cmp_gt_u32 {sNB}, {i}"); a(f"s_cbranch_scc1 {lb}")
        for l in cb(i): a(l)
        a.label(lb)
    XB = [V(28), V(13), V(30)]; XW = V(31); GB = V(12)
    for q in range(1, 4):
        a(f"s_sub_u32 {sT0}, {sRG}, {q}"); a(f"s_and_b32 {sT0}, {sT0}, 3"); a(f"s_mul_i32 {sT0}, {sT0}, 5120")
        a(f"s_add_u32 {sT0}, {sT0}, {CR[q-1]*20480}")
        a(f"v_add_u32 {XB[q-1]}, {sT0}, {vo}")
    a(f"v_add_u32 {XW}, {6*20480}, {vbl}")
    def crow(k, j): return (vbl, CR[k]*20480 + j*1024) if k < 2 else (XW, j*1024)
    a(f"s_add_u32 {sT0}, {sRG}, 2"); a(f"s_mul_i32 {sT0}, {sT0}, 20480"); a(f"v_add_u32 {GB}, {sT0}, {vo}")
    a(f"v_mul_u32_u24 {t0}, 1280, {vl15}")
    a(f"v_lshl_add_u32 {t0}, {vqd}, 3, {t0}")
    a(f"s_lshl_b32 {sT2}, {sR6}, 2"); a(f"s_add_u32 {sT2}, {sT2}, {sRG}"); a(f"s_mul_i32 {sT2}, {sT2}, {16*1280}")
    a(f"s_mul_i32 {sT3}, {sCG}, 160"); a(f"s_add_u32 {sT2}, {sT2}, {sT3}")
    for i in range(4): a(f"v_sub_f32 {GV[i]}, 1.0, {GLd[i]}")
    a("s_waitcnt vmcnt(0)")
    a(f"v_cmp_ne_u32 vcc, 0, {t4}"); a("s_nop 0"); a("s_cbranch_vccnz P2_HOK")
    vpoll(a, vz, sFHo, 0, t4)
    a.label('P2_HOK')
    a(f"s_setprio {OPT['cprio']}")
    vm = VmTrack()
    for s in range(4):
        for l in a_loads(s, ('A', s), VT): a(l)
    lds_wait(20, 4)
    for s in range(4):
        n = vm.wait_for(lambda t: t == ('A', s))
        a(f"s_waitcnt vmcnt({n})")
        mm(s, range(4) if s == 0 else [], ["ds_read_b128 %s, %s offset:%d" % ((BR[s-1][j],) + crow(s-1, j)) for j in range(5)] if s else [])
    for l in b_reg(vm, 7, 'B', None, 3, CB0): a(l)
    a(f"buffer_load_dword {t4}, {vz}, {rWS}, {sFHo} offen offset:8 sc1")
    for tt in range(4):
        for j in range(5):
            for h in range(2): a(f"v_pk_mul_f32 {ACC[tt][j][2*h:2*h+2]}, {ACC[tt][j][2*h:2*h+2]}, {V(GV[tt].lo, 2)} op_sel_hi:[1,0]")
    stamp(a, 18)
    a(f"s_setprio {OPT['cprio2']}")
    a("s_waitcnt vmcnt(0)")
    a(f"v_cmp_ne_u32 vcc, 0, {t4}"); a("s_nop 0"); a("s_cbranch_vccnz P2_OOK")
    vpoll(a, vz, sFHo, 8, t4)
    a.label('P2_OOK')
    a(f"s_mov_b32 {sTO}, 0x40000")
    vm = VmTrack()
    stamp(a, 9)
    for s in range(4, 8):
        for l in a_loads(s, ('A', s), VT): a(l)
    GT = [BR[1], BR[2], BR[3], AR[1] + [AR[2][0]]]
    for s in range(4, 9):
        n = vm.wait_for(lambda t: t in (('A', s), ('B', s)))
        if s == 8:
            lds_wait(4, 4)
            stamp(a, 8)
            for w in range(2):
                for j in range(5): a(f"ds_read_b128 {GT[w][j]}, {GB} offset:{w*5120 + j*1024}")
        a(f"s_waitcnt vmcnt({n})" + (" lgkmcnt(0)" if s == 4 else ""))
        if OPT['sent']:
            a.label(f'VER{s}')
            regs = [AR[s % 4][tt][k] for tt in range(4) for k in range(4)]
            a(f"v_max3_u32 {t4}, {regs[0]}, {regs[1]}, {regs[2]}")
            a(f"v_max3_u32 {t1}, {regs[3]}, {regs[4]}, {regs[5]}")
            for k in (6, 10):
                a(f"v_max3_u32 {t4}, {t4}, {regs[k]}, {regs[k+1]}"); a(f"v_max3_u32 {t1}, {t1}, {regs[k+2]}, {regs[k+3]}")
            a(f"v_max3_u32 {t4}, {t4}, {regs[14]}, {regs[15]}")
            a(f"v_max_u32 {t4}, {t4}, {t1}")
            a(f"v_cmp_eq_u32 vcc, -1, {t4}")
            a("s_nop 0")
            a(f"s_cbranch_vccnz RET{s}")
            a.label(f'VOK{s}')
        if s < 8: mm(s % 4, [], a_loads(8, ('A', 8), VT) + b_reg(vm, 8, ('B', 8), None, 4, CB0) if s == 5 else [])
        else:
            for tt in (1, 2, 3, 0):
                for j in range(5):
                    d = ACC[tt][j]
                    a(f"v_mfma_f32_16x16x32_bf16 {d}, {BR[0][j]}, {AR[0][tt]}, {d}")
                    if tt in (1, 2): a(f"ds_read_b128 {GT[tt+1][j]}, {GB} offset:{(tt+1)*5120 + j*1024}")
                    pt = {1: None, 2: None, 3: 1, 0: 2}[tt]
                    if pt: a("ds_write_b128 %s, %s offset:%d" % (crow(pt-1, j)[0], ACC[pt][j], crow(pt-1, j)[1]))
            for j in range(5): a("ds_write_b128 %s, %s offset:%d" % (crow(2, j)[0], ACC[3][j], crow(2, j)[1]))
    a("s_waitcnt lgkmcnt(15)")
    for j in range(5):
        for h in range(2):
            sl = slice(2*h, 2*h+2)
            a(f"v_pk_add_f32 {GT[0][j][sl]}, {GT[0][j][sl]}, {GT[1][j][sl]}")
            a(f"v_pk_add_f32 {GT[2][j][sl]}, {GT[2][j][sl]}, {GT[3][j][sl]}")
    stamp(a, 10)
    lds_signal(8)
    for j in range(5):
        for h in range(2):
            sl = slice(2*h, 2*h+2)
            a(f"v_pk_add_f32 {GT[0][j][sl]}, {GT[0][j][sl]}, {GT[2][j][sl]}")
            a(f"v_pk_fma_f32 {ACC[0][j][sl]}, {GT[0][j][sl]}, {V(22, 2)}, {ACC[0][j][sl]} op_sel_hi:[1,0,1]")
    lds_wait(8, 4)
    RD = [ACC[1], ACC[2], ACC[3]]
    for q in range(3):
        for j in range(5): a(f"ds_read_b128 {RD[q][j]}, {XB[q]} offset:{j*1024}")
    for q in range(3):
        a(f"s_waitcnt lgkmcnt({10 - 5*q})")
        for j in range(5):
            for h in range(2): a(f"v_pk_add_f32 {ACC[0][j][2*h:2*h+2]}, {ACC[0][j][2*h:2*h+2]}, {RD[q][j][2*h:2*h+2]}")
            if q == 2:
                a(f"v_cvt_pk_bf16_f32 {ACC[1][j][0]}, {ACC[0][j][0]}, {ACC[0][j][1]}")
                a(f"v_cvt_pk_bf16_f32 {ACC[1][j][1]}, {ACC[0][j][2]}, {ACC[0][j][3]}")
                a(f"buffer_store_dwordx2 {ACC[1][j][0:2]}, {t0}, {rOUT}, {sT2} offen offset:{j*32} {OPT['ost']}")
    a.label('P2_FIN')
    if OPT['stamp']:
        a("s_waitcnt vmcnt(0)")
        stamp(a, 11)
    stamp_flush(a)
    a.label(END)
    a.label('K_LAST')
    a("s_endpgm")
    if OPT['sent']:
        for s in range(4, 9):
            a.label(f'RET{s}')
            a(f"s_sub_u32 {sTO}, {sTO}, 1")
            a(f"s_cselect_b32 {sTO}, 0, {sTO}")
            a(f"s_cbranch_scc1 VOK{s}")
            a(f"s_sleep {OPT['rsl']}")
            for l in a_loads(s, 'r', VT): a(l)
            a("s_waitcnt vmcnt(0)")
            a(f"s_branch VER{s}")

def build():
    hdr = open(f'cdna_kernels/{NAME}.s.ref').read().split('; Override launch')[0]
    name = NAME + '_kernel'
    out = hdr + "; @launch grid=(256,1,1) block=(512,1,1) lds=163840\n"
    out += '.amdgcn_target "amdgcn-amd-amdhsa--gfx950"\n.text\n'
    a = Asm(); kernel(a)
    out += f".globl {name}\n.p2align 8\n.type {name},@function\n{name}:\n" + a.finalize()
    print('instrs', len(a.ins), 'nops', a.nnop, file=sys.stderr)
    out += f""".section .rodata,"a"
.p2align 6
.amdhsa_kernel {name}
  .amdhsa_next_free_vgpr 256
  .amdhsa_next_free_sgpr 102
  .amdhsa_accum_offset 256
  .amdhsa_group_segment_fixed_size 0
  .amdhsa_kernarg_size 96
  .amdhsa_user_sgpr_count 2
  .amdhsa_user_sgpr_kernarg_segment_ptr 1
  .amdhsa_system_sgpr_workgroup_id_x 1
.end_amdhsa_kernel
"""
    return out

if __name__ == '__main__':
    outp = sys.argv[1]
    for o in sys.argv[2:]:
        k, v = o.split('=', 1); OPT[k] = int(v) if v.isdigit() else v
    open(outp, 'w').write(build())
```

```python
import sys
sys.path.insert(0, 'gen')
from asmlib import *
NAME = 'gated_mix__linear_kernel_hedgehog__swiglu_ffn__prompt'
AP = 0; BP = 0xA00000; PQ = 0xD00000; KVACC = 0x1200000; FH = 0x1230000; FK = 0x1232000; FP = 0x1234000; ZEND = 0x1235000
GOFF = 0x1240000; DUMMY = 0x1250000; STAMP = 0x1300000; WSZ = 0x1600000
LOG2E = 0x3fb8aa3b; NLOG2E = 0xbfb8aa3b
OPT = dict(stamp=0, touch=2, bs="{'p0':(0,2),'p1':(2,5),3:(5,8),7:(8,10)}", pp=0, spnt='', rot2=0, slp=1, early=1, btouch=0, atf='sc1', cpf=12, nobar=18, chk=14, sent=1, pad=0, bt=0, tsl=4, rsl=8, cprio2=0, at=0, kh=0, cprio=0, oh1=19, gdel=0, fill=0, spst='sc1', t2a='[0]', t2b='[2]', t2f='{1:(4,6),2:(5,3),4:(6,4),6:(7,5),7:(8,6),8:(9,3)}', t2q='{}', xfl='', wfl='', il=4, qbar=0, prio=0, dbgt=0, ost='nt')
ST = 'sc1'; LD = 'sc1'

pX, pQKV, pPHI, pWO, pBX, pWG, pWU, pWD = [S(16 + 2 * i, 2) for i in range(8)]
pGW, pOUT, pDBG, pWS = [S(32 + 2 * i, 2) for i in range(4)]
sWV = S(3)
rX, rW, rWS, rA, rB = S(40, 4), S(44, 4), S(48, 4), S(52, 4), S(56, 4)
sC = S(60, 2)
rDBG = S(84, 4)
sFLAG = S(88); sTO = S(89); sNEED = S(7)
GOD = 0x1000
sP = S(14, 2)
XSLOT = 32768; WB = 98304
GWB = 159744; CNT = 161024; ZERO = 161280; KVB = 147456

def srd(a, d, base, size):
    a(f"s_mov_b32 {d[0]}, {base[0]}")
    a(f"s_and_b32 {d[1]}, {base[1]}, 0xffff")
    a(f"s_mov_b32 {d[2]}, {size}")
    a(f"s_mov_b32 {d[3]}, 0x20000")

def sstamp(a, j):
    if OPT['stamp'] != 3: return
    if j > 0: a(f"v_writelane_b32 v255, s92, {40 + j - 1}")
    a("s_memtime s[92:93]")
def stamp(a, idx):
    if not OPT['stamp']: return
    if OPT['stamp'] >= 2 and idx not in (2, 11): return
    a("s_memrealtime s[90:91]")
    a("s_memtime s[92:93]")
    a("s_waitcnt lgkmcnt(0)")
    a(f"v_writelane_b32 v255, s90, {2*idx}")
    a(f"v_writelane_b32 v255, s92, {2*idx+1}")
def stamp_flush(a):
    if not OPT['stamp']: return
    if OPT['dbgt']:
        a("s_not_b32 s90, s10"); a("v_writelane_b32 v255, s90, 0")
        a("v_lshlrev_b32 v254, 1, v0"); a("v_add_u32 v254, 8, v254")
        a("s_mov_b32 exec_lo, 0x05555555"); a("s_mov_b32 exec_hi, 0")
        a(f"buffer_atomic_umax v255, v254, {rDBG}, 0 offen sc1")
        a("s_mov_b64 exec, -1")
        return
    a("v_writelane_b32 v255, s10, 0"); a("v_writelane_b32 v255, s12, 1")
    a("s_lshl_b32 s90, s2, 3")
    a(f"s_add_u32 s90, s90, {sWV}")
    a("s_lshl_b32 s90, s90, 8")
    a(f"s_add_u32 s90, s90, {STAMP + 0x80000}")
    a("v_lshlrev_b32 v254, 2, v0")
    a(f"buffer_store_dword v255, v254, {rWS}, s90 offen")

def vpoll(a, vzero, soff, off, tmp, extra=None, slp=None):
    L, D = a.newlabel('POLL'), a.newlabel('POLLD')
    a(f"s_mov_b32 {sTO}, 0x80000")
    a.label(L)
    if extra: a(extra)
    a(f"buffer_load_dword {tmp}, {vzero}, {rWS}, {soff} offen offset:{off} sc1")
    a("s_waitcnt vmcnt(0)")
    a(f"v_cmp_eq_u32 vcc, 0, {tmp}")
    a("s_nop 0")
    a(f"s_cbranch_vccz {D}")
    a(f"s_sleep {slp or OPT['slp']}")
    a(f"s_sub_u32 {sTO}, {sTO}, 1")
    a(f"s_cbranch_scc0 {L}")
    a.label(D)
def arrive(a, soff, need, z, one, nyounger=0):
    D = a.newlabel('ARR')
    a(f"v_mov_b32 {z}, 0"); a(f"v_mov_b32 {one}, 1")
    a(f"s_waitcnt vmcnt({nyounger})")
    a("s_mov_b64 exec, 1")
    a(f"buffer_atomic_add {one}, {z}, {rWS}, {soff} offen sc0 sc1")
    a("s_waitcnt vmcnt(0)")
    a(f"v_readfirstlane_b32 {sP[0]}, {one}")
    a(f"s_add_u32 {sP[1]}, {soff}, {GOD}")
    a(f"s_cmp_lg_u32 {sP[0]}, {need}")
    a(f"s_cbranch_scc1 {D}")
    a(f"buffer_store_dword {one}, {z}, {rWS}, {sP[1]} offen sc1")
    a.label(D)
    a("s_mov_b64 exec, -1")
def init_poll(a, reg, off):
    L, D = a.newlabel('POLL'), a.newlabel('POLLD')
    a(f"s_mov_b32 {sTO}, 0x80000")
    a.label(L)
    a(f"v_mov_b32 {reg}, 0")
    a(f"buffer_load_dword {reg}, {reg}, {rDBG}, 0 offen offset:{off} sc1")
    a("s_waitcnt vmcnt(0)")
    a(f"v_readfirstlane_b32 {sP[0]}, {reg}")
    a(f"s_cmp_lg_u32 {sP[0]}, 0")
    a(f"s_cbranch_scc1 {D}")
    a("s_sleep 2")
    a(f"s_sub_u32 {sTO}, {sTO}, 1")
    a(f"s_cbranch_scc0 {L}")
    a.label(D)

def softmax_unit(a, P, E, M, T, O, side=None):
    side = list(side or [])
    a(f"v_max3_f32 {M[0]}, {P[0]}, {P[1]}, {P[2]}")
    a(f"v_min3_f32 {M[2]}, {P[0]}, {P[1]}, {P[2]}")
    for i in range(3, 19, 2):
        a(f"v_max3_f32 {M[0]}, {M[0]}, {P[i]}, {P[i+1]}")
        a(f"v_min3_f32 {M[2]}, {M[2]}, {P[i]}, {P[i+1]}")
    a(f"v_max_f32 {M[0]}, {M[0]}, {P[19]}")
    a(f"v_min_f32 {M[2]}, {M[2]}, {P[19]}")
    a(f"v_mul_f32 {M[0]}, {sC[0]}, {M[0]}")
    a(f"v_mul_f32 {M[2]}, {sC[0]}, {M[2]}")
    for i in range(0, 20, 2):
        a(f"v_pk_fma_f32 {E[i:i+2]}, {P[i:i+2]}, {sC}, {M[0:2]} op_sel_hi:[1,1,0] neg_lo:[0,0,1] neg_hi:[0,0,1]")
        a(f"v_pk_fma_f32 {E[20+i:22+i]}, {P[i:i+2]}, {sC}, {M[2:4]} op_sel_hi:[1,1,0] neg_lo:[1,0,0] neg_hi:[1,0,0]")
    for i in range(40):
        a(f"v_exp_f32 {E[i]}, {E[i]}")
        if side and i % 2 == 1: a(side.pop(0))
    for l in side: a(l)
    a(f"v_pk_add_f32 {T[0:2]}, {E[0:2]}, {E[2:4]}")
    a(f"v_pk_add_f32 {T[2:4]}, {E[20:22]}, {E[22:24]}")
    for i in range(4, 20, 2):
        a(f"v_pk_add_f32 {T[0:2]}, {T[0:2]}, {E[i:i+2]}")
        a(f"v_pk_add_f32 {T[2:4]}, {T[2:4]}, {E[20+i:22+i]}")
    a(f"v_add_f32 {T[0]}, {T[0]}, {T[1]}")
    a(f"v_add_f32 {T[2]}, {T[2]}, {T[3]}")
    a(f"v_rcp_f32 {T[0]}, {T[0]}")
    a(f"v_rcp_f32 {T[2]}, {T[2]}")
    for i in range(0, 20, 2):
        a(f"v_pk_mul_f32 {E[i:i+2]}, {E[i:i+2]}, {T[0:2]} op_sel_hi:[1,0]")
        a(f"v_pk_mul_f32 {E[20+i:22+i]}, {E[20+i:22+i]}, {T[2:4]} op_sel_hi:[1,0]")
    for i in range(20):
        a(f"v_cvt_pk_bf16_f32 {O[i]}, {E[2*i]}, {E[2*i+1]}")

def kernel(a):
    END = 'K_END'
    BS = eval(OPT['bs'])
    a("s_cmp_ge_u32 s2, 256")
    a(f"s_cbranch_scc1 {END}")
    if OPT['stamp']:
        a("s_memrealtime s[10:11]"); a("s_memtime s[12:13]"); a("v_mov_b32 v255, 0")
    if OPT['pad']: a("s_memrealtime s[10:11]")
    a("s_load_dwordx16 s[16:31], s[0:1], 0")
    a("s_load_dwordx8 s[32:39], s[0:1], 64")
    lane = V(0)
    tid, t0, t1, t2, t3, t4 = V(1), V(2), V(3), V(4), V(5), V(6)
    vqd, vr, vc, vl15 = V(7), V(8), V(9), V(10)
    vx = [V(11 + i) for i in range(4)]
    xa = [[V(15), V(16)], [V(17), V(18)]]
    tdum = V(19); ta = V(20, 2); tb = V(22, 2)
    R0 = 24
    sTY, sRB, sXK, sWK, sM, sT0, sT1, sT2, sT3, sRG, sHI, sID, sMW, sC8, sR4 = [S(62 + i) for i in range(15)]
    a(f"v_lshrrev_b32 {t0}, 6, v0")
    a(f"v_mov_b32 {tid}, v0")
    a(f"v_readfirstlane_b32 {sWV}, {t0}")
    a(f"v_and_b32 {lane}, 63, v0")
    a(f"s_bfe_u32 {sC8}, s2, 0x30003")
    a(f"s_lshr_b32 {sR4}, s2, 6")
    a(f"s_and_b32 {sRB}, s2, 1")
    a(f"s_lshl_b32 {sRB}, {sRB}, 2")
    a(f"s_add_u32 {sRB}, {sRB}, {sR4}")
    a(f"s_bfe_u32 {sT0}, s2, 0x20001")
    a(f"s_and_b32 {sRG}, {sWV}, 3")
    a(f"s_lshr_b32 {sHI}, {sWV}, 2")
    a(f"v_lshrrev_b32 {vqd}, 4, {lane}")
    a(f"v_bfe_u32 {vr}, {lane}, 2, 2")
    a(f"v_and_b32 {vc}, 3, {lane}")
    a(f"v_and_b32 {vl15}, 15, {lane}")
    a(f"v_lshrrev_b32 {t0}, 3, {lane}")
    a(f"v_mul_u32_u24 {t0}, 1280, {t0}")
    a(f"v_and_b32 {t1}, 7, {lane}")
    a(f"v_xor_b32 {t1}, {t1}, {vqd}")
    a(f"v_lshl_add_u32 {vx[0]}, {t1}, 4, {t0}")
    a(f"v_xor_b32 {t1}, 4, {t1}")
    a(f"v_lshl_add_u32 {vx[1]}, {t1}, 4, {t0}")
    a(f"v_add_u32 {vx[1]}, {8*1280-1024}, {vx[1]}")
    a(f"v_add_u32 {vx[2]}, {16*1280-2048}, {vx[0]}")
    a(f"v_add_u32 {vx[3]}, {16*1280-2048}, {vx[1]}")
    a(f"s_mul_i32 {sXK}, {sRB}, {256*1280}")
    a(f"s_mul_i32 {sT1}, {sWV}, {32*1280}")
    a(f"s_add_u32 {sXK}, {sXK}, {sT1}")
    a(f"s_lshl_b32 {sM}, {sWV}, 12")
    a(f"v_lshlrev_b32 {t2}, 3, {tid}")
    a(f"v_min_u32 {t2}, {163840 - CNT - 8}, {t2}")
    a(f"v_add_u32 {t2}, {CNT}, {t2}")
    a(f"v_mov_b32 {ta[0]}, 0"); a(f"v_mov_b32 {ta[1]}, 0")
    a(f"ds_write_b64 {t2}, {ta}")
    a(f"s_mul_i32 {sID}, {sT0}, 9"); a(f"s_add_u32 {sID}, {sID}, 1"); a(f"s_lshr_b32 {sID}, {sID}, 1")
    a(f"s_add_u32 {sID}, {sID}, {sC8}"); a(f"s_sub_u32 {sID}, {sID}, 3")
    a(f"s_and_b32 {sT1}, {sT0}, 1"); a(f"s_add_u32 {sT1}, {sT1}, {sC8}")
    a(f"s_mov_b32 {sC[0]}, {LOG2E:#x}")
    a(f"s_mov_b32 {sC[1]}, {LOG2E:#x}")
    a("s_waitcnt lgkmcnt(0)")
    srd(a, rX, pX, 2048 * 1280)
    srd(a, rWS, pWS, WSZ)
    srd(a, rDBG, pDBG, 256)
    if OPT['cpf']:
        a(f"s_cmp_lg_u32 {sWV}, 7"); a("s_cbranch_scc1 NOCPF")
        a("s_getpc_b64 s[4:5]")
        a.label("CPF_PC")
        a("s_lshr_b32 s6, s2, 3"); a(f"s_mul_i32 s6, s6, {OPT['cpf']*128}")
        a(f"v_lshlrev_b32 {t0}, 7, {lane}"); a(f"v_add_u32 {t0}, s6, {t0}")
        a(f"v_min_u32 {t0}, K_LAST-CPF_PC, {t0}")
        a(f"s_mov_b64 exec, {(1 << OPT['cpf']) - 1:#x}")
        a(f"global_load_dword v31, {t0}, s[4:5]")
        a("s_mov_b64 exec, -1")
        a.label("NOCPF")
    rT = S(80, 4) if False else rA
    sU1, sU2, sBK = S(100), S(101), S(95)
    vt1, vt2 = V(22), V(23)
    T2 = OPT['touch'] == 2
    def t2_all(b0):
        return [f"s_mul_i32 s4, {sBK}, {b0}", f"s_add_u32 s4, s4, {sU2}",
                f"v_add_u32 v21, s4, {vt2}", f"s_mov_b64 exec, 0xff\nbuffer_load_dword {tdum}, v21, {rTT}, 0 offen\ns_mov_b64 exec, -1"]
    def t2_one(b, c8v):
        lb = a.newlabel('T2')
        return [f"s_cmp_lg_u32 {sC8}, {c8v}\ns_cbranch_scc1 {lb}\ns_mul_i32 s4, {sBK}, {b}\ns_add_u32 s4, s4, {sU1}\nv_add_u32 v21, s4, {vt1}\ns_mov_b32 exec_hi, 0\n"
                f"buffer_load_dword {tdum}, v21, {rTT}, 0 offen\ns_mov_b64 exec, -1\n{lb}:"]
    rTT = S(96, 4)
    if T2:
        assert OPT['stamp'] in (0, 2) or True
        a(f"s_lshr_b32 s4, {sWV}, 1")
        a("s_cmp_eq_u32 s4, 1")
        a(f"s_cselect_b32 {rTT[0]}, {pQKV[0]}, {pX[0]}"); a(f"s_cselect_b32 {rTT[1]}, {pQKV[1]}, {pX[1]}")
        a(f"s_mov_b32 {rTT[2]}, {2048*1280}"); a(f"s_movk_i32 {sBK}, 128")
        a(f"s_cselect_b32 {rTT[2]}, {640*3840}, {rTT[2]}"); a(f"s_cselect_b32 {sBK}, {64*3840}, {sBK}")
        a("s_cmp_eq_u32 s4, 2")
        a(f"s_cselect_b32 {rTT[0]}, {pWG[0]}, {rTT[0]}"); a(f"s_cselect_b32 {rTT[1]}, {pWG[1]}, {rTT[1]}")
        a("s_cmp_eq_u32 s4, 3")
        a(f"s_cselect_b32 {rTT[0]}, {pWU[0]}, {rTT[0]}"); a(f"s_cselect_b32 {rTT[1]}, {pWU[1]}, {rTT[1]}")
        a("s_cmp_ge_u32 s4, 2")
        a(f"s_cselect_b32 {rTT[2]}, {640*3456}, {rTT[2]}"); a(f"s_cselect_b32 {sBK}, {64*3456}, {sBK}")
        a(f"s_and_b32 {rTT[1]}, {rTT[1]}, 0xffff"); a(f"s_mov_b32 {rTT[3]}, 0x20000")
        a("s_cmp_eq_u32 s4, 0")
        a("s_movk_i32 s7, 128"); a("s_cselect_b32 s5, 1280, s7"); a("s_cselect_b32 s6, 640, s7"); a("s_cselect_b32 s7, 512, 0")
        a(f"v_mul_u32_u24 {vt1}, s5, {lane}")
        a(f"v_mul_u32_u24 {vt2}, s6, {lane}")
        a(f"v_and_b32 {t0}, 1, {lane}"); a(f"v_mul_u32_u24 {t0}, s7, {t0}"); a(f"v_sub_u32 {vt2}, {vt2}, {t0}")
        a(f"s_and_b32 s4, {sWV}, 1")
        a(f"s_lshl_b32 {sU2}, s2, 1"); a(f"s_add_u32 {sU2}, {sU2}, s4"); a(f"s_lshl_b32 {sU2}, {sU2}, 3"); a(f"s_mul_i32 {sU2}, {sU2}, s6")
        a(f"s_and_b32 {sU1}, s2, 7"); a(f"s_lshl_b32 {sU1}, {sU1}, 2"); a(f"s_add_u32 {sU1}, {sU1}, {sR4}")
        a(f"s_lshl_b32 {sU1}, {sU1}, 1"); a(f"s_add_u32 {sU1}, {sU1}, s4"); a(f"s_lshl_b32 {sU1}, {sU1}, 5"); a(f"s_mul_i32 {sU1}, {sU1}, s5")
        for b0 in eval(OPT['t2a']):
            for l in t2_all(b0): a(l)
    if OPT['prio']:
        a(f"s_cmp_eq_u32 {sHI}, 0"); a("s_cbranch_scc1 NOPRIO"); a("s_setprio 1"); a.label("NOPRIO")
    a(f"s_cmp_lt_u32 {sC8}, 3")
    a("s_cbranch_scc1 R_QKV")
    a(f"s_cmp_eq_u32 {sT1}, 8")
    a("s_cbranch_scc1 R_SPARE")

    def x_dma(vm, blk, half):
        l = [f"s_add_u32 m0, {sM}, {(blk % 3) * XSLOT}"]
        if half == 0 and blk > 0: l.append(f"s_add_u32 {sXK}, {sXK}, 128")
        for n in (2 * half, 2 * half + 1):
            l.append(f"buffer_load_dwordx4 {vx[n]}, {rX}, {sXK} offen offset:{n*1024} {OPT['xfl']} lds")
            vm.issue(('X', blk))
        return l
    def x_addr_setup():
        a(f"v_lshrrev_b32 {t0}, 1, {vl15}")
        a(f"v_xor_b32 {t0}, {t0}, {vqd}")
        a(f"v_lshlrev_b32 {t0}, 4, {t0}")
        a(f"v_lshl_add_u32 {t0}, {vl15}, 7, {t0}")
        a(f"s_lshl_b32 {sT0}, {sRG}, 13")
        a(f"v_add_u32 {xa[0][0]}, {sT0}, {t0}")
        a(f"v_xor_b32 {xa[0][1]}, 64, {xa[0][0]}")
        a(f"v_add_u32 {xa[1][0]}, 0x10000, {xa[0][0]}")
        a(f"v_add_u32 {xa[1][1]}, 0x10000, {xa[0][1]}")
    def x_reads(XF, step):
        blk, kk = step // 2, step % 2
        sl = blk % 3
        return [f"ds_read_b128 {XF[tt]}, {xa[sl // 2][kk]} offset:{(sl % 2) * XSLOT + tt * 2048}" for tt in range(4)]
    def burst(vm, b0, b1):
        if OPT['touch'] != 1: return []
        l = []
        for st, reg in ((0, ta), (5, tb)):
            lo, hi = max(b0, st) - st, min(b1, st + 5) - st
            if lo >= hi: continue
            m = ((1 << (12 * hi)) - 1) & ~((1 << (12 * lo)) - 1)
            l += [f"s_mov_b32 exec_lo, {m & 0xffffffff:#x}", f"s_mov_b32 exec_hi, {m >> 32:#x}", f"global_load_dword {tdum}, {reg}, off"]
            vm.issue('T')
        l.append("s_mov_b64 exec, -1")
        return l
    def touch_setup(pw0, pw1, rowbytes, off0, off1, seg):
        if OPT['touch'] != 1: return
        l12, bi = tb[0], tb[1]; tinc = tdum
        a(f"v_mul_u32_u24 {bi}, 43, {lane}"); a(f"v_lshrrev_b32 {bi}, 9, {bi}")
        a(f"v_mul_u32_u24 {l12}, 12, {bi}"); a(f"v_sub_u32 {l12}, {lane}, {l12}")
        a(f"s_lshl_b32 {sT2}, {sRB}, 3"); a(f"s_add_u32 {sT2}, {sT2}, {sC8}"); a(f"s_lshl_b32 {sT2}, {sT2}, 3"); a(f"s_add_u32 {sT2}, {sT2}, {sWV}")
        a(f"s_mul_i32 {sT2}, {sT2}, {4*1280}")
        a(f"v_mul_u32_u24 {t0}, 1280, {l12}")
        a(f"v_add_u32 {t0}, {sT2}, {t0}")
        a(f"s_lshl_b32 {sT0}, {sR4}, 3"); a(f"s_add_u32 {sT0}, {sT0}, {sWV}"); a(f"s_mul_i32 {sT0}, {sT0}, {2*rowbytes}")
        a(f"v_subrev_u32 {t1}, 4, {l12}")
        a(f"v_bfe_u32 {t2}, {t1}, 2, 1")
        a(f"v_mul_u32_u24 {t2}, {rowbytes}, {t2}")
        a(f"v_and_b32 {t3}, 1, {t1}")
        a(f"v_mul_u32_u24 {t3}, {seg-4}, {t3}")
        a(f"v_add3_u32 {t2}, {t2}, {t3}, {sT0}")
        a(f"v_and_b32 {t3}, 2, {t1}")
        a(f"v_cmp_eq_u32 vcc, 0, {t3}")
        a(f"v_mov_b32 {t3}, {off1}"); a(f"v_mov_b32 {t4}, {off0}")
        a(f"v_cndmask_b32 {t3}, {t3}, {t4}, vcc")
        a(f"v_add_u32 {t2}, {t2}, {t3}")
        a(f"v_mov_b32 {t3}, {pw1[0]}"); a(f"v_mov_b32 {t4}, {pw0[0]}"); a(f"v_cndmask_b32 {ta[0]}, {t3}, {t4}, vcc")
        a(f"v_mov_b32 {t3}, {pw1[1]}"); a(f"v_mov_b32 {t4}, {pw0[1]}"); a(f"v_cndmask_b32 {ta[1]}, {t3}, {t4}, vcc")
        a(f"v_cmp_gt_u32 vcc, 4, {l12}")
        a(f"v_mov_b32 {t3}, {pX[0]}"); a(f"v_mov_b32 {t4}, {pX[1]}")
        a(f"v_cndmask_b32 {t2}, {t2}, {t0}, vcc")
        a(f"v_cndmask_b32 {ta[0]}, {ta[0]}, {t3}, vcc")
        a(f"v_cndmask_b32 {ta[1]}, {ta[1]}, {t4}, vcc")
        a(f"v_mov_b32 {t3}, {64*rowbytes}"); a(f"v_mov_b32 {t4}, 128"); a(f"v_cndmask_b32 {tinc}, {t3}, {t4}, vcc")
        a(f"v_mad_u32_u24 {t2}, {tinc}, {bi}, {t2}")
        a(f"v_add_co_u32 {ta[0]}, vcc, {ta[0]}, {t2}")
        a(f"v_mul_u32_u24 {t2}, 5, {tinc}")
        a(f"v_addc_co_u32 {ta[1]}, vcc, 0, {ta[1]}, vcc")
        a(f"v_add_co_u32 {tb[0]}, vcc, {ta[0]}, {t2}")
        a(f"v_addc_co_u32 {tb[1]}, vcc, 0, {ta[1]}, vcc")
    def step_body(mains, lblk, pre=[]):
        for l in pre: a(l)
        if not lblk:
            for m in mains: a(m)
            return
        if OPT['pp'] == 2:
            rds = [l for l in lblk if l.startswith('ds_read')]; oth = [l for l in lblk if not l.startswith('ds_read')]
            l1, l2 = a.newlabel('PP'), a.newlabel('PP')
            if oth:
                a(f"s_cmp_eq_u32 {sHI}, 0"); a(f"s_cbranch_scc1 {l1}")
                for l in oth: a(l)
                a.label(l1)
            k = 0
            for i, m in enumerate(mains):
                a(m)
                while k < len(rds) and k < (i + 1) * max(1, -(-len(rds) // len(mains))):
                    a(rds[k]); k += 1
            if oth:
                a(f"s_cmp_eq_u32 {sHI}, 0"); a(f"s_cbranch_scc0 {l2}")
                for l in oth: a(l)
                a.label(l2)
        elif OPT['pp']:
            l1, l2 = a.newlabel('PP'), a.newlabel('PP')
            a(f"s_cmp_eq_u32 {sHI}, 0"); a(f"s_cbranch_scc1 {l1}")
            for l in lblk: l() if callable(l) else a(l)
            a.label(l1)
            for m in mains: a(m)
            a(f"s_cmp_eq_u32 {sHI}, 0"); a(f"s_cbranch_scc0 {l2}")
            for l in lblk: l() if callable(l) else a(l)
            a.label(l2)
        else:
            rds = [l for l in lblk if l.startswith('ds_read')]; oth = [l for l in lblk if not l.startswith('ds_read')]
            units = []; cur = []
            for l in oth:
                cur.append(l)
                if 'buffer_' in l or 'ds_write' in l: units.append(cur); cur = []
            if cur: units.append(cur)
            n = len(mains); mode = OPT['il']
            pos = {}
            if mode == 0:
                seq = [[r] for r in rds] + units
                for k, u in enumerate(seq): pos.setdefault(min(n - 1, k * n // max(len(seq), n)), []).extend(u)
            elif mode == 1:
                for k, u in enumerate(units): pos.setdefault(min(n - 1, 2 * k), []).extend(u)
                for k, r in enumerate(rds): pos.setdefault(min(n - 1, k * min(n, len(rds)) // len(rds) if len(rds) > n else k), []).append(r)
            elif mode == 2:
                for k, r in enumerate(rds): pos.setdefault(min(n - 1, k // 2), []).append(r)
                for k, u in enumerate(units): pos.setdefault(min(n - 1, len(rds) // 2 + 2 * k), []).extend(u)
            elif mode == 3:
                for k, u in enumerate(units): pos.setdefault(min(n - 1, 1 + k * (2 * n // 3) // max(1, len(units))), []).extend(u)
                for k, r in enumerate(rds): pos.setdefault(min(n - 1, k * min(n, len(rds)) // len(rds) if len(rds) > n else k), []).append(r)
            elif mode == 4:
                k = 0
                for i in range(n):
                    while k < len(lblk) and k < (i + 1) * len(lblk) // n + 1:
                        pos.setdefault(i, []).append(lblk[k]); k += 1
            for i, m in enumerate(mains):
                a(m)
                for l in pos.get(i, []): a(l)
    def init_check_issue(reg, off=128):
        return [f"v_mov_b32 {reg}, 0", f"buffer_load_dword {reg}, {reg}, {rDBG}, 0 offen offset:{off} sc1"]
    def init_check(reg, off=128):
        ok = a.newlabel('INITOK')
        a(f"v_readfirstlane_b32 {sP[0]}, {reg}")
        a(f"s_cmp_lg_u32 {sP[0]}, 0")
        a(f"s_cbranch_scc1 {ok}")
        init_poll(a, reg, off)
        a.label(ok)
    sR6, sCG, sAo, sBg, sBo, sLC, sH2, sRX = [S(94 + i) for i in range(8)]
    vo, vo4 = V(20), V(21)
    vS2 = V(30)
    sO1, sO2 = S(79), S(80)
    BRb = [208, 228, 32, 52]
    BR = [[V(BRb[b] + 4 * j, 4) for j in range(5)] for b in range(4)]
    GL = [4, 6, 7, 9]; LR = [2, 5, 3, 4]; CR = [0, 1, 6]
    GRP = {0:0, 1:1, 2:2, 3:3, 4:8, 6:9, 7:10, 9:11, 5:12, 8:13}
    CB0 = 38 * 5120; CA0 = 38 * 4096
    def p2_setup():
        return [f"s_and_b32 {sR6}, s2, 7", f"s_lshl_b32 {sR6}, {sR6}, 2", "s_lshr_b32 s4, s2, 6", f"s_add_u32 {sR6}, {sR6}, s4",
             f"s_bfe_u32 {sCG}, s2, 0x30003", f"s_lshl1_add_u32 {sCG}, s4, {sCG}", f"s_and_b32 {sCG}, {sCG}, 7", f"v_lshlrev_b32 {vo}, 4, {lane}", f"v_add_u32 {vo4}, 4096, {vo}",
             f"s_mul_i32 {sBg}, {sCG}, 74", f"s_add_u32 {sBg}, {sBg}, {sRG}", f"s_mul_i32 {sBg}, {sBg}, 5120", f"s_add_u32 {sBg}, {sBg}, {BP}",
             f"s_mov_b32 {rB[0]}, {pWS[0]}", f"s_and_b32 {rB[1]}, {pWS[1]}, 0xffff", f"s_mul_i32 {rB[2]}, {sHI}, {WSZ}", f"s_mov_b32 {rB[3]}, 0x20000",
             f"s_mul_i32 {sLC}, {sRG}, 5120", f"s_lshl_b32 {sH2}, {sHI}, 11", f"s_mul_i32 {sRX}, {sHI}, 20480",
             f"s_xor_b32 s4, {sHI}, 1", f"s_mul_i32 {sBo}, s4, {16*5120}", f"s_add_u32 {sBo}, {sBo}, {sBg}",
             f"s_mul_i32 {sAo}, {sR6}, 74", f"s_mul_i32 s4, s4, 16", f"s_add_u32 {sAo}, {sAo}, s4", f"s_add_u32 {sAo}, {sAo}, {sRG}", f"s_lshl_b32 {sAo}, {sAo}, 12",
             f"s_lshr_b32 s4, {sCG}, 1", "s_mul_i32 s4, s4, 5", f"s_mul_i32 {sO2}, {sR6}, 74", f"s_add_u32 {sO2}, {sO2}, s4", f"s_add_u32 {sO2}, {sO2}, 54",
             f"s_lshl2_add_u32 {sO2}, {sO2}, {sRG}", f"s_lshl_b32 {sO2}, {sO2}, 10", f"s_and_b32 s4, {sCG}, 1", f"s_mul_i32 {sO1}, s4, {3*4096}",
             f"s_add_u32 {sO1}, {sO1}, {sO2}", f"s_lshl3_add_u32 {sO2}, s4, {sO2}", f"s_add_u32 {sO2}, {sO2}, 8192"]
    def poison(R4):
        if not OPT['sent']: return []
        lb = a.newlabel('PO')
        return [f"s_cmp_eq_u32 {sHI}, 1\ns_cbranch_scc1 {lb}\n" + "\n".join(f"v_mov_b32 {R4[i]}, -1" for i in range(4)) +
                f"\nbuffer_store_dwordx4 {R4}, {vo}, {rWS}, {sO1} offen {ST}\nbuffer_store_dwordx4 {R4}, {vo4}, {rWS}, {sO1} offen {ST}"
                f"\nbuffer_store_dwordx2 {R4[0:2]}, {vo}, {rWS}, {sO2} offen {ST}\n{lb}:"]
    def b_reg(vm, i, tag, r=None, grp=None, ext=0):
        b = i % 4; r = r or rWS; grp = i if grp is None else grp
        l = [f"s_add_u32 s4, {sBo}, {grp*20480 + ext}"]
        for j in range(5):
            if j < 4: l.append(f"buffer_load_dwordx4 {BR[b][j]}, {vo}, {r}, s4 offen offset:{j*1024} {LD}")
            else: l.append(f"buffer_load_dwordx4 {BR[b][j]}, {vo4}, {r}, s4 offen {LD}")
            vm.issue(tag)
        return l
    def b_row(vm, base, grp, row, extra=None, ext=0):
        l = [f"s_add_u32 s4, {base}, {grp*20480 + ext}", f"s_add_u32 s5, {sLC}, {row*20480}"]
        if extra: l += [f"s_add_u32 s4, s4, {extra}", f"s_add_u32 s5, s5, {extra}"]
        l.append("s_mov_b32 m0, s5")
        for j in range(4):
            l.append(f"buffer_load_dwordx4 {vo}, {rWS}, s4 offen offset:{j*1024} {LD} lds"); vm.issue('BL')
        l.append("s_add_u32 m0, s5, 4096")
        l.append(f"buffer_load_dwordx4 {vo4}, {rWS}, s4 offen {LD} lds"); vm.issue('BL')
        return l
    def b_row_half(vm, k):
        l = [f"s_add_u32 s4, {sBg}, {GRP[GL[k]]*20480}", f"s_add_u32 s5, {sLC}, {LR[k]*20480}", f"s_add_u32 s4, s4, {sH2}", f"s_add_u32 m0, s5, {sH2}"]
        for j in range(3):
            l.append(f"buffer_load_dwordx4 {vo}, {rWS}, s4 offen offset:{j*1024} {LD} lds"); vm.issue('BL')
        return l
    sPF = S(8)
    def flag_store(need):
        a(f"s_mov_b32 {sNEED}, {need}")

    vw = [V(R0), V(R0 + 1)]; wa = [V(R0 + 2), V(R0 + 3), V(R0 + 4)]; vchk = V(R0 + 5)
    FB = [32, 72]
    XF = [[V(FB[b] + 4 * tt, 4) for tt in range(4)] for b in range(2)]
    WF = [[V(FB[b] + 16 + 4 * c, 4) for c in range(6)] for b in range(2)]
    ACC = [[V(112 + (c * 4 + tt) * 4, 4) for tt in range(4)] for c in range(6)]
    vm = VmTrack()
    a(f"s_mul_i32 {sT3}, {sID}, 192")
    touch_setup(pWG, pWU, 3456, sT3, sT3, 192)
    for l in burst(vm, *BS['p0']): a(l)
    a(f"s_bitcmp1_b32 {sWV}, 0")
    a(f"s_cselect_b32 {rW[0]}, {pWU[0]}, {pWG[0]}")
    a(f"s_cselect_b32 {rW[1]}, {pWU[1]}, {pWG[1]}")
    a(f"s_and_b32 {rW[1]}, {rW[1]}, 0xffff")
    a(f"s_mov_b32 {rW[2]}, {640*3456}")
    a(f"s_mov_b32 {rW[3]}, 0x20000")
    a(f"s_bfe_u32 {sT0}, {sWV}, 0x10001")
    a(f"s_lshl_b32 {sT1}, {sT0}, 1")
    for n in range(2):
        a(f"v_add_u32 {t0}, {64*n}, {lane}")
        a(f"v_mul_u32_u24 {t1}, 43, {t0}")
        a(f"v_lshrrev_b32 {t1}, 9, {t1}")
        a(f"v_mul_u32_u24 {t2}, 12, {t1}")
        a(f"v_sub_u32 {t2}, {t0}, {t2}")
        a(f"v_lshrrev_b32 {t3}, 2, {t2}")
        a(f"v_cmp_eq_u32 vcc, 1, {t3}")
        a(f"v_mov_b32 {t3}, {sT1}")
        a(f"v_mov_b32 {t4}, {sT0}")
        a(f"v_cndmask_b32 {t3}, {t3}, {t4}, vcc")
        a(f"v_xor_b32 {t2}, {t2}, {t3}")
        a(f"v_mul_u32_u24 {t1}, 3456, {t1}")
        a(f"v_lshl_add_u32 {vw[n]}, {t2}, 4, {t1}")
        if n: a(f"v_subrev_u32 {vw[n]}, 1024, {vw[n]}")
    a(f"s_lshr_b32 {sT0}, {sWV}, 1")
    a(f"s_mul_i32 {sWK}, {sT0}, {8*3456}")
    a(f"s_add_u32 {sWK}, {sWK}, {sT3}")
    a(f"s_mul_i32 {sMW}, {sT0}, 1536")
    a(f"s_and_b32 {sT1}, {sWV}, 1")
    a(f"s_mul_i32 {sT1}, {sT1}, 6144")
    a(f"s_add_u32 {sMW}, {sMW}, {sT1}")
    def w_dma(step):
        l = [f"s_add_u32 m0, {sMW}, {WB + (step % 5) * 12288}"] + ([f"s_add_u32 {sWK}, {sWK}, 110592"] if step else []) + [
             f"buffer_load_dwordx4 {vw[0]}, {rW}, {sWK} offen {OPT['wfl']} lds",
             "s_mov_b32 exec_hi, 0\n"
             f"buffer_load_dwordx4 {vw[1]}, {rW}, {sWK} offen offset:1024 {OPT['wfl']} lds\n"
             "s_mov_b32 exec_hi, -1"]
        vm.issue(('W', step)); vm.issue(('W', step))
        return l
    if OPT['touch']: a("s_barrier")
    for l in x_dma(vm, 0, 0) + x_dma(vm, 0, 1) + w_dma(0) + w_dma(1): a(l)
    x_addr_setup()
    a(f"v_lshl_add_u32 {t0}, {vqd}, 3, {vr}")
    a(f"v_mul_u32_u24 {t0}, 192, {t0}")
    a(f"v_add_u32 {t0}, {WB}, {t0}")
    a(f"v_and_b32 {t1}, 1, {vqd}")
    a(f"v_lshlrev_b32 {t2}, 5, {t1}")
    a(f"v_lshl_add_u32 {t2}, {vc}, 3, {t2}")
    a(f"s_lshl_b32 {sT0}, {sHI}, 7")
    a(f"v_add3_u32 {wa[0]}, {t0}, {t2}, {sT0}")
    a(f"v_xor_b32 {wa[1]}, 32, {wa[0]}")
    a(f"v_and_b32 {t2}, 2, {vc}")
    a(f"v_add_u32 {t2}, {sHI}, {t2}")
    a(f"v_xor_b32 {t2}, {t2}, {t1}")
    a(f"v_lshlrev_b32 {t2}, 4, {t2}")
    a(f"v_and_b32 {t3}, 1, {vc}")
    a(f"v_lshl_add_u32 {t2}, {t3}, 3, {t2}")
    a(f"v_add3_u32 {wa[2]}, {t0}, {t2}, 64")
    def w_reads(WFb, step):
        return [f"ds_read_b64_tr_b16 {WFb[m*3+i][2*rd:2*rd+2]}, {wa[i]} offset:{(step % 5) * 12288 + m * 6144 + rd * 768}"
                for m in range(2) for i in range(3) for rd in range(2)]
    if 'p1' in BS:
        a("s_barrier")
        for l in burst(vm, *BS['p1']): a(l)
        if T2:
            for b0 in eval(OPT['t2b']):
                for l in t2_all(b0): a(l)
                vm.issue('T')
    n = vm.wait_for(lambda t: t in (('X', 0), ('W', 0)))
    a(f"s_waitcnt vmcnt({n})")
    a("s_barrier")
    stamp(a, 1)
    for l in x_reads(XF[0], 0) + w_reads(WF[0], 0): a(l)
    if OPT['fill'] == 0:
        for l in x_dma(vm, 1, 0) + x_dma(vm, 1, 1) + w_dma(2): a(l)
    fq = []
    for st in range(2, 20):
        if st % 2 == 0:
            b = st // 2
            fq += [('X', b, 0, max(0, 2*(b-3)+1)), ('X', b, 1, max(0, 2*(b-3)+1))]
        fq.append(('W', st, 0, max(0, st - 5)))
    for j in range(20):
        cur, nxt = j & 1, (j & 1) ^ 1
        CHK = OPT['chk']
        NB = OPT['nobar']
        if j < NB:
            n = vm.wait_for(lambda t: t in (('X', (j + 1) // 2), ('W', j + 1)) or (j == CHK and t == 'chk') or (j == NB - 1 and t[0] in 'XW'))
            a(f"s_waitcnt vmcnt({n}) lgkmcnt(0)")
            if j == CHK: init_check(vchk)
            a("s_barrier")
        else:
            a("s_waitcnt lgkmcnt(0)")
        sstamp(a, j)
        mains = [f"v_mfma_f32_16x16x32_bf16 {ACC[c][tt]}, {WF[cur][c]}, {XF[cur][tt]}, {'0' if j == 0 else ACC[c][tt]}" for c in range(6) for tt in range(4)]
        pre = burst(vm, *BS[j]) if j in BS else []
        lblk = []
        if j < 19:
            lblk += x_reads(XF[nxt], j + 1) + w_reads(WF[nxt], j + 1)
            if OPT['fill']:
                cnt = OPT['fill'] + (1 if j == 0 else 0)
                while cnt and fq and fq[0][3] <= j:
                    it = fq.pop(0); cnt -= 1
                    lblk += x_dma(vm, it[1], it[2]) if it[0] == 'X' else w_dma(it[1])
            if j == 0 and not OPT['fill']: lblk += w_dma(3) + x_dma(vm, 2, 0) + x_dma(vm, 2, 1) + w_dma(4)
            xb = (j - 1) // 2 + 3 if j >= 1 else 99
            if xb <= 9 and not OPT['fill']: lblk += x_dma(vm, xb, (j - 1) % 2)
            if T2 and j in eval(OPT['t2f']): lblk += t2_one(*eval(OPT['t2f'])[j])
            if j == CHK - 2: lblk += init_check_issue(vchk); vm.issue('chk')
            if j + 5 <= 19 and not OPT['fill']: lblk += w_dma(j + 5)
            if j == 10: lblk += p2_setup()
            if j == 11: lblk += poison(V(248, 4))
            if j == CHK: hq = b_reg(VmTrack(), 0, 'B') + b_reg(VmTrack(), 1, 'B'); hq = [hq[0:3], hq[3:5], [hq[5]] + hq[6:8], hq[8:10], hq[10:12]]
            JJ = [CHK, CHK + 1, 15, 16, 18] if CHK < 14 else [14, 15, 16, 17, 18]
            if j in JJ:
                q = JJ.index(j)
                if not hq[q][0].startswith('s_'): lblk.append(f"s_add_u32 s4, {sBo}, {0 if q < 3 else 20480}")
                lblk += hq[q]; vm.issue('B'); vm.issue('B')
            if j == 15: lblk += b_row_half(vm, 0)
            if j == 16: lblk += b_row_half(vm, 1)
            if j == 17: lblk += b_row(vm, sBg, GRP[GL[2]], LR[2], sRX)
        else:
            lblk += b_reg(vm, 2, 'B') + b_reg(vm, 3, 'B')
        step_body(mains, lblk, pre)
    stamp(a, 2)
    a("s_setprio 2")
    sN = S(82, 2)
    a(f"s_mov_b32 {sN[0]}, {NLOG2E:#x}")
    a(f"s_mov_b32 {sN[1]}, {NLOG2E:#x}")
    a(f"s_lshl_b32 {sT3}, {sRB}, 2")
    a(f"s_add_u32 {sT3}, {sT3}, {sRG}")
    a(f"s_mul_i32 {sT0}, {sT3}, 74")
    a(f"s_mul_i32 {sT1}, {sID}, 3")
    a(f"s_add_u32 {sT0}, {sT0}, {sT1}")
    a(f"s_lshl_b32 {sT0}, {sT0}, 12")
    a(f"s_lshl_b32 {sT1}, {sHI}, 13")
    a(f"s_add_u32 {sT1}, {sT0}, {sT1}")
    a(f"s_lshl_b32 {sT2}, {sHI}, 9")
    a(f"s_add_u32 {sT2}, {sT2}, {sT0}")
    a(f"s_add_u32 {sT2}, {sT2}, 4096")
    a(f"s_lshl_b32 {sFLAG}, {sT3}, 7")
    a(f"s_add_u32 {sFLAG}, {sFLAG}, {FH}")
    a(f"v_lshlrev_b32 {t0}, 4, {lane}")
    a(f"v_and_b32 {t1}, 31, {lane}")
    a(f"v_lshlrev_b32 {t1}, 4, {t1}")
    a(f"v_lshrrev_b32 {t2}, 5, {lane}")
    a(f"v_lshl_add_u32 {t1}, {t2}, 10, {t1}")
    tmp = [V(FB[1] + 4 * i, 4) for i in range(2)]
    outs = [V(FB[1] + 8 + 4 * i, 4) for i in range(6)]
    def silu2(G0, U0, G1, U1, o):
        GU = ((G0, U0, tmp[0]), (G1, U1, tmp[1]))
        for G, U, T in GU:
            for h in range(2): a(f"v_pk_mul_f32 {T[2*h:2*h+2]}, {G[2*h:2*h+2]}, {sN}")
        for G, U, T in GU:
            for k in range(4): a(f"v_exp_f32 {T[k]}, {T[k]}")
        for G, U, T in GU:
            for h in range(2): a(f"v_pk_mul_f32 {G[2*h:2*h+2]}, {G[2*h:2*h+2]}, {U[2*h:2*h+2]}")
        for G, U, T in GU:
            for h in range(2): a(f"v_pk_add_f32 {T[2*h:2*h+2]}, {T[2*h:2*h+2]}, 1.0 op_sel_hi:[1,0]")
        for G, U, T in GU:
            for k in range(4): a(f"v_rcp_f32 {T[k]}, {T[k]}")
        for G, U, T in GU:
            for h in range(2): a(f"v_pk_mul_f32 {G[2*h:2*h+2]}, {G[2*h:2*h+2]}, {T[2*h:2*h+2]}")
        for q, (G, U, T) in enumerate(GU):
            for h in range(2): a(f"v_cvt_pk_bf16_f32 {o[2*q+h]}, {G[2*h]}, {G[2*h+1]}")
    for tt in range(4):
        o = outs[tt]
        silu2(ACC[0][tt], ACC[3][tt], ACC[1][tt], ACC[4][tt], o)
        a(f"buffer_store_dwordx4 {o}, {t0}, {rWS}, {sT1} offen offset:{tt*1024} {ST}")
    for tp in range(2):
        o = outs[4 + tp]
        silu2(ACC[2][2*tp], ACC[5][2*tp], ACC[2][2*tp+1], ACC[5][2*tp+1], o)
        a(f"v_permlane32_swap_b32 {o[0]}, {o[2]}")
        a(f"v_permlane32_swap_b32 {o[1]}, {o[3]}")
        a(f"buffer_store_dwordx4 {o}, {t1}, {rWS}, {sT2} offen offset:{tp*2048} {ST}")
    flag_store(35)
    a(f"s_mov_b32 {sPF}, 0")
    a("s_branch P2")

    a.label('R_QKV')
    vm = VmTrack()
    vw = [V(R0), V(R0 + 1), V(R0 + 2)]; wa = V(R0 + 3); pa = V(R0 + 4); vchk = V(R0 + 5); vgw = V(R0 + 6)
    FB = [32, 68]
    XF = [[V(FB[b] + 4 * tt, 4) for tt in range(4)] for b in range(2)]
    WF = [[V(FB[b] + 16 + 4 * c, 4) for c in range(5)] for b in range(2)]
    ACC = [V(104 + 20 * tt, 20) for tt in range(4)]
    pf4 = [V(32 + 4 * i, 4) for i in range(9)] + [V(196, 4)]
    pf2 = [V(200, 2), V(202, 2), V(204, 2), V(206, 2), V(248, 2)]
    PF = [[pf4[2 * t], pf4[2 * t + 1], pf2[t]] for t in range(5)]
    WP = V(184, 4); GWF = V(188, 4); GA = V(192, 4)
    sC0, sC1, sLo, sHi2, sISQ, sHB, sGD = [S(77 + i) for i in range(7)]
    PHW = 135168; PHB = 0; VVB = 90112; PS = 352
    srd(a, rW, pQKV, 640 * 3840)
    srd(a, rA, pPHI, 32 * 800)
    a(f"s_lshl_b32 {sID}, {sT0}, 1"); a(f"s_add_u32 {sID}, {sID}, {sC8}")
    a(f"s_mul_i32 {sC0}, {sID}, 160")
    a(f"s_add_u32 {sC1}, {sC0}, 2560")
    a(f"s_add_u32 {sC0}, {sC0}, 1280")
    a(f"s_lshl_b32 {sHB}, {sID}, 2")
    a(f"s_mul_i32 {sT1}, {sT0}, 320")
    a(f"s_add_u32 {sT2}, {sT1}, 160")
    a(f"s_lshl_b32 {sT3}, {sT0}, 3")
    a(f"s_cmp_eq_u32 {sC8}, 2")
    a(f"s_cselect_b32 {sC0}, {sT1}, {sC0}")
    a(f"s_cselect_b32 {sC1}, {sT2}, {sC1}")
    a(f"s_cselect_b32 {sHB}, {sT3}, {sHB}")
    a(f"s_cselect_b32 {sISQ}, 1, 0")
    a(f"s_bitcmp1_b32 {sWV}, 0")
    a(f"s_cselect_b32 {sLo}, {sC1}, {sC0}")
    a(f"s_cselect_b32 {sHi2}, {sC0}, {sC1}")
    a(f"s_sub_u32 {sHi2}, {sHi2}, 160")
    touch_setup(pQKV, pQKV, 3840, sC0, sC1, 160)
    for l in burst(vm, *BS['p0']): a(l)
    for n in range(3):
        a(f"v_add_u32 {t0}, {64*n}, {lane}")
        a(f"v_mul_u32_u24 {t1}, 205, {t0}")
        a(f"v_lshrrev_b32 {t1}, 12, {t1}")
        a(f"v_mul_u32_u24 {t2}, 20, {t1}")
        a(f"v_sub_u32 {t2}, {t0}, {t2}")
        a(f"v_cmp_le_u32 vcc, 10, {t2}")
        a(f"v_mov_b32 {t3}, {sLo}")
        a(f"v_mov_b32 {t4}, {sHi2}")
        a(f"v_cndmask_b32 {t3}, {t3}, {t4}, vcc")
        a(f"v_mul_u32_u24 {t1}, 3840, {t1}")
        a(f"v_lshl_add_u32 {t1}, {t2}, 4, {t1}")
        a(f"v_add_u32 {vw[n]}, {t1}, {t3}")
        if n: a(f"v_subrev_u32 {vw[n]}, {1024*n}, {vw[n]}")
    a(f"s_mul_i32 {sWK}, {sWV}, {8*3840}")
    a(f"s_mul_i32 {sMW}, {sWV}, 2560")
    def w_dma2(blk):
        l = [f"s_add_u32 m0, {sMW}, {WB + (blk % 3) * 20480}"] + ([f"s_add_u32 {sWK}, {sWK}, 245760"] if blk else []) + [
             f"buffer_load_dwordx4 {vw[0]}, {rW}, {sWK} offen {OPT['wfl']} lds",
             f"buffer_load_dwordx4 {vw[1]}, {rW}, {sWK} offen offset:1024 {OPT['wfl']} lds",
             "s_mov_b32 exec_hi, 0\n"
             f"buffer_load_dwordx4 {vw[2]}, {rW}, {sWK} offen offset:2048 {OPT['wfl']} lds\n"
             "s_mov_b32 exec_hi, -1"]
        for _ in range(3): vm.issue(('W', blk))
        return l
    a(f"v_lshlrev_b32 {t0}, 4, {tid}")
    a(f"s_mul_i32 {sT0}, {sHB}, 800")
    a(f"v_add_u32 {t0}, {sT0}, {t0}")
    a(f"buffer_load_dwordx4 {WP}, {t0}, {rA}, 0 offen"); vm.issue(('P', 0))
    if OPT['touch']: a("s_barrier")
    for l in x_dma(vm, 0, 0) + x_dma(vm, 0, 1) + w_dma2(0): a(l)
    x_addr_setup()
    a(f"v_lshl_add_u32 {t0}, {vqd}, 3, {vr}")
    a(f"v_mul_u32_u24 {t0}, 320, {t0}")
    a(f"v_and_b32 {t1}, 1, {vqd}")
    a(f"v_xor_b32 {t1}, {sHI}, {t1}")
    a(f"v_mul_u32_u24 {t1}, 160, {t1}")
    a(f"v_mul_u32_u24 {t2}, 40, {vc}")
    a(f"v_add3_u32 {t0}, {t0}, {t1}, {t2}")
    a(f"v_add_u32 {wa}, {WB}, {t0}")
    a(f"s_and_b32 {sT0}, {sHI}, {sISQ}")
    a(f"s_mul_i32 {sT0}, {sT0}, 3200")
    a(f"s_add_u32 {sT0}, {sT0}, {PHW}")
    a(f"v_mul_u32_u24 {t0}, 800, {vqd}")
    a(f"v_add_u32 {t0}, {sT0}, {t0}")
    a(f"v_mov_b32 {t1}, {ZERO}")
    a(f"v_cmp_eq_u32 vcc, {vc}, {vqd}")
    a(f"v_cndmask_b32 {t0}, {t1}, {t0}, vcc")
    a(f"v_mul_u32_u24 {t1}, 40, {vr}")
    a(f"v_add_u32 {pa}, {t0}, {t1}")
    def w_reads2(WFb, step):
        blk, kk = step // 2, step % 2
        return [f"ds_read_b64_tr_b16 {WFb[t][2*rd:2*rd+2]}, {wa} offset:{(blk % 3) * 20480 + kk * 10240 + rd * 1280 + 8 * t}" for t in range(5) for rd in range(2)]
    if 'p1' in BS:
        a("s_barrier")
        for l in burst(vm, *BS['p1']): a(l)
        if T2:
            for b0 in eval(OPT['t2b']):
                for l in t2_all(b0): a(l)
                vm.issue('T')
    n = vm.wait_for(lambda t: t in (('X', 0), ('W', 0)))
    a(f"s_waitcnt vmcnt({n})")
    a("s_barrier")
    stamp(a, 1)
    for l in x_reads(XF[0], 0) + w_reads2(WF[0], 0): a(l)
    if OPT['fill'] == 0:
        for l in x_dma(vm, 1, 0) + x_dma(vm, 1, 1) + w_dma2(1): a(l)
    fq = []
    for b in range(1, 10):
        fq += [('X', b, max(0, 2*(b-3)+1)), ('W', b, max(0, 2*(b-3)+1))]
    for j in range(20):
        cur, nxt = j & 1, (j & 1) ^ 1
        if j % 2 == 1:
            if j < 19:
                n = vm.wait_for(lambda t: t in (('X', (j + 1) // 2), ('W', (j + 1) // 2)) or (j == 17 and t == 'chk'))
                a(f"s_waitcnt vmcnt({n}) lgkmcnt(0)")
            else: a("s_waitcnt lgkmcnt(0)")
            if j == 17: init_check(vchk)
            a("s_barrier")
        else:
            a("s_waitcnt lgkmcnt(0)")
            if OPT['pp'] or OPT['qbar']: a("s_barrier")
        sstamp(a, j)
        mains = [f"v_mfma_f32_16x16x32_bf16 {ACC[tt][4*t:4*t+4]}, {WF[cur][t]}, {XF[cur][tt]}, {'0' if j == 0 else ACC[tt][4*t:4*t+4]}" for t in range(5) for tt in range(4)]
        pre = burst(vm, *BS[j]) if j in BS else []
        lblk = []
        if j < 19:
            lblk += x_reads(XF[nxt], j + 1) + w_reads2(WF[nxt], j + 1)
            if OPT['fill']:
                cnt = 2 if j in (0, 1, 3, 5) else 1
                while cnt and fq and fq[0][2] <= j:
                    it = fq.pop(0); cnt -= 1
                    lblk += x_dma(vm, it[1], 0) + x_dma(vm, it[1], 1) if it[0] == 'X' else w_dma2(it[1])
            if j == 0 and not OPT['fill']: lblk += x_dma(vm, 2, 0) + x_dma(vm, 2, 1) + w_dma2(2)
            xb = (j - 1) // 2 + 3 if j >= 1 else 99
            if xb <= 9 and not OPT['fill']:
                if j % 2 == 1: lblk += x_dma(vm, xb, 0) + x_dma(vm, xb, 1)
                else: lblk += w_dma2(xb)
            if T2 and j in eval(OPT['t2q']): lblk += t2_one(*eval(OPT['t2q'])[j])
            if j == 15: lblk += init_check_issue(vchk); vm.issue('chk')
            if j == 17:
                lblk += [f"v_lshlrev_b32 {t0}, 4, {tid}", f"v_add_u32 {t0}, {PHW}, {t0}", f"ds_write_b128 {t0}, {WP}"]
            if j == 10: lblk += p2_setup()
            if j == 12: lblk += poison(V(208, 4))

        else:
            for t in range(5):
                for s in range(3):
                    for r_ in range(2 if s < 2 else 1):
                        lblk.append(f"ds_read_b64_tr_b16 {PF[t][s][2*r_:2*r_+2]}, {pa} offset:{s*320 + r_*160 + t*8}")
        step_body(mains, lblk, pre)
    stamp(a, 2)
    a("s_setprio 2")
    QB = V(68, 40); P = V(108, 20); E = V(128, 40); O = V(168, 20); M = V(250, 4); T = V(188, 4); ONE = V(192, 2)
    sCNT = S(8); sOUT = S(9)
    def cvt_tile(dst, tt):
        for i in range(10): a(f"v_cvt_pk_bf16_f32 {dst[i]}, {ACC[tt][2*i]}, {ACC[tt][2*i+1]}")
    def pk_list(q, P=P):
        l = []
        for s_ in range(3):
            for t in range(5):
                d = P[4*t:4*t+4]
                if s_ < 2: l.append(f"v_mfma_f32_16x16x32_bf16 {d}, {PF[t][s_]}, {q[4*s_:4*s_+4]}, {'0' if s_ == 0 else d}")
                else: l.append(f"v_mfma_f32_16x16x16_bf16 {d}, {PF[t][s_]}, {q[8:10]}, {d}")
        return l
    a(f"s_lshl_b32 {sT3}, {sRB}, 2")
    a(f"s_add_u32 {sT3}, {sT3}, {sRG}")
    a(f"s_cmp_eq_u32 {sISQ}, 0")
    a("s_cbranch_scc1 R_KV")
    for tt in range(4): cvt_tile(QB[10*tt:10*tt+10], tt)
    a("s_waitcnt vmcnt(0) lgkmcnt(0)")
    PT = [V(108 + 20*i, 20) for i in range(4)]
    a(f"s_lshr_b32 {sT1}, {sHB}, 2")
    a(f"s_add_u32 {sT1}, {sT1}, {sHI}")
    a(f"s_lshl_b32 {sOUT}, {sT3}, 3")
    a(f"s_add_u32 {sOUT}, {sOUT}, {sT1}")
    a(f"s_mul_i32 {sOUT}, {sOUT}, 10240")
    a(f"s_add_u32 {sOUT}, {sOUT}, {PQ}")
    a(f"s_add_u32 {sT0}, {sOUT}, 8192")
    a(f"s_lshl_b32 {sFLAG}, {sT3}, 7")
    a(f"s_add_u32 {sFLAG}, {sFLAG}, {FH + 4}")
    QO = [V(208 + 8*i, 8) for i in range(4)]; QT = [V(240, 4), V(244, 4)]
    def q_out(tt):
        l = [f"v_cvt_pk_bf16_f32 {QO[tt][i] if i < 8 else QT[tt//2][2*(tt%2) + i - 8]}, {PT[tt][2*i]}, {PT[tt][2*i+1]}" for i in range(10)]
        for h in range(2): l.append(f"buffer_store_dwordx4 {QO[tt][4*h:4*h+4]}, {vo if tt < 2 else vo4}, {rWS}, {sOUT} offen offset:{(tt%2)*2048 + h*1024} {ST}")
        if tt % 2: l.append(f"buffer_store_dwordx4 {QT[tt//2]}, {vo}, {rWS}, {sT0} offen offset:{(tt//2)*1024} {ST}")
        return l
    for tt in range(4):
        side = q_out(tt - 1) if tt else []
        for i, l in enumerate(pk_list(QB[10*tt:10*tt+10], PT[tt])):
            a(l)
            if i >= 2 and side: a(side.pop(0))
    for l in q_out(3): a(l)
    flag_store(11)
    a(f"s_mov_b32 {sPF}, 6")
    a("s_branch P2")
    a.label('R_KV')
    a(f"s_lshl_b32 {sT1}, {sRG}, 1"); a(f"s_add_u32 {sT0}, {sT1}, 1"); a(f"s_mul_i32 {sT0}, {sT0}, {32*PS}")
    a(f"v_add_u32 {t0}, {sT0}, {vo}")
    a(f"s_mov_b32 {sCNT}, 2")
    a(f"s_cmp_eq_u32 {sHI}, 1")
    a("s_cbranch_scc1 R_V")
    cvt_tile(QB[0:10], 0)
    cvt_tile(QB[20:30], 2); cvt_tile(QB[30:40], 3)
    for i in range(5): a(f"ds_write_b128 {t0}, {QB[20+4*i:24+4*i]} offset:{i*1024}")
    cvt_tile(QB[10:20], 1)
    a("s_waitcnt lgkmcnt(0)")
    a("s_barrier")
    for l in pk_list(QB[0:10]): a(l)
    a("s_branch R_KV2")
    a.label('R_V')
    VBt = {3: V(88, 10), 0: V(98, 10), 1: V(168, 10), 2: V(178, 10)}
    for tt in (3, 0, 1, 2): cvt_tile(VBt[tt], tt)
    a(f"s_mul_i32 {sT2}, {sRG}, {64*176}")
    a(f"s_add_u32 {sT2}, {sT2}, {VVB}")
    a(f"v_mul_u32_u24 {t2}, 176, {vl15}")
    a(f"v_add_u32 {t1}, {sT2}, {t2}")
    a(f"v_mul_u32_u24 {t3}, 40, {vqd}")
    a(f"v_add_u32 {t2}, {t1}, {t3}")
    a(f"v_mov_b32 {ONE[0]}, 0x3f80")
    a(f"v_mov_b32 {ONE[1]}, 0")
    a("s_barrier")
    for i in range(5): a(f"ds_read_b128 {QB[4*i:4*i+4]}, {t0} offset:{i*1024}")
    side = []
    for tt in (3, 0, 1, 2):
        for i in range(5): side.append(f"ds_write_b64 {t2}, {VBt[tt][2*i:2*i+2]} offset:{tt*2816 + 8*i}")
        side.append(f"ds_write_b64 {t1}, {ONE} offset:{tt*2816 + 160}")
    for i in range(9): a(side.pop(0))
    a("s_waitcnt lgkmcnt(9)")
    for l in pk_list(QB[0:10]): a(l); a(side.pop(0))
    a.label('R_KV2')
    a(f"s_add_u32 {sT1}, {sT1}, {sHI}"); a(f"s_mul_i32 {sT1}, {sT1}, {32*PS}")
    a(f"v_mul_u32_u24 {t4}, {PS}, {vl15}")
    a(f"v_mul_u32_u24 {t3}, 80, {vqd}")
    a(f"v_add3_u32 {t4}, {t4}, {t3}, {sT1}")
    stamp(a, 12)
    for u in range(2):
        if u == 0:
            bl = b_reg(vm, 0, 'B') + b_reg(vm, 1, 'B'); pl = pk_list(QB[10:20])
            sd = [pl[i] + ("\n" + bl[i] if i < len(bl) else "") for i in range(15)]
        else: sd = b_reg(vm, 2, 'B') + b_reg(vm, 3, 'B')
        softmax_unit(a, P, E, M, T, O, sd + ["s_waitcnt lgkmcnt(0)"])
        for s_ in range(5): a(f"ds_write_b128 {t4}, {O[4*s_:4*s_+4]} offset:{PHB + u*16*PS + 16*s_}")
    a(f"v_lshl_add_u32 {t0}, {vqd}, 2, {vr}")
    a(f"v_mul_u32_u24 {t1}, {PS}, {t0}")
    a(f"s_mul_i32 {sT0}, {sRG}, 80")
    a(f"v_lshl_add_u32 {t1}, {vc}, 3, {t1}")
    a(f"v_add_u32 {t1}, {sT0}, {t1}")
    a(f"v_add_u32 {t2}, {128*PS}, {t1}")
    a(f"v_mul_u32_u24 {t0}, 176, {t0}")
    a(f"s_mul_i32 {sT0}, {sRG}, 40")
    a(f"s_mul_i32 {sT1}, {sHI}, 24")
    a(f"s_add_u32 {sT0}, {sT0}, {sT1}")
    a(f"v_lshl_add_u32 {t3}, {vc}, 3, {sT0}")
    a(f"v_mul_u32_u24 {t4}, {sHI}, {vc}")
    a(f"v_cmp_lt_u32 vcc, 1, {t4}")
    a(f"v_mov_b32 {t4}, 160")
    a(f"v_cndmask_b32 {t3}, {t3}, {t4}, vcc")
    a(f"v_add_u32 {t3}, {VVB}, {t3}")
    a(f"v_add_u32 {t3}, {t0}, {t3}")
    stamp(a, 13)
    a("s_waitcnt lgkmcnt(0)")
    a("s_barrier")
    stamp(a, 14)
    a(f"s_lshl_b32 {sFLAG}, {sID}, 7"); a(f"s_add_u32 {sFLAG}, {sFLAG}, {FK}")
    def k_hint():
        a("v_mov_b32 v29, 1"); a("v_mov_b32 v11, 0")
        a(f"s_cmp_lg_u32 {sWV}, 7"); a("s_cbranch_scc1 KH1")
        a("s_mov_b64 exec, 1"); a(f"buffer_atomic_add v29, v11, {rWS}, {sFLAG} offen sc0 sc1"); a("s_mov_b64 exec, -1")
        a.label('KH1')
    if OPT['kh'] == 0: k_hint()
    KA = [[V(72 + (b*4 + f)*4, 4) for f in range(4)] for b in range(3)]
    KD = [V(128 + 4*f, 4) for f in range(3)]
    def kv_reads(b, s):
        l = []
        for rd in range(2):
            l.append(f"ds_read_b64_tr_b16 {KA[b][3][2*rd:2*rd+2]}, {t3} offset:{s*5632 + rd*2816}")
        for f in range(3):
            for rd in range(2):
                l.append(f"ds_read_b64_tr_b16 {KA[b][f][2*rd:2*rd+2]}, {t1 if s < 4 else t2} offset:{(s % 4)*32*PS + rd*16*PS + f*32}")
        return l
    allr = [l for s in range(8) for l in kv_reads(s % 3, s)]
    pos = 0
    for s in range(8):
        for f in range(3):
            needr = s * 8 + 2 + 2 * (f + 1)
            lim = min(len(allr), needr + 12, (s + 2) * 8 + (2 + 2 * f if False else 0) + 8 - 8 + 0) if False else min(len(allr), needr + 12)
            lim = min(lim, (s + 3) * 8)
            while pos < lim: a(allr[pos]); pos += 1
            a(f"s_waitcnt lgkmcnt({pos - needr})")
            a(f"v_mfma_f32_16x16x32_bf16 {KD[f]}, {KA[s%3][f]}, {KA[s%3][3]}, {'0' if s == 0 else KD[f]}")
    stamp(a, 15)
    a(f"s_add_u32 {sT0}, {sHB}, {sRG}")
    a(f"s_lshl_b32 {sT0}, {sT0}, 1")
    a(f"s_add_u32 {sT0}, {sT0}, {sHI}")
    a(f"s_mul_i32 {sT0}, {sT0}, 3072")
    a(f"s_add_u32 {sT0}, {sT0}, {KVACC}")
    if OPT['kh'] == 1: k_hint()
    def k_go(n):
        a(f"s_cmp_lg_u32 {sWV}, 7"); a("s_cbranch_scc1 KH2")
        a(f"s_waitcnt vmcnt({n})")
        a("v_cmp_eq_u32 vcc, 7, v29"); a(f"s_add_u32 s4, {sFLAG}, {GOD}"); a("s_and_b64 exec, vcc, 1")
        a(f"buffer_store_dword v29, v11, {rWS}, s4 offen sc1"); a("s_mov_b64 exec, -1")
        a.label('KH2')
    if OPT['kh'] == 0: k_go(0)
    a(f"v_lshlrev_b32 {t2}, 2, {lane}")
    a(f"v_cmp_eq_u32 vcc, 15, {vl15}")
    for f in range(3):
        for j in range(4): a(f"v_cndmask_b32 {KD[f][j]}, {KD[f][j]}, 1.0, vcc")
    for f in range(3):
        if f == 2: a("s_mov_b32 exec_hi, 0")
        for j in range(4):
            a(f"buffer_atomic_add_f32 {KD[f][j]}, {t2}, {rWS}, {sT0} offen offset:{f*1024 + j*256} {OPT['atf']}")
    a("s_mov_b32 exec_hi, -1")
    if OPT['kh'] == 1: k_go(12)
    flag_store(-1)
    a(f"s_mov_b32 {sPF}, 4")
    a("s_branch P2")

    a.label('R_SPARE')
    sSP, sU, sSO, sST = S(77), S(78), S(79), S(80)
    va = Alloc('v', 176, 250)
    vf = [va() for _ in range(5)]; vat = [va() for _ in range(5)]
    rf = [va() for _ in range(5)]; rat = [va(), va()]
    vst = va(); vst4 = va()
    FR = [[va(4) for _ in range(5)] for b in range(2)]
    Z4 = va(4)
    NT = OPT['spnt']
    if T2:
        for b0 in eval(OPT['t2b']):
            for l in t2_all(b0): a(l)
    srd(a, rA, pWD, 1728 * 1280)
    srd(a, rB, pWO, 640 * 1280)
    a(f"s_lshr_b32 {sSP}, {sT0}, 1")
    a(f"s_lshl_b32 {sSP}, {sSP}, 3")
    a(f"s_add_u32 {sSP}, {sSP}, {sRB}")
    a(f"s_lshl_b32 {sT0}, {sWV}, 2")
    a(f"s_mul_i32 {sT1}, {sWV}, 20")
    for n in range(5):
        a(f"v_add_u32 {t0}, {64*n}, {lane}")
        a(f"v_mul_u32_u24 {t1}, 205, {t0}")
        a(f"v_lshrrev_b32 {t1}, 14, {t1}")
        a(f"v_mul_u32_u24 {t2}, 80, {t1}")
        a(f"v_sub_u32 {t2}, {t0}, {t2}")
        a(f"v_add_u32 {t1}, {sT0}, {t1}")
        a(f"v_and_b32 {t3}, 7, {t1}")
        a(f"v_lshlrev_b32 {t3}, 1, {t3}")
        a(f"v_xor_b32 {t2}, {t2}, {t3}")
        a(f"v_mul_u32_u24 {t1}, 1280, {t1}")
        a(f"v_lshl_add_u32 {vf[n]}, {t2}, 4, {t1}")
        if n % 4: a(f"v_subrev_u32 {vf[n]}, {1024*(n%4)}, {vf[n]}")
    a(f"s_mul_i32 {sM}, {sWV}, 5120")
    def u_dma(buf, typ):
        if typ == 'F':
            a(f"s_mul_i32 {sSO}, {sU}, 40960")
            vv, rr = vf, rA
        else:
            a(f"s_sub_u32 {sT2}, {sU}, 54")
            a(f"s_mul_i32 {sT3}, {sT2}, 52")
            a(f"s_lshr_b32 {sT3}, {sT3}, 8")
            a(f"s_mul_i32 {sSO}, {sT3}, {160*1280 - 5*256}")
            a(f"s_lshl_b32 {sT2}, {sT2}, 8")
            a(f"s_add_u32 {sSO}, {sSO}, {sT2}")
            vv, rr = vat, rB
        a(f"s_add_u32 m0, {sM}, {buf*40960}")
        for n in range(4):
            a(f"buffer_load_dwordx4 {vv[n]}, {rr}, {sSO} offen offset:{n*1024} {NT} lds")
        a(f"s_add_u32 m0, {sM}, {buf*40960 + 4096}")
        a(f"buffer_load_dwordx4 {vv[4]}, {rr}, {sSO} offen {NT} lds")
    def dyn(it, fn):
        if it == 4:
            a(f"s_add_u32 {sU}, {sSP}, 64"); a(f"s_min_u32 {sU}, {sU}, 73"); fn('A'); return
        a(f"s_add_u32 {sU}, {sSP}, {16*it}")
        if it <= 2: fn('F')
        else:
            l1, l2 = a.newlabel('SP'), a.newlabel('SP')
            a(f"s_cmp_ge_u32 {sU}, 54"); a(f"s_cbranch_scc1 {l1}")
            fn('F'); a(f"s_branch {l2}"); a.label(l1); fn('A'); a.label(l2)
    for it in range(3): dyn(it, lambda typ: u_dma(it, typ))
    a(f"v_lshlrev_b32 {t0}, 4, {tid}")
    for i in range(4): a(f"v_mov_b32 {Z4[i]}, 0")
    a(f"s_mul_i32 {sT2}, {sSP}, 13568")
    a(f"s_add_u32 {sT2}, {sT2}, {KVACC}")
    a(f"buffer_store_dwordx4 {Z4}, {t0}, {rWS}, {sT2} offen {ST}")
    a(f"s_add_u32 {sT2}, {sT2}, {13568 - 8192}")
    a(f"buffer_store_dwordx4 {Z4}, {t0}, {rWS}, {sT2} offen {ST}")
    for n in range(5):
        a(f"v_add_u32 {t1}, {4*n}, {vqd}")
        a(f"v_add_u32 {t1}, {sT1}, {t1}")
        a(f"v_and_b32 {t3}, 7, {t1}")
        a(f"v_lshlrev_b32 {t3}, 1, {t3}")
        a(f"v_xor_b32 {t2}, {vl15}, {t3}")
        a(f"v_mul_u32_u24 {t1}, 1280, {t1}")
        a(f"v_lshl_add_u32 {vat[n]}, {t2}, 4, {t1}")
        if n % 4: a(f"v_subrev_u32 {vat[n]}, {1024*(n%4)}, {vat[n]}")
    a(f"v_lshl_add_u32 {t0}, {vqd}, 2, {vr}")
    a(f"v_and_b32 {t1}, 7, {t0}")
    a(f"v_lshlrev_b32 {t1}, 1, {t1}")
    a(f"v_mul_u32_u24 {t0}, 1280, {t0}")
    a(f"v_and_b32 {t2}, 1, {vc}")
    a(f"v_lshl_add_u32 {t0}, {t2}, 3, {t0}")
    a(f"v_lshrrev_b32 {t3}, 1, {vc}")
    a(f"s_mul_i32 {sT0}, {sWV}, 10")
    a(f"v_add_u32 {t4}, {sT0}, {t3}")
    for j in range(5):
        a(f"v_add_u32 {rf[j]}, {2*j}, {t4}")
        a(f"v_xor_b32 {rf[j]}, {rf[j]}, {t1}")
        a(f"v_lshl_add_u32 {rf[j]}, {rf[j]}, 4, {t0}")
    a(f"v_mul_u32_u24 {t0}, 20, {vqd}")
    a(f"v_add_u32 {t0}, {t0}, {vr}")
    a(f"v_lshlrev_b32 {t0}, 8, {t0}")
    a(f"v_lshl_add_u32 {t0}, {t2}, 3, {t0}")
    a(f"s_lshl_b32 {sT0}, {sWV}, 1")
    a(f"v_add_u32 {t4}, {sT0}, {t3}")
    a(f"v_xor_b32 {t4}, {t4}, {t1}")
    a(f"v_lshl_add_u32 {rat[0]}, {t4}, 4, {t0}")
    a(f"v_xor_b32 {rat[1]}, 128, {rat[0]}")
    a(f"v_lshlrev_b32 {vst}, 4, {lane}")
    a(f"v_add_u32 {vst4}, 4096, {vst}")
    def u_proc(buf, typ, F):
        if typ == 'F':
            for j in range(5):
                a(f"v_add_u32 {t0}, {buf*40960}, {rf[j]}")
                for rd in range(2):
                    a(f"ds_read_b64_tr_b16 {F[j][2*rd:2*rd+2]}, {t0} offset:{rd*20480}")
            a(f"s_mul_i32 {sST}, {sWV}, 74")
            a(f"s_add_u32 {sST}, {sST}, {sU}")
            a(f"s_mul_i32 {sST}, {sST}, 5120")
            a(f"s_add_u32 {sST}, {sST}, {BP}")
            a("s_waitcnt lgkmcnt(0)")
            for j in range(5):
                if j < 4: a(f"buffer_store_dwordx4 {F[j]}, {vst}, {rWS}, {sST} offen offset:{j*1024} {ST}")
                else: a(f"buffer_store_dwordx4 {F[j]}, {vst4}, {rWS}, {sST} offen {ST}")
        else:
            bases = [(0, 4), (8, 12), (16, 96), (80, 84), (88, 92)]
            a(f"v_add_u32 {t0}, {buf*40960}, {rat[0]}")
            a(f"v_add_u32 {t1}, {buf*40960}, {rat[1]}")
            for s5 in range(5):
                for rd in range(2):
                    b = bases[s5][rd]
                    a(f"ds_read_b64_tr_b16 {F[s5][2*rd:2*rd+2]}, {t1 if b % 8 else t0} offset:{b*256}")
            a(f"s_sub_u32 {sT2}, {sU}, 54")
            a(f"s_mul_i32 {sT3}, {sT2}, 52")
            a(f"s_lshr_b32 {sT3}, {sT3}, 8")
            a(f"s_mul_i32 {sT0}, {sT3}, 5")
            a(f"s_sub_u32 {sT2}, {sT2}, {sT0}")
            a(f"s_lshl_b32 {sT2}, {sT2}, 3")
            a(f"s_add_u32 {sT2}, {sT2}, {sWV}")
            a(f"s_mul_i32 {sT1}, {sT2}, 52")
            a(f"s_lshr_b32 {sT1}, {sT1}, 8")
            a(f"s_mul_i32 {sST}, {sT1}, 5")
            a(f"s_sub_u32 {sT2}, {sT2}, {sST}")
            a(f"s_mul_i32 {sST}, {sT1}, 74")
            a(f"s_add_u32 {sST}, {sST}, {sT0}")
            a(f"s_add_u32 {sST}, {sST}, 54")
            a(f"s_mul_i32 {sST}, {sST}, 5120")
            a(f"s_lshl_b32 {sT2}, {sT2}, 10")
            a(f"s_add_u32 {sST}, {sST}, {sT2}")
            a(f"s_add_u32 {sST}, {sST}, {BP}")
            a("s_waitcnt lgkmcnt(0)")
            for s5 in range(5):
                a(f"buffer_store_dwordx4 {F[s5]}, {vst}, {rWS}, {sST} offen {ST}")
                if s5 < 4: a(f"s_add_u32 {sST}, {sST}, 5120")
    vm = VmTrack()
    for t in ['D0']*5 + ['D1']*5 + ['D2']*5 + ['Z']*2: vm.issue(t)
    def sp_signal(k):
        lsk = a.newlabel('SPD')
        a(f"s_cmp_lg_u32 {sWV}, 7"); a(f"s_cbranch_scc1 {lsk}")
        a(f"v_mov_b32 {t2}, 0"); a(f"v_mov_b32 {t3}, 1")
        a("s_mov_b64 exec, 1")
        a(f"buffer_atomic_add {t3}, {t2}, {rDBG}, 0 offen offset:{4*k} sc0 sc1")
        a("s_waitcnt vmcnt(0)")
        a(f"v_cmp_eq_u32 vcc, 15, {t3}")
        a("s_and_b64 exec, exec, vcc")
        a(f"buffer_store_dword {t3}, {t2}, {rDBG}, 0 offen offset:{128 + 4*k} sc1")
        a("s_mov_b64 exec, -1")
        a.label(lsk)
    for it in range(5):
        n = vm.wait_for(lambda t: t == f'D{it}' or (it == 3 and t == 'S2'))
        a(f"s_waitcnt vmcnt({n})")
        a("s_barrier")
        if it == 3: sp_signal(0); stamp(a, 1)
        dyn(it, lambda typ: u_proc(it % 3, typ, FR[it & 1]))
        for _ in range(5): vm.issue(f'S{it}')
        if it in (1, 2):
            dyn(it + 2, lambda typ: u_dma(it - 1, typ))
            for _ in range(5): vm.issue(f'D{it+2}')
    a("s_waitcnt vmcnt(0)")
    a("s_barrier")
    sp_signal(1)
    stamp(a, 2)
    GW = [V(72 + 4*i, 4) for i in range(5)]
    GX = [[V(96 + (g*5 + i)*4, 4) for i in range(5)] for g in range(4)]
    GA = [V(92 + g) for g in range(4)]
    srd(a, rW, pGW, 1280)
    a(f"v_lshlrev_b32 {t0}, 4, {vl15}")
    for i in range(5): a(f"buffer_load_dwordx4 {GW[i]}, {t0}, {rW}, 0 offen offset:{i*256}")
    a(f"v_mul_u32_u24 {t1}, 1280, {vqd}")
    a(f"v_add_u32 {t0}, {t0}, {t1}")
    a(f"s_lshl_b32 {sT3}, {sSP}, 3")
    a(f"s_add_u32 {sT3}, {sT3}, {sWV}")
    a(f"s_mul_i32 {sT2}, {sT3}, {16*1280}")
    for g in range(4):
        for i in range(5): a(f"buffer_load_dwordx4 {GX[g][i]}, {t0}, {rX}, {sT2} offen offset:{i*256}")
        if g < 3: a(f"s_add_u32 {sT2}, {sT2}, {4*1280}")
    for g in range(4): a(f"v_mov_b32 {GA[g]}, 0")
    init_poll(a, t1, 128)
    for i in range(5):
        for k in range(4):
            for g in range(4): a(f"v_dot2c_f32_bf16 {GA[g]}, {GX[g][i][k]}, {GW[i][k]}")
    for sh in (8, 4, 2, 1):
        for g in range(4): a(f"v_add_f32_dpp {GA[g]}, {GA[g]}, {GA[g]} row_ror:{sh} row_mask:0xf bank_mask:0xf")
    for g in range(4): a(f"v_mul_f32 {GA[g]}, {NLOG2E:#x}, {GA[g]}")
    for g in range(4): a(f"v_exp_f32 {GA[g]}, {GA[g]}")
    for g in range(4): a(f"v_add_f32 {GA[g]}, 1.0, {GA[g]}")
    for g in range(4): a(f"v_rcp_f32 {GA[g]}, {GA[g]}")
    a(f"v_mov_b32 {t2}, {GA[0]}")
    for g in range(1, 4):
        a(f"v_cmp_eq_u32 vcc, {g}, {vl15}"); a(f"v_cndmask_b32 {t2}, {t2}, {GA[g]}, vcc")
    a(f"v_lshl_add_u32 {t0}, {vl15}, 2, {vqd}")
    a(f"v_lshlrev_b32 {t3}, 2, {t0}")
    a(f"s_lshl_b32 {sT2}, {sT3}, 6"); a(f"s_add_u32 {sT2}, {sT2}, {GOFF}")
    a("s_mov_b32 exec_lo, 0x000f000f"); a("s_mov_b32 exec_hi, 0x000f000f")
    a(f"buffer_store_dword {t2}, {t3}, {rWS}, {sT2} offen {ST}")
    a("s_mov_b64 exec, -1")
    a(f"s_lshr_b32 {sFLAG}, {sT3}, 2"); a(f"s_lshl_b32 {sFLAG}, {sFLAG}, 7"); a(f"s_add_u32 {sFLAG}, {sFLAG}, {FH + 4}")
    flag_store(11)

    vm = VmTrack()
    a(f"s_mov_b32 {sPF}, 7")
    a.label('P2')
    stamp(a, 3)
    a(f"s_bitcmp0_b32 {sPF}, 0"); a("s_cbranch_scc1 P2_E1")
    for l in p2_setup() + poison(V(208, 4)): a(l)
    a.label('P2_E1')
    vG = V(16, 4); vz = V(11); ka = V(12); kw = V(13); vbl = V(15); vcn = V(14)
    ACC = [[V(72 + (tt * 5 + j) * 4, 4) for j in range(5)] for tt in range(4)]
    ARl = [V(152 + 4 * i, 4) for i in range(14)] + [V(248, 4), V(24, 4)]
    AR = [ARl[4*b:4*b+4] for b in range(4)]
    sFHo = S(78)
    rOUT = rX
    a(f"v_mov_b32 {vz}, 0")
    a(f"v_mov_b32 {vcn}, {CNT}")
    a(f"v_add_u32 {vbl}, {sLC}, {vo}")
    vbl2 = V(23)
    a(f"v_add_u32 {vbl2}, {3*20480}, {vbl}")
    def lrow(row, j):
        return (vbl, row*20480 + j*1024) if row < 3 else (vbl2, (row-3)*20480 + j*1024)
    def a_loads(i, tag, vts=None, r=None):
        b = i % 4; r = r or rWS
        l = [f"s_add_u32 {sT0}, {sAo}, {((i*16384 if i < 4 else CA0 + (i-4)*16384) if vts else GRP[i]*16384)}"]
        for tt in range(4):
            if vts: l.append(f"buffer_load_dwordx4 {AR[b][tt]}, {vts[tt]}, {r}, {sT0} offen {LD}")
            else: l.append(f"buffer_load_dwordx4 {AR[b][tt]}, {vo}, {r}, {sT0} offen offset:{tt*1024} {LD}")
            vm.issue(tag)
        return l
    def b_fromlds(i, row):
        return ["ds_read_b128 %s, %s offset:%d" % ((BR[i % 4][j],) + lrow(row, j)) for j in range(5)]
    def mm(b, zero, side=[]):
        side = list(side)
        for j in range(5):
            for tt in range(4):
                d = ACC[tt][j]
                a(f"v_mfma_f32_16x16x32_bf16 {d}, {BR[b][j]}, {AR[b][tt]}, {'0' if tt in zero else d}")
                while side and side[0].startswith('s_'): a(side.pop(0))
                if side and tt % 2 == 1: a(side.pop(0))
        for l in side: a(l)
    def g_load():
        a(f"s_lshl_b32 {sT0}, {sR6}, 8"); a(f"s_add_u32 {sT0}, {sT0}, {GOFF}")
        a(f"v_lshlrev_b32 {t0}, 4, {vl15}")
        a(f"buffer_load_dwordx4 {vG}, {t0}, {rWS}, {sT0} offen {LD}")
    def lds_signal(off):
        a(f"v_mov_b32 {t1}, 1")
        a("s_waitcnt lgkmcnt(0)")
        a("s_mov_b64 exec, 1")
        a(f"ds_add_u32 {vcn}, {t1} offset:{off}")
        a("s_mov_b64 exec, -1")
    def lds_wait(off, n):
        L = a.newlabel('LW')
        a.label(L)
        a(f"ds_read_b32 {t1}, {vcn} offset:{off}")
        a("s_waitcnt lgkmcnt(0)")
        a(f"v_readfirstlane_b32 {sT0}, {t1}")
        a(f"s_cmp_ge_u32 {sT0}, {n}")
        a(f"s_cbranch_scc1 {L}d")
        a("s_sleep 1")
        a(f"s_branch {L}")
        a.label(L + 'd')
    vAT = V(29); vFQ = V(28)
    a(f"s_lshl_b32 {sFHo}, {sR6}, 7"); a(f"s_add_u32 {sFHo}, {sFHo}, {FH + GOD}")
    a(f"buffer_load_dword {vS2}, {vz}, {rDBG}, 0 offen offset:132 sc1")
    a(f"buffer_load_dword {vFQ}, {vz}, {rWS}, {sFHo} offen offset:4 sc1")
    a(f"v_mov_b32 {vAT}, 1"); a(f"v_mov_b32 {t1}, 1")
    a("s_waitcnt vmcnt(0) lgkmcnt(0)")
    a("s_mov_b64 exec, 1")
    a(f"ds_add_rtn_u32 {t1}, {vcn}, {t1} offset:16")
    a(f"s_cmp_eq_u32 {sPF}, 4"); a("s_cbranch_scc1 P2_A2")
    a(f"buffer_atomic_add {vAT}, {vz}, {rWS}, {sFLAG} offen sc0 sc1")
    a.label('P2_A2')
    a("s_mov_b64 exec, -1")
    def go_logic(n, st=True):
        lb = a.newlabel('GO')
        a(f"s_waitcnt vmcnt({n})")
        a(f"v_readfirstlane_b32 {sP[0]}, {vAT}")
        a(f"s_add_u32 {sP[1]}, {sFLAG}, {GOD}")
        a(f"s_cmp_lg_u32 {sP[0]}, {sNEED}")
        a(f"s_cbranch_scc1 {lb}")
        a("s_mov_b64 exec, 1")
        a(f"buffer_store_dword {vAT}, {vz}, {rWS}, {sP[1]} offen sc1")
        a("s_mov_b64 exec, -1")
        a.label(lb)
        if st: stamp(a, 4)
    a(f"s_cmp_eq_u32 {sHI}, 0")
    a("s_cbranch_scc1 P2_C")
    go_logic(0)
    a("s_setprio 0")
    init_check(vS2, 132)
    if OPT['bt']:
        a("s_lshr_b32 s4, s2, 6"); a(f"s_lshl2_add_u32 s4, s4, {sRG}"); a(f"s_mul_i32 s4, s4, {65*128}")
        a(f"s_mul_i32 s5, {sCG}, {74*5120}"); a("s_add_u32 s4, s4, s5"); a(f"s_add_u32 s4, s4, {BP + 48*5120}")
        a(f"v_lshlrev_b32 {t2}, 7, {lane}")
        a(f"buffer_load_dword {t3}, {t2}, {rWS}, s4 offen sc1")
    a(f"s_cmp_lt_u32 {sRG}, 2"); a(f"s_cselect_b32 {rB[2]}, {WSZ}, 0")
    a(f"s_cmp_lt_u32 {sPF}, 6"); a("s_cbranch_scc1 P2_E2")
    for b in range(4):
        for l in b_reg(vm, b, 'B'): a(l)
    lds_wait(16, 8)
    for k in range(4):
        for l in b_row(vm, sBg, GRP[GL[k]], LR[k]): a(l)
    a.label('P2_E2')
    lds_wait(16, 8)
    for k in range(3):
        for l in b_row(vm, sBg, k, CR[k], None, 54*5120): a(l)
    a(f"s_cmp_eq_u32 {sPF}, 4"); a("s_cbranch_scc1 P2_GK")
    NG = 10
    for variant in (0, 1):
        GLv = GL if variant == 0 else []
        if variant == 1: a.label('P2_GK')
        if OPT['at']:
            a(f"s_mul_i32 {sT1}, {sR6}, {74*4096}"); a(f"s_lshl2_add_u32 {sT2}, {sCG}, {sRG}"); a(f"s_mul_i32 {sT2}, {sT2}, {54*128}"); a(f"s_add_u32 {sT1}, {sT1}, {sT2}")
            a(f"v_lshlrev_b32 {t2}, 7, {lane}")
        if OPT['at'] == 3: vpoll(a, vz, sFHo, 0, t1, f"s_mov_b32 exec_hi, 0x3fffff\nbuffer_load_dword {t3}, {t2}, {rWS}, {sT1} offen sc1\ns_mov_b32 exec_hi, -1", OPT['tsl'])
        else: vpoll(a, vz, sFHo, 0, t1)
        lds_signal(20)
        vm = VmTrack()
        stamp(a, 5)
        if OPT['at'] == 1:
            a("s_mov_b32 exec_hi, 0x3fffff"); a(f"buffer_load_dword {t3}, {t2}, {rWS}, {sT1} offen sc1"); a("s_mov_b32 exec_hi, -1")
        if OPT['stamp'] == 4: a("s_memtime s[92:93]")
        for s in range(4):
            for l in a_loads(s, ('A', s)): a(l)
            if OPT['at'] == 2 and s == 0:
                a("s_mov_b32 exec_hi, 0x3fffff"); a(f"buffer_load_dword {t3}, {t2}, {rWS}, {sT1} offen sc1"); a("s_mov_b32 exec_hi, -1"); vm.issue('T')
        for s in range(NG - 1):
            n = vm.wait_for(lambda t: t in (('A', s), ('B', s)))
            a(f"s_waitcnt vmcnt({n})" + (f" lgkmcnt({5*sum(1 for x in (s+1, s+2) if x in GLv)})" if s in GLv else ""))
            if s == 0: stamp(a, 6)
            if OPT['stamp'] == 4:
                a("s_waitcnt lgkmcnt(0)")
                a(f"v_writelane_b32 v255, s92, {40 + s}")
                a("s_memtime s[92:93]")
            side = []
            if 1 <= s and s + 3 < NG:
                rr = rB if GRP[s + 3] == 13 else None
                side = a_loads(s + 3, ('A', s + 3), None, rr) + (b_fromlds(s + 3, LR[GLv.index(s + 3)]) if s + 3 in GLv else b_reg(vm, s + 3, ('B', s + 3), rr, GRP[s + 3]))
            mm(s % 4, range(4) if s == 0 else [], side)
        if variant == 0: a("s_branch P2_GL")
    a.label('P2_GL')
    a("s_waitcnt vmcnt(0) lgkmcnt(0)")
    for tt in range(4):
        for j in range(5):
            d = ACC[tt][j]
            a(f"v_mfma_f32_16x16x32_bf16 {d}, {BR[1][j]}, {AR[1][tt]}, {d}")
            if tt >= 2: a("ds_write_b128 %s, %s offset:%d" % (lrow(tt, j)[0], ACC[tt-2][j], lrow(tt, j)[1]))
    for tt in (2, 3):
        for j in range(5): a("ds_write_b128 %s, %s offset:%d" % (lrow(tt+2, j)[0], ACC[tt][j], lrow(tt+2, j)[1]))
    lds_signal(4)
    stamp(a, 10)
    a("s_branch P2_FIN")
    a.label('P2_C')
    P = V(72, 20)
    a("s_setprio 3")
    a(f"v_cmp_ne_u32 vcc, 0, {vFQ}"); a("s_nop 0"); a("s_cbranch_vccnz P2_C1")
    go_logic(0)
    a(f"s_mov_b32 {sNEED}, -1")
    vpoll(a, vz, sFHo, 4, t1)
    a.label('P2_C1')
    PB = V(176, 12); PU = V(152, 20)
    a(f"s_lshl_b32 {sT0}, {sR6}, 3"); a(f"s_add_u32 {sT0}, {sT0}, {sCG}")
    a(f"s_mul_i32 {sT0}, {sT0}, 10240"); a(f"s_add_u32 {sT0}, {sT0}, {PQ}")
    a(f"s_lshl_b32 {sT1}, {sRG}, 11"); a(f"s_add_u32 {sT1}, {sT1}, {sT0}")
    for h in range(2): a(f"buffer_load_dwordx4 {PB[4*h:4*h+4]}, {vo}, {rWS}, {sT1} offen offset:{h*1024} {LD}")
    a(f"s_lshr_b32 {sT1}, {sRG}, 1"); a(f"s_lshl_b32 {sT1}, {sT1}, 10"); a(f"s_add_u32 {sT0}, {sT0}, {sT1}")
    a(f"s_and_b32 {sT1}, {sRG}, 1"); a(f"s_lshl_b32 {sT1}, {sT1}, 3"); a(f"s_add_u32 {sT0}, {sT0}, {sT1}"); a(f"s_add_u32 {sT0}, {sT0}, 8192")
    a(f"buffer_load_dwordx2 {PB[8:10]}, {vo}, {rWS}, {sT0} offen {LD}")
    GV = [V(22), V(252), V(10), V(8)]
    GLd = [t3, V(188), V(189), V(190)]
    a(f"v_lshlrev_b32 {t0}, 2, {vl15}")
    for i in range(4):
        a(f"s_add_u32 {sT0}, {sRG}, {i}"); a(f"s_and_b32 {sT0}, {sT0}, 3"); a(f"s_lshl2_add_u32 {sT0}, {sR6}, {sT0}")
        a(f"s_lshl_b32 {sT0}, {sT0}, 6"); a(f"s_add_u32 {sT0}, {sT0}, {GOFF}")
        a(f"buffer_load_dword {GLd[i]}, {t0}, {rWS}, {sT0} offen {LD}")
    go_logic(7)
    srd(a, rOUT, pOUT, 2048 * 1280)
    a(f"v_lshl_add_u32 {kw}, {vr}, 2, {vqd}")
    a(f"v_lshlrev_b32 {kw}, 6, {kw}")
    a(f"v_lshl_add_u32 {kw}, {vc}, 3, {kw}")
    a(f"s_mul_i32 {sT0}, {sRG}, 3088"); a(f"s_add_u32 {sT0}, {sT0}, {KVB}")
    a(f"v_add_u32 {kw}, {sT0}, {kw}")
    a(f"v_mul_u32_u24 {t4}, 3088, {vqd}")
    a(f"v_lshl_add_u32 {t4}, {vr}, 6, {t4}")
    a(f"v_add_u32 {t4}, {KVB}, {t4}")
    a(f"v_mov_b32 {ka}, {ZERO + 8}")
    a(f"v_cmp_eq_u32 vcc, {vc}, {vqd}")
    a(f"v_cndmask_b32 {ka}, {ka}, {t4}, vcc")
    VT = [V(16), V(17), V(18), V(19)]
    for i in range(4):
        a(f"s_add_u32 {sT0}, {sRG}, {i}"); a(f"s_and_b32 {sT0}, {sT0}, 3"); a(f"s_lshl_b32 {sT0}, {sT0}, 10")
        a(f"v_add_u32 {VT[i]}, {sT0}, {vo}")
    a("s_waitcnt vmcnt(0)")
    for i in range(10):
        a(f"v_lshlrev_b32 {PU[2*i]}, 16, {PB[i]}")
        a(f"v_and_b32 {PU[2*i+1]}, 0xffff0000, {PB[i]}")
    softmax_unit(a, PU, V(92, 40), V(132, 4), V(136, 4), P)
    stamp(a, 5)
    init_check(vS2, 132)
    lds_wait(16, 8)
    a(f"s_lshl_b32 {sT2}, {sCG}, 7"); a(f"s_add_u32 {sT2}, {sT2}, {FK + GOD}")
    a(f"s_lshl_b32 {sT3}, {sCG}, 2"); a(f"s_add_u32 {sT3}, {sT3}, {sRG}")
    a(f"s_mul_i32 {sT3}, {sT3}, 6144"); a(f"s_add_u32 {sT3}, {sT3}, {KVACC}")
    sNB = S(81)
    def cb(i): return b_reg(vm, i, 'B') if i < 4 else b_row(vm, sBo, i - 4, CR[i - 4], None, CB0)
    a(f"s_cmp_lt_u32 {sPF}, 6"); a("s_cbranch_scc1 P2_K4")
    for i in range(4):
        a(f"s_mov_b32 {sNB}, {i}")
        a(f"buffer_load_dword {t1}, {vz}, {rWS}, {sT2} offen sc1")
        a("s_waitcnt vmcnt(0)")
        a(f"v_cmp_ne_u32 vcc, 0, {t1}"); a("s_nop 0"); a("s_cbranch_vccnz P2_KGO")
        for l in cb(i): a(l)
    a.label('P2_K4')
    a(f"s_mov_b32 {sNB}, 4")
    vpoll(a, vz, sT2, 0, t1)
    a.label('P2_KGO')
    stamp(a, 6)
    KL = [V(92 + 4 * i, 4) for i in range(6)]
    a(f"s_mov_b32 {sTO}, 0x80000")
    a("s_mov_b32 s82, 0x41000000")
    a.label('KVRETRY')
    for i in range(6):
        if i < 4: a(f"buffer_load_dwordx4 {KL[i]}, {vo}, {rWS}, {sT3} offen offset:{i*1024} {LD}")
        else: a(f"buffer_load_dwordx4 {KL[i]}, {vo4}, {rWS}, {sT3} offen offset:{(i-4)*1024} {LD}")
    for i in range(6):
        a(f"s_waitcnt vmcnt({5-i})")
        a(f"v_cvt_pk_bf16_f32 {KL[i][0]}, {KL[i][0]}, {KL[i][1]}")
        a(f"v_cvt_pk_bf16_f32 {KL[i][1]}, {KL[i][2]}, {KL[i][3]}")
        a(f"ds_write_b64 {kw}, {KL[i][0:2]} offset:{(i % 3)*1024 + (i // 3)*32}")
    a(f"v_min3_f32 {t1}, {KL[0][3]}, {KL[1][3]}, {KL[3][3]}")
    a(f"v_min_f32 {t4}, {KL[2][3]}, {KL[5][3]}")
    a(f"v_min_f32 {t1}, {t1}, {KL[4][3]}")
    a(f"v_cmp_neq_f32 vcc, s82, {t4}")
    a(f"v_cmp_neq_f32 {sP}, s82, {t1}")
    a("s_and_b32 s4, vcc_lo, 0x00880088"); a("s_and_b32 s5, vcc_hi, 0x00880088"); a("s_or_b32 s4, s4, s5")
    a(f"s_or_b32 s5, {sP[0]}, {sP[1]}"); a("s_and_b32 s5, s5, 0x88888888"); a("s_or_b32 s4, s4, s5")
    a("s_cbranch_scc0 KVOK")
    a("s_waitcnt lgkmcnt(0)")
    a("s_sleep 4")
    a(f"s_sub_u32 {sTO}, {sTO}, 1")
    a("s_cbranch_scc0 KVRETRY")
    a.label('KVOK')
    lds_signal(0)
    lds_wait(0, 4)
    stamp(a, 16)
    AFl = [V(92 + 4 * i, 4) for i in range(15)]
    D = [V(152 + 4 * t, 4) for t in range(6)]
    O = V(176, 12)
    order = [5, 0, 1, 2, 3, 4]
    fr = [(t, s) for t in order for s in range(5)]
    def rdl(k):
        t, s_ = fr[k]
        return [f"ds_read_b64_tr_b16 {AFl[k % 15][2*r_:2*r_+2]}, {ka} offset:{s_*512 + r_*256 + (t*8 if t < 3 else t*8 + 8)}" for r_ in range(2)]
    AH = 6
    for k in range(AH):
        for l in rdl(k): a(l)
    def fin(t):
        for h in range(2): a(f"v_pk_mul_f32 {D[t][2*h:2*h+2]}, {D[t][2*h:2*h+2]}, {V(t2.lo, 2)} op_sel_hi:[1,0]")
        a(f"v_cvt_pk_bf16_f32 {O[2*t]}, {D[t][0]}, {D[t][1]}")
        a(f"v_cvt_pk_bf16_f32 {O[2*t+1]}, {D[t][2]}, {D[t][3]}")
    for k in range(30):
        t, s_ = fr[k]
        if k + AH < 30:
            for l in rdl(k + AH): a(l)
        a(f"s_waitcnt lgkmcnt({2 * min(AH, 29 - k)})")
        a(f"v_mfma_f32_16x16x32_bf16 {D[t]}, {AFl[k % 15]}, {P[4*s_:4*s_+4]}, {'0' if s_ == 0 else D[t]}")
        if OPT['sent'] and k == OPT['oh1']:
            a(f"s_sub_u32 {sFLAG}, {sFHo}, {GOD - 8}"); a(f"s_mov_b32 {sNEED}, 31"); a(f"v_mov_b32 {vAT}, 1")
            a("s_mov_b64 exec, 1"); a(f"buffer_atomic_add {vAT}, {vz}, {rWS}, {sFLAG} offen sc0 sc1"); a("s_mov_b64 exec, -1")
        if k == 8:
            a(f"v_add_f32 {t2}, 0x358637bd, {D[5][0]}")
            a(f"v_rcp_f32 {t2}, {t2}")
        if k == 9: a(f"v_mul_f32 {t2}, {t2}, {t3}")
        if k in (13, 18, 23, 28): fin((k - 13) // 5)
        if k == 19: a(f"buffer_store_dwordx4 {O[0:4]}, {vo}, {rWS}, {sO1} offen {ST}")
    a(f"buffer_store_dwordx4 {O[4:8]}, {vo4}, {rWS}, {sO1} offen {ST}")
    fin(4)
    a(f"buffer_store_dwordx2 {O[8:10]}, {vo}, {rWS}, {sO2} offen {ST}")
    stamp(a, 17)
    if not OPT['sent']:
        a(f"s_sub_u32 {sT2}, {sFHo}, {GOD - 8}")
        arrive(a, sT2, 31, t0, t1)
    else: go_logic(3 if OPT['oh1'] < 20 else 2, False)
    stamp(a, 7)
    a(f"buffer_load_dword {t4}, {vz}, {rWS}, {sFHo} offen sc1")
    for i in range(4):
        lb = a.newlabel('CB')
        a(f"s_cmp_gt_u32 {sNB}, {i}"); a(f"s_cbranch_scc1 {lb}")
        for l in cb(i): a(l)
        a.label(lb)
    XB = [V(28), V(13), V(30)]; XW = V(31); GB = V(12)
    for q in range(1, 4):
        a(f"s_sub_u32 {sT0}, {sRG}, {q}"); a(f"s_and_b32 {sT0}, {sT0}, 3"); a(f"s_mul_i32 {sT0}, {sT0}, 5120")
        a(f"s_add_u32 {sT0}, {sT0}, {CR[q-1]*20480}")
        a(f"v_add_u32 {XB[q-1]}, {sT0}, {vo}")
    a(f"v_add_u32 {XW}, {6*20480}, {vbl}")
    def crow(k, j): return (vbl, CR[k]*20480 + j*1024) if k < 2 else (XW, j*1024)
    a(f"s_add_u32 {sT0}, {sRG}, 2"); a(f"s_mul_i32 {sT0}, {sT0}, 20480"); a(f"v_add_u32 {GB}, {sT0}, {vo}")
    a(f"v_mul_u32_u24 {t0}, 1280, {vl15}")
    a(f"v_lshl_add_u32 {t0}, {vqd}, 3, {t0}")
    a(f"s_lshl_b32 {sT2}, {sR6}, 2"); a(f"s_add_u32 {sT2}, {sT2}, {sRG}"); a(f"s_mul_i32 {sT2}, {sT2}, {16*1280}")
    a(f"s_mul_i32 {sT3}, {sCG}, 160"); a(f"s_add_u32 {sT2}, {sT2}, {sT3}")
    for i in range(4): a(f"v_sub_f32 {GV[i]}, 1.0, {GLd[i]}")
    a("s_waitcnt vmcnt(0)")
    a(f"v_cmp_ne_u32 vcc, 0, {t4}"); a("s_nop 0"); a("s_cbranch_vccnz P2_HOK")
    vpoll(a, vz, sFHo, 0, t4)
    a.label('P2_HOK')
    a(f"s_setprio {OPT['cprio']}")
    vm = VmTrack()
    for s in range(4):
        for l in a_loads(s, ('A', s), VT): a(l)
    lds_wait(20, 4)
    for s in range(4):
        n = vm.wait_for(lambda t: t == ('A', s))
        a(f"s_waitcnt vmcnt({n})")
        mm(s, range(4) if s == 0 else [], ["ds_read_b128 %s, %s offset:%d" % ((BR[s-1][j],) + crow(s-1, j)) for j in range(5)] if s else [])
    for l in b_reg(vm, 7, 'B', None, 3, CB0): a(l)
    a(f"buffer_load_dword {t4}, {vz}, {rWS}, {sFHo} offen offset:8 sc1")
    for tt in range(4):
        for j in range(5):
            for h in range(2): a(f"v_pk_mul_f32 {ACC[tt][j][2*h:2*h+2]}, {ACC[tt][j][2*h:2*h+2]}, {V(GV[tt].lo, 2)} op_sel_hi:[1,0]")
    stamp(a, 18)
    a(f"s_setprio {OPT['cprio2']}")
    a("s_waitcnt vmcnt(0)")
    a(f"v_cmp_ne_u32 vcc, 0, {t4}"); a("s_nop 0"); a("s_cbranch_vccnz P2_OOK")
    vpoll(a, vz, sFHo, 8, t4)
    a.label('P2_OOK')
    a(f"s_mov_b32 {sTO}, 0x40000")
    vm = VmTrack()
    stamp(a, 9)
    for s in range(4, 8):
        for l in a_loads(s, ('A', s), VT): a(l)
    GT = [BR[1], BR[2], BR[3], AR[1] + [AR[2][0]]]
    for s in range(4, 9):
        n = vm.wait_for(lambda t: t in (('A', s), ('B', s)))
        if s == 8:
            lds_wait(4, 4)
            stamp(a, 8)
            for w in range(2):
                for j in range(5): a(f"ds_read_b128 {GT[w][j]}, {GB} offset:{w*5120 + j*1024}")
        a(f"s_waitcnt vmcnt({n})" + (" lgkmcnt(0)" if s == 4 else ""))
        if OPT['sent']:
            a.label(f'VER{s}')
            regs = [AR[s % 4][tt][k] for tt in range(4) for k in range(4)]
            a(f"v_max3_u32 {t4}, {regs[0]}, {regs[1]}, {regs[2]}")
            a(f"v_max3_u32 {t1}, {regs[3]}, {regs[4]}, {regs[5]}")
            for k in (6, 10):
                a(f"v_max3_u32 {t4}, {t4}, {regs[k]}, {regs[k+1]}"); a(f"v_max3_u32 {t1}, {t1}, {regs[k+2]}, {regs[k+3]}")
            a(f"v_max3_u32 {t4}, {t4}, {regs[14]}, {regs[15]}")
            a(f"v_max_u32 {t4}, {t4}, {t1}")
            a(f"v_cmp_eq_u32 vcc, -1, {t4}")
            a("s_nop 0")
            a(f"s_cbranch_vccnz RET{s}")
            a.label(f'VOK{s}')
        if s < 8: mm(s % 4, [], a_loads(8, ('A', 8), VT) + b_reg(vm, 8, ('B', 8), None, 4, CB0) if s == 5 else [])
        else:
            for tt in (1, 2, 3, 0):
                for j in range(5):
                    d = ACC[tt][j]
                    a(f"v_mfma_f32_16x16x32_bf16 {d}, {BR[0][j]}, {AR[0][tt]}, {d}")
                    if tt in (1, 2): a(f"ds_read_b128 {GT[tt+1][j]}, {GB} offset:{(tt+1)*5120 + j*1024}")
                    pt = {1: None, 2: None, 3: 1, 0: 2}[tt]
                    if pt: a("ds_write_b128 %s, %s offset:%d" % (crow(pt-1, j)[0], ACC[pt][j], crow(pt-1, j)[1]))
            for j in range(5): a("ds_write_b128 %s, %s offset:%d" % (crow(2, j)[0], ACC[3][j], crow(2, j)[1]))
    a("s_waitcnt lgkmcnt(15)")
    for j in range(5):
        for h in range(2):
            sl = slice(2*h, 2*h+2)
            a(f"v_pk_add_f32 {GT[0][j][sl]}, {GT[0][j][sl]}, {GT[1][j][sl]}")
            a(f"v_pk_add_f32 {GT[2][j][sl]}, {GT[2][j][sl]}, {GT[3][j][sl]}")
    stamp(a, 10)
    lds_signal(8)
    for j in range(5):
        for h in range(2):
            sl = slice(2*h, 2*h+2)
            a(f"v_pk_add_f32 {GT[0][j][sl]}, {GT[0][j][sl]}, {GT[2][j][sl]}")
            a(f"v_pk_fma_f32 {ACC[0][j][sl]}, {GT[0][j][sl]}, {V(22, 2)}, {ACC[0][j][sl]} op_sel_hi:[1,0,1]")
    lds_wait(8, 4)
    RD = [ACC[1], ACC[2], ACC[3]]
    for q in range(3):
        for j in range(5): a(f"ds_read_b128 {RD[q][j]}, {XB[q]} offset:{j*1024}")
    for q in range(3):
        a(f"s_waitcnt lgkmcnt({10 - 5*q})")
        for j in range(5):
            for h in range(2): a(f"v_pk_add_f32 {ACC[0][j][2*h:2*h+2]}, {ACC[0][j][2*h:2*h+2]}, {RD[q][j][2*h:2*h+2]}")
            if q == 2:
                a(f"v_cvt_pk_bf16_f32 {ACC[1][j][0]}, {ACC[0][j][0]}, {ACC[0][j][1]}")
                a(f"v_cvt_pk_bf16_f32 {ACC[1][j][1]}, {ACC[0][j][2]}, {ACC[0][j][3]}")
                a(f"buffer_store_dwordx2 {ACC[1][j][0:2]}, {t0}, {rOUT}, {sT2} offen offset:{j*32} {OPT['ost']}")
    a.label('P2_FIN')
    if OPT['stamp']:
        a("s_waitcnt vmcnt(0)")
        stamp(a, 11)
    stamp_flush(a)
    if OPT['pad']:
        a.label('PADL')
        a("s_sleep 1"); a("s_memrealtime s[12:13]"); a("s_waitcnt lgkmcnt(0)"); a("s_sub_u32 s12, s12, s10")
        a(f"s_cmp_lt_u32 s12, {OPT['pad']*100}"); a("s_cbranch_scc1 PADL")
    a.label(END)
    a.label('K_LAST')
    a("s_endpgm")
    if OPT['sent']:
        for s in range(4, 9):
            a.label(f'RET{s}')
            a(f"s_sub_u32 {sTO}, {sTO}, 1")
            a(f"s_cselect_b32 {sTO}, 0, {sTO}")
            a(f"s_cbranch_scc1 VOK{s}")
            a(f"s_sleep {OPT['rsl']}")
            for l in a_loads(s, 'r', VT): a(l)
            a("s_waitcnt vmcnt(0)")
            a(f"s_branch VER{s}")

def build():
    hdr = open(f'cdna_kernels/{NAME}.s.ref').read().split('; Override launch')[0]
    name = NAME + '_kernel'
    out = hdr + "; @launch grid=(256,1,1) block=(512,1,1) lds=163840\n"
    out += '.amdgcn_target "amdgcn-amd-amdhsa--gfx950"\n.text\n'
    a = Asm(); kernel(a)
    out += f".globl {name}\n.p2align 8\n.type {name},@function\n{name}:\n" + a.finalize()
    print('instrs', len(a.ins), 'nops', a.nnop, file=sys.stderr)
    out += f""".section .rodata,"a"
.p2align 6
.amdhsa_kernel {name}
  .amdhsa_next_free_vgpr 256
  .amdhsa_next_free_sgpr 102
  .amdhsa_accum_offset 256
  .amdhsa_group_segment_fixed_size 0
  .amdhsa_kernarg_size 96
  .amdhsa_user_sgpr_count 2
  .amdhsa_user_sgpr_kernarg_segment_ptr 1
  .amdhsa_system_sgpr_workgroup_id_x 1
.end_amdhsa_kernel
"""
    return out

if __name__ == '__main__':
    outp = sys.argv[1]
    for o in sys.argv[2:]:
        k, v = o.split('=', 1); OPT[k] = int(v) if v.isdigit() else v
    open(outp, 'w').write(build())
```

```python
import sys
sys.path.insert(0, 'gen')
from asmlib import *
NAME = 'gated_mix__linear_kernel_hedgehog__swiglu_ffn__prompt'
AP = 0; BP = 0xA00000; PQ = 0xD00000; KVACC = 0x1200000; FH = 0x1230000; FK = 0x1232000; FP = 0x1234000; ZEND = 0x1235000
GOFF = 0x1240000; DUMMY = 0x1250000; STAMP = 0x1300000; WSZ = 0x1600000
LOG2E = 0x3fb8aa3b; NLOG2E = 0xbfb8aa3b
OPT = dict(stamp=0, touch=2, bs="{'p0':(0,2),'p1':(2,5),3:(5,8),7:(8,10)}", pp=0, spnt='', rot2=0, slp=1, early=1, btouch=0, atf='sc1', cpf=12, nobar=18, chk=12, sent=1, fair=1, fg='{0:2,5:1,7:3}', fc='{0:1,4:0}', npk=0, eprio=2, gprio=3, oc=2, oord=1, noa=0, pj=18, t2s=0, x0e=1, sb1=1, sb2=1, t2pos=1, pad=0, bt=0, tsl=4, rsl=8, cprio2=0, at=0, kh=0, cprio=3, oh1=19, gdel=0, fill=0, spst='sc1', t2a='[0]', t2b='[2]', t2f='{1:(4,6),2:(5,3),4:(6,4),6:(7,5),7:(8,6),8:(9,3)}', t2q='{}', xfl='', wfl='', il=4, qbar=0, prio=0, dbgt=0, ost='nt')
ST = 'sc1'; LD = 'sc1'

pX, pQKV, pPHI, pWO, pBX, pWG, pWU, pWD = [S(16 + 2 * i, 2) for i in range(8)]
pGW, pOUT, pDBG, pWS = [S(32 + 2 * i, 2) for i in range(4)]
sWV = S(3)
rX, rW, rWS, rA, rB = S(40, 4), S(44, 4), S(48, 4), S(52, 4), S(56, 4)
sC = S(60, 2)
rDBG = S(84, 4)
sFLAG = S(88); sTO = S(89); sNEED = S(7)
GOD = 0x1000
sP = S(14, 2)
XSLOT = 32768; WB = 98304
GWB = 159744; CNT = 161024; ZERO = 161280; KVB = 147456

def srd(a, d, base, size):
    a(f"s_mov_b32 {d[0]}, {base[0]}")
    a(f"s_and_b32 {d[1]}, {base[1]}, 0xffff")
    a(f"s_mov_b32 {d[2]}, {size}")
    a(f"s_mov_b32 {d[3]}, 0x20000")

def sstamp(a, j):
    if OPT['stamp'] != 3: return
    if j > 0: a(f"v_writelane_b32 v255, s92, {40 + j - 1}")
    a("s_memtime s[92:93]")
def stamp(a, idx):
    if not OPT['stamp']: return
    if OPT['stamp'] >= 2 and idx not in (2, 3, 5, 11): return
    a("s_memrealtime s[90:91]")
    a("s_memtime s[92:93]")
    a("s_waitcnt lgkmcnt(0)")
    a(f"v_writelane_b32 v255, s90, {2*idx}")
    a(f"v_writelane_b32 v255, s92, {2*idx+1}")
def stamp_flush(a):
    if not OPT['stamp']: return
    if OPT['dbgt']:
        a("s_not_b32 s90, s10"); a("v_writelane_b32 v255, s90, 0")
        a("v_lshlrev_b32 v254, 1, v0"); a("v_add_u32 v254, 8, v254")
        a("s_mov_b32 exec_lo, 0x05555555"); a("s_mov_b32 exec_hi, 0")
        a(f"buffer_atomic_umax v255, v254, {rDBG}, 0 offen sc1")
        a("s_mov_b64 exec, -1")
        return
    a("v_writelane_b32 v255, s10, 0"); a("v_writelane_b32 v255, s12, 1")
    a("s_lshl_b32 s90, s2, 3")
    a(f"s_add_u32 s90, s90, {sWV}")
    a("s_lshl_b32 s90, s90, 8")
    a(f"s_add_u32 s90, s90, {STAMP + 0x80000}")
    a("v_lshlrev_b32 v254, 2, v0")
    a(f"buffer_store_dword v255, v254, {rWS}, s90 offen")

def vpoll(a, vzero, soff, off, tmp, extra=None, slp=None):
    L, D = a.newlabel('POLL'), a.newlabel('POLLD')
    a(f"s_mov_b32 {sTO}, 0x80000")
    a.label(L)
    if extra: a(extra)
    a(f"buffer_load_dword {tmp}, {vzero}, {rWS}, {soff} offen offset:{off} sc1")
    a("s_waitcnt vmcnt(0)")
    a(f"v_cmp_eq_u32 vcc, 0, {tmp}")
    a("s_nop 0")
    a(f"s_cbranch_vccz {D}")
    a(f"s_sleep {slp or OPT['slp']}")
    a(f"s_sub_u32 {sTO}, {sTO}, 1")
    a(f"s_cbranch_scc0 {L}")
    a.label(D)
def arrive(a, soff, need, z, one, nyounger=0):
    D = a.newlabel('ARR')
    a(f"v_mov_b32 {z}, 0"); a(f"v_mov_b32 {one}, 1")
    a(f"s_waitcnt vmcnt({nyounger})")
    a("s_mov_b64 exec, 1")
    a(f"buffer_atomic_add {one}, {z}, {rWS}, {soff} offen sc0 sc1")
    a("s_waitcnt vmcnt(0)")
    a(f"v_readfirstlane_b32 {sP[0]}, {one}")
    a(f"s_add_u32 {sP[1]}, {soff}, {GOD}")
    a(f"s_cmp_lg_u32 {sP[0]}, {need}")
    a(f"s_cbranch_scc1 {D}")
    a(f"buffer_store_dword {one}, {z}, {rWS}, {sP[1]} offen sc1")
    a.label(D)
    a("s_mov_b64 exec, -1")
def init_poll(a, reg, off):
    L, D = a.newlabel('POLL'), a.newlabel('POLLD')
    a(f"s_mov_b32 {sTO}, 0x80000")
    a.label(L)
    a(f"v_mov_b32 {reg}, 0")
    a(f"buffer_load_dword {reg}, {reg}, {rDBG}, 0 offen offset:{off} sc1")
    a("s_waitcnt vmcnt(0)")
    a(f"v_readfirstlane_b32 {sP[0]}, {reg}")
    a(f"s_cmp_lg_u32 {sP[0]}, 0")
    a(f"s_cbranch_scc1 {D}")
    a("s_sleep 2")
    a(f"s_sub_u32 {sTO}, {sTO}, 1")
    a(f"s_cbranch_scc0 {L}")
    a.label(D)

def softmax_unit(a, P, E, M, T, O, side=None):
    side = list(side or [])
    a(f"v_max3_f32 {M[0]}, {P[0]}, {P[1]}, {P[2]}")
    a(f"v_min3_f32 {M[2]}, {P[0]}, {P[1]}, {P[2]}")
    for i in range(3, 19, 2):
        a(f"v_max3_f32 {M[0]}, {M[0]}, {P[i]}, {P[i+1]}")
        a(f"v_min3_f32 {M[2]}, {M[2]}, {P[i]}, {P[i+1]}")
    a(f"v_max_f32 {M[0]}, {M[0]}, {P[19]}")
    a(f"v_min_f32 {M[2]}, {M[2]}, {P[19]}")
    a(f"v_mul_f32 {M[0]}, {sC[0]}, {M[0]}")
    a(f"v_mul_f32 {M[2]}, {sC[0]}, {M[2]}")
    for i in range(0, 20, 2):
        a(f"v_pk_fma_f32 {E[i:i+2]}, {P[i:i+2]}, {sC}, {M[0:2]} op_sel_hi:[1,1,0] neg_lo:[0,0,1] neg_hi:[0,0,1]")
        a(f"v_pk_fma_f32 {E[20+i:22+i]}, {P[i:i+2]}, {sC}, {M[2:4]} op_sel_hi:[1,1,0] neg_lo:[1,0,0] neg_hi:[1,0,0]")
    for i in range(40):
        a(f"v_exp_f32 {E[i]}, {E[i]}")
        if side and i % 2 == 1:
            x = side.pop(0)
            if x != "s_nop 0": a(x)
    for l in side: a(l)
    a(f"v_pk_add_f32 {T[0:2]}, {E[0:2]}, {E[2:4]}")
    a(f"v_pk_add_f32 {T[2:4]}, {E[20:22]}, {E[22:24]}")
    for i in range(4, 20, 2):
        a(f"v_pk_add_f32 {T[0:2]}, {T[0:2]}, {E[i:i+2]}")
        a(f"v_pk_add_f32 {T[2:4]}, {T[2:4]}, {E[20+i:22+i]}")
    a(f"v_add_f32 {T[0]}, {T[0]}, {T[1]}")
    a(f"v_add_f32 {T[2]}, {T[2]}, {T[3]}")
    a(f"v_rcp_f32 {T[0]}, {T[0]}")
    a(f"v_rcp_f32 {T[2]}, {T[2]}")
    for i in range(0, 20, 2):
        a(f"v_pk_mul_f32 {E[i:i+2]}, {E[i:i+2]}, {T[0:2]} op_sel_hi:[1,0]")
        a(f"v_pk_mul_f32 {E[20+i:22+i]}, {E[20+i:22+i]}, {T[2:4]} op_sel_hi:[1,0]")
    for i in range(20):
        a(f"v_cvt_pk_bf16_f32 {O[i]}, {E[2*i]}, {E[2*i+1]}")

def kernel(a):
    END = 'K_END'
    BS = eval(OPT['bs'])
    a("s_cmp_ge_u32 s2, 256")
    a(f"s_cbranch_scc1 {END}")
    if OPT['stamp']:
        a("s_memrealtime s[10:11]"); a("s_memtime s[12:13]"); a("v_mov_b32 v255, 0")
    if OPT['pad']: a("s_memrealtime s[10:11]")
    a("s_load_dwordx16 s[16:31], s[0:1], 0")
    a("s_load_dwordx8 s[32:39], s[0:1], 64")
    lane = V(0)
    tid, t0, t1, t2, t3, t4 = V(1), V(2), V(3), V(4), V(5), V(6)
    vqd, vr, vc, vl15 = V(7), V(8), V(9), V(10)
    vx = [V(11 + i) for i in range(4)]
    xa = [[V(15), V(16)], [V(17), V(18)]]
    tdum = V(19); ta = V(20, 2); tb = V(22, 2)
    R0 = 24
    sTY, sRB, sXK, sWK, sM, sT0, sT1, sT2, sT3, sRG, sHI, sID, sMW, sC8, sR4 = [S(62 + i) for i in range(15)]
    a(f"v_lshrrev_b32 {t0}, 6, v0")
    a(f"v_mov_b32 {tid}, v0")
    a(f"v_readfirstlane_b32 {sWV}, {t0}")
    a(f"v_and_b32 {lane}, 63, v0")
    a(f"s_bfe_u32 {sC8}, s2, 0x30003")
    a(f"s_lshr_b32 {sR4}, s2, 6")
    a(f"s_and_b32 {sRB}, s2, 1")
    a(f"s_lshl_b32 {sRB}, {sRB}, 2")
    a(f"s_add_u32 {sRB}, {sRB}, {sR4}")
    a(f"s_bfe_u32 {sT0}, s2, 0x20001")
    a(f"s_and_b32 {sRG}, {sWV}, 3")
    a(f"s_lshr_b32 {sHI}, {sWV}, 2")
    a(f"v_lshrrev_b32 {vqd}, 4, {lane}")
    a(f"v_bfe_u32 {vr}, {lane}, 2, 2")
    a(f"v_and_b32 {vc}, 3, {lane}")
    a(f"v_and_b32 {vl15}, 15, {lane}")
    a(f"v_lshrrev_b32 {t0}, 3, {lane}")
    a(f"v_mul_u32_u24 {t0}, 1280, {t0}")
    a(f"v_and_b32 {t1}, 7, {lane}")
    a(f"v_xor_b32 {t1}, {t1}, {vqd}")
    a(f"v_lshl_add_u32 {vx[0]}, {t1}, 4, {t0}")
    a(f"v_xor_b32 {t1}, 4, {t1}")
    a(f"v_lshl_add_u32 {vx[1]}, {t1}, 4, {t0}")
    a(f"v_add_u32 {vx[1]}, {8*1280-1024}, {vx[1]}")
    a(f"v_add_u32 {vx[2]}, {16*1280-2048}, {vx[0]}")
    a(f"v_add_u32 {vx[3]}, {16*1280-2048}, {vx[1]}")
    a(f"s_mul_i32 {sXK}, {sRB}, {256*1280}")
    a(f"s_mul_i32 {sT1}, {sWV}, {32*1280}")
    a(f"s_add_u32 {sXK}, {sXK}, {sT1}")
    a(f"s_lshl_b32 {sM}, {sWV}, 12")
    a(f"v_lshlrev_b32 {t2}, 3, {tid}")
    a(f"v_min_u32 {t2}, {163840 - CNT - 8}, {t2}")
    a(f"v_add_u32 {t2}, {CNT}, {t2}")
    a(f"v_mov_b32 {ta[0]}, 0"); a(f"v_mov_b32 {ta[1]}, 0")
    a(f"ds_write_b64 {t2}, {ta}")
    a(f"s_mul_i32 {sID}, {sT0}, 9"); a(f"s_add_u32 {sID}, {sID}, 1"); a(f"s_lshr_b32 {sID}, {sID}, 1")
    a(f"s_add_u32 {sID}, {sID}, {sC8}"); a(f"s_sub_u32 {sID}, {sID}, 3")
    a(f"s_and_b32 {sT1}, {sT0}, 1"); a(f"s_add_u32 {sT1}, {sT1}, {sC8}")
    a(f"s_mov_b32 {sC[0]}, {LOG2E:#x}")
    a(f"s_mov_b32 {sC[1]}, {LOG2E:#x}")
    sU1, sU2, sBK = S(100), S(101), S(95)
    vt1, vt2 = V(22), V(23)
    T2 = OPT['touch'] == 2
    rTT = S(96, 4)
    def t2_all(b0):
        return [f"s_mul_i32 s4, {sBK}, {b0}", f"s_add_u32 s4, s4, {sU2}",
                f"v_add_u32 v21, s4, {vt2}", f"s_mov_b64 exec, 0xff\nbuffer_load_dword {tdum}, v21, {rTT}, 0 offen\ns_mov_b64 exec, -1"]
    def t2_one(b, c8v):
        lb = a.newlabel('T2')
        return [f"s_cmp_lg_u32 {sC8}, {c8v}\ns_cbranch_scc1 {lb}\ns_mul_i32 s4, {sBK}, {b}\ns_add_u32 s4, s4, {sU1}\nv_add_u32 v21, s4, {vt1}\ns_mov_b32 exec_hi, 0\n"
                f"buffer_load_dword {tdum}, v21, {rTT}, 0 offen\ns_mov_b64 exec, -1\n{lb}:"]
    if T2:
        a(f"s_lshr_b32 s9, {sWV}, 1")
        a(f"s_mov_b32 {rTT[2]}, {2048*1280}"); a(f"s_movk_i32 {sBK}, 128")
        a("s_cmp_eq_u32 s9, 1")
        a(f"s_cselect_b32 {rTT[2]}, {640*3840}, {rTT[2]}"); a(f"s_cselect_b32 {sBK}, {64*3840}, {sBK}")
        a("s_cmp_ge_u32 s9, 2")
        a(f"s_cselect_b32 {rTT[2]}, {640*3456}, {rTT[2]}"); a(f"s_cselect_b32 {sBK}, {64*3456}, {sBK}")
        a(f"s_mov_b32 {rTT[3]}, 0x20000")
        a("s_cmp_eq_u32 s9, 0")
        a("s_movk_i32 s7, 128"); a("s_cselect_b32 s5, 1280, s7"); a("s_cselect_b32 s6, 640, s7"); a("s_cselect_b32 s7, 512, 0")
        a(f"v_mul_u32_u24 {vt1}, s5, {lane}")
        a(f"v_mul_u32_u24 {vt2}, s6, {lane}")
        a(f"v_and_b32 {t0}, 1, {lane}"); a(f"v_mul_u32_u24 {t0}, s7, {t0}"); a(f"v_sub_u32 {vt2}, {vt2}, {t0}")
        a(f"s_and_b32 s4, {sWV}, 1")
        a(f"s_lshl1_add_u32 {sU2}, s2, s4"); a(f"s_lshl_b32 {sU2}, {sU2}, 3"); a(f"s_mul_i32 {sU2}, {sU2}, s6")
        a(f"s_and_b32 {sU1}, s2, 7"); a(f"s_lshl2_add_u32 {sU1}, {sU1}, {sR4}")
        a(f"s_lshl1_add_u32 {sU1}, {sU1}, s4"); a(f"s_lshl_b32 {sU1}, {sU1}, 5"); a(f"s_mul_i32 {sU1}, {sU1}, s5")
        a(f"v_add_u32 {t4}, {sU2}, {vt2}")
    a(f"s_mov_b32 {rX[2]}, {2048*1280}"); a(f"s_mov_b32 {rX[3]}, 0x20000")
    a(f"s_mov_b32 m0, {sM}")
    a("s_waitcnt lgkmcnt(0)")
    if T2:
        a("s_cmp_eq_u32 s9, 1"); a(f"s_cselect_b64 {rTT[0:2]}, {pQKV}, {pX}")
        a("s_cmp_eq_u32 s9, 2"); a(f"s_cselect_b64 {rTT[0:2]}, {pWG}, {rTT[0:2]}")
        a("s_cmp_eq_u32 s9, 3"); a(f"s_cselect_b64 {rTT[0:2]}, {pWU}, {rTT[0:2]}")
        a(f"s_and_b32 {rTT[1]}, {rTT[1]}, 0xffff")
        a("s_mov_b64 exec, 0xff"); a(f"buffer_load_dword {tdum}, {t4}, {rTT}, 0 offen"); a("s_mov_b64 exec, -1")
        for b0 in eval(OPT['t2a'])[1:]:
            for l in t2_all(b0): a(l)
    a(f"s_mov_b32 {rX[0]}, {pX[0]}"); a(f"s_and_b32 {rX[1]}, {pX[1]}, 0xffff")
    if OPT['x0e']:
        a(f"s_cmp_eq_u32 {sT1}, 8"); a("s_cbranch_scc1 NOX0")
        if OPT['sb1']: a("s_barrier")
        for n in range(4): a(f"buffer_load_dwordx4 {vx[n]}, {rX}, {sXK} offen offset:{n*1024} lds")
        a.label("NOX0")
    srd(a, rWS, pWS, WSZ)
    srd(a, rDBG, pDBG, 256)
    if OPT['cpf']:
        a(f"s_cmp_lg_u32 {sWV}, 7"); a("s_cbranch_scc1 NOCPF")
        a("s_getpc_b64 s[90:91]")
        a.label("CPF_PC")
        a("s_lshr_b32 s6, s2, 3"); a(f"s_mul_i32 s6, s6, {OPT['cpf']*128}")
        a(f"v_lshlrev_b32 {t0}, 7, {lane}"); a(f"v_add_u32 {t0}, s6, {t0}")
        a(f"v_min_u32 {t0}, K_LAST-CPF_PC, {t0}")
        a(f"s_mov_b64 exec, {(1 << OPT['cpf']) - 1:#x}")
        a(f"global_load_dword v31, {t0}, s[90:91]")
        a("s_mov_b64 exec, -1")
        a.label("NOCPF")
    a(f"s_cmp_lt_u32 {sC8}, 3")
    a("s_cbranch_scc1 R_QKV")
    a(f"s_cmp_eq_u32 {sT1}, 8")
    a("s_cbranch_scc1 R_SPARE")

    def x_dma(vm, blk, half):
        if blk == 0 and OPT['x0e']:
            vm.issue(('X', 0)); vm.issue(('X', 0)); return []
        l = [f"s_add_u32 m0, {sM}, {(blk % 3) * XSLOT}"]
        if half == 0 and blk > 0: l.append(f"s_add_u32 {sXK}, {sXK}, 128")
        for n in (2 * half, 2 * half + 1):
            l.append(f"buffer_load_dwordx4 {vx[n]}, {rX}, {sXK} offen offset:{n*1024} {OPT['xfl']} lds")
            vm.issue(('X', blk))
        return l
    def x_addr_setup():
        a(f"v_lshrrev_b32 {t0}, 1, {vl15}")
        a(f"v_xor_b32 {t0}, {t0}, {vqd}")
        a(f"v_lshlrev_b32 {t0}, 4, {t0}")
        a(f"v_lshl_add_u32 {t0}, {vl15}, 7, {t0}")
        a(f"s_lshl_b32 {sT0}, {sRG}, 13")
        a(f"v_add_u32 {xa[0][0]}, {sT0}, {t0}")
        a(f"v_xor_b32 {xa[0][1]}, 64, {xa[0][0]}")
        a(f"v_add_u32 {xa[1][0]}, 0x10000, {xa[0][0]}")
        a(f"v_add_u32 {xa[1][1]}, 0x10000, {xa[0][1]}")
    def x_reads(XF, step):
        blk, kk = step // 2, step % 2
        sl = blk % 3
        return [f"ds_read_b128 {XF[tt]}, {xa[sl // 2][kk]} offset:{(sl % 2) * XSLOT + tt * 2048}" for tt in range(4)]
    def burst(vm, b0, b1):
        if OPT['touch'] != 1: return []
        l = []
        for st, reg in ((0, ta), (5, tb)):
            lo, hi = max(b0, st) - st, min(b1, st + 5) - st
            if lo >= hi: continue
            m = ((1 << (12 * hi)) - 1) & ~((1 << (12 * lo)) - 1)
            l += [f"s_mov_b32 exec_lo, {m & 0xffffffff:#x}", f"s_mov_b32 exec_hi, {m >> 32:#x}", f"global_load_dword {tdum}, {reg}, off"]
            vm.issue('T')
        l.append("s_mov_b64 exec, -1")
        return l
    def touch_setup(pw0, pw1, rowbytes, off0, off1, seg):
        if OPT['touch'] != 1: return
        l12, bi = tb[0], tb[1]; tinc = tdum
        a(f"v_mul_u32_u24 {bi}, 43, {lane}"); a(f"v_lshrrev_b32 {bi}, 9, {bi}")
        a(f"v_mul_u32_u24 {l12}, 12, {bi}"); a(f"v_sub_u32 {l12}, {lane}, {l12}")
        a(f"s_lshl_b32 {sT2}, {sRB}, 3"); a(f"s_add_u32 {sT2}, {sT2}, {sC8}"); a(f"s_lshl_b32 {sT2}, {sT2}, 3"); a(f"s_add_u32 {sT2}, {sT2}, {sWV}")
        a(f"s_mul_i32 {sT2}, {sT2}, {4*1280}")
        a(f"v_mul_u32_u24 {t0}, 1280, {l12}")
        a(f"v_add_u32 {t0}, {sT2}, {t0}")
        a(f"s_lshl_b32 {sT0}, {sR4}, 3"); a(f"s_add_u32 {sT0}, {sT0}, {sWV}"); a(f"s_mul_i32 {sT0}, {sT0}, {2*rowbytes}")
        a(f"v_subrev_u32 {t1}, 4, {l12}")
        a(f"v_bfe_u32 {t2}, {t1}, 2, 1")
        a(f"v_mul_u32_u24 {t2}, {rowbytes}, {t2}")
        a(f"v_and_b32 {t3}, 1, {t1}")
        a(f"v_mul_u32_u24 {t3}, {seg-4}, {t3}")
        a(f"v_add3_u32 {t2}, {t2}, {t3}, {sT0}")
        a(f"v_and_b32 {t3}, 2, {t1}")
        a(f"v_cmp_eq_u32 vcc, 0, {t3}")
        a(f"v_mov_b32 {t3}, {off1}"); a(f"v_mov_b32 {t4}, {off0}")
        a(f"v_cndmask_b32 {t3}, {t3}, {t4}, vcc")
        a(f"v_add_u32 {t2}, {t2}, {t3}")
        a(f"v_mov_b32 {t3}, {pw1[0]}"); a(f"v_mov_b32 {t4}, {pw0[0]}"); a(f"v_cndmask_b32 {ta[0]}, {t3}, {t4}, vcc")
        a(f"v_mov_b32 {t3}, {pw1[1]}"); a(f"v_mov_b32 {t4}, {pw0[1]}"); a(f"v_cndmask_b32 {ta[1]}, {t3}, {t4}, vcc")
        a(f"v_cmp_gt_u32 vcc, 4, {l12}")
        a(f"v_mov_b32 {t3}, {pX[0]}"); a(f"v_mov_b32 {t4}, {pX[1]}")
        a(f"v_cndmask_b32 {t2}, {t2}, {t0}, vcc")
        a(f"v_cndmask_b32 {ta[0]}, {ta[0]}, {t3}, vcc")
        a(f"v_cndmask_b32 {ta[1]}, {ta[1]}, {t4}, vcc")
        a(f"v_mov_b32 {t3}, {64*rowbytes}"); a(f"v_mov_b32 {t4}, 128"); a(f"v_cndmask_b32 {tinc}, {t3}, {t4}, vcc")
        a(f"v_mad_u32_u24 {t2}, {tinc}, {bi}, {t2}")
        a(f"v_add_co_u32 {ta[0]}, vcc, {ta[0]}, {t2}")
        a(f"v_mul_u32_u24 {t2}, 5, {tinc}")
        a(f"v_addc_co_u32 {ta[1]}, vcc, 0, {ta[1]}, vcc")
        a(f"v_add_co_u32 {tb[0]}, vcc, {ta[0]}, {t2}")
        a(f"v_addc_co_u32 {tb[1]}, vcc, 0, {ta[1]}, vcc")
    def step_body(mains, lblk, pre=[]):
        for l in pre: a(l)
        if not lblk:
            for m in mains: a(m)
            return
        if OPT['pp'] == 2:
            rds = [l for l in lblk if l.startswith('ds_read')]; oth = [l for l in lblk if not l.startswith('ds_read')]
            l1, l2 = a.newlabel('PP'), a.newlabel('PP')
            if oth:
                a(f"s_cmp_eq_u32 {sHI}, 0"); a(f"s_cbranch_scc1 {l1}")
                for l in oth: a(l)
                a.label(l1)
            k = 0
            for i, m in enumerate(mains):
                a(m)
                while k < len(rds) and k < (i + 1) * max(1, -(-len(rds) // len(mains))):
                    a(rds[k]); k += 1
            if oth:
                a(f"s_cmp_eq_u32 {sHI}, 0"); a(f"s_cbranch_scc0 {l2}")
                for l in oth: a(l)
                a.label(l2)
        elif OPT['pp']:
            l1, l2 = a.newlabel('PP'), a.newlabel('PP')
            a(f"s_cmp_eq_u32 {sHI}, 0"); a(f"s_cbranch_scc1 {l1}")
            for l in lblk: l() if callable(l) else a(l)
            a.label(l1)
            for m in mains: a(m)
            a(f"s_cmp_eq_u32 {sHI}, 0"); a(f"s_cbranch_scc0 {l2}")
            for l in lblk: l() if callable(l) else a(l)
            a.label(l2)
        else:
            rds = [l for l in lblk if l.startswith('ds_read')]; oth = [l for l in lblk if not l.startswith('ds_read')]
            units = []; cur = []
            for l in oth:
                cur.append(l)
                if 'buffer_' in l or 'ds_write' in l: units.append(cur); cur = []
            if cur: units.append(cur)
            n = len(mains); mode = OPT['il']
            pos = {}
            if mode == 0:
                seq = [[r] for r in rds] + units
                for k, u in enumerate(seq): pos.setdefault(min(n - 1, k * n // max(len(seq), n)), []).extend(u)
            elif mode == 1:
                for k, u in enumerate(units): pos.setdefault(min(n - 1, 2 * k), []).extend(u)
                for k, r in enumerate(rds): pos.setdefault(min(n - 1, k * min(n, len(rds)) // len(rds) if len(rds) > n else k), []).append(r)
            elif mode == 2:
                for k, r in enumerate(rds): pos.setdefault(min(n - 1, k // 2), []).append(r)
                for k, u in enumerate(units): pos.setdefault(min(n - 1, len(rds) // 2 + 2 * k), []).extend(u)
            elif mode == 3:
                for k, u in enumerate(units): pos.setdefault(min(n - 1, 1 + k * (2 * n // 3) // max(1, len(units))), []).extend(u)
                for k, r in enumerate(rds): pos.setdefault(min(n - 1, k * min(n, len(rds)) // len(rds) if len(rds) > n else k), []).append(r)
            elif mode == 4:
                k = 0
                for i in range(n):
                    while k < len(lblk) and k < (i + 1) * len(lblk) // n + 1:
                        pos.setdefault(i, []).append(lblk[k]); k += 1
            for i, m in enumerate(mains):
                a(m)
                for l in pos.get(i, []): a(l)
    def init_check_issue(reg, off=128):
        return [f"v_mov_b32 {reg}, 0", f"buffer_load_dword {reg}, {reg}, {rDBG}, 0 offen offset:{off} sc1"]
    def init_check(reg, off=128):
        ok = a.newlabel('INITOK')
        a(f"v_readfirstlane_b32 {sP[0]}, {reg}")
        a(f"s_cmp_lg_u32 {sP[0]}, 0")
        a(f"s_cbranch_scc1 {ok}")
        init_poll(a, reg, off)
        a.label(ok)
    sR6, sCG, sAo, sBg, sBo, sLC, sH2, sRX = [S(94 + i) for i in range(8)]
    vo, vo4 = V(20), V(21)
    vS2 = V(30)
    sO1, sO2 = S(79), S(80)
    BRb = [208, 228, 32, 52]
    BR = [[V(BRb[b] + 4 * j, 4) for j in range(5)] for b in range(4)]
    GL = [4, 6, 7, 9]; LR = [2, 5, 3, 4]; CR = [0, 1, 6]
    GRP = {0:0, 1:1, 2:2, 3:3, 4:8, 6:9, 7:10, 9:11, 5:12, 8:13}
    CB0 = 38 * 5120; CA0 = 38 * 4096
    def p2_setup():
        return [f"s_and_b32 {sR6}, s2, 7", f"s_lshl_b32 {sR6}, {sR6}, 2", "s_lshr_b32 s4, s2, 6", f"s_add_u32 {sR6}, {sR6}, s4",
             f"s_bfe_u32 {sCG}, s2, 0x30003", f"s_lshl1_add_u32 {sCG}, s4, {sCG}", f"s_and_b32 {sCG}, {sCG}, 7", f"v_lshlrev_b32 {vo}, 4, {lane}", f"v_add_u32 {vo4}, 4096, {vo}",
             f"s_mul_i32 {sBg}, {sCG}, 74", f"s_add_u32 {sBg}, {sBg}, {sRG}", f"s_mul_i32 {sBg}, {sBg}, 5120", f"s_add_u32 {sBg}, {sBg}, {BP}",
             f"s_mov_b32 {rB[0]}, {pWS[0]}", f"s_and_b32 {rB[1]}, {pWS[1]}, 0xffff", f"s_mul_i32 {rB[2]}, {sHI}, {WSZ}", f"s_mov_b32 {rB[3]}, 0x20000",
             f"s_mul_i32 {sLC}, {sRG}, 5120", f"s_lshl_b32 {sH2}, {sHI}, 11", f"s_mul_i32 {sRX}, {sHI}, 20480",
             f"s_xor_b32 s4, {sHI}, 1", f"s_mul_i32 {sBo}, s4, {16*5120}", f"s_add_u32 {sBo}, {sBo}, {sBg}",
             f"s_mul_i32 {sAo}, {sR6}, 74", f"s_mul_i32 s4, s4, 16", f"s_add_u32 {sAo}, {sAo}, s4", f"s_add_u32 {sAo}, {sAo}, {sRG}", f"s_lshl_b32 {sAo}, {sAo}, 12",
             f"s_lshr_b32 s4, {sCG}, 1", "s_mul_i32 s4, s4, 5", f"s_mul_i32 {sO2}, {sR6}, 74", f"s_add_u32 {sO2}, {sO2}, s4", f"s_add_u32 {sO2}, {sO2}, 54",
             f"s_lshl2_add_u32 {sO2}, {sO2}, {sRG}", f"s_lshl_b32 {sO2}, {sO2}, 10", f"s_and_b32 s4, {sCG}, 1", f"s_mul_i32 {sO1}, s4, {3*4096}",
             f"s_add_u32 {sO1}, {sO1}, {sO2}", "s_lshl_b32 s4, s4, 9", f"s_add_u32 {sO2}, {sO2}, s4", f"s_add_u32 {sO2}, {sO2}, 8192",
             f"s_lshl_b32 s78, {sR6}, 7", f"s_add_u32 s78, s78, {FH + GOD}"]
    vFQ = V(31)
    def q_flag_issue(): return [f"v_mov_b32 {vFQ}, 0", f"buffer_load_dword {vFQ}, {vFQ}, {rWS}, s78 offen offset:4 sc1"]
    def poison(R4):
        if not OPT['sent']: return []
        lb = a.newlabel('PO')
        return [f"s_cmp_eq_u32 {sHI}, 1\ns_cbranch_scc1 {lb}\n" + "\n".join(f"v_mov_b32 {R4[i]}, -1" for i in range(4)) +
                f"\nbuffer_store_dwordx4 {R4}, {vo}, {rWS}, {sO1} offen {ST}\nbuffer_store_dwordx4 {R4}, {vo4}, {rWS}, {sO1} offen {ST}"
                f"\ns_mov_b32 exec_hi, 0\nbuffer_store_dwordx4 {R4}, {vo}, {rWS}, {sO2} offen {ST}\ns_mov_b32 exec_hi, -1\n{lb}:"]
    def b_reg(vm, i, tag, r=None, grp=None, ext=0):
        b = i % 4; r = r or rWS; grp = i if grp is None else grp
        l = [f"s_add_u32 s4, {sBo}, {grp*20480 + ext}"]
        for j in range(5):
            if j < 4: l.append(f"buffer_load_dwordx4 {BR[b][j]}, {vo}, {r}, s4 offen offset:{j*1024} {LD}")
            else: l.append(f"buffer_load_dwordx4 {BR[b][j]}, {vo4}, {r}, s4 offen {LD}")
            vm.issue(tag)
        return l
    def b_row(vm, base, grp, row, extra=None, ext=0, hi3=False):
        l = [f"s_add_u32 s4, {base}, {grp*20480 + ext}", f"s_add_u32 s5, {sLC}, {row*20480}"]
        if hi3: l += [f"s_add_u32 s4, s4, {sRX}", f"s_mul_i32 s6, {sRX}, 3", "s_add_u32 s5, s5, s6"]
        if extra: l += [f"s_add_u32 s4, s4, {extra}", f"s_add_u32 s5, s5, {extra}"]
        l.append("s_mov_b32 m0, s5")
        for j in range(4):
            l.append(f"buffer_load_dwordx4 {vo}, {rWS}, s4 offen offset:{j*1024} {LD} lds"); vm.issue('BL')
        l.append("s_add_u32 m0, s5, 4096")
        l.append(f"buffer_load_dwordx4 {vo4}, {rWS}, s4 offen {LD} lds"); vm.issue('BL')
        return l
    def b_row_half(vm, k):
        l = [f"s_add_u32 s4, {sBg}, {GRP[GL[k]]*20480}", f"s_add_u32 s5, {sLC}, {LR[k]*20480}", f"s_add_u32 s4, s4, {sH2}", f"s_add_u32 m0, s5, {sH2}"]
        for j in range(3):
            l.append(f"buffer_load_dwordx4 {vo}, {rWS}, s4 offen offset:{j*1024} {LD} lds"); vm.issue('BL')
        return l
    sPF = S(8)
    def flag_store(need):
        a(f"s_mov_b32 {sNEED}, {need}")

    vw = [V(R0), V(R0 + 1)]; wa = [V(R0 + 2), V(R0 + 3), V(R0 + 4)]; vchk = V(R0 + 5)
    FB = [32, 72]
    XF = [[V(FB[b] + 4 * tt, 4) for tt in range(4)] for b in range(2)]
    WF = [[V(FB[b] + 16 + 4 * c, 4) for c in range(6)] for b in range(2)]
    ACC = [[V(112 + (c * 4 + tt) * 4, 4) for tt in range(4)] for c in range(6)]
    vm = VmTrack()
    a(f"s_mul_i32 {sT3}, {sID}, 192")
    touch_setup(pWG, pWU, 3456, sT3, sT3, 192)
    for l in burst(vm, *BS['p0']): a(l)
    a(f"s_bitcmp1_b32 {sWV}, 0")
    a(f"s_cselect_b32 {rW[0]}, {pWU[0]}, {pWG[0]}")
    a(f"s_cselect_b32 {rW[1]}, {pWU[1]}, {pWG[1]}")
    a(f"s_and_b32 {rW[1]}, {rW[1]}, 0xffff")
    a(f"s_mov_b32 {rW[2]}, {640*3456}")
    a(f"s_mov_b32 {rW[3]}, 0x20000")
    a(f"s_bfe_u32 {sT0}, {sWV}, 0x10001")
    a(f"s_lshl_b32 {sT1}, {sT0}, 1")
    for n in range(2):
        a(f"v_add_u32 {t0}, {64*n}, {lane}")
        a(f"v_mul_u32_u24 {t1}, 43, {t0}")
        a(f"v_lshrrev_b32 {t1}, 9, {t1}")
        a(f"v_mul_u32_u24 {t2}, 12, {t1}")
        a(f"v_sub_u32 {t2}, {t0}, {t2}")
        a(f"v_lshrrev_b32 {t3}, 2, {t2}")
        a(f"v_cmp_eq_u32 vcc, 1, {t3}")
        a(f"v_mov_b32 {t3}, {sT1}")
        a(f"v_mov_b32 {t4}, {sT0}")
        a(f"v_cndmask_b32 {t3}, {t3}, {t4}, vcc")
        a(f"v_xor_b32 {t2}, {t2}, {t3}")
        a(f"v_mul_u32_u24 {t1}, 3456, {t1}")
        a(f"v_lshl_add_u32 {vw[n]}, {t2}, 4, {t1}")
        if n: a(f"v_subrev_u32 {vw[n]}, 1024, {vw[n]}")
    a(f"s_lshr_b32 {sT0}, {sWV}, 1")
    a(f"s_mul_i32 {sWK}, {sT0}, {8*3456}")
    a(f"s_add_u32 {sWK}, {sWK}, {sT3}")
    a(f"s_mul_i32 {sMW}, {sT0}, 1536")
    a(f"s_and_b32 {sT1}, {sWV}, 1")
    a(f"s_mul_i32 {sT1}, {sT1}, 6144")
    a(f"s_add_u32 {sMW}, {sMW}, {sT1}")
    def w_dma(step):
        l = [f"s_add_u32 m0, {sMW}, {WB + (step % 5) * 12288}"] + ([f"s_add_u32 {sWK}, {sWK}, 110592"] if step else []) + [
             f"buffer_load_dwordx4 {vw[0]}, {rW}, {sWK} offen {OPT['wfl']} lds",
             "s_mov_b32 exec_hi, 0\n"
             f"buffer_load_dwordx4 {vw[1]}, {rW}, {sWK} offen offset:1024 {OPT['wfl']} lds\n"
             "s_mov_b32 exec_hi, -1"]
        vm.issue(('W', step)); vm.issue(('W', step))
        return l
    if OPT['sb1'] and not OPT['x0e']: a("s_barrier")
    for l in x_dma(vm, 0, 0) + x_dma(vm, 0, 1) + w_dma(0) + w_dma(1): a(l)
    x_addr_setup()
    a(f"v_lshl_add_u32 {t0}, {vqd}, 3, {vr}")
    a(f"v_mul_u32_u24 {t0}, 192, {t0}")
    a(f"v_add_u32 {t0}, {WB}, {t0}")
    a(f"v_and_b32 {t1}, 1, {vqd}")
    a(f"v_lshlrev_b32 {t2}, 5, {t1}")
    a(f"v_lshl_add_u32 {t2}, {vc}, 3, {t2}")
    a(f"s_lshl_b32 {sT0}, {sHI}, 7")
    a(f"v_add3_u32 {wa[0]}, {t0}, {t2}, {sT0}")
    a(f"v_xor_b32 {wa[1]}, 32, {wa[0]}")
    a(f"v_and_b32 {t2}, 2, {vc}")
    a(f"v_add_u32 {t2}, {sHI}, {t2}")
    a(f"v_xor_b32 {t2}, {t2}, {t1}")
    a(f"v_lshlrev_b32 {t2}, 4, {t2}")
    a(f"v_and_b32 {t3}, 1, {vc}")
    a(f"v_lshl_add_u32 {t2}, {t3}, 3, {t2}")
    a(f"v_add3_u32 {wa[2]}, {t0}, {t2}, 64")
    def w_reads(WFb, step):
        return [f"ds_read_b64_tr_b16 {WFb[m*3+i][2*rd:2*rd+2]}, {wa[i]} offset:{(step % 5) * 12288 + m * 6144 + rd * 768}"
                for m in range(2) for i in range(3) for rd in range(2)]
    def t2b_emit():
        if T2:
            for b0 in eval(OPT['t2b']):
                for l in t2_all(b0): a(l)
                vm.issue('T')
    if OPT['t2pos'] == 1:
        if OPT['sb2']: a("s_barrier")
        t2b_emit()
    n = vm.wait_for(lambda t: t in (('X', 0), ('W', 0)))
    a(f"s_waitcnt vmcnt({n})")
    a("s_barrier")
    stamp(a, 1)
    for l in x_reads(XF[0], 0) + w_reads(WF[0], 0): a(l)
    if OPT['fill'] == 0:
        for l in x_dma(vm, 1, 0) + x_dma(vm, 1, 1) + w_dma(2): a(l)
        if OPT['t2pos'] == 2: t2b_emit()
    fq = []
    for st in range(2, 20):
        if st % 2 == 0:
            b = st // 2
            fq += [('X', b, 0, max(0, 2*(b-3)+1)), ('X', b, 1, max(0, 2*(b-3)+1))]
        fq.append(('W', st, 0, max(0, st - 5)))
    for j in range(20):
        cur, nxt = j & 1, (j & 1) ^ 1
        CHK = OPT['chk']
        NB = OPT['nobar']
        if j < NB:
            n = vm.wait_for(lambda t: t in (('X', (j + 1) // 2), ('W', j + 1)) or (j == CHK and t == 'chk') or (j == 16 and t == 'chk2') or (j == NB - 1 and t[0] in 'XW'))
            a(f"s_waitcnt vmcnt({n}) lgkmcnt(0)")
            if j == CHK: init_check(vchk)
            if j == 16: init_check(vS2, 136)
            a("s_barrier")
        else:
            a("s_waitcnt lgkmcnt(0)")
        sstamp(a, j)
        mains = [f"v_mfma_f32_16x16x32_bf16 {ACC[c][tt]}, {WF[cur][c]}, {XF[cur][tt]}, {'0' if j == 0 else ACC[c][tt]}" for c in range(6) for tt in range(4)]
        pre = burst(vm, *BS[j]) if j in BS else []
        lblk = []
        if j < 19:
            lblk += x_reads(XF[nxt], j + 1) + w_reads(WF[nxt], j + 1)
            if OPT['fill']:
                cnt = OPT['fill'] + (1 if j == 0 else 0)
                while cnt and fq and fq[0][3] <= j:
                    it = fq.pop(0); cnt -= 1
                    lblk += x_dma(vm, it[1], it[2]) if it[0] == 'X' else w_dma(it[1])
            if j == 0 and not OPT['fill']: lblk += w_dma(3) + x_dma(vm, 2, 0) + x_dma(vm, 2, 1) + w_dma(4)
            xb = (j - 1) // 2 + 3 if j >= 1 else 99
            if xb <= 9 and not OPT['fill']: lblk += x_dma(vm, xb, (j - 1) % 2)
            if T2 and j in eval(OPT['t2f']): lblk += t2_one(*eval(OPT['t2f'])[j])
            if j == CHK - 2: lblk += init_check_issue(vchk); vm.issue('chk')
            if j + 5 <= 19 and not OPT['fill']: lblk += w_dma(j + 5)
            if j == 10: lblk += p2_setup()
            if j == OPT['pj']: lblk += poison(V(248, 4))
            if j == CHK: hq = b_reg(VmTrack(), 0, 'B') + b_reg(VmTrack(), 1, 'B'); hq = [hq[0:3], hq[3:5], [hq[5]] + hq[6:8], hq[8:10], hq[10:12]]
            JJ = [CHK, CHK + 1, CHK + 2, 15, 18]
            if j in JJ:
                q = JJ.index(j)
                if not hq[q][0].startswith('s_'): lblk.append(f"s_add_u32 s4, {sBo}, {0 if q < 3 else 20480}")
                lblk += hq[q]; vm.issue('B'); vm.issue('B')
            if j == 14: lblk += init_check_issue(vS2, 136); vm.issue('chk2')
            if j == 16: lblk += b_row(vm, sBg, GRP[GL[0]], LR[0], None, 0, True)
            if j == 17: lblk += b_row(vm, sBg, GRP[GL[2]], LR[2], sRX)
        else:
            lblk += b_reg(vm, 2, 'B') + b_reg(vm, 3, 'B')
        step_body(mains, lblk, pre)
    stamp(a, 2)
    a(f"s_setprio {OPT['eprio']}")
    sN = S(82, 2)
    a(f"s_mov_b32 {sN[0]}, {NLOG2E:#x}")
    a(f"s_mov_b32 {sN[1]}, {NLOG2E:#x}")
    a(f"s_lshl_b32 {sT3}, {sRB}, 2")
    a(f"s_add_u32 {sT3}, {sT3}, {sRG}")
    a(f"s_mul_i32 {sT0}, {sT3}, 74")
    a(f"s_mul_i32 {sT1}, {sID}, 3")
    a(f"s_add_u32 {sT0}, {sT0}, {sT1}")
    a(f"s_lshl_b32 {sT0}, {sT0}, 12")
    a(f"s_lshl_b32 {sT1}, {sHI}, 13")
    a(f"s_add_u32 {sT1}, {sT0}, {sT1}")
    a(f"s_lshl_b32 {sT2}, {sHI}, 9")
    a(f"s_add_u32 {sT2}, {sT2}, {sT0}")
    a(f"s_add_u32 {sT2}, {sT2}, 4096")
    a(f"s_lshl_b32 {sFLAG}, {sT3}, 7")
    a(f"s_add_u32 {sFLAG}, {sFLAG}, {FH}")
    a(f"v_lshlrev_b32 {t0}, 4, {lane}")
    a(f"v_and_b32 {t1}, 31, {lane}")
    a(f"v_lshlrev_b32 {t1}, 4, {t1}")
    a(f"v_lshrrev_b32 {t2}, 5, {lane}")
    a(f"v_lshl_add_u32 {t1}, {t2}, 10, {t1}")
    tmp = [V(FB[1] + 4 * i, 4) for i in range(2)]
    outs = [V(FB[1] + 8 + 4 * i, 4) for i in range(6)]
    cnt_ = [0]
    def silu2(G0, U0, G1, U1, o):
        GU = ((G0, U0, tmp[0]), (G1, U1, tmp[1]))
        pk = cnt_[0] >= OPT['npk']; cnt_[0] += 1
        for G, U, T in GU:
            if pk:
                for h in range(2): a(f"v_pk_mul_f32 {T[2*h:2*h+2]}, {G[2*h:2*h+2]}, {sN}")
            else:
                for k in range(4): a(f"v_mul_f32 {T[k]}, {sN[0]}, {G[k]}")
        for G, U, T in GU:
            for k in range(4): a(f"v_exp_f32 {T[k]}, {T[k]}")
        for G, U, T in GU:
            if pk:
                for h in range(2): a(f"v_pk_mul_f32 {G[2*h:2*h+2]}, {G[2*h:2*h+2]}, {U[2*h:2*h+2]}")
            else:
                for k in range(4): a(f"v_mul_f32 {G[k]}, {G[k]}, {U[k]}")
        for G, U, T in GU:
            if pk:
                for h in range(2): a(f"v_pk_add_f32 {T[2*h:2*h+2]}, {T[2*h:2*h+2]}, 1.0 op_sel_hi:[1,0]")
            else:
                for k in range(4): a(f"v_add_f32 {T[k]}, 1.0, {T[k]}")
        for G, U, T in GU:
            for k in range(4): a(f"v_rcp_f32 {T[k]}, {T[k]}")
        for G, U, T in GU:
            if pk:
                for h in range(2): a(f"v_pk_mul_f32 {G[2*h:2*h+2]}, {G[2*h:2*h+2]}, {T[2*h:2*h+2]}")
            else:
                for k in range(4): a(f"v_mul_f32 {G[k]}, {G[k]}, {T[k]}")
        for q, (G, U, T) in enumerate(GU):
            for h in range(2): a(f"v_cvt_pk_bf16_f32 {o[2*q+h]}, {G[2*h]}, {G[2*h+1]}")
    for tt in range(4):
        o = outs[tt]
        silu2(ACC[0][tt], ACC[3][tt], ACC[1][tt], ACC[4][tt], o)
        a(f"buffer_store_dwordx4 {o}, {t0}, {rWS}, {sT1} offen offset:{tt*1024} {ST}")
    for l in q_flag_issue(): a(l)
    for tp in range(2):
        o = outs[4 + tp]
        silu2(ACC[2][2*tp], ACC[5][2*tp], ACC[2][2*tp+1], ACC[5][2*tp+1], o)
        a(f"v_permlane32_swap_b32 {o[0]}, {o[2]}")
        a(f"v_permlane32_swap_b32 {o[1]}, {o[3]}")
        a(f"buffer_store_dwordx4 {o}, {t1}, {rWS}, {sT2} offen offset:{tp*2048} {ST}")
    flag_store(35)
    a("s_waitcnt vmcnt(2)")
    a(f"s_mov_b32 {sPF}, 0")
    a("s_branch P2")

    a.label('R_QKV')
    vm = VmTrack()
    vw = [V(R0), V(R0 + 1), V(R0 + 2)]; wa = V(R0 + 3); pa = V(R0 + 4); vchk = V(R0 + 5); vgw = V(R0 + 6)
    FB = [32, 68]
    XF = [[V(FB[b] + 4 * tt, 4) for tt in range(4)] for b in range(2)]
    WF = [[V(FB[b] + 16 + 4 * c, 4) for c in range(5)] for b in range(2)]
    ACC = [V(104 + 20 * tt, 20) for tt in range(4)]
    pf4 = [V(32 + 4 * i, 4) for i in range(9)] + [V(196, 4)]
    pf2 = [V(200, 2), V(202, 2), V(204, 2), V(206, 2), V(248, 2)]
    PF = [[pf4[2 * t], pf4[2 * t + 1], pf2[t]] for t in range(5)]
    WP = V(184, 4); GWF = V(188, 4); GA = V(192, 4)
    sC0, sC1, sLo, sHi2, sISQ, sHB, sGD = [S(77 + i) for i in range(7)]
    PHW = 135168; PHB = 0; VVB = 90112; PS = 352
    srd(a, rW, pQKV, 640 * 3840)
    srd(a, rA, pPHI, 32 * 800)
    a(f"s_lshl_b32 {sID}, {sT0}, 1"); a(f"s_add_u32 {sID}, {sID}, {sC8}")
    a(f"s_mul_i32 {sC0}, {sID}, 160")
    a(f"s_add_u32 {sC1}, {sC0}, 2560")
    a(f"s_add_u32 {sC0}, {sC0}, 1280")
    a(f"s_lshl_b32 {sHB}, {sID}, 2")
    a(f"s_mul_i32 {sT1}, {sT0}, 320")
    a(f"s_add_u32 {sT2}, {sT1}, 160")
    a(f"s_lshl_b32 {sT3}, {sT0}, 3")
    a(f"s_cmp_eq_u32 {sC8}, 2")
    a(f"s_cselect_b32 {sC0}, {sT1}, {sC0}")
    a(f"s_cselect_b32 {sC1}, {sT2}, {sC1}")
    a(f"s_cselect_b32 {sHB}, {sT3}, {sHB}")
    a(f"s_cselect_b32 {sISQ}, 1, 0")
    a(f"s_bitcmp1_b32 {sWV}, 0")
    a(f"s_cselect_b32 {sLo}, {sC1}, {sC0}")
    a(f"s_cselect_b32 {sHi2}, {sC0}, {sC1}")
    a(f"s_sub_u32 {sHi2}, {sHi2}, 160")
    touch_setup(pQKV, pQKV, 3840, sC0, sC1, 160)
    for l in burst(vm, *BS['p0']): a(l)
    for n in range(3):
        a(f"v_add_u32 {t0}, {64*n}, {lane}")
        a(f"v_mul_u32_u24 {t1}, 205, {t0}")
        a(f"v_lshrrev_b32 {t1}, 12, {t1}")
        a(f"v_mul_u32_u24 {t2}, 20, {t1}")
        a(f"v_sub_u32 {t2}, {t0}, {t2}")
        a(f"v_cmp_le_u32 vcc, 10, {t2}")
        a(f"v_mov_b32 {t3}, {sLo}")
        a(f"v_mov_b32 {t4}, {sHi2}")
        a(f"v_cndmask_b32 {t3}, {t3}, {t4}, vcc")
        a(f"v_mul_u32_u24 {t1}, 3840, {t1}")
        a(f"v_lshl_add_u32 {t1}, {t2}, 4, {t1}")
        a(f"v_add_u32 {vw[n]}, {t1}, {t3}")
        if n: a(f"v_subrev_u32 {vw[n]}, {1024*n}, {vw[n]}")
    a(f"s_mul_i32 {sWK}, {sWV}, {8*3840}")
    a(f"s_mul_i32 {sMW}, {sWV}, 2560")
    def w_dma2(blk):
        l = [f"s_add_u32 m0, {sMW}, {WB + (blk % 3) * 20480}"] + ([f"s_add_u32 {sWK}, {sWK}, 245760"] if blk else []) + [
             f"buffer_load_dwordx4 {vw[0]}, {rW}, {sWK} offen {OPT['wfl']} lds",
             f"buffer_load_dwordx4 {vw[1]}, {rW}, {sWK} offen offset:1024 {OPT['wfl']} lds",
             "s_mov_b32 exec_hi, 0\n"
             f"buffer_load_dwordx4 {vw[2]}, {rW}, {sWK} offen offset:2048 {OPT['wfl']} lds\n"
             "s_mov_b32 exec_hi, -1"]
        for _ in range(3): vm.issue(('W', blk))
        return l
    a(f"v_lshlrev_b32 {t0}, 4, {tid}")
    a(f"s_mul_i32 {sT0}, {sHB}, 800")
    a(f"v_add_u32 {t0}, {sT0}, {t0}")
    a(f"buffer_load_dwordx4 {WP}, {t0}, {rA}, 0 offen"); vm.issue(('P', 0))
    if OPT['sb1'] and not OPT['x0e']: a("s_barrier")
    for l in x_dma(vm, 0, 0) + x_dma(vm, 0, 1) + w_dma2(0): a(l)
    x_addr_setup()
    a(f"v_lshl_add_u32 {t0}, {vqd}, 3, {vr}")
    a(f"v_mul_u32_u24 {t0}, 320, {t0}")
    a(f"v_and_b32 {t1}, 1, {vqd}")
    a(f"v_xor_b32 {t1}, {sHI}, {t1}")
    a(f"v_mul_u32_u24 {t1}, 160, {t1}")
    a(f"v_mul_u32_u24 {t2}, 40, {vc}")
    a(f"v_add3_u32 {t0}, {t0}, {t1}, {t2}")
    a(f"v_add_u32 {wa}, {WB}, {t0}")
    a(f"s_and_b32 {sT0}, {sHI}, {sISQ}")
    a(f"s_mul_i32 {sT0}, {sT0}, 3200")
    a(f"s_add_u32 {sT0}, {sT0}, {PHW}")
    a(f"v_mul_u32_u24 {t0}, 800, {vqd}")
    a(f"v_add_u32 {t0}, {sT0}, {t0}")
    a(f"v_mov_b32 {t1}, {ZERO}")
    a(f"v_cmp_eq_u32 vcc, {vc}, {vqd}")
    a(f"v_cndmask_b32 {t0}, {t1}, {t0}, vcc")
    a(f"v_mul_u32_u24 {t1}, 40, {vr}")
    a(f"v_add_u32 {pa}, {t0}, {t1}")
    def w_reads2(WFb, step):
        blk, kk = step // 2, step % 2
        return [f"ds_read_b64_tr_b16 {WFb[t][2*rd:2*rd+2]}, {wa} offset:{(blk % 3) * 20480 + kk * 10240 + rd * 1280 + 8 * t}" for t in range(5) for rd in range(2)]
    def t2b_emit():
        if T2:
            for b0 in eval(OPT['t2b']):
                for l in t2_all(b0): a(l)
                vm.issue('T')
    if OPT['t2pos'] == 1:
        if OPT['sb2']: a("s_barrier")
        t2b_emit()
    n = vm.wait_for(lambda t: t in (('X', 0), ('W', 0)))
    a(f"s_waitcnt vmcnt({n})")
    a("s_barrier")
    stamp(a, 1)
    for l in x_reads(XF[0], 0) + w_reads2(WF[0], 0): a(l)
    if OPT['fill'] == 0:
        for l in x_dma(vm, 1, 0) + x_dma(vm, 1, 1) + w_dma2(1): a(l)
        if OPT['t2pos'] == 2: t2b_emit()
    fq = []
    for b in range(1, 10):
        fq += [('X', b, max(0, 2*(b-3)+1)), ('W', b, max(0, 2*(b-3)+1))]
    for j in range(20):
        cur, nxt = j & 1, (j & 1) ^ 1
        if j % 2 == 1:
            if j < 19:
                n = vm.wait_for(lambda t: t in (('X', (j + 1) // 2), ('W', (j + 1) // 2)) or (j == 17 and t == 'chk'))
                a(f"s_waitcnt vmcnt({n}) lgkmcnt(0)")
            else: a("s_waitcnt lgkmcnt(0)")
            if j == 17: init_check(vchk)
            a("s_barrier")
        else:
            a("s_waitcnt lgkmcnt(0)")
            if OPT['pp'] or OPT['qbar']: a("s_barrier")
        sstamp(a, j)
        mains = [f"v_mfma_f32_16x16x32_bf16 {ACC[tt][4*t:4*t+4]}, {WF[cur][t]}, {XF[cur][tt]}, {'0' if j == 0 else ACC[tt][4*t:4*t+4]}" for t in range(5) for tt in range(4)]
        pre = burst(vm, *BS[j]) if j in BS else []
        lblk = []
        if j < 19:
            lblk += x_reads(XF[nxt], j + 1) + w_reads2(WF[nxt], j + 1)
            if OPT['fill']:
                cnt = 2 if j in (0, 1, 3, 5) else 1
                while cnt and fq and fq[0][2] <= j:
                    it = fq.pop(0); cnt -= 1
                    lblk += x_dma(vm, it[1], 0) + x_dma(vm, it[1], 1) if it[0] == 'X' else w_dma2(it[1])
            if j == 0 and not OPT['fill']: lblk += x_dma(vm, 2, 0) + x_dma(vm, 2, 1) + w_dma2(2)
            xb = (j - 1) // 2 + 3 if j >= 1 else 99
            if xb <= 9 and not OPT['fill']:
                if j % 2 == 1: lblk += x_dma(vm, xb, 0) + x_dma(vm, xb, 1)
                else: lblk += w_dma2(xb)
            if T2 and j in eval(OPT['t2q']): lblk += t2_one(*eval(OPT['t2q'])[j])
            if j == 15: lblk += init_check_issue(vchk); vm.issue('chk')
            if j == 17:
                lblk += [f"v_lshlrev_b32 {t0}, 4, {tid}", f"v_add_u32 {t0}, {PHW}, {t0}", f"ds_write_b128 {t0}, {WP}"]
            if j == 10: lblk += p2_setup()
            if j == 17: lblk += poison(V(208, 4))

        else:
            for t in range(5):
                for s in range(3):
                    for r_ in range(2 if s < 2 else 1):
                        lblk.append(f"ds_read_b64_tr_b16 {PF[t][s][2*r_:2*r_+2]}, {pa} offset:{s*320 + r_*160 + t*8}")
        step_body(mains, lblk, pre)
    stamp(a, 2)
    a("s_setprio 2")
    QB = V(68, 40); P = V(108, 20); E = V(128, 40); O = V(168, 20); M = V(250, 4); T = V(188, 4); ONE = V(192, 2)
    sCNT = S(8); sOUT = S(9)
    def cvt_tile(dst, tt):
        for i in range(10): a(f"v_cvt_pk_bf16_f32 {dst[i]}, {ACC[tt][2*i]}, {ACC[tt][2*i+1]}")
    def pk_list(q, P=P):
        l = []
        for s_ in range(3):
            for t in range(5):
                d = P[4*t:4*t+4]
                if s_ < 2: l.append(f"v_mfma_f32_16x16x32_bf16 {d}, {PF[t][s_]}, {q[4*s_:4*s_+4]}, {'0' if s_ == 0 else d}")
                else: l.append(f"v_mfma_f32_16x16x16_bf16 {d}, {PF[t][s_]}, {q[8:10]}, {d}")
        return l
    a(f"s_lshl_b32 {sT3}, {sRB}, 2")
    a(f"s_add_u32 {sT3}, {sT3}, {sRG}")
    a(f"s_cmp_eq_u32 {sISQ}, 0")
    a("s_cbranch_scc1 R_KV")
    for tt in range(4): cvt_tile(QB[10*tt:10*tt+10], tt)
    a("s_waitcnt lgkmcnt(0)")
    PT = [V(108 + 20*i, 20) for i in range(4)]
    a(f"s_lshr_b32 {sT1}, {sHB}, 2")
    a(f"s_add_u32 {sT1}, {sT1}, {sHI}")
    a(f"s_lshl_b32 {sOUT}, {sT3}, 3")
    a(f"s_add_u32 {sOUT}, {sOUT}, {sT1}")
    a(f"s_mul_i32 {sOUT}, {sOUT}, 10240")
    a(f"s_add_u32 {sOUT}, {sOUT}, {PQ}")
    a(f"s_add_u32 {sT0}, {sOUT}, 8192")
    a(f"s_lshl_b32 {sFLAG}, {sT3}, 7")
    a(f"s_add_u32 {sFLAG}, {sFLAG}, {FH + 4}")
    QO = [V(208 + 8*i, 8) for i in range(4)]; QT = [V(240, 4), V(244, 4)]
    def q_out(tt):
        l = [f"v_cvt_pk_bf16_f32 {QO[tt][i] if i < 8 else QT[tt//2][2*(tt%2) + i - 8]}, {PT[tt][2*i]}, {PT[tt][2*i+1]}" for i in range(10)]
        for h in range(2): l.append(f"buffer_store_dwordx4 {QO[tt][4*h:4*h+4]}, {vo if tt < 2 else vo4}, {rWS}, {sOUT} offen offset:{(tt%2)*2048 + h*1024} {ST}")
        if tt % 2: l.append(f"buffer_store_dwordx4 {QT[tt//2]}, {vo}, {rWS}, {sT0} offen offset:{(tt//2)*1024} {ST}")
        return l
    for tt in range(4):
        side = q_out(tt - 1) if tt else []
        for i, l in enumerate(pk_list(QB[10*tt:10*tt+10], PT[tt])):
            a(l)
            if i >= 2 and side: a(side.pop(0))
    for l in q_out(3): a(l)
    flag_store(7)
    a(f"v_mov_b32 {vFQ}, 0")
    a(f"s_mov_b32 {sPF}, 6")
    a("s_branch P2")
    a.label('R_KV')
    a(f"s_lshl_b32 {sT1}, {sRG}, 1"); a(f"s_add_u32 {sT0}, {sT1}, 1"); a(f"s_mul_i32 {sT0}, {sT0}, {32*PS}")
    a(f"v_add_u32 {t0}, {sT0}, {vo}")
    a(f"s_mov_b32 {sCNT}, 2")
    a(f"s_cmp_eq_u32 {sHI}, 1")
    a("s_cbranch_scc1 R_V")
    cvt_tile(QB[0:10], 0)
    cvt_tile(QB[20:30], 2); cvt_tile(QB[30:40], 3)
    for i in range(5): a(f"ds_write_b128 {t0}, {QB[20+4*i:24+4*i]} offset:{i*1024}")
    cvt_tile(QB[10:20], 1)
    a("s_waitcnt lgkmcnt(0)")
    a("s_barrier")
    for l in pk_list(QB[0:10]): a(l)
    a("s_branch R_KV2")
    a.label('R_V')
    VBt = {3: V(88, 10), 0: V(98, 10), 1: V(168, 10), 2: V(178, 10)}
    for tt in (3, 0, 1, 2): cvt_tile(VBt[tt], tt)
    a(f"s_mul_i32 {sT2}, {sRG}, {64*176}")
    a(f"s_add_u32 {sT2}, {sT2}, {VVB}")
    a(f"v_mul_u32_u24 {t2}, 176, {vl15}")
    a(f"v_add_u32 {t1}, {sT2}, {t2}")
    a(f"v_mul_u32_u24 {t3}, 40, {vqd}")
    a(f"v_add_u32 {t2}, {t1}, {t3}")
    a(f"v_mov_b32 {ONE[0]}, 0x3f80")
    a(f"v_mov_b32 {ONE[1]}, 0")
    a("s_barrier")
    for i in range(5): a(f"ds_read_b128 {QB[4*i:4*i+4]}, {t0} offset:{i*1024}")
    side = []
    for tt in (3, 0, 1, 2):
        for i in range(5): side.append(f"ds_write_b64 {t2}, {VBt[tt][2*i:2*i+2]} offset:{tt*2816 + 8*i}")
        side.append(f"ds_write_b64 {t1}, {ONE} offset:{tt*2816 + 160}")
    for i in range(9): a(side.pop(0))
    a("s_waitcnt lgkmcnt(9)")
    for l in pk_list(QB[0:10]): a(l); a(side.pop(0))
    a.label('R_KV2')
    a(f"s_add_u32 {sT1}, {sT1}, {sHI}"); a(f"s_mul_i32 {sT1}, {sT1}, {32*PS}")
    a(f"v_mul_u32_u24 {t4}, {PS}, {vl15}")
    a(f"v_mul_u32_u24 {t3}, 80, {vqd}")
    a(f"v_add3_u32 {t4}, {t4}, {t3}, {sT1}")
    stamp(a, 12)
    for u in range(2):
        if u == 0:
            bl = b_reg(vm, 0, 'B') + b_reg(vm, 1, 'B'); pl = pk_list(QB[10:20])
            sd = [pl[i] + ("\n" + bl[i] if i < len(bl) else "") for i in range(15)]
        else: sd = b_reg(vm, 2, 'B') + b_reg(vm, 3, 'B')
        softmax_unit(a, P, E, M, T, O, sd + ["s_waitcnt lgkmcnt(0)"])
        for s_ in range(5): a(f"ds_write_b128 {t4}, {O[4*s_:4*s_+4]} offset:{PHB + u*16*PS + 16*s_}")
    a(f"v_lshl_add_u32 {t0}, {vqd}, 2, {vr}")
    a(f"v_mul_u32_u24 {t1}, {PS}, {t0}")
    a(f"s_mul_i32 {sT0}, {sRG}, 80")
    a(f"v_lshl_add_u32 {t1}, {vc}, 3, {t1}")
    a(f"v_add_u32 {t1}, {sT0}, {t1}")
    a(f"v_add_u32 {t2}, {128*PS}, {t1}")
    a(f"v_mul_u32_u24 {t0}, 176, {t0}")
    a(f"s_mul_i32 {sT0}, {sRG}, 40")
    a(f"s_mul_i32 {sT1}, {sHI}, 24")
    a(f"s_add_u32 {sT0}, {sT0}, {sT1}")
    a(f"v_lshl_add_u32 {t3}, {vc}, 3, {sT0}")
    a(f"v_mul_u32_u24 {t4}, {sHI}, {vc}")
    a(f"v_cmp_lt_u32 vcc, 1, {t4}")
    a(f"v_mov_b32 {t4}, 160")
    a(f"v_cndmask_b32 {t3}, {t3}, {t4}, vcc")
    a(f"v_add_u32 {t3}, {VVB}, {t3}")
    a(f"v_add_u32 {t3}, {t0}, {t3}")
    stamp(a, 13)
    a("s_waitcnt lgkmcnt(0)")
    a("s_barrier")
    stamp(a, 14)
    a(f"s_lshl_b32 {sFLAG}, {sID}, 7"); a(f"s_add_u32 {sFLAG}, {sFLAG}, {FK}")
    def k_hint():
        a("v_mov_b32 v29, 1"); a("v_mov_b32 v11, 0")
        a(f"s_cmp_lg_u32 {sWV}, 7"); a("s_cbranch_scc1 KH1")
        a("s_mov_b64 exec, 1"); a(f"buffer_atomic_add v29, v11, {rWS}, {sFLAG} offen sc0 sc1"); a("s_mov_b64 exec, -1")
        a.label('KH1')
    if OPT['kh'] == 0: k_hint()
    for l in q_flag_issue(): a(l)
    KA = [[V(72 + (b*4 + f)*4, 4) for f in range(4)] for b in range(3)]
    KD = [V(128 + 4*f, 4) for f in range(3)]
    def kv_reads(b, s):
        l = []
        for rd in range(2):
            l.append(f"ds_read_b64_tr_b16 {KA[b][3][2*rd:2*rd+2]}, {t3} offset:{s*5632 + rd*2816}")
        for f in range(3):
            for rd in range(2):
                l.append(f"ds_read_b64_tr_b16 {KA[b][f][2*rd:2*rd+2]}, {t1 if s < 4 else t2} offset:{(s % 4)*32*PS + rd*16*PS + f*32}")
        return l
    allr = [l for s in range(8) for l in kv_reads(s % 3, s)]
    pos = 0
    for s in range(8):
        for f in range(3):
            needr = s * 8 + 2 + 2 * (f + 1)
            lim = min(len(allr), needr + 12, (s + 2) * 8 + (2 + 2 * f if False else 0) + 8 - 8 + 0) if False else min(len(allr), needr + 12)
            lim = min(lim, (s + 3) * 8)
            while pos < lim: a(allr[pos]); pos += 1
            a(f"s_waitcnt lgkmcnt({pos - needr})")
            a(f"v_mfma_f32_16x16x32_bf16 {KD[f]}, {KA[s%3][f]}, {KA[s%3][3]}, {'0' if s == 0 else KD[f]}")
    stamp(a, 15)
    a(f"s_add_u32 {sT0}, {sHB}, {sRG}")
    a(f"s_lshl_b32 {sT0}, {sT0}, 1")
    a(f"s_add_u32 {sT0}, {sT0}, {sHI}")
    a(f"s_mul_i32 {sT0}, {sT0}, 3072")
    a(f"s_add_u32 {sT0}, {sT0}, {KVACC}")
    if OPT['kh'] == 1: k_hint()
    def k_go(n):
        a(f"s_cmp_lg_u32 {sWV}, 7"); a("s_cbranch_scc1 KH2")
        a(f"s_waitcnt vmcnt({n})")
        a("v_cmp_eq_u32 vcc, 7, v29"); a(f"s_add_u32 s4, {sFLAG}, {GOD}"); a("s_and_b64 exec, vcc, 1")
        a(f"buffer_store_dword v29, v11, {rWS}, s4 offen sc1"); a("s_mov_b64 exec, -1")
        a.label('KH2')
    if OPT['kh'] == 0: k_go(0)
    a(f"v_lshlrev_b32 {t2}, 2, {lane}")
    a(f"v_cmp_eq_u32 vcc, 15, {vl15}")
    for f in range(3):
        for j in range(4): a(f"v_cndmask_b32 {KD[f][j]}, {KD[f][j]}, 1.0, vcc")
    for f in range(3):
        if f == 2: a("s_mov_b32 exec_hi, 0")
        for j in range(4):
            a(f"buffer_atomic_add_f32 {KD[f][j]}, {t2}, {rWS}, {sT0} offen offset:{f*1024 + j*256} {OPT['atf']}")
    a("s_mov_b32 exec_hi, -1")
    if OPT['kh'] == 1: k_go(12)
    a("s_waitcnt vmcnt(12)")
    flag_store(-1)
    a(f"s_mov_b32 {sPF}, 4")
    a("s_branch P2")

    a.label('R_SPARE')
    sSP, sU, sSO, sST = S(77), S(78), S(79), S(80)
    va = Alloc('v', 176, 250)
    vf = [va() for _ in range(5)]; vat = [va() for _ in range(5)]
    rf = [va() for _ in range(5)]; rat = [va(), va()]
    vst = va(); vst4 = va()
    FR = [[va(4) for _ in range(5)] for b in range(2)]
    Z4 = va(4)
    NT = OPT['spnt']
    if T2:
        for b0 in eval(OPT['t2b']):
            for l in t2_all(b0): a(l)
    srd(a, rA, pWD, 1728 * 1280)
    srd(a, rB, pWO, 640 * 1280)
    a(f"s_lshr_b32 {sSP}, {sT0}, 1")
    a(f"s_lshl_b32 {sSP}, {sSP}, 3")
    a(f"s_add_u32 {sSP}, {sSP}, {sRB}")
    a(f"s_lshl_b32 {sT0}, {sWV}, 2")
    a(f"s_mul_i32 {sT1}, {sWV}, 20")
    for n in range(5):
        a(f"v_add_u32 {t0}, {64*n}, {lane}")
        a(f"v_mul_u32_u24 {t1}, 205, {t0}")
        a(f"v_lshrrev_b32 {t1}, 14, {t1}")
        a(f"v_mul_u32_u24 {t2}, 80, {t1}")
        a(f"v_sub_u32 {t2}, {t0}, {t2}")
        a(f"v_add_u32 {t1}, {sT0}, {t1}")
        a(f"v_and_b32 {t3}, 7, {t1}")
        a(f"v_lshlrev_b32 {t3}, 1, {t3}")
        a(f"v_xor_b32 {t2}, {t2}, {t3}")
        a(f"v_mul_u32_u24 {t1}, 1280, {t1}")
        a(f"v_lshl_add_u32 {vf[n]}, {t2}, 4, {t1}")
        if n % 4: a(f"v_subrev_u32 {vf[n]}, {1024*(n%4)}, {vf[n]}")
    a(f"s_mul_i32 {sM}, {sWV}, 5120")
    def u_dma(buf, typ):
        if typ == 'F':
            a(f"s_mul_i32 {sSO}, {sU}, 40960")
            vv, rr = vf, rA
        else:
            a(f"s_sub_u32 {sT2}, {sU}, 54")
            a(f"s_mul_i32 {sT3}, {sT2}, 52")
            a(f"s_lshr_b32 {sT3}, {sT3}, 8")
            a(f"s_mul_i32 {sSO}, {sT3}, {160*1280 - 5*256}")
            a(f"s_lshl_b32 {sT2}, {sT2}, 8")
            a(f"s_add_u32 {sSO}, {sSO}, {sT2}")
            vv, rr = vat, rB
        a(f"s_add_u32 m0, {sM}, {buf*40960}")
        for n in range(4):
            a(f"buffer_load_dwordx4 {vv[n]}, {rr}, {sSO} offen offset:{n*1024} {NT} lds")
        a(f"s_add_u32 m0, {sM}, {buf*40960 + 4096}")
        a(f"buffer_load_dwordx4 {vv[4]}, {rr}, {sSO} offen {NT} lds")
    def dyn(it, fn):
        if it == 4:
            a(f"s_add_u32 {sU}, {sSP}, 64"); a(f"s_min_u32 {sU}, {sU}, 73"); fn('A'); return
        a(f"s_add_u32 {sU}, {sSP}, {16*it}")
        if it <= 2: fn('F')
        else:
            l1, l2 = a.newlabel('SP'), a.newlabel('SP')
            a(f"s_cmp_ge_u32 {sU}, 54"); a(f"s_cbranch_scc1 {l1}")
            fn('F'); a(f"s_branch {l2}"); a.label(l1); fn('A'); a.label(l2)
    for it in range(3): dyn(it, lambda typ: u_dma(it, typ))
    a(f"v_lshlrev_b32 {t0}, 4, {tid}")
    for i in range(4): a(f"v_mov_b32 {Z4[i]}, 0")
    a(f"s_mul_i32 {sT2}, {sSP}, 13568")
    a(f"s_add_u32 {sT2}, {sT2}, {KVACC}")
    a(f"buffer_store_dwordx4 {Z4}, {t0}, {rWS}, {sT2} offen {ST}")
    a(f"s_add_u32 {sT2}, {sT2}, {13568 - 8192}")
    a(f"buffer_store_dwordx4 {Z4}, {t0}, {rWS}, {sT2} offen {ST}")
    for n in range(5):
        a(f"v_add_u32 {t1}, {4*n}, {vqd}")
        a(f"v_add_u32 {t1}, {sT1}, {t1}")
        a(f"v_and_b32 {t3}, 7, {t1}")
        a(f"v_lshlrev_b32 {t3}, 1, {t3}")
        a(f"v_xor_b32 {t2}, {vl15}, {t3}")
        a(f"v_mul_u32_u24 {t1}, 1280, {t1}")
        a(f"v_lshl_add_u32 {vat[n]}, {t2}, 4, {t1}")
        if n % 4: a(f"v_subrev_u32 {vat[n]}, {1024*(n%4)}, {vat[n]}")
    a(f"v_lshl_add_u32 {t0}, {vqd}, 2, {vr}")
    a(f"v_and_b32 {t1}, 7, {t0}")
    a(f"v_lshlrev_b32 {t1}, 1, {t1}")
    a(f"v_mul_u32_u24 {t0}, 1280, {t0}")
    a(f"v_and_b32 {t2}, 1, {vc}")
    a(f"v_lshl_add_u32 {t0}, {t2}, 3, {t0}")
    a(f"v_lshrrev_b32 {t3}, 1, {vc}")
    a(f"s_mul_i32 {sT0}, {sWV}, 10")
    a(f"v_add_u32 {t4}, {sT0}, {t3}")
    for j in range(5):
        a(f"v_add_u32 {rf[j]}, {2*j}, {t4}")
        a(f"v_xor_b32 {rf[j]}, {rf[j]}, {t1}")
        a(f"v_lshl_add_u32 {rf[j]}, {rf[j]}, 4, {t0}")
    a(f"v_mul_u32_u24 {t0}, 20, {vqd}")
    a(f"v_add_u32 {t0}, {t0}, {vr}")
    a(f"v_lshlrev_b32 {t0}, 8, {t0}")
    a(f"v_lshl_add_u32 {t0}, {t2}, 3, {t0}")
    a(f"s_lshl_b32 {sT0}, {sWV}, 1")
    a(f"v_add_u32 {t4}, {sT0}, {t3}")
    a(f"v_xor_b32 {t4}, {t4}, {t1}")
    a(f"v_lshl_add_u32 {rat[0]}, {t4}, 4, {t0}")
    a(f"v_xor_b32 {rat[1]}, 128, {rat[0]}")
    a(f"v_lshlrev_b32 {vst}, 4, {lane}")
    a(f"v_add_u32 {vst4}, 4096, {vst}")
    def u_proc(buf, typ, F):
        if typ == 'F':
            for j in range(5):
                a(f"v_add_u32 {t0}, {buf*40960}, {rf[j]}")
                for rd in range(2):
                    a(f"ds_read_b64_tr_b16 {F[j][2*rd:2*rd+2]}, {t0} offset:{rd*20480}")
            a(f"s_mul_i32 {sST}, {sWV}, 74")
            a(f"s_add_u32 {sST}, {sST}, {sU}")
            a(f"s_mul_i32 {sST}, {sST}, 5120")
            a(f"s_add_u32 {sST}, {sST}, {BP}")
            a("s_waitcnt lgkmcnt(0)")
            for j in range(5):
                if j < 4: a(f"buffer_store_dwordx4 {F[j]}, {vst}, {rWS}, {sST} offen offset:{j*1024} {ST}")
                else: a(f"buffer_store_dwordx4 {F[j]}, {vst4}, {rWS}, {sST} offen {ST}")
        else:
            bases = [(0, 4), (8, 12), (16, 96), (80, 84), (88, 92)]
            a(f"v_add_u32 {t0}, {buf*40960}, {rat[0]}")
            a(f"v_add_u32 {t1}, {buf*40960}, {rat[1]}")
            a(f"v_lshrrev_b32 {t4}, 1, {vqd}"); a(f"v_mul_u32_u24 {t4}, {40*256}, {t4}"); a(f"v_add_u32 {t4}, {t4}, {t0}")
            for s5 in range(5):
                for rd in range(2):
                    b = bases[s5][rd]
                    if s5 == 2: a(f"ds_read_b64_tr_b16 {F[s5][2*rd:2*rd+2]}, {t4} offset:{(16 + 40*rd)*256}")
                    else: a(f"ds_read_b64_tr_b16 {F[s5][2*rd:2*rd+2]}, {t1 if b % 8 else t0} offset:{b*256}")
            a(f"s_sub_u32 {sT2}, {sU}, 54")
            a(f"s_mul_i32 {sT3}, {sT2}, 52")
            a(f"s_lshr_b32 {sT3}, {sT3}, 8")
            a(f"s_mul_i32 {sT0}, {sT3}, 5")
            a(f"s_sub_u32 {sT2}, {sT2}, {sT0}")
            a(f"s_lshl_b32 {sT2}, {sT2}, 3")
            a(f"s_add_u32 {sT2}, {sT2}, {sWV}")
            a(f"s_mul_i32 {sT1}, {sT2}, 52")
            a(f"s_lshr_b32 {sT1}, {sT1}, 8")
            a(f"s_mul_i32 {sST}, {sT1}, 5")
            a(f"s_sub_u32 {sT2}, {sT2}, {sST}")
            a(f"s_mul_i32 {sST}, {sT1}, 74")
            a(f"s_add_u32 {sST}, {sST}, {sT0}")
            a(f"s_add_u32 {sST}, {sST}, 54")
            a(f"s_mul_i32 {sST}, {sST}, 5120")
            a(f"s_lshl_b32 {sT2}, {sT2}, 10")
            a(f"s_add_u32 {sST}, {sST}, {sT2}")
            a(f"s_add_u32 {sST}, {sST}, {BP}")
            a("s_waitcnt lgkmcnt(0)")
            for s5 in range(5):
                a(f"buffer_store_dwordx4 {F[s5]}, {vst}, {rWS}, {sST} offen {ST}")
                if s5 < 4: a(f"s_add_u32 {sST}, {sST}, 5120")
    vm = VmTrack()
    for t in ['D0']*5 + ['D1']*5 + ['D2']*5 + ['Z']*2: vm.issue(t)
    def sp_signal(k):
        lsk = a.newlabel('SPD')
        a(f"s_cmp_lg_u32 {sWV}, 7"); a(f"s_cbranch_scc1 {lsk}")
        a(f"v_mov_b32 {t2}, 0"); a(f"v_mov_b32 {t3}, 1")
        a("s_mov_b64 exec, 1")
        a(f"buffer_atomic_add {t3}, {t2}, {rDBG}, 0 offen offset:{4*k} sc0 sc1")
        a("s_waitcnt vmcnt(0)")
        a(f"v_cmp_eq_u32 vcc, 15, {t3}")
        a("s_and_b64 exec, exec, vcc")
        a(f"buffer_store_dword {t3}, {t2}, {rDBG}, 0 offen offset:{128 + 4*k} sc1")
        a("s_mov_b64 exec, -1")
        a.label(lsk)
    for it in range(5):
        n = vm.wait_for(lambda t: t == f'D{it}' or (it == 3 and t == 'S2') or (it == 2 and t == 'S1'))
        a(f"s_waitcnt vmcnt({n})")
        a("s_barrier")
        if it == 2: sp_signal(0); stamp(a, 1)
        if it == 3: sp_signal(2)
        dyn(it, lambda typ: u_proc(it % 3, typ, FR[it & 1]))
        for _ in range(5): vm.issue(f'S{it}')
        if it == 2 and T2 and OPT['t2s']:
            for l in t2_one(OPT['t2s'], 7): a(l)
        if it in (1, 2):
            dyn(it + 2, lambda typ: u_dma(it - 1, typ))
            for _ in range(5): vm.issue(f'D{it+2}')
    a("s_waitcnt vmcnt(0)")
    a("s_barrier")
    sp_signal(1)
    stamp(a, 2)
    GW = [V(72 + 4*i, 4) for i in range(5)]
    GX = [[V(96 + (g*5 + i)*4, 4) for i in range(5)] for g in range(4)]
    GA = [V(92 + g) for g in range(4)]
    srd(a, rW, pGW, 1280)
    a(f"v_lshlrev_b32 {t0}, 4, {vl15}")
    for i in range(5): a(f"buffer_load_dwordx4 {GW[i]}, {t0}, {rW}, 0 offen offset:{i*256}")
    a(f"v_mul_u32_u24 {t1}, 1280, {vqd}")
    a(f"v_add_u32 {t0}, {t0}, {t1}")
    a(f"s_lshl_b32 {sT3}, {sSP}, 3")
    a(f"s_add_u32 {sT3}, {sT3}, {sWV}")
    a(f"s_mul_i32 {sT2}, {sT3}, {16*1280}")
    for g in range(4):
        for i in range(5): a(f"buffer_load_dwordx4 {GX[g][i]}, {t0}, {rX}, {sT2} offen offset:{i*256}")
        if g < 3: a(f"s_add_u32 {sT2}, {sT2}, {4*1280}")
    for g in range(4): a(f"v_mov_b32 {GA[g]}, 0")
    init_poll(a, t1, 128)
    for i in range(5):
        for k in range(4):
            for g in range(4): a(f"v_dot2c_f32_bf16 {GA[g]}, {GX[g][i][k]}, {GW[i][k]}")
    for sh in (8, 4, 2, 1):
        for g in range(4): a(f"v_add_f32_dpp {GA[g]}, {GA[g]}, {GA[g]} row_ror:{sh} row_mask:0xf bank_mask:0xf")
    for g in range(4): a(f"v_mul_f32 {GA[g]}, {LOG2E:#x}, {GA[g]}")
    for g in range(4): a(f"v_min_f32 {GA[g]}, 0x42a00000, {GA[g]}")
    for g in range(4): a(f"v_exp_f32 {GA[g]}, {GA[g]}")
    a(f"v_mov_b32 {t2}, {GA[0]}")
    for g in range(1, 4):
        a(f"v_cmp_eq_u32 vcc, {g}, {vl15}"); a(f"v_cndmask_b32 {t2}, {t2}, {GA[g]}, vcc")
    a(f"v_lshl_add_u32 {t0}, {vl15}, 2, {vqd}")
    a(f"v_lshlrev_b32 {t3}, 2, {t0}")
    a(f"s_lshl_b32 {sT2}, {sT3}, 6"); a(f"s_add_u32 {sT2}, {sT2}, {GOFF}")
    a("s_mov_b32 exec_lo, 0x000f000f"); a("s_mov_b32 exec_hi, 0x000f000f")
    a(f"buffer_store_dword {t2}, {t3}, {rWS}, {sT2} offen {ST}")
    a("s_mov_b64 exec, -1")
    a(f"s_lshr_b32 {sFLAG}, {sT3}, 2"); a(f"s_lshl_b32 {sFLAG}, {sFLAG}, 7"); a(f"s_add_u32 {sFLAG}, {sFLAG}, {FH + 12}")
    flag_store(3)
    a(f"v_mov_b32 {vFQ}, 0")

    vm = VmTrack()
    a(f"s_mov_b32 {sPF}, 7")
    a.label('P2')
    stamp(a, 3)
    a(f"s_bitcmp0_b32 {sPF}, 0"); a("s_cbranch_scc1 P2_E1")
    for l in p2_setup() + poison(V(208, 4)): a(l)
    a.label('P2_E1')
    vG = V(16, 4); vz = V(11); ka = V(12); kw = V(13); vbl = V(15); vcn = V(14)
    ACC = [[V(72 + (tt * 5 + j) * 4, 4) for j in range(5)] for tt in range(4)]
    ARl = [V(152 + 4 * i, 4) for i in range(14)] + [V(248, 4), V(24, 4)]
    AR = [ARl[4*b:4*b+4] for b in range(4)]
    sFHo = S(78)
    rOUT = rX
    if OPT['noa'] == 1: srd(a, rA, pWS, 0)
    a(f"v_mov_b32 {vz}, 0")
    a(f"v_mov_b32 {vcn}, {CNT}")
    a(f"v_add_u32 {vbl}, {sLC}, {vo}")
    vbl2 = V(23)
    a(f"v_add_u32 {vbl2}, {3*20480}, {vbl}")
    def lrow(row, j):
        return (vbl, row*20480 + j*1024) if row < 3 else (vbl2, (row-3)*20480 + j*1024)
    def a_loads(i, tag, vts=None, r=None):
        b = i % 4; r = r or rWS
        if OPT['noa'] == 1: r = rA
        if OPT['noa'] == 2: return [f"s_mov_b32 {sT0}, {sAo}"] + [(f"buffer_load_dwordx4 {AR[b][tt]}, {vo}, {r}, {sT0} offen offset:{tt*1024} {LD}", vm.issue(tag))[0] for tt in range(4)]
        l = [f"s_add_u32 {sT0}, {sAo}, {((i*16384 if i < 4 else CA0 + (i-4)*16384) if vts else GRP[i]*16384)}"]
        for tt in range(4):
            if vts: l.append(f"buffer_load_dwordx4 {AR[b][tt]}, {vts[tt]}, {r}, {sT0} offen {LD}")
            else: l.append(f"buffer_load_dwordx4 {AR[b][tt]}, {vo}, {r}, {sT0} offen offset:{tt*1024} {LD}")
            vm.issue(tag)
        return l
    def b_fromlds(i, row):
        return ["ds_read_b128 %s, %s offset:%d" % ((BR[i % 4][j],) + lrow(row, j)) for j in range(5)]
    def mm(b, zero, side=[], every=2):
        side = list(side)
        for j in range(5):
            for tt in range(4):
                d = ACC[tt][j]
                a(f"v_mfma_f32_16x16x32_bf16 {d}, {BR[b][j]}, {AR[b][tt]}, {'0' if tt in zero else d}")
                while side and side[0].startswith('s_'): a(side.pop(0))
                if side and tt % every == every - 1: a(side.pop(0))
        for l in side: a(l)
    def g_load():
        a(f"s_lshl_b32 {sT0}, {sR6}, 8"); a(f"s_add_u32 {sT0}, {sT0}, {GOFF}")
        a(f"v_lshlrev_b32 {t0}, 4, {vl15}")
        a(f"buffer_load_dwordx4 {vG}, {t0}, {rWS}, {sT0} offen {LD}")
    def lds_signal(off):
        a(f"v_mov_b32 {t1}, 1")
        a("s_waitcnt lgkmcnt(0)")
        a("s_mov_b64 exec, 1")
        a(f"ds_add_u32 {vcn}, {t1} offset:{off}")
        a("s_mov_b64 exec, -1")
    def lds_wait(off, n):
        L = a.newlabel('LW')
        a.label(L)
        a(f"ds_read_b32 {t1}, {vcn} offset:{off}")
        a("s_waitcnt lgkmcnt(0)")
        a(f"v_readfirstlane_b32 {sT0}, {t1}")
        a(f"s_cmp_ge_u32 {sT0}, {n}")
        a(f"s_cbranch_scc1 {L}d")
        a("s_sleep 1")
        a(f"s_branch {L}")
        a.label(L + 'd')
    vAT = V(29); vFG = V(28)
    PB = V(176, 12); PU = V(152, 20)
    def pq_loads():
        a(f"s_lshl3_add_u32 {sT0}, {sR6}, {sCG}")
        a(f"s_mul_i32 {sT0}, {sT0}, 10240"); a(f"s_add_u32 {sT0}, {sT0}, {PQ}")
        a(f"s_lshl_b32 {sT1}, {sRG}, 11"); a(f"s_add_u32 {sT1}, {sT1}, {sT0}")
        for h in range(2): a(f"buffer_load_dwordx4 {PB[4*h:4*h+4]}, {vo}, {rWS}, {sT1} offen offset:{h*1024} {LD}")
        a(f"s_lshr_b32 {sT1}, {sRG}, 1"); a(f"s_lshl_b32 {sT1}, {sT1}, 10"); a(f"s_add_u32 {sT0}, {sT0}, {sT1}")
        a(f"s_and_b32 {sT1}, {sRG}, 1"); a(f"s_lshl3_add_u32 {sT0}, {sT1}, {sT0}"); a(f"s_add_u32 {sT0}, {sT0}, 8192")
        a(f"buffer_load_dwordx2 {PB[8:10]}, {vo}, {rWS}, {sT0} offen {LD}")
    sQF = S(83)
    a(f"v_readfirstlane_b32 {sQF}, {vFQ}")
    a(f"s_cmp_eq_u32 {sHI}, 1"); a(f"s_cselect_b32 {sQF}, 0, {sQF}")
    a(f"s_cmp_eq_u32 {sQF}, 0"); a("s_cbranch_scc1 P2_NQ")
    pq_loads()
    a.label('P2_NQ')
    a(f"buffer_load_dword {vS2}, {vz}, {rDBG}, 0 offen offset:132 sc1")
    a(f"v_mov_b32 {vAT}, 1"); a(f"v_mov_b32 {t1}, 1")
    a("s_waitcnt vmcnt(0) lgkmcnt(0)")
    a("s_mov_b64 exec, 1")
    a(f"ds_add_rtn_u32 {t1}, {vcn}, {t1} offset:16")
    a(f"s_cmp_eq_u32 {sPF}, 4"); a("s_cbranch_scc1 P2_A2")
    a(f"buffer_atomic_add {vAT}, {vz}, {rWS}, {sFLAG} offen sc0 sc1")
    a.label('P2_A2')
    a("s_mov_b64 exec, -1")
    def go_logic(n, st=True):
        lb = a.newlabel('GO')
        a(f"s_waitcnt vmcnt({n})")
        a(f"v_readfirstlane_b32 {sP[0]}, {vAT}")
        a(f"s_add_u32 {sP[1]}, {sFLAG}, {GOD}")
        a(f"s_cmp_lg_u32 {sP[0]}, {sNEED}")
        a(f"s_cbranch_scc1 {lb}")
        a("s_mov_b64 exec, 1")
        a(f"buffer_store_dword {vAT}, {vz}, {rWS}, {sP[1]} offen sc1")
        a("s_mov_b64 exec, -1")
        a.label(lb)
        if st: stamp(a, 4)
    a(f"s_cmp_eq_u32 {sHI}, 0")
    a("s_cbranch_scc1 P2_C")
    go_logic(0)
    a("s_setprio 0")
    init_check(vS2, 132)
    if OPT['bt']:
        a("s_lshr_b32 s4, s2, 6"); a(f"s_lshl2_add_u32 s4, s4, {sRG}"); a(f"s_mul_i32 s4, s4, {65*128}")
        a(f"s_mul_i32 s5, {sCG}, {74*5120}"); a("s_add_u32 s4, s4, s5"); a(f"s_add_u32 s4, s4, {BP + 48*5120}")
        a(f"v_lshlrev_b32 {t2}, 7, {lane}")
        a(f"buffer_load_dword {t3}, {t2}, {rWS}, s4 offen sc1")
    a(f"s_cmp_lt_u32 {sRG}, 2"); a(f"s_cselect_b32 {rB[2]}, {WSZ}, 0")
    a(f"s_cmp_lt_u32 {sPF}, 6"); a("s_cbranch_scc1 P2_E2")
    for b in range(4):
        for l in b_reg(vm, b, 'B'): a(l)
    lds_wait(16, 8)
    for k in range(4):
        for l in b_row(vm, sBg, GRP[GL[k]], LR[k]): a(l)
    a.label('P2_E2')
    lds_wait(16, 8)
    for k in range(3):
        for l in b_row(vm, sBg, k, CR[k], None, 54*5120): a(l)
    a(f"s_cmp_eq_u32 {sPF}, 4"); a("s_cbranch_scc1 P2_GK")
    NG = 10
    for variant in (0, 1):
        GLv = GL if variant == 0 else []
        if variant == 1: a.label('P2_GK')
        if OPT['at']:
            a(f"s_mul_i32 {sT1}, {sR6}, {74*4096}"); a(f"s_lshl2_add_u32 {sT2}, {sCG}, {sRG}"); a(f"s_mul_i32 {sT2}, {sT2}, {54*128}"); a(f"s_add_u32 {sT1}, {sT1}, {sT2}")
            a(f"v_lshlrev_b32 {t2}, 7, {lane}")
        if OPT['at'] == 3: vpoll(a, vz, sFHo, 0, t1, f"s_mov_b32 exec_hi, 0x3fffff\nbuffer_load_dword {t3}, {t2}, {rWS}, {sT1} offen sc1\ns_mov_b32 exec_hi, -1", OPT['tsl'])
        else: vpoll(a, vz, sFHo, 0, t1)
        lds_signal(20)
        a(f"s_setprio {OPT['gprio']}")
        vm = VmTrack()
        stamp(a, 5)
        if OPT['at'] == 1:
            a("s_mov_b32 exec_hi, 0x3fffff"); a(f"buffer_load_dword {t3}, {t2}, {rWS}, {sT1} offen sc1"); a("s_mov_b32 exec_hi, -1")
        if OPT['stamp'] == 4: a("s_memtime s[92:93]")
        for s in range(4):
            for l in a_loads(s, ('A', s)): a(l)
            if OPT['at'] == 2 and s == 0:
                a("s_mov_b32 exec_hi, 0x3fffff"); a(f"buffer_load_dword {t3}, {t2}, {rWS}, {sT1} offen sc1"); a("s_mov_b32 exec_hi, -1"); vm.issue('T')
        for s in range(NG - 1):
            n = vm.wait_for(lambda t: t in (('A', s), ('B', s)))
            a(f"s_waitcnt vmcnt({n})" + (f" lgkmcnt({5*sum(1 for x in (s+1, s+2) if x in GLv)})" if s in GLv else ""))
            if s == 0: stamp(a, 6)
            if OPT['stamp'] == 4:
                a("s_waitcnt lgkmcnt(0)")
                a(f"v_writelane_b32 v255, s92, {40 + s}")
                a("s_memtime s[92:93]")
            side = []
            if OPT['fair'] and s in eval(OPT['fg']): a(f"s_setprio {eval(OPT['fg'])[s]}")
            if 1 <= s and s + 3 < NG:
                rr = rB if GRP[s + 3] == 13 else None
                side = a_loads(s + 3, ('A', s + 3), None, rr) + (b_fromlds(s + 3, LR[GLv.index(s + 3)]) if s + 3 in GLv else b_reg(vm, s + 3, ('B', s + 3), rr, GRP[s + 3]))
            mm(s % 4, range(4) if s == 0 else [], side)
        if variant == 0: a("s_branch P2_GL")
    a.label('P2_GL')
    a("s_waitcnt vmcnt(0) lgkmcnt(0)")
    if OPT['stamp'] == 4:
        a(f"v_writelane_b32 v255, s92, {49}"); a("s_memtime s[92:93]"); a("s_waitcnt lgkmcnt(0)"); a(f"v_writelane_b32 v255, s92, {50}")
    for tt in range(4):
        for j in range(5):
            d = ACC[tt][j]
            a(f"v_mfma_f32_16x16x32_bf16 {d}, {BR[1][j]}, {AR[1][tt]}, {d}")
            if tt >= 2: a("ds_write_b128 %s, %s offset:%d" % (lrow(tt, j)[0], ACC[tt-2][j], lrow(tt, j)[1]))
    for tt in (2, 3):
        for j in range(5): a("ds_write_b128 %s, %s offset:%d" % (lrow(tt+2, j)[0], ACC[tt][j], lrow(tt+2, j)[1]))
    lds_signal(4)
    stamp(a, 10)
    a("s_branch P2_FIN")
    a.label('P2_C')
    P = V(72, 20)
    a("s_setprio 3")
    a(f"s_cmp_lg_u32 {sQF}, 0"); a("s_cbranch_scc1 P2_C1")
    go_logic(0)
    a(f"s_mov_b32 {sNEED}, -1")
    vpoll(a, vz, sFHo, 4, t1)
    pq_loads()
    a("s_waitcnt vmcnt(0)")
    a.label('P2_C1')
    a(f"buffer_load_dword {vFG}, {vz}, {rWS}, {sFHo} offen offset:12 sc1")
    GV = [V(22), V(252), V(10), V(8)]
    GLd = [t3, V(188), V(189), V(190)]
    srd(a, rOUT, pOUT, 2048 * 1280)
    a(f"v_lshl_add_u32 {kw}, {vr}, 2, {vqd}")
    a(f"v_lshlrev_b32 {kw}, 6, {kw}")
    a(f"v_lshl_add_u32 {kw}, {vc}, 3, {kw}")
    a(f"s_mul_i32 {sT0}, {sRG}, 3088"); a(f"s_add_u32 {sT0}, {sT0}, {KVB}")
    a(f"v_add_u32 {kw}, {sT0}, {kw}")
    a(f"v_mul_u32_u24 {t4}, 3088, {vqd}")
    a(f"v_lshl_add_u32 {t4}, {vr}, 6, {t4}")
    a(f"v_add_u32 {t4}, {KVB}, {t4}")
    a(f"v_mov_b32 {ka}, {ZERO + 8}")
    a(f"v_cmp_eq_u32 vcc, {vc}, {vqd}")
    a(f"v_cndmask_b32 {ka}, {ka}, {t4}, vcc")
    VT = [V(16), V(17), V(18), V(19)]
    for i in range(4):
        a(f"s_add_u32 {sT0}, {sRG}, {i}"); a(f"s_and_b32 {sT0}, {sT0}, 3"); a(f"s_lshl_b32 {sT0}, {sT0}, 10")
        a(f"v_add_u32 {VT[i]}, {sT0}, {vo}")
    for i in range(10):
        a(f"v_lshlrev_b32 {PU[2*i]}, 16, {PB[i]}")
        a(f"v_and_b32 {PU[2*i+1]}, 0xffff0000, {PB[i]}")
    gl = (f"s_waitcnt vmcnt(1)\nv_readfirstlane_b32 {sP[0]}, {vAT}\ns_add_u32 {sP[1]}, {sFLAG}, {GOD}\ns_cmp_lg_u32 {sP[0]}, {sNEED}\ns_cbranch_scc1 GOC\n"
          f"s_mov_b64 exec, 1\nbuffer_store_dword {vAT}, {vz}, {rWS}, {sP[1]} offen sc1\ns_mov_b64 exec, -1\nGOC:")
    softmax_unit(a, PU, V(92, 40), V(132, 4), V(136, 4), P, ["s_nop 0"] * 19 + [gl])
    a("s_waitcnt vmcnt(0)")
    a(f"v_cmp_ne_u32 vcc, 0, {vFG}"); a("s_nop 0"); a("s_cbranch_vccnz P2_GOK")
    vpoll(a, vz, sFHo, 12, t1)
    a.label('P2_GOK')
    a(f"v_lshlrev_b32 {t0}, 2, {vl15}")
    a(f"s_lshl2_add_u32 {sT0}, {sR6}, {sRG}")
    a(f"s_lshl_b32 {sT0}, {sT0}, 6"); a(f"s_add_u32 {sT0}, {sT0}, {GOFF}")
    a(f"buffer_load_dword {t3}, {t0}, {rWS}, {sT0} offen {LD}")
    stamp(a, 5)
    init_check(vS2, 132)
    lds_wait(16, 8)
    a(f"s_lshl_b32 {sT2}, {sCG}, 7"); a(f"s_add_u32 {sT2}, {sT2}, {FK + GOD}")
    a(f"s_lshl_b32 {sT3}, {sCG}, 2"); a(f"s_add_u32 {sT3}, {sT3}, {sRG}")
    a(f"s_mul_i32 {sT3}, {sT3}, 6144"); a(f"s_add_u32 {sT3}, {sT3}, {KVACC}")
    sNB = S(81)
    def cb(i): return b_reg(vm, i, 'B') if i < 4 else b_row(vm, sBo, i - 4, CR[i - 4], None, CB0)
    a(f"s_cmp_lt_u32 {sPF}, 6"); a("s_cbranch_scc1 P2_K4")
    for i in range(4):
        a(f"s_mov_b32 {sNB}, {i}")
        a(f"buffer_load_dword {t1}, {vz}, {rWS}, {sT2} offen sc1")
        a("s_waitcnt vmcnt(0)")
        a(f"v_cmp_ne_u32 vcc, 0, {t1}"); a("s_nop 0"); a("s_cbranch_vccnz P2_KGO")
        for l in cb(i): a(l)
    a.label('P2_K4')
    a(f"s_mov_b32 {sNB}, 4")
    vpoll(a, vz, sT2, 0, t1)
    a.label('P2_KGO')
    stamp(a, 6)
    KL = [V(92 + 4 * i, 4) for i in range(6)]
    a(f"s_mov_b32 {sTO}, 0x80000")
    a("s_mov_b32 s82, 0x41000000")
    a.label('KVRETRY')
    for i in range(6):
        if i < 4: a(f"buffer_load_dwordx4 {KL[i]}, {vo}, {rWS}, {sT3} offen offset:{i*1024} {LD}")
        else: a(f"buffer_load_dwordx4 {KL[i]}, {vo4}, {rWS}, {sT3} offen offset:{(i-4)*1024} {LD}")
    for i in range(6):
        a(f"s_waitcnt vmcnt({5-i})")
        a(f"v_cvt_pk_bf16_f32 {KL[i][0]}, {KL[i][0]}, {KL[i][1]}")
        a(f"v_cvt_pk_bf16_f32 {KL[i][1]}, {KL[i][2]}, {KL[i][3]}")
        a(f"ds_write_b64 {kw}, {KL[i][0:2]} offset:{(i % 3)*1024 + (i // 3)*32}")
    a(f"v_min3_f32 {t1}, {KL[0][3]}, {KL[1][3]}, {KL[3][3]}")
    a(f"v_min_f32 {t4}, {KL[2][3]}, {KL[5][3]}")
    a(f"v_min_f32 {t1}, {t1}, {KL[4][3]}")
    a(f"v_cmp_neq_f32 vcc, s82, {t4}")
    a(f"v_cmp_neq_f32 {sP}, s82, {t1}")
    a("s_and_b32 s4, vcc_lo, 0x00880088"); a("s_and_b32 s5, vcc_hi, 0x00880088"); a("s_or_b32 s4, s4, s5")
    a(f"s_or_b32 s5, {sP[0]}, {sP[1]}"); a("s_and_b32 s5, s5, 0x88888888"); a("s_or_b32 s4, s4, s5")
    a("s_cbranch_scc0 KVOK")
    a("s_waitcnt lgkmcnt(0)")
    a("s_sleep 4")
    a(f"s_sub_u32 {sTO}, {sTO}, 1")
    a("s_cbranch_scc0 KVRETRY")
    a.label('KVOK')
    lds_signal(0)
    lds_wait(0, 4)
    stamp(a, 16)
    AFl = [V(92 + 4 * i, 4) for i in range(15)]
    D = [V(152 + 4 * t, 4) for t in range(6)]
    O = V(176, 12)
    order = [5, 0, 1, 2, 3, 4]
    fr = [(t, s) for s in range(5) for t in order]
    def rdl(k):
        t, s_ = fr[k]
        return [f"ds_read_b64_tr_b16 {AFl[k % 15][2*r_:2*r_+2]}, {ka} offset:{s_*512 + r_*256 + (t*8 if t < 3 else t*8 + 8)}" for r_ in range(2)]
    AH = 7
    for k in range(AH):
        for l in rdl(k): a(l)
    def fin(t):
        for h in range(4): a(f"v_mul_f32 {D[t][h]}, {D[t][h]}, {t2}")
        a(f"v_cvt_pk_bf16_f32 {O[2*t]}, {D[t][0]}, {D[t][1]}")
        a(f"v_cvt_pk_bf16_f32 {O[2*t+1]}, {D[t][2]}, {D[t][3]}")
    for k in range(30):
        t, s_ = fr[k]
        a(f"s_waitcnt lgkmcnt({2 * min(AH - 1, 29 - k)})")
        a(f"v_mfma_f32_16x16x32_bf16 {D[t]}, {AFl[k % 15]}, {P[4*s_:4*s_+4]}, {'0' if s_ == 0 else D[t]}")
        if k + AH < 30:
            for l in rdl(k + AH): a(l)
        if OPT['sent'] and k == OPT['oh1']:
            a(f"s_sub_u32 {sFLAG}, {sFHo}, {GOD - 8}"); a(f"s_mov_b32 {sNEED}, 31"); a(f"v_mov_b32 {vAT}, 1")
            a("s_mov_b64 exec, 1"); a(f"buffer_atomic_add {vAT}, {vz}, {rWS}, {sFLAG} offen sc0 sc1"); a("s_mov_b64 exec, -1")
    stamp(a, 19)
    a(f"v_add_f32 {t2}, 0x358637bd, {D[5][0]}")
    a(f"v_rcp_f32 {t2}, {t2}")
    a(f"v_mul_f32 {t2}, {t2}, {t3}")
    fin(0); fin(1)
    a(f"buffer_store_dwordx4 {O[0:4]}, {vo}, {rWS}, {sO1} offen {ST}")
    fin(2); fin(3)
    a(f"buffer_store_dwordx4 {O[4:8]}, {vo4}, {rWS}, {sO1} offen {ST}")
    fin(4)
    a(f"v_mov_b32 {O[10]}, {O[8]}"); a(f"v_mov_b32 {O[11]}, {O[9]}")
    a(f"v_permlane32_swap_b32 {O[8]}, {O[10]}"); a(f"v_permlane32_swap_b32 {O[9]}, {O[11]}")
    a("s_mov_b32 exec_hi, 0")
    a(f"buffer_store_dwordx4 {O[8:12]}, {vo}, {rWS}, {sO2} offen {ST}")
    a("s_mov_b32 exec_hi, -1")
    stamp(a, 17)
    if not OPT['sent']:
        a(f"s_sub_u32 {sT2}, {sFHo}, {GOD - 8}")
        arrive(a, sT2, 31, t0, t1)
    else: go_logic(3, False)
    stamp(a, 7)
    for i in range(4):
        lb = a.newlabel('CB')
        a(f"s_cmp_gt_u32 {sNB}, {i}"); a(f"s_cbranch_scc1 {lb}")
        for l in cb(i): a(l)
        a.label(lb)
    XB = [V(28), V(13), V(30)]; XW = V(31); GB = V(12)
    for q in range(1, 4):
        a(f"s_sub_u32 {sT0}, {sRG}, {q}"); a(f"s_and_b32 {sT0}, {sT0}, 3"); a(f"s_mul_i32 {sT0}, {sT0}, 5120")
        a(f"s_add_u32 {sT0}, {sT0}, {CR[q-1]*20480}")
        a(f"v_add_u32 {XB[q-1]}, {sT0}, {vo}")
    a(f"v_add_u32 {XW}, {6*20480}, {vbl}")
    def crow(k, j): return (vbl, CR[k]*20480 + j*1024) if k < 2 else (XW, j*1024)
    a(f"s_add_u32 {sT0}, {sRG}, 2"); a(f"s_mul_i32 {sT0}, {sT0}, 20480"); a(f"v_add_u32 {GB}, {sT0}, {vo}")
    a(f"v_mul_u32_u24 {t0}, 1280, {vl15}")
    a(f"v_lshl_add_u32 {t0}, {vqd}, 3, {t0}")
    a(f"s_lshl_b32 {sT2}, {sR6}, 2"); a(f"s_add_u32 {sT2}, {sT2}, {sRG}"); a(f"s_mul_i32 {sT2}, {sT2}, {16*1280}")
    a(f"s_mul_i32 {sT3}, {sCG}, 160"); a(f"s_add_u32 {sT2}, {sT2}, {sT3}")
    a(f"v_add_f32 {V(22)}, 1.0, {t3}"); a(f"v_rcp_f32 {V(22)}, {V(22)}")
    lds_wait(20, 4)
    a(f"s_setprio {OPT['cprio']}")
    if OPT['stamp'] == 4: a("s_memtime s[92:93]")
    vm = VmTrack()
    for s in range(4):
        for l in a_loads(s, ('A', s), VT): a(l)
    GT = [BR[1], BR[2], BR[3], AR[1] + [AR[2][0]]]
    OC = OPT['oc']
    for s in range(9):
        n = vm.wait_for(lambda t: t in (('A', s), ('B', s)) or (s == OC and t == 'of'))
        if s == 8:
            lds_wait(4, 4)
            stamp(a, 8)
            for w in range(2):
                for j in range(5): a(f"ds_read_b128 {GT[w][j]}, {GB} offset:{w*5120 + j*1024}")
        a(f"s_waitcnt vmcnt({n})" + (" lgkmcnt(0)" if s == 4 else ""))
        if OPT['stamp'] == 4:
            a("s_waitcnt lgkmcnt(0)")
            a(f"v_writelane_b32 v255, s92, {40 + s}")
            a("s_memtime s[92:93]")
        if s == OC:
            stamp(a, 18)
            a(f"v_cmp_ne_u32 vcc, 0, {t2}"); a("s_nop 0"); a("s_cbranch_vccnz P2_OOK")
            vpoll(a, vz, sFHo, 8, t2)
            a.label('P2_OOK')
            a(f"s_mov_b32 {sTO}, 0x40000")
            stamp(a, 9)
        if OPT['sent'] and s >= 4:
            a.label(f'VER{s}')
            regs = [AR[s % 4][tt][k] for tt in range(4) for k in range(4)]
            a(f"v_max3_u32 {t4}, {regs[0]}, {regs[1]}, {regs[2]}")
            a(f"v_max3_u32 {t1}, {regs[3]}, {regs[4]}, {regs[5]}")
            for k in (6, 10):
                a(f"v_max3_u32 {t4}, {t4}, {regs[k]}, {regs[k+1]}"); a(f"v_max3_u32 {t1}, {t1}, {regs[k+2]}, {regs[k+3]}")
            a(f"v_max3_u32 {t4}, {t4}, {regs[14]}, {regs[15]}")
            a(f"v_max_u32 {t4}, {t4}, {t1}")
            a(f"v_cmp_eq_u32 vcc, -1, {t4}")
            a("s_nop 0")
            a(f"s_cbranch_vccnz RET{s}")
            a.label(f'VOK{s}')
        side = []
        if OPT['fair'] and s in eval(OPT['fc']): a(f"s_setprio {eval(OPT['fc'])[s]}")
        if s == OC - 1:
            side.append(f"buffer_load_dword {t2}, {vz}, {rWS}, {sFHo} offen offset:8 sc1"); vm.issue('of')
        if s == OC:
            for q in range(4, s + 4): side += a_loads(q, ('A', q), VT)
        elif s > OC and s + 3 < 9: side += a_loads(s + 3, ('A', s + 3), VT)
        if 1 <= s <= 3: side += ["ds_read_b128 %s, %s offset:%d" % ((BR[s-1][j],) + crow(s-1, j)) for j in range(5)]
        if s in (4, 5): side += b_reg(vm, s + 3, ('B', s + 3), None, s - 1, CB0)
        if s < 8: mm(s % 4, range(4) if s == 0 else [], side, 1 if len([x for x in side if not x.startswith('s_')]) > 10 else 2)
        else:
            for tt in (1, 2, 3, 0):
                for j in range(5):
                    d = ACC[tt][j]
                    a(f"v_mfma_f32_16x16x32_bf16 {d}, {BR[0][j]}, {AR[0][tt]}, {d}")
                    if tt in (1, 2): a(f"ds_read_b128 {GT[tt+1][j]}, {GB} offset:{(tt+1)*5120 + j*1024}")
                    pt = {1: None, 2: None, 3: 1, 0: 2}[tt]
                    if pt: a("ds_write_b128 %s, %s offset:%d" % (crow(pt-1, j)[0], ACC[pt][j], crow(pt-1, j)[1]))
            for j in range(5): a("ds_write_b128 %s, %s offset:%d" % (crow(2, j)[0], ACC[3][j], crow(2, j)[1]))
    if OPT['stamp'] == 4:
        a("s_waitcnt lgkmcnt(0)"); a(f"v_writelane_b32 v255, s92, {49}"); a("s_memtime s[92:93]"); a("s_waitcnt lgkmcnt(0)"); a(f"v_writelane_b32 v255, s92, {50}")
    a("s_waitcnt lgkmcnt(15)")
    for j in range(5):
        for h in range(2):
            sl = slice(2*h, 2*h+2)
            a(f"v_pk_add_f32 {GT[0][j][sl]}, {GT[0][j][sl]}, {GT[1][j][sl]}")
            a(f"v_pk_add_f32 {GT[2][j][sl]}, {GT[2][j][sl]}, {GT[3][j][sl]}")
    stamp(a, 10)
    lds_signal(8)
    for j in range(5):
        for h in range(2):
            sl = slice(2*h, 2*h+2)
            a(f"v_pk_add_f32 {GT[0][j][sl]}, {GT[0][j][sl]}, {GT[2][j][sl]}")
            a(f"v_pk_add_f32 {ACC[0][j][sl]}, {GT[0][j][sl]}, {ACC[0][j][sl]}")
    lds_wait(8, 4)
    RD = [ACC[1], ACC[2], ACC[3]]
    for q in range(3):
        for j in range(5): a(f"ds_read_b128 {RD[q][j]}, {XB[q]} offset:{j*1024}")
    for q in range(3):
        a(f"s_waitcnt lgkmcnt({10 - 5*q})")
        for j in range(5):
            for h in range(2): a(f"v_pk_add_f32 {ACC[0][j][2*h:2*h+2]}, {ACC[0][j][2*h:2*h+2]}, {RD[q][j][2*h:2*h+2]}")
            if q == 2:
                for h in range(2): a(f"v_pk_mul_f32 {ACC[0][j][2*h:2*h+2]}, {ACC[0][j][2*h:2*h+2]}, {V(22, 2)} op_sel_hi:[1,0]")
                a(f"v_cvt_pk_bf16_f32 {ACC[1][j][0]}, {ACC[0][j][0]}, {ACC[0][j][1]}")
                a(f"v_cvt_pk_bf16_f32 {ACC[1][j][1]}, {ACC[0][j][2]}, {ACC[0][j][3]}")
                a(f"buffer_store_dwordx2 {ACC[1][j][0:2]}, {t0}, {rOUT}, {sT2} offen offset:{j*32} {OPT['ost']}")
    a.label('P2_FIN')
    if OPT['stamp']:
        a("s_waitcnt vmcnt(0)")
        stamp(a, 11)
    stamp_flush(a)
    if OPT['pad']:
        a.label('PADL')
        a("s_sleep 1"); a("s_memrealtime s[12:13]"); a("s_waitcnt lgkmcnt(0)"); a("s_sub_u32 s12, s12, s10")
        a(f"s_cmp_lt_u32 s12, {OPT['pad']*100}"); a("s_cbranch_scc1 PADL")
    a.label(END)
    a.label('K_LAST')
    a("s_endpgm")
    if OPT['sent']:
        for s in range(4, 9):
            a.label(f'RET{s}')
            a(f"s_sub_u32 {sTO}, {sTO}, 1")
            a(f"s_cselect_b32 {sTO}, 0, {sTO}")
            a(f"s_cbranch_scc1 VOK{s}")
            a(f"s_sleep {OPT['rsl']}")
            for l in a_loads(s, 'r', VT): a(l)
            a("s_waitcnt vmcnt(0)")
            a(f"s_branch VER{s}")

def build():
    hdr = open(f'cdna_kernels/{NAME}.s.ref').read().split('; Override launch')[0]
    name = NAME + '_kernel'
    out = hdr + "; @launch grid=(256,1,1) block=(512,1,1) lds=163840\n"
    out += '.amdgcn_target "amdgcn-amd-amdhsa--gfx950"\n.text\n'
    a = Asm(); kernel(a)
    out += f".globl {name}\n.p2align 8\n.type {name},@function\n{name}:\n" + a.finalize()
    print('instrs', len(a.ins), 'nops', a.nnop, file=sys.stderr)
    out += f""".section .rodata,"a"
.p2align 6
.amdhsa_kernel {name}
  .amdhsa_next_free_vgpr 256
  .amdhsa_next_free_sgpr 102
  .amdhsa_accum_offset 256
  .amdhsa_group_segment_fixed_size 0
  .amdhsa_kernarg_size 96
  .amdhsa_user_sgpr_count 2
  .amdhsa_user_sgpr_kernarg_segment_ptr 1
  .amdhsa_system_sgpr_workgroup_id_x 1
.end_amdhsa_kernel
"""
    return out

if __name__ == '__main__':
    outp = sys.argv[1]
    for o in sys.argv[2:]:
        k, v = o.split('=', 1); OPT[k] = int(v) if v.isdigit() else v
    open(outp, 'w').write(build())
```

```python
import sys
sys.path.insert(0, 'gen')
from asmlib import *
NAME = 'gated_mix__linear_kernel_hedgehog__swiglu_ffn__prompt'
AP = 0; BP = 0xA00000; PQ = 0xD00000; KVACC = 0x1200000; FH = 0x1230000; FK = 0x1232000; FP = 0x1234000; ZEND = 0x1235000
GOFF = 0x1240000; DUMMY = 0x1250000; STAMP = 0x1300000; WSZ = 0x1600000
LOG2E = 0x3fb8aa3b; NLOG2E = 0xbfb8aa3b
OPT = dict(stamp=0, touch=2, bs="{'p0':(0,2),'p1':(2,5),3:(5,8),7:(8,10)}", pp=0, spnt='', rot2=0, slp=1, early=1, btouch=0, atf='sc1', cpf=12, nobar=18, chk=12, sent=1, padwg=999, padev=0, fair=1, fg='{0:2,5:1,7:3}', fc='{0:1,4:0}', npk=0, eprio=2, gprio=3, oc=2, oord=1, noa=0, pj=18, t2s=0, x0e=1, sb1=1, sb2=1, t2pos=1, pad=0, bt=0, tsl=4, rsl=8, cprio2=0, at=0, kh=0, cprio=3, oh1=19, gdel=0, fill=0, spst='sc1', t2a='[0]', t2b='[2]', t2f='{1:(4,6),2:(5,3),4:(6,4),6:(7,5),7:(8,6),8:(9,3)}', t2q='{}', xfl='', wfl='', il=4, qbar=0, prio=0, dbgt=0, ost='nt')
ST = 'sc1'; LD = 'sc1'

pX, pQKV, pPHI, pWO, pBX, pWG, pWU, pWD = [S(16 + 2 * i, 2) for i in range(8)]
pGW, pOUT, pDBG, pWS = [S(32 + 2 * i, 2) for i in range(4)]
sWV = S(3)
rX, rW, rWS, rA, rB = S(40, 4), S(44, 4), S(48, 4), S(52, 4), S(56, 4)
sC = S(60, 2)
rDBG = S(84, 4)
sFLAG = S(88); sTO = S(89); sNEED = S(7)
GOD = 0x1000
sP = S(14, 2)
XSLOT = 32768; WB = 98304
GWB = 159744; CNT = 161024; ZERO = 161280; KVB = 147456

def srd(a, d, base, size):
    a(f"s_mov_b32 {d[0]}, {base[0]}")
    a(f"s_and_b32 {d[1]}, {base[1]}, 0xffff")
    a(f"s_mov_b32 {d[2]}, {size}")
    a(f"s_mov_b32 {d[3]}, 0x20000")

def sstamp(a, j):
    if OPT['stamp'] != 3: return
    if j > 0: a(f"v_writelane_b32 v255, s92, {40 + j - 1}")
    a("s_memtime s[92:93]")
def stamp(a, idx):
    if OPT['pad'] and OPT['padev'] == idx:
        a("s_memrealtime s[10:11]"); a("s_waitcnt lgkmcnt(0)")
    if not OPT['stamp']: return
    if OPT['stamp'] >= 2 and idx not in (2, 3, 5, 11): return
    a("s_memrealtime s[90:91]")
    a("s_memtime s[92:93]")
    a("s_waitcnt lgkmcnt(0)")
    a(f"v_writelane_b32 v255, s90, {2*idx}")
    a(f"v_writelane_b32 v255, s92, {2*idx+1}")
def stamp_flush(a):
    if not OPT['stamp']: return
    if OPT['dbgt']:
        a("s_not_b32 s90, s10"); a("v_writelane_b32 v255, s90, 0")
        a("v_lshlrev_b32 v254, 1, v0"); a("v_add_u32 v254, 8, v254")
        a("s_mov_b32 exec_lo, 0x05555555"); a("s_mov_b32 exec_hi, 0")
        a(f"buffer_atomic_umax v255, v254, {rDBG}, 0 offen sc1")
        a("s_mov_b64 exec, -1")
        return
    a("v_writelane_b32 v255, s10, 0"); a("v_writelane_b32 v255, s12, 1")
    a("s_lshl_b32 s90, s2, 3")
    a(f"s_add_u32 s90, s90, {sWV}")
    a("s_lshl_b32 s90, s90, 8")
    a(f"s_add_u32 s90, s90, {STAMP + 0x80000}")
    a("v_lshlrev_b32 v254, 2, v0")
    a(f"buffer_store_dword v255, v254, {rWS}, s90 offen")

def vpoll(a, vzero, soff, off, tmp, extra=None, slp=None):
    L, D = a.newlabel('POLL'), a.newlabel('POLLD')
    a(f"s_mov_b32 {sTO}, 0x80000")
    a.label(L)
    if extra: a(extra)
    a(f"buffer_load_dword {tmp}, {vzero}, {rWS}, {soff} offen offset:{off} sc1")
    a("s_waitcnt vmcnt(0)")
    a(f"v_cmp_eq_u32 vcc, 0, {tmp}")
    a("s_nop 0")
    a(f"s_cbranch_vccz {D}")
    a(f"s_sleep {slp or OPT['slp']}")
    a(f"s_sub_u32 {sTO}, {sTO}, 1")
    a(f"s_cbranch_scc0 {L}")
    a.label(D)
def arrive(a, soff, need, z, one, nyounger=0):
    D = a.newlabel('ARR')
    a(f"v_mov_b32 {z}, 0"); a(f"v_mov_b32 {one}, 1")
    a(f"s_waitcnt vmcnt({nyounger})")
    a("s_mov_b64 exec, 1")
    a(f"buffer_atomic_add {one}, {z}, {rWS}, {soff} offen sc0 sc1")
    a("s_waitcnt vmcnt(0)")
    a(f"v_readfirstlane_b32 {sP[0]}, {one}")
    a(f"s_add_u32 {sP[1]}, {soff}, {GOD}")
    a(f"s_cmp_lg_u32 {sP[0]}, {need}")
    a(f"s_cbranch_scc1 {D}")
    a(f"buffer_store_dword {one}, {z}, {rWS}, {sP[1]} offen sc1")
    a.label(D)
    a("s_mov_b64 exec, -1")
def init_poll(a, reg, off):
    L, D = a.newlabel('POLL'), a.newlabel('POLLD')
    a(f"s_mov_b32 {sTO}, 0x80000")
    a.label(L)
    a(f"v_mov_b32 {reg}, 0")
    a(f"buffer_load_dword {reg}, {reg}, {rDBG}, 0 offen offset:{off} sc1")
    a("s_waitcnt vmcnt(0)")
    a(f"v_readfirstlane_b32 {sP[0]}, {reg}")
    a(f"s_cmp_lg_u32 {sP[0]}, 0")
    a(f"s_cbranch_scc1 {D}")
    a("s_sleep 2")
    a(f"s_sub_u32 {sTO}, {sTO}, 1")
    a(f"s_cbranch_scc0 {L}")
    a.label(D)

def softmax_unit(a, P, E, M, T, O, side=None):
    side = list(side or [])
    a(f"v_max3_f32 {M[0]}, {P[0]}, {P[1]}, {P[2]}")
    a(f"v_min3_f32 {M[2]}, {P[0]}, {P[1]}, {P[2]}")
    for i in range(3, 19, 2):
        a(f"v_max3_f32 {M[0]}, {M[0]}, {P[i]}, {P[i+1]}")
        a(f"v_min3_f32 {M[2]}, {M[2]}, {P[i]}, {P[i+1]}")
    a(f"v_max_f32 {M[0]}, {M[0]}, {P[19]}")
    a(f"v_min_f32 {M[2]}, {M[2]}, {P[19]}")
    a(f"v_mul_f32 {M[0]}, {sC[0]}, {M[0]}")
    a(f"v_mul_f32 {M[2]}, {sC[0]}, {M[2]}")
    for i in range(0, 20, 2):
        a(f"v_pk_fma_f32 {E[i:i+2]}, {P[i:i+2]}, {sC}, {M[0:2]} op_sel_hi:[1,1,0] neg_lo:[0,0,1] neg_hi:[0,0,1]")
        a(f"v_pk_fma_f32 {E[20+i:22+i]}, {P[i:i+2]}, {sC}, {M[2:4]} op_sel_hi:[1,1,0] neg_lo:[1,0,0] neg_hi:[1,0,0]")
    for i in range(40):
        a(f"v_exp_f32 {E[i]}, {E[i]}")
        if side and i % 2 == 1:
            x = side.pop(0)
            if x != "s_nop 0": a(x)
    for l in side: a(l)
    a(f"v_pk_add_f32 {T[0:2]}, {E[0:2]}, {E[2:4]}")
    a(f"v_pk_add_f32 {T[2:4]}, {E[20:22]}, {E[22:24]}")
    for i in range(4, 20, 2):
        a(f"v_pk_add_f32 {T[0:2]}, {T[0:2]}, {E[i:i+2]}")
        a(f"v_pk_add_f32 {T[2:4]}, {T[2:4]}, {E[20+i:22+i]}")
    a(f"v_add_f32 {T[0]}, {T[0]}, {T[1]}")
    a(f"v_add_f32 {T[2]}, {T[2]}, {T[3]}")
    a(f"v_rcp_f32 {T[0]}, {T[0]}")
    a(f"v_rcp_f32 {T[2]}, {T[2]}")
    for i in range(0, 20, 2):
        a(f"v_pk_mul_f32 {E[i:i+2]}, {E[i:i+2]}, {T[0:2]} op_sel_hi:[1,0]")
        a(f"v_pk_mul_f32 {E[20+i:22+i]}, {E[20+i:22+i]}, {T[2:4]} op_sel_hi:[1,0]")
    for i in range(20):
        a(f"v_cvt_pk_bf16_f32 {O[i]}, {E[2*i]}, {E[2*i+1]}")

def kernel(a):
    END = 'K_END'
    BS = eval(OPT['bs'])
    a("s_cmp_ge_u32 s2, 256")
    a(f"s_cbranch_scc1 {END}")
    if OPT['stamp']:
        a("s_memrealtime s[10:11]"); a("s_memtime s[12:13]"); a("v_mov_b32 v255, 0")
    if OPT['pad']: a("s_memrealtime s[10:11]")
    a("s_load_dwordx16 s[16:31], s[0:1], 0")
    a("s_load_dwordx8 s[32:39], s[0:1], 64")
    lane = V(0)
    tid, t0, t1, t2, t3, t4 = V(1), V(2), V(3), V(4), V(5), V(6)
    vqd, vr, vc, vl15 = V(7), V(8), V(9), V(10)
    vx = [V(11 + i) for i in range(4)]
    xa = [[V(15), V(16)], [V(17), V(18)]]
    tdum = V(19); ta = V(20, 2); tb = V(22, 2)
    R0 = 24
    sTY, sRB, sXK, sWK, sM, sT0, sT1, sT2, sT3, sRG, sHI, sID, sMW, sC8, sR4 = [S(62 + i) for i in range(15)]
    a(f"v_lshrrev_b32 {t0}, 6, v0")
    a(f"v_mov_b32 {tid}, v0")
    a(f"v_readfirstlane_b32 {sWV}, {t0}")
    a(f"v_and_b32 {lane}, 63, v0")
    a(f"s_bfe_u32 {sC8}, s2, 0x30003")
    a(f"s_lshr_b32 {sR4}, s2, 6")
    a(f"s_and_b32 {sRB}, s2, 1")
    a(f"s_lshl_b32 {sRB}, {sRB}, 2")
    a(f"s_add_u32 {sRB}, {sRB}, {sR4}")
    a(f"s_bfe_u32 {sT0}, s2, 0x20001")
    a(f"s_and_b32 {sRG}, {sWV}, 3")
    a(f"s_lshr_b32 {sHI}, {sWV}, 2")
    a(f"v_lshrrev_b32 {vqd}, 4, {lane}")
    a(f"v_bfe_u32 {vr}, {lane}, 2, 2")
    a(f"v_and_b32 {vc}, 3, {lane}")
    a(f"v_and_b32 {vl15}, 15, {lane}")
    a(f"v_lshrrev_b32 {t0}, 3, {lane}")
    a(f"v_mul_u32_u24 {t0}, 1280, {t0}")
    a(f"v_and_b32 {t1}, 7, {lane}")
    a(f"v_xor_b32 {t1}, {t1}, {vqd}")
    a(f"v_lshl_add_u32 {vx[0]}, {t1}, 4, {t0}")
    a(f"v_xor_b32 {t1}, 4, {t1}")
    a(f"v_lshl_add_u32 {vx[1]}, {t1}, 4, {t0}")
    a(f"v_add_u32 {vx[1]}, {8*1280-1024}, {vx[1]}")
    a(f"v_add_u32 {vx[2]}, {16*1280-2048}, {vx[0]}")
    a(f"v_add_u32 {vx[3]}, {16*1280-2048}, {vx[1]}")
    a(f"s_mul_i32 {sXK}, {sRB}, {256*1280}")
    a(f"s_mul_i32 {sT1}, {sWV}, {32*1280}")
    a(f"s_add_u32 {sXK}, {sXK}, {sT1}")
    a(f"s_lshl_b32 {sM}, {sWV}, 12")
    a(f"v_lshlrev_b32 {t2}, 3, {tid}")
    a(f"v_min_u32 {t2}, {163840 - CNT - 8}, {t2}")
    a(f"v_add_u32 {t2}, {CNT}, {t2}")
    a(f"v_mov_b32 {ta[0]}, 0"); a(f"v_mov_b32 {ta[1]}, 0")
    a(f"ds_write_b64 {t2}, {ta}")
    a(f"s_mul_i32 {sID}, {sT0}, 9"); a(f"s_add_u32 {sID}, {sID}, 1"); a(f"s_lshr_b32 {sID}, {sID}, 1")
    a(f"s_add_u32 {sID}, {sID}, {sC8}"); a(f"s_sub_u32 {sID}, {sID}, 3")
    a(f"s_and_b32 {sT1}, {sT0}, 1"); a(f"s_add_u32 {sT1}, {sT1}, {sC8}")
    a(f"s_mov_b32 {sC[0]}, {LOG2E:#x}")
    a(f"s_mov_b32 {sC[1]}, {LOG2E:#x}")
    sU1, sU2, sBK = S(100), S(101), S(95)
    vt1, vt2 = V(22), V(23)
    T2 = OPT['touch'] == 2
    rTT = S(96, 4)
    def t2_all(b0):
        return [f"s_mul_i32 s4, {sBK}, {b0}", f"s_add_u32 s4, s4, {sU2}",
                f"v_add_u32 v21, s4, {vt2}", f"s_mov_b64 exec, 0xff\nbuffer_load_dword {tdum}, v21, {rTT}, 0 offen\ns_mov_b64 exec, -1"]
    def t2_one(b, c8v):
        lb = a.newlabel('T2')
        return [f"s_cmp_lg_u32 {sC8}, {c8v}\ns_cbranch_scc1 {lb}\ns_mul_i32 s4, {sBK}, {b}\ns_add_u32 s4, s4, {sU1}\nv_add_u32 v21, s4, {vt1}\ns_mov_b32 exec_hi, 0\n"
                f"buffer_load_dword {tdum}, v21, {rTT}, 0 offen\ns_mov_b64 exec, -1\n{lb}:"]
    if T2:
        a(f"s_lshr_b32 s9, {sWV}, 1")
        a(f"s_mov_b32 {rTT[2]}, {2048*1280}"); a(f"s_movk_i32 {sBK}, 128")
        a("s_cmp_eq_u32 s9, 1")
        a(f"s_cselect_b32 {rTT[2]}, {640*3840}, {rTT[2]}"); a(f"s_cselect_b32 {sBK}, {64*3840}, {sBK}")
        a("s_cmp_ge_u32 s9, 2")
        a(f"s_cselect_b32 {rTT[2]}, {640*3456}, {rTT[2]}"); a(f"s_cselect_b32 {sBK}, {64*3456}, {sBK}")
        a(f"s_mov_b32 {rTT[3]}, 0x20000")
        a("s_cmp_eq_u32 s9, 0")
        a("s_movk_i32 s7, 128"); a("s_cselect_b32 s5, 1280, s7"); a("s_cselect_b32 s6, 640, s7"); a("s_cselect_b32 s7, 512, 0")
        a(f"v_mul_u32_u24 {vt1}, s5, {lane}")
        a(f"v_mul_u32_u24 {vt2}, s6, {lane}")
        a(f"v_and_b32 {t0}, 1, {lane}"); a(f"v_mul_u32_u24 {t0}, s7, {t0}"); a(f"v_sub_u32 {vt2}, {vt2}, {t0}")
        a(f"s_and_b32 s4, {sWV}, 1")
        a(f"s_lshl1_add_u32 {sU2}, s2, s4"); a(f"s_lshl_b32 {sU2}, {sU2}, 3"); a(f"s_mul_i32 {sU2}, {sU2}, s6")
        a(f"s_and_b32 {sU1}, s2, 7"); a(f"s_lshl2_add_u32 {sU1}, {sU1}, {sR4}")
        a(f"s_lshl1_add_u32 {sU1}, {sU1}, s4"); a(f"s_lshl_b32 {sU1}, {sU1}, 5"); a(f"s_mul_i32 {sU1}, {sU1}, s5")
        a(f"v_add_u32 {t4}, {sU2}, {vt2}")
    a(f"s_mov_b32 {rX[2]}, {2048*1280}"); a(f"s_mov_b32 {rX[3]}, 0x20000")
    a(f"s_mov_b32 m0, {sM}")
    a("s_waitcnt lgkmcnt(0)")
    if T2:
        a("s_cmp_eq_u32 s9, 1"); a(f"s_cselect_b64 {rTT[0:2]}, {pQKV}, {pX}")
        a("s_cmp_eq_u32 s9, 2"); a(f"s_cselect_b64 {rTT[0:2]}, {pWG}, {rTT[0:2]}")
        a("s_cmp_eq_u32 s9, 3"); a(f"s_cselect_b64 {rTT[0:2]}, {pWU}, {rTT[0:2]}")
        a(f"s_and_b32 {rTT[1]}, {rTT[1]}, 0xffff")
        a("s_mov_b64 exec, 0xff"); a(f"buffer_load_dword {tdum}, {t4}, {rTT}, 0 offen"); a("s_mov_b64 exec, -1")
        for b0 in eval(OPT['t2a'])[1:]:
            for l in t2_all(b0): a(l)
    a(f"s_mov_b32 {rX[0]}, {pX[0]}"); a(f"s_and_b32 {rX[1]}, {pX[1]}, 0xffff")
    if OPT['x0e']:
        a(f"s_cmp_eq_u32 {sT1}, 8"); a("s_cbranch_scc1 NOX0")
        if OPT['sb1']: a("s_barrier")
        for n in range(4): a(f"buffer_load_dwordx4 {vx[n]}, {rX}, {sXK} offen offset:{n*1024} lds")
        a.label("NOX0")
    srd(a, rWS, pWS, WSZ)
    srd(a, rDBG, pDBG, 256)
    if OPT['cpf']:
        a(f"s_cmp_lg_u32 {sWV}, 7"); a("s_cbranch_scc1 NOCPF")
        a("s_getpc_b64 s[90:91]")
        a.label("CPF_PC")
        a("s_lshr_b32 s6, s2, 3"); a(f"s_mul_i32 s6, s6, {OPT['cpf']*128}")
        a(f"v_lshlrev_b32 {t0}, 7, {lane}"); a(f"v_add_u32 {t0}, s6, {t0}")
        a(f"v_min_u32 {t0}, K_LAST-CPF_PC, {t0}")
        a(f"s_mov_b64 exec, {(1 << OPT['cpf']) - 1:#x}")
        a(f"global_load_dword v31, {t0}, s[90:91]")
        a("s_mov_b64 exec, -1")
        a.label("NOCPF")
    a(f"s_cmp_lt_u32 {sC8}, 3")
    a("s_cbranch_scc1 R_QKV")
    a(f"s_cmp_eq_u32 {sT1}, 8")
    a("s_cbranch_scc1 R_SPARE")

    def x_dma(vm, blk, half):
        if blk == 0 and OPT['x0e']:
            vm.issue(('X', 0)); vm.issue(('X', 0)); return []
        l = [f"s_add_u32 m0, {sM}, {(blk % 3) * XSLOT}"]
        if half == 0 and blk > 0: l.append(f"s_add_u32 {sXK}, {sXK}, 128")
        for n in (2 * half, 2 * half + 1):
            l.append(f"buffer_load_dwordx4 {vx[n]}, {rX}, {sXK} offen offset:{n*1024} {OPT['xfl']} lds")
            vm.issue(('X', blk))
        return l
    def x_addr_setup():
        a(f"v_lshrrev_b32 {t0}, 1, {vl15}")
        a(f"v_xor_b32 {t0}, {t0}, {vqd}")
        a(f"v_lshlrev_b32 {t0}, 4, {t0}")
        a(f"v_lshl_add_u32 {t0}, {vl15}, 7, {t0}")
        a(f"s_lshl_b32 {sT0}, {sRG}, 13")
        a(f"v_add_u32 {xa[0][0]}, {sT0}, {t0}")
        a(f"v_xor_b32 {xa[0][1]}, 64, {xa[0][0]}")
        a(f"v_add_u32 {xa[1][0]}, 0x10000, {xa[0][0]}")
        a(f"v_add_u32 {xa[1][1]}, 0x10000, {xa[0][1]}")
    def x_reads(XF, step):
        blk, kk = step // 2, step % 2
        sl = blk % 3
        return [f"ds_read_b128 {XF[tt]}, {xa[sl // 2][kk]} offset:{(sl % 2) * XSLOT + tt * 2048}" for tt in range(4)]
    def burst(vm, b0, b1):
        if OPT['touch'] != 1: return []
        l = []
        for st, reg in ((0, ta), (5, tb)):
            lo, hi = max(b0, st) - st, min(b1, st + 5) - st
            if lo >= hi: continue
            m = ((1 << (12 * hi)) - 1) & ~((1 << (12 * lo)) - 1)
            l += [f"s_mov_b32 exec_lo, {m & 0xffffffff:#x}", f"s_mov_b32 exec_hi, {m >> 32:#x}", f"global_load_dword {tdum}, {reg}, off"]
            vm.issue('T')
        l.append("s_mov_b64 exec, -1")
        return l
    def touch_setup(pw0, pw1, rowbytes, off0, off1, seg):
        if OPT['touch'] != 1: return
        l12, bi = tb[0], tb[1]; tinc = tdum
        a(f"v_mul_u32_u24 {bi}, 43, {lane}"); a(f"v_lshrrev_b32 {bi}, 9, {bi}")
        a(f"v_mul_u32_u24 {l12}, 12, {bi}"); a(f"v_sub_u32 {l12}, {lane}, {l12}")
        a(f"s_lshl_b32 {sT2}, {sRB}, 3"); a(f"s_add_u32 {sT2}, {sT2}, {sC8}"); a(f"s_lshl_b32 {sT2}, {sT2}, 3"); a(f"s_add_u32 {sT2}, {sT2}, {sWV}")
        a(f"s_mul_i32 {sT2}, {sT2}, {4*1280}")
        a(f"v_mul_u32_u24 {t0}, 1280, {l12}")
        a(f"v_add_u32 {t0}, {sT2}, {t0}")
        a(f"s_lshl_b32 {sT0}, {sR4}, 3"); a(f"s_add_u32 {sT0}, {sT0}, {sWV}"); a(f"s_mul_i32 {sT0}, {sT0}, {2*rowbytes}")
        a(f"v_subrev_u32 {t1}, 4, {l12}")
        a(f"v_bfe_u32 {t2}, {t1}, 2, 1")
        a(f"v_mul_u32_u24 {t2}, {rowbytes}, {t2}")
        a(f"v_and_b32 {t3}, 1, {t1}")
        a(f"v_mul_u32_u24 {t3}, {seg-4}, {t3}")
        a(f"v_add3_u32 {t2}, {t2}, {t3}, {sT0}")
        a(f"v_and_b32 {t3}, 2, {t1}")
        a(f"v_cmp_eq_u32 vcc, 0, {t3}")
        a(f"v_mov_b32 {t3}, {off1}"); a(f"v_mov_b32 {t4}, {off0}")
        a(f"v_cndmask_b32 {t3}, {t3}, {t4}, vcc")
        a(f"v_add_u32 {t2}, {t2}, {t3}")
        a(f"v_mov_b32 {t3}, {pw1[0]}"); a(f"v_mov_b32 {t4}, {pw0[0]}"); a(f"v_cndmask_b32 {ta[0]}, {t3}, {t4}, vcc")
        a(f"v_mov_b32 {t3}, {pw1[1]}"); a(f"v_mov_b32 {t4}, {pw0[1]}"); a(f"v_cndmask_b32 {ta[1]}, {t3}, {t4}, vcc")
        a(f"v_cmp_gt_u32 vcc, 4, {l12}")
        a(f"v_mov_b32 {t3}, {pX[0]}"); a(f"v_mov_b32 {t4}, {pX[1]}")
        a(f"v_cndmask_b32 {t2}, {t2}, {t0}, vcc")
        a(f"v_cndmask_b32 {ta[0]}, {ta[0]}, {t3}, vcc")
        a(f"v_cndmask_b32 {ta[1]}, {ta[1]}, {t4}, vcc")
        a(f"v_mov_b32 {t3}, {64*rowbytes}"); a(f"v_mov_b32 {t4}, 128"); a(f"v_cndmask_b32 {tinc}, {t3}, {t4}, vcc")
        a(f"v_mad_u32_u24 {t2}, {tinc}, {bi}, {t2}")
        a(f"v_add_co_u32 {ta[0]}, vcc, {ta[0]}, {t2}")
        a(f"v_mul_u32_u24 {t2}, 5, {tinc}")
        a(f"v_addc_co_u32 {ta[1]}, vcc, 0, {ta[1]}, vcc")
        a(f"v_add_co_u32 {tb[0]}, vcc, {ta[0]}, {t2}")
        a(f"v_addc_co_u32 {tb[1]}, vcc, 0, {ta[1]}, vcc")
    def step_body(mains, lblk, pre=[]):
        for l in pre: a(l)
        if not lblk:
            for m in mains: a(m)
            return
        if OPT['pp'] == 2:
            rds = [l for l in lblk if l.startswith('ds_read')]; oth = [l for l in lblk if not l.startswith('ds_read')]
            l1, l2 = a.newlabel('PP'), a.newlabel('PP')
            if oth:
                a(f"s_cmp_eq_u32 {sHI}, 0"); a(f"s_cbranch_scc1 {l1}")
                for l in oth: a(l)
                a.label(l1)
            k = 0
            for i, m in enumerate(mains):
                a(m)
                while k < len(rds) and k < (i + 1) * max(1, -(-len(rds) // len(mains))):
                    a(rds[k]); k += 1
            if oth:
                a(f"s_cmp_eq_u32 {sHI}, 0"); a(f"s_cbranch_scc0 {l2}")
                for l in oth: a(l)
                a.label(l2)
        elif OPT['pp']:
            l1, l2 = a.newlabel('PP'), a.newlabel('PP')
            a(f"s_cmp_eq_u32 {sHI}, 0"); a(f"s_cbranch_scc1 {l1}")
            for l in lblk: l() if callable(l) else a(l)
            a.label(l1)
            for m in mains: a(m)
            a(f"s_cmp_eq_u32 {sHI}, 0"); a(f"s_cbranch_scc0 {l2}")
            for l in lblk: l() if callable(l) else a(l)
            a.label(l2)
        else:
            rds = [l for l in lblk if l.startswith('ds_read')]; oth = [l for l in lblk if not l.startswith('ds_read')]
            units = []; cur = []
            for l in oth:
                cur.append(l)
                if 'buffer_' in l or 'ds_write' in l: units.append(cur); cur = []
            if cur: units.append(cur)
            n = len(mains); mode = OPT['il']
            pos = {}
            if mode == 0:
                seq = [[r] for r in rds] + units
                for k, u in enumerate(seq): pos.setdefault(min(n - 1, k * n // max(len(seq), n)), []).extend(u)
            elif mode == 1:
                for k, u in enumerate(units): pos.setdefault(min(n - 1, 2 * k), []).extend(u)
                for k, r in enumerate(rds): pos.setdefault(min(n - 1, k * min(n, len(rds)) // len(rds) if len(rds) > n else k), []).append(r)
            elif mode == 2:
                for k, r in enumerate(rds): pos.setdefault(min(n - 1, k // 2), []).append(r)
                for k, u in enumerate(units): pos.setdefault(min(n - 1, len(rds) // 2 + 2 * k), []).extend(u)
            elif mode == 3:
                for k, u in enumerate(units): pos.setdefault(min(n - 1, 1 + k * (2 * n // 3) // max(1, len(units))), []).extend(u)
                for k, r in enumerate(rds): pos.setdefault(min(n - 1, k * min(n, len(rds)) // len(rds) if len(rds) > n else k), []).append(r)
            elif mode == 4:
                k = 0
                for i in range(n):
                    while k < len(lblk) and k < (i + 1) * len(lblk) // n + 1:
                        pos.setdefault(i, []).append(lblk[k]); k += 1
            for i, m in enumerate(mains):
                a(m)
                for l in pos.get(i, []): a(l)
    def init_check_issue(reg, off=128):
        return [f"v_mov_b32 {reg}, 0", f"buffer_load_dword {reg}, {reg}, {rDBG}, 0 offen offset:{off} sc1"]
    def init_check(reg, off=128):
        ok = a.newlabel('INITOK')
        a(f"v_readfirstlane_b32 {sP[0]}, {reg}")
        a(f"s_cmp_lg_u32 {sP[0]}, 0")
        a(f"s_cbranch_scc1 {ok}")
        init_poll(a, reg, off)
        a.label(ok)
    sR6, sCG, sAo, sBg, sBo, sLC, sH2, sRX = [S(94 + i) for i in range(8)]
    vo, vo4 = V(20), V(21)
    vS2 = V(30)
    sO1, sO2 = S(79), S(80)
    BRb = [208, 228, 32, 52]
    BR = [[V(BRb[b] + 4 * j, 4) for j in range(5)] for b in range(4)]
    GL = [4, 6, 7, 9]; LR = [2, 5, 3, 4]; CR = [0, 1, 6]
    GRP = {0:0, 1:1, 2:2, 3:3, 4:8, 6:9, 7:10, 9:11, 5:12, 8:13}
    CB0 = 38 * 5120; CA0 = 38 * 4096
    def p2_setup():
        return [f"s_and_b32 {sR6}, s2, 7", f"s_lshl_b32 {sR6}, {sR6}, 2", "s_lshr_b32 s4, s2, 6", f"s_add_u32 {sR6}, {sR6}, s4",
             f"s_bfe_u32 {sCG}, s2, 0x30003", f"s_lshl1_add_u32 {sCG}, s4, {sCG}", f"s_and_b32 {sCG}, {sCG}, 7", f"v_lshlrev_b32 {vo}, 4, {lane}", f"v_add_u32 {vo4}, 4096, {vo}",
             f"s_mul_i32 {sBg}, {sCG}, 74", f"s_add_u32 {sBg}, {sBg}, {sRG}", f"s_mul_i32 {sBg}, {sBg}, 5120", f"s_add_u32 {sBg}, {sBg}, {BP}",
             f"s_mov_b32 {rB[0]}, {pWS[0]}", f"s_and_b32 {rB[1]}, {pWS[1]}, 0xffff", f"s_mul_i32 {rB[2]}, {sHI}, {WSZ}", f"s_mov_b32 {rB[3]}, 0x20000",
             f"s_mul_i32 {sLC}, {sRG}, 5120", f"s_lshl_b32 {sH2}, {sHI}, 11", f"s_mul_i32 {sRX}, {sHI}, 20480",
             f"s_xor_b32 s4, {sHI}, 1", f"s_mul_i32 {sBo}, s4, {16*5120}", f"s_add_u32 {sBo}, {sBo}, {sBg}",
             f"s_mul_i32 {sAo}, {sR6}, 74", f"s_mul_i32 s4, s4, 16", f"s_add_u32 {sAo}, {sAo}, s4", f"s_add_u32 {sAo}, {sAo}, {sRG}", f"s_lshl_b32 {sAo}, {sAo}, 12",
             f"s_lshr_b32 s4, {sCG}, 1", "s_mul_i32 s4, s4, 5", f"s_mul_i32 {sO2}, {sR6}, 74", f"s_add_u32 {sO2}, {sO2}, s4", f"s_add_u32 {sO2}, {sO2}, 54",
             f"s_lshl2_add_u32 {sO2}, {sO2}, {sRG}", f"s_lshl_b32 {sO2}, {sO2}, 10", f"s_and_b32 s4, {sCG}, 1", f"s_mul_i32 {sO1}, s4, {3*4096}",
             f"s_add_u32 {sO1}, {sO1}, {sO2}", "s_lshl_b32 s4, s4, 9", f"s_add_u32 {sO2}, {sO2}, s4", f"s_add_u32 {sO2}, {sO2}, 8192",
             f"s_lshl_b32 s78, {sR6}, 7", f"s_add_u32 s78, s78, {FH + GOD}"]
    vFQ = V(31)
    def q_flag_issue(): return [f"v_mov_b32 {vFQ}, 0", f"buffer_load_dword {vFQ}, {vFQ}, {rWS}, s78 offen offset:4 sc1"]
    def poison(R4):
        if not OPT['sent']: return []
        lb = a.newlabel('PO')
        return [f"s_cmp_eq_u32 {sHI}, 1\ns_cbranch_scc1 {lb}\n" + "\n".join(f"v_mov_b32 {R4[i]}, -1" for i in range(4)) +
                f"\nbuffer_store_dwordx4 {R4}, {vo}, {rWS}, {sO1} offen {ST}\nbuffer_store_dwordx4 {R4}, {vo4}, {rWS}, {sO1} offen {ST}"
                f"\ns_mov_b32 exec_hi, 0\nbuffer_store_dwordx4 {R4}, {vo}, {rWS}, {sO2} offen {ST}\ns_mov_b32 exec_hi, -1\n{lb}:"]
    def b_reg(vm, i, tag, r=None, grp=None, ext=0):
        b = i % 4; r = r or rWS; grp = i if grp is None else grp
        l = [f"s_add_u32 s4, {sBo}, {grp*20480 + ext}"]
        for j in range(5):
            if j < 4: l.append(f"buffer_load_dwordx4 {BR[b][j]}, {vo}, {r}, s4 offen offset:{j*1024} {LD}")
            else: l.append(f"buffer_load_dwordx4 {BR[b][j]}, {vo4}, {r}, s4 offen {LD}")
            vm.issue(tag)
        return l
    def b_row(vm, base, grp, row, extra=None, ext=0, hi3=False):
        l = [f"s_add_u32 s4, {base}, {grp*20480 + ext}", f"s_add_u32 s5, {sLC}, {row*20480}"]
        if hi3: l += [f"s_add_u32 s4, s4, {sRX}", f"s_mul_i32 s6, {sRX}, 3", "s_add_u32 s5, s5, s6"]
        if extra: l += [f"s_add_u32 s4, s4, {extra}", f"s_add_u32 s5, s5, {extra}"]
        l.append("s_mov_b32 m0, s5")
        for j in range(4):
            l.append(f"buffer_load_dwordx4 {vo}, {rWS}, s4 offen offset:{j*1024} {LD} lds"); vm.issue('BL')
        l.append("s_add_u32 m0, s5, 4096")
        l.append(f"buffer_load_dwordx4 {vo4}, {rWS}, s4 offen {LD} lds"); vm.issue('BL')
        return l
    def b_row_half(vm, k):
        l = [f"s_add_u32 s4, {sBg}, {GRP[GL[k]]*20480}", f"s_add_u32 s5, {sLC}, {LR[k]*20480}", f"s_add_u32 s4, s4, {sH2}", f"s_add_u32 m0, s5, {sH2}"]
        for j in range(3):
            l.append(f"buffer_load_dwordx4 {vo}, {rWS}, s4 offen offset:{j*1024} {LD} lds"); vm.issue('BL')
        return l
    sPF = S(8)
    def flag_store(need):
        a(f"s_mov_b32 {sNEED}, {need}")

    vw = [V(R0), V(R0 + 1)]; wa = [V(R0 + 2), V(R0 + 3), V(R0 + 4)]; vchk = V(R0 + 5)
    FB = [32, 72]
    XF = [[V(FB[b] + 4 * tt, 4) for tt in range(4)] for b in range(2)]
    WF = [[V(FB[b] + 16 + 4 * c, 4) for c in range(6)] for b in range(2)]
    ACC = [[V(112 + (c * 4 + tt) * 4, 4) for tt in range(4)] for c in range(6)]
    vm = VmTrack()
    a(f"s_mul_i32 {sT3}, {sID}, 192")
    touch_setup(pWG, pWU, 3456, sT3, sT3, 192)
    for l in burst(vm, *BS['p0']): a(l)
    a(f"s_bitcmp1_b32 {sWV}, 0")
    a(f"s_cselect_b32 {rW[0]}, {pWU[0]}, {pWG[0]}")
    a(f"s_cselect_b32 {rW[1]}, {pWU[1]}, {pWG[1]}")
    a(f"s_and_b32 {rW[1]}, {rW[1]}, 0xffff")
    a(f"s_mov_b32 {rW[2]}, {640*3456}")
    a(f"s_mov_b32 {rW[3]}, 0x20000")
    a(f"s_bfe_u32 {sT0}, {sWV}, 0x10001")
    a(f"s_lshl_b32 {sT1}, {sT0}, 1")
    for n in range(2):
        a(f"v_add_u32 {t0}, {64*n}, {lane}")
        a(f"v_mul_u32_u24 {t1}, 43, {t0}")
        a(f"v_lshrrev_b32 {t1}, 9, {t1}")
        a(f"v_mul_u32_u24 {t2}, 12, {t1}")
        a(f"v_sub_u32 {t2}, {t0}, {t2}")
        a(f"v_lshrrev_b32 {t3}, 2, {t2}")
        a(f"v_cmp_eq_u32 vcc, 1, {t3}")
        a(f"v_mov_b32 {t3}, {sT1}")
        a(f"v_mov_b32 {t4}, {sT0}")
        a(f"v_cndmask_b32 {t3}, {t3}, {t4}, vcc")
        a(f"v_xor_b32 {t2}, {t2}, {t3}")
        a(f"v_mul_u32_u24 {t1}, 3456, {t1}")
        a(f"v_lshl_add_u32 {vw[n]}, {t2}, 4, {t1}")
        if n: a(f"v_subrev_u32 {vw[n]}, 1024, {vw[n]}")
    a(f"s_lshr_b32 {sT0}, {sWV}, 1")
    a(f"s_mul_i32 {sWK}, {sT0}, {8*3456}")
    a(f"s_add_u32 {sWK}, {sWK}, {sT3}")
    a(f"s_mul_i32 {sMW}, {sT0}, 1536")
    a(f"s_and_b32 {sT1}, {sWV}, 1")
    a(f"s_mul_i32 {sT1}, {sT1}, 6144")
    a(f"s_add_u32 {sMW}, {sMW}, {sT1}")
    def w_dma(step):
        l = [f"s_add_u32 m0, {sMW}, {WB + (step % 5) * 12288}"] + ([f"s_add_u32 {sWK}, {sWK}, 110592"] if step else []) + [
             f"buffer_load_dwordx4 {vw[0]}, {rW}, {sWK} offen {OPT['wfl']} lds",
             "s_mov_b32 exec_hi, 0\n"
             f"buffer_load_dwordx4 {vw[1]}, {rW}, {sWK} offen offset:1024 {OPT['wfl']} lds\n"
             "s_mov_b32 exec_hi, -1"]
        vm.issue(('W', step)); vm.issue(('W', step))
        return l
    if OPT['sb1'] and not OPT['x0e']: a("s_barrier")
    for l in x_dma(vm, 0, 0) + x_dma(vm, 0, 1) + w_dma(0) + w_dma(1): a(l)
    x_addr_setup()
    a(f"v_lshl_add_u32 {t0}, {vqd}, 3, {vr}")
    a(f"v_mul_u32_u24 {t0}, 192, {t0}")
    a(f"v_add_u32 {t0}, {WB}, {t0}")
    a(f"v_and_b32 {t1}, 1, {vqd}")
    a(f"v_lshlrev_b32 {t2}, 5, {t1}")
    a(f"v_lshl_add_u32 {t2}, {vc}, 3, {t2}")
    a(f"s_lshl_b32 {sT0}, {sHI}, 7")
    a(f"v_add3_u32 {wa[0]}, {t0}, {t2}, {sT0}")
    a(f"v_xor_b32 {wa[1]}, 32, {wa[0]}")
    a(f"v_and_b32 {t2}, 2, {vc}")
    a(f"v_add_u32 {t2}, {sHI}, {t2}")
    a(f"v_xor_b32 {t2}, {t2}, {t1}")
    a(f"v_lshlrev_b32 {t2}, 4, {t2}")
    a(f"v_and_b32 {t3}, 1, {vc}")
    a(f"v_lshl_add_u32 {t2}, {t3}, 3, {t2}")
    a(f"v_add3_u32 {wa[2]}, {t0}, {t2}, 64")
    def w_reads(WFb, step):
        return [f"ds_read_b64_tr_b16 {WFb[m*3+i][2*rd:2*rd+2]}, {wa[i]} offset:{(step % 5) * 12288 + m * 6144 + rd * 768}"
                for m in range(2) for i in range(3) for rd in range(2)]
    def t2b_emit():
        if T2:
            for b0 in eval(OPT['t2b']):
                for l in t2_all(b0): a(l)
                vm.issue('T')
    if OPT['t2pos'] == 1:
        if OPT['sb2']: a("s_barrier")
        t2b_emit()
    n = vm.wait_for(lambda t: t in (('X', 0), ('W', 0)))
    a(f"s_waitcnt vmcnt({n})")
    a("s_barrier")
    stamp(a, 1)
    for l in x_reads(XF[0], 0) + w_reads(WF[0], 0): a(l)
    if OPT['fill'] == 0:
        for l in x_dma(vm, 1, 0) + x_dma(vm, 1, 1) + w_dma(2): a(l)
        if OPT['t2pos'] == 2: t2b_emit()
    fq = []
    for st in range(2, 20):
        if st % 2 == 0:
            b = st // 2
            fq += [('X', b, 0, max(0, 2*(b-3)+1)), ('X', b, 1, max(0, 2*(b-3)+1))]
        fq.append(('W', st, 0, max(0, st - 5)))
    for j in range(20):
        cur, nxt = j & 1, (j & 1) ^ 1
        CHK = OPT['chk']
        NB = OPT['nobar']
        if j < NB:
            n = vm.wait_for(lambda t: t in (('X', (j + 1) // 2), ('W', j + 1)) or (j == CHK and t == 'chk') or (j == 16 and t == 'chk2') or (j == NB - 1 and t[0] in 'XW'))
            a(f"s_waitcnt vmcnt({n}) lgkmcnt(0)")
            if j == CHK: init_check(vchk)
            if j == 16: init_check(vS2, 136)
            a("s_barrier")
        else:
            a("s_waitcnt lgkmcnt(0)")
        sstamp(a, j)
        mains = [f"v_mfma_f32_16x16x32_bf16 {ACC[c][tt]}, {WF[cur][c]}, {XF[cur][tt]}, {'0' if j == 0 else ACC[c][tt]}" for c in range(6) for tt in range(4)]
        pre = burst(vm, *BS[j]) if j in BS else []
        lblk = []
        if j < 19:
            lblk += x_reads(XF[nxt], j + 1) + w_reads(WF[nxt], j + 1)
            if OPT['fill']:
                cnt = OPT['fill'] + (1 if j == 0 else 0)
                while cnt and fq and fq[0][3] <= j:
                    it = fq.pop(0); cnt -= 1
                    lblk += x_dma(vm, it[1], it[2]) if it[0] == 'X' else w_dma(it[1])
            if j == 0 and not OPT['fill']: lblk += w_dma(3) + x_dma(vm, 2, 0) + x_dma(vm, 2, 1) + w_dma(4)
            xb = (j - 1) // 2 + 3 if j >= 1 else 99
            if xb <= 9 and not OPT['fill']: lblk += x_dma(vm, xb, (j - 1) % 2)
            if T2 and j in eval(OPT['t2f']): lblk += t2_one(*eval(OPT['t2f'])[j])
            if j == CHK - 2: lblk += init_check_issue(vchk); vm.issue('chk')
            if j + 5 <= 19 and not OPT['fill']: lblk += w_dma(j + 5)
            if j == 10: lblk += p2_setup()
            if j == OPT['pj']: lblk += poison(V(248, 4))
            if j == CHK: hq = b_reg(VmTrack(), 0, 'B') + b_reg(VmTrack(), 1, 'B'); hq = [hq[0:3], hq[3:5], [hq[5]] + hq[6:8], hq[8:10], hq[10:12]]
            JJ = [CHK, CHK + 1, CHK + 2, 15, 18]
            if j in JJ:
                q = JJ.index(j)
                if not hq[q][0].startswith('s_'): lblk.append(f"s_add_u32 s4, {sBo}, {0 if q < 3 else 20480}")
                lblk += hq[q]; vm.issue('B'); vm.issue('B')
            if j == 14: lblk += init_check_issue(vS2, 136); vm.issue('chk2')
            if j == 16: lblk += b_row(vm, sBg, GRP[GL[0]], LR[0], None, 0, True)
            if j == 17: lblk += b_row(vm, sBg, GRP[GL[2]], LR[2], sRX)
        else:
            lblk += b_reg(vm, 2, 'B') + b_reg(vm, 3, 'B')
        step_body(mains, lblk, pre)
    stamp(a, 2)
    a(f"s_setprio {OPT['eprio']}")
    sN = S(82, 2)
    a(f"s_mov_b32 {sN[0]}, {NLOG2E:#x}")
    a(f"s_mov_b32 {sN[1]}, {NLOG2E:#x}")
    a(f"s_lshl_b32 {sT3}, {sRB}, 2")
    a(f"s_add_u32 {sT3}, {sT3}, {sRG}")
    a(f"s_mul_i32 {sT0}, {sT3}, 74")
    a(f"s_mul_i32 {sT1}, {sID}, 3")
    a(f"s_add_u32 {sT0}, {sT0}, {sT1}")
    a(f"s_lshl_b32 {sT0}, {sT0}, 12")
    a(f"s_lshl_b32 {sT1}, {sHI}, 13")
    a(f"s_add_u32 {sT1}, {sT0}, {sT1}")
    a(f"s_lshl_b32 {sT2}, {sHI}, 9")
    a(f"s_add_u32 {sT2}, {sT2}, {sT0}")
    a(f"s_add_u32 {sT2}, {sT2}, 4096")
    a(f"s_lshl_b32 {sFLAG}, {sT3}, 7")
    a(f"s_add_u32 {sFLAG}, {sFLAG}, {FH}")
    a(f"v_lshlrev_b32 {t0}, 4, {lane}")
    a(f"v_and_b32 {t1}, 31, {lane}")
    a(f"v_lshlrev_b32 {t1}, 4, {t1}")
    a(f"v_lshrrev_b32 {t2}, 5, {lane}")
    a(f"v_lshl_add_u32 {t1}, {t2}, 10, {t1}")
    tmp = [V(FB[1] + 4 * i, 4) for i in range(2)]
    outs = [V(FB[1] + 8 + 4 * i, 4) for i in range(6)]
    cnt_ = [0]
    def silu2(G0, U0, G1, U1, o):
        GU = ((G0, U0, tmp[0]), (G1, U1, tmp[1]))
        pk = cnt_[0] >= OPT['npk']; cnt_[0] += 1
        for G, U, T in GU:
            if pk:
                for h in range(2): a(f"v_pk_mul_f32 {T[2*h:2*h+2]}, {G[2*h:2*h+2]}, {sN}")
            else:
                for k in range(4): a(f"v_mul_f32 {T[k]}, {sN[0]}, {G[k]}")
        for G, U, T in GU:
            for k in range(4): a(f"v_exp_f32 {T[k]}, {T[k]}")
        for G, U, T in GU:
            if pk:
                for h in range(2): a(f"v_pk_mul_f32 {G[2*h:2*h+2]}, {G[2*h:2*h+2]}, {U[2*h:2*h+2]}")
            else:
                for k in range(4): a(f"v_mul_f32 {G[k]}, {G[k]}, {U[k]}")
        for G, U, T in GU:
            if pk:
                for h in range(2): a(f"v_pk_add_f32 {T[2*h:2*h+2]}, {T[2*h:2*h+2]}, 1.0 op_sel_hi:[1,0]")
            else:
                for k in range(4): a(f"v_add_f32 {T[k]}, 1.0, {T[k]}")
        for G, U, T in GU:
            for k in range(4): a(f"v_rcp_f32 {T[k]}, {T[k]}")
        for G, U, T in GU:
            if pk:
                for h in range(2): a(f"v_pk_mul_f32 {G[2*h:2*h+2]}, {G[2*h:2*h+2]}, {T[2*h:2*h+2]}")
            else:
                for k in range(4): a(f"v_mul_f32 {G[k]}, {G[k]}, {T[k]}")
        for q, (G, U, T) in enumerate(GU):
            for h in range(2): a(f"v_cvt_pk_bf16_f32 {o[2*q+h]}, {G[2*h]}, {G[2*h+1]}")
    for tt in range(4):
        o = outs[tt]
        silu2(ACC[0][tt], ACC[3][tt], ACC[1][tt], ACC[4][tt], o)
        a(f"buffer_store_dwordx4 {o}, {t0}, {rWS}, {sT1} offen offset:{tt*1024} {ST}")
    for l in q_flag_issue(): a(l)
    for tp in range(2):
        o = outs[4 + tp]
        silu2(ACC[2][2*tp], ACC[5][2*tp], ACC[2][2*tp+1], ACC[5][2*tp+1], o)
        a(f"v_permlane32_swap_b32 {o[0]}, {o[2]}")
        a(f"v_permlane32_swap_b32 {o[1]}, {o[3]}")
        a(f"buffer_store_dwordx4 {o}, {t1}, {rWS}, {sT2} offen offset:{tp*2048} {ST}")
    flag_store(35)
    a("s_waitcnt vmcnt(2)")
    a(f"s_mov_b32 {sPF}, 0")
    a("s_branch P2")

    a.label('R_QKV')
    vm = VmTrack()
    vw = [V(R0), V(R0 + 1), V(R0 + 2)]; wa = V(R0 + 3); pa = V(R0 + 4); vchk = V(R0 + 5); vgw = V(R0 + 6)
    FB = [32, 68]
    XF = [[V(FB[b] + 4 * tt, 4) for tt in range(4)] for b in range(2)]
    WF = [[V(FB[b] + 16 + 4 * c, 4) for c in range(5)] for b in range(2)]
    ACC = [V(104 + 20 * tt, 20) for tt in range(4)]
    pf4 = [V(32 + 4 * i, 4) for i in range(9)] + [V(196, 4)]
    pf2 = [V(200, 2), V(202, 2), V(204, 2), V(206, 2), V(248, 2)]
    PF = [[pf4[2 * t], pf4[2 * t + 1], pf2[t]] for t in range(5)]
    WP = V(184, 4); GWF = V(188, 4); GA = V(192, 4)
    sC0, sC1, sLo, sHi2, sISQ, sHB, sGD = [S(77 + i) for i in range(7)]
    PHW = 135168; PHB = 0; VVB = 90112; PS = 352
    srd(a, rW, pQKV, 640 * 3840)
    srd(a, rA, pPHI, 32 * 800)
    a(f"s_lshl_b32 {sID}, {sT0}, 1"); a(f"s_add_u32 {sID}, {sID}, {sC8}")
    a(f"s_mul_i32 {sC0}, {sID}, 160")
    a(f"s_add_u32 {sC1}, {sC0}, 2560")
    a(f"s_add_u32 {sC0}, {sC0}, 1280")
    a(f"s_lshl_b32 {sHB}, {sID}, 2")
    a(f"s_mul_i32 {sT1}, {sT0}, 320")
    a(f"s_add_u32 {sT2}, {sT1}, 160")
    a(f"s_lshl_b32 {sT3}, {sT0}, 3")
    a(f"s_cmp_eq_u32 {sC8}, 2")
    a(f"s_cselect_b32 {sC0}, {sT1}, {sC0}")
    a(f"s_cselect_b32 {sC1}, {sT2}, {sC1}")
    a(f"s_cselect_b32 {sHB}, {sT3}, {sHB}")
    a(f"s_cselect_b32 {sISQ}, 1, 0")
    a(f"s_bitcmp1_b32 {sWV}, 0")
    a(f"s_cselect_b32 {sLo}, {sC1}, {sC0}")
    a(f"s_cselect_b32 {sHi2}, {sC0}, {sC1}")
    a(f"s_sub_u32 {sHi2}, {sHi2}, 160")
    touch_setup(pQKV, pQKV, 3840, sC0, sC1, 160)
    for l in burst(vm, *BS['p0']): a(l)
    for n in range(3):
        a(f"v_add_u32 {t0}, {64*n}, {lane}")
        a(f"v_mul_u32_u24 {t1}, 205, {t0}")
        a(f"v_lshrrev_b32 {t1}, 12, {t1}")
        a(f"v_mul_u32_u24 {t2}, 20, {t1}")
        a(f"v_sub_u32 {t2}, {t0}, {t2}")
        a(f"v_cmp_le_u32 vcc, 10, {t2}")
        a(f"v_mov_b32 {t3}, {sLo}")
        a(f"v_mov_b32 {t4}, {sHi2}")
        a(f"v_cndmask_b32 {t3}, {t3}, {t4}, vcc")
        a(f"v_mul_u32_u24 {t1}, 3840, {t1}")
        a(f"v_lshl_add_u32 {t1}, {t2}, 4, {t1}")
        a(f"v_add_u32 {vw[n]}, {t1}, {t3}")
        if n: a(f"v_subrev_u32 {vw[n]}, {1024*n}, {vw[n]}")
    a(f"s_mul_i32 {sWK}, {sWV}, {8*3840}")
    a(f"s_mul_i32 {sMW}, {sWV}, 2560")
    def w_dma2(blk):
        l = [f"s_add_u32 m0, {sMW}, {WB + (blk % 3) * 20480}"] + ([f"s_add_u32 {sWK}, {sWK}, 245760"] if blk else []) + [
             f"buffer_load_dwordx4 {vw[0]}, {rW}, {sWK} offen {OPT['wfl']} lds",
             f"buffer_load_dwordx4 {vw[1]}, {rW}, {sWK} offen offset:1024 {OPT['wfl']} lds",
             "s_mov_b32 exec_hi, 0\n"
             f"buffer_load_dwordx4 {vw[2]}, {rW}, {sWK} offen offset:2048 {OPT['wfl']} lds\n"
             "s_mov_b32 exec_hi, -1"]
        for _ in range(3): vm.issue(('W', blk))
        return l
    a(f"v_lshlrev_b32 {t0}, 4, {tid}")
    a(f"s_mul_i32 {sT0}, {sHB}, 800")
    a(f"v_add_u32 {t0}, {sT0}, {t0}")
    a(f"buffer_load_dwordx4 {WP}, {t0}, {rA}, 0 offen"); vm.issue(('P', 0))
    if OPT['sb1'] and not OPT['x0e']: a("s_barrier")
    for l in x_dma(vm, 0, 0) + x_dma(vm, 0, 1) + w_dma2(0): a(l)
    x_addr_setup()
    a(f"v_lshl_add_u32 {t0}, {vqd}, 3, {vr}")
    a(f"v_mul_u32_u24 {t0}, 320, {t0}")
    a(f"v_and_b32 {t1}, 1, {vqd}")
    a(f"v_xor_b32 {t1}, {sHI}, {t1}")
    a(f"v_mul_u32_u24 {t1}, 160, {t1}")
    a(f"v_mul_u32_u24 {t2}, 40, {vc}")
    a(f"v_add3_u32 {t0}, {t0}, {t1}, {t2}")
    a(f"v_add_u32 {wa}, {WB}, {t0}")
    a(f"s_and_b32 {sT0}, {sHI}, {sISQ}")
    a(f"s_mul_i32 {sT0}, {sT0}, 3200")
    a(f"s_add_u32 {sT0}, {sT0}, {PHW}")
    a(f"v_mul_u32_u24 {t0}, 800, {vqd}")
    a(f"v_add_u32 {t0}, {sT0}, {t0}")
    a(f"v_mov_b32 {t1}, {ZERO}")
    a(f"v_cmp_eq_u32 vcc, {vc}, {vqd}")
    a(f"v_cndmask_b32 {t0}, {t1}, {t0}, vcc")
    a(f"v_mul_u32_u24 {t1}, 40, {vr}")
    a(f"v_add_u32 {pa}, {t0}, {t1}")
    def w_reads2(WFb, step):
        blk, kk = step // 2, step % 2
        return [f"ds_read_b64_tr_b16 {WFb[t][2*rd:2*rd+2]}, {wa} offset:{(blk % 3) * 20480 + kk * 10240 + rd * 1280 + 8 * t}" for t in range(5) for rd in range(2)]
    def t2b_emit():
        if T2:
            for b0 in eval(OPT['t2b']):
                for l in t2_all(b0): a(l)
                vm.issue('T')
    if OPT['t2pos'] == 1:
        if OPT['sb2']: a("s_barrier")
        t2b_emit()
    n = vm.wait_for(lambda t: t in (('X', 0), ('W', 0)))
    a(f"s_waitcnt vmcnt({n})")
    a("s_barrier")
    stamp(a, 1)
    for l in x_reads(XF[0], 0) + w_reads2(WF[0], 0): a(l)
    if OPT['fill'] == 0:
        for l in x_dma(vm, 1, 0) + x_dma(vm, 1, 1) + w_dma2(1): a(l)
        if OPT['t2pos'] == 2: t2b_emit()
    fq = []
    for b in range(1, 10):
        fq += [('X', b, max(0, 2*(b-3)+1)), ('W', b, max(0, 2*(b-3)+1))]
    for j in range(20):
        cur, nxt = j & 1, (j & 1) ^ 1
        if j % 2 == 1:
            if j < 19:
                n = vm.wait_for(lambda t: t in (('X', (j + 1) // 2), ('W', (j + 1) // 2)) or (j == 17 and t == 'chk'))
                a(f"s_waitcnt vmcnt({n}) lgkmcnt(0)")
            else: a("s_waitcnt lgkmcnt(0)")
            if j == 17: init_check(vchk)
            a("s_barrier")
        else:
            a("s_waitcnt lgkmcnt(0)")
            if OPT['pp'] or OPT['qbar']: a("s_barrier")
        sstamp(a, j)
        mains = [f"v_mfma_f32_16x16x32_bf16 {ACC[tt][4*t:4*t+4]}, {WF[cur][t]}, {XF[cur][tt]}, {'0' if j == 0 else ACC[tt][4*t:4*t+4]}" for t in range(5) for tt in range(4)]
        pre = burst(vm, *BS[j]) if j in BS else []
        lblk = []
        if j < 19:
            lblk += x_reads(XF[nxt], j + 1) + w_reads2(WF[nxt], j + 1)
            if OPT['fill']:
                cnt = 2 if j in (0, 1, 3, 5) else 1
                while cnt and fq and fq[0][2] <= j:
                    it = fq.pop(0); cnt -= 1
                    lblk += x_dma(vm, it[1], 0) + x_dma(vm, it[1], 1) if it[0] == 'X' else w_dma2(it[1])
            if j == 0 and not OPT['fill']: lblk += x_dma(vm, 2, 0) + x_dma(vm, 2, 1) + w_dma2(2)
            xb = (j - 1) // 2 + 3 if j >= 1 else 99
            if xb <= 9 and not OPT['fill']:
                if j % 2 == 1: lblk += x_dma(vm, xb, 0) + x_dma(vm, xb, 1)
                else: lblk += w_dma2(xb)
            if T2 and j in eval(OPT['t2q']): lblk += t2_one(*eval(OPT['t2q'])[j])
            if j == 15: lblk += init_check_issue(vchk); vm.issue('chk')
            if j == 17:
                lblk += [f"v_lshlrev_b32 {t0}, 4, {tid}", f"v_add_u32 {t0}, {PHW}, {t0}", f"ds_write_b128 {t0}, {WP}"]
            if j == 10: lblk += p2_setup()
            if j == 17: lblk += poison(V(208, 4))

        else:
            for t in range(5):
                for s in range(3):
                    for r_ in range(2 if s < 2 else 1):
                        lblk.append(f"ds_read_b64_tr_b16 {PF[t][s][2*r_:2*r_+2]}, {pa} offset:{s*320 + r_*160 + t*8}")
        step_body(mains, lblk, pre)
    stamp(a, 2)
    a("s_setprio 2")
    QB = V(68, 40); P = V(108, 20); E = V(128, 40); O = V(168, 20); M = V(250, 4); T = V(188, 4); ONE = V(192, 2)
    sCNT = S(8); sOUT = S(9)
    def cvt_tile(dst, tt):
        for i in range(10): a(f"v_cvt_pk_bf16_f32 {dst[i]}, {ACC[tt][2*i]}, {ACC[tt][2*i+1]}")
    def pk_list(q, P=P):
        l = []
        for s_ in range(3):
            for t in range(5):
                d = P[4*t:4*t+4]
                if s_ < 2: l.append(f"v_mfma_f32_16x16x32_bf16 {d}, {PF[t][s_]}, {q[4*s_:4*s_+4]}, {'0' if s_ == 0 else d}")
                else: l.append(f"v_mfma_f32_16x16x16_bf16 {d}, {PF[t][s_]}, {q[8:10]}, {d}")
        return l
    a(f"s_lshl_b32 {sT3}, {sRB}, 2")
    a(f"s_add_u32 {sT3}, {sT3}, {sRG}")
    a(f"s_cmp_eq_u32 {sISQ}, 0")
    a("s_cbranch_scc1 R_KV")
    for tt in range(4): cvt_tile(QB[10*tt:10*tt+10], tt)
    a("s_waitcnt lgkmcnt(0)")
    PT = [V(108 + 20*i, 20) for i in range(4)]
    a(f"s_lshr_b32 {sT1}, {sHB}, 2")
    a(f"s_add_u32 {sT1}, {sT1}, {sHI}")
    a(f"s_lshl_b32 {sOUT}, {sT3}, 3")
    a(f"s_add_u32 {sOUT}, {sOUT}, {sT1}")
    a(f"s_mul_i32 {sOUT}, {sOUT}, 10240")
    a(f"s_add_u32 {sOUT}, {sOUT}, {PQ}")
    a(f"s_add_u32 {sT0}, {sOUT}, 8192")
    a(f"s_lshl_b32 {sFLAG}, {sT3}, 7")
    a(f"s_add_u32 {sFLAG}, {sFLAG}, {FH + 4}")
    QO = [V(208 + 8*i, 8) for i in range(4)]; QT = [V(240, 4), V(244, 4)]
    def q_out(tt):
        l = [f"v_cvt_pk_bf16_f32 {QO[tt][i] if i < 8 else QT[tt//2][2*(tt%2) + i - 8]}, {PT[tt][2*i]}, {PT[tt][2*i+1]}" for i in range(10)]
        for h in range(2): l.append(f"buffer_store_dwordx4 {QO[tt][4*h:4*h+4]}, {vo if tt < 2 else vo4}, {rWS}, {sOUT} offen offset:{(tt%2)*2048 + h*1024} {ST}")
        if tt % 2: l.append(f"buffer_store_dwordx4 {QT[tt//2]}, {vo}, {rWS}, {sT0} offen offset:{(tt//2)*1024} {ST}")
        return l
    for tt in range(4):
        side = q_out(tt - 1) if tt else []
        for i, l in enumerate(pk_list(QB[10*tt:10*tt+10], PT[tt])):
            a(l)
            if i >= 2 and side: a(side.pop(0))
    for l in q_out(3): a(l)
    flag_store(7)
    a(f"v_mov_b32 {vFQ}, 0")
    a(f"s_mov_b32 {sPF}, 6")
    a("s_branch P2")
    a.label('R_KV')
    a(f"s_lshl_b32 {sT1}, {sRG}, 1"); a(f"s_add_u32 {sT0}, {sT1}, 1"); a(f"s_mul_i32 {sT0}, {sT0}, {32*PS}")
    a(f"v_add_u32 {t0}, {sT0}, {vo}")
    a(f"s_mov_b32 {sCNT}, 2")
    a(f"s_cmp_eq_u32 {sHI}, 1")
    a("s_cbranch_scc1 R_V")
    cvt_tile(QB[0:10], 0)
    cvt_tile(QB[20:30], 2); cvt_tile(QB[30:40], 3)
    for i in range(5): a(f"ds_write_b128 {t0}, {QB[20+4*i:24+4*i]} offset:{i*1024}")
    cvt_tile(QB[10:20], 1)
    a("s_waitcnt lgkmcnt(0)")
    a("s_barrier")
    for l in pk_list(QB[0:10]): a(l)
    a("s_branch R_KV2")
    a.label('R_V')
    VBt = {3: V(88, 10), 0: V(98, 10), 1: V(168, 10), 2: V(178, 10)}
    for tt in (3, 0, 1, 2): cvt_tile(VBt[tt], tt)
    a(f"s_mul_i32 {sT2}, {sRG}, {64*176}")
    a(f"s_add_u32 {sT2}, {sT2}, {VVB}")
    a(f"v_mul_u32_u24 {t2}, 176, {vl15}")
    a(f"v_add_u32 {t1}, {sT2}, {t2}")
    a(f"v_mul_u32_u24 {t3}, 40, {vqd}")
    a(f"v_add_u32 {t2}, {t1}, {t3}")
    a(f"v_mov_b32 {ONE[0]}, 0x3f80")
    a(f"v_mov_b32 {ONE[1]}, 0")
    a("s_barrier")
    for i in range(5): a(f"ds_read_b128 {QB[4*i:4*i+4]}, {t0} offset:{i*1024}")
    side = []
    for tt in (3, 0, 1, 2):
        for i in range(5): side.append(f"ds_write_b64 {t2}, {VBt[tt][2*i:2*i+2]} offset:{tt*2816 + 8*i}")
        side.append(f"ds_write_b64 {t1}, {ONE} offset:{tt*2816 + 160}")
    for i in range(9): a(side.pop(0))
    a("s_waitcnt lgkmcnt(9)")
    for l in pk_list(QB[0:10]): a(l); a(side.pop(0))
    a.label('R_KV2')
    a(f"s_add_u32 {sT1}, {sT1}, {sHI}"); a(f"s_mul_i32 {sT1}, {sT1}, {32*PS}")
    a(f"v_mul_u32_u24 {t4}, {PS}, {vl15}")
    a(f"v_mul_u32_u24 {t3}, 80, {vqd}")
    a(f"v_add3_u32 {t4}, {t4}, {t3}, {sT1}")
    stamp(a, 12)
    for u in range(2):
        if u == 0:
            bl = b_reg(vm, 0, 'B') + b_reg(vm, 1, 'B'); pl = pk_list(QB[10:20])
            sd = [pl[i] + ("\n" + bl[i] if i < len(bl) else "") for i in range(15)]
        else: sd = b_reg(vm, 2, 'B') + b_reg(vm, 3, 'B')
        softmax_unit(a, P, E, M, T, O, sd + ["s_waitcnt lgkmcnt(0)"])
        for s_ in range(5): a(f"ds_write_b128 {t4}, {O[4*s_:4*s_+4]} offset:{PHB + u*16*PS + 16*s_}")
    a(f"v_lshl_add_u32 {t0}, {vqd}, 2, {vr}")
    a(f"v_mul_u32_u24 {t1}, {PS}, {t0}")
    a(f"s_mul_i32 {sT0}, {sRG}, 80")
    a(f"v_lshl_add_u32 {t1}, {vc}, 3, {t1}")
    a(f"v_add_u32 {t1}, {sT0}, {t1}")
    a(f"v_add_u32 {t2}, {128*PS}, {t1}")
    a(f"v_mul_u32_u24 {t0}, 176, {t0}")
    a(f"s_mul_i32 {sT0}, {sRG}, 40")
    a(f"s_mul_i32 {sT1}, {sHI}, 24")
    a(f"s_add_u32 {sT0}, {sT0}, {sT1}")
    a(f"v_lshl_add_u32 {t3}, {vc}, 3, {sT0}")
    a(f"v_mul_u32_u24 {t4}, {sHI}, {vc}")
    a(f"v_cmp_lt_u32 vcc, 1, {t4}")
    a(f"v_mov_b32 {t4}, 160")
    a(f"v_cndmask_b32 {t3}, {t3}, {t4}, vcc")
    a(f"v_add_u32 {t3}, {VVB}, {t3}")
    a(f"v_add_u32 {t3}, {t0}, {t3}")
    stamp(a, 13)
    a("s_waitcnt lgkmcnt(0)")
    a("s_barrier")
    stamp(a, 14)
    a(f"s_lshl_b32 {sFLAG}, {sID}, 7"); a(f"s_add_u32 {sFLAG}, {sFLAG}, {FK}")
    def k_hint():
        a("v_mov_b32 v29, 1"); a("v_mov_b32 v11, 0")
        a(f"s_cmp_lg_u32 {sWV}, 7"); a("s_cbranch_scc1 KH1")
        a("s_mov_b64 exec, 1"); a(f"buffer_atomic_add v29, v11, {rWS}, {sFLAG} offen sc0 sc1"); a("s_mov_b64 exec, -1")
        a.label('KH1')
    if OPT['kh'] == 0: k_hint()
    for l in q_flag_issue(): a(l)
    KA = [[V(72 + (b*4 + f)*4, 4) for f in range(4)] for b in range(3)]
    KD = [V(128 + 4*f, 4) for f in range(3)]
    def kv_reads(b, s):
        l = []
        for rd in range(2):
            l.append(f"ds_read_b64_tr_b16 {KA[b][3][2*rd:2*rd+2]}, {t3} offset:{s*5632 + rd*2816}")
        for f in range(3):
            for rd in range(2):
                l.append(f"ds_read_b64_tr_b16 {KA[b][f][2*rd:2*rd+2]}, {t1 if s < 4 else t2} offset:{(s % 4)*32*PS + rd*16*PS + f*32}")
        return l
    allr = [l for s in range(8) for l in kv_reads(s % 3, s)]
    pos = 0
    for s in range(8):
        for f in range(3):
            needr = s * 8 + 2 + 2 * (f + 1)
            lim = min(len(allr), needr + 12, (s + 2) * 8 + (2 + 2 * f if False else 0) + 8 - 8 + 0) if False else min(len(allr), needr + 12)
            lim = min(lim, (s + 3) * 8)
            while pos < lim: a(allr[pos]); pos += 1
            a(f"s_waitcnt lgkmcnt({pos - needr})")
            a(f"v_mfma_f32_16x16x32_bf16 {KD[f]}, {KA[s%3][f]}, {KA[s%3][3]}, {'0' if s == 0 else KD[f]}")
    stamp(a, 15)
    a(f"s_add_u32 {sT0}, {sHB}, {sRG}")
    a(f"s_lshl_b32 {sT0}, {sT0}, 1")
    a(f"s_add_u32 {sT0}, {sT0}, {sHI}")
    a(f"s_mul_i32 {sT0}, {sT0}, 3072")
    a(f"s_add_u32 {sT0}, {sT0}, {KVACC}")
    if OPT['kh'] == 1: k_hint()
    def k_go(n):
        a(f"s_cmp_lg_u32 {sWV}, 7"); a("s_cbranch_scc1 KH2")
        a(f"s_waitcnt vmcnt({n})")
        a("v_cmp_eq_u32 vcc, 7, v29"); a(f"s_add_u32 s4, {sFLAG}, {GOD}"); a("s_and_b64 exec, vcc, 1")
        a(f"buffer_store_dword v29, v11, {rWS}, s4 offen sc1"); a("s_mov_b64 exec, -1")
        a.label('KH2')
    if OPT['kh'] == 0: k_go(0)
    a(f"v_lshlrev_b32 {t2}, 2, {lane}")
    a(f"v_cmp_eq_u32 vcc, 15, {vl15}")
    for f in range(3):
        for j in range(4): a(f"v_cndmask_b32 {KD[f][j]}, {KD[f][j]}, 1.0, vcc")
    for f in range(3):
        if f == 2: a("s_mov_b32 exec_hi, 0")
        for j in range(4):
            a(f"buffer_atomic_add_f32 {KD[f][j]}, {t2}, {rWS}, {sT0} offen offset:{f*1024 + j*256} {OPT['atf']}")
    a("s_mov_b32 exec_hi, -1")
    if OPT['kh'] == 1: k_go(12)
    a("s_waitcnt vmcnt(12)")
    flag_store(-1)
    a(f"s_mov_b32 {sPF}, 4")
    a("s_branch P2")

    a.label('R_SPARE')
    sSP, sU, sSO, sST = S(77), S(78), S(79), S(80)
    va = Alloc('v', 176, 250)
    vf = [va() for _ in range(5)]; vat = [va() for _ in range(5)]
    rf = [va() for _ in range(5)]; rat = [va(), va()]
    vst = va(); vst4 = va()
    FR = [[va(4) for _ in range(5)] for b in range(2)]
    Z4 = va(4)
    NT = OPT['spnt']
    if T2:
        for b0 in eval(OPT['t2b']):
            for l in t2_all(b0): a(l)
    srd(a, rA, pWD, 1728 * 1280)
    srd(a, rB, pWO, 640 * 1280)
    a(f"s_lshr_b32 {sSP}, {sT0}, 1")
    a(f"s_lshl_b32 {sSP}, {sSP}, 3")
    a(f"s_add_u32 {sSP}, {sSP}, {sRB}")
    a(f"s_lshl_b32 {sT0}, {sWV}, 2")
    a(f"s_mul_i32 {sT1}, {sWV}, 20")
    for n in range(5):
        a(f"v_add_u32 {t0}, {64*n}, {lane}")
        a(f"v_mul_u32_u24 {t1}, 205, {t0}")
        a(f"v_lshrrev_b32 {t1}, 14, {t1}")
        a(f"v_mul_u32_u24 {t2}, 80, {t1}")
        a(f"v_sub_u32 {t2}, {t0}, {t2}")
        a(f"v_add_u32 {t1}, {sT0}, {t1}")
        a(f"v_and_b32 {t3}, 7, {t1}")
        a(f"v_lshlrev_b32 {t3}, 1, {t3}")
        a(f"v_xor_b32 {t2}, {t2}, {t3}")
        a(f"v_mul_u32_u24 {t1}, 1280, {t1}")
        a(f"v_lshl_add_u32 {vf[n]}, {t2}, 4, {t1}")
        if n % 4: a(f"v_subrev_u32 {vf[n]}, {1024*(n%4)}, {vf[n]}")
    a(f"s_mul_i32 {sM}, {sWV}, 5120")
    def u_dma(buf, typ):
        if typ == 'F':
            a(f"s_mul_i32 {sSO}, {sU}, 40960")
            vv, rr = vf, rA
        else:
            a(f"s_sub_u32 {sT2}, {sU}, 54")
            a(f"s_mul_i32 {sT3}, {sT2}, 52")
            a(f"s_lshr_b32 {sT3}, {sT3}, 8")
            a(f"s_mul_i32 {sSO}, {sT3}, {160*1280 - 5*256}")
            a(f"s_lshl_b32 {sT2}, {sT2}, 8")
            a(f"s_add_u32 {sSO}, {sSO}, {sT2}")
            vv, rr = vat, rB
        a(f"s_add_u32 m0, {sM}, {buf*40960}")
        for n in range(4):
            a(f"buffer_load_dwordx4 {vv[n]}, {rr}, {sSO} offen offset:{n*1024} {NT} lds")
        a(f"s_add_u32 m0, {sM}, {buf*40960 + 4096}")
        a(f"buffer_load_dwordx4 {vv[4]}, {rr}, {sSO} offen {NT} lds")
    def dyn(it, fn):
        if it == 4:
            a(f"s_add_u32 {sU}, {sSP}, 64"); a(f"s_min_u32 {sU}, {sU}, 73"); fn('A'); return
        a(f"s_add_u32 {sU}, {sSP}, {16*it}")
        if it <= 2: fn('F')
        else:
            l1, l2 = a.newlabel('SP'), a.newlabel('SP')
            a(f"s_cmp_ge_u32 {sU}, 54"); a(f"s_cbranch_scc1 {l1}")
            fn('F'); a(f"s_branch {l2}"); a.label(l1); fn('A'); a.label(l2)
    for it in range(3): dyn(it, lambda typ: u_dma(it, typ))
    a(f"v_lshlrev_b32 {t0}, 4, {tid}")
    for i in range(4): a(f"v_mov_b32 {Z4[i]}, 0")
    a(f"s_mul_i32 {sT2}, {sSP}, 13568")
    a(f"s_add_u32 {sT2}, {sT2}, {KVACC}")
    a(f"buffer_store_dwordx4 {Z4}, {t0}, {rWS}, {sT2} offen {ST}")
    a(f"s_add_u32 {sT2}, {sT2}, {13568 - 8192}")
    a(f"buffer_store_dwordx4 {Z4}, {t0}, {rWS}, {sT2} offen {ST}")
    for n in range(5):
        a(f"v_add_u32 {t1}, {4*n}, {vqd}")
        a(f"v_add_u32 {t1}, {sT1}, {t1}")
        a(f"v_and_b32 {t3}, 7, {t1}")
        a(f"v_lshlrev_b32 {t3}, 1, {t3}")
        a(f"v_xor_b32 {t2}, {vl15}, {t3}")
        a(f"v_mul_u32_u24 {t1}, 1280, {t1}")
        a(f"v_lshl_add_u32 {vat[n]}, {t2}, 4, {t1}")
        if n % 4: a(f"v_subrev_u32 {vat[n]}, {1024*(n%4)}, {vat[n]}")
    a(f"v_lshl_add_u32 {t0}, {vqd}, 2, {vr}")
    a(f"v_and_b32 {t1}, 7, {t0}")
    a(f"v_lshlrev_b32 {t1}, 1, {t1}")
    a(f"v_mul_u32_u24 {t0}, 1280, {t0}")
    a(f"v_and_b32 {t2}, 1, {vc}")
    a(f"v_lshl_add_u32 {t0}, {t2}, 3, {t0}")
    a(f"v_lshrrev_b32 {t3}, 1, {vc}")
    a(f"s_mul_i32 {sT0}, {sWV}, 10")
    a(f"v_add_u32 {t4}, {sT0}, {t3}")
    for j in range(5):
        a(f"v_add_u32 {rf[j]}, {2*j}, {t4}")
        a(f"v_xor_b32 {rf[j]}, {rf[j]}, {t1}")
        a(f"v_lshl_add_u32 {rf[j]}, {rf[j]}, 4, {t0}")
    a(f"v_mul_u32_u24 {t0}, 20, {vqd}")
    a(f"v_add_u32 {t0}, {t0}, {vr}")
    a(f"v_lshlrev_b32 {t0}, 8, {t0}")
    a(f"v_lshl_add_u32 {t0}, {t2}, 3, {t0}")
    a(f"s_lshl_b32 {sT0}, {sWV}, 1")
    a(f"v_add_u32 {t4}, {sT0}, {t3}")
    a(f"v_xor_b32 {t4}, {t4}, {t1}")
    a(f"v_lshl_add_u32 {rat[0]}, {t4}, 4, {t0}")
    a(f"v_xor_b32 {rat[1]}, 128, {rat[0]}")
    a(f"v_lshlrev_b32 {vst}, 4, {lane}")
    a(f"v_add_u32 {vst4}, 4096, {vst}")
    def u_proc(buf, typ, F):
        if typ == 'F':
            for j in range(5):
                a(f"v_add_u32 {t0}, {buf*40960}, {rf[j]}")
                for rd in range(2):
                    a(f"ds_read_b64_tr_b16 {F[j][2*rd:2*rd+2]}, {t0} offset:{rd*20480}")
            a(f"s_mul_i32 {sST}, {sWV}, 74")
            a(f"s_add_u32 {sST}, {sST}, {sU}")
            a(f"s_mul_i32 {sST}, {sST}, 5120")
            a(f"s_add_u32 {sST}, {sST}, {BP}")
            a("s_waitcnt lgkmcnt(0)")
            for j in range(5):
                if j < 4: a(f"buffer_store_dwordx4 {F[j]}, {vst}, {rWS}, {sST} offen offset:{j*1024} {ST}")
                else: a(f"buffer_store_dwordx4 {F[j]}, {vst4}, {rWS}, {sST} offen {ST}")
        else:
            bases = [(0, 4), (8, 12), (16, 96), (80, 84), (88, 92)]
            a(f"v_add_u32 {t0}, {buf*40960}, {rat[0]}")
            a(f"v_add_u32 {t1}, {buf*40960}, {rat[1]}")
            a(f"v_lshrrev_b32 {t4}, 1, {vqd}"); a(f"v_mul_u32_u24 {t4}, {40*256}, {t4}"); a(f"v_add_u32 {t4}, {t4}, {t0}")
            for s5 in range(5):
                for rd in range(2):
                    b = bases[s5][rd]
                    if s5 == 2: a(f"ds_read_b64_tr_b16 {F[s5][2*rd:2*rd+2]}, {t4} offset:{(16 + 40*rd)*256}")
                    else: a(f"ds_read_b64_tr_b16 {F[s5][2*rd:2*rd+2]}, {t1 if b % 8 else t0} offset:{b*256}")
            a(f"s_sub_u32 {sT2}, {sU}, 54")
            a(f"s_mul_i32 {sT3}, {sT2}, 52")
            a(f"s_lshr_b32 {sT3}, {sT3}, 8")
            a(f"s_mul_i32 {sT0}, {sT3}, 5")
            a(f"s_sub_u32 {sT2}, {sT2}, {sT0}")
            a(f"s_lshl_b32 {sT2}, {sT2}, 3")
            a(f"s_add_u32 {sT2}, {sT2}, {sWV}")
            a(f"s_mul_i32 {sT1}, {sT2}, 52")
            a(f"s_lshr_b32 {sT1}, {sT1}, 8")
            a(f"s_mul_i32 {sST}, {sT1}, 5")
            a(f"s_sub_u32 {sT2}, {sT2}, {sST}")
            a(f"s_mul_i32 {sST}, {sT1}, 74")
            a(f"s_add_u32 {sST}, {sST}, {sT0}")
            a(f"s_add_u32 {sST}, {sST}, 54")
            a(f"s_mul_i32 {sST}, {sST}, 5120")
            a(f"s_lshl_b32 {sT2}, {sT2}, 10")
            a(f"s_add_u32 {sST}, {sST}, {sT2}")
            a(f"s_add_u32 {sST}, {sST}, {BP}")
            a("s_waitcnt lgkmcnt(0)")
            for s5 in range(5):
                a(f"buffer_store_dwordx4 {F[s5]}, {vst}, {rWS}, {sST} offen {ST}")
                if s5 < 4: a(f"s_add_u32 {sST}, {sST}, 5120")
    vm = VmTrack()
    for t in ['D0']*5 + ['D1']*5 + ['D2']*5 + ['Z']*2: vm.issue(t)
    def sp_signal(k):
        lsk = a.newlabel('SPD')
        a(f"s_cmp_lg_u32 {sWV}, 7"); a(f"s_cbranch_scc1 {lsk}")
        a(f"v_mov_b32 {t2}, 0"); a(f"v_mov_b32 {t3}, 1")
        a("s_mov_b64 exec, 1")
        a(f"buffer_atomic_add {t3}, {t2}, {rDBG}, 0 offen offset:{4*k} sc0 sc1")
        a("s_waitcnt vmcnt(0)")
        a(f"v_cmp_eq_u32 vcc, 15, {t3}")
        a("s_and_b64 exec, exec, vcc")
        a(f"buffer_store_dword {t3}, {t2}, {rDBG}, 0 offen offset:{128 + 4*k} sc1")
        a("s_mov_b64 exec, -1")
        a.label(lsk)
    for it in range(5):
        n = vm.wait_for(lambda t: t == f'D{it}' or (it == 3 and t == 'S2') or (it == 2 and t == 'S1'))
        a(f"s_waitcnt vmcnt({n})")
        a("s_barrier")
        if it == 2: sp_signal(0); stamp(a, 1)
        if it == 3: sp_signal(2)
        dyn(it, lambda typ: u_proc(it % 3, typ, FR[it & 1]))
        for _ in range(5): vm.issue(f'S{it}')
        if it == 2 and T2 and OPT['t2s']:
            for l in t2_one(OPT['t2s'], 7): a(l)
        if it in (1, 2):
            dyn(it + 2, lambda typ: u_dma(it - 1, typ))
            for _ in range(5): vm.issue(f'D{it+2}')
    a("s_waitcnt vmcnt(0)")
    a("s_barrier")
    sp_signal(1)
    stamp(a, 2)
    GW = [V(72 + 4*i, 4) for i in range(5)]
    GX = [[V(96 + (g*5 + i)*4, 4) for i in range(5)] for g in range(4)]
    GA = [V(92 + g) for g in range(4)]
    srd(a, rW, pGW, 1280)
    a(f"v_lshlrev_b32 {t0}, 4, {vl15}")
    for i in range(5): a(f"buffer_load_dwordx4 {GW[i]}, {t0}, {rW}, 0 offen offset:{i*256}")
    a(f"v_mul_u32_u24 {t1}, 1280, {vqd}")
    a(f"v_add_u32 {t0}, {t0}, {t1}")
    a(f"s_lshl_b32 {sT3}, {sSP}, 3")
    a(f"s_add_u32 {sT3}, {sT3}, {sWV}")
    a(f"s_mul_i32 {sT2}, {sT3}, {16*1280}")
    for g in range(4):
        for i in range(5): a(f"buffer_load_dwordx4 {GX[g][i]}, {t0}, {rX}, {sT2} offen offset:{i*256}")
        if g < 3: a(f"s_add_u32 {sT2}, {sT2}, {4*1280}")
    for g in range(4): a(f"v_mov_b32 {GA[g]}, 0")
    init_poll(a, t1, 128)
    for i in range(5):
        for k in range(4):
            for g in range(4): a(f"v_dot2c_f32_bf16 {GA[g]}, {GX[g][i][k]}, {GW[i][k]}")
    for sh in (8, 4, 2, 1):
        for g in range(4): a(f"v_add_f32_dpp {GA[g]}, {GA[g]}, {GA[g]} row_ror:{sh} row_mask:0xf bank_mask:0xf")
    for g in range(4): a(f"v_mul_f32 {GA[g]}, {LOG2E:#x}, {GA[g]}")
    for g in range(4): a(f"v_min_f32 {GA[g]}, 0x42a00000, {GA[g]}")
    for g in range(4): a(f"v_exp_f32 {GA[g]}, {GA[g]}")
    a(f"v_mov_b32 {t2}, {GA[0]}")
    for g in range(1, 4):
        a(f"v_cmp_eq_u32 vcc, {g}, {vl15}"); a(f"v_cndmask_b32 {t2}, {t2}, {GA[g]}, vcc")
    a(f"v_lshl_add_u32 {t0}, {vl15}, 2, {vqd}")
    a(f"v_lshlrev_b32 {t3}, 2, {t0}")
    a(f"s_lshl_b32 {sT2}, {sT3}, 6"); a(f"s_add_u32 {sT2}, {sT2}, {GOFF}")
    a("s_mov_b32 exec_lo, 0x000f000f"); a("s_mov_b32 exec_hi, 0x000f000f")
    a(f"buffer_store_dword {t2}, {t3}, {rWS}, {sT2} offen {ST}")
    a("s_mov_b64 exec, -1")
    a(f"s_lshr_b32 {sFLAG}, {sT3}, 2"); a(f"s_lshl_b32 {sFLAG}, {sFLAG}, 7"); a(f"s_add_u32 {sFLAG}, {sFLAG}, {FH + 12}")
    flag_store(3)
    a(f"v_mov_b32 {vFQ}, 0")

    vm = VmTrack()
    a(f"s_mov_b32 {sPF}, 7")
    a.label('P2')
    stamp(a, 3)
    a(f"s_bitcmp0_b32 {sPF}, 0"); a("s_cbranch_scc1 P2_E1")
    for l in p2_setup() + poison(V(208, 4)): a(l)
    a.label('P2_E1')
    vG = V(16, 4); vz = V(11); ka = V(12); kw = V(13); vbl = V(15); vcn = V(14)
    ACC = [[V(72 + (tt * 5 + j) * 4, 4) for j in range(5)] for tt in range(4)]
    ARl = [V(152 + 4 * i, 4) for i in range(14)] + [V(248, 4), V(24, 4)]
    AR = [ARl[4*b:4*b+4] for b in range(4)]
    sFHo = S(78)
    rOUT = rX
    if OPT['noa'] == 1: srd(a, rA, pWS, 0)
    a(f"v_mov_b32 {vz}, 0")
    a(f"v_mov_b32 {vcn}, {CNT}")
    a(f"v_add_u32 {vbl}, {sLC}, {vo}")
    vbl2 = V(23)
    a(f"v_add_u32 {vbl2}, {3*20480}, {vbl}")
    def lrow(row, j):
        return (vbl, row*20480 + j*1024) if row < 3 else (vbl2, (row-3)*20480 + j*1024)
    def a_loads(i, tag, vts=None, r=None):
        b = i % 4; r = r or rWS
        if OPT['noa'] == 1: r = rA
        if OPT['noa'] == 2: return [f"s_mov_b32 {sT0}, {sAo}"] + [(f"buffer_load_dwordx4 {AR[b][tt]}, {vo}, {r}, {sT0} offen offset:{tt*1024} {LD}", vm.issue(tag))[0] for tt in range(4)]
        l = [f"s_add_u32 {sT0}, {sAo}, {((i*16384 if i < 4 else CA0 + (i-4)*16384) if vts else GRP[i]*16384)}"]
        for tt in range(4):
            if vts: l.append(f"buffer_load_dwordx4 {AR[b][tt]}, {vts[tt]}, {r}, {sT0} offen {LD}")
            else: l.append(f"buffer_load_dwordx4 {AR[b][tt]}, {vo}, {r}, {sT0} offen offset:{tt*1024} {LD}")
            vm.issue(tag)
        return l
    def b_fromlds(i, row):
        return ["ds_read_b128 %s, %s offset:%d" % ((BR[i % 4][j],) + lrow(row, j)) for j in range(5)]
    def mm(b, zero, side=[], every=2):
        side = list(side)
        for j in range(5):
            for tt in range(4):
                d = ACC[tt][j]
                a(f"v_mfma_f32_16x16x32_bf16 {d}, {BR[b][j]}, {AR[b][tt]}, {'0' if tt in zero else d}")
                while side and side[0].startswith('s_'): a(side.pop(0))
                if side and tt % every == every - 1: a(side.pop(0))
        for l in side: a(l)
    def g_load():
        a(f"s_lshl_b32 {sT0}, {sR6}, 8"); a(f"s_add_u32 {sT0}, {sT0}, {GOFF}")
        a(f"v_lshlrev_b32 {t0}, 4, {vl15}")
        a(f"buffer_load_dwordx4 {vG}, {t0}, {rWS}, {sT0} offen {LD}")
    def lds_signal(off):
        a(f"v_mov_b32 {t1}, 1")
        a("s_waitcnt lgkmcnt(0)")
        a("s_mov_b64 exec, 1")
        a(f"ds_add_u32 {vcn}, {t1} offset:{off}")
        a("s_mov_b64 exec, -1")
    def lds_wait(off, n):
        L = a.newlabel('LW')
        a.label(L)
        a(f"ds_read_b32 {t1}, {vcn} offset:{off}")
        a("s_waitcnt lgkmcnt(0)")
        a(f"v_readfirstlane_b32 {sT0}, {t1}")
        a(f"s_cmp_ge_u32 {sT0}, {n}")
        a(f"s_cbranch_scc1 {L}d")
        a("s_sleep 1")
        a(f"s_branch {L}")
        a.label(L + 'd')
    vAT = V(29); vFG = V(28)
    PB = V(176, 12); PU = V(152, 20)
    def pq_loads():
        a(f"s_lshl3_add_u32 {sT0}, {sR6}, {sCG}")
        a(f"s_mul_i32 {sT0}, {sT0}, 10240"); a(f"s_add_u32 {sT0}, {sT0}, {PQ}")
        a(f"s_lshl_b32 {sT1}, {sRG}, 11"); a(f"s_add_u32 {sT1}, {sT1}, {sT0}")
        for h in range(2): a(f"buffer_load_dwordx4 {PB[4*h:4*h+4]}, {vo}, {rWS}, {sT1} offen offset:{h*1024} {LD}")
        a(f"s_lshr_b32 {sT1}, {sRG}, 1"); a(f"s_lshl_b32 {sT1}, {sT1}, 10"); a(f"s_add_u32 {sT0}, {sT0}, {sT1}")
        a(f"s_and_b32 {sT1}, {sRG}, 1"); a(f"s_lshl3_add_u32 {sT0}, {sT1}, {sT0}"); a(f"s_add_u32 {sT0}, {sT0}, 8192")
        a(f"buffer_load_dwordx2 {PB[8:10]}, {vo}, {rWS}, {sT0} offen {LD}")
    sQF = S(83)
    a(f"v_readfirstlane_b32 {sQF}, {vFQ}")
    a(f"s_cmp_eq_u32 {sHI}, 1"); a(f"s_cselect_b32 {sQF}, 0, {sQF}")
    a(f"s_cmp_eq_u32 {sQF}, 0"); a("s_cbranch_scc1 P2_NQ")
    pq_loads()
    a.label('P2_NQ')
    a(f"buffer_load_dword {vS2}, {vz}, {rDBG}, 0 offen offset:132 sc1")
    a(f"v_mov_b32 {vAT}, 1"); a(f"v_mov_b32 {t1}, 1")
    a("s_waitcnt vmcnt(0) lgkmcnt(0)")
    a("s_mov_b64 exec, 1")
    a(f"ds_add_rtn_u32 {t1}, {vcn}, {t1} offset:16")
    a(f"s_cmp_eq_u32 {sPF}, 4"); a("s_cbranch_scc1 P2_A2")
    a(f"buffer_atomic_add {vAT}, {vz}, {rWS}, {sFLAG} offen sc0 sc1")
    a.label('P2_A2')
    a("s_mov_b64 exec, -1")
    def go_logic(n, st=True):
        lb = a.newlabel('GO')
        a(f"s_waitcnt vmcnt({n})")
        a(f"v_readfirstlane_b32 {sP[0]}, {vAT}")
        a(f"s_add_u32 {sP[1]}, {sFLAG}, {GOD}")
        a(f"s_cmp_lg_u32 {sP[0]}, {sNEED}")
        a(f"s_cbranch_scc1 {lb}")
        a("s_mov_b64 exec, 1")
        a(f"buffer_store_dword {vAT}, {vz}, {rWS}, {sP[1]} offen sc1")
        a("s_mov_b64 exec, -1")
        a.label(lb)
        if st: stamp(a, 4)
    a(f"s_cmp_eq_u32 {sHI}, 0")
    a("s_cbranch_scc1 P2_C")
    go_logic(0)
    a("s_setprio 0")
    init_check(vS2, 132)
    if OPT['bt']:
        a("s_lshr_b32 s4, s2, 6"); a(f"s_lshl2_add_u32 s4, s4, {sRG}"); a(f"s_mul_i32 s4, s4, {65*128}")
        a(f"s_mul_i32 s5, {sCG}, {74*5120}"); a("s_add_u32 s4, s4, s5"); a(f"s_add_u32 s4, s4, {BP + 48*5120}")
        a(f"v_lshlrev_b32 {t2}, 7, {lane}")
        a(f"buffer_load_dword {t3}, {t2}, {rWS}, s4 offen sc1")
    a(f"s_cmp_lt_u32 {sRG}, 2"); a(f"s_cselect_b32 {rB[2]}, {WSZ}, 0")
    a(f"s_cmp_lt_u32 {sPF}, 6"); a("s_cbranch_scc1 P2_E2")
    for b in range(4):
        for l in b_reg(vm, b, 'B'): a(l)
    lds_wait(16, 8)
    for k in range(4):
        for l in b_row(vm, sBg, GRP[GL[k]], LR[k]): a(l)
    a.label('P2_E2')
    lds_wait(16, 8)
    for k in range(3):
        for l in b_row(vm, sBg, k, CR[k], None, 54*5120): a(l)
    a(f"s_cmp_eq_u32 {sPF}, 4"); a("s_cbranch_scc1 P2_GK")
    NG = 10
    for variant in (0, 1):
        GLv = GL if variant == 0 else []
        if variant == 1: a.label('P2_GK')
        if OPT['at']:
            a(f"s_mul_i32 {sT1}, {sR6}, {74*4096}"); a(f"s_lshl2_add_u32 {sT2}, {sCG}, {sRG}"); a(f"s_mul_i32 {sT2}, {sT2}, {54*128}"); a(f"s_add_u32 {sT1}, {sT1}, {sT2}")
            a(f"v_lshlrev_b32 {t2}, 7, {lane}")
        if OPT['at'] == 3: vpoll(a, vz, sFHo, 0, t1, f"s_mov_b32 exec_hi, 0x3fffff\nbuffer_load_dword {t3}, {t2}, {rWS}, {sT1} offen sc1\ns_mov_b32 exec_hi, -1", OPT['tsl'])
        else: vpoll(a, vz, sFHo, 0, t1)
        lds_signal(20)
        a(f"s_setprio {OPT['gprio']}")
        vm = VmTrack()
        stamp(a, 5)
        if OPT['at'] == 1:
            a("s_mov_b32 exec_hi, 0x3fffff"); a(f"buffer_load_dword {t3}, {t2}, {rWS}, {sT1} offen sc1"); a("s_mov_b32 exec_hi, -1")
        if OPT['stamp'] == 4: a("s_memtime s[92:93]")
        for s in range(4):
            for l in a_loads(s, ('A', s)): a(l)
            if OPT['at'] == 2 and s == 0:
                a("s_mov_b32 exec_hi, 0x3fffff"); a(f"buffer_load_dword {t3}, {t2}, {rWS}, {sT1} offen sc1"); a("s_mov_b32 exec_hi, -1"); vm.issue('T')
        for s in range(NG - 1):
            n = vm.wait_for(lambda t: t in (('A', s), ('B', s)))
            a(f"s_waitcnt vmcnt({n})" + (f" lgkmcnt({5*sum(1 for x in (s+1, s+2) if x in GLv)})" if s in GLv else ""))
            if s == 0: stamp(a, 6)
            if OPT['stamp'] == 4:
                a("s_waitcnt lgkmcnt(0)")
                a(f"v_writelane_b32 v255, s92, {40 + s}")
                a("s_memtime s[92:93]")
            side = []
            if OPT['fair'] and s in eval(OPT['fg']): a(f"s_setprio {eval(OPT['fg'])[s]}")
            if 1 <= s and s + 3 < NG:
                rr = rB if GRP[s + 3] == 13 else None
                side = a_loads(s + 3, ('A', s + 3), None, rr) + (b_fromlds(s + 3, LR[GLv.index(s + 3)]) if s + 3 in GLv else b_reg(vm, s + 3, ('B', s + 3), rr, GRP[s + 3]))
            mm(s % 4, range(4) if s == 0 else [], side)
        if variant == 0: a("s_branch P2_GL")
    a.label('P2_GL')
    a("s_waitcnt vmcnt(0) lgkmcnt(0)")
    if OPT['stamp'] == 4:
        a(f"v_writelane_b32 v255, s92, {49}"); a("s_memtime s[92:93]"); a("s_waitcnt lgkmcnt(0)"); a(f"v_writelane_b32 v255, s92, {50}")
    for tt in range(4):
        for j in range(5):
            d = ACC[tt][j]
            a(f"v_mfma_f32_16x16x32_bf16 {d}, {BR[1][j]}, {AR[1][tt]}, {d}")
            if tt >= 2: a("ds_write_b128 %s, %s offset:%d" % (lrow(tt, j)[0], ACC[tt-2][j], lrow(tt, j)[1]))
    for tt in (2, 3):
        for j in range(5): a("ds_write_b128 %s, %s offset:%d" % (lrow(tt+2, j)[0], ACC[tt][j], lrow(tt+2, j)[1]))
    lds_signal(4)
    stamp(a, 10)
    a("s_branch P2_FIN")
    a.label('P2_C')
    P = V(72, 20)
    a("s_setprio 3")
    a(f"s_cmp_lg_u32 {sQF}, 0"); a("s_cbranch_scc1 P2_C1")
    go_logic(0)
    a(f"s_mov_b32 {sNEED}, -1")
    vpoll(a, vz, sFHo, 4, t1)
    pq_loads()
    a("s_waitcnt vmcnt(0)")
    a.label('P2_C1')
    a(f"buffer_load_dword {vFG}, {vz}, {rWS}, {sFHo} offen offset:12 sc1")
    GV = [V(22), V(252), V(10), V(8)]
    GLd = [t3, V(188), V(189), V(190)]
    srd(a, rOUT, pOUT, 2048 * 1280)
    a(f"v_lshl_add_u32 {kw}, {vr}, 2, {vqd}")
    a(f"v_lshlrev_b32 {kw}, 6, {kw}")
    a(f"v_lshl_add_u32 {kw}, {vc}, 3, {kw}")
    a(f"s_mul_i32 {sT0}, {sRG}, 3088"); a(f"s_add_u32 {sT0}, {sT0}, {KVB}")
    a(f"v_add_u32 {kw}, {sT0}, {kw}")
    a(f"v_mul_u32_u24 {t4}, 3088, {vqd}")
    a(f"v_lshl_add_u32 {t4}, {vr}, 6, {t4}")
    a(f"v_add_u32 {t4}, {KVB}, {t4}")
    a(f"v_mov_b32 {ka}, {ZERO + 8}")
    a(f"v_cmp_eq_u32 vcc, {vc}, {vqd}")
    a(f"v_cndmask_b32 {ka}, {ka}, {t4}, vcc")
    VT = [V(16), V(17), V(18), V(19)]
    for i in range(4):
        a(f"s_add_u32 {sT0}, {sRG}, {i}"); a(f"s_and_b32 {sT0}, {sT0}, 3"); a(f"s_lshl_b32 {sT0}, {sT0}, 10")
        a(f"v_add_u32 {VT[i]}, {sT0}, {vo}")
    for i in range(10):
        a(f"v_lshlrev_b32 {PU[2*i]}, 16, {PB[i]}")
        a(f"v_and_b32 {PU[2*i+1]}, 0xffff0000, {PB[i]}")
    gl = (f"s_waitcnt vmcnt(1)\nv_readfirstlane_b32 {sP[0]}, {vAT}\ns_add_u32 {sP[1]}, {sFLAG}, {GOD}\ns_cmp_lg_u32 {sP[0]}, {sNEED}\ns_cbranch_scc1 GOC\n"
          f"s_mov_b64 exec, 1\nbuffer_store_dword {vAT}, {vz}, {rWS}, {sP[1]} offen sc1\ns_mov_b64 exec, -1\nGOC:")
    softmax_unit(a, PU, V(92, 40), V(132, 4), V(136, 4), P, ["s_nop 0"] * 19 + [gl])
    a("s_waitcnt vmcnt(0)")
    a(f"v_cmp_ne_u32 vcc, 0, {vFG}"); a("s_nop 0"); a("s_cbranch_vccnz P2_GOK")
    vpoll(a, vz, sFHo, 12, t1)
    a.label('P2_GOK')
    a(f"v_lshlrev_b32 {t0}, 2, {vl15}")
    a(f"s_lshl2_add_u32 {sT0}, {sR6}, {sRG}")
    a(f"s_lshl_b32 {sT0}, {sT0}, 6"); a(f"s_add_u32 {sT0}, {sT0}, {GOFF}")
    a(f"buffer_load_dword {t3}, {t0}, {rWS}, {sT0} offen {LD}")
    stamp(a, 5)
    init_check(vS2, 132)
    lds_wait(16, 8)
    a(f"s_lshl_b32 {sT2}, {sCG}, 7"); a(f"s_add_u32 {sT2}, {sT2}, {FK + GOD}")
    a(f"s_lshl_b32 {sT3}, {sCG}, 2"); a(f"s_add_u32 {sT3}, {sT3}, {sRG}")
    a(f"s_mul_i32 {sT3}, {sT3}, 6144"); a(f"s_add_u32 {sT3}, {sT3}, {KVACC}")
    sNB = S(81)
    def cb(i): return b_reg(vm, i, 'B') if i < 4 else b_row(vm, sBo, i - 4, CR[i - 4], None, CB0)
    a(f"s_cmp_lt_u32 {sPF}, 6"); a("s_cbranch_scc1 P2_K4")
    for i in range(4):
        a(f"s_mov_b32 {sNB}, {i}")
        a(f"buffer_load_dword {t1}, {vz}, {rWS}, {sT2} offen sc1")
        a("s_waitcnt vmcnt(0)")
        a(f"v_cmp_ne_u32 vcc, 0, {t1}"); a("s_nop 0"); a("s_cbranch_vccnz P2_KGO")
        for l in cb(i): a(l)
    a.label('P2_K4')
    a(f"s_mov_b32 {sNB}, 4")
    vpoll(a, vz, sT2, 0, t1)
    a.label('P2_KGO')
    stamp(a, 6)
    KL = [V(92 + 4 * i, 4) for i in range(6)]
    a(f"s_mov_b32 {sTO}, 0x80000")
    a("s_mov_b32 s82, 0x41000000")
    a.label('KVRETRY')
    for i in range(6):
        if i < 4: a(f"buffer_load_dwordx4 {KL[i]}, {vo}, {rWS}, {sT3} offen offset:{i*1024} {LD}")
        else: a(f"buffer_load_dwordx4 {KL[i]}, {vo4}, {rWS}, {sT3} offen offset:{(i-4)*1024} {LD}")
    for i in range(6):
        a(f"s_waitcnt vmcnt({5-i})")
        a(f"v_cvt_pk_bf16_f32 {KL[i][0]}, {KL[i][0]}, {KL[i][1]}")
        a(f"v_cvt_pk_bf16_f32 {KL[i][1]}, {KL[i][2]}, {KL[i][3]}")
        a(f"ds_write_b64 {kw}, {KL[i][0:2]} offset:{(i % 3)*1024 + (i // 3)*32}")
    a(f"v_min3_f32 {t1}, {KL[0][3]}, {KL[1][3]}, {KL[3][3]}")
    a(f"v_min_f32 {t4}, {KL[2][3]}, {KL[5][3]}")
    a(f"v_min_f32 {t1}, {t1}, {KL[4][3]}")
    a(f"v_cmp_neq_f32 vcc, s82, {t4}")
    a(f"v_cmp_neq_f32 {sP}, s82, {t1}")
    a("s_and_b32 s4, vcc_lo, 0x00880088"); a("s_and_b32 s5, vcc_hi, 0x00880088"); a("s_or_b32 s4, s4, s5")
    a(f"s_or_b32 s5, {sP[0]}, {sP[1]}"); a("s_and_b32 s5, s5, 0x88888888"); a("s_or_b32 s4, s4, s5")
    a("s_cbranch_scc0 KVOK")
    a("s_waitcnt lgkmcnt(0)")
    a("s_sleep 4")
    a(f"s_sub_u32 {sTO}, {sTO}, 1")
    a("s_cbranch_scc0 KVRETRY")
    a.label('KVOK')
    lds_signal(0)
    lds_wait(0, 4)
    stamp(a, 16)
    AFl = [V(92 + 4 * i, 4) for i in range(15)]
    D = [V(152 + 4 * t, 4) for t in range(6)]
    O = V(176, 12)
    order = [5, 0, 1, 2, 3, 4]
    fr = [(t, s) for s in range(5) for t in order]
    def rdl(k):
        t, s_ = fr[k]
        return [f"ds_read_b64_tr_b16 {AFl[k % 15][2*r_:2*r_+2]}, {ka} offset:{s_*512 + r_*256 + (t*8 if t < 3 else t*8 + 8)}" for r_ in range(2)]
    AH = 7
    for k in range(AH):
        for l in rdl(k): a(l)
    def fin(t):
        for h in range(4): a(f"v_mul_f32 {D[t][h]}, {D[t][h]}, {t2}")
        a(f"v_cvt_pk_bf16_f32 {O[2*t]}, {D[t][0]}, {D[t][1]}")
        a(f"v_cvt_pk_bf16_f32 {O[2*t+1]}, {D[t][2]}, {D[t][3]}")
    for k in range(30):
        t, s_ = fr[k]
        a(f"s_waitcnt lgkmcnt({2 * min(AH - 1, 29 - k)})")
        a(f"v_mfma_f32_16x16x32_bf16 {D[t]}, {AFl[k % 15]}, {P[4*s_:4*s_+4]}, {'0' if s_ == 0 else D[t]}")
        if k + AH < 30:
            for l in rdl(k + AH): a(l)
        if OPT['sent'] and k == OPT['oh1']:
            a(f"s_sub_u32 {sFLAG}, {sFHo}, {GOD - 8}"); a(f"s_mov_b32 {sNEED}, 31"); a(f"v_mov_b32 {vAT}, 1")
            a("s_mov_b64 exec, 1"); a(f"buffer_atomic_add {vAT}, {vz}, {rWS}, {sFLAG} offen sc0 sc1"); a("s_mov_b64 exec, -1")
    stamp(a, 19)
    a(f"v_add_f32 {t2}, 0x358637bd, {D[5][0]}")
    a(f"v_rcp_f32 {t2}, {t2}")
    a(f"v_mul_f32 {t2}, {t2}, {t3}")
    fin(0); fin(1)
    a(f"buffer_store_dwordx4 {O[0:4]}, {vo}, {rWS}, {sO1} offen {ST}")
    fin(2); fin(3)
    a(f"buffer_store_dwordx4 {O[4:8]}, {vo4}, {rWS}, {sO1} offen {ST}")
    fin(4)
    a(f"v_mov_b32 {O[10]}, {O[8]}"); a(f"v_mov_b32 {O[11]}, {O[9]}")
    a(f"v_permlane32_swap_b32 {O[8]}, {O[10]}"); a(f"v_permlane32_swap_b32 {O[9]}, {O[11]}")
    a("s_mov_b32 exec_hi, 0")
    a(f"buffer_store_dwordx4 {O[8:12]}, {vo}, {rWS}, {sO2} offen {ST}")
    a("s_mov_b32 exec_hi, -1")
    stamp(a, 17)
    if not OPT['sent']:
        a(f"s_sub_u32 {sT2}, {sFHo}, {GOD - 8}")
        arrive(a, sT2, 31, t0, t1)
    else: go_logic(3, False)
    stamp(a, 7)
    for i in range(4):
        lb = a.newlabel('CB')
        a(f"s_cmp_gt_u32 {sNB}, {i}"); a(f"s_cbranch_scc1 {lb}")
        for l in cb(i): a(l)
        a.label(lb)
    XB = [V(28), V(13), V(30)]; XW = V(31); GB = V(12)
    for q in range(1, 4):
        a(f"s_sub_u32 {sT0}, {sRG}, {q}"); a(f"s_and_b32 {sT0}, {sT0}, 3"); a(f"s_mul_i32 {sT0}, {sT0}, 5120")
        a(f"s_add_u32 {sT0}, {sT0}, {CR[q-1]*20480}")
        a(f"v_add_u32 {XB[q-1]}, {sT0}, {vo}")
    a(f"v_add_u32 {XW}, {6*20480}, {vbl}")
    def crow(k, j): return (vbl, CR[k]*20480 + j*1024) if k < 2 else (XW, j*1024)
    a(f"s_add_u32 {sT0}, {sRG}, 2"); a(f"s_mul_i32 {sT0}, {sT0}, 20480"); a(f"v_add_u32 {GB}, {sT0}, {vo}")
    a(f"v_mul_u32_u24 {t0}, 1280, {vl15}")
    a(f"v_lshl_add_u32 {t0}, {vqd}, 3, {t0}")
    a(f"s_lshl_b32 {sT2}, {sR6}, 2"); a(f"s_add_u32 {sT2}, {sT2}, {sRG}"); a(f"s_mul_i32 {sT2}, {sT2}, {16*1280}")
    a(f"s_mul_i32 {sT3}, {sCG}, 160"); a(f"s_add_u32 {sT2}, {sT2}, {sT3}")
    a(f"v_add_f32 {V(22)}, 1.0, {t3}"); a(f"v_rcp_f32 {V(22)}, {V(22)}")
    lds_wait(20, 4)
    a(f"s_setprio {OPT['cprio']}")
    if OPT['stamp'] == 4: a("s_memtime s[92:93]")
    vm = VmTrack()
    for s in range(4):
        for l in a_loads(s, ('A', s), VT): a(l)
    GT = [BR[1], BR[2], BR[3], AR[1] + [AR[2][0]]]
    OC = OPT['oc']
    for s in range(9):
        n = vm.wait_for(lambda t: t in (('A', s), ('B', s)) or (s == OC and t == 'of'))
        if s == 8:
            lds_wait(4, 4)
            stamp(a, 8)
            for w in range(2):
                for j in range(5): a(f"ds_read_b128 {GT[w][j]}, {GB} offset:{w*5120 + j*1024}")
        a(f"s_waitcnt vmcnt({n})" + (" lgkmcnt(0)" if s == 4 else ""))
        if OPT['stamp'] == 4:
            a("s_waitcnt lgkmcnt(0)")
            a(f"v_writelane_b32 v255, s92, {40 + s}")
            a("s_memtime s[92:93]")
        if s == OC:
            stamp(a, 18)
            a(f"v_cmp_ne_u32 vcc, 0, {t2}"); a("s_nop 0"); a("s_cbranch_vccnz P2_OOK")
            vpoll(a, vz, sFHo, 8, t2)
            a.label('P2_OOK')
            a(f"s_mov_b32 {sTO}, 0x40000")
            stamp(a, 9)
        if OPT['sent'] and s >= 4:
            a.label(f'VER{s}')
            regs = [AR[s % 4][tt][k] for tt in range(4) for k in range(4)]
            a(f"v_max3_u32 {t4}, {regs[0]}, {regs[1]}, {regs[2]}")
            a(f"v_max3_u32 {t1}, {regs[3]}, {regs[4]}, {regs[5]}")
            for k in (6, 10):
                a(f"v_max3_u32 {t4}, {t4}, {regs[k]}, {regs[k+1]}"); a(f"v_max3_u32 {t1}, {t1}, {regs[k+2]}, {regs[k+3]}")
            a(f"v_max3_u32 {t4}, {t4}, {regs[14]}, {regs[15]}")
            a(f"v_max_u32 {t4}, {t4}, {t1}")
            a(f"v_cmp_eq_u32 vcc, -1, {t4}")
            a("s_nop 0")
            a(f"s_cbranch_vccnz RET{s}")
            a.label(f'VOK{s}')
        side = []
        if OPT['fair'] and s in eval(OPT['fc']): a(f"s_setprio {eval(OPT['fc'])[s]}")
        if s == OC - 1:
            side.append(f"buffer_load_dword {t2}, {vz}, {rWS}, {sFHo} offen offset:8 sc1"); vm.issue('of')
        if s == OC:
            for q in range(4, s + 4): side += a_loads(q, ('A', q), VT)
        elif s > OC and s + 3 < 9: side += a_loads(s + 3, ('A', s + 3), VT)
        if 1 <= s <= 3: side += ["ds_read_b128 %s, %s offset:%d" % ((BR[s-1][j],) + crow(s-1, j)) for j in range(5)]
        if s in (4, 5): side += b_reg(vm, s + 3, ('B', s + 3), None, s - 1, CB0)
        if s < 8: mm(s % 4, range(4) if s == 0 else [], side, 1 if len([x for x in side if not x.startswith('s_')]) > 10 else 2)
        else:
            for tt in (1, 2, 3, 0):
                for j in range(5):
                    d = ACC[tt][j]
                    a(f"v_mfma_f32_16x16x32_bf16 {d}, {BR[0][j]}, {AR[0][tt]}, {d}")
                    if tt in (1, 2): a(f"ds_read_b128 {GT[tt+1][j]}, {GB} offset:{(tt+1)*5120 + j*1024}")
                    pt = {1: None, 2: None, 3: 1, 0: 2}[tt]
                    if pt: a("ds_write_b128 %s, %s offset:%d" % (crow(pt-1, j)[0], ACC[pt][j], crow(pt-1, j)[1]))
            for j in range(5): a("ds_write_b128 %s, %s offset:%d" % (crow(2, j)[0], ACC[3][j], crow(2, j)[1]))
    if OPT['stamp'] == 4:
        a("s_waitcnt lgkmcnt(0)"); a(f"v_writelane_b32 v255, s92, {49}"); a("s_memtime s[92:93]"); a("s_waitcnt lgkmcnt(0)"); a(f"v_writelane_b32 v255, s92, {50}")
    a("s_waitcnt lgkmcnt(15)")
    for j in range(5):
        for h in range(2):
            sl = slice(2*h, 2*h+2)
            a(f"v_pk_add_f32 {GT[0][j][sl]}, {GT[0][j][sl]}, {GT[1][j][sl]}")
            a(f"v_pk_add_f32 {GT[2][j][sl]}, {GT[2][j][sl]}, {GT[3][j][sl]}")
    stamp(a, 10)
    lds_signal(8)
    for j in range(5):
        for h in range(2):
            sl = slice(2*h, 2*h+2)
            a(f"v_pk_add_f32 {GT[0][j][sl]}, {GT[0][j][sl]}, {GT[2][j][sl]}")
            a(f"v_pk_add_f32 {ACC[0][j][sl]}, {GT[0][j][sl]}, {ACC[0][j][sl]}")
    lds_wait(8, 4)
    RD = [ACC[1], ACC[2], ACC[3]]
    for q in range(3):
        for j in range(5): a(f"ds_read_b128 {RD[q][j]}, {XB[q]} offset:{j*1024}")
    for q in range(3):
        a(f"s_waitcnt lgkmcnt({10 - 5*q})")
        for j in range(5):
            for h in range(2): a(f"v_pk_add_f32 {ACC[0][j][2*h:2*h+2]}, {ACC[0][j][2*h:2*h+2]}, {RD[q][j][2*h:2*h+2]}")
            if q == 2:
                for h in range(2): a(f"v_pk_mul_f32 {ACC[0][j][2*h:2*h+2]}, {ACC[0][j][2*h:2*h+2]}, {V(22, 2)} op_sel_hi:[1,0]")
                a(f"v_cvt_pk_bf16_f32 {ACC[1][j][0]}, {ACC[0][j][0]}, {ACC[0][j][1]}")
                a(f"v_cvt_pk_bf16_f32 {ACC[1][j][1]}, {ACC[0][j][2]}, {ACC[0][j][3]}")
                a(f"buffer_store_dwordx2 {ACC[1][j][0:2]}, {t0}, {rOUT}, {sT2} offen offset:{j*32} {OPT['ost']}")
    a.label('P2_FIN')
    if OPT['stamp'] or OPT['pad']:
        a("s_waitcnt vmcnt(0)")
        stamp(a, 11)
    stamp_flush(a)
    if OPT['pad']:
        if OPT['padwg'] < 999: a(f"s_cmp_lg_u32 s2, {OPT['padwg']}"); a(f"s_cbranch_scc1 {END}")
        a.label('PADL')
        a("s_sleep 1"); a("s_memrealtime s[12:13]"); a("s_waitcnt lgkmcnt(0)"); a("s_sub_u32 s12, s12, s10")
        a(f"s_cmp_lt_u32 s12, {OPT['pad']*100}"); a("s_cbranch_scc1 PADL")
    a.label(END)
    a.label('K_LAST')
    a("s_endpgm")
    if OPT['sent']:
        for s in range(4, 9):
            a.label(f'RET{s}')
            a(f"s_sub_u32 {sTO}, {sTO}, 1")
            a(f"s_cselect_b32 {sTO}, 0, {sTO}")
            a(f"s_cbranch_scc1 VOK{s}")
            a(f"s_sleep {OPT['rsl']}")
            for l in a_loads(s, 'r', VT): a(l)
            a("s_waitcnt vmcnt(0)")
            a(f"s_branch VER{s}")

def build():
    hdr = open(f'cdna_kernels/{NAME}.s.ref').read().split('; Override launch')[0]
    name = NAME + '_kernel'
    out = hdr + "; @launch grid=(256,1,1) block=(512,1,1) lds=163840\n"
    out += '.amdgcn_target "amdgcn-amd-amdhsa--gfx950"\n.text\n'
    a = Asm(); kernel(a)
    out += f".globl {name}\n.p2align 8\n.type {name},@function\n{name}:\n" + a.finalize()
    print('instrs', len(a.ins), 'nops', a.nnop, file=sys.stderr)
    out += f""".section .rodata,"a"
.p2align 6
.amdhsa_kernel {name}
  .amdhsa_next_free_vgpr 256
  .amdhsa_next_free_sgpr 102
  .amdhsa_accum_offset 256
  .amdhsa_group_segment_fixed_size 0
  .amdhsa_kernarg_size 96
  .amdhsa_user_sgpr_count 2
  .amdhsa_user_sgpr_kernarg_segment_ptr 1
  .amdhsa_system_sgpr_workgroup_id_x 1
.end_amdhsa_kernel
"""
    return out

if __name__ == '__main__':
    outp = sys.argv[1]
    for o in sys.argv[2:]:
        k, v = o.split('=', 1); OPT[k] = int(v) if v.isdigit() else v
    open(outp, 'w').write(build())
```

```python
import sys
sys.path.insert(0, 'gen')
from asmlib import *
NAME = 'gated_mix__linear_kernel_hedgehog__swiglu_ffn__prompt'
AP = 0; BP = 0xA00000; PQ = 0xD00000; KVACC = 0x1200000; FH = 0x1230000; FK = 0x1232000; FP = 0x1234000; ZEND = 0x1235000
GOFF = 0x1240000; DUMMY = 0x1250000; STAMP = 0x1300000; WSZ = 0x1600000
LOG2E = 0x3fb8aa3b; NLOG2E = 0xbfb8aa3b
OPT = dict(stamp=0, touch=2, bs="{'p0':(0,2),'p1':(2,5),3:(5,8),7:(8,10)}", pp=0, spnt='', rot2=0, slp=1, early=1, btouch=0, atf='sc1', cpf=12, nobar=18, chk=12, sent=1, nok=0, noh=0, t2si=2, swp=1, gf=0, b23=1, tlb=0, padwg=999, padev=0, fair=1, fg='{0:2,5:1,7:3}', fc='{0:1,4:0}', npk=0, eprio=2, gprio=3, oc=2, oord=1, noa=0, pj=18, t2s=0, x0e=1, sb1=1, sb2=1, t2pos=1, pad=0, bt=0, tsl=4, rsl=8, cprio2=0, at=0, kh=0, cprio=3, oh1=19, gdel=0, fill=0, spst='sc1', t2a='[0]', t2b='[2]', t2f='{1:(4,6),2:(5,3),4:(6,4),6:(7,5),7:(8,6),8:(9,3)}', t2q='{}', xfl='', wfl='', il=4, qbar=0, prio=0, dbgt=0, ost='nt')
ST = 'sc1'; LD = 'sc1'

pX, pQKV, pPHI, pWO, pBX, pWG, pWU, pWD = [S(16 + 2 * i, 2) for i in range(8)]
pGW, pOUT, pDBG, pWS = [S(32 + 2 * i, 2) for i in range(4)]
sWV = S(3)
rX, rW, rWS, rA, rB = S(40, 4), S(44, 4), S(48, 4), S(52, 4), S(56, 4)
sC = S(60, 2)
rDBG = S(84, 4)
sFLAG = S(88); sTO = S(89); sNEED = S(7)
GOD = 0x1000
sP = S(14, 2)
XSLOT = 32768; WB = 98304
GWB = 159744; CNT = 161024; ZERO = 161280; KVB = 147456

def srd(a, d, base, size):
    a(f"s_mov_b32 {d[0]}, {base[0]}")
    a(f"s_and_b32 {d[1]}, {base[1]}, 0xffff")
    a(f"s_mov_b32 {d[2]}, {size}")
    a(f"s_mov_b32 {d[3]}, 0x20000")

def sstamp(a, j):
    if OPT['stamp'] != 3: return
    if j > 0: a(f"v_writelane_b32 v255, s92, {40 + j - 1}")
    a("s_memtime s[92:93]")
def stamp(a, idx):
    if OPT['pad'] and OPT['padev'] == idx:
        a("s_memrealtime s[10:11]"); a("s_waitcnt lgkmcnt(0)")
    if not OPT['stamp']: return
    if OPT['stamp'] >= 2 and idx not in (2, 3, 5, 11): return
    a("s_memrealtime s[90:91]")
    a("s_memtime s[92:93]")
    a("s_waitcnt lgkmcnt(0)")
    a(f"v_writelane_b32 v255, s90, {2*idx}")
    a(f"v_writelane_b32 v255, s92, {2*idx+1}")
def stamp_flush(a):
    if not OPT['stamp']: return
    if OPT['dbgt']:
        a("s_not_b32 s90, s10"); a("v_writelane_b32 v255, s90, 0")
        a("v_lshlrev_b32 v254, 1, v0"); a("v_add_u32 v254, 8, v254")
        a("s_mov_b32 exec_lo, 0x05555555"); a("s_mov_b32 exec_hi, 0")
        a(f"buffer_atomic_umax v255, v254, {rDBG}, 0 offen sc1")
        a("s_mov_b64 exec, -1")
        return
    a("v_writelane_b32 v255, s10, 0"); a("v_writelane_b32 v255, s12, 1")
    a("s_lshl_b32 s90, s2, 3")
    a(f"s_add_u32 s90, s90, {sWV}")
    a("s_lshl_b32 s90, s90, 8")
    a(f"s_add_u32 s90, s90, {STAMP + 0x80000}")
    a("v_lshlrev_b32 v254, 2, v0")
    a(f"buffer_store_dword v255, v254, {rWS}, s90 offen")

def vpoll(a, vzero, soff, off, tmp, extra=None, slp=None):
    L, D = a.newlabel('POLL'), a.newlabel('POLLD')
    a(f"s_mov_b32 {sTO}, 0x80000")
    a.label(L)
    if extra: a(extra)
    a(f"buffer_load_dword {tmp}, {vzero}, {rWS}, {soff} offen offset:{off} sc1")
    a("s_waitcnt vmcnt(0)")
    a(f"v_cmp_eq_u32 vcc, 0, {tmp}")
    a("s_nop 0")
    a(f"s_cbranch_vccz {D}")
    a(f"s_sleep {slp or OPT['slp']}")
    a(f"s_sub_u32 {sTO}, {sTO}, 1")
    a(f"s_cbranch_scc0 {L}")
    a.label(D)
def arrive(a, soff, need, z, one, nyounger=0):
    D = a.newlabel('ARR')
    a(f"v_mov_b32 {z}, 0"); a(f"v_mov_b32 {one}, 1")
    a(f"s_waitcnt vmcnt({nyounger})")
    a("s_mov_b64 exec, 1")
    a(f"buffer_atomic_add {one}, {z}, {rWS}, {soff} offen sc0 sc1")
    a("s_waitcnt vmcnt(0)")
    a(f"v_readfirstlane_b32 {sP[0]}, {one}")
    a(f"s_add_u32 {sP[1]}, {soff}, {GOD}")
    a(f"s_cmp_lg_u32 {sP[0]}, {need}")
    a(f"s_cbranch_scc1 {D}")
    a(f"buffer_store_dword {one}, {z}, {rWS}, {sP[1]} offen sc1")
    a.label(D)
    a("s_mov_b64 exec, -1")
def init_poll(a, reg, off):
    L, D = a.newlabel('POLL'), a.newlabel('POLLD')
    a(f"s_mov_b32 {sTO}, 0x80000")
    a.label(L)
    a(f"v_mov_b32 {reg}, 0")
    a(f"buffer_load_dword {reg}, {reg}, {rDBG}, 0 offen offset:{off} sc1")
    a("s_waitcnt vmcnt(0)")
    a(f"v_readfirstlane_b32 {sP[0]}, {reg}")
    a(f"s_cmp_lg_u32 {sP[0]}, 0")
    a(f"s_cbranch_scc1 {D}")
    a("s_sleep 2")
    a(f"s_sub_u32 {sTO}, {sTO}, 1")
    a(f"s_cbranch_scc0 {L}")
    a.label(D)

def softmax_unit(a, P, E, M, T, O, side=None):
    side = list(side or [])
    a(f"v_max3_f32 {M[0]}, {P[0]}, {P[1]}, {P[2]}")
    a(f"v_min3_f32 {M[2]}, {P[0]}, {P[1]}, {P[2]}")
    for i in range(3, 19, 2):
        a(f"v_max3_f32 {M[0]}, {M[0]}, {P[i]}, {P[i+1]}")
        a(f"v_min3_f32 {M[2]}, {M[2]}, {P[i]}, {P[i+1]}")
    a(f"v_max_f32 {M[0]}, {M[0]}, {P[19]}")
    a(f"v_min_f32 {M[2]}, {M[2]}, {P[19]}")
    a(f"v_mul_f32 {M[0]}, {sC[0]}, {M[0]}")
    a(f"v_mul_f32 {M[2]}, {sC[0]}, {M[2]}")
    for i in range(0, 20, 2):
        a(f"v_pk_fma_f32 {E[i:i+2]}, {P[i:i+2]}, {sC}, {M[0:2]} op_sel_hi:[1,1,0] neg_lo:[0,0,1] neg_hi:[0,0,1]")
        a(f"v_pk_fma_f32 {E[20+i:22+i]}, {P[i:i+2]}, {sC}, {M[2:4]} op_sel_hi:[1,1,0] neg_lo:[1,0,0] neg_hi:[1,0,0]")
    for i in range(40):
        a(f"v_exp_f32 {E[i]}, {E[i]}")
        if side and i % 2 == 1:
            x = side.pop(0)
            if x != "s_nop 0": a(x)
    for l in side: a(l)
    a(f"v_pk_add_f32 {T[0:2]}, {E[0:2]}, {E[2:4]}")
    a(f"v_pk_add_f32 {T[2:4]}, {E[20:22]}, {E[22:24]}")
    for i in range(4, 20, 2):
        a(f"v_pk_add_f32 {T[0:2]}, {T[0:2]}, {E[i:i+2]}")
        a(f"v_pk_add_f32 {T[2:4]}, {T[2:4]}, {E[20+i:22+i]}")
    a(f"v_add_f32 {T[0]}, {T[0]}, {T[1]}")
    a(f"v_add_f32 {T[2]}, {T[2]}, {T[3]}")
    a(f"v_rcp_f32 {T[0]}, {T[0]}")
    a(f"v_rcp_f32 {T[2]}, {T[2]}")
    for i in range(0, 20, 2):
        a(f"v_pk_mul_f32 {E[i:i+2]}, {E[i:i+2]}, {T[0:2]} op_sel_hi:[1,0]")
        a(f"v_pk_mul_f32 {E[20+i:22+i]}, {E[20+i:22+i]}, {T[2:4]} op_sel_hi:[1,0]")
    for i in range(20):
        a(f"v_cvt_pk_bf16_f32 {O[i]}, {E[2*i]}, {E[2*i+1]}")

def kernel(a):
    END = 'K_END'
    BS = eval(OPT['bs'])
    a("s_cmp_ge_u32 s2, 256")
    a(f"s_cbranch_scc1 {END}")
    if OPT['stamp']:
        a("s_memrealtime s[10:11]"); a("s_memtime s[12:13]"); a("v_mov_b32 v255, 0")
    if OPT['pad']: a("s_memrealtime s[10:11]")
    a("s_load_dwordx16 s[16:31], s[0:1], 0")
    a("s_load_dwordx8 s[32:39], s[0:1], 64")
    lane = V(0)
    tid, t0, t1, t2, t3, t4 = V(1), V(2), V(3), V(4), V(5), V(6)
    vqd, vr, vc, vl15 = V(7), V(8), V(9), V(10)
    vx = [V(11 + i) for i in range(4)]
    xa = [[V(15), V(16)], [V(17), V(18)]]
    tdum = V(19); ta = V(32, 2); tb = V(34, 2)
    R0 = 24
    sTY, sRB, sXK, sWK, sM, sT0, sT1, sT2, sT3, sRG, sHI, sID, sMW, sC8, sR4 = [S(62 + i) for i in range(15)]
    a(f"v_lshrrev_b32 {t0}, 6, v0")
    a(f"v_mov_b32 {tid}, v0")
    a(f"v_readfirstlane_b32 {sWV}, {t0}")
    a(f"v_and_b32 {lane}, 63, v0")
    a(f"s_bfe_u32 {sC8}, s2, 0x30003")
    a(f"s_lshr_b32 {sR4}, s2, 6")
    a(f"s_and_b32 {sRB}, s2, 1")
    a(f"s_lshl_b32 {sRB}, {sRB}, 2")
    a(f"s_add_u32 {sRB}, {sRB}, {sR4}")
    a(f"s_bfe_u32 {sT0}, s2, 0x20001")
    a(f"s_and_b32 {sRG}, {sWV}, 3")
    a(f"s_lshr_b32 {sHI}, {sWV}, 2")
    a(f"v_lshrrev_b32 {vqd}, 4, {lane}")
    a(f"v_bfe_u32 {vr}, {lane}, 2, 2")
    a(f"v_and_b32 {vc}, 3, {lane}")
    a(f"v_and_b32 {vl15}, 15, {lane}")
    a(f"v_lshrrev_b32 {t0}, 3, {lane}")
    a(f"v_mul_u32_u24 {t0}, 1280, {t0}")
    a(f"v_and_b32 {t1}, 7, {lane}")
    a(f"v_xor_b32 {t1}, {t1}, {vqd}")
    a(f"v_lshl_add_u32 {vx[0]}, {t1}, 4, {t0}")
    a(f"v_xor_b32 {t1}, 4, {t1}")
    a(f"v_lshl_add_u32 {vx[1]}, {t1}, 4, {t0}")
    a(f"v_add_u32 {vx[1]}, {8*1280-1024}, {vx[1]}")
    a(f"v_add_u32 {vx[2]}, {16*1280-2048}, {vx[0]}")
    a(f"v_add_u32 {vx[3]}, {16*1280-2048}, {vx[1]}")
    a(f"s_mul_i32 {sXK}, {sRB}, {256*1280}")
    a(f"s_mul_i32 {sT1}, {sWV}, {32*1280}")
    a(f"s_add_u32 {sXK}, {sXK}, {sT1}")
    a(f"s_lshl_b32 {sM}, {sWV}, 12")
    sXA, sXB = S(6), S(7)
    if OPT['swp']:
        a(f"s_add_u32 {sTY}, {sC8}, {sR4}"); a(f"s_and_b32 {sTY}, {sTY}, 1")
        a(f"s_lshl_b32 {sT1}, {sTY}, 7"); a(f"s_add_u32 {sXK}, {sXK}, {sT1}")
    a(f"v_lshlrev_b32 {t2}, 3, {tid}")
    a(f"v_min_u32 {t2}, {163840 - CNT - 8}, {t2}")
    a(f"v_add_u32 {t2}, {CNT}, {t2}")
    a(f"v_mov_b32 {ta[0]}, 0"); a(f"v_mov_b32 {ta[1]}, 0")
    a(f"ds_write_b64 {t2}, {ta}")
    a(f"s_mul_i32 {sID}, {sT0}, 9"); a(f"s_add_u32 {sID}, {sID}, 1"); a(f"s_lshr_b32 {sID}, {sID}, 1")
    a(f"s_add_u32 {sID}, {sID}, {sC8}"); a(f"s_sub_u32 {sID}, {sID}, 3")
    a(f"s_and_b32 {sT1}, {sT0}, 1"); a(f"s_add_u32 {sT1}, {sT1}, {sC8}")
    a(f"s_mov_b32 {sC[0]}, {LOG2E:#x}")
    a(f"s_mov_b32 {sC[1]}, {LOG2E:#x}")
    sU1, sU2, sBK = S(100), S(101), S(95)
    vt1, vt2 = V(22), V(23)
    T2 = OPT['touch'] >= 2; T3 = OPT['touch'] == 3
    rTT = S(96, 4)
    def t2_all(b0):
        return [f"s_mul_i32 s4, {sBK}, {b0}", f"s_add_u32 s4, s4, {sU2}",
                f"v_add_u32 v21, s4, {vt2}", f"s_mov_b64 exec, 0xff\nbuffer_load_dword {tdum}, v21, {rTT}, 0 offen\ns_mov_b64 exec, -1"]
    def t2_one(b, c8v):
        lb = a.newlabel('T2')
        return [f"s_cmp_lg_u32 {sC8}, {c8v}\ns_cbranch_scc1 {lb}\ns_mul_i32 s4, {sBK}, {b}\ns_add_u32 s4, s4, {sU1}\nv_add_u32 v21, s4, {vt1}\ns_mov_b32 exec_hi, 0\n"
                f"buffer_load_dword {tdum}, v21, {rTT}, 0 offen\ns_mov_b64 exec, -1\n{lb}:"]
    if T2:
        a(f"s_lshr_b32 s9, {sWV}, 1")
        a(f"s_mov_b32 {rTT[2]}, {2048*1280}"); a(f"s_movk_i32 {sBK}, 128")
        a("s_cmp_eq_u32 s9, 1")
        a(f"s_cselect_b32 {rTT[2]}, {640*3840}, {rTT[2]}"); a(f"s_cselect_b32 {sBK}, {64*3840}, {sBK}")
        a("s_cmp_ge_u32 s9, 2")
        a(f"s_cselect_b32 {rTT[2]}, {640*3456}, {rTT[2]}"); a(f"s_cselect_b32 {sBK}, {64*3456}, {sBK}")
        a(f"s_mov_b32 {rTT[3]}, 0x20000")
        a("s_cmp_eq_u32 s9, 0")
        a("s_movk_i32 s7, 128"); a("s_cselect_b32 s5, 1280, s7"); a("s_cselect_b32 s6, 640, s7"); a("s_cselect_b32 s7, 512, 0")
        a(f"v_mul_u32_u24 {vt1}, s5, {lane}")
        a(f"v_mul_u32_u24 {vt2}, s6, {lane}")
        a(f"v_and_b32 {t0}, 1, {lane}"); a(f"v_mul_u32_u24 {t0}, s7, {t0}"); a(f"v_sub_u32 {vt2}, {vt2}, {t0}")
        a(f"s_and_b32 s4, {sWV}, 1")
        a(f"s_lshl1_add_u32 {sU2}, s2, s4"); a(f"s_lshl_b32 {sU2}, {sU2}, 3"); a(f"s_mul_i32 {sU2}, {sU2}, s6")
        a(f"s_and_b32 {sU1}, s2, 7"); a(f"s_lshl2_add_u32 {sU1}, {sU1}, {sR4}")
        a(f"s_lshl1_add_u32 {sU1}, {sU1}, s4"); a(f"s_lshl_b32 {sU1}, {sU1}, 5"); a(f"s_mul_i32 {sU1}, {sU1}, s5")
        a(f"v_add_u32 {t4}, {sU2}, {vt2}")
        if eval(OPT['t2a'])[0]:
            a(f"s_mul_i32 s4, {sBK}, {eval(OPT['t2a'])[0]}"); a(f"v_add_u32 {t4}, s4, {t4}")
    a(f"s_mov_b32 {rX[2]}, {2048*1280}"); a(f"s_mov_b32 {rX[3]}, 0x20000")
    a(f"s_mov_b32 m0, {sM}")
    a("s_waitcnt lgkmcnt(0)")
    if T2:
        a("s_cmp_eq_u32 s9, 1"); a(f"s_cselect_b64 {rTT[0:2]}, {pQKV}, {pX}")
        a("s_cmp_eq_u32 s9, 2"); a(f"s_cselect_b64 {rTT[0:2]}, {pWG}, {rTT[0:2]}")
        a("s_cmp_eq_u32 s9, 3"); a(f"s_cselect_b64 {rTT[0:2]}, {pWU}, {rTT[0:2]}")
        a(f"s_and_b32 {rTT[1]}, {rTT[1]}, 0xffff")
        a("s_mov_b64 exec, 0xff"); a(f"buffer_load_dword {tdum}, {t4}, {rTT}, 0 offen"); a("s_mov_b64 exec, -1")
        for b0 in eval(OPT['t2a'])[1:]:
            for l in t2_all(b0): a(l)
    a(f"s_mov_b32 {rX[0]}, {pX[0]}"); a(f"s_and_b32 {rX[1]}, {pX[1]}, 0xffff")
    if OPT['x0e']:
        a(f"s_cmp_eq_u32 {sT1}, 8"); a("s_cbranch_scc1 NOX0")
        if OPT['sb1']: a("s_barrier")
        for n in range(4): a(f"buffer_load_dwordx4 {vx[n]}, {rX}, {sXK} offen offset:{n*1024} lds")
        a.label("NOX0")
    srd(a, rWS, pWS, WSZ)
    srd(a, rDBG, pDBG, 256)
    if OPT['tlb']:
        a(f"s_cmp_lg_u32 {sWV}, 6"); a("s_cbranch_scc1 NOTLB")
        srd(a, rA, pOUT, 2048 * 1280)
        a(f"v_lshlrev_b32 {t0}, {OPT['tlb']}, {lane}")
        a("s_lshl_b32 s6, s2, 7"); a(f"v_add_u32 {t0}, s6, {t0}")
        a(f"v_min_u32 {t1}, {0x1250000}, {t0}")
        a(f"buffer_load_dword v31, {t1}, {rWS}, 0 offen")
        a(f"buffer_load_dword v31, {t0}, {rA}, 0 offen")
        a.label("NOTLB")
    if OPT['cpf']:
        a(f"s_cmp_lg_u32 {sWV}, 7"); a("s_cbranch_scc1 NOCPF")
        a("s_getpc_b64 s[90:91]")
        a.label("CPF_PC")
        a("s_lshr_b32 s6, s2, 3"); a(f"s_mul_i32 s6, s6, {OPT['cpf']*128}")
        a(f"v_lshlrev_b32 {t0}, 7, {lane}"); a(f"v_add_u32 {t0}, s6, {t0}")
        a(f"v_min_u32 {t0}, K_LAST-CPF_PC, {t0}")
        a(f"s_mov_b64 exec, {(1 << OPT['cpf']) - 1:#x}")
        a(f"global_load_dword v31, {t0}, s[90:91]")
        a("s_mov_b64 exec, -1")
        a.label("NOCPF")
    if OPT['swp']: a(f"s_lshl_b32 s4, {sTY}, 8"); a(f"s_sub_u32 {sXA}, 128, s4"); a(f"s_add_u32 {sXB}, s4, 128")
    a(f"s_cmp_lt_u32 {sC8}, 3")
    a("s_cbranch_scc1 R_QKV")
    a(f"s_cmp_eq_u32 {sT1}, 8")
    a("s_cbranch_scc1 R_SPARE")

    def x_dma(vm, blk, half):
        if blk == 0 and OPT['x0e']:
            vm.issue(('X', 0)); vm.issue(('X', 0)); return []
        l = [f"s_add_u32 m0, {sM}, {(blk % 3) * XSLOT}"]
        if half == 0 and blk > 0: l.append(f"s_add_u32 {sXK}, {sXK}, {(sXA if blk % 2 else sXB) if OPT['swp'] else 128}")
        for n in (2 * half, 2 * half + 1):
            l.append(f"buffer_load_dwordx4 {vx[n]}, {rX}, {sXK} offen offset:{n*1024} {OPT['xfl']} lds")
            vm.issue(('X', blk))
        return l
    def x_addr_setup():
        a(f"v_lshrrev_b32 {t0}, 1, {vl15}")
        a(f"v_xor_b32 {t0}, {t0}, {vqd}")
        a(f"v_lshlrev_b32 {t0}, 4, {t0}")
        a(f"v_lshl_add_u32 {t0}, {vl15}, 7, {t0}")
        a(f"s_lshl_b32 {sT0}, {sRG}, 13")
        a(f"v_add_u32 {xa[0][0]}, {sT0}, {t0}")
        a(f"v_xor_b32 {xa[0][1]}, 64, {xa[0][0]}")
        a(f"v_add_u32 {xa[1][0]}, 0x10000, {xa[0][0]}")
        a(f"v_add_u32 {xa[1][1]}, 0x10000, {xa[0][1]}")
    def x_reads(XF, step):
        blk, kk = step // 2, step % 2
        sl = blk % 3
        return [f"ds_read_b128 {XF[tt]}, {xa[sl // 2][kk]} offset:{(sl % 2) * XSLOT + tt * 2048}" for tt in range(4)]
    def burst(vm, b0, b1):
        if OPT['touch'] not in (1, 3): return []
        l = []
        for st, reg in ((0, ta), (5, tb)):
            lo, hi = max(b0, st) - st, min(b1, st + 5) - st
            if lo >= hi: continue
            m = ((1 << (12 * hi)) - 1) & ~((1 << (12 * lo)) - 1)
            l += [f"s_mov_b32 exec_lo, {m & 0xffffffff:#x}", f"s_mov_b32 exec_hi, {m >> 32:#x}", f"global_load_dword {tdum}, {reg}, off"]
            vm.issue('T')
        l.append("s_mov_b64 exec, -1")
        return l
    def touch_setup(pw0, pw1, rowbytes, off0, off1, seg):
        if OPT['touch'] not in (1, 3): return
        l12, bi = tb[0], tb[1]; tinc = V(36)
        a(f"v_mul_u32_u24 {bi}, 43, {lane}"); a(f"v_lshrrev_b32 {bi}, 9, {bi}")
        a(f"v_mul_u32_u24 {l12}, 12, {bi}"); a(f"v_sub_u32 {l12}, {lane}, {l12}")
        a(f"s_lshl_b32 {sT2}, {sRB}, 3"); a(f"s_add_u32 {sT2}, {sT2}, {sC8}"); a(f"s_lshl_b32 {sT2}, {sT2}, 3"); a(f"s_add_u32 {sT2}, {sT2}, {sWV}")
        a(f"s_mul_i32 {sT2}, {sT2}, {4*1280}")
        a(f"v_mul_u32_u24 {t0}, 1280, {l12}")
        a(f"v_add_u32 {t0}, {sT2}, {t0}")
        a(f"s_lshl_b32 {sT0}, {sR4}, 3"); a(f"s_add_u32 {sT0}, {sT0}, {sWV}"); a(f"s_mul_i32 {sT0}, {sT0}, {2*rowbytes}")
        a(f"v_subrev_u32 {t1}, 4, {l12}")
        a(f"v_bfe_u32 {t2}, {t1}, 2, 1")
        a(f"v_mul_u32_u24 {t2}, {rowbytes}, {t2}")
        a(f"v_and_b32 {t3}, 1, {t1}")
        a(f"v_mul_u32_u24 {t3}, {seg-4}, {t3}")
        a(f"v_add3_u32 {t2}, {t2}, {t3}, {sT0}")
        a(f"v_and_b32 {t3}, 2, {t1}")
        a(f"v_cmp_eq_u32 vcc, 0, {t3}")
        a(f"v_mov_b32 {t3}, {off1}"); a(f"v_mov_b32 {t4}, {off0}")
        a(f"v_cndmask_b32 {t3}, {t3}, {t4}, vcc")
        a(f"v_add_u32 {t2}, {t2}, {t3}")
        a(f"v_mov_b32 {t3}, {pw1[0]}"); a(f"v_mov_b32 {t4}, {pw0[0]}"); a(f"v_cndmask_b32 {ta[0]}, {t3}, {t4}, vcc")
        a(f"v_mov_b32 {t3}, {pw1[1]}"); a(f"v_mov_b32 {t4}, {pw0[1]}"); a(f"v_cndmask_b32 {ta[1]}, {t3}, {t4}, vcc")
        a(f"v_cmp_gt_u32 vcc, 4, {l12}")
        a(f"v_mov_b32 {t3}, {pX[0]}"); a(f"v_mov_b32 {t4}, {pX[1]}")
        a(f"v_cndmask_b32 {t2}, {t2}, {t0}, vcc")
        a(f"v_cndmask_b32 {ta[0]}, {ta[0]}, {t3}, vcc")
        a(f"v_cndmask_b32 {ta[1]}, {ta[1]}, {t4}, vcc")
        a(f"v_mov_b32 {t3}, {64*rowbytes}"); a(f"v_mov_b32 {t4}, 128"); a(f"v_cndmask_b32 {tinc}, {t3}, {t4}, vcc")
        a(f"v_mad_u32_u24 {t2}, {tinc}, {bi}, {t2}")
        a(f"v_add_co_u32 {ta[0]}, vcc, {ta[0]}, {t2}")
        a(f"v_mul_u32_u24 {t2}, 5, {tinc}")
        a(f"v_addc_co_u32 {ta[1]}, vcc, 0, {ta[1]}, vcc")
        a(f"v_add_co_u32 {tb[0]}, vcc, {ta[0]}, {t2}")
        a(f"v_addc_co_u32 {tb[1]}, vcc, 0, {ta[1]}, vcc")
    def step_body(mains, lblk, pre=[]):
        for l in pre: a(l)
        if not lblk:
            for m in mains: a(m)
            return
        if OPT['pp'] == 2:
            rds = [l for l in lblk if l.startswith('ds_read')]; oth = [l for l in lblk if not l.startswith('ds_read')]
            l1, l2 = a.newlabel('PP'), a.newlabel('PP')
            if oth:
                a(f"s_cmp_eq_u32 {sHI}, 0"); a(f"s_cbranch_scc1 {l1}")
                for l in oth: a(l)
                a.label(l1)
            k = 0
            for i, m in enumerate(mains):
                a(m)
                while k < len(rds) and k < (i + 1) * max(1, -(-len(rds) // len(mains))):
                    a(rds[k]); k += 1
            if oth:
                a(f"s_cmp_eq_u32 {sHI}, 0"); a(f"s_cbranch_scc0 {l2}")
                for l in oth: a(l)
                a.label(l2)
        elif OPT['pp']:
            l1, l2 = a.newlabel('PP'), a.newlabel('PP')
            a(f"s_cmp_eq_u32 {sHI}, 0"); a(f"s_cbranch_scc1 {l1}")
            for l in lblk: l() if callable(l) else a(l)
            a.label(l1)
            for m in mains: a(m)
            a(f"s_cmp_eq_u32 {sHI}, 0"); a(f"s_cbranch_scc0 {l2}")
            for l in lblk: l() if callable(l) else a(l)
            a.label(l2)
        else:
            rds = [l for l in lblk if l.startswith('ds_read')]; oth = [l for l in lblk if not l.startswith('ds_read')]
            units = []; cur = []
            for l in oth:
                cur.append(l)
                if 'buffer_' in l or 'ds_write' in l: units.append(cur); cur = []
            if cur: units.append(cur)
            n = len(mains); mode = OPT['il']
            pos = {}
            if mode == 0:
                seq = [[r] for r in rds] + units
                for k, u in enumerate(seq): pos.setdefault(min(n - 1, k * n // max(len(seq), n)), []).extend(u)
            elif mode == 1:
                for k, u in enumerate(units): pos.setdefault(min(n - 1, 2 * k), []).extend(u)
                for k, r in enumerate(rds): pos.setdefault(min(n - 1, k * min(n, len(rds)) // len(rds) if len(rds) > n else k), []).append(r)
            elif mode == 2:
                for k, r in enumerate(rds): pos.setdefault(min(n - 1, k // 2), []).append(r)
                for k, u in enumerate(units): pos.setdefault(min(n - 1, len(rds) // 2 + 2 * k), []).extend(u)
            elif mode == 3:
                for k, u in enumerate(units): pos.setdefault(min(n - 1, 1 + k * (2 * n // 3) // max(1, len(units))), []).extend(u)
                for k, r in enumerate(rds): pos.setdefault(min(n - 1, k * min(n, len(rds)) // len(rds) if len(rds) > n else k), []).append(r)
            elif mode == 4:
                k = 0
                for i in range(n):
                    while k < len(lblk) and k < (i + 1) * len(lblk) // n + 1:
                        pos.setdefault(i, []).append(lblk[k]); k += 1
            for i, m in enumerate(mains):
                a(m)
                for l in pos.get(i, []): a(l)
    def init_check_issue(reg, off=128):
        return [f"v_mov_b32 {reg}, 0", f"buffer_load_dword {reg}, {reg}, {rDBG}, 0 offen offset:{off} sc1"]
    def init_check(reg, off=128):
        ok = a.newlabel('INITOK')
        a(f"v_readfirstlane_b32 {sP[0]}, {reg}")
        a(f"s_cmp_lg_u32 {sP[0]}, 0")
        a(f"s_cbranch_scc1 {ok}")
        init_poll(a, reg, off)
        a.label(ok)
    sR6, sCG, sAo, sBg, sBo, sLC, sH2, sRX = [S(94 + i) for i in range(8)]
    vo, vo4 = V(20), V(21)
    vS2 = V(30)
    sO1, sO2 = S(79), S(80)
    BRb = [208, 228, 32, 52]
    BR = [[V(BRb[b] + 4 * j, 4) for j in range(5)] for b in range(4)]
    GL = [4, 6, 7, 9]; LR = [2, 5, 3, 4]; CR = [0, 1, 6]
    GRP = {0:0, 1:1, 2:2, 3:3, 4:8, 6:9, 7:10, 9:11, 5:12, 8:13}
    if OPT['gf'] & 1:
        GL = [6, 7, 8, 9]; GRP = {0:0, 1:1, 2:2, 3:3, 6:8, 7:9, 8:10, 9:11, 4:12, 5:13}
    CB0 = 38 * 5120; CA0 = 38 * 4096
    def p2_setup():
        return [f"s_and_b32 {sR6}, s2, 7", f"s_lshl_b32 {sR6}, {sR6}, 2", "s_lshr_b32 s4, s2, 6", f"s_add_u32 {sR6}, {sR6}, s4",
             f"s_bfe_u32 {sCG}, s2, 0x30003", f"s_lshl1_add_u32 {sCG}, s4, {sCG}", f"s_and_b32 {sCG}, {sCG}, 7", f"v_lshlrev_b32 {vo}, 4, {lane}", f"v_add_u32 {vo4}, 4096, {vo}",
             f"s_mul_i32 {sBg}, {sCG}, 74", f"s_add_u32 {sBg}, {sBg}, {sRG}", f"s_mul_i32 {sBg}, {sBg}, 5120", f"s_add_u32 {sBg}, {sBg}, {BP}",
             f"s_mov_b32 {rB[0]}, {pWS[0]}", f"s_and_b32 {rB[1]}, {pWS[1]}, 0xffff", f"s_mul_i32 {rB[2]}, {sHI}, {WSZ}", f"s_mov_b32 {rB[3]}, 0x20000",
             f"s_mul_i32 {sLC}, {sRG}, 5120", f"s_lshl_b32 {sH2}, {sHI}, 11", f"s_mul_i32 {sRX}, {sHI}, 20480",
             f"s_xor_b32 s4, {sHI}, 1", f"s_mul_i32 {sBo}, s4, {16*5120}", f"s_add_u32 {sBo}, {sBo}, {sBg}",
             f"s_mul_i32 {sAo}, {sR6}, 74", f"s_mul_i32 s4, s4, 16", f"s_add_u32 {sAo}, {sAo}, s4", f"s_add_u32 {sAo}, {sAo}, {sRG}", f"s_lshl_b32 {sAo}, {sAo}, 12",
             f"s_lshr_b32 s4, {sCG}, 1", "s_mul_i32 s4, s4, 5", f"s_mul_i32 {sO2}, {sR6}, 74", f"s_add_u32 {sO2}, {sO2}, s4", f"s_add_u32 {sO2}, {sO2}, 54",
             f"s_lshl2_add_u32 {sO2}, {sO2}, {sRG}", f"s_lshl_b32 {sO2}, {sO2}, 10", f"s_and_b32 s4, {sCG}, 1", f"s_mul_i32 {sO1}, s4, {3*4096}",
             f"s_add_u32 {sO1}, {sO1}, {sO2}", "s_lshl_b32 s4, s4, 9", f"s_add_u32 {sO2}, {sO2}, s4", f"s_add_u32 {sO2}, {sO2}, 8192",
             f"s_lshl_b32 s78, {sR6}, 7", f"s_add_u32 s78, s78, {FH + GOD}"]
    vFQ = V(31)
    def q_flag_issue(): return [f"v_mov_b32 {vFQ}, 0", f"buffer_load_dword {vFQ}, {vFQ}, {rWS}, s78 offen offset:4 sc1"]
    def poison(R4):
        if not OPT['sent']: return []
        lb = a.newlabel('PO')
        return [f"s_cmp_eq_u32 {sHI}, 1\ns_cbranch_scc1 {lb}\n" + "\n".join(f"v_mov_b32 {R4[i]}, -1" for i in range(4)) +
                f"\nbuffer_store_dwordx4 {R4}, {vo}, {rWS}, {sO1} offen {ST}\nbuffer_store_dwordx4 {R4}, {vo4}, {rWS}, {sO1} offen {ST}"
                f"\ns_mov_b32 exec_hi, 0\nbuffer_store_dwordx4 {R4}, {vo}, {rWS}, {sO2} offen {ST}\ns_mov_b32 exec_hi, -1\n{lb}:"]
    def b_reg(vm, i, tag, r=None, grp=None, ext=0):
        b = i % 4; r = r or rWS; grp = i if grp is None else grp
        l = [f"s_add_u32 s4, {sBo}, {grp*20480 + ext}"]
        for j in range(5):
            if j < 4: l.append(f"buffer_load_dwordx4 {BR[b][j]}, {vo}, {r}, s4 offen offset:{j*1024} {LD}")
            else: l.append(f"buffer_load_dwordx4 {BR[b][j]}, {vo4}, {r}, s4 offen {LD}")
            vm.issue(tag)
        return l
    def b_row(vm, base, grp, row, extra=None, ext=0, hi3=False):
        l = [f"s_add_u32 s4, {base}, {grp*20480 + ext}", f"s_add_u32 s5, {sLC}, {row*20480}"]
        if hi3: l += [f"s_add_u32 s4, s4, {sRX}", f"s_mul_i32 s6, {sRX}, 3", "s_add_u32 s5, s5, s6"]
        if extra: l += [f"s_add_u32 s4, s4, {extra}", f"s_add_u32 s5, s5, {extra}"]
        l.append("s_mov_b32 m0, s5")
        for j in range(4):
            l.append(f"buffer_load_dwordx4 {vo}, {rWS}, s4 offen offset:{j*1024} {LD} lds"); vm.issue('BL')
        l.append("s_add_u32 m0, s5, 4096")
        l.append(f"buffer_load_dwordx4 {vo4}, {rWS}, s4 offen {LD} lds"); vm.issue('BL')
        return l
    def b_row_half(vm, k):
        l = [f"s_add_u32 s4, {sBg}, {GRP[GL[k]]*20480}", f"s_add_u32 s5, {sLC}, {LR[k]*20480}", f"s_add_u32 s4, s4, {sH2}", f"s_add_u32 m0, s5, {sH2}"]
        for j in range(3):
            l.append(f"buffer_load_dwordx4 {vo}, {rWS}, s4 offen offset:{j*1024} {LD} lds"); vm.issue('BL')
        return l
    sPF = S(8)
    def flag_store(need):
        a(f"s_mov_b32 {sNEED}, {need}")

    vw = [V(R0), V(R0 + 1)]; wa = [V(R0 + 2), V(R0 + 3), V(R0 + 4)]; vchk = V(R0 + 5)
    FB = [32, 72]
    XF = [[V(FB[b] + 4 * tt, 4) for tt in range(4)] for b in range(2)]
    WF = [[V(FB[b] + 16 + 4 * c, 4) for c in range(6)] for b in range(2)]
    ACC = [[V(112 + (c * 4 + tt) * 4, 4) for tt in range(4)] for c in range(6)]
    vm = VmTrack()
    a(f"s_mul_i32 {sT3}, {sID}, 192")
    touch_setup(pWG, pWU, 3456, sT3, sT3, 192)
    for l in burst(vm, *BS['p0']): a(l)
    a(f"s_bitcmp1_b32 {sWV}, 0")
    a(f"s_cselect_b32 {rW[0]}, {pWU[0]}, {pWG[0]}")
    a(f"s_cselect_b32 {rW[1]}, {pWU[1]}, {pWG[1]}")
    a(f"s_and_b32 {rW[1]}, {rW[1]}, 0xffff")
    a(f"s_mov_b32 {rW[2]}, {640*3456}")
    a(f"s_mov_b32 {rW[3]}, 0x20000")
    a(f"s_bfe_u32 {sT0}, {sWV}, 0x10001")
    a(f"s_lshl_b32 {sT1}, {sT0}, 1")
    for n in range(2):
        a(f"v_add_u32 {t0}, {64*n}, {lane}")
        a(f"v_mul_u32_u24 {t1}, 43, {t0}")
        a(f"v_lshrrev_b32 {t1}, 9, {t1}")
        a(f"v_mul_u32_u24 {t2}, 12, {t1}")
        a(f"v_sub_u32 {t2}, {t0}, {t2}")
        a(f"v_lshrrev_b32 {t3}, 2, {t2}")
        a(f"v_cmp_eq_u32 vcc, 1, {t3}")
        a(f"v_mov_b32 {t3}, {sT1}")
        a(f"v_mov_b32 {t4}, {sT0}")
        a(f"v_cndmask_b32 {t3}, {t3}, {t4}, vcc")
        a(f"v_xor_b32 {t2}, {t2}, {t3}")
        a(f"v_mul_u32_u24 {t1}, 3456, {t1}")
        a(f"v_lshl_add_u32 {vw[n]}, {t2}, 4, {t1}")
        if n: a(f"v_subrev_u32 {vw[n]}, 1024, {vw[n]}")
    a(f"s_lshr_b32 {sT0}, {sWV}, 1")
    a(f"s_mul_i32 {sWK}, {sT0}, {8*3456}")
    a(f"s_add_u32 {sWK}, {sWK}, {sT3}")
    a(f"s_mul_i32 {sMW}, {sT0}, 1536")
    a(f"s_and_b32 {sT1}, {sWV}, 1")
    a(f"s_mul_i32 {sT1}, {sT1}, 6144")
    a(f"s_add_u32 {sMW}, {sMW}, {sT1}")
    sW2 = S(54, 2)
    if OPT['swp']:
        a(f"s_mul_i32 {sT1}, {sTY}, {2*110592}"); a(f"s_add_u32 {sWK}, {sWK}, {sT1}"); a(f"s_lshl_b32 {sT1}, {sT1}, 1")
        a(f"s_sub_u32 {sW2[0]}, 110592, {sT1}"); a(f"s_add_u32 {sW2[1]}, {sT1}, 110592")
    def w_dma(step):
        l = [f"s_add_u32 m0, {sMW}, {WB + (step % 5) * 12288}"] + ([f"s_add_u32 {sWK}, {sWK}, {(110592 if step % 2 or not OPT['swp'] else (sW2[0] if step % 4 == 2 else sW2[1]))}"] if step else []) + [
             f"buffer_load_dwordx4 {vw[0]}, {rW}, {sWK} offen {OPT['wfl']} lds",
             "s_mov_b32 exec_hi, 0\n"
             f"buffer_load_dwordx4 {vw[1]}, {rW}, {sWK} offen offset:1024 {OPT['wfl']} lds\n"
             "s_mov_b32 exec_hi, -1"]
        vm.issue(('W', step)); vm.issue(('W', step))
        return l
    if OPT['sb1'] and not OPT['x0e']: a("s_barrier")
    for l in x_dma(vm, 0, 0) + x_dma(vm, 0, 1) + w_dma(0) + w_dma(1): a(l)
    x_addr_setup()
    a(f"v_lshl_add_u32 {t0}, {vqd}, 3, {vr}")
    a(f"v_mul_u32_u24 {t0}, 192, {t0}")
    a(f"v_add_u32 {t0}, {WB}, {t0}")
    a(f"v_and_b32 {t1}, 1, {vqd}")
    a(f"v_lshlrev_b32 {t2}, 5, {t1}")
    a(f"v_lshl_add_u32 {t2}, {vc}, 3, {t2}")
    a(f"s_lshl_b32 {sT0}, {sHI}, 7")
    a(f"v_add3_u32 {wa[0]}, {t0}, {t2}, {sT0}")
    a(f"v_xor_b32 {wa[1]}, 32, {wa[0]}")
    a(f"v_and_b32 {t2}, 2, {vc}")
    a(f"v_add_u32 {t2}, {sHI}, {t2}")
    a(f"v_xor_b32 {t2}, {t2}, {t1}")
    a(f"v_lshlrev_b32 {t2}, 4, {t2}")
    a(f"v_and_b32 {t3}, 1, {vc}")
    a(f"v_lshl_add_u32 {t2}, {t3}, 3, {t2}")
    a(f"v_add3_u32 {wa[2]}, {t0}, {t2}, 64")
    def w_reads(WFb, step):
        return [f"ds_read_b64_tr_b16 {WFb[m*3+i][2*rd:2*rd+2]}, {wa[i]} offset:{(step % 5) * 12288 + m * 6144 + rd * 768}"
                for m in range(2) for i in range(3) for rd in range(2)]
    def t2b_emit():
        if T2:
            for b0 in eval(OPT['t2b']):
                for l in t2_all(b0): a(l)
                vm.issue('T')
    if OPT['t2pos'] == 1:
        if OPT['sb2']: a("s_barrier")
        t2b_emit()
    n = vm.wait_for(lambda t: t in (('X', 0), ('W', 0)))
    a(f"s_waitcnt vmcnt({n})")
    a("s_barrier")
    stamp(a, 1)
    for l in x_reads(XF[0], 0) + w_reads(WF[0], 0): a(l)
    if OPT['fill'] == 0:
        for l in x_dma(vm, 1, 0) + x_dma(vm, 1, 1) + w_dma(2): a(l)
        if OPT['t2pos'] == 2: t2b_emit()
    fq = []
    for st in range(2, 20):
        if st % 2 == 0:
            b = st // 2
            fq += [('X', b, 0, max(0, 2*(b-3)+1)), ('X', b, 1, max(0, 2*(b-3)+1))]
        fq.append(('W', st, 0, max(0, st - 5)))
    for j in range(20):
        cur, nxt = j & 1, (j & 1) ^ 1
        CHK = OPT['chk']
        NB = OPT['nobar']
        if j < NB:
            n = vm.wait_for(lambda t: t in (('X', (j + 1) // 2), ('W', j + 1)) or (j == CHK and t == 'chk') or (j == 16 and t == 'chk2') or (j == NB - 1 and t[0] in 'XW'))
            a(f"s_waitcnt vmcnt({n}) lgkmcnt(0)")
            if j == CHK: init_check(vchk)
            if j == 16: init_check(vS2, 136)
            a("s_barrier")
        else:
            a("s_waitcnt lgkmcnt(0)")
        sstamp(a, j)
        mains = [f"v_mfma_f32_16x16x32_bf16 {ACC[c][tt]}, {WF[cur][c]}, {XF[cur][tt]}, {'0' if j == 0 else ACC[c][tt]}" for c in range(6) for tt in range(4)]
        pre = burst(vm, *BS[j]) if j in BS else []
        lblk = []
        if j < 19:
            lblk += x_reads(XF[nxt], j + 1) + w_reads(WF[nxt], j + 1)
            if OPT['fill']:
                cnt = OPT['fill'] + (1 if j == 0 else 0)
                while cnt and fq and fq[0][3] <= j:
                    it = fq.pop(0); cnt -= 1
                    lblk += x_dma(vm, it[1], it[2]) if it[0] == 'X' else w_dma(it[1])
            if j == 0 and not OPT['fill']: lblk += w_dma(3) + x_dma(vm, 2, 0) + x_dma(vm, 2, 1) + w_dma(4)
            xb = (j - 1) // 2 + 3 if j >= 1 else 99
            if xb <= 9 and not OPT['fill']: lblk += x_dma(vm, xb, (j - 1) % 2)
            if T2 and j in eval(OPT['t2f']): lblk += t2_one(*eval(OPT['t2f'])[j])
            if j == CHK - 2: lblk += init_check_issue(vchk); vm.issue('chk')
            if j + 5 <= 19 and not OPT['fill']: lblk += w_dma(j + 5)
            if j == 10: lblk += p2_setup()
            if j == OPT['pj']: lblk += poison(V(248, 4))
            if j == CHK: hq = b_reg(VmTrack(), 0, 'B') + b_reg(VmTrack(), 1, 'B'); hq = [hq[0:3], hq[3:5], [hq[5]] + hq[6:8], hq[8:10], hq[10:12]]
            JJ = [CHK, CHK + 1, CHK + 2, 15, 18]
            if j in JJ:
                q = JJ.index(j)
                if not hq[q][0].startswith('s_'): lblk.append(f"s_add_u32 s4, {sBo}, {0 if q < 3 else 20480}")
                lblk += hq[q]; vm.issue('B'); vm.issue('B')
            if j == 14: lblk += init_check_issue(vS2, 136); vm.issue('chk2')
            if j == 16: lblk += b_row(vm, sBg, GRP[GL[0]], LR[0], None, 0, True)
            if j == 17: lblk += b_row(vm, sBg, GRP[GL[2]], LR[2], sRX)
        else:
            if OPT['b23'] == 0: lblk += b_reg(vm, 2, 'B') + b_reg(vm, 3, 'B')
            if OPT['b23'] == 2: lblk += b_reg(vm, 2, 'B')
        step_body(mains, lblk, pre)
    stamp(a, 2)
    a(f"s_setprio {OPT['eprio']}")
    sN = S(82, 2)
    a(f"s_mov_b32 {sN[0]}, {NLOG2E:#x}")
    a(f"s_mov_b32 {sN[1]}, {NLOG2E:#x}")
    a(f"s_lshl_b32 {sT3}, {sRB}, 2")
    a(f"s_add_u32 {sT3}, {sT3}, {sRG}")
    a(f"s_mul_i32 {sT0}, {sT3}, 74")
    a(f"s_mul_i32 {sT1}, {sID}, 3")
    a(f"s_add_u32 {sT0}, {sT0}, {sT1}")
    a(f"s_lshl_b32 {sT0}, {sT0}, 12")
    a(f"s_lshl_b32 {sT1}, {sHI}, 13")
    a(f"s_add_u32 {sT1}, {sT0}, {sT1}")
    a(f"s_lshl_b32 {sT2}, {sHI}, 9")
    a(f"s_add_u32 {sT2}, {sT2}, {sT0}")
    a(f"s_add_u32 {sT2}, {sT2}, 4096")
    a(f"s_lshl_b32 {sFLAG}, {sT3}, 7")
    a(f"s_add_u32 {sFLAG}, {sFLAG}, {FH}")
    a(f"v_lshlrev_b32 {t0}, 4, {lane}")
    a(f"v_and_b32 {t1}, 31, {lane}")
    a(f"v_lshlrev_b32 {t1}, 4, {t1}")
    a(f"v_lshrrev_b32 {t2}, 5, {lane}")
    a(f"v_lshl_add_u32 {t1}, {t2}, 10, {t1}")
    tmp = [V(FB[1] + 4 * i, 4) for i in range(2)]
    outs = [V(FB[1] + 8 + 4 * i, 4) for i in range(6)]
    cnt_ = [0]
    def silu2(G0, U0, G1, U1, o):
        GU = ((G0, U0, tmp[0]), (G1, U1, tmp[1]))
        pk = cnt_[0] >= OPT['npk']; cnt_[0] += 1
        for G, U, T in GU:
            if pk:
                for h in range(2): a(f"v_pk_mul_f32 {T[2*h:2*h+2]}, {G[2*h:2*h+2]}, {sN}")
            else:
                for k in range(4): a(f"v_mul_f32 {T[k]}, {sN[0]}, {G[k]}")
        for G, U, T in GU:
            for k in range(4): a(f"v_exp_f32 {T[k]}, {T[k]}")
        for G, U, T in GU:
            if pk:
                for h in range(2): a(f"v_pk_mul_f32 {G[2*h:2*h+2]}, {G[2*h:2*h+2]}, {U[2*h:2*h+2]}")
            else:
                for k in range(4): a(f"v_mul_f32 {G[k]}, {G[k]}, {U[k]}")
        for G, U, T in GU:
            if pk:
                for h in range(2): a(f"v_pk_add_f32 {T[2*h:2*h+2]}, {T[2*h:2*h+2]}, 1.0 op_sel_hi:[1,0]")
            else:
                for k in range(4): a(f"v_add_f32 {T[k]}, 1.0, {T[k]}")
        for G, U, T in GU:
            for k in range(4): a(f"v_rcp_f32 {T[k]}, {T[k]}")
        for G, U, T in GU:
            if pk:
                for h in range(2): a(f"v_pk_mul_f32 {G[2*h:2*h+2]}, {G[2*h:2*h+2]}, {T[2*h:2*h+2]}")
            else:
                for k in range(4): a(f"v_mul_f32 {G[k]}, {G[k]}, {T[k]}")
        for q, (G, U, T) in enumerate(GU):
            for h in range(2): a(f"v_cvt_pk_bf16_f32 {o[2*q+h]}, {G[2*h]}, {G[2*h+1]}")
    for tt in range(4):
        o = outs[tt]
        silu2(ACC[0][tt], ACC[3][tt], ACC[1][tt], ACC[4][tt], o)
        a(f"buffer_store_dwordx4 {o}, {t0}, {rWS}, {sT1} offen offset:{tt*1024} {ST}")
    for l in q_flag_issue(): a(l)
    for tp in range(2):
        o = outs[4 + tp]
        silu2(ACC[2][2*tp], ACC[5][2*tp], ACC[2][2*tp+1], ACC[5][2*tp+1], o)
        a(f"v_permlane32_swap_b32 {o[0]}, {o[2]}")
        a(f"v_permlane32_swap_b32 {o[1]}, {o[3]}")
        a(f"buffer_store_dwordx4 {o}, {t1}, {rWS}, {sT2} offen offset:{tp*2048} {ST}")
    flag_store(35)
    a("s_waitcnt vmcnt(2)")
    a(f"s_mov_b32 {sPF}, 0")
    a("s_branch P2")

    a.label('R_QKV')
    vm = VmTrack()
    vw = [V(R0), V(R0 + 1), V(R0 + 2)]; wa = V(R0 + 3); pa = V(R0 + 4); vchk = V(R0 + 5); vgw = V(R0 + 6)
    FB = [32, 68]
    XF = [[V(FB[b] + 4 * tt, 4) for tt in range(4)] for b in range(2)]
    WF = [[V(FB[b] + 16 + 4 * c, 4) for c in range(5)] for b in range(2)]
    ACC = [V(104 + 20 * tt, 20) for tt in range(4)]
    pf4 = [V(32 + 4 * i, 4) for i in range(9)] + [V(196, 4)]
    pf2 = [V(200, 2), V(202, 2), V(204, 2), V(206, 2), V(248, 2)]
    PF = [[pf4[2 * t], pf4[2 * t + 1], pf2[t]] for t in range(5)]
    WP = V(184, 4); GWF = V(188, 4); GA = V(192, 4)
    sC0, sC1, sLo, sHi2, sISQ, sHB, sGD = [S(77 + i) for i in range(7)]
    PHW = 135168; PHB = 0; VVB = 90112; PS = 352
    srd(a, rW, pQKV, 640 * 3840)
    srd(a, rA, pPHI, 32 * 800)
    a(f"s_lshl_b32 {sID}, {sT0}, 1"); a(f"s_add_u32 {sID}, {sID}, {sC8}")
    a(f"s_mul_i32 {sC0}, {sID}, 160")
    a(f"s_add_u32 {sC1}, {sC0}, 2560")
    a(f"s_add_u32 {sC0}, {sC0}, 1280")
    a(f"s_lshl_b32 {sHB}, {sID}, 2")
    a(f"s_mul_i32 {sT1}, {sT0}, 320")
    a(f"s_add_u32 {sT2}, {sT1}, 160")
    a(f"s_lshl_b32 {sT3}, {sT0}, 3")
    a(f"s_cmp_eq_u32 {sC8}, 2")
    a(f"s_cselect_b32 {sC0}, {sT1}, {sC0}")
    a(f"s_cselect_b32 {sC1}, {sT2}, {sC1}")
    a(f"s_cselect_b32 {sHB}, {sT3}, {sHB}")
    a(f"s_cselect_b32 {sISQ}, 1, 0")
    a(f"s_bitcmp1_b32 {sWV}, 0")
    a(f"s_cselect_b32 {sLo}, {sC1}, {sC0}")
    a(f"s_cselect_b32 {sHi2}, {sC0}, {sC1}")
    a(f"s_sub_u32 {sHi2}, {sHi2}, 160")
    touch_setup(pQKV, pQKV, 3840, sC0, sC1, 160)
    for l in burst(vm, *BS['p0']): a(l)
    for n in range(3):
        a(f"v_add_u32 {t0}, {64*n}, {lane}")
        a(f"v_mul_u32_u24 {t1}, 205, {t0}")
        a(f"v_lshrrev_b32 {t1}, 12, {t1}")
        a(f"v_mul_u32_u24 {t2}, 20, {t1}")
        a(f"v_sub_u32 {t2}, {t0}, {t2}")
        a(f"v_cmp_le_u32 vcc, 10, {t2}")
        a(f"v_mov_b32 {t3}, {sLo}")
        a(f"v_mov_b32 {t4}, {sHi2}")
        a(f"v_cndmask_b32 {t3}, {t3}, {t4}, vcc")
        a(f"v_mul_u32_u24 {t1}, 3840, {t1}")
        a(f"v_lshl_add_u32 {t1}, {t2}, 4, {t1}")
        a(f"v_add_u32 {vw[n]}, {t1}, {t3}")
        if n: a(f"v_subrev_u32 {vw[n]}, {1024*n}, {vw[n]}")
    a(f"s_mul_i32 {sWK}, {sWV}, {8*3840}")
    a(f"s_mul_i32 {sMW}, {sWV}, 2560")
    sW3 = [S(83), S(9)]
    if OPT['swp']:
        a(f"s_mul_i32 {sT1}, {sTY}, 245760"); a(f"s_add_u32 {sWK}, {sWK}, {sT1}"); a(f"s_lshl_b32 {sT1}, {sT1}, 1")
        a(f"s_sub_u32 {sW3[0]}, 245760, {sT1}"); a(f"s_add_u32 {sW3[1]}, {sT1}, 245760")
    def w_dma2(blk):
        l = [f"s_add_u32 m0, {sMW}, {WB + (blk % 3) * 20480}"] + ([f"s_add_u32 {sWK}, {sWK}, {(sW3[0] if blk % 2 else sW3[1]) if OPT['swp'] else 245760}"] if blk else []) + [
             f"buffer_load_dwordx4 {vw[0]}, {rW}, {sWK} offen {OPT['wfl']} lds",
             f"buffer_load_dwordx4 {vw[1]}, {rW}, {sWK} offen offset:1024 {OPT['wfl']} lds",
             "s_mov_b32 exec_hi, 0\n"
             f"buffer_load_dwordx4 {vw[2]}, {rW}, {sWK} offen offset:2048 {OPT['wfl']} lds\n"
             "s_mov_b32 exec_hi, -1"]
        for _ in range(3): vm.issue(('W', blk))
        return l
    a(f"v_lshlrev_b32 {t0}, 4, {tid}")
    a(f"s_mul_i32 {sT0}, {sHB}, 800")
    a(f"v_add_u32 {t0}, {sT0}, {t0}")
    a(f"buffer_load_dwordx4 {WP}, {t0}, {rA}, 0 offen"); vm.issue(('P', 0))
    if OPT['sb1'] and not OPT['x0e']: a("s_barrier")
    for l in x_dma(vm, 0, 0) + x_dma(vm, 0, 1) + w_dma2(0): a(l)
    x_addr_setup()
    a(f"v_lshl_add_u32 {t0}, {vqd}, 3, {vr}")
    a(f"v_mul_u32_u24 {t0}, 320, {t0}")
    a(f"v_and_b32 {t1}, 1, {vqd}")
    a(f"v_xor_b32 {t1}, {sHI}, {t1}")
    a(f"v_mul_u32_u24 {t1}, 160, {t1}")
    a(f"v_mul_u32_u24 {t2}, 40, {vc}")
    a(f"v_add3_u32 {t0}, {t0}, {t1}, {t2}")
    a(f"v_add_u32 {wa}, {WB}, {t0}")
    a(f"s_and_b32 {sT0}, {sHI}, {sISQ}")
    a(f"s_mul_i32 {sT0}, {sT0}, 3200")
    a(f"s_add_u32 {sT0}, {sT0}, {PHW}")
    a(f"v_mul_u32_u24 {t0}, 800, {vqd}")
    a(f"v_add_u32 {t0}, {sT0}, {t0}")
    a(f"v_mov_b32 {t1}, {ZERO}")
    a(f"v_cmp_eq_u32 vcc, {vc}, {vqd}")
    a(f"v_cndmask_b32 {t0}, {t1}, {t0}, vcc")
    a(f"v_mul_u32_u24 {t1}, 40, {vr}")
    a(f"v_add_u32 {pa}, {t0}, {t1}")
    def w_reads2(WFb, step):
        blk, kk = step // 2, step % 2
        return [f"ds_read_b64_tr_b16 {WFb[t][2*rd:2*rd+2]}, {wa} offset:{(blk % 3) * 20480 + kk * 10240 + rd * 1280 + 8 * t}" for t in range(5) for rd in range(2)]
    def t2b_emit():
        if T2:
            for b0 in eval(OPT['t2b']):
                for l in t2_all(b0): a(l)
                vm.issue('T')
    if OPT['t2pos'] == 1:
        if OPT['sb2']: a("s_barrier")
        t2b_emit()
    n = vm.wait_for(lambda t: t in (('X', 0), ('W', 0)))
    a(f"s_waitcnt vmcnt({n})")
    a("s_barrier")
    stamp(a, 1)
    for l in x_reads(XF[0], 0) + w_reads2(WF[0], 0): a(l)
    if OPT['fill'] == 0:
        for l in x_dma(vm, 1, 0) + x_dma(vm, 1, 1) + w_dma2(1): a(l)
        if OPT['t2pos'] == 2: t2b_emit()
    fq = []
    for b in range(1, 10):
        fq += [('X', b, max(0, 2*(b-3)+1)), ('W', b, max(0, 2*(b-3)+1))]
    for j in range(20):
        cur, nxt = j & 1, (j & 1) ^ 1
        if j % 2 == 1:
            if j < 19:
                n = vm.wait_for(lambda t: t in (('X', (j + 1) // 2), ('W', (j + 1) // 2)) or (j == 17 and t == 'chk'))
                a(f"s_waitcnt vmcnt({n}) lgkmcnt(0)")
            else: a("s_waitcnt lgkmcnt(0)")
            if j == 17: init_check(vchk)
            a("s_barrier")
        else:
            a("s_waitcnt lgkmcnt(0)")
            if OPT['pp'] or OPT['qbar']: a("s_barrier")
        sstamp(a, j)
        mains = [f"v_mfma_f32_16x16x32_bf16 {ACC[tt][4*t:4*t+4]}, {WF[cur][t]}, {XF[cur][tt]}, {'0' if j == 0 else ACC[tt][4*t:4*t+4]}" for t in range(5) for tt in range(4)]
        pre = burst(vm, *BS[j]) if j in BS else []
        lblk = []
        if j < 19:
            lblk += x_reads(XF[nxt], j + 1) + w_reads2(WF[nxt], j + 1)
            if OPT['fill']:
                cnt = 2 if j in (0, 1, 3, 5) else 1
                while cnt and fq and fq[0][2] <= j:
                    it = fq.pop(0); cnt -= 1
                    lblk += x_dma(vm, it[1], 0) + x_dma(vm, it[1], 1) if it[0] == 'X' else w_dma2(it[1])
            if j == 0 and not OPT['fill']: lblk += x_dma(vm, 2, 0) + x_dma(vm, 2, 1) + w_dma2(2)
            xb = (j - 1) // 2 + 3 if j >= 1 else 99
            if xb <= 9 and not OPT['fill']:
                if j % 2 == 1: lblk += x_dma(vm, xb, 0) + x_dma(vm, xb, 1)
                else: lblk += w_dma2(xb)
            if T2 and j in eval(OPT['t2q']): lblk += t2_one(*eval(OPT['t2q'])[j])
            if j == 15: lblk += init_check_issue(vchk); vm.issue('chk')
            if j == 17:
                lblk += [f"v_lshlrev_b32 {t0}, 4, {tid}", f"v_add_u32 {t0}, {PHW}, {t0}", f"ds_write_b128 {t0}, {WP}"]
            if j == 10: lblk += p2_setup()
            if j == 17: lblk += poison(V(208, 4))

        else:
            for t in range(5):
                for s in range(3):
                    for r_ in range(2 if s < 2 else 1):
                        lblk.append(f"ds_read_b64_tr_b16 {PF[t][s][2*r_:2*r_+2]}, {pa} offset:{s*320 + r_*160 + t*8}")
        step_body(mains, lblk, pre)
    stamp(a, 2)
    a("s_setprio 2")
    QB = V(68, 40); P = V(108, 20); E = V(128, 40); O = V(168, 20); M = V(250, 4); T = V(188, 4); ONE = V(192, 2)
    sCNT = S(8); sOUT = S(9)
    def cvt_tile(dst, tt):
        for i in range(10): a(f"v_cvt_pk_bf16_f32 {dst[i]}, {ACC[tt][2*i]}, {ACC[tt][2*i+1]}")
    def pk_list(q, P=P):
        l = []
        for s_ in range(3):
            for t in range(5):
                d = P[4*t:4*t+4]
                if s_ < 2: l.append(f"v_mfma_f32_16x16x32_bf16 {d}, {PF[t][s_]}, {q[4*s_:4*s_+4]}, {'0' if s_ == 0 else d}")
                else: l.append(f"v_mfma_f32_16x16x16_bf16 {d}, {PF[t][s_]}, {q[8:10]}, {d}")
        return l
    a(f"s_lshl_b32 {sT3}, {sRB}, 2")
    a(f"s_add_u32 {sT3}, {sT3}, {sRG}")
    a(f"s_cmp_eq_u32 {sISQ}, 0")
    a("s_cbranch_scc1 R_KV")
    for tt in range(4): cvt_tile(QB[10*tt:10*tt+10], tt)
    a("s_waitcnt lgkmcnt(0)")
    PT = [V(108 + 20*i, 20) for i in range(4)]
    a(f"s_lshr_b32 {sT1}, {sHB}, 2")
    a(f"s_add_u32 {sT1}, {sT1}, {sHI}")
    a(f"s_lshl_b32 {sOUT}, {sT3}, 3")
    a(f"s_add_u32 {sOUT}, {sOUT}, {sT1}")
    a(f"s_mul_i32 {sOUT}, {sOUT}, 10240")
    a(f"s_add_u32 {sOUT}, {sOUT}, {PQ}")
    a(f"s_add_u32 {sT0}, {sOUT}, 8192")
    a(f"s_lshl_b32 {sFLAG}, {sT3}, 7")
    a(f"s_add_u32 {sFLAG}, {sFLAG}, {FH + 4}")
    QO = [V(208 + 8*i, 8) for i in range(4)]; QT = [V(240, 4), V(244, 4)]
    def q_out(tt):
        l = [f"v_cvt_pk_bf16_f32 {QO[tt][i] if i < 8 else QT[tt//2][2*(tt%2) + i - 8]}, {PT[tt][2*i]}, {PT[tt][2*i+1]}" for i in range(10)]
        for h in range(2): l.append(f"buffer_store_dwordx4 {QO[tt][4*h:4*h+4]}, {vo if tt < 2 else vo4}, {rWS}, {sOUT} offen offset:{(tt%2)*2048 + h*1024} {ST}")
        if tt % 2: l.append(f"buffer_store_dwordx4 {QT[tt//2]}, {vo}, {rWS}, {sT0} offen offset:{(tt//2)*1024} {ST}")
        return l
    for tt in range(4):
        side = q_out(tt - 1) if tt else []
        for i, l in enumerate(pk_list(QB[10*tt:10*tt+10], PT[tt])):
            a(l)
            if i >= 2 and side: a(side.pop(0))
    for l in q_out(3): a(l)
    flag_store(7)
    a(f"v_mov_b32 {vFQ}, 0")
    a(f"s_mov_b32 {sPF}, 6")
    a("s_branch P2")
    a.label('R_KV')
    a(f"s_lshl_b32 {sT1}, {sRG}, 1"); a(f"s_add_u32 {sT0}, {sT1}, 1"); a(f"s_mul_i32 {sT0}, {sT0}, {32*PS}")
    a(f"v_add_u32 {t0}, {sT0}, {vo}")
    a(f"s_mov_b32 {sCNT}, 2")
    a(f"s_cmp_eq_u32 {sHI}, 1")
    a("s_cbranch_scc1 R_V")
    cvt_tile(QB[0:10], 0)
    cvt_tile(QB[20:30], 2); cvt_tile(QB[30:40], 3)
    for i in range(5): a(f"ds_write_b128 {t0}, {QB[20+4*i:24+4*i]} offset:{i*1024}")
    cvt_tile(QB[10:20], 1)
    a("s_waitcnt lgkmcnt(0)")
    a("s_barrier")
    for l in pk_list(QB[0:10]): a(l)
    a("s_branch R_KV2")
    a.label('R_V')
    VBt = {3: V(88, 10), 0: V(98, 10), 1: V(168, 10), 2: V(178, 10)}
    for tt in (3, 0, 1, 2): cvt_tile(VBt[tt], tt)
    a(f"s_mul_i32 {sT2}, {sRG}, {64*176}")
    a(f"s_add_u32 {sT2}, {sT2}, {VVB}")
    a(f"v_mul_u32_u24 {t2}, 176, {vl15}")
    a(f"v_add_u32 {t1}, {sT2}, {t2}")
    a(f"v_mul_u32_u24 {t3}, 40, {vqd}")
    a(f"v_add_u32 {t2}, {t1}, {t3}")
    a(f"v_mov_b32 {ONE[0]}, 0x3f80")
    a(f"v_mov_b32 {ONE[1]}, 0")
    a("s_barrier")
    for i in range(5): a(f"ds_read_b128 {QB[4*i:4*i+4]}, {t0} offset:{i*1024}")
    side = []
    for tt in (3, 0, 1, 2):
        for i in range(5): side.append(f"ds_write_b64 {t2}, {VBt[tt][2*i:2*i+2]} offset:{tt*2816 + 8*i}")
        side.append(f"ds_write_b64 {t1}, {ONE} offset:{tt*2816 + 160}")
    for i in range(9): a(side.pop(0))
    a("s_waitcnt lgkmcnt(9)")
    for l in pk_list(QB[0:10]): a(l); a(side.pop(0))
    a.label('R_KV2')
    a(f"s_add_u32 {sT1}, {sT1}, {sHI}"); a(f"s_mul_i32 {sT1}, {sT1}, {32*PS}")
    a(f"v_mul_u32_u24 {t4}, {PS}, {vl15}")
    a(f"v_mul_u32_u24 {t3}, 80, {vqd}")
    a(f"v_add3_u32 {t4}, {t4}, {t3}, {sT1}")
    stamp(a, 12)
    for u in range(2):
        if u == 0:
            bl = b_reg(vm, 0, 'B') + b_reg(vm, 1, 'B'); pl = pk_list(QB[10:20])
            sd = [pl[i] + ("\n" + bl[i] if i < len(bl) else "") for i in range(15)]
        else: sd = b_reg(vm, 2, 'B') + b_reg(vm, 3, 'B')
        softmax_unit(a, P, E, M, T, O, sd + ["s_waitcnt lgkmcnt(0)"])
        for s_ in range(5): a(f"ds_write_b128 {t4}, {O[4*s_:4*s_+4]} offset:{PHB + u*16*PS + 16*s_}")
    a(f"v_lshl_add_u32 {t0}, {vqd}, 2, {vr}")
    a(f"v_mul_u32_u24 {t1}, {PS}, {t0}")
    a(f"s_mul_i32 {sT0}, {sRG}, 80")
    a(f"v_lshl_add_u32 {t1}, {vc}, 3, {t1}")
    a(f"v_add_u32 {t1}, {sT0}, {t1}")
    a(f"v_add_u32 {t2}, {128*PS}, {t1}")
    a(f"v_mul_u32_u24 {t0}, 176, {t0}")
    a(f"s_mul_i32 {sT0}, {sRG}, 40")
    a(f"s_mul_i32 {sT1}, {sHI}, 24")
    a(f"s_add_u32 {sT0}, {sT0}, {sT1}")
    a(f"v_lshl_add_u32 {t3}, {vc}, 3, {sT0}")
    a(f"v_mul_u32_u24 {t4}, {sHI}, {vc}")
    a(f"v_cmp_lt_u32 vcc, 1, {t4}")
    a(f"v_mov_b32 {t4}, 160")
    a(f"v_cndmask_b32 {t3}, {t3}, {t4}, vcc")
    a(f"v_add_u32 {t3}, {VVB}, {t3}")
    a(f"v_add_u32 {t3}, {t0}, {t3}")
    stamp(a, 13)
    a("s_waitcnt lgkmcnt(0)")
    a("s_barrier")
    stamp(a, 14)
    a(f"s_lshl_b32 {sFLAG}, {sID}, 7"); a(f"s_add_u32 {sFLAG}, {sFLAG}, {FK}")
    def k_hint():
        a("v_mov_b32 v29, 1"); a("v_mov_b32 v11, 0")
        a(f"s_cmp_lg_u32 {sWV}, 7"); a("s_cbranch_scc1 KH1")
        a("s_mov_b64 exec, 1"); a(f"buffer_atomic_add v29, v11, {rWS}, {sFLAG} offen sc0 sc1"); a("s_mov_b64 exec, -1")
        a.label('KH1')
    if OPT['kh'] == 0: k_hint()
    for l in q_flag_issue(): a(l)
    KA = [[V(72 + (b*4 + f)*4, 4) for f in range(4)] for b in range(3)]
    KD = [V(128 + 4*f, 4) for f in range(3)]
    def kv_reads(b, s):
        l = []
        for rd in range(2):
            l.append(f"ds_read_b64_tr_b16 {KA[b][3][2*rd:2*rd+2]}, {t3} offset:{s*5632 + rd*2816}")
        for f in range(3):
            for rd in range(2):
                l.append(f"ds_read_b64_tr_b16 {KA[b][f][2*rd:2*rd+2]}, {t1 if s < 4 else t2} offset:{(s % 4)*32*PS + rd*16*PS + f*32}")
        return l
    allr = [l for s in range(8) for l in kv_reads(s % 3, s)]
    pos = 0
    for s in range(8):
        for f in range(3):
            needr = s * 8 + 2 + 2 * (f + 1)
            lim = min(len(allr), needr + 12, (s + 2) * 8 + (2 + 2 * f if False else 0) + 8 - 8 + 0) if False else min(len(allr), needr + 12)
            lim = min(lim, (s + 3) * 8)
            while pos < lim: a(allr[pos]); pos += 1
            a(f"s_waitcnt lgkmcnt({pos - needr})")
            a(f"v_mfma_f32_16x16x32_bf16 {KD[f]}, {KA[s%3][f]}, {KA[s%3][3]}, {'0' if s == 0 else KD[f]}")
    stamp(a, 15)
    a(f"s_add_u32 {sT0}, {sHB}, {sRG}")
    a(f"s_lshl_b32 {sT0}, {sT0}, 1")
    a(f"s_add_u32 {sT0}, {sT0}, {sHI}")
    a(f"s_mul_i32 {sT0}, {sT0}, 3072")
    a(f"s_add_u32 {sT0}, {sT0}, {KVACC}")
    if OPT['kh'] == 1: k_hint()
    def k_go(n):
        a(f"s_cmp_lg_u32 {sWV}, 7"); a("s_cbranch_scc1 KH2")
        a(f"s_waitcnt vmcnt({n})")
        a("v_cmp_eq_u32 vcc, 7, v29"); a(f"s_add_u32 s4, {sFLAG}, {GOD}"); a("s_and_b64 exec, vcc, 1")
        a(f"buffer_store_dword v29, v11, {rWS}, s4 offen sc1"); a("s_mov_b64 exec, -1")
        a.label('KH2')
    if OPT['kh'] == 0: k_go(0)
    a(f"v_lshlrev_b32 {t2}, 2, {lane}")
    a(f"v_cmp_eq_u32 vcc, 15, {vl15}")
    for f in range(3):
        for j in range(4): a(f"v_cndmask_b32 {KD[f][j]}, {KD[f][j]}, 1.0, vcc")
    for f in range(3):
        if f == 2: a("s_mov_b32 exec_hi, 0")
        for j in range(4):
            a(f"buffer_atomic_add_f32 {KD[f][j]}, {t2}, {rWS}, {sT0} offen offset:{f*1024 + j*256} {OPT['atf']}")
    a("s_mov_b32 exec_hi, -1")
    if OPT['kh'] == 1: k_go(12)
    a("s_waitcnt vmcnt(12)")
    flag_store(-1)
    a(f"s_mov_b32 {sPF}, 4")
    a("s_branch P2")

    a.label('R_SPARE')
    sSP, sU, sSO, sST = S(77), S(78), S(79), S(80)
    va = Alloc('v', 176, 250)
    vf = [va() for _ in range(5)]; vat = [va() for _ in range(5)]
    rf = [va() for _ in range(5)]; rat = [va(), va()]
    vst = va(); vst4 = va()
    FR = [[va(4) for _ in range(5)] for b in range(2)]
    Z4 = va(4)
    NT = OPT['spnt']
    if T2:
        for b0 in eval(OPT['t2b']):
            for l in t2_all(b0): a(l)
    srd(a, rA, pWD, 1728 * 1280)
    srd(a, rB, pWO, 640 * 1280)
    a(f"s_lshr_b32 {sSP}, {sT0}, 1")
    a(f"s_lshl_b32 {sSP}, {sSP}, 3")
    a(f"s_add_u32 {sSP}, {sSP}, {sRB}")
    a(f"s_lshl_b32 {sT0}, {sWV}, 2")
    a(f"s_mul_i32 {sT1}, {sWV}, 20")
    for n in range(5):
        a(f"v_add_u32 {t0}, {64*n}, {lane}")
        a(f"v_mul_u32_u24 {t1}, 205, {t0}")
        a(f"v_lshrrev_b32 {t1}, 14, {t1}")
        a(f"v_mul_u32_u24 {t2}, 80, {t1}")
        a(f"v_sub_u32 {t2}, {t0}, {t2}")
        a(f"v_add_u32 {t1}, {sT0}, {t1}")
        a(f"v_and_b32 {t3}, 7, {t1}")
        a(f"v_lshlrev_b32 {t3}, 1, {t3}")
        a(f"v_xor_b32 {t2}, {t2}, {t3}")
        a(f"v_mul_u32_u24 {t1}, 1280, {t1}")
        a(f"v_lshl_add_u32 {vf[n]}, {t2}, 4, {t1}")
        if n % 4: a(f"v_subrev_u32 {vf[n]}, {1024*(n%4)}, {vf[n]}")
    a(f"s_mul_i32 {sM}, {sWV}, 5120")
    def u_dma(buf, typ):
        if typ == 'F':
            a(f"s_mul_i32 {sSO}, {sU}, 40960")
            vv, rr = vf, rA
        else:
            a(f"s_sub_u32 {sT2}, {sU}, 54")
            a(f"s_mul_i32 {sT3}, {sT2}, 52")
            a(f"s_lshr_b32 {sT3}, {sT3}, 8")
            a(f"s_mul_i32 {sSO}, {sT3}, {160*1280 - 5*256}")
            a(f"s_lshl_b32 {sT2}, {sT2}, 8")
            a(f"s_add_u32 {sSO}, {sSO}, {sT2}")
            vv, rr = vat, rB
        a(f"s_add_u32 m0, {sM}, {buf*40960}")
        for n in range(4):
            a(f"buffer_load_dwordx4 {vv[n]}, {rr}, {sSO} offen offset:{n*1024} {NT} lds")
        a(f"s_add_u32 m0, {sM}, {buf*40960 + 4096}")
        a(f"buffer_load_dwordx4 {vv[4]}, {rr}, {sSO} offen {NT} lds")
    def dyn(it, fn):
        if it == 4:
            a(f"s_add_u32 {sU}, {sSP}, 64"); a(f"s_min_u32 {sU}, {sU}, 73"); fn('A'); return
        a(f"s_add_u32 {sU}, {sSP}, {16*it}")
        if it <= 2: fn('F')
        else:
            l1, l2 = a.newlabel('SP'), a.newlabel('SP')
            a(f"s_cmp_ge_u32 {sU}, 54"); a(f"s_cbranch_scc1 {l1}")
            fn('F'); a(f"s_branch {l2}"); a.label(l1); fn('A'); a.label(l2)
    for it in range(3): dyn(it, lambda typ: u_dma(it, typ))
    a(f"v_lshlrev_b32 {t0}, 4, {tid}")
    for i in range(4): a(f"v_mov_b32 {Z4[i]}, 0")
    a(f"s_mul_i32 {sT2}, {sSP}, 13568")
    a(f"s_add_u32 {sT2}, {sT2}, {KVACC}")
    a(f"buffer_store_dwordx4 {Z4}, {t0}, {rWS}, {sT2} offen {ST}")
    a(f"s_add_u32 {sT2}, {sT2}, {13568 - 8192}")
    a(f"buffer_store_dwordx4 {Z4}, {t0}, {rWS}, {sT2} offen {ST}")
    for n in range(5):
        a(f"v_add_u32 {t1}, {4*n}, {vqd}")
        a(f"v_add_u32 {t1}, {sT1}, {t1}")
        a(f"v_and_b32 {t3}, 7, {t1}")
        a(f"v_lshlrev_b32 {t3}, 1, {t3}")
        a(f"v_xor_b32 {t2}, {vl15}, {t3}")
        a(f"v_mul_u32_u24 {t1}, 1280, {t1}")
        a(f"v_lshl_add_u32 {vat[n]}, {t2}, 4, {t1}")
        if n % 4: a(f"v_subrev_u32 {vat[n]}, {1024*(n%4)}, {vat[n]}")
    a(f"v_lshl_add_u32 {t0}, {vqd}, 2, {vr}")
    a(f"v_and_b32 {t1}, 7, {t0}")
    a(f"v_lshlrev_b32 {t1}, 1, {t1}")
    a(f"v_mul_u32_u24 {t0}, 1280, {t0}")
    a(f"v_and_b32 {t2}, 1, {vc}")
    a(f"v_lshl_add_u32 {t0}, {t2}, 3, {t0}")
    a(f"v_lshrrev_b32 {t3}, 1, {vc}")
    a(f"s_mul_i32 {sT0}, {sWV}, 10")
    a(f"v_add_u32 {t4}, {sT0}, {t3}")
    for j in range(5):
        a(f"v_add_u32 {rf[j]}, {2*j}, {t4}")
        a(f"v_xor_b32 {rf[j]}, {rf[j]}, {t1}")
        a(f"v_lshl_add_u32 {rf[j]}, {rf[j]}, 4, {t0}")
    a(f"v_mul_u32_u24 {t0}, 20, {vqd}")
    a(f"v_add_u32 {t0}, {t0}, {vr}")
    a(f"v_lshlrev_b32 {t0}, 8, {t0}")
    a(f"v_lshl_add_u32 {t0}, {t2}, 3, {t0}")
    a(f"s_lshl_b32 {sT0}, {sWV}, 1")
    a(f"v_add_u32 {t4}, {sT0}, {t3}")
    a(f"v_xor_b32 {t4}, {t4}, {t1}")
    a(f"v_lshl_add_u32 {rat[0]}, {t4}, 4, {t0}")
    a(f"v_xor_b32 {rat[1]}, 128, {rat[0]}")
    a(f"v_lshlrev_b32 {vst}, 4, {lane}")
    a(f"v_add_u32 {vst4}, 4096, {vst}")
    def u_proc(buf, typ, F):
        if typ == 'F':
            for j in range(5):
                a(f"v_add_u32 {t0}, {buf*40960}, {rf[j]}")
                for rd in range(2):
                    a(f"ds_read_b64_tr_b16 {F[j][2*rd:2*rd+2]}, {t0} offset:{rd*20480}")
            a(f"s_mul_i32 {sST}, {sWV}, 74")
            a(f"s_add_u32 {sST}, {sST}, {sU}")
            a(f"s_mul_i32 {sST}, {sST}, 5120")
            a(f"s_add_u32 {sST}, {sST}, {BP}")
            a("s_waitcnt lgkmcnt(0)")
            for j in range(5):
                if j < 4: a(f"buffer_store_dwordx4 {F[j]}, {vst}, {rWS}, {sST} offen offset:{j*1024} {ST}")
                else: a(f"buffer_store_dwordx4 {F[j]}, {vst4}, {rWS}, {sST} offen {ST}")
        else:
            bases = [(0, 4), (8, 12), (16, 96), (80, 84), (88, 92)]
            a(f"v_add_u32 {t0}, {buf*40960}, {rat[0]}")
            a(f"v_add_u32 {t1}, {buf*40960}, {rat[1]}")
            a(f"v_lshrrev_b32 {t4}, 1, {vqd}"); a(f"v_mul_u32_u24 {t4}, {40*256}, {t4}"); a(f"v_add_u32 {t4}, {t4}, {t0}")
            for s5 in range(5):
                for rd in range(2):
                    b = bases[s5][rd]
                    if s5 == 2: a(f"ds_read_b64_tr_b16 {F[s5][2*rd:2*rd+2]}, {t4} offset:{(16 + 40*rd)*256}")
                    else: a(f"ds_read_b64_tr_b16 {F[s5][2*rd:2*rd+2]}, {t1 if b % 8 else t0} offset:{b*256}")
            a(f"s_sub_u32 {sT2}, {sU}, 54")
            a(f"s_mul_i32 {sT3}, {sT2}, 52")
            a(f"s_lshr_b32 {sT3}, {sT3}, 8")
            a(f"s_mul_i32 {sT0}, {sT3}, 5")
            a(f"s_sub_u32 {sT2}, {sT2}, {sT0}")
            a(f"s_lshl_b32 {sT2}, {sT2}, 3")
            a(f"s_add_u32 {sT2}, {sT2}, {sWV}")
            a(f"s_mul_i32 {sT1}, {sT2}, 52")
            a(f"s_lshr_b32 {sT1}, {sT1}, 8")
            a(f"s_mul_i32 {sST}, {sT1}, 5")
            a(f"s_sub_u32 {sT2}, {sT2}, {sST}")
            a(f"s_mul_i32 {sST}, {sT1}, 74")
            a(f"s_add_u32 {sST}, {sST}, {sT0}")
            a(f"s_add_u32 {sST}, {sST}, 54")
            a(f"s_mul_i32 {sST}, {sST}, 5120")
            a(f"s_lshl_b32 {sT2}, {sT2}, 10")
            a(f"s_add_u32 {sST}, {sST}, {sT2}")
            a(f"s_add_u32 {sST}, {sST}, {BP}")
            a("s_waitcnt lgkmcnt(0)")
            for s5 in range(5):
                a(f"buffer_store_dwordx4 {F[s5]}, {vst}, {rWS}, {sST} offen {ST}")
                if s5 < 4: a(f"s_add_u32 {sST}, {sST}, 5120")
    vm = VmTrack()
    for t in ['D0']*5 + ['D1']*5 + ['D2']*5 + ['Z']*2: vm.issue(t)
    def sp_signal(k):
        lsk = a.newlabel('SPD')
        a(f"s_cmp_lg_u32 {sWV}, 7"); a(f"s_cbranch_scc1 {lsk}")
        a(f"v_mov_b32 {t2}, 0"); a(f"v_mov_b32 {t3}, 1")
        a("s_mov_b64 exec, 1")
        a(f"buffer_atomic_add {t3}, {t2}, {rDBG}, 0 offen offset:{4*k} sc0 sc1")
        a("s_waitcnt vmcnt(0)")
        a(f"v_cmp_eq_u32 vcc, 15, {t3}")
        a("s_and_b64 exec, exec, vcc")
        a(f"buffer_store_dword {t3}, {t2}, {rDBG}, 0 offen offset:{128 + 4*k} sc1")
        a("s_mov_b64 exec, -1")
        a.label(lsk)
    for it in range(5):
        n = vm.wait_for(lambda t: t == f'D{it}' or (it == 3 and t == 'S2') or (it == 2 and t == 'S1'))
        a(f"s_waitcnt vmcnt({n})")
        a("s_barrier")
        if it == 2: sp_signal(0); stamp(a, 1)
        if it == 3: sp_signal(2)
        dyn(it, lambda typ: u_proc(it % 3, typ, FR[it & 1]))
        for _ in range(5): vm.issue(f'S{it}')
        if it == OPT['t2si'] and T2 and OPT['t2s']:
            a(f"s_and_b32 s4, {sWV}, 1"); a(f"s_lshl1_add_u32 s4, {sSP}, s4"); a("s_lshl_b32 s4, s4, 6"); a("s_mul_i32 s4, s4, s5")
            a(f"s_mul_i32 s6, {sBK}, {OPT['t2s']}"); a("s_add_u32 s4, s4, s6")
            a(f"v_add_u32 v21, s4, {vt1}")
            a(f"buffer_load_dword {tdum}, v21, {rTT}, 0 offen"); vm.issue('T')
        if it in (1, 2):
            dyn(it + 2, lambda typ: u_dma(it - 1, typ))
            for _ in range(5): vm.issue(f'D{it+2}')
    a("s_waitcnt vmcnt(0)")
    a("s_barrier")
    sp_signal(1)
    stamp(a, 2)
    GW = [V(72 + 4*i, 4) for i in range(5)]
    GX = [[V(96 + (g*5 + i)*4, 4) for i in range(5)] for g in range(4)]
    GA = [V(92 + g) for g in range(4)]
    srd(a, rW, pGW, 1280)
    a(f"v_lshlrev_b32 {t0}, 4, {vl15}")
    for i in range(5): a(f"buffer_load_dwordx4 {GW[i]}, {t0}, {rW}, 0 offen offset:{i*256}")
    a(f"v_mul_u32_u24 {t1}, 1280, {vqd}")
    a(f"v_add_u32 {t0}, {t0}, {t1}")
    a(f"s_lshl_b32 {sT3}, {sSP}, 3")
    a(f"s_add_u32 {sT3}, {sT3}, {sWV}")
    a(f"s_mul_i32 {sT2}, {sT3}, {16*1280}")
    for g in range(4):
        for i in range(5): a(f"buffer_load_dwordx4 {GX[g][i]}, {t0}, {rX}, {sT2} offen offset:{i*256}")
        if g < 3: a(f"s_add_u32 {sT2}, {sT2}, {4*1280}")
    for g in range(4): a(f"v_mov_b32 {GA[g]}, 0")
    init_poll(a, t1, 128)
    for i in range(5):
        for k in range(4):
            for g in range(4): a(f"v_dot2c_f32_bf16 {GA[g]}, {GX[g][i][k]}, {GW[i][k]}")
    for sh in (8, 4, 2, 1):
        for g in range(4): a(f"v_add_f32_dpp {GA[g]}, {GA[g]}, {GA[g]} row_ror:{sh} row_mask:0xf bank_mask:0xf")
    for g in range(4): a(f"v_mul_f32 {GA[g]}, {LOG2E:#x}, {GA[g]}")
    for g in range(4): a(f"v_min_f32 {GA[g]}, 0x42a00000, {GA[g]}")
    for g in range(4): a(f"v_exp_f32 {GA[g]}, {GA[g]}")
    a(f"v_mov_b32 {t2}, {GA[0]}")
    for g in range(1, 4):
        a(f"v_cmp_eq_u32 vcc, {g}, {vl15}"); a(f"v_cndmask_b32 {t2}, {t2}, {GA[g]}, vcc")
    a(f"v_lshl_add_u32 {t0}, {vl15}, 2, {vqd}")
    a(f"v_lshlrev_b32 {t3}, 2, {t0}")
    a(f"s_lshl_b32 {sT2}, {sT3}, 6"); a(f"s_add_u32 {sT2}, {sT2}, {GOFF}")
    a("s_mov_b32 exec_lo, 0x000f000f"); a("s_mov_b32 exec_hi, 0x000f000f")
    a(f"buffer_store_dword {t2}, {t3}, {rWS}, {sT2} offen {ST}")
    a("s_mov_b64 exec, -1")
    a(f"s_lshr_b32 {sFLAG}, {sT3}, 2"); a(f"s_lshl_b32 {sFLAG}, {sFLAG}, 7"); a(f"s_add_u32 {sFLAG}, {sFLAG}, {FH + 12}")
    flag_store(3)
    a(f"v_mov_b32 {vFQ}, 0")

    vm = VmTrack()
    a(f"s_mov_b32 {sPF}, 7")
    a.label('P2')
    stamp(a, 3)
    a(f"s_bitcmp0_b32 {sPF}, 0"); a("s_cbranch_scc1 P2_E1")
    for l in p2_setup() + poison(V(208, 4)): a(l)
    a.label('P2_E1')
    vG = V(16, 4); vz = V(11); ka = V(12); kw = V(13); vbl = V(15); vcn = V(14)
    ACC = [[V(72 + (tt * 5 + j) * 4, 4) for j in range(5)] for tt in range(4)]
    ARl = [V(152 + 4 * i, 4) for i in range(14)] + [V(248, 4), V(24, 4)]
    AR = [ARl[4*b:4*b+4] for b in range(4)]
    sFHo = S(78)
    rOUT = rX
    if OPT['noa'] == 1: srd(a, rA, pWS, 0)
    a(f"v_mov_b32 {vz}, 0")
    a(f"v_mov_b32 {vcn}, {CNT}")
    a(f"v_add_u32 {vbl}, {sLC}, {vo}")
    vbl2 = V(23)
    a(f"v_add_u32 {vbl2}, {3*20480}, {vbl}")
    def lrow(row, j):
        return (vbl, row*20480 + j*1024) if row < 3 else (vbl2, (row-3)*20480 + j*1024)
    CG_ = {4:3, 5:4, 6:0, 7:1, 8:2} if OPT['gf'] & 2 else {4:0, 5:1, 6:2, 7:3, 8:4}
    def a_loads(i, tag, vts=None, r=None):
        b = i % 4; r = r or rWS
        if OPT['noa'] == 1: r = rA
        if OPT['noa'] == 2: return [f"s_mov_b32 {sT0}, {sAo}"] + [(f"buffer_load_dwordx4 {AR[b][tt]}, {vo}, {r}, {sT0} offen offset:{tt*1024} {LD}", vm.issue(tag))[0] for tt in range(4)]
        l = [f"s_add_u32 {sT0}, {sAo}, {((i*16384 if i < 4 else CA0 + CG_[i]*16384) if vts else GRP[i]*16384)}"]
        for tt in range(4):
            if vts: l.append(f"buffer_load_dwordx4 {AR[b][tt]}, {vts[tt]}, {r}, {sT0} offen {LD}")
            else: l.append(f"buffer_load_dwordx4 {AR[b][tt]}, {vo}, {r}, {sT0} offen offset:{tt*1024} {LD}")
            vm.issue(tag)
        return l
    def b_fromlds(i, row):
        return ["ds_read_b128 %s, %s offset:%d" % ((BR[i % 4][j],) + lrow(row, j)) for j in range(5)]
    def mm(b, zero, side=[], every=2):
        side = list(side)
        for j in range(5):
            for tt in range(4):
                d = ACC[tt][j]
                a(f"v_mfma_f32_16x16x32_bf16 {d}, {BR[b][j]}, {AR[b][tt]}, {'0' if tt in zero else d}")
                while side and side[0].startswith('s_'): a(side.pop(0))
                if side and tt % every == every - 1: a(side.pop(0))
        for l in side: a(l)
    def g_load():
        a(f"s_lshl_b32 {sT0}, {sR6}, 8"); a(f"s_add_u32 {sT0}, {sT0}, {GOFF}")
        a(f"v_lshlrev_b32 {t0}, 4, {vl15}")
        a(f"buffer_load_dwordx4 {vG}, {t0}, {rWS}, {sT0} offen {LD}")
    def lds_signal(off):
        a(f"v_mov_b32 {t1}, 1")
        a("s_waitcnt lgkmcnt(0)")
        a("s_mov_b64 exec, 1")
        a(f"ds_add_u32 {vcn}, {t1} offset:{off}")
        a("s_mov_b64 exec, -1")
    def lds_wait(off, n):
        L = a.newlabel('LW')
        a.label(L)
        a(f"ds_read_b32 {t1}, {vcn} offset:{off}")
        a("s_waitcnt lgkmcnt(0)")
        a(f"v_readfirstlane_b32 {sT0}, {t1}")
        a(f"s_cmp_ge_u32 {sT0}, {n}")
        a(f"s_cbranch_scc1 {L}d")
        a("s_sleep 1")
        a(f"s_branch {L}")
        a.label(L + 'd')
    vAT = V(29); vFG = V(28)
    PB = V(176, 12); PU = V(152, 20)
    def pq_loads():
        a(f"s_lshl3_add_u32 {sT0}, {sR6}, {sCG}")
        a(f"s_mul_i32 {sT0}, {sT0}, 10240"); a(f"s_add_u32 {sT0}, {sT0}, {PQ}")
        a(f"s_lshl_b32 {sT1}, {sRG}, 11"); a(f"s_add_u32 {sT1}, {sT1}, {sT0}")
        for h in range(2): a(f"buffer_load_dwordx4 {PB[4*h:4*h+4]}, {vo}, {rWS}, {sT1} offen offset:{h*1024} {LD}")
        a(f"s_lshr_b32 {sT1}, {sRG}, 1"); a(f"s_lshl_b32 {sT1}, {sT1}, 10"); a(f"s_add_u32 {sT0}, {sT0}, {sT1}")
        a(f"s_and_b32 {sT1}, {sRG}, 1"); a(f"s_lshl3_add_u32 {sT0}, {sT1}, {sT0}"); a(f"s_add_u32 {sT0}, {sT0}, 8192")
        a(f"buffer_load_dwordx2 {PB[8:10]}, {vo}, {rWS}, {sT0} offen {LD}")
    sQF = S(83)
    a(f"v_readfirstlane_b32 {sQF}, {vFQ}")
    a(f"s_cmp_eq_u32 {sHI}, 1"); a(f"s_cselect_b32 {sQF}, 0, {sQF}")
    a(f"s_cmp_eq_u32 {sQF}, 0"); a("s_cbranch_scc1 P2_NQ")
    pq_loads()
    a.label('P2_NQ')
    a(f"buffer_load_dword {vS2}, {vz}, {rDBG}, 0 offen offset:132 sc1")
    a(f"v_mov_b32 {vAT}, 1"); a(f"v_mov_b32 {t1}, 1")
    B3 = OPT['b23'] == 3
    if B3:
        a(f"s_cmp_lg_u32 {sPF}, 0"); a("s_cbranch_scc1 P2_D0")
        for l in b_reg(vm, 2, 'B'): a(l)
        a("s_waitcnt vmcnt(5) lgkmcnt(0)")
        a("s_branch P2_D1")
        a.label('P2_D0')
    a("s_waitcnt vmcnt(0) lgkmcnt(0)")
    if B3: a.label('P2_D1')
    a("s_mov_b64 exec, 1")
    a(f"ds_add_rtn_u32 {t1}, {vcn}, {t1} offset:16")
    a(f"s_cmp_eq_u32 {sPF}, 4"); a("s_cbranch_scc1 P2_A2")
    a(f"buffer_atomic_add {vAT}, {vz}, {rWS}, {sFLAG} offen sc0 sc1")
    a.label('P2_A2')
    a("s_mov_b64 exec, -1")
    def go_logic(n, st=True):
        lb = a.newlabel('GO')
        a(f"s_waitcnt vmcnt({n})")
        a(f"v_readfirstlane_b32 {sP[0]}, {vAT}")
        a(f"s_add_u32 {sP[1]}, {sFLAG}, {GOD}")
        a(f"s_cmp_lg_u32 {sP[0]}, {sNEED}")
        a(f"s_cbranch_scc1 {lb}")
        a("s_mov_b64 exec, 1")
        a(f"buffer_store_dword {vAT}, {vz}, {rWS}, {sP[1]} offen sc1")
        a("s_mov_b64 exec, -1")
        a.label(lb)
        if st: stamp(a, 4)
    a(f"s_cmp_eq_u32 {sHI}, 0")
    a("s_cbranch_scc1 P2_C")
    if B3:
        a(f"s_cmp_lg_u32 {sPF}, 0"); a("s_cbranch_scc1 P2_D2")
        for l in b_reg(vm, 3, 'B'): a(l)
        go_logic(5)
        a("s_branch P2_D3")
        a.label('P2_D2')
    go_logic(0)
    if B3: a.label('P2_D3')
    a("s_setprio 0")
    init_check(vS2, 132)
    if OPT['bt']:
        a("s_lshr_b32 s4, s2, 6"); a(f"s_lshl2_add_u32 s4, s4, {sRG}"); a(f"s_mul_i32 s4, s4, {65*128}")
        a(f"s_mul_i32 s5, {sCG}, {74*5120}"); a("s_add_u32 s4, s4, s5"); a(f"s_add_u32 s4, s4, {BP + 48*5120}")
        a(f"v_lshlrev_b32 {t2}, 7, {lane}")
        a(f"buffer_load_dword {t3}, {t2}, {rWS}, s4 offen sc1")
    a(f"s_cmp_lt_u32 {sRG}, 2"); a(f"s_cselect_b32 {rB[2]}, {WSZ}, 0")
    a(f"s_cmp_lt_u32 {sPF}, 6"); a("s_cbranch_scc1 P2_E2")
    for b in range(4):
        for l in b_reg(vm, b, 'B'): a(l)
    lds_wait(16, 8)
    for k in range(4):
        for l in b_row(vm, sBg, GRP[GL[k]], LR[k]): a(l)
    a.label('P2_E2')
    if OPT['b23'] in (1, 2):
        a(f"s_cmp_lg_u32 {sPF}, 0"); a("s_cbranch_scc1 P2_E4")
        for l in (b_reg(vm, 2, 'B') if OPT['b23'] == 1 else []) + b_reg(vm, 3, 'B'): a(l)
        a.label('P2_E4')
    lds_wait(16, 8)
    for k in range(3):
        for l in b_row(vm, sBg, k, CR[k], None, 54*5120): a(l)
    a(f"s_cmp_eq_u32 {sPF}, 4"); a("s_cbranch_scc1 P2_GK")
    NG = 10
    for variant in (0, 1):
        GLv = GL if variant == 0 else []
        if variant == 1: a.label('P2_GK')
        if OPT['at']:
            a(f"s_mul_i32 {sT1}, {sR6}, {74*4096}"); a(f"s_lshl2_add_u32 {sT2}, {sCG}, {sRG}"); a(f"s_mul_i32 {sT2}, {sT2}, {54*128}"); a(f"s_add_u32 {sT1}, {sT1}, {sT2}")
            a(f"v_lshlrev_b32 {t2}, 7, {lane}")
        if OPT['at'] == 3: vpoll(a, vz, sFHo, 0, t1, f"s_mov_b32 exec_hi, 0x3fffff\nbuffer_load_dword {t3}, {t2}, {rWS}, {sT1} offen sc1\ns_mov_b32 exec_hi, -1", OPT['tsl'])
        elif OPT['noh']: a("s_waitcnt vmcnt(0)")
        else: vpoll(a, vz, sFHo, 0, t1)
        lds_signal(20)
        a(f"s_setprio {OPT['gprio']}")
        vm = VmTrack()
        stamp(a, 5)
        if OPT['at'] == 1:
            a("s_mov_b32 exec_hi, 0x3fffff"); a(f"buffer_load_dword {t3}, {t2}, {rWS}, {sT1} offen sc1"); a("s_mov_b32 exec_hi, -1")
        if OPT['stamp'] == 4: a("s_memtime s[92:93]")
        for s in range(4):
            for l in a_loads(s, ('A', s)): a(l)
            if OPT['at'] == 2 and s == 0:
                a("s_mov_b32 exec_hi, 0x3fffff"); a(f"buffer_load_dword {t3}, {t2}, {rWS}, {sT1} offen sc1"); a("s_mov_b32 exec_hi, -1"); vm.issue('T')
        for s in range(NG - 1):
            n = vm.wait_for(lambda t: t in (('A', s), ('B', s)))
            a(f"s_waitcnt vmcnt({n})" + (f" lgkmcnt({5*sum(1 for x in (s+1, s+2) if x in GLv)})" if s in GLv else ""))
            if s == 0: stamp(a, 6)
            if OPT['stamp'] == 4:
                a("s_waitcnt lgkmcnt(0)")
                a(f"v_writelane_b32 v255, s92, {40 + s}")
                a("s_memtime s[92:93]")
            side = []
            if OPT['fair'] and s in eval(OPT['fg']): a(f"s_setprio {eval(OPT['fg'])[s]}")
            if 1 <= s and s + 3 < NG:
                rr = rB if GRP[s + 3] == 13 else None
                side = a_loads(s + 3, ('A', s + 3), None, rr) + (b_fromlds(s + 3, LR[GLv.index(s + 3)]) if s + 3 in GLv else b_reg(vm, s + 3, ('B', s + 3), rr, GRP[s + 3]))
            mm(s % 4, range(4) if s == 0 else [], side)
        if variant == 0: a("s_branch P2_GL")
    a.label('P2_GL')
    a("s_waitcnt vmcnt(0) lgkmcnt(0)")
    if OPT['stamp'] == 4:
        a(f"v_writelane_b32 v255, s92, {49}"); a("s_memtime s[92:93]"); a("s_waitcnt lgkmcnt(0)"); a(f"v_writelane_b32 v255, s92, {50}")
    for tt in range(4):
        for j in range(5):
            d = ACC[tt][j]
            a(f"v_mfma_f32_16x16x32_bf16 {d}, {BR[1][j]}, {AR[1][tt]}, {d}")
            if tt >= 2: a("ds_write_b128 %s, %s offset:%d" % (lrow(tt, j)[0], ACC[tt-2][j], lrow(tt, j)[1]))
    for tt in (2, 3):
        for j in range(5): a("ds_write_b128 %s, %s offset:%d" % (lrow(tt+2, j)[0], ACC[tt][j], lrow(tt+2, j)[1]))
    lds_signal(4)
    stamp(a, 10)
    a("s_branch P2_FIN")
    a.label('P2_C')
    P = V(72, 20)
    a("s_setprio 3")
    a(f"s_cmp_lg_u32 {sQF}, 0"); a("s_cbranch_scc1 P2_C1")
    go_logic(0)
    a(f"s_mov_b32 {sNEED}, -1")
    vpoll(a, vz, sFHo, 4, t1)
    pq_loads()
    a("s_waitcnt vmcnt(0)")
    a.label('P2_C1')
    a(f"buffer_load_dword {vFG}, {vz}, {rWS}, {sFHo} offen offset:12 sc1")
    GV = [V(22), V(252), V(10), V(8)]
    GLd = [t3, V(188), V(189), V(190)]
    srd(a, rOUT, pOUT, 2048 * 1280)
    a(f"v_lshl_add_u32 {kw}, {vr}, 2, {vqd}")
    a(f"v_lshlrev_b32 {kw}, 6, {kw}")
    a(f"v_lshl_add_u32 {kw}, {vc}, 3, {kw}")
    a(f"s_mul_i32 {sT0}, {sRG}, 3088"); a(f"s_add_u32 {sT0}, {sT0}, {KVB}")
    a(f"v_add_u32 {kw}, {sT0}, {kw}")
    a(f"v_mul_u32_u24 {t4}, 3088, {vqd}")
    a(f"v_lshl_add_u32 {t4}, {vr}, 6, {t4}")
    a(f"v_add_u32 {t4}, {KVB}, {t4}")
    a(f"v_mov_b32 {ka}, {ZERO + 8}")
    a(f"v_cmp_eq_u32 vcc, {vc}, {vqd}")
    a(f"v_cndmask_b32 {ka}, {ka}, {t4}, vcc")
    VT = [V(16), V(17), V(18), V(19)]
    for i in range(4):
        a(f"s_add_u32 {sT0}, {sRG}, {i}"); a(f"s_and_b32 {sT0}, {sT0}, 3"); a(f"s_lshl_b32 {sT0}, {sT0}, 10")
        a(f"v_add_u32 {VT[i]}, {sT0}, {vo}")
    for i in range(10):
        a(f"v_lshlrev_b32 {PU[2*i]}, 16, {PB[i]}")
        a(f"v_and_b32 {PU[2*i+1]}, 0xffff0000, {PB[i]}")
    gl = (f"s_waitcnt vmcnt(1)\nv_readfirstlane_b32 {sP[0]}, {vAT}\ns_add_u32 {sP[1]}, {sFLAG}, {GOD}\ns_cmp_lg_u32 {sP[0]}, {sNEED}\ns_cbranch_scc1 GOC\n"
          f"s_mov_b64 exec, 1\nbuffer_store_dword {vAT}, {vz}, {rWS}, {sP[1]} offen sc1\ns_mov_b64 exec, -1\nGOC:")
    softmax_unit(a, PU, V(92, 40), V(132, 4), V(136, 4), P, ["s_nop 0"] * 19 + [gl])
    a("s_waitcnt vmcnt(0)")
    a(f"v_cmp_ne_u32 vcc, 0, {vFG}"); a("s_nop 0"); a("s_cbranch_vccnz P2_GOK")
    vpoll(a, vz, sFHo, 12, t1)
    a.label('P2_GOK')
    a(f"v_lshlrev_b32 {t0}, 2, {vl15}")
    a(f"s_lshl2_add_u32 {sT0}, {sR6}, {sRG}")
    a(f"s_lshl_b32 {sT0}, {sT0}, 6"); a(f"s_add_u32 {sT0}, {sT0}, {GOFF}")
    a(f"buffer_load_dword {t3}, {t0}, {rWS}, {sT0} offen {LD}")
    stamp(a, 5)
    init_check(vS2, 132)
    lds_wait(16, 8)
    a(f"s_lshl_b32 {sT2}, {sCG}, 7"); a(f"s_add_u32 {sT2}, {sT2}, {FK + GOD}")
    a(f"s_lshl_b32 {sT3}, {sCG}, 2"); a(f"s_add_u32 {sT3}, {sT3}, {sRG}")
    a(f"s_mul_i32 {sT3}, {sT3}, 6144"); a(f"s_add_u32 {sT3}, {sT3}, {KVACC}")
    sNB = S(81)
    def cb(i): return b_reg(vm, i, 'B') if i < 4 else b_row(vm, sBo, i - 4, CR[i - 4], None, CB0)
    if OPT['b23']: a(f"s_cmp_eq_u32 {sPF}, 0"); a("s_cbranch_scc1 P2_K2")
    a(f"s_cmp_lt_u32 {sPF}, 6"); a("s_cbranch_scc1 P2_K4")
    for i in range(4):
        if OPT['b23'] and i == (2 if OPT['b23'] == 1 else 3): a.label('P2_K2')
        a(f"s_mov_b32 {sNB}, {i}")
        a(f"buffer_load_dword {t1}, {vz}, {rWS}, {sT2} offen sc1")
        a("s_waitcnt vmcnt(0)")
        a(f"v_cmp_ne_u32 vcc, 0, {t1}"); a("s_nop 0"); a("s_cbranch_vccnz P2_KGO")
        for l in cb(i): a(l)
    a.label('P2_K4')
    a(f"s_mov_b32 {sNB}, 4")
    if not OPT['nok']: vpoll(a, vz, sT2, 0, t1)
    else: a("s_waitcnt vmcnt(0)")
    a.label('P2_KGO')
    stamp(a, 6)
    KL = [V(92 + 4 * i, 4) for i in range(6)]
    a(f"s_mov_b32 {sTO}, 0x80000")
    a("s_mov_b32 s82, 0x41000000")
    a.label('KVRETRY')
    for i in range(6):
        if i < 4: a(f"buffer_load_dwordx4 {KL[i]}, {vo}, {rWS}, {sT3} offen offset:{i*1024} {LD}")
        else: a(f"buffer_load_dwordx4 {KL[i]}, {vo4}, {rWS}, {sT3} offen offset:{(i-4)*1024} {LD}")
    for i in range(6):
        a(f"s_waitcnt vmcnt({5-i})")
        a(f"v_cvt_pk_bf16_f32 {KL[i][0]}, {KL[i][0]}, {KL[i][1]}")
        a(f"v_cvt_pk_bf16_f32 {KL[i][1]}, {KL[i][2]}, {KL[i][3]}")
        a(f"ds_write_b64 {kw}, {KL[i][0:2]} offset:{(i % 3)*1024 + (i // 3)*32}")
    a(f"v_min3_f32 {t1}, {KL[0][3]}, {KL[1][3]}, {KL[3][3]}")
    a(f"v_min_f32 {t4}, {KL[2][3]}, {KL[5][3]}")
    a(f"v_min_f32 {t1}, {t1}, {KL[4][3]}")
    a(f"v_cmp_neq_f32 vcc, s82, {t4}")
    a(f"v_cmp_neq_f32 {sP}, s82, {t1}")
    a("s_and_b32 s4, vcc_lo, 0x00880088"); a("s_and_b32 s5, vcc_hi, 0x00880088"); a("s_or_b32 s4, s4, s5")
    a(f"s_or_b32 s5, {sP[0]}, {sP[1]}"); a("s_and_b32 s5, s5, 0x88888888"); a("s_or_b32 s4, s4, s5")
    a("s_branch KVOK" if OPT['nok'] else "s_cbranch_scc0 KVOK")
    a("s_waitcnt lgkmcnt(0)")
    a("s_sleep 4")
    a(f"s_sub_u32 {sTO}, {sTO}, 1")
    a("s_cbranch_scc0 KVRETRY")
    a.label('KVOK')
    lds_signal(0)
    lds_wait(0, 4)
    stamp(a, 16)
    AFl = [V(92 + 4 * i, 4) for i in range(15)]
    D = [V(152 + 4 * t, 4) for t in range(6)]
    O = V(176, 12)
    order = [5, 0, 1, 2, 3, 4]
    fr = [(t, s) for s in range(5) for t in order]
    def rdl(k):
        t, s_ = fr[k]
        return [f"ds_read_b64_tr_b16 {AFl[k % 15][2*r_:2*r_+2]}, {ka} offset:{s_*512 + r_*256 + (t*8 if t < 3 else t*8 + 8)}" for r_ in range(2)]
    AH = 7
    for k in range(AH):
        for l in rdl(k): a(l)
    def fin(t):
        for h in range(4): a(f"v_mul_f32 {D[t][h]}, {D[t][h]}, {t2}")
        a(f"v_cvt_pk_bf16_f32 {O[2*t]}, {D[t][0]}, {D[t][1]}")
        a(f"v_cvt_pk_bf16_f32 {O[2*t+1]}, {D[t][2]}, {D[t][3]}")
    for k in range(30):
        t, s_ = fr[k]
        a(f"s_waitcnt lgkmcnt({2 * min(AH - 1, 29 - k)})")
        a(f"v_mfma_f32_16x16x32_bf16 {D[t]}, {AFl[k % 15]}, {P[4*s_:4*s_+4]}, {'0' if s_ == 0 else D[t]}")
        if k + AH < 30:
            for l in rdl(k + AH): a(l)
        if OPT['sent'] and k == OPT['oh1']:
            a(f"s_sub_u32 {sFLAG}, {sFHo}, {GOD - 8}"); a(f"s_mov_b32 {sNEED}, 31"); a(f"v_mov_b32 {vAT}, 1")
            a("s_mov_b64 exec, 1"); a(f"buffer_atomic_add {vAT}, {vz}, {rWS}, {sFLAG} offen sc0 sc1"); a("s_mov_b64 exec, -1")
    stamp(a, 19)
    a(f"v_add_f32 {t2}, 0x358637bd, {D[5][0]}")
    a(f"v_rcp_f32 {t2}, {t2}")
    a(f"v_mul_f32 {t2}, {t2}, {t3}")
    fin(0); fin(1)
    a(f"buffer_store_dwordx4 {O[0:4]}, {vo}, {rWS}, {sO1} offen {ST}")
    fin(2); fin(3)
    a(f"buffer_store_dwordx4 {O[4:8]}, {vo4}, {rWS}, {sO1} offen {ST}")
    fin(4)
    a(f"v_mov_b32 {O[10]}, {O[8]}"); a(f"v_mov_b32 {O[11]}, {O[9]}")
    a(f"v_permlane32_swap_b32 {O[8]}, {O[10]}"); a(f"v_permlane32_swap_b32 {O[9]}, {O[11]}")
    a("s_mov_b32 exec_hi, 0")
    a(f"buffer_store_dwordx4 {O[8:12]}, {vo}, {rWS}, {sO2} offen {ST}")
    a("s_mov_b32 exec_hi, -1")
    stamp(a, 17)
    if not OPT['sent']:
        a(f"s_sub_u32 {sT2}, {sFHo}, {GOD - 8}")
        arrive(a, sT2, 31, t0, t1)
    else: go_logic(3, False)
    stamp(a, 7)
    for i in range(4):
        lb = a.newlabel('CB')
        a(f"s_cmp_gt_u32 {sNB}, {i}"); a(f"s_cbranch_scc1 {lb}")
        for l in cb(i): a(l)
        a.label(lb)
    XB = [V(28), V(13), V(30)]; XW = V(31); GB = V(12)
    for q in range(1, 4):
        a(f"s_sub_u32 {sT0}, {sRG}, {q}"); a(f"s_and_b32 {sT0}, {sT0}, 3"); a(f"s_mul_i32 {sT0}, {sT0}, 5120")
        a(f"s_add_u32 {sT0}, {sT0}, {CR[q-1]*20480}")
        a(f"v_add_u32 {XB[q-1]}, {sT0}, {vo}")
    a(f"v_add_u32 {XW}, {6*20480}, {vbl}")
    def crow(k, j): return (vbl, CR[k]*20480 + j*1024) if k < 2 else (XW, j*1024)
    a(f"s_add_u32 {sT0}, {sRG}, 2"); a(f"s_mul_i32 {sT0}, {sT0}, 20480"); a(f"v_add_u32 {GB}, {sT0}, {vo}")
    a(f"v_mul_u32_u24 {t0}, 1280, {vl15}")
    a(f"v_lshl_add_u32 {t0}, {vqd}, 3, {t0}")
    a(f"s_lshl_b32 {sT2}, {sR6}, 2"); a(f"s_add_u32 {sT2}, {sT2}, {sRG}"); a(f"s_mul_i32 {sT2}, {sT2}, {16*1280}")
    a(f"s_mul_i32 {sT3}, {sCG}, 160"); a(f"s_add_u32 {sT2}, {sT2}, {sT3}")
    a(f"v_add_f32 {V(22)}, 1.0, {t3}"); a(f"v_rcp_f32 {V(22)}, {V(22)}")
    lds_wait(20, 4)
    a(f"s_setprio {OPT['cprio']}")
    if OPT['stamp'] == 4: a("s_memtime s[92:93]")
    vm = VmTrack()
    for s in range(4):
        for l in a_loads(s, ('A', s), VT): a(l)
    GT = [BR[1], BR[2], BR[3], AR[1] + [AR[2][0]]]
    OC = OPT['oc']
    for s in range(9):
        n = vm.wait_for(lambda t: t in (('A', s), ('B', s)) or (s == OC and t == 'of'))
        if s == 8:
            lds_wait(4, 4)
            stamp(a, 8)
            for w in range(2):
                for j in range(5): a(f"ds_read_b128 {GT[w][j]}, {GB} offset:{w*5120 + j*1024}")
        a(f"s_waitcnt vmcnt({n})" + (" lgkmcnt(0)" if s == (6 if OPT['gf'] & 2 else 4) else ""))
        if OPT['stamp'] == 4:
            a("s_waitcnt lgkmcnt(0)")
            a(f"v_writelane_b32 v255, s92, {40 + s}")
            a("s_memtime s[92:93]")
        if s == OC:
            stamp(a, 18)
            a(f"v_cmp_ne_u32 vcc, 0, {t2}"); a("s_nop 0"); a("s_cbranch_vccnz P2_OOK")
            vpoll(a, vz, sFHo, 8, t2)
            a.label('P2_OOK')
            a(f"s_mov_b32 {sTO}, 0x40000")
            stamp(a, 9)
        if OPT['sent'] and s >= 4:
            a.label(f'VER{s}')
            regs = [AR[s % 4][tt][k] for tt in range(4) for k in range(4)]
            a(f"v_max3_u32 {t4}, {regs[0]}, {regs[1]}, {regs[2]}")
            a(f"v_max3_u32 {t1}, {regs[3]}, {regs[4]}, {regs[5]}")
            for k in (6, 10):
                a(f"v_max3_u32 {t4}, {t4}, {regs[k]}, {regs[k+1]}"); a(f"v_max3_u32 {t1}, {t1}, {regs[k+2]}, {regs[k+3]}")
            a(f"v_max3_u32 {t4}, {t4}, {regs[14]}, {regs[15]}")
            a(f"v_max_u32 {t4}, {t4}, {t1}")
            a(f"v_cmp_eq_u32 vcc, -1, {t4}")
            a("s_nop 0")
            a(f"s_cbranch_vccnz RET{s}")
            a.label(f'VOK{s}')
        side = []
        if OPT['fair'] and s in eval(OPT['fc']): a(f"s_setprio {eval(OPT['fc'])[s]}")
        if s == OC - 1:
            side.append(f"buffer_load_dword {t2}, {vz}, {rWS}, {sFHo} offen offset:8 sc1"); vm.issue('of')
        if s == OC:
            for q in range(4, s + 4): side += a_loads(q, ('A', q), VT)
        elif s > OC and s + 3 < 9: side += a_loads(s + 3, ('A', s + 3), VT)
        if 1 <= s <= 5:
            g_ = CG_[s + 3]
            if g_ < 3: side += ["ds_read_b128 %s, %s offset:%d" % ((BR[(s+3)%4][j],) + crow(g_, j)) for j in range(5)]
            else: side += b_reg(vm, s + 3, ('B', s + 3), None, g_, CB0)
        if s < 8: mm(s % 4, range(4) if s == 0 else [], side, 1 if len([x for x in side if not x.startswith('s_')]) > 10 else 2)
        else:
            for tt in (1, 2, 3, 0):
                for j in range(5):
                    d = ACC[tt][j]
                    a(f"v_mfma_f32_16x16x32_bf16 {d}, {BR[0][j]}, {AR[0][tt]}, {d}")
                    if tt in (1, 2): a(f"ds_read_b128 {GT[tt+1][j]}, {GB} offset:{(tt+1)*5120 + j*1024}")
                    pt = {1: None, 2: None, 3: 1, 0: 2}[tt]
                    if pt: a("ds_write_b128 %s, %s offset:%d" % (crow(pt-1, j)[0], ACC[pt][j], crow(pt-1, j)[1]))
            for j in range(5): a("ds_write_b128 %s, %s offset:%d" % (crow(2, j)[0], ACC[3][j], crow(2, j)[1]))
    if OPT['stamp'] == 4:
        a("s_waitcnt lgkmcnt(0)"); a(f"v_writelane_b32 v255, s92, {49}"); a("s_memtime s[92:93]"); a("s_waitcnt lgkmcnt(0)"); a(f"v_writelane_b32 v255, s92, {50}")
    a("s_waitcnt lgkmcnt(15)")
    for j in range(5):
        for h in range(2):
            sl = slice(2*h, 2*h+2)
            a(f"v_pk_add_f32 {GT[0][j][sl]}, {GT[0][j][sl]}, {GT[1][j][sl]}")
            a(f"v_pk_add_f32 {GT[2][j][sl]}, {GT[2][j][sl]}, {GT[3][j][sl]}")
    stamp(a, 10)
    lds_signal(8)
    for j in range(5):
        for h in range(2):
            sl = slice(2*h, 2*h+2)
            a(f"v_pk_add_f32 {GT[0][j][sl]}, {GT[0][j][sl]}, {GT[2][j][sl]}")
            a(f"v_pk_add_f32 {ACC[0][j][sl]}, {GT[0][j][sl]}, {ACC[0][j][sl]}")
    lds_wait(8, 4)
    RD = [ACC[1], ACC[2], ACC[3]]
    for q in range(3):
        for j in range(5): a(f"ds_read_b128 {RD[q][j]}, {XB[q]} offset:{j*1024}")
    for q in range(3):
        a(f"s_waitcnt lgkmcnt({10 - 5*q})")
        for j in range(5):
            for h in range(2): a(f"v_pk_add_f32 {ACC[0][j][2*h:2*h+2]}, {ACC[0][j][2*h:2*h+2]}, {RD[q][j][2*h:2*h+2]}")
            if q == 2:
                for h in range(2): a(f"v_pk_mul_f32 {ACC[0][j][2*h:2*h+2]}, {ACC[0][j][2*h:2*h+2]}, {V(22, 2)} op_sel_hi:[1,0]")
                a(f"v_cvt_pk_bf16_f32 {ACC[1][j][0]}, {ACC[0][j][0]}, {ACC[0][j][1]}")
                a(f"v_cvt_pk_bf16_f32 {ACC[1][j][1]}, {ACC[0][j][2]}, {ACC[0][j][3]}")
                a(f"buffer_store_dwordx2 {ACC[1][j][0:2]}, {t0}, {rOUT}, {sT2} offen offset:{j*32} {OPT['ost']}")
    a.label('P2_FIN')
    if OPT['stamp'] or OPT['pad']:
        a("s_waitcnt vmcnt(0)")
        stamp(a, 11)
    stamp_flush(a)
    if OPT['pad']:
        if OPT['padwg'] < 999: a(f"s_cmp_lg_u32 s2, {OPT['padwg']}"); a(f"s_cbranch_scc1 {END}")
        a.label('PADL')
        a("s_sleep 1"); a("s_memrealtime s[12:13]"); a("s_waitcnt lgkmcnt(0)"); a("s_sub_u32 s12, s12, s10")
        a(f"s_cmp_lt_u32 s12, {OPT['pad']*100}"); a("s_cbranch_scc1 PADL")
    a.label(END)
    a.label('K_LAST')
    a("s_endpgm")
    if OPT['sent']:
        for s in range(4, 9):
            a.label(f'RET{s}')
            a(f"s_sub_u32 {sTO}, {sTO}, 1")
            a(f"s_cselect_b32 {sTO}, 0, {sTO}")
            a(f"s_cbranch_scc1 VOK{s}")
            a(f"s_sleep {OPT['rsl']}")
            for l in a_loads(s, 'r', VT): a(l)
            a("s_waitcnt vmcnt(0)")
            a(f"s_branch VER{s}")

def build():
    hdr = open(f'cdna_kernels/{NAME}.s.ref').read().split('; Override launch')[0]
    name = NAME + '_kernel'
    out = hdr + "; @launch grid=(256,1,1) block=(512,1,1) lds=163840\n"
    out += '.amdgcn_target "amdgcn-amd-amdhsa--gfx950"\n.text\n'
    a = Asm(); kernel(a)
    out += f".globl {name}\n.p2align 8\n.type {name},@function\n{name}:\n" + a.finalize()
    print('instrs', len(a.ins), 'nops', a.nnop, file=sys.stderr)
    out += f""".section .rodata,"a"
.p2align 6
.amdhsa_kernel {name}
  .amdhsa_next_free_vgpr 256
  .amdhsa_next_free_sgpr 102
  .amdhsa_accum_offset 256
  .amdhsa_group_segment_fixed_size 0
  .amdhsa_kernarg_size 96
  .amdhsa_user_sgpr_count 2
  .amdhsa_user_sgpr_kernarg_segment_ptr 1
  .amdhsa_system_sgpr_workgroup_id_x 1
.end_amdhsa_kernel
"""
    return out

if __name__ == '__main__':
    outp = sys.argv[1]
    for o in sys.argv[2:]:
        k, v = o.split('=', 1); OPT[k] = int(v) if v.isdigit() else v
    open(outp, 'w').write(build())
```

```python
import sys
sys.path.insert(0, 'gen')
from asmlib import *
NAME = 'gated_mix__linear_kernel_hedgehog__swiglu_ffn__prompt'
AP = 0; BP = 0xA00000; PQ = 0xD00000; KVACC = 0x1200000; FH = 0x1230000; FK = 0x1232000; FP = 0x1234000; ZEND = 0x1235000
GOFF = 0x1240000; DUMMY = 0x1250000; STAMP = 0x1300000; WSZ = 0x1600000
LOG2E = 0x3fb8aa3b; NLOG2E = 0xbfb8aa3b
OPT = dict(stamp=0, touch=2, bs="{'p0':(0,2),'p1':(2,5),3:(5,8),7:(8,10)}", pp=0, spnt='', rot2=0, slp=1, early=1, btouch=0, atf='sc1', cpf=12, nobar=18, chk=12, sent=0, fin=0, nob=0, noc=0, nok=0, noh=0, t2si=2, swp=1, gf=0, b23=1, tlb=0, padwg=999, padev=0, fair=1, fg='{0:2,5:1,7:3}', fc='{0:1,4:0}', npk=0, eprio=2, gprio=3, oc=2, oord=1, noa=0, pj=18, t2s=0, x0e=1, sb1=1, sb2=1, t2pos=1, pad=0, bt=0, tsl=4, rsl=8, cprio2=0, at=0, kh=0, cprio=3, oh1=19, gdel=0, fill=0, spst='sc1', t2a='[0]', t2b='[2]', t2f='{1:(4,6),2:(5,3),4:(6,4),6:(7,5),7:(8,6),8:(9,3)}', t2q='{}', xfl='', wfl='', il=4, qbar=0, prio=0, dbgt=0, ost='nt')
ST = 'sc1'; LD = 'sc1'

pX, pQKV, pPHI, pWO, pBX, pWG, pWU, pWD = [S(16 + 2 * i, 2) for i in range(8)]
pGW, pOUT, pDBG, pWS = [S(32 + 2 * i, 2) for i in range(4)]
sWV = S(3)
rX, rW, rWS, rA, rB = S(40, 4), S(44, 4), S(48, 4), S(52, 4), S(56, 4)
sC = S(60, 2)
rDBG = S(84, 4)
sFLAG = S(88); sTO = S(89); sNEED = S(7)
GOD = 0x1000
sP = S(14, 2)
XSLOT = 32768; WB = 98304
GWB = 159744; CNT = 161024; ZERO = 161280; KVB = 147456

def srd(a, d, base, size):
    a(f"s_mov_b32 {d[0]}, {base[0]}")
    a(f"s_and_b32 {d[1]}, {base[1]}, 0xffff")
    a(f"s_mov_b32 {d[2]}, {size}")
    a(f"s_mov_b32 {d[3]}, 0x20000")

def sstamp(a, j):
    if OPT['stamp'] != 3: return
    if j > 0: a(f"v_writelane_b32 v255, s92, {40 + j - 1}")
    a("s_memtime s[92:93]")
def stamp(a, idx):
    if OPT['pad'] and OPT['padev'] == idx:
        a("s_memrealtime s[10:11]"); a("s_waitcnt lgkmcnt(0)")
    if not OPT['stamp']: return
    if OPT['stamp'] >= 2 and idx not in (2, 3, 5, 11): return
    a("s_memrealtime s[90:91]")
    a("s_memtime s[92:93]")
    a("s_waitcnt lgkmcnt(0)")
    a(f"v_writelane_b32 v255, s90, {2*idx}")
    a(f"v_writelane_b32 v255, s92, {2*idx+1}")
def stamp_flush(a):
    if not OPT['stamp']: return
    if OPT['dbgt']:
        a("s_not_b32 s90, s10"); a("v_writelane_b32 v255, s90, 0")
        a("v_lshlrev_b32 v254, 1, v0"); a("v_add_u32 v254, 8, v254")
        a("s_mov_b32 exec_lo, 0x05555555"); a("s_mov_b32 exec_hi, 0")
        a(f"buffer_atomic_umax v255, v254, {rDBG}, 0 offen sc1")
        a("s_mov_b64 exec, -1")
        return
    a("v_writelane_b32 v255, s10, 0"); a("v_writelane_b32 v255, s12, 1")
    a("s_lshl_b32 s90, s2, 3")
    a(f"s_add_u32 s90, s90, {sWV}")
    a("s_lshl_b32 s90, s90, 8")
    a(f"s_add_u32 s90, s90, {STAMP + 0x80000}")
    a("v_lshlrev_b32 v254, 2, v0")
    a(f"buffer_store_dword v255, v254, {rWS}, s90 offen")

def vpoll(a, vzero, soff, off, tmp, extra=None, slp=None):
    L, D = a.newlabel('POLL'), a.newlabel('POLLD')
    a(f"s_mov_b32 {sTO}, 0x80000")
    a.label(L)
    if extra: a(extra)
    a(f"buffer_load_dword {tmp}, {vzero}, {rWS}, {soff} offen offset:{off} sc1")
    a("s_waitcnt vmcnt(0)")
    a(f"v_cmp_eq_u32 vcc, 0, {tmp}")
    a("s_nop 0")
    a(f"s_cbranch_vccz {D}")
    a(f"s_sleep {slp or OPT['slp']}")
    a(f"s_sub_u32 {sTO}, {sTO}, 1")
    a(f"s_cbranch_scc0 {L}")
    a.label(D)
def arrive(a, soff, need, z, one, nyounger=0):
    D = a.newlabel('ARR')
    a(f"v_mov_b32 {z}, 0"); a(f"v_mov_b32 {one}, 1")
    a(f"s_waitcnt vmcnt({nyounger})")
    a("s_mov_b64 exec, 1")
    a(f"buffer_atomic_add {one}, {z}, {rWS}, {soff} offen sc0 sc1")
    a("s_waitcnt vmcnt(0)")
    a(f"v_readfirstlane_b32 {sP[0]}, {one}")
    a(f"s_add_u32 {sP[1]}, {soff}, {GOD}")
    a(f"s_cmp_lg_u32 {sP[0]}, {need}")
    a(f"s_cbranch_scc1 {D}")
    a(f"buffer_store_dword {one}, {z}, {rWS}, {sP[1]} offen sc1")
    a.label(D)
    a("s_mov_b64 exec, -1")
def init_poll(a, reg, off):
    L, D = a.newlabel('POLL'), a.newlabel('POLLD')
    a(f"s_mov_b32 {sTO}, 0x80000")
    a.label(L)
    a(f"v_mov_b32 {reg}, 0")
    a(f"buffer_load_dword {reg}, {reg}, {rDBG}, 0 offen offset:{off} sc1")
    a("s_waitcnt vmcnt(0)")
    a(f"v_readfirstlane_b32 {sP[0]}, {reg}")
    a(f"s_cmp_lg_u32 {sP[0]}, 0")
    a(f"s_cbranch_scc1 {D}")
    a("s_sleep 2")
    a(f"s_sub_u32 {sTO}, {sTO}, 1")
    a(f"s_cbranch_scc0 {L}")
    a.label(D)

def softmax_unit(a, P, E, M, T, O, side=None):
    side = list(side or [])
    a(f"v_max3_f32 {M[0]}, {P[0]}, {P[1]}, {P[2]}")
    a(f"v_min3_f32 {M[2]}, {P[0]}, {P[1]}, {P[2]}")
    for i in range(3, 19, 2):
        a(f"v_max3_f32 {M[0]}, {M[0]}, {P[i]}, {P[i+1]}")
        a(f"v_min3_f32 {M[2]}, {M[2]}, {P[i]}, {P[i+1]}")
    a(f"v_max_f32 {M[0]}, {M[0]}, {P[19]}")
    a(f"v_min_f32 {M[2]}, {M[2]}, {P[19]}")
    a(f"v_mul_f32 {M[0]}, {sC[0]}, {M[0]}")
    a(f"v_mul_f32 {M[2]}, {sC[0]}, {M[2]}")
    for i in range(0, 20, 2):
        a(f"v_pk_fma_f32 {E[i:i+2]}, {P[i:i+2]}, {sC}, {M[0:2]} op_sel_hi:[1,1,0] neg_lo:[0,0,1] neg_hi:[0,0,1]")
        a(f"v_pk_fma_f32 {E[20+i:22+i]}, {P[i:i+2]}, {sC}, {M[2:4]} op_sel_hi:[1,1,0] neg_lo:[1,0,0] neg_hi:[1,0,0]")
    for i in range(40):
        a(f"v_exp_f32 {E[i]}, {E[i]}")
        if side and i % 2 == 1:
            x = side.pop(0)
            if x != "s_nop 0": a(x)
    for l in side: a(l)
    a(f"v_pk_add_f32 {T[0:2]}, {E[0:2]}, {E[2:4]}")
    a(f"v_pk_add_f32 {T[2:4]}, {E[20:22]}, {E[22:24]}")
    for i in range(4, 20, 2):
        a(f"v_pk_add_f32 {T[0:2]}, {T[0:2]}, {E[i:i+2]}")
        a(f"v_pk_add_f32 {T[2:4]}, {T[2:4]}, {E[20+i:22+i]}")
    a(f"v_add_f32 {T[0]}, {T[0]}, {T[1]}")
    a(f"v_add_f32 {T[2]}, {T[2]}, {T[3]}")
    a(f"v_rcp_f32 {T[0]}, {T[0]}")
    a(f"v_rcp_f32 {T[2]}, {T[2]}")
    for i in range(0, 20, 2):
        a(f"v_pk_mul_f32 {E[i:i+2]}, {E[i:i+2]}, {T[0:2]} op_sel_hi:[1,0]")
        a(f"v_pk_mul_f32 {E[20+i:22+i]}, {E[20+i:22+i]}, {T[2:4]} op_sel_hi:[1,0]")
    for i in range(20):
        a(f"v_cvt_pk_bf16_f32 {O[i]}, {E[2*i]}, {E[2*i+1]}")

def kernel(a):
    END = 'K_END'
    BS = eval(OPT['bs'])
    a("s_cmp_ge_u32 s2, 256")
    a(f"s_cbranch_scc1 {END}")
    if OPT['stamp']:
        a("s_memrealtime s[10:11]"); a("s_memtime s[12:13]"); a("v_mov_b32 v255, 0")
    if OPT['pad']: a("s_memrealtime s[10:11]")
    a("s_load_dwordx16 s[16:31], s[0:1], 0")
    a("s_load_dwordx8 s[32:39], s[0:1], 64")
    lane = V(0)
    tid, t0, t1, t2, t3, t4 = V(1), V(2), V(3), V(4), V(5), V(6)
    vqd, vr, vc, vl15 = V(7), V(8), V(9), V(10)
    vx = [V(11 + i) for i in range(4)]
    xa = [[V(15), V(16)], [V(17), V(18)]]
    tdum = V(19); ta = V(32, 2); tb = V(34, 2)
    R0 = 24
    sTY, sRB, sXK, sWK, sM, sT0, sT1, sT2, sT3, sRG, sHI, sID, sMW, sC8, sR4 = [S(62 + i) for i in range(15)]
    a(f"v_lshrrev_b32 {t0}, 6, v0")
    a(f"v_mov_b32 {tid}, v0")
    a(f"v_readfirstlane_b32 {sWV}, {t0}")
    a(f"v_and_b32 {lane}, 63, v0")
    a(f"s_bfe_u32 {sC8}, s2, 0x30003")
    a(f"s_lshr_b32 {sR4}, s2, 6")
    a(f"s_and_b32 {sRB}, s2, 1")
    a(f"s_lshl_b32 {sRB}, {sRB}, 2")
    a(f"s_add_u32 {sRB}, {sRB}, {sR4}")
    a(f"s_bfe_u32 {sT0}, s2, 0x20001")
    a(f"s_and_b32 {sRG}, {sWV}, 3")
    a(f"s_lshr_b32 {sHI}, {sWV}, 2")
    a(f"v_lshrrev_b32 {vqd}, 4, {lane}")
    a(f"v_bfe_u32 {vr}, {lane}, 2, 2")
    a(f"v_and_b32 {vc}, 3, {lane}")
    a(f"v_and_b32 {vl15}, 15, {lane}")
    a(f"v_lshrrev_b32 {t0}, 3, {lane}")
    a(f"v_mul_u32_u24 {t0}, 1280, {t0}")
    a(f"v_and_b32 {t1}, 7, {lane}")
    a(f"v_xor_b32 {t1}, {t1}, {vqd}")
    a(f"v_lshl_add_u32 {vx[0]}, {t1}, 4, {t0}")
    a(f"v_xor_b32 {t1}, 4, {t1}")
    a(f"v_lshl_add_u32 {vx[1]}, {t1}, 4, {t0}")
    a(f"v_add_u32 {vx[1]}, {8*1280-1024}, {vx[1]}")
    a(f"v_add_u32 {vx[2]}, {16*1280-2048}, {vx[0]}")
    a(f"v_add_u32 {vx[3]}, {16*1280-2048}, {vx[1]}")
    a(f"s_mul_i32 {sXK}, {sRB}, {256*1280}")
    a(f"s_mul_i32 {sT1}, {sWV}, {32*1280}")
    a(f"s_add_u32 {sXK}, {sXK}, {sT1}")
    a(f"s_lshl_b32 {sM}, {sWV}, 12")
    sXA, sXB = S(6), S(7)
    if OPT['swp']:
        a(f"s_add_u32 {sTY}, {sC8}, {sR4}"); a(f"s_and_b32 {sTY}, {sTY}, 1")
        a(f"s_lshl_b32 {sT1}, {sTY}, 7"); a(f"s_add_u32 {sXK}, {sXK}, {sT1}")
    a(f"v_lshlrev_b32 {t2}, 3, {tid}")
    a(f"v_min_u32 {t2}, {163840 - CNT - 8}, {t2}")
    a(f"v_add_u32 {t2}, {CNT}, {t2}")
    a(f"v_mov_b32 {ta[0]}, 0"); a(f"v_mov_b32 {ta[1]}, 0")
    a(f"ds_write_b64 {t2}, {ta}")
    a(f"s_mul_i32 {sID}, {sT0}, 9"); a(f"s_add_u32 {sID}, {sID}, 1"); a(f"s_lshr_b32 {sID}, {sID}, 1")
    a(f"s_add_u32 {sID}, {sID}, {sC8}"); a(f"s_sub_u32 {sID}, {sID}, 3")
    a(f"s_and_b32 {sT1}, {sT0}, 1"); a(f"s_add_u32 {sT1}, {sT1}, {sC8}")
    a(f"s_mov_b32 {sC[0]}, {LOG2E:#x}")
    a(f"s_mov_b32 {sC[1]}, {LOG2E:#x}")
    sU1, sU2, sBK = S(100), S(101), S(95)
    vt1, vt2 = V(22), V(23)
    T2 = OPT['touch'] >= 2; T3 = OPT['touch'] == 3
    rTT = S(96, 4)
    def t2_all(b0):
        return [f"s_mul_i32 s4, {sBK}, {b0}", f"s_add_u32 s4, s4, {sU2}",
                f"v_add_u32 v21, s4, {vt2}", f"s_mov_b64 exec, 0xff\nbuffer_load_dword {tdum}, v21, {rTT}, 0 offen\ns_mov_b64 exec, -1"]
    def t2_one(b, c8v):
        lb = a.newlabel('T2')
        return [f"s_cmp_lg_u32 {sC8}, {c8v}\ns_cbranch_scc1 {lb}\ns_mul_i32 s4, {sBK}, {b}\ns_add_u32 s4, s4, {sU1}\nv_add_u32 v21, s4, {vt1}\ns_mov_b32 exec_hi, 0\n"
                f"buffer_load_dword {tdum}, v21, {rTT}, 0 offen\ns_mov_b64 exec, -1\n{lb}:"]
    if T2:
        a(f"s_lshr_b32 s9, {sWV}, 1")
        a(f"s_mov_b32 {rTT[2]}, {2048*1280}"); a(f"s_movk_i32 {sBK}, 128")
        a("s_cmp_eq_u32 s9, 1")
        a(f"s_cselect_b32 {rTT[2]}, {640*3840}, {rTT[2]}"); a(f"s_cselect_b32 {sBK}, {64*3840}, {sBK}")
        a("s_cmp_ge_u32 s9, 2")
        a(f"s_cselect_b32 {rTT[2]}, {640*3456}, {rTT[2]}"); a(f"s_cselect_b32 {sBK}, {64*3456}, {sBK}")
        a(f"s_mov_b32 {rTT[3]}, 0x20000")
        a("s_cmp_eq_u32 s9, 0")
        a("s_movk_i32 s7, 128"); a("s_cselect_b32 s5, 1280, s7"); a("s_cselect_b32 s6, 640, s7"); a("s_cselect_b32 s7, 512, 0")
        a(f"v_mul_u32_u24 {vt1}, s5, {lane}")
        a(f"v_mul_u32_u24 {vt2}, s6, {lane}")
        a(f"v_and_b32 {t0}, 1, {lane}"); a(f"v_mul_u32_u24 {t0}, s7, {t0}"); a(f"v_sub_u32 {vt2}, {vt2}, {t0}")
        a(f"s_and_b32 s4, {sWV}, 1")
        a(f"s_lshl1_add_u32 {sU2}, s2, s4"); a(f"s_lshl_b32 {sU2}, {sU2}, 3"); a(f"s_mul_i32 {sU2}, {sU2}, s6")
        a(f"s_and_b32 {sU1}, s2, 7"); a(f"s_lshl2_add_u32 {sU1}, {sU1}, {sR4}")
        a(f"s_lshl1_add_u32 {sU1}, {sU1}, s4"); a(f"s_lshl_b32 {sU1}, {sU1}, 5"); a(f"s_mul_i32 {sU1}, {sU1}, s5")
        a(f"v_add_u32 {t4}, {sU2}, {vt2}")
        if eval(OPT['t2a'])[0]:
            a(f"s_mul_i32 s4, {sBK}, {eval(OPT['t2a'])[0]}"); a(f"v_add_u32 {t4}, s4, {t4}")
    a(f"s_mov_b32 {rX[2]}, {2048*1280}"); a(f"s_mov_b32 {rX[3]}, 0x20000")
    a(f"s_mov_b32 m0, {sM}")
    a("s_waitcnt lgkmcnt(0)")
    if T2:
        a("s_cmp_eq_u32 s9, 1"); a(f"s_cselect_b64 {rTT[0:2]}, {pQKV}, {pX}")
        a("s_cmp_eq_u32 s9, 2"); a(f"s_cselect_b64 {rTT[0:2]}, {pWG}, {rTT[0:2]}")
        a("s_cmp_eq_u32 s9, 3"); a(f"s_cselect_b64 {rTT[0:2]}, {pWU}, {rTT[0:2]}")
        a(f"s_and_b32 {rTT[1]}, {rTT[1]}, 0xffff")
        a("s_mov_b64 exec, 0xff"); a(f"buffer_load_dword {tdum}, {t4}, {rTT}, 0 offen"); a("s_mov_b64 exec, -1")
        for b0 in eval(OPT['t2a'])[1:]:
            for l in t2_all(b0): a(l)
    a(f"s_mov_b32 {rX[0]}, {pX[0]}"); a(f"s_and_b32 {rX[1]}, {pX[1]}, 0xffff")
    if OPT['x0e']:
        a(f"s_cmp_eq_u32 {sT1}, 8"); a("s_cbranch_scc1 NOX0")
        if OPT['sb1']: a("s_barrier")
        for n in range(4): a(f"buffer_load_dwordx4 {vx[n]}, {rX}, {sXK} offen offset:{n*1024} lds")
        a.label("NOX0")
    srd(a, rWS, pWS, WSZ)
    srd(a, rDBG, pDBG, 256)
    if OPT['tlb']:
        a(f"s_cmp_lg_u32 {sWV}, 6"); a("s_cbranch_scc1 NOTLB")
        srd(a, rA, pOUT, 2048 * 1280)
        a(f"v_lshlrev_b32 {t0}, {OPT['tlb']}, {lane}")
        a("s_lshl_b32 s6, s2, 7"); a(f"v_add_u32 {t0}, s6, {t0}")
        a(f"v_min_u32 {t1}, {0x1250000}, {t0}")
        a(f"buffer_load_dword v31, {t1}, {rWS}, 0 offen")
        a(f"buffer_load_dword v31, {t0}, {rA}, 0 offen")
        a.label("NOTLB")
    if OPT['cpf']:
        a(f"s_cmp_lg_u32 {sWV}, 7"); a("s_cbranch_scc1 NOCPF")
        a("s_getpc_b64 s[90:91]")
        a.label("CPF_PC")
        a("s_lshr_b32 s6, s2, 3"); a(f"s_mul_i32 s6, s6, {OPT['cpf']*128}")
        a(f"v_lshlrev_b32 {t0}, 7, {lane}"); a(f"v_add_u32 {t0}, s6, {t0}")
        a(f"v_min_u32 {t0}, K_LAST-CPF_PC, {t0}")
        a(f"s_mov_b64 exec, {(1 << OPT['cpf']) - 1:#x}")
        a(f"global_load_dword v31, {t0}, s[90:91]")
        a("s_mov_b64 exec, -1")
        a.label("NOCPF")
    if OPT['swp']: a(f"s_lshl_b32 s4, {sTY}, 8"); a(f"s_sub_u32 {sXA}, 128, s4"); a(f"s_add_u32 {sXB}, s4, 128")
    a(f"s_cmp_lt_u32 {sC8}, 3")
    a("s_cbranch_scc1 R_QKV")
    a(f"s_cmp_eq_u32 {sT1}, 8")
    a("s_cbranch_scc1 R_SPARE")

    def x_dma(vm, blk, half):
        if blk == 0 and OPT['x0e']:
            vm.issue(('X', 0)); vm.issue(('X', 0)); return []
        l = [f"s_add_u32 m0, {sM}, {(blk % 3) * XSLOT}"]
        if half == 0 and blk > 0: l.append(f"s_add_u32 {sXK}, {sXK}, {(sXA if blk % 2 else sXB) if OPT['swp'] else 128}")
        for n in (2 * half, 2 * half + 1):
            l.append(f"buffer_load_dwordx4 {vx[n]}, {rX}, {sXK} offen offset:{n*1024} {OPT['xfl']} lds")
            vm.issue(('X', blk))
        return l
    def x_addr_setup():
        a(f"v_lshrrev_b32 {t0}, 1, {vl15}")
        a(f"v_xor_b32 {t0}, {t0}, {vqd}")
        a(f"v_lshlrev_b32 {t0}, 4, {t0}")
        a(f"v_lshl_add_u32 {t0}, {vl15}, 7, {t0}")
        a(f"s_lshl_b32 {sT0}, {sRG}, 13")
        a(f"v_add_u32 {xa[0][0]}, {sT0}, {t0}")
        a(f"v_xor_b32 {xa[0][1]}, 64, {xa[0][0]}")
        a(f"v_add_u32 {xa[1][0]}, 0x10000, {xa[0][0]}")
        a(f"v_add_u32 {xa[1][1]}, 0x10000, {xa[0][1]}")
    def x_reads(XF, step):
        blk, kk = step // 2, step % 2
        sl = blk % 3
        return [f"ds_read_b128 {XF[tt]}, {xa[sl // 2][kk]} offset:{(sl % 2) * XSLOT + tt * 2048}" for tt in range(4)]
    def burst(vm, b0, b1):
        if OPT['touch'] not in (1, 3): return []
        l = []
        for st, reg in ((0, ta), (5, tb)):
            lo, hi = max(b0, st) - st, min(b1, st + 5) - st
            if lo >= hi: continue
            m = ((1 << (12 * hi)) - 1) & ~((1 << (12 * lo)) - 1)
            l += [f"s_mov_b32 exec_lo, {m & 0xffffffff:#x}", f"s_mov_b32 exec_hi, {m >> 32:#x}", f"global_load_dword {tdum}, {reg}, off"]
            vm.issue('T')
        l.append("s_mov_b64 exec, -1")
        return l
    def touch_setup(pw0, pw1, rowbytes, off0, off1, seg):
        if OPT['touch'] not in (1, 3): return
        l12, bi = tb[0], tb[1]; tinc = V(36)
        a(f"v_mul_u32_u24 {bi}, 43, {lane}"); a(f"v_lshrrev_b32 {bi}, 9, {bi}")
        a(f"v_mul_u32_u24 {l12}, 12, {bi}"); a(f"v_sub_u32 {l12}, {lane}, {l12}")
        a(f"s_lshl_b32 {sT2}, {sRB}, 3"); a(f"s_add_u32 {sT2}, {sT2}, {sC8}"); a(f"s_lshl_b32 {sT2}, {sT2}, 3"); a(f"s_add_u32 {sT2}, {sT2}, {sWV}")
        a(f"s_mul_i32 {sT2}, {sT2}, {4*1280}")
        a(f"v_mul_u32_u24 {t0}, 1280, {l12}")
        a(f"v_add_u32 {t0}, {sT2}, {t0}")
        a(f"s_lshl_b32 {sT0}, {sR4}, 3"); a(f"s_add_u32 {sT0}, {sT0}, {sWV}"); a(f"s_mul_i32 {sT0}, {sT0}, {2*rowbytes}")
        a(f"v_subrev_u32 {t1}, 4, {l12}")
        a(f"v_bfe_u32 {t2}, {t1}, 2, 1")
        a(f"v_mul_u32_u24 {t2}, {rowbytes}, {t2}")
        a(f"v_and_b32 {t3}, 1, {t1}")
        a(f"v_mul_u32_u24 {t3}, {seg-4}, {t3}")
        a(f"v_add3_u32 {t2}, {t2}, {t3}, {sT0}")
        a(f"v_and_b32 {t3}, 2, {t1}")
        a(f"v_cmp_eq_u32 vcc, 0, {t3}")
        a(f"v_mov_b32 {t3}, {off1}"); a(f"v_mov_b32 {t4}, {off0}")
        a(f"v_cndmask_b32 {t3}, {t3}, {t4}, vcc")
        a(f"v_add_u32 {t2}, {t2}, {t3}")
        a(f"v_mov_b32 {t3}, {pw1[0]}"); a(f"v_mov_b32 {t4}, {pw0[0]}"); a(f"v_cndmask_b32 {ta[0]}, {t3}, {t4}, vcc")
        a(f"v_mov_b32 {t3}, {pw1[1]}"); a(f"v_mov_b32 {t4}, {pw0[1]}"); a(f"v_cndmask_b32 {ta[1]}, {t3}, {t4}, vcc")
        a(f"v_cmp_gt_u32 vcc, 4, {l12}")
        a(f"v_mov_b32 {t3}, {pX[0]}"); a(f"v_mov_b32 {t4}, {pX[1]}")
        a(f"v_cndmask_b32 {t2}, {t2}, {t0}, vcc")
        a(f"v_cndmask_b32 {ta[0]}, {ta[0]}, {t3}, vcc")
        a(f"v_cndmask_b32 {ta[1]}, {ta[1]}, {t4}, vcc")
        a(f"v_mov_b32 {t3}, {64*rowbytes}"); a(f"v_mov_b32 {t4}, 128"); a(f"v_cndmask_b32 {tinc}, {t3}, {t4}, vcc")
        a(f"v_mad_u32_u24 {t2}, {tinc}, {bi}, {t2}")
        a(f"v_add_co_u32 {ta[0]}, vcc, {ta[0]}, {t2}")
        a(f"v_mul_u32_u24 {t2}, 5, {tinc}")
        a(f"v_addc_co_u32 {ta[1]}, vcc, 0, {ta[1]}, vcc")
        a(f"v_add_co_u32 {tb[0]}, vcc, {ta[0]}, {t2}")
        a(f"v_addc_co_u32 {tb[1]}, vcc, 0, {ta[1]}, vcc")
    def step_body(mains, lblk, pre=[]):
        for l in pre: a(l)
        if not lblk:
            for m in mains: a(m)
            return
        if OPT['pp'] == 2:
            rds = [l for l in lblk if l.startswith('ds_read')]; oth = [l for l in lblk if not l.startswith('ds_read')]
            l1, l2 = a.newlabel('PP'), a.newlabel('PP')
            if oth:
                a(f"s_cmp_eq_u32 {sHI}, 0"); a(f"s_cbranch_scc1 {l1}")
                for l in oth: a(l)
                a.label(l1)
            k = 0
            for i, m in enumerate(mains):
                a(m)
                while k < len(rds) and k < (i + 1) * max(1, -(-len(rds) // len(mains))):
                    a(rds[k]); k += 1
            if oth:
                a(f"s_cmp_eq_u32 {sHI}, 0"); a(f"s_cbranch_scc0 {l2}")
                for l in oth: a(l)
                a.label(l2)
        elif OPT['pp']:
            l1, l2 = a.newlabel('PP'), a.newlabel('PP')
            a(f"s_cmp_eq_u32 {sHI}, 0"); a(f"s_cbranch_scc1 {l1}")
            for l in lblk: l() if callable(l) else a(l)
            a.label(l1)
            for m in mains: a(m)
            a(f"s_cmp_eq_u32 {sHI}, 0"); a(f"s_cbranch_scc0 {l2}")
            for l in lblk: l() if callable(l) else a(l)
            a.label(l2)
        else:
            rds = [l for l in lblk if l.startswith('ds_read')]; oth = [l for l in lblk if not l.startswith('ds_read')]
            units = []; cur = []
            for l in oth:
                cur.append(l)
                if 'buffer_' in l or 'ds_write' in l: units.append(cur); cur = []
            if cur: units.append(cur)
            n = len(mains); mode = OPT['il']
            pos = {}
            if mode == 0:
                seq = [[r] for r in rds] + units
                for k, u in enumerate(seq): pos.setdefault(min(n - 1, k * n // max(len(seq), n)), []).extend(u)
            elif mode == 1:
                for k, u in enumerate(units): pos.setdefault(min(n - 1, 2 * k), []).extend(u)
                for k, r in enumerate(rds): pos.setdefault(min(n - 1, k * min(n, len(rds)) // len(rds) if len(rds) > n else k), []).append(r)
            elif mode == 2:
                for k, r in enumerate(rds): pos.setdefault(min(n - 1, k // 2), []).append(r)
                for k, u in enumerate(units): pos.setdefault(min(n - 1, len(rds) // 2 + 2 * k), []).extend(u)
            elif mode == 3:
                for k, u in enumerate(units): pos.setdefault(min(n - 1, 1 + k * (2 * n // 3) // max(1, len(units))), []).extend(u)
                for k, r in enumerate(rds): pos.setdefault(min(n - 1, k * min(n, len(rds)) // len(rds) if len(rds) > n else k), []).append(r)
            elif mode == 4:
                k = 0
                for i in range(n):
                    while k < len(lblk) and k < (i + 1) * len(lblk) // n + 1:
                        pos.setdefault(i, []).append(lblk[k]); k += 1
            for i, m in enumerate(mains):
                a(m)
                for l in pos.get(i, []): a(l)
    def init_check_issue(reg, off=128):
        return [f"v_mov_b32 {reg}, 0", f"buffer_load_dword {reg}, {reg}, {rDBG}, 0 offen offset:{off} sc1"]
    def init_check(reg, off=128):
        ok = a.newlabel('INITOK')
        a(f"v_readfirstlane_b32 {sP[0]}, {reg}")
        a(f"s_cmp_lg_u32 {sP[0]}, 0")
        a(f"s_cbranch_scc1 {ok}")
        init_poll(a, reg, off)
        a.label(ok)
    sR6, sCG, sAo, sBg, sBo, sLC, sH2, sRX = [S(94 + i) for i in range(8)]
    vo, vo4 = V(20), V(21)
    vS2 = V(30)
    sO1, sO2 = S(79), S(80)
    BRb = [208, 228, 32, 52]
    BR = [[V(BRb[b] + 4 * j, 4) for j in range(5)] for b in range(4)]
    GL = [4, 6, 7, 9]; LR = [2, 5, 3, 4]; CR = [0, 1, 6]
    GRP = {0:0, 1:1, 2:2, 3:3, 4:8, 6:9, 7:10, 9:11, 5:12, 8:13}
    if OPT['gf'] & 1:
        GL = [6, 7, 8, 9]; GRP = {0:0, 1:1, 2:2, 3:3, 6:8, 7:9, 8:10, 9:11, 4:12, 5:13}
    INP2 = [False]
    CB0 = 38 * 5120; CA0 = 38 * 4096
    def p2_setup():
        return [f"s_and_b32 {sR6}, s2, 7", f"s_lshl_b32 {sR6}, {sR6}, 2", "s_lshr_b32 s4, s2, 6", f"s_add_u32 {sR6}, {sR6}, s4",
             f"s_bfe_u32 {sCG}, s2, 0x30003", f"s_lshl1_add_u32 {sCG}, s4, {sCG}", f"s_and_b32 {sCG}, {sCG}, 7", f"v_lshlrev_b32 {vo}, 4, {lane}", f"v_add_u32 {vo4}, 4096, {vo}",
             f"s_mul_i32 {sBg}, {sCG}, 74", f"s_add_u32 {sBg}, {sBg}, {sRG}", f"s_mul_i32 {sBg}, {sBg}, 5120", f"s_add_u32 {sBg}, {sBg}, {BP}",
             f"s_mov_b32 {rB[0]}, {pWS[0]}", f"s_and_b32 {rB[1]}, {pWS[1]}, 0xffff", f"s_mul_i32 {rB[2]}, {sHI}, {WSZ}", f"s_mov_b32 {rB[3]}, 0x20000",
             f"s_mul_i32 {sLC}, {sRG}, 5120", f"s_lshl_b32 {sH2}, {sHI}, 11", f"s_mul_i32 {sRX}, {sHI}, 20480",
             f"s_xor_b32 s4, {sHI}, 1", f"s_mul_i32 {sBo}, s4, {16*5120}", f"s_add_u32 {sBo}, {sBo}, {sBg}",
             f"s_mul_i32 {sAo}, {sR6}, 74", f"s_mul_i32 s4, s4, 16", f"s_add_u32 {sAo}, {sAo}, s4", f"s_add_u32 {sAo}, {sAo}, {sRG}", f"s_lshl_b32 {sAo}, {sAo}, 12",
             f"s_lshr_b32 s4, {sCG}, 1", "s_mul_i32 s4, s4, 5", f"s_mul_i32 {sO2}, {sR6}, 74", f"s_add_u32 {sO2}, {sO2}, s4", f"s_add_u32 {sO2}, {sO2}, 54",
             f"s_lshl2_add_u32 {sO2}, {sO2}, {sRG}", f"s_lshl_b32 {sO2}, {sO2}, 10", f"s_and_b32 s4, {sCG}, 1", f"s_mul_i32 {sO1}, s4, {3*4096}",
             f"s_add_u32 {sO1}, {sO1}, {sO2}", "s_lshl_b32 s4, s4, 9", f"s_add_u32 {sO2}, {sO2}, s4", f"s_add_u32 {sO2}, {sO2}, 8192",
             f"s_lshl_b32 s78, {sR6}, 7", f"s_add_u32 s78, s78, {FH + GOD}"]
    vFQ = V(31)
    def q_flag_issue(): return [f"v_mov_b32 {vFQ}, 0", f"buffer_load_dword {vFQ}, {vFQ}, {rWS}, s78 offen offset:4 sc1"]
    def poison(R4):
        if not OPT['sent']: return []
        lb = a.newlabel('PO')
        return [f"s_cmp_eq_u32 {sHI}, 1\ns_cbranch_scc1 {lb}\n" + "\n".join(f"v_mov_b32 {R4[i]}, -1" for i in range(4)) +
                f"\nbuffer_store_dwordx4 {R4}, {vo}, {rWS}, {sO1} offen {ST}\nbuffer_store_dwordx4 {R4}, {vo4}, {rWS}, {sO1} offen {ST}"
                f"\ns_mov_b32 exec_hi, 0\nbuffer_store_dwordx4 {R4}, {vo}, {rWS}, {sO2} offen {ST}\ns_mov_b32 exec_hi, -1\n{lb}:"]
    def b_reg(vm, i, tag, r=None, grp=None, ext=0):
        b = i % 4; r = r or rWS; grp = i if grp is None else grp
        if INP2[0] and OPT['nob'] == 1: r = rA
        if INP2[0] and OPT['nob'] == 2: return []
        l = [f"s_add_u32 s4, {sBo}, {grp*20480 + ext}"]
        for j in range(5):
            if j < 4: l.append(f"buffer_load_dwordx4 {BR[b][j]}, {vo}, {r}, s4 offen offset:{j*1024} {LD}")
            else: l.append(f"buffer_load_dwordx4 {BR[b][j]}, {vo4}, {r}, s4 offen {LD}")
            vm.issue(tag)
        return l
    def b_row(vm, base, grp, row, extra=None, ext=0, hi3=False):
        l = [f"s_add_u32 s4, {base}, {grp*20480 + ext}", f"s_add_u32 s5, {sLC}, {row*20480}"]
        if hi3: l += [f"s_add_u32 s4, s4, {sRX}", f"s_mul_i32 s6, {sRX}, 3", "s_add_u32 s5, s5, s6"]
        if extra: l += [f"s_add_u32 s4, s4, {extra}", f"s_add_u32 s5, s5, {extra}"]
        l.append("s_mov_b32 m0, s5")
        if INP2[0] and OPT['nob'] == 2: return []
        for j in range(4):
            l.append(f"buffer_load_dwordx4 {vo}, {rWS}, s4 offen offset:{j*1024} {LD} lds"); vm.issue('BL')
        l.append("s_add_u32 m0, s5, 4096")
        l.append(f"buffer_load_dwordx4 {vo4}, {rWS}, s4 offen {LD} lds"); vm.issue('BL')
        return l
    def b_row_half(vm, k):
        l = [f"s_add_u32 s4, {sBg}, {GRP[GL[k]]*20480}", f"s_add_u32 s5, {sLC}, {LR[k]*20480}", f"s_add_u32 s4, s4, {sH2}", f"s_add_u32 m0, s5, {sH2}"]
        for j in range(3):
            l.append(f"buffer_load_dwordx4 {vo}, {rWS}, s4 offen offset:{j*1024} {LD} lds"); vm.issue('BL')
        return l
    sPF = S(8)
    def flag_store(need):
        a(f"s_mov_b32 {sNEED}, {need}")

    vw = [V(R0), V(R0 + 1)]; wa = [V(R0 + 2), V(R0 + 3), V(R0 + 4)]; vchk = V(R0 + 5)
    FB = [32, 72]
    XF = [[V(FB[b] + 4 * tt, 4) for tt in range(4)] for b in range(2)]
    WF = [[V(FB[b] + 16 + 4 * c, 4) for c in range(6)] for b in range(2)]
    ACC = [[V(112 + (c * 4 + tt) * 4, 4) for tt in range(4)] for c in range(6)]
    vm = VmTrack()
    a(f"s_mul_i32 {sT3}, {sID}, 192")
    touch_setup(pWG, pWU, 3456, sT3, sT3, 192)
    for l in burst(vm, *BS['p0']): a(l)
    a(f"s_bitcmp1_b32 {sWV}, 0")
    a(f"s_cselect_b32 {rW[0]}, {pWU[0]}, {pWG[0]}")
    a(f"s_cselect_b32 {rW[1]}, {pWU[1]}, {pWG[1]}")
    a(f"s_and_b32 {rW[1]}, {rW[1]}, 0xffff")
    a(f"s_mov_b32 {rW[2]}, {640*3456}")
    a(f"s_mov_b32 {rW[3]}, 0x20000")
    a(f"s_bfe_u32 {sT0}, {sWV}, 0x10001")
    a(f"s_lshl_b32 {sT1}, {sT0}, 1")
    for n in range(2):
        a(f"v_add_u32 {t0}, {64*n}, {lane}")
        a(f"v_mul_u32_u24 {t1}, 43, {t0}")
        a(f"v_lshrrev_b32 {t1}, 9, {t1}")
        a(f"v_mul_u32_u24 {t2}, 12, {t1}")
        a(f"v_sub_u32 {t2}, {t0}, {t2}")
        a(f"v_lshrrev_b32 {t3}, 2, {t2}")
        a(f"v_cmp_eq_u32 vcc, 1, {t3}")
        a(f"v_mov_b32 {t3}, {sT1}")
        a(f"v_mov_b32 {t4}, {sT0}")
        a(f"v_cndmask_b32 {t3}, {t3}, {t4}, vcc")
        a(f"v_xor_b32 {t2}, {t2}, {t3}")
        a(f"v_mul_u32_u24 {t1}, 3456, {t1}")
        a(f"v_lshl_add_u32 {vw[n]}, {t2}, 4, {t1}")
        if n: a(f"v_subrev_u32 {vw[n]}, 1024, {vw[n]}")
    a(f"s_lshr_b32 {sT0}, {sWV}, 1")
    a(f"s_mul_i32 {sWK}, {sT0}, {8*3456}")
    a(f"s_add_u32 {sWK}, {sWK}, {sT3}")
    a(f"s_mul_i32 {sMW}, {sT0}, 1536")
    a(f"s_and_b32 {sT1}, {sWV}, 1")
    a(f"s_mul_i32 {sT1}, {sT1}, 6144")
    a(f"s_add_u32 {sMW}, {sMW}, {sT1}")
    sW2 = S(54, 2)
    if OPT['swp']:
        a(f"s_mul_i32 {sT1}, {sTY}, {2*110592}"); a(f"s_add_u32 {sWK}, {sWK}, {sT1}"); a(f"s_lshl_b32 {sT1}, {sT1}, 1")
        a(f"s_sub_u32 {sW2[0]}, 110592, {sT1}"); a(f"s_add_u32 {sW2[1]}, {sT1}, 110592")
    def w_dma(step):
        l = [f"s_add_u32 m0, {sMW}, {WB + (step % 5) * 12288}"] + ([f"s_add_u32 {sWK}, {sWK}, {(110592 if step % 2 or not OPT['swp'] else (sW2[0] if step % 4 == 2 else sW2[1]))}"] if step else []) + [
             f"buffer_load_dwordx4 {vw[0]}, {rW}, {sWK} offen {OPT['wfl']} lds",
             "s_mov_b32 exec_hi, 0\n"
             f"buffer_load_dwordx4 {vw[1]}, {rW}, {sWK} offen offset:1024 {OPT['wfl']} lds\n"
             "s_mov_b32 exec_hi, -1"]
        vm.issue(('W', step)); vm.issue(('W', step))
        return l
    if OPT['sb1'] and not OPT['x0e']: a("s_barrier")
    for l in x_dma(vm, 0, 0) + x_dma(vm, 0, 1) + w_dma(0) + w_dma(1): a(l)
    x_addr_setup()
    a(f"v_lshl_add_u32 {t0}, {vqd}, 3, {vr}")
    a(f"v_mul_u32_u24 {t0}, 192, {t0}")
    a(f"v_add_u32 {t0}, {WB}, {t0}")
    a(f"v_and_b32 {t1}, 1, {vqd}")
    a(f"v_lshlrev_b32 {t2}, 5, {t1}")
    a(f"v_lshl_add_u32 {t2}, {vc}, 3, {t2}")
    a(f"s_lshl_b32 {sT0}, {sHI}, 7")
    a(f"v_add3_u32 {wa[0]}, {t0}, {t2}, {sT0}")
    a(f"v_xor_b32 {wa[1]}, 32, {wa[0]}")
    a(f"v_and_b32 {t2}, 2, {vc}")
    a(f"v_add_u32 {t2}, {sHI}, {t2}")
    a(f"v_xor_b32 {t2}, {t2}, {t1}")
    a(f"v_lshlrev_b32 {t2}, 4, {t2}")
    a(f"v_and_b32 {t3}, 1, {vc}")
    a(f"v_lshl_add_u32 {t2}, {t3}, 3, {t2}")
    a(f"v_add3_u32 {wa[2]}, {t0}, {t2}, 64")
    def w_reads(WFb, step):
        return [f"ds_read_b64_tr_b16 {WFb[m*3+i][2*rd:2*rd+2]}, {wa[i]} offset:{(step % 5) * 12288 + m * 6144 + rd * 768}"
                for m in range(2) for i in range(3) for rd in range(2)]
    def t2b_emit():
        if T2:
            for b0 in eval(OPT['t2b']):
                for l in t2_all(b0): a(l)
                vm.issue('T')
    if OPT['t2pos'] == 1:
        if OPT['sb2']: a("s_barrier")
        t2b_emit()
    n = vm.wait_for(lambda t: t in (('X', 0), ('W', 0)))
    a(f"s_waitcnt vmcnt({n})")
    a("s_barrier")
    stamp(a, 1)
    for l in x_reads(XF[0], 0) + w_reads(WF[0], 0): a(l)
    if OPT['fill'] == 0:
        for l in x_dma(vm, 1, 0) + x_dma(vm, 1, 1) + w_dma(2): a(l)
        if OPT['t2pos'] == 2: t2b_emit()
    fq = []
    for st in range(2, 20):
        if st % 2 == 0:
            b = st // 2
            fq += [('X', b, 0, max(0, 2*(b-3)+1)), ('X', b, 1, max(0, 2*(b-3)+1))]
        fq.append(('W', st, 0, max(0, st - 5)))
    for j in range(20):
        cur, nxt = j & 1, (j & 1) ^ 1
        CHK = OPT['chk']
        NB = OPT['nobar']
        if j < NB:
            n = vm.wait_for(lambda t: t in (('X', (j + 1) // 2), ('W', j + 1)) or (j == CHK and t == 'chk') or (j == 16 and t == 'chk2') or (j == NB - 1 and t[0] in 'XW'))
            a(f"s_waitcnt vmcnt({n}) lgkmcnt(0)")
            if j == CHK: init_check(vchk)
            if j == 16: init_check(vS2, 136)
            a("s_barrier")
        else:
            a("s_waitcnt lgkmcnt(0)")
        sstamp(a, j)
        mains = [f"v_mfma_f32_16x16x32_bf16 {ACC[c][tt]}, {WF[cur][c]}, {XF[cur][tt]}, {'0' if j == 0 else ACC[c][tt]}" for c in range(6) for tt in range(4)]
        pre = burst(vm, *BS[j]) if j in BS else []
        lblk = []
        if j < 19:
            lblk += x_reads(XF[nxt], j + 1) + w_reads(WF[nxt], j + 1)
            if OPT['fill']:
                cnt = OPT['fill'] + (1 if j == 0 else 0)
                while cnt and fq and fq[0][3] <= j:
                    it = fq.pop(0); cnt -= 1
                    lblk += x_dma(vm, it[1], it[2]) if it[0] == 'X' else w_dma(it[1])
            if j == 0 and not OPT['fill']: lblk += w_dma(3) + x_dma(vm, 2, 0) + x_dma(vm, 2, 1) + w_dma(4)
            xb = (j - 1) // 2 + 3 if j >= 1 else 99
            if xb <= 9 and not OPT['fill']: lblk += x_dma(vm, xb, (j - 1) % 2)
            if T2 and j in eval(OPT['t2f']): lblk += t2_one(*eval(OPT['t2f'])[j])
            if j == CHK - 2: lblk += init_check_issue(vchk); vm.issue('chk')
            if j + 5 <= 19 and not OPT['fill']: lblk += w_dma(j + 5)
            if j == 10: lblk += p2_setup()
            if j == OPT['pj']: lblk += poison(V(248, 4))
            if j == CHK: hq = b_reg(VmTrack(), 0, 'B') + b_reg(VmTrack(), 1, 'B'); hq = [hq[0:3], hq[3:5], [hq[5]] + hq[6:8], hq[8:10], hq[10:12]]
            JJ = [CHK, CHK + 1, CHK + 2, 15, 18]
            if j in JJ:
                q = JJ.index(j)
                if not hq[q][0].startswith('s_'): lblk.append(f"s_add_u32 s4, {sBo}, {0 if q < 3 else 20480}")
                lblk += hq[q]; vm.issue('B'); vm.issue('B')
            if j == 14: lblk += init_check_issue(vS2, 136); vm.issue('chk2')
            if j == 16: lblk += b_row(vm, sBg, GRP[GL[0]], LR[0], None, 0, True)
            if j == 17: lblk += b_row(vm, sBg, GRP[GL[2]], LR[2], sRX)
        else:
            if OPT['b23'] == 0: lblk += b_reg(vm, 2, 'B') + b_reg(vm, 3, 'B')
            if OPT['b23'] == 2: lblk += b_reg(vm, 2, 'B')
        step_body(mains, lblk, pre)
    stamp(a, 2)
    a(f"s_setprio {OPT['eprio']}")
    sN = S(82, 2)
    a(f"s_mov_b32 {sN[0]}, {NLOG2E:#x}")
    a(f"s_mov_b32 {sN[1]}, {NLOG2E:#x}")
    a(f"s_lshl_b32 {sT3}, {sRB}, 2")
    a(f"s_add_u32 {sT3}, {sT3}, {sRG}")
    a(f"s_mul_i32 {sT0}, {sT3}, 74")
    a(f"s_mul_i32 {sT1}, {sID}, 3")
    a(f"s_add_u32 {sT0}, {sT0}, {sT1}")
    a(f"s_lshl_b32 {sT0}, {sT0}, 12")
    a(f"s_lshl_b32 {sT1}, {sHI}, 13")
    a(f"s_add_u32 {sT1}, {sT0}, {sT1}")
    a(f"s_lshl_b32 {sT2}, {sHI}, 9")
    a(f"s_add_u32 {sT2}, {sT2}, {sT0}")
    a(f"s_add_u32 {sT2}, {sT2}, 4096")
    a(f"s_lshl_b32 {sFLAG}, {sT3}, 7")
    a(f"s_add_u32 {sFLAG}, {sFLAG}, {FH}")
    a(f"v_lshlrev_b32 {t0}, 4, {lane}")
    a(f"v_and_b32 {t1}, 31, {lane}")
    a(f"v_lshlrev_b32 {t1}, 4, {t1}")
    a(f"v_lshrrev_b32 {t2}, 5, {lane}")
    a(f"v_lshl_add_u32 {t1}, {t2}, 10, {t1}")
    tmp = [V(FB[1] + 4 * i, 4) for i in range(2)]
    outs = [V(FB[1] + 8 + 4 * i, 4) for i in range(6)]
    cnt_ = [0]
    def silu2(G0, U0, G1, U1, o):
        GU = ((G0, U0, tmp[0]), (G1, U1, tmp[1]))
        pk = cnt_[0] >= OPT['npk']; cnt_[0] += 1
        for G, U, T in GU:
            if pk:
                for h in range(2): a(f"v_pk_mul_f32 {T[2*h:2*h+2]}, {G[2*h:2*h+2]}, {sN}")
            else:
                for k in range(4): a(f"v_mul_f32 {T[k]}, {sN[0]}, {G[k]}")
        for G, U, T in GU:
            for k in range(4): a(f"v_exp_f32 {T[k]}, {T[k]}")
        for G, U, T in GU:
            if pk:
                for h in range(2): a(f"v_pk_mul_f32 {G[2*h:2*h+2]}, {G[2*h:2*h+2]}, {U[2*h:2*h+2]}")
            else:
                for k in range(4): a(f"v_mul_f32 {G[k]}, {G[k]}, {U[k]}")
        for G, U, T in GU:
            if pk:
                for h in range(2): a(f"v_pk_add_f32 {T[2*h:2*h+2]}, {T[2*h:2*h+2]}, 1.0 op_sel_hi:[1,0]")
            else:
                for k in range(4): a(f"v_add_f32 {T[k]}, 1.0, {T[k]}")
        for G, U, T in GU:
            for k in range(4): a(f"v_rcp_f32 {T[k]}, {T[k]}")
        for G, U, T in GU:
            if pk:
                for h in range(2): a(f"v_pk_mul_f32 {G[2*h:2*h+2]}, {G[2*h:2*h+2]}, {T[2*h:2*h+2]}")
            else:
                for k in range(4): a(f"v_mul_f32 {G[k]}, {G[k]}, {T[k]}")
        for q, (G, U, T) in enumerate(GU):
            for h in range(2): a(f"v_cvt_pk_bf16_f32 {o[2*q+h]}, {G[2*h]}, {G[2*h+1]}")
    for tt in range(4):
        o = outs[tt]
        silu2(ACC[0][tt], ACC[3][tt], ACC[1][tt], ACC[4][tt], o)
        a(f"buffer_store_dwordx4 {o}, {t0}, {rWS}, {sT1} offen offset:{tt*1024} {ST}")
    for l in q_flag_issue(): a(l)
    for tp in range(2):
        o = outs[4 + tp]
        silu2(ACC[2][2*tp], ACC[5][2*tp], ACC[2][2*tp+1], ACC[5][2*tp+1], o)
        a(f"v_permlane32_swap_b32 {o[0]}, {o[2]}")
        a(f"v_permlane32_swap_b32 {o[1]}, {o[3]}")
        a(f"buffer_store_dwordx4 {o}, {t1}, {rWS}, {sT2} offen offset:{tp*2048} {ST}")
    flag_store(35)
    a("s_waitcnt vmcnt(2)")
    a(f"s_mov_b32 {sPF}, 0")
    a("s_branch P2")

    a.label('R_QKV')
    vm = VmTrack()
    vw = [V(R0), V(R0 + 1), V(R0 + 2)]; wa = V(R0 + 3); pa = V(R0 + 4); vchk = V(R0 + 5); vgw = V(R0 + 6)
    FB = [32, 68]
    XF = [[V(FB[b] + 4 * tt, 4) for tt in range(4)] for b in range(2)]
    WF = [[V(FB[b] + 16 + 4 * c, 4) for c in range(5)] for b in range(2)]
    ACC = [V(104 + 20 * tt, 20) for tt in range(4)]
    pf4 = [V(32 + 4 * i, 4) for i in range(9)] + [V(196, 4)]
    pf2 = [V(200, 2), V(202, 2), V(204, 2), V(206, 2), V(248, 2)]
    PF = [[pf4[2 * t], pf4[2 * t + 1], pf2[t]] for t in range(5)]
    WP = V(184, 4); GWF = V(188, 4); GA = V(192, 4)
    sC0, sC1, sLo, sHi2, sISQ, sHB, sGD = [S(77 + i) for i in range(7)]
    PHW = 135168; PHB = 0; VVB = 90112; PS = 352
    srd(a, rW, pQKV, 640 * 3840)
    srd(a, rA, pPHI, 32 * 800)
    a(f"s_lshl_b32 {sID}, {sT0}, 1"); a(f"s_add_u32 {sID}, {sID}, {sC8}")
    a(f"s_mul_i32 {sC0}, {sID}, 160")
    a(f"s_add_u32 {sC1}, {sC0}, 2560")
    a(f"s_add_u32 {sC0}, {sC0}, 1280")
    a(f"s_lshl_b32 {sHB}, {sID}, 2")
    a(f"s_mul_i32 {sT1}, {sT0}, 320")
    a(f"s_add_u32 {sT2}, {sT1}, 160")
    a(f"s_lshl_b32 {sT3}, {sT0}, 3")
    a(f"s_cmp_eq_u32 {sC8}, 2")
    a(f"s_cselect_b32 {sC0}, {sT1}, {sC0}")
    a(f"s_cselect_b32 {sC1}, {sT2}, {sC1}")
    a(f"s_cselect_b32 {sHB}, {sT3}, {sHB}")
    a(f"s_cselect_b32 {sISQ}, 1, 0")
    a(f"s_bitcmp1_b32 {sWV}, 0")
    a(f"s_cselect_b32 {sLo}, {sC1}, {sC0}")
    a(f"s_cselect_b32 {sHi2}, {sC0}, {sC1}")
    a(f"s_sub_u32 {sHi2}, {sHi2}, 160")
    touch_setup(pQKV, pQKV, 3840, sC0, sC1, 160)
    for l in burst(vm, *BS['p0']): a(l)
    for n in range(3):
        a(f"v_add_u32 {t0}, {64*n}, {lane}")
        a(f"v_mul_u32_u24 {t1}, 205, {t0}")
        a(f"v_lshrrev_b32 {t1}, 12, {t1}")
        a(f"v_mul_u32_u24 {t2}, 20, {t1}")
        a(f"v_sub_u32 {t2}, {t0}, {t2}")
        a(f"v_cmp_le_u32 vcc, 10, {t2}")
        a(f"v_mov_b32 {t3}, {sLo}")
        a(f"v_mov_b32 {t4}, {sHi2}")
        a(f"v_cndmask_b32 {t3}, {t3}, {t4}, vcc")
        a(f"v_mul_u32_u24 {t1}, 3840, {t1}")
        a(f"v_lshl_add_u32 {t1}, {t2}, 4, {t1}")
        a(f"v_add_u32 {vw[n]}, {t1}, {t3}")
        if n: a(f"v_subrev_u32 {vw[n]}, {1024*n}, {vw[n]}")
    a(f"s_mul_i32 {sWK}, {sWV}, {8*3840}")
    a(f"s_mul_i32 {sMW}, {sWV}, 2560")
    sW3 = [S(83), S(9)]
    if OPT['swp']:
        a(f"s_mul_i32 {sT1}, {sTY}, 245760"); a(f"s_add_u32 {sWK}, {sWK}, {sT1}"); a(f"s_lshl_b32 {sT1}, {sT1}, 1")
        a(f"s_sub_u32 {sW3[0]}, 245760, {sT1}"); a(f"s_add_u32 {sW3[1]}, {sT1}, 245760")
    def w_dma2(blk):
        l = [f"s_add_u32 m0, {sMW}, {WB + (blk % 3) * 20480}"] + ([f"s_add_u32 {sWK}, {sWK}, {(sW3[0] if blk % 2 else sW3[1]) if OPT['swp'] else 245760}"] if blk else []) + [
             f"buffer_load_dwordx4 {vw[0]}, {rW}, {sWK} offen {OPT['wfl']} lds",
             f"buffer_load_dwordx4 {vw[1]}, {rW}, {sWK} offen offset:1024 {OPT['wfl']} lds",
             "s_mov_b32 exec_hi, 0\n"
             f"buffer_load_dwordx4 {vw[2]}, {rW}, {sWK} offen offset:2048 {OPT['wfl']} lds\n"
             "s_mov_b32 exec_hi, -1"]
        for _ in range(3): vm.issue(('W', blk))
        return l
    a(f"v_lshlrev_b32 {t0}, 4, {tid}")
    a(f"s_mul_i32 {sT0}, {sHB}, 800")
    a(f"v_add_u32 {t0}, {sT0}, {t0}")
    a(f"buffer_load_dwordx4 {WP}, {t0}, {rA}, 0 offen"); vm.issue(('P', 0))
    if OPT['sb1'] and not OPT['x0e']: a("s_barrier")
    for l in x_dma(vm, 0, 0) + x_dma(vm, 0, 1) + w_dma2(0): a(l)
    x_addr_setup()
    a(f"v_lshl_add_u32 {t0}, {vqd}, 3, {vr}")
    a(f"v_mul_u32_u24 {t0}, 320, {t0}")
    a(f"v_and_b32 {t1}, 1, {vqd}")
    a(f"v_xor_b32 {t1}, {sHI}, {t1}")
    a(f"v_mul_u32_u24 {t1}, 160, {t1}")
    a(f"v_mul_u32_u24 {t2}, 40, {vc}")
    a(f"v_add3_u32 {t0}, {t0}, {t1}, {t2}")
    a(f"v_add_u32 {wa}, {WB}, {t0}")
    a(f"s_and_b32 {sT0}, {sHI}, {sISQ}")
    a(f"s_mul_i32 {sT0}, {sT0}, 3200")
    a(f"s_add_u32 {sT0}, {sT0}, {PHW}")
    a(f"v_mul_u32_u24 {t0}, 800, {vqd}")
    a(f"v_add_u32 {t0}, {sT0}, {t0}")
    a(f"v_mov_b32 {t1}, {ZERO}")
    a(f"v_cmp_eq_u32 vcc, {vc}, {vqd}")
    a(f"v_cndmask_b32 {t0}, {t1}, {t0}, vcc")
    a(f"v_mul_u32_u24 {t1}, 40, {vr}")
    a(f"v_add_u32 {pa}, {t0}, {t1}")
    def w_reads2(WFb, step):
        blk, kk = step // 2, step % 2
        return [f"ds_read_b64_tr_b16 {WFb[t][2*rd:2*rd+2]}, {wa} offset:{(blk % 3) * 20480 + kk * 10240 + rd * 1280 + 8 * t}" for t in range(5) for rd in range(2)]
    def t2b_emit():
        if T2:
            for b0 in eval(OPT['t2b']):
                for l in t2_all(b0): a(l)
                vm.issue('T')
    if OPT['t2pos'] == 1:
        if OPT['sb2']: a("s_barrier")
        t2b_emit()
    n = vm.wait_for(lambda t: t in (('X', 0), ('W', 0)))
    a(f"s_waitcnt vmcnt({n})")
    a("s_barrier")
    stamp(a, 1)
    for l in x_reads(XF[0], 0) + w_reads2(WF[0], 0): a(l)
    if OPT['fill'] == 0:
        for l in x_dma(vm, 1, 0) + x_dma(vm, 1, 1) + w_dma2(1): a(l)
        if OPT['t2pos'] == 2: t2b_emit()
    fq = []
    for b in range(1, 10):
        fq += [('X', b, max(0, 2*(b-3)+1)), ('W', b, max(0, 2*(b-3)+1))]
    for j in range(20):
        cur, nxt = j & 1, (j & 1) ^ 1
        if j % 2 == 1:
            if j < 19:
                n = vm.wait_for(lambda t: t in (('X', (j + 1) // 2), ('W', (j + 1) // 2)) or (j == 17 and t == 'chk'))
                a(f"s_waitcnt vmcnt({n}) lgkmcnt(0)")
            else: a("s_waitcnt lgkmcnt(0)")
            if j == 17: init_check(vchk)
            a("s_barrier")
        else:
            a("s_waitcnt lgkmcnt(0)")
            if OPT['pp'] or OPT['qbar']: a("s_barrier")
        sstamp(a, j)
        mains = [f"v_mfma_f32_16x16x32_bf16 {ACC[tt][4*t:4*t+4]}, {WF[cur][t]}, {XF[cur][tt]}, {'0' if j == 0 else ACC[tt][4*t:4*t+4]}" for t in range(5) for tt in range(4)]
        pre = burst(vm, *BS[j]) if j in BS else []
        lblk = []
        if j < 19:
            lblk += x_reads(XF[nxt], j + 1) + w_reads2(WF[nxt], j + 1)
            if OPT['fill']:
                cnt = 2 if j in (0, 1, 3, 5) else 1
                while cnt and fq and fq[0][2] <= j:
                    it = fq.pop(0); cnt -= 1
                    lblk += x_dma(vm, it[1], 0) + x_dma(vm, it[1], 1) if it[0] == 'X' else w_dma2(it[1])
            if j == 0 and not OPT['fill']: lblk += x_dma(vm, 2, 0) + x_dma(vm, 2, 1) + w_dma2(2)
            xb = (j - 1) // 2 + 3 if j >= 1 else 99
            if xb <= 9 and not OPT['fill']:
                if j % 2 == 1: lblk += x_dma(vm, xb, 0) + x_dma(vm, xb, 1)
                else: lblk += w_dma2(xb)
            if T2 and j in eval(OPT['t2q']): lblk += t2_one(*eval(OPT['t2q'])[j])
            if j == 15: lblk += init_check_issue(vchk); vm.issue('chk')
            if j == 17:
                lblk += [f"v_lshlrev_b32 {t0}, 4, {tid}", f"v_add_u32 {t0}, {PHW}, {t0}", f"ds_write_b128 {t0}, {WP}"]
            if j == 10: lblk += p2_setup()
            if j == 17: lblk += poison(V(208, 4))

        else:
            for t in range(5):
                for s in range(3):
                    for r_ in range(2 if s < 2 else 1):
                        lblk.append(f"ds_read_b64_tr_b16 {PF[t][s][2*r_:2*r_+2]}, {pa} offset:{s*320 + r_*160 + t*8}")
        step_body(mains, lblk, pre)
    stamp(a, 2)
    a("s_setprio 2")
    QB = V(68, 40); P = V(108, 20); E = V(128, 40); O = V(168, 20); M = V(250, 4); T = V(188, 4); ONE = V(192, 2)
    sCNT = S(8); sOUT = S(9)
    def cvt_tile(dst, tt):
        for i in range(10): a(f"v_cvt_pk_bf16_f32 {dst[i]}, {ACC[tt][2*i]}, {ACC[tt][2*i+1]}")
    def pk_list(q, P=P):
        l = []
        for s_ in range(3):
            for t in range(5):
                d = P[4*t:4*t+4]
                if s_ < 2: l.append(f"v_mfma_f32_16x16x32_bf16 {d}, {PF[t][s_]}, {q[4*s_:4*s_+4]}, {'0' if s_ == 0 else d}")
                else: l.append(f"v_mfma_f32_16x16x16_bf16 {d}, {PF[t][s_]}, {q[8:10]}, {d}")
        return l
    a(f"s_lshl_b32 {sT3}, {sRB}, 2")
    a(f"s_add_u32 {sT3}, {sT3}, {sRG}")
    a(f"s_cmp_eq_u32 {sISQ}, 0")
    a("s_cbranch_scc1 R_KV")
    for tt in range(4): cvt_tile(QB[10*tt:10*tt+10], tt)
    a("s_waitcnt lgkmcnt(0)")
    PT = [V(108 + 20*i, 20) for i in range(4)]
    a(f"s_lshr_b32 {sT1}, {sHB}, 2")
    a(f"s_add_u32 {sT1}, {sT1}, {sHI}")
    a(f"s_lshl_b32 {sOUT}, {sT3}, 3")
    a(f"s_add_u32 {sOUT}, {sOUT}, {sT1}")
    a(f"s_mul_i32 {sOUT}, {sOUT}, 10240")
    a(f"s_add_u32 {sOUT}, {sOUT}, {PQ}")
    a(f"s_add_u32 {sT0}, {sOUT}, 8192")
    a(f"s_lshl_b32 {sFLAG}, {sT3}, 7")
    a(f"s_add_u32 {sFLAG}, {sFLAG}, {FH + 4}")
    QO = [V(208 + 8*i, 8) for i in range(4)]; QT = [V(240, 4), V(244, 4)]
    def q_out(tt):
        l = [f"v_cvt_pk_bf16_f32 {QO[tt][i] if i < 8 else QT[tt//2][2*(tt%2) + i - 8]}, {PT[tt][2*i]}, {PT[tt][2*i+1]}" for i in range(10)]
        for h in range(2): l.append(f"buffer_store_dwordx4 {QO[tt][4*h:4*h+4]}, {vo if tt < 2 else vo4}, {rWS}, {sOUT} offen offset:{(tt%2)*2048 + h*1024} {ST}")
        if tt % 2: l.append(f"buffer_store_dwordx4 {QT[tt//2]}, {vo}, {rWS}, {sT0} offen offset:{(tt//2)*1024} {ST}")
        return l
    for tt in range(4):
        side = q_out(tt - 1) if tt else []
        for i, l in enumerate(pk_list(QB[10*tt:10*tt+10], PT[tt])):
            a(l)
            if i >= 2 and side: a(side.pop(0))
    for l in q_out(3): a(l)
    flag_store(7)
    a(f"v_mov_b32 {vFQ}, 0")
    a(f"s_mov_b32 {sPF}, 6")
    a("s_branch P2")
    a.label('R_KV')
    a(f"s_lshl_b32 {sT1}, {sRG}, 1"); a(f"s_add_u32 {sT0}, {sT1}, 1"); a(f"s_mul_i32 {sT0}, {sT0}, {32*PS}")
    a(f"v_add_u32 {t0}, {sT0}, {vo}")
    a(f"s_mov_b32 {sCNT}, 2")
    a(f"s_cmp_eq_u32 {sHI}, 1")
    a("s_cbranch_scc1 R_V")
    cvt_tile(QB[0:10], 0)
    cvt_tile(QB[20:30], 2); cvt_tile(QB[30:40], 3)
    for i in range(5): a(f"ds_write_b128 {t0}, {QB[20+4*i:24+4*i]} offset:{i*1024}")
    cvt_tile(QB[10:20], 1)
    a("s_waitcnt lgkmcnt(0)")
    a("s_barrier")
    for l in pk_list(QB[0:10]): a(l)
    a("s_branch R_KV2")
    a.label('R_V')
    VBt = {3: V(88, 10), 0: V(98, 10), 1: V(168, 10), 2: V(178, 10)}
    for tt in (3, 0, 1, 2): cvt_tile(VBt[tt], tt)
    a(f"s_mul_i32 {sT2}, {sRG}, {64*176}")
    a(f"s_add_u32 {sT2}, {sT2}, {VVB}")
    a(f"v_mul_u32_u24 {t2}, 176, {vl15}")
    a(f"v_add_u32 {t1}, {sT2}, {t2}")
    a(f"v_mul_u32_u24 {t3}, 40, {vqd}")
    a(f"v_add_u32 {t2}, {t1}, {t3}")
    a(f"v_mov_b32 {ONE[0]}, 0x3f80")
    a(f"v_mov_b32 {ONE[1]}, 0")
    a("s_barrier")
    for i in range(5): a(f"ds_read_b128 {QB[4*i:4*i+4]}, {t0} offset:{i*1024}")
    side = []
    for tt in (3, 0, 1, 2):
        for i in range(5): side.append(f"ds_write_b64 {t2}, {VBt[tt][2*i:2*i+2]} offset:{tt*2816 + 8*i}")
        side.append(f"ds_write_b64 {t1}, {ONE} offset:{tt*2816 + 160}")
    for i in range(9): a(side.pop(0))
    a("s_waitcnt lgkmcnt(9)")
    for l in pk_list(QB[0:10]): a(l); a(side.pop(0))
    a.label('R_KV2')
    a(f"s_add_u32 {sT1}, {sT1}, {sHI}"); a(f"s_mul_i32 {sT1}, {sT1}, {32*PS}")
    a(f"v_mul_u32_u24 {t4}, {PS}, {vl15}")
    a(f"v_mul_u32_u24 {t3}, 80, {vqd}")
    a(f"v_add3_u32 {t4}, {t4}, {t3}, {sT1}")
    stamp(a, 12)
    for u in range(2):
        if u == 0:
            bl = b_reg(vm, 0, 'B') + b_reg(vm, 1, 'B'); pl = pk_list(QB[10:20])
            sd = [pl[i] + ("\n" + bl[i] if i < len(bl) else "") for i in range(15)]
        else: sd = b_reg(vm, 2, 'B') + b_reg(vm, 3, 'B')
        softmax_unit(a, P, E, M, T, O, sd + ["s_waitcnt lgkmcnt(0)"])
        for s_ in range(5): a(f"ds_write_b128 {t4}, {O[4*s_:4*s_+4]} offset:{PHB + u*16*PS + 16*s_}")
    a(f"v_lshl_add_u32 {t0}, {vqd}, 2, {vr}")
    a(f"v_mul_u32_u24 {t1}, {PS}, {t0}")
    a(f"s_mul_i32 {sT0}, {sRG}, 80")
    a(f"v_lshl_add_u32 {t1}, {vc}, 3, {t1}")
    a(f"v_add_u32 {t1}, {sT0}, {t1}")
    a(f"v_add_u32 {t2}, {128*PS}, {t1}")
    a(f"v_mul_u32_u24 {t0}, 176, {t0}")
    a(f"s_mul_i32 {sT0}, {sRG}, 40")
    a(f"s_mul_i32 {sT1}, {sHI}, 24")
    a(f"s_add_u32 {sT0}, {sT0}, {sT1}")
    a(f"v_lshl_add_u32 {t3}, {vc}, 3, {sT0}")
    a(f"v_mul_u32_u24 {t4}, {sHI}, {vc}")
    a(f"v_cmp_lt_u32 vcc, 1, {t4}")
    a(f"v_mov_b32 {t4}, 160")
    a(f"v_cndmask_b32 {t3}, {t3}, {t4}, vcc")
    a(f"v_add_u32 {t3}, {VVB}, {t3}")
    a(f"v_add_u32 {t3}, {t0}, {t3}")
    stamp(a, 13)
    a("s_waitcnt lgkmcnt(0)")
    a("s_barrier")
    stamp(a, 14)
    a(f"s_lshl_b32 {sFLAG}, {sID}, 7"); a(f"s_add_u32 {sFLAG}, {sFLAG}, {FK}")
    def k_hint():
        a("v_mov_b32 v29, 1"); a("v_mov_b32 v11, 0")
        a(f"s_cmp_lg_u32 {sWV}, 7"); a("s_cbranch_scc1 KH1")
        a("s_mov_b64 exec, 1"); a(f"buffer_atomic_add v29, v11, {rWS}, {sFLAG} offen sc0 sc1"); a("s_mov_b64 exec, -1")
        a.label('KH1')
    if OPT['kh'] == 0: k_hint()
    for l in q_flag_issue(): a(l)
    KA = [[V(72 + (b*4 + f)*4, 4) for f in range(4)] for b in range(3)]
    KD = [V(128 + 4*f, 4) for f in range(3)]
    def kv_reads(b, s):
        l = []
        for rd in range(2):
            l.append(f"ds_read_b64_tr_b16 {KA[b][3][2*rd:2*rd+2]}, {t3} offset:{s*5632 + rd*2816}")
        for f in range(3):
            for rd in range(2):
                l.append(f"ds_read_b64_tr_b16 {KA[b][f][2*rd:2*rd+2]}, {t1 if s < 4 else t2} offset:{(s % 4)*32*PS + rd*16*PS + f*32}")
        return l
    allr = [l for s in range(8) for l in kv_reads(s % 3, s)]
    pos = 0
    for s in range(8):
        for f in range(3):
            needr = s * 8 + 2 + 2 * (f + 1)
            lim = min(len(allr), needr + 12, (s + 2) * 8 + (2 + 2 * f if False else 0) + 8 - 8 + 0) if False else min(len(allr), needr + 12)
            lim = min(lim, (s + 3) * 8)
            while pos < lim: a(allr[pos]); pos += 1
            a(f"s_waitcnt lgkmcnt({pos - needr})")
            a(f"v_mfma_f32_16x16x32_bf16 {KD[f]}, {KA[s%3][f]}, {KA[s%3][3]}, {'0' if s == 0 else KD[f]}")
    stamp(a, 15)
    a(f"s_add_u32 {sT0}, {sHB}, {sRG}")
    a(f"s_lshl_b32 {sT0}, {sT0}, 1")
    a(f"s_add_u32 {sT0}, {sT0}, {sHI}")
    a(f"s_mul_i32 {sT0}, {sT0}, 3072")
    a(f"s_add_u32 {sT0}, {sT0}, {KVACC}")
    if OPT['kh'] == 1: k_hint()
    def k_go(n):
        a(f"s_cmp_lg_u32 {sWV}, 7"); a("s_cbranch_scc1 KH2")
        a(f"s_waitcnt vmcnt({n})")
        a("v_cmp_eq_u32 vcc, 7, v29"); a(f"s_add_u32 s4, {sFLAG}, {GOD}"); a("s_and_b64 exec, vcc, 1")
        a(f"buffer_store_dword v29, v11, {rWS}, s4 offen sc1"); a("s_mov_b64 exec, -1")
        a.label('KH2')
    if OPT['kh'] == 0: k_go(0)
    a(f"v_lshlrev_b32 {t2}, 2, {lane}")
    a(f"v_cmp_eq_u32 vcc, 15, {vl15}")
    for f in range(3):
        for j in range(4): a(f"v_cndmask_b32 {KD[f][j]}, {KD[f][j]}, 1.0, vcc")
    for f in range(3):
        if f == 2: a("s_mov_b32 exec_hi, 0")
        for j in range(4):
            a(f"buffer_atomic_add_f32 {KD[f][j]}, {t2}, {rWS}, {sT0} offen offset:{f*1024 + j*256} {OPT['atf']}")
    a("s_mov_b32 exec_hi, -1")
    if OPT['kh'] == 1: k_go(12)
    a("s_waitcnt vmcnt(12)")
    flag_store(-1)
    a(f"s_mov_b32 {sPF}, 4")
    a("s_branch P2")

    a.label('R_SPARE')
    sSP, sU, sSO, sST = S(77), S(78), S(79), S(80)
    va = Alloc('v', 176, 250)
    vf = [va() for _ in range(5)]; vat = [va() for _ in range(5)]
    rf = [va() for _ in range(5)]; rat = [va(), va()]
    vst = va(); vst4 = va()
    FR = [[va(4) for _ in range(5)] for b in range(2)]
    Z4 = va(4)
    NT = OPT['spnt']
    if T2:
        for b0 in eval(OPT['t2b']):
            for l in t2_all(b0): a(l)
    srd(a, rA, pWD, 1728 * 1280)
    srd(a, rB, pWO, 640 * 1280)
    a(f"s_lshr_b32 {sSP}, {sT0}, 1")
    a(f"s_lshl_b32 {sSP}, {sSP}, 3")
    a(f"s_add_u32 {sSP}, {sSP}, {sRB}")
    a(f"s_lshl_b32 {sT0}, {sWV}, 2")
    a(f"s_mul_i32 {sT1}, {sWV}, 20")
    for n in range(5):
        a(f"v_add_u32 {t0}, {64*n}, {lane}")
        a(f"v_mul_u32_u24 {t1}, 205, {t0}")
        a(f"v_lshrrev_b32 {t1}, 14, {t1}")
        a(f"v_mul_u32_u24 {t2}, 80, {t1}")
        a(f"v_sub_u32 {t2}, {t0}, {t2}")
        a(f"v_add_u32 {t1}, {sT0}, {t1}")
        a(f"v_and_b32 {t3}, 7, {t1}")
        a(f"v_lshlrev_b32 {t3}, 1, {t3}")
        a(f"v_xor_b32 {t2}, {t2}, {t3}")
        a(f"v_mul_u32_u24 {t1}, 1280, {t1}")
        a(f"v_lshl_add_u32 {vf[n]}, {t2}, 4, {t1}")
        if n % 4: a(f"v_subrev_u32 {vf[n]}, {1024*(n%4)}, {vf[n]}")
    a(f"s_mul_i32 {sM}, {sWV}, 5120")
    def u_dma(buf, typ):
        if typ == 'F':
            a(f"s_mul_i32 {sSO}, {sU}, 40960")
            vv, rr = vf, rA
        else:
            a(f"s_sub_u32 {sT2}, {sU}, 54")
            a(f"s_mul_i32 {sT3}, {sT2}, 52")
            a(f"s_lshr_b32 {sT3}, {sT3}, 8")
            a(f"s_mul_i32 {sSO}, {sT3}, {160*1280 - 5*256}")
            a(f"s_lshl_b32 {sT2}, {sT2}, 8")
            a(f"s_add_u32 {sSO}, {sSO}, {sT2}")
            vv, rr = vat, rB
        a(f"s_add_u32 m0, {sM}, {buf*40960}")
        for n in range(4):
            a(f"buffer_load_dwordx4 {vv[n]}, {rr}, {sSO} offen offset:{n*1024} {NT} lds")
        a(f"s_add_u32 m0, {sM}, {buf*40960 + 4096}")
        a(f"buffer_load_dwordx4 {vv[4]}, {rr}, {sSO} offen {NT} lds")
    def dyn(it, fn):
        if it == 4:
            a(f"s_add_u32 {sU}, {sSP}, 64"); a(f"s_min_u32 {sU}, {sU}, 73"); fn('A'); return
        a(f"s_add_u32 {sU}, {sSP}, {16*it}")
        if it <= 2: fn('F')
        else:
            l1, l2 = a.newlabel('SP'), a.newlabel('SP')
            a(f"s_cmp_ge_u32 {sU}, 54"); a(f"s_cbranch_scc1 {l1}")
            fn('F'); a(f"s_branch {l2}"); a.label(l1); fn('A'); a.label(l2)
    for it in range(3): dyn(it, lambda typ: u_dma(it, typ))
    a(f"v_lshlrev_b32 {t0}, 4, {tid}")
    for i in range(4): a(f"v_mov_b32 {Z4[i]}, 0")
    a(f"s_mul_i32 {sT2}, {sSP}, 13568")
    a(f"s_add_u32 {sT2}, {sT2}, {KVACC}")
    a(f"buffer_store_dwordx4 {Z4}, {t0}, {rWS}, {sT2} offen {ST}")
    a(f"s_add_u32 {sT2}, {sT2}, {13568 - 8192}")
    a(f"buffer_store_dwordx4 {Z4}, {t0}, {rWS}, {sT2} offen {ST}")
    for n in range(5):
        a(f"v_add_u32 {t1}, {4*n}, {vqd}")
        a(f"v_add_u32 {t1}, {sT1}, {t1}")
        a(f"v_and_b32 {t3}, 7, {t1}")
        a(f"v_lshlrev_b32 {t3}, 1, {t3}")
        a(f"v_xor_b32 {t2}, {vl15}, {t3}")
        a(f"v_mul_u32_u24 {t1}, 1280, {t1}")
        a(f"v_lshl_add_u32 {vat[n]}, {t2}, 4, {t1}")
        if n % 4: a(f"v_subrev_u32 {vat[n]}, {1024*(n%4)}, {vat[n]}")
    a(f"v_lshl_add_u32 {t0}, {vqd}, 2, {vr}")
    a(f"v_and_b32 {t1}, 7, {t0}")
    a(f"v_lshlrev_b32 {t1}, 1, {t1}")
    a(f"v_mul_u32_u24 {t0}, 1280, {t0}")
    a(f"v_and_b32 {t2}, 1, {vc}")
    a(f"v_lshl_add_u32 {t0}, {t2}, 3, {t0}")
    a(f"v_lshrrev_b32 {t3}, 1, {vc}")
    a(f"s_mul_i32 {sT0}, {sWV}, 10")
    a(f"v_add_u32 {t4}, {sT0}, {t3}")
    for j in range(5):
        a(f"v_add_u32 {rf[j]}, {2*j}, {t4}")
        a(f"v_xor_b32 {rf[j]}, {rf[j]}, {t1}")
        a(f"v_lshl_add_u32 {rf[j]}, {rf[j]}, 4, {t0}")
    a(f"v_mul_u32_u24 {t0}, 20, {vqd}")
    a(f"v_add_u32 {t0}, {t0}, {vr}")
    a(f"v_lshlrev_b32 {t0}, 8, {t0}")
    a(f"v_lshl_add_u32 {t0}, {t2}, 3, {t0}")
    a(f"s_lshl_b32 {sT0}, {sWV}, 1")
    a(f"v_add_u32 {t4}, {sT0}, {t3}")
    a(f"v_xor_b32 {t4}, {t4}, {t1}")
    a(f"v_lshl_add_u32 {rat[0]}, {t4}, 4, {t0}")
    a(f"v_xor_b32 {rat[1]}, 128, {rat[0]}")
    a(f"v_lshlrev_b32 {vst}, 4, {lane}")
    a(f"v_add_u32 {vst4}, 4096, {vst}")
    def u_proc(buf, typ, F):
        if typ == 'F':
            for j in range(5):
                a(f"v_add_u32 {t0}, {buf*40960}, {rf[j]}")
                for rd in range(2):
                    a(f"ds_read_b64_tr_b16 {F[j][2*rd:2*rd+2]}, {t0} offset:{rd*20480}")
            a(f"s_mul_i32 {sST}, {sWV}, 74")
            a(f"s_add_u32 {sST}, {sST}, {sU}")
            a(f"s_mul_i32 {sST}, {sST}, 5120")
            a(f"s_add_u32 {sST}, {sST}, {BP}")
            a("s_waitcnt lgkmcnt(0)")
            for j in range(5):
                if j < 4: a(f"buffer_store_dwordx4 {F[j]}, {vst}, {rWS}, {sST} offen offset:{j*1024} {ST}")
                else: a(f"buffer_store_dwordx4 {F[j]}, {vst4}, {rWS}, {sST} offen {ST}")
        else:
            bases = [(0, 4), (8, 12), (16, 96), (80, 84), (88, 92)]
            a(f"v_add_u32 {t0}, {buf*40960}, {rat[0]}")
            a(f"v_add_u32 {t1}, {buf*40960}, {rat[1]}")
            a(f"v_lshrrev_b32 {t4}, 1, {vqd}"); a(f"v_mul_u32_u24 {t4}, {40*256}, {t4}"); a(f"v_add_u32 {t4}, {t4}, {t0}")
            for s5 in range(5):
                for rd in range(2):
                    b = bases[s5][rd]
                    if s5 == 2: a(f"ds_read_b64_tr_b16 {F[s5][2*rd:2*rd+2]}, {t4} offset:{(16 + 40*rd)*256}")
                    else: a(f"ds_read_b64_tr_b16 {F[s5][2*rd:2*rd+2]}, {t1 if b % 8 else t0} offset:{b*256}")
            a(f"s_sub_u32 {sT2}, {sU}, 54")
            a(f"s_mul_i32 {sT3}, {sT2}, 52")
            a(f"s_lshr_b32 {sT3}, {sT3}, 8")
            a(f"s_mul_i32 {sT0}, {sT3}, 5")
            a(f"s_sub_u32 {sT2}, {sT2}, {sT0}")
            a(f"s_lshl_b32 {sT2}, {sT2}, 3")
            a(f"s_add_u32 {sT2}, {sT2}, {sWV}")
            a(f"s_mul_i32 {sT1}, {sT2}, 52")
            a(f"s_lshr_b32 {sT1}, {sT1}, 8")
            a(f"s_mul_i32 {sST}, {sT1}, 5")
            a(f"s_sub_u32 {sT2}, {sT2}, {sST}")
            a(f"s_mul_i32 {sST}, {sT1}, 74")
            a(f"s_add_u32 {sST}, {sST}, {sT0}")
            a(f"s_add_u32 {sST}, {sST}, 54")
            a(f"s_mul_i32 {sST}, {sST}, 5120")
            a(f"s_lshl_b32 {sT2}, {sT2}, 10")
            a(f"s_add_u32 {sST}, {sST}, {sT2}")
            a(f"s_add_u32 {sST}, {sST}, {BP}")
            a("s_waitcnt lgkmcnt(0)")
            for s5 in range(5):
                a(f"buffer_store_dwordx4 {F[s5]}, {vst}, {rWS}, {sST} offen {ST}")
                if s5 < 4: a(f"s_add_u32 {sST}, {sST}, 5120")
    vm = VmTrack()
    for t in ['D0']*5 + ['D1']*5 + ['D2']*5 + ['Z']*2: vm.issue(t)
    def sp_signal(k):
        lsk = a.newlabel('SPD')
        a(f"s_cmp_lg_u32 {sWV}, 7"); a(f"s_cbranch_scc1 {lsk}")
        a(f"v_mov_b32 {t2}, 0"); a(f"v_mov_b32 {t3}, 1")
        a("s_mov_b64 exec, 1")
        a(f"buffer_atomic_add {t3}, {t2}, {rDBG}, 0 offen offset:{4*k} sc0 sc1")
        a("s_waitcnt vmcnt(0)")
        a(f"v_cmp_eq_u32 vcc, 15, {t3}")
        a("s_and_b64 exec, exec, vcc")
        a(f"buffer_store_dword {t3}, {t2}, {rDBG}, 0 offen offset:{128 + 4*k} sc1")
        a("s_mov_b64 exec, -1")
        a.label(lsk)
    for it in range(5):
        n = vm.wait_for(lambda t: t == f'D{it}' or (it == 3 and t == 'S2') or (it == 2 and t == 'S1'))
        a(f"s_waitcnt vmcnt({n})")
        a("s_barrier")
        if it == 2: sp_signal(0); stamp(a, 1)
        if it == 3: sp_signal(2)
        dyn(it, lambda typ: u_proc(it % 3, typ, FR[it & 1]))
        for _ in range(5): vm.issue(f'S{it}')
        if it == OPT['t2si'] and T2 and OPT['t2s']:
            a(f"s_and_b32 s4, {sWV}, 1"); a(f"s_lshl1_add_u32 s4, {sSP}, s4"); a("s_lshl_b32 s4, s4, 6"); a("s_mul_i32 s4, s4, s5")
            a(f"s_mul_i32 s6, {sBK}, {OPT['t2s']}"); a("s_add_u32 s4, s4, s6")
            a(f"v_add_u32 v21, s4, {vt1}")
            a(f"buffer_load_dword {tdum}, v21, {rTT}, 0 offen"); vm.issue('T')
        if it in (1, 2):
            dyn(it + 2, lambda typ: u_dma(it - 1, typ))
            for _ in range(5): vm.issue(f'D{it+2}')
    a("s_waitcnt vmcnt(0)")
    a("s_barrier")
    sp_signal(1)
    stamp(a, 2)
    GW = [V(72 + 4*i, 4) for i in range(5)]
    GX = [[V(96 + (g*5 + i)*4, 4) for i in range(5)] for g in range(4)]
    GA = [V(92 + g) for g in range(4)]
    srd(a, rW, pGW, 1280)
    a(f"v_lshlrev_b32 {t0}, 4, {vl15}")
    for i in range(5): a(f"buffer_load_dwordx4 {GW[i]}, {t0}, {rW}, 0 offen offset:{i*256}")
    a(f"v_mul_u32_u24 {t1}, 1280, {vqd}")
    a(f"v_add_u32 {t0}, {t0}, {t1}")
    a(f"s_lshl_b32 {sT3}, {sSP}, 3")
    a(f"s_add_u32 {sT3}, {sT3}, {sWV}")
    a(f"s_mul_i32 {sT2}, {sT3}, {16*1280}")
    for g in range(4):
        for i in range(5): a(f"buffer_load_dwordx4 {GX[g][i]}, {t0}, {rX}, {sT2} offen offset:{i*256}")
        if g < 3: a(f"s_add_u32 {sT2}, {sT2}, {4*1280}")
    for g in range(4): a(f"v_mov_b32 {GA[g]}, 0")
    init_poll(a, t1, 128)
    for i in range(5):
        for k in range(4):
            for g in range(4): a(f"v_dot2c_f32_bf16 {GA[g]}, {GX[g][i][k]}, {GW[i][k]}")
    for sh in (8, 4, 2, 1):
        for g in range(4): a(f"v_add_f32_dpp {GA[g]}, {GA[g]}, {GA[g]} row_ror:{sh} row_mask:0xf bank_mask:0xf")
    for g in range(4): a(f"v_mul_f32 {GA[g]}, {LOG2E:#x}, {GA[g]}")
    for g in range(4): a(f"v_min_f32 {GA[g]}, 0x42a00000, {GA[g]}")
    for g in range(4): a(f"v_exp_f32 {GA[g]}, {GA[g]}")
    a(f"v_mov_b32 {t2}, {GA[0]}")
    for g in range(1, 4):
        a(f"v_cmp_eq_u32 vcc, {g}, {vl15}"); a(f"v_cndmask_b32 {t2}, {t2}, {GA[g]}, vcc")
    a(f"v_lshl_add_u32 {t0}, {vl15}, 2, {vqd}")
    a(f"v_lshlrev_b32 {t3}, 2, {t0}")
    a(f"s_lshl_b32 {sT2}, {sT3}, 6"); a(f"s_add_u32 {sT2}, {sT2}, {GOFF}")
    a("s_mov_b32 exec_lo, 0x000f000f"); a("s_mov_b32 exec_hi, 0x000f000f")
    a(f"buffer_store_dword {t2}, {t3}, {rWS}, {sT2} offen {ST}")
    a("s_mov_b64 exec, -1")
    a(f"s_lshr_b32 {sFLAG}, {sT3}, 2"); a(f"s_lshl_b32 {sFLAG}, {sFLAG}, 7"); a(f"s_add_u32 {sFLAG}, {sFLAG}, {FH + 12}")
    flag_store(3)
    a(f"v_mov_b32 {vFQ}, 0")

    vm = VmTrack()
    a(f"s_mov_b32 {sPF}, 7")
    a.label('P2')
    stamp(a, 3)
    a(f"s_bitcmp0_b32 {sPF}, 0"); a("s_cbranch_scc1 P2_E1")
    for l in p2_setup() + poison(V(208, 4)): a(l)
    a.label('P2_E1')
    vG = V(16, 4); vz = V(11); ka = V(12); kw = V(13); vbl = V(15); vcn = V(14)
    ACC = [[V(72 + (tt * 5 + j) * 4, 4) for j in range(5)] for tt in range(4)]
    ARl = [V(152 + 4 * i, 4) for i in range(14)] + [V(248, 4), V(24, 4)]
    AR = [ARl[4*b:4*b+4] for b in range(4)]
    sFHo = S(78)
    rOUT = rX
    INP2[0] = True
    if OPT['noa'] == 1 or OPT['nob']: srd(a, rA, pWS, 0)
    a(f"v_mov_b32 {vz}, 0")
    a(f"v_mov_b32 {vcn}, {CNT}")
    a(f"v_add_u32 {vbl}, {sLC}, {vo}")
    vbl2 = V(23)
    a(f"v_add_u32 {vbl2}, {3*20480}, {vbl}")
    def lrow(row, j):
        return (vbl, row*20480 + j*1024) if row < 3 else (vbl2, (row-3)*20480 + j*1024)
    CG_ = {4:3, 5:4, 6:0, 7:1, 8:2} if OPT['gf'] & 2 else {4:0, 5:1, 6:2, 7:3, 8:4}
    def a_loads(i, tag, vts=None, r=None):
        b = i % 4; r = r or rWS
        if OPT['noa'] == 1: r = rA
        if OPT['noa'] == 3: return []
        if OPT['noa'] == 2: return [f"s_mov_b32 {sT0}, {sAo}"] + [(f"buffer_load_dwordx4 {AR[b][tt]}, {vo}, {r}, {sT0} offen offset:{tt*1024} {LD}", vm.issue(tag))[0] for tt in range(4)]
        l = [f"s_add_u32 {sT0}, {sAo}, {((i*16384 if i < 4 else CA0 + CG_[i]*16384) if vts else GRP[i]*16384)}"]
        for tt in range(4):
            if vts: l.append(f"buffer_load_dwordx4 {AR[b][tt]}, {vts[tt]}, {r}, {sT0} offen {LD}")
            else: l.append(f"buffer_load_dwordx4 {AR[b][tt]}, {vo}, {r}, {sT0} offen offset:{tt*1024} {LD}")
            vm.issue(tag)
        return l
    def b_fromlds(i, row):
        return ["ds_read_b128 %s, %s offset:%d" % ((BR[i % 4][j],) + lrow(row, j)) for j in range(5)]
    def mm(b, zero, side=[], every=2):
        side = list(side)
        for j in range(5):
            for tt in range(4):
                d = ACC[tt][j]
                a(f"v_mfma_f32_16x16x32_bf16 {d}, {BR[b][j]}, {AR[b][tt]}, {'0' if tt in zero else d}")
                while side and side[0].startswith('s_'): a(side.pop(0))
                if side and tt % every == every - 1: a(side.pop(0))
        for l in side: a(l)
    def g_load():
        a(f"s_lshl_b32 {sT0}, {sR6}, 8"); a(f"s_add_u32 {sT0}, {sT0}, {GOFF}")
        a(f"v_lshlrev_b32 {t0}, 4, {vl15}")
        a(f"buffer_load_dwordx4 {vG}, {t0}, {rWS}, {sT0} offen {LD}")
    def lds_signal(off):
        a(f"v_mov_b32 {t1}, 1")
        a("s_waitcnt lgkmcnt(0)")
        a("s_mov_b64 exec, 1")
        a(f"ds_add_u32 {vcn}, {t1} offset:{off}")
        a("s_mov_b64 exec, -1")
    def lds_wait(off, n):
        L = a.newlabel('LW')
        a.label(L)
        a(f"ds_read_b32 {t1}, {vcn} offset:{off}")
        a("s_waitcnt lgkmcnt(0)")
        a(f"v_readfirstlane_b32 {sT0}, {t1}")
        a(f"s_cmp_ge_u32 {sT0}, {n}")
        a(f"s_cbranch_scc1 {L}d")
        a("s_sleep 1")
        a(f"s_branch {L}")
        a.label(L + 'd')
    vAT = V(29); vFG = V(28)
    PB = V(176, 12); PU = V(152, 20)
    def pq_loads():
        a(f"s_lshl3_add_u32 {sT0}, {sR6}, {sCG}")
        a(f"s_mul_i32 {sT0}, {sT0}, 10240"); a(f"s_add_u32 {sT0}, {sT0}, {PQ}")
        a(f"s_lshl_b32 {sT1}, {sRG}, 11"); a(f"s_add_u32 {sT1}, {sT1}, {sT0}")
        for h in range(2): a(f"buffer_load_dwordx4 {PB[4*h:4*h+4]}, {vo}, {rWS}, {sT1} offen offset:{h*1024} {LD}")
        a(f"s_lshr_b32 {sT1}, {sRG}, 1"); a(f"s_lshl_b32 {sT1}, {sT1}, 10"); a(f"s_add_u32 {sT0}, {sT0}, {sT1}")
        a(f"s_and_b32 {sT1}, {sRG}, 1"); a(f"s_lshl3_add_u32 {sT0}, {sT1}, {sT0}"); a(f"s_add_u32 {sT0}, {sT0}, 8192")
        a(f"buffer_load_dwordx2 {PB[8:10]}, {vo}, {rWS}, {sT0} offen {LD}")
    sQF = S(83)
    a(f"v_readfirstlane_b32 {sQF}, {vFQ}")
    a(f"s_cmp_eq_u32 {sHI}, 1"); a(f"s_cselect_b32 {sQF}, 0, {sQF}")
    a(f"s_cmp_eq_u32 {sQF}, 0"); a("s_cbranch_scc1 P2_NQ")
    pq_loads()
    a.label('P2_NQ')
    a(f"buffer_load_dword {vS2}, {vz}, {rDBG}, 0 offen offset:132 sc1")
    a(f"v_mov_b32 {vAT}, 1"); a(f"v_mov_b32 {t1}, 1")
    B3 = OPT['b23'] == 3
    if B3:
        a(f"s_cmp_lg_u32 {sPF}, 0"); a("s_cbranch_scc1 P2_D0")
        for l in b_reg(vm, 2, 'B'): a(l)
        a("s_waitcnt vmcnt(5) lgkmcnt(0)")
        a("s_branch P2_D1")
        a.label('P2_D0')
    a("s_waitcnt vmcnt(0) lgkmcnt(0)")
    if B3: a.label('P2_D1')
    a("s_mov_b64 exec, 1")
    a(f"ds_add_rtn_u32 {t1}, {vcn}, {t1} offset:16")
    a(f"s_cmp_eq_u32 {sPF}, 4"); a("s_cbranch_scc1 P2_A2")
    a(f"buffer_atomic_add {vAT}, {vz}, {rWS}, {sFLAG} offen sc0 sc1")
    a.label('P2_A2')
    a("s_mov_b64 exec, -1")
    def go_logic(n, st=True):
        lb = a.newlabel('GO')
        a(f"s_waitcnt vmcnt({n})")
        a(f"v_readfirstlane_b32 {sP[0]}, {vAT}")
        a(f"s_add_u32 {sP[1]}, {sFLAG}, {GOD}")
        a(f"s_cmp_lg_u32 {sP[0]}, {sNEED}")
        a(f"s_cbranch_scc1 {lb}")
        a("s_mov_b64 exec, 1")
        a(f"buffer_store_dword {vAT}, {vz}, {rWS}, {sP[1]} offen sc1")
        a("s_mov_b64 exec, -1")
        a.label(lb)
        if st: stamp(a, 4)
    a(f"s_cmp_eq_u32 {sHI}, 0")
    a("s_cbranch_scc1 P2_C")
    if B3:
        a(f"s_cmp_lg_u32 {sPF}, 0"); a("s_cbranch_scc1 P2_D2")
        for l in b_reg(vm, 3, 'B'): a(l)
        go_logic(5)
        a("s_branch P2_D3")
        a.label('P2_D2')
    go_logic(0)
    if B3: a.label('P2_D3')
    a("s_setprio 0")
    init_check(vS2, 132)
    if OPT['bt']:
        a("s_lshr_b32 s4, s2, 6"); a(f"s_lshl2_add_u32 s4, s4, {sRG}"); a(f"s_mul_i32 s4, s4, {65*128}")
        a(f"s_mul_i32 s5, {sCG}, {74*5120}"); a("s_add_u32 s4, s4, s5"); a(f"s_add_u32 s4, s4, {BP + 48*5120}")
        a(f"v_lshlrev_b32 {t2}, 7, {lane}")
        a(f"buffer_load_dword {t3}, {t2}, {rWS}, s4 offen sc1")
    a(f"s_cmp_lt_u32 {sRG}, 2"); a(f"s_cselect_b32 {rB[2]}, {WSZ}, 0")
    a(f"s_cmp_lt_u32 {sPF}, 6"); a("s_cbranch_scc1 P2_E2")
    for b in range(4):
        for l in b_reg(vm, b, 'B'): a(l)
    lds_wait(16, 8)
    for k in range(4):
        for l in b_row(vm, sBg, GRP[GL[k]], LR[k]): a(l)
    a.label('P2_E2')
    if OPT['b23'] in (1, 2):
        a(f"s_cmp_lg_u32 {sPF}, 0"); a("s_cbranch_scc1 P2_E4")
        for l in (b_reg(vm, 2, 'B') if OPT['b23'] == 1 else []) + b_reg(vm, 3, 'B'): a(l)
        a.label('P2_E4')
    lds_wait(16, 8)
    for k in range(3):
        for l in b_row(vm, sBg, k, CR[k], None, 54*5120): a(l)
    a(f"s_cmp_eq_u32 {sPF}, 4"); a("s_cbranch_scc1 P2_GK")
    NG = 10
    for variant in (0, 1):
        GLv = GL if variant == 0 else []
        if variant == 1: a.label('P2_GK')
        if OPT['at']:
            a(f"s_mul_i32 {sT1}, {sR6}, {74*4096}"); a(f"s_lshl2_add_u32 {sT2}, {sCG}, {sRG}"); a(f"s_mul_i32 {sT2}, {sT2}, {54*128}"); a(f"s_add_u32 {sT1}, {sT1}, {sT2}")
            a(f"v_lshlrev_b32 {t2}, 7, {lane}")
        if OPT['at'] == 3: vpoll(a, vz, sFHo, 0, t1, f"s_mov_b32 exec_hi, 0x3fffff\nbuffer_load_dword {t3}, {t2}, {rWS}, {sT1} offen sc1\ns_mov_b32 exec_hi, -1", OPT['tsl'])
        elif OPT['noh']: a("s_waitcnt vmcnt(0)")
        else: vpoll(a, vz, sFHo, 0, t1)
        lds_signal(20)
        a(f"s_setprio {OPT['gprio']}")
        vm = VmTrack()
        stamp(a, 5)
        if OPT['at'] == 1:
            a("s_mov_b32 exec_hi, 0x3fffff"); a(f"buffer_load_dword {t3}, {t2}, {rWS}, {sT1} offen sc1"); a("s_mov_b32 exec_hi, -1")
        if OPT['stamp'] == 4: a("s_memtime s[92:93]")
        for s in range(4):
            for l in a_loads(s, ('A', s)): a(l)
            if OPT['at'] == 2 and s == 0:
                a("s_mov_b32 exec_hi, 0x3fffff"); a(f"buffer_load_dword {t3}, {t2}, {rWS}, {sT1} offen sc1"); a("s_mov_b32 exec_hi, -1"); vm.issue('T')
        for s in range(NG - 1):
            n = vm.wait_for(lambda t: t in (('A', s), ('B', s)))
            a(f"s_waitcnt vmcnt({n})" + (f" lgkmcnt({5*sum(1 for x in (s+1, s+2) if x in GLv)})" if s in GLv else ""))
            if s == 0: stamp(a, 6)
            if OPT['stamp'] == 4:
                a("s_waitcnt lgkmcnt(0)")
                a(f"v_writelane_b32 v255, s92, {40 + s}")
                a("s_memtime s[92:93]")
            side = []
            if OPT['fair'] and s in eval(OPT['fg']): a(f"s_setprio {eval(OPT['fg'])[s]}")
            if 1 <= s and s + 3 < NG:
                rr = rB if GRP[s + 3] == 13 else None
                side = a_loads(s + 3, ('A', s + 3), None, rr) + (b_fromlds(s + 3, LR[GLv.index(s + 3)]) if s + 3 in GLv else b_reg(vm, s + 3, ('B', s + 3), rr, GRP[s + 3]))
            mm(s % 4, range(4) if s == 0 else [], side)
        if variant == 0: a("s_branch P2_GL")
    a.label('P2_GL')
    a("s_waitcnt vmcnt(0) lgkmcnt(0)")
    if OPT['stamp'] == 4:
        a(f"v_writelane_b32 v255, s92, {49}"); a("s_memtime s[92:93]"); a("s_waitcnt lgkmcnt(0)"); a(f"v_writelane_b32 v255, s92, {50}")
    for tt in range(4):
        for j in range(5):
            d = ACC[tt][j]
            a(f"v_mfma_f32_16x16x32_bf16 {d}, {BR[1][j]}, {AR[1][tt]}, {d}")
            if tt >= 2: a("ds_write_b128 %s, %s offset:%d" % (lrow(tt, j)[0], ACC[tt-2][j], lrow(tt, j)[1]))
    for tt in (2, 3):
        for j in range(5): a("ds_write_b128 %s, %s offset:%d" % (lrow(tt+2, j)[0], ACC[tt][j], lrow(tt+2, j)[1]))
    lds_signal(4)
    stamp(a, 10)
    a("s_branch P2_FIN")
    a.label('P2_C')
    P = V(72, 20)
    a("s_setprio 3")
    if OPT['noc']:
        go_logic(0)
        srd(a, rOUT, pOUT, 2048 * 1280)
        for i in range(4):
            a(f"s_add_u32 {sT0}, {sRG}, {i}"); a(f"s_and_b32 {sT0}, {sT0}, 3"); a(f"s_lshl_b32 {sT0}, {sT0}, 10")
            a(f"v_add_u32 {V(16+i)}, {sT0}, {vo}")
        init_check(vS2, 132)
        a("s_mov_b32 s81, 0"); a(f"s_cmp_eq_u32 {sPF}, 0"); a("s_cselect_b32 s81, 2, s81"); a(f"s_cmp_eq_u32 {sPF}, 4"); a("s_cselect_b32 s81, 4, s81")
        a("s_branch P2_NOC")
    a(f"s_cmp_lg_u32 {sQF}, 0"); a("s_cbranch_scc1 P2_C1")
    go_logic(0)
    a(f"s_mov_b32 {sNEED}, -1")
    vpoll(a, vz, sFHo, 4, t1)
    pq_loads()
    a("s_waitcnt vmcnt(0)")
    a.label('P2_C1')
    a(f"buffer_load_dword {vFG}, {vz}, {rWS}, {sFHo} offen offset:12 sc1")
    GV = [V(22), V(252), V(10), V(8)]
    GLd = [t3, V(188), V(189), V(190)]
    srd(a, rOUT, pOUT, 2048 * 1280)
    a(f"v_lshl_add_u32 {kw}, {vr}, 2, {vqd}")
    a(f"v_lshlrev_b32 {kw}, 6, {kw}")
    a(f"v_lshl_add_u32 {kw}, {vc}, 3, {kw}")
    a(f"s_mul_i32 {sT0}, {sRG}, 3088"); a(f"s_add_u32 {sT0}, {sT0}, {KVB}")
    a(f"v_add_u32 {kw}, {sT0}, {kw}")
    a(f"v_mul_u32_u24 {t4}, 3088, {vqd}")
    a(f"v_lshl_add_u32 {t4}, {vr}, 6, {t4}")
    a(f"v_add_u32 {t4}, {KVB}, {t4}")
    a(f"v_mov_b32 {ka}, {ZERO + 8}")
    a(f"v_cmp_eq_u32 vcc, {vc}, {vqd}")
    a(f"v_cndmask_b32 {ka}, {ka}, {t4}, vcc")
    VT = [V(16), V(17), V(18), V(19)]
    for i in range(4):
        a(f"s_add_u32 {sT0}, {sRG}, {i}"); a(f"s_and_b32 {sT0}, {sT0}, 3"); a(f"s_lshl_b32 {sT0}, {sT0}, 10")
        a(f"v_add_u32 {VT[i]}, {sT0}, {vo}")
    for i in range(10):
        a(f"v_lshlrev_b32 {PU[2*i]}, 16, {PB[i]}")
        a(f"v_and_b32 {PU[2*i+1]}, 0xffff0000, {PB[i]}")
    gl = (f"s_waitcnt vmcnt(1)\nv_readfirstlane_b32 {sP[0]}, {vAT}\ns_add_u32 {sP[1]}, {sFLAG}, {GOD}\ns_cmp_lg_u32 {sP[0]}, {sNEED}\ns_cbranch_scc1 GOC\n"
          f"s_mov_b64 exec, 1\nbuffer_store_dword {vAT}, {vz}, {rWS}, {sP[1]} offen sc1\ns_mov_b64 exec, -1\nGOC:")
    softmax_unit(a, PU, V(92, 40), V(132, 4), V(136, 4), P, ["s_nop 0"] * 19 + [gl])
    a("s_waitcnt vmcnt(0)")
    a(f"v_cmp_ne_u32 vcc, 0, {vFG}"); a("s_nop 0"); a("s_cbranch_vccnz P2_GOK")
    vpoll(a, vz, sFHo, 12, t1)
    a.label('P2_GOK')
    a(f"v_lshlrev_b32 {t0}, 2, {vl15}")
    a(f"s_lshl2_add_u32 {sT0}, {sR6}, {sRG}")
    a(f"s_lshl_b32 {sT0}, {sT0}, 6"); a(f"s_add_u32 {sT0}, {sT0}, {GOFF}")
    a(f"buffer_load_dword {t3}, {t0}, {rWS}, {sT0} offen {LD}")
    stamp(a, 5)
    init_check(vS2, 132)
    lds_wait(16, 8)
    a(f"s_lshl_b32 {sT2}, {sCG}, 7"); a(f"s_add_u32 {sT2}, {sT2}, {FK + GOD}")
    a(f"s_lshl_b32 {sT3}, {sCG}, 2"); a(f"s_add_u32 {sT3}, {sT3}, {sRG}")
    a(f"s_mul_i32 {sT3}, {sT3}, 6144"); a(f"s_add_u32 {sT3}, {sT3}, {KVACC}")
    sNB = S(81)
    def cb(i): return b_reg(vm, i, 'B') if i < 4 else b_row(vm, sBo, i - 4, CR[i - 4], None, CB0)
    if OPT['b23']: a(f"s_cmp_eq_u32 {sPF}, 0"); a("s_cbranch_scc1 P2_K2")
    a(f"s_cmp_lt_u32 {sPF}, 6"); a("s_cbranch_scc1 P2_K4")
    for i in range(4):
        if OPT['b23'] and i == (2 if OPT['b23'] == 1 else 3): a.label('P2_K2')
        a(f"s_mov_b32 {sNB}, {i}")
        a(f"buffer_load_dword {t1}, {vz}, {rWS}, {sT2} offen sc1")
        a("s_waitcnt vmcnt(0)")
        a(f"v_cmp_ne_u32 vcc, 0, {t1}"); a("s_nop 0"); a("s_cbranch_vccnz P2_KGO")
        for l in cb(i): a(l)
    a.label('P2_K4')
    a(f"s_mov_b32 {sNB}, 4")
    if not OPT['nok']: vpoll(a, vz, sT2, 0, t1)
    else: a("s_waitcnt vmcnt(0)")
    a.label('P2_KGO')
    stamp(a, 6)
    KL = [V(92 + 4 * i, 4) for i in range(6)]
    a(f"s_mov_b32 {sTO}, 0x80000")
    a("s_mov_b32 s82, 0x41000000")
    a.label('KVRETRY')
    for i in range(6):
        if i < 4: a(f"buffer_load_dwordx4 {KL[i]}, {vo}, {rWS}, {sT3} offen offset:{i*1024} {LD}")
        else: a(f"buffer_load_dwordx4 {KL[i]}, {vo4}, {rWS}, {sT3} offen offset:{(i-4)*1024} {LD}")
    for i in range(6):
        a(f"s_waitcnt vmcnt({5-i})")
        a(f"v_cvt_pk_bf16_f32 {KL[i][0]}, {KL[i][0]}, {KL[i][1]}")
        a(f"v_cvt_pk_bf16_f32 {KL[i][1]}, {KL[i][2]}, {KL[i][3]}")
        a(f"ds_write_b64 {kw}, {KL[i][0:2]} offset:{(i % 3)*1024 + (i // 3)*32}")
    a(f"v_min3_f32 {t1}, {KL[0][3]}, {KL[1][3]}, {KL[3][3]}")
    a(f"v_min_f32 {t4}, {KL[2][3]}, {KL[5][3]}")
    a(f"v_min_f32 {t1}, {t1}, {KL[4][3]}")
    a(f"v_cmp_neq_f32 vcc, s82, {t4}")
    a(f"v_cmp_neq_f32 {sP}, s82, {t1}")
    a("s_and_b32 s4, vcc_lo, 0x00880088"); a("s_and_b32 s5, vcc_hi, 0x00880088"); a("s_or_b32 s4, s4, s5")
    a(f"s_or_b32 s5, {sP[0]}, {sP[1]}"); a("s_and_b32 s5, s5, 0x88888888"); a("s_or_b32 s4, s4, s5")
    a("s_branch KVOK" if OPT['nok'] else "s_cbranch_scc0 KVOK")
    a("s_waitcnt lgkmcnt(0)")
    a("s_sleep 4")
    a(f"s_sub_u32 {sTO}, {sTO}, 1")
    a("s_cbranch_scc0 KVRETRY")
    a.label('KVOK')
    lds_signal(0)
    lds_wait(0, 4)
    stamp(a, 16)
    AFl = [V(92 + 4 * i, 4) for i in range(15)]
    D = [V(152 + 4 * t, 4) for t in range(6)]
    O = V(176, 12)
    order = [5, 0, 1, 2, 3, 4]
    fr = [(t, s) for s in range(5) for t in order]
    def rdl(k):
        t, s_ = fr[k]
        return [f"ds_read_b64_tr_b16 {AFl[k % 15][2*r_:2*r_+2]}, {ka} offset:{s_*512 + r_*256 + (t*8 if t < 3 else t*8 + 8)}" for r_ in range(2)]
    AH = 7
    for k in range(AH):
        for l in rdl(k): a(l)
    def fin(t):
        for h in range(4): a(f"v_mul_f32 {D[t][h]}, {D[t][h]}, {t2}")
        a(f"v_cvt_pk_bf16_f32 {O[2*t]}, {D[t][0]}, {D[t][1]}")
        a(f"v_cvt_pk_bf16_f32 {O[2*t+1]}, {D[t][2]}, {D[t][3]}")
    for k in range(30):
        t, s_ = fr[k]
        a(f"s_waitcnt lgkmcnt({2 * min(AH - 1, 29 - k)})")
        a(f"v_mfma_f32_16x16x32_bf16 {D[t]}, {AFl[k % 15]}, {P[4*s_:4*s_+4]}, {'0' if s_ == 0 else D[t]}")
        if k + AH < 30:
            for l in rdl(k + AH): a(l)
        if OPT['sent'] and k == OPT['oh1']:
            a(f"s_sub_u32 {sFLAG}, {sFHo}, {GOD - 8}"); a(f"s_mov_b32 {sNEED}, 31"); a(f"v_mov_b32 {vAT}, 1")
            a("s_mov_b64 exec, 1"); a(f"buffer_atomic_add {vAT}, {vz}, {rWS}, {sFLAG} offen sc0 sc1"); a("s_mov_b64 exec, -1")
    stamp(a, 19)
    a(f"v_add_f32 {t2}, 0x358637bd, {D[5][0]}")
    a(f"v_rcp_f32 {t2}, {t2}")
    a(f"v_mul_f32 {t2}, {t2}, {t3}")
    fin(0); fin(1)
    a(f"buffer_store_dwordx4 {O[0:4]}, {vo}, {rWS}, {sO1} offen {ST}")
    fin(2); fin(3)
    a(f"buffer_store_dwordx4 {O[4:8]}, {vo4}, {rWS}, {sO1} offen {ST}")
    fin(4)
    a(f"v_mov_b32 {O[10]}, {O[8]}"); a(f"v_mov_b32 {O[11]}, {O[9]}")
    a(f"v_permlane32_swap_b32 {O[8]}, {O[10]}"); a(f"v_permlane32_swap_b32 {O[9]}, {O[11]}")
    a("s_mov_b32 exec_hi, 0")
    a(f"buffer_store_dwordx4 {O[8:12]}, {vo}, {rWS}, {sO2} offen {ST}")
    a("s_mov_b32 exec_hi, -1")
    stamp(a, 17)
    if not OPT['sent']:
        a(f"s_sub_u32 {sT2}, {sFHo}, {GOD - 8}")
        arrive(a, sT2, 31, t0, t1)
    else: go_logic(3, False)
    stamp(a, 7)
    if OPT['noc']: a.label('P2_NOC')
    for i in range(4):
        lb = a.newlabel('CB')
        a(f"s_cmp_gt_u32 {sNB}, {i}"); a(f"s_cbranch_scc1 {lb}")
        for l in cb(i): a(l)
        a.label(lb)
    XB = [V(28), V(13), V(30)]; XW = V(31); GB = V(12)
    for q in range(1, 4):
        a(f"s_sub_u32 {sT0}, {sRG}, {q}"); a(f"s_and_b32 {sT0}, {sT0}, 3"); a(f"s_mul_i32 {sT0}, {sT0}, 5120")
        a(f"s_add_u32 {sT0}, {sT0}, {CR[q-1]*20480}")
        a(f"v_add_u32 {XB[q-1]}, {sT0}, {vo}")
    a(f"v_add_u32 {XW}, {6*20480}, {vbl}")
    def crow(k, j): return (vbl, CR[k]*20480 + j*1024) if k < 2 else (XW, j*1024)
    a(f"s_add_u32 {sT0}, {sRG}, 2"); a(f"s_mul_i32 {sT0}, {sT0}, 20480"); a(f"v_add_u32 {GB}, {sT0}, {vo}")
    a(f"v_mul_u32_u24 {t0}, 1280, {vl15}")
    a(f"v_lshl_add_u32 {t0}, {vqd}, 3, {t0}")
    a(f"s_lshl_b32 {sT2}, {sR6}, 2"); a(f"s_add_u32 {sT2}, {sT2}, {sRG}"); a(f"s_mul_i32 {sT2}, {sT2}, {16*1280}")
    a(f"s_mul_i32 {sT3}, {sCG}, 160"); a(f"s_add_u32 {sT2}, {sT2}, {sT3}")
    a(f"v_add_f32 {V(22)}, 1.0, {t3}"); a(f"v_rcp_f32 {V(22)}, {V(22)}")
    a(f"v_mul_u32_u24 {t3}, 1280, {vl15}"); a(f"v_and_b32 {t4}, 1, {vqd}"); a(f"v_lshl_add_u32 {t3}, {t4}, 5, {t3}")
    a(f"v_lshrrev_b32 {t4}, 1, {vqd}"); a(f"v_lshl_add_u32 {t3}, {t4}, 4, {t3}")
    lds_wait(20, 4)
    a(f"s_setprio {OPT['cprio']}")
    if OPT['stamp'] == 4: a("s_memtime s[92:93]")
    vm = VmTrack()
    for s in range(4):
        for l in a_loads(s, ('A', s), VT): a(l)
    GT = [BR[1], BR[2], BR[3], AR[1] + [AR[2][0]]]
    OC = OPT['oc']
    for s in range(9):
        n = vm.wait_for(lambda t: t in (('A', s), ('B', s)) or (s == OC and t == 'of'))
        if s == 8:
            lds_wait(4, 4)
            stamp(a, 8)
            for w in range(2):
                for j in range(5): a(f"ds_read_b128 {GT[w][j]}, {GB} offset:{w*5120 + j*1024}")
        a(f"s_waitcnt vmcnt({n})" + (" lgkmcnt(0)" if s == (6 if OPT['gf'] & 2 else 4) else ""))
        if OPT['stamp'] == 4:
            a("s_waitcnt lgkmcnt(0)")
            a(f"v_writelane_b32 v255, s92, {40 + s}")
            a("s_memtime s[92:93]")
        if s == OC:
            stamp(a, 18)
            a(f"v_cmp_ne_u32 vcc, 0, {t2}"); a("s_nop 0"); a("s_cbranch_vccnz P2_OOK")
            if not OPT['noc']: vpoll(a, vz, sFHo, 8, t2)
            a.label('P2_OOK')
            a(f"s_mov_b32 {sTO}, 0x40000")
            stamp(a, 9)
        if OPT['sent'] and s >= 4:
            a.label(f'VER{s}')
            regs = [AR[s % 4][tt][k] for tt in range(4) for k in range(4)]
            a(f"v_max3_u32 {t4}, {regs[0]}, {regs[1]}, {regs[2]}")
            a(f"v_max3_u32 {t1}, {regs[3]}, {regs[4]}, {regs[5]}")
            for k in (6, 10):
                a(f"v_max3_u32 {t4}, {t4}, {regs[k]}, {regs[k+1]}"); a(f"v_max3_u32 {t1}, {t1}, {regs[k+2]}, {regs[k+3]}")
            a(f"v_max3_u32 {t4}, {t4}, {regs[14]}, {regs[15]}")
            a(f"v_max_u32 {t4}, {t4}, {t1}")
            a(f"v_cmp_eq_u32 vcc, -1, {t4}")
            a("s_nop 0")
            a(f"s_cbranch_vccnz RET{s}")
            a.label(f'VOK{s}')
        side = []
        if OPT['fair'] and s in eval(OPT['fc']): a(f"s_setprio {eval(OPT['fc'])[s]}")
        if s == OC - 1:
            side.append(f"buffer_load_dword {t2}, {vz}, {rWS}, {sFHo} offen offset:8 sc1"); vm.issue('of')
        if s == OC:
            for q in range(4, s + 4): side += a_loads(q, ('A', q), VT)
        elif s > OC and s + 3 < 9: side += a_loads(s + 3, ('A', s + 3), VT)
        if 1 <= s <= 5:
            g_ = CG_[s + 3]
            if g_ < 3: side += ["ds_read_b128 %s, %s offset:%d" % ((BR[(s+3)%4][j],) + crow(g_, j)) for j in range(5)]
            else: side += b_reg(vm, s + 3, ('B', s + 3), None, g_, CB0)
        if s < 8: mm(s % 4, range(4) if s == 0 else [], side, 1 if len([x for x in side if not x.startswith('s_')]) > 10 else 2)
        else:
            for tt in (1, 2, 3, 0):
                for j in range(5):
                    d = ACC[tt][j]
                    a(f"v_mfma_f32_16x16x32_bf16 {d}, {BR[0][j]}, {AR[0][tt]}, {d}")
                    if tt in (1, 2): a(f"ds_read_b128 {GT[tt+1][j]}, {GB} offset:{(tt+1)*5120 + j*1024}")
                    pt = {1: None, 2: None, 3: 1, 0: 2}[tt]
                    if pt: a("ds_write_b128 %s, %s offset:%d" % (crow(pt-1, j)[0], ACC[pt][j], crow(pt-1, j)[1]))
            for j in range(5): a("ds_write_b128 %s, %s offset:%d" % (crow(2, j)[0], ACC[3][j], crow(2, j)[1]))
    if OPT['stamp'] == 4:
        a("s_waitcnt lgkmcnt(0)"); a(f"v_writelane_b32 v255, s92, {49}"); a("s_memtime s[92:93]"); a("s_waitcnt lgkmcnt(0)"); a(f"v_writelane_b32 v255, s92, {50}")
    a("s_waitcnt lgkmcnt(15)")
    for j in range(5):
        for h in range(2):
            sl = slice(2*h, 2*h+2)
            a(f"v_pk_add_f32 {GT[0][j][sl]}, {GT[0][j][sl]}, {GT[1][j][sl]}")
            a(f"v_pk_add_f32 {GT[2][j][sl]}, {GT[2][j][sl]}, {GT[3][j][sl]}")
    stamp(a, 10)
    lds_signal(8)
    for j in range(5):
        for h in range(2):
            sl = slice(2*h, 2*h+2)
            a(f"v_pk_add_f32 {GT[0][j][sl]}, {GT[0][j][sl]}, {GT[2][j][sl]}")
            a(f"v_pk_add_f32 {ACC[0][j][sl]}, {GT[0][j][sl]}, {ACC[0][j][sl]}")
    lds_wait(8, 4)
    RD = [ACC[1], ACC[2], ACC[3]]
    if OPT['fin'] == 0:
        for q in range(3):
            for j in range(5): a(f"ds_read_b128 {RD[q][j]}, {XB[q]} offset:{j*1024}")
        for q in range(3):
            a(f"s_waitcnt lgkmcnt({10 - 5*q})")
            for j in range(5):
                for h in range(2): a(f"v_pk_add_f32 {ACC[0][j][2*h:2*h+2]}, {ACC[0][j][2*h:2*h+2]}, {RD[q][j][2*h:2*h+2]}")
                if q == 2:
                    for h in range(2): a(f"v_pk_mul_f32 {ACC[0][j][2*h:2*h+2]}, {ACC[0][j][2*h:2*h+2]}, {V(22, 2)} op_sel_hi:[1,0]")
                    a(f"v_cvt_pk_bf16_f32 {ACC[1][j][0]}, {ACC[0][j][0]}, {ACC[0][j][1]}")
                    a(f"v_cvt_pk_bf16_f32 {ACC[1][j][1]}, {ACC[0][j][2]}, {ACC[0][j][3]}")
                    a(f"buffer_store_dwordx2 {ACC[1][j][0:2]}, {t0}, {rOUT}, {sT2} offen offset:{j*32} {OPT['ost']}")
    else:
        for j in range(5):
            for q in range(3): a(f"ds_read_b128 {RD[q][j]}, {XB[q]} offset:{j*1024}")
        OUTR = [GT[1][0], GT[1][1], GT[1][2]]
        for j in range(5):
            a(f"s_waitcnt lgkmcnt({12 - 3*j})")
            for h in range(2):
                sl = slice(2*h, 2*h+2)
                a(f"v_pk_add_f32 {RD[0][j][sl]}, {RD[0][j][sl]}, {RD[1][j][sl]}")
                a(f"v_pk_add_f32 {ACC[0][j][sl]}, {ACC[0][j][sl]}, {RD[2][j][sl]}")
            for h in range(2):
                sl = slice(2*h, 2*h+2)
                a(f"v_pk_add_f32 {ACC[0][j][sl]}, {ACC[0][j][sl]}, {RD[0][j][sl]}")
            for h in range(2): a(f"v_pk_mul_f32 {ACC[0][j][2*h:2*h+2]}, {ACC[0][j][2*h:2*h+2]}, {V(22, 2)} op_sel_hi:[1,0]")
            o_ = OUTR[j // 2]
            a(f"v_cvt_pk_bf16_f32 {o_[2*(j%2)]}, {ACC[0][j][0]}, {ACC[0][j][1]}")
            a(f"v_cvt_pk_bf16_f32 {o_[2*(j%2)+1]}, {ACC[0][j][2]}, {ACC[0][j][3]}")
            if j % 2 == 1:
                a(f"v_permlane16_swap_b32 {o_[0]}, {o_[2]}"); a(f"v_permlane16_swap_b32 {o_[1]}, {o_[3]}")
                a(f"buffer_store_dwordx4 {o_}, {t3}, {rOUT}, {sT2} offen offset:{(j-1)*32} {OPT['ost']}")
            if j == 4: a(f"buffer_store_dwordx2 {o_[0:2]}, {t0}, {rOUT}, {sT2} offen offset:128 {OPT['ost']}")
    a.label('P2_FIN')
    if OPT['stamp'] or OPT['pad']:
        a("s_waitcnt vmcnt(0)")
        stamp(a, 11)
    stamp_flush(a)
    if OPT['pad']:
        if OPT['padwg'] < 999: a(f"s_cmp_lg_u32 s2, {OPT['padwg']}"); a(f"s_cbranch_scc1 {END}")
        a.label('PADL')
        a("s_sleep 1"); a("s_memrealtime s[12:13]"); a("s_waitcnt lgkmcnt(0)"); a("s_sub_u32 s12, s12, s10")
        a(f"s_cmp_lt_u32 s12, {OPT['pad']*100}"); a("s_cbranch_scc1 PADL")
    a.label(END)
    a.label('K_LAST')
    a("s_endpgm")
    if OPT['sent']:
        for s in range(4, 9):
            a.label(f'RET{s}')
            a(f"s_sub_u32 {sTO}, {sTO}, 1")
            a(f"s_cselect_b32 {sTO}, 0, {sTO}")
            a(f"s_cbranch_scc1 VOK{s}")
            a(f"s_sleep {OPT['rsl']}")
            for l in a_loads(s, 'r', VT): a(l)
            a("s_waitcnt vmcnt(0)")
            a(f"s_branch VER{s}")

def build():
    hdr = open(f'cdna_kernels/{NAME}.s.ref').read().split('; Override launch')[0]
    name = NAME + '_kernel'
    out = hdr + "; @launch grid=(256,1,1) block=(512,1,1) lds=163840\n"
    out += '.amdgcn_target "amdgcn-amd-amdhsa--gfx950"\n.text\n'
    a = Asm(); kernel(a)
    out += f".globl {name}\n.p2align 8\n.type {name},@function\n{name}:\n" + a.finalize()
    print('instrs', len(a.ins), 'nops', a.nnop, file=sys.stderr)
    out += f""".section .rodata,"a"
.p2align 6
.amdhsa_kernel {name}
  .amdhsa_next_free_vgpr 256
  .amdhsa_next_free_sgpr 102
  .amdhsa_accum_offset 256
  .amdhsa_group_segment_fixed_size 0
  .amdhsa_kernarg_size 96
  .amdhsa_user_sgpr_count 2
  .amdhsa_user_sgpr_kernarg_segment_ptr 1
  .amdhsa_system_sgpr_workgroup_id_x 1
.end_amdhsa_kernel
"""
    return out

if __name__ == '__main__':
    outp = sys.argv[1]
    for o in sys.argv[2:]:
        k, v = o.split('=', 1); OPT[k] = int(v) if v.isdigit() else v
    open(outp, 'w').write(build())
```

```python
import sys
sys.path.insert(0, 'gen')
from asmlib import *
NAME = 'gated_mix__linear_kernel_hedgehog__swiglu_ffn__prompt'
AP = 0; BP = 0xA00000; PQ = 0xD00000; KVACC = 0x1200000; FH = 0x1230000; FK = 0x1232000; FP = 0x1234000; ZEND = 0x1235000
GOFF = 0x1240000; DUMMY = 0x1250000; STAMP = 0x1300000; WSZ = 0x1600000
LOG2E = 0x3fb8aa3b; NLOG2E = 0xbfb8aa3b
OPT = dict(stamp=0, touch=2, bs="{'p0':(0,2),'p1':(2,5),3:(5,8),7:(8,10)}", pp=0, spnt='', rot2=0, slp=1, early=1, btouch=0, atf='sc1', cpf=12, nobar=18, chk=12, sent=0, tw=0, trim=1, nba=0, la=3, spr=0, fin=1, stp=0, nob=0, noc=0, nok=0, noh=0, t2si=2, swp=1, gf=0, b23=1, tlb=0, padwg=999, padev=0, fair=1, fg='{0:2,5:1,7:3}', fc='{0:1,4:0}', npk=0, eprio=2, gprio=3, oc=2, oord=1, noa=0, pj=18, t2s=0, x0e=1, sb1=1, sb2=1, t2pos=1, pad=0, bt=0, tsl=4, rsl=8, cprio2=0, at=0, kh=0, cprio=3, oh1=19, gdel=0, fill=0, spst='sc1', t2a='[0]', t2b='[2]', t2f='{1:(4,6),2:(5,3),4:(6,4),6:(7,5),7:(8,6),8:(9,3)}', t2q='{}', xfl='', wfl='', il=4, qbar=0, prio=0, dbgt=0, ost='nt')
ST = 'sc1'; LD = 'sc1'

pX, pQKV, pPHI, pWO, pBX, pWG, pWU, pWD = [S(16 + 2 * i, 2) for i in range(8)]
pGW, pOUT, pDBG, pWS = [S(32 + 2 * i, 2) for i in range(4)]
sWV = S(3)
rX, rW, rWS, rA, rB = S(40, 4), S(44, 4), S(48, 4), S(52, 4), S(56, 4)
sC = S(60, 2)
rDBG = S(84, 4)
sFLAG = S(88); sTO = S(89); sNEED = S(7)
GOD = 0x1000
sP = S(14, 2)
XSLOT = 32768; WB = 98304
GWB = 159744; CNT = 161024; ZERO = 161280; KVB = 147456

def srd(a, d, base, size):
    a(f"s_mov_b32 {d[0]}, {base[0]}")
    a(f"s_and_b32 {d[1]}, {base[1]}, 0xffff")
    a(f"s_mov_b32 {d[2]}, {size}")
    a(f"s_mov_b32 {d[3]}, 0x20000")

def sstamp(a, j):
    if OPT['stamp'] != 3: return
    if j > 0: a(f"v_writelane_b32 v255, s92, {40 + j - 1}")
    a("s_memtime s[92:93]")
def stamp(a, idx):
    if OPT['pad'] and OPT['padev'] == idx:
        a("s_memrealtime s[10:11]"); a("s_waitcnt lgkmcnt(0)")
    if not OPT['stamp']: return
    if OPT['stamp'] >= 2 and idx not in (2, 3, 5, 11): return
    a("s_memrealtime s[90:91]")
    a("s_memtime s[92:93]")
    a("s_waitcnt lgkmcnt(0)")
    a(f"v_writelane_b32 v255, s90, {2*idx}")
    a(f"v_writelane_b32 v255, s92, {2*idx+1}")
def stamp_flush(a):
    if not OPT['stamp']: return
    if OPT['dbgt']:
        a("s_not_b32 s90, s10"); a("v_writelane_b32 v255, s90, 0")
        a("v_lshlrev_b32 v254, 1, v0"); a("v_add_u32 v254, 8, v254")
        a("s_mov_b32 exec_lo, 0x05555555"); a("s_mov_b32 exec_hi, 0")
        a(f"buffer_atomic_umax v255, v254, {rDBG}, 0 offen sc1")
        a("s_mov_b64 exec, -1")
        return
    a("v_writelane_b32 v255, s10, 0"); a("v_writelane_b32 v255, s12, 1")
    a("s_lshl_b32 s90, s2, 3")
    a(f"s_add_u32 s90, s90, {sWV}")
    a("s_lshl_b32 s90, s90, 8")
    a(f"s_add_u32 s90, s90, {STAMP + 0x80000}")
    a("v_lshlrev_b32 v254, 2, v0")
    a(f"buffer_store_dword v255, v254, {rWS}, s90 offen")

def vpoll(a, vzero, soff, off, tmp, extra=None, slp=None):
    L, D = a.newlabel('POLL'), a.newlabel('POLLD')
    a(f"s_mov_b32 {sTO}, 0x80000")
    a.label(L)
    if extra: a(extra)
    a(f"buffer_load_dword {tmp}, {vzero}, {rWS}, {soff} offen offset:{off} sc1")
    a("s_waitcnt vmcnt(0)")
    a(f"v_cmp_eq_u32 vcc, 0, {tmp}")
    a("s_nop 0")
    a(f"s_cbranch_vccz {D}")
    a(f"s_sleep {slp or OPT['slp']}")
    a(f"s_sub_u32 {sTO}, {sTO}, 1")
    a(f"s_cbranch_scc0 {L}")
    a.label(D)
def arrive(a, soff, need, z, one, nyounger=0):
    D = a.newlabel('ARR')
    a(f"v_mov_b32 {z}, 0"); a(f"v_mov_b32 {one}, 1")
    a(f"s_waitcnt vmcnt({nyounger})")
    a("s_mov_b64 exec, 1")
    a(f"buffer_atomic_add {one}, {z}, {rWS}, {soff} offen sc0 sc1")
    a("s_waitcnt vmcnt(0)")
    a(f"v_readfirstlane_b32 {sP[0]}, {one}")
    a(f"s_add_u32 {sP[1]}, {soff}, {GOD}")
    a(f"s_cmp_lg_u32 {sP[0]}, {need}")
    a(f"s_cbranch_scc1 {D}")
    a(f"buffer_store_dword {one}, {z}, {rWS}, {sP[1]} offen sc1")
    a.label(D)
    a("s_mov_b64 exec, -1")
def init_poll(a, reg, off):
    L, D = a.newlabel('POLL'), a.newlabel('POLLD')
    a(f"s_mov_b32 {sTO}, 0x80000")
    a.label(L)
    a(f"v_mov_b32 {reg}, 0")
    a(f"buffer_load_dword {reg}, {reg}, {rDBG}, 0 offen offset:{off} sc1")
    a("s_waitcnt vmcnt(0)")
    a(f"v_readfirstlane_b32 {sP[0]}, {reg}")
    a(f"s_cmp_lg_u32 {sP[0]}, 0")
    a(f"s_cbranch_scc1 {D}")
    a("s_sleep 2")
    a(f"s_sub_u32 {sTO}, {sTO}, 1")
    a(f"s_cbranch_scc0 {L}")
    a.label(D)

def softmax_unit(a, P, E, M, T, O, side=None):
    side = list(side or [])
    a(f"v_max3_f32 {M[0]}, {P[0]}, {P[1]}, {P[2]}")
    a(f"v_min3_f32 {M[2]}, {P[0]}, {P[1]}, {P[2]}")
    for i in range(3, 19, 2):
        a(f"v_max3_f32 {M[0]}, {M[0]}, {P[i]}, {P[i+1]}")
        a(f"v_min3_f32 {M[2]}, {M[2]}, {P[i]}, {P[i+1]}")
    a(f"v_max_f32 {M[0]}, {M[0]}, {P[19]}")
    a(f"v_min_f32 {M[2]}, {M[2]}, {P[19]}")
    a(f"v_mul_f32 {M[0]}, {sC[0]}, {M[0]}")
    a(f"v_mul_f32 {M[2]}, {sC[0]}, {M[2]}")
    for i in range(0, 20, 2):
        a(f"v_pk_fma_f32 {E[i:i+2]}, {P[i:i+2]}, {sC}, {M[0:2]} op_sel_hi:[1,1,0] neg_lo:[0,0,1] neg_hi:[0,0,1]")
        a(f"v_pk_fma_f32 {E[20+i:22+i]}, {P[i:i+2]}, {sC}, {M[2:4]} op_sel_hi:[1,1,0] neg_lo:[1,0,0] neg_hi:[1,0,0]")
    for i in range(40):
        a(f"v_exp_f32 {E[i]}, {E[i]}")
        if side and i % 2 == 1:
            x = side.pop(0)
            if x != "s_nop 0": a(x)
    for l in side: a(l)
    a(f"v_pk_add_f32 {T[0:2]}, {E[0:2]}, {E[2:4]}")
    a(f"v_pk_add_f32 {T[2:4]}, {E[20:22]}, {E[22:24]}")
    for i in range(4, 20, 2):
        a(f"v_pk_add_f32 {T[0:2]}, {T[0:2]}, {E[i:i+2]}")
        a(f"v_pk_add_f32 {T[2:4]}, {T[2:4]}, {E[20+i:22+i]}")
    a(f"v_add_f32 {T[0]}, {T[0]}, {T[1]}")
    a(f"v_add_f32 {T[2]}, {T[2]}, {T[3]}")
    a(f"v_rcp_f32 {T[0]}, {T[0]}")
    a(f"v_rcp_f32 {T[2]}, {T[2]}")
    for i in range(0, 20, 2):
        a(f"v_pk_mul_f32 {E[i:i+2]}, {E[i:i+2]}, {T[0:2]} op_sel_hi:[1,0]")
        a(f"v_pk_mul_f32 {E[20+i:22+i]}, {E[20+i:22+i]}, {T[2:4]} op_sel_hi:[1,0]")
    for i in range(20):
        a(f"v_cvt_pk_bf16_f32 {O[i]}, {E[2*i]}, {E[2*i+1]}")

def kernel(a):
    END = 'K_END'
    BS = eval(OPT['bs'])
    a("s_cmp_ge_u32 s2, 256")
    a(f"s_cbranch_scc1 {END}")
    if OPT['stamp']:
        a("s_memrealtime s[10:11]"); a("s_memtime s[12:13]"); a("v_mov_b32 v255, 0")
    if OPT['pad']: a("s_memrealtime s[10:11]")
    a("s_load_dwordx16 s[16:31], s[0:1], 0")
    a("s_load_dwordx8 s[32:39], s[0:1], 64")
    lane = V(0)
    tid, t0, t1, t2, t3, t4 = V(1), V(2), V(3), V(4), V(5), V(6)
    vqd, vr, vc, vl15 = V(7), V(8), V(9), V(10)
    vx = [V(11 + i) for i in range(4)]
    xa = [[V(15), V(16)], [V(17), V(18)]]
    tdum = V(19); ta = V(32, 2); tb = V(34, 2)
    R0 = 24
    sTY, sRB, sXK, sWK, sM, sT0, sT1, sT2, sT3, sRG, sHI, sID, sMW, sC8, sR4 = [S(62 + i) for i in range(15)]
    a(f"v_lshrrev_b32 {t0}, 6, v0")
    a(f"v_mov_b32 {tid}, v0")
    a(f"v_readfirstlane_b32 {sWV}, {t0}")
    a(f"v_and_b32 {lane}, 63, v0")
    a(f"s_bfe_u32 {sC8}, s2, 0x30003")
    a(f"s_lshr_b32 {sR4}, s2, 6")
    a(f"s_and_b32 {sRB}, s2, 1")
    a(f"s_lshl_b32 {sRB}, {sRB}, 2")
    a(f"s_add_u32 {sRB}, {sRB}, {sR4}")
    a(f"s_bfe_u32 {sT0}, s2, 0x20001")
    a(f"s_and_b32 {sRG}, {sWV}, 3")
    a(f"s_lshr_b32 {sHI}, {sWV}, 2")
    a(f"v_lshrrev_b32 {vqd}, 4, {lane}")
    a(f"v_bfe_u32 {vr}, {lane}, 2, 2")
    a(f"v_and_b32 {vc}, 3, {lane}")
    a(f"v_and_b32 {vl15}, 15, {lane}")
    a(f"v_lshrrev_b32 {t0}, 3, {lane}")
    a(f"v_mul_u32_u24 {t0}, 1280, {t0}")
    a(f"v_and_b32 {t1}, 7, {lane}")
    a(f"v_xor_b32 {t1}, {t1}, {vqd}")
    a(f"v_lshl_add_u32 {vx[0]}, {t1}, 4, {t0}")
    a(f"v_xor_b32 {t1}, 4, {t1}")
    a(f"v_lshl_add_u32 {vx[1]}, {t1}, 4, {t0}")
    a(f"v_add_u32 {vx[1]}, {8*1280-1024}, {vx[1]}")
    a(f"v_add_u32 {vx[2]}, {16*1280-2048}, {vx[0]}")
    a(f"v_add_u32 {vx[3]}, {16*1280-2048}, {vx[1]}")
    a(f"s_mul_i32 {sXK}, {sRB}, {256*1280}")
    a(f"s_mul_i32 {sT1}, {sWV}, {32*1280}")
    a(f"s_add_u32 {sXK}, {sXK}, {sT1}")
    a(f"s_lshl_b32 {sM}, {sWV}, 12")
    sXA, sXB = S(6), S(7)
    if OPT['swp']:
        a(f"s_add_u32 {sTY}, {sC8}, {sR4}"); a(f"s_and_b32 {sTY}, {sTY}, 1")
        a(f"s_lshl_b32 {sT1}, {sTY}, 7"); a(f"s_add_u32 {sXK}, {sXK}, {sT1}")
    a(f"v_lshlrev_b32 {t2}, 3, {tid}")
    a(f"v_min_u32 {t2}, {163840 - CNT - 8}, {t2}")
    a(f"v_add_u32 {t2}, {CNT}, {t2}")
    a(f"v_mov_b32 {ta[0]}, 0"); a(f"v_mov_b32 {ta[1]}, 0")
    a(f"ds_write_b64 {t2}, {ta}")
    a(f"s_mul_i32 {sID}, {sT0}, 9"); a(f"s_add_u32 {sID}, {sID}, 1"); a(f"s_lshr_b32 {sID}, {sID}, 1")
    a(f"s_add_u32 {sID}, {sID}, {sC8}"); a(f"s_sub_u32 {sID}, {sID}, 3")
    a(f"s_and_b32 {sT1}, {sT0}, 1"); a(f"s_add_u32 {sT1}, {sT1}, {sC8}")
    a(f"s_mov_b32 {sC[0]}, {LOG2E:#x}")
    a(f"s_mov_b32 {sC[1]}, {LOG2E:#x}")
    sU1, sU2, sBK = S(100), S(101), S(95)
    vt1, vt2 = V(22), V(23)
    T2 = OPT['touch'] >= 2; T3 = OPT['touch'] == 3
    rTT = S(96, 4)
    def t2_all(b0):
        return [f"s_mul_i32 s4, {sBK}, {b0}", f"s_add_u32 s4, s4, {sU2}",
                f"v_add_u32 v21, s4, {vt2}", f"s_mov_b64 exec, 0xff\nbuffer_load_dword {tdum}, v21, {rTT}, 0 offen\ns_mov_b64 exec, -1"]
    OOL = []
    def t2_one(b, c8v):
        lb = a.newlabel('T2')
        body = (f"s_mul_i32 s4, {sBK}, {b}\ns_add_u32 s4, s4, {sU1}\nv_add_u32 v3, s4, {vt1}\ns_mov_b32 exec_hi, 0\n"
                f"buffer_load_dword {tdum}, v3, {rTT}, 0 offen\ns_mov_b64 exec, -1\n")
        if OPT['trim']:
            OOL.append(f"{lb}o:\n" + body + f"s_branch {lb}")
            return [f"s_cmp_eq_u32 {sC8}, {c8v}\ns_cbranch_scc1 {lb}o\n{lb}:"]
        return [f"s_cmp_lg_u32 {sC8}, {c8v}\ns_cbranch_scc1 {lb}\n" + body + f"{lb}:"]
    if T2:
        a(f"s_lshr_b32 s9, {sWV}, 1")
        a(f"s_mov_b32 {rTT[2]}, {2048*1280}"); a(f"s_movk_i32 {sBK}, 128")
        a("s_cmp_eq_u32 s9, 1")
        a(f"s_cselect_b32 {rTT[2]}, {640*3840}, {rTT[2]}"); a(f"s_cselect_b32 {sBK}, {64*3840}, {sBK}")
        a("s_cmp_ge_u32 s9, 2")
        a(f"s_cselect_b32 {rTT[2]}, {640*3456}, {rTT[2]}"); a(f"s_cselect_b32 {sBK}, {64*3456}, {sBK}")
        a(f"s_mov_b32 {rTT[3]}, 0x20000")
        a("s_cmp_eq_u32 s9, 0")
        a("s_movk_i32 s7, 128"); a("s_cselect_b32 s5, 1280, s7"); a("s_cselect_b32 s6, 640, s7"); a("s_cselect_b32 s7, 512, 0")
        a(f"v_mul_u32_u24 {vt1}, s5, {lane}")
        a(f"v_mul_u32_u24 {vt2}, s6, {lane}")
        a(f"v_and_b32 {t0}, 1, {lane}"); a(f"v_mul_u32_u24 {t0}, s7, {t0}"); a(f"v_sub_u32 {vt2}, {vt2}, {t0}")
        a(f"s_and_b32 s4, {sWV}, 1")
        a(f"s_lshl1_add_u32 {sU2}, s2, s4"); a(f"s_lshl_b32 {sU2}, {sU2}, 3"); a(f"s_mul_i32 {sU2}, {sU2}, s6")
        a(f"s_and_b32 {sU1}, s2, 7"); a(f"s_lshl2_add_u32 {sU1}, {sU1}, {sR4}")
        a(f"s_lshl1_add_u32 {sU1}, {sU1}, s4"); a(f"s_lshl_b32 {sU1}, {sU1}, 5"); a(f"s_mul_i32 {sU1}, {sU1}, s5")
        a(f"v_add_u32 {t4}, {sU2}, {vt2}")
        if eval(OPT['t2a'])[0]:
            a(f"s_mul_i32 s4, {sBK}, {eval(OPT['t2a'])[0]}"); a(f"v_add_u32 {t4}, s4, {t4}")
    a(f"s_mov_b32 {rX[2]}, {2048*1280}"); a(f"s_mov_b32 {rX[3]}, 0x20000")
    a(f"s_mov_b32 m0, {sM}")
    a("s_waitcnt lgkmcnt(0)")
    if T2:
        a("s_cmp_eq_u32 s9, 1"); a(f"s_cselect_b64 {rTT[0:2]}, {pQKV}, {pX}")
        a("s_cmp_eq_u32 s9, 2"); a(f"s_cselect_b64 {rTT[0:2]}, {pWG}, {rTT[0:2]}")
        a("s_cmp_eq_u32 s9, 3"); a(f"s_cselect_b64 {rTT[0:2]}, {pWU}, {rTT[0:2]}")
        a(f"s_and_b32 {rTT[1]}, {rTT[1]}, 0xffff")
        a("s_mov_b64 exec, 0xff"); a(f"buffer_load_dword {tdum}, {t4}, {rTT}, 0 offen"); a("s_mov_b64 exec, -1")
        for b0 in eval(OPT['t2a'])[1:]:
            for l in t2_all(b0): a(l)
    a(f"s_mov_b32 {rX[0]}, {pX[0]}"); a(f"s_and_b32 {rX[1]}, {pX[1]}, 0xffff")
    if OPT['x0e']:
        a(f"s_cmp_eq_u32 {sT1}, 8"); a("s_cbranch_scc1 NOX0")
        if OPT['sb1']: a("s_barrier")
        for n in range(4): a(f"buffer_load_dwordx4 {vx[n]}, {rX}, {sXK} offen offset:{n*1024} lds")
        a.label("NOX0")
    srd(a, rWS, pWS, WSZ)
    srd(a, rDBG, pDBG, 256)
    if OPT['tlb']:
        a(f"s_cmp_lg_u32 {sWV}, 6"); a("s_cbranch_scc1 NOTLB")
        srd(a, rA, pOUT, 2048 * 1280)
        a(f"v_lshlrev_b32 {t0}, {OPT['tlb']}, {lane}")
        a("s_lshl_b32 s6, s2, 7"); a(f"v_add_u32 {t0}, s6, {t0}")
        a(f"v_min_u32 {t1}, {0x1250000}, {t0}")
        a(f"buffer_load_dword v31, {t1}, {rWS}, 0 offen")
        a(f"buffer_load_dword v31, {t0}, {rA}, 0 offen")
        a.label("NOTLB")
    if OPT['cpf']:
        a(f"s_cmp_lg_u32 {sWV}, 7"); a("s_cbranch_scc1 NOCPF")
        a("s_getpc_b64 s[90:91]")
        a.label("CPF_PC")
        a("s_lshr_b32 s6, s2, 3"); a(f"s_mul_i32 s6, s6, {OPT['cpf']*128}")
        a(f"v_lshlrev_b32 {t0}, 7, {lane}"); a(f"v_add_u32 {t0}, s6, {t0}")
        a(f"v_min_u32 {t0}, K_LAST-CPF_PC, {t0}")
        a(f"s_mov_b64 exec, {(1 << OPT['cpf']) - 1:#x}")
        a(f"global_load_dword v31, {t0}, s[90:91]")
        a("s_mov_b64 exec, -1")
        a.label("NOCPF")
    if OPT['swp']: a(f"s_lshl_b32 s4, {sTY}, 8"); a(f"s_sub_u32 {sXA}, 128, s4"); a(f"s_add_u32 {sXB}, s4, 128")
    a(f"s_cmp_lt_u32 {sC8}, 3")
    a("s_cbranch_scc1 R_QKV")
    a(f"s_cmp_eq_u32 {sT1}, 8")
    a("s_cbranch_scc1 R_SPARE")

    def x_dma(vm, blk, half):
        if blk == 0 and OPT['x0e']:
            vm.issue(('X', 0)); vm.issue(('X', 0)); return []
        l = [f"s_add_u32 m0, {sM}, {(blk % 3) * XSLOT}"]
        if half == 0 and blk > 0: l.append(f"s_add_u32 {sXK}, {sXK}, {(sXA if blk % 2 else sXB) if OPT['swp'] else 128}")
        for n in (2 * half, 2 * half + 1):
            l.append(f"buffer_load_dwordx4 {vx[n]}, {rX}, {sXK} offen offset:{n*1024} {OPT['xfl']} lds")
            vm.issue(('X', blk))
        return l
    def x_addr_setup():
        a(f"v_lshrrev_b32 {t0}, 1, {vl15}")
        a(f"v_xor_b32 {t0}, {t0}, {vqd}")
        a(f"v_lshlrev_b32 {t0}, 4, {t0}")
        a(f"v_lshl_add_u32 {t0}, {vl15}, 7, {t0}")
        a(f"s_lshl_b32 {sT0}, {sRG}, 13")
        a(f"v_add_u32 {xa[0][0]}, {sT0}, {t0}")
        a(f"v_xor_b32 {xa[0][1]}, 64, {xa[0][0]}")
        a(f"v_add_u32 {xa[1][0]}, 0x10000, {xa[0][0]}")
        a(f"v_add_u32 {xa[1][1]}, 0x10000, {xa[0][1]}")
    def x_reads(XF, step):
        blk, kk = step // 2, step % 2
        sl = blk % 3
        return [f"ds_read_b128 {XF[tt]}, {xa[sl // 2][kk]} offset:{(sl % 2) * XSLOT + tt * 2048}" for tt in range(4)]
    def burst(vm, b0, b1):
        if OPT['touch'] not in (1, 3): return []
        l = []
        for st, reg in ((0, ta), (5, tb)):
            lo, hi = max(b0, st) - st, min(b1, st + 5) - st
            if lo >= hi: continue
            m = ((1 << (12 * hi)) - 1) & ~((1 << (12 * lo)) - 1)
            l += [f"s_mov_b32 exec_lo, {m & 0xffffffff:#x}", f"s_mov_b32 exec_hi, {m >> 32:#x}", f"global_load_dword {tdum}, {reg}, off"]
            vm.issue('T')
        l.append("s_mov_b64 exec, -1")
        return l
    def touch_setup(pw0, pw1, rowbytes, off0, off1, seg):
        if OPT['touch'] not in (1, 3): return
        l12, bi = tb[0], tb[1]; tinc = V(36)
        a(f"v_mul_u32_u24 {bi}, 43, {lane}"); a(f"v_lshrrev_b32 {bi}, 9, {bi}")
        a(f"v_mul_u32_u24 {l12}, 12, {bi}"); a(f"v_sub_u32 {l12}, {lane}, {l12}")
        a(f"s_lshl_b32 {sT2}, {sRB}, 3"); a(f"s_add_u32 {sT2}, {sT2}, {sC8}"); a(f"s_lshl_b32 {sT2}, {sT2}, 3"); a(f"s_add_u32 {sT2}, {sT2}, {sWV}")
        a(f"s_mul_i32 {sT2}, {sT2}, {4*1280}")
        a(f"v_mul_u32_u24 {t0}, 1280, {l12}")
        a(f"v_add_u32 {t0}, {sT2}, {t0}")
        a(f"s_lshl_b32 {sT0}, {sR4}, 3"); a(f"s_add_u32 {sT0}, {sT0}, {sWV}"); a(f"s_mul_i32 {sT0}, {sT0}, {2*rowbytes}")
        a(f"v_subrev_u32 {t1}, 4, {l12}")
        a(f"v_bfe_u32 {t2}, {t1}, 2, 1")
        a(f"v_mul_u32_u24 {t2}, {rowbytes}, {t2}")
        a(f"v_and_b32 {t3}, 1, {t1}")
        a(f"v_mul_u32_u24 {t3}, {seg-4}, {t3}")
        a(f"v_add3_u32 {t2}, {t2}, {t3}, {sT0}")
        a(f"v_and_b32 {t3}, 2, {t1}")
        a(f"v_cmp_eq_u32 vcc, 0, {t3}")
        a(f"v_mov_b32 {t3}, {off1}"); a(f"v_mov_b32 {t4}, {off0}")
        a(f"v_cndmask_b32 {t3}, {t3}, {t4}, vcc")
        a(f"v_add_u32 {t2}, {t2}, {t3}")
        a(f"v_mov_b32 {t3}, {pw1[0]}"); a(f"v_mov_b32 {t4}, {pw0[0]}"); a(f"v_cndmask_b32 {ta[0]}, {t3}, {t4}, vcc")
        a(f"v_mov_b32 {t3}, {pw1[1]}"); a(f"v_mov_b32 {t4}, {pw0[1]}"); a(f"v_cndmask_b32 {ta[1]}, {t3}, {t4}, vcc")
        a(f"v_cmp_gt_u32 vcc, 4, {l12}")
        a(f"v_mov_b32 {t3}, {pX[0]}"); a(f"v_mov_b32 {t4}, {pX[1]}")
        a(f"v_cndmask_b32 {t2}, {t2}, {t0}, vcc")
        a(f"v_cndmask_b32 {ta[0]}, {ta[0]}, {t3}, vcc")
        a(f"v_cndmask_b32 {ta[1]}, {ta[1]}, {t4}, vcc")
        a(f"v_mov_b32 {t3}, {64*rowbytes}"); a(f"v_mov_b32 {t4}, 128"); a(f"v_cndmask_b32 {tinc}, {t3}, {t4}, vcc")
        a(f"v_mad_u32_u24 {t2}, {tinc}, {bi}, {t2}")
        a(f"v_add_co_u32 {ta[0]}, vcc, {ta[0]}, {t2}")
        a(f"v_mul_u32_u24 {t2}, 5, {tinc}")
        a(f"v_addc_co_u32 {ta[1]}, vcc, 0, {ta[1]}, vcc")
        a(f"v_add_co_u32 {tb[0]}, vcc, {ta[0]}, {t2}")
        a(f"v_addc_co_u32 {tb[1]}, vcc, 0, {ta[1]}, vcc")
    def step_body(mains, lblk, pre=[]):
        for l in pre: a(l)
        if not lblk:
            for m in mains: a(m)
            return
        if OPT['pp'] == 2:
            rds = [l for l in lblk if l.startswith('ds_read')]; oth = [l for l in lblk if not l.startswith('ds_read')]
            l1, l2 = a.newlabel('PP'), a.newlabel('PP')
            if oth:
                a(f"s_cmp_eq_u32 {sHI}, 0"); a(f"s_cbranch_scc1 {l1}")
                for l in oth: a(l)
                a.label(l1)
            k = 0
            for i, m in enumerate(mains):
                a(m)
                while k < len(rds) and k < (i + 1) * max(1, -(-len(rds) // len(mains))):
                    a(rds[k]); k += 1
            if oth:
                a(f"s_cmp_eq_u32 {sHI}, 0"); a(f"s_cbranch_scc0 {l2}")
                for l in oth: a(l)
                a.label(l2)
        elif OPT['pp']:
            l1, l2 = a.newlabel('PP'), a.newlabel('PP')
            a(f"s_cmp_eq_u32 {sHI}, 0"); a(f"s_cbranch_scc1 {l1}")
            for l in lblk: l() if callable(l) else a(l)
            a.label(l1)
            for m in mains: a(m)
            a(f"s_cmp_eq_u32 {sHI}, 0"); a(f"s_cbranch_scc0 {l2}")
            for l in lblk: l() if callable(l) else a(l)
            a.label(l2)
        else:
            rds = [l for l in lblk if l.startswith('ds_read')]; oth = [l for l in lblk if not l.startswith('ds_read')]
            units = []; cur = []
            for l in oth:
                cur.append(l)
                if 'buffer_' in l or 'ds_write' in l: units.append(cur); cur = []
            if cur: units.append(cur)
            n = len(mains); mode = OPT['il']
            pos = {}
            if mode == 0:
                seq = [[r] for r in rds] + units
                for k, u in enumerate(seq): pos.setdefault(min(n - 1, k * n // max(len(seq), n)), []).extend(u)
            elif mode == 1:
                for k, u in enumerate(units): pos.setdefault(min(n - 1, 2 * k), []).extend(u)
                for k, r in enumerate(rds): pos.setdefault(min(n - 1, k * min(n, len(rds)) // len(rds) if len(rds) > n else k), []).append(r)
            elif mode == 2:
                for k, r in enumerate(rds): pos.setdefault(min(n - 1, k // 2), []).append(r)
                for k, u in enumerate(units): pos.setdefault(min(n - 1, len(rds) // 2 + 2 * k), []).extend(u)
            elif mode == 3:
                for k, u in enumerate(units): pos.setdefault(min(n - 1, 1 + k * (2 * n // 3) // max(1, len(units))), []).extend(u)
                for k, r in enumerate(rds): pos.setdefault(min(n - 1, k * min(n, len(rds)) // len(rds) if len(rds) > n else k), []).append(r)
            elif mode == 4:
                k = 0
                for i in range(n):
                    while k < len(lblk) and k < (i + 1) * len(lblk) // n + 1:
                        pos.setdefault(i, []).append(lblk[k]); k += 1
            for i, m in enumerate(mains):
                a(m)
                for l in pos.get(i, []): a(l)
    def init_check_issue(reg, off=128):
        return [f"v_mov_b32 {reg}, 0", f"buffer_load_dword {reg}, {reg}, {rDBG}, 0 offen offset:{off} sc1"]
    def init_check(reg, off=128, ool=False):
        ok = a.newlabel('INITOK')
        a(f"v_readfirstlane_b32 {sP[0]}, {reg}")
        if ool and OPT['trim']:
            a(f"s_cmp_eq_u32 {sP[0]}, 0"); a(f"s_cbranch_scc1 {ok}o"); a.label(ok)
            b = Asm(); b.uid = a.uid + 1000; init_poll(b, reg, off); a.uid += 5
            OOL.append(f"{ok}o:\n" + "\n".join(x.text for x in b.ins) + f"\ns_branch {ok}")
            return
        a(f"s_cmp_lg_u32 {sP[0]}, 0")
        a(f"s_cbranch_scc1 {ok}")
        init_poll(a, reg, off)
        a.label(ok)
    sR6, sCG, sAo, sBg, sBo, sLC, sH2, sRX = [S((16 if OPT['trim'] else 94) + i) for i in range(8)]
    vo, vo4 = V(20), V(21)
    vS2 = V(30)
    sO1, sO2 = S(79), S(80)
    BRb = [208, 228, 32, 52]
    BR = [[V(BRb[b] + 4 * j, 4) for j in range(5)] for b in range(4)]
    GL = [4, 6, 7, 9]; LR = [2, 5, 3, 4]; CR = [0, 1, 6]
    GRP = {0:0, 1:1, 2:2, 3:3, 4:8, 6:9, 7:10, 9:11, 5:12, 8:13}
    if OPT['gf'] & 1:
        GL = [6, 7, 8, 9]; GRP = {0:0, 1:1, 2:2, 3:3, 6:8, 7:9, 8:10, 9:11, 4:12, 5:13}
    INP2 = [False]
    CB0 = 38 * 5120; CA0 = 38 * 4096
    def p2_setup():
        return [f"s_and_b32 {sR6}, s2, 7", f"s_lshl_b32 {sR6}, {sR6}, 2", "s_lshr_b32 s4, s2, 6", f"s_add_u32 {sR6}, {sR6}, s4",
             f"s_bfe_u32 {sCG}, s2, 0x30003", f"s_lshl1_add_u32 {sCG}, s4, {sCG}", f"s_and_b32 {sCG}, {sCG}, 7", f"v_lshlrev_b32 {vo}, 4, {lane}", f"v_add_u32 {vo4}, 4096, {vo}",
             f"s_mul_i32 {sBg}, {sCG}, 74", f"s_add_u32 {sBg}, {sBg}, {sRG}", f"s_mul_i32 {sBg}, {sBg}, 5120", f"s_add_u32 {sBg}, {sBg}, {BP}",
             f"s_mov_b32 {rB[0]}, {pWS[0]}", f"s_and_b32 {rB[1]}, {pWS[1]}, 0xffff", f"s_mul_i32 {rB[2]}, {sHI}, {WSZ}", f"s_mov_b32 {rB[3]}, 0x20000",
             f"s_mul_i32 {sLC}, {sRG}, 5120", f"s_lshl_b32 {sH2}, {sHI}, 11", f"s_mul_i32 {sRX}, {sHI}, 20480",
             f"s_xor_b32 s4, {sHI}, 1", f"s_mul_i32 {sBo}, s4, {16*5120}", f"s_add_u32 {sBo}, {sBo}, {sBg}",
             f"s_mul_i32 {sAo}, {sR6}, 74", f"s_mul_i32 s4, s4, 16", f"s_add_u32 {sAo}, {sAo}, s4", f"s_add_u32 {sAo}, {sAo}, {sRG}", f"s_lshl_b32 {sAo}, {sAo}, 12",
             f"s_lshr_b32 s4, {sCG}, 1", "s_mul_i32 s4, s4, 5", f"s_mul_i32 {sO2}, {sR6}, 74", f"s_add_u32 {sO2}, {sO2}, s4", f"s_add_u32 {sO2}, {sO2}, 54",
             f"s_lshl2_add_u32 {sO2}, {sO2}, {sRG}", f"s_lshl_b32 {sO2}, {sO2}, 10", f"s_and_b32 s4, {sCG}, 1", f"s_mul_i32 {sO1}, s4, {3*4096}",
             f"s_add_u32 {sO1}, {sO1}, {sO2}", "s_lshl_b32 s4, s4, 9", f"s_add_u32 {sO2}, {sO2}, s4", f"s_add_u32 {sO2}, {sO2}, 8192",
             f"s_lshl_b32 s78, {sR6}, 7", f"s_add_u32 s78, s78, {FH + GOD}"]
    vFQ = V(31)
    def q_flag_issue(): return [f"v_mov_b32 {vFQ}, 0", f"buffer_load_dword {vFQ}, {vFQ}, {rWS}, s78 offen offset:4 sc1"]
    def poison(R4):
        if not OPT['sent']: return []
        lb = a.newlabel('PO')
        return [f"s_cmp_eq_u32 {sHI}, 1\ns_cbranch_scc1 {lb}\n" + "\n".join(f"v_mov_b32 {R4[i]}, -1" for i in range(4)) +
                f"\nbuffer_store_dwordx4 {R4}, {vo}, {rWS}, {sO1} offen {ST}\nbuffer_store_dwordx4 {R4}, {vo4}, {rWS}, {sO1} offen {ST}"
                f"\ns_mov_b32 exec_hi, 0\nbuffer_store_dwordx4 {R4}, {vo}, {rWS}, {sO2} offen {ST}\ns_mov_b32 exec_hi, -1\n{lb}:"]
    def b_reg(vm, i, tag, r=None, grp=None, ext=0):
        b = i % 4; r = r or rWS; grp = i if grp is None else grp
        if INP2[0] and OPT['nob'] == 1: r = rA
        if INP2[0] and OPT['nob'] == 2: return []
        l = [f"s_add_u32 s4, {sBo}, {grp*20480 + ext}"]
        for j in range(5):
            if j < 4: l.append(f"buffer_load_dwordx4 {BR[b][j]}, {vo}, {r}, s4 offen offset:{j*1024} {LD}")
            else: l.append(f"buffer_load_dwordx4 {BR[b][j]}, {vo4}, {r}, s4 offen {LD}")
            vm.issue(tag)
        return l
    def b_row(vm, base, grp, row, extra=None, ext=0, hi3=False):
        l = [f"s_add_u32 s4, {base}, {grp*20480 + ext}", f"s_add_u32 s5, {sLC}, {row*20480}"]
        if hi3: l += [f"s_add_u32 s4, s4, {sRX}", f"s_mul_i32 s6, {sRX}, 3", "s_add_u32 s5, s5, s6"]
        if extra: l += [f"s_add_u32 s4, s4, {extra}", f"s_add_u32 s5, s5, {extra}"]
        l.append("s_mov_b32 m0, s5")
        if INP2[0] and OPT['nob'] == 2: return []
        for j in range(4):
            l.append(f"buffer_load_dwordx4 {vo}, {rWS}, s4 offen offset:{j*1024} {LD} lds"); vm.issue('BL')
        l.append("s_add_u32 m0, s5, 4096")
        l.append(f"buffer_load_dwordx4 {vo4}, {rWS}, s4 offen {LD} lds"); vm.issue('BL')
        return l
    def b_row_half(vm, k):
        l = [f"s_add_u32 s4, {sBg}, {GRP[GL[k]]*20480}", f"s_add_u32 s5, {sLC}, {LR[k]*20480}", f"s_add_u32 s4, s4, {sH2}", f"s_add_u32 m0, s5, {sH2}"]
        for j in range(3):
            l.append(f"buffer_load_dwordx4 {vo}, {rWS}, s4 offen offset:{j*1024} {LD} lds"); vm.issue('BL')
        return l
    sPF = S(8)
    def flag_store(need):
        a(f"s_mov_b32 {sNEED}, {need}")

    vw = [V(R0), V(R0 + 1)]; wa = [V(R0 + 2), V(R0 + 3), V(R0 + 4)]; vchk = V(R0 + 5)
    FB = [32, 72]
    XF = [[V(FB[b] + 4 * tt, 4) for tt in range(4)] for b in range(2)]
    WF = [[V(FB[b] + 16 + 4 * c, 4) for c in range(6)] for b in range(2)]
    ACC = [[V(112 + (c * 4 + tt) * 4, 4) for tt in range(4)] for c in range(6)]
    vm = VmTrack()
    a(f"s_mul_i32 {sT3}, {sID}, 192")
    touch_setup(pWG, pWU, 3456, sT3, sT3, 192)
    for l in burst(vm, *BS['p0']): a(l)
    a(f"s_bitcmp1_b32 {sWV}, 0")
    a(f"s_cselect_b32 {rW[0]}, {pWU[0]}, {pWG[0]}")
    a(f"s_cselect_b32 {rW[1]}, {pWU[1]}, {pWG[1]}")
    a(f"s_and_b32 {rW[1]}, {rW[1]}, 0xffff")
    a(f"s_mov_b32 {rW[2]}, {640*3456}")
    a(f"s_mov_b32 {rW[3]}, 0x20000")
    a(f"s_bfe_u32 {sT0}, {sWV}, 0x10001")
    a(f"s_lshl_b32 {sT1}, {sT0}, 1")
    for n in range(2):
        a(f"v_add_u32 {t0}, {64*n}, {lane}")
        a(f"v_mul_u32_u24 {t1}, 43, {t0}")
        a(f"v_lshrrev_b32 {t1}, 9, {t1}")
        a(f"v_mul_u32_u24 {t2}, 12, {t1}")
        a(f"v_sub_u32 {t2}, {t0}, {t2}")
        a(f"v_lshrrev_b32 {t3}, 2, {t2}")
        a(f"v_cmp_eq_u32 vcc, 1, {t3}")
        a(f"v_mov_b32 {t3}, {sT1}")
        a(f"v_mov_b32 {t4}, {sT0}")
        a(f"v_cndmask_b32 {t3}, {t3}, {t4}, vcc")
        a(f"v_xor_b32 {t2}, {t2}, {t3}")
        a(f"v_mul_u32_u24 {t1}, 3456, {t1}")
        a(f"v_lshl_add_u32 {vw[n]}, {t2}, 4, {t1}")
        if n: a(f"v_subrev_u32 {vw[n]}, 1024, {vw[n]}")
    a(f"s_lshr_b32 {sT0}, {sWV}, 1")
    a(f"s_mul_i32 {sWK}, {sT0}, {8*3456}")
    a(f"s_add_u32 {sWK}, {sWK}, {sT3}")
    a(f"s_mul_i32 {sMW}, {sT0}, 1536")
    a(f"s_and_b32 {sT1}, {sWV}, 1")
    a(f"s_mul_i32 {sT1}, {sT1}, 6144")
    a(f"s_add_u32 {sMW}, {sMW}, {sT1}")
    sW2 = S(54, 2)
    if OPT['swp']:
        a(f"s_mul_i32 {sT1}, {sTY}, {2*110592}"); a(f"s_add_u32 {sWK}, {sWK}, {sT1}"); a(f"s_lshl_b32 {sT1}, {sT1}, 1")
        a(f"s_sub_u32 {sW2[0]}, 110592, {sT1}"); a(f"s_add_u32 {sW2[1]}, {sT1}, 110592")
    def w_dma(step):
        l = [f"s_add_u32 m0, {sMW}, {WB + (step % 5) * 12288}"] + ([f"s_add_u32 {sWK}, {sWK}, {(110592 if step % 2 or not OPT['swp'] else (sW2[0] if step % 4 == 2 else sW2[1]))}"] if step else []) + [
             f"buffer_load_dwordx4 {vw[0]}, {rW}, {sWK} offen {OPT['wfl']} lds",
             "s_mov_b32 exec_hi, 0\n"
             f"buffer_load_dwordx4 {vw[1]}, {rW}, {sWK} offen offset:1024 {OPT['wfl']} lds\n"
             "s_mov_b32 exec_hi, -1"]
        vm.issue(('W', step)); vm.issue(('W', step))
        return l
    if OPT['sb1'] and not OPT['x0e']: a("s_barrier")
    for l in x_dma(vm, 0, 0) + x_dma(vm, 0, 1) + w_dma(0) + w_dma(1): a(l)
    x_addr_setup()
    a(f"v_lshl_add_u32 {t0}, {vqd}, 3, {vr}")
    a(f"v_mul_u32_u24 {t0}, 192, {t0}")
    a(f"v_add_u32 {t0}, {WB}, {t0}")
    a(f"v_and_b32 {t1}, 1, {vqd}")
    a(f"v_lshlrev_b32 {t2}, 5, {t1}")
    a(f"v_lshl_add_u32 {t2}, {vc}, 3, {t2}")
    a(f"s_lshl_b32 {sT0}, {sHI}, 7")
    a(f"v_add3_u32 {wa[0]}, {t0}, {t2}, {sT0}")
    a(f"v_xor_b32 {wa[1]}, 32, {wa[0]}")
    a(f"v_and_b32 {t2}, 2, {vc}")
    a(f"v_add_u32 {t2}, {sHI}, {t2}")
    a(f"v_xor_b32 {t2}, {t2}, {t1}")
    a(f"v_lshlrev_b32 {t2}, 4, {t2}")
    a(f"v_and_b32 {t3}, 1, {vc}")
    a(f"v_lshl_add_u32 {t2}, {t3}, 3, {t2}")
    a(f"v_add3_u32 {wa[2]}, {t0}, {t2}, 64")
    def w_reads(WFb, step):
        return [f"ds_read_b64_tr_b16 {WFb[m*3+i][2*rd:2*rd+2]}, {wa[i]} offset:{(step % 5) * 12288 + m * 6144 + rd * 768}"
                for m in range(2) for i in range(3) for rd in range(2)]
    def t2b_emit():
        if T2:
            for b0 in eval(OPT['t2b']):
                for l in t2_all(b0): a(l)
                vm.issue('T')
    if OPT['t2pos'] == 1:
        if OPT['sb2']: a("s_barrier")
        t2b_emit()
    if OPT['trim']:
        for l in p2_setup(): a(l)
    n = vm.wait_for(lambda t: t in (('X', 0), ('W', 0)))
    a(f"s_waitcnt vmcnt({n})")
    a("s_barrier")
    stamp(a, 1)
    for l in x_reads(XF[0], 0) + w_reads(WF[0], 0): a(l)
    if OPT['fill'] == 0:
        for l in x_dma(vm, 1, 0) + x_dma(vm, 1, 1) + w_dma(2): a(l)
        if OPT['t2pos'] == 2: t2b_emit()
    fq = []
    for st in range(2, 20):
        if st % 2 == 0:
            b = st // 2
            fq += [('X', b, 0, max(0, 2*(b-3)+1)), ('X', b, 1, max(0, 2*(b-3)+1))]
        fq.append(('W', st, 0, max(0, st - 5)))
    for j in range(20):
        cur, nxt = j & 1, (j & 1) ^ 1
        CHK = OPT['chk']
        NB = OPT['nobar']
        if j < NB:
            n = vm.wait_for(lambda t: t in (('X', (j + 1) // 2), ('W', j + 1)) or (j == CHK and t == 'chk') or (j == 16 and t == 'chk2') or (j == NB - 1 and t[0] in 'XW'))
            a(f"s_waitcnt vmcnt({n}) lgkmcnt(0)")
            if j == CHK: init_check(vchk, 128, True)
            if j == 16: init_check(vS2, 136, True)
            a("s_barrier")
        else:
            a("s_waitcnt lgkmcnt(0)")
        sstamp(a, j)
        mains = [f"v_mfma_f32_16x16x32_bf16 {ACC[c][tt]}, {WF[cur][c]}, {XF[cur][tt]}, {'0' if j == 0 else ACC[c][tt]}" for c in range(6) for tt in range(4)]
        pre = burst(vm, *BS[j]) if j in BS else []
        lblk = []
        if j < 19:
            lblk += x_reads(XF[nxt], j + 1) + w_reads(WF[nxt], j + 1)
            if OPT['fill']:
                cnt = OPT['fill'] + (1 if j == 0 else 0)
                while cnt and fq and fq[0][3] <= j:
                    it = fq.pop(0); cnt -= 1
                    lblk += x_dma(vm, it[1], it[2]) if it[0] == 'X' else w_dma(it[1])
            if j == 0 and not OPT['fill']: lblk += w_dma(3) + x_dma(vm, 2, 0) + x_dma(vm, 2, 1) + w_dma(4)
            xb = (j - 1) // 2 + 3 if j >= 1 else 99
            if xb <= 9 and not OPT['fill']: lblk += x_dma(vm, xb, (j - 1) % 2)
            if T2 and j in eval(OPT['t2f']): lblk += t2_one(*eval(OPT['t2f'])[j])
            if j == CHK - 2: lblk += init_check_issue(vchk); vm.issue('chk')
            if j + 5 <= 19 and not OPT['fill']: lblk += w_dma(j + 5)
            if j == 10 and not OPT['trim']: lblk += p2_setup()
            if j == OPT['pj']: lblk += poison(V(248, 4))
            if j == CHK: hq = b_reg(VmTrack(), 0, 'B') + b_reg(VmTrack(), 1, 'B'); hq = [hq[0:3], hq[3:5], [hq[5]] + hq[6:8], hq[8:10], hq[10:12]]
            JJ = [CHK, CHK + 1, CHK + 2, 15, 18]
            if j in JJ:
                q = JJ.index(j)
                if not hq[q][0].startswith('s_'): lblk.append(f"s_add_u32 s4, {sBo}, {0 if q < 3 else 20480}")
                lblk += hq[q]; vm.issue('B'); vm.issue('B')
            if j == 14: lblk += init_check_issue(vS2, 136); vm.issue('chk2')
            if j == 16: lblk += b_row(vm, sBg, GRP[GL[0]], LR[0], None, 0, True)
            if j == 17: lblk += b_row(vm, sBg, GRP[GL[2]], LR[2], sRX)
        else:
            if OPT['b23'] == 0: lblk += b_reg(vm, 2, 'B') + b_reg(vm, 3, 'B')
            if OPT['b23'] == 2: lblk += b_reg(vm, 2, 'B')
        step_body(mains, lblk, pre)
    stamp(a, 2)
    a(f"s_setprio {OPT['eprio']}")
    sN = S(82, 2)
    a(f"s_mov_b32 {sN[0]}, {NLOG2E:#x}")
    a(f"s_mov_b32 {sN[1]}, {NLOG2E:#x}")
    a(f"s_lshl_b32 {sT3}, {sRB}, 2")
    a(f"s_add_u32 {sT3}, {sT3}, {sRG}")
    a(f"s_mul_i32 {sT0}, {sT3}, 74")
    a(f"s_mul_i32 {sT1}, {sID}, 3")
    a(f"s_add_u32 {sT0}, {sT0}, {sT1}")
    a(f"s_lshl_b32 {sT0}, {sT0}, 12")
    a(f"s_lshl_b32 {sT1}, {sHI}, 13")
    a(f"s_add_u32 {sT1}, {sT0}, {sT1}")
    a(f"s_lshl_b32 {sT2}, {sHI}, 9")
    a(f"s_add_u32 {sT2}, {sT2}, {sT0}")
    a(f"s_add_u32 {sT2}, {sT2}, 4096")
    a(f"s_lshl_b32 {sFLAG}, {sT3}, 7")
    a(f"s_add_u32 {sFLAG}, {sFLAG}, {FH}")
    a(f"v_lshlrev_b32 {t0}, 4, {lane}")
    a(f"v_and_b32 {t1}, 31, {lane}")
    a(f"v_lshlrev_b32 {t1}, 4, {t1}")
    a(f"v_lshrrev_b32 {t2}, 5, {lane}")
    a(f"v_lshl_add_u32 {t1}, {t2}, 10, {t1}")
    tmp = [V(FB[1] + 4 * i, 4) for i in range(2)]
    outs = [V(FB[1] + 8 + 4 * i, 4) for i in range(6)]
    cnt_ = [0]
    def silu2(G0, U0, G1, U1, o):
        GU = ((G0, U0, tmp[0]), (G1, U1, tmp[1]))
        pk = cnt_[0] >= OPT['npk']; cnt_[0] += 1
        for G, U, T in GU:
            if pk:
                for h in range(2): a(f"v_pk_mul_f32 {T[2*h:2*h+2]}, {G[2*h:2*h+2]}, {sN}")
            else:
                for k in range(4): a(f"v_mul_f32 {T[k]}, {sN[0]}, {G[k]}")
        for G, U, T in GU:
            for k in range(4): a(f"v_exp_f32 {T[k]}, {T[k]}")
        for G, U, T in GU:
            if pk:
                for h in range(2): a(f"v_pk_mul_f32 {G[2*h:2*h+2]}, {G[2*h:2*h+2]}, {U[2*h:2*h+2]}")
            else:
                for k in range(4): a(f"v_mul_f32 {G[k]}, {G[k]}, {U[k]}")
        for G, U, T in GU:
            if pk:
                for h in range(2): a(f"v_pk_add_f32 {T[2*h:2*h+2]}, {T[2*h:2*h+2]}, 1.0 op_sel_hi:[1,0]")
            else:
                for k in range(4): a(f"v_add_f32 {T[k]}, 1.0, {T[k]}")
        for G, U, T in GU:
            for k in range(4): a(f"v_rcp_f32 {T[k]}, {T[k]}")
        for G, U, T in GU:
            if pk:
                for h in range(2): a(f"v_pk_mul_f32 {G[2*h:2*h+2]}, {G[2*h:2*h+2]}, {T[2*h:2*h+2]}")
            else:
                for k in range(4): a(f"v_mul_f32 {G[k]}, {G[k]}, {T[k]}")
        for q, (G, U, T) in enumerate(GU):
            for h in range(2): a(f"v_cvt_pk_bf16_f32 {o[2*q+h]}, {G[2*h]}, {G[2*h+1]}")
    for tt in range(4):
        o = outs[tt]
        silu2(ACC[0][tt], ACC[3][tt], ACC[1][tt], ACC[4][tt], o)
        a(f"buffer_store_dwordx4 {o}, {t0}, {rWS}, {sT1} offen offset:{tt*1024} {ST}")
    for l in q_flag_issue(): a(l)
    for tp in range(2):
        o = outs[4 + tp]
        silu2(ACC[2][2*tp], ACC[5][2*tp], ACC[2][2*tp+1], ACC[5][2*tp+1], o)
        a(f"v_permlane32_swap_b32 {o[0]}, {o[2]}")
        a(f"v_permlane32_swap_b32 {o[1]}, {o[3]}")
        a(f"buffer_store_dwordx4 {o}, {t1}, {rWS}, {sT2} offen offset:{tp*2048} {ST}")
    flag_store(35)
    a("s_waitcnt vmcnt(2)")
    a(f"s_mov_b32 {sPF}, 0")
    a("s_branch P2")

    for l in OOL: a(l)
    OOL.clear()
    a.label('R_QKV')
    vm = VmTrack()
    vw = [V(R0), V(R0 + 1), V(R0 + 2)]; wa = V(R0 + 3); pa = V(R0 + 4); vchk = V(R0 + 5); vgw = V(R0 + 6)
    FB = [32, 68]
    XF = [[V(FB[b] + 4 * tt, 4) for tt in range(4)] for b in range(2)]
    WF = [[V(FB[b] + 16 + 4 * c, 4) for c in range(5)] for b in range(2)]
    ACC = [V(104 + 20 * tt, 20) for tt in range(4)]
    pf4 = [V(32 + 4 * i, 4) for i in range(9)] + [V(196, 4)]
    pf2 = [V(200, 2), V(202, 2), V(204, 2), V(206, 2), V(248, 2)]
    PF = [[pf4[2 * t], pf4[2 * t + 1], pf2[t]] for t in range(5)]
    WP = V(184, 4); GWF = V(188, 4); GA = V(192, 4)
    sC0, sC1, sLo, sHi2, sISQ, sHB, sGD = [S(77 + i) for i in range(7)]
    PHW = 135168; PHB = 0; VVB = 90112; PS = 352
    srd(a, rW, pQKV, 640 * 3840)
    srd(a, rA, pPHI, 32 * 800)
    a(f"s_lshl_b32 {sID}, {sT0}, 1"); a(f"s_add_u32 {sID}, {sID}, {sC8}")
    a(f"s_mul_i32 {sC0}, {sID}, 160")
    a(f"s_add_u32 {sC1}, {sC0}, 2560")
    a(f"s_add_u32 {sC0}, {sC0}, 1280")
    a(f"s_lshl_b32 {sHB}, {sID}, 2")
    a(f"s_mul_i32 {sT1}, {sT0}, 320")
    a(f"s_add_u32 {sT2}, {sT1}, 160")
    a(f"s_lshl_b32 {sT3}, {sT0}, 3")
    a(f"s_cmp_eq_u32 {sC8}, 2")
    a(f"s_cselect_b32 {sC0}, {sT1}, {sC0}")
    a(f"s_cselect_b32 {sC1}, {sT2}, {sC1}")
    a(f"s_cselect_b32 {sHB}, {sT3}, {sHB}")
    a(f"s_cselect_b32 {sISQ}, 1, 0")
    a(f"s_bitcmp1_b32 {sWV}, 0")
    a(f"s_cselect_b32 {sLo}, {sC1}, {sC0}")
    a(f"s_cselect_b32 {sHi2}, {sC0}, {sC1}")
    a(f"s_sub_u32 {sHi2}, {sHi2}, 160")
    touch_setup(pQKV, pQKV, 3840, sC0, sC1, 160)
    for l in burst(vm, *BS['p0']): a(l)
    for n in range(3):
        a(f"v_add_u32 {t0}, {64*n}, {lane}")
        a(f"v_mul_u32_u24 {t1}, 205, {t0}")
        a(f"v_lshrrev_b32 {t1}, 12, {t1}")
        a(f"v_mul_u32_u24 {t2}, 20, {t1}")
        a(f"v_sub_u32 {t2}, {t0}, {t2}")
        a(f"v_cmp_le_u32 vcc, 10, {t2}")
        a(f"v_mov_b32 {t3}, {sLo}")
        a(f"v_mov_b32 {t4}, {sHi2}")
        a(f"v_cndmask_b32 {t3}, {t3}, {t4}, vcc")
        a(f"v_mul_u32_u24 {t1}, 3840, {t1}")
        a(f"v_lshl_add_u32 {t1}, {t2}, 4, {t1}")
        a(f"v_add_u32 {vw[n]}, {t1}, {t3}")
        if n: a(f"v_subrev_u32 {vw[n]}, {1024*n}, {vw[n]}")
    a(f"s_mul_i32 {sWK}, {sWV}, {8*3840}")
    a(f"s_mul_i32 {sMW}, {sWV}, 2560")
    sW3 = [S(83), S(9)]
    if OPT['swp']:
        a(f"s_mul_i32 {sT1}, {sTY}, 245760"); a(f"s_add_u32 {sWK}, {sWK}, {sT1}"); a(f"s_lshl_b32 {sT1}, {sT1}, 1")
        a(f"s_sub_u32 {sW3[0]}, 245760, {sT1}"); a(f"s_add_u32 {sW3[1]}, {sT1}, 245760")
    def w_dma2(blk):
        l = [f"s_add_u32 m0, {sMW}, {WB + (blk % 3) * 20480}"] + ([f"s_add_u32 {sWK}, {sWK}, {(sW3[0] if blk % 2 else sW3[1]) if OPT['swp'] else 245760}"] if blk else []) + [
             f"buffer_load_dwordx4 {vw[0]}, {rW}, {sWK} offen {OPT['wfl']} lds",
             f"buffer_load_dwordx4 {vw[1]}, {rW}, {sWK} offen offset:1024 {OPT['wfl']} lds",
             "s_mov_b32 exec_hi, 0\n"
             f"buffer_load_dwordx4 {vw[2]}, {rW}, {sWK} offen offset:2048 {OPT['wfl']} lds\n"
             "s_mov_b32 exec_hi, -1"]
        for _ in range(3): vm.issue(('W', blk))
        return l
    a(f"v_lshlrev_b32 {t0}, 4, {tid}")
    a(f"s_mul_i32 {sT0}, {sHB}, 800")
    a(f"v_add_u32 {t0}, {sT0}, {t0}")
    a(f"buffer_load_dwordx4 {WP}, {t0}, {rA}, 0 offen"); vm.issue(('P', 0))
    if OPT['sb1'] and not OPT['x0e']: a("s_barrier")
    for l in x_dma(vm, 0, 0) + x_dma(vm, 0, 1) + w_dma2(0): a(l)
    x_addr_setup()
    a(f"v_lshl_add_u32 {t0}, {vqd}, 3, {vr}")
    a(f"v_mul_u32_u24 {t0}, 320, {t0}")
    a(f"v_and_b32 {t1}, 1, {vqd}")
    a(f"v_xor_b32 {t1}, {sHI}, {t1}")
    a(f"v_mul_u32_u24 {t1}, 160, {t1}")
    a(f"v_mul_u32_u24 {t2}, 40, {vc}")
    a(f"v_add3_u32 {t0}, {t0}, {t1}, {t2}")
    a(f"v_add_u32 {wa}, {WB}, {t0}")
    a(f"s_and_b32 {sT0}, {sHI}, {sISQ}")
    a(f"s_mul_i32 {sT0}, {sT0}, 3200")
    a(f"s_add_u32 {sT0}, {sT0}, {PHW}")
    a(f"v_mul_u32_u24 {t0}, 800, {vqd}")
    a(f"v_add_u32 {t0}, {sT0}, {t0}")
    a(f"v_mov_b32 {t1}, {ZERO}")
    a(f"v_cmp_eq_u32 vcc, {vc}, {vqd}")
    a(f"v_cndmask_b32 {t0}, {t1}, {t0}, vcc")
    a(f"v_mul_u32_u24 {t1}, 40, {vr}")
    a(f"v_add_u32 {pa}, {t0}, {t1}")
    def w_reads2(WFb, step):
        blk, kk = step // 2, step % 2
        return [f"ds_read_b64_tr_b16 {WFb[t][2*rd:2*rd+2]}, {wa} offset:{(blk % 3) * 20480 + kk * 10240 + rd * 1280 + 8 * t}" for t in range(5) for rd in range(2)]
    def t2b_emit():
        if T2:
            for b0 in eval(OPT['t2b']):
                for l in t2_all(b0): a(l)
                vm.issue('T')
    if OPT['t2pos'] == 1:
        if OPT['sb2']: a("s_barrier")
        t2b_emit()
    if OPT['trim']:
        for l in p2_setup(): a(l)
    n = vm.wait_for(lambda t: t in (('X', 0), ('W', 0)))
    a(f"s_waitcnt vmcnt({n})")
    a("s_barrier")
    stamp(a, 1)
    for l in x_reads(XF[0], 0) + w_reads2(WF[0], 0): a(l)
    if OPT['fill'] == 0:
        for l in x_dma(vm, 1, 0) + x_dma(vm, 1, 1) + w_dma2(1): a(l)
        if OPT['t2pos'] == 2: t2b_emit()
    fq = []
    for b in range(1, 10):
        fq += [('X', b, max(0, 2*(b-3)+1)), ('W', b, max(0, 2*(b-3)+1))]
    for j in range(20):
        cur, nxt = j & 1, (j & 1) ^ 1
        if j % 2 == 1:
            if j < 19:
                n = vm.wait_for(lambda t: t in (('X', (j + 1) // 2), ('W', (j + 1) // 2)) or (j == 17 and t == 'chk'))
                a(f"s_waitcnt vmcnt({n}) lgkmcnt(0)")
            else: a("s_waitcnt lgkmcnt(0)")
            if j == 17: init_check(vchk, 128, True)
            a("s_barrier")
        else:
            a("s_waitcnt lgkmcnt(0)")
            if OPT['pp'] or OPT['qbar']: a("s_barrier")
        sstamp(a, j)
        mains = [f"v_mfma_f32_16x16x32_bf16 {ACC[tt][4*t:4*t+4]}, {WF[cur][t]}, {XF[cur][tt]}, {'0' if j == 0 else ACC[tt][4*t:4*t+4]}" for t in range(5) for tt in range(4)]
        pre = burst(vm, *BS[j]) if j in BS else []
        lblk = []
        if j < 19:
            lblk += x_reads(XF[nxt], j + 1) + w_reads2(WF[nxt], j + 1)
            if OPT['fill']:
                cnt = 2 if j in (0, 1, 3, 5) else 1
                while cnt and fq and fq[0][2] <= j:
                    it = fq.pop(0); cnt -= 1
                    lblk += x_dma(vm, it[1], 0) + x_dma(vm, it[1], 1) if it[0] == 'X' else w_dma2(it[1])
            if j == 0 and not OPT['fill']: lblk += x_dma(vm, 2, 0) + x_dma(vm, 2, 1) + w_dma2(2)
            xb = (j - 1) // 2 + 3 if j >= 1 else 99
            if xb <= 9 and not OPT['fill']:
                if j % 2 == 1: lblk += x_dma(vm, xb, 0) + x_dma(vm, xb, 1)
                else: lblk += w_dma2(xb)
            if T2 and j in eval(OPT['t2q']): lblk += t2_one(*eval(OPT['t2q'])[j])
            if OPT['tw'] and j == 2:
                sh = OPT['tw']; npg = (0x1250000 >> sh) + 1
                lanes = min(64, -(-npg // 32)); ninst = -(-npg // (32 * lanes))
                body = f"s_lshl3_add_u32 s4, {sR4}, {sWV}\ns_mul_i32 s4, s4, {lanes}\nv_add_u32 v3, s4, {lane}\nv_lshlrev_b32 v3, {sh}, v3\ns_mov_b64 exec, {hex((1 << lanes) - 1) if lanes < 32 else -1}\n"
                for i in range(ninst):
                    body += f"buffer_load_dword {tdum}, v3, {rWS}, 0 offen offset:3968\nv_add_u32 v3, {32*lanes << sh}, v3\n"
                body += "s_mov_b64 exec, -1\n"
                OOL.append("TWo:\n" + body + "s_branch TWb")
                lblk += [f"s_cmp_eq_u32 {sC8}, 2\ns_cbranch_scc1 TWo\nTWb:"]
            if j == 15: lblk += init_check_issue(vchk); vm.issue('chk')
            if j == 17:
                lblk += [f"v_lshlrev_b32 {t0}, 4, {tid}", f"v_add_u32 {t0}, {PHW}, {t0}", f"ds_write_b128 {t0}, {WP}"]
            if j == 10 and not OPT['trim']: lblk += p2_setup()
            if j == 17: lblk += poison(V(208, 4))

        else:
            for t in range(5):
                for s in range(3):
                    for r_ in range(2 if s < 2 else 1):
                        lblk.append(f"ds_read_b64_tr_b16 {PF[t][s][2*r_:2*r_+2]}, {pa} offset:{s*320 + r_*160 + t*8}")
        step_body(mains, lblk, pre)
    stamp(a, 2)
    a("s_setprio 2")
    QB = V(68, 40); P = V(108, 20); E = V(128, 40); O = V(168, 20); M = V(250, 4); T = V(188, 4); ONE = V(192, 2)
    sCNT = S(8); sOUT = S(9)
    def cvt_tile(dst, tt):
        for i in range(10): a(f"v_cvt_pk_bf16_f32 {dst[i]}, {ACC[tt][2*i]}, {ACC[tt][2*i+1]}")
    def pk_list(q, P=P):
        l = []
        for s_ in range(3):
            for t in range(5):
                d = P[4*t:4*t+4]
                if s_ < 2: l.append(f"v_mfma_f32_16x16x32_bf16 {d}, {PF[t][s_]}, {q[4*s_:4*s_+4]}, {'0' if s_ == 0 else d}")
                else: l.append(f"v_mfma_f32_16x16x16_bf16 {d}, {PF[t][s_]}, {q[8:10]}, {d}")
        return l
    a(f"s_lshl_b32 {sT3}, {sRB}, 2")
    a(f"s_add_u32 {sT3}, {sT3}, {sRG}")
    a(f"s_cmp_eq_u32 {sISQ}, 0")
    a("s_cbranch_scc1 R_KV")
    for tt in range(4): cvt_tile(QB[10*tt:10*tt+10], tt)
    a("s_waitcnt lgkmcnt(0)")
    PT = [V(108 + 20*i, 20) for i in range(4)]
    a(f"s_lshr_b32 {sT1}, {sHB}, 2")
    a(f"s_add_u32 {sT1}, {sT1}, {sHI}")
    a(f"s_lshl_b32 {sOUT}, {sT3}, 3")
    a(f"s_add_u32 {sOUT}, {sOUT}, {sT1}")
    a(f"s_mul_i32 {sOUT}, {sOUT}, 10240")
    a(f"s_add_u32 {sOUT}, {sOUT}, {PQ}")
    a(f"s_add_u32 {sT0}, {sOUT}, 8192")
    a(f"s_lshl_b32 {sFLAG}, {sT3}, 7")
    a(f"s_add_u32 {sFLAG}, {sFLAG}, {FH + 4}")
    QO = [V(208 + 8*i, 8) for i in range(4)]; QT = [V(240, 4), V(244, 4)]
    def q_out(tt):
        l = [f"v_cvt_pk_bf16_f32 {QO[tt][i] if i < 8 else QT[tt//2][2*(tt%2) + i - 8]}, {PT[tt][2*i]}, {PT[tt][2*i+1]}" for i in range(10)]
        for h in range(2): l.append(f"buffer_store_dwordx4 {QO[tt][4*h:4*h+4]}, {vo if tt < 2 else vo4}, {rWS}, {sOUT} offen offset:{(tt%2)*2048 + h*1024} {ST}")
        if tt % 2: l.append(f"buffer_store_dwordx4 {QT[tt//2]}, {vo}, {rWS}, {sT0} offen offset:{(tt//2)*1024} {ST}")
        return l
    for tt in range(4):
        side = q_out(tt - 1) if tt else []
        for i, l in enumerate(pk_list(QB[10*tt:10*tt+10], PT[tt])):
            a(l)
            if i >= 2 and side: a(side.pop(0))
    for l in q_out(3): a(l)
    flag_store(7)
    a(f"v_mov_b32 {vFQ}, 0")
    a(f"s_mov_b32 {sPF}, 6")
    a("s_branch P2")
    a.label('R_KV')
    a(f"s_lshl_b32 {sT1}, {sRG}, 1"); a(f"s_add_u32 {sT0}, {sT1}, 1"); a(f"s_mul_i32 {sT0}, {sT0}, {32*PS}")
    a(f"v_add_u32 {t0}, {sT0}, {vo}")
    a(f"s_mov_b32 {sCNT}, 2")
    a(f"s_cmp_eq_u32 {sHI}, 1")
    a("s_cbranch_scc1 R_V")
    if OPT['trim']:
        cvt_tile(QB[0:10], 0)
        cvt_tile(QB[20:30], 2); cvt_tile(QB[30:40], 3)
        a("s_waitcnt lgkmcnt(0)")
        for i in range(5): a(f"ds_write_b128 {t0}, {QB[20+4*i:24+4*i]} offset:{i*1024}")
        cv = [f"v_cvt_pk_bf16_f32 {QB[10+i]}, {ACC[1][2*i]}, {ACC[1][2*i+1]}" for i in range(10)]
        a(cv.pop(0)); a(cv.pop(0))
        for i, l in enumerate(pk_list(QB[0:10])):
            a(l)
            if cv: a(cv.pop(0))
            if i == 8: a("s_waitcnt lgkmcnt(0)"); a("s_barrier")
    else:
        cvt_tile(QB[0:10], 0)
        cvt_tile(QB[20:30], 2); cvt_tile(QB[30:40], 3)
        for i in range(5): a(f"ds_write_b128 {t0}, {QB[20+4*i:24+4*i]} offset:{i*1024}")
        cvt_tile(QB[10:20], 1)
        a("s_waitcnt lgkmcnt(0)")
        a("s_barrier")
        for l in pk_list(QB[0:10]): a(l)
    a("s_branch R_KV2")
    a.label('R_V')
    VBt = {3: V(88, 10), 0: V(98, 10), 1: V(168, 10), 2: V(178, 10)}
    for tt in (3, 0, 1, 2): cvt_tile(VBt[tt], tt)
    a(f"s_mul_i32 {sT2}, {sRG}, {64*176}")
    a(f"s_add_u32 {sT2}, {sT2}, {VVB}")
    a(f"v_mul_u32_u24 {t2}, 176, {vl15}")
    a(f"v_add_u32 {t1}, {sT2}, {t2}")
    a(f"v_mul_u32_u24 {t3}, 40, {vqd}")
    a(f"v_add_u32 {t2}, {t1}, {t3}")
    a(f"v_mov_b32 {ONE[0]}, 0x3f80")
    a(f"v_mov_b32 {ONE[1]}, 0")
    a("s_barrier")
    for i in range(5): a(f"ds_read_b128 {QB[4*i:4*i+4]}, {t0} offset:{i*1024}")
    side = []
    for tt in (3, 0, 1, 2):
        for i in range(5): side.append(f"ds_write_b64 {t2}, {VBt[tt][2*i:2*i+2]} offset:{tt*2816 + 8*i}")
        side.append(f"ds_write_b64 {t1}, {ONE} offset:{tt*2816 + 160}")
    for i in range(9): a(side.pop(0))
    a("s_waitcnt lgkmcnt(9)")
    for l in pk_list(QB[0:10]): a(l); a(side.pop(0))
    a.label('R_KV2')
    a(f"s_add_u32 {sT1}, {sT1}, {sHI}"); a(f"s_mul_i32 {sT1}, {sT1}, {32*PS}")
    a(f"v_mul_u32_u24 {t4}, {PS}, {vl15}")
    a(f"v_mul_u32_u24 {t3}, 80, {vqd}")
    a(f"v_add3_u32 {t4}, {t4}, {t3}, {sT1}")
    stamp(a, 12)
    for u in range(2):
        if u == 0:
            bl = b_reg(vm, 0, 'B') + b_reg(vm, 1, 'B'); pl = pk_list(QB[10:20])
            sd = [pl[i] + ("\n" + bl[i] if i < len(bl) else "") for i in range(15)]
        else: sd = b_reg(vm, 2, 'B') + b_reg(vm, 3, 'B')
        softmax_unit(a, P, E, M, T, O, sd + ["s_waitcnt lgkmcnt(0)"])
        for s_ in range(5): a(f"ds_write_b128 {t4}, {O[4*s_:4*s_+4]} offset:{PHB + u*16*PS + 16*s_}")
    a(f"v_lshl_add_u32 {t0}, {vqd}, 2, {vr}")
    a(f"v_mul_u32_u24 {t1}, {PS}, {t0}")
    a(f"s_mul_i32 {sT0}, {sRG}, 80")
    a(f"v_lshl_add_u32 {t1}, {vc}, 3, {t1}")
    a(f"v_add_u32 {t1}, {sT0}, {t1}")
    a(f"v_add_u32 {t2}, {128*PS}, {t1}")
    a(f"v_mul_u32_u24 {t0}, 176, {t0}")
    a(f"s_mul_i32 {sT0}, {sRG}, 40")
    a(f"s_mul_i32 {sT1}, {sHI}, 24")
    a(f"s_add_u32 {sT0}, {sT0}, {sT1}")
    a(f"v_lshl_add_u32 {t3}, {vc}, 3, {sT0}")
    a(f"v_mul_u32_u24 {t4}, {sHI}, {vc}")
    a(f"v_cmp_lt_u32 vcc, 1, {t4}")
    a(f"v_mov_b32 {t4}, 160")
    a(f"v_cndmask_b32 {t3}, {t3}, {t4}, vcc")
    a(f"v_add_u32 {t3}, {VVB}, {t3}")
    a(f"v_add_u32 {t3}, {t0}, {t3}")
    stamp(a, 13)
    a("s_waitcnt lgkmcnt(0)")
    a("s_barrier")
    stamp(a, 14)
    a(f"s_lshl_b32 {sFLAG}, {sID}, 7"); a(f"s_add_u32 {sFLAG}, {sFLAG}, {FK}")
    def k_hint():
        a("v_mov_b32 v29, 1"); a("v_mov_b32 v11, 0")
        a(f"s_cmp_lg_u32 {sWV}, 7"); a("s_cbranch_scc1 KH1")
        a("s_mov_b64 exec, 1"); a(f"buffer_atomic_add v29, v11, {rWS}, {sFLAG} offen sc0 sc1"); a("s_mov_b64 exec, -1")
        a.label('KH1')
    if OPT['kh'] == 0: k_hint()
    for l in q_flag_issue(): a(l)
    KA = [[V(72 + (b*4 + f)*4, 4) for f in range(4)] for b in range(3)]
    KD = [V(128 + 4*f, 4) for f in range(3)]
    def kv_reads(b, s):
        l = []
        for rd in range(2):
            l.append(f"ds_read_b64_tr_b16 {KA[b][3][2*rd:2*rd+2]}, {t3} offset:{s*5632 + rd*2816}")
        for f in range(3):
            for rd in range(2):
                l.append(f"ds_read_b64_tr_b16 {KA[b][f][2*rd:2*rd+2]}, {t1 if s < 4 else t2} offset:{(s % 4)*32*PS + rd*16*PS + f*32}")
        return l
    allr = [l for s in range(8) for l in kv_reads(s % 3, s)]
    pos = 0
    for s in range(8):
        for f in range(3):
            needr = s * 8 + 2 + 2 * (f + 1)
            lim = min(len(allr), needr + 12, (s + 2) * 8 + (2 + 2 * f if False else 0) + 8 - 8 + 0) if False else min(len(allr), needr + 12)
            lim = min(lim, (s + 3) * 8)
            while pos < lim: a(allr[pos]); pos += 1
            a(f"s_waitcnt lgkmcnt({pos - needr})")
            a(f"v_mfma_f32_16x16x32_bf16 {KD[f]}, {KA[s%3][f]}, {KA[s%3][3]}, {'0' if s == 0 else KD[f]}")
    stamp(a, 15)
    a(f"s_add_u32 {sT0}, {sHB}, {sRG}")
    a(f"s_lshl_b32 {sT0}, {sT0}, 1")
    a(f"s_add_u32 {sT0}, {sT0}, {sHI}")
    a(f"s_mul_i32 {sT0}, {sT0}, 3072")
    a(f"s_add_u32 {sT0}, {sT0}, {KVACC}")
    if OPT['kh'] == 1: k_hint()
    def k_go(n):
        a(f"s_cmp_lg_u32 {sWV}, 7"); a("s_cbranch_scc1 KH2")
        a(f"s_waitcnt vmcnt({n})")
        a("v_cmp_eq_u32 vcc, 7, v29"); a(f"s_add_u32 s4, {sFLAG}, {GOD}"); a("s_and_b64 exec, vcc, 1")
        a(f"buffer_store_dword v29, v11, {rWS}, s4 offen sc1"); a("s_mov_b64 exec, -1")
        a.label('KH2')
    if OPT['kh'] == 0: k_go(0)
    a(f"v_lshlrev_b32 {t2}, 2, {lane}")
    a(f"v_cmp_eq_u32 vcc, 15, {vl15}")
    for f in range(3):
        for j in range(4): a(f"v_cndmask_b32 {KD[f][j]}, {KD[f][j]}, 1.0, vcc")
    for f in range(3):
        if f == 2: a("s_mov_b32 exec_hi, 0")
        for j in range(4):
            a(f"buffer_atomic_add_f32 {KD[f][j]}, {t2}, {rWS}, {sT0} offen offset:{f*1024 + j*256} {OPT['atf']}")
    a("s_mov_b32 exec_hi, -1")
    if OPT['kh'] == 1: k_go(12)
    a("s_waitcnt vmcnt(12)")
    flag_store(-1)
    a(f"s_mov_b32 {sPF}, 4")
    a("s_branch P2")

    for l in OOL: a(l)
    OOL.clear()
    a.label('R_SPARE')
    sSP, sU, sSO, sST = S(77), S(78), S(79), S(80)
    va = Alloc('v', 176, 250)
    vf = [va() for _ in range(5)]; vat = [va() for _ in range(5)]
    rf = [va() for _ in range(5)]; rat = [va(), va()]
    vst = va(); vst4 = va()
    FR = [[va(4) for _ in range(5)] for b in range(2)]
    Z4 = va(4)
    NT = OPT['spnt']
    if T2:
        for b0 in eval(OPT['t2b']):
            for l in t2_all(b0): a(l)
    srd(a, rA, pWD, 1728 * 1280)
    srd(a, rB, pWO, 640 * 1280)
    a(f"s_lshr_b32 {sSP}, {sT0}, 1")
    a(f"s_lshl_b32 {sSP}, {sSP}, 3")
    a(f"s_add_u32 {sSP}, {sSP}, {sRB}")
    a(f"s_lshl_b32 {sT0}, {sWV}, 2")
    a(f"s_mul_i32 {sT1}, {sWV}, 20")
    for n in range(5):
        a(f"v_add_u32 {t0}, {64*n}, {lane}")
        a(f"v_mul_u32_u24 {t1}, 205, {t0}")
        a(f"v_lshrrev_b32 {t1}, 14, {t1}")
        a(f"v_mul_u32_u24 {t2}, 80, {t1}")
        a(f"v_sub_u32 {t2}, {t0}, {t2}")
        a(f"v_add_u32 {t1}, {sT0}, {t1}")
        a(f"v_and_b32 {t3}, 7, {t1}")
        a(f"v_lshlrev_b32 {t3}, 1, {t3}")
        a(f"v_xor_b32 {t2}, {t2}, {t3}")
        a(f"v_mul_u32_u24 {t1}, 1280, {t1}")
        a(f"v_lshl_add_u32 {vf[n]}, {t2}, 4, {t1}")
        if n % 4: a(f"v_subrev_u32 {vf[n]}, {1024*(n%4)}, {vf[n]}")
    a(f"s_mul_i32 {sM}, {sWV}, 5120")
    def u_dma(buf, typ):
        if typ == 'F':
            a(f"s_mul_i32 {sSO}, {sU}, 40960")
            vv, rr = vf, rA
        else:
            a(f"s_sub_u32 {sT2}, {sU}, 54")
            a(f"s_mul_i32 {sT3}, {sT2}, 52")
            a(f"s_lshr_b32 {sT3}, {sT3}, 8")
            a(f"s_mul_i32 {sSO}, {sT3}, {160*1280 - 5*256}")
            a(f"s_lshl_b32 {sT2}, {sT2}, 8")
            a(f"s_add_u32 {sSO}, {sSO}, {sT2}")
            vv, rr = vat, rB
        a(f"s_add_u32 m0, {sM}, {buf*40960}")
        for n in range(4):
            a(f"buffer_load_dwordx4 {vv[n]}, {rr}, {sSO} offen offset:{n*1024} {NT} lds")
        a(f"s_add_u32 m0, {sM}, {buf*40960 + 4096}")
        a(f"buffer_load_dwordx4 {vv[4]}, {rr}, {sSO} offen {NT} lds")
    def dyn(it, fn):
        if it == 4:
            a(f"s_add_u32 {sU}, {sSP}, 64"); a(f"s_min_u32 {sU}, {sU}, 73"); fn('A'); return
        a(f"s_add_u32 {sU}, {sSP}, {16*it}")
        if it <= 2: fn('F')
        else:
            l1, l2 = a.newlabel('SP'), a.newlabel('SP')
            a(f"s_cmp_ge_u32 {sU}, 54"); a(f"s_cbranch_scc1 {l1}")
            fn('F'); a(f"s_branch {l2}"); a.label(l1); fn('A'); a.label(l2)
    for it in range(3): dyn(it, lambda typ: u_dma(it, typ))
    a(f"v_lshlrev_b32 {t0}, 4, {tid}")
    for i in range(4): a(f"v_mov_b32 {Z4[i]}, 0")
    a(f"s_mul_i32 {sT2}, {sSP}, 13568")
    a(f"s_add_u32 {sT2}, {sT2}, {KVACC}")
    a(f"buffer_store_dwordx4 {Z4}, {t0}, {rWS}, {sT2} offen {ST}")
    a(f"s_add_u32 {sT2}, {sT2}, {13568 - 8192}")
    a(f"buffer_store_dwordx4 {Z4}, {t0}, {rWS}, {sT2} offen {ST}")
    for n in range(5):
        a(f"v_add_u32 {t1}, {4*n}, {vqd}")
        a(f"v_add_u32 {t1}, {sT1}, {t1}")
        a(f"v_and_b32 {t3}, 7, {t1}")
        a(f"v_lshlrev_b32 {t3}, 1, {t3}")
        a(f"v_xor_b32 {t2}, {vl15}, {t3}")
        a(f"v_mul_u32_u24 {t1}, 1280, {t1}")
        a(f"v_lshl_add_u32 {vat[n]}, {t2}, 4, {t1}")
        if n % 4: a(f"v_subrev_u32 {vat[n]}, {1024*(n%4)}, {vat[n]}")
    a(f"v_lshl_add_u32 {t0}, {vqd}, 2, {vr}")
    a(f"v_and_b32 {t1}, 7, {t0}")
    a(f"v_lshlrev_b32 {t1}, 1, {t1}")
    a(f"v_mul_u32_u24 {t0}, 1280, {t0}")
    a(f"v_and_b32 {t2}, 1, {vc}")
    a(f"v_lshl_add_u32 {t0}, {t2}, 3, {t0}")
    a(f"v_lshrrev_b32 {t3}, 1, {vc}")
    a(f"s_mul_i32 {sT0}, {sWV}, 10")
    a(f"v_add_u32 {t4}, {sT0}, {t3}")
    for j in range(5):
        a(f"v_add_u32 {rf[j]}, {2*j}, {t4}")
        a(f"v_xor_b32 {rf[j]}, {rf[j]}, {t1}")
        a(f"v_lshl_add_u32 {rf[j]}, {rf[j]}, 4, {t0}")
    a(f"v_mul_u32_u24 {t0}, 20, {vqd}")
    a(f"v_add_u32 {t0}, {t0}, {vr}")
    a(f"v_lshlrev_b32 {t0}, 8, {t0}")
    a(f"v_lshl_add_u32 {t0}, {t2}, 3, {t0}")
    a(f"s_lshl_b32 {sT0}, {sWV}, 1")
    a(f"v_add_u32 {t4}, {sT0}, {t3}")
    a(f"v_xor_b32 {t4}, {t4}, {t1}")
    a(f"v_lshl_add_u32 {rat[0]}, {t4}, 4, {t0}")
    a(f"v_xor_b32 {rat[1]}, 128, {rat[0]}")
    a(f"v_lshlrev_b32 {vst}, 4, {lane}")
    a(f"v_add_u32 {vst4}, 4096, {vst}")
    def u_proc(buf, typ, F):
        if typ == 'F':
            for j in range(5):
                a(f"v_add_u32 {t0}, {buf*40960}, {rf[j]}")
                for rd in range(2):
                    a(f"ds_read_b64_tr_b16 {F[j][2*rd:2*rd+2]}, {t0} offset:{rd*20480}")
            a(f"s_mul_i32 {sST}, {sWV}, 74")
            a(f"s_add_u32 {sST}, {sST}, {sU}")
            a(f"s_mul_i32 {sST}, {sST}, 5120")
            a(f"s_add_u32 {sST}, {sST}, {BP}")
            a("s_waitcnt lgkmcnt(0)")
            for j in range(5):
                if j < 4: a(f"buffer_store_dwordx4 {F[j]}, {vst}, {rWS}, {sST} offen offset:{j*1024} {ST}")
                else: a(f"buffer_store_dwordx4 {F[j]}, {vst4}, {rWS}, {sST} offen {ST}")
        else:
            bases = [(0, 4), (8, 12), (16, 96), (80, 84), (88, 92)]
            a(f"v_add_u32 {t0}, {buf*40960}, {rat[0]}")
            a(f"v_add_u32 {t1}, {buf*40960}, {rat[1]}")
            a(f"v_lshrrev_b32 {t4}, 1, {vqd}"); a(f"v_mul_u32_u24 {t4}, {40*256}, {t4}"); a(f"v_add_u32 {t4}, {t4}, {t0}")
            for s5 in range(5):
                for rd in range(2):
                    b = bases[s5][rd]
                    if s5 == 2: a(f"ds_read_b64_tr_b16 {F[s5][2*rd:2*rd+2]}, {t4} offset:{(16 + 40*rd)*256}")
                    else: a(f"ds_read_b64_tr_b16 {F[s5][2*rd:2*rd+2]}, {t1 if b % 8 else t0} offset:{b*256}")
            a(f"s_sub_u32 {sT2}, {sU}, 54")
            a(f"s_mul_i32 {sT3}, {sT2}, 52")
            a(f"s_lshr_b32 {sT3}, {sT3}, 8")
            a(f"s_mul_i32 {sT0}, {sT3}, 5")
            a(f"s_sub_u32 {sT2}, {sT2}, {sT0}")
            a(f"s_lshl_b32 {sT2}, {sT2}, 3")
            a(f"s_add_u32 {sT2}, {sT2}, {sWV}")
            a(f"s_mul_i32 {sT1}, {sT2}, 52")
            a(f"s_lshr_b32 {sT1}, {sT1}, 8")
            a(f"s_mul_i32 {sST}, {sT1}, 5")
            a(f"s_sub_u32 {sT2}, {sT2}, {sST}")
            a(f"s_mul_i32 {sST}, {sT1}, 74")
            a(f"s_add_u32 {sST}, {sST}, {sT0}")
            a(f"s_add_u32 {sST}, {sST}, 54")
            a(f"s_mul_i32 {sST}, {sST}, 5120")
            a(f"s_lshl_b32 {sT2}, {sT2}, 10")
            a(f"s_add_u32 {sST}, {sST}, {sT2}")
            a(f"s_add_u32 {sST}, {sST}, {BP}")
            a("s_waitcnt lgkmcnt(0)")
            for s5 in range(5):
                a(f"buffer_store_dwordx4 {F[s5]}, {vst}, {rWS}, {sST} offen {ST}")
                if s5 < 4: a(f"s_add_u32 {sST}, {sST}, 5120")
    vm = VmTrack()
    for t in ['D0']*5 + ['D1']*5 + ['D2']*5 + ['Z']*2: vm.issue(t)
    def sp_signal(k):
        lsk = a.newlabel('SPD')
        a(f"s_cmp_lg_u32 {sWV}, 7"); a(f"s_cbranch_scc1 {lsk}")
        a(f"v_mov_b32 {t2}, 0"); a(f"v_mov_b32 {t3}, 1")
        a("s_mov_b64 exec, 1")
        a(f"buffer_atomic_add {t3}, {t2}, {rDBG}, 0 offen offset:{4*k} sc0 sc1")
        a("s_waitcnt vmcnt(0)")
        a(f"v_cmp_eq_u32 vcc, 15, {t3}")
        a("s_and_b64 exec, exec, vcc")
        a(f"buffer_store_dword {t3}, {t2}, {rDBG}, 0 offen offset:{128 + 4*k} sc1")
        a("s_mov_b64 exec, -1")
        a.label(lsk)
    for it in range(5):
        n = vm.wait_for(lambda t: t == f'D{it}' or (it == 3 and t == 'S2') or (it == 2 and t == 'S1'))
        a(f"s_waitcnt vmcnt({n})")
        a("s_barrier")
        if it == 2: sp_signal(0); stamp(a, 1)
        if it == 3: sp_signal(2)
        dyn(it, lambda typ: u_proc(it % 3, typ, FR[it & 1]))
        for _ in range(5): vm.issue(f'S{it}')
        if it == OPT['t2si'] and T2 and OPT['t2s']:
            a(f"s_and_b32 s4, {sWV}, 1"); a(f"s_lshl1_add_u32 s4, {sSP}, s4"); a("s_lshl_b32 s4, s4, 6"); a("s_mul_i32 s4, s4, s5")
            a(f"s_mul_i32 s6, {sBK}, {OPT['t2s']}"); a("s_add_u32 s4, s4, s6")
            a(f"v_add_u32 v21, s4, {vt1}")
            a(f"buffer_load_dword {tdum}, v21, {rTT}, 0 offen"); vm.issue('T')
        if it in (1, 2):
            dyn(it + 2, lambda typ: u_dma(it - 1, typ))
            for _ in range(5): vm.issue(f'D{it+2}')
    a("s_waitcnt vmcnt(0)")
    a("s_barrier")
    sp_signal(1)
    stamp(a, 2)
    GW = [V(72 + 4*i, 4) for i in range(5)]
    GX = [[V(96 + (g*5 + i)*4, 4) for i in range(5)] for g in range(4)]
    GA = [V(92 + g) for g in range(4)]
    srd(a, rW, pGW, 1280)
    a(f"v_lshlrev_b32 {t0}, 4, {vl15}")
    for i in range(5): a(f"buffer_load_dwordx4 {GW[i]}, {t0}, {rW}, 0 offen offset:{i*256}")
    a(f"v_mul_u32_u24 {t1}, 1280, {vqd}")
    a(f"v_add_u32 {t0}, {t0}, {t1}")
    a(f"s_lshl_b32 {sT3}, {sSP}, 3")
    a(f"s_add_u32 {sT3}, {sT3}, {sWV}")
    a(f"s_mul_i32 {sT2}, {sT3}, {16*1280}")
    for g in range(4):
        for i in range(5): a(f"buffer_load_dwordx4 {GX[g][i]}, {t0}, {rX}, {sT2} offen offset:{i*256}")
        if g < 3: a(f"s_add_u32 {sT2}, {sT2}, {4*1280}")
    for g in range(4): a(f"v_mov_b32 {GA[g]}, 0")
    init_poll(a, t1, 128)
    for i in range(5):
        for k in range(4):
            for g in range(4): a(f"v_dot2c_f32_bf16 {GA[g]}, {GX[g][i][k]}, {GW[i][k]}")
    for sh in (8, 4, 2, 1):
        for g in range(4): a(f"v_add_f32_dpp {GA[g]}, {GA[g]}, {GA[g]} row_ror:{sh} row_mask:0xf bank_mask:0xf")
    for g in range(4): a(f"v_mul_f32 {GA[g]}, {LOG2E:#x}, {GA[g]}")
    for g in range(4): a(f"v_min_f32 {GA[g]}, 0x42a00000, {GA[g]}")
    for g in range(4): a(f"v_exp_f32 {GA[g]}, {GA[g]}")
    a(f"v_mov_b32 {t2}, {GA[0]}")
    for g in range(1, 4):
        a(f"v_cmp_eq_u32 vcc, {g}, {vl15}"); a(f"v_cndmask_b32 {t2}, {t2}, {GA[g]}, vcc")
    a(f"v_lshl_add_u32 {t0}, {vl15}, 2, {vqd}")
    a(f"v_lshlrev_b32 {t3}, 2, {t0}")
    a(f"s_lshl_b32 {sT2}, {sT3}, 6"); a(f"s_add_u32 {sT2}, {sT2}, {GOFF}")
    a("s_mov_b32 exec_lo, 0x000f000f"); a("s_mov_b32 exec_hi, 0x000f000f")
    a(f"buffer_store_dword {t2}, {t3}, {rWS}, {sT2} offen {ST}")
    a("s_mov_b64 exec, -1")
    a(f"s_lshr_b32 {sFLAG}, {sT3}, 2"); a(f"s_lshl_b32 {sFLAG}, {sFLAG}, 7"); a(f"s_add_u32 {sFLAG}, {sFLAG}, {FH + 12}")
    flag_store(3)
    a(f"v_mov_b32 {vFQ}, 0")

    vm = VmTrack()
    a(f"s_mov_b32 {sPF}, 7")
    a.label('P2')
    stamp(a, 3)
    a(f"s_bitcmp0_b32 {sPF}, 0"); a("s_cbranch_scc1 P2_E1")
    for l in p2_setup() + poison(V(208, 4)): a(l)
    a.label('P2_E1')
    vG = V(16, 4); vz = V(11); ka = V(12); kw = V(13); vbl = V(15); vcn = V(14)
    ACC = [[V(72 + (tt * 5 + j) * 4, 4) for j in range(5)] for tt in range(4)]
    ARl = [V(152 + 4 * i, 4) for i in range(14)] + [V(248, 4), V(24, 4)]
    AR = [ARl[4*b:4*b+4] for b in range(4)]
    sFHo = S(78)
    rOUT = rX
    INP2[0] = True
    if OPT['noa'] == 1 or OPT['nob']: srd(a, rA, pWS, 0)
    a(f"v_mov_b32 {vz}, 0")
    a(f"v_mov_b32 {vcn}, {CNT}")
    a(f"v_add_u32 {vbl}, {sLC}, {vo}")
    vbl2 = V(23)
    a(f"v_add_u32 {vbl2}, {3*20480}, {vbl}")
    def lrow(row, j):
        return (vbl, row*20480 + j*1024) if row < 3 else (vbl2, (row-3)*20480 + j*1024)
    CG_ = {4:3, 5:4, 6:0, 7:1, 8:2} if OPT['gf'] & 2 else {4:0, 5:1, 6:2, 7:3, 8:4}
    def a_loads(i, tag, vts=None, r=None):
        b = i % 4; r = r or rWS
        if OPT['noa'] == 1: r = rA
        if OPT['noa'] == 3: return []
        if OPT['noa'] == 2: return [f"s_mov_b32 {sT0}, {sAo}"] + [(f"buffer_load_dwordx4 {AR[b][tt]}, {vo}, {r}, {sT0} offen offset:{tt*1024} {LD}", vm.issue(tag))[0] for tt in range(4)]
        l = [f"s_add_u32 {sT0}, {sAo}, {((i*16384 if i < 4 else CA0 + CG_[i]*16384) if vts else GRP[i]*16384)}"]
        for tt in range(4):
            if vts: l.append(f"buffer_load_dwordx4 {AR[b][tt]}, {vts[tt]}, {r}, {sT0} offen {LD}")
            else: l.append(f"buffer_load_dwordx4 {AR[b][tt]}, {vo}, {r}, {sT0} offen offset:{tt*1024} {LD}")
            vm.issue(tag)
        return l
    def b_fromlds(i, row):
        return ["ds_read_b128 %s, %s offset:%d" % ((BR[i % 4][j],) + lrow(row, j)) for j in range(5)]
    def mm(b, zero, side=[], every=2):
        side = list(side)
        for j in range(5):
            for tt in range(4):
                d = ACC[tt][j]
                a(f"v_mfma_f32_16x16x32_bf16 {d}, {BR[b][j]}, {AR[b][tt]}, {'0' if tt in zero else d}")
                while side and side[0].startswith('s_'): a(side.pop(0))
                if side and tt % every == every - 1: a(side.pop(0))
        for l in side: a(l)
    def g_load():
        a(f"s_lshl_b32 {sT0}, {sR6}, 8"); a(f"s_add_u32 {sT0}, {sT0}, {GOFF}")
        a(f"v_lshlrev_b32 {t0}, 4, {vl15}")
        a(f"buffer_load_dwordx4 {vG}, {t0}, {rWS}, {sT0} offen {LD}")
    def lds_signal(off):
        a(f"v_mov_b32 {t1}, 1")
        a("s_waitcnt lgkmcnt(0)")
        a("s_mov_b64 exec, 1")
        a(f"ds_add_u32 {vcn}, {t1} offset:{off}")
        a("s_mov_b64 exec, -1")
    def lds_wait(off, n):
        L = a.newlabel('LW')
        a.label(L)
        a(f"ds_read_b32 {t1}, {vcn} offset:{off}")
        a("s_waitcnt lgkmcnt(0)")
        a(f"v_readfirstlane_b32 {sT0}, {t1}")
        a(f"s_cmp_ge_u32 {sT0}, {n}")
        a(f"s_cbranch_scc1 {L}d")
        a("s_sleep 1")
        a(f"s_branch {L}")
        a.label(L + 'd')
    vAT = V(29); vFG = V(28)
    PB = V(176, 12); PU = V(152, 20)
    def pq_loads():
        a(f"s_lshl3_add_u32 {sT0}, {sR6}, {sCG}")
        a(f"s_mul_i32 {sT0}, {sT0}, 10240"); a(f"s_add_u32 {sT0}, {sT0}, {PQ}")
        a(f"s_lshl_b32 {sT1}, {sRG}, 11"); a(f"s_add_u32 {sT1}, {sT1}, {sT0}")
        for h in range(2): a(f"buffer_load_dwordx4 {PB[4*h:4*h+4]}, {vo}, {rWS}, {sT1} offen offset:{h*1024} {LD}")
        a(f"s_lshr_b32 {sT1}, {sRG}, 1"); a(f"s_lshl_b32 {sT1}, {sT1}, 10"); a(f"s_add_u32 {sT0}, {sT0}, {sT1}")
        a(f"s_and_b32 {sT1}, {sRG}, 1"); a(f"s_lshl3_add_u32 {sT0}, {sT1}, {sT0}"); a(f"s_add_u32 {sT0}, {sT0}, 8192")
        a(f"buffer_load_dwordx2 {PB[8:10]}, {vo}, {rWS}, {sT0} offen {LD}")
    sQF = S(83)
    a(f"v_readfirstlane_b32 {sQF}, {vFQ}")
    a(f"s_cmp_eq_u32 {sHI}, 1"); a(f"s_cselect_b32 {sQF}, 0, {sQF}")
    a(f"s_cmp_eq_u32 {sQF}, 0"); a("s_cbranch_scc1 P2_NQ")
    pq_loads()
    a.label('P2_NQ')
    a(f"buffer_load_dword {vS2}, {vz}, {rDBG}, 0 offen offset:132 sc1")
    a(f"v_mov_b32 {vAT}, 1"); a(f"v_mov_b32 {t1}, 1")
    B3 = OPT['b23'] == 3
    if B3:
        a(f"s_cmp_lg_u32 {sPF}, 0"); a("s_cbranch_scc1 P2_D0")
        for l in b_reg(vm, 2, 'B'): a(l)
        a("s_waitcnt vmcnt(5) lgkmcnt(0)")
        a("s_branch P2_D1")
        a.label('P2_D0')
    a("s_waitcnt vmcnt(0) lgkmcnt(0)")
    if B3: a.label('P2_D1')
    a("s_mov_b64 exec, 1")
    a(f"ds_add_rtn_u32 {t1}, {vcn}, {t1} offset:16")
    a(f"s_cmp_eq_u32 {sPF}, 4"); a("s_cbranch_scc1 P2_A2")
    a(f"buffer_atomic_add {vAT}, {vz}, {rWS}, {sFLAG} offen sc0 sc1")
    a.label('P2_A2')
    a("s_mov_b64 exec, -1")
    def go_logic(n, st=True):
        lb = a.newlabel('GO')
        a(f"s_waitcnt vmcnt({n})")
        a(f"v_readfirstlane_b32 {sP[0]}, {vAT}")
        a(f"s_add_u32 {sP[1]}, {sFLAG}, {GOD}")
        a(f"s_cmp_lg_u32 {sP[0]}, {sNEED}")
        a(f"s_cbranch_scc1 {lb}")
        a("s_mov_b64 exec, 1")
        a(f"buffer_store_dword {vAT}, {vz}, {rWS}, {sP[1]} offen sc1")
        a("s_mov_b64 exec, -1")
        a.label(lb)
        if st: stamp(a, 4)
    a(f"s_cmp_eq_u32 {sHI}, 0")
    a("s_cbranch_scc1 P2_C")
    if B3:
        a(f"s_cmp_lg_u32 {sPF}, 0"); a("s_cbranch_scc1 P2_D2")
        for l in b_reg(vm, 3, 'B'): a(l)
        go_logic(5)
        a("s_branch P2_D3")
        a.label('P2_D2')
    go_logic(0)
    if B3: a.label('P2_D3')
    a("s_setprio 0")
    init_check(vS2, 132)
    if OPT['bt']:
        a("s_lshr_b32 s4, s2, 6"); a(f"s_lshl2_add_u32 s4, s4, {sRG}"); a(f"s_mul_i32 s4, s4, {65*128}")
        a(f"s_mul_i32 s5, {sCG}, {74*5120}"); a("s_add_u32 s4, s4, s5"); a(f"s_add_u32 s4, s4, {BP + 48*5120}")
        a(f"v_lshlrev_b32 {t2}, 7, {lane}")
        a(f"buffer_load_dword {t3}, {t2}, {rWS}, s4 offen sc1")
    a(f"s_cmp_lt_u32 {sRG}, 2"); a(f"s_cselect_b32 {rB[2]}, {WSZ}, 0")
    a(f"s_cmp_lt_u32 {sPF}, 6"); a("s_cbranch_scc1 P2_E2")
    for b in range(4):
        for l in b_reg(vm, b, 'B'): a(l)
    lds_wait(16, 8)
    for k in range(4):
        for l in b_row(vm, sBg, GRP[GL[k]], LR[k]): a(l)
    a.label('P2_E2')
    if OPT['b23'] in (1, 2):
        a(f"s_cmp_lg_u32 {sPF}, 0"); a("s_cbranch_scc1 P2_E4")
        for l in (b_reg(vm, 2, 'B') if OPT['b23'] == 1 else []) + b_reg(vm, 3, 'B'): a(l)
        a.label('P2_E4')
    lds_wait(16, 8)
    for k in range(3):
        for l in b_row(vm, sBg, k, CR[k], None, 54*5120): a(l)
    a(f"s_cmp_eq_u32 {sPF}, 4"); a("s_cbranch_scc1 P2_GK")
    NG = 10
    for variant in (0, 1):
        GLv = GL if variant == 0 else []
        if variant == 1: a.label('P2_GK')
        if OPT['at']:
            a(f"s_mul_i32 {sT1}, {sR6}, {74*4096}"); a(f"s_lshl2_add_u32 {sT2}, {sCG}, {sRG}"); a(f"s_mul_i32 {sT2}, {sT2}, {54*128}"); a(f"s_add_u32 {sT1}, {sT1}, {sT2}")
            a(f"v_lshlrev_b32 {t2}, 7, {lane}")
        if OPT['at'] == 3: vpoll(a, vz, sFHo, 0, t1, f"s_mov_b32 exec_hi, 0x3fffff\nbuffer_load_dword {t3}, {t2}, {rWS}, {sT1} offen sc1\ns_mov_b32 exec_hi, -1", OPT['tsl'])
        elif OPT['noh']: a("s_waitcnt vmcnt(0)")
        else: vpoll(a, vz, sFHo, 0, t1)
        lds_signal(20)
        a(f"s_setprio {OPT['gprio']}")
        vm = VmTrack()
        stamp(a, 5)
        if OPT['at'] == 1:
            a("s_mov_b32 exec_hi, 0x3fffff"); a(f"buffer_load_dword {t3}, {t2}, {rWS}, {sT1} offen sc1"); a("s_mov_b32 exec_hi, -1")
        if OPT['stamp'] == 4: a("s_memtime s[92:93]")
        LA = OPT['la']
        pend = []
        for s in range(LA + 1):
            if OPT['stp'] and s: a(f"s_setprio {3 - s}")
            for l in a_loads(s, ('A', s)): a(l)
            if OPT['at'] == 2 and s == 0:
                a("s_mov_b32 exec_hi, 0x3fffff"); a(f"buffer_load_dword {t3}, {t2}, {rWS}, {sT1} offen sc1"); a("s_mov_b32 exec_hi, -1"); vm.issue('T')
        for s in range(NG - 1):
            n = vm.wait_for(lambda t: t in (('A', s), ('B', s)))
            a(f"s_waitcnt vmcnt({n})" + (f" lgkmcnt({5*sum(1 for x in (s+1, s+2) if x in GLv)})" if s in GLv else ""))
            if s == 0: stamp(a, 6)
            if OPT['stamp'] == 4:
                a("s_waitcnt lgkmcnt(0)")
                a(f"v_writelane_b32 v255, s92, {40 + s}")
                a("s_memtime s[92:93]")
            side = []
            if OPT['fair'] and s in eval(OPT['fg']): a(f"s_setprio {eval(OPT['fg'])[s]}")
            if 1 <= s and s + LA < NG:
                side += a_loads(s + LA, ('A', s + LA), None, rB if GRP[s + LA] == 13 else None)
            if 1 <= s and s + 3 < NG:
                rr = rB if GRP[s + 3] == 13 else None
                if s + 3 in GLv: side += b_fromlds(s + 3, LR[GLv.index(s + 3)])
                elif OPT['spr'] and variant == 0:
                    bl = b_reg(VmTrack(), s + 3, 'x', rr, GRP[s + 3])
                    side += bl[0:4]; [vm.issue(('B', s + 3)) for _ in range(3)]
                    pend = [(bl[0], bl[4:6], s + 3)]
                    mm(s % 4, [], side); continue
                else: side += b_reg(vm, s + 3, ('B', s + 3), rr, GRP[s + 3])
            if pend:
                p0, pl, ps = pend.pop(); side += [p0] + pl; [vm.issue(('B', ps)) for _ in range(2)]
            mm(s % 4, range(4) if s == 0 else [], side)
        if variant == 0: a("s_branch P2_GL")
    a.label('P2_GL')
    a("s_waitcnt vmcnt(0) lgkmcnt(0)")
    if OPT['stamp'] == 4:
        a(f"v_writelane_b32 v255, s92, {49}"); a("s_memtime s[92:93]"); a("s_waitcnt lgkmcnt(0)"); a(f"v_writelane_b32 v255, s92, {50}")
    for tt in range(4):
        for j in range(5):
            d = ACC[tt][j]
            a(f"v_mfma_f32_16x16x32_bf16 {d}, {BR[1][j]}, {AR[1][tt]}, {d}")
            if tt >= 2: a("ds_write_b128 %s, %s offset:%d" % (lrow(tt, j)[0], ACC[tt-2][j], lrow(tt, j)[1]))
    for tt in (2, 3):
        for j in range(5): a("ds_write_b128 %s, %s offset:%d" % (lrow(tt+2, j)[0], ACC[tt][j], lrow(tt+2, j)[1]))
    lds_signal(4)
    stamp(a, 10)
    a("s_branch P2_FIN")
    a.label('P2_C')
    P = V(72, 20)
    a("s_setprio 3")
    if OPT['noc']:
        go_logic(0)
        srd(a, rOUT, pOUT, 2048 * 1280)
        for i in range(4):
            a(f"s_add_u32 {sT0}, {sRG}, {i}"); a(f"s_and_b32 {sT0}, {sT0}, 3"); a(f"s_lshl_b32 {sT0}, {sT0}, 10")
            a(f"v_add_u32 {V(16+i)}, {sT0}, {vo}")
        init_check(vS2, 132)
        a("s_mov_b32 s81, 0"); a(f"s_cmp_eq_u32 {sPF}, 0"); a("s_cselect_b32 s81, 2, s81"); a(f"s_cmp_eq_u32 {sPF}, 4"); a("s_cselect_b32 s81, 4, s81")
        a("s_branch P2_NOC")
    a(f"s_cmp_lg_u32 {sQF}, 0"); a("s_cbranch_scc1 P2_C1")
    go_logic(0)
    a(f"s_mov_b32 {sNEED}, -1")
    vpoll(a, vz, sFHo, 4, t1)
    pq_loads()
    a("s_waitcnt vmcnt(0)")
    a.label('P2_C1')
    a(f"buffer_load_dword {vFG}, {vz}, {rWS}, {sFHo} offen offset:12 sc1")
    GV = [V(22), V(252), V(10), V(8)]
    GLd = [t3, V(188), V(189), V(190)]
    srd(a, rOUT, pOUT, 2048 * 1280)
    a(f"v_lshl_add_u32 {kw}, {vr}, 2, {vqd}")
    a(f"v_lshlrev_b32 {kw}, 6, {kw}")
    a(f"v_lshl_add_u32 {kw}, {vc}, 3, {kw}")
    a(f"s_mul_i32 {sT0}, {sRG}, 3088"); a(f"s_add_u32 {sT0}, {sT0}, {KVB}")
    a(f"v_add_u32 {kw}, {sT0}, {kw}")
    a(f"v_mul_u32_u24 {t4}, 3088, {vqd}")
    a(f"v_lshl_add_u32 {t4}, {vr}, 6, {t4}")
    a(f"v_add_u32 {t4}, {KVB}, {t4}")
    a(f"v_mov_b32 {ka}, {ZERO + 8}")
    a(f"v_cmp_eq_u32 vcc, {vc}, {vqd}")
    a(f"v_cndmask_b32 {ka}, {ka}, {t4}, vcc")
    VT = [V(16), V(17), V(18), V(19)]
    for i in range(4):
        a(f"s_add_u32 {sT0}, {sRG}, {i}"); a(f"s_and_b32 {sT0}, {sT0}, 3"); a(f"s_lshl_b32 {sT0}, {sT0}, 10")
        a(f"v_add_u32 {VT[i]}, {sT0}, {vo}")
    for i in range(10):
        a(f"v_lshlrev_b32 {PU[2*i]}, 16, {PB[i]}")
        a(f"v_and_b32 {PU[2*i+1]}, 0xffff0000, {PB[i]}")
    gl = (f"s_waitcnt vmcnt(1)\nv_readfirstlane_b32 {sP[0]}, {vAT}\ns_add_u32 {sP[1]}, {sFLAG}, {GOD}\ns_cmp_lg_u32 {sP[0]}, {sNEED}\ns_cbranch_scc1 GOC\n"
          f"s_mov_b64 exec, 1\nbuffer_store_dword {vAT}, {vz}, {rWS}, {sP[1]} offen sc1\ns_mov_b64 exec, -1\nGOC:")
    softmax_unit(a, PU, V(92, 40), V(132, 4), V(136, 4), P, ["s_nop 0"] * 19 + [gl])
    a("s_waitcnt vmcnt(0)")
    a(f"v_cmp_ne_u32 vcc, 0, {vFG}"); a("s_nop 0"); a("s_cbranch_vccnz P2_GOK")
    vpoll(a, vz, sFHo, 12, t1)
    a.label('P2_GOK')
    a(f"v_lshlrev_b32 {t0}, 2, {vl15}")
    a(f"s_lshl2_add_u32 {sT0}, {sR6}, {sRG}")
    a(f"s_lshl_b32 {sT0}, {sT0}, 6"); a(f"s_add_u32 {sT0}, {sT0}, {GOFF}")
    a(f"buffer_load_dword {t3}, {t0}, {rWS}, {sT0} offen {LD}")
    stamp(a, 5)
    init_check(vS2, 132)
    lds_wait(16, 8)
    a(f"s_lshl_b32 {sT2}, {sCG}, 7"); a(f"s_add_u32 {sT2}, {sT2}, {FK + GOD}")
    a(f"s_lshl_b32 {sT3}, {sCG}, 2"); a(f"s_add_u32 {sT3}, {sT3}, {sRG}")
    a(f"s_mul_i32 {sT3}, {sT3}, 6144"); a(f"s_add_u32 {sT3}, {sT3}, {KVACC}")
    sNB = S(81)
    def cb(i): return b_reg(vm, i, 'B') if i < 4 else b_row(vm, sBo, i - 4, CR[i - 4], None, CB0)
    if OPT['b23']: a(f"s_cmp_eq_u32 {sPF}, 0"); a("s_cbranch_scc1 P2_K2")
    a(f"s_cmp_lt_u32 {sPF}, 6"); a("s_cbranch_scc1 P2_K4")
    for i in range(4):
        if OPT['b23'] and i == (2 if OPT['b23'] == 1 else 3): a.label('P2_K2')
        a(f"s_mov_b32 {sNB}, {i}")
        a(f"buffer_load_dword {t1}, {vz}, {rWS}, {sT2} offen sc1")
        a("s_waitcnt vmcnt(0)")
        a(f"v_cmp_ne_u32 vcc, 0, {t1}"); a("s_nop 0"); a("s_cbranch_vccnz P2_KGO")
        for l in cb(i): a(l)
    a.label('P2_K4')
    a(f"s_mov_b32 {sNB}, 4")
    if not OPT['nok']: vpoll(a, vz, sT2, 0, t1)
    else: a("s_waitcnt vmcnt(0)")
    a.label('P2_KGO')
    stamp(a, 6)
    KL = [V(92 + 4 * i, 4) for i in range(6)]
    a(f"s_mov_b32 {sTO}, 0x80000")
    a("s_mov_b32 s82, 0x41000000")
    a.label('KVRETRY')
    for i in range(6):
        if i < 4: a(f"buffer_load_dwordx4 {KL[i]}, {vo}, {rWS}, {sT3} offen offset:{i*1024} {LD}")
        else: a(f"buffer_load_dwordx4 {KL[i]}, {vo4}, {rWS}, {sT3} offen offset:{(i-4)*1024} {LD}")
    for i in range(6):
        a(f"s_waitcnt vmcnt({5-i})")
        a(f"v_cvt_pk_bf16_f32 {KL[i][0]}, {KL[i][0]}, {KL[i][1]}")
        a(f"v_cvt_pk_bf16_f32 {KL[i][1]}, {KL[i][2]}, {KL[i][3]}")
        a(f"ds_write_b64 {kw}, {KL[i][0:2]} offset:{(i % 3)*1024 + (i // 3)*32}")
    a(f"v_min3_f32 {t1}, {KL[0][3]}, {KL[1][3]}, {KL[3][3]}")
    a(f"v_min_f32 {t4}, {KL[2][3]}, {KL[5][3]}")
    a(f"v_min_f32 {t1}, {t1}, {KL[4][3]}")
    a(f"v_cmp_neq_f32 vcc, s82, {t4}")
    a(f"v_cmp_neq_f32 {sP}, s82, {t1}")
    a("s_and_b32 s4, vcc_lo, 0x00880088"); a("s_and_b32 s5, vcc_hi, 0x00880088"); a("s_or_b32 s4, s4, s5")
    a(f"s_or_b32 s5, {sP[0]}, {sP[1]}"); a("s_and_b32 s5, s5, 0x88888888"); a("s_or_b32 s4, s4, s5")
    a("s_branch KVOK" if OPT['nok'] else "s_cbranch_scc0 KVOK")
    a("s_waitcnt lgkmcnt(0)")
    a("s_sleep 4")
    a(f"s_sub_u32 {sTO}, {sTO}, 1")
    a("s_cbranch_scc0 KVRETRY")
    a.label('KVOK')
    lds_signal(0)
    lds_wait(0, 4)
    stamp(a, 16)
    AFl = [V(92 + 4 * i, 4) for i in range(15)]
    D = [V(152 + 4 * t, 4) for t in range(6)]
    O = V(176, 12)
    order = [5, 0, 1, 2, 3, 4]
    fr = [(t, s) for s in range(5) for t in order]
    def rdl(k):
        t, s_ = fr[k]
        return [f"ds_read_b64_tr_b16 {AFl[k % 15][2*r_:2*r_+2]}, {ka} offset:{s_*512 + r_*256 + (t*8 if t < 3 else t*8 + 8)}" for r_ in range(2)]
    AH = 7
    for k in range(AH):
        for l in rdl(k): a(l)
    def fin(t):
        for h in range(4): a(f"v_mul_f32 {D[t][h]}, {D[t][h]}, {t2}")
        a(f"v_cvt_pk_bf16_f32 {O[2*t]}, {D[t][0]}, {D[t][1]}")
        a(f"v_cvt_pk_bf16_f32 {O[2*t+1]}, {D[t][2]}, {D[t][3]}")
    for k in range(30):
        t, s_ = fr[k]
        a(f"s_waitcnt lgkmcnt({2 * min(AH - 1, 29 - k)})")
        a(f"v_mfma_f32_16x16x32_bf16 {D[t]}, {AFl[k % 15]}, {P[4*s_:4*s_+4]}, {'0' if s_ == 0 else D[t]}")
        if k + AH < 30:
            for l in rdl(k + AH): a(l)
        if OPT['sent'] and k == OPT['oh1']:
            a(f"s_sub_u32 {sFLAG}, {sFHo}, {GOD - 8}"); a(f"s_mov_b32 {sNEED}, 31"); a(f"v_mov_b32 {vAT}, 1")
            a("s_mov_b64 exec, 1"); a(f"buffer_atomic_add {vAT}, {vz}, {rWS}, {sFLAG} offen sc0 sc1"); a("s_mov_b64 exec, -1")
    stamp(a, 19)
    a(f"v_add_f32 {t2}, 0x358637bd, {D[5][0]}")
    a(f"v_rcp_f32 {t2}, {t2}")
    a(f"v_mul_f32 {t2}, {t2}, {t3}")
    fin(0); fin(1)
    a(f"buffer_store_dwordx4 {O[0:4]}, {vo}, {rWS}, {sO1} offen {ST}")
    fin(2); fin(3)
    a(f"buffer_store_dwordx4 {O[4:8]}, {vo4}, {rWS}, {sO1} offen {ST}")
    fin(4)
    a(f"v_mov_b32 {O[10]}, {O[8]}"); a(f"v_mov_b32 {O[11]}, {O[9]}")
    a(f"v_permlane32_swap_b32 {O[8]}, {O[10]}"); a(f"v_permlane32_swap_b32 {O[9]}, {O[11]}")
    a("s_mov_b32 exec_hi, 0")
    a(f"buffer_store_dwordx4 {O[8:12]}, {vo}, {rWS}, {sO2} offen {ST}")
    a("s_mov_b32 exec_hi, -1")
    stamp(a, 17)
    NBA = OPT['nba'] and not OPT['sent']
    if NBA:
        a(f"s_sub_u32 {sFLAG}, {sFHo}, {GOD - 8}"); a(f"s_mov_b32 {sNEED}, 31"); a(f"v_mov_b32 {vAT}, 1")
        a(f"ds_read_b32 {t1}, {vcn} offset:20"); a("s_waitcnt lgkmcnt(0)"); a(f"v_readfirstlane_b32 {sT0}, {t1}")
        a(f"s_and_b32 {sT0}, {sT0}, {sNB}")
        a(f"s_cmp_eq_u32 {sT0}, 4"); a("s_cbranch_scc1 P2_NB1")
        arrive(a, sFLAG, 31, t0, t1)
        a(f"s_mov_b32 {sNEED}, -1")
        a.label('P2_NB1')
    elif not OPT['sent']:
        a(f"s_sub_u32 {sT2}, {sFHo}, {GOD - 8}")
        arrive(a, sT2, 31, t0, t1)
    else: go_logic(3, False)
    stamp(a, 7)
    if OPT['noc']: a.label('P2_NOC')
    for i in range(4):
        lb = a.newlabel('CB')
        a(f"s_cmp_gt_u32 {sNB}, {i}"); a(f"s_cbranch_scc1 {lb}")
        for l in cb(i): a(l)
        a.label(lb)
    XB = [V(28), V(13), V(30)]; XW = V(31); GB = V(12)
    for q in range(1, 4):
        a(f"s_sub_u32 {sT0}, {sRG}, {q}"); a(f"s_and_b32 {sT0}, {sT0}, 3"); a(f"s_mul_i32 {sT0}, {sT0}, 5120")
        a(f"s_add_u32 {sT0}, {sT0}, {CR[q-1]*20480}")
        a(f"v_add_u32 {XB[q-1]}, {sT0}, {vo}")
    a(f"v_add_u32 {XW}, {6*20480}, {vbl}")
    def crow(k, j): return (vbl, CR[k]*20480 + j*1024) if k < 2 else (XW, j*1024)
    a(f"s_add_u32 {sT0}, {sRG}, 2"); a(f"s_mul_i32 {sT0}, {sT0}, 20480"); a(f"v_add_u32 {GB}, {sT0}, {vo}")
    a(f"v_mul_u32_u24 {t0}, 1280, {vl15}")
    a(f"v_lshl_add_u32 {t0}, {vqd}, 3, {t0}")
    a(f"s_lshl_b32 {sT2}, {sR6}, 2"); a(f"s_add_u32 {sT2}, {sT2}, {sRG}"); a(f"s_mul_i32 {sT2}, {sT2}, {16*1280}")
    a(f"s_mul_i32 {sT3}, {sCG}, 160"); a(f"s_add_u32 {sT2}, {sT2}, {sT3}")
    a(f"v_add_f32 {V(22)}, 1.0, {t3}"); a(f"v_rcp_f32 {V(22)}, {V(22)}")
    a(f"v_mul_u32_u24 {t3}, 1280, {vl15}"); a(f"v_and_b32 {t4}, 1, {vqd}"); a(f"v_lshl_add_u32 {t3}, {t4}, 5, {t3}")
    a(f"v_lshrrev_b32 {t4}, 1, {vqd}"); a(f"v_lshl_add_u32 {t3}, {t4}, 4, {t3}")
    lds_wait(20, 4)
    a(f"s_setprio {OPT['cprio']}")
    if OPT['stamp'] == 4: a("s_memtime s[92:93]")
    vm = VmTrack()
    for s in range(OPT['la'] + 1):
        if OPT['stp'] == 2 and s: a(f"s_setprio {max(1, 3 - s)}")
        for l in a_loads(s, ('A', s), VT): a(l)
        if NBA and s == 1:
            a(f"s_cmp_eq_u32 {sNEED}, -1"); a("s_cbranch_scc1 P2_NB2")
            a("s_waitcnt vmcnt(8)")
            a("s_mov_b64 exec, 1"); a(f"buffer_atomic_add {vAT}, {vz}, {rWS}, {sFLAG} offen sc0 sc1"); a("s_mov_b64 exec, -1")
            a.label('P2_NB2')
    GT = [BR[1], BR[2], BR[3], AR[1] + [AR[2][0]]]
    nextA = OPT['la'] + 1
    OC = OPT['oc']
    for s in range(9):
        n = vm.wait_for(lambda t: t in (('A', s), ('B', s)) or (s == OC and t == 'of'))
        if s == 8:
            lds_wait(4, 4)
            stamp(a, 8)
            for w in range(2):
                for j in range(5): a(f"ds_read_b128 {GT[w][j]}, {GB} offset:{w*5120 + j*1024}")
        a(f"s_waitcnt vmcnt({n})" + (" lgkmcnt(0)" if s == (6 if OPT['gf'] & 2 else 4) else ""))
        if OPT['stamp'] == 4:
            a("s_waitcnt lgkmcnt(0)")
            a(f"v_writelane_b32 v255, s92, {40 + s}")
            a("s_memtime s[92:93]")
        if NBA and s == 1: go_logic(n, False)
        if s == OC:
            stamp(a, 18)
            a(f"v_cmp_ne_u32 vcc, 0, {t2}"); a("s_nop 0"); a("s_cbranch_vccnz P2_OOK")
            if not OPT['noc']: vpoll(a, vz, sFHo, 8, t2)
            a.label('P2_OOK')
            a(f"s_mov_b32 {sTO}, 0x40000")
            stamp(a, 9)
        if OPT['sent'] and s >= 4:
            a.label(f'VER{s}')
            regs = [AR[s % 4][tt][k] for tt in range(4) for k in range(4)]
            a(f"v_max3_u32 {t4}, {regs[0]}, {regs[1]}, {regs[2]}")
            a(f"v_max3_u32 {t1}, {regs[3]}, {regs[4]}, {regs[5]}")
            for k in (6, 10):
                a(f"v_max3_u32 {t4}, {t4}, {regs[k]}, {regs[k+1]}"); a(f"v_max3_u32 {t1}, {t1}, {regs[k+2]}, {regs[k+3]}")
            a(f"v_max3_u32 {t4}, {t4}, {regs[14]}, {regs[15]}")
            a(f"v_max_u32 {t4}, {t4}, {t1}")
            a(f"v_cmp_eq_u32 vcc, -1, {t4}")
            a("s_nop 0")
            a(f"s_cbranch_vccnz RET{s}")
            a.label(f'VOK{s}')
        side = []
        if OPT['fair'] and s in eval(OPT['fc']): a(f"s_setprio {eval(OPT['fc'])[s]}")
        if s == OC - 1:
            side.append(f"buffer_load_dword {t2}, {vz}, {rWS}, {sFHo} offen offset:8 sc1"); vm.issue('of')
        while s >= 1 and nextA <= s + OPT['la'] and nextA < 9 and (nextA < 4 or s >= OC):
            side += a_loads(nextA, ('A', nextA), VT); nextA += 1
        if 1 <= s <= 5:
            g_ = CG_[s + 3]
            if g_ < 3: side += ["ds_read_b128 %s, %s offset:%d" % ((BR[(s+3)%4][j],) + crow(g_, j)) for j in range(5)]
            else: side += b_reg(vm, s + 3, ('B', s + 3), None, g_, CB0)
        if s < 8: mm(s % 4, range(4) if s == 0 else [], side, 1 if len([x for x in side if not x.startswith('s_')]) > 10 else 2)
        else:
            for tt in (1, 2, 3, 0):
                for j in range(5):
                    d = ACC[tt][j]
                    a(f"v_mfma_f32_16x16x32_bf16 {d}, {BR[0][j]}, {AR[0][tt]}, {d}")
                    if tt in (1, 2): a(f"ds_read_b128 {GT[tt+1][j]}, {GB} offset:{(tt+1)*5120 + j*1024}")
                    pt = {1: None, 2: None, 3: 1, 0: 2}[tt]
                    if pt: a("ds_write_b128 %s, %s offset:%d" % (crow(pt-1, j)[0], ACC[pt][j], crow(pt-1, j)[1]))
            for j in range(5): a("ds_write_b128 %s, %s offset:%d" % (crow(2, j)[0], ACC[3][j], crow(2, j)[1]))
    if OPT['stamp'] == 4:
        a("s_waitcnt lgkmcnt(0)"); a(f"v_writelane_b32 v255, s92, {49}"); a("s_memtime s[92:93]"); a("s_waitcnt lgkmcnt(0)"); a(f"v_writelane_b32 v255, s92, {50}")
    a("s_waitcnt lgkmcnt(15)")
    for j in range(5):
        for h in range(2):
            sl = slice(2*h, 2*h+2)
            a(f"v_pk_add_f32 {GT[0][j][sl]}, {GT[0][j][sl]}, {GT[1][j][sl]}")
            a(f"v_pk_add_f32 {GT[2][j][sl]}, {GT[2][j][sl]}, {GT[3][j][sl]}")
    stamp(a, 10)
    lds_signal(8)
    for j in range(5):
        for h in range(2):
            sl = slice(2*h, 2*h+2)
            a(f"v_pk_add_f32 {GT[0][j][sl]}, {GT[0][j][sl]}, {GT[2][j][sl]}")
            a(f"v_pk_add_f32 {ACC[0][j][sl]}, {GT[0][j][sl]}, {ACC[0][j][sl]}")
    lds_wait(8, 4)
    RD = [ACC[1], ACC[2], ACC[3]]
    if OPT['fin'] == 0:
        for q in range(3):
            for j in range(5): a(f"ds_read_b128 {RD[q][j]}, {XB[q]} offset:{j*1024}")
        for q in range(3):
            a(f"s_waitcnt lgkmcnt({10 - 5*q})")
            for j in range(5):
                for h in range(2): a(f"v_pk_add_f32 {ACC[0][j][2*h:2*h+2]}, {ACC[0][j][2*h:2*h+2]}, {RD[q][j][2*h:2*h+2]}")
                if q == 2:
                    for h in range(2): a(f"v_pk_mul_f32 {ACC[0][j][2*h:2*h+2]}, {ACC[0][j][2*h:2*h+2]}, {V(22, 2)} op_sel_hi:[1,0]")
                    a(f"v_cvt_pk_bf16_f32 {ACC[1][j][0]}, {ACC[0][j][0]}, {ACC[0][j][1]}")
                    a(f"v_cvt_pk_bf16_f32 {ACC[1][j][1]}, {ACC[0][j][2]}, {ACC[0][j][3]}")
                    a(f"buffer_store_dwordx2 {ACC[1][j][0:2]}, {t0}, {rOUT}, {sT2} offen offset:{j*32} {OPT['ost']}")
    else:
        for j in range(5):
            for q in range(3): a(f"ds_read_b128 {RD[q][j]}, {XB[q]} offset:{j*1024}")
        OUTR = [GT[1][0], GT[1][1], GT[1][2]]
        for j in range(5):
            a(f"s_waitcnt lgkmcnt({12 - 3*j})")
            for h in range(2):
                sl = slice(2*h, 2*h+2)
                a(f"v_pk_add_f32 {RD[0][j][sl]}, {RD[0][j][sl]}, {RD[1][j][sl]}")
                a(f"v_pk_add_f32 {ACC[0][j][sl]}, {ACC[0][j][sl]}, {RD[2][j][sl]}")
            for h in range(2):
                sl = slice(2*h, 2*h+2)
                a(f"v_pk_add_f32 {ACC[0][j][sl]}, {ACC[0][j][sl]}, {RD[0][j][sl]}")
            for h in range(2): a(f"v_pk_mul_f32 {ACC[0][j][2*h:2*h+2]}, {ACC[0][j][2*h:2*h+2]}, {V(22, 2)} op_sel_hi:[1,0]")
            o_ = OUTR[j // 2]
            a(f"v_cvt_pk_bf16_f32 {o_[2*(j%2)]}, {ACC[0][j][0]}, {ACC[0][j][1]}")
            a(f"v_cvt_pk_bf16_f32 {o_[2*(j%2)+1]}, {ACC[0][j][2]}, {ACC[0][j][3]}")
            if j % 2 == 1:
                a(f"v_permlane16_swap_b32 {o_[0]}, {o_[2]}"); a(f"v_permlane16_swap_b32 {o_[1]}, {o_[3]}")
                a(f"buffer_store_dwordx4 {o_}, {t3}, {rOUT}, {sT2} offen offset:{(j-1)*32} {OPT['ost']}")
            if j == 4: a(f"buffer_store_dwordx2 {o_[0:2]}, {t0}, {rOUT}, {sT2} offen offset:128 {OPT['ost']}")
    a.label('P2_FIN')
    if OPT['stamp'] or OPT['pad']:
        a("s_waitcnt vmcnt(0)")
        stamp(a, 11)
    stamp_flush(a)
    if OPT['pad']:
        if OPT['padwg'] < 999: a(f"s_cmp_lg_u32 s2, {OPT['padwg']}"); a(f"s_cbranch_scc1 {END}")
        a.label('PADL')
        a("s_sleep 1"); a("s_memrealtime s[12:13]"); a("s_waitcnt lgkmcnt(0)"); a("s_sub_u32 s12, s12, s10")
        a(f"s_cmp_lt_u32 s12, {OPT['pad']*100}"); a("s_cbranch_scc1 PADL")
    a.label(END)
    a.label('K_LAST')
    a("s_endpgm")
    if OPT['sent']:
        for s in range(4, 9):
            a.label(f'RET{s}')
            a(f"s_sub_u32 {sTO}, {sTO}, 1")
            a(f"s_cselect_b32 {sTO}, 0, {sTO}")
            a(f"s_cbranch_scc1 VOK{s}")
            a(f"s_sleep {OPT['rsl']}")
            for l in a_loads(s, 'r', VT): a(l)
            a("s_waitcnt vmcnt(0)")
            a(f"s_branch VER{s}")

def build():
    hdr = open(f'cdna_kernels/{NAME}.s.ref').read().split('; Override launch')[0]
    name = NAME + '_kernel'
    out = hdr + "; @launch grid=(256,1,1) block=(512,1,1) lds=163840\n"
    out += '.amdgcn_target "amdgcn-amd-amdhsa--gfx950"\n.text\n'
    a = Asm(); kernel(a)
    out += f".globl {name}\n.p2align 8\n.type {name},@function\n{name}:\n" + a.finalize()
    print('instrs', len(a.ins), 'nops', a.nnop, file=sys.stderr)
    out += f""".section .rodata,"a"
.p2align 6
.amdhsa_kernel {name}
  .amdhsa_next_free_vgpr 256
  .amdhsa_next_free_sgpr 102
  .amdhsa_accum_offset 256
  .amdhsa_group_segment_fixed_size 0
  .amdhsa_kernarg_size 96
  .amdhsa_user_sgpr_count 2
  .amdhsa_user_sgpr_kernarg_segment_ptr 1
  .amdhsa_system_sgpr_workgroup_id_x 1
.end_amdhsa_kernel
"""
    return out

if __name__ == '__main__':
    outp = sys.argv[1]
    for o in sys.argv[2:]:
        k, v = o.split('=', 1); OPT[k] = int(v) if v.isdigit() else v
    open(outp, 'w').write(build())
```

```python
import sys
sys.path.insert(0, 'gen')
from asmlib import *
NAME = 'gated_mix__linear_kernel_hedgehog__swiglu_ffn__prompt'
AP = 0; BP = 0xA00000; PQ = 0xD00000; KVACC = 0x1200000; FH = 0x1230000; FK = 0x1232000; FP = 0x1234000; ZEND = 0x1235000
GOFF = 0x1240000; DUMMY = 0x1250000; STAMP = 0x1300000; WSZ = 0x1600000
LOG2E = 0x3fb8aa3b; NLOG2E = 0xbfb8aa3b
OPT = dict(stamp=0, touch=2, bs="{'p0':(0,2),'p1':(2,5),3:(5,8),7:(8,10)}", pp=0, spnt='', rot2=0, slp=1, early=1, btouch=0, atf='sc1', cpf=12, nobar=18, chk=12, sent=0, lbt=0, tw=0, trim=1, nba=0, la=3, spr=0, fin=1, stp=0, nob=0, noc=0, nok=0, noh=0, t2si=2, swp=1, gf=0, b23=1, tlb=0, padwg=999, padev=0, fair=1, fg='{0:2,5:1,7:3}', fc='{0:1,4:0}', npk=0, eprio=2, gprio=3, oc=2, oord=1, noa=0, pj=18, t2s=0, x0e=1, sb1=1, sb2=1, t2pos=1, pad=0, bt=0, tsl=4, rsl=8, cprio2=0, at=0, kh=0, cprio=3, oh1=19, gdel=0, fill=0, spst='sc1', t2a='[0]', t2b='[2]', t2f='{0:(5,6),1:(4,3),2:(7,4),3:(6,5),5:(9,6),6:(8,3)}', t2q='{}', xfl='', wfl='', il=4, qbar=0, prio=0, dbgt=0, ost='nt')
ST = 'sc1'; LD = 'sc1'

pX, pQKV, pPHI, pWO, pBX, pWG, pWU, pWD = [S(16 + 2 * i, 2) for i in range(8)]
pGW, pOUT, pDBG, pWS = [S(32 + 2 * i, 2) for i in range(4)]
sWV = S(3)
rX, rW, rWS, rA, rB = S(40, 4), S(44, 4), S(48, 4), S(52, 4), S(56, 4)
sC = S(60, 2)
rDBG = S(84, 4)
sFLAG = S(88); sTO = S(89); sNEED = S(7)
GOD = 0x1000
sP = S(14, 2)
XSLOT = 32768; WB = 98304
GWB = 159744; CNT = 161024; ZERO = 161280; KVB = 147456

def srd(a, d, base, size):
    a(f"s_mov_b32 {d[0]}, {base[0]}")
    a(f"s_and_b32 {d[1]}, {base[1]}, 0xffff")
    a(f"s_mov_b32 {d[2]}, {size}")
    a(f"s_mov_b32 {d[3]}, 0x20000")

def sstamp(a, j):
    if OPT['stamp'] != 3: return
    if j > 0: a(f"v_writelane_b32 v255, s92, {40 + j - 1}")
    a("s_memtime s[92:93]")
def stamp(a, idx):
    if OPT['pad'] and OPT['padev'] == idx:
        a("s_memrealtime s[10:11]"); a("s_waitcnt lgkmcnt(0)")
    if not OPT['stamp']: return
    if OPT['stamp'] >= 2 and idx not in (2, 3, 5, 11): return
    a("s_memrealtime s[90:91]")
    a("s_memtime s[92:93]")
    a("s_waitcnt lgkmcnt(0)")
    a(f"v_writelane_b32 v255, s90, {2*idx}")
    a(f"v_writelane_b32 v255, s92, {2*idx+1}")
def stamp_flush(a):
    if not OPT['stamp']: return
    if OPT['dbgt']:
        a("s_not_b32 s90, s10"); a("v_writelane_b32 v255, s90, 0")
        a("v_lshlrev_b32 v254, 1, v0"); a("v_add_u32 v254, 8, v254")
        a("s_mov_b32 exec_lo, 0x05555555"); a("s_mov_b32 exec_hi, 0")
        a(f"buffer_atomic_umax v255, v254, {rDBG}, 0 offen sc1")
        a("s_mov_b64 exec, -1")
        return
    a("v_writelane_b32 v255, s10, 0"); a("v_writelane_b32 v255, s12, 1")
    a("s_lshl_b32 s90, s2, 3")
    a(f"s_add_u32 s90, s90, {sWV}")
    a("s_lshl_b32 s90, s90, 8")
    a(f"s_add_u32 s90, s90, {STAMP + 0x80000}")
    a("v_lshlrev_b32 v254, 2, v0")
    a(f"buffer_store_dword v255, v254, {rWS}, s90 offen")

def vpoll(a, vzero, soff, off, tmp, extra=None, slp=None):
    L, D = a.newlabel('POLL'), a.newlabel('POLLD')
    a(f"s_mov_b32 {sTO}, 0x80000")
    a.label(L)
    if extra: a(extra)
    a(f"buffer_load_dword {tmp}, {vzero}, {rWS}, {soff} offen offset:{off} sc1")
    a("s_waitcnt vmcnt(0)")
    a(f"v_cmp_eq_u32 vcc, 0, {tmp}")
    a("s_nop 0")
    a(f"s_cbranch_vccz {D}")
    a(f"s_sleep {slp or OPT['slp']}")
    a(f"s_sub_u32 {sTO}, {sTO}, 1")
    a(f"s_cbranch_scc0 {L}")
    a.label(D)
def arrive(a, soff, need, z, one, nyounger=0):
    D = a.newlabel('ARR')
    a(f"v_mov_b32 {z}, 0"); a(f"v_mov_b32 {one}, 1")
    a(f"s_waitcnt vmcnt({nyounger})")
    a("s_mov_b64 exec, 1")
    a(f"buffer_atomic_add {one}, {z}, {rWS}, {soff} offen sc0 sc1")
    a("s_waitcnt vmcnt(0)")
    a(f"v_readfirstlane_b32 {sP[0]}, {one}")
    a(f"s_add_u32 {sP[1]}, {soff}, {GOD}")
    a(f"s_cmp_lg_u32 {sP[0]}, {need}")
    a(f"s_cbranch_scc1 {D}")
    a(f"buffer_store_dword {one}, {z}, {rWS}, {sP[1]} offen sc1")
    a.label(D)
    a("s_mov_b64 exec, -1")
def init_poll(a, reg, off):
    L, D = a.newlabel('POLL'), a.newlabel('POLLD')
    a(f"s_mov_b32 {sTO}, 0x80000")
    a.label(L)
    a(f"v_mov_b32 {reg}, 0")
    a(f"buffer_load_dword {reg}, {reg}, {rDBG}, 0 offen offset:{off} sc1")
    a("s_waitcnt vmcnt(0)")
    a(f"v_readfirstlane_b32 {sP[0]}, {reg}")
    a(f"s_cmp_lg_u32 {sP[0]}, 0")
    a(f"s_cbranch_scc1 {D}")
    a("s_sleep 2")
    a(f"s_sub_u32 {sTO}, {sTO}, 1")
    a(f"s_cbranch_scc0 {L}")
    a.label(D)

def softmax_unit(a, P, E, M, T, O, side=None):
    side = list(side or [])
    a(f"v_max3_f32 {M[0]}, {P[0]}, {P[1]}, {P[2]}")
    a(f"v_min3_f32 {M[2]}, {P[0]}, {P[1]}, {P[2]}")
    for i in range(3, 19, 2):
        a(f"v_max3_f32 {M[0]}, {M[0]}, {P[i]}, {P[i+1]}")
        a(f"v_min3_f32 {M[2]}, {M[2]}, {P[i]}, {P[i+1]}")
    a(f"v_max_f32 {M[0]}, {M[0]}, {P[19]}")
    a(f"v_min_f32 {M[2]}, {M[2]}, {P[19]}")
    a(f"v_mul_f32 {M[0]}, {sC[0]}, {M[0]}")
    a(f"v_mul_f32 {M[2]}, {sC[0]}, {M[2]}")
    for i in range(0, 20, 2):
        a(f"v_pk_fma_f32 {E[i:i+2]}, {P[i:i+2]}, {sC}, {M[0:2]} op_sel_hi:[1,1,0] neg_lo:[0,0,1] neg_hi:[0,0,1]")
        a(f"v_pk_fma_f32 {E[20+i:22+i]}, {P[i:i+2]}, {sC}, {M[2:4]} op_sel_hi:[1,1,0] neg_lo:[1,0,0] neg_hi:[1,0,0]")
    for i in range(40):
        a(f"v_exp_f32 {E[i]}, {E[i]}")
        if side and i % 2 == 1:
            x = side.pop(0)
            if x != "s_nop 0": a(x)
    for l in side: a(l)
    a(f"v_pk_add_f32 {T[0:2]}, {E[0:2]}, {E[2:4]}")
    a(f"v_pk_add_f32 {T[2:4]}, {E[20:22]}, {E[22:24]}")
    for i in range(4, 20, 2):
        a(f"v_pk_add_f32 {T[0:2]}, {T[0:2]}, {E[i:i+2]}")
        a(f"v_pk_add_f32 {T[2:4]}, {T[2:4]}, {E[20+i:22+i]}")
    a(f"v_add_f32 {T[0]}, {T[0]}, {T[1]}")
    a(f"v_add_f32 {T[2]}, {T[2]}, {T[3]}")
    a(f"v_rcp_f32 {T[0]}, {T[0]}")
    a(f"v_rcp_f32 {T[2]}, {T[2]}")
    for i in range(0, 20, 2):
        a(f"v_pk_mul_f32 {E[i:i+2]}, {E[i:i+2]}, {T[0:2]} op_sel_hi:[1,0]")
        a(f"v_pk_mul_f32 {E[20+i:22+i]}, {E[20+i:22+i]}, {T[2:4]} op_sel_hi:[1,0]")
    for i in range(20):
        a(f"v_cvt_pk_bf16_f32 {O[i]}, {E[2*i]}, {E[2*i+1]}")

def kernel(a):
    END = 'K_END'
    BS = eval(OPT['bs'])
    a("s_cmp_ge_u32 s2, 256")
    a(f"s_cbranch_scc1 {END}")
    if OPT['stamp']:
        a("s_memrealtime s[10:11]"); a("s_memtime s[12:13]"); a("v_mov_b32 v255, 0")
    if OPT['pad']: a("s_memrealtime s[10:11]")
    a("s_load_dwordx16 s[16:31], s[0:1], 0")
    a("s_load_dwordx8 s[32:39], s[0:1], 64")
    lane = V(0)
    tid, t0, t1, t2, t3, t4 = V(1), V(2), V(3), V(4), V(5), V(6)
    vqd, vr, vc, vl15 = V(7), V(8), V(9), V(10)
    vx = [V(11 + i) for i in range(4)]
    xa = [[V(15), V(16)], [V(17), V(18)]]
    tdum = V(19); ta = V(32, 2); tb = V(34, 2)
    R0 = 24
    sTY, sRB, sXK, sWK, sM, sT0, sT1, sT2, sT3, sRG, sHI, sID, sMW, sC8, sR4 = [S(62 + i) for i in range(15)]
    a(f"v_lshrrev_b32 {t0}, 6, v0")
    a(f"v_mov_b32 {tid}, v0")
    a(f"v_readfirstlane_b32 {sWV}, {t0}")
    a(f"v_and_b32 {lane}, 63, v0")
    a(f"s_bfe_u32 {sC8}, s2, 0x30003")
    a(f"s_lshr_b32 {sR4}, s2, 6")
    a(f"s_and_b32 {sRB}, s2, 1")
    a(f"s_lshl_b32 {sRB}, {sRB}, 2")
    a(f"s_add_u32 {sRB}, {sRB}, {sR4}")
    a(f"s_bfe_u32 {sT0}, s2, 0x20001")
    a(f"s_and_b32 {sRG}, {sWV}, 3")
    a(f"s_lshr_b32 {sHI}, {sWV}, 2")
    a(f"v_lshrrev_b32 {vqd}, 4, {lane}")
    a(f"v_bfe_u32 {vr}, {lane}, 2, 2")
    a(f"v_and_b32 {vc}, 3, {lane}")
    a(f"v_and_b32 {vl15}, 15, {lane}")
    a(f"v_lshrrev_b32 {t0}, 3, {lane}")
    a(f"v_mul_u32_u24 {t0}, 1280, {t0}")
    a(f"v_and_b32 {t1}, 7, {lane}")
    a(f"v_xor_b32 {t1}, {t1}, {vqd}")
    a(f"v_lshl_add_u32 {vx[0]}, {t1}, 4, {t0}")
    a(f"v_xor_b32 {t1}, 4, {t1}")
    a(f"v_lshl_add_u32 {vx[1]}, {t1}, 4, {t0}")
    a(f"v_add_u32 {vx[1]}, {8*1280-1024}, {vx[1]}")
    a(f"v_add_u32 {vx[2]}, {16*1280-2048}, {vx[0]}")
    a(f"v_add_u32 {vx[3]}, {16*1280-2048}, {vx[1]}")
    a(f"s_mul_i32 {sXK}, {sRB}, {256*1280}")
    a(f"s_mul_i32 {sT1}, {sWV}, {32*1280}")
    a(f"s_add_u32 {sXK}, {sXK}, {sT1}")
    a(f"s_lshl_b32 {sM}, {sWV}, 12")
    sXA, sXB = S(6), S(7)
    if OPT['swp']:
        a(f"s_add_u32 {sTY}, {sC8}, {sR4}"); a(f"s_and_b32 {sTY}, {sTY}, 1")
        a(f"s_lshl_b32 {sT1}, {sTY}, 7"); a(f"s_add_u32 {sXK}, {sXK}, {sT1}")
    a(f"v_lshlrev_b32 {t2}, 3, {tid}")
    a(f"v_min_u32 {t2}, {163840 - CNT - 8}, {t2}")
    a(f"v_add_u32 {t2}, {CNT}, {t2}")
    a(f"v_mov_b32 {ta[0]}, 0"); a(f"v_mov_b32 {ta[1]}, 0")
    a(f"ds_write_b64 {t2}, {ta}")
    a(f"s_mul_i32 {sID}, {sT0}, 9"); a(f"s_add_u32 {sID}, {sID}, 1"); a(f"s_lshr_b32 {sID}, {sID}, 1")
    a(f"s_add_u32 {sID}, {sID}, {sC8}"); a(f"s_sub_u32 {sID}, {sID}, 3")
    a(f"s_and_b32 {sT1}, {sT0}, 1"); a(f"s_add_u32 {sT1}, {sT1}, {sC8}")
    a(f"s_mov_b32 {sC[0]}, {LOG2E:#x}")
    a(f"s_mov_b32 {sC[1]}, {LOG2E:#x}")
    sU1, sU2, sBK = S(100), S(101), S(95)
    vt1, vt2 = V(22), V(23)
    T2 = OPT['touch'] >= 2; T3 = OPT['touch'] == 3
    rTT = S(96, 4)
    def t2_all(b0):
        return [f"s_mul_i32 s4, {sBK}, {b0}", f"s_add_u32 s4, s4, {sU2}",
                f"v_add_u32 v21, s4, {vt2}", f"s_mov_b64 exec, 0xff\nbuffer_load_dword {tdum}, v21, {rTT}, 0 offen\ns_mov_b64 exec, -1"]
    OOL = []
    def t2_one(b, c8v):
        lb = a.newlabel('T2')
        body = (f"s_mul_i32 s4, {sBK}, {b}\ns_add_u32 s4, s4, {sU1}\nv_add_u32 v3, s4, {vt1}\ns_mov_b32 exec_hi, 0\n"
                f"buffer_load_dword {tdum}, v3, {rTT}, 0 offen\ns_mov_b64 exec, -1\n")
        if OPT['trim']:
            OOL.append(f"{lb}o:\n" + body + f"s_branch {lb}")
            return [f"s_cmp_eq_u32 {sC8}, {c8v}\ns_cbranch_scc1 {lb}o\n{lb}:"]
        return [f"s_cmp_lg_u32 {sC8}, {c8v}\ns_cbranch_scc1 {lb}\n" + body + f"{lb}:"]
    if T2:
        a(f"s_lshr_b32 s9, {sWV}, 1")
        a(f"s_mov_b32 {rTT[2]}, {2048*1280}"); a(f"s_movk_i32 {sBK}, 128")
        a("s_cmp_eq_u32 s9, 1")
        a(f"s_cselect_b32 {rTT[2]}, {640*3840}, {rTT[2]}"); a(f"s_cselect_b32 {sBK}, {64*3840}, {sBK}")
        a("s_cmp_ge_u32 s9, 2")
        a(f"s_cselect_b32 {rTT[2]}, {640*3456}, {rTT[2]}"); a(f"s_cselect_b32 {sBK}, {64*3456}, {sBK}")
        a(f"s_mov_b32 {rTT[3]}, 0x20000")
        a("s_cmp_eq_u32 s9, 0")
        a("s_movk_i32 s7, 128"); a("s_cselect_b32 s5, 1280, s7"); a("s_cselect_b32 s6, 640, s7"); a("s_cselect_b32 s7, 512, 0")
        a(f"v_mul_u32_u24 {vt1}, s5, {lane}")
        a(f"v_mul_u32_u24 {vt2}, s6, {lane}")
        a(f"v_and_b32 {t0}, 1, {lane}"); a(f"v_mul_u32_u24 {t0}, s7, {t0}"); a(f"v_sub_u32 {vt2}, {vt2}, {t0}")
        a(f"s_and_b32 s4, {sWV}, 1")
        a(f"s_lshl1_add_u32 {sU2}, s2, s4"); a(f"s_lshl_b32 {sU2}, {sU2}, 3"); a(f"s_mul_i32 {sU2}, {sU2}, s6")
        a(f"s_and_b32 {sU1}, s2, 7"); a(f"s_lshl2_add_u32 {sU1}, {sU1}, {sR4}")
        a(f"s_lshl1_add_u32 {sU1}, {sU1}, s4"); a(f"s_lshl_b32 {sU1}, {sU1}, 5"); a(f"s_mul_i32 {sU1}, {sU1}, s5")
        a(f"v_add_u32 {t4}, {sU2}, {vt2}")
        if eval(OPT['t2a'])[0]:
            a(f"s_mul_i32 s4, {sBK}, {eval(OPT['t2a'])[0]}"); a(f"v_add_u32 {t4}, s4, {t4}")
    a(f"s_mov_b32 {rX[2]}, {2048*1280}"); a(f"s_mov_b32 {rX[3]}, 0x20000")
    a(f"s_mov_b32 m0, {sM}")
    a("s_waitcnt lgkmcnt(0)")
    if T2:
        a("s_cmp_eq_u32 s9, 1"); a(f"s_cselect_b64 {rTT[0:2]}, {pQKV}, {pX}")
        a("s_cmp_eq_u32 s9, 2"); a(f"s_cselect_b64 {rTT[0:2]}, {pWG}, {rTT[0:2]}")
        a("s_cmp_eq_u32 s9, 3"); a(f"s_cselect_b64 {rTT[0:2]}, {pWU}, {rTT[0:2]}")
        a(f"s_and_b32 {rTT[1]}, {rTT[1]}, 0xffff")
        a("s_mov_b64 exec, 0xff"); a(f"buffer_load_dword {tdum}, {t4}, {rTT}, 0 offen"); a("s_mov_b64 exec, -1")
        for b0 in eval(OPT['t2a'])[1:]:
            for l in t2_all(b0): a(l)
    a(f"s_mov_b32 {rX[0]}, {pX[0]}"); a(f"s_and_b32 {rX[1]}, {pX[1]}, 0xffff")
    if OPT['x0e']:
        a(f"s_cmp_eq_u32 {sT1}, 8"); a("s_cbranch_scc1 NOX0")
        if OPT['sb1']: a("s_barrier")
        for n in range(4): a(f"buffer_load_dwordx4 {vx[n]}, {rX}, {sXK} offen offset:{n*1024} lds")
        a.label("NOX0")
    srd(a, rWS, pWS, WSZ)
    srd(a, rDBG, pDBG, 256)
    if OPT['tlb']:
        a(f"s_cmp_lg_u32 {sWV}, 6"); a("s_cbranch_scc1 NOTLB")
        srd(a, rA, pOUT, 2048 * 1280)
        a(f"v_lshlrev_b32 {t0}, {OPT['tlb']}, {lane}")
        a("s_lshl_b32 s6, s2, 7"); a(f"v_add_u32 {t0}, s6, {t0}")
        a(f"v_min_u32 {t1}, {0x1250000}, {t0}")
        a(f"buffer_load_dword v31, {t1}, {rWS}, 0 offen")
        a(f"buffer_load_dword v31, {t0}, {rA}, 0 offen")
        a.label("NOTLB")
    if OPT['cpf']:
        a(f"s_cmp_lg_u32 {sWV}, 7"); a("s_cbranch_scc1 NOCPF")
        a("s_getpc_b64 s[90:91]")
        a.label("CPF_PC")
        a("s_lshr_b32 s6, s2, 3"); a(f"s_mul_i32 s6, s6, {OPT['cpf']*128}")
        a(f"v_lshlrev_b32 {t0}, 7, {lane}"); a(f"v_add_u32 {t0}, s6, {t0}")
        a(f"v_min_u32 {t0}, K_LAST-CPF_PC, {t0}")
        a(f"s_mov_b64 exec, {(1 << OPT['cpf']) - 1:#x}")
        a(f"global_load_dword v31, {t0}, s[90:91]")
        a("s_mov_b64 exec, -1")
        a.label("NOCPF")
    if OPT['swp']: a(f"s_lshl_b32 s4, {sTY}, 8"); a(f"s_sub_u32 {sXA}, 128, s4"); a(f"s_add_u32 {sXB}, s4, 128")
    a(f"s_cmp_lt_u32 {sC8}, 3")
    a("s_cbranch_scc1 R_QKV")
    a(f"s_cmp_eq_u32 {sT1}, 8")
    a("s_cbranch_scc1 R_SPARE")

    def x_dma(vm, blk, half):
        if blk == 0 and OPT['x0e']:
            vm.issue(('X', 0)); vm.issue(('X', 0)); return []
        l = [f"s_add_u32 m0, {sM}, {(blk % 3) * XSLOT}"]
        if half == 0 and blk > 0: l.append(f"s_add_u32 {sXK}, {sXK}, {(sXA if blk % 2 else sXB) if OPT['swp'] else 128}")
        for n in (2 * half, 2 * half + 1):
            l.append(f"buffer_load_dwordx4 {vx[n]}, {rX}, {sXK} offen offset:{n*1024} {OPT['xfl']} lds")
            vm.issue(('X', blk))
        return l
    def x_addr_setup():
        a(f"v_lshrrev_b32 {t0}, 1, {vl15}")
        a(f"v_xor_b32 {t0}, {t0}, {vqd}")
        a(f"v_lshlrev_b32 {t0}, 4, {t0}")
        a(f"v_lshl_add_u32 {t0}, {vl15}, 7, {t0}")
        a(f"s_lshl_b32 {sT0}, {sRG}, 13")
        a(f"v_add_u32 {xa[0][0]}, {sT0}, {t0}")
        a(f"v_xor_b32 {xa[0][1]}, 64, {xa[0][0]}")
        a(f"v_add_u32 {xa[1][0]}, 0x10000, {xa[0][0]}")
        a(f"v_add_u32 {xa[1][1]}, 0x10000, {xa[0][1]}")
    def x_reads(XF, step):
        blk, kk = step // 2, step % 2
        sl = blk % 3
        return [f"ds_read_b128 {XF[tt]}, {xa[sl // 2][kk]} offset:{(sl % 2) * XSLOT + tt * 2048}" for tt in range(4)]
    def burst(vm, b0, b1):
        if OPT['touch'] not in (1, 3): return []
        l = []
        for st, reg in ((0, ta), (5, tb)):
            lo, hi = max(b0, st) - st, min(b1, st + 5) - st
            if lo >= hi: continue
            m = ((1 << (12 * hi)) - 1) & ~((1 << (12 * lo)) - 1)
            l += [f"s_mov_b32 exec_lo, {m & 0xffffffff:#x}", f"s_mov_b32 exec_hi, {m >> 32:#x}", f"global_load_dword {tdum}, {reg}, off"]
            vm.issue('T')
        l.append("s_mov_b64 exec, -1")
        return l
    def touch_setup(pw0, pw1, rowbytes, off0, off1, seg):
        if OPT['touch'] not in (1, 3): return
        l12, bi = tb[0], tb[1]; tinc = V(36)
        a(f"v_mul_u32_u24 {bi}, 43, {lane}"); a(f"v_lshrrev_b32 {bi}, 9, {bi}")
        a(f"v_mul_u32_u24 {l12}, 12, {bi}"); a(f"v_sub_u32 {l12}, {lane}, {l12}")
        a(f"s_lshl_b32 {sT2}, {sRB}, 3"); a(f"s_add_u32 {sT2}, {sT2}, {sC8}"); a(f"s_lshl_b32 {sT2}, {sT2}, 3"); a(f"s_add_u32 {sT2}, {sT2}, {sWV}")
        a(f"s_mul_i32 {sT2}, {sT2}, {4*1280}")
        a(f"v_mul_u32_u24 {t0}, 1280, {l12}")
        a(f"v_add_u32 {t0}, {sT2}, {t0}")
        a(f"s_lshl_b32 {sT0}, {sR4}, 3"); a(f"s_add_u32 {sT0}, {sT0}, {sWV}"); a(f"s_mul_i32 {sT0}, {sT0}, {2*rowbytes}")
        a(f"v_subrev_u32 {t1}, 4, {l12}")
        a(f"v_bfe_u32 {t2}, {t1}, 2, 1")
        a(f"v_mul_u32_u24 {t2}, {rowbytes}, {t2}")
        a(f"v_and_b32 {t3}, 1, {t1}")
        a(f"v_mul_u32_u24 {t3}, {seg-4}, {t3}")
        a(f"v_add3_u32 {t2}, {t2}, {t3}, {sT0}")
        a(f"v_and_b32 {t3}, 2, {t1}")
        a(f"v_cmp_eq_u32 vcc, 0, {t3}")
        a(f"v_mov_b32 {t3}, {off1}"); a(f"v_mov_b32 {t4}, {off0}")
        a(f"v_cndmask_b32 {t3}, {t3}, {t4}, vcc")
        a(f"v_add_u32 {t2}, {t2}, {t3}")
        a(f"v_mov_b32 {t3}, {pw1[0]}"); a(f"v_mov_b32 {t4}, {pw0[0]}"); a(f"v_cndmask_b32 {ta[0]}, {t3}, {t4}, vcc")
        a(f"v_mov_b32 {t3}, {pw1[1]}"); a(f"v_mov_b32 {t4}, {pw0[1]}"); a(f"v_cndmask_b32 {ta[1]}, {t3}, {t4}, vcc")
        a(f"v_cmp_gt_u32 vcc, 4, {l12}")
        a(f"v_mov_b32 {t3}, {pX[0]}"); a(f"v_mov_b32 {t4}, {pX[1]}")
        a(f"v_cndmask_b32 {t2}, {t2}, {t0}, vcc")
        a(f"v_cndmask_b32 {ta[0]}, {ta[0]}, {t3}, vcc")
        a(f"v_cndmask_b32 {ta[1]}, {ta[1]}, {t4}, vcc")
        a(f"v_mov_b32 {t3}, {64*rowbytes}"); a(f"v_mov_b32 {t4}, 128"); a(f"v_cndmask_b32 {tinc}, {t3}, {t4}, vcc")
        a(f"v_mad_u32_u24 {t2}, {tinc}, {bi}, {t2}")
        a(f"v_add_co_u32 {ta[0]}, vcc, {ta[0]}, {t2}")
        a(f"v_mul_u32_u24 {t2}, 5, {tinc}")
        a(f"v_addc_co_u32 {ta[1]}, vcc, 0, {ta[1]}, vcc")
        a(f"v_add_co_u32 {tb[0]}, vcc, {ta[0]}, {t2}")
        a(f"v_addc_co_u32 {tb[1]}, vcc, 0, {ta[1]}, vcc")
    def step_body(mains, lblk, pre=[]):
        for l in pre: a(l)
        if not lblk:
            for m in mains: a(m)
            return
        if OPT['pp'] == 2:
            rds = [l for l in lblk if l.startswith('ds_read')]; oth = [l for l in lblk if not l.startswith('ds_read')]
            l1, l2 = a.newlabel('PP'), a.newlabel('PP')
            if oth:
                a(f"s_cmp_eq_u32 {sHI}, 0"); a(f"s_cbranch_scc1 {l1}")
                for l in oth: a(l)
                a.label(l1)
            k = 0
            for i, m in enumerate(mains):
                a(m)
                while k < len(rds) and k < (i + 1) * max(1, -(-len(rds) // len(mains))):
                    a(rds[k]); k += 1
            if oth:
                a(f"s_cmp_eq_u32 {sHI}, 0"); a(f"s_cbranch_scc0 {l2}")
                for l in oth: a(l)
                a.label(l2)
        elif OPT['pp']:
            l1, l2 = a.newlabel('PP'), a.newlabel('PP')
            a(f"s_cmp_eq_u32 {sHI}, 0"); a(f"s_cbranch_scc1 {l1}")
            for l in lblk: l() if callable(l) else a(l)
            a.label(l1)
            for m in mains: a(m)
            a(f"s_cmp_eq_u32 {sHI}, 0"); a(f"s_cbranch_scc0 {l2}")
            for l in lblk: l() if callable(l) else a(l)
            a.label(l2)
        else:
            rds = [l for l in lblk if l.startswith('ds_read')]; oth = [l for l in lblk if not l.startswith('ds_read')]
            units = []; cur = []
            for l in oth:
                cur.append(l)
                if 'buffer_' in l or 'ds_write' in l: units.append(cur); cur = []
            if cur: units.append(cur)
            n = len(mains); mode = OPT['il']
            pos = {}
            if mode == 0:
                seq = [[r] for r in rds] + units
                for k, u in enumerate(seq): pos.setdefault(min(n - 1, k * n // max(len(seq), n)), []).extend(u)
            elif mode == 1:
                for k, u in enumerate(units): pos.setdefault(min(n - 1, 2 * k), []).extend(u)
                for k, r in enumerate(rds): pos.setdefault(min(n - 1, k * min(n, len(rds)) // len(rds) if len(rds) > n else k), []).append(r)
            elif mode == 2:
                for k, r in enumerate(rds): pos.setdefault(min(n - 1, k // 2), []).append(r)
                for k, u in enumerate(units): pos.setdefault(min(n - 1, len(rds) // 2 + 2 * k), []).extend(u)
            elif mode == 3:
                for k, u in enumerate(units): pos.setdefault(min(n - 1, 1 + k * (2 * n // 3) // max(1, len(units))), []).extend(u)
                for k, r in enumerate(rds): pos.setdefault(min(n - 1, k * min(n, len(rds)) // len(rds) if len(rds) > n else k), []).append(r)
            elif mode == 4:
                k = 0
                for i in range(n):
                    while k < len(lblk) and k < (i + 1) * len(lblk) // n + 1:
                        pos.setdefault(i, []).append(lblk[k]); k += 1
            for i, m in enumerate(mains):
                a(m)
                for l in pos.get(i, []): a(l)
    def init_check_issue(reg, off=128):
        return [f"v_mov_b32 {reg}, 0", f"buffer_load_dword {reg}, {reg}, {rDBG}, 0 offen offset:{off} sc1"]
    def init_check(reg, off=128, ool=False):
        ok = a.newlabel('INITOK')
        a(f"v_readfirstlane_b32 {sP[0]}, {reg}")
        if ool and OPT['trim']:
            a(f"s_cmp_eq_u32 {sP[0]}, 0"); a(f"s_cbranch_scc1 {ok}o"); a.label(ok)
            b = Asm(); b.uid = a.uid + 1000; init_poll(b, reg, off); a.uid += 5
            OOL.append(f"{ok}o:\n" + "\n".join(x.text for x in b.ins) + f"\ns_branch {ok}")
            return
        a(f"s_cmp_lg_u32 {sP[0]}, 0")
        a(f"s_cbranch_scc1 {ok}")
        init_poll(a, reg, off)
        a.label(ok)
    sR6, sCG, sAo, sBg, sBo, sLC, sH2, sRX = [S((16 if OPT['trim'] else 94) + i) for i in range(8)]
    vo, vo4 = V(20), V(21)
    vS2 = V(30)
    sO1, sO2 = S(79), S(80)
    BRb = [208, 228, 32, 52]
    BR = [[V(BRb[b] + 4 * j, 4) for j in range(5)] for b in range(4)]
    GL = [4, 6, 7, 9]; LR = [2, 5, 3, 4]; CR = [0, 1, 6]
    GRP = {0:0, 1:1, 2:2, 3:3, 4:8, 6:9, 7:10, 9:11, 5:12, 8:13}
    if OPT['gf'] & 1:
        GL = [6, 7, 8, 9]; GRP = {0:0, 1:1, 2:2, 3:3, 6:8, 7:9, 8:10, 9:11, 4:12, 5:13}
    INP2 = [False]
    BS_ = 40960; GS_ = 4 * BS_
    CB0 = 38 * BS_; CA0 = 38 * 4096
    def p2_setup():
        return [f"s_and_b32 {sR6}, s2, 7", f"s_lshl_b32 {sR6}, {sR6}, 2", "s_lshr_b32 s4, s2, 6", f"s_add_u32 {sR6}, {sR6}, s4",
             f"s_bfe_u32 {sCG}, s2, 0x30003", f"s_lshl1_add_u32 {sCG}, s4, {sCG}", f"s_and_b32 {sCG}, {sCG}, 7", f"v_lshlrev_b32 {vo}, 4, {lane}", f"v_add_u32 {vo4}, 4096, {vo}",
             f"s_lshl3_add_u32 {sBg}, {sRG}, {sCG}", f"s_mul_i32 {sBg}, {sBg}, 5120", f"s_add_u32 {sBg}, {sBg}, {BP}",
             f"s_mov_b32 {rB[0]}, {pWS[0]}", f"s_and_b32 {rB[1]}, {pWS[1]}, 0xffff", f"s_mul_i32 {rB[2]}, {sHI}, {WSZ}", f"s_mov_b32 {rB[3]}, 0x20000",
             f"s_mul_i32 {sLC}, {sRG}, 5120", f"s_mul_i32 {sH2}, {sHI}, {GS_}", f"s_mul_i32 {sRX}, {sHI}, 20480",
             f"s_xor_b32 s4, {sHI}, 1", f"s_mul_i32 {sBo}, s4, {16*BS_}", f"s_add_u32 {sBo}, {sBo}, {sBg}",
             f"s_mul_i32 {sAo}, {sR6}, 74", f"s_mul_i32 s4, s4, 16", f"s_add_u32 {sAo}, {sAo}, s4", f"s_add_u32 {sAo}, {sAo}, {sRG}", f"s_lshl_b32 {sAo}, {sAo}, 12",
             f"s_lshr_b32 s4, {sCG}, 1", "s_mul_i32 s4, s4, 5", f"s_mul_i32 {sO2}, {sR6}, 74", f"s_add_u32 {sO2}, {sO2}, s4", f"s_add_u32 {sO2}, {sO2}, 54",
             f"s_lshl2_add_u32 {sO2}, {sO2}, {sRG}", f"s_lshl_b32 {sO2}, {sO2}, 10", f"s_and_b32 s4, {sCG}, 1", f"s_mul_i32 {sO1}, s4, {3*4096}",
             f"s_add_u32 {sO1}, {sO1}, {sO2}", "s_lshl_b32 s4, s4, 9", f"s_add_u32 {sO2}, {sO2}, s4", f"s_add_u32 {sO2}, {sO2}, 8192",
             f"s_lshl_b32 s78, {sR6}, 7", f"s_add_u32 s78, s78, {FH + GOD}"]
    vFQ = V(31)
    def q_flag_issue(): return [f"v_mov_b32 {vFQ}, 0", f"buffer_load_dword {vFQ}, {vFQ}, {rWS}, s78 offen offset:4 sc1"]
    def poison(R4):
        if not OPT['sent']: return []
        lb = a.newlabel('PO')
        return [f"s_cmp_eq_u32 {sHI}, 1\ns_cbranch_scc1 {lb}\n" + "\n".join(f"v_mov_b32 {R4[i]}, -1" for i in range(4)) +
                f"\nbuffer_store_dwordx4 {R4}, {vo}, {rWS}, {sO1} offen {ST}\nbuffer_store_dwordx4 {R4}, {vo4}, {rWS}, {sO1} offen {ST}"
                f"\ns_mov_b32 exec_hi, 0\nbuffer_store_dwordx4 {R4}, {vo}, {rWS}, {sO2} offen {ST}\ns_mov_b32 exec_hi, -1\n{lb}:"]
    def b_reg(vm, i, tag, r=None, grp=None, ext=0):
        b = i % 4; r = r or rWS; grp = i if grp is None else grp
        if INP2[0] and OPT['nob'] == 1: r = rA
        if INP2[0] and OPT['nob'] == 2: return []
        l = [f"s_add_u32 s4, {sBo}, {grp*GS_ + ext}"]
        for j in range(5):
            if j < 4: l.append(f"buffer_load_dwordx4 {BR[b][j]}, {vo}, {r}, s4 offen offset:{j*1024} {LD}")
            else: l.append(f"buffer_load_dwordx4 {BR[b][j]}, {vo4}, {r}, s4 offen {LD}")
            vm.issue(tag)
        return l
    def b_row(vm, base, grp, row, extra=None, ext=0, hi3=False):
        l = [f"s_add_u32 s4, {base}, {grp*GS_ + ext}", f"s_add_u32 s5, {sLC}, {row*20480}"]
        if hi3: l += [f"s_add_u32 s4, s4, {sH2}", f"s_mul_i32 s6, {sRX}, 3", "s_add_u32 s5, s5, s6"]
        if extra: l += [f"s_add_u32 s4, s4, {sH2}", f"s_add_u32 s5, s5, {extra}"]
        l.append("s_mov_b32 m0, s5")
        if INP2[0] and OPT['nob'] == 2: return []
        for j in range(4):
            l.append(f"buffer_load_dwordx4 {vo}, {rWS}, s4 offen offset:{j*1024} {LD} lds"); vm.issue('BL')
        l.append("s_add_u32 m0, s5, 4096")
        l.append(f"buffer_load_dwordx4 {vo4}, {rWS}, s4 offen {LD} lds"); vm.issue('BL')
        return l
    def b_row_half(vm, k):
        l = [f"s_add_u32 s4, {sBg}, {GRP[GL[k]]*20480}", f"s_add_u32 s5, {sLC}, {LR[k]*20480}", f"s_add_u32 s4, s4, {sH2}", f"s_add_u32 m0, s5, {sH2}"]
        for j in range(3):
            l.append(f"buffer_load_dwordx4 {vo}, {rWS}, s4 offen offset:{j*1024} {LD} lds"); vm.issue('BL')
        return l
    sPF = S(8)
    def flag_store(need):
        a(f"s_mov_b32 {sNEED}, {need}")

    vw = [V(R0), V(R0 + 1)]; wa = [V(R0 + 2), V(R0 + 3), V(R0 + 4)]; vchk = V(R0 + 5)
    FB = [32, 72]
    XF = [[V(FB[b] + 4 * tt, 4) for tt in range(4)] for b in range(2)]
    WF = [[V(FB[b] + 16 + 4 * c, 4) for c in range(6)] for b in range(2)]
    ACC = [[V(112 + (c * 4 + tt) * 4, 4) for tt in range(4)] for c in range(6)]
    vm = VmTrack()
    a(f"s_mul_i32 {sT3}, {sID}, 192")
    touch_setup(pWG, pWU, 3456, sT3, sT3, 192)
    for l in burst(vm, *BS['p0']): a(l)
    a(f"s_bitcmp1_b32 {sWV}, 0")
    a(f"s_cselect_b32 {rW[0]}, {pWU[0]}, {pWG[0]}")
    a(f"s_cselect_b32 {rW[1]}, {pWU[1]}, {pWG[1]}")
    a(f"s_and_b32 {rW[1]}, {rW[1]}, 0xffff")
    a(f"s_mov_b32 {rW[2]}, {640*3456}")
    a(f"s_mov_b32 {rW[3]}, 0x20000")
    a(f"s_bfe_u32 {sT0}, {sWV}, 0x10001")
    a(f"s_lshl_b32 {sT1}, {sT0}, 1")
    for n in range(2):
        a(f"v_add_u32 {t0}, {64*n}, {lane}")
        a(f"v_mul_u32_u24 {t1}, 43, {t0}")
        a(f"v_lshrrev_b32 {t1}, 9, {t1}")
        a(f"v_mul_u32_u24 {t2}, 12, {t1}")
        a(f"v_sub_u32 {t2}, {t0}, {t2}")
        a(f"v_lshrrev_b32 {t3}, 2, {t2}")
        a(f"v_cmp_eq_u32 vcc, 1, {t3}")
        a(f"v_mov_b32 {t3}, {sT1}")
        a(f"v_mov_b32 {t4}, {sT0}")
        a(f"v_cndmask_b32 {t3}, {t3}, {t4}, vcc")
        a(f"v_xor_b32 {t2}, {t2}, {t3}")
        a(f"v_mul_u32_u24 {t1}, 3456, {t1}")
        a(f"v_lshl_add_u32 {vw[n]}, {t2}, 4, {t1}")
        if n: a(f"v_subrev_u32 {vw[n]}, 1024, {vw[n]}")
    a(f"s_lshr_b32 {sT0}, {sWV}, 1")
    a(f"s_mul_i32 {sWK}, {sT0}, {8*3456}")
    a(f"s_add_u32 {sWK}, {sWK}, {sT3}")
    a(f"s_mul_i32 {sMW}, {sT0}, 1536")
    a(f"s_and_b32 {sT1}, {sWV}, 1")
    a(f"s_mul_i32 {sT1}, {sT1}, 6144")
    a(f"s_add_u32 {sMW}, {sMW}, {sT1}")
    sW2 = S(54, 2)
    if OPT['swp']:
        a(f"s_mul_i32 {sT1}, {sTY}, {2*110592}"); a(f"s_add_u32 {sWK}, {sWK}, {sT1}"); a(f"s_lshl_b32 {sT1}, {sT1}, 1")
        a(f"s_sub_u32 {sW2[0]}, 110592, {sT1}"); a(f"s_add_u32 {sW2[1]}, {sT1}, 110592")
    def w_dma(step):
        l = [f"s_add_u32 m0, {sMW}, {WB + (step % 5) * 12288}"] + ([f"s_add_u32 {sWK}, {sWK}, {(110592 if step % 2 or not OPT['swp'] else (sW2[0] if step % 4 == 2 else sW2[1]))}"] if step else []) + [
             f"buffer_load_dwordx4 {vw[0]}, {rW}, {sWK} offen {OPT['wfl']} lds",
             "s_mov_b32 exec_hi, 0\n"
             f"buffer_load_dwordx4 {vw[1]}, {rW}, {sWK} offen offset:1024 {OPT['wfl']} lds\n"
             "s_mov_b32 exec_hi, -1"]
        vm.issue(('W', step)); vm.issue(('W', step))
        return l
    if OPT['sb1'] and not OPT['x0e']: a("s_barrier")
    for l in x_dma(vm, 0, 0) + x_dma(vm, 0, 1) + w_dma(0) + w_dma(1): a(l)
    x_addr_setup()
    a(f"v_lshl_add_u32 {t0}, {vqd}, 3, {vr}")
    a(f"v_mul_u32_u24 {t0}, 192, {t0}")
    a(f"v_add_u32 {t0}, {WB}, {t0}")
    a(f"v_and_b32 {t1}, 1, {vqd}")
    a(f"v_lshlrev_b32 {t2}, 5, {t1}")
    a(f"v_lshl_add_u32 {t2}, {vc}, 3, {t2}")
    a(f"s_lshl_b32 {sT0}, {sHI}, 7")
    a(f"v_add3_u32 {wa[0]}, {t0}, {t2}, {sT0}")
    a(f"v_xor_b32 {wa[1]}, 32, {wa[0]}")
    a(f"v_and_b32 {t2}, 2, {vc}")
    a(f"v_add_u32 {t2}, {sHI}, {t2}")
    a(f"v_xor_b32 {t2}, {t2}, {t1}")
    a(f"v_lshlrev_b32 {t2}, 4, {t2}")
    a(f"v_and_b32 {t3}, 1, {vc}")
    a(f"v_lshl_add_u32 {t2}, {t3}, 3, {t2}")
    a(f"v_add3_u32 {wa[2]}, {t0}, {t2}, 64")
    def w_reads(WFb, step):
        return [f"ds_read_b64_tr_b16 {WFb[m*3+i][2*rd:2*rd+2]}, {wa[i]} offset:{(step % 5) * 12288 + m * 6144 + rd * 768}"
                for m in range(2) for i in range(3) for rd in range(2)]
    def t2b_emit():
        if T2:
            for b0 in eval(OPT['t2b']):
                for l in t2_all(b0): a(l)
                vm.issue('T')
    if OPT['t2pos'] == 1:
        if OPT['sb2']: a("s_barrier")
        t2b_emit()
    if OPT['trim']:
        for l in p2_setup(): a(l)
    n = vm.wait_for(lambda t: t in (('X', 0), ('W', 0)))
    a(f"s_waitcnt vmcnt({n})")
    a("s_barrier")
    stamp(a, 1)
    for l in x_reads(XF[0], 0) + w_reads(WF[0], 0): a(l)
    if OPT['fill'] == 0:
        for l in x_dma(vm, 1, 0) + x_dma(vm, 1, 1) + w_dma(2): a(l)
        if OPT['t2pos'] == 2: t2b_emit()
    fq = []
    for st in range(2, 20):
        if st % 2 == 0:
            b = st // 2
            fq += [('X', b, 0, max(0, 2*(b-3)+1)), ('X', b, 1, max(0, 2*(b-3)+1))]
        fq.append(('W', st, 0, max(0, st - 5)))
    for j in range(20):
        cur, nxt = j & 1, (j & 1) ^ 1
        CHK = OPT['chk']
        NB = OPT['nobar']
        if j < NB:
            n = vm.wait_for(lambda t: t in (('X', (j + 1) // 2), ('W', j + 1)) or (j == CHK and t == 'chk') or (j == 16 and t == 'chk2') or (j == NB - 1 and t[0] in 'XW'))
            a(f"s_waitcnt vmcnt({n}) lgkmcnt(0)")
            if j == CHK: init_check(vchk, 128, True)
            if j == 16: init_check(vS2, 136, True)
            a("s_barrier")
        else:
            a("s_waitcnt lgkmcnt(0)")
        sstamp(a, j)
        mains = [f"v_mfma_f32_16x16x32_bf16 {ACC[c][tt]}, {WF[cur][c]}, {XF[cur][tt]}, {'0' if j == 0 else ACC[c][tt]}" for c in range(6) for tt in range(4)]
        pre = burst(vm, *BS[j]) if j in BS else []
        lblk = []
        if j < 19:
            lblk += x_reads(XF[nxt], j + 1) + w_reads(WF[nxt], j + 1)
            if OPT['fill']:
                cnt = OPT['fill'] + (1 if j == 0 else 0)
                while cnt and fq and fq[0][3] <= j:
                    it = fq.pop(0); cnt -= 1
                    lblk += x_dma(vm, it[1], it[2]) if it[0] == 'X' else w_dma(it[1])
            if j == 0 and not OPT['fill']: lblk += w_dma(3) + x_dma(vm, 2, 0) + x_dma(vm, 2, 1) + w_dma(4)
            xb = (j - 1) // 2 + 3 if j >= 1 else 99
            if xb <= 9 and not OPT['fill']: lblk += x_dma(vm, xb, (j - 1) % 2)
            if T2 and j in eval(OPT['t2f']): lblk += t2_one(*eval(OPT['t2f'])[j])
            if j == CHK - 2: lblk += init_check_issue(vchk); vm.issue('chk')
            if j + 5 <= 19 and not OPT['fill']: lblk += w_dma(j + 5)
            if j == 10 and not OPT['trim']: lblk += p2_setup()
            if j == OPT['pj']: lblk += poison(V(248, 4))
            if OPT['lbt'] and j == OPT['lbt']: LBT = [f"s_bfe_u32 s4, {sC8}, 0x10001", f"s_lshl3_add_u32 s4, s4, {sWV}", f"s_mul_i32 s4, s4, {65*128}", f"s_mul_i32 s5, {sCG}, {74*5120}",
                     "s_add_u32 s4, s4, s5", f"s_add_u32 s4, s4, {BP + 48*5120}", f"v_lshlrev_b32 v3, 7, {lane}", f"buffer_load_dword {tdum}, v3, {rWS}, s4 offen sc1"]
            else: LBT = []
            if j == CHK: hq = b_reg(VmTrack(), 0, 'B') + b_reg(VmTrack(), 1, 'B'); hq = [hq[0:3], hq[3:5], [hq[5]] + hq[6:8], hq[8:10], hq[10:12]]
            JJ = [CHK, CHK + 1, CHK + 2, 15, 18]
            if j in JJ:
                q = JJ.index(j)
                if not hq[q][0].startswith('s_'): lblk.append(f"s_add_u32 s4, {sBo}, {0 if q < 3 else GS_}")
                lblk += hq[q]; vm.issue('B'); vm.issue('B')
            if j == 14: lblk += init_check_issue(vS2, 136); vm.issue('chk2')
            if j == 16: lblk += b_row(vm, sBg, GRP[GL[0]], LR[0], None, 0, True)
            if j == 17: lblk += b_row(vm, sBg, GRP[GL[2]], LR[2], sRX)
        else:
            if OPT['b23'] == 0: lblk += b_reg(vm, 2, 'B') + b_reg(vm, 3, 'B')
            if OPT['b23'] == 2: lblk += b_reg(vm, 2, 'B')
        if j < 19: lblk += LBT
        step_body(mains, lblk, pre)
    stamp(a, 2)
    a(f"s_setprio {OPT['eprio']}")
    sN = S(82, 2)
    a(f"s_mov_b32 {sN[0]}, {NLOG2E:#x}")
    a(f"s_mov_b32 {sN[1]}, {NLOG2E:#x}")
    a(f"s_lshl_b32 {sT3}, {sRB}, 2")
    a(f"s_add_u32 {sT3}, {sT3}, {sRG}")
    a(f"s_mul_i32 {sT0}, {sT3}, 74")
    a(f"s_mul_i32 {sT1}, {sID}, 3")
    a(f"s_add_u32 {sT0}, {sT0}, {sT1}")
    a(f"s_lshl_b32 {sT0}, {sT0}, 12")
    a(f"s_lshl_b32 {sT1}, {sHI}, 13")
    a(f"s_add_u32 {sT1}, {sT0}, {sT1}")
    a(f"s_lshl_b32 {sT2}, {sHI}, 9")
    a(f"s_add_u32 {sT2}, {sT2}, {sT0}")
    a(f"s_add_u32 {sT2}, {sT2}, 4096")
    a(f"s_lshl_b32 {sFLAG}, {sT3}, 7")
    a(f"s_add_u32 {sFLAG}, {sFLAG}, {FH}")
    a(f"v_lshlrev_b32 {t0}, 4, {lane}")
    a(f"v_and_b32 {t1}, 31, {lane}")
    a(f"v_lshlrev_b32 {t1}, 4, {t1}")
    a(f"v_lshrrev_b32 {t2}, 5, {lane}")
    a(f"v_lshl_add_u32 {t1}, {t2}, 10, {t1}")
    tmp = [V(FB[1] + 4 * i, 4) for i in range(2)]
    outs = [V(FB[1] + 8 + 4 * i, 4) for i in range(6)]
    cnt_ = [0]
    def silu2(G0, U0, G1, U1, o):
        GU = ((G0, U0, tmp[0]), (G1, U1, tmp[1]))
        pk = cnt_[0] >= OPT['npk']; cnt_[0] += 1
        for G, U, T in GU:
            if pk:
                for h in range(2): a(f"v_pk_mul_f32 {T[2*h:2*h+2]}, {G[2*h:2*h+2]}, {sN}")
            else:
                for k in range(4): a(f"v_mul_f32 {T[k]}, {sN[0]}, {G[k]}")
        for G, U, T in GU:
            for k in range(4): a(f"v_exp_f32 {T[k]}, {T[k]}")
        for G, U, T in GU:
            if pk:
                for h in range(2): a(f"v_pk_mul_f32 {G[2*h:2*h+2]}, {G[2*h:2*h+2]}, {U[2*h:2*h+2]}")
            else:
                for k in range(4): a(f"v_mul_f32 {G[k]}, {G[k]}, {U[k]}")
        for G, U, T in GU:
            if pk:
                for h in range(2): a(f"v_pk_add_f32 {T[2*h:2*h+2]}, {T[2*h:2*h+2]}, 1.0 op_sel_hi:[1,0]")
            else:
                for k in range(4): a(f"v_add_f32 {T[k]}, 1.0, {T[k]}")
        for G, U, T in GU:
            for k in range(4): a(f"v_rcp_f32 {T[k]}, {T[k]}")
        for G, U, T in GU:
            if pk:
                for h in range(2): a(f"v_pk_mul_f32 {G[2*h:2*h+2]}, {G[2*h:2*h+2]}, {T[2*h:2*h+2]}")
            else:
                for k in range(4): a(f"v_mul_f32 {G[k]}, {G[k]}, {T[k]}")
        for q, (G, U, T) in enumerate(GU):
            for h in range(2): a(f"v_cvt_pk_bf16_f32 {o[2*q+h]}, {G[2*h]}, {G[2*h+1]}")
    for tt in range(4):
        o = outs[tt]
        silu2(ACC[0][tt], ACC[3][tt], ACC[1][tt], ACC[4][tt], o)
        a(f"buffer_store_dwordx4 {o}, {t0}, {rWS}, {sT1} offen offset:{tt*1024} {ST}")
    for l in q_flag_issue(): a(l)
    for tp in range(2):
        o = outs[4 + tp]
        silu2(ACC[2][2*tp], ACC[5][2*tp], ACC[2][2*tp+1], ACC[5][2*tp+1], o)
        a(f"v_permlane32_swap_b32 {o[0]}, {o[2]}")
        a(f"v_permlane32_swap_b32 {o[1]}, {o[3]}")
        a(f"buffer_store_dwordx4 {o}, {t1}, {rWS}, {sT2} offen offset:{tp*2048} {ST}")
    flag_store(35)
    a("s_waitcnt vmcnt(2)")
    a(f"s_mov_b32 {sPF}, 0")
    a("s_branch P2")

    for l in OOL: a(l)
    OOL.clear()
    a.label('R_QKV')
    vm = VmTrack()
    vw = [V(R0), V(R0 + 1), V(R0 + 2)]; wa = V(R0 + 3); pa = V(R0 + 4); vchk = V(R0 + 5); vgw = V(R0 + 6)
    FB = [32, 68]
    XF = [[V(FB[b] + 4 * tt, 4) for tt in range(4)] for b in range(2)]
    WF = [[V(FB[b] + 16 + 4 * c, 4) for c in range(5)] for b in range(2)]
    ACC = [V(104 + 20 * tt, 20) for tt in range(4)]
    pf4 = [V(32 + 4 * i, 4) for i in range(9)] + [V(196, 4)]
    pf2 = [V(200, 2), V(202, 2), V(204, 2), V(206, 2), V(248, 2)]
    PF = [[pf4[2 * t], pf4[2 * t + 1], pf2[t]] for t in range(5)]
    WP = V(184, 4); GWF = V(188, 4); GA = V(192, 4)
    sC0, sC1, sLo, sHi2, sISQ, sHB, sGD = [S(77 + i) for i in range(7)]
    PHW = 135168; PHB = 0; VVB = 90112; PS = 352
    srd(a, rW, pQKV, 640 * 3840)
    srd(a, rA, pPHI, 32 * 800)
    a(f"s_lshl_b32 {sID}, {sT0}, 1"); a(f"s_add_u32 {sID}, {sID}, {sC8}")
    a(f"s_mul_i32 {sC0}, {sID}, 160")
    a(f"s_add_u32 {sC1}, {sC0}, 2560")
    a(f"s_add_u32 {sC0}, {sC0}, 1280")
    a(f"s_lshl_b32 {sHB}, {sID}, 2")
    a(f"s_mul_i32 {sT1}, {sT0}, 320")
    a(f"s_add_u32 {sT2}, {sT1}, 160")
    a(f"s_lshl_b32 {sT3}, {sT0}, 3")
    a(f"s_cmp_eq_u32 {sC8}, 2")
    a(f"s_cselect_b32 {sC0}, {sT1}, {sC0}")
    a(f"s_cselect_b32 {sC1}, {sT2}, {sC1}")
    a(f"s_cselect_b32 {sHB}, {sT3}, {sHB}")
    a(f"s_cselect_b32 {sISQ}, 1, 0")
    a(f"s_bitcmp1_b32 {sWV}, 0")
    a(f"s_cselect_b32 {sLo}, {sC1}, {sC0}")
    a(f"s_cselect_b32 {sHi2}, {sC0}, {sC1}")
    a(f"s_sub_u32 {sHi2}, {sHi2}, 160")
    touch_setup(pQKV, pQKV, 3840, sC0, sC1, 160)
    for l in burst(vm, *BS['p0']): a(l)
    for n in range(3):
        a(f"v_add_u32 {t0}, {64*n}, {lane}")
        a(f"v_mul_u32_u24 {t1}, 205, {t0}")
        a(f"v_lshrrev_b32 {t1}, 12, {t1}")
        a(f"v_mul_u32_u24 {t2}, 20, {t1}")
        a(f"v_sub_u32 {t2}, {t0}, {t2}")
        a(f"v_cmp_le_u32 vcc, 10, {t2}")
        a(f"v_mov_b32 {t3}, {sLo}")
        a(f"v_mov_b32 {t4}, {sHi2}")
        a(f"v_cndmask_b32 {t3}, {t3}, {t4}, vcc")
        a(f"v_mul_u32_u24 {t1}, 3840, {t1}")
        a(f"v_lshl_add_u32 {t1}, {t2}, 4, {t1}")
        a(f"v_add_u32 {vw[n]}, {t1}, {t3}")
        if n: a(f"v_subrev_u32 {vw[n]}, {1024*n}, {vw[n]}")
    a(f"s_mul_i32 {sWK}, {sWV}, {8*3840}")
    a(f"s_mul_i32 {sMW}, {sWV}, 2560")
    sW3 = [S(83), S(9)]
    if OPT['swp']:
        a(f"s_mul_i32 {sT1}, {sTY}, 245760"); a(f"s_add_u32 {sWK}, {sWK}, {sT1}"); a(f"s_lshl_b32 {sT1}, {sT1}, 1")
        a(f"s_sub_u32 {sW3[0]}, 245760, {sT1}"); a(f"s_add_u32 {sW3[1]}, {sT1}, 245760")
    def w_dma2(blk):
        l = [f"s_add_u32 m0, {sMW}, {WB + (blk % 3) * 20480}"] + ([f"s_add_u32 {sWK}, {sWK}, {(sW3[0] if blk % 2 else sW3[1]) if OPT['swp'] else 245760}"] if blk else []) + [
             f"buffer_load_dwordx4 {vw[0]}, {rW}, {sWK} offen {OPT['wfl']} lds",
             f"buffer_load_dwordx4 {vw[1]}, {rW}, {sWK} offen offset:1024 {OPT['wfl']} lds",
             "s_mov_b32 exec_hi, 0\n"
             f"buffer_load_dwordx4 {vw[2]}, {rW}, {sWK} offen offset:2048 {OPT['wfl']} lds\n"
             "s_mov_b32 exec_hi, -1"]
        for _ in range(3): vm.issue(('W', blk))
        return l
    a(f"v_lshlrev_b32 {t0}, 4, {tid}")
    a(f"s_mul_i32 {sT0}, {sHB}, 800")
    a(f"v_add_u32 {t0}, {sT0}, {t0}")
    a(f"buffer_load_dwordx4 {WP}, {t0}, {rA}, 0 offen"); vm.issue(('P', 0))
    if OPT['sb1'] and not OPT['x0e']: a("s_barrier")
    for l in x_dma(vm, 0, 0) + x_dma(vm, 0, 1) + w_dma2(0): a(l)
    x_addr_setup()
    a(f"v_lshl_add_u32 {t0}, {vqd}, 3, {vr}")
    a(f"v_mul_u32_u24 {t0}, 320, {t0}")
    a(f"v_and_b32 {t1}, 1, {vqd}")
    a(f"v_xor_b32 {t1}, {sHI}, {t1}")
    a(f"v_mul_u32_u24 {t1}, 160, {t1}")
    a(f"v_mul_u32_u24 {t2}, 40, {vc}")
    a(f"v_add3_u32 {t0}, {t0}, {t1}, {t2}")
    a(f"v_add_u32 {wa}, {WB}, {t0}")
    a(f"s_and_b32 {sT0}, {sHI}, {sISQ}")
    a(f"s_mul_i32 {sT0}, {sT0}, 3200")
    a(f"s_add_u32 {sT0}, {sT0}, {PHW}")
    a(f"v_mul_u32_u24 {t0}, 800, {vqd}")
    a(f"v_add_u32 {t0}, {sT0}, {t0}")
    a(f"v_mov_b32 {t1}, {ZERO}")
    a(f"v_cmp_eq_u32 vcc, {vc}, {vqd}")
    a(f"v_cndmask_b32 {t0}, {t1}, {t0}, vcc")
    a(f"v_mul_u32_u24 {t1}, 40, {vr}")
    a(f"v_add_u32 {pa}, {t0}, {t1}")
    def w_reads2(WFb, step):
        blk, kk = step // 2, step % 2
        return [f"ds_read_b64_tr_b16 {WFb[t][2*rd:2*rd+2]}, {wa} offset:{(blk % 3) * 20480 + kk * 10240 + rd * 1280 + 8 * t}" for t in range(5) for rd in range(2)]
    def t2b_emit():
        if T2:
            for b0 in eval(OPT['t2b']):
                for l in t2_all(b0): a(l)
                vm.issue('T')
    if OPT['t2pos'] == 1:
        if OPT['sb2']: a("s_barrier")
        t2b_emit()
    if OPT['trim']:
        for l in p2_setup(): a(l)
    n = vm.wait_for(lambda t: t in (('X', 0), ('W', 0)))
    a(f"s_waitcnt vmcnt({n})")
    a("s_barrier")
    stamp(a, 1)
    for l in x_reads(XF[0], 0) + w_reads2(WF[0], 0): a(l)
    if OPT['fill'] == 0:
        for l in x_dma(vm, 1, 0) + x_dma(vm, 1, 1) + w_dma2(1): a(l)
        if OPT['t2pos'] == 2: t2b_emit()
    fq = []
    for b in range(1, 10):
        fq += [('X', b, max(0, 2*(b-3)+1)), ('W', b, max(0, 2*(b-3)+1))]
    for j in range(20):
        cur, nxt = j & 1, (j & 1) ^ 1
        if j % 2 == 1:
            if j < 19:
                n = vm.wait_for(lambda t: t in (('X', (j + 1) // 2), ('W', (j + 1) // 2)) or (j == 17 and t == 'chk'))
                a(f"s_waitcnt vmcnt({n}) lgkmcnt(0)")
            else: a("s_waitcnt lgkmcnt(0)")
            if j == 17: init_check(vchk, 128, True)
            a("s_barrier")
        else:
            a("s_waitcnt lgkmcnt(0)")
            if OPT['pp'] or OPT['qbar']: a("s_barrier")
        sstamp(a, j)
        mains = [f"v_mfma_f32_16x16x32_bf16 {ACC[tt][4*t:4*t+4]}, {WF[cur][t]}, {XF[cur][tt]}, {'0' if j == 0 else ACC[tt][4*t:4*t+4]}" for t in range(5) for tt in range(4)]
        pre = burst(vm, *BS[j]) if j in BS else []
        lblk = []
        if j < 19:
            lblk += x_reads(XF[nxt], j + 1) + w_reads2(WF[nxt], j + 1)
            if OPT['fill']:
                cnt = 2 if j in (0, 1, 3, 5) else 1
                while cnt and fq and fq[0][2] <= j:
                    it = fq.pop(0); cnt -= 1
                    lblk += x_dma(vm, it[1], 0) + x_dma(vm, it[1], 1) if it[0] == 'X' else w_dma2(it[1])
            if j == 0 and not OPT['fill']: lblk += x_dma(vm, 2, 0) + x_dma(vm, 2, 1) + w_dma2(2)
            xb = (j - 1) // 2 + 3 if j >= 1 else 99
            if xb <= 9 and not OPT['fill']:
                if j % 2 == 1: lblk += x_dma(vm, xb, 0) + x_dma(vm, xb, 1)
                else: lblk += w_dma2(xb)
            if T2 and j in eval(OPT['t2q']): lblk += t2_one(*eval(OPT['t2q'])[j])
            if OPT['tw'] and j == 2:
                sh = OPT['tw']; npg = (0x1250000 >> sh) + 1
                lanes = min(64, -(-npg // 32)); ninst = -(-npg // (32 * lanes))
                body = f"s_lshl3_add_u32 s4, {sR4}, {sWV}\ns_mul_i32 s4, s4, {lanes}\nv_add_u32 v3, s4, {lane}\nv_lshlrev_b32 v3, {sh}, v3\ns_mov_b64 exec, {hex((1 << lanes) - 1) if lanes < 32 else -1}\n"
                for i in range(ninst):
                    body += f"buffer_load_dword {tdum}, v3, {rWS}, 0 offen offset:3968\nv_add_u32 v3, {32*lanes << sh}, v3\n"
                body += "s_mov_b64 exec, -1\n"
                OOL.append("TWo:\n" + body + "s_branch TWb")
                lblk += [f"s_cmp_eq_u32 {sC8}, 2\ns_cbranch_scc1 TWo\nTWb:"]
            if j == 15: lblk += init_check_issue(vchk); vm.issue('chk')
            if j == 17:
                lblk += [f"v_lshlrev_b32 {t0}, 4, {tid}", f"v_add_u32 {t0}, {PHW}, {t0}", f"ds_write_b128 {t0}, {WP}"]
            if j == 10 and not OPT['trim']: lblk += p2_setup()
            if j == 17: lblk += poison(V(208, 4))

        else:
            for t in range(5):
                for s in range(3):
                    for r_ in range(2 if s < 2 else 1):
                        lblk.append(f"ds_read_b64_tr_b16 {PF[t][s][2*r_:2*r_+2]}, {pa} offset:{s*320 + r_*160 + t*8}")
        step_body(mains, lblk, pre)
    stamp(a, 2)
    a("s_setprio 2")
    QB = V(68, 40); P = V(108, 20); E = V(128, 40); O = V(168, 20); M = V(250, 4); T = V(188, 4); ONE = V(192, 2)
    sCNT = S(8); sOUT = S(9)
    def cvt_tile(dst, tt):
        for i in range(10): a(f"v_cvt_pk_bf16_f32 {dst[i]}, {ACC[tt][2*i]}, {ACC[tt][2*i+1]}")
    def pk_list(q, P=P):
        l = []
        for s_ in range(3):
            for t in range(5):
                d = P[4*t:4*t+4]
                if s_ < 2: l.append(f"v_mfma_f32_16x16x32_bf16 {d}, {PF[t][s_]}, {q[4*s_:4*s_+4]}, {'0' if s_ == 0 else d}")
                else: l.append(f"v_mfma_f32_16x16x16_bf16 {d}, {PF[t][s_]}, {q[8:10]}, {d}")
        return l
    a(f"s_lshl_b32 {sT3}, {sRB}, 2")
    a(f"s_add_u32 {sT3}, {sT3}, {sRG}")
    a(f"s_cmp_eq_u32 {sISQ}, 0")
    a("s_cbranch_scc1 R_KV")
    for tt in range(4): cvt_tile(QB[10*tt:10*tt+10], tt)
    a("s_waitcnt lgkmcnt(0)")
    PT = [V(108 + 20*i, 20) for i in range(4)]
    a(f"s_lshr_b32 {sT1}, {sHB}, 2")
    a(f"s_add_u32 {sT1}, {sT1}, {sHI}")
    a(f"s_lshl_b32 {sOUT}, {sT3}, 3")
    a(f"s_add_u32 {sOUT}, {sOUT}, {sT1}")
    a(f"s_mul_i32 {sOUT}, {sOUT}, 10240")
    a(f"s_add_u32 {sOUT}, {sOUT}, {PQ}")
    a(f"s_add_u32 {sT0}, {sOUT}, 8192")
    a(f"s_lshl_b32 {sFLAG}, {sT3}, 7")
    a(f"s_add_u32 {sFLAG}, {sFLAG}, {FH + 4}")
    QO = [V(208 + 8*i, 8) for i in range(4)]; QT = [V(240, 4), V(244, 4)]
    def q_out(tt):
        l = [f"v_cvt_pk_bf16_f32 {QO[tt][i] if i < 8 else QT[tt//2][2*(tt%2) + i - 8]}, {PT[tt][2*i]}, {PT[tt][2*i+1]}" for i in range(10)]
        for h in range(2): l.append(f"buffer_store_dwordx4 {QO[tt][4*h:4*h+4]}, {vo if tt < 2 else vo4}, {rWS}, {sOUT} offen offset:{(tt%2)*2048 + h*1024} {ST}")
        if tt % 2: l.append(f"buffer_store_dwordx4 {QT[tt//2]}, {vo}, {rWS}, {sT0} offen offset:{(tt//2)*1024} {ST}")
        return l
    for tt in range(4):
        side = q_out(tt - 1) if tt else []
        for i, l in enumerate(pk_list(QB[10*tt:10*tt+10], PT[tt])):
            a(l)
            if i >= 2 and side: a(side.pop(0))
    for l in q_out(3): a(l)
    flag_store(7)
    a(f"v_mov_b32 {vFQ}, 0")
    a(f"s_mov_b32 {sPF}, 6")
    a("s_branch P2")
    a.label('R_KV')
    a(f"s_lshl_b32 {sT1}, {sRG}, 1"); a(f"s_add_u32 {sT0}, {sT1}, 1"); a(f"s_mul_i32 {sT0}, {sT0}, {32*PS}")
    a(f"v_add_u32 {t0}, {sT0}, {vo}")
    a(f"s_mov_b32 {sCNT}, 2")
    a(f"s_cmp_eq_u32 {sHI}, 1")
    a("s_cbranch_scc1 R_V")
    if OPT['trim']:
        cvt_tile(QB[0:10], 0)
        cvt_tile(QB[20:30], 2); cvt_tile(QB[30:40], 3)
        a("s_waitcnt lgkmcnt(0)")
        for i in range(5): a(f"ds_write_b128 {t0}, {QB[20+4*i:24+4*i]} offset:{i*1024}")
        cv = [f"v_cvt_pk_bf16_f32 {QB[10+i]}, {ACC[1][2*i]}, {ACC[1][2*i+1]}" for i in range(10)]
        a(cv.pop(0)); a(cv.pop(0))
        for i, l in enumerate(pk_list(QB[0:10])):
            a(l)
            if cv: a(cv.pop(0))
            if i == 8: a("s_waitcnt lgkmcnt(0)"); a("s_barrier")
    else:
        cvt_tile(QB[0:10], 0)
        cvt_tile(QB[20:30], 2); cvt_tile(QB[30:40], 3)
        for i in range(5): a(f"ds_write_b128 {t0}, {QB[20+4*i:24+4*i]} offset:{i*1024}")
        cvt_tile(QB[10:20], 1)
        a("s_waitcnt lgkmcnt(0)")
        a("s_barrier")
        for l in pk_list(QB[0:10]): a(l)
    a("s_branch R_KV2")
    a.label('R_V')
    VBt = {3: V(88, 10), 0: V(98, 10), 1: V(168, 10), 2: V(178, 10)}
    for tt in (3, 0, 1, 2): cvt_tile(VBt[tt], tt)
    a(f"s_mul_i32 {sT2}, {sRG}, {64*176}")
    a(f"s_add_u32 {sT2}, {sT2}, {VVB}")
    a(f"v_mul_u32_u24 {t2}, 176, {vl15}")
    a(f"v_add_u32 {t1}, {sT2}, {t2}")
    a(f"v_mul_u32_u24 {t3}, 40, {vqd}")
    a(f"v_add_u32 {t2}, {t1}, {t3}")
    a(f"v_mov_b32 {ONE[0]}, 0x3f80")
    a(f"v_mov_b32 {ONE[1]}, 0")
    a("s_barrier")
    for i in range(5): a(f"ds_read_b128 {QB[4*i:4*i+4]}, {t0} offset:{i*1024}")
    side = []
    for tt in (3, 0, 1, 2):
        for i in range(5): side.append(f"ds_write_b64 {t2}, {VBt[tt][2*i:2*i+2]} offset:{tt*2816 + 8*i}")
        side.append(f"ds_write_b64 {t1}, {ONE} offset:{tt*2816 + 160}")
    for i in range(9): a(side.pop(0))
    a("s_waitcnt lgkmcnt(9)")
    for l in pk_list(QB[0:10]): a(l); a(side.pop(0))
    a.label('R_KV2')
    a(f"s_add_u32 {sT1}, {sT1}, {sHI}"); a(f"s_mul_i32 {sT1}, {sT1}, {32*PS}")
    a(f"v_mul_u32_u24 {t4}, {PS}, {vl15}")
    a(f"v_mul_u32_u24 {t3}, 80, {vqd}")
    a(f"v_add3_u32 {t4}, {t4}, {t3}, {sT1}")
    stamp(a, 12)
    for u in range(2):
        if u == 0:
            bl = b_reg(vm, 0, 'B') + b_reg(vm, 1, 'B'); pl = pk_list(QB[10:20])
            sd = [pl[i] + ("\n" + bl[i] if i < len(bl) else "") for i in range(15)]
        else: sd = b_reg(vm, 2, 'B') + b_reg(vm, 3, 'B')
        softmax_unit(a, P, E, M, T, O, sd + ["s_waitcnt lgkmcnt(0)"])
        for s_ in range(5): a(f"ds_write_b128 {t4}, {O[4*s_:4*s_+4]} offset:{PHB + u*16*PS + 16*s_}")
    a(f"v_lshl_add_u32 {t0}, {vqd}, 2, {vr}")
    a(f"v_mul_u32_u24 {t1}, {PS}, {t0}")
    a(f"s_mul_i32 {sT0}, {sRG}, 80")
    a(f"v_lshl_add_u32 {t1}, {vc}, 3, {t1}")
    a(f"v_add_u32 {t1}, {sT0}, {t1}")
    a(f"v_add_u32 {t2}, {128*PS}, {t1}")
    a(f"v_mul_u32_u24 {t0}, 176, {t0}")
    a(f"s_mul_i32 {sT0}, {sRG}, 40")
    a(f"s_mul_i32 {sT1}, {sHI}, 24")
    a(f"s_add_u32 {sT0}, {sT0}, {sT1}")
    a(f"v_lshl_add_u32 {t3}, {vc}, 3, {sT0}")
    a(f"v_mul_u32_u24 {t4}, {sHI}, {vc}")
    a(f"v_cmp_lt_u32 vcc, 1, {t4}")
    a(f"v_mov_b32 {t4}, 160")
    a(f"v_cndmask_b32 {t3}, {t3}, {t4}, vcc")
    a(f"v_add_u32 {t3}, {VVB}, {t3}")
    a(f"v_add_u32 {t3}, {t0}, {t3}")
    stamp(a, 13)
    a("s_waitcnt lgkmcnt(0)")
    a("s_barrier")
    stamp(a, 14)
    a(f"s_lshl_b32 {sFLAG}, {sID}, 7"); a(f"s_add_u32 {sFLAG}, {sFLAG}, {FK}")
    def k_hint():
        a("v_mov_b32 v29, 1"); a("v_mov_b32 v11, 0")
        a(f"s_cmp_lg_u32 {sWV}, 7"); a("s_cbranch_scc1 KH1")
        a("s_mov_b64 exec, 1"); a(f"buffer_atomic_add v29, v11, {rWS}, {sFLAG} offen sc0 sc1"); a("s_mov_b64 exec, -1")
        a.label('KH1')
    if OPT['kh'] == 0: k_hint()
    for l in q_flag_issue(): a(l)
    KA = [[V(72 + (b*4 + f)*4, 4) for f in range(4)] for b in range(3)]
    KD = [V(128 + 4*f, 4) for f in range(3)]
    def kv_reads(b, s):
        l = []
        for rd in range(2):
            l.append(f"ds_read_b64_tr_b16 {KA[b][3][2*rd:2*rd+2]}, {t3} offset:{s*5632 + rd*2816}")
        for f in range(3):
            for rd in range(2):
                l.append(f"ds_read_b64_tr_b16 {KA[b][f][2*rd:2*rd+2]}, {t1 if s < 4 else t2} offset:{(s % 4)*32*PS + rd*16*PS + f*32}")
        return l
    allr = [l for s in range(8) for l in kv_reads(s % 3, s)]
    pos = 0
    for s in range(8):
        for f in range(3):
            needr = s * 8 + 2 + 2 * (f + 1)
            lim = min(len(allr), needr + 12, (s + 2) * 8 + (2 + 2 * f if False else 0) + 8 - 8 + 0) if False else min(len(allr), needr + 12)
            lim = min(lim, (s + 3) * 8)
            while pos < lim: a(allr[pos]); pos += 1
            a(f"s_waitcnt lgkmcnt({pos - needr})")
            a(f"v_mfma_f32_16x16x32_bf16 {KD[f]}, {KA[s%3][f]}, {KA[s%3][3]}, {'0' if s == 0 else KD[f]}")
    stamp(a, 15)
    a(f"s_add_u32 {sT0}, {sHB}, {sRG}")
    a(f"s_lshl_b32 {sT0}, {sT0}, 1")
    a(f"s_add_u32 {sT0}, {sT0}, {sHI}")
    a(f"s_mul_i32 {sT0}, {sT0}, 3072")
    a(f"s_add_u32 {sT0}, {sT0}, {KVACC}")
    if OPT['kh'] == 1: k_hint()
    def k_go(n):
        a(f"s_cmp_lg_u32 {sWV}, 7"); a("s_cbranch_scc1 KH2")
        a(f"s_waitcnt vmcnt({n})")
        a("v_cmp_eq_u32 vcc, 7, v29"); a(f"s_add_u32 s4, {sFLAG}, {GOD}"); a("s_and_b64 exec, vcc, 1")
        a(f"buffer_store_dword v29, v11, {rWS}, s4 offen sc1"); a("s_mov_b64 exec, -1")
        a.label('KH2')
    if OPT['kh'] == 0: k_go(0)
    a(f"v_lshlrev_b32 {t2}, 2, {lane}")
    a(f"v_cmp_eq_u32 vcc, 15, {vl15}")
    for f in range(3):
        for j in range(4): a(f"v_cndmask_b32 {KD[f][j]}, {KD[f][j]}, 1.0, vcc")
    for f in range(3):
        if f == 2: a("s_mov_b32 exec_hi, 0")
        for j in range(4):
            a(f"buffer_atomic_add_f32 {KD[f][j]}, {t2}, {rWS}, {sT0} offen offset:{f*1024 + j*256} {OPT['atf']}")
    a("s_mov_b32 exec_hi, -1")
    if OPT['kh'] == 1: k_go(12)
    a("s_waitcnt vmcnt(12)")
    flag_store(-1)
    a(f"s_mov_b32 {sPF}, 4")
    a("s_branch P2")

    for l in OOL: a(l)
    OOL.clear()
    a.label('R_SPARE')
    sSP, sU, sSO, sST = S(77), S(78), S(79), S(80)
    va = Alloc('v', 176, 250)
    vf = [va() for _ in range(5)]; vat = [va() for _ in range(5)]
    rf = [va() for _ in range(5)]; rat = [va(), va()]
    vst = va(); vst4 = va()
    FR = [[va(4) for _ in range(5)] for b in range(2)]
    Z4 = va(4)
    NT = OPT['spnt']
    if T2:
        for b0 in eval(OPT['t2b']):
            for l in t2_all(b0): a(l)
    srd(a, rA, pWD, 1728 * 1280)
    srd(a, rB, pWO, 640 * 1280)
    a(f"s_lshr_b32 {sSP}, {sT0}, 1")
    a(f"s_lshl_b32 {sSP}, {sSP}, 3")
    a(f"s_add_u32 {sSP}, {sSP}, {sRB}")
    a(f"s_lshl_b32 {sT0}, {sWV}, 2")
    a(f"s_mul_i32 {sT1}, {sWV}, 20")
    for n in range(5):
        a(f"v_add_u32 {t0}, {64*n}, {lane}")
        a(f"v_mul_u32_u24 {t1}, 205, {t0}")
        a(f"v_lshrrev_b32 {t1}, 14, {t1}")
        a(f"v_mul_u32_u24 {t2}, 80, {t1}")
        a(f"v_sub_u32 {t2}, {t0}, {t2}")
        a(f"v_add_u32 {t1}, {sT0}, {t1}")
        a(f"v_and_b32 {t3}, 7, {t1}")
        a(f"v_lshlrev_b32 {t3}, 1, {t3}")
        a(f"v_xor_b32 {t2}, {t2}, {t3}")
        a(f"v_mul_u32_u24 {t1}, 1280, {t1}")
        a(f"v_lshl_add_u32 {vf[n]}, {t2}, 4, {t1}")
        if n % 4: a(f"v_subrev_u32 {vf[n]}, {1024*(n%4)}, {vf[n]}")
    a(f"s_mul_i32 {sM}, {sWV}, 5120")
    def u_dma(buf, typ):
        if typ == 'F':
            a(f"s_mul_i32 {sSO}, {sU}, 40960")
            vv, rr = vf, rA
        else:
            a(f"s_sub_u32 {sT2}, {sU}, 54")
            a(f"s_mul_i32 {sT3}, {sT2}, 52")
            a(f"s_lshr_b32 {sT3}, {sT3}, 8")
            a(f"s_mul_i32 {sSO}, {sT3}, {160*1280 - 5*256}")
            a(f"s_lshl_b32 {sT2}, {sT2}, 8")
            a(f"s_add_u32 {sSO}, {sSO}, {sT2}")
            vv, rr = vat, rB
        a(f"s_add_u32 m0, {sM}, {buf*40960}")
        for n in range(4):
            a(f"buffer_load_dwordx4 {vv[n]}, {rr}, {sSO} offen offset:{n*1024} {NT} lds")
        a(f"s_add_u32 m0, {sM}, {buf*40960 + 4096}")
        a(f"buffer_load_dwordx4 {vv[4]}, {rr}, {sSO} offen {NT} lds")
    def dyn(it, fn):
        if it == 4:
            a(f"s_add_u32 {sU}, {sSP}, 64"); a(f"s_min_u32 {sU}, {sU}, 73"); fn('A'); return
        a(f"s_add_u32 {sU}, {sSP}, {16*it}")
        if it <= 2: fn('F')
        else:
            l1, l2 = a.newlabel('SP'), a.newlabel('SP')
            a(f"s_cmp_ge_u32 {sU}, 54"); a(f"s_cbranch_scc1 {l1}")
            fn('F'); a(f"s_branch {l2}"); a.label(l1); fn('A'); a.label(l2)
    for it in range(3): dyn(it, lambda typ: u_dma(it, typ))
    a(f"v_lshlrev_b32 {t0}, 4, {tid}")
    for i in range(4): a(f"v_mov_b32 {Z4[i]}, 0")
    a(f"s_mul_i32 {sT2}, {sSP}, 13568")
    a(f"s_add_u32 {sT2}, {sT2}, {KVACC}")
    a(f"buffer_store_dwordx4 {Z4}, {t0}, {rWS}, {sT2} offen {ST}")
    a(f"s_add_u32 {sT2}, {sT2}, {13568 - 8192}")
    a(f"buffer_store_dwordx4 {Z4}, {t0}, {rWS}, {sT2} offen {ST}")
    for n in range(5):
        a(f"v_add_u32 {t1}, {4*n}, {vqd}")
        a(f"v_add_u32 {t1}, {sT1}, {t1}")
        a(f"v_and_b32 {t3}, 7, {t1}")
        a(f"v_lshlrev_b32 {t3}, 1, {t3}")
        a(f"v_xor_b32 {t2}, {vl15}, {t3}")
        a(f"v_mul_u32_u24 {t1}, 1280, {t1}")
        a(f"v_lshl_add_u32 {vat[n]}, {t2}, 4, {t1}")
        if n % 4: a(f"v_subrev_u32 {vat[n]}, {1024*(n%4)}, {vat[n]}")
    a(f"v_lshl_add_u32 {t0}, {vqd}, 2, {vr}")
    a(f"v_and_b32 {t1}, 7, {t0}")
    a(f"v_lshlrev_b32 {t1}, 1, {t1}")
    a(f"v_mul_u32_u24 {t0}, 1280, {t0}")
    a(f"v_and_b32 {t2}, 1, {vc}")
    a(f"v_lshl_add_u32 {t0}, {t2}, 3, {t0}")
    a(f"v_lshrrev_b32 {t3}, 1, {vc}")
    a(f"s_mul_i32 {sT0}, {sWV}, 10")
    a(f"v_add_u32 {t4}, {sT0}, {t3}")
    for j in range(5):
        a(f"v_add_u32 {rf[j]}, {2*j}, {t4}")
        a(f"v_xor_b32 {rf[j]}, {rf[j]}, {t1}")
        a(f"v_lshl_add_u32 {rf[j]}, {rf[j]}, 4, {t0}")
    a(f"v_mul_u32_u24 {t0}, 20, {vqd}")
    a(f"v_add_u32 {t0}, {t0}, {vr}")
    a(f"v_lshlrev_b32 {t0}, 8, {t0}")
    a(f"v_lshl_add_u32 {t0}, {t2}, 3, {t0}")
    a(f"s_lshl_b32 {sT0}, {sWV}, 1")
    a(f"v_add_u32 {t4}, {sT0}, {t3}")
    a(f"v_xor_b32 {t4}, {t4}, {t1}")
    a(f"v_lshl_add_u32 {rat[0]}, {t4}, 4, {t0}")
    a(f"v_xor_b32 {rat[1]}, 128, {rat[0]}")
    a(f"v_lshlrev_b32 {vst}, 4, {lane}")
    a(f"v_add_u32 {vst4}, 4096, {vst}")
    def u_proc(buf, typ, F):
        if typ == 'F':
            for j in range(5):
                a(f"v_add_u32 {t0}, {buf*40960}, {rf[j]}")
                for rd in range(2):
                    a(f"ds_read_b64_tr_b16 {F[j][2*rd:2*rd+2]}, {t0} offset:{rd*20480}")
            a(f"s_lshl3_add_u32 {sST}, {sU}, {sWV}")
            a(f"s_mul_i32 {sST}, {sST}, 5120")
            a(f"s_add_u32 {sST}, {sST}, {BP}")
            a("s_waitcnt lgkmcnt(0)")
            for j in range(5):
                if j < 4: a(f"buffer_store_dwordx4 {F[j]}, {vst}, {rWS}, {sST} offen offset:{j*1024} {ST}")
                else: a(f"buffer_store_dwordx4 {F[j]}, {vst4}, {rWS}, {sST} offen {ST}")
        else:
            bases = [(0, 4), (8, 12), (16, 96), (80, 84), (88, 92)]
            a(f"v_add_u32 {t0}, {buf*40960}, {rat[0]}")
            a(f"v_add_u32 {t1}, {buf*40960}, {rat[1]}")
            a(f"v_lshrrev_b32 {t4}, 1, {vqd}"); a(f"v_mul_u32_u24 {t4}, {40*256}, {t4}"); a(f"v_add_u32 {t4}, {t4}, {t0}")
            for s5 in range(5):
                for rd in range(2):
                    b = bases[s5][rd]
                    if s5 == 2: a(f"ds_read_b64_tr_b16 {F[s5][2*rd:2*rd+2]}, {t4} offset:{(16 + 40*rd)*256}")
                    else: a(f"ds_read_b64_tr_b16 {F[s5][2*rd:2*rd+2]}, {t1 if b % 8 else t0} offset:{b*256}")
            a(f"s_sub_u32 {sT2}, {sU}, 54")
            a(f"s_mul_i32 {sT3}, {sT2}, 52")
            a(f"s_lshr_b32 {sT3}, {sT3}, 8")
            a(f"s_mul_i32 {sT0}, {sT3}, 5")
            a(f"s_sub_u32 {sT2}, {sT2}, {sT0}")
            a(f"s_lshl_b32 {sT2}, {sT2}, 3")
            a(f"s_add_u32 {sT2}, {sT2}, {sWV}")
            a(f"s_mul_i32 {sT1}, {sT2}, 52")
            a(f"s_lshr_b32 {sT1}, {sT1}, 8")
            a(f"s_mul_i32 {sST}, {sT1}, 5")
            a(f"s_sub_u32 {sT2}, {sT2}, {sST}")
            a(f"s_add_u32 {sST}, {sT0}, 54")
            a(f"s_lshl3_add_u32 {sST}, {sST}, {sT1}")
            a(f"s_mul_i32 {sST}, {sST}, 5120")
            a(f"s_lshl_b32 {sT2}, {sT2}, 10")
            a(f"s_add_u32 {sST}, {sST}, {sT2}")
            a(f"s_add_u32 {sST}, {sST}, {BP}")
            a("s_waitcnt lgkmcnt(0)")
            for s5 in range(5):
                a(f"buffer_store_dwordx4 {F[s5]}, {vst}, {rWS}, {sST} offen {ST}")
                if s5 < 4: a(f"s_add_u32 {sST}, {sST}, {BS_}")
    vm = VmTrack()
    for t in ['D0']*5 + ['D1']*5 + ['D2']*5 + ['Z']*2: vm.issue(t)
    def sp_signal(k):
        lsk = a.newlabel('SPD')
        a(f"s_cmp_lg_u32 {sWV}, 7"); a(f"s_cbranch_scc1 {lsk}")
        a(f"v_mov_b32 {t2}, 0"); a(f"v_mov_b32 {t3}, 1")
        a("s_mov_b64 exec, 1")
        a(f"buffer_atomic_add {t3}, {t2}, {rDBG}, 0 offen offset:{4*k} sc0 sc1")
        a("s_waitcnt vmcnt(0)")
        a(f"v_cmp_eq_u32 vcc, 15, {t3}")
        a("s_and_b64 exec, exec, vcc")
        a(f"buffer_store_dword {t3}, {t2}, {rDBG}, 0 offen offset:{128 + 4*k} sc1")
        a("s_mov_b64 exec, -1")
        a.label(lsk)
    for it in range(5):
        n = vm.wait_for(lambda t: t == f'D{it}' or (it == 3 and t == 'S2') or (it == 2 and t == 'S1'))
        a(f"s_waitcnt vmcnt({n})")
        a("s_barrier")
        if it == 2: sp_signal(0); stamp(a, 1)
        if it == 3: sp_signal(2)
        dyn(it, lambda typ: u_proc(it % 3, typ, FR[it & 1]))
        for _ in range(5): vm.issue(f'S{it}')
        if it == OPT['t2si'] and T2 and OPT['t2s']:
            a(f"s_and_b32 s4, {sWV}, 1"); a(f"s_lshl1_add_u32 s4, {sSP}, s4"); a("s_lshl_b32 s4, s4, 6"); a("s_mul_i32 s4, s4, s5")
            a(f"s_mul_i32 s6, {sBK}, {OPT['t2s']}"); a("s_add_u32 s4, s4, s6")
            a(f"v_add_u32 v21, s4, {vt1}")
            a(f"buffer_load_dword {tdum}, v21, {rTT}, 0 offen"); vm.issue('T')
        if it in (1, 2):
            dyn(it + 2, lambda typ: u_dma(it - 1, typ))
            for _ in range(5): vm.issue(f'D{it+2}')
    a("s_waitcnt vmcnt(0)")
    a("s_barrier")
    sp_signal(1)
    stamp(a, 2)
    GW = [V(72 + 4*i, 4) for i in range(5)]
    GX = [[V(96 + (g*5 + i)*4, 4) for i in range(5)] for g in range(4)]
    GA = [V(92 + g) for g in range(4)]
    srd(a, rW, pGW, 1280)
    a(f"v_lshlrev_b32 {t0}, 4, {vl15}")
    for i in range(5): a(f"buffer_load_dwordx4 {GW[i]}, {t0}, {rW}, 0 offen offset:{i*256}")
    a(f"v_mul_u32_u24 {t1}, 1280, {vqd}")
    a(f"v_add_u32 {t0}, {t0}, {t1}")
    a(f"s_lshl_b32 {sT3}, {sSP}, 3")
    a(f"s_add_u32 {sT3}, {sT3}, {sWV}")
    a(f"s_mul_i32 {sT2}, {sT3}, {16*1280}")
    for g in range(4):
        for i in range(5): a(f"buffer_load_dwordx4 {GX[g][i]}, {t0}, {rX}, {sT2} offen offset:{i*256}")
        if g < 3: a(f"s_add_u32 {sT2}, {sT2}, {4*1280}")
    for g in range(4): a(f"v_mov_b32 {GA[g]}, 0")
    init_poll(a, t1, 128)
    for i in range(5):
        for k in range(4):
            for g in range(4): a(f"v_dot2c_f32_bf16 {GA[g]}, {GX[g][i][k]}, {GW[i][k]}")
    for sh in (8, 4, 2, 1):
        for g in range(4): a(f"v_add_f32_dpp {GA[g]}, {GA[g]}, {GA[g]} row_ror:{sh} row_mask:0xf bank_mask:0xf")
    for g in range(4): a(f"v_mul_f32 {GA[g]}, {LOG2E:#x}, {GA[g]}")
    for g in range(4): a(f"v_min_f32 {GA[g]}, 0x42a00000, {GA[g]}")
    for g in range(4): a(f"v_exp_f32 {GA[g]}, {GA[g]}")
    a(f"v_mov_b32 {t2}, {GA[0]}")
    for g in range(1, 4):
        a(f"v_cmp_eq_u32 vcc, {g}, {vl15}"); a(f"v_cndmask_b32 {t2}, {t2}, {GA[g]}, vcc")
    a(f"v_lshl_add_u32 {t0}, {vl15}, 2, {vqd}")
    a(f"v_lshlrev_b32 {t3}, 2, {t0}")
    a(f"s_lshl_b32 {sT2}, {sT3}, 6"); a(f"s_add_u32 {sT2}, {sT2}, {GOFF}")
    a("s_mov_b32 exec_lo, 0x000f000f"); a("s_mov_b32 exec_hi, 0x000f000f")
    a(f"buffer_store_dword {t2}, {t3}, {rWS}, {sT2} offen {ST}")
    a("s_mov_b64 exec, -1")
    a(f"s_lshr_b32 {sFLAG}, {sT3}, 2"); a(f"s_lshl_b32 {sFLAG}, {sFLAG}, 7"); a(f"s_add_u32 {sFLAG}, {sFLAG}, {FH + 12}")
    flag_store(3)
    a(f"v_mov_b32 {vFQ}, 0")

    vm = VmTrack()
    a(f"s_mov_b32 {sPF}, 7")
    a.label('P2')
    stamp(a, 3)
    a(f"s_bitcmp0_b32 {sPF}, 0"); a("s_cbranch_scc1 P2_E1")
    for l in p2_setup() + poison(V(208, 4)): a(l)
    a.label('P2_E1')
    vG = V(16, 4); vz = V(11); ka = V(12); kw = V(13); vbl = V(15); vcn = V(14)
    ACC = [[V(72 + (tt * 5 + j) * 4, 4) for j in range(5)] for tt in range(4)]
    ARl = [V(152 + 4 * i, 4) for i in range(14)] + [V(248, 4), V(24, 4)]
    AR = [ARl[4*b:4*b+4] for b in range(4)]
    sFHo = S(78)
    rOUT = rX
    INP2[0] = True
    if OPT['noa'] == 1 or OPT['nob']: srd(a, rA, pWS, 0)
    a(f"v_mov_b32 {vz}, 0")
    a(f"v_mov_b32 {vcn}, {CNT}")
    a(f"v_add_u32 {vbl}, {sLC}, {vo}")
    vbl2 = V(23)
    a(f"v_add_u32 {vbl2}, {3*20480}, {vbl}")
    def lrow(row, j):
        return (vbl, row*20480 + j*1024) if row < 3 else (vbl2, (row-3)*20480 + j*1024)
    CG_ = {4:3, 5:4, 6:0, 7:1, 8:2} if OPT['gf'] & 2 else {4:0, 5:1, 6:2, 7:3, 8:4}
    def a_loads(i, tag, vts=None, r=None):
        b = i % 4; r = r or rWS
        if OPT['noa'] == 1: r = rA
        if OPT['noa'] == 3: return []
        if OPT['noa'] == 2: return [f"s_mov_b32 {sT0}, {sAo}"] + [(f"buffer_load_dwordx4 {AR[b][tt]}, {vo}, {r}, {sT0} offen offset:{tt*1024} {LD}", vm.issue(tag))[0] for tt in range(4)]
        l = [f"s_add_u32 {sT0}, {sAo}, {((i*16384 if i < 4 else CA0 + CG_[i]*16384) if vts else GRP[i]*16384)}"]
        for tt in range(4):
            if vts: l.append(f"buffer_load_dwordx4 {AR[b][tt]}, {vts[tt]}, {r}, {sT0} offen {LD}")
            else: l.append(f"buffer_load_dwordx4 {AR[b][tt]}, {vo}, {r}, {sT0} offen offset:{tt*1024} {LD}")
            vm.issue(tag)
        return l
    def b_fromlds(i, row):
        return ["ds_read_b128 %s, %s offset:%d" % ((BR[i % 4][j],) + lrow(row, j)) for j in range(5)]
    def mm(b, zero, side=[], every=2):
        side = list(side)
        for j in range(5):
            for tt in range(4):
                d = ACC[tt][j]
                a(f"v_mfma_f32_16x16x32_bf16 {d}, {BR[b][j]}, {AR[b][tt]}, {'0' if tt in zero else d}")
                while side and side[0].startswith('s_'): a(side.pop(0))
                if side and tt % every == every - 1: a(side.pop(0))
        for l in side: a(l)
    def g_load():
        a(f"s_lshl_b32 {sT0}, {sR6}, 8"); a(f"s_add_u32 {sT0}, {sT0}, {GOFF}")
        a(f"v_lshlrev_b32 {t0}, 4, {vl15}")
        a(f"buffer_load_dwordx4 {vG}, {t0}, {rWS}, {sT0} offen {LD}")
    def lds_signal(off):
        a(f"v_mov_b32 {t1}, 1")
        a("s_waitcnt lgkmcnt(0)")
        a("s_mov_b64 exec, 1")
        a(f"ds_add_u32 {vcn}, {t1} offset:{off}")
        a("s_mov_b64 exec, -1")
    def lds_wait(off, n):
        L = a.newlabel('LW')
        a.label(L)
        a(f"ds_read_b32 {t1}, {vcn} offset:{off}")
        a("s_waitcnt lgkmcnt(0)")
        a(f"v_readfirstlane_b32 {sT0}, {t1}")
        a(f"s_cmp_ge_u32 {sT0}, {n}")
        a(f"s_cbranch_scc1 {L}d")
        a("s_sleep 1")
        a(f"s_branch {L}")
        a.label(L + 'd')
    vAT = V(29); vFG = V(28)
    PB = V(176, 12); PU = V(152, 20)
    def pq_loads():
        a(f"s_lshl3_add_u32 {sT0}, {sR6}, {sCG}")
        a(f"s_mul_i32 {sT0}, {sT0}, 10240"); a(f"s_add_u32 {sT0}, {sT0}, {PQ}")
        a(f"s_lshl_b32 {sT1}, {sRG}, 11"); a(f"s_add_u32 {sT1}, {sT1}, {sT0}")
        for h in range(2): a(f"buffer_load_dwordx4 {PB[4*h:4*h+4]}, {vo}, {rWS}, {sT1} offen offset:{h*1024} {LD}")
        a(f"s_lshr_b32 {sT1}, {sRG}, 1"); a(f"s_lshl_b32 {sT1}, {sT1}, 10"); a(f"s_add_u32 {sT0}, {sT0}, {sT1}")
        a(f"s_and_b32 {sT1}, {sRG}, 1"); a(f"s_lshl3_add_u32 {sT0}, {sT1}, {sT0}"); a(f"s_add_u32 {sT0}, {sT0}, 8192")
        a(f"buffer_load_dwordx2 {PB[8:10]}, {vo}, {rWS}, {sT0} offen {LD}")
    sQF = S(83)
    a(f"v_readfirstlane_b32 {sQF}, {vFQ}")
    a(f"s_cmp_eq_u32 {sHI}, 1"); a(f"s_cselect_b32 {sQF}, 0, {sQF}")
    a(f"s_cmp_eq_u32 {sQF}, 0"); a("s_cbranch_scc1 P2_NQ")
    pq_loads()
    a.label('P2_NQ')
    a(f"buffer_load_dword {vS2}, {vz}, {rDBG}, 0 offen offset:132 sc1")
    a(f"v_mov_b32 {vAT}, 1"); a(f"v_mov_b32 {t1}, 1")
    B3 = OPT['b23'] == 3
    if B3:
        a(f"s_cmp_lg_u32 {sPF}, 0"); a("s_cbranch_scc1 P2_D0")
        for l in b_reg(vm, 2, 'B'): a(l)
        a("s_waitcnt vmcnt(5) lgkmcnt(0)")
        a("s_branch P2_D1")
        a.label('P2_D0')
    a("s_waitcnt vmcnt(0) lgkmcnt(0)")
    if B3: a.label('P2_D1')
    a("s_mov_b64 exec, 1")
    a(f"ds_add_rtn_u32 {t1}, {vcn}, {t1} offset:16")
    a(f"s_cmp_eq_u32 {sPF}, 4"); a("s_cbranch_scc1 P2_A2")
    a(f"buffer_atomic_add {vAT}, {vz}, {rWS}, {sFLAG} offen sc0 sc1")
    a.label('P2_A2')
    a("s_mov_b64 exec, -1")
    def go_logic(n, st=True):
        lb = a.newlabel('GO')
        a(f"s_waitcnt vmcnt({n})")
        a(f"v_readfirstlane_b32 {sP[0]}, {vAT}")
        a(f"s_add_u32 {sP[1]}, {sFLAG}, {GOD}")
        a(f"s_cmp_lg_u32 {sP[0]}, {sNEED}")
        a(f"s_cbranch_scc1 {lb}")
        a("s_mov_b64 exec, 1")
        a(f"buffer_store_dword {vAT}, {vz}, {rWS}, {sP[1]} offen sc1")
        a("s_mov_b64 exec, -1")
        a.label(lb)
        if st: stamp(a, 4)
    a(f"s_cmp_eq_u32 {sHI}, 0")
    a("s_cbranch_scc1 P2_C")
    if B3:
        a(f"s_cmp_lg_u32 {sPF}, 0"); a("s_cbranch_scc1 P2_D2")
        for l in b_reg(vm, 3, 'B'): a(l)
        go_logic(5)
        a("s_branch P2_D3")
        a.label('P2_D2')
    go_logic(0)
    if B3: a.label('P2_D3')
    a("s_setprio 0")
    init_check(vS2, 132)
    if OPT['bt']:
        a("s_lshr_b32 s4, s2, 6"); a(f"s_lshl2_add_u32 s4, s4, {sRG}"); a(f"s_mul_i32 s4, s4, {65*128}")
        a(f"s_mul_i32 s5, {sCG}, {74*5120}"); a("s_add_u32 s4, s4, s5"); a(f"s_add_u32 s4, s4, {BP + 48*5120}")
        a(f"v_lshlrev_b32 {t2}, 7, {lane}")
        a(f"buffer_load_dword {t3}, {t2}, {rWS}, s4 offen sc1")
    a(f"s_cmp_lt_u32 {sRG}, 2"); a(f"s_cselect_b32 {rB[2]}, {WSZ}, 0")
    a(f"s_cmp_lt_u32 {sPF}, 6"); a("s_cbranch_scc1 P2_E2")
    for b in range(4):
        for l in b_reg(vm, b, 'B'): a(l)
    lds_wait(16, 8)
    for k in range(4):
        for l in b_row(vm, sBg, GRP[GL[k]], LR[k]): a(l)
    a.label('P2_E2')
    if OPT['b23'] in (1, 2):
        a(f"s_cmp_lg_u32 {sPF}, 0"); a("s_cbranch_scc1 P2_E4")
        for l in (b_reg(vm, 2, 'B') if OPT['b23'] == 1 else []) + b_reg(vm, 3, 'B'): a(l)
        a.label('P2_E4')
    lds_wait(16, 8)
    for k in range(3):
        for l in b_row(vm, sBg, k, CR[k], None, 54*BS_): a(l)
    a(f"s_cmp_eq_u32 {sPF}, 4"); a("s_cbranch_scc1 P2_GK")
    NG = 10
    for variant in (0, 1):
        GLv = GL if variant == 0 else []
        if variant == 1: a.label('P2_GK')
        if OPT['at']:
            a(f"s_mul_i32 {sT1}, {sR6}, {74*4096}"); a(f"s_lshl2_add_u32 {sT2}, {sCG}, {sRG}"); a(f"s_mul_i32 {sT2}, {sT2}, {54*128}"); a(f"s_add_u32 {sT1}, {sT1}, {sT2}")
            a(f"v_lshlrev_b32 {t2}, 7, {lane}")
        if OPT['at'] == 3: vpoll(a, vz, sFHo, 0, t1, f"s_mov_b32 exec_hi, 0x3fffff\nbuffer_load_dword {t3}, {t2}, {rWS}, {sT1} offen sc1\ns_mov_b32 exec_hi, -1", OPT['tsl'])
        elif OPT['noh']: a("s_waitcnt vmcnt(0)")
        else: vpoll(a, vz, sFHo, 0, t1)
        lds_signal(20)
        a(f"s_setprio {OPT['gprio']}")
        vm = VmTrack()
        stamp(a, 5)
        if OPT['at'] == 1:
            a("s_mov_b32 exec_hi, 0x3fffff"); a(f"buffer_load_dword {t3}, {t2}, {rWS}, {sT1} offen sc1"); a("s_mov_b32 exec_hi, -1")
        if OPT['stamp'] == 4: a("s_memtime s[92:93]")
        LA = OPT['la']
        pend = []
        for s in range(LA + 1):
            if OPT['stp'] and s: a(f"s_setprio {3 - s}")
            for l in a_loads(s, ('A', s)): a(l)
            if OPT['at'] == 2 and s == 0:
                a("s_mov_b32 exec_hi, 0x3fffff"); a(f"buffer_load_dword {t3}, {t2}, {rWS}, {sT1} offen sc1"); a("s_mov_b32 exec_hi, -1"); vm.issue('T')
        for s in range(NG - 1):
            n = vm.wait_for(lambda t: t in (('A', s), ('B', s)))
            a(f"s_waitcnt vmcnt({n})" + (f" lgkmcnt({5*sum(1 for x in (s+1, s+2) if x in GLv)})" if s in GLv else ""))
            if s == 0: stamp(a, 6)
            if OPT['stamp'] == 4:
                a("s_waitcnt lgkmcnt(0)")
                a(f"v_writelane_b32 v255, s92, {40 + s}")
                a("s_memtime s[92:93]")
            side = []
            if OPT['fair'] and s in eval(OPT['fg']): a(f"s_setprio {eval(OPT['fg'])[s]}")
            if 1 <= s and s + LA < NG:
                side += a_loads(s + LA, ('A', s + LA), None, rB if GRP[s + LA] == 13 else None)
            if 1 <= s and s + 3 < NG:
                rr = rB if GRP[s + 3] == 13 else None
                if s + 3 in GLv: side += b_fromlds(s + 3, LR[GLv.index(s + 3)])
                elif OPT['spr'] and variant == 0:
                    bl = b_reg(VmTrack(), s + 3, 'x', rr, GRP[s + 3])
                    side += bl[0:4]; [vm.issue(('B', s + 3)) for _ in range(3)]
                    pend = [(bl[0], bl[4:6], s + 3)]
                    mm(s % 4, [], side); continue
                else: side += b_reg(vm, s + 3, ('B', s + 3), rr, GRP[s + 3])
            if pend:
                p0, pl, ps = pend.pop(); side += [p0] + pl; [vm.issue(('B', ps)) for _ in range(2)]
            mm(s % 4, range(4) if s == 0 else [], side)
        if variant == 0: a("s_branch P2_GL")
    a.label('P2_GL')
    a("s_waitcnt vmcnt(0) lgkmcnt(0)")
    if OPT['stamp'] == 4:
        a(f"v_writelane_b32 v255, s92, {49}"); a("s_memtime s[92:93]"); a("s_waitcnt lgkmcnt(0)"); a(f"v_writelane_b32 v255, s92, {50}")
    for tt in range(4):
        for j in range(5):
            d = ACC[tt][j]
            a(f"v_mfma_f32_16x16x32_bf16 {d}, {BR[1][j]}, {AR[1][tt]}, {d}")
            if tt >= 2: a("ds_write_b128 %s, %s offset:%d" % (lrow(tt, j)[0], ACC[tt-2][j], lrow(tt, j)[1]))
    for tt in (2, 3):
        for j in range(5): a("ds_write_b128 %s, %s offset:%d" % (lrow(tt+2, j)[0], ACC[tt][j], lrow(tt+2, j)[1]))
    lds_signal(4)
    stamp(a, 10)
    a("s_branch P2_FIN")
    a.label('P2_C')
    P = V(72, 20)
    a("s_setprio 3")
    if OPT['noc']:
        go_logic(0)
        srd(a, rOUT, pOUT, 2048 * 1280)
        for i in range(4):
            a(f"s_add_u32 {sT0}, {sRG}, {i}"); a(f"s_and_b32 {sT0}, {sT0}, 3"); a(f"s_lshl_b32 {sT0}, {sT0}, 10")
            a(f"v_add_u32 {V(16+i)}, {sT0}, {vo}")
        init_check(vS2, 132)
        a("s_mov_b32 s81, 0"); a(f"s_cmp_eq_u32 {sPF}, 0"); a("s_cselect_b32 s81, 2, s81"); a(f"s_cmp_eq_u32 {sPF}, 4"); a("s_cselect_b32 s81, 4, s81")
        a("s_branch P2_NOC")
    a(f"s_cmp_lg_u32 {sQF}, 0"); a("s_cbranch_scc1 P2_C1")
    go_logic(0)
    a(f"s_mov_b32 {sNEED}, -1")
    vpoll(a, vz, sFHo, 4, t1)
    pq_loads()
    a("s_waitcnt vmcnt(0)")
    a.label('P2_C1')
    a(f"buffer_load_dword {vFG}, {vz}, {rWS}, {sFHo} offen offset:12 sc1")
    GV = [V(22), V(252), V(10), V(8)]
    GLd = [t3, V(188), V(189), V(190)]
    srd(a, rOUT, pOUT, 2048 * 1280)
    a(f"v_lshl_add_u32 {kw}, {vr}, 2, {vqd}")
    a(f"v_lshlrev_b32 {kw}, 6, {kw}")
    a(f"v_lshl_add_u32 {kw}, {vc}, 3, {kw}")
    a(f"s_mul_i32 {sT0}, {sRG}, 3088"); a(f"s_add_u32 {sT0}, {sT0}, {KVB}")
    a(f"v_add_u32 {kw}, {sT0}, {kw}")
    a(f"v_mul_u32_u24 {t4}, 3088, {vqd}")
    a(f"v_lshl_add_u32 {t4}, {vr}, 6, {t4}")
    a(f"v_add_u32 {t4}, {KVB}, {t4}")
    a(f"v_mov_b32 {ka}, {ZERO + 8}")
    a(f"v_cmp_eq_u32 vcc, {vc}, {vqd}")
    a(f"v_cndmask_b32 {ka}, {ka}, {t4}, vcc")
    VT = [V(16), V(17), V(18), V(19)]
    for i in range(4):
        a(f"s_add_u32 {sT0}, {sRG}, {i}"); a(f"s_and_b32 {sT0}, {sT0}, 3"); a(f"s_lshl_b32 {sT0}, {sT0}, 10")
        a(f"v_add_u32 {VT[i]}, {sT0}, {vo}")
    for i in range(10):
        a(f"v_lshlrev_b32 {PU[2*i]}, 16, {PB[i]}")
        a(f"v_and_b32 {PU[2*i+1]}, 0xffff0000, {PB[i]}")
    gl = (f"s_waitcnt vmcnt(1)\nv_readfirstlane_b32 {sP[0]}, {vAT}\ns_add_u32 {sP[1]}, {sFLAG}, {GOD}\ns_cmp_lg_u32 {sP[0]}, {sNEED}\ns_cbranch_scc1 GOC\n"
          f"s_mov_b64 exec, 1\nbuffer_store_dword {vAT}, {vz}, {rWS}, {sP[1]} offen sc1\ns_mov_b64 exec, -1\nGOC:")
    softmax_unit(a, PU, V(92, 40), V(132, 4), V(136, 4), P, ["s_nop 0"] * 19 + [gl])
    a("s_waitcnt vmcnt(0)")
    a(f"v_cmp_ne_u32 vcc, 0, {vFG}"); a("s_nop 0"); a("s_cbranch_vccnz P2_GOK")
    vpoll(a, vz, sFHo, 12, t1)
    a.label('P2_GOK')
    a(f"v_lshlrev_b32 {t0}, 2, {vl15}")
    a(f"s_lshl2_add_u32 {sT0}, {sR6}, {sRG}")
    a(f"s_lshl_b32 {sT0}, {sT0}, 6"); a(f"s_add_u32 {sT0}, {sT0}, {GOFF}")
    a(f"buffer_load_dword {t3}, {t0}, {rWS}, {sT0} offen {LD}")
    stamp(a, 5)
    init_check(vS2, 132)
    lds_wait(16, 8)
    a(f"s_lshl_b32 {sT2}, {sCG}, 7"); a(f"s_add_u32 {sT2}, {sT2}, {FK + GOD}")
    a(f"s_lshl_b32 {sT3}, {sCG}, 2"); a(f"s_add_u32 {sT3}, {sT3}, {sRG}")
    a(f"s_mul_i32 {sT3}, {sT3}, 6144"); a(f"s_add_u32 {sT3}, {sT3}, {KVACC}")
    sNB = S(81)
    def cb(i): return b_reg(vm, i, 'B') if i < 4 else b_row(vm, sBo, i - 4, CR[i - 4], None, CB0)
    if OPT['b23']: a(f"s_cmp_eq_u32 {sPF}, 0"); a("s_cbranch_scc1 P2_K2")
    a(f"s_cmp_lt_u32 {sPF}, 6"); a("s_cbranch_scc1 P2_K4")
    for i in range(4):
        if OPT['b23'] and i == (2 if OPT['b23'] == 1 else 3): a.label('P2_K2')
        a(f"s_mov_b32 {sNB}, {i}")
        a(f"buffer_load_dword {t1}, {vz}, {rWS}, {sT2} offen sc1")
        a("s_waitcnt vmcnt(0)")
        a(f"v_cmp_ne_u32 vcc, 0, {t1}"); a("s_nop 0"); a("s_cbranch_vccnz P2_KGO")
        for l in cb(i): a(l)
    a.label('P2_K4')
    a(f"s_mov_b32 {sNB}, 4")
    if not OPT['nok']: vpoll(a, vz, sT2, 0, t1)
    else: a("s_waitcnt vmcnt(0)")
    a.label('P2_KGO')
    stamp(a, 6)
    KL = [V(92 + 4 * i, 4) for i in range(6)]
    a(f"s_mov_b32 {sTO}, 0x80000")
    a("s_mov_b32 s82, 0x41000000")
    a.label('KVRETRY')
    for i in range(6):
        if i < 4: a(f"buffer_load_dwordx4 {KL[i]}, {vo}, {rWS}, {sT3} offen offset:{i*1024} {LD}")
        else: a(f"buffer_load_dwordx4 {KL[i]}, {vo4}, {rWS}, {sT3} offen offset:{(i-4)*1024} {LD}")
    for i in range(6):
        a(f"s_waitcnt vmcnt({5-i})")
        a(f"v_cvt_pk_bf16_f32 {KL[i][0]}, {KL[i][0]}, {KL[i][1]}")
        a(f"v_cvt_pk_bf16_f32 {KL[i][1]}, {KL[i][2]}, {KL[i][3]}")
        a(f"ds_write_b64 {kw}, {KL[i][0:2]} offset:{(i % 3)*1024 + (i // 3)*32}")
    a(f"v_min3_f32 {t1}, {KL[0][3]}, {KL[1][3]}, {KL[3][3]}")
    a(f"v_min_f32 {t4}, {KL[2][3]}, {KL[5][3]}")
    a(f"v_min_f32 {t1}, {t1}, {KL[4][3]}")
    a(f"v_cmp_neq_f32 vcc, s82, {t4}")
    a(f"v_cmp_neq_f32 {sP}, s82, {t1}")
    a("s_and_b32 s4, vcc_lo, 0x00880088"); a("s_and_b32 s5, vcc_hi, 0x00880088"); a("s_or_b32 s4, s4, s5")
    a(f"s_or_b32 s5, {sP[0]}, {sP[1]}"); a("s_and_b32 s5, s5, 0x88888888"); a("s_or_b32 s4, s4, s5")
    a("s_branch KVOK" if OPT['nok'] else "s_cbranch_scc0 KVOK")
    a("s_waitcnt lgkmcnt(0)")
    a("s_sleep 4")
    a(f"s_sub_u32 {sTO}, {sTO}, 1")
    a("s_cbranch_scc0 KVRETRY")
    a.label('KVOK')
    lds_signal(0)
    lds_wait(0, 4)
    stamp(a, 16)
    AFl = [V(92 + 4 * i, 4) for i in range(15)]
    D = [V(152 + 4 * t, 4) for t in range(6)]
    O = V(176, 12)
    order = [5, 0, 1, 2, 3, 4]
    fr = [(t, s) for s in range(5) for t in order]
    def rdl(k):
        t, s_ = fr[k]
        return [f"ds_read_b64_tr_b16 {AFl[k % 15][2*r_:2*r_+2]}, {ka} offset:{s_*512 + r_*256 + (t*8 if t < 3 else t*8 + 8)}" for r_ in range(2)]
    AH = 7
    for k in range(AH):
        for l in rdl(k): a(l)
    def fin(t):
        for h in range(4): a(f"v_mul_f32 {D[t][h]}, {D[t][h]}, {t2}")
        a(f"v_cvt_pk_bf16_f32 {O[2*t]}, {D[t][0]}, {D[t][1]}")
        a(f"v_cvt_pk_bf16_f32 {O[2*t+1]}, {D[t][2]}, {D[t][3]}")
    for k in range(30):
        t, s_ = fr[k]
        a(f"s_waitcnt lgkmcnt({2 * min(AH - 1, 29 - k)})")
        a(f"v_mfma_f32_16x16x32_bf16 {D[t]}, {AFl[k % 15]}, {P[4*s_:4*s_+4]}, {'0' if s_ == 0 else D[t]}")
        if k + AH < 30:
            for l in rdl(k + AH): a(l)
        if OPT['sent'] and k == OPT['oh1']:
            a(f"s_sub_u32 {sFLAG}, {sFHo}, {GOD - 8}"); a(f"s_mov_b32 {sNEED}, 31"); a(f"v_mov_b32 {vAT}, 1")
            a("s_mov_b64 exec, 1"); a(f"buffer_atomic_add {vAT}, {vz}, {rWS}, {sFLAG} offen sc0 sc1"); a("s_mov_b64 exec, -1")
    stamp(a, 19)
    a(f"v_add_f32 {t2}, 0x358637bd, {D[5][0]}")
    a(f"v_rcp_f32 {t2}, {t2}")
    a(f"v_mul_f32 {t2}, {t2}, {t3}")
    fin(0); fin(1)
    a(f"buffer_store_dwordx4 {O[0:4]}, {vo}, {rWS}, {sO1} offen {ST}")
    fin(2); fin(3)
    a(f"buffer_store_dwordx4 {O[4:8]}, {vo4}, {rWS}, {sO1} offen {ST}")
    fin(4)
    a(f"v_mov_b32 {O[10]}, {O[8]}"); a(f"v_mov_b32 {O[11]}, {O[9]}")
    a(f"v_permlane32_swap_b32 {O[8]}, {O[10]}"); a(f"v_permlane32_swap_b32 {O[9]}, {O[11]}")
    a("s_mov_b32 exec_hi, 0")
    a(f"buffer_store_dwordx4 {O[8:12]}, {vo}, {rWS}, {sO2} offen {ST}")
    a("s_mov_b32 exec_hi, -1")
    stamp(a, 17)
    NBA = OPT['nba'] and not OPT['sent']
    if NBA:
        a(f"s_sub_u32 {sFLAG}, {sFHo}, {GOD - 8}"); a(f"s_mov_b32 {sNEED}, 31"); a(f"v_mov_b32 {vAT}, 1")
        a(f"ds_read_b32 {t1}, {vcn} offset:20"); a("s_waitcnt lgkmcnt(0)"); a(f"v_readfirstlane_b32 {sT0}, {t1}")
        a(f"s_and_b32 {sT0}, {sT0}, {sNB}")
        a(f"s_cmp_eq_u32 {sT0}, 4"); a("s_cbranch_scc1 P2_NB1")
        arrive(a, sFLAG, 31, t0, t1)
        a(f"s_mov_b32 {sNEED}, -1")
        a.label('P2_NB1')
    elif not OPT['sent']:
        a(f"s_sub_u32 {sT2}, {sFHo}, {GOD - 8}")
        arrive(a, sT2, 31, t0, t1)
    else: go_logic(3, False)
    stamp(a, 7)
    if OPT['noc']: a.label('P2_NOC')
    for i in range(4):
        lb = a.newlabel('CB')
        a(f"s_cmp_gt_u32 {sNB}, {i}"); a(f"s_cbranch_scc1 {lb}")
        for l in cb(i): a(l)
        a.label(lb)
    XB = [V(28), V(13), V(30)]; XW = V(31); GB = V(12)
    for q in range(1, 4):
        a(f"s_sub_u32 {sT0}, {sRG}, {q}"); a(f"s_and_b32 {sT0}, {sT0}, 3"); a(f"s_mul_i32 {sT0}, {sT0}, 5120")
        a(f"s_add_u32 {sT0}, {sT0}, {CR[q-1]*20480}")
        a(f"v_add_u32 {XB[q-1]}, {sT0}, {vo}")
    a(f"v_add_u32 {XW}, {6*20480}, {vbl}")
    def crow(k, j): return (vbl, CR[k]*20480 + j*1024) if k < 2 else (XW, j*1024)
    a(f"s_add_u32 {sT0}, {sRG}, 2"); a(f"s_mul_i32 {sT0}, {sT0}, 20480"); a(f"v_add_u32 {GB}, {sT0}, {vo}")
    a(f"v_mul_u32_u24 {t0}, 1280, {vl15}")
    a(f"v_lshl_add_u32 {t0}, {vqd}, 3, {t0}")
    a(f"s_lshl_b32 {sT2}, {sR6}, 2"); a(f"s_add_u32 {sT2}, {sT2}, {sRG}"); a(f"s_mul_i32 {sT2}, {sT2}, {16*1280}")
    a(f"s_mul_i32 {sT3}, {sCG}, 160"); a(f"s_add_u32 {sT2}, {sT2}, {sT3}")
    a(f"v_add_f32 {V(22)}, 1.0, {t3}"); a(f"v_rcp_f32 {V(22)}, {V(22)}")
    a(f"v_mul_u32_u24 {t3}, 1280, {vl15}"); a(f"v_and_b32 {t4}, 1, {vqd}"); a(f"v_lshl_add_u32 {t3}, {t4}, 5, {t3}")
    a(f"v_lshrrev_b32 {t4}, 1, {vqd}"); a(f"v_lshl_add_u32 {t3}, {t4}, 4, {t3}")
    lds_wait(20, 4)
    a(f"s_setprio {OPT['cprio']}")
    if OPT['stamp'] == 4: a("s_memtime s[92:93]")
    vm = VmTrack()
    for s in range(OPT['la'] + 1):
        if OPT['stp'] == 2 and s: a(f"s_setprio {max(1, 3 - s)}")
        for l in a_loads(s, ('A', s), VT): a(l)
        if NBA and s == 1:
            a(f"s_cmp_eq_u32 {sNEED}, -1"); a("s_cbranch_scc1 P2_NB2")
            a("s_waitcnt vmcnt(8)")
            a("s_mov_b64 exec, 1"); a(f"buffer_atomic_add {vAT}, {vz}, {rWS}, {sFLAG} offen sc0 sc1"); a("s_mov_b64 exec, -1")
            a.label('P2_NB2')
    GT = [BR[1], BR[2], BR[3], AR[1] + [AR[2][0]]]
    nextA = OPT['la'] + 1
    OC = OPT['oc']
    for s in range(9):
        n = vm.wait_for(lambda t: t in (('A', s), ('B', s)) or (s == OC and t == 'of'))
        if s == 8:
            lds_wait(4, 4)
            stamp(a, 8)
            for w in range(2):
                for j in range(5): a(f"ds_read_b128 {GT[w][j]}, {GB} offset:{w*5120 + j*1024}")
        a(f"s_waitcnt vmcnt({n})" + (" lgkmcnt(0)" if s == (6 if OPT['gf'] & 2 else 4) else ""))
        if OPT['stamp'] == 4:
            a("s_waitcnt lgkmcnt(0)")
            a(f"v_writelane_b32 v255, s92, {40 + s}")
            a("s_memtime s[92:93]")
        if NBA and s == 1: go_logic(n, False)
        if s == OC:
            stamp(a, 18)
            a(f"v_cmp_ne_u32 vcc, 0, {t2}"); a("s_nop 0"); a("s_cbranch_vccnz P2_OOK")
            if not OPT['noc']: vpoll(a, vz, sFHo, 8, t2)
            a.label('P2_OOK')
            a(f"s_mov_b32 {sTO}, 0x40000")
            stamp(a, 9)
        if OPT['sent'] and s >= 4:
            a.label(f'VER{s}')
            regs = [AR[s % 4][tt][k] for tt in range(4) for k in range(4)]
            a(f"v_max3_u32 {t4}, {regs[0]}, {regs[1]}, {regs[2]}")
            a(f"v_max3_u32 {t1}, {regs[3]}, {regs[4]}, {regs[5]}")
            for k in (6, 10):
                a(f"v_max3_u32 {t4}, {t4}, {regs[k]}, {regs[k+1]}"); a(f"v_max3_u32 {t1}, {t1}, {regs[k+2]}, {regs[k+3]}")
            a(f"v_max3_u32 {t4}, {t4}, {regs[14]}, {regs[15]}")
            a(f"v_max_u32 {t4}, {t4}, {t1}")
            a(f"v_cmp_eq_u32 vcc, -1, {t4}")
            a("s_nop 0")
            a(f"s_cbranch_vccnz RET{s}")
            a.label(f'VOK{s}')
        side = []
        if OPT['fair'] and s in eval(OPT['fc']): a(f"s_setprio {eval(OPT['fc'])[s]}")
        if s == OC - 1:
            side.append(f"buffer_load_dword {t2}, {vz}, {rWS}, {sFHo} offen offset:8 sc1"); vm.issue('of')
        while s >= 1 and nextA <= s + OPT['la'] and nextA < 9 and (nextA < 4 or s >= OC):
            side += a_loads(nextA, ('A', nextA), VT); nextA += 1
        if 1 <= s <= 5:
            g_ = CG_[s + 3]
            if g_ < 3: side += ["ds_read_b128 %s, %s offset:%d" % ((BR[(s+3)%4][j],) + crow(g_, j)) for j in range(5)]
            else: side += b_reg(vm, s + 3, ('B', s + 3), None, g_, CB0)
        if s < 8: mm(s % 4, range(4) if s == 0 else [], side, 1 if len([x for x in side if not x.startswith('s_')]) > 10 else 2)
        else:
            for tt in (1, 2, 3, 0):
                for j in range(5):
                    d = ACC[tt][j]
                    a(f"v_mfma_f32_16x16x32_bf16 {d}, {BR[0][j]}, {AR[0][tt]}, {d}")
                    if tt in (1, 2): a(f"ds_read_b128 {GT[tt+1][j]}, {GB} offset:{(tt+1)*5120 + j*1024}")
                    pt = {1: None, 2: None, 3: 1, 0: 2}[tt]
                    if pt: a("ds_write_b128 %s, %s offset:%d" % (crow(pt-1, j)[0], ACC[pt][j], crow(pt-1, j)[1]))
            for j in range(5): a("ds_write_b128 %s, %s offset:%d" % (crow(2, j)[0], ACC[3][j], crow(2, j)[1]))
    if OPT['stamp'] == 4:
        a("s_waitcnt lgkmcnt(0)"); a(f"v_writelane_b32 v255, s92, {49}"); a("s_memtime s[92:93]"); a("s_waitcnt lgkmcnt(0)"); a(f"v_writelane_b32 v255, s92, {50}")
    a("s_waitcnt lgkmcnt(15)")
    for j in range(5):
        for h in range(2):
            sl = slice(2*h, 2*h+2)
            a(f"v_pk_add_f32 {GT[0][j][sl]}, {GT[0][j][sl]}, {GT[1][j][sl]}")
            a(f"v_pk_add_f32 {GT[2][j][sl]}, {GT[2][j][sl]}, {GT[3][j][sl]}")
    stamp(a, 10)
    lds_signal(8)
    for j in range(5):
        for h in range(2):
            sl = slice(2*h, 2*h+2)
            a(f"v_pk_add_f32 {GT[0][j][sl]}, {GT[0][j][sl]}, {GT[2][j][sl]}")
            a(f"v_pk_add_f32 {ACC[0][j][sl]}, {GT[0][j][sl]}, {ACC[0][j][sl]}")
    lds_wait(8, 4)
    RD = [ACC[1], ACC[2], ACC[3]]
    if OPT['fin'] == 0:
        for q in range(3):
            for j in range(5): a(f"ds_read_b128 {RD[q][j]}, {XB[q]} offset:{j*1024}")
        for q in range(3):
            a(f"s_waitcnt lgkmcnt({10 - 5*q})")
            for j in range(5):
                for h in range(2): a(f"v_pk_add_f32 {ACC[0][j][2*h:2*h+2]}, {ACC[0][j][2*h:2*h+2]}, {RD[q][j][2*h:2*h+2]}")
                if q == 2:
                    for h in range(2): a(f"v_pk_mul_f32 {ACC[0][j][2*h:2*h+2]}, {ACC[0][j][2*h:2*h+2]}, {V(22, 2)} op_sel_hi:[1,0]")
                    a(f"v_cvt_pk_bf16_f32 {ACC[1][j][0]}, {ACC[0][j][0]}, {ACC[0][j][1]}")
                    a(f"v_cvt_pk_bf16_f32 {ACC[1][j][1]}, {ACC[0][j][2]}, {ACC[0][j][3]}")
                    a(f"buffer_store_dwordx2 {ACC[1][j][0:2]}, {t0}, {rOUT}, {sT2} offen offset:{j*32} {OPT['ost']}")
    else:
        for j in range(5):
            for q in range(3): a(f"ds_read_b128 {RD[q][j]}, {XB[q]} offset:{j*1024}")
        OUTR = [GT[1][0], GT[1][1], GT[1][2]]
        for j in range(5):
            a(f"s_waitcnt lgkmcnt({12 - 3*j})")
            for h in range(2):
                sl = slice(2*h, 2*h+2)
                a(f"v_pk_add_f32 {RD[0][j][sl]}, {RD[0][j][sl]}, {RD[1][j][sl]}")
                a(f"v_pk_add_f32 {ACC[0][j][sl]}, {ACC[0][j][sl]}, {RD[2][j][sl]}")
            for h in range(2):
                sl = slice(2*h, 2*h+2)
                a(f"v_pk_add_f32 {ACC[0][j][sl]}, {ACC[0][j][sl]}, {RD[0][j][sl]}")
            for h in range(2): a(f"v_pk_mul_f32 {ACC[0][j][2*h:2*h+2]}, {ACC[0][j][2*h:2*h+2]}, {V(22, 2)} op_sel_hi:[1,0]")
            o_ = OUTR[j // 2]
            a(f"v_cvt_pk_bf16_f32 {o_[2*(j%2)]}, {ACC[0][j][0]}, {ACC[0][j][1]}")
            a(f"v_cvt_pk_bf16_f32 {o_[2*(j%2)+1]}, {ACC[0][j][2]}, {ACC[0][j][3]}")
            if j % 2 == 1:
                a(f"v_permlane16_swap_b32 {o_[0]}, {o_[2]}"); a(f"v_permlane16_swap_b32 {o_[1]}, {o_[3]}")
                a(f"buffer_store_dwordx4 {o_}, {t3}, {rOUT}, {sT2} offen offset:{(j-1)*32} {OPT['ost']}")
            if j == 4: a(f"buffer_store_dwordx2 {o_[0:2]}, {t0}, {rOUT}, {sT2} offen offset:128 {OPT['ost']}")
    a.label('P2_FIN')
    if OPT['stamp'] or OPT['pad']:
        a("s_waitcnt vmcnt(0)")
        stamp(a, 11)
    stamp_flush(a)
    if OPT['pad']:
        if OPT['padwg'] < 999: a(f"s_cmp_lg_u32 s2, {OPT['padwg']}"); a(f"s_cbranch_scc1 {END}")
        a.label('PADL')
        a("s_sleep 1"); a("s_memrealtime s[12:13]"); a("s_waitcnt lgkmcnt(0)"); a("s_sub_u32 s12, s12, s10")
        a(f"s_cmp_lt_u32 s12, {OPT['pad']*100}"); a("s_cbranch_scc1 PADL")
    a.label(END)
    a.label('K_LAST')
    a("s_endpgm")
    if OPT['sent']:
        for s in range(4, 9):
            a.label(f'RET{s}')
            a(f"s_sub_u32 {sTO}, {sTO}, 1")
            a(f"s_cselect_b32 {sTO}, 0, {sTO}")
            a(f"s_cbranch_scc1 VOK{s}")
            a(f"s_sleep {OPT['rsl']}")
            for l in a_loads(s, 'r', VT): a(l)
            a("s_waitcnt vmcnt(0)")
            a(f"s_branch VER{s}")

def build():
    hdr = open(f'cdna_kernels/{NAME}.s.ref').read().split('; Override launch')[0]
    name = NAME + '_kernel'
    out = hdr + "; @launch grid=(256,1,1) block=(512,1,1) lds=163840\n"
    out += '.amdgcn_target "amdgcn-amd-amdhsa--gfx950"\n.text\n'
    a = Asm(); kernel(a)
    out += f".globl {name}\n.p2align 8\n.type {name},@function\n{name}:\n" + a.finalize()
    print('instrs', len(a.ins), 'nops', a.nnop, file=sys.stderr)
    out += f""".section .rodata,"a"
.p2align 6
.amdhsa_kernel {name}
  .amdhsa_next_free_vgpr 256
  .amdhsa_next_free_sgpr 102
  .amdhsa_accum_offset 256
  .amdhsa_group_segment_fixed_size 0
  .amdhsa_kernarg_size 96
  .amdhsa_user_sgpr_count 2
  .amdhsa_user_sgpr_kernarg_segment_ptr 1
  .amdhsa_system_sgpr_workgroup_id_x 1
.end_amdhsa_kernel
"""
    return out

if __name__ == '__main__':
    outp = sys.argv[1]
    for o in sys.argv[2:]:
        k, v = o.split('=', 1); OPT[k] = int(v) if v.isdigit() else v
    open(outp, 'w').write(build())
```

```python
import sys
sys.path.insert(0, 'gen')
from asmlib import *
NAME = 'gated_mix__linear_kernel_hedgehog__swiglu_ffn__prompt'
AP = 0; BP = 0xA00000; PQ = 0xD00000; KVACC = 0x1200000; FH = 0x1230000; FK = 0x1232000; FP = 0x1234000; ZEND = 0x1235000
GOFF = 0x1240000; DUMMY = 0x1250000; STAMP = 0x1300000; WSZ = 0x1600000
LOG2E = 0x3fb8aa3b; NLOG2E = 0xbfb8aa3b
OPT = dict(stamp=0, touch=2, bs="{'p0':(0,2),'p1':(2,5),3:(5,8),7:(8,10)}", pp=0, spnt='', rot2=0, slp=1, early=1, btouch=0, atf='sc1', cpf=12, nobar=18, chk=12, sent=0, map2=1, hd=0, gq=0, lbt=0, tw=0, trim=1, nba=0, la=3, spr=0, fin=1, stp=0, nob=0, noc=0, nok=0, noh=0, t2si=2, swp=1, gf=0, b23=1, tlb=0, padwg=999, padev=0, fair=1, fg='{0:2,5:1,7:3}', fc='{0:1,4:0}', npk=0, eprio=2, gprio=3, oc=2, oord=1, noa=0, pj=18, t2s=0, x0e=1, sb1=1, sb2=1, t2pos=1, pad=0, bt=0, tsl=4, rsl=8, cprio2=0, at=0, kh=0, cprio=3, oh1=19, gdel=0, fill=0, spst='sc1', t2a='[0]', t2b='[2]', t2f='{0:(5,6),1:(4,3),2:(7,4),3:(6,5),5:(9,6),6:(8,3)}', t2q='{}', xfl='', wfl='', il=4, qbar=0, prio=0, dbgt=0, ost='nt')
ST = 'sc1'; LD = 'sc1'

pX, pQKV, pPHI, pWO, pBX, pWG, pWU, pWD = [S(16 + 2 * i, 2) for i in range(8)]
pGW, pOUT, pDBG, pWS = [S(32 + 2 * i, 2) for i in range(4)]
sWV = S(3)
rX, rW, rWS, rA, rB = S(40, 4), S(44, 4), S(48, 4), S(52, 4), S(56, 4)
sC = S(60, 2)
rDBG = S(84, 4)
sFLAG = S(88); sTO = S(89); sNEED = S(7)
GOD = 0x1000
sP = S(14, 2)
XSLOT = 32768; WB = 98304
GWB = 159744; CNT = 161024; ZERO = 161280; KVB = 147456

def srd(a, d, base, size):
    a(f"s_mov_b32 {d[0]}, {base[0]}")
    a(f"s_and_b32 {d[1]}, {base[1]}, 0xffff")
    a(f"s_mov_b32 {d[2]}, {size}")
    a(f"s_mov_b32 {d[3]}, 0x20000")

def sstamp(a, j):
    if OPT['stamp'] != 3: return
    if j > 0: a(f"v_writelane_b32 v255, s92, {40 + j - 1}")
    a("s_memtime s[92:93]")
def stamp(a, idx):
    if OPT['pad'] and OPT['padev'] == idx:
        a("s_memrealtime s[10:11]"); a("s_waitcnt lgkmcnt(0)")
    if not OPT['stamp']: return
    if OPT['stamp'] >= 2 and idx not in (2, 3, 5, 11): return
    a("s_memrealtime s[90:91]")
    a("s_memtime s[92:93]")
    a("s_waitcnt lgkmcnt(0)")
    a(f"v_writelane_b32 v255, s90, {2*idx}")
    a(f"v_writelane_b32 v255, s92, {2*idx+1}")
def stamp_flush(a):
    if not OPT['stamp']: return
    if OPT['dbgt']:
        a("s_not_b32 s90, s10"); a("v_writelane_b32 v255, s90, 0")
        a("v_lshlrev_b32 v254, 1, v0"); a("v_add_u32 v254, 8, v254")
        a("s_mov_b32 exec_lo, 0x05555555"); a("s_mov_b32 exec_hi, 0")
        a(f"buffer_atomic_umax v255, v254, {rDBG}, 0 offen sc1")
        a("s_mov_b64 exec, -1")
        return
    a("v_writelane_b32 v255, s10, 0"); a("v_writelane_b32 v255, s12, 1")
    a("s_lshl_b32 s90, s2, 3")
    a(f"s_add_u32 s90, s90, {sWV}")
    a("s_lshl_b32 s90, s90, 8")
    a(f"s_add_u32 s90, s90, {STAMP + 0x80000}")
    a("v_lshlrev_b32 v254, 2, v0")
    a(f"buffer_store_dword v255, v254, {rWS}, s90 offen")

def vpoll(a, vzero, soff, off, tmp, extra=None, slp=None):
    L, D = a.newlabel('POLL'), a.newlabel('POLLD')
    a(f"s_mov_b32 {sTO}, 0x80000")
    a.label(L)
    if extra: a(extra)
    a(f"buffer_load_dword {tmp}, {vzero}, {rWS}, {soff} offen offset:{off} sc1")
    a("s_waitcnt vmcnt(0)")
    a(f"v_cmp_eq_u32 vcc, 0, {tmp}")
    a("s_nop 0")
    a(f"s_cbranch_vccz {D}")
    a(f"s_sleep {slp or OPT['slp']}")
    a(f"s_sub_u32 {sTO}, {sTO}, 1")
    a(f"s_cbranch_scc0 {L}")
    a.label(D)
def arrive(a, soff, need, z, one, nyounger=0):
    D = a.newlabel('ARR')
    a(f"v_mov_b32 {z}, 0"); a(f"v_mov_b32 {one}, 1")
    a(f"s_waitcnt vmcnt({nyounger})")
    a("s_mov_b64 exec, 1")
    a(f"buffer_atomic_add {one}, {z}, {rWS}, {soff} offen sc0 sc1")
    a("s_waitcnt vmcnt(0)")
    a(f"v_readfirstlane_b32 {sP[0]}, {one}")
    a(f"s_add_u32 {sP[1]}, {soff}, {GOD}")
    a(f"s_cmp_lg_u32 {sP[0]}, {need}")
    a(f"s_cbranch_scc1 {D}")
    a(f"buffer_store_dword {one}, {z}, {rWS}, {sP[1]} offen sc1")
    a.label(D)
    a("s_mov_b64 exec, -1")
def init_poll(a, reg, off):
    L, D = a.newlabel('POLL'), a.newlabel('POLLD')
    a(f"s_mov_b32 {sTO}, 0x80000")
    a.label(L)
    a(f"v_mov_b32 {reg}, 0")
    a(f"buffer_load_dword {reg}, {reg}, {rDBG}, 0 offen offset:{off} sc1")
    a("s_waitcnt vmcnt(0)")
    a(f"v_readfirstlane_b32 {sP[0]}, {reg}")
    a(f"s_cmp_lg_u32 {sP[0]}, 0")
    a(f"s_cbranch_scc1 {D}")
    a("s_sleep 2")
    a(f"s_sub_u32 {sTO}, {sTO}, 1")
    a(f"s_cbranch_scc0 {L}")
    a.label(D)

def softmax_unit(a, P, E, M, T, O, side=None):
    side = list(side or [])
    a(f"v_max3_f32 {M[0]}, {P[0]}, {P[1]}, {P[2]}")
    a(f"v_min3_f32 {M[2]}, {P[0]}, {P[1]}, {P[2]}")
    for i in range(3, 19, 2):
        a(f"v_max3_f32 {M[0]}, {M[0]}, {P[i]}, {P[i+1]}")
        a(f"v_min3_f32 {M[2]}, {M[2]}, {P[i]}, {P[i+1]}")
    a(f"v_max_f32 {M[0]}, {M[0]}, {P[19]}")
    a(f"v_min_f32 {M[2]}, {M[2]}, {P[19]}")
    a(f"v_mul_f32 {M[0]}, {sC[0]}, {M[0]}")
    a(f"v_mul_f32 {M[2]}, {sC[0]}, {M[2]}")
    for i in range(0, 20, 2):
        a(f"v_pk_fma_f32 {E[i:i+2]}, {P[i:i+2]}, {sC}, {M[0:2]} op_sel_hi:[1,1,0] neg_lo:[0,0,1] neg_hi:[0,0,1]")
        a(f"v_pk_fma_f32 {E[20+i:22+i]}, {P[i:i+2]}, {sC}, {M[2:4]} op_sel_hi:[1,1,0] neg_lo:[1,0,0] neg_hi:[1,0,0]")
    for i in range(40):
        a(f"v_exp_f32 {E[i]}, {E[i]}")
        if side and i % 2 == 1:
            x = side.pop(0)
            if x != "s_nop 0": a(x)
    for l in side: a(l)
    a(f"v_pk_add_f32 {T[0:2]}, {E[0:2]}, {E[2:4]}")
    a(f"v_pk_add_f32 {T[2:4]}, {E[20:22]}, {E[22:24]}")
    for i in range(4, 20, 2):
        a(f"v_pk_add_f32 {T[0:2]}, {T[0:2]}, {E[i:i+2]}")
        a(f"v_pk_add_f32 {T[2:4]}, {T[2:4]}, {E[20+i:22+i]}")
    a(f"v_add_f32 {T[0]}, {T[0]}, {T[1]}")
    a(f"v_add_f32 {T[2]}, {T[2]}, {T[3]}")
    a(f"v_rcp_f32 {T[0]}, {T[0]}")
    a(f"v_rcp_f32 {T[2]}, {T[2]}")
    for i in range(0, 20, 2):
        a(f"v_pk_mul_f32 {E[i:i+2]}, {E[i:i+2]}, {T[0:2]} op_sel_hi:[1,0]")
        a(f"v_pk_mul_f32 {E[20+i:22+i]}, {E[20+i:22+i]}, {T[2:4]} op_sel_hi:[1,0]")
    for i in range(20):
        a(f"v_cvt_pk_bf16_f32 {O[i]}, {E[2*i]}, {E[2*i+1]}")

def kernel(a):
    END = 'K_END'
    BS = eval(OPT['bs'])
    a("s_cmp_ge_u32 s2, 256")
    a(f"s_cbranch_scc1 {END}")
    if OPT['stamp']:
        a("s_memrealtime s[10:11]"); a("s_memtime s[12:13]"); a("v_mov_b32 v255, 0")
    if OPT['pad']: a("s_memrealtime s[10:11]")
    a("s_load_dwordx16 s[16:31], s[0:1], 0")
    a("s_load_dwordx8 s[32:39], s[0:1], 64")
    lane = V(0)
    tid, t0, t1, t2, t3, t4 = V(1), V(2), V(3), V(4), V(5), V(6)
    vqd, vr, vc, vl15 = V(7), V(8), V(9), V(10)
    vx = [V(11 + i) for i in range(4)]
    xa = [[V(15), V(16)], [V(17), V(18)]]
    tdum = V(19); ta = V(32, 2); tb = V(34, 2)
    R0 = 24
    sTY, sRB, sXK, sWK, sM, sT0, sT1, sT2, sT3, sRG, sHI, sID, sMW, sC8, sR4 = [S(62 + i) for i in range(15)]
    a(f"v_lshrrev_b32 {t0}, 6, v0")
    a(f"v_mov_b32 {tid}, v0")
    a(f"v_readfirstlane_b32 {sWV}, {t0}")
    a(f"v_and_b32 {lane}, 63, v0")
    a(f"s_bfe_u32 {sC8}, s2, 0x30003")
    a(f"s_lshr_b32 {sR4}, s2, 6")
    a(f"s_and_b32 {sRB}, s2, 1")
    a(f"s_lshl_b32 {sRB}, {sRB}, 2")
    a(f"s_add_u32 {sRB}, {sRB}, {sR4}")
    a(f"s_bfe_u32 {sT0}, s2, 0x20001")
    a(f"s_and_b32 {sRG}, {sWV}, 3")
    a(f"s_lshr_b32 {sHI}, {sWV}, 2")
    a(f"v_lshrrev_b32 {vqd}, 4, {lane}")
    a(f"v_bfe_u32 {vr}, {lane}, 2, 2")
    a(f"v_and_b32 {vc}, 3, {lane}")
    a(f"v_and_b32 {vl15}, 15, {lane}")
    a(f"v_lshrrev_b32 {t0}, 3, {lane}")
    a(f"v_mul_u32_u24 {t0}, 1280, {t0}")
    a(f"v_and_b32 {t1}, 7, {lane}")
    a(f"v_xor_b32 {t1}, {t1}, {vqd}")
    a(f"v_lshl_add_u32 {vx[0]}, {t1}, 4, {t0}")
    a(f"v_xor_b32 {t1}, 4, {t1}")
    a(f"v_lshl_add_u32 {vx[1]}, {t1}, 4, {t0}")
    a(f"v_add_u32 {vx[1]}, {8*1280-1024}, {vx[1]}")
    a(f"v_add_u32 {vx[2]}, {16*1280-2048}, {vx[0]}")
    a(f"v_add_u32 {vx[3]}, {16*1280-2048}, {vx[1]}")
    a(f"s_mul_i32 {sXK}, {sRB}, {256*1280}")
    a(f"s_mul_i32 {sT1}, {sWV}, {32*1280}")
    a(f"s_add_u32 {sXK}, {sXK}, {sT1}")
    a(f"s_lshl_b32 {sM}, {sWV}, 12")
    sXA, sXB = S(6), S(7)
    if OPT['swp']:
        a(f"s_add_u32 {sTY}, {sC8}, {sR4}"); a(f"s_and_b32 {sTY}, {sTY}, 1")
        a(f"s_lshl_b32 {sT1}, {sTY}, 7"); a(f"s_add_u32 {sXK}, {sXK}, {sT1}")
    a(f"v_lshlrev_b32 {t2}, 3, {tid}")
    a(f"v_min_u32 {t2}, {163840 - CNT - 8}, {t2}")
    a(f"v_add_u32 {t2}, {CNT}, {t2}")
    a(f"v_mov_b32 {ta[0]}, 0"); a(f"v_mov_b32 {ta[1]}, 0")
    a(f"ds_write_b64 {t2}, {ta}")
    a(f"s_mul_i32 {sID}, {sT0}, 9"); a(f"s_add_u32 {sID}, {sID}, 1"); a(f"s_lshr_b32 {sID}, {sID}, 1")
    a(f"s_add_u32 {sID}, {sID}, {sC8}"); a(f"s_sub_u32 {sID}, {sID}, 3")
    a(f"s_and_b32 {sT1}, {sT0}, 1"); a(f"s_add_u32 {sT1}, {sT1}, {sC8}")
    a(f"s_mov_b32 {sC[0]}, {LOG2E:#x}")
    a(f"s_mov_b32 {sC[1]}, {LOG2E:#x}")
    sU1, sU2, sBK = S(100), S(101), S(95)
    vt1, vt2 = V(22), V(23)
    T2 = OPT['touch'] >= 2; T3 = OPT['touch'] == 3
    rTT = S(96, 4)
    def t2_all(b0):
        return [f"s_mul_i32 s4, {sBK}, {b0}", f"s_add_u32 s4, s4, {sU2}",
                f"v_add_u32 v21, s4, {vt2}", f"s_mov_b64 exec, 0xff\nbuffer_load_dword {tdum}, v21, {rTT}, 0 offen\ns_mov_b64 exec, -1"]
    OOL = []
    def t2_one(b, c8v):
        lb = a.newlabel('T2')
        body = (f"s_mul_i32 s4, {sBK}, {b}\ns_add_u32 s4, s4, {sU1}\nv_add_u32 v3, s4, {vt1}\n" + ("s_mov_b32 exec_hi, 0\n", "s_mov_b64 exec, 0xffff\n", "s_mov_b64 exec, 0xff\n")[OPT['hd']] +
                f"buffer_load_dword {tdum}, v3, {rTT}, 0 offen\ns_mov_b64 exec, -1\n")
        if OPT['trim']:
            OOL.append(f"{lb}o:\n" + body + f"s_branch {lb}")
            return [f"s_cmp_eq_u32 {'s94' if OPT['hd'] else sC8}, {c8v}\ns_cbranch_scc1 {lb}o\n{lb}:"]
        return [f"s_cmp_lg_u32 {sC8}, {c8v}\ns_cbranch_scc1 {lb}\n" + body + f"{lb}:"]
    if T2:
        a(f"s_lshr_b32 s9, {sWV}, 1")
        a(f"s_mov_b32 {rTT[2]}, {2048*1280}"); a(f"s_movk_i32 {sBK}, 128")
        a("s_cmp_eq_u32 s9, 1")
        a(f"s_cselect_b32 {rTT[2]}, {640*3840}, {rTT[2]}"); a(f"s_cselect_b32 {sBK}, {64*3840}, {sBK}")
        a("s_cmp_ge_u32 s9, 2")
        a(f"s_cselect_b32 {rTT[2]}, {640*3456}, {rTT[2]}"); a(f"s_cselect_b32 {sBK}, {64*3456}, {sBK}")
        a(f"s_mov_b32 {rTT[3]}, 0x20000")
        a("s_cmp_eq_u32 s9, 0")
        a("s_movk_i32 s7, 128"); a("s_cselect_b32 s5, 1280, s7"); a("s_cselect_b32 s6, 640, s7"); a("s_cselect_b32 s7, 512, 0")
        a(f"v_mul_u32_u24 {vt1}, s5, {lane}")
        a(f"v_mul_u32_u24 {vt2}, s6, {lane}")
        a(f"v_and_b32 {t0}, 1, {lane}"); a(f"v_mul_u32_u24 {t0}, s7, {t0}"); a(f"v_sub_u32 {vt2}, {vt2}, {t0}")
        a(f"s_and_b32 s4, {sWV}, 1")
        a(f"s_lshl1_add_u32 {sU2}, s2, s4"); a(f"s_lshl_b32 {sU2}, {sU2}, 3"); a(f"s_mul_i32 {sU2}, {sU2}, s6")
        a(f"s_and_b32 {sU1}, s2, 7"); a(f"s_lshl2_add_u32 {sU1}, {sU1}, {sR4}")
        a(f"s_lshl1_add_u32 {sU1}, {sU1}, s4")
        if OPT['hd'] == 1:
            a(f"s_and_b32 s4, {sC8}, 1"); a(f"s_lshl1_add_u32 {sU1}, {sU1}, s4"); a(f"s_lshl_b32 {sU1}, {sU1}, 4")
            a(f"s_add_u32 s94, {sC8}, 1"); a("s_lshr_b32 s94, s94, 1")
        elif OPT['hd'] == 2:
            a(f"s_and_b32 s4, {sC8}, 3"); a(f"s_lshl2_add_u32 {sU1}, {sU1}, s4"); a(f"s_lshl_b32 {sU1}, {sU1}, 3")
            a(f"s_add_u32 s94, {sC8}, 1"); a("s_lshr_b32 s94, s94, 2")
        else: a(f"s_lshl_b32 {sU1}, {sU1}, 5")
        a(f"s_mul_i32 {sU1}, {sU1}, s5")
        a(f"v_add_u32 {t4}, {sU2}, {vt2}")
        if eval(OPT['t2a'])[0]:
            a(f"s_mul_i32 s4, {sBK}, {eval(OPT['t2a'])[0]}"); a(f"v_add_u32 {t4}, s4, {t4}")
    a(f"s_mov_b32 {rX[2]}, {2048*1280}"); a(f"s_mov_b32 {rX[3]}, 0x20000")
    a(f"s_mov_b32 m0, {sM}")
    a("s_waitcnt lgkmcnt(0)")
    if T2:
        a("s_cmp_eq_u32 s9, 1"); a(f"s_cselect_b64 {rTT[0:2]}, {pQKV}, {pX}")
        a("s_cmp_eq_u32 s9, 2"); a(f"s_cselect_b64 {rTT[0:2]}, {pWG}, {rTT[0:2]}")
        a("s_cmp_eq_u32 s9, 3"); a(f"s_cselect_b64 {rTT[0:2]}, {pWU}, {rTT[0:2]}")
        a(f"s_and_b32 {rTT[1]}, {rTT[1]}, 0xffff")
        a("s_mov_b64 exec, 0xff"); a(f"buffer_load_dword {tdum}, {t4}, {rTT}, 0 offen"); a("s_mov_b64 exec, -1")
        for b0 in eval(OPT['t2a'])[1:]:
            for l in t2_all(b0): a(l)
    a(f"s_mov_b32 {rX[0]}, {pX[0]}"); a(f"s_and_b32 {rX[1]}, {pX[1]}, 0xffff")
    if OPT['x0e']:
        a(f"s_cmp_eq_u32 {sT1}, 8"); a("s_cbranch_scc1 NOX0")
        if OPT['sb1']: a("s_barrier")
        for n in range(4): a(f"buffer_load_dwordx4 {vx[n]}, {rX}, {sXK} offen offset:{n*1024} lds")
        a.label("NOX0")
    srd(a, rWS, pWS, WSZ)
    srd(a, rDBG, pDBG, 256)
    if OPT['tlb']:
        a(f"s_cmp_lg_u32 {sWV}, 6"); a("s_cbranch_scc1 NOTLB")
        srd(a, rA, pOUT, 2048 * 1280)
        a(f"v_lshlrev_b32 {t0}, {OPT['tlb']}, {lane}")
        a("s_lshl_b32 s6, s2, 7"); a(f"v_add_u32 {t0}, s6, {t0}")
        a(f"v_min_u32 {t1}, {0x1250000}, {t0}")
        a(f"buffer_load_dword v31, {t1}, {rWS}, 0 offen")
        a(f"buffer_load_dword v31, {t0}, {rA}, 0 offen")
        a.label("NOTLB")
    if OPT['cpf']:
        a(f"s_cmp_lg_u32 {sWV}, 7"); a("s_cbranch_scc1 NOCPF")
        a("s_getpc_b64 s[90:91]")
        a.label("CPF_PC")
        a("s_lshr_b32 s6, s2, 3"); a(f"s_mul_i32 s6, s6, {OPT['cpf']*128}")
        a(f"v_lshlrev_b32 {t0}, 7, {lane}"); a(f"v_add_u32 {t0}, s6, {t0}")
        a(f"v_min_u32 {t0}, K_LAST-CPF_PC, {t0}")
        a(f"s_mov_b64 exec, {(1 << OPT['cpf']) - 1:#x}")
        a(f"global_load_dword v31, {t0}, s[90:91]")
        a("s_mov_b64 exec, -1")
        a.label("NOCPF")
    if OPT['swp']: a(f"s_lshl_b32 s4, {sTY}, 8"); a(f"s_sub_u32 {sXA}, 128, s4"); a(f"s_add_u32 {sXB}, s4, 128")
    a(f"s_cmp_lt_u32 {sC8}, 3")
    a("s_cbranch_scc1 R_QKV")
    a(f"s_cmp_eq_u32 {sT1}, 8")
    a("s_cbranch_scc1 R_SPARE")

    def x_dma(vm, blk, half):
        if blk == 0 and OPT['x0e']:
            vm.issue(('X', 0)); vm.issue(('X', 0)); return []
        l = [f"s_add_u32 m0, {sM}, {(blk % 3) * XSLOT}"]
        if half == 0 and blk > 0: l.append(f"s_add_u32 {sXK}, {sXK}, {(sXA if blk % 2 else sXB) if OPT['swp'] else 128}")
        for n in (2 * half, 2 * half + 1):
            l.append(f"buffer_load_dwordx4 {vx[n]}, {rX}, {sXK} offen offset:{n*1024} {OPT['xfl']} lds")
            vm.issue(('X', blk))
        return l
    def x_addr_setup():
        a(f"v_lshrrev_b32 {t0}, 1, {vl15}")
        a(f"v_xor_b32 {t0}, {t0}, {vqd}")
        a(f"v_lshlrev_b32 {t0}, 4, {t0}")
        a(f"v_lshl_add_u32 {t0}, {vl15}, 7, {t0}")
        a(f"s_lshl_b32 {sT0}, {sRG}, 13")
        a(f"v_add_u32 {xa[0][0]}, {sT0}, {t0}")
        a(f"v_xor_b32 {xa[0][1]}, 64, {xa[0][0]}")
        a(f"v_add_u32 {xa[1][0]}, 0x10000, {xa[0][0]}")
        a(f"v_add_u32 {xa[1][1]}, 0x10000, {xa[0][1]}")
    def x_reads(XF, step):
        blk, kk = step // 2, step % 2
        sl = blk % 3
        return [f"ds_read_b128 {XF[tt]}, {xa[sl // 2][kk]} offset:{(sl % 2) * XSLOT + tt * 2048}" for tt in range(4)]
    def burst(vm, b0, b1):
        if OPT['touch'] not in (1, 3): return []
        l = []
        for st, reg in ((0, ta), (5, tb)):
            lo, hi = max(b0, st) - st, min(b1, st + 5) - st
            if lo >= hi: continue
            m = ((1 << (12 * hi)) - 1) & ~((1 << (12 * lo)) - 1)
            l += [f"s_mov_b32 exec_lo, {m & 0xffffffff:#x}", f"s_mov_b32 exec_hi, {m >> 32:#x}", f"global_load_dword {tdum}, {reg}, off"]
            vm.issue('T')
        l.append("s_mov_b64 exec, -1")
        return l
    def touch_setup(pw0, pw1, rowbytes, off0, off1, seg):
        if OPT['touch'] not in (1, 3): return
        l12, bi = tb[0], tb[1]; tinc = V(36)
        a(f"v_mul_u32_u24 {bi}, 43, {lane}"); a(f"v_lshrrev_b32 {bi}, 9, {bi}")
        a(f"v_mul_u32_u24 {l12}, 12, {bi}"); a(f"v_sub_u32 {l12}, {lane}, {l12}")
        a(f"s_lshl_b32 {sT2}, {sRB}, 3"); a(f"s_add_u32 {sT2}, {sT2}, {sC8}"); a(f"s_lshl_b32 {sT2}, {sT2}, 3"); a(f"s_add_u32 {sT2}, {sT2}, {sWV}")
        a(f"s_mul_i32 {sT2}, {sT2}, {4*1280}")
        a(f"v_mul_u32_u24 {t0}, 1280, {l12}")
        a(f"v_add_u32 {t0}, {sT2}, {t0}")
        a(f"s_lshl_b32 {sT0}, {sR4}, 3"); a(f"s_add_u32 {sT0}, {sT0}, {sWV}"); a(f"s_mul_i32 {sT0}, {sT0}, {2*rowbytes}")
        a(f"v_subrev_u32 {t1}, 4, {l12}")
        a(f"v_bfe_u32 {t2}, {t1}, 2, 1")
        a(f"v_mul_u32_u24 {t2}, {rowbytes}, {t2}")
        a(f"v_and_b32 {t3}, 1, {t1}")
        a(f"v_mul_u32_u24 {t3}, {seg-4}, {t3}")
        a(f"v_add3_u32 {t2}, {t2}, {t3}, {sT0}")
        a(f"v_and_b32 {t3}, 2, {t1}")
        a(f"v_cmp_eq_u32 vcc, 0, {t3}")
        a(f"v_mov_b32 {t3}, {off1}"); a(f"v_mov_b32 {t4}, {off0}")
        a(f"v_cndmask_b32 {t3}, {t3}, {t4}, vcc")
        a(f"v_add_u32 {t2}, {t2}, {t3}")
        a(f"v_mov_b32 {t3}, {pw1[0]}"); a(f"v_mov_b32 {t4}, {pw0[0]}"); a(f"v_cndmask_b32 {ta[0]}, {t3}, {t4}, vcc")
        a(f"v_mov_b32 {t3}, {pw1[1]}"); a(f"v_mov_b32 {t4}, {pw0[1]}"); a(f"v_cndmask_b32 {ta[1]}, {t3}, {t4}, vcc")
        a(f"v_cmp_gt_u32 vcc, 4, {l12}")
        a(f"v_mov_b32 {t3}, {pX[0]}"); a(f"v_mov_b32 {t4}, {pX[1]}")
        a(f"v_cndmask_b32 {t2}, {t2}, {t0}, vcc")
        a(f"v_cndmask_b32 {ta[0]}, {ta[0]}, {t3}, vcc")
        a(f"v_cndmask_b32 {ta[1]}, {ta[1]}, {t4}, vcc")
        a(f"v_mov_b32 {t3}, {64*rowbytes}"); a(f"v_mov_b32 {t4}, 128"); a(f"v_cndmask_b32 {tinc}, {t3}, {t4}, vcc")
        a(f"v_mad_u32_u24 {t2}, {tinc}, {bi}, {t2}")
        a(f"v_add_co_u32 {ta[0]}, vcc, {ta[0]}, {t2}")
        a(f"v_mul_u32_u24 {t2}, 5, {tinc}")
        a(f"v_addc_co_u32 {ta[1]}, vcc, 0, {ta[1]}, vcc")
        a(f"v_add_co_u32 {tb[0]}, vcc, {ta[0]}, {t2}")
        a(f"v_addc_co_u32 {tb[1]}, vcc, 0, {ta[1]}, vcc")
    def step_body(mains, lblk, pre=[]):
        for l in pre: a(l)
        if not lblk:
            for m in mains: a(m)
            return
        if OPT['pp'] == 2:
            rds = [l for l in lblk if l.startswith('ds_read')]; oth = [l for l in lblk if not l.startswith('ds_read')]
            l1, l2 = a.newlabel('PP'), a.newlabel('PP')
            if oth:
                a(f"s_cmp_eq_u32 {sHI}, 0"); a(f"s_cbranch_scc1 {l1}")
                for l in oth: a(l)
                a.label(l1)
            k = 0
            for i, m in enumerate(mains):
                a(m)
                while k < len(rds) and k < (i + 1) * max(1, -(-len(rds) // len(mains))):
                    a(rds[k]); k += 1
            if oth:
                a(f"s_cmp_eq_u32 {sHI}, 0"); a(f"s_cbranch_scc0 {l2}")
                for l in oth: a(l)
                a.label(l2)
        elif OPT['pp']:
            l1, l2 = a.newlabel('PP'), a.newlabel('PP')
            a(f"s_cmp_eq_u32 {sHI}, 0"); a(f"s_cbranch_scc1 {l1}")
            for l in lblk: l() if callable(l) else a(l)
            a.label(l1)
            for m in mains: a(m)
            a(f"s_cmp_eq_u32 {sHI}, 0"); a(f"s_cbranch_scc0 {l2}")
            for l in lblk: l() if callable(l) else a(l)
            a.label(l2)
        else:
            rds = [l for l in lblk if l.startswith('ds_read')]; oth = [l for l in lblk if not l.startswith('ds_read')]
            units = []; cur = []
            for l in oth:
                cur.append(l)
                if 'buffer_' in l or 'ds_write' in l: units.append(cur); cur = []
            if cur: units.append(cur)
            n = len(mains); mode = OPT['il']
            pos = {}
            if mode == 0:
                seq = [[r] for r in rds] + units
                for k, u in enumerate(seq): pos.setdefault(min(n - 1, k * n // max(len(seq), n)), []).extend(u)
            elif mode == 1:
                for k, u in enumerate(units): pos.setdefault(min(n - 1, 2 * k), []).extend(u)
                for k, r in enumerate(rds): pos.setdefault(min(n - 1, k * min(n, len(rds)) // len(rds) if len(rds) > n else k), []).append(r)
            elif mode == 2:
                for k, r in enumerate(rds): pos.setdefault(min(n - 1, k // 2), []).append(r)
                for k, u in enumerate(units): pos.setdefault(min(n - 1, len(rds) // 2 + 2 * k), []).extend(u)
            elif mode == 3:
                for k, u in enumerate(units): pos.setdefault(min(n - 1, 1 + k * (2 * n // 3) // max(1, len(units))), []).extend(u)
                for k, r in enumerate(rds): pos.setdefault(min(n - 1, k * min(n, len(rds)) // len(rds) if len(rds) > n else k), []).append(r)
            elif mode == 4:
                k = 0
                for i in range(n):
                    while k < len(lblk) and k < (i + 1) * len(lblk) // n + 1:
                        pos.setdefault(i, []).append(lblk[k]); k += 1
            for i, m in enumerate(mains):
                a(m)
                for l in pos.get(i, []): a(l)
    def init_check_issue(reg, off=128):
        return [f"v_mov_b32 {reg}, 0", f"buffer_load_dword {reg}, {reg}, {rDBG}, 0 offen offset:{off} sc1"]
    def init_check(reg, off=128, ool=False):
        ok = a.newlabel('INITOK')
        a(f"v_readfirstlane_b32 {sP[0]}, {reg}")
        if ool and OPT['trim']:
            a(f"s_cmp_eq_u32 {sP[0]}, 0"); a(f"s_cbranch_scc1 {ok}o"); a.label(ok)
            b = Asm(); b.uid = a.uid + 1000; init_poll(b, reg, off); a.uid += 5
            OOL.append(f"{ok}o:\n" + "\n".join(x.text for x in b.ins) + f"\ns_branch {ok}")
            return
        a(f"s_cmp_lg_u32 {sP[0]}, 0")
        a(f"s_cbranch_scc1 {ok}")
        init_poll(a, reg, off)
        a.label(ok)
    sR6, sCG, sAo, sBg, sBo, sLC, sH2, sRX = [S((16 if OPT['trim'] else 94) + i) for i in range(8)]
    vo, vo4 = V(20), V(21)
    vS2 = V(30)
    sO1, sO2 = S(79), S(80)
    BRb = [208, 228, 32, 52]
    BR = [[V(BRb[b] + 4 * j, 4) for j in range(5)] for b in range(4)]
    GL = [4, 6, 7, 9]; LR = [2, 5, 3, 4]; CR = [0, 1, 6]
    GRP = {0:0, 1:1, 2:2, 3:3, 4:8, 6:9, 7:10, 9:11, 5:12, 8:13}
    if OPT['gf'] & 1:
        GL = [6, 7, 8, 9]; GRP = {0:0, 1:1, 2:2, 3:3, 6:8, 7:9, 8:10, 9:11, 4:12, 5:13}
    INP2 = [False]
    BS_ = 40960; GS_ = 4 * BS_
    CB0 = 38 * BS_; CA0 = 38 * 4096
    def p2_setup():
        if OPT['map2'] == 2:
            hd = [f"s_bfe_u32 {sR6}, s2, 0x10002", "s_lshr_b32 s4, s2, 4", f"s_lshl4_add_u32 {sR6}, {sR6}, s4",
                  f"s_lshr_b32 {sCG}, s2, 3", "s_lshr_b32 s4, s2, 6", f"s_add_u32 {sCG}, {sCG}, s4", f"s_and_b32 {sCG}, {sCG}, 1", "s_and_b32 s4, s2, 3", f"s_lshl1_add_u32 {sCG}, s4, {sCG}"]
        elif OPT['map2']:
            hd = [f"s_bfe_u32 {sR6}, s2, 0x20001", "s_lshr_b32 s4, s2, 5", f"s_lshl3_add_u32 {sR6}, {sR6}, s4",
                  f"s_lshr_b32 {sCG}, s2, 3", "s_lshr_b32 s4, s2, 6", f"s_add_u32 {sCG}, {sCG}, s4", f"s_and_b32 {sCG}, {sCG}, 3", "s_and_b32 s4, s2, 1", f"s_lshl2_add_u32 {sCG}, s4, {sCG}"]
        else:
            hd = [f"s_and_b32 {sR6}, s2, 7", f"s_lshl_b32 {sR6}, {sR6}, 2", "s_lshr_b32 s4, s2, 6", f"s_add_u32 {sR6}, {sR6}, s4",
             f"s_bfe_u32 {sCG}, s2, 0x30003", f"s_lshl1_add_u32 {sCG}, s4, {sCG}", f"s_and_b32 {sCG}, {sCG}, 7"]
        return hd + [f"v_lshlrev_b32 {vo}, 4, {lane}", f"v_add_u32 {vo4}, 4096, {vo}",
             f"s_lshl3_add_u32 {sBg}, {sRG}, {sCG}", f"s_mul_i32 {sBg}, {sBg}, 5120", f"s_add_u32 {sBg}, {sBg}, {BP}",
             f"s_mov_b32 {rB[0]}, {pWS[0]}", f"s_and_b32 {rB[1]}, {pWS[1]}, 0xffff", f"s_mul_i32 {rB[2]}, {sHI}, {WSZ}", f"s_mov_b32 {rB[3]}, 0x20000",
             f"s_mul_i32 {sLC}, {sRG}, 5120", f"s_mul_i32 {sH2}, {sHI}, {GS_}", f"s_mul_i32 {sRX}, {sHI}, 20480",
             f"s_xor_b32 s4, {sHI}, 1", f"s_mul_i32 {sBo}, s4, {16*BS_}", f"s_add_u32 {sBo}, {sBo}, {sBg}",
             f"s_mul_i32 {sAo}, {sR6}, 74", f"s_mul_i32 s4, s4, 16", f"s_add_u32 {sAo}, {sAo}, s4", f"s_add_u32 {sAo}, {sAo}, {sRG}", f"s_lshl_b32 {sAo}, {sAo}, 12",
             f"s_lshr_b32 s4, {sCG}, 1", "s_mul_i32 s4, s4, 5", f"s_mul_i32 {sO2}, {sR6}, 74", f"s_add_u32 {sO2}, {sO2}, s4", f"s_add_u32 {sO2}, {sO2}, 54",
             f"s_lshl2_add_u32 {sO2}, {sO2}, {sRG}", f"s_lshl_b32 {sO2}, {sO2}, 10", f"s_and_b32 s4, {sCG}, 1", f"s_mul_i32 {sO1}, s4, {3*4096}",
             f"s_add_u32 {sO1}, {sO1}, {sO2}", "s_lshl_b32 s4, s4, 9", f"s_add_u32 {sO2}, {sO2}, s4", f"s_add_u32 {sO2}, {sO2}, 8192",
             f"s_lshl_b32 s78, {sR6}, 7", f"s_add_u32 s78, s78, {FH + GOD}"]
    vFQ = V(31)
    def q_flag_issue(): return [f"v_mov_b32 {vFQ}, 0", f"buffer_load_dword {vFQ}, {vFQ}, {rWS}, s78 offen offset:4 sc1"]
    def poison(R4):
        if not OPT['sent']: return []
        lb = a.newlabel('PO')
        return [f"s_cmp_eq_u32 {sHI}, 1\ns_cbranch_scc1 {lb}\n" + "\n".join(f"v_mov_b32 {R4[i]}, -1" for i in range(4)) +
                f"\nbuffer_store_dwordx4 {R4}, {vo}, {rWS}, {sO1} offen {ST}\nbuffer_store_dwordx4 {R4}, {vo4}, {rWS}, {sO1} offen {ST}"
                f"\ns_mov_b32 exec_hi, 0\nbuffer_store_dwordx4 {R4}, {vo}, {rWS}, {sO2} offen {ST}\ns_mov_b32 exec_hi, -1\n{lb}:"]
    def b_reg(vm, i, tag, r=None, grp=None, ext=0):
        b = i % 4; r = r or rWS; grp = i if grp is None else grp
        if INP2[0] and OPT['nob'] == 1: r = rA
        if INP2[0] and OPT['nob'] == 2: return []
        l = [f"s_add_u32 s4, {sBo}, {grp*GS_ + ext}"]
        for j in range(5):
            if j < 4: l.append(f"buffer_load_dwordx4 {BR[b][j]}, {vo}, {r}, s4 offen offset:{j*1024} {LD}")
            else: l.append(f"buffer_load_dwordx4 {BR[b][j]}, {vo4}, {r}, s4 offen {LD}")
            vm.issue(tag)
        return l
    def b_row(vm, base, grp, row, extra=None, ext=0, hi3=False):
        l = [f"s_add_u32 s4, {base}, {grp*GS_ + ext}", f"s_add_u32 s5, {sLC}, {row*20480}"]
        if hi3: l += [f"s_add_u32 s4, s4, {sH2}", f"s_mul_i32 s6, {sRX}, 3", "s_add_u32 s5, s5, s6"]
        if extra: l += [f"s_add_u32 s4, s4, {sH2}", f"s_add_u32 s5, s5, {extra}"]
        l.append("s_mov_b32 m0, s5")
        if INP2[0] and OPT['nob'] == 2: return []
        for j in range(4):
            l.append(f"buffer_load_dwordx4 {vo}, {rWS}, s4 offen offset:{j*1024} {LD} lds"); vm.issue('BL')
        l.append("s_add_u32 m0, s5, 4096")
        l.append(f"buffer_load_dwordx4 {vo4}, {rWS}, s4 offen {LD} lds"); vm.issue('BL')
        return l
    def b_row_half(vm, k):
        l = [f"s_add_u32 s4, {sBg}, {GRP[GL[k]]*20480}", f"s_add_u32 s5, {sLC}, {LR[k]*20480}", f"s_add_u32 s4, s4, {sH2}", f"s_add_u32 m0, s5, {sH2}"]
        for j in range(3):
            l.append(f"buffer_load_dwordx4 {vo}, {rWS}, s4 offen offset:{j*1024} {LD} lds"); vm.issue('BL')
        return l
    sPF = S(8)
    def flag_store(need):
        a(f"s_mov_b32 {sNEED}, {need}")

    vw = [V(R0), V(R0 + 1)]; wa = [V(R0 + 2), V(R0 + 3), V(R0 + 4)]; vchk = V(R0 + 5)
    FB = [32, 72]
    XF = [[V(FB[b] + 4 * tt, 4) for tt in range(4)] for b in range(2)]
    WF = [[V(FB[b] + 16 + 4 * c, 4) for c in range(6)] for b in range(2)]
    ACC = [[V(112 + (c * 4 + tt) * 4, 4) for tt in range(4)] for c in range(6)]
    vm = VmTrack()
    a(f"s_mul_i32 {sT3}, {sID}, 192")
    touch_setup(pWG, pWU, 3456, sT3, sT3, 192)
    for l in burst(vm, *BS['p0']): a(l)
    a(f"s_bitcmp1_b32 {sWV}, 0")
    a(f"s_cselect_b32 {rW[0]}, {pWU[0]}, {pWG[0]}")
    a(f"s_cselect_b32 {rW[1]}, {pWU[1]}, {pWG[1]}")
    a(f"s_and_b32 {rW[1]}, {rW[1]}, 0xffff")
    a(f"s_mov_b32 {rW[2]}, {640*3456}")
    a(f"s_mov_b32 {rW[3]}, 0x20000")
    a(f"s_bfe_u32 {sT0}, {sWV}, 0x10001")
    a(f"s_lshl_b32 {sT1}, {sT0}, 1")
    for n in range(2):
        a(f"v_add_u32 {t0}, {64*n}, {lane}")
        a(f"v_mul_u32_u24 {t1}, 43, {t0}")
        a(f"v_lshrrev_b32 {t1}, 9, {t1}")
        a(f"v_mul_u32_u24 {t2}, 12, {t1}")
        a(f"v_sub_u32 {t2}, {t0}, {t2}")
        a(f"v_lshrrev_b32 {t3}, 2, {t2}")
        a(f"v_cmp_eq_u32 vcc, 1, {t3}")
        a(f"v_mov_b32 {t3}, {sT1}")
        a(f"v_mov_b32 {t4}, {sT0}")
        a(f"v_cndmask_b32 {t3}, {t3}, {t4}, vcc")
        a(f"v_xor_b32 {t2}, {t2}, {t3}")
        a(f"v_mul_u32_u24 {t1}, 3456, {t1}")
        a(f"v_lshl_add_u32 {vw[n]}, {t2}, 4, {t1}")
        if n: a(f"v_subrev_u32 {vw[n]}, 1024, {vw[n]}")
    a(f"s_lshr_b32 {sT0}, {sWV}, 1")
    a(f"s_mul_i32 {sWK}, {sT0}, {8*3456}")
    a(f"s_add_u32 {sWK}, {sWK}, {sT3}")
    a(f"s_mul_i32 {sMW}, {sT0}, 1536")
    a(f"s_and_b32 {sT1}, {sWV}, 1")
    a(f"s_mul_i32 {sT1}, {sT1}, 6144")
    a(f"s_add_u32 {sMW}, {sMW}, {sT1}")
    sW2 = S(54, 2)
    if OPT['swp']:
        a(f"s_mul_i32 {sT1}, {sTY}, {2*110592}"); a(f"s_add_u32 {sWK}, {sWK}, {sT1}"); a(f"s_lshl_b32 {sT1}, {sT1}, 1")
        a(f"s_sub_u32 {sW2[0]}, 110592, {sT1}"); a(f"s_add_u32 {sW2[1]}, {sT1}, 110592")
    def w_dma(step):
        l = [f"s_add_u32 m0, {sMW}, {WB + (step % 5) * 12288}"] + ([f"s_add_u32 {sWK}, {sWK}, {(110592 if step % 2 or not OPT['swp'] else (sW2[0] if step % 4 == 2 else sW2[1]))}"] if step else []) + [
             f"buffer_load_dwordx4 {vw[0]}, {rW}, {sWK} offen {OPT['wfl']} lds",
             "s_mov_b32 exec_hi, 0\n"
             f"buffer_load_dwordx4 {vw[1]}, {rW}, {sWK} offen offset:1024 {OPT['wfl']} lds\n"
             "s_mov_b32 exec_hi, -1"]
        vm.issue(('W', step)); vm.issue(('W', step))
        return l
    if OPT['sb1'] and not OPT['x0e']: a("s_barrier")
    for l in x_dma(vm, 0, 0) + x_dma(vm, 0, 1) + w_dma(0) + w_dma(1): a(l)
    x_addr_setup()
    a(f"v_lshl_add_u32 {t0}, {vqd}, 3, {vr}")
    a(f"v_mul_u32_u24 {t0}, 192, {t0}")
    a(f"v_add_u32 {t0}, {WB}, {t0}")
    a(f"v_and_b32 {t1}, 1, {vqd}")
    a(f"v_lshlrev_b32 {t2}, 5, {t1}")
    a(f"v_lshl_add_u32 {t2}, {vc}, 3, {t2}")
    a(f"s_lshl_b32 {sT0}, {sHI}, 7")
    a(f"v_add3_u32 {wa[0]}, {t0}, {t2}, {sT0}")
    a(f"v_xor_b32 {wa[1]}, 32, {wa[0]}")
    a(f"v_and_b32 {t2}, 2, {vc}")
    a(f"v_add_u32 {t2}, {sHI}, {t2}")
    a(f"v_xor_b32 {t2}, {t2}, {t1}")
    a(f"v_lshlrev_b32 {t2}, 4, {t2}")
    a(f"v_and_b32 {t3}, 1, {vc}")
    a(f"v_lshl_add_u32 {t2}, {t3}, 3, {t2}")
    a(f"v_add3_u32 {wa[2]}, {t0}, {t2}, 64")
    def w_reads(WFb, step):
        return [f"ds_read_b64_tr_b16 {WFb[m*3+i][2*rd:2*rd+2]}, {wa[i]} offset:{(step % 5) * 12288 + m * 6144 + rd * 768}"
                for m in range(2) for i in range(3) for rd in range(2)]
    def t2b_emit():
        if T2:
            for b0 in eval(OPT['t2b']):
                for l in t2_all(b0): a(l)
                vm.issue('T')
    if OPT['t2pos'] == 1:
        if OPT['sb2']: a("s_barrier")
        t2b_emit()
    if OPT['trim']:
        for l in p2_setup(): a(l)
    n = vm.wait_for(lambda t: t in (('X', 0), ('W', 0)))
    a(f"s_waitcnt vmcnt({n})")
    a("s_barrier")
    stamp(a, 1)
    for l in x_reads(XF[0], 0) + w_reads(WF[0], 0): a(l)
    if OPT['fill'] == 0:
        for l in x_dma(vm, 1, 0) + x_dma(vm, 1, 1) + w_dma(2): a(l)
        if OPT['t2pos'] == 2: t2b_emit()
    fq = []
    for st in range(2, 20):
        if st % 2 == 0:
            b = st // 2
            fq += [('X', b, 0, max(0, 2*(b-3)+1)), ('X', b, 1, max(0, 2*(b-3)+1))]
        fq.append(('W', st, 0, max(0, st - 5)))
    for j in range(20):
        cur, nxt = j & 1, (j & 1) ^ 1
        CHK = OPT['chk']
        NB = OPT['nobar']
        if j < NB:
            n = vm.wait_for(lambda t: t in (('X', (j + 1) // 2), ('W', j + 1)) or (j == CHK and t == 'chk') or (j == 16 and t == 'chk2') or (j == NB - 1 and t[0] in 'XW'))
            a(f"s_waitcnt vmcnt({n}) lgkmcnt(0)")
            if j == CHK: init_check(vchk, 128, True)
            if j == 16: init_check(vS2, 136, True)
            a("s_barrier")
        else:
            a("s_waitcnt lgkmcnt(0)")
        sstamp(a, j)
        mains = [f"v_mfma_f32_16x16x32_bf16 {ACC[c][tt]}, {WF[cur][c]}, {XF[cur][tt]}, {'0' if j == 0 else ACC[c][tt]}" for c in range(6) for tt in range(4)]
        pre = burst(vm, *BS[j]) if j in BS else []
        lblk = []
        if j < 19:
            lblk += x_reads(XF[nxt], j + 1) + w_reads(WF[nxt], j + 1)
            if OPT['fill']:
                cnt = OPT['fill'] + (1 if j == 0 else 0)
                while cnt and fq and fq[0][3] <= j:
                    it = fq.pop(0); cnt -= 1
                    lblk += x_dma(vm, it[1], it[2]) if it[0] == 'X' else w_dma(it[1])
            if j == 0 and not OPT['fill']: lblk += w_dma(3) + x_dma(vm, 2, 0) + x_dma(vm, 2, 1) + w_dma(4)
            xb = (j - 1) // 2 + 3 if j >= 1 else 99
            if xb <= 9 and not OPT['fill']: lblk += x_dma(vm, xb, (j - 1) % 2)
            if T2 and j in eval(OPT['t2f']): lblk += t2_one(*eval(OPT['t2f'])[j])
            if j == CHK - 2: lblk += init_check_issue(vchk); vm.issue('chk')
            if j + 5 <= 19 and not OPT['fill']: lblk += w_dma(j + 5)
            if j == 10 and not OPT['trim']: lblk += p2_setup()
            if j == OPT['pj']: lblk += poison(V(248, 4))
            if OPT['lbt'] and j == OPT['lbt']: LBT = [f"s_bfe_u32 s4, {sC8}, 0x10001", f"s_lshl3_add_u32 s4, s4, {sWV}", f"s_mul_i32 s4, s4, {65*128}", f"s_mul_i32 s5, {sCG}, {74*5120}",
                     "s_add_u32 s4, s4, s5", f"s_add_u32 s4, s4, {BP + 48*5120}", f"v_lshlrev_b32 v3, 7, {lane}", f"buffer_load_dword {tdum}, v3, {rWS}, s4 offen sc1"]
            else: LBT = []
            if j == CHK: hq = b_reg(VmTrack(), 0, 'B') + b_reg(VmTrack(), 1, 'B'); hq = [hq[0:3], hq[3:5], [hq[5]] + hq[6:8], hq[8:10], hq[10:12]]
            JJ = [CHK, CHK + 1, CHK + 2, 15, 18]
            if j in JJ:
                q = JJ.index(j)
                if not hq[q][0].startswith('s_'): lblk.append(f"s_add_u32 s4, {sBo}, {0 if q < 3 else GS_}")
                lblk += hq[q]; vm.issue('B'); vm.issue('B')
            if j == 14: lblk += init_check_issue(vS2, 136); vm.issue('chk2')
            if j == 16: lblk += b_row(vm, sBg, GRP[GL[0]], LR[0], None, 0, True)
            if j == 17: lblk += b_row(vm, sBg, GRP[GL[2]], LR[2], sRX)
        else:
            if OPT['b23'] == 0: lblk += b_reg(vm, 2, 'B') + b_reg(vm, 3, 'B')
            if OPT['b23'] == 2: lblk += b_reg(vm, 2, 'B')
        if j < 19: lblk += LBT
        step_body(mains, lblk, pre)
    stamp(a, 2)
    a(f"s_setprio {OPT['eprio']}")
    sN = S(82, 2)
    a(f"s_mov_b32 {sN[0]}, {NLOG2E:#x}")
    a(f"s_mov_b32 {sN[1]}, {NLOG2E:#x}")
    a(f"s_lshl_b32 {sT3}, {sRB}, 2")
    a(f"s_add_u32 {sT3}, {sT3}, {sRG}")
    a(f"s_mul_i32 {sT0}, {sT3}, 74")
    a(f"s_mul_i32 {sT1}, {sID}, 3")
    a(f"s_add_u32 {sT0}, {sT0}, {sT1}")
    a(f"s_lshl_b32 {sT0}, {sT0}, 12")
    a(f"s_lshl_b32 {sT1}, {sHI}, 13")
    a(f"s_add_u32 {sT1}, {sT0}, {sT1}")
    a(f"s_lshl_b32 {sT2}, {sHI}, 9")
    a(f"s_add_u32 {sT2}, {sT2}, {sT0}")
    a(f"s_add_u32 {sT2}, {sT2}, 4096")
    a(f"s_lshl_b32 {sFLAG}, {sT3}, 7")
    a(f"s_add_u32 {sFLAG}, {sFLAG}, {FH}")
    a(f"v_lshlrev_b32 {t0}, 4, {lane}")
    a(f"v_and_b32 {t1}, 31, {lane}")
    a(f"v_lshlrev_b32 {t1}, 4, {t1}")
    a(f"v_lshrrev_b32 {t2}, 5, {lane}")
    a(f"v_lshl_add_u32 {t1}, {t2}, 10, {t1}")
    tmp = [V(FB[1] + 4 * i, 4) for i in range(2)]
    outs = [V(FB[1] + 8 + 4 * i, 4) for i in range(6)]
    cnt_ = [0]
    def silu2(G0, U0, G1, U1, o):
        GU = ((G0, U0, tmp[0]), (G1, U1, tmp[1]))
        pk = cnt_[0] >= OPT['npk']; cnt_[0] += 1
        for G, U, T in GU:
            if pk:
                for h in range(2): a(f"v_pk_mul_f32 {T[2*h:2*h+2]}, {G[2*h:2*h+2]}, {sN}")
            else:
                for k in range(4): a(f"v_mul_f32 {T[k]}, {sN[0]}, {G[k]}")
        for G, U, T in GU:
            for k in range(4): a(f"v_exp_f32 {T[k]}, {T[k]}")
        for G, U, T in GU:
            if pk:
                for h in range(2): a(f"v_pk_mul_f32 {G[2*h:2*h+2]}, {G[2*h:2*h+2]}, {U[2*h:2*h+2]}")
            else:
                for k in range(4): a(f"v_mul_f32 {G[k]}, {G[k]}, {U[k]}")
        for G, U, T in GU:
            if pk:
                for h in range(2): a(f"v_pk_add_f32 {T[2*h:2*h+2]}, {T[2*h:2*h+2]}, 1.0 op_sel_hi:[1,0]")
            else:
                for k in range(4): a(f"v_add_f32 {T[k]}, 1.0, {T[k]}")
        for G, U, T in GU:
            for k in range(4): a(f"v_rcp_f32 {T[k]}, {T[k]}")
        for G, U, T in GU:
            if pk:
                for h in range(2): a(f"v_pk_mul_f32 {G[2*h:2*h+2]}, {G[2*h:2*h+2]}, {T[2*h:2*h+2]}")
            else:
                for k in range(4): a(f"v_mul_f32 {G[k]}, {G[k]}, {T[k]}")
        for q, (G, U, T) in enumerate(GU):
            for h in range(2): a(f"v_cvt_pk_bf16_f32 {o[2*q+h]}, {G[2*h]}, {G[2*h+1]}")
    for tt in range(4):
        o = outs[tt]
        silu2(ACC[0][tt], ACC[3][tt], ACC[1][tt], ACC[4][tt], o)
        a(f"buffer_store_dwordx4 {o}, {t0}, {rWS}, {sT1} offen offset:{tt*1024} {ST}")
    for l in q_flag_issue(): a(l)
    for tp in range(2):
        o = outs[4 + tp]
        silu2(ACC[2][2*tp], ACC[5][2*tp], ACC[2][2*tp+1], ACC[5][2*tp+1], o)
        a(f"v_permlane32_swap_b32 {o[0]}, {o[2]}")
        a(f"v_permlane32_swap_b32 {o[1]}, {o[3]}")
        a(f"buffer_store_dwordx4 {o}, {t1}, {rWS}, {sT2} offen offset:{tp*2048} {ST}")
    flag_store(35)
    a("s_waitcnt vmcnt(2)")
    a(f"s_mov_b32 {sPF}, 0")
    a("s_branch P2")

    for l in OOL: a(l)
    OOL.clear()
    a.label('R_QKV')
    vm = VmTrack()
    vw = [V(R0), V(R0 + 1), V(R0 + 2)]; wa = V(R0 + 3); pa = V(R0 + 4); vchk = V(R0 + 5); vgw = V(R0 + 6)
    FB = [32, 68]
    XF = [[V(FB[b] + 4 * tt, 4) for tt in range(4)] for b in range(2)]
    WF = [[V(FB[b] + 16 + 4 * c, 4) for c in range(5)] for b in range(2)]
    ACC = [V(104 + 20 * tt, 20) for tt in range(4)]
    pf4 = [V(32 + 4 * i, 4) for i in range(9)] + [V(196, 4)]
    pf2 = [V(200, 2), V(202, 2), V(204, 2), V(206, 2), V(248, 2)]
    PF = [[pf4[2 * t], pf4[2 * t + 1], pf2[t]] for t in range(5)]
    WP = V(184, 4); GWF = V(188, 4); GA = V(192, 4)
    sC0, sC1, sLo, sHi2, sISQ, sHB, sGD = [S(77 + i) for i in range(7)]
    PHW = 135168; PHB = 0; VVB = 90112; PS = 352
    srd(a, rW, pQKV, 640 * 3840)
    srd(a, rA, pPHI, 32 * 800)
    a(f"s_lshl_b32 {sID}, {sT0}, 1"); a(f"s_add_u32 {sID}, {sID}, {sC8}")
    a(f"s_mul_i32 {sC0}, {sID}, 160")
    a(f"s_add_u32 {sC1}, {sC0}, 2560")
    a(f"s_add_u32 {sC0}, {sC0}, 1280")
    a(f"s_lshl_b32 {sHB}, {sID}, 2")
    a(f"s_mul_i32 {sT1}, {sT0}, 320")
    a(f"s_add_u32 {sT2}, {sT1}, 160")
    a(f"s_lshl_b32 {sT3}, {sT0}, 3")
    a(f"s_cmp_eq_u32 {sC8}, 2")
    a(f"s_cselect_b32 {sC0}, {sT1}, {sC0}")
    a(f"s_cselect_b32 {sC1}, {sT2}, {sC1}")
    a(f"s_cselect_b32 {sHB}, {sT3}, {sHB}")
    a(f"s_cselect_b32 {sISQ}, 1, 0")
    a(f"s_bitcmp1_b32 {sWV}, 0")
    a(f"s_cselect_b32 {sLo}, {sC1}, {sC0}")
    a(f"s_cselect_b32 {sHi2}, {sC0}, {sC1}")
    a(f"s_sub_u32 {sHi2}, {sHi2}, 160")
    touch_setup(pQKV, pQKV, 3840, sC0, sC1, 160)
    for l in burst(vm, *BS['p0']): a(l)
    for n in range(3):
        a(f"v_add_u32 {t0}, {64*n}, {lane}")
        a(f"v_mul_u32_u24 {t1}, 205, {t0}")
        a(f"v_lshrrev_b32 {t1}, 12, {t1}")
        a(f"v_mul_u32_u24 {t2}, 20, {t1}")
        a(f"v_sub_u32 {t2}, {t0}, {t2}")
        a(f"v_cmp_le_u32 vcc, 10, {t2}")
        a(f"v_mov_b32 {t3}, {sLo}")
        a(f"v_mov_b32 {t4}, {sHi2}")
        a(f"v_cndmask_b32 {t3}, {t3}, {t4}, vcc")
        a(f"v_mul_u32_u24 {t1}, 3840, {t1}")
        a(f"v_lshl_add_u32 {t1}, {t2}, 4, {t1}")
        a(f"v_add_u32 {vw[n]}, {t1}, {t3}")
        if n: a(f"v_subrev_u32 {vw[n]}, {1024*n}, {vw[n]}")
    a(f"s_mul_i32 {sWK}, {sWV}, {8*3840}")
    a(f"s_mul_i32 {sMW}, {sWV}, 2560")
    sW3 = [S(83), S(9)]
    if OPT['swp']:
        a(f"s_mul_i32 {sT1}, {sTY}, 245760"); a(f"s_add_u32 {sWK}, {sWK}, {sT1}"); a(f"s_lshl_b32 {sT1}, {sT1}, 1")
        a(f"s_sub_u32 {sW3[0]}, 245760, {sT1}"); a(f"s_add_u32 {sW3[1]}, {sT1}, 245760")
    def w_dma2(blk):
        l = [f"s_add_u32 m0, {sMW}, {WB + (blk % 3) * 20480}"] + ([f"s_add_u32 {sWK}, {sWK}, {(sW3[0] if blk % 2 else sW3[1]) if OPT['swp'] else 245760}"] if blk else []) + [
             f"buffer_load_dwordx4 {vw[0]}, {rW}, {sWK} offen {OPT['wfl']} lds",
             f"buffer_load_dwordx4 {vw[1]}, {rW}, {sWK} offen offset:1024 {OPT['wfl']} lds",
             "s_mov_b32 exec_hi, 0\n"
             f"buffer_load_dwordx4 {vw[2]}, {rW}, {sWK} offen offset:2048 {OPT['wfl']} lds\n"
             "s_mov_b32 exec_hi, -1"]
        for _ in range(3): vm.issue(('W', blk))
        return l
    a(f"v_lshlrev_b32 {t0}, 4, {tid}")
    a(f"s_mul_i32 {sT0}, {sHB}, 800")
    a(f"v_add_u32 {t0}, {sT0}, {t0}")
    a(f"buffer_load_dwordx4 {WP}, {t0}, {rA}, 0 offen"); vm.issue(('P', 0))
    if OPT['sb1'] and not OPT['x0e']: a("s_barrier")
    for l in x_dma(vm, 0, 0) + x_dma(vm, 0, 1) + w_dma2(0): a(l)
    x_addr_setup()
    a(f"v_lshl_add_u32 {t0}, {vqd}, 3, {vr}")
    a(f"v_mul_u32_u24 {t0}, 320, {t0}")
    a(f"v_and_b32 {t1}, 1, {vqd}")
    a(f"v_xor_b32 {t1}, {sHI}, {t1}")
    a(f"v_mul_u32_u24 {t1}, 160, {t1}")
    a(f"v_mul_u32_u24 {t2}, 40, {vc}")
    a(f"v_add3_u32 {t0}, {t0}, {t1}, {t2}")
    a(f"v_add_u32 {wa}, {WB}, {t0}")
    a(f"s_and_b32 {sT0}, {sHI}, {sISQ}")
    a(f"s_mul_i32 {sT0}, {sT0}, 3200")
    a(f"s_add_u32 {sT0}, {sT0}, {PHW}")
    a(f"v_mul_u32_u24 {t0}, 800, {vqd}")
    a(f"v_add_u32 {t0}, {sT0}, {t0}")
    a(f"v_mov_b32 {t1}, {ZERO}")
    a(f"v_cmp_eq_u32 vcc, {vc}, {vqd}")
    a(f"v_cndmask_b32 {t0}, {t1}, {t0}, vcc")
    a(f"v_mul_u32_u24 {t1}, 40, {vr}")
    a(f"v_add_u32 {pa}, {t0}, {t1}")
    def w_reads2(WFb, step):
        blk, kk = step // 2, step % 2
        return [f"ds_read_b64_tr_b16 {WFb[t][2*rd:2*rd+2]}, {wa} offset:{(blk % 3) * 20480 + kk * 10240 + rd * 1280 + 8 * t}" for t in range(5) for rd in range(2)]
    def t2b_emit():
        if T2:
            for b0 in eval(OPT['t2b']):
                for l in t2_all(b0): a(l)
                vm.issue('T')
    if OPT['t2pos'] == 1:
        if OPT['sb2']: a("s_barrier")
        t2b_emit()
    if OPT['trim']:
        for l in p2_setup(): a(l)
    n = vm.wait_for(lambda t: t in (('X', 0), ('W', 0)))
    a(f"s_waitcnt vmcnt({n})")
    a("s_barrier")
    stamp(a, 1)
    for l in x_reads(XF[0], 0) + w_reads2(WF[0], 0): a(l)
    if OPT['fill'] == 0:
        for l in x_dma(vm, 1, 0) + x_dma(vm, 1, 1) + w_dma2(1): a(l)
        if OPT['t2pos'] == 2: t2b_emit()
    fq = []
    for b in range(1, 10):
        fq += [('X', b, max(0, 2*(b-3)+1)), ('W', b, max(0, 2*(b-3)+1))]
    for j in range(20):
        cur, nxt = j & 1, (j & 1) ^ 1
        if j % 2 == 1:
            if j < 19:
                n = vm.wait_for(lambda t: t in (('X', (j + 1) // 2), ('W', (j + 1) // 2)) or (j == 17 and t == 'chk'))
                a(f"s_waitcnt vmcnt({n}) lgkmcnt(0)")
            else: a("s_waitcnt lgkmcnt(0)")
            if j == 17: init_check(vchk, 128, True)
            a("s_barrier")
        else:
            a("s_waitcnt lgkmcnt(0)")
            if OPT['pp'] or OPT['qbar']: a("s_barrier")
        sstamp(a, j)
        mains = [f"v_mfma_f32_16x16x32_bf16 {ACC[tt][4*t:4*t+4]}, {WF[cur][t]}, {XF[cur][tt]}, {'0' if j == 0 else ACC[tt][4*t:4*t+4]}" for t in range(5) for tt in range(4)]
        pre = burst(vm, *BS[j]) if j in BS else []
        lblk = []
        if j < 19:
            lblk += x_reads(XF[nxt], j + 1) + w_reads2(WF[nxt], j + 1)
            if OPT['fill']:
                cnt = 2 if j in (0, 1, 3, 5) else 1
                while cnt and fq and fq[0][2] <= j:
                    it = fq.pop(0); cnt -= 1
                    lblk += x_dma(vm, it[1], 0) + x_dma(vm, it[1], 1) if it[0] == 'X' else w_dma2(it[1])
            if j == 0 and not OPT['fill']: lblk += x_dma(vm, 2, 0) + x_dma(vm, 2, 1) + w_dma2(2)
            xb = (j - 1) // 2 + 3 if j >= 1 else 99
            if xb <= 9 and not OPT['fill']:
                if j % 2 == 1: lblk += x_dma(vm, xb, 0) + x_dma(vm, xb, 1)
                else: lblk += w_dma2(xb)
            if T2 and j in eval(OPT['t2q']): lblk += t2_one(*eval(OPT['t2q'])[j])
            if OPT['tw'] and j == 2:
                sh = OPT['tw']; npg = (0x1250000 >> sh) + 1
                lanes = min(64, -(-npg // 32)); ninst = -(-npg // (32 * lanes))
                body = f"s_lshl3_add_u32 s4, {sR4}, {sWV}\ns_mul_i32 s4, s4, {lanes}\nv_add_u32 v3, s4, {lane}\nv_lshlrev_b32 v3, {sh}, v3\ns_mov_b64 exec, {hex((1 << lanes) - 1) if lanes < 32 else -1}\n"
                for i in range(ninst):
                    body += f"buffer_load_dword {tdum}, v3, {rWS}, 0 offen offset:3968\nv_add_u32 v3, {32*lanes << sh}, v3\n"
                body += "s_mov_b64 exec, -1\n"
                OOL.append("TWo:\n" + body + "s_branch TWb")
                lblk += [f"s_cmp_eq_u32 {sC8}, 2\ns_cbranch_scc1 TWo\nTWb:"]
            if j == 15: lblk += init_check_issue(vchk); vm.issue('chk')
            if j == 17:
                lblk += [f"v_lshlrev_b32 {t0}, 4, {tid}", f"v_add_u32 {t0}, {PHW}, {t0}", f"ds_write_b128 {t0}, {WP}"]
            if j == 10 and not OPT['trim']: lblk += p2_setup()
            if j == 17: lblk += poison(V(208, 4))

        else:
            for t in range(5):
                for s in range(3):
                    for r_ in range(2 if s < 2 else 1):
                        lblk.append(f"ds_read_b64_tr_b16 {PF[t][s][2*r_:2*r_+2]}, {pa} offset:{s*320 + r_*160 + t*8}")
        step_body(mains, lblk, pre)
    stamp(a, 2)
    a("s_setprio 2")
    QB = V(68, 40); P = V(108, 20); E = V(128, 40); O = V(168, 20); M = V(250, 4); T = V(188, 4); ONE = V(192, 2)
    sCNT = S(8); sOUT = S(9)
    def cvt_tile(dst, tt):
        for i in range(10): a(f"v_cvt_pk_bf16_f32 {dst[i]}, {ACC[tt][2*i]}, {ACC[tt][2*i+1]}")
    def pk_list(q, P=P):
        l = []
        for s_ in range(3):
            for t in range(5):
                d = P[4*t:4*t+4]
                if s_ < 2: l.append(f"v_mfma_f32_16x16x32_bf16 {d}, {PF[t][s_]}, {q[4*s_:4*s_+4]}, {'0' if s_ == 0 else d}")
                else: l.append(f"v_mfma_f32_16x16x16_bf16 {d}, {PF[t][s_]}, {q[8:10]}, {d}")
        return l
    a(f"s_lshl_b32 {sT3}, {sRB}, 2")
    a(f"s_add_u32 {sT3}, {sT3}, {sRG}")
    a(f"s_cmp_eq_u32 {sISQ}, 0")
    a("s_cbranch_scc1 R_KV")
    for tt in range(4): cvt_tile(QB[10*tt:10*tt+10], tt)
    a("s_waitcnt lgkmcnt(0)")
    PT = [V(108 + 20*i, 20) for i in range(4)]
    a(f"s_lshr_b32 {sT1}, {sHB}, 2")
    a(f"s_add_u32 {sT1}, {sT1}, {sHI}")
    a(f"s_lshl_b32 {sOUT}, {sT3}, 3")
    a(f"s_add_u32 {sOUT}, {sOUT}, {sT1}")
    a(f"s_mul_i32 {sOUT}, {sOUT}, 10240")
    a(f"s_add_u32 {sOUT}, {sOUT}, {PQ}")
    a(f"s_add_u32 {sT0}, {sOUT}, 8192")
    a(f"s_lshl_b32 {sFLAG}, {sT3}, 7")
    a(f"s_add_u32 {sFLAG}, {sFLAG}, {FH + 4}")
    QO = [V(208 + 8*i, 8) for i in range(4)]; QT = [V(240, 4), V(244, 4)]
    def q_out(tt):
        l = [f"v_cvt_pk_bf16_f32 {QO[tt][i] if i < 8 else QT[tt//2][2*(tt%2) + i - 8]}, {PT[tt][2*i]}, {PT[tt][2*i+1]}" for i in range(10)]
        for h in range(2): l.append(f"buffer_store_dwordx4 {QO[tt][4*h:4*h+4]}, {vo if tt < 2 else vo4}, {rWS}, {sOUT} offen offset:{(tt%2)*2048 + h*1024} {ST}")
        if tt % 2: l.append(f"buffer_store_dwordx4 {QT[tt//2]}, {vo}, {rWS}, {sT0} offen offset:{(tt//2)*1024} {ST}")
        return l
    for tt in range(4):
        side = q_out(tt - 1) if tt else []
        for i, l in enumerate(pk_list(QB[10*tt:10*tt+10], PT[tt])):
            a(l)
            if i >= 2 and side: a(side.pop(0))
    for l in q_out(3): a(l)
    if OPT['gq']:
        GW = [V(72 + 4*i, 4) for i in range(5)]
        GX = [[V(96 + (g*5 + i)*4, 4) for i in range(5)] for g in range(2)]
        GA = [V(92), V(93)]
        srd(a, rW, pGW, 1280)
        a(f"v_lshlrev_b32 {t0}, 4, {vl15}")
        for i in range(5): a(f"buffer_load_dwordx4 {GW[i]}, {t0}, {rW}, 0 offen offset:{i*256}")
        a(f"v_mul_u32_u24 {t1}, 1280, {vqd}"); a(f"v_add_u32 {t0}, {t0}, {t1}")
        a(f"s_lshr_b32 {sT3}, {sHB}, 3"); a(f"s_lshl2_add_u32 {sT3}, {sRB}, {sT3}")
        a(f"s_lshl3_add_u32 {sT1}, {sT3}, {sWV}")
        a(f"s_mul_i32 {sT2}, {sT1}, {8*1280}")
        for g in range(2):
            for i in range(5): a(f"buffer_load_dwordx4 {GX[g][i]}, {t0}, {rX}, {sT2} offen offset:{i*256}")
            if g == 0: a(f"s_add_u32 {sT2}, {sT2}, {4*1280}")
        for g in range(2): a(f"v_mov_b32 {GA[g]}, 0")
        arrive(a, sFLAG, 7, t2, t3, 15)
        for i in range(5):
            for k in range(4):
                for g in range(2): a(f"v_dot2c_f32_bf16 {GA[g]}, {GX[g][i][k]}, {GW[i][k]}")
        for sh in (8, 4, 2, 1):
            for g in range(2): a(f"v_add_f32_dpp {GA[g]}, {GA[g]}, {GA[g]} row_ror:{sh} row_mask:0xf bank_mask:0xf")
        a(f"v_cmp_eq_u32 vcc, 1, {vl15}"); a(f"v_cndmask_b32 {t2}, {GA[0]}, {GA[1]}, vcc")
        a(f"v_mul_f32 {t2}, {LOG2E:#x}, {t2}"); a(f"v_min_f32 {t2}, 0x42a00000, {t2}"); a(f"v_exp_f32 {t2}, {t2}")
        a(f"v_lshl_add_u32 {t0}, {vl15}, 2, {vqd}"); a(f"v_lshlrev_b32 {t3}, 2, {t0}")
        a(f"s_lshl_b32 {sT2}, {sT1}, 5"); a(f"s_add_u32 {sT2}, {sT2}, {GOFF}")
        a("s_mov_b32 exec_lo, 0x00030003"); a("s_mov_b32 exec_hi, 0x00030003")
        a(f"buffer_store_dword {t2}, {t3}, {rWS}, {sT2} offen {ST}")
        a("s_mov_b64 exec, -1")
        a(f"s_lshl_b32 {sFLAG}, {sT3}, 7"); a(f"s_add_u32 {sFLAG}, {sFLAG}, {FH + 12}")
    flag_store(7)
    a(f"v_mov_b32 {vFQ}, 0")
    a(f"s_mov_b32 {sPF}, 6")
    a("s_branch P2")
    a.label('R_KV')
    a(f"s_lshl_b32 {sT1}, {sRG}, 1"); a(f"s_add_u32 {sT0}, {sT1}, 1"); a(f"s_mul_i32 {sT0}, {sT0}, {32*PS}")
    a(f"v_add_u32 {t0}, {sT0}, {vo}")
    a(f"s_mov_b32 {sCNT}, 2")
    a(f"s_cmp_eq_u32 {sHI}, 1")
    a("s_cbranch_scc1 R_V")
    if OPT['trim']:
        cvt_tile(QB[0:10], 0)
        cvt_tile(QB[20:30], 2); cvt_tile(QB[30:40], 3)
        a("s_waitcnt lgkmcnt(0)")
        for i in range(5): a(f"ds_write_b128 {t0}, {QB[20+4*i:24+4*i]} offset:{i*1024}")
        cv = [f"v_cvt_pk_bf16_f32 {QB[10+i]}, {ACC[1][2*i]}, {ACC[1][2*i+1]}" for i in range(10)]
        a(cv.pop(0)); a(cv.pop(0))
        for i, l in enumerate(pk_list(QB[0:10])):
            a(l)
            if cv: a(cv.pop(0))
            if i == 8: a("s_waitcnt lgkmcnt(0)"); a("s_barrier")
    else:
        cvt_tile(QB[0:10], 0)
        cvt_tile(QB[20:30], 2); cvt_tile(QB[30:40], 3)
        for i in range(5): a(f"ds_write_b128 {t0}, {QB[20+4*i:24+4*i]} offset:{i*1024}")
        cvt_tile(QB[10:20], 1)
        a("s_waitcnt lgkmcnt(0)")
        a("s_barrier")
        for l in pk_list(QB[0:10]): a(l)
    a("s_branch R_KV2")
    a.label('R_V')
    VBt = {3: V(88, 10), 0: V(98, 10), 1: V(168, 10), 2: V(178, 10)}
    for tt in (3, 0, 1, 2): cvt_tile(VBt[tt], tt)
    a(f"s_mul_i32 {sT2}, {sRG}, {64*176}")
    a(f"s_add_u32 {sT2}, {sT2}, {VVB}")
    a(f"v_mul_u32_u24 {t2}, 176, {vl15}")
    a(f"v_add_u32 {t1}, {sT2}, {t2}")
    a(f"v_mul_u32_u24 {t3}, 40, {vqd}")
    a(f"v_add_u32 {t2}, {t1}, {t3}")
    a(f"v_mov_b32 {ONE[0]}, 0x3f80")
    a(f"v_mov_b32 {ONE[1]}, 0")
    a("s_barrier")
    for i in range(5): a(f"ds_read_b128 {QB[4*i:4*i+4]}, {t0} offset:{i*1024}")
    side = []
    for tt in (3, 0, 1, 2):
        for i in range(5): side.append(f"ds_write_b64 {t2}, {VBt[tt][2*i:2*i+2]} offset:{tt*2816 + 8*i}")
        side.append(f"ds_write_b64 {t1}, {ONE} offset:{tt*2816 + 160}")
    for i in range(9): a(side.pop(0))
    a("s_waitcnt lgkmcnt(9)")
    for l in pk_list(QB[0:10]): a(l); a(side.pop(0))
    a.label('R_KV2')
    a(f"s_add_u32 {sT1}, {sT1}, {sHI}"); a(f"s_mul_i32 {sT1}, {sT1}, {32*PS}")
    a(f"v_mul_u32_u24 {t4}, {PS}, {vl15}")
    a(f"v_mul_u32_u24 {t3}, 80, {vqd}")
    a(f"v_add3_u32 {t4}, {t4}, {t3}, {sT1}")
    stamp(a, 12)
    for u in range(2):
        if u == 0:
            bl = b_reg(vm, 0, 'B') + b_reg(vm, 1, 'B'); pl = pk_list(QB[10:20])
            sd = [pl[i] + ("\n" + bl[i] if i < len(bl) else "") for i in range(15)]
        else: sd = b_reg(vm, 2, 'B') + b_reg(vm, 3, 'B')
        softmax_unit(a, P, E, M, T, O, sd + ["s_waitcnt lgkmcnt(0)"])
        for s_ in range(5): a(f"ds_write_b128 {t4}, {O[4*s_:4*s_+4]} offset:{PHB + u*16*PS + 16*s_}")
    a(f"v_lshl_add_u32 {t0}, {vqd}, 2, {vr}")
    a(f"v_mul_u32_u24 {t1}, {PS}, {t0}")
    a(f"s_mul_i32 {sT0}, {sRG}, 80")
    a(f"v_lshl_add_u32 {t1}, {vc}, 3, {t1}")
    a(f"v_add_u32 {t1}, {sT0}, {t1}")
    a(f"v_add_u32 {t2}, {128*PS}, {t1}")
    a(f"v_mul_u32_u24 {t0}, 176, {t0}")
    a(f"s_mul_i32 {sT0}, {sRG}, 40")
    a(f"s_mul_i32 {sT1}, {sHI}, 24")
    a(f"s_add_u32 {sT0}, {sT0}, {sT1}")
    a(f"v_lshl_add_u32 {t3}, {vc}, 3, {sT0}")
    a(f"v_mul_u32_u24 {t4}, {sHI}, {vc}")
    a(f"v_cmp_lt_u32 vcc, 1, {t4}")
    a(f"v_mov_b32 {t4}, 160")
    a(f"v_cndmask_b32 {t3}, {t3}, {t4}, vcc")
    a(f"v_add_u32 {t3}, {VVB}, {t3}")
    a(f"v_add_u32 {t3}, {t0}, {t3}")
    stamp(a, 13)
    a("s_waitcnt lgkmcnt(0)")
    a("s_barrier")
    stamp(a, 14)
    a(f"s_lshl_b32 {sFLAG}, {sID}, 7"); a(f"s_add_u32 {sFLAG}, {sFLAG}, {FK}")
    def k_hint():
        a("v_mov_b32 v29, 1"); a("v_mov_b32 v11, 0")
        a(f"s_cmp_lg_u32 {sWV}, 7"); a("s_cbranch_scc1 KH1")
        a("s_mov_b64 exec, 1"); a(f"buffer_atomic_add v29, v11, {rWS}, {sFLAG} offen sc0 sc1"); a("s_mov_b64 exec, -1")
        a.label('KH1')
    if OPT['kh'] == 0: k_hint()
    for l in q_flag_issue(): a(l)
    KA = [[V(72 + (b*4 + f)*4, 4) for f in range(4)] for b in range(3)]
    KD = [V(128 + 4*f, 4) for f in range(3)]
    def kv_reads(b, s):
        l = []
        for rd in range(2):
            l.append(f"ds_read_b64_tr_b16 {KA[b][3][2*rd:2*rd+2]}, {t3} offset:{s*5632 + rd*2816}")
        for f in range(3):
            for rd in range(2):
                l.append(f"ds_read_b64_tr_b16 {KA[b][f][2*rd:2*rd+2]}, {t1 if s < 4 else t2} offset:{(s % 4)*32*PS + rd*16*PS + f*32}")
        return l
    allr = [l for s in range(8) for l in kv_reads(s % 3, s)]
    pos = 0
    for s in range(8):
        for f in range(3):
            needr = s * 8 + 2 + 2 * (f + 1)
            lim = min(len(allr), needr + 12, (s + 2) * 8 + (2 + 2 * f if False else 0) + 8 - 8 + 0) if False else min(len(allr), needr + 12)
            lim = min(lim, (s + 3) * 8)
            while pos < lim: a(allr[pos]); pos += 1
            a(f"s_waitcnt lgkmcnt({pos - needr})")
            a(f"v_mfma_f32_16x16x32_bf16 {KD[f]}, {KA[s%3][f]}, {KA[s%3][3]}, {'0' if s == 0 else KD[f]}")
    stamp(a, 15)
    a(f"s_add_u32 {sT0}, {sHB}, {sRG}")
    a(f"s_lshl_b32 {sT0}, {sT0}, 1")
    a(f"s_add_u32 {sT0}, {sT0}, {sHI}")
    a(f"s_mul_i32 {sT0}, {sT0}, 3072")
    a(f"s_add_u32 {sT0}, {sT0}, {KVACC}")
    if OPT['kh'] == 1: k_hint()
    def k_go(n):
        a(f"s_cmp_lg_u32 {sWV}, 7"); a("s_cbranch_scc1 KH2")
        a(f"s_waitcnt vmcnt({n})")
        a("v_cmp_eq_u32 vcc, 7, v29"); a(f"s_add_u32 s4, {sFLAG}, {GOD}"); a("s_and_b64 exec, vcc, 1")
        a(f"buffer_store_dword v29, v11, {rWS}, s4 offen sc1"); a("s_mov_b64 exec, -1")
        a.label('KH2')
    if OPT['kh'] == 0: k_go(0)
    a(f"v_lshlrev_b32 {t2}, 2, {lane}")
    a(f"v_cmp_eq_u32 vcc, 15, {vl15}")
    for f in range(3):
        for j in range(4): a(f"v_cndmask_b32 {KD[f][j]}, {KD[f][j]}, 1.0, vcc")
    for f in range(3):
        if f == 2: a("s_mov_b32 exec_hi, 0")
        for j in range(4):
            a(f"buffer_atomic_add_f32 {KD[f][j]}, {t2}, {rWS}, {sT0} offen offset:{f*1024 + j*256} {OPT['atf']}")
    a("s_mov_b32 exec_hi, -1")
    if OPT['kh'] == 1: k_go(12)
    a("s_waitcnt vmcnt(12)")
    flag_store(-1)
    a(f"s_mov_b32 {sPF}, 4")
    a("s_branch P2")

    for l in OOL: a(l)
    OOL.clear()
    a.label('R_SPARE')
    sSP, sU, sSO, sST = S(77), S(78), S(79), S(80)
    va = Alloc('v', 176, 250)
    vf = [va() for _ in range(5)]; vat = [va() for _ in range(5)]
    rf = [va() for _ in range(5)]; rat = [va(), va()]
    vst = va(); vst4 = va()
    FR = [[va(4) for _ in range(5)] for b in range(2)]
    Z4 = va(4)
    NT = OPT['spnt']
    if T2:
        for b0 in eval(OPT['t2b']):
            for l in t2_all(b0): a(l)
    srd(a, rA, pWD, 1728 * 1280)
    srd(a, rB, pWO, 640 * 1280)
    a(f"s_lshr_b32 {sSP}, {sT0}, 1")
    a(f"s_lshl_b32 {sSP}, {sSP}, 3")
    a(f"s_add_u32 {sSP}, {sSP}, {sRB}")
    a(f"s_lshl_b32 {sT0}, {sWV}, 2")
    a(f"s_mul_i32 {sT1}, {sWV}, 20")
    for n in range(5):
        a(f"v_add_u32 {t0}, {64*n}, {lane}")
        a(f"v_mul_u32_u24 {t1}, 205, {t0}")
        a(f"v_lshrrev_b32 {t1}, 14, {t1}")
        a(f"v_mul_u32_u24 {t2}, 80, {t1}")
        a(f"v_sub_u32 {t2}, {t0}, {t2}")
        a(f"v_add_u32 {t1}, {sT0}, {t1}")
        a(f"v_and_b32 {t3}, 7, {t1}")
        a(f"v_lshlrev_b32 {t3}, 1, {t3}")
        a(f"v_xor_b32 {t2}, {t2}, {t3}")
        a(f"v_mul_u32_u24 {t1}, 1280, {t1}")
        a(f"v_lshl_add_u32 {vf[n]}, {t2}, 4, {t1}")
        if n % 4: a(f"v_subrev_u32 {vf[n]}, {1024*(n%4)}, {vf[n]}")
    a(f"s_mul_i32 {sM}, {sWV}, 5120")
    def u_dma(buf, typ):
        if typ == 'F':
            a(f"s_mul_i32 {sSO}, {sU}, 40960")
            vv, rr = vf, rA
        else:
            a(f"s_sub_u32 {sT2}, {sU}, 54")
            a(f"s_mul_i32 {sT3}, {sT2}, 52")
            a(f"s_lshr_b32 {sT3}, {sT3}, 8")
            a(f"s_mul_i32 {sSO}, {sT3}, {160*1280 - 5*256}")
            a(f"s_lshl_b32 {sT2}, {sT2}, 8")
            a(f"s_add_u32 {sSO}, {sSO}, {sT2}")
            vv, rr = vat, rB
        a(f"s_add_u32 m0, {sM}, {buf*40960}")
        for n in range(4):
            a(f"buffer_load_dwordx4 {vv[n]}, {rr}, {sSO} offen offset:{n*1024} {NT} lds")
        a(f"s_add_u32 m0, {sM}, {buf*40960 + 4096}")
        a(f"buffer_load_dwordx4 {vv[4]}, {rr}, {sSO} offen {NT} lds")
    def dyn(it, fn):
        if it == 4:
            a(f"s_add_u32 {sU}, {sSP}, 64"); a(f"s_min_u32 {sU}, {sU}, 73"); fn('A'); return
        a(f"s_add_u32 {sU}, {sSP}, {16*it}")
        if it <= 2: fn('F')
        else:
            l1, l2 = a.newlabel('SP'), a.newlabel('SP')
            a(f"s_cmp_ge_u32 {sU}, 54"); a(f"s_cbranch_scc1 {l1}")
            fn('F'); a(f"s_branch {l2}"); a.label(l1); fn('A'); a.label(l2)
    for it in range(3): dyn(it, lambda typ: u_dma(it, typ))
    a(f"v_lshlrev_b32 {t0}, 4, {tid}")
    for i in range(4): a(f"v_mov_b32 {Z4[i]}, 0")
    a(f"s_mul_i32 {sT2}, {sSP}, 13568")
    a(f"s_add_u32 {sT2}, {sT2}, {KVACC}")
    a(f"buffer_store_dwordx4 {Z4}, {t0}, {rWS}, {sT2} offen {ST}")
    a(f"s_add_u32 {sT2}, {sT2}, {13568 - 8192}")
    a(f"buffer_store_dwordx4 {Z4}, {t0}, {rWS}, {sT2} offen {ST}")
    for n in range(5):
        a(f"v_add_u32 {t1}, {4*n}, {vqd}")
        a(f"v_add_u32 {t1}, {sT1}, {t1}")
        a(f"v_and_b32 {t3}, 7, {t1}")
        a(f"v_lshlrev_b32 {t3}, 1, {t3}")
        a(f"v_xor_b32 {t2}, {vl15}, {t3}")
        a(f"v_mul_u32_u24 {t1}, 1280, {t1}")
        a(f"v_lshl_add_u32 {vat[n]}, {t2}, 4, {t1}")
        if n % 4: a(f"v_subrev_u32 {vat[n]}, {1024*(n%4)}, {vat[n]}")
    a(f"v_lshl_add_u32 {t0}, {vqd}, 2, {vr}")
    a(f"v_and_b32 {t1}, 7, {t0}")
    a(f"v_lshlrev_b32 {t1}, 1, {t1}")
    a(f"v_mul_u32_u24 {t0}, 1280, {t0}")
    a(f"v_and_b32 {t2}, 1, {vc}")
    a(f"v_lshl_add_u32 {t0}, {t2}, 3, {t0}")
    a(f"v_lshrrev_b32 {t3}, 1, {vc}")
    a(f"s_mul_i32 {sT0}, {sWV}, 10")
    a(f"v_add_u32 {t4}, {sT0}, {t3}")
    for j in range(5):
        a(f"v_add_u32 {rf[j]}, {2*j}, {t4}")
        a(f"v_xor_b32 {rf[j]}, {rf[j]}, {t1}")
        a(f"v_lshl_add_u32 {rf[j]}, {rf[j]}, 4, {t0}")
    a(f"v_mul_u32_u24 {t0}, 20, {vqd}")
    a(f"v_add_u32 {t0}, {t0}, {vr}")
    a(f"v_lshlrev_b32 {t0}, 8, {t0}")
    a(f"v_lshl_add_u32 {t0}, {t2}, 3, {t0}")
    a(f"s_lshl_b32 {sT0}, {sWV}, 1")
    a(f"v_add_u32 {t4}, {sT0}, {t3}")
    a(f"v_xor_b32 {t4}, {t4}, {t1}")
    a(f"v_lshl_add_u32 {rat[0]}, {t4}, 4, {t0}")
    a(f"v_xor_b32 {rat[1]}, 128, {rat[0]}")
    a(f"v_lshlrev_b32 {vst}, 4, {lane}")
    a(f"v_add_u32 {vst4}, 4096, {vst}")
    def u_proc(buf, typ, F):
        if typ == 'F':
            for j in range(5):
                a(f"v_add_u32 {t0}, {buf*40960}, {rf[j]}")
                for rd in range(2):
                    a(f"ds_read_b64_tr_b16 {F[j][2*rd:2*rd+2]}, {t0} offset:{rd*20480}")
            a(f"s_lshl3_add_u32 {sST}, {sU}, {sWV}")
            a(f"s_mul_i32 {sST}, {sST}, 5120")
            a(f"s_add_u32 {sST}, {sST}, {BP}")
            a("s_waitcnt lgkmcnt(0)")
            for j in range(5):
                if j < 4: a(f"buffer_store_dwordx4 {F[j]}, {vst}, {rWS}, {sST} offen offset:{j*1024} {ST}")
                else: a(f"buffer_store_dwordx4 {F[j]}, {vst4}, {rWS}, {sST} offen {ST}")
        else:
            bases = [(0, 4), (8, 12), (16, 96), (80, 84), (88, 92)]
            a(f"v_add_u32 {t0}, {buf*40960}, {rat[0]}")
            a(f"v_add_u32 {t1}, {buf*40960}, {rat[1]}")
            a(f"v_lshrrev_b32 {t4}, 1, {vqd}"); a(f"v_mul_u32_u24 {t4}, {40*256}, {t4}"); a(f"v_add_u32 {t4}, {t4}, {t0}")
            for s5 in range(5):
                for rd in range(2):
                    b = bases[s5][rd]
                    if s5 == 2: a(f"ds_read_b64_tr_b16 {F[s5][2*rd:2*rd+2]}, {t4} offset:{(16 + 40*rd)*256}")
                    else: a(f"ds_read_b64_tr_b16 {F[s5][2*rd:2*rd+2]}, {t1 if b % 8 else t0} offset:{b*256}")
            a(f"s_sub_u32 {sT2}, {sU}, 54")
            a(f"s_mul_i32 {sT3}, {sT2}, 52")
            a(f"s_lshr_b32 {sT3}, {sT3}, 8")
            a(f"s_mul_i32 {sT0}, {sT3}, 5")
            a(f"s_sub_u32 {sT2}, {sT2}, {sT0}")
            a(f"s_lshl_b32 {sT2}, {sT2}, 3")
            a(f"s_add_u32 {sT2}, {sT2}, {sWV}")
            a(f"s_mul_i32 {sT1}, {sT2}, 52")
            a(f"s_lshr_b32 {sT1}, {sT1}, 8")
            a(f"s_mul_i32 {sST}, {sT1}, 5")
            a(f"s_sub_u32 {sT2}, {sT2}, {sST}")
            a(f"s_add_u32 {sST}, {sT0}, 54")
            a(f"s_lshl3_add_u32 {sST}, {sST}, {sT1}")
            a(f"s_mul_i32 {sST}, {sST}, 5120")
            a(f"s_lshl_b32 {sT2}, {sT2}, 10")
            a(f"s_add_u32 {sST}, {sST}, {sT2}")
            a(f"s_add_u32 {sST}, {sST}, {BP}")
            a("s_waitcnt lgkmcnt(0)")
            for s5 in range(5):
                a(f"buffer_store_dwordx4 {F[s5]}, {vst}, {rWS}, {sST} offen {ST}")
                if s5 < 4: a(f"s_add_u32 {sST}, {sST}, {BS_}")
    vm = VmTrack()
    for t in ['D0']*5 + ['D1']*5 + ['D2']*5 + ['Z']*2: vm.issue(t)
    def sp_signal(k):
        lsk = a.newlabel('SPD')
        a(f"s_cmp_lg_u32 {sWV}, 7"); a(f"s_cbranch_scc1 {lsk}")
        a(f"v_mov_b32 {t2}, 0"); a(f"v_mov_b32 {t3}, 1")
        a("s_mov_b64 exec, 1")
        a(f"buffer_atomic_add {t3}, {t2}, {rDBG}, 0 offen offset:{4*k} sc0 sc1")
        a("s_waitcnt vmcnt(0)")
        a(f"v_cmp_eq_u32 vcc, 15, {t3}")
        a("s_and_b64 exec, exec, vcc")
        a(f"buffer_store_dword {t3}, {t2}, {rDBG}, 0 offen offset:{128 + 4*k} sc1")
        a("s_mov_b64 exec, -1")
        a.label(lsk)
    for it in range(5):
        n = vm.wait_for(lambda t: t == f'D{it}' or (it == 3 and t == 'S2') or (it == 2 and t == 'S1'))
        a(f"s_waitcnt vmcnt({n})")
        a("s_barrier")
        if it == 2: sp_signal(0); stamp(a, 1)
        if it == 3: sp_signal(2)
        dyn(it, lambda typ: u_proc(it % 3, typ, FR[it & 1]))
        for _ in range(5): vm.issue(f'S{it}')
        if it == OPT['t2si'] and T2 and OPT['t2s']:
            a(f"s_and_b32 s4, {sWV}, 1"); a(f"s_lshl1_add_u32 s4, {sSP}, s4"); a("s_lshl_b32 s4, s4, 6"); a("s_mul_i32 s4, s4, s5")
            a(f"s_mul_i32 s6, {sBK}, {OPT['t2s']}"); a("s_add_u32 s4, s4, s6")
            a(f"v_add_u32 v21, s4, {vt1}")
            a(f"buffer_load_dword {tdum}, v21, {rTT}, 0 offen"); vm.issue('T')
        if it in (1, 2):
            dyn(it + 2, lambda typ: u_dma(it - 1, typ))
            for _ in range(5): vm.issue(f'D{it+2}')
    a("s_waitcnt vmcnt(0)")
    a("s_barrier")
    sp_signal(1)
    stamp(a, 2)
    if OPT['gq']:
        init_poll(a, t1, 128); flag_store(-1)
    else:
        GW = [V(72 + 4*i, 4) for i in range(5)]
        GX = [[V(96 + (g*5 + i)*4, 4) for i in range(5)] for g in range(4)]
        GA = [V(92 + g) for g in range(4)]
        srd(a, rW, pGW, 1280)
        a(f"v_lshlrev_b32 {t0}, 4, {vl15}")
        for i in range(5): a(f"buffer_load_dwordx4 {GW[i]}, {t0}, {rW}, 0 offen offset:{i*256}")
        a(f"v_mul_u32_u24 {t1}, 1280, {vqd}")
        a(f"v_add_u32 {t0}, {t0}, {t1}")
        a(f"s_lshl_b32 {sT3}, {sSP}, 3")
        a(f"s_add_u32 {sT3}, {sT3}, {sWV}")
        a(f"s_mul_i32 {sT2}, {sT3}, {16*1280}")
        for g in range(4):
            for i in range(5): a(f"buffer_load_dwordx4 {GX[g][i]}, {t0}, {rX}, {sT2} offen offset:{i*256}")
            if g < 3: a(f"s_add_u32 {sT2}, {sT2}, {4*1280}")
        for g in range(4): a(f"v_mov_b32 {GA[g]}, 0")
        init_poll(a, t1, 128)
        for i in range(5):
            for k in range(4):
                for g in range(4): a(f"v_dot2c_f32_bf16 {GA[g]}, {GX[g][i][k]}, {GW[i][k]}")
        for sh in (8, 4, 2, 1):
            for g in range(4): a(f"v_add_f32_dpp {GA[g]}, {GA[g]}, {GA[g]} row_ror:{sh} row_mask:0xf bank_mask:0xf")
        for g in range(4): a(f"v_mul_f32 {GA[g]}, {LOG2E:#x}, {GA[g]}")
        for g in range(4): a(f"v_min_f32 {GA[g]}, 0x42a00000, {GA[g]}")
        for g in range(4): a(f"v_exp_f32 {GA[g]}, {GA[g]}")
        a(f"v_mov_b32 {t2}, {GA[0]}")
        for g in range(1, 4):
            a(f"v_cmp_eq_u32 vcc, {g}, {vl15}"); a(f"v_cndmask_b32 {t2}, {t2}, {GA[g]}, vcc")
        a(f"v_lshl_add_u32 {t0}, {vl15}, 2, {vqd}")
        a(f"v_lshlrev_b32 {t3}, 2, {t0}")
        a(f"s_lshl_b32 {sT2}, {sT3}, 6"); a(f"s_add_u32 {sT2}, {sT2}, {GOFF}")
        a("s_mov_b32 exec_lo, 0x000f000f"); a("s_mov_b32 exec_hi, 0x000f000f")
        a(f"buffer_store_dword {t2}, {t3}, {rWS}, {sT2} offen {ST}")
        a("s_mov_b64 exec, -1")
        a(f"s_lshr_b32 {sFLAG}, {sT3}, 2"); a(f"s_lshl_b32 {sFLAG}, {sFLAG}, 7"); a(f"s_add_u32 {sFLAG}, {sFLAG}, {FH + 12}")
        flag_store(3)
    a(f"v_mov_b32 {vFQ}, 0")

    vm = VmTrack()
    a(f"s_mov_b32 {sPF}, 7")
    a.label('P2')
    stamp(a, 3)
    a(f"s_bitcmp0_b32 {sPF}, 0"); a("s_cbranch_scc1 P2_E1")
    for l in p2_setup() + poison(V(208, 4)): a(l)
    a.label('P2_E1')
    vG = V(16, 4); vz = V(11); ka = V(12); kw = V(13); vbl = V(15); vcn = V(14)
    ACC = [[V(72 + (tt * 5 + j) * 4, 4) for j in range(5)] for tt in range(4)]
    ARl = [V(152 + 4 * i, 4) for i in range(14)] + [V(248, 4), V(24, 4)]
    AR = [ARl[4*b:4*b+4] for b in range(4)]
    sFHo = S(78)
    rOUT = rX
    INP2[0] = True
    if OPT['noa'] == 1 or OPT['nob']: srd(a, rA, pWS, 0)
    a(f"v_mov_b32 {vz}, 0")
    a(f"v_mov_b32 {vcn}, {CNT}")
    a(f"v_add_u32 {vbl}, {sLC}, {vo}")
    vbl2 = V(23)
    a(f"v_add_u32 {vbl2}, {3*20480}, {vbl}")
    def lrow(row, j):
        return (vbl, row*20480 + j*1024) if row < 3 else (vbl2, (row-3)*20480 + j*1024)
    CG_ = {4:3, 5:4, 6:0, 7:1, 8:2} if OPT['gf'] & 2 else {4:0, 5:1, 6:2, 7:3, 8:4}
    def a_loads(i, tag, vts=None, r=None):
        b = i % 4; r = r or rWS
        if OPT['noa'] == 1: r = rA
        if OPT['noa'] == 3: return []
        if OPT['noa'] == 2: return [f"s_mov_b32 {sT0}, {sAo}"] + [(f"buffer_load_dwordx4 {AR[b][tt]}, {vo}, {r}, {sT0} offen offset:{tt*1024} {LD}", vm.issue(tag))[0] for tt in range(4)]
        l = [f"s_add_u32 {sT0}, {sAo}, {((i*16384 if i < 4 else CA0 + CG_[i]*16384) if vts else GRP[i]*16384)}"]
        for tt in range(4):
            if vts: l.append(f"buffer_load_dwordx4 {AR[b][tt]}, {vts[tt]}, {r}, {sT0} offen {LD}")
            else: l.append(f"buffer_load_dwordx4 {AR[b][tt]}, {vo}, {r}, {sT0} offen offset:{tt*1024} {LD}")
            vm.issue(tag)
        return l
    def b_fromlds(i, row):
        return ["ds_read_b128 %s, %s offset:%d" % ((BR[i % 4][j],) + lrow(row, j)) for j in range(5)]
    def mm(b, zero, side=[], every=2):
        side = list(side)
        for j in range(5):
            for tt in range(4):
                d = ACC[tt][j]
                a(f"v_mfma_f32_16x16x32_bf16 {d}, {BR[b][j]}, {AR[b][tt]}, {'0' if tt in zero else d}")
                while side and side[0].startswith('s_'): a(side.pop(0))
                if side and tt % every == every - 1: a(side.pop(0))
        for l in side: a(l)
    def g_load():
        a(f"s_lshl_b32 {sT0}, {sR6}, 8"); a(f"s_add_u32 {sT0}, {sT0}, {GOFF}")
        a(f"v_lshlrev_b32 {t0}, 4, {vl15}")
        a(f"buffer_load_dwordx4 {vG}, {t0}, {rWS}, {sT0} offen {LD}")
    def lds_signal(off):
        a(f"v_mov_b32 {t1}, 1")
        a("s_waitcnt lgkmcnt(0)")
        a("s_mov_b64 exec, 1")
        a(f"ds_add_u32 {vcn}, {t1} offset:{off}")
        a("s_mov_b64 exec, -1")
    def lds_wait(off, n):
        L = a.newlabel('LW')
        a.label(L)
        a(f"ds_read_b32 {t1}, {vcn} offset:{off}")
        a("s_waitcnt lgkmcnt(0)")
        a(f"v_readfirstlane_b32 {sT0}, {t1}")
        a(f"s_cmp_ge_u32 {sT0}, {n}")
        a(f"s_cbranch_scc1 {L}d")
        a("s_sleep 1")
        a(f"s_branch {L}")
        a.label(L + 'd')
    vAT = V(29); vFG = V(28)
    PB = V(176, 12); PU = V(152, 20)
    def pq_loads():
        a(f"s_lshl3_add_u32 {sT0}, {sR6}, {sCG}")
        a(f"s_mul_i32 {sT0}, {sT0}, 10240"); a(f"s_add_u32 {sT0}, {sT0}, {PQ}")
        a(f"s_lshl_b32 {sT1}, {sRG}, 11"); a(f"s_add_u32 {sT1}, {sT1}, {sT0}")
        for h in range(2): a(f"buffer_load_dwordx4 {PB[4*h:4*h+4]}, {vo}, {rWS}, {sT1} offen offset:{h*1024} {LD}")
        a(f"s_lshr_b32 {sT1}, {sRG}, 1"); a(f"s_lshl_b32 {sT1}, {sT1}, 10"); a(f"s_add_u32 {sT0}, {sT0}, {sT1}")
        a(f"s_and_b32 {sT1}, {sRG}, 1"); a(f"s_lshl3_add_u32 {sT0}, {sT1}, {sT0}"); a(f"s_add_u32 {sT0}, {sT0}, 8192")
        a(f"buffer_load_dwordx2 {PB[8:10]}, {vo}, {rWS}, {sT0} offen {LD}")
    sQF = S(83)
    a(f"v_readfirstlane_b32 {sQF}, {vFQ}")
    a(f"s_cmp_eq_u32 {sHI}, 1"); a(f"s_cselect_b32 {sQF}, 0, {sQF}")
    a(f"s_cmp_eq_u32 {sQF}, 0"); a("s_cbranch_scc1 P2_NQ")
    pq_loads()
    a.label('P2_NQ')
    a(f"buffer_load_dword {vS2}, {vz}, {rDBG}, 0 offen offset:132 sc1")
    a(f"v_mov_b32 {vAT}, 1"); a(f"v_mov_b32 {t1}, 1")
    B3 = OPT['b23'] == 3
    if B3:
        a(f"s_cmp_lg_u32 {sPF}, 0"); a("s_cbranch_scc1 P2_D0")
        for l in b_reg(vm, 2, 'B'): a(l)
        a("s_waitcnt vmcnt(5) lgkmcnt(0)")
        a("s_branch P2_D1")
        a.label('P2_D0')
    a("s_waitcnt vmcnt(0) lgkmcnt(0)")
    if B3: a.label('P2_D1')
    a("s_mov_b64 exec, 1")
    a(f"ds_add_rtn_u32 {t1}, {vcn}, {t1} offset:16")
    a(f"s_cmp_eq_u32 {sNEED}, -1"); a("s_cbranch_scc1 P2_A2")
    a(f"buffer_atomic_add {vAT}, {vz}, {rWS}, {sFLAG} offen sc0 sc1")
    a.label('P2_A2')
    a("s_mov_b64 exec, -1")
    def go_logic(n, st=True):
        lb = a.newlabel('GO')
        a(f"s_waitcnt vmcnt({n})")
        a(f"v_readfirstlane_b32 {sP[0]}, {vAT}")
        a(f"s_add_u32 {sP[1]}, {sFLAG}, {GOD}")
        a(f"s_cmp_lg_u32 {sP[0]}, {sNEED}")
        a(f"s_cbranch_scc1 {lb}")
        a("s_mov_b64 exec, 1")
        a(f"buffer_store_dword {vAT}, {vz}, {rWS}, {sP[1]} offen sc1")
        a("s_mov_b64 exec, -1")
        a.label(lb)
        if st: stamp(a, 4)
    a(f"s_cmp_eq_u32 {sHI}, 0")
    a("s_cbranch_scc1 P2_C")
    if B3:
        a(f"s_cmp_lg_u32 {sPF}, 0"); a("s_cbranch_scc1 P2_D2")
        for l in b_reg(vm, 3, 'B'): a(l)
        go_logic(5)
        a("s_branch P2_D3")
        a.label('P2_D2')
    go_logic(0)
    if B3: a.label('P2_D3')
    a("s_setprio 0")
    init_check(vS2, 132)
    if OPT['bt']:
        a("s_lshr_b32 s4, s2, 6"); a(f"s_lshl2_add_u32 s4, s4, {sRG}"); a(f"s_mul_i32 s4, s4, {65*128}")
        a(f"s_mul_i32 s5, {sCG}, {74*5120}"); a("s_add_u32 s4, s4, s5"); a(f"s_add_u32 s4, s4, {BP + 48*5120}")
        a(f"v_lshlrev_b32 {t2}, 7, {lane}")
        a(f"buffer_load_dword {t3}, {t2}, {rWS}, s4 offen sc1")
    a(f"s_cmp_lt_u32 {sRG}, 2"); a(f"s_cselect_b32 {rB[2]}, {WSZ}, 0")
    a(f"s_cmp_lt_u32 {sPF}, 6"); a("s_cbranch_scc1 P2_E2")
    for b in range(4):
        for l in b_reg(vm, b, 'B'): a(l)
    lds_wait(16, 8)
    for k in range(4):
        for l in b_row(vm, sBg, GRP[GL[k]], LR[k]): a(l)
    a.label('P2_E2')
    if OPT['b23'] in (1, 2):
        a(f"s_cmp_lg_u32 {sPF}, 0"); a("s_cbranch_scc1 P2_E4")
        for l in (b_reg(vm, 2, 'B') if OPT['b23'] == 1 else []) + b_reg(vm, 3, 'B'): a(l)
        a.label('P2_E4')
    lds_wait(16, 8)
    for k in range(3):
        for l in b_row(vm, sBg, k, CR[k], None, 54*BS_): a(l)
    a(f"s_cmp_eq_u32 {sPF}, 4"); a("s_cbranch_scc1 P2_GK")
    NG = 10
    for variant in (0, 1):
        GLv = GL if variant == 0 else []
        if variant == 1: a.label('P2_GK')
        if OPT['at']:
            a(f"s_mul_i32 {sT1}, {sR6}, {74*4096}"); a(f"s_lshl2_add_u32 {sT2}, {sCG}, {sRG}"); a(f"s_mul_i32 {sT2}, {sT2}, {54*128}"); a(f"s_add_u32 {sT1}, {sT1}, {sT2}")
            a(f"v_lshlrev_b32 {t2}, 7, {lane}")
        if OPT['at'] == 3: vpoll(a, vz, sFHo, 0, t1, f"s_mov_b32 exec_hi, 0x3fffff\nbuffer_load_dword {t3}, {t2}, {rWS}, {sT1} offen sc1\ns_mov_b32 exec_hi, -1", OPT['tsl'])
        elif OPT['noh']: a("s_waitcnt vmcnt(0)")
        else: vpoll(a, vz, sFHo, 0, t1)
        lds_signal(20)
        a(f"s_setprio {OPT['gprio']}")
        vm = VmTrack()
        stamp(a, 5)
        if OPT['at'] == 1:
            a("s_mov_b32 exec_hi, 0x3fffff"); a(f"buffer_load_dword {t3}, {t2}, {rWS}, {sT1} offen sc1"); a("s_mov_b32 exec_hi, -1")
        if OPT['stamp'] == 4: a("s_memtime s[92:93]")
        LA = OPT['la']
        pend = []
        for s in range(LA + 1):
            if OPT['stp'] and s: a(f"s_setprio {3 - s}")
            for l in a_loads(s, ('A', s)): a(l)
            if OPT['at'] == 2 and s == 0:
                a("s_mov_b32 exec_hi, 0x3fffff"); a(f"buffer_load_dword {t3}, {t2}, {rWS}, {sT1} offen sc1"); a("s_mov_b32 exec_hi, -1"); vm.issue('T')
        for s in range(NG - 1):
            n = vm.wait_for(lambda t: t in (('A', s), ('B', s)))
            a(f"s_waitcnt vmcnt({n})" + (f" lgkmcnt({5*sum(1 for x in (s+1, s+2) if x in GLv)})" if s in GLv else ""))
            if s == 0: stamp(a, 6)
            if OPT['stamp'] == 4:
                a("s_waitcnt lgkmcnt(0)")
                a(f"v_writelane_b32 v255, s92, {40 + s}")
                a("s_memtime s[92:93]")
            side = []
            if OPT['fair'] and s in eval(OPT['fg']): a(f"s_setprio {eval(OPT['fg'])[s]}")
            if 1 <= s and s + LA < NG:
                side += a_loads(s + LA, ('A', s + LA), None, rB if GRP[s + LA] == 13 else None)
            if 1 <= s and s + 3 < NG:
                rr = rB if GRP[s + 3] == 13 else None
                if s + 3 in GLv: side += b_fromlds(s + 3, LR[GLv.index(s + 3)])
                elif OPT['spr'] and variant == 0:
                    bl = b_reg(VmTrack(), s + 3, 'x', rr, GRP[s + 3])
                    side += bl[0:4]; [vm.issue(('B', s + 3)) for _ in range(3)]
                    pend = [(bl[0], bl[4:6], s + 3)]
                    mm(s % 4, [], side); continue
                else: side += b_reg(vm, s + 3, ('B', s + 3), rr, GRP[s + 3])
            if pend:
                p0, pl, ps = pend.pop(); side += [p0] + pl; [vm.issue(('B', ps)) for _ in range(2)]
            mm(s % 4, range(4) if s == 0 else [], side)
        if variant == 0: a("s_branch P2_GL")
    a.label('P2_GL')
    a("s_waitcnt vmcnt(0) lgkmcnt(0)")
    if OPT['stamp'] == 4:
        a(f"v_writelane_b32 v255, s92, {49}"); a("s_memtime s[92:93]"); a("s_waitcnt lgkmcnt(0)"); a(f"v_writelane_b32 v255, s92, {50}")
    for tt in range(4):
        for j in range(5):
            d = ACC[tt][j]
            a(f"v_mfma_f32_16x16x32_bf16 {d}, {BR[1][j]}, {AR[1][tt]}, {d}")
            if tt >= 2: a("ds_write_b128 %s, %s offset:%d" % (lrow(tt, j)[0], ACC[tt-2][j], lrow(tt, j)[1]))
    for tt in (2, 3):
        for j in range(5): a("ds_write_b128 %s, %s offset:%d" % (lrow(tt+2, j)[0], ACC[tt][j], lrow(tt+2, j)[1]))
    lds_signal(4)
    stamp(a, 10)
    a("s_branch P2_FIN")
    a.label('P2_C')
    P = V(72, 20)
    a("s_setprio 3")
    if OPT['noc']:
        go_logic(0)
        srd(a, rOUT, pOUT, 2048 * 1280)
        for i in range(4):
            a(f"s_add_u32 {sT0}, {sRG}, {i}"); a(f"s_and_b32 {sT0}, {sT0}, 3"); a(f"s_lshl_b32 {sT0}, {sT0}, 10")
            a(f"v_add_u32 {V(16+i)}, {sT0}, {vo}")
        init_check(vS2, 132)
        a("s_mov_b32 s81, 0"); a(f"s_cmp_eq_u32 {sPF}, 0"); a("s_cselect_b32 s81, 2, s81"); a(f"s_cmp_eq_u32 {sPF}, 4"); a("s_cselect_b32 s81, 4, s81")
        a("s_branch P2_NOC")
    a(f"s_cmp_lg_u32 {sQF}, 0"); a("s_cbranch_scc1 P2_C1")
    go_logic(0)
    a(f"s_mov_b32 {sNEED}, -1")
    vpoll(a, vz, sFHo, 4, t1)
    pq_loads()
    a("s_waitcnt vmcnt(0)")
    a.label('P2_C1')
    a(f"buffer_load_dword {vFG}, {vz}, {rWS}, {sFHo} offen offset:12 sc1")
    GV = [V(22), V(252), V(10), V(8)]
    GLd = [t3, V(188), V(189), V(190)]
    srd(a, rOUT, pOUT, 2048 * 1280)
    a(f"v_lshl_add_u32 {kw}, {vr}, 2, {vqd}")
    a(f"v_lshlrev_b32 {kw}, 6, {kw}")
    a(f"v_lshl_add_u32 {kw}, {vc}, 3, {kw}")
    a(f"s_mul_i32 {sT0}, {sRG}, 3088"); a(f"s_add_u32 {sT0}, {sT0}, {KVB}")
    a(f"v_add_u32 {kw}, {sT0}, {kw}")
    a(f"v_mul_u32_u24 {t4}, 3088, {vqd}")
    a(f"v_lshl_add_u32 {t4}, {vr}, 6, {t4}")
    a(f"v_add_u32 {t4}, {KVB}, {t4}")
    a(f"v_mov_b32 {ka}, {ZERO + 8}")
    a(f"v_cmp_eq_u32 vcc, {vc}, {vqd}")
    a(f"v_cndmask_b32 {ka}, {ka}, {t4}, vcc")
    VT = [V(16), V(17), V(18), V(19)]
    for i in range(4):
        a(f"s_add_u32 {sT0}, {sRG}, {i}"); a(f"s_and_b32 {sT0}, {sT0}, 3"); a(f"s_lshl_b32 {sT0}, {sT0}, 10")
        a(f"v_add_u32 {VT[i]}, {sT0}, {vo}")
    for i in range(10):
        a(f"v_lshlrev_b32 {PU[2*i]}, 16, {PB[i]}")
        a(f"v_and_b32 {PU[2*i+1]}, 0xffff0000, {PB[i]}")
    gl = (f"s_waitcnt vmcnt(1)\nv_readfirstlane_b32 {sP[0]}, {vAT}\ns_add_u32 {sP[1]}, {sFLAG}, {GOD}\ns_cmp_lg_u32 {sP[0]}, {sNEED}\ns_cbranch_scc1 GOC\n"
          f"s_mov_b64 exec, 1\nbuffer_store_dword {vAT}, {vz}, {rWS}, {sP[1]} offen sc1\ns_mov_b64 exec, -1\nGOC:")
    softmax_unit(a, PU, V(92, 40), V(132, 4), V(136, 4), P, ["s_nop 0"] * 19 + [gl])
    a("s_waitcnt vmcnt(0)")
    a(f"v_cmp_ne_u32 vcc, 0, {vFG}"); a("s_nop 0"); a("s_cbranch_vccnz P2_GOK")
    vpoll(a, vz, sFHo, 12, t1)
    a.label('P2_GOK')
    a(f"v_lshlrev_b32 {t0}, 2, {vl15}")
    a(f"s_lshl2_add_u32 {sT0}, {sR6}, {sRG}")
    a(f"s_lshl_b32 {sT0}, {sT0}, 6"); a(f"s_add_u32 {sT0}, {sT0}, {GOFF}")
    a(f"buffer_load_dword {t3}, {t0}, {rWS}, {sT0} offen {LD}")
    stamp(a, 5)
    init_check(vS2, 132)
    lds_wait(16, 8)
    a(f"s_lshl_b32 {sT2}, {sCG}, 7"); a(f"s_add_u32 {sT2}, {sT2}, {FK + GOD}")
    a(f"s_lshl_b32 {sT3}, {sCG}, 2"); a(f"s_add_u32 {sT3}, {sT3}, {sRG}")
    a(f"s_mul_i32 {sT3}, {sT3}, 6144"); a(f"s_add_u32 {sT3}, {sT3}, {KVACC}")
    sNB = S(81)
    def cb(i): return b_reg(vm, i, 'B') if i < 4 else b_row(vm, sBo, i - 4, CR[i - 4], None, CB0)
    if OPT['b23']: a(f"s_cmp_eq_u32 {sPF}, 0"); a("s_cbranch_scc1 P2_K2")
    a(f"s_cmp_lt_u32 {sPF}, 6"); a("s_cbranch_scc1 P2_K4")
    for i in range(4):
        if OPT['b23'] and i == (2 if OPT['b23'] == 1 else 3): a.label('P2_K2')
        a(f"s_mov_b32 {sNB}, {i}")
        a(f"buffer_load_dword {t1}, {vz}, {rWS}, {sT2} offen sc1")
        a("s_waitcnt vmcnt(0)")
        a(f"v_cmp_ne_u32 vcc, 0, {t1}"); a("s_nop 0"); a("s_cbranch_vccnz P2_KGO")
        for l in cb(i): a(l)
    a.label('P2_K4')
    a(f"s_mov_b32 {sNB}, 4")
    if not OPT['nok']: vpoll(a, vz, sT2, 0, t1)
    else: a("s_waitcnt vmcnt(0)")
    a.label('P2_KGO')
    stamp(a, 6)
    KL = [V(92 + 4 * i, 4) for i in range(6)]
    a(f"s_mov_b32 {sTO}, 0x80000")
    a("s_mov_b32 s82, 0x41000000")
    a.label('KVRETRY')
    for i in range(6):
        if i < 4: a(f"buffer_load_dwordx4 {KL[i]}, {vo}, {rWS}, {sT3} offen offset:{i*1024} {LD}")
        else: a(f"buffer_load_dwordx4 {KL[i]}, {vo4}, {rWS}, {sT3} offen offset:{(i-4)*1024} {LD}")
    for i in range(6):
        a(f"s_waitcnt vmcnt({5-i})")
        a(f"v_cvt_pk_bf16_f32 {KL[i][0]}, {KL[i][0]}, {KL[i][1]}")
        a(f"v_cvt_pk_bf16_f32 {KL[i][1]}, {KL[i][2]}, {KL[i][3]}")
        a(f"ds_write_b64 {kw}, {KL[i][0:2]} offset:{(i % 3)*1024 + (i // 3)*32}")
    a(f"v_min3_f32 {t1}, {KL[0][3]}, {KL[1][3]}, {KL[3][3]}")
    a(f"v_min_f32 {t4}, {KL[2][3]}, {KL[5][3]}")
    a(f"v_min_f32 {t1}, {t1}, {KL[4][3]}")
    a(f"v_cmp_neq_f32 vcc, s82, {t4}")
    a(f"v_cmp_neq_f32 {sP}, s82, {t1}")
    a("s_and_b32 s4, vcc_lo, 0x00880088"); a("s_and_b32 s5, vcc_hi, 0x00880088"); a("s_or_b32 s4, s4, s5")
    a(f"s_or_b32 s5, {sP[0]}, {sP[1]}"); a("s_and_b32 s5, s5, 0x88888888"); a("s_or_b32 s4, s4, s5")
    a("s_branch KVOK" if OPT['nok'] else "s_cbranch_scc0 KVOK")
    a("s_waitcnt lgkmcnt(0)")
    a("s_sleep 4")
    a(f"s_sub_u32 {sTO}, {sTO}, 1")
    a("s_cbranch_scc0 KVRETRY")
    a.label('KVOK')
    lds_signal(0)
    lds_wait(0, 4)
    stamp(a, 16)
    AFl = [V(92 + 4 * i, 4) for i in range(15)]
    D = [V(152 + 4 * t, 4) for t in range(6)]
    O = V(176, 12)
    order = [5, 0, 1, 2, 3, 4]
    fr = [(t, s) for s in range(5) for t in order]
    def rdl(k):
        t, s_ = fr[k]
        return [f"ds_read_b64_tr_b16 {AFl[k % 15][2*r_:2*r_+2]}, {ka} offset:{s_*512 + r_*256 + (t*8 if t < 3 else t*8 + 8)}" for r_ in range(2)]
    AH = 7
    for k in range(AH):
        for l in rdl(k): a(l)
    def fin(t):
        for h in range(4): a(f"v_mul_f32 {D[t][h]}, {D[t][h]}, {t2}")
        a(f"v_cvt_pk_bf16_f32 {O[2*t]}, {D[t][0]}, {D[t][1]}")
        a(f"v_cvt_pk_bf16_f32 {O[2*t+1]}, {D[t][2]}, {D[t][3]}")
    for k in range(30):
        t, s_ = fr[k]
        a(f"s_waitcnt lgkmcnt({2 * min(AH - 1, 29 - k)})")
        a(f"v_mfma_f32_16x16x32_bf16 {D[t]}, {AFl[k % 15]}, {P[4*s_:4*s_+4]}, {'0' if s_ == 0 else D[t]}")
        if k + AH < 30:
            for l in rdl(k + AH): a(l)
        if OPT['sent'] and k == OPT['oh1']:
            a(f"s_sub_u32 {sFLAG}, {sFHo}, {GOD - 8}"); a(f"s_mov_b32 {sNEED}, 31"); a(f"v_mov_b32 {vAT}, 1")
            a("s_mov_b64 exec, 1"); a(f"buffer_atomic_add {vAT}, {vz}, {rWS}, {sFLAG} offen sc0 sc1"); a("s_mov_b64 exec, -1")
    stamp(a, 19)
    a(f"v_add_f32 {t2}, 0x358637bd, {D[5][0]}")
    a(f"v_rcp_f32 {t2}, {t2}")
    a(f"v_mul_f32 {t2}, {t2}, {t3}")
    fin(0); fin(1)
    a(f"buffer_store_dwordx4 {O[0:4]}, {vo}, {rWS}, {sO1} offen {ST}")
    fin(2); fin(3)
    a(f"buffer_store_dwordx4 {O[4:8]}, {vo4}, {rWS}, {sO1} offen {ST}")
    fin(4)
    a(f"v_mov_b32 {O[10]}, {O[8]}"); a(f"v_mov_b32 {O[11]}, {O[9]}")
    a(f"v_permlane32_swap_b32 {O[8]}, {O[10]}"); a(f"v_permlane32_swap_b32 {O[9]}, {O[11]}")
    a("s_mov_b32 exec_hi, 0")
    a(f"buffer_store_dwordx4 {O[8:12]}, {vo}, {rWS}, {sO2} offen {ST}")
    a("s_mov_b32 exec_hi, -1")
    stamp(a, 17)
    NBA = OPT['nba'] and not OPT['sent']
    if NBA:
        a(f"s_sub_u32 {sFLAG}, {sFHo}, {GOD - 8}"); a(f"s_mov_b32 {sNEED}, 31"); a(f"v_mov_b32 {vAT}, 1")
        a(f"ds_read_b32 {t1}, {vcn} offset:20"); a("s_waitcnt lgkmcnt(0)"); a(f"v_readfirstlane_b32 {sT0}, {t1}")
        a(f"s_and_b32 {sT0}, {sT0}, {sNB}")
        a(f"s_cmp_eq_u32 {sT0}, 4"); a("s_cbranch_scc1 P2_NB1")
        arrive(a, sFLAG, 31, t0, t1)
        a(f"s_mov_b32 {sNEED}, -1")
        a.label('P2_NB1')
    elif not OPT['sent']:
        a(f"s_sub_u32 {sT2}, {sFHo}, {GOD - 8}")
        arrive(a, sT2, 31, t0, t1)
    else: go_logic(3, False)
    stamp(a, 7)
    if OPT['noc']: a.label('P2_NOC')
    for i in range(4):
        lb = a.newlabel('CB')
        a(f"s_cmp_gt_u32 {sNB}, {i}"); a(f"s_cbranch_scc1 {lb}")
        for l in cb(i): a(l)
        a.label(lb)
    XB = [V(28), V(13), V(30)]; XW = V(31); GB = V(12)
    for q in range(1, 4):
        a(f"s_sub_u32 {sT0}, {sRG}, {q}"); a(f"s_and_b32 {sT0}, {sT0}, 3"); a(f"s_mul_i32 {sT0}, {sT0}, 5120")
        a(f"s_add_u32 {sT0}, {sT0}, {CR[q-1]*20480}")
        a(f"v_add_u32 {XB[q-1]}, {sT0}, {vo}")
    a(f"v_add_u32 {XW}, {6*20480}, {vbl}")
    def crow(k, j): return (vbl, CR[k]*20480 + j*1024) if k < 2 else (XW, j*1024)
    a(f"s_add_u32 {sT0}, {sRG}, 2"); a(f"s_mul_i32 {sT0}, {sT0}, 20480"); a(f"v_add_u32 {GB}, {sT0}, {vo}")
    a(f"v_mul_u32_u24 {t0}, 1280, {vl15}")
    a(f"v_lshl_add_u32 {t0}, {vqd}, 3, {t0}")
    a(f"s_lshl_b32 {sT2}, {sR6}, 2"); a(f"s_add_u32 {sT2}, {sT2}, {sRG}"); a(f"s_mul_i32 {sT2}, {sT2}, {16*1280}")
    a(f"s_mul_i32 {sT3}, {sCG}, 160"); a(f"s_add_u32 {sT2}, {sT2}, {sT3}")
    a(f"v_add_f32 {V(22)}, 1.0, {t3}"); a(f"v_rcp_f32 {V(22)}, {V(22)}")
    a(f"v_mul_u32_u24 {t3}, 1280, {vl15}"); a(f"v_and_b32 {t4}, 1, {vqd}"); a(f"v_lshl_add_u32 {t3}, {t4}, 5, {t3}")
    a(f"v_lshrrev_b32 {t4}, 1, {vqd}"); a(f"v_lshl_add_u32 {t3}, {t4}, 4, {t3}")
    lds_wait(20, 4)
    a(f"s_setprio {OPT['cprio']}")
    if OPT['stamp'] == 4: a("s_memtime s[92:93]")
    vm = VmTrack()
    for s in range(OPT['la'] + 1):
        if OPT['stp'] == 2 and s: a(f"s_setprio {max(1, 3 - s)}")
        for l in a_loads(s, ('A', s), VT): a(l)
        if NBA and s == 1:
            a(f"s_cmp_eq_u32 {sNEED}, -1"); a("s_cbranch_scc1 P2_NB2")
            a("s_waitcnt vmcnt(8)")
            a("s_mov_b64 exec, 1"); a(f"buffer_atomic_add {vAT}, {vz}, {rWS}, {sFLAG} offen sc0 sc1"); a("s_mov_b64 exec, -1")
            a.label('P2_NB2')
    GT = [BR[1], BR[2], BR[3], AR[1] + [AR[2][0]]]
    nextA = OPT['la'] + 1
    OC = OPT['oc']
    for s in range(9):
        n = vm.wait_for(lambda t: t in (('A', s), ('B', s)) or (s == OC and t == 'of'))
        if s == 8:
            lds_wait(4, 4)
            stamp(a, 8)
            for w in range(2):
                for j in range(5): a(f"ds_read_b128 {GT[w][j]}, {GB} offset:{w*5120 + j*1024}")
        a(f"s_waitcnt vmcnt({n})" + (" lgkmcnt(0)" if s == (6 if OPT['gf'] & 2 else 4) else ""))
        if OPT['stamp'] == 4:
            a("s_waitcnt lgkmcnt(0)")
            a(f"v_writelane_b32 v255, s92, {40 + s}")
            a("s_memtime s[92:93]")
        if NBA and s == 1: go_logic(n, False)
        if s == OC:
            stamp(a, 18)
            a(f"v_cmp_ne_u32 vcc, 0, {t2}"); a("s_nop 0"); a("s_cbranch_vccnz P2_OOK")
            if not OPT['noc']: vpoll(a, vz, sFHo, 8, t2)
            a.label('P2_OOK')
            a(f"s_mov_b32 {sTO}, 0x40000")
            stamp(a, 9)
        if OPT['sent'] and s >= 4:
            a.label(f'VER{s}')
            regs = [AR[s % 4][tt][k] for tt in range(4) for k in range(4)]
            a(f"v_max3_u32 {t4}, {regs[0]}, {regs[1]}, {regs[2]}")
            a(f"v_max3_u32 {t1}, {regs[3]}, {regs[4]}, {regs[5]}")
            for k in (6, 10):
                a(f"v_max3_u32 {t4}, {t4}, {regs[k]}, {regs[k+1]}"); a(f"v_max3_u32 {t1}, {t1}, {regs[k+2]}, {regs[k+3]}")
            a(f"v_max3_u32 {t4}, {t4}, {regs[14]}, {regs[15]}")
            a(f"v_max_u32 {t4}, {t4}, {t1}")
            a(f"v_cmp_eq_u32 vcc, -1, {t4}")
            a("s_nop 0")
            a(f"s_cbranch_vccnz RET{s}")
            a.label(f'VOK{s}')
        side = []
        if OPT['fair'] and s in eval(OPT['fc']): a(f"s_setprio {eval(OPT['fc'])[s]}")
        if s == OC - 1:
            side.append(f"buffer_load_dword {t2}, {vz}, {rWS}, {sFHo} offen offset:8 sc1"); vm.issue('of')
        while s >= 1 and nextA <= s + OPT['la'] and nextA < 9 and (nextA < 4 or s >= OC):
            side += a_loads(nextA, ('A', nextA), VT); nextA += 1
        if 1 <= s <= 5:
            g_ = CG_[s + 3]
            if g_ < 3: side += ["ds_read_b128 %s, %s offset:%d" % ((BR[(s+3)%4][j],) + crow(g_, j)) for j in range(5)]
            else: side += b_reg(vm, s + 3, ('B', s + 3), None, g_, CB0)
        if s < 8: mm(s % 4, range(4) if s == 0 else [], side, 1 if len([x for x in side if not x.startswith('s_')]) > 10 else 2)
        else:
            for tt in (1, 2, 3, 0):
                for j in range(5):
                    d = ACC[tt][j]
                    a(f"v_mfma_f32_16x16x32_bf16 {d}, {BR[0][j]}, {AR[0][tt]}, {d}")
                    if tt in (1, 2): a(f"ds_read_b128 {GT[tt+1][j]}, {GB} offset:{(tt+1)*5120 + j*1024}")
                    pt = {1: None, 2: None, 3: 1, 0: 2}[tt]
                    if pt: a("ds_write_b128 %s, %s offset:%d" % (crow(pt-1, j)[0], ACC[pt][j], crow(pt-1, j)[1]))
            for j in range(5): a("ds_write_b128 %s, %s offset:%d" % (crow(2, j)[0], ACC[3][j], crow(2, j)[1]))
    if OPT['stamp'] == 4:
        a("s_waitcnt lgkmcnt(0)"); a(f"v_writelane_b32 v255, s92, {49}"); a("s_memtime s[92:93]"); a("s_waitcnt lgkmcnt(0)"); a(f"v_writelane_b32 v255, s92, {50}")
    a("s_waitcnt lgkmcnt(15)")
    for j in range(5):
        for h in range(2):
            sl = slice(2*h, 2*h+2)
            a(f"v_pk_add_f32 {GT[0][j][sl]}, {GT[0][j][sl]}, {GT[1][j][sl]}")
            a(f"v_pk_add_f32 {GT[2][j][sl]}, {GT[2][j][sl]}, {GT[3][j][sl]}")
    stamp(a, 10)
    lds_signal(8)
    for j in range(5):
        for h in range(2):
            sl = slice(2*h, 2*h+2)
            a(f"v_pk_add_f32 {GT[0][j][sl]}, {GT[0][j][sl]}, {GT[2][j][sl]}")
            a(f"v_pk_add_f32 {ACC[0][j][sl]}, {GT[0][j][sl]}, {ACC[0][j][sl]}")
    lds_wait(8, 4)
    RD = [ACC[1], ACC[2], ACC[3]]
    if OPT['fin'] == 0:
        for q in range(3):
            for j in range(5): a(f"ds_read_b128 {RD[q][j]}, {XB[q]} offset:{j*1024}")
        for q in range(3):
            a(f"s_waitcnt lgkmcnt({10 - 5*q})")
            for j in range(5):
                for h in range(2): a(f"v_pk_add_f32 {ACC[0][j][2*h:2*h+2]}, {ACC[0][j][2*h:2*h+2]}, {RD[q][j][2*h:2*h+2]}")
                if q == 2:
                    for h in range(2): a(f"v_pk_mul_f32 {ACC[0][j][2*h:2*h+2]}, {ACC[0][j][2*h:2*h+2]}, {V(22, 2)} op_sel_hi:[1,0]")
                    a(f"v_cvt_pk_bf16_f32 {ACC[1][j][0]}, {ACC[0][j][0]}, {ACC[0][j][1]}")
                    a(f"v_cvt_pk_bf16_f32 {ACC[1][j][1]}, {ACC[0][j][2]}, {ACC[0][j][3]}")
                    a(f"buffer_store_dwordx2 {ACC[1][j][0:2]}, {t0}, {rOUT}, {sT2} offen offset:{j*32} {OPT['ost']}")
    else:
        for j in range(5):
            for q in range(3): a(f"ds_read_b128 {RD[q][j]}, {XB[q]} offset:{j*1024}")
        OUTR = [GT[1][0], GT[1][1], GT[1][2]]
        for j in range(5):
            a(f"s_waitcnt lgkmcnt({12 - 3*j})")
            for h in range(2):
                sl = slice(2*h, 2*h+2)
                a(f"v_pk_add_f32 {RD[0][j][sl]}, {RD[0][j][sl]}, {RD[1][j][sl]}")
                a(f"v_pk_add_f32 {ACC[0][j][sl]}, {ACC[0][j][sl]}, {RD[2][j][sl]}")
            for h in range(2):
                sl = slice(2*h, 2*h+2)
                a(f"v_pk_add_f32 {ACC[0][j][sl]}, {ACC[0][j][sl]}, {RD[0][j][sl]}")
            for h in range(2): a(f"v_pk_mul_f32 {ACC[0][j][2*h:2*h+2]}, {ACC[0][j][2*h:2*h+2]}, {V(22, 2)} op_sel_hi:[1,0]")
            o_ = OUTR[j // 2]
            a(f"v_cvt_pk_bf16_f32 {o_[2*(j%2)]}, {ACC[0][j][0]}, {ACC[0][j][1]}")
            a(f"v_cvt_pk_bf16_f32 {o_[2*(j%2)+1]}, {ACC[0][j][2]}, {ACC[0][j][3]}")
            if j % 2 == 1:
                a(f"v_permlane16_swap_b32 {o_[0]}, {o_[2]}"); a(f"v_permlane16_swap_b32 {o_[1]}, {o_[3]}")
                a(f"buffer_store_dwordx4 {o_}, {t3}, {rOUT}, {sT2} offen offset:{(j-1)*32} {OPT['ost']}")
            if j == 4: a(f"buffer_store_dwordx2 {o_[0:2]}, {t0}, {rOUT}, {sT2} offen offset:128 {OPT['ost']}")
    a.label('P2_FIN')
    if OPT['stamp'] or OPT['pad']:
        a("s_waitcnt vmcnt(0)")
        stamp(a, 11)
    stamp_flush(a)
    if OPT['pad']:
        if OPT['padwg'] < 999: a(f"s_cmp_lg_u32 s2, {OPT['padwg']}"); a(f"s_cbranch_scc1 {END}")
        a.label('PADL')
        a("s_sleep 1"); a("s_memrealtime s[12:13]"); a("s_waitcnt lgkmcnt(0)"); a("s_sub_u32 s12, s12, s10")
        a(f"s_cmp_lt_u32 s12, {OPT['pad']*100}"); a("s_cbranch_scc1 PADL")
    a.label(END)
    a.label('K_LAST')
    a("s_endpgm")
    if OPT['sent']:
        for s in range(4, 9):
            a.label(f'RET{s}')
            a(f"s_sub_u32 {sTO}, {sTO}, 1")
            a(f"s_cselect_b32 {sTO}, 0, {sTO}")
            a(f"s_cbranch_scc1 VOK{s}")
            a(f"s_sleep {OPT['rsl']}")
            for l in a_loads(s, 'r', VT): a(l)
            a("s_waitcnt vmcnt(0)")
            a(f"s_branch VER{s}")

def build():
    hdr = open(f'cdna_kernels/{NAME}.s.ref').read().split('; Override launch')[0]
    name = NAME + '_kernel'
    out = hdr + "; @launch grid=(256,1,1) block=(512,1,1) lds=163840\n"
    out += '.amdgcn_target "amdgcn-amd-amdhsa--gfx950"\n.text\n'
    a = Asm(); kernel(a)
    out += f".globl {name}\n.p2align 8\n.type {name},@function\n{name}:\n" + a.finalize()
    print('instrs', len(a.ins), 'nops', a.nnop, file=sys.stderr)
    out += f""".section .rodata,"a"
.p2align 6
.amdhsa_kernel {name}
  .amdhsa_next_free_vgpr 256
  .amdhsa_next_free_sgpr 102
  .amdhsa_accum_offset 256
  .amdhsa_group_segment_fixed_size 0
  .amdhsa_kernarg_size 96
  .amdhsa_user_sgpr_count 2
  .amdhsa_user_sgpr_kernarg_segment_ptr 1
  .amdhsa_system_sgpr_workgroup_id_x 1
.end_amdhsa_kernel
"""
    return out

if __name__ == '__main__':
    outp = sys.argv[1]
    for o in sys.argv[2:]:
        k, v = o.split('=', 1); OPT[k] = int(v) if v.isdigit() else v
    open(outp, 'w').write(build())
```

```python
import sys
sys.path.insert(0, 'gen')
from asmlib import *
NAME = 'gated_mix__linear_kernel_hedgehog__swiglu_ffn__prompt'
AP = 0; BP = 0xA00000; PQ = 0xD00000; KVACC = 0x1200000; FH = 0x1230000; FK = 0x1232000; FP = 0x1234000; ZEND = 0x1235000
GOFF = 0x1240000; DUMMY = 0x1250000; STAMP = 0x1300000; WSZ = 0x1600000
LOG2E = 0x3fb8aa3b; NLOG2E = 0xbfb8aa3b
OPT = dict(stamp=0, touch=2, bs="{'p0':(0,2),'p1':(2,5),3:(5,8),7:(8,10)}", pp=0, spnt='nt', rot2=0, slp=1, early=1, btouch=0, atf='sc1', cpf=12, nobar=18, chk=12, sent=0, ksp=0, gnt='', tfl='', bx=0, ep=0, map2=1, hd=0, gq=0, lbt=0, tw=0, trim=1, nba=0, la=2, spr=0, fin=1, stp=0, nob=0, noc=0, nok=0, noh=0, t2si=2, swp=1, gf=0, b23=1, tlb=0, padwg=999, padev=0, fair=1, fg='{0:2,5:1,7:3}', fc='{0:1,4:0}', npk=0, eprio=2, gprio=3, oc=2, oord=1, noa=0, pj=18, t2s=0, x0e=1, sb1=1, sb2=1, t2pos=1, pad=0, bt=0, tsl=4, rsl=8, cprio2=0, at=0, kh=0, cprio=3, oh1=19, gdel=0, fill=0, spst='sc1', t2a='[0]', t2b='[2]', t2f='{0:(5,6),1:(4,3),2:(7,4),3:(6,5),5:(9,6),6:(8,3)}', t2q='{}', xfl='', wfl='', il=4, qbar=0, prio=0, dbgt=0, ost='nt')
ST = 'sc1'; LD = 'sc1'

pX, pQKV, pPHI, pWO, pBX, pWG, pWU, pWD = [S(16 + 2 * i, 2) for i in range(8)]
pGW, pOUT, pDBG, pWS = [S(32 + 2 * i, 2) for i in range(4)]
sWV = S(3)
rX, rW, rWS, rA, rB = S(40, 4), S(44, 4), S(48, 4), S(52, 4), S(56, 4)
sC = S(60, 2)
rDBG = S(84, 4)
sFLAG = S(88); sTO = S(89); sNEED = S(7)
GOD = 0x1000
sP = S(14, 2)
XSLOT = 32768; WB = 98304
GWB = 159744; CNT = 161024; ZERO = 161280; KVB = 147456

def srd(a, d, base, size):
    a(f"s_mov_b32 {d[0]}, {base[0]}")
    a(f"s_and_b32 {d[1]}, {base[1]}, 0xffff")
    a(f"s_mov_b32 {d[2]}, {size}")
    a(f"s_mov_b32 {d[3]}, 0x20000")

def sstamp(a, j):
    if OPT['stamp'] != 3: return
    if j > 0: a(f"v_writelane_b32 v255, s92, {40 + j - 1}")
    a("s_memtime s[92:93]")
def stamp(a, idx):
    if OPT['pad'] and OPT['padev'] == idx:
        a("s_memrealtime s[10:11]"); a("s_waitcnt lgkmcnt(0)")
    if not OPT['stamp']: return
    if OPT['stamp'] >= 2 and idx not in (2, 3, 5, 11): return
    a("s_memrealtime s[90:91]")
    a("s_memtime s[92:93]")
    a("s_waitcnt lgkmcnt(0)")
    a(f"v_writelane_b32 v255, s90, {2*idx}")
    a(f"v_writelane_b32 v255, s92, {2*idx+1}")
def stamp_flush(a):
    if not OPT['stamp']: return
    if OPT['dbgt']:
        a("s_not_b32 s90, s10"); a("v_writelane_b32 v255, s90, 0")
        a("v_lshlrev_b32 v254, 1, v0"); a("v_add_u32 v254, 8, v254")
        a("s_mov_b32 exec_lo, 0x05555555"); a("s_mov_b32 exec_hi, 0")
        a(f"buffer_atomic_umax v255, v254, {rDBG}, 0 offen sc1")
        a("s_mov_b64 exec, -1")
        return
    a("v_writelane_b32 v255, s10, 0"); a("v_writelane_b32 v255, s12, 1")
    a("s_lshl_b32 s90, s2, 3")
    a(f"s_add_u32 s90, s90, {sWV}")
    a("s_lshl_b32 s90, s90, 8")
    a(f"s_add_u32 s90, s90, {STAMP + 0x80000}")
    a("v_lshlrev_b32 v254, 2, v0")
    a(f"buffer_store_dword v255, v254, {rWS}, s90 offen")

def vpoll(a, vzero, soff, off, tmp, extra=None, slp=None):
    L, D = a.newlabel('POLL'), a.newlabel('POLLD')
    a(f"s_mov_b32 {sTO}, 0x80000")
    a.label(L)
    if extra: a(extra)
    a(f"buffer_load_dword {tmp}, {vzero}, {rWS}, {soff} offen offset:{off} sc1")
    a("s_waitcnt vmcnt(0)")
    a(f"v_cmp_eq_u32 vcc, 0, {tmp}")
    a("s_nop 0")
    a(f"s_cbranch_vccz {D}")
    a(f"s_sleep {slp or OPT['slp']}")
    a(f"s_sub_u32 {sTO}, {sTO}, 1")
    a(f"s_cbranch_scc0 {L}")
    a.label(D)
def arrive(a, soff, need, z, one, nyounger=0):
    D = a.newlabel('ARR')
    a(f"v_mov_b32 {z}, 0"); a(f"v_mov_b32 {one}, 1")
    a(f"s_waitcnt vmcnt({nyounger})")
    a("s_mov_b64 exec, 1")
    a(f"buffer_atomic_add {one}, {z}, {rWS}, {soff} offen sc0 sc1")
    a("s_waitcnt vmcnt(0)")
    a(f"v_readfirstlane_b32 {sP[0]}, {one}")
    a(f"s_add_u32 {sP[1]}, {soff}, {GOD}")
    a(f"s_cmp_lg_u32 {sP[0]}, {need}")
    a(f"s_cbranch_scc1 {D}")
    a(f"buffer_store_dword {one}, {z}, {rWS}, {sP[1]} offen sc1")
    a.label(D)
    a("s_mov_b64 exec, -1")
def init_poll(a, reg, off):
    L, D = a.newlabel('POLL'), a.newlabel('POLLD')
    a(f"s_mov_b32 {sTO}, 0x80000")
    a.label(L)
    a(f"v_mov_b32 {reg}, 0")
    a(f"buffer_load_dword {reg}, {reg}, {rDBG}, 0 offen offset:{off} sc1")
    a("s_waitcnt vmcnt(0)")
    a(f"v_readfirstlane_b32 {sP[0]}, {reg}")
    a(f"s_cmp_lg_u32 {sP[0]}, 0")
    a(f"s_cbranch_scc1 {D}")
    a("s_sleep 2")
    a(f"s_sub_u32 {sTO}, {sTO}, 1")
    a(f"s_cbranch_scc0 {L}")
    a.label(D)

def softmax_unit(a, P, E, M, T, O, side=None):
    side = list(side or [])
    a(f"v_max3_f32 {M[0]}, {P[0]}, {P[1]}, {P[2]}")
    a(f"v_min3_f32 {M[2]}, {P[0]}, {P[1]}, {P[2]}")
    for i in range(3, 19, 2):
        a(f"v_max3_f32 {M[0]}, {M[0]}, {P[i]}, {P[i+1]}")
        a(f"v_min3_f32 {M[2]}, {M[2]}, {P[i]}, {P[i+1]}")
    a(f"v_max_f32 {M[0]}, {M[0]}, {P[19]}")
    a(f"v_min_f32 {M[2]}, {M[2]}, {P[19]}")
    a(f"v_mul_f32 {M[0]}, {sC[0]}, {M[0]}")
    a(f"v_mul_f32 {M[2]}, {sC[0]}, {M[2]}")
    for i in range(0, 20, 2):
        a(f"v_pk_fma_f32 {E[i:i+2]}, {P[i:i+2]}, {sC}, {M[0:2]} op_sel_hi:[1,1,0] neg_lo:[0,0,1] neg_hi:[0,0,1]")
        a(f"v_pk_fma_f32 {E[20+i:22+i]}, {P[i:i+2]}, {sC}, {M[2:4]} op_sel_hi:[1,1,0] neg_lo:[1,0,0] neg_hi:[1,0,0]")
    for i in range(40):
        a(f"v_exp_f32 {E[i]}, {E[i]}")
        if side and i % 2 == 1:
            x = side.pop(0)
            if x != "s_nop 0": a(x)
    for l in side: a(l)
    a(f"v_pk_add_f32 {T[0:2]}, {E[0:2]}, {E[2:4]}")
    a(f"v_pk_add_f32 {T[2:4]}, {E[20:22]}, {E[22:24]}")
    for i in range(4, 20, 2):
        a(f"v_pk_add_f32 {T[0:2]}, {T[0:2]}, {E[i:i+2]}")
        a(f"v_pk_add_f32 {T[2:4]}, {T[2:4]}, {E[20+i:22+i]}")
    a(f"v_add_f32 {T[0]}, {T[0]}, {T[1]}")
    a(f"v_add_f32 {T[2]}, {T[2]}, {T[3]}")
    a(f"v_rcp_f32 {T[0]}, {T[0]}")
    a(f"v_rcp_f32 {T[2]}, {T[2]}")
    for i in range(0, 20, 2):
        a(f"v_pk_mul_f32 {E[i:i+2]}, {E[i:i+2]}, {T[0:2]} op_sel_hi:[1,0]")
        a(f"v_pk_mul_f32 {E[20+i:22+i]}, {E[20+i:22+i]}, {T[2:4]} op_sel_hi:[1,0]")
    for i in range(20):
        a(f"v_cvt_pk_bf16_f32 {O[i]}, {E[2*i]}, {E[2*i+1]}")

def kernel(a):
    END = 'K_END'
    BS = eval(OPT['bs'])
    a("s_cmp_ge_u32 s2, 256")
    a(f"s_cbranch_scc1 {END}")
    if OPT['stamp']:
        a("s_memrealtime s[10:11]"); a("s_memtime s[12:13]"); a("v_mov_b32 v255, 0")
    if OPT['pad']: a("s_memrealtime s[10:11]")
    a("s_load_dwordx16 s[16:31], s[0:1], 0")
    a("s_load_dwordx8 s[32:39], s[0:1], 64")
    lane = V(0)
    tid, t0, t1, t2, t3, t4 = V(1), V(2), V(3), V(4), V(5), V(6)
    vqd, vr, vc, vl15 = V(7), V(8), V(9), V(10)
    vx = [V(11 + i) for i in range(4)]
    xa = [[V(15), V(16)], [V(17), V(18)]]
    tdum = V(19); ta = V(32, 2); tb = V(34, 2)
    R0 = 24
    sTY, sRB, sXK, sWK, sM, sT0, sT1, sT2, sT3, sRG, sHI, sID, sMW, sC8, sR4 = [S(62 + i) for i in range(15)]
    a(f"v_lshrrev_b32 {t0}, 6, v0")
    a(f"v_mov_b32 {tid}, v0")
    a(f"v_readfirstlane_b32 {sWV}, {t0}")
    a(f"v_and_b32 {lane}, 63, v0")
    a(f"s_bfe_u32 {sC8}, s2, 0x30003")
    a(f"s_lshr_b32 {sR4}, s2, 6")
    a(f"s_and_b32 {sRB}, s2, 1")
    a(f"s_lshl_b32 {sRB}, {sRB}, 2")
    a(f"s_add_u32 {sRB}, {sRB}, {sR4}")
    a(f"s_bfe_u32 {sT0}, s2, 0x20001")
    a(f"s_and_b32 {sRG}, {sWV}, 3")
    a(f"s_lshr_b32 {sHI}, {sWV}, 2")
    a(f"v_lshrrev_b32 {vqd}, 4, {lane}")
    a(f"v_bfe_u32 {vr}, {lane}, 2, 2")
    a(f"v_and_b32 {vc}, 3, {lane}")
    a(f"v_and_b32 {vl15}, 15, {lane}")
    a(f"v_lshrrev_b32 {t0}, 3, {lane}")
    a(f"v_mul_u32_u24 {t0}, 1280, {t0}")
    a(f"v_and_b32 {t1}, 7, {lane}")
    a(f"v_xor_b32 {t1}, {t1}, {vqd}")
    a(f"v_lshl_add_u32 {vx[0]}, {t1}, 4, {t0}")
    a(f"v_xor_b32 {t1}, 4, {t1}")
    a(f"v_lshl_add_u32 {vx[1]}, {t1}, 4, {t0}")
    a(f"v_add_u32 {vx[1]}, {8*1280-1024}, {vx[1]}")
    a(f"v_add_u32 {vx[2]}, {16*1280-2048}, {vx[0]}")
    a(f"v_add_u32 {vx[3]}, {16*1280-2048}, {vx[1]}")
    a(f"s_mul_i32 {sXK}, {sRB}, {256*1280}")
    a(f"s_mul_i32 {sT1}, {sWV}, {32*1280}")
    a(f"s_add_u32 {sXK}, {sXK}, {sT1}")
    a(f"s_lshl_b32 {sM}, {sWV}, 12")
    sXA, sXB = S(6), S(7)
    if OPT['swp']:
        a(f"s_add_u32 {sTY}, {sC8}, {sR4}"); a(f"s_and_b32 {sTY}, {sTY}, 1")
        a(f"s_lshl_b32 {sT1}, {sTY}, 7"); a(f"s_add_u32 {sXK}, {sXK}, {sT1}")
    a(f"v_lshlrev_b32 {t2}, 3, {tid}")
    a(f"v_min_u32 {t2}, {163840 - CNT - 8}, {t2}")
    a(f"v_add_u32 {t2}, {CNT}, {t2}")
    a(f"v_mov_b32 {ta[0]}, 0"); a(f"v_mov_b32 {ta[1]}, 0")
    a(f"ds_write_b64 {t2}, {ta}")
    a(f"s_mul_i32 {sID}, {sT0}, 9"); a(f"s_add_u32 {sID}, {sID}, 1"); a(f"s_lshr_b32 {sID}, {sID}, 1")
    a(f"s_add_u32 {sID}, {sID}, {sC8}"); a(f"s_sub_u32 {sID}, {sID}, 3")
    a(f"s_and_b32 {sT1}, {sT0}, 1"); a(f"s_add_u32 {sT1}, {sT1}, {sC8}")
    a(f"s_mov_b32 {sC[0]}, {LOG2E:#x}")
    a(f"s_mov_b32 {sC[1]}, {LOG2E:#x}")
    sU1, sU2, sBK = S(100), S(101), S(95)
    vt1, vt2 = V(22), V(23)
    T2 = OPT['touch'] >= 2; T3 = OPT['touch'] == 3
    rTT = S(96, 4)
    def t2_all(b0):
        return [f"s_mul_i32 s4, {sBK}, {b0}", f"s_add_u32 s4, s4, {sU2}",
                f"v_add_u32 v21, s4, {vt2}", f"s_mov_b64 exec, 0xff\nbuffer_load_dword {tdum}, v21, {rTT}, 0 offen\ns_mov_b64 exec, -1"]
    OOL = []
    def t2_one(b, c8v):
        lb = a.newlabel('T2')
        body = (f"s_mul_i32 s4, {sBK}, {b}\ns_add_u32 s4, s4, {sU1}\nv_add_u32 v3, s4, {vt1}\n" + ("s_mov_b32 exec_hi, 0\n", "s_mov_b64 exec, 0xffff\n", "s_mov_b64 exec, 0xff\n")[OPT['hd']] +
                f"buffer_load_dword {tdum}, v3, {rTT}, 0 offen\ns_mov_b64 exec, -1\n")
        if OPT['trim']:
            OOL.append(f"{lb}o:\n" + body + f"s_branch {lb}")
            return [f"s_cmp_eq_u32 {'s94' if OPT['hd'] else sC8}, {c8v}\ns_cbranch_scc1 {lb}o\n{lb}:"]
        return [f"s_cmp_lg_u32 {sC8}, {c8v}\ns_cbranch_scc1 {lb}\n" + body + f"{lb}:"]
    if T2:
        a(f"s_lshr_b32 s9, {sWV}, 1")
        a(f"s_mov_b32 {rTT[2]}, {2048*1280}"); a(f"s_movk_i32 {sBK}, 128")
        a("s_cmp_eq_u32 s9, 1")
        a(f"s_cselect_b32 {rTT[2]}, {640*3840}, {rTT[2]}"); a(f"s_cselect_b32 {sBK}, {64*3840}, {sBK}")
        a("s_cmp_ge_u32 s9, 2")
        a(f"s_cselect_b32 {rTT[2]}, {640*3456}, {rTT[2]}"); a(f"s_cselect_b32 {sBK}, {64*3456}, {sBK}")
        a(f"s_mov_b32 {rTT[3]}, 0x20000")
        a("s_cmp_eq_u32 s9, 0")
        a("s_movk_i32 s7, 128"); a("s_cselect_b32 s5, 1280, s7"); a("s_cselect_b32 s6, 640, s7"); a("s_cselect_b32 s7, 512, 0")
        a(f"v_mul_u32_u24 {vt1}, s5, {lane}")
        a(f"v_mul_u32_u24 {vt2}, s6, {lane}")
        a(f"v_and_b32 {t0}, 1, {lane}"); a(f"v_mul_u32_u24 {t0}, s7, {t0}"); a(f"v_sub_u32 {vt2}, {vt2}, {t0}")
        a(f"s_and_b32 s4, {sWV}, 1")
        a(f"s_lshl1_add_u32 {sU2}, s2, s4"); a(f"s_lshl_b32 {sU2}, {sU2}, 3"); a(f"s_mul_i32 {sU2}, {sU2}, s6")
        a(f"s_and_b32 {sU1}, s2, 7"); a(f"s_lshl2_add_u32 {sU1}, {sU1}, {sR4}")
        a(f"s_lshl1_add_u32 {sU1}, {sU1}, s4")
        if OPT['hd'] == 1:
            a(f"s_and_b32 s4, {sC8}, 1"); a(f"s_lshl1_add_u32 {sU1}, {sU1}, s4"); a(f"s_lshl_b32 {sU1}, {sU1}, 4")
            a(f"s_add_u32 s94, {sC8}, 1"); a("s_lshr_b32 s94, s94, 1")
        elif OPT['hd'] == 2:
            a(f"s_and_b32 s4, {sC8}, 3"); a(f"s_lshl2_add_u32 {sU1}, {sU1}, s4"); a(f"s_lshl_b32 {sU1}, {sU1}, 3")
            a(f"s_add_u32 s94, {sC8}, 1"); a("s_lshr_b32 s94, s94, 2")
        else: a(f"s_lshl_b32 {sU1}, {sU1}, 5")
        a(f"s_mul_i32 {sU1}, {sU1}, s5")
        a(f"v_add_u32 {t4}, {sU2}, {vt2}")
        if eval(OPT['t2a'])[0]:
            a(f"s_mul_i32 s4, {sBK}, {eval(OPT['t2a'])[0]}"); a(f"v_add_u32 {t4}, s4, {t4}")
    a(f"s_mov_b32 {rX[2]}, {2048*1280}"); a(f"s_mov_b32 {rX[3]}, 0x20000")
    a(f"s_mov_b32 m0, {sM}")
    a("s_waitcnt lgkmcnt(0)")
    if T2:
        a("s_cmp_eq_u32 s9, 1"); a(f"s_cselect_b64 {rTT[0:2]}, {pQKV}, {pX}")
        a("s_cmp_eq_u32 s9, 2"); a(f"s_cselect_b64 {rTT[0:2]}, {pWG}, {rTT[0:2]}")
        a("s_cmp_eq_u32 s9, 3"); a(f"s_cselect_b64 {rTT[0:2]}, {pWU}, {rTT[0:2]}")
        a(f"s_and_b32 {rTT[1]}, {rTT[1]}, 0xffff")
        a("s_mov_b64 exec, 0xff"); a(f"buffer_load_dword {tdum}, {t4}, {rTT}, 0 offen"); a("s_mov_b64 exec, -1")
        for b0 in eval(OPT['t2a'])[1:]:
            for l in t2_all(b0): a(l)
    a(f"s_mov_b32 {rX[0]}, {pX[0]}"); a(f"s_and_b32 {rX[1]}, {pX[1]}, 0xffff")
    if OPT['x0e']:
        a(f"s_cmp_eq_u32 {sT1}, 8"); a("s_cbranch_scc1 NOX0")
        if OPT['sb1']: a("s_barrier")
        for n in range(4): a(f"buffer_load_dwordx4 {vx[n]}, {rX}, {sXK} offen offset:{n*1024} lds")
        a.label("NOX0")
    srd(a, rWS, pWS, WSZ)
    srd(a, rDBG, pDBG, 256)
    if OPT['tlb']:
        a(f"s_cmp_lg_u32 {sWV}, 6"); a("s_cbranch_scc1 NOTLB")
        srd(a, rA, pOUT, 2048 * 1280)
        a(f"v_lshlrev_b32 {t0}, {OPT['tlb']}, {lane}")
        a("s_lshl_b32 s6, s2, 7"); a(f"v_add_u32 {t0}, s6, {t0}")
        a(f"v_min_u32 {t1}, {0x1250000}, {t0}")
        a(f"buffer_load_dword v31, {t1}, {rWS}, 0 offen")
        a(f"buffer_load_dword v31, {t0}, {rA}, 0 offen")
        a.label("NOTLB")
    if OPT['cpf']:
        a(f"s_cmp_lg_u32 {sWV}, 7"); a("s_cbranch_scc1 NOCPF")
        a("s_getpc_b64 s[90:91]")
        a.label("CPF_PC")
        a("s_lshr_b32 s6, s2, 3"); a(f"s_mul_i32 s6, s6, {OPT['cpf']*128}")
        a(f"v_lshlrev_b32 {t0}, 7, {lane}"); a(f"v_add_u32 {t0}, s6, {t0}")
        a(f"v_min_u32 {t0}, K_LAST-CPF_PC, {t0}")
        a(f"s_mov_b64 exec, {(1 << OPT['cpf']) - 1:#x}")
        a(f"global_load_dword v31, {t0}, s[90:91]")
        a("s_mov_b64 exec, -1")
        a.label("NOCPF")
    if OPT['swp']: a(f"s_lshl_b32 s4, {sTY}, 8"); a(f"s_sub_u32 {sXA}, 128, s4"); a(f"s_add_u32 {sXB}, s4, 128")
    a(f"s_cmp_lt_u32 {sC8}, 3")
    a("s_cbranch_scc1 R_QKV")
    a(f"s_cmp_eq_u32 {sT1}, 8")
    a("s_cbranch_scc1 R_SPARE")

    def x_dma(vm, blk, half):
        if blk == 0 and OPT['x0e']:
            vm.issue(('X', 0)); vm.issue(('X', 0)); return []
        l = [f"s_add_u32 m0, {sM}, {(blk % 3) * XSLOT}"]
        if half == 0 and blk > 0: l.append(f"s_add_u32 {sXK}, {sXK}, {(sXA if blk % 2 else sXB) if OPT['swp'] else 128}")
        for n in (2 * half, 2 * half + 1):
            l.append(f"buffer_load_dwordx4 {vx[n]}, {rX}, {sXK} offen offset:{n*1024} {OPT['xfl']} lds")
            vm.issue(('X', blk))
        return l
    def x_addr_setup():
        a(f"v_lshrrev_b32 {t0}, 1, {vl15}")
        a(f"v_xor_b32 {t0}, {t0}, {vqd}")
        a(f"v_lshlrev_b32 {t0}, 4, {t0}")
        a(f"v_lshl_add_u32 {t0}, {vl15}, 7, {t0}")
        a(f"s_lshl_b32 {sT0}, {sRG}, 13")
        a(f"v_add_u32 {xa[0][0]}, {sT0}, {t0}")
        a(f"v_xor_b32 {xa[0][1]}, 64, {xa[0][0]}")
        a(f"v_add_u32 {xa[1][0]}, 0x10000, {xa[0][0]}")
        a(f"v_add_u32 {xa[1][1]}, 0x10000, {xa[0][1]}")
    def x_reads(XF, step):
        blk, kk = step // 2, step % 2
        sl = blk % 3
        return [f"ds_read_b128 {XF[tt]}, {xa[sl // 2][kk]} offset:{(sl % 2) * XSLOT + tt * 2048}" for tt in range(4)]
    def burst(vm, b0, b1):
        if OPT['touch'] not in (1, 3): return []
        l = []
        for st, reg in ((0, ta), (5, tb)):
            lo, hi = max(b0, st) - st, min(b1, st + 5) - st
            if lo >= hi: continue
            m = ((1 << (12 * hi)) - 1) & ~((1 << (12 * lo)) - 1)
            l += [f"s_mov_b32 exec_lo, {m & 0xffffffff:#x}", f"s_mov_b32 exec_hi, {m >> 32:#x}", f"global_load_dword {tdum}, {reg}, off"]
            vm.issue('T')
        l.append("s_mov_b64 exec, -1")
        return l
    def touch_setup(pw0, pw1, rowbytes, off0, off1, seg):
        if OPT['touch'] not in (1, 3): return
        l12, bi = tb[0], tb[1]; tinc = V(36)
        a(f"v_mul_u32_u24 {bi}, 43, {lane}"); a(f"v_lshrrev_b32 {bi}, 9, {bi}")
        a(f"v_mul_u32_u24 {l12}, 12, {bi}"); a(f"v_sub_u32 {l12}, {lane}, {l12}")
        a(f"s_lshl_b32 {sT2}, {sRB}, 3"); a(f"s_add_u32 {sT2}, {sT2}, {sC8}"); a(f"s_lshl_b32 {sT2}, {sT2}, 3"); a(f"s_add_u32 {sT2}, {sT2}, {sWV}")
        a(f"s_mul_i32 {sT2}, {sT2}, {4*1280}")
        a(f"v_mul_u32_u24 {t0}, 1280, {l12}")
        a(f"v_add_u32 {t0}, {sT2}, {t0}")
        a(f"s_lshl_b32 {sT0}, {sR4}, 3"); a(f"s_add_u32 {sT0}, {sT0}, {sWV}"); a(f"s_mul_i32 {sT0}, {sT0}, {2*rowbytes}")
        a(f"v_subrev_u32 {t1}, 4, {l12}")
        a(f"v_bfe_u32 {t2}, {t1}, 2, 1")
        a(f"v_mul_u32_u24 {t2}, {rowbytes}, {t2}")
        a(f"v_and_b32 {t3}, 1, {t1}")
        a(f"v_mul_u32_u24 {t3}, {seg-4}, {t3}")
        a(f"v_add3_u32 {t2}, {t2}, {t3}, {sT0}")
        a(f"v_and_b32 {t3}, 2, {t1}")
        a(f"v_cmp_eq_u32 vcc, 0, {t3}")
        a(f"v_mov_b32 {t3}, {off1}"); a(f"v_mov_b32 {t4}, {off0}")
        a(f"v_cndmask_b32 {t3}, {t3}, {t4}, vcc")
        a(f"v_add_u32 {t2}, {t2}, {t3}")
        a(f"v_mov_b32 {t3}, {pw1[0]}"); a(f"v_mov_b32 {t4}, {pw0[0]}"); a(f"v_cndmask_b32 {ta[0]}, {t3}, {t4}, vcc")
        a(f"v_mov_b32 {t3}, {pw1[1]}"); a(f"v_mov_b32 {t4}, {pw0[1]}"); a(f"v_cndmask_b32 {ta[1]}, {t3}, {t4}, vcc")
        a(f"v_cmp_gt_u32 vcc, 4, {l12}")
        a(f"v_mov_b32 {t3}, {pX[0]}"); a(f"v_mov_b32 {t4}, {pX[1]}")
        a(f"v_cndmask_b32 {t2}, {t2}, {t0}, vcc")
        a(f"v_cndmask_b32 {ta[0]}, {ta[0]}, {t3}, vcc")
        a(f"v_cndmask_b32 {ta[1]}, {ta[1]}, {t4}, vcc")
        a(f"v_mov_b32 {t3}, {64*rowbytes}"); a(f"v_mov_b32 {t4}, 128"); a(f"v_cndmask_b32 {tinc}, {t3}, {t4}, vcc")
        a(f"v_mad_u32_u24 {t2}, {tinc}, {bi}, {t2}")
        a(f"v_add_co_u32 {ta[0]}, vcc, {ta[0]}, {t2}")
        a(f"v_mul_u32_u24 {t2}, 5, {tinc}")
        a(f"v_addc_co_u32 {ta[1]}, vcc, 0, {ta[1]}, vcc")
        a(f"v_add_co_u32 {tb[0]}, vcc, {ta[0]}, {t2}")
        a(f"v_addc_co_u32 {tb[1]}, vcc, 0, {ta[1]}, vcc")
    def step_body(mains, lblk, pre=[]):
        for l in pre: a(l)
        if not lblk:
            for m in mains: a(m)
            return
        if OPT['pp'] == 2:
            rds = [l for l in lblk if l.startswith('ds_read')]; oth = [l for l in lblk if not l.startswith('ds_read')]
            l1, l2 = a.newlabel('PP'), a.newlabel('PP')
            if oth:
                a(f"s_cmp_eq_u32 {sHI}, 0"); a(f"s_cbranch_scc1 {l1}")
                for l in oth: a(l)
                a.label(l1)
            k = 0
            for i, m in enumerate(mains):
                a(m)
                while k < len(rds) and k < (i + 1) * max(1, -(-len(rds) // len(mains))):
                    a(rds[k]); k += 1
            if oth:
                a(f"s_cmp_eq_u32 {sHI}, 0"); a(f"s_cbranch_scc0 {l2}")
                for l in oth: a(l)
                a.label(l2)
        elif OPT['pp']:
            l1, l2 = a.newlabel('PP'), a.newlabel('PP')
            a(f"s_cmp_eq_u32 {sHI}, 0"); a(f"s_cbranch_scc1 {l1}")
            for l in lblk: l() if callable(l) else a(l)
            a.label(l1)
            for m in mains: a(m)
            a(f"s_cmp_eq_u32 {sHI}, 0"); a(f"s_cbranch_scc0 {l2}")
            for l in lblk: l() if callable(l) else a(l)
            a.label(l2)
        else:
            rds = [l for l in lblk if l.startswith('ds_read')]; oth = [l for l in lblk if not l.startswith('ds_read')]
            units = []; cur = []
            for l in oth:
                cur.append(l)
                if 'buffer_' in l or 'ds_write' in l: units.append(cur); cur = []
            if cur: units.append(cur)
            n = len(mains); mode = OPT['il']
            pos = {}
            if mode == 0:
                seq = [[r] for r in rds] + units
                for k, u in enumerate(seq): pos.setdefault(min(n - 1, k * n // max(len(seq), n)), []).extend(u)
            elif mode == 1:
                for k, u in enumerate(units): pos.setdefault(min(n - 1, 2 * k), []).extend(u)
                for k, r in enumerate(rds): pos.setdefault(min(n - 1, k * min(n, len(rds)) // len(rds) if len(rds) > n else k), []).append(r)
            elif mode == 2:
                for k, r in enumerate(rds): pos.setdefault(min(n - 1, k // 2), []).append(r)
                for k, u in enumerate(units): pos.setdefault(min(n - 1, len(rds) // 2 + 2 * k), []).extend(u)
            elif mode == 3:
                for k, u in enumerate(units): pos.setdefault(min(n - 1, 1 + k * (2 * n // 3) // max(1, len(units))), []).extend(u)
                for k, r in enumerate(rds): pos.setdefault(min(n - 1, k * min(n, len(rds)) // len(rds) if len(rds) > n else k), []).append(r)
            elif mode == 4:
                k = 0
                for i in range(n):
                    while k < len(lblk) and k < (i + 1) * len(lblk) // n + 1:
                        pos.setdefault(i, []).append(lblk[k]); k += 1
            for i, m in enumerate(mains):
                a(m)
                for l in pos.get(i, []): a(l)
    def init_check_issue(reg, off=128):
        return [f"v_mov_b32 {reg}, 0", f"buffer_load_dword {reg}, {reg}, {rDBG}, 0 offen offset:{off} sc1"]
    def init_check(reg, off=128, ool=False):
        ok = a.newlabel('INITOK')
        a(f"v_readfirstlane_b32 {sP[0]}, {reg}")
        if ool and OPT['trim']:
            a(f"s_cmp_eq_u32 {sP[0]}, 0"); a(f"s_cbranch_scc1 {ok}o"); a.label(ok)
            b = Asm(); b.uid = a.uid + 1000; init_poll(b, reg, off); a.uid += 5
            OOL.append(f"{ok}o:\n" + "\n".join(x.text for x in b.ins) + f"\ns_branch {ok}")
            return
        a(f"s_cmp_lg_u32 {sP[0]}, 0")
        a(f"s_cbranch_scc1 {ok}")
        init_poll(a, reg, off)
        a.label(ok)
    sR6, sCG, sAo, sBg, sBo, sLC, sH2, sRX = [S((16 if OPT['trim'] else 94) + i) for i in range(8)]
    vo, vo4 = V(20), V(21)
    vS2 = V(30)
    sO1, sO2 = S(79), S(80)
    BRb = [208, 228, 32, 52]
    BR = [[V(BRb[b] + 4 * j, 4) for j in range(5)] for b in range(4)]
    BR.append([V(200, 4), V(204, 4), V(248, 4), V(24, 4), V(28, 4)])
    NA = 3 if OPT['bx'] else 4
    GL = [4, 6, 7, 9]; LR = [2, 5, 3, 4]; CR = [0, 1, 6]
    GRP = {0:0, 1:1, 2:2, 3:3, 4:8, 6:9, 7:10, 9:11, 5:12, 8:13}
    if OPT['gf'] & 1:
        GL = [6, 7, 8, 9]; GRP = {0:0, 1:1, 2:2, 3:3, 6:8, 7:9, 8:10, 9:11, 4:12, 5:13}
    INP2 = [False]
    BS_ = 40960; GS_ = 4 * BS_
    CB0 = 38 * BS_; CA0 = 38 * 4096
    def p2_setup():
        if OPT['map2'] == 2:
            hd = [f"s_bfe_u32 {sR6}, s2, 0x10002", "s_lshr_b32 s4, s2, 4", f"s_lshl4_add_u32 {sR6}, {sR6}, s4",
                  f"s_lshr_b32 {sCG}, s2, 3", "s_lshr_b32 s4, s2, 6", f"s_add_u32 {sCG}, {sCG}, s4", f"s_and_b32 {sCG}, {sCG}, 1", "s_and_b32 s4, s2, 3", f"s_lshl1_add_u32 {sCG}, s4, {sCG}"]
        elif OPT['map2']:
            hd = [f"s_bfe_u32 {sR6}, s2, 0x20001", "s_lshr_b32 s4, s2, 5", f"s_lshl3_add_u32 {sR6}, {sR6}, s4",
                  f"s_lshr_b32 {sCG}, s2, 3", "s_lshr_b32 s4, s2, 6", f"s_add_u32 {sCG}, {sCG}, s4", f"s_and_b32 {sCG}, {sCG}, 3", "s_and_b32 s4, s2, 1", f"s_lshl2_add_u32 {sCG}, s4, {sCG}"]
        else:
            hd = [f"s_and_b32 {sR6}, s2, 7", f"s_lshl_b32 {sR6}, {sR6}, 2", "s_lshr_b32 s4, s2, 6", f"s_add_u32 {sR6}, {sR6}, s4",
             f"s_bfe_u32 {sCG}, s2, 0x30003", f"s_lshl1_add_u32 {sCG}, s4, {sCG}", f"s_and_b32 {sCG}, {sCG}, 7"]
        return hd + [f"v_lshlrev_b32 {vo}, 4, {lane}", f"v_add_u32 {vo4}, 4096, {vo}",
             f"s_lshl3_add_u32 {sBg}, {sRG}, {sCG}", f"s_mul_i32 {sBg}, {sBg}, 5120", f"s_add_u32 {sBg}, {sBg}, {BP}",
             f"s_mov_b32 {rB[0]}, {pWS[0]}", f"s_and_b32 {rB[1]}, {pWS[1]}, 0xffff", f"s_mul_i32 {rB[2]}, {sHI}, {WSZ}", f"s_mov_b32 {rB[3]}, 0x20000",
             f"s_mul_i32 {sLC}, {sRG}, 5120", f"s_mul_i32 {sH2}, {sHI}, {GS_}", f"s_mul_i32 {sRX}, {sHI}, 20480",
             f"s_xor_b32 s4, {sHI}, 1", f"s_mul_i32 {sBo}, s4, {16*BS_}", f"s_add_u32 {sBo}, {sBo}, {sBg}",
             f"s_mul_i32 {sAo}, {sR6}, 74", f"s_mul_i32 s4, s4, 16", f"s_add_u32 {sAo}, {sAo}, s4", f"s_add_u32 {sAo}, {sAo}, {sRG}", f"s_lshl_b32 {sAo}, {sAo}, 12",
             f"s_lshr_b32 s4, {sCG}, 1", "s_mul_i32 s4, s4, 5", f"s_mul_i32 {sO2}, {sR6}, 74", f"s_add_u32 {sO2}, {sO2}, s4", f"s_add_u32 {sO2}, {sO2}, 54",
             f"s_lshl2_add_u32 {sO2}, {sO2}, {sRG}", f"s_lshl_b32 {sO2}, {sO2}, 10", f"s_and_b32 s4, {sCG}, 1", f"s_mul_i32 {sO1}, s4, {3*4096}",
             f"s_add_u32 {sO1}, {sO1}, {sO2}", "s_lshl_b32 s4, s4, 9", f"s_add_u32 {sO2}, {sO2}, s4", f"s_add_u32 {sO2}, {sO2}, 8192",
             f"s_lshl_b32 s78, {sR6}, 7", f"s_add_u32 s78, s78, {FH + GOD}"]
    vFQ = V(31)
    def q_flag_issue(): return [f"v_mov_b32 {vFQ}, 0", f"buffer_load_dword {vFQ}, {vFQ}, {rWS}, s78 offen offset:4 sc1"]
    def poison(R4):
        if not OPT['sent']: return []
        lb = a.newlabel('PO')
        return [f"s_cmp_eq_u32 {sHI}, 1\ns_cbranch_scc1 {lb}\n" + "\n".join(f"v_mov_b32 {R4[i]}, -1" for i in range(4)) +
                f"\nbuffer_store_dwordx4 {R4}, {vo}, {rWS}, {sO1} offen {ST}\nbuffer_store_dwordx4 {R4}, {vo4}, {rWS}, {sO1} offen {ST}"
                f"\ns_mov_b32 exec_hi, 0\nbuffer_store_dwordx4 {R4}, {vo}, {rWS}, {sO2} offen {ST}\ns_mov_b32 exec_hi, -1\n{lb}:"]
    def b_reg(vm, i, tag, r=None, grp=None, ext=0, buf=None):
        b = i % 4 if buf is None else buf; r = r or rWS; grp = i if grp is None else grp
        if INP2[0] and OPT['nob'] == 1: r = rA
        if INP2[0] and OPT['nob'] == 2: return []
        l = [f"s_add_u32 s4, {sBo}, {grp*GS_ + ext}"]
        for j in range(5):
            if j < 4: l.append(f"buffer_load_dwordx4 {BR[b][j]}, {vo}, {r}, s4 offen offset:{j*1024} {LD}")
            else: l.append(f"buffer_load_dwordx4 {BR[b][j]}, {vo4}, {r}, s4 offen {LD}")
            vm.issue(tag)
        return l
    def b_row(vm, base, grp, row, extra=None, ext=0, hi3=False):
        l = [f"s_add_u32 s4, {base}, {grp*GS_ + ext}", f"s_add_u32 s5, {sLC}, {row*20480}"]
        if hi3: l += [f"s_add_u32 s4, s4, {sH2}", f"s_mul_i32 s6, {sRX}, 3", "s_add_u32 s5, s5, s6"]
        if extra: l += [f"s_add_u32 s4, s4, {sH2}", f"s_add_u32 s5, s5, {extra}"]
        l.append("s_mov_b32 m0, s5")
        if INP2[0] and OPT['nob'] == 2: return []
        for j in range(4):
            l.append(f"buffer_load_dwordx4 {vo}, {rWS}, s4 offen offset:{j*1024} {LD} lds"); vm.issue('BL')
        l.append("s_add_u32 m0, s5, 4096")
        l.append(f"buffer_load_dwordx4 {vo4}, {rWS}, s4 offen {LD} lds"); vm.issue('BL')
        return l
    def b_row_half(vm, k):
        l = [f"s_add_u32 s4, {sBg}, {GRP[GL[k]]*20480}", f"s_add_u32 s5, {sLC}, {LR[k]*20480}", f"s_add_u32 s4, s4, {sH2}", f"s_add_u32 m0, s5, {sH2}"]
        for j in range(3):
            l.append(f"buffer_load_dwordx4 {vo}, {rWS}, s4 offen offset:{j*1024} {LD} lds"); vm.issue('BL')
        return l
    sPF = S(8)
    def flag_store(need):
        a(f"s_mov_b32 {sNEED}, {need}")

    vw = [V(R0), V(R0 + 1)]; wa = [V(R0 + 2), V(R0 + 3), V(R0 + 4)]; vchk = V(R0 + 5)
    FB = [32, 72]
    XF = [[V(FB[b] + 4 * tt, 4) for tt in range(4)] for b in range(2)]
    WF = [[V(FB[b] + 16 + 4 * c, 4) for c in range(6)] for b in range(2)]
    ACC = [[V(112 + (c * 4 + tt) * 4, 4) for tt in range(4)] for c in range(6)]
    vm = VmTrack()
    a(f"s_mul_i32 {sT3}, {sID}, 192")
    touch_setup(pWG, pWU, 3456, sT3, sT3, 192)
    for l in burst(vm, *BS['p0']): a(l)
    a(f"s_bitcmp1_b32 {sWV}, 0")
    a(f"s_cselect_b32 {rW[0]}, {pWU[0]}, {pWG[0]}")
    a(f"s_cselect_b32 {rW[1]}, {pWU[1]}, {pWG[1]}")
    a(f"s_and_b32 {rW[1]}, {rW[1]}, 0xffff")
    a(f"s_mov_b32 {rW[2]}, {640*3456}")
    a(f"s_mov_b32 {rW[3]}, 0x20000")
    a(f"s_bfe_u32 {sT0}, {sWV}, 0x10001")
    a(f"s_lshl_b32 {sT1}, {sT0}, 1")
    for n in range(2):
        a(f"v_add_u32 {t0}, {64*n}, {lane}")
        a(f"v_mul_u32_u24 {t1}, 43, {t0}")
        a(f"v_lshrrev_b32 {t1}, 9, {t1}")
        a(f"v_mul_u32_u24 {t2}, 12, {t1}")
        a(f"v_sub_u32 {t2}, {t0}, {t2}")
        a(f"v_lshrrev_b32 {t3}, 2, {t2}")
        a(f"v_cmp_eq_u32 vcc, 1, {t3}")
        a(f"v_mov_b32 {t3}, {sT1}")
        a(f"v_mov_b32 {t4}, {sT0}")
        a(f"v_cndmask_b32 {t3}, {t3}, {t4}, vcc")
        a(f"v_xor_b32 {t2}, {t2}, {t3}")
        a(f"v_mul_u32_u24 {t1}, 3456, {t1}")
        a(f"v_lshl_add_u32 {vw[n]}, {t2}, 4, {t1}")
        if n: a(f"v_subrev_u32 {vw[n]}, 1024, {vw[n]}")
    a(f"s_lshr_b32 {sT0}, {sWV}, 1")
    a(f"s_mul_i32 {sWK}, {sT0}, {8*3456}")
    a(f"s_add_u32 {sWK}, {sWK}, {sT3}")
    a(f"s_mul_i32 {sMW}, {sT0}, 1536")
    a(f"s_and_b32 {sT1}, {sWV}, 1")
    a(f"s_mul_i32 {sT1}, {sT1}, 6144")
    a(f"s_add_u32 {sMW}, {sMW}, {sT1}")
    sW2 = S(54, 2)
    if OPT['swp']:
        a(f"s_mul_i32 {sT1}, {sTY}, {2*110592}"); a(f"s_add_u32 {sWK}, {sWK}, {sT1}"); a(f"s_lshl_b32 {sT1}, {sT1}, 1")
        a(f"s_sub_u32 {sW2[0]}, 110592, {sT1}"); a(f"s_add_u32 {sW2[1]}, {sT1}, 110592")
    def w_dma(step):
        l = [f"s_add_u32 m0, {sMW}, {WB + (step % 5) * 12288}"] + ([f"s_add_u32 {sWK}, {sWK}, {(110592 if step % 2 or not OPT['swp'] else (sW2[0] if step % 4 == 2 else sW2[1]))}"] if step else []) + [
             f"buffer_load_dwordx4 {vw[0]}, {rW}, {sWK} offen {OPT['wfl']} lds",
             "s_mov_b32 exec_hi, 0\n"
             f"buffer_load_dwordx4 {vw[1]}, {rW}, {sWK} offen offset:1024 {OPT['wfl']} lds\n"
             "s_mov_b32 exec_hi, -1"]
        vm.issue(('W', step)); vm.issue(('W', step))
        return l
    if OPT['sb1'] and not OPT['x0e']: a("s_barrier")
    for l in x_dma(vm, 0, 0) + x_dma(vm, 0, 1) + w_dma(0) + w_dma(1): a(l)
    x_addr_setup()
    a(f"v_lshl_add_u32 {t0}, {vqd}, 3, {vr}")
    a(f"v_mul_u32_u24 {t0}, 192, {t0}")
    a(f"v_add_u32 {t0}, {WB}, {t0}")
    a(f"v_and_b32 {t1}, 1, {vqd}")
    a(f"v_lshlrev_b32 {t2}, 5, {t1}")
    a(f"v_lshl_add_u32 {t2}, {vc}, 3, {t2}")
    a(f"s_lshl_b32 {sT0}, {sHI}, 7")
    a(f"v_add3_u32 {wa[0]}, {t0}, {t2}, {sT0}")
    a(f"v_xor_b32 {wa[1]}, 32, {wa[0]}")
    a(f"v_and_b32 {t2}, 2, {vc}")
    a(f"v_add_u32 {t2}, {sHI}, {t2}")
    a(f"v_xor_b32 {t2}, {t2}, {t1}")
    a(f"v_lshlrev_b32 {t2}, 4, {t2}")
    a(f"v_and_b32 {t3}, 1, {vc}")
    a(f"v_lshl_add_u32 {t2}, {t3}, 3, {t2}")
    a(f"v_add3_u32 {wa[2]}, {t0}, {t2}, 64")
    def w_reads(WFb, step):
        return [f"ds_read_b64_tr_b16 {WFb[m*3+i][2*rd:2*rd+2]}, {wa[i]} offset:{(step % 5) * 12288 + m * 6144 + rd * 768}"
                for m in range(2) for i in range(3) for rd in range(2)]
    def t2b_emit():
        if T2:
            for b0 in eval(OPT['t2b']):
                for l in t2_all(b0): a(l)
                vm.issue('T')
    if OPT['t2pos'] == 1:
        if OPT['sb2']: a("s_barrier")
        t2b_emit()
    if OPT['trim']:
        for l in p2_setup(): a(l)
    n = vm.wait_for(lambda t: t in (('X', 0), ('W', 0)))
    a(f"s_waitcnt vmcnt({n})")
    a("s_barrier")
    stamp(a, 1)
    for l in x_reads(XF[0], 0) + w_reads(WF[0], 0): a(l)
    if OPT['fill'] == 0:
        for l in x_dma(vm, 1, 0) + x_dma(vm, 1, 1) + w_dma(2): a(l)
        if OPT['t2pos'] == 2: t2b_emit()
    fq = []
    for st in range(2, 20):
        if st % 2 == 0:
            b = st // 2
            fq += [('X', b, 0, max(0, 2*(b-3)+1)), ('X', b, 1, max(0, 2*(b-3)+1))]
        fq.append(('W', st, 0, max(0, st - 5)))
    for j in range(20):
        cur, nxt = j & 1, (j & 1) ^ 1
        CHK = OPT['chk']
        NB = OPT['nobar']
        if j < NB:
            n = vm.wait_for(lambda t: t in (('X', (j + 1) // 2), ('W', j + 1)) or (j == CHK and t == 'chk') or (j == 16 and t == 'chk2') or (j == NB - 1 and t[0] in 'XW'))
            a(f"s_waitcnt vmcnt({n}) lgkmcnt(0)")
            if j == CHK: init_check(vchk, 128, True)
            if j == 16: init_check(vS2, 136, True)
            a("s_barrier")
        else:
            a("s_waitcnt lgkmcnt(0)")
        sstamp(a, j)
        mains = [f"v_mfma_f32_16x16x32_bf16 {ACC[c][tt]}, {WF[cur][c]}, {XF[cur][tt]}, {'0' if j == 0 else ACC[c][tt]}" for c in range(6) for tt in range(4)]
        pre = burst(vm, *BS[j]) if j in BS else []
        lblk = []
        if j < 19:
            lblk += x_reads(XF[nxt], j + 1) + w_reads(WF[nxt], j + 1)
            if OPT['fill']:
                cnt = OPT['fill'] + (1 if j == 0 else 0)
                while cnt and fq and fq[0][3] <= j:
                    it = fq.pop(0); cnt -= 1
                    lblk += x_dma(vm, it[1], it[2]) if it[0] == 'X' else w_dma(it[1])
            if j == 0 and not OPT['fill']: lblk += w_dma(3) + x_dma(vm, 2, 0) + x_dma(vm, 2, 1) + w_dma(4)
            xb = (j - 1) // 2 + 3 if j >= 1 else 99
            if xb <= 9 and not OPT['fill']: lblk += x_dma(vm, xb, (j - 1) % 2)
            if T2 and j in eval(OPT['t2f']): lblk += t2_one(*eval(OPT['t2f'])[j])
            if j == CHK - 2: lblk += init_check_issue(vchk); vm.issue('chk')
            if j + 5 <= 19 and not OPT['fill']: lblk += w_dma(j + 5)
            if j == 10 and not OPT['trim']: lblk += p2_setup()
            if j == OPT['pj']: lblk += poison(V(248, 4))
            if OPT['lbt'] and j == OPT['lbt']: LBT = [f"s_bfe_u32 s4, {sC8}, 0x10001", f"s_lshl3_add_u32 s4, s4, {sWV}", f"s_mul_i32 s4, s4, {65*128}", f"s_mul_i32 s5, {sCG}, {74*5120}",
                     "s_add_u32 s4, s4, s5", f"s_add_u32 s4, s4, {BP + 48*5120}", f"v_lshlrev_b32 v3, 7, {lane}", f"buffer_load_dword {tdum}, v3, {rWS}, s4 offen sc1"]
            else: LBT = []
            if j == CHK: hq = b_reg(VmTrack(), 0, 'B') + b_reg(VmTrack(), 1, 'B'); hq = [hq[0:3], hq[3:5], [hq[5]] + hq[6:8], hq[8:10], hq[10:12]]
            JJ = [CHK, CHK + 1, CHK + 2, 15, 18]
            if j in JJ:
                q = JJ.index(j)
                if not hq[q][0].startswith('s_'): lblk.append(f"s_add_u32 s4, {sBo}, {0 if q < 3 else GS_}")
                lblk += hq[q]; vm.issue('B'); vm.issue('B')
            if j == 14: lblk += init_check_issue(vS2, 136); vm.issue('chk2')
            if j == 16: lblk += b_row(vm, sBg, GRP[GL[0]], LR[0], None, 0, True)
            if j == 17: lblk += b_row(vm, sBg, GRP[GL[2]], LR[2], sRX)
        else:
            if OPT['b23'] == 0: lblk += b_reg(vm, 2, 'B') + b_reg(vm, 3, 'B')
            if OPT['b23'] == 2: lblk += b_reg(vm, 2, 'B')
        if j < 19: lblk += LBT
        step_body(mains, lblk, pre)
    stamp(a, 2)
    a(f"s_setprio {OPT['eprio']}")
    sN = S(82, 2)
    a(f"s_mov_b32 {sN[0]}, {NLOG2E:#x}")
    a(f"s_mov_b32 {sN[1]}, {NLOG2E:#x}")
    a(f"s_lshl_b32 {sT3}, {sRB}, 2")
    a(f"s_add_u32 {sT3}, {sT3}, {sRG}")
    a(f"s_mul_i32 {sT0}, {sT3}, 74")
    a(f"s_mul_i32 {sT1}, {sID}, 3")
    a(f"s_add_u32 {sT0}, {sT0}, {sT1}")
    a(f"s_lshl_b32 {sT0}, {sT0}, 12")
    a(f"s_lshl_b32 {sT1}, {sHI}, 13")
    a(f"s_add_u32 {sT1}, {sT0}, {sT1}")
    a(f"s_lshl_b32 {sT2}, {sHI}, 9")
    a(f"s_add_u32 {sT2}, {sT2}, {sT0}")
    a(f"s_add_u32 {sT2}, {sT2}, 4096")
    a(f"s_lshl_b32 {sFLAG}, {sT3}, 7")
    a(f"s_add_u32 {sFLAG}, {sFLAG}, {FH}")
    a(f"v_lshlrev_b32 {t0}, 4, {lane}")
    a(f"v_and_b32 {t1}, 31, {lane}")
    a(f"v_lshlrev_b32 {t1}, 4, {t1}")
    a(f"v_lshrrev_b32 {t2}, 5, {lane}")
    a(f"v_lshl_add_u32 {t1}, {t2}, 10, {t1}")
    tmp = [V(FB[1] + 4 * i, 4) for i in range(2)]
    outs = [V(FB[1] + 8 + 4 * i, 4) for i in range(6)]
    cnt_ = [0]
    def silu2(G0, U0, G1, U1, o):
        GU = ((G0, U0, tmp[0]), (G1, U1, tmp[1]))
        pk = cnt_[0] >= OPT['npk']; cnt_[0] += 1
        for G, U, T in GU:
            if pk:
                for h in range(2): a(f"v_pk_mul_f32 {T[2*h:2*h+2]}, {G[2*h:2*h+2]}, {sN}")
            else:
                for k in range(4): a(f"v_mul_f32 {T[k]}, {sN[0]}, {G[k]}")
        for G, U, T in GU:
            for k in range(4): a(f"v_exp_f32 {T[k]}, {T[k]}")
        for G, U, T in GU:
            if pk:
                for h in range(2): a(f"v_pk_mul_f32 {G[2*h:2*h+2]}, {G[2*h:2*h+2]}, {U[2*h:2*h+2]}")
            else:
                for k in range(4): a(f"v_mul_f32 {G[k]}, {G[k]}, {U[k]}")
        for G, U, T in GU:
            if pk:
                for h in range(2): a(f"v_pk_add_f32 {T[2*h:2*h+2]}, {T[2*h:2*h+2]}, 1.0 op_sel_hi:[1,0]")
            else:
                for k in range(4): a(f"v_add_f32 {T[k]}, 1.0, {T[k]}")
        for G, U, T in GU:
            for k in range(4): a(f"v_rcp_f32 {T[k]}, {T[k]}")
        for G, U, T in GU:
            if pk:
                for h in range(2): a(f"v_pk_mul_f32 {G[2*h:2*h+2]}, {G[2*h:2*h+2]}, {T[2*h:2*h+2]}")
            else:
                for k in range(4): a(f"v_mul_f32 {G[k]}, {G[k]}, {T[k]}")
        for q, (G, U, T) in enumerate(GU):
            for h in range(2): a(f"v_cvt_pk_bf16_f32 {o[2*q+h]}, {G[2*h]}, {G[2*h+1]}")
    for tt in range(4):
        o = outs[tt]
        silu2(ACC[0][tt], ACC[3][tt], ACC[1][tt], ACC[4][tt], o)
        a(f"buffer_store_dwordx4 {o}, {t0}, {rWS}, {sT1} offen offset:{tt*1024} {ST}")
    for l in q_flag_issue(): a(l)
    for tp in range(2):
        o = outs[4 + tp]
        silu2(ACC[2][2*tp], ACC[5][2*tp], ACC[2][2*tp+1], ACC[5][2*tp+1], o)
        a(f"v_permlane32_swap_b32 {o[0]}, {o[2]}")
        a(f"v_permlane32_swap_b32 {o[1]}, {o[3]}")
        a(f"buffer_store_dwordx4 {o}, {t1}, {rWS}, {sT2} offen offset:{tp*2048} {ST}")
    flag_store(35)
    a("s_waitcnt vmcnt(2)")
    a(f"s_mov_b32 {sPF}, 0")
    a("s_branch P2")

    for l in OOL: a(l)
    OOL.clear()
    a.label('R_QKV')
    vm = VmTrack()
    vw = [V(R0), V(R0 + 1), V(R0 + 2)]; wa = V(R0 + 3); pa = V(R0 + 4); vchk = V(R0 + 5); vgw = V(R0 + 6)
    FB = [32, 68]
    XF = [[V(FB[b] + 4 * tt, 4) for tt in range(4)] for b in range(2)]
    WF = [[V(FB[b] + 16 + 4 * c, 4) for c in range(5)] for b in range(2)]
    ACC = [V(104 + 20 * tt, 20) for tt in range(4)]
    pf4 = [V(32 + 4 * i, 4) for i in range(9)] + [V(196, 4)]
    pf2 = [V(200, 2), V(202, 2), V(204, 2), V(206, 2), V(248, 2)]
    PF = [[pf4[2 * t], pf4[2 * t + 1], pf2[t]] for t in range(5)]
    WP = V(184, 4); GWF = V(188, 4); GA = V(192, 4)
    sC0, sC1, sLo, sHi2, sISQ, sHB, sGD = [S(77 + i) for i in range(7)]
    PHW = 135168; PHB = 0; VVB = 90112; PS = 352
    srd(a, rW, pQKV, 640 * 3840)
    srd(a, rA, pPHI, 32 * 800)
    a(f"s_lshl_b32 {sID}, {sT0}, 1"); a(f"s_add_u32 {sID}, {sID}, {sC8}")
    a(f"s_mul_i32 {sC0}, {sID}, 160")
    a(f"s_add_u32 {sC1}, {sC0}, 2560")
    a(f"s_add_u32 {sC0}, {sC0}, 1280")
    a(f"s_lshl_b32 {sHB}, {sID}, 2")
    a(f"s_mul_i32 {sT1}, {sT0}, 320")
    a(f"s_add_u32 {sT2}, {sT1}, 160")
    a(f"s_lshl_b32 {sT3}, {sT0}, 3")
    a(f"s_cmp_eq_u32 {sC8}, 2")
    a(f"s_cselect_b32 {sC0}, {sT1}, {sC0}")
    a(f"s_cselect_b32 {sC1}, {sT2}, {sC1}")
    a(f"s_cselect_b32 {sHB}, {sT3}, {sHB}")
    a(f"s_cselect_b32 {sISQ}, 1, 0")
    a(f"s_bitcmp1_b32 {sWV}, 0")
    a(f"s_cselect_b32 {sLo}, {sC1}, {sC0}")
    a(f"s_cselect_b32 {sHi2}, {sC0}, {sC1}")
    a(f"s_sub_u32 {sHi2}, {sHi2}, 160")
    touch_setup(pQKV, pQKV, 3840, sC0, sC1, 160)
    for l in burst(vm, *BS['p0']): a(l)
    for n in range(3):
        a(f"v_add_u32 {t0}, {64*n}, {lane}")
        a(f"v_mul_u32_u24 {t1}, 205, {t0}")
        a(f"v_lshrrev_b32 {t1}, 12, {t1}")
        a(f"v_mul_u32_u24 {t2}, 20, {t1}")
        a(f"v_sub_u32 {t2}, {t0}, {t2}")
        a(f"v_cmp_le_u32 vcc, 10, {t2}")
        a(f"v_mov_b32 {t3}, {sLo}")
        a(f"v_mov_b32 {t4}, {sHi2}")
        a(f"v_cndmask_b32 {t3}, {t3}, {t4}, vcc")
        a(f"v_mul_u32_u24 {t1}, 3840, {t1}")
        a(f"v_lshl_add_u32 {t1}, {t2}, 4, {t1}")
        a(f"v_add_u32 {vw[n]}, {t1}, {t3}")
        if n: a(f"v_subrev_u32 {vw[n]}, {1024*n}, {vw[n]}")
    a(f"s_mul_i32 {sWK}, {sWV}, {8*3840}")
    a(f"s_mul_i32 {sMW}, {sWV}, 2560")
    sW3 = [S(83), S(9)]
    if OPT['swp']:
        a(f"s_mul_i32 {sT1}, {sTY}, 245760"); a(f"s_add_u32 {sWK}, {sWK}, {sT1}"); a(f"s_lshl_b32 {sT1}, {sT1}, 1")
        a(f"s_sub_u32 {sW3[0]}, 245760, {sT1}"); a(f"s_add_u32 {sW3[1]}, {sT1}, 245760")
    def w_dma2(blk):
        l = [f"s_add_u32 m0, {sMW}, {WB + (blk % 3) * 20480}"] + ([f"s_add_u32 {sWK}, {sWK}, {(sW3[0] if blk % 2 else sW3[1]) if OPT['swp'] else 245760}"] if blk else []) + [
             f"buffer_load_dwordx4 {vw[0]}, {rW}, {sWK} offen {OPT['wfl']} lds",
             f"buffer_load_dwordx4 {vw[1]}, {rW}, {sWK} offen offset:1024 {OPT['wfl']} lds",
             "s_mov_b32 exec_hi, 0\n"
             f"buffer_load_dwordx4 {vw[2]}, {rW}, {sWK} offen offset:2048 {OPT['wfl']} lds\n"
             "s_mov_b32 exec_hi, -1"]
        for _ in range(3): vm.issue(('W', blk))
        return l
    a(f"v_lshlrev_b32 {t0}, 4, {tid}")
    a(f"s_mul_i32 {sT0}, {sHB}, 800")
    a(f"v_add_u32 {t0}, {sT0}, {t0}")
    a(f"buffer_load_dwordx4 {WP}, {t0}, {rA}, 0 offen"); vm.issue(('P', 0))
    if OPT['sb1'] and not OPT['x0e']: a("s_barrier")
    for l in x_dma(vm, 0, 0) + x_dma(vm, 0, 1) + w_dma2(0): a(l)
    x_addr_setup()
    a(f"v_lshl_add_u32 {t0}, {vqd}, 3, {vr}")
    a(f"v_mul_u32_u24 {t0}, 320, {t0}")
    a(f"v_and_b32 {t1}, 1, {vqd}")
    a(f"v_xor_b32 {t1}, {sHI}, {t1}")
    a(f"v_mul_u32_u24 {t1}, 160, {t1}")
    a(f"v_mul_u32_u24 {t2}, 40, {vc}")
    a(f"v_add3_u32 {t0}, {t0}, {t1}, {t2}")
    a(f"v_add_u32 {wa}, {WB}, {t0}")
    a(f"s_and_b32 {sT0}, {sHI}, {sISQ}")
    a(f"s_mul_i32 {sT0}, {sT0}, 3200")
    a(f"s_add_u32 {sT0}, {sT0}, {PHW}")
    a(f"v_mul_u32_u24 {t0}, 800, {vqd}")
    a(f"v_add_u32 {t0}, {sT0}, {t0}")
    a(f"v_mov_b32 {t1}, {ZERO}")
    a(f"v_cmp_eq_u32 vcc, {vc}, {vqd}")
    a(f"v_cndmask_b32 {t0}, {t1}, {t0}, vcc")
    a(f"v_mul_u32_u24 {t1}, 40, {vr}")
    a(f"v_add_u32 {pa}, {t0}, {t1}")
    def w_reads2(WFb, step):
        blk, kk = step // 2, step % 2
        return [f"ds_read_b64_tr_b16 {WFb[t][2*rd:2*rd+2]}, {wa} offset:{(blk % 3) * 20480 + kk * 10240 + rd * 1280 + 8 * t}" for t in range(5) for rd in range(2)]
    def t2b_emit():
        if T2:
            for b0 in eval(OPT['t2b']):
                for l in t2_all(b0): a(l)
                vm.issue('T')
    if OPT['t2pos'] == 1:
        if OPT['sb2']: a("s_barrier")
        t2b_emit()
    if OPT['trim']:
        for l in p2_setup(): a(l)
    n = vm.wait_for(lambda t: t in (('X', 0), ('W', 0)))
    a(f"s_waitcnt vmcnt({n})")
    a("s_barrier")
    stamp(a, 1)
    for l in x_reads(XF[0], 0) + w_reads2(WF[0], 0): a(l)
    if OPT['fill'] == 0:
        for l in x_dma(vm, 1, 0) + x_dma(vm, 1, 1) + w_dma2(1): a(l)
        if OPT['t2pos'] == 2: t2b_emit()
    fq = []
    for b in range(1, 10):
        fq += [('X', b, max(0, 2*(b-3)+1)), ('W', b, max(0, 2*(b-3)+1))]
    for j in range(20):
        cur, nxt = j & 1, (j & 1) ^ 1
        if j % 2 == 1:
            if j < 19:
                n = vm.wait_for(lambda t: t in (('X', (j + 1) // 2), ('W', (j + 1) // 2)) or (j == 17 and t == 'chk'))
                a(f"s_waitcnt vmcnt({n}) lgkmcnt(0)")
            else: a("s_waitcnt lgkmcnt(0)")
            if j == 17: init_check(vchk, 128, True)
            a("s_barrier")
        else:
            a("s_waitcnt lgkmcnt(0)")
            if OPT['pp'] or OPT['qbar']: a("s_barrier")
        sstamp(a, j)
        mains = [f"v_mfma_f32_16x16x32_bf16 {ACC[tt][4*t:4*t+4]}, {WF[cur][t]}, {XF[cur][tt]}, {'0' if j == 0 else ACC[tt][4*t:4*t+4]}" for t in range(5) for tt in range(4)]
        pre = burst(vm, *BS[j]) if j in BS else []
        lblk = []
        if j < 19:
            lblk += x_reads(XF[nxt], j + 1) + w_reads2(WF[nxt], j + 1)
            if OPT['fill']:
                cnt = 2 if j in (0, 1, 3, 5) else 1
                while cnt and fq and fq[0][2] <= j:
                    it = fq.pop(0); cnt -= 1
                    lblk += x_dma(vm, it[1], 0) + x_dma(vm, it[1], 1) if it[0] == 'X' else w_dma2(it[1])
            if j == 0 and not OPT['fill']: lblk += x_dma(vm, 2, 0) + x_dma(vm, 2, 1) + w_dma2(2)
            xb = (j - 1) // 2 + 3 if j >= 1 else 99
            if xb <= 9 and not OPT['fill']:
                if j % 2 == 1: lblk += x_dma(vm, xb, 0) + x_dma(vm, xb, 1)
                else: lblk += w_dma2(xb)
            if T2 and j in eval(OPT['t2q']): lblk += t2_one(*eval(OPT['t2q'])[j])
            if OPT['tw'] and j == 2:
                sh = OPT['tw']; npg = (0x1250000 >> sh) + 1
                lanes = min(64, -(-npg // 32)); ninst = -(-npg // (32 * lanes))
                body = f"s_lshl3_add_u32 s4, {sR4}, {sWV}\ns_mul_i32 s4, s4, {lanes}\nv_add_u32 v3, s4, {lane}\nv_lshlrev_b32 v3, {sh}, v3\ns_mov_b64 exec, {hex((1 << lanes) - 1) if lanes < 32 else -1}\n"
                for i in range(ninst):
                    body += f"buffer_load_dword {tdum}, v3, {rWS}, 0 offen offset:3968\nv_add_u32 v3, {32*lanes << sh}, v3\n"
                body += "s_mov_b64 exec, -1\n"
                OOL.append("TWo:\n" + body + "s_branch TWb")
                lblk += [f"s_cmp_eq_u32 {sC8}, 2\ns_cbranch_scc1 TWo\nTWb:"]
            if j == 15: lblk += init_check_issue(vchk); vm.issue('chk')
            if j == 17:
                lblk += [f"v_lshlrev_b32 {t0}, 4, {tid}", f"v_add_u32 {t0}, {PHW}, {t0}", f"ds_write_b128 {t0}, {WP}"]
            if j == 10 and not OPT['trim']: lblk += p2_setup()
            if j == 17: lblk += poison(V(208, 4))

        else:
            for t in range(5):
                for s in range(3):
                    for r_ in range(2 if s < 2 else 1):
                        lblk.append(f"ds_read_b64_tr_b16 {PF[t][s][2*r_:2*r_+2]}, {pa} offset:{s*320 + r_*160 + t*8}")
        step_body(mains, lblk, pre)
    stamp(a, 2)
    a("s_setprio 2")
    QB = V(68, 40); P = V(108, 20); E = V(128, 40); O = V(168, 20); M = V(250, 4); T = V(188, 4); ONE = V(192, 2)
    sCNT = S(8); sOUT = S(9)
    def cvt_tile(dst, tt):
        for i in range(10): a(f"v_cvt_pk_bf16_f32 {dst[i]}, {ACC[tt][2*i]}, {ACC[tt][2*i+1]}")
    def pk_list(q, P=P):
        l = []
        for s_ in range(3):
            for t in range(5):
                d = P[4*t:4*t+4]
                if s_ < 2: l.append(f"v_mfma_f32_16x16x32_bf16 {d}, {PF[t][s_]}, {q[4*s_:4*s_+4]}, {'0' if s_ == 0 else d}")
                else: l.append(f"v_mfma_f32_16x16x16_bf16 {d}, {PF[t][s_]}, {q[8:10]}, {d}")
        return l
    a(f"s_lshl_b32 {sT3}, {sRB}, 2")
    a(f"s_add_u32 {sT3}, {sT3}, {sRG}")
    a(f"s_cmp_eq_u32 {sISQ}, 0")
    a("s_cbranch_scc1 R_KV")
    for tt in range(4): cvt_tile(QB[10*tt:10*tt+10], tt)
    a("s_waitcnt lgkmcnt(0)")
    PT = [V(108 + 20*i, 20) for i in range(4)]
    a(f"s_lshr_b32 {sT1}, {sHB}, 2")
    a(f"s_add_u32 {sT1}, {sT1}, {sHI}")
    a(f"s_lshl_b32 {sOUT}, {sT3}, 3")
    a(f"s_add_u32 {sOUT}, {sOUT}, {sT1}")
    a(f"s_mul_i32 {sOUT}, {sOUT}, 10240")
    a(f"s_add_u32 {sOUT}, {sOUT}, {PQ}")
    a(f"s_add_u32 {sT0}, {sOUT}, 8192")
    a(f"s_lshl_b32 {sFLAG}, {sT3}, 7")
    a(f"s_add_u32 {sFLAG}, {sFLAG}, {FH + 4}")
    QO = [V(208 + 8*i, 8) for i in range(4)]; QT = [V(240, 4), V(244, 4)]
    def q_out(tt):
        l = [f"v_cvt_pk_bf16_f32 {QO[tt][i] if i < 8 else QT[tt//2][2*(tt%2) + i - 8]}, {PT[tt][2*i]}, {PT[tt][2*i+1]}" for i in range(10)]
        for h in range(2): l.append(f"buffer_store_dwordx4 {QO[tt][4*h:4*h+4]}, {vo if tt < 2 else vo4}, {rWS}, {sOUT} offen offset:{(tt%2)*2048 + h*1024} {ST}")
        if tt % 2: l.append(f"buffer_store_dwordx4 {QT[tt//2]}, {vo}, {rWS}, {sT0} offen offset:{(tt//2)*1024} {ST}")
        return l
    for tt in range(4):
        side = q_out(tt - 1) if tt else []
        for i, l in enumerate(pk_list(QB[10*tt:10*tt+10], PT[tt])):
            a(l)
            if i >= 2 and side: a(side.pop(0))
    for l in q_out(3): a(l)
    if OPT['gq']:
        GW = [V(72 + 4*i, 4) for i in range(5)]
        GX = [[V(96 + (g*5 + i)*4, 4) for i in range(5)] for g in range(2)]
        GA = [V(92), V(93)]
        srd(a, rW, pGW, 1280)
        a(f"v_lshlrev_b32 {t0}, 4, {vl15}")
        for i in range(5): a(f"buffer_load_dwordx4 {GW[i]}, {t0}, {rW}, 0 offen offset:{i*256}")
        a(f"v_mul_u32_u24 {t1}, 1280, {vqd}"); a(f"v_add_u32 {t0}, {t0}, {t1}")
        a(f"s_lshr_b32 {sT3}, {sHB}, 3"); a(f"s_lshl2_add_u32 {sT3}, {sRB}, {sT3}")
        a(f"s_lshl3_add_u32 {sT1}, {sT3}, {sWV}")
        a(f"s_mul_i32 {sT2}, {sT1}, {8*1280}")
        for g in range(2):
            for i in range(5): a(f"buffer_load_dwordx4 {GX[g][i]}, {t0}, {rX}, {sT2} offen offset:{i*256}")
            if g == 0: a(f"s_add_u32 {sT2}, {sT2}, {4*1280}")
        for g in range(2): a(f"v_mov_b32 {GA[g]}, 0")
        arrive(a, sFLAG, 7, t2, t3, 15)
        for i in range(5):
            for k in range(4):
                for g in range(2): a(f"v_dot2c_f32_bf16 {GA[g]}, {GX[g][i][k]}, {GW[i][k]}")
        for sh in (8, 4, 2, 1):
            for g in range(2): a(f"v_add_f32_dpp {GA[g]}, {GA[g]}, {GA[g]} row_ror:{sh} row_mask:0xf bank_mask:0xf")
        a(f"v_cmp_eq_u32 vcc, 1, {vl15}"); a(f"v_cndmask_b32 {t2}, {GA[0]}, {GA[1]}, vcc")
        a(f"v_mul_f32 {t2}, {LOG2E:#x}, {t2}"); a(f"v_min_f32 {t2}, 0x42a00000, {t2}"); a(f"v_exp_f32 {t2}, {t2}")
        a(f"v_lshl_add_u32 {t0}, {vl15}, 2, {vqd}"); a(f"v_lshlrev_b32 {t3}, 2, {t0}")
        a(f"s_lshl_b32 {sT2}, {sT1}, 5"); a(f"s_add_u32 {sT2}, {sT2}, {GOFF}")
        a("s_mov_b32 exec_lo, 0x00030003"); a("s_mov_b32 exec_hi, 0x00030003")
        a(f"buffer_store_dword {t2}, {t3}, {rWS}, {sT2} offen {ST}")
        a("s_mov_b64 exec, -1")
        a(f"s_lshl_b32 {sFLAG}, {sT3}, 7"); a(f"s_add_u32 {sFLAG}, {sFLAG}, {FH + 12}")
    flag_store(7)
    a(f"v_mov_b32 {vFQ}, 0")
    a(f"s_mov_b32 {sPF}, 6")
    a("s_branch P2")
    a.label('R_KV')
    a(f"s_lshl_b32 {sT1}, {sRG}, 1"); a(f"s_add_u32 {sT0}, {sT1}, 1"); a(f"s_mul_i32 {sT0}, {sT0}, {32*PS}")
    a(f"v_add_u32 {t0}, {sT0}, {vo}")
    a(f"s_mov_b32 {sCNT}, 2")
    a(f"s_cmp_eq_u32 {sHI}, 1")
    a("s_cbranch_scc1 R_V")
    if OPT['trim']:
        cvt_tile(QB[0:10], 0)
        cvt_tile(QB[20:30], 2); cvt_tile(QB[30:40], 3)
        a("s_waitcnt lgkmcnt(0)")
        for i in range(5): a(f"ds_write_b128 {t0}, {QB[20+4*i:24+4*i]} offset:{i*1024}")
        cv = [f"v_cvt_pk_bf16_f32 {QB[10+i]}, {ACC[1][2*i]}, {ACC[1][2*i+1]}" for i in range(10)]
        a(cv.pop(0)); a(cv.pop(0))
        for i, l in enumerate(pk_list(QB[0:10])):
            a(l)
            if cv: a(cv.pop(0))
            if i == 8: a("s_waitcnt lgkmcnt(0)"); a("s_barrier")
    else:
        cvt_tile(QB[0:10], 0)
        cvt_tile(QB[20:30], 2); cvt_tile(QB[30:40], 3)
        for i in range(5): a(f"ds_write_b128 {t0}, {QB[20+4*i:24+4*i]} offset:{i*1024}")
        cvt_tile(QB[10:20], 1)
        a("s_waitcnt lgkmcnt(0)")
        a("s_barrier")
        for l in pk_list(QB[0:10]): a(l)
    a("s_branch R_KV2")
    a.label('R_V')
    VBt = {3: V(88, 10), 0: V(98, 10), 1: V(168, 10), 2: V(178, 10)}
    for tt in (3, 0, 1, 2): cvt_tile(VBt[tt], tt)
    a(f"s_mul_i32 {sT2}, {sRG}, {64*176}")
    a(f"s_add_u32 {sT2}, {sT2}, {VVB}")
    a(f"v_mul_u32_u24 {t2}, 176, {vl15}")
    a(f"v_add_u32 {t1}, {sT2}, {t2}")
    a(f"v_mul_u32_u24 {t3}, 40, {vqd}")
    a(f"v_add_u32 {t2}, {t1}, {t3}")
    a(f"v_mov_b32 {ONE[0]}, 0x3f80")
    a(f"v_mov_b32 {ONE[1]}, 0")
    a("s_barrier")
    for i in range(5): a(f"ds_read_b128 {QB[4*i:4*i+4]}, {t0} offset:{i*1024}")
    side = []
    for tt in (3, 0, 1, 2):
        for i in range(5): side.append(f"ds_write_b64 {t2}, {VBt[tt][2*i:2*i+2]} offset:{tt*2816 + 8*i}")
        side.append(f"ds_write_b64 {t1}, {ONE} offset:{tt*2816 + 160}")
    for i in range(9): a(side.pop(0))
    a("s_waitcnt lgkmcnt(9)")
    for l in pk_list(QB[0:10]): a(l); a(side.pop(0))
    a.label('R_KV2')
    a(f"s_add_u32 {sT1}, {sT1}, {sHI}"); a(f"s_mul_i32 {sT1}, {sT1}, {32*PS}")
    a(f"v_mul_u32_u24 {t4}, {PS}, {vl15}")
    a(f"v_mul_u32_u24 {t3}, 80, {vqd}")
    a(f"v_add3_u32 {t4}, {t4}, {t3}, {sT1}")
    stamp(a, 12)
    for u in range(2):
        if u == 0:
            bl = b_reg(vm, 0, 'B') + b_reg(vm, 1, 'B'); pl = pk_list(QB[10:20])
            sd = [pl[i] + ("\n" + bl[i] if i < len(bl) else "") for i in range(15)]
        else: sd = b_reg(vm, 2, 'B') + b_reg(vm, 3, 'B')
        if OPT['ksp']:
            b_ = Asm()
            softmax_unit(b_, P, E, M, T, O, (pl if u == 0 else []) + ["s_waitcnt lgkmcnt(0)"])
            ld = bl if u == 0 else sd
            ins = [x.text for x in b_.ins]; step_ = len(ins) // 11; q_ = list(ld)
            for n_, x in enumerate(ins):
                a(x)
                if n_ % step_ == step_ - 1 and q_:
                    if q_[0].startswith('s_'): a(q_.pop(0))
                    a(q_.pop(0))
            for x in q_: a(x)
        else: softmax_unit(a, P, E, M, T, O, sd + ["s_waitcnt lgkmcnt(0)"])
        for s_ in range(5): a(f"ds_write_b128 {t4}, {O[4*s_:4*s_+4]} offset:{PHB + u*16*PS + 16*s_}")
    a(f"v_lshl_add_u32 {t0}, {vqd}, 2, {vr}")
    a(f"v_mul_u32_u24 {t1}, {PS}, {t0}")
    a(f"s_mul_i32 {sT0}, {sRG}, 80")
    a(f"v_lshl_add_u32 {t1}, {vc}, 3, {t1}")
    a(f"v_add_u32 {t1}, {sT0}, {t1}")
    a(f"v_add_u32 {t2}, {128*PS}, {t1}")
    a(f"v_mul_u32_u24 {t0}, 176, {t0}")
    a(f"s_mul_i32 {sT0}, {sRG}, 40")
    a(f"s_mul_i32 {sT1}, {sHI}, 24")
    a(f"s_add_u32 {sT0}, {sT0}, {sT1}")
    a(f"v_lshl_add_u32 {t3}, {vc}, 3, {sT0}")
    a(f"v_mul_u32_u24 {t4}, {sHI}, {vc}")
    a(f"v_cmp_lt_u32 vcc, 1, {t4}")
    a(f"v_mov_b32 {t4}, 160")
    a(f"v_cndmask_b32 {t3}, {t3}, {t4}, vcc")
    a(f"v_add_u32 {t3}, {VVB}, {t3}")
    a(f"v_add_u32 {t3}, {t0}, {t3}")
    stamp(a, 13)
    a("s_waitcnt lgkmcnt(0)")
    a("s_barrier")
    stamp(a, 14)
    a(f"s_lshl_b32 {sFLAG}, {sID}, 7"); a(f"s_add_u32 {sFLAG}, {sFLAG}, {FK}")
    def k_hint():
        a("v_mov_b32 v29, 1"); a("v_mov_b32 v11, 0")
        a(f"s_cmp_lg_u32 {sWV}, 7"); a("s_cbranch_scc1 KH1")
        a("s_mov_b64 exec, 1"); a(f"buffer_atomic_add v29, v11, {rWS}, {sFLAG} offen sc0 sc1"); a("s_mov_b64 exec, -1")
        a.label('KH1')
    if OPT['kh'] == 0: k_hint()
    for l in q_flag_issue(): a(l)
    KA = [[V(72 + (b*4 + f)*4, 4) for f in range(4)] for b in range(3)]
    KD = [V(128 + 4*f, 4) for f in range(3)]
    def kv_reads(b, s):
        l = []
        for rd in range(2):
            l.append(f"ds_read_b64_tr_b16 {KA[b][3][2*rd:2*rd+2]}, {t3} offset:{s*5632 + rd*2816}")
        for f in range(3):
            for rd in range(2):
                l.append(f"ds_read_b64_tr_b16 {KA[b][f][2*rd:2*rd+2]}, {t1 if s < 4 else t2} offset:{(s % 4)*32*PS + rd*16*PS + f*32}")
        return l
    allr = [l for s in range(8) for l in kv_reads(s % 3, s)]
    pos = 0
    for s in range(8):
        for f in range(3):
            needr = s * 8 + 2 + 2 * (f + 1)
            lim = min(len(allr), needr + 12, (s + 2) * 8 + (2 + 2 * f if False else 0) + 8 - 8 + 0) if False else min(len(allr), needr + 12)
            lim = min(lim, (s + 3) * 8)
            while pos < lim: a(allr[pos]); pos += 1
            a(f"s_waitcnt lgkmcnt({pos - needr})")
            a(f"v_mfma_f32_16x16x32_bf16 {KD[f]}, {KA[s%3][f]}, {KA[s%3][3]}, {'0' if s == 0 else KD[f]}")
    stamp(a, 15)
    a(f"s_add_u32 {sT0}, {sHB}, {sRG}")
    a(f"s_lshl_b32 {sT0}, {sT0}, 1")
    a(f"s_add_u32 {sT0}, {sT0}, {sHI}")
    a(f"s_mul_i32 {sT0}, {sT0}, 3072")
    a(f"s_add_u32 {sT0}, {sT0}, {KVACC}")
    if OPT['kh'] == 1: k_hint()
    def k_go(n):
        a(f"s_cmp_lg_u32 {sWV}, 7"); a("s_cbranch_scc1 KH2")
        a(f"s_waitcnt vmcnt({n})")
        a("v_cmp_eq_u32 vcc, 7, v29"); a(f"s_add_u32 s4, {sFLAG}, {GOD}"); a("s_and_b64 exec, vcc, 1")
        a(f"buffer_store_dword v29, v11, {rWS}, s4 offen sc1"); a("s_mov_b64 exec, -1")
        a.label('KH2')
    if OPT['kh'] == 0: k_go(0)
    a(f"v_lshlrev_b32 {t2}, 2, {lane}")
    a(f"v_cmp_eq_u32 vcc, 15, {vl15}")
    for f in range(3):
        for j in range(4): a(f"v_cndmask_b32 {KD[f][j]}, {KD[f][j]}, 1.0, vcc")
    for f in range(3):
        if f == 2: a("s_mov_b32 exec_hi, 0")
        for j in range(4):
            a(f"buffer_atomic_add_f32 {KD[f][j]}, {t2}, {rWS}, {sT0} offen offset:{f*1024 + j*256} {OPT['atf']}")
    a("s_mov_b32 exec_hi, -1")
    if OPT['kh'] == 1: k_go(12)
    a("s_waitcnt vmcnt(12)")
    flag_store(-1)
    a(f"s_mov_b32 {sPF}, 4")
    a("s_branch P2")

    for l in OOL: a(l)
    OOL.clear()
    a.label('R_SPARE')
    sSP, sU, sSO, sST = S(77), S(78), S(79), S(80)
    va = Alloc('v', 176, 250)
    vf = [va() for _ in range(5)]; vat = [va() for _ in range(5)]
    rf = [va() for _ in range(5)]; rat = [va(), va()]
    vst = va(); vst4 = va()
    FR = [[va(4) for _ in range(5)] for b in range(2)]
    Z4 = va(4)
    NT = OPT['spnt']
    if T2:
        for b0 in eval(OPT['t2b']):
            for l in t2_all(b0): a(l)
    srd(a, rA, pWD, 1728 * 1280)
    srd(a, rB, pWO, 640 * 1280)
    a(f"s_lshr_b32 {sSP}, {sT0}, 1")
    a(f"s_lshl_b32 {sSP}, {sSP}, 3")
    a(f"s_add_u32 {sSP}, {sSP}, {sRB}")
    a(f"s_lshl_b32 {sT0}, {sWV}, 2")
    a(f"s_mul_i32 {sT1}, {sWV}, 20")
    for n in range(5):
        a(f"v_add_u32 {t0}, {64*n}, {lane}")
        a(f"v_mul_u32_u24 {t1}, 205, {t0}")
        a(f"v_lshrrev_b32 {t1}, 14, {t1}")
        a(f"v_mul_u32_u24 {t2}, 80, {t1}")
        a(f"v_sub_u32 {t2}, {t0}, {t2}")
        a(f"v_add_u32 {t1}, {sT0}, {t1}")
        a(f"v_and_b32 {t3}, 7, {t1}")
        a(f"v_lshlrev_b32 {t3}, 1, {t3}")
        a(f"v_xor_b32 {t2}, {t2}, {t3}")
        a(f"v_mul_u32_u24 {t1}, 1280, {t1}")
        a(f"v_lshl_add_u32 {vf[n]}, {t2}, 4, {t1}")
        if n % 4: a(f"v_subrev_u32 {vf[n]}, {1024*(n%4)}, {vf[n]}")
    a(f"s_mul_i32 {sM}, {sWV}, 5120")
    def u_dma(buf, typ):
        if typ == 'F':
            a(f"s_mul_i32 {sSO}, {sU}, 40960")
            vv, rr = vf, rA
        else:
            a(f"s_sub_u32 {sT2}, {sU}, 54")
            a(f"s_mul_i32 {sT3}, {sT2}, 52")
            a(f"s_lshr_b32 {sT3}, {sT3}, 8")
            a(f"s_mul_i32 {sSO}, {sT3}, {160*1280 - 5*256}")
            a(f"s_lshl_b32 {sT2}, {sT2}, 8")
            a(f"s_add_u32 {sSO}, {sSO}, {sT2}")
            vv, rr = vat, rB
        a(f"s_add_u32 m0, {sM}, {buf*40960}")
        for n in range(4):
            a(f"buffer_load_dwordx4 {vv[n]}, {rr}, {sSO} offen offset:{n*1024} {NT} lds")
        a(f"s_add_u32 m0, {sM}, {buf*40960 + 4096}")
        a(f"buffer_load_dwordx4 {vv[4]}, {rr}, {sSO} offen {NT} lds")
    def dyn(it, fn):
        if it == 4:
            a(f"s_add_u32 {sU}, {sSP}, 64"); a(f"s_min_u32 {sU}, {sU}, 73"); fn('A'); return
        a(f"s_add_u32 {sU}, {sSP}, {16*it}")
        if it <= 2: fn('F')
        else:
            l1, l2 = a.newlabel('SP'), a.newlabel('SP')
            a(f"s_cmp_ge_u32 {sU}, 54"); a(f"s_cbranch_scc1 {l1}")
            fn('F'); a(f"s_branch {l2}"); a.label(l1); fn('A'); a.label(l2)
    for it in range(3): dyn(it, lambda typ: u_dma(it, typ))
    a(f"v_lshlrev_b32 {t0}, 4, {tid}")
    for i in range(4): a(f"v_mov_b32 {Z4[i]}, 0")
    a(f"s_mul_i32 {sT2}, {sSP}, 13568")
    a(f"s_add_u32 {sT2}, {sT2}, {KVACC}")
    a(f"buffer_store_dwordx4 {Z4}, {t0}, {rWS}, {sT2} offen {ST}")
    a(f"s_add_u32 {sT2}, {sT2}, {13568 - 8192}")
    a(f"buffer_store_dwordx4 {Z4}, {t0}, {rWS}, {sT2} offen {ST}")
    for n in range(5):
        a(f"v_add_u32 {t1}, {4*n}, {vqd}")
        a(f"v_add_u32 {t1}, {sT1}, {t1}")
        a(f"v_and_b32 {t3}, 7, {t1}")
        a(f"v_lshlrev_b32 {t3}, 1, {t3}")
        a(f"v_xor_b32 {t2}, {vl15}, {t3}")
        a(f"v_mul_u32_u24 {t1}, 1280, {t1}")
        a(f"v_lshl_add_u32 {vat[n]}, {t2}, 4, {t1}")
        if n % 4: a(f"v_subrev_u32 {vat[n]}, {1024*(n%4)}, {vat[n]}")
    a(f"v_lshl_add_u32 {t0}, {vqd}, 2, {vr}")
    a(f"v_and_b32 {t1}, 7, {t0}")
    a(f"v_lshlrev_b32 {t1}, 1, {t1}")
    a(f"v_mul_u32_u24 {t0}, 1280, {t0}")
    a(f"v_and_b32 {t2}, 1, {vc}")
    a(f"v_lshl_add_u32 {t0}, {t2}, 3, {t0}")
    a(f"v_lshrrev_b32 {t3}, 1, {vc}")
    a(f"s_mul_i32 {sT0}, {sWV}, 10")
    a(f"v_add_u32 {t4}, {sT0}, {t3}")
    for j in range(5):
        a(f"v_add_u32 {rf[j]}, {2*j}, {t4}")
        a(f"v_xor_b32 {rf[j]}, {rf[j]}, {t1}")
        a(f"v_lshl_add_u32 {rf[j]}, {rf[j]}, 4, {t0}")
    a(f"v_mul_u32_u24 {t0}, 20, {vqd}")
    a(f"v_add_u32 {t0}, {t0}, {vr}")
    a(f"v_lshlrev_b32 {t0}, 8, {t0}")
    a(f"v_lshl_add_u32 {t0}, {t2}, 3, {t0}")
    a(f"s_lshl_b32 {sT0}, {sWV}, 1")
    a(f"v_add_u32 {t4}, {sT0}, {t3}")
    a(f"v_xor_b32 {t4}, {t4}, {t1}")
    a(f"v_lshl_add_u32 {rat[0]}, {t4}, 4, {t0}")
    a(f"v_xor_b32 {rat[1]}, 128, {rat[0]}")
    a(f"v_lshlrev_b32 {vst}, 4, {lane}")
    a(f"v_add_u32 {vst4}, 4096, {vst}")
    def u_proc(buf, typ, F):
        if typ == 'F':
            for j in range(5):
                a(f"v_add_u32 {t0}, {buf*40960}, {rf[j]}")
                for rd in range(2):
                    a(f"ds_read_b64_tr_b16 {F[j][2*rd:2*rd+2]}, {t0} offset:{rd*20480}")
            a(f"s_lshl3_add_u32 {sST}, {sU}, {sWV}")
            a(f"s_mul_i32 {sST}, {sST}, 5120")
            a(f"s_add_u32 {sST}, {sST}, {BP}")
            a("s_waitcnt lgkmcnt(0)")
            for j in range(5):
                if j < 4: a(f"buffer_store_dwordx4 {F[j]}, {vst}, {rWS}, {sST} offen offset:{j*1024} {ST}")
                else: a(f"buffer_store_dwordx4 {F[j]}, {vst4}, {rWS}, {sST} offen {ST}")
        else:
            bases = [(0, 4), (8, 12), (16, 96), (80, 84), (88, 92)]
            a(f"v_add_u32 {t0}, {buf*40960}, {rat[0]}")
            a(f"v_add_u32 {t1}, {buf*40960}, {rat[1]}")
            a(f"v_lshrrev_b32 {t4}, 1, {vqd}"); a(f"v_mul_u32_u24 {t4}, {40*256}, {t4}"); a(f"v_add_u32 {t4}, {t4}, {t0}")
            for s5 in range(5):
                for rd in range(2):
                    b = bases[s5][rd]
                    if s5 == 2: a(f"ds_read_b64_tr_b16 {F[s5][2*rd:2*rd+2]}, {t4} offset:{(16 + 40*rd)*256}")
                    else: a(f"ds_read_b64_tr_b16 {F[s5][2*rd:2*rd+2]}, {t1 if b % 8 else t0} offset:{b*256}")
            a(f"s_sub_u32 {sT2}, {sU}, 54")
            a(f"s_mul_i32 {sT3}, {sT2}, 52")
            a(f"s_lshr_b32 {sT3}, {sT3}, 8")
            a(f"s_mul_i32 {sT0}, {sT3}, 5")
            a(f"s_sub_u32 {sT2}, {sT2}, {sT0}")
            a(f"s_lshl_b32 {sT2}, {sT2}, 3")
            a(f"s_add_u32 {sT2}, {sT2}, {sWV}")
            a(f"s_mul_i32 {sT1}, {sT2}, 52")
            a(f"s_lshr_b32 {sT1}, {sT1}, 8")
            a(f"s_mul_i32 {sST}, {sT1}, 5")
            a(f"s_sub_u32 {sT2}, {sT2}, {sST}")
            a(f"s_add_u32 {sST}, {sT0}, 54")
            a(f"s_lshl3_add_u32 {sST}, {sST}, {sT1}")
            a(f"s_mul_i32 {sST}, {sST}, 5120")
            a(f"s_lshl_b32 {sT2}, {sT2}, 10")
            a(f"s_add_u32 {sST}, {sST}, {sT2}")
            a(f"s_add_u32 {sST}, {sST}, {BP}")
            a("s_waitcnt lgkmcnt(0)")
            for s5 in range(5):
                a(f"buffer_store_dwordx4 {F[s5]}, {vst}, {rWS}, {sST} offen {ST}")
                if s5 < 4: a(f"s_add_u32 {sST}, {sST}, {BS_}")
    vm = VmTrack()
    for t in ['D0']*5 + ['D1']*5 + ['D2']*5 + ['Z']*2: vm.issue(t)
    def sp_signal(k):
        lsk = a.newlabel('SPD')
        a(f"s_cmp_lg_u32 {sWV}, 7"); a(f"s_cbranch_scc1 {lsk}")
        a(f"v_mov_b32 {t2}, 0"); a(f"v_mov_b32 {t3}, 1")
        a("s_mov_b64 exec, 1")
        a(f"buffer_atomic_add {t3}, {t2}, {rDBG}, 0 offen offset:{4*k} sc0 sc1")
        a("s_waitcnt vmcnt(0)")
        a(f"v_cmp_eq_u32 vcc, 15, {t3}")
        a("s_and_b64 exec, exec, vcc")
        a(f"buffer_store_dword {t3}, {t2}, {rDBG}, 0 offen offset:{128 + 4*k} sc1")
        a("s_mov_b64 exec, -1")
        a.label(lsk)
    for it in range(5):
        n = vm.wait_for(lambda t: t == f'D{it}' or (it == 3 and t == 'S2') or (it == 2 and t == 'S1'))
        a(f"s_waitcnt vmcnt({n})")
        a("s_barrier")
        if it == 2: sp_signal(0); stamp(a, 1)
        if it == 3: sp_signal(2)
        dyn(it, lambda typ: u_proc(it % 3, typ, FR[it & 1]))
        for _ in range(5): vm.issue(f'S{it}')
        if it == OPT['t2si'] and T2 and OPT['t2s']:
            a(f"s_and_b32 s4, {sWV}, 1"); a(f"s_lshl1_add_u32 s4, {sSP}, s4"); a("s_lshl_b32 s4, s4, 6"); a("s_mul_i32 s4, s4, s5")
            a(f"s_mul_i32 s6, {sBK}, {OPT['t2s']}"); a("s_add_u32 s4, s4, s6")
            a(f"v_add_u32 v21, s4, {vt1}")
            a(f"buffer_load_dword {tdum}, v21, {rTT}, 0 offen"); vm.issue('T')
        if it in (1, 2):
            dyn(it + 2, lambda typ: u_dma(it - 1, typ))
            for _ in range(5): vm.issue(f'D{it+2}')
    a("s_waitcnt vmcnt(0)")
    a("s_barrier")
    sp_signal(1)
    stamp(a, 2)
    if OPT['gq']:
        init_poll(a, t1, 128); flag_store(-1)
    else:
        GW = [V(72 + 4*i, 4) for i in range(5)]
        GX = [[V(96 + (g*5 + i)*4, 4) for i in range(5)] for g in range(4)]
        GA = [V(92 + g) for g in range(4)]
        srd(a, rW, pGW, 1280)
        a(f"v_lshlrev_b32 {t0}, 4, {vl15}")
        for i in range(5): a(f"buffer_load_dwordx4 {GW[i]}, {t0}, {rW}, 0 offen offset:{i*256}")
        a(f"v_mul_u32_u24 {t1}, 1280, {vqd}")
        a(f"v_add_u32 {t0}, {t0}, {t1}")
        a(f"s_lshl_b32 {sT3}, {sSP}, 3")
        a(f"s_add_u32 {sT3}, {sT3}, {sWV}")
        a(f"s_mul_i32 {sT2}, {sT3}, {16*1280}")
        for g in range(4):
            for i in range(5): a(f"buffer_load_dwordx4 {GX[g][i]}, {t0}, {rX}, {sT2} offen offset:{i*256} {OPT['gnt']}")
            if g < 3: a(f"s_add_u32 {sT2}, {sT2}, {4*1280}")
        for g in range(4): a(f"v_mov_b32 {GA[g]}, 0")
        init_poll(a, t1, 128)
        for i in range(5):
            for k in range(4):
                for g in range(4): a(f"v_dot2c_f32_bf16 {GA[g]}, {GX[g][i][k]}, {GW[i][k]}")
        for sh in (8, 4, 2, 1):
            for g in range(4): a(f"v_add_f32_dpp {GA[g]}, {GA[g]}, {GA[g]} row_ror:{sh} row_mask:0xf bank_mask:0xf")
        for g in range(4): a(f"v_mul_f32 {GA[g]}, {LOG2E:#x}, {GA[g]}")
        for g in range(4): a(f"v_min_f32 {GA[g]}, 0x42a00000, {GA[g]}")
        for g in range(4): a(f"v_exp_f32 {GA[g]}, {GA[g]}")
        a(f"v_mov_b32 {t2}, {GA[0]}")
        for g in range(1, 4):
            a(f"v_cmp_eq_u32 vcc, {g}, {vl15}"); a(f"v_cndmask_b32 {t2}, {t2}, {GA[g]}, vcc")
        a(f"v_lshl_add_u32 {t0}, {vl15}, 2, {vqd}")
        a(f"v_lshlrev_b32 {t3}, 2, {t0}")
        a(f"s_lshl_b32 {sT2}, {sT3}, 6"); a(f"s_add_u32 {sT2}, {sT2}, {GOFF}")
        a("s_mov_b32 exec_lo, 0x000f000f"); a("s_mov_b32 exec_hi, 0x000f000f")
        a(f"buffer_store_dword {t2}, {t3}, {rWS}, {sT2} offen {ST}")
        a("s_mov_b64 exec, -1")
        a(f"s_lshr_b32 {sFLAG}, {sT3}, 2"); a(f"s_lshl_b32 {sFLAG}, {sFLAG}, 7"); a(f"s_add_u32 {sFLAG}, {sFLAG}, {FH + 12}")
        flag_store(3)
    a(f"v_mov_b32 {vFQ}, 0")

    vm = VmTrack()
    a(f"s_mov_b32 {sPF}, 7")
    a.label('P2')
    stamp(a, 3)
    a(f"s_bitcmp0_b32 {sPF}, 0"); a("s_cbranch_scc1 P2_E1")
    for l in p2_setup() + poison(V(208, 4)): a(l)
    a.label('P2_E1')
    vG = V(16, 4); vz = V(11); ka = V(12); kw = V(13); vbl = V(15); vcn = V(14)
    ACC = [[V(72 + (tt * 5 + j) * 4, 4) for j in range(5)] for tt in range(4)]
    ARl = [V(152 + 4 * i, 4) for i in range(14)] + [V(248, 4), V(24, 4)]
    AR = [ARl[4*b:4*b+4] for b in range(4)]
    sFHo = S(78)
    rOUT = rX
    INP2[0] = True
    if OPT['noa'] == 1 or OPT['nob']: srd(a, rA, pWS, 0)
    a(f"v_mov_b32 {vz}, 0")
    a(f"v_mov_b32 {vcn}, {CNT}")
    a(f"v_add_u32 {vbl}, {sLC}, {vo}")
    vbl2 = V(23)
    a(f"v_add_u32 {vbl2}, {3*20480}, {vbl}")
    def lrow(row, j):
        return (vbl, row*20480 + j*1024) if row < 3 else (vbl2, (row-3)*20480 + j*1024)
    CG_ = {4:3, 5:4, 6:0, 7:1, 8:2} if OPT['gf'] & 2 else {4:0, 5:1, 6:2, 7:3, 8:4}
    def a_loads(i, tag, vts=None, r=None):
        b = i % NA; r = r or rWS
        if OPT['noa'] == 1: r = rA
        if OPT['noa'] == 3: return []
        if OPT['noa'] == 2: return [f"s_mov_b32 {sT0}, {sAo}"] + [(f"buffer_load_dwordx4 {AR[b][tt]}, {vo}, {r}, {sT0} offen offset:{tt*1024} {LD}", vm.issue(tag))[0] for tt in range(4)]
        l = [f"s_add_u32 {sT0}, {sAo}, {((i*16384 if i < 4 else CA0 + CG_[i]*16384) if vts else GRP[i]*16384)}"]
        for tt in range(4):
            if vts: l.append(f"buffer_load_dwordx4 {AR[b][tt]}, {vts[tt]}, {r}, {sT0} offen {LD}")
            else: l.append(f"buffer_load_dwordx4 {AR[b][tt]}, {vo}, {r}, {sT0} offen offset:{tt*1024} {LD}")
            vm.issue(tag)
        return l
    def b_fromlds(i, row):
        return ["ds_read_b128 %s, %s offset:%d" % ((BR[i % 4][j],) + lrow(row, j)) for j in range(5)]
    def mm(sl, zero, side=[], every=2, bb=None):
        b = sl % 4 if bb is None else bb; ab = sl % NA
        side = list(side)
        for j in range(5):
            for tt in range(4):
                d = ACC[tt][j]
                a(f"v_mfma_f32_16x16x32_bf16 {d}, {BR[b][j]}, {AR[ab][tt]}, {'0' if tt in zero else d}")
                while side and side[0].startswith('s_'): a(side.pop(0))
                if side and tt % every == every - 1: a(side.pop(0))
        for l in side: a(l)
    def g_load():
        a(f"s_lshl_b32 {sT0}, {sR6}, 8"); a(f"s_add_u32 {sT0}, {sT0}, {GOFF}")
        a(f"v_lshlrev_b32 {t0}, 4, {vl15}")
        a(f"buffer_load_dwordx4 {vG}, {t0}, {rWS}, {sT0} offen {LD}")
    def lds_signal(off):
        a(f"v_mov_b32 {t1}, 1")
        a("s_waitcnt lgkmcnt(0)")
        a("s_mov_b64 exec, 1")
        a(f"ds_add_u32 {vcn}, {t1} offset:{off}")
        a("s_mov_b64 exec, -1")
    def lds_wait(off, n):
        L = a.newlabel('LW')
        a.label(L)
        a(f"ds_read_b32 {t1}, {vcn} offset:{off}")
        a("s_waitcnt lgkmcnt(0)")
        a(f"v_readfirstlane_b32 {sT0}, {t1}")
        a(f"s_cmp_ge_u32 {sT0}, {n}")
        a(f"s_cbranch_scc1 {L}d")
        a("s_sleep 1")
        a(f"s_branch {L}")
        a.label(L + 'd')
    vAT = V(29); vFG = V(28)
    PB = V(176, 12); PU = V(152, 20)
    def pq_loads():
        a(f"s_lshl3_add_u32 {sT0}, {sR6}, {sCG}")
        a(f"s_mul_i32 {sT0}, {sT0}, 10240"); a(f"s_add_u32 {sT0}, {sT0}, {PQ}")
        a(f"s_lshl_b32 {sT1}, {sRG}, 11"); a(f"s_add_u32 {sT1}, {sT1}, {sT0}")
        for h in range(2): a(f"buffer_load_dwordx4 {PB[4*h:4*h+4]}, {vo}, {rWS}, {sT1} offen offset:{h*1024} {LD}")
        a(f"s_lshr_b32 {sT1}, {sRG}, 1"); a(f"s_lshl_b32 {sT1}, {sT1}, 10"); a(f"s_add_u32 {sT0}, {sT0}, {sT1}")
        a(f"s_and_b32 {sT1}, {sRG}, 1"); a(f"s_lshl3_add_u32 {sT0}, {sT1}, {sT0}"); a(f"s_add_u32 {sT0}, {sT0}, 8192")
        a(f"buffer_load_dwordx2 {PB[8:10]}, {vo}, {rWS}, {sT0} offen {LD}")
    sQF = S(83)
    a(f"v_readfirstlane_b32 {sQF}, {vFQ}")
    a(f"s_cmp_eq_u32 {sHI}, 1"); a(f"s_cselect_b32 {sQF}, 0, {sQF}")
    a(f"s_cmp_eq_u32 {sQF}, 0"); a("s_cbranch_scc1 P2_NQ")
    pq_loads()
    a.label('P2_NQ')
    a(f"buffer_load_dword {vS2}, {vz}, {rDBG}, 0 offen offset:132 sc1")
    a(f"v_mov_b32 {vAT}, 1"); a(f"v_mov_b32 {t1}, 1")
    B3 = OPT['b23'] == 3
    if B3:
        a(f"s_cmp_lg_u32 {sPF}, 0"); a("s_cbranch_scc1 P2_D0")
        for l in b_reg(vm, 2, 'B'): a(l)
        a("s_waitcnt vmcnt(5) lgkmcnt(0)")
        a("s_branch P2_D1")
        a.label('P2_D0')
    a("s_waitcnt vmcnt(0) lgkmcnt(0)")
    if B3: a.label('P2_D1')
    a("s_mov_b64 exec, 1")
    a(f"ds_add_rtn_u32 {t1}, {vcn}, {t1} offset:16")
    a(f"s_cmp_eq_u32 {sNEED}, -1"); a("s_cbranch_scc1 P2_A2")
    a(f"buffer_atomic_add {vAT}, {vz}, {rWS}, {sFLAG} offen sc0 sc1")
    a.label('P2_A2')
    a("s_mov_b64 exec, -1")
    def go_logic(n, st=True):
        lb = a.newlabel('GO')
        a(f"s_waitcnt vmcnt({n})")
        a(f"v_readfirstlane_b32 {sP[0]}, {vAT}")
        a(f"s_add_u32 {sP[1]}, {sFLAG}, {GOD}")
        a(f"s_cmp_lg_u32 {sP[0]}, {sNEED}")
        a(f"s_cbranch_scc1 {lb}")
        a("s_mov_b64 exec, 1")
        a(f"buffer_store_dword {vAT}, {vz}, {rWS}, {sP[1]} offen sc1")
        a("s_mov_b64 exec, -1")
        a.label(lb)
        if st: stamp(a, 4)
    a(f"s_cmp_eq_u32 {sHI}, 0")
    a("s_cbranch_scc1 P2_C")
    if B3:
        a(f"s_cmp_lg_u32 {sPF}, 0"); a("s_cbranch_scc1 P2_D2")
        for l in b_reg(vm, 3, 'B'): a(l)
        go_logic(5)
        a("s_branch P2_D3")
        a.label('P2_D2')
    go_logic(0)
    if B3: a.label('P2_D3')
    a("s_setprio 0")
    init_check(vS2, 132)
    if OPT['bt']:
        a("s_lshr_b32 s4, s2, 6"); a(f"s_lshl2_add_u32 s4, s4, {sRG}"); a(f"s_mul_i32 s4, s4, {65*128}")
        a(f"s_mul_i32 s5, {sCG}, {74*5120}"); a("s_add_u32 s4, s4, s5"); a(f"s_add_u32 s4, s4, {BP + 48*5120}")
        a(f"v_lshlrev_b32 {t2}, 7, {lane}")
        a(f"buffer_load_dword {t3}, {t2}, {rWS}, s4 offen sc1")
    a(f"s_cmp_lt_u32 {sRG}, 2"); a(f"s_cselect_b32 {rB[2]}, {WSZ}, 0")
    a(f"s_cmp_lt_u32 {sPF}, 6"); a("s_cbranch_scc1 P2_E2")
    for b in range(4):
        for l in b_reg(vm, b, 'B'): a(l)
    lds_wait(16, 8)
    for k in range(4):
        for l in b_row(vm, sBg, GRP[GL[k]], LR[k]): a(l)
    a.label('P2_E2')
    if OPT['b23'] in (1, 2):
        a(f"s_cmp_lg_u32 {sPF}, 0"); a("s_cbranch_scc1 P2_E4")
        for l in (b_reg(vm, 2, 'B') if OPT['b23'] == 1 else []) + b_reg(vm, 3, 'B'): a(l)
        a.label('P2_E4')
    lds_wait(16, 8)
    for k in range(3):
        if OPT['ep'] and k == OPT['ep'] - 1: a(f"buffer_load_dword {t4}, {vz}, {rWS}, {sFHo} offen sc1")
        for l in b_row(vm, sBg, k, CR[k], None, 54*BS_): a(l)
    if OPT['bx']:
        for l in b_reg(vm, 5, 'B', None, GRP[5], 0, 4): a(l)
    if OPT['ep']: a(f"s_waitcnt vmcnt({5*(4 - OPT['ep'])})"); a(f"v_readfirstlane_b32 s82, {t4}")
    a(f"s_cmp_eq_u32 {sPF}, 4"); a("s_cbranch_scc1 P2_GK")
    NG = 10
    for variant in (0, 1):
        GLv = GL if variant == 0 else []
        if variant == 1: a.label('P2_GK')
        if OPT['at']:
            a(f"s_mul_i32 {sT1}, {sR6}, {74*4096}"); a(f"s_lshl2_add_u32 {sT2}, {sCG}, {sRG}"); a(f"s_mul_i32 {sT2}, {sT2}, {54*128}"); a(f"s_add_u32 {sT1}, {sT1}, {sT2}")
            a(f"v_lshlrev_b32 {t2}, 7, {lane}")
        if OPT['at'] == 3: vpoll(a, vz, sFHo, 0, t1, f"s_mov_b32 exec_hi, 0x3fffff\nbuffer_load_dword {t3}, {t2}, {rWS}, {sT1} offen sc1\ns_mov_b32 exec_hi, -1", OPT['tsl'])
        elif OPT['noh']: a("s_waitcnt vmcnt(0)")
        else:
            if OPT['ep']: a("s_cmp_lg_u32 s82, 0"); a(f"s_cbranch_scc1 HS{variant}")
            vpoll(a, vz, sFHo, 0, t1)
            if OPT['ep']: a.label(f'HS{variant}')
        lds_signal(20)
        a(f"s_setprio {OPT['gprio']}")
        vm = VmTrack()
        stamp(a, 5)
        if OPT['at'] == 1:
            a("s_mov_b32 exec_hi, 0x3fffff"); a(f"buffer_load_dword {t3}, {t2}, {rWS}, {sT1} offen sc1"); a("s_mov_b32 exec_hi, -1")
        if OPT['stamp'] == 4: a("s_memtime s[92:93]")
        LA = OPT['la']
        pend = []
        for s in range(LA + 1):
            if OPT['stp'] and s: a(f"s_setprio {3 - s}")
            for l in a_loads(s, ('A', s)): a(l)
            if OPT['at'] == 2 and s == 0:
                a("s_mov_b32 exec_hi, 0x3fffff"); a(f"buffer_load_dword {t3}, {t2}, {rWS}, {sT1} offen sc1"); a("s_mov_b32 exec_hi, -1"); vm.issue('T')
        for s in range(NG - 1):
            n = vm.wait_for(lambda t: t in (('A', s), ('B', s)))
            a(f"s_waitcnt vmcnt({n})" + (f" lgkmcnt({5*sum(1 for x in (s+1, s+2) if x in GLv)})" if s in GLv else ""))
            if s == 0 and OPT['ep']: lds_signal(24)
            if s == 0: stamp(a, 6)
            if OPT['stamp'] == 4:
                a("s_waitcnt lgkmcnt(0)")
                a(f"v_writelane_b32 v255, s92, {40 + s}")
                a("s_memtime s[92:93]")
            side = []
            if OPT['fair'] and s in eval(OPT['fg']): a(f"s_setprio {eval(OPT['fg'])[s]}")
            if 1 <= s and s + LA < NG:
                side += a_loads(s + LA, ('A', s + LA), None, rB if GRP[s + LA] == 13 else None)
            if 1 <= s and s + 3 < NG:
                rr = rB if GRP[s + 3] == 13 else None
                if OPT['bx'] and s + 3 == 5: pass
                elif s + 3 in GLv: side += b_fromlds(s + 3, LR[GLv.index(s + 3)])
                elif OPT['spr'] and variant == 0:
                    bl = b_reg(VmTrack(), s + 3, 'x', rr, GRP[s + 3])
                    side += bl[0:4]; [vm.issue(('B', s + 3)) for _ in range(3)]
                    pend = [(bl[0], bl[4:6], s + 3)]
                    mm(s, [], side); continue
                else: side += b_reg(vm, s + 3, ('B', s + 3), rr, GRP[s + 3])
            if pend:
                p0, pl, ps = pend.pop(); side += [p0] + pl; [vm.issue(('B', ps)) for _ in range(2)]
            mm(s, range(4) if s == 0 else [], side, 2, 4 if OPT['bx'] and s == 5 else None)
        if variant == 0: a("s_branch P2_GL")
    a.label('P2_GL')
    a("s_waitcnt vmcnt(0) lgkmcnt(0)")
    if OPT['stamp'] == 4:
        a(f"v_writelane_b32 v255, s92, {49}"); a("s_memtime s[92:93]"); a("s_waitcnt lgkmcnt(0)"); a(f"v_writelane_b32 v255, s92, {50}")
    for tt in range(4):
        for j in range(5):
            d = ACC[tt][j]
            a(f"v_mfma_f32_16x16x32_bf16 {d}, {BR[1][j]}, {AR[9 % NA][tt]}, {d}")
            if tt >= 2: a("ds_write_b128 %s, %s offset:%d" % (lrow(tt, j)[0], ACC[tt-2][j], lrow(tt, j)[1]))
    for tt in (2, 3):
        for j in range(5): a("ds_write_b128 %s, %s offset:%d" % (lrow(tt+2, j)[0], ACC[tt][j], lrow(tt+2, j)[1]))
    lds_signal(4)
    stamp(a, 10)
    a("s_branch P2_FIN")
    a.label('P2_C')
    P = V(72, 20)
    a("s_setprio 3")
    if OPT['noc']:
        go_logic(0)
        srd(a, rOUT, pOUT, 2048 * 1280)
        for i in range(4):
            a(f"s_add_u32 {sT0}, {sRG}, {i}"); a(f"s_and_b32 {sT0}, {sT0}, 3"); a(f"s_lshl_b32 {sT0}, {sT0}, 10")
            a(f"v_add_u32 {V(16+i)}, {sT0}, {vo}")
        init_check(vS2, 132)
        a("s_mov_b32 s81, 0"); a(f"s_cmp_eq_u32 {sPF}, 0"); a("s_cselect_b32 s81, 2, s81"); a(f"s_cmp_eq_u32 {sPF}, 4"); a("s_cselect_b32 s81, 4, s81")
        a("s_branch P2_NOC")
    a(f"s_cmp_lg_u32 {sQF}, 0"); a("s_cbranch_scc1 P2_C1")
    go_logic(0)
    a(f"s_mov_b32 {sNEED}, -1")
    vpoll(a, vz, sFHo, 4, t1)
    pq_loads()
    a("s_waitcnt vmcnt(0)")
    a.label('P2_C1')
    a(f"buffer_load_dword {vFG}, {vz}, {rWS}, {sFHo} offen offset:12 sc1")
    GV = [V(22), V(252), V(10), V(8)]
    GLd = [t3, V(188), V(189), V(190)]
    srd(a, rOUT, pOUT, 2048 * 1280)
    a(f"v_lshl_add_u32 {kw}, {vr}, 2, {vqd}")
    a(f"v_lshlrev_b32 {kw}, 6, {kw}")
    a(f"v_lshl_add_u32 {kw}, {vc}, 3, {kw}")
    a(f"s_mul_i32 {sT0}, {sRG}, 3088"); a(f"s_add_u32 {sT0}, {sT0}, {KVB}")
    a(f"v_add_u32 {kw}, {sT0}, {kw}")
    a(f"v_mul_u32_u24 {t4}, 3088, {vqd}")
    a(f"v_lshl_add_u32 {t4}, {vr}, 6, {t4}")
    a(f"v_add_u32 {t4}, {KVB}, {t4}")
    a(f"v_mov_b32 {ka}, {ZERO + 8}")
    a(f"v_cmp_eq_u32 vcc, {vc}, {vqd}")
    a(f"v_cndmask_b32 {ka}, {ka}, {t4}, vcc")
    VT = [V(16), V(17), V(18), V(19)]
    for i in range(4):
        a(f"s_add_u32 {sT0}, {sRG}, {i}"); a(f"s_and_b32 {sT0}, {sT0}, 3"); a(f"s_lshl_b32 {sT0}, {sT0}, 10")
        a(f"v_add_u32 {VT[i]}, {sT0}, {vo}")
    for i in range(10):
        a(f"v_lshlrev_b32 {PU[2*i]}, 16, {PB[i]}")
        a(f"v_and_b32 {PU[2*i+1]}, 0xffff0000, {PB[i]}")
    gl = (f"s_waitcnt vmcnt(1)\nv_readfirstlane_b32 {sP[0]}, {vAT}\ns_add_u32 {sP[1]}, {sFLAG}, {GOD}\ns_cmp_lg_u32 {sP[0]}, {sNEED}\ns_cbranch_scc1 GOC\n"
          f"s_mov_b64 exec, 1\nbuffer_store_dword {vAT}, {vz}, {rWS}, {sP[1]} offen sc1\ns_mov_b64 exec, -1\nGOC:")
    softmax_unit(a, PU, V(92, 40), V(132, 4), V(136, 4), P, ["s_nop 0"] * 19 + [gl])
    a("s_waitcnt vmcnt(0)")
    a(f"v_cmp_ne_u32 vcc, 0, {vFG}"); a("s_nop 0"); a("s_cbranch_vccnz P2_GOK")
    vpoll(a, vz, sFHo, 12, t1)
    a.label('P2_GOK')
    a(f"v_lshlrev_b32 {t0}, 2, {vl15}")
    a(f"s_lshl2_add_u32 {sT0}, {sR6}, {sRG}")
    a(f"s_lshl_b32 {sT0}, {sT0}, 6"); a(f"s_add_u32 {sT0}, {sT0}, {GOFF}")
    a(f"buffer_load_dword {t3}, {t0}, {rWS}, {sT0} offen {LD}")
    stamp(a, 5)
    init_check(vS2, 132)
    lds_wait(16, 8)
    a(f"s_lshl_b32 {sT2}, {sCG}, 7"); a(f"s_add_u32 {sT2}, {sT2}, {FK + GOD}")
    a(f"s_lshl_b32 {sT3}, {sCG}, 2"); a(f"s_add_u32 {sT3}, {sT3}, {sRG}")
    a(f"s_mul_i32 {sT3}, {sT3}, 6144"); a(f"s_add_u32 {sT3}, {sT3}, {KVACC}")
    sNB = S(81)
    def cb(i): return b_reg(vm, i, 'B') if i < 4 else b_reg(vm, 7, 'B', None, 3, CB0, 4) if OPT['bx'] else b_row(vm, sBo, i - 4, CR[i - 4], None, CB0)
    if OPT['b23']: a(f"s_cmp_eq_u32 {sPF}, 0"); a("s_cbranch_scc1 P2_K2")
    a(f"s_cmp_lt_u32 {sPF}, 6"); a("s_cbranch_scc1 P2_K4")
    for i in range(4):
        if OPT['b23'] and i == (2 if OPT['b23'] == 1 else 3): a.label('P2_K2')
        a(f"s_mov_b32 {sNB}, {i}")
        a(f"buffer_load_dword {t1}, {vz}, {rWS}, {sT2} offen sc1")
        a("s_waitcnt vmcnt(0)")
        a(f"v_cmp_ne_u32 vcc, 0, {t1}"); a("s_nop 0"); a("s_cbranch_vccnz P2_KGO")
        for l in cb(i): a(l)
    a.label('P2_K4')
    a(f"s_mov_b32 {sNB}, 4")
    if OPT['bx']:
        a(f"buffer_load_dword {t1}, {vz}, {rWS}, {sT2} offen sc1")
        a("s_waitcnt vmcnt(0)")
        a(f"v_cmp_ne_u32 vcc, 0, {t1}"); a("s_nop 0"); a("s_cbranch_vccnz P2_KGO")
        for l in cb(4): a(l)
        a(f"s_mov_b32 {sNB}, 5")
    if not OPT['nok']: vpoll(a, vz, sT2, 0, t1)
    else: a("s_waitcnt vmcnt(0)")
    a.label('P2_KGO')
    stamp(a, 6)
    KL = [V(92 + 4 * i, 4) for i in range(6)]
    a(f"s_mov_b32 {sTO}, 0x80000")
    a("s_mov_b32 s82, 0x41000000")
    a.label('KVRETRY')
    for i in range(6):
        if i < 4: a(f"buffer_load_dwordx4 {KL[i]}, {vo}, {rWS}, {sT3} offen offset:{i*1024} {LD}")
        else: a(f"buffer_load_dwordx4 {KL[i]}, {vo4}, {rWS}, {sT3} offen offset:{(i-4)*1024} {LD}")
    for i in range(6):
        a(f"s_waitcnt vmcnt({5-i})")
        a(f"v_cvt_pk_bf16_f32 {KL[i][0]}, {KL[i][0]}, {KL[i][1]}")
        a(f"v_cvt_pk_bf16_f32 {KL[i][1]}, {KL[i][2]}, {KL[i][3]}")
        a(f"ds_write_b64 {kw}, {KL[i][0:2]} offset:{(i % 3)*1024 + (i // 3)*32}")
    a(f"v_min3_f32 {t1}, {KL[0][3]}, {KL[1][3]}, {KL[3][3]}")
    a(f"v_min_f32 {t4}, {KL[2][3]}, {KL[5][3]}")
    a(f"v_min_f32 {t1}, {t1}, {KL[4][3]}")
    a(f"v_cmp_neq_f32 vcc, s82, {t4}")
    a(f"v_cmp_neq_f32 {sP}, s82, {t1}")
    a("s_and_b32 s4, vcc_lo, 0x00880088"); a("s_and_b32 s5, vcc_hi, 0x00880088"); a("s_or_b32 s4, s4, s5")
    a(f"s_or_b32 s5, {sP[0]}, {sP[1]}"); a("s_and_b32 s5, s5, 0x88888888"); a("s_or_b32 s4, s4, s5")
    a("s_branch KVOK" if OPT['nok'] else "s_cbranch_scc0 KVOK")
    a("s_waitcnt lgkmcnt(0)")
    a("s_sleep 4")
    a(f"s_sub_u32 {sTO}, {sTO}, 1")
    a("s_cbranch_scc0 KVRETRY")
    a.label('KVOK')
    lds_signal(0)
    lds_wait(0, 4)
    stamp(a, 16)
    AFl = [V(92 + 4 * i, 4) for i in range(15)]
    D = [V(152 + 4 * t, 4) for t in range(6)]
    O = V(176, 12)
    order = [5, 0, 1, 2, 3, 4]
    fr = [(t, s) for s in range(5) for t in order]
    def rdl(k):
        t, s_ = fr[k]
        return [f"ds_read_b64_tr_b16 {AFl[k % 15][2*r_:2*r_+2]}, {ka} offset:{s_*512 + r_*256 + (t*8 if t < 3 else t*8 + 8)}" for r_ in range(2)]
    AH = 7
    for k in range(AH):
        for l in rdl(k): a(l)
    def fin(t):
        for h in range(4): a(f"v_mul_f32 {D[t][h]}, {D[t][h]}, {t2}")
        a(f"v_cvt_pk_bf16_f32 {O[2*t]}, {D[t][0]}, {D[t][1]}")
        a(f"v_cvt_pk_bf16_f32 {O[2*t+1]}, {D[t][2]}, {D[t][3]}")
    for k in range(30):
        t, s_ = fr[k]
        a(f"s_waitcnt lgkmcnt({2 * min(AH - 1, 29 - k)})")
        a(f"v_mfma_f32_16x16x32_bf16 {D[t]}, {AFl[k % 15]}, {P[4*s_:4*s_+4]}, {'0' if s_ == 0 else D[t]}")
        if k + AH < 30:
            for l in rdl(k + AH): a(l)
        if OPT['sent'] and k == OPT['oh1']:
            a(f"s_sub_u32 {sFLAG}, {sFHo}, {GOD - 8}"); a(f"s_mov_b32 {sNEED}, 31"); a(f"v_mov_b32 {vAT}, 1")
            a("s_mov_b64 exec, 1"); a(f"buffer_atomic_add {vAT}, {vz}, {rWS}, {sFLAG} offen sc0 sc1"); a("s_mov_b64 exec, -1")
    stamp(a, 19)
    a(f"v_add_f32 {t2}, 0x358637bd, {D[5][0]}")
    a(f"v_rcp_f32 {t2}, {t2}")
    a(f"v_mul_f32 {t2}, {t2}, {t3}")
    fin(0); fin(1)
    a(f"buffer_store_dwordx4 {O[0:4]}, {vo}, {rWS}, {sO1} offen {ST}")
    fin(2); fin(3)
    a(f"buffer_store_dwordx4 {O[4:8]}, {vo4}, {rWS}, {sO1} offen {ST}")
    fin(4)
    a(f"v_mov_b32 {O[10]}, {O[8]}"); a(f"v_mov_b32 {O[11]}, {O[9]}")
    a(f"v_permlane32_swap_b32 {O[8]}, {O[10]}"); a(f"v_permlane32_swap_b32 {O[9]}, {O[11]}")
    a("s_mov_b32 exec_hi, 0")
    a(f"buffer_store_dwordx4 {O[8:12]}, {vo}, {rWS}, {sO2} offen {ST}")
    a("s_mov_b32 exec_hi, -1")
    stamp(a, 17)
    NBA = OPT['nba'] and not OPT['sent']
    if NBA:
        a(f"s_sub_u32 {sFLAG}, {sFHo}, {GOD - 8}"); a(f"s_mov_b32 {sNEED}, 31"); a(f"v_mov_b32 {vAT}, 1")
        a(f"ds_read_b32 {t1}, {vcn} offset:20"); a("s_waitcnt lgkmcnt(0)"); a(f"v_readfirstlane_b32 {sT0}, {t1}")
        a(f"s_and_b32 {sT0}, {sT0}, {sNB}")
        a(f"s_cmp_eq_u32 {sT0}, 4"); a("s_cbranch_scc1 P2_NB1")
        arrive(a, sFLAG, 31, t0, t1)
        a(f"s_mov_b32 {sNEED}, -1")
        a.label('P2_NB1')
    elif not OPT['sent']:
        a(f"s_sub_u32 {sT2}, {sFHo}, {GOD - 8}")
        arrive(a, sT2, 31, t0, t1)
    else: go_logic(3, False)
    stamp(a, 7)
    if OPT['noc']: a.label('P2_NOC')
    for i in range(5 if OPT['bx'] else 4):
        lb = a.newlabel('CB')
        a(f"s_cmp_gt_u32 {sNB}, {i}"); a(f"s_cbranch_scc1 {lb}")
        for l in cb(i): a(l)
        a.label(lb)
    XB = [V(28), V(13), V(30)]; XW = V(31); GB = V(12)
    if OPT['bx']: XB = [V(1), V(13), V(8)]; XW = V(9)
    for q in range(1, 4):
        a(f"s_sub_u32 {sT0}, {sRG}, {q}"); a(f"s_and_b32 {sT0}, {sT0}, 3"); a(f"s_mul_i32 {sT0}, {sT0}, 5120")
        a(f"s_add_u32 {sT0}, {sT0}, {CR[q-1]*20480}")
        a(f"v_add_u32 {XB[q-1]}, {sT0}, {vo}")
    a(f"v_add_u32 {XW}, {6*20480}, {vbl}")
    def crow(k, j): return (vbl, CR[k]*20480 + j*1024) if k < 2 else (XW, j*1024)
    a(f"s_add_u32 {sT0}, {sRG}, 2"); a(f"s_mul_i32 {sT0}, {sT0}, 20480"); a(f"v_add_u32 {GB}, {sT0}, {vo}")
    a(f"v_mul_u32_u24 {t0}, 1280, {vl15}")
    a(f"v_lshl_add_u32 {t0}, {vqd}, 3, {t0}")
    a(f"s_lshl_b32 {sT2}, {sR6}, 2"); a(f"s_add_u32 {sT2}, {sT2}, {sRG}"); a(f"s_mul_i32 {sT2}, {sT2}, {16*1280}")
    a(f"s_mul_i32 {sT3}, {sCG}, 160"); a(f"s_add_u32 {sT2}, {sT2}, {sT3}")
    a(f"v_add_f32 {V(22)}, 1.0, {t3}"); a(f"v_rcp_f32 {V(22)}, {V(22)}")
    a(f"v_mul_u32_u24 {t3}, 1280, {vl15}"); a(f"v_and_b32 {t4}, 1, {vqd}"); a(f"v_lshl_add_u32 {t3}, {t4}, 5, {t3}")
    a(f"v_lshrrev_b32 {t4}, 1, {vqd}"); a(f"v_lshl_add_u32 {t3}, {t4}, 4, {t3}")
    lds_wait(20, 4)
    a(f"s_setprio {OPT['cprio']}")
    if OPT['stamp'] == 4: a("s_memtime s[92:93]")
    vm = VmTrack()
    for s in range(OPT['la'] + 1):
        if OPT['stp'] == 2 and s: a(f"s_setprio {max(1, 3 - s)}")
        for l in a_loads(s, ('A', s), VT): a(l)
        if NBA and s == 1:
            a(f"s_cmp_eq_u32 {sNEED}, -1"); a("s_cbranch_scc1 P2_NB2")
            a("s_waitcnt vmcnt(8)")
            a("s_mov_b64 exec, 1"); a(f"buffer_atomic_add {vAT}, {vz}, {rWS}, {sFLAG} offen sc0 sc1"); a("s_mov_b64 exec, -1")
            a.label('P2_NB2')
    GT = [BR[1], BR[2], BR[3], AR[1] + [AR[2][0]]]
    if OPT['bx']: GT = [BR[1], BR[3], BR[2], BR[4]]
    nextA = OPT['la'] + 1
    OC = OPT['oc']
    for s in range(9):
        n = vm.wait_for(lambda t: t in (('A', s), ('B', s)) or (s == OC and t == 'of'))
        if s == 1 and OPT['ep']: lds_wait(24, 4)
        if s == 8:
            lds_wait(4, 4)
            stamp(a, 8)
            for w in range(2):
                for j in range(5): a(f"ds_read_b128 {GT[w][j]}, {GB} offset:{w*5120 + j*1024}")
        a(f"s_waitcnt vmcnt({n})" + (" lgkmcnt(0)" if s == (6 if OPT['gf'] & 2 else 4) else ""))
        if OPT['stamp'] == 4:
            a("s_waitcnt lgkmcnt(0)")
            a(f"v_writelane_b32 v255, s92, {40 + s}")
            a("s_memtime s[92:93]")
        if NBA and s == 1: go_logic(n, False)
        if s == OC:
            stamp(a, 18)
            a(f"v_cmp_ne_u32 vcc, 0, {t2}"); a("s_nop 0"); a("s_cbranch_vccnz P2_OOK")
            if not OPT['noc']: vpoll(a, vz, sFHo, 8, t2)
            a.label('P2_OOK')
            a(f"s_mov_b32 {sTO}, 0x40000")
            stamp(a, 9)
        if OPT['sent'] and s >= 4:
            a.label(f'VER{s}')
            regs = [AR[s % NA][tt][k] for tt in range(4) for k in range(4)]
            a(f"v_max3_u32 {t4}, {regs[0]}, {regs[1]}, {regs[2]}")
            a(f"v_max3_u32 {t1}, {regs[3]}, {regs[4]}, {regs[5]}")
            for k in (6, 10):
                a(f"v_max3_u32 {t4}, {t4}, {regs[k]}, {regs[k+1]}"); a(f"v_max3_u32 {t1}, {t1}, {regs[k+2]}, {regs[k+3]}")
            a(f"v_max3_u32 {t4}, {t4}, {regs[14]}, {regs[15]}")
            a(f"v_max_u32 {t4}, {t4}, {t1}")
            a(f"v_cmp_eq_u32 vcc, -1, {t4}")
            a("s_nop 0")
            a(f"s_cbranch_vccnz RET{s}")
            a.label(f'VOK{s}')
        side = []
        if OPT['fair'] and s in eval(OPT['fc']): a(f"s_setprio {eval(OPT['fc'])[s]}")
        if s == OC - 1:
            side.append(f"buffer_load_dword {t2}, {vz}, {rWS}, {sFHo} offen offset:8 sc1"); vm.issue('of')
        while s >= 1 and nextA <= s + OPT['la'] and nextA < 9 and (nextA < 4 or s >= OC):
            side += a_loads(nextA, ('A', nextA), VT); nextA += 1
        if 1 <= s <= 5:
            g_ = CG_[s + 3]
            if OPT['bx'] and s + 3 == 7: pass
            elif g_ < 3: side += ["ds_read_b128 %s, %s offset:%d" % ((BR[(s+3)%4][j],) + crow(g_, j)) for j in range(5)]
            else: side += b_reg(vm, s + 3, ('B', s + 3), None, g_, CB0)
        if s < 8: mm(s, range(4) if s == 0 else [], side, 1 if len([x for x in side if not x.startswith('s_')]) > 10 else 2, 4 if OPT['bx'] and s == 7 else None)
        else:
            for tt in (1, 2, 3, 0):
                for j in range(5):
                    d = ACC[tt][j]
                    a(f"v_mfma_f32_16x16x32_bf16 {d}, {BR[0][j]}, {AR[8 % NA][tt]}, {d}")
                    if tt in (1, 2): a(f"ds_read_b128 {GT[tt+1][j]}, {GB} offset:{(tt+1)*5120 + j*1024}")
                    pt = {1: None, 2: None, 3: 1, 0: 2}[tt]
                    if pt: a("ds_write_b128 %s, %s offset:%d" % (crow(pt-1, j)[0], ACC[pt][j], crow(pt-1, j)[1]))
            for j in range(5): a("ds_write_b128 %s, %s offset:%d" % (crow(2, j)[0], ACC[3][j], crow(2, j)[1]))
    if OPT['stamp'] == 4:
        a("s_waitcnt lgkmcnt(0)"); a(f"v_writelane_b32 v255, s92, {49}"); a("s_memtime s[92:93]"); a("s_waitcnt lgkmcnt(0)"); a(f"v_writelane_b32 v255, s92, {50}")
    a("s_waitcnt lgkmcnt(15)")
    for j in range(5):
        for h in range(2):
            sl = slice(2*h, 2*h+2)
            a(f"v_pk_add_f32 {GT[0][j][sl]}, {GT[0][j][sl]}, {GT[1][j][sl]}")
            a(f"v_pk_add_f32 {GT[2][j][sl]}, {GT[2][j][sl]}, {GT[3][j][sl]}")
    stamp(a, 10)
    lds_signal(8)
    for j in range(5):
        for h in range(2):
            sl = slice(2*h, 2*h+2)
            a(f"v_pk_add_f32 {GT[0][j][sl]}, {GT[0][j][sl]}, {GT[2][j][sl]}")
            a(f"v_pk_add_f32 {ACC[0][j][sl]}, {GT[0][j][sl]}, {ACC[0][j][sl]}")
    lds_wait(8, 4)
    RD = [ACC[1], ACC[2], ACC[3]]
    if OPT['fin'] == 0:
        for q in range(3):
            for j in range(5): a(f"ds_read_b128 {RD[q][j]}, {XB[q]} offset:{j*1024}")
        for q in range(3):
            a(f"s_waitcnt lgkmcnt({10 - 5*q})")
            for j in range(5):
                for h in range(2): a(f"v_pk_add_f32 {ACC[0][j][2*h:2*h+2]}, {ACC[0][j][2*h:2*h+2]}, {RD[q][j][2*h:2*h+2]}")
                if q == 2:
                    for h in range(2): a(f"v_pk_mul_f32 {ACC[0][j][2*h:2*h+2]}, {ACC[0][j][2*h:2*h+2]}, {V(22, 2)} op_sel_hi:[1,0]")
                    a(f"v_cvt_pk_bf16_f32 {ACC[1][j][0]}, {ACC[0][j][0]}, {ACC[0][j][1]}")
                    a(f"v_cvt_pk_bf16_f32 {ACC[1][j][1]}, {ACC[0][j][2]}, {ACC[0][j][3]}")
                    a(f"buffer_store_dwordx2 {ACC[1][j][0:2]}, {t0}, {rOUT}, {sT2} offen offset:{j*32} {OPT['ost']}")
    else:
        for j in range(5):
            for q in range(3): a(f"ds_read_b128 {RD[q][j]}, {XB[q]} offset:{j*1024}")
        OUTR = [GT[1][0], GT[1][1], GT[1][2]]
        for j in range(5):
            a(f"s_waitcnt lgkmcnt({12 - 3*j})")
            for h in range(2):
                sl = slice(2*h, 2*h+2)
                a(f"v_pk_add_f32 {RD[0][j][sl]}, {RD[0][j][sl]}, {RD[1][j][sl]}")
                a(f"v_pk_add_f32 {ACC[0][j][sl]}, {ACC[0][j][sl]}, {RD[2][j][sl]}")
            for h in range(2):
                sl = slice(2*h, 2*h+2)
                a(f"v_pk_add_f32 {ACC[0][j][sl]}, {ACC[0][j][sl]}, {RD[0][j][sl]}")
            for h in range(2): a(f"v_pk_mul_f32 {ACC[0][j][2*h:2*h+2]}, {ACC[0][j][2*h:2*h+2]}, {V(22, 2)} op_sel_hi:[1,0]")
            o_ = OUTR[j // 2]
            a(f"v_cvt_pk_bf16_f32 {o_[2*(j%2)]}, {ACC[0][j][0]}, {ACC[0][j][1]}")
            a(f"v_cvt_pk_bf16_f32 {o_[2*(j%2)+1]}, {ACC[0][j][2]}, {ACC[0][j][3]}")
            if j % 2 == 1:
                a(f"v_permlane16_swap_b32 {o_[0]}, {o_[2]}"); a(f"v_permlane16_swap_b32 {o_[1]}, {o_[3]}")
                a(f"buffer_store_dwordx4 {o_}, {t3}, {rOUT}, {sT2} offen offset:{(j-1)*32} {OPT['ost']}")
            if j == 4: a(f"buffer_store_dwordx2 {o_[0:2]}, {t0}, {rOUT}, {sT2} offen offset:128 {OPT['ost']}")
    a.label('P2_FIN')
    if OPT['stamp'] or OPT['pad']:
        a("s_waitcnt vmcnt(0)")
        stamp(a, 11)
    stamp_flush(a)
    if OPT['pad']:
        if OPT['padwg'] < 999: a(f"s_cmp_lg_u32 s2, {OPT['padwg']}"); a(f"s_cbranch_scc1 {END}")
        a.label('PADL')
        a("s_sleep 1"); a("s_memrealtime s[12:13]"); a("s_waitcnt lgkmcnt(0)"); a("s_sub_u32 s12, s12, s10")
        a(f"s_cmp_lt_u32 s12, {OPT['pad']*100}"); a("s_cbranch_scc1 PADL")
    a.label(END)
    a.label('K_LAST')
    a("s_endpgm")
    if OPT['sent']:
        for s in range(4, 9):
            a.label(f'RET{s}')
            a(f"s_sub_u32 {sTO}, {sTO}, 1")
            a(f"s_cselect_b32 {sTO}, 0, {sTO}")
            a(f"s_cbranch_scc1 VOK{s}")
            a(f"s_sleep {OPT['rsl']}")
            for l in a_loads(s, 'r', VT): a(l)
            a("s_waitcnt vmcnt(0)")
            a(f"s_branch VER{s}")

def build():
    hdr = open(f'cdna_kernels/{NAME}.s.ref').read().split('; Override launch')[0]
    name = NAME + '_kernel'
    out = hdr + "; @launch grid=(256,1,1) block=(512,1,1) lds=163840\n"
    out += '.amdgcn_target "amdgcn-amd-amdhsa--gfx950"\n.text\n'
    a = Asm(); kernel(a)
    out += f".globl {name}\n.p2align 8\n.type {name},@function\n{name}:\n" + a.finalize()
    print('instrs', len(a.ins), 'nops', a.nnop, file=sys.stderr)
    out += f""".section .rodata,"a"
.p2align 6
.amdhsa_kernel {name}
  .amdhsa_next_free_vgpr 256
  .amdhsa_next_free_sgpr 102
  .amdhsa_accum_offset 256
  .amdhsa_group_segment_fixed_size 0
  .amdhsa_kernarg_size 96
  .amdhsa_user_sgpr_count 2
  .amdhsa_user_sgpr_kernarg_segment_ptr 1
  .amdhsa_system_sgpr_workgroup_id_x 1
.end_amdhsa_kernel
"""
    return out

if __name__ == '__main__':
    outp = sys.argv[1]
    for o in sys.argv[2:]:
        k, v = o.split('=', 1); OPT[k] = int(v) if v.isdigit() else v
    open(outp, 'w').write(build())
```

```python
import sys
sys.path.insert(0, 'gen')
from asmlib import *
NAME = 'gated_mix__linear_kernel_hedgehog__swiglu_ffn__prompt'
AP = 0; BP = 0xA00000; PQ = 0xD00000; KVACC = 0x1200000; FH = 0x1230000; FK = 0x1232000; FP = 0x1234000; ZEND = 0x1235000
GOFF = 0x1240000; DUMMY = 0x1250000; STAMP = 0x1300000; WSZ = 0x1600000
LOG2E = 0x3fb8aa3b; NLOG2E = 0xbfb8aa3b
OPT = dict(stamp=0, touch=2, bs="{'p0':(0,2),'p1':(2,5),3:(5,8),7:(8,10)}", pp=0, spnt='nt', rot2=0, slp=1, early=1, btouch=0, atf='sc1', cpf=12, nobar=18, chk=12, sent=0, two=0, ilh=5, ill=4, nog=0, asg=0, ksp=0, gnt='', tfl='', bx=0, ep=0, map2=1, hd=0, gq=0, lbt=0, tw=0, trim=1, nba=0, la=2, spr=0, fin=1, stp=0, nob=0, noc=0, nok=0, noh=0, t2si=2, swp=1, gf=0, b23=1, tlb=0, padwg=999, padev=0, fair=1, fg='{0:2,5:1,7:3}', fc='{0:1,4:0}', npk=0, eprio=2, gprio=3, oc=2, oord=1, noa=0, pj=18, t2s=0, x0e=1, sb1=1, sb2=1, t2pos=1, pad=0, bt=0, tsl=4, rsl=8, cprio2=0, at=0, kh=0, cprio=3, oh1=19, gdel=0, fill=0, spst='sc1', t2a='[0]', t2b='[2]', t2f='{0:(5,6),1:(4,3),2:(7,4),3:(6,5),5:(9,6),6:(8,3)}', t2q='{}', xfl='', wfl='', il=4, qbar=0, prio=0, dbgt=0, ost='nt')
ST = 'sc1'; LD = 'sc1'

pX, pQKV, pPHI, pWO, pBX, pWG, pWU, pWD = [S(16 + 2 * i, 2) for i in range(8)]
pGW, pOUT, pDBG, pWS = [S(32 + 2 * i, 2) for i in range(4)]
sWV = S(3)
rX, rW, rWS, rA, rB = S(40, 4), S(44, 4), S(48, 4), S(52, 4), S(56, 4)
sC = S(60, 2)
rDBG = S(84, 4)
sFLAG = S(88); sTO = S(89); sNEED = S(7)
GOD = 0x1000
sP = S(14, 2)
XSLOT = 32768; WB = 98304
GWB = 159744; CNT = 161024; ZERO = 161280; KVB = 147456

def srd(a, d, base, size):
    a(f"s_mov_b32 {d[0]}, {base[0]}")
    a(f"s_and_b32 {d[1]}, {base[1]}, 0xffff")
    a(f"s_mov_b32 {d[2]}, {size}")
    a(f"s_mov_b32 {d[3]}, 0x20000")

def sstamp(a, j):
    if OPT['stamp'] != 3: return
    if j > 0: a(f"v_writelane_b32 v255, s92, {40 + j - 1}")
    a("s_memtime s[92:93]")
def stamp(a, idx):
    if OPT['pad'] and OPT['padev'] == idx:
        a("s_memrealtime s[10:11]"); a("s_waitcnt lgkmcnt(0)")
    if not OPT['stamp']: return
    if OPT['stamp'] >= 2 and idx not in (2, 3, 5, 11): return
    a("s_memrealtime s[90:91]")
    a("s_memtime s[92:93]")
    a("s_waitcnt lgkmcnt(0)")
    a(f"v_writelane_b32 v255, s90, {2*idx}")
    a(f"v_writelane_b32 v255, s92, {2*idx+1}")
def stamp_flush(a):
    if not OPT['stamp']: return
    if OPT['dbgt']:
        a("s_not_b32 s90, s10"); a("v_writelane_b32 v255, s90, 0")
        a("v_lshlrev_b32 v254, 1, v0"); a("v_add_u32 v254, 8, v254")
        a("s_mov_b32 exec_lo, 0x05555555"); a("s_mov_b32 exec_hi, 0")
        a(f"buffer_atomic_umax v255, v254, {rDBG}, 0 offen sc1")
        a("s_mov_b64 exec, -1")
        return
    a("v_writelane_b32 v255, s10, 0"); a("v_writelane_b32 v255, s12, 1")
    a("s_lshl_b32 s90, s2, 3")
    a(f"s_add_u32 s90, s90, {sWV}")
    a("s_lshl_b32 s90, s90, 8")
    a(f"s_add_u32 s90, s90, {STAMP + 0x80000}")
    a("v_lshlrev_b32 v254, 2, v0")
    a(f"buffer_store_dword v255, v254, {rWS}, s90 offen")

def vpoll(a, vzero, soff, off, tmp, extra=None, slp=None):
    L, D = a.newlabel('POLL'), a.newlabel('POLLD')
    a(f"s_mov_b32 {sTO}, 0x80000")
    a.label(L)
    if extra: a(extra)
    a(f"buffer_load_dword {tmp}, {vzero}, {rWS}, {soff} offen offset:{off} sc1")
    a("s_waitcnt vmcnt(0)")
    a(f"v_cmp_eq_u32 vcc, 0, {tmp}")
    a("s_nop 0")
    a(f"s_cbranch_vccz {D}")
    a(f"s_sleep {slp or OPT['slp']}")
    a(f"s_sub_u32 {sTO}, {sTO}, 1")
    a(f"s_cbranch_scc0 {L}")
    a.label(D)
def arrive(a, soff, need, z, one, nyounger=0):
    D = a.newlabel('ARR')
    a(f"v_mov_b32 {z}, 0"); a(f"v_mov_b32 {one}, 1")
    a(f"s_waitcnt vmcnt({nyounger})")
    a("s_mov_b64 exec, 1")
    a(f"buffer_atomic_add {one}, {z}, {rWS}, {soff} offen sc0 sc1")
    a("s_waitcnt vmcnt(0)")
    a(f"v_readfirstlane_b32 {sP[0]}, {one}")
    a(f"s_add_u32 {sP[1]}, {soff}, {GOD}")
    a(f"s_cmp_lg_u32 {sP[0]}, {need}")
    a(f"s_cbranch_scc1 {D}")
    a(f"buffer_store_dword {one}, {z}, {rWS}, {sP[1]} offen sc1")
    a.label(D)
    a("s_mov_b64 exec, -1")
def init_poll(a, reg, off):
    L, D = a.newlabel('POLL'), a.newlabel('POLLD')
    a(f"s_mov_b32 {sTO}, 0x80000")
    a.label(L)
    a(f"v_mov_b32 {reg}, 0")
    a(f"buffer_load_dword {reg}, {reg}, {rDBG}, 0 offen offset:{off} sc1")
    a("s_waitcnt vmcnt(0)")
    a(f"v_readfirstlane_b32 {sP[0]}, {reg}")
    a(f"s_cmp_lg_u32 {sP[0]}, 0")
    a(f"s_cbranch_scc1 {D}")
    a("s_sleep 2")
    a(f"s_sub_u32 {sTO}, {sTO}, 1")
    a(f"s_cbranch_scc0 {L}")
    a.label(D)

def softmax_unit(a, P, E, M, T, O, side=None):
    side = list(side or [])
    a(f"v_max3_f32 {M[0]}, {P[0]}, {P[1]}, {P[2]}")
    a(f"v_min3_f32 {M[2]}, {P[0]}, {P[1]}, {P[2]}")
    for i in range(3, 19, 2):
        a(f"v_max3_f32 {M[0]}, {M[0]}, {P[i]}, {P[i+1]}")
        a(f"v_min3_f32 {M[2]}, {M[2]}, {P[i]}, {P[i+1]}")
    a(f"v_max_f32 {M[0]}, {M[0]}, {P[19]}")
    a(f"v_min_f32 {M[2]}, {M[2]}, {P[19]}")
    a(f"v_mul_f32 {M[0]}, {sC[0]}, {M[0]}")
    a(f"v_mul_f32 {M[2]}, {sC[0]}, {M[2]}")
    for i in range(0, 20, 2):
        a(f"v_pk_fma_f32 {E[i:i+2]}, {P[i:i+2]}, {sC}, {M[0:2]} op_sel_hi:[1,1,0] neg_lo:[0,0,1] neg_hi:[0,0,1]")
        a(f"v_pk_fma_f32 {E[20+i:22+i]}, {P[i:i+2]}, {sC}, {M[2:4]} op_sel_hi:[1,1,0] neg_lo:[1,0,0] neg_hi:[1,0,0]")
    for i in range(40):
        a(f"v_exp_f32 {E[i]}, {E[i]}")
        if side and i % 2 == 1:
            x = side.pop(0)
            if x != "s_nop 0": a(x)
    for l in side: a(l)
    a(f"v_pk_add_f32 {T[0:2]}, {E[0:2]}, {E[2:4]}")
    a(f"v_pk_add_f32 {T[2:4]}, {E[20:22]}, {E[22:24]}")
    for i in range(4, 20, 2):
        a(f"v_pk_add_f32 {T[0:2]}, {T[0:2]}, {E[i:i+2]}")
        a(f"v_pk_add_f32 {T[2:4]}, {T[2:4]}, {E[20+i:22+i]}")
    a(f"v_add_f32 {T[0]}, {T[0]}, {T[1]}")
    a(f"v_add_f32 {T[2]}, {T[2]}, {T[3]}")
    a(f"v_rcp_f32 {T[0]}, {T[0]}")
    a(f"v_rcp_f32 {T[2]}, {T[2]}")
    for i in range(0, 20, 2):
        a(f"v_pk_mul_f32 {E[i:i+2]}, {E[i:i+2]}, {T[0:2]} op_sel_hi:[1,0]")
        a(f"v_pk_mul_f32 {E[20+i:22+i]}, {E[20+i:22+i]}, {T[2:4]} op_sel_hi:[1,0]")
    for i in range(20):
        a(f"v_cvt_pk_bf16_f32 {O[i]}, {E[2*i]}, {E[2*i+1]}")

def kernel(a):
    END = 'K_END'
    BS = eval(OPT['bs'])
    a("s_cmp_ge_u32 s2, 256")
    a(f"s_cbranch_scc1 {END}")
    if OPT['stamp']:
        a("s_memrealtime s[10:11]"); a("s_memtime s[12:13]"); a("v_mov_b32 v255, 0")
    if OPT['pad']: a("s_memrealtime s[10:11]")
    a("s_load_dwordx16 s[16:31], s[0:1], 0")
    a("s_load_dwordx8 s[32:39], s[0:1], 64")
    lane = V(0)
    tid, t0, t1, t2, t3, t4 = V(1), V(2), V(3), V(4), V(5), V(6)
    vqd, vr, vc, vl15 = V(7), V(8), V(9), V(10)
    vx = [V(11 + i) for i in range(4)]
    xa = [[V(15), V(16)], [V(17), V(18)]]
    tdum = V(19); ta = V(32, 2); tb = V(34, 2)
    R0 = 24
    sTY, sRB, sXK, sWK, sM, sT0, sT1, sT2, sT3, sRG, sHI, sID, sMW, sC8, sR4 = [S(62 + i) for i in range(15)]
    a(f"v_lshrrev_b32 {t0}, 6, v0")
    a(f"v_mov_b32 {tid}, v0")
    a(f"v_readfirstlane_b32 {sWV}, {t0}")
    a(f"v_and_b32 {lane}, 63, v0")
    a(f"s_bfe_u32 {sC8}, s2, 0x30003")
    a(f"s_lshr_b32 {sR4}, s2, 6")
    a(f"s_and_b32 {sRB}, s2, 1")
    a(f"s_lshl_b32 {sRB}, {sRB}, 2")
    a(f"s_add_u32 {sRB}, {sRB}, {sR4}")
    a(f"s_bfe_u32 {sT0}, s2, 0x20001")
    a(f"s_and_b32 {sRG}, {sWV}, 3")
    a(f"s_lshr_b32 {sHI}, {sWV}, 2")
    a(f"v_lshrrev_b32 {vqd}, 4, {lane}")
    a(f"v_bfe_u32 {vr}, {lane}, 2, 2")
    a(f"v_and_b32 {vc}, 3, {lane}")
    a(f"v_and_b32 {vl15}, 15, {lane}")
    a(f"v_lshrrev_b32 {t0}, 3, {lane}")
    a(f"v_mul_u32_u24 {t0}, 1280, {t0}")
    a(f"v_and_b32 {t1}, 7, {lane}")
    a(f"v_xor_b32 {t1}, {t1}, {vqd}")
    a(f"v_lshl_add_u32 {vx[0]}, {t1}, 4, {t0}")
    a(f"v_xor_b32 {t1}, 4, {t1}")
    a(f"v_lshl_add_u32 {vx[1]}, {t1}, 4, {t0}")
    a(f"v_add_u32 {vx[1]}, {8*1280-1024}, {vx[1]}")
    a(f"v_add_u32 {vx[2]}, {16*1280-2048}, {vx[0]}")
    a(f"v_add_u32 {vx[3]}, {16*1280-2048}, {vx[1]}")
    a(f"s_mul_i32 {sXK}, {sRB}, {256*1280}")
    a(f"s_mul_i32 {sT1}, {sWV}, {32*1280}")
    a(f"s_add_u32 {sXK}, {sXK}, {sT1}")
    a(f"s_lshl_b32 {sM}, {sWV}, 12")
    sXA, sXB = S(6), S(7)
    if OPT['swp']:
        a(f"s_add_u32 {sTY}, {sC8}, {sR4}"); a(f"s_and_b32 {sTY}, {sTY}, 1")
        a(f"s_lshl_b32 {sT1}, {sTY}, 7"); a(f"s_add_u32 {sXK}, {sXK}, {sT1}")
    a(f"v_lshlrev_b32 {t2}, 3, {tid}")
    a(f"v_min_u32 {t2}, {163840 - CNT - 8}, {t2}")
    a(f"v_add_u32 {t2}, {CNT}, {t2}")
    a(f"v_mov_b32 {ta[0]}, 0"); a(f"v_mov_b32 {ta[1]}, 0")
    a(f"ds_write_b64 {t2}, {ta}")
    a(f"s_mul_i32 {sID}, {sT0}, 9"); a(f"s_add_u32 {sID}, {sID}, 1"); a(f"s_lshr_b32 {sID}, {sID}, 1")
    a(f"s_add_u32 {sID}, {sID}, {sC8}"); a(f"s_sub_u32 {sID}, {sID}, 3")
    a(f"s_and_b32 {sT1}, {sT0}, 1"); a(f"s_add_u32 {sT1}, {sT1}, {sC8}")
    a(f"s_mov_b32 {sC[0]}, {LOG2E:#x}")
    a(f"s_mov_b32 {sC[1]}, {LOG2E:#x}")
    sU1, sU2, sBK = S(100), S(101), S(95)
    vt1, vt2 = V(22), V(23)
    T2 = OPT['touch'] >= 2; T3 = OPT['touch'] == 3
    rTT = S(96, 4)
    def t2_all(b0):
        return [f"s_mul_i32 s4, {sBK}, {b0}", f"s_add_u32 s4, s4, {sU2}",
                f"v_add_u32 v21, s4, {vt2}", f"s_mov_b64 exec, 0xff\nbuffer_load_dword {tdum}, v21, {rTT}, 0 offen\ns_mov_b64 exec, -1"]
    OOL = []
    def t2_one(b, c8v):
        lb = a.newlabel('T2')
        body = (f"s_mul_i32 s4, {sBK}, {b}\ns_add_u32 s4, s4, {sU1}\nv_add_u32 v3, s4, {vt1}\n" + ("s_mov_b32 exec_hi, 0\n", "s_mov_b64 exec, 0xffff\n", "s_mov_b64 exec, 0xff\n")[OPT['hd']] +
                f"buffer_load_dword {tdum}, v3, {rTT}, 0 offen\ns_mov_b64 exec, -1\n")
        if OPT['trim']:
            OOL.append(f"{lb}o:\n" + body + f"s_branch {lb}")
            return [f"s_cmp_eq_u32 {'s94' if OPT['hd'] else sC8}, {c8v}\ns_cbranch_scc1 {lb}o\n{lb}:"]
        return [f"s_cmp_lg_u32 {sC8}, {c8v}\ns_cbranch_scc1 {lb}\n" + body + f"{lb}:"]
    if T2:
        a(f"s_lshr_b32 s9, {sWV}, 1")
        a(f"s_mov_b32 {rTT[2]}, {2048*1280}"); a(f"s_movk_i32 {sBK}, 128")
        a("s_cmp_eq_u32 s9, 1")
        a(f"s_cselect_b32 {rTT[2]}, {640*3840}, {rTT[2]}"); a(f"s_cselect_b32 {sBK}, {64*3840}, {sBK}")
        a("s_cmp_ge_u32 s9, 2")
        a(f"s_cselect_b32 {rTT[2]}, {640*3456}, {rTT[2]}"); a(f"s_cselect_b32 {sBK}, {64*3456}, {sBK}")
        a(f"s_mov_b32 {rTT[3]}, 0x20000")
        a("s_cmp_eq_u32 s9, 0")
        a("s_movk_i32 s7, 128"); a("s_cselect_b32 s5, 1280, s7"); a("s_cselect_b32 s6, 640, s7"); a("s_cselect_b32 s7, 512, 0")
        a(f"v_mul_u32_u24 {vt1}, s5, {lane}")
        a(f"v_mul_u32_u24 {vt2}, s6, {lane}")
        a(f"v_and_b32 {t0}, 1, {lane}"); a(f"v_mul_u32_u24 {t0}, s7, {t0}"); a(f"v_sub_u32 {vt2}, {vt2}, {t0}")
        a(f"s_and_b32 s4, {sWV}, 1")
        a(f"s_lshl1_add_u32 {sU2}, s2, s4"); a(f"s_lshl_b32 {sU2}, {sU2}, 3"); a(f"s_mul_i32 {sU2}, {sU2}, s6")
        a(f"s_and_b32 {sU1}, s2, 7"); a(f"s_lshl2_add_u32 {sU1}, {sU1}, {sR4}")
        a(f"s_lshl1_add_u32 {sU1}, {sU1}, s4")
        if OPT['hd'] == 1:
            a(f"s_and_b32 s4, {sC8}, 1"); a(f"s_lshl1_add_u32 {sU1}, {sU1}, s4"); a(f"s_lshl_b32 {sU1}, {sU1}, 4")
            a(f"s_add_u32 s94, {sC8}, 1"); a("s_lshr_b32 s94, s94, 1")
        elif OPT['hd'] == 2:
            a(f"s_and_b32 s4, {sC8}, 3"); a(f"s_lshl2_add_u32 {sU1}, {sU1}, s4"); a(f"s_lshl_b32 {sU1}, {sU1}, 3")
            a(f"s_add_u32 s94, {sC8}, 1"); a("s_lshr_b32 s94, s94, 2")
        else: a(f"s_lshl_b32 {sU1}, {sU1}, 5")
        a(f"s_mul_i32 {sU1}, {sU1}, s5")
        a(f"v_add_u32 {t4}, {sU2}, {vt2}")
        if eval(OPT['t2a'])[0]:
            a(f"s_mul_i32 s4, {sBK}, {eval(OPT['t2a'])[0]}"); a(f"v_add_u32 {t4}, s4, {t4}")
    a(f"s_mov_b32 {rX[2]}, {2048*1280}"); a(f"s_mov_b32 {rX[3]}, 0x20000")
    a(f"s_mov_b32 m0, {sM}")
    a("s_waitcnt lgkmcnt(0)")
    if T2:
        a("s_cmp_eq_u32 s9, 1"); a(f"s_cselect_b64 {rTT[0:2]}, {pQKV}, {pX}")
        a("s_cmp_eq_u32 s9, 2"); a(f"s_cselect_b64 {rTT[0:2]}, {pWG}, {rTT[0:2]}")
        a("s_cmp_eq_u32 s9, 3"); a(f"s_cselect_b64 {rTT[0:2]}, {pWU}, {rTT[0:2]}")
        a(f"s_and_b32 {rTT[1]}, {rTT[1]}, 0xffff")
        a("s_mov_b64 exec, 0xff"); a(f"buffer_load_dword {tdum}, {t4}, {rTT}, 0 offen"); a("s_mov_b64 exec, -1")
        for b0 in eval(OPT['t2a'])[1:]:
            for l in t2_all(b0): a(l)
    a(f"s_mov_b32 {rX[0]}, {pX[0]}"); a(f"s_and_b32 {rX[1]}, {pX[1]}, 0xffff")
    if OPT['x0e']:
        a(f"s_cmp_eq_u32 {sT1}, 8"); a("s_cbranch_scc1 NOX0")
        if OPT['sb1']: a("s_barrier")
        for n in range(4): a(f"buffer_load_dwordx4 {vx[n]}, {rX}, {sXK} offen offset:{n*1024} lds")
        a.label("NOX0")
    srd(a, rWS, pWS, WSZ)
    srd(a, rDBG, pDBG, 256)
    if OPT['tlb']:
        a(f"s_cmp_lg_u32 {sWV}, 6"); a("s_cbranch_scc1 NOTLB")
        srd(a, rA, pOUT, 2048 * 1280)
        a(f"v_lshlrev_b32 {t0}, {OPT['tlb']}, {lane}")
        a("s_lshl_b32 s6, s2, 7"); a(f"v_add_u32 {t0}, s6, {t0}")
        a(f"v_min_u32 {t1}, {0x1250000}, {t0}")
        a(f"buffer_load_dword v31, {t1}, {rWS}, 0 offen")
        a(f"buffer_load_dword v31, {t0}, {rA}, 0 offen")
        a.label("NOTLB")
    if OPT['cpf']:
        a(f"s_cmp_lg_u32 {sWV}, 7"); a("s_cbranch_scc1 NOCPF")
        a("s_getpc_b64 s[90:91]")
        a.label("CPF_PC")
        a("s_lshr_b32 s6, s2, 3"); a(f"s_mul_i32 s6, s6, {OPT['cpf']*128}")
        a(f"v_lshlrev_b32 {t0}, 7, {lane}"); a(f"v_add_u32 {t0}, s6, {t0}")
        a(f"v_min_u32 {t0}, K_LAST-CPF_PC, {t0}")
        a(f"s_mov_b64 exec, {(1 << OPT['cpf']) - 1:#x}")
        a(f"global_load_dword v31, {t0}, s[90:91]")
        a("s_mov_b64 exec, -1")
        a.label("NOCPF")
    if OPT['swp']: a(f"s_lshl_b32 s4, {sTY}, 8"); a(f"s_sub_u32 {sXA}, 128, s4"); a(f"s_add_u32 {sXB}, s4, 128")
    a(f"s_cmp_lt_u32 {sC8}, 3")
    a("s_cbranch_scc1 R_QKV")
    a(f"s_cmp_eq_u32 {sT1}, 8")
    a("s_cbranch_scc1 R_SPARE")

    def x_dma(vm, blk, half):
        if blk == 0 and OPT['x0e']:
            vm.issue(('X', 0)); vm.issue(('X', 0)); return []
        l = [f"s_add_u32 m0, {sM}, {(blk % 3) * XSLOT}"]
        if half == 0 and blk > 0: l.append(f"s_add_u32 {sXK}, {sXK}, {(sXA if blk % 2 else sXB) if OPT['swp'] else 128}")
        for n in (2 * half, 2 * half + 1):
            l.append(f"buffer_load_dwordx4 {vx[n]}, {rX}, {sXK} offen offset:{n*1024} {OPT['xfl']} lds")
            vm.issue(('X', blk))
        return l
    def x_addr_setup():
        a(f"v_lshrrev_b32 {t0}, 1, {vl15}")
        a(f"v_xor_b32 {t0}, {t0}, {vqd}")
        a(f"v_lshlrev_b32 {t0}, 4, {t0}")
        a(f"v_lshl_add_u32 {t0}, {vl15}, 7, {t0}")
        a(f"s_lshl_b32 {sT0}, {sRG}, 13")
        a(f"v_add_u32 {xa[0][0]}, {sT0}, {t0}")
        a(f"v_xor_b32 {xa[0][1]}, 64, {xa[0][0]}")
        a(f"v_add_u32 {xa[1][0]}, 0x10000, {xa[0][0]}")
        a(f"v_add_u32 {xa[1][1]}, 0x10000, {xa[0][1]}")
    def x_reads(XF, step):
        blk, kk = step // 2, step % 2
        sl = blk % 3
        return [f"ds_read_b128 {XF[tt]}, {xa[sl // 2][kk]} offset:{(sl % 2) * XSLOT + tt * 2048}" for tt in range(4)]
    def burst(vm, b0, b1):
        if OPT['touch'] not in (1, 3): return []
        l = []
        for st, reg in ((0, ta), (5, tb)):
            lo, hi = max(b0, st) - st, min(b1, st + 5) - st
            if lo >= hi: continue
            m = ((1 << (12 * hi)) - 1) & ~((1 << (12 * lo)) - 1)
            l += [f"s_mov_b32 exec_lo, {m & 0xffffffff:#x}", f"s_mov_b32 exec_hi, {m >> 32:#x}", f"global_load_dword {tdum}, {reg}, off"]
            vm.issue('T')
        l.append("s_mov_b64 exec, -1")
        return l
    def touch_setup(pw0, pw1, rowbytes, off0, off1, seg):
        if OPT['touch'] not in (1, 3): return
        l12, bi = tb[0], tb[1]; tinc = V(36)
        a(f"v_mul_u32_u24 {bi}, 43, {lane}"); a(f"v_lshrrev_b32 {bi}, 9, {bi}")
        a(f"v_mul_u32_u24 {l12}, 12, {bi}"); a(f"v_sub_u32 {l12}, {lane}, {l12}")
        a(f"s_lshl_b32 {sT2}, {sRB}, 3"); a(f"s_add_u32 {sT2}, {sT2}, {sC8}"); a(f"s_lshl_b32 {sT2}, {sT2}, 3"); a(f"s_add_u32 {sT2}, {sT2}, {sWV}")
        a(f"s_mul_i32 {sT2}, {sT2}, {4*1280}")
        a(f"v_mul_u32_u24 {t0}, 1280, {l12}")
        a(f"v_add_u32 {t0}, {sT2}, {t0}")
        a(f"s_lshl_b32 {sT0}, {sR4}, 3"); a(f"s_add_u32 {sT0}, {sT0}, {sWV}"); a(f"s_mul_i32 {sT0}, {sT0}, {2*rowbytes}")
        a(f"v_subrev_u32 {t1}, 4, {l12}")
        a(f"v_bfe_u32 {t2}, {t1}, 2, 1")
        a(f"v_mul_u32_u24 {t2}, {rowbytes}, {t2}")
        a(f"v_and_b32 {t3}, 1, {t1}")
        a(f"v_mul_u32_u24 {t3}, {seg-4}, {t3}")
        a(f"v_add3_u32 {t2}, {t2}, {t3}, {sT0}")
        a(f"v_and_b32 {t3}, 2, {t1}")
        a(f"v_cmp_eq_u32 vcc, 0, {t3}")
        a(f"v_mov_b32 {t3}, {off1}"); a(f"v_mov_b32 {t4}, {off0}")
        a(f"v_cndmask_b32 {t3}, {t3}, {t4}, vcc")
        a(f"v_add_u32 {t2}, {t2}, {t3}")
        a(f"v_mov_b32 {t3}, {pw1[0]}"); a(f"v_mov_b32 {t4}, {pw0[0]}"); a(f"v_cndmask_b32 {ta[0]}, {t3}, {t4}, vcc")
        a(f"v_mov_b32 {t3}, {pw1[1]}"); a(f"v_mov_b32 {t4}, {pw0[1]}"); a(f"v_cndmask_b32 {ta[1]}, {t3}, {t4}, vcc")
        a(f"v_cmp_gt_u32 vcc, 4, {l12}")
        a(f"v_mov_b32 {t3}, {pX[0]}"); a(f"v_mov_b32 {t4}, {pX[1]}")
        a(f"v_cndmask_b32 {t2}, {t2}, {t0}, vcc")
        a(f"v_cndmask_b32 {ta[0]}, {ta[0]}, {t3}, vcc")
        a(f"v_cndmask_b32 {ta[1]}, {ta[1]}, {t4}, vcc")
        a(f"v_mov_b32 {t3}, {64*rowbytes}"); a(f"v_mov_b32 {t4}, 128"); a(f"v_cndmask_b32 {tinc}, {t3}, {t4}, vcc")
        a(f"v_mad_u32_u24 {t2}, {tinc}, {bi}, {t2}")
        a(f"v_add_co_u32 {ta[0]}, vcc, {ta[0]}, {t2}")
        a(f"v_mul_u32_u24 {t2}, 5, {tinc}")
        a(f"v_addc_co_u32 {ta[1]}, vcc, 0, {ta[1]}, vcc")
        a(f"v_add_co_u32 {tb[0]}, vcc, {ta[0]}, {t2}")
        a(f"v_addc_co_u32 {tb[1]}, vcc, 0, {ta[1]}, vcc")
    HALF = [None]
    def step_body(mains, lblk, pre=[]):
        for l in pre: a(l)
        if not lblk:
            for m in mains: a(m)
            return
        if OPT['pp'] == 2:
            rds = [l for l in lblk if l.startswith('ds_read')]; oth = [l for l in lblk if not l.startswith('ds_read')]
            l1, l2 = a.newlabel('PP'), a.newlabel('PP')
            if oth:
                a(f"s_cmp_eq_u32 {sHI}, 0"); a(f"s_cbranch_scc1 {l1}")
                for l in oth: a(l)
                a.label(l1)
            k = 0
            for i, m in enumerate(mains):
                a(m)
                while k < len(rds) and k < (i + 1) * max(1, -(-len(rds) // len(mains))):
                    a(rds[k]); k += 1
            if oth:
                a(f"s_cmp_eq_u32 {sHI}, 0"); a(f"s_cbranch_scc0 {l2}")
                for l in oth: a(l)
                a.label(l2)
        elif OPT['pp']:
            l1, l2 = a.newlabel('PP'), a.newlabel('PP')
            a(f"s_cmp_eq_u32 {sHI}, 0"); a(f"s_cbranch_scc1 {l1}")
            for l in lblk: l() if callable(l) else a(l)
            a.label(l1)
            for m in mains: a(m)
            a(f"s_cmp_eq_u32 {sHI}, 0"); a(f"s_cbranch_scc0 {l2}")
            for l in lblk: l() if callable(l) else a(l)
            a.label(l2)
        else:
            rds = [l for l in lblk if l.startswith('ds_read')]; oth = [l for l in lblk if not l.startswith('ds_read')]
            units = []; cur = []
            for l in oth:
                cur.append(l)
                if 'buffer_' in l or 'ds_write' in l: units.append(cur); cur = []
            if cur: units.append(cur)
            n = len(mains); mode = OPT['il']
            if HALF[0] == 'hi': mode = OPT['ilh']
            if HALF[0] == 'lo': mode = OPT['ill']
            pos = {}
            if mode == 5:
                for l in oth: a(l)
                for k, r in enumerate(rds): pos.setdefault(min(n - 1, k * min(n, len(rds)) // len(rds) if len(rds) > n else k), []).append(r)
            elif mode == 6:
                for l in rds + oth: a(l)
            elif mode == 7:
                for k, r in enumerate(rds): pos.setdefault(min(n - 1, k * min(n, len(rds)) // len(rds) if len(rds) > n else k), []).append(r)
                pos.setdefault(n - 1, []).extend(oth)
            elif mode == 8:
                for l in oth + rds[:8]: a(l)
                for k, r in enumerate(rds[8:]): pos.setdefault(min(n - 1, k), []).append(r)
            if mode >= 5: pass
            elif mode == 0:
                seq = [[r] for r in rds] + units
                for k, u in enumerate(seq): pos.setdefault(min(n - 1, k * n // max(len(seq), n)), []).extend(u)
            elif mode == 1:
                for k, u in enumerate(units): pos.setdefault(min(n - 1, 2 * k), []).extend(u)
                for k, r in enumerate(rds): pos.setdefault(min(n - 1, k * min(n, len(rds)) // len(rds) if len(rds) > n else k), []).append(r)
            elif mode == 2:
                for k, r in enumerate(rds): pos.setdefault(min(n - 1, k // 2), []).append(r)
                for k, u in enumerate(units): pos.setdefault(min(n - 1, len(rds) // 2 + 2 * k), []).extend(u)
            elif mode == 3:
                for k, u in enumerate(units): pos.setdefault(min(n - 1, 1 + k * (2 * n // 3) // max(1, len(units))), []).extend(u)
                for k, r in enumerate(rds): pos.setdefault(min(n - 1, k * min(n, len(rds)) // len(rds) if len(rds) > n else k), []).append(r)
            elif mode == 4:
                k = 0
                for i in range(n):
                    while k < len(lblk) and k < (i + 1) * len(lblk) // n + 1:
                        pos.setdefault(i, []).append(lblk[k]); k += 1
            for i, m in enumerate(mains):
                a(m)
                for l in pos.get(i, []): a(l)
    def init_check_issue(reg, off=128):
        return [f"v_mov_b32 {reg}, 0", f"buffer_load_dword {reg}, {reg}, {rDBG}, 0 offen offset:{off} sc1"]
    def init_check(reg, off=128, ool=False):
        ok = a.newlabel('INITOK')
        a(f"v_readfirstlane_b32 {sP[0]}, {reg}")
        if ool and OPT['trim']:
            a(f"s_cmp_eq_u32 {sP[0]}, 0"); a(f"s_cbranch_scc1 {ok}o"); a.label(ok)
            b = Asm(); b.uid = a.uid + 1000; init_poll(b, reg, off); a.uid += 5
            OOL.append(f"{ok}o:\n" + "\n".join(x.text for x in b.ins) + f"\ns_branch {ok}")
            return
        a(f"s_cmp_lg_u32 {sP[0]}, 0")
        a(f"s_cbranch_scc1 {ok}")
        init_poll(a, reg, off)
        a.label(ok)
    sR6, sCG, sAo, sBg, sBo, sLC, sH2, sRX = [S((16 if OPT['trim'] else 94) + i) for i in range(8)]
    vo, vo4 = V(20), V(21)
    vS2 = V(30)
    sO1, sO2 = S(79), S(80)
    BRb = [208, 228, 32, 52]
    BR = [[V(BRb[b] + 4 * j, 4) for j in range(5)] for b in range(4)]
    BR.append([V(200, 4), V(204, 4), V(248, 4), V(24, 4), V(28, 4)])
    NA = 3 if OPT['bx'] else 4
    GL = [4, 6, 7, 9]; LR = [2, 5, 3, 4]; CR = [0, 1, 6]
    GRP = {0:0, 1:1, 2:2, 3:3, 4:8, 6:9, 7:10, 9:11, 5:12, 8:13}
    if OPT['gf'] & 1:
        GL = [6, 7, 8, 9]; GRP = {0:0, 1:1, 2:2, 3:3, 6:8, 7:9, 8:10, 9:11, 4:12, 5:13}
    INP2 = [False]
    BS_ = 40960; GS_ = 4 * BS_
    CB0 = 38 * BS_; CA0 = 38 * 4096
    def p2_setup():
        if OPT['map2'] == 2:
            hd = [f"s_bfe_u32 {sR6}, s2, 0x10002", "s_lshr_b32 s4, s2, 4", f"s_lshl4_add_u32 {sR6}, {sR6}, s4",
                  f"s_lshr_b32 {sCG}, s2, 3", "s_lshr_b32 s4, s2, 6", f"s_add_u32 {sCG}, {sCG}, s4", f"s_and_b32 {sCG}, {sCG}, 1", "s_and_b32 s4, s2, 3", f"s_lshl1_add_u32 {sCG}, s4, {sCG}"]
        elif OPT['map2']:
            hd = [f"s_bfe_u32 {sR6}, s2, 0x20001", "s_lshr_b32 s4, s2, 5", f"s_lshl3_add_u32 {sR6}, {sR6}, s4",
                  f"s_lshr_b32 {sCG}, s2, 3", "s_lshr_b32 s4, s2, 6", f"s_add_u32 {sCG}, {sCG}, s4", f"s_and_b32 {sCG}, {sCG}, 3", "s_and_b32 s4, s2, 1", f"s_lshl2_add_u32 {sCG}, s4, {sCG}"]
        else:
            hd = [f"s_and_b32 {sR6}, s2, 7", f"s_lshl_b32 {sR6}, {sR6}, 2", "s_lshr_b32 s4, s2, 6", f"s_add_u32 {sR6}, {sR6}, s4",
             f"s_bfe_u32 {sCG}, s2, 0x30003", f"s_lshl1_add_u32 {sCG}, s4, {sCG}", f"s_and_b32 {sCG}, {sCG}, 7"]
        return hd + [f"v_lshlrev_b32 {vo}, 4, {lane}", f"v_add_u32 {vo4}, 4096, {vo}",
             f"s_lshl3_add_u32 {sBg}, {sRG}, {sCG}", f"s_mul_i32 {sBg}, {sBg}, 5120", f"s_add_u32 {sBg}, {sBg}, {BP}",
             f"s_mov_b32 {rB[0]}, {pWS[0]}", f"s_and_b32 {rB[1]}, {pWS[1]}, 0xffff", f"s_mul_i32 {rB[2]}, {sHI}, {WSZ}", f"s_mov_b32 {rB[3]}, 0x20000",
             f"s_mul_i32 {sLC}, {sRG}, 5120", f"s_mul_i32 {sH2}, {sHI}, {GS_}", f"s_mul_i32 {sRX}, {sHI}, 20480",
             f"s_xor_b32 s4, {sHI}, 1", f"s_mul_i32 {sBo}, s4, {16*BS_}", f"s_add_u32 {sBo}, {sBo}, {sBg}",
             f"s_mul_i32 {sAo}, {sR6}, 74", f"s_mul_i32 s4, s4, 16", f"s_add_u32 {sAo}, {sAo}, s4", f"s_add_u32 {sAo}, {sAo}, {sRG}", f"s_lshl_b32 {sAo}, {sAo}, 12",
             f"s_lshr_b32 s4, {sCG}, 1", "s_mul_i32 s4, s4, 5", f"s_mul_i32 {sO2}, {sR6}, 74", f"s_add_u32 {sO2}, {sO2}, s4", f"s_add_u32 {sO2}, {sO2}, 54",
             f"s_lshl2_add_u32 {sO2}, {sO2}, {sRG}", f"s_lshl_b32 {sO2}, {sO2}, 10", f"s_and_b32 s4, {sCG}, 1", f"s_mul_i32 {sO1}, s4, {3*4096}",
             f"s_add_u32 {sO1}, {sO1}, {sO2}", "s_lshl_b32 s4, s4, 9", f"s_add_u32 {sO2}, {sO2}, s4", f"s_add_u32 {sO2}, {sO2}, 8192",
             f"s_lshl_b32 s78, {sR6}, 7", f"s_add_u32 s78, s78, {FH + GOD}"]
    vFQ = V(31)
    def q_flag_issue(): return [f"v_mov_b32 {vFQ}, 0", f"buffer_load_dword {vFQ}, {vFQ}, {rWS}, s78 offen offset:4 sc1"]
    def poison(R4):
        if not OPT['sent']: return []
        lb = a.newlabel('PO')
        return [f"s_cmp_eq_u32 {sHI}, 1\ns_cbranch_scc1 {lb}\n" + "\n".join(f"v_mov_b32 {R4[i]}, -1" for i in range(4)) +
                f"\nbuffer_store_dwordx4 {R4}, {vo}, {rWS}, {sO1} offen {ST}\nbuffer_store_dwordx4 {R4}, {vo4}, {rWS}, {sO1} offen {ST}"
                f"\ns_mov_b32 exec_hi, 0\nbuffer_store_dwordx4 {R4}, {vo}, {rWS}, {sO2} offen {ST}\ns_mov_b32 exec_hi, -1\n{lb}:"]
    def b_reg(vm, i, tag, r=None, grp=None, ext=0, buf=None):
        b = i % 4 if buf is None else buf; r = r or rWS; grp = i if grp is None else grp
        if INP2[0] and OPT['nob'] == 1: r = rA
        if INP2[0] and OPT['nob'] == 2: return []
        l = [f"s_add_u32 s4, {sBo}, {grp*GS_ + ext}"]
        for j in range(5):
            if j < 4: l.append(f"buffer_load_dwordx4 {BR[b][j]}, {vo}, {r}, s4 offen offset:{j*1024} {LD}")
            else: l.append(f"buffer_load_dwordx4 {BR[b][j]}, {vo4}, {r}, s4 offen {LD}")
            vm.issue(tag)
        return l
    def b_row(vm, base, grp, row, extra=None, ext=0, hi3=False):
        l = [f"s_add_u32 s4, {base}, {grp*GS_ + ext}", f"s_add_u32 s5, {sLC}, {row*20480}"]
        if hi3: l += [f"s_add_u32 s4, s4, {sH2}", f"s_mul_i32 s6, {sRX}, 3", "s_add_u32 s5, s5, s6"]
        if extra: l += [f"s_add_u32 s4, s4, {sH2}", f"s_add_u32 s5, s5, {extra}"]
        l.append("s_mov_b32 m0, s5")
        if INP2[0] and OPT['nob'] == 2: return []
        for j in range(4):
            l.append(f"buffer_load_dwordx4 {vo}, {rWS}, s4 offen offset:{j*1024} {LD} lds"); vm.issue('BL')
        l.append("s_add_u32 m0, s5, 4096")
        l.append(f"buffer_load_dwordx4 {vo4}, {rWS}, s4 offen {LD} lds"); vm.issue('BL')
        return l
    def b_row_half(vm, k):
        l = [f"s_add_u32 s4, {sBg}, {GRP[GL[k]]*20480}", f"s_add_u32 s5, {sLC}, {LR[k]*20480}", f"s_add_u32 s4, s4, {sH2}", f"s_add_u32 m0, s5, {sH2}"]
        for j in range(3):
            l.append(f"buffer_load_dwordx4 {vo}, {rWS}, s4 offen offset:{j*1024} {LD} lds"); vm.issue('BL')
        return l
    sPF = S(8)
    def flag_store(need):
        a(f"s_mov_b32 {sNEED}, {need}")

    vw = [V(R0), V(R0 + 1)]; wa = [V(R0 + 2), V(R0 + 3), V(R0 + 4)]; vchk = V(R0 + 5)
    FB = [32, 72]
    XF = [[V(FB[b] + 4 * tt, 4) for tt in range(4)] for b in range(2)]
    WF = [[V(FB[b] + 16 + 4 * c, 4) for c in range(6)] for b in range(2)]
    ACC = [[V(112 + (c * 4 + tt) * 4, 4) for tt in range(4)] for c in range(6)]
    vm = VmTrack()
    a(f"s_mul_i32 {sT3}, {sID}, 192")
    touch_setup(pWG, pWU, 3456, sT3, sT3, 192)
    for l in burst(vm, *BS['p0']): a(l)
    a(f"s_bitcmp1_b32 {sWV}, 0")
    a(f"s_cselect_b32 {rW[0]}, {pWU[0]}, {pWG[0]}")
    a(f"s_cselect_b32 {rW[1]}, {pWU[1]}, {pWG[1]}")
    a(f"s_and_b32 {rW[1]}, {rW[1]}, 0xffff")
    a(f"s_mov_b32 {rW[2]}, {640*3456}")
    a(f"s_mov_b32 {rW[3]}, 0x20000")
    a(f"s_bfe_u32 {sT0}, {sWV}, 0x10001")
    a(f"s_lshl_b32 {sT1}, {sT0}, 1")
    for n in range(2):
        a(f"v_add_u32 {t0}, {64*n}, {lane}")
        a(f"v_mul_u32_u24 {t1}, 43, {t0}")
        a(f"v_lshrrev_b32 {t1}, 9, {t1}")
        a(f"v_mul_u32_u24 {t2}, 12, {t1}")
        a(f"v_sub_u32 {t2}, {t0}, {t2}")
        a(f"v_lshrrev_b32 {t3}, 2, {t2}")
        a(f"v_cmp_eq_u32 vcc, 1, {t3}")
        a(f"v_mov_b32 {t3}, {sT1}")
        a(f"v_mov_b32 {t4}, {sT0}")
        a(f"v_cndmask_b32 {t3}, {t3}, {t4}, vcc")
        a(f"v_xor_b32 {t2}, {t2}, {t3}")
        a(f"v_mul_u32_u24 {t1}, 3456, {t1}")
        a(f"v_lshl_add_u32 {vw[n]}, {t2}, 4, {t1}")
        if n: a(f"v_subrev_u32 {vw[n]}, 1024, {vw[n]}")
    a(f"s_lshr_b32 {sT0}, {sWV}, 1")
    a(f"s_mul_i32 {sWK}, {sT0}, {8*3456}")
    a(f"s_add_u32 {sWK}, {sWK}, {sT3}")
    a(f"s_mul_i32 {sMW}, {sT0}, 1536")
    a(f"s_and_b32 {sT1}, {sWV}, 1")
    a(f"s_mul_i32 {sT1}, {sT1}, 6144")
    a(f"s_add_u32 {sMW}, {sMW}, {sT1}")
    sW2 = S(54, 2)
    if OPT['swp']:
        a(f"s_mul_i32 {sT1}, {sTY}, {2*110592}"); a(f"s_add_u32 {sWK}, {sWK}, {sT1}"); a(f"s_lshl_b32 {sT1}, {sT1}, 1")
        a(f"s_sub_u32 {sW2[0]}, 110592, {sT1}"); a(f"s_add_u32 {sW2[1]}, {sT1}, 110592")
    def w_dma(step):
        l = [f"s_add_u32 m0, {sMW}, {WB + (step % 5) * 12288}"] + ([f"s_add_u32 {sWK}, {sWK}, {(110592 if step % 2 or not OPT['swp'] else (sW2[0] if step % 4 == 2 else sW2[1]))}"] if step else []) + [
             f"buffer_load_dwordx4 {vw[0]}, {rW}, {sWK} offen {OPT['wfl']} lds",
             "s_mov_b32 exec_hi, 0\n"
             f"buffer_load_dwordx4 {vw[1]}, {rW}, {sWK} offen offset:1024 {OPT['wfl']} lds\n"
             "s_mov_b32 exec_hi, -1"]
        vm.issue(('W', step)); vm.issue(('W', step))
        return l
    if OPT['sb1'] and not OPT['x0e']: a("s_barrier")
    for l in x_dma(vm, 0, 0) + x_dma(vm, 0, 1) + w_dma(0) + w_dma(1): a(l)
    x_addr_setup()
    a(f"v_lshl_add_u32 {t0}, {vqd}, 3, {vr}")
    a(f"v_mul_u32_u24 {t0}, 192, {t0}")
    a(f"v_add_u32 {t0}, {WB}, {t0}")
    a(f"v_and_b32 {t1}, 1, {vqd}")
    a(f"v_lshlrev_b32 {t2}, 5, {t1}")
    a(f"v_lshl_add_u32 {t2}, {vc}, 3, {t2}")
    a(f"s_lshl_b32 {sT0}, {sHI}, 7")
    a(f"v_add3_u32 {wa[0]}, {t0}, {t2}, {sT0}")
    a(f"v_xor_b32 {wa[1]}, 32, {wa[0]}")
    a(f"v_and_b32 {t2}, 2, {vc}")
    a(f"v_add_u32 {t2}, {sHI}, {t2}")
    a(f"v_xor_b32 {t2}, {t2}, {t1}")
    a(f"v_lshlrev_b32 {t2}, 4, {t2}")
    a(f"v_and_b32 {t3}, 1, {vc}")
    a(f"v_lshl_add_u32 {t2}, {t3}, 3, {t2}")
    a(f"v_add3_u32 {wa[2]}, {t0}, {t2}, 64")
    def w_reads(WFb, step):
        return [f"ds_read_b64_tr_b16 {WFb[m*3+i][2*rd:2*rd+2]}, {wa[i]} offset:{(step % 5) * 12288 + m * 6144 + rd * 768}"
                for m in range(2) for i in range(3) for rd in range(2)]
    def t2b_emit():
        if T2:
            for b0 in eval(OPT['t2b']):
                for l in t2_all(b0): a(l)
                vm.issue('T')
    if OPT['t2pos'] == 1:
        if OPT['sb2']: a("s_barrier")
        t2b_emit()
    if OPT['trim']:
        for l in p2_setup(): a(l)
    n = vm.wait_for(lambda t: t in (('X', 0), ('W', 0)))
    a(f"s_waitcnt vmcnt({n})")
    a("s_barrier")
    stamp(a, 1)
    for l in x_reads(XF[0], 0) + w_reads(WF[0], 0): a(l)
    if OPT['fill'] == 0:
        for l in x_dma(vm, 1, 0) + x_dma(vm, 1, 1) + w_dma(2): a(l)
        if OPT['t2pos'] == 2: t2b_emit()
    fq = []
    for st in range(2, 20):
        if st % 2 == 0:
            b = st // 2
            fq += [('X', b, 0, max(0, 2*(b-3)+1)), ('X', b, 1, max(0, 2*(b-3)+1))]
        fq.append(('W', st, 0, max(0, st - 5)))
    def ffn_loop():
        hq = None; LBT = []
        for j in range(20):
            cur, nxt = j & 1, (j & 1) ^ 1
            CHK = OPT['chk']
            NB = OPT['nobar']
            if j < NB:
                n = vm.wait_for(lambda t: t in (('X', (j + 1) // 2), ('W', j + 1)) or (j == CHK and t == 'chk') or (j == 16 and t == 'chk2') or (j == NB - 1 and t[0] in 'XW'))
                a(f"s_waitcnt vmcnt({n}) lgkmcnt(0)")
                if j == CHK: init_check(vchk, 128, True)
                if j == 16: init_check(vS2, 136, True)
                a("s_barrier")
            else:
                a("s_waitcnt lgkmcnt(0)")
            sstamp(a, j)
            mains = [f"v_mfma_f32_16x16x32_bf16 {ACC[c][tt]}, {WF[cur][c]}, {XF[cur][tt]}, {'0' if j == 0 else ACC[c][tt]}" for c in range(6) for tt in range(4)]
            pre = burst(vm, *BS[j]) if j in BS else []
            lblk = []
            if j < 19:
                lblk += x_reads(XF[nxt], j + 1) + w_reads(WF[nxt], j + 1)
                if OPT['fill']:
                    cnt = OPT['fill'] + (1 if j == 0 else 0)
                    while cnt and fq and fq[0][3] <= j:
                        it = fq.pop(0); cnt -= 1
                        lblk += x_dma(vm, it[1], it[2]) if it[0] == 'X' else w_dma(it[1])
                if j == 0 and not OPT['fill']: lblk += w_dma(3) + x_dma(vm, 2, 0) + x_dma(vm, 2, 1) + w_dma(4)
                xb = (j - 1) // 2 + 3 if j >= 1 else 99
                if xb <= 9 and not OPT['fill']: lblk += x_dma(vm, xb, (j - 1) % 2)
                if T2 and j in eval(OPT['t2f']): lblk += t2_one(*eval(OPT['t2f'])[j])
                if j == CHK - 2: lblk += init_check_issue(vchk); vm.issue('chk')
                if j + 5 <= 19 and not OPT['fill']: lblk += w_dma(j + 5)
                if j == 10 and not OPT['trim']: lblk += p2_setup()
                if j == OPT['pj']: lblk += poison(V(248, 4))
                if OPT['lbt'] and j == OPT['lbt']: LBT = [f"s_bfe_u32 s4, {sC8}, 0x10001", f"s_lshl3_add_u32 s4, s4, {sWV}", f"s_mul_i32 s4, s4, {65*128}", f"s_mul_i32 s5, {sCG}, {74*5120}",
                         "s_add_u32 s4, s4, s5", f"s_add_u32 s4, s4, {BP + 48*5120}", f"v_lshlrev_b32 v3, 7, {lane}", f"buffer_load_dword {tdum}, v3, {rWS}, s4 offen sc1"]
                else: LBT = []
                if j == CHK: hq = b_reg(VmTrack(), 0, 'B') + b_reg(VmTrack(), 1, 'B'); hq = [hq[0:3], hq[3:5], [hq[5]] + hq[6:8], hq[8:10], hq[10:12]]
                JJ = [CHK, CHK + 1, CHK + 2, 15, 18]
                if j in JJ:
                    q = JJ.index(j)
                    if not hq[q][0].startswith('s_'): lblk.append(f"s_add_u32 s4, {sBo}, {0 if q < 3 else GS_}")
                    lblk += hq[q]; vm.issue('B'); vm.issue('B')
                if j == 14: lblk += init_check_issue(vS2, 136); vm.issue('chk2')
                if j == 16: lblk += b_row(vm, sBg, GRP[GL[0]], LR[0], None, 0, True)
                if j == 17: lblk += b_row(vm, sBg, GRP[GL[2]], LR[2], sRX)
            else:
                if OPT['b23'] == 0: lblk += b_reg(vm, 2, 'B') + b_reg(vm, 3, 'B')
                if OPT['b23'] == 2: lblk += b_reg(vm, 2, 'B')
            if j < 19: lblk += LBT
            step_body(mains, lblk, pre)
    if OPT['two'] & 1:
        q0 = list(vm.q)
        a(f"s_cmp_eq_u32 {sHI}, 1"); a("s_cbranch_scc1 ffn_loop_HI")
        HALF[0] = 'lo'; ffn_loop(); a("s_branch ffn_loop_J"); a.label('ffn_loop_HI')
        vm.q = q0; HALF[0] = 'hi'; ffn_loop(); a.label('ffn_loop_J'); HALF[0] = None
    else: ffn_loop()
    stamp(a, 2)
    a(f"s_setprio {OPT['eprio']}")
    sN = S(82, 2)
    a(f"s_mov_b32 {sN[0]}, {NLOG2E:#x}")
    a(f"s_mov_b32 {sN[1]}, {NLOG2E:#x}")
    a(f"s_lshl_b32 {sT3}, {sRB}, 2")
    a(f"s_add_u32 {sT3}, {sT3}, {sRG}")
    a(f"s_mul_i32 {sT0}, {sT3}, 74")
    a(f"s_mul_i32 {sT1}, {sID}, 3")
    a(f"s_add_u32 {sT0}, {sT0}, {sT1}")
    a(f"s_lshl_b32 {sT0}, {sT0}, 12")
    a(f"s_lshl_b32 {sT1}, {sHI}, 13")
    a(f"s_add_u32 {sT1}, {sT0}, {sT1}")
    a(f"s_lshl_b32 {sT2}, {sHI}, 9")
    a(f"s_add_u32 {sT2}, {sT2}, {sT0}")
    a(f"s_add_u32 {sT2}, {sT2}, 4096")
    a(f"s_lshl_b32 {sFLAG}, {sT3}, 7")
    a(f"s_add_u32 {sFLAG}, {sFLAG}, {FH}")
    a(f"v_lshlrev_b32 {t0}, 4, {lane}")
    a(f"v_and_b32 {t1}, 31, {lane}")
    a(f"v_lshlrev_b32 {t1}, 4, {t1}")
    a(f"v_lshrrev_b32 {t2}, 5, {lane}")
    a(f"v_lshl_add_u32 {t1}, {t2}, 10, {t1}")
    tmp = [V(FB[1] + 4 * i, 4) for i in range(2)]
    outs = [V(FB[1] + 8 + 4 * i, 4) for i in range(6)]
    cnt_ = [0]
    def silu2(G0, U0, G1, U1, o):
        GU = ((G0, U0, tmp[0]), (G1, U1, tmp[1]))
        pk = cnt_[0] >= OPT['npk']; cnt_[0] += 1
        for G, U, T in GU:
            if pk:
                for h in range(2): a(f"v_pk_mul_f32 {T[2*h:2*h+2]}, {G[2*h:2*h+2]}, {sN}")
            else:
                for k in range(4): a(f"v_mul_f32 {T[k]}, {sN[0]}, {G[k]}")
        for G, U, T in GU:
            for k in range(4): a(f"v_exp_f32 {T[k]}, {T[k]}")
        for G, U, T in GU:
            if pk:
                for h in range(2): a(f"v_pk_mul_f32 {G[2*h:2*h+2]}, {G[2*h:2*h+2]}, {U[2*h:2*h+2]}")
            else:
                for k in range(4): a(f"v_mul_f32 {G[k]}, {G[k]}, {U[k]}")
        for G, U, T in GU:
            if pk:
                for h in range(2): a(f"v_pk_add_f32 {T[2*h:2*h+2]}, {T[2*h:2*h+2]}, 1.0 op_sel_hi:[1,0]")
            else:
                for k in range(4): a(f"v_add_f32 {T[k]}, 1.0, {T[k]}")
        for G, U, T in GU:
            for k in range(4): a(f"v_rcp_f32 {T[k]}, {T[k]}")
        for G, U, T in GU:
            if pk:
                for h in range(2): a(f"v_pk_mul_f32 {G[2*h:2*h+2]}, {G[2*h:2*h+2]}, {T[2*h:2*h+2]}")
            else:
                for k in range(4): a(f"v_mul_f32 {G[k]}, {G[k]}, {T[k]}")
        for q, (G, U, T) in enumerate(GU):
            for h in range(2): a(f"v_cvt_pk_bf16_f32 {o[2*q+h]}, {G[2*h]}, {G[2*h+1]}")
    for tt in range(4):
        o = outs[tt]
        silu2(ACC[0][tt], ACC[3][tt], ACC[1][tt], ACC[4][tt], o)
        a(f"buffer_store_dwordx4 {o}, {t0}, {rWS}, {sT1} offen offset:{tt*1024} {ST}")
    for l in q_flag_issue(): a(l)
    for tp in range(2):
        o = outs[4 + tp]
        silu2(ACC[2][2*tp], ACC[5][2*tp], ACC[2][2*tp+1], ACC[5][2*tp+1], o)
        a(f"v_permlane32_swap_b32 {o[0]}, {o[2]}")
        a(f"v_permlane32_swap_b32 {o[1]}, {o[3]}")
        a(f"buffer_store_dwordx4 {o}, {t1}, {rWS}, {sT2} offen offset:{tp*2048} {ST}")
    flag_store(35)
    a("s_waitcnt vmcnt(2)")
    a(f"s_mov_b32 {sPF}, 0")
    a("s_branch P2")

    for l in OOL: a(l)
    OOL.clear()
    a.label('R_QKV')
    vm = VmTrack()
    vw = [V(R0), V(R0 + 1), V(R0 + 2)]; wa = V(R0 + 3); pa = V(R0 + 4); vchk = V(R0 + 5); vgw = V(R0 + 6)
    FB = [32, 68]
    XF = [[V(FB[b] + 4 * tt, 4) for tt in range(4)] for b in range(2)]
    WF = [[V(FB[b] + 16 + 4 * c, 4) for c in range(5)] for b in range(2)]
    ACC = [V(104 + 20 * tt, 20) for tt in range(4)]
    pf4 = [V(32 + 4 * i, 4) for i in range(9)] + [V(196, 4)]
    pf2 = [V(200, 2), V(202, 2), V(204, 2), V(206, 2), V(248, 2)]
    PF = [[pf4[2 * t], pf4[2 * t + 1], pf2[t]] for t in range(5)]
    WP = V(184, 4); GWF = V(188, 4); GA = V(192, 4)
    sC0, sC1, sLo, sHi2, sISQ, sHB, sGD = [S(77 + i) for i in range(7)]
    PHW = 135168; PHB = 0; VVB = 90112; PS = 352
    srd(a, rW, pQKV, 640 * 3840)
    srd(a, rA, pPHI, 32 * 800)
    a(f"s_lshl_b32 {sID}, {sT0}, 1"); a(f"s_add_u32 {sID}, {sID}, {sC8}")
    a(f"s_mul_i32 {sC0}, {sID}, 160")
    a(f"s_add_u32 {sC1}, {sC0}, 2560")
    a(f"s_add_u32 {sC0}, {sC0}, 1280")
    a(f"s_lshl_b32 {sHB}, {sID}, 2")
    a(f"s_mul_i32 {sT1}, {sT0}, 320")
    a(f"s_add_u32 {sT2}, {sT1}, 160")
    a(f"s_lshl_b32 {sT3}, {sT0}, 3")
    a(f"s_cmp_eq_u32 {sC8}, 2")
    a(f"s_cselect_b32 {sC0}, {sT1}, {sC0}")
    a(f"s_cselect_b32 {sC1}, {sT2}, {sC1}")
    a(f"s_cselect_b32 {sHB}, {sT3}, {sHB}")
    a(f"s_cselect_b32 {sISQ}, 1, 0")
    a(f"s_bitcmp1_b32 {sWV}, 0")
    a(f"s_cselect_b32 {sLo}, {sC1}, {sC0}")
    a(f"s_cselect_b32 {sHi2}, {sC0}, {sC1}")
    a(f"s_sub_u32 {sHi2}, {sHi2}, 160")
    touch_setup(pQKV, pQKV, 3840, sC0, sC1, 160)
    for l in burst(vm, *BS['p0']): a(l)
    for n in range(3):
        a(f"v_add_u32 {t0}, {64*n}, {lane}")
        a(f"v_mul_u32_u24 {t1}, 205, {t0}")
        a(f"v_lshrrev_b32 {t1}, 12, {t1}")
        a(f"v_mul_u32_u24 {t2}, 20, {t1}")
        a(f"v_sub_u32 {t2}, {t0}, {t2}")
        a(f"v_cmp_le_u32 vcc, 10, {t2}")
        a(f"v_mov_b32 {t3}, {sLo}")
        a(f"v_mov_b32 {t4}, {sHi2}")
        a(f"v_cndmask_b32 {t3}, {t3}, {t4}, vcc")
        a(f"v_mul_u32_u24 {t1}, 3840, {t1}")
        a(f"v_lshl_add_u32 {t1}, {t2}, 4, {t1}")
        a(f"v_add_u32 {vw[n]}, {t1}, {t3}")
        if n: a(f"v_subrev_u32 {vw[n]}, {1024*n}, {vw[n]}")
    a(f"s_mul_i32 {sWK}, {sWV}, {8*3840}")
    a(f"s_mul_i32 {sMW}, {sWV}, 2560")
    sW3 = [S(83), S(9)]
    if OPT['swp']:
        a(f"s_mul_i32 {sT1}, {sTY}, 245760"); a(f"s_add_u32 {sWK}, {sWK}, {sT1}"); a(f"s_lshl_b32 {sT1}, {sT1}, 1")
        a(f"s_sub_u32 {sW3[0]}, 245760, {sT1}"); a(f"s_add_u32 {sW3[1]}, {sT1}, 245760")
    def w_dma2(blk):
        l = [f"s_add_u32 m0, {sMW}, {WB + (blk % 3) * 20480}"] + ([f"s_add_u32 {sWK}, {sWK}, {(sW3[0] if blk % 2 else sW3[1]) if OPT['swp'] else 245760}"] if blk else []) + [
             f"buffer_load_dwordx4 {vw[0]}, {rW}, {sWK} offen {OPT['wfl']} lds",
             f"buffer_load_dwordx4 {vw[1]}, {rW}, {sWK} offen offset:1024 {OPT['wfl']} lds",
             "s_mov_b32 exec_hi, 0\n"
             f"buffer_load_dwordx4 {vw[2]}, {rW}, {sWK} offen offset:2048 {OPT['wfl']} lds\n"
             "s_mov_b32 exec_hi, -1"]
        for _ in range(3): vm.issue(('W', blk))
        return l
    a(f"v_lshlrev_b32 {t0}, 4, {tid}")
    a(f"s_mul_i32 {sT0}, {sHB}, 800")
    a(f"v_add_u32 {t0}, {sT0}, {t0}")
    a(f"buffer_load_dwordx4 {WP}, {t0}, {rA}, 0 offen"); vm.issue(('P', 0))
    if OPT['sb1'] and not OPT['x0e']: a("s_barrier")
    for l in x_dma(vm, 0, 0) + x_dma(vm, 0, 1) + w_dma2(0): a(l)
    x_addr_setup()
    a(f"v_lshl_add_u32 {t0}, {vqd}, 3, {vr}")
    a(f"v_mul_u32_u24 {t0}, 320, {t0}")
    a(f"v_and_b32 {t1}, 1, {vqd}")
    a(f"v_xor_b32 {t1}, {sHI}, {t1}")
    a(f"v_mul_u32_u24 {t1}, 160, {t1}")
    a(f"v_mul_u32_u24 {t2}, 40, {vc}")
    a(f"v_add3_u32 {t0}, {t0}, {t1}, {t2}")
    a(f"v_add_u32 {wa}, {WB}, {t0}")
    a(f"s_and_b32 {sT0}, {sHI}, {sISQ}")
    a(f"s_mul_i32 {sT0}, {sT0}, 3200")
    a(f"s_add_u32 {sT0}, {sT0}, {PHW}")
    a(f"v_mul_u32_u24 {t0}, 800, {vqd}")
    a(f"v_add_u32 {t0}, {sT0}, {t0}")
    a(f"v_mov_b32 {t1}, {ZERO}")
    a(f"v_cmp_eq_u32 vcc, {vc}, {vqd}")
    a(f"v_cndmask_b32 {t0}, {t1}, {t0}, vcc")
    a(f"v_mul_u32_u24 {t1}, 40, {vr}")
    a(f"v_add_u32 {pa}, {t0}, {t1}")
    def w_reads2(WFb, step):
        blk, kk = step // 2, step % 2
        return [f"ds_read_b64_tr_b16 {WFb[t][2*rd:2*rd+2]}, {wa} offset:{(blk % 3) * 20480 + kk * 10240 + rd * 1280 + 8 * t}" for t in range(5) for rd in range(2)]
    def t2b_emit():
        if T2:
            for b0 in eval(OPT['t2b']):
                for l in t2_all(b0): a(l)
                vm.issue('T')
    if OPT['t2pos'] == 1:
        if OPT['sb2']: a("s_barrier")
        t2b_emit()
    if OPT['trim']:
        for l in p2_setup(): a(l)
    n = vm.wait_for(lambda t: t in (('X', 0), ('W', 0)))
    a(f"s_waitcnt vmcnt({n})")
    a("s_barrier")
    stamp(a, 1)
    for l in x_reads(XF[0], 0) + w_reads2(WF[0], 0): a(l)
    if OPT['fill'] == 0:
        for l in x_dma(vm, 1, 0) + x_dma(vm, 1, 1) + w_dma2(1): a(l)
        if OPT['t2pos'] == 2: t2b_emit()
    fq = []
    for b in range(1, 10):
        fq += [('X', b, max(0, 2*(b-3)+1)), ('W', b, max(0, 2*(b-3)+1))]
    def qkv_loop():
        hq = None; LBT = []
        for j in range(20):
            cur, nxt = j & 1, (j & 1) ^ 1
            if j % 2 == 1:
                if j < 19:
                    n = vm.wait_for(lambda t: t in (('X', (j + 1) // 2), ('W', (j + 1) // 2)) or (j == 17 and t == 'chk'))
                    a(f"s_waitcnt vmcnt({n}) lgkmcnt(0)")
                else: a("s_waitcnt lgkmcnt(0)")
                if j == 17: init_check(vchk, 128, True)
                a("s_barrier")
            else:
                a("s_waitcnt lgkmcnt(0)")
                if OPT['pp'] or OPT['qbar']: a("s_barrier")
            sstamp(a, j)
            mains = [f"v_mfma_f32_16x16x32_bf16 {ACC[tt][4*t:4*t+4]}, {WF[cur][t]}, {XF[cur][tt]}, {'0' if j == 0 else ACC[tt][4*t:4*t+4]}" for t in range(5) for tt in range(4)]
            pre = burst(vm, *BS[j]) if j in BS else []
            lblk = []
            if j < 19:
                lblk += x_reads(XF[nxt], j + 1) + w_reads2(WF[nxt], j + 1)
                if OPT['fill']:
                    cnt = 2 if j in (0, 1, 3, 5) else 1
                    while cnt and fq and fq[0][2] <= j:
                        it = fq.pop(0); cnt -= 1
                        lblk += x_dma(vm, it[1], 0) + x_dma(vm, it[1], 1) if it[0] == 'X' else w_dma2(it[1])
                if j == 0 and not OPT['fill']: lblk += x_dma(vm, 2, 0) + x_dma(vm, 2, 1) + w_dma2(2)
                xb = (j - 1) // 2 + 3 if j >= 1 else 99
                if xb <= 9 and not OPT['fill']:
                    if j % 2 == 1: lblk += x_dma(vm, xb, 0) + x_dma(vm, xb, 1)
                    else: lblk += w_dma2(xb)
                if T2 and j in eval(OPT['t2q']): lblk += t2_one(*eval(OPT['t2q'])[j])
                if OPT['tw'] and j == 2:
                    sh = OPT['tw']; npg = (0x1250000 >> sh) + 1
                    lanes = min(64, -(-npg // 32)); ninst = -(-npg // (32 * lanes))
                    body = f"s_lshl3_add_u32 s4, {sR4}, {sWV}\ns_mul_i32 s4, s4, {lanes}\nv_add_u32 v3, s4, {lane}\nv_lshlrev_b32 v3, {sh}, v3\ns_mov_b64 exec, {hex((1 << lanes) - 1) if lanes < 32 else -1}\n"
                    for i in range(ninst):
                        body += f"buffer_load_dword {tdum}, v3, {rWS}, 0 offen offset:3968\nv_add_u32 v3, {32*lanes << sh}, v3\n"
                    body += "s_mov_b64 exec, -1\n"
                    OOL.append("TWo:\n" + body + "s_branch TWb")
                    lblk += [f"s_cmp_eq_u32 {sC8}, 2\ns_cbranch_scc1 TWo\nTWb:"]
                if j == 15: lblk += init_check_issue(vchk); vm.issue('chk')
                if j == 17:
                    lblk += [f"v_lshlrev_b32 {t0}, 4, {tid}", f"v_add_u32 {t0}, {PHW}, {t0}", f"ds_write_b128 {t0}, {WP}"]
                if j == 10 and not OPT['trim']: lblk += p2_setup()
                if j == 17: lblk += poison(V(208, 4))

            else:
                for t in range(5):
                    for s in range(3):
                        for r_ in range(2 if s < 2 else 1):
                            lblk.append(f"ds_read_b64_tr_b16 {PF[t][s][2*r_:2*r_+2]}, {pa} offset:{s*320 + r_*160 + t*8}")
            step_body(mains, lblk, pre)
    if OPT['two'] & 2:
        q0 = list(vm.q)
        a(f"s_cmp_eq_u32 {sHI}, 1"); a("s_cbranch_scc1 qkv_loop_HI")
        HALF[0] = 'lo'; qkv_loop(); a("s_branch qkv_loop_J"); a.label('qkv_loop_HI')
        vm.q = q0; HALF[0] = 'hi'; qkv_loop(); a.label('qkv_loop_J'); HALF[0] = None
    else: qkv_loop()
    stamp(a, 2)
    a("s_setprio 2")
    QB = V(68, 40); P = V(108, 20); E = V(128, 40); O = V(168, 20); M = V(250, 4); T = V(188, 4); ONE = V(192, 2)
    sCNT = S(8); sOUT = S(9)
    def cvt_tile(dst, tt):
        for i in range(10): a(f"v_cvt_pk_bf16_f32 {dst[i]}, {ACC[tt][2*i]}, {ACC[tt][2*i+1]}")
    def pk_list(q, P=P):
        l = []
        for s_ in range(3):
            for t in range(5):
                d = P[4*t:4*t+4]
                if s_ < 2: l.append(f"v_mfma_f32_16x16x32_bf16 {d}, {PF[t][s_]}, {q[4*s_:4*s_+4]}, {'0' if s_ == 0 else d}")
                else: l.append(f"v_mfma_f32_16x16x16_bf16 {d}, {PF[t][s_]}, {q[8:10]}, {d}")
        return l
    a(f"s_lshl_b32 {sT3}, {sRB}, 2")
    a(f"s_add_u32 {sT3}, {sT3}, {sRG}")
    a(f"s_cmp_eq_u32 {sISQ}, 0")
    a("s_cbranch_scc1 R_KV")
    for tt in range(4): cvt_tile(QB[10*tt:10*tt+10], tt)
    a("s_waitcnt lgkmcnt(0)")
    PT = [V(108 + 20*i, 20) for i in range(4)]
    a(f"s_lshr_b32 {sT1}, {sHB}, 2")
    a(f"s_add_u32 {sT1}, {sT1}, {sHI}")
    a(f"s_lshl_b32 {sOUT}, {sT3}, 3")
    a(f"s_add_u32 {sOUT}, {sOUT}, {sT1}")
    a(f"s_mul_i32 {sOUT}, {sOUT}, 10240")
    a(f"s_add_u32 {sOUT}, {sOUT}, {PQ}")
    a(f"s_add_u32 {sT0}, {sOUT}, 8192")
    a(f"s_lshl_b32 {sFLAG}, {sT3}, 7")
    a(f"s_add_u32 {sFLAG}, {sFLAG}, {FH + 4}")
    QO = [V(208 + 8*i, 8) for i in range(4)]; QT = [V(240, 4), V(244, 4)]
    def q_out(tt):
        l = [f"v_cvt_pk_bf16_f32 {QO[tt][i] if i < 8 else QT[tt//2][2*(tt%2) + i - 8]}, {PT[tt][2*i]}, {PT[tt][2*i+1]}" for i in range(10)]
        for h in range(2): l.append(f"buffer_store_dwordx4 {QO[tt][4*h:4*h+4]}, {vo if tt < 2 else vo4}, {rWS}, {sOUT} offen offset:{(tt%2)*2048 + h*1024} {ST}")
        if tt % 2: l.append(f"buffer_store_dwordx4 {QT[tt//2]}, {vo}, {rWS}, {sT0} offen offset:{(tt//2)*1024} {ST}")
        return l
    for tt in range(4):
        side = q_out(tt - 1) if tt else []
        for i, l in enumerate(pk_list(QB[10*tt:10*tt+10], PT[tt])):
            a(l)
            if i >= 2 and side: a(side.pop(0))
    for l in q_out(3): a(l)
    if OPT['gq']:
        GW = [V(72 + 4*i, 4) for i in range(5)]
        GX = [[V(96 + (g*5 + i)*4, 4) for i in range(5)] for g in range(2)]
        GA = [V(92), V(93)]
        srd(a, rW, pGW, 1280)
        a(f"v_lshlrev_b32 {t0}, 4, {vl15}")
        for i in range(5): a(f"buffer_load_dwordx4 {GW[i]}, {t0}, {rW}, 0 offen offset:{i*256}")
        a(f"v_mul_u32_u24 {t1}, 1280, {vqd}"); a(f"v_add_u32 {t0}, {t0}, {t1}")
        a(f"s_lshr_b32 {sT3}, {sHB}, 3"); a(f"s_lshl2_add_u32 {sT3}, {sRB}, {sT3}")
        a(f"s_lshl3_add_u32 {sT1}, {sT3}, {sWV}")
        a(f"s_mul_i32 {sT2}, {sT1}, {8*1280}")
        for g in range(2):
            for i in range(5): a(f"buffer_load_dwordx4 {GX[g][i]}, {t0}, {rX}, {sT2} offen offset:{i*256}")
            if g == 0: a(f"s_add_u32 {sT2}, {sT2}, {4*1280}")
        for g in range(2): a(f"v_mov_b32 {GA[g]}, 0")
        arrive(a, sFLAG, 7, t2, t3, 15)
        for i in range(5):
            for k in range(4):
                for g in range(2): a(f"v_dot2c_f32_bf16 {GA[g]}, {GX[g][i][k]}, {GW[i][k]}")
        for sh in (8, 4, 2, 1):
            for g in range(2): a(f"v_add_f32_dpp {GA[g]}, {GA[g]}, {GA[g]} row_ror:{sh} row_mask:0xf bank_mask:0xf")
        a(f"v_cmp_eq_u32 vcc, 1, {vl15}"); a(f"v_cndmask_b32 {t2}, {GA[0]}, {GA[1]}, vcc")
        a(f"v_mul_f32 {t2}, {LOG2E:#x}, {t2}"); a(f"v_min_f32 {t2}, 0x42a00000, {t2}"); a(f"v_exp_f32 {t2}, {t2}")
        a(f"v_lshl_add_u32 {t0}, {vl15}, 2, {vqd}"); a(f"v_lshlrev_b32 {t3}, 2, {t0}")
        a(f"s_lshl_b32 {sT2}, {sT1}, 5"); a(f"s_add_u32 {sT2}, {sT2}, {GOFF}")
        a("s_mov_b32 exec_lo, 0x00030003"); a("s_mov_b32 exec_hi, 0x00030003")
        a(f"buffer_store_dword {t2}, {t3}, {rWS}, {sT2} offen {ST}")
        a("s_mov_b64 exec, -1")
        a(f"s_lshl_b32 {sFLAG}, {sT3}, 7"); a(f"s_add_u32 {sFLAG}, {sFLAG}, {FH + 12}")
    flag_store(7)
    a(f"v_mov_b32 {vFQ}, 0")
    a(f"s_mov_b32 {sPF}, 6")
    a("s_branch P2")
    a.label('R_KV')
    a(f"s_lshl_b32 {sT1}, {sRG}, 1"); a(f"s_add_u32 {sT0}, {sT1}, 1"); a(f"s_mul_i32 {sT0}, {sT0}, {32*PS}")
    a(f"v_add_u32 {t0}, {sT0}, {vo}")
    a(f"s_mov_b32 {sCNT}, 2")
    a(f"s_cmp_eq_u32 {sHI}, 1")
    a("s_cbranch_scc1 R_V")
    if OPT['trim']:
        cvt_tile(QB[0:10], 0)
        cvt_tile(QB[20:30], 2); cvt_tile(QB[30:40], 3)
        a("s_waitcnt lgkmcnt(0)")
        for i in range(5): a(f"ds_write_b128 {t0}, {QB[20+4*i:24+4*i]} offset:{i*1024}")
        cv = [f"v_cvt_pk_bf16_f32 {QB[10+i]}, {ACC[1][2*i]}, {ACC[1][2*i+1]}" for i in range(10)]
        a(cv.pop(0)); a(cv.pop(0))
        for i, l in enumerate(pk_list(QB[0:10])):
            a(l)
            if cv: a(cv.pop(0))
            if i == 8: a("s_waitcnt lgkmcnt(0)"); a("s_barrier")
    else:
        cvt_tile(QB[0:10], 0)
        cvt_tile(QB[20:30], 2); cvt_tile(QB[30:40], 3)
        for i in range(5): a(f"ds_write_b128 {t0}, {QB[20+4*i:24+4*i]} offset:{i*1024}")
        cvt_tile(QB[10:20], 1)
        a("s_waitcnt lgkmcnt(0)")
        a("s_barrier")
        for l in pk_list(QB[0:10]): a(l)
    a("s_branch R_KV2")
    a.label('R_V')
    VBt = {3: V(88, 10), 0: V(98, 10), 1: V(168, 10), 2: V(178, 10)}
    for tt in (3, 0, 1, 2): cvt_tile(VBt[tt], tt)
    a(f"s_mul_i32 {sT2}, {sRG}, {64*176}")
    a(f"s_add_u32 {sT2}, {sT2}, {VVB}")
    a(f"v_mul_u32_u24 {t2}, 176, {vl15}")
    a(f"v_add_u32 {t1}, {sT2}, {t2}")
    a(f"v_mul_u32_u24 {t3}, 40, {vqd}")
    a(f"v_add_u32 {t2}, {t1}, {t3}")
    a(f"v_mov_b32 {ONE[0]}, 0x3f80")
    a(f"v_mov_b32 {ONE[1]}, 0")
    a("s_barrier")
    for i in range(5): a(f"ds_read_b128 {QB[4*i:4*i+4]}, {t0} offset:{i*1024}")
    side = []
    for tt in (3, 0, 1, 2):
        for i in range(5): side.append(f"ds_write_b64 {t2}, {VBt[tt][2*i:2*i+2]} offset:{tt*2816 + 8*i}")
        side.append(f"ds_write_b64 {t1}, {ONE} offset:{tt*2816 + 160}")
    for i in range(9): a(side.pop(0))
    a("s_waitcnt lgkmcnt(9)")
    for l in pk_list(QB[0:10]): a(l); a(side.pop(0))
    a.label('R_KV2')
    a(f"s_add_u32 {sT1}, {sT1}, {sHI}"); a(f"s_mul_i32 {sT1}, {sT1}, {32*PS}")
    a(f"v_mul_u32_u24 {t4}, {PS}, {vl15}")
    a(f"v_mul_u32_u24 {t3}, 80, {vqd}")
    a(f"v_add3_u32 {t4}, {t4}, {t3}, {sT1}")
    stamp(a, 12)
    for u in range(2):
        if u == 0:
            bl = b_reg(vm, 0, 'B') + b_reg(vm, 1, 'B'); pl = pk_list(QB[10:20])
            sd = [pl[i] + ("\n" + bl[i] if i < len(bl) else "") for i in range(15)]
        else: sd = b_reg(vm, 2, 'B') + b_reg(vm, 3, 'B')
        if OPT['ksp']:
            b_ = Asm()
            softmax_unit(b_, P, E, M, T, O, (pl if u == 0 else []) + ["s_waitcnt lgkmcnt(0)"])
            ld = bl if u == 0 else sd
            ins = [x.text for x in b_.ins]; step_ = len(ins) // 11; q_ = list(ld)
            for n_, x in enumerate(ins):
                a(x)
                if n_ % step_ == step_ - 1 and q_:
                    if q_[0].startswith('s_'): a(q_.pop(0))
                    a(q_.pop(0))
            for x in q_: a(x)
        else: softmax_unit(a, P, E, M, T, O, sd + ["s_waitcnt lgkmcnt(0)"])
        for s_ in range(5): a(f"ds_write_b128 {t4}, {O[4*s_:4*s_+4]} offset:{PHB + u*16*PS + 16*s_}")
    a(f"v_lshl_add_u32 {t0}, {vqd}, 2, {vr}")
    a(f"v_mul_u32_u24 {t1}, {PS}, {t0}")
    a(f"s_mul_i32 {sT0}, {sRG}, 80")
    a(f"v_lshl_add_u32 {t1}, {vc}, 3, {t1}")
    a(f"v_add_u32 {t1}, {sT0}, {t1}")
    a(f"v_add_u32 {t2}, {128*PS}, {t1}")
    a(f"v_mul_u32_u24 {t0}, 176, {t0}")
    a(f"s_mul_i32 {sT0}, {sRG}, 40")
    a(f"s_mul_i32 {sT1}, {sHI}, 24")
    a(f"s_add_u32 {sT0}, {sT0}, {sT1}")
    a(f"v_lshl_add_u32 {t3}, {vc}, 3, {sT0}")
    a(f"v_mul_u32_u24 {t4}, {sHI}, {vc}")
    a(f"v_cmp_lt_u32 vcc, 1, {t4}")
    a(f"v_mov_b32 {t4}, 160")
    a(f"v_cndmask_b32 {t3}, {t3}, {t4}, vcc")
    a(f"v_add_u32 {t3}, {VVB}, {t3}")
    a(f"v_add_u32 {t3}, {t0}, {t3}")
    stamp(a, 13)
    a("s_waitcnt lgkmcnt(0)")
    a("s_barrier")
    stamp(a, 14)
    a(f"s_lshl_b32 {sFLAG}, {sID}, 7"); a(f"s_add_u32 {sFLAG}, {sFLAG}, {FK}")
    def k_hint():
        a("v_mov_b32 v29, 1"); a("v_mov_b32 v11, 0")
        a(f"s_cmp_lg_u32 {sWV}, 7"); a("s_cbranch_scc1 KH1")
        a("s_mov_b64 exec, 1"); a(f"buffer_atomic_add v29, v11, {rWS}, {sFLAG} offen sc0 sc1"); a("s_mov_b64 exec, -1")
        a.label('KH1')
    if OPT['kh'] == 0: k_hint()
    for l in q_flag_issue(): a(l)
    KA = [[V(72 + (b*4 + f)*4, 4) for f in range(4)] for b in range(3)]
    KD = [V(128 + 4*f, 4) for f in range(3)]
    def kv_reads(b, s):
        l = []
        for rd in range(2):
            l.append(f"ds_read_b64_tr_b16 {KA[b][3][2*rd:2*rd+2]}, {t3} offset:{s*5632 + rd*2816}")
        for f in range(3):
            for rd in range(2):
                l.append(f"ds_read_b64_tr_b16 {KA[b][f][2*rd:2*rd+2]}, {t1 if s < 4 else t2} offset:{(s % 4)*32*PS + rd*16*PS + f*32}")
        return l
    allr = [l for s in range(8) for l in kv_reads(s % 3, s)]
    pos = 0
    for s in range(8):
        for f in range(3):
            needr = s * 8 + 2 + 2 * (f + 1)
            lim = min(len(allr), needr + 12, (s + 2) * 8 + (2 + 2 * f if False else 0) + 8 - 8 + 0) if False else min(len(allr), needr + 12)
            lim = min(lim, (s + 3) * 8)
            while pos < lim: a(allr[pos]); pos += 1
            a(f"s_waitcnt lgkmcnt({pos - needr})")
            a(f"v_mfma_f32_16x16x32_bf16 {KD[f]}, {KA[s%3][f]}, {KA[s%3][3]}, {'0' if s == 0 else KD[f]}")
    stamp(a, 15)
    a(f"s_add_u32 {sT0}, {sHB}, {sRG}")
    a(f"s_lshl_b32 {sT0}, {sT0}, 1")
    a(f"s_add_u32 {sT0}, {sT0}, {sHI}")
    a(f"s_mul_i32 {sT0}, {sT0}, 3072")
    a(f"s_add_u32 {sT0}, {sT0}, {KVACC}")
    if OPT['kh'] == 1: k_hint()
    def k_go(n):
        a(f"s_cmp_lg_u32 {sWV}, 7"); a("s_cbranch_scc1 KH2")
        a(f"s_waitcnt vmcnt({n})")
        a("v_cmp_eq_u32 vcc, 7, v29"); a(f"s_add_u32 s4, {sFLAG}, {GOD}"); a("s_and_b64 exec, vcc, 1")
        a(f"buffer_store_dword v29, v11, {rWS}, s4 offen sc1"); a("s_mov_b64 exec, -1")
        a.label('KH2')
    if OPT['kh'] == 0: k_go(0)
    a(f"v_lshlrev_b32 {t2}, 2, {lane}")
    a(f"v_cmp_eq_u32 vcc, 15, {vl15}")
    for f in range(3):
        for j in range(4): a(f"v_cndmask_b32 {KD[f][j]}, {KD[f][j]}, 1.0, vcc")
    for f in range(3):
        if f == 2: a("s_mov_b32 exec_hi, 0")
        for j in range(4):
            a(f"buffer_atomic_add_f32 {KD[f][j]}, {t2}, {rWS}, {sT0} offen offset:{f*1024 + j*256} {OPT['atf']}")
    a("s_mov_b32 exec_hi, -1")
    if OPT['kh'] == 1: k_go(12)
    a("s_waitcnt vmcnt(12)")
    flag_store(-1)
    a(f"s_mov_b32 {sPF}, 4")
    a("s_branch P2")

    for l in OOL: a(l)
    OOL.clear()
    a.label('R_SPARE')
    sSP, sU, sSO, sST = S(77), S(78), S(79), S(80)
    va = Alloc('v', 176, 250)
    vf = [va() for _ in range(5)]; vat = [va() for _ in range(5)]
    rf = [va() for _ in range(5)]; rat = [va(), va()]
    vst = va(); vst4 = va()
    FR = [[va(4) for _ in range(5)] for b in range(2)]
    Z4 = va(4)
    NT = OPT['spnt']
    if T2:
        for b0 in eval(OPT['t2b']):
            for l in t2_all(b0): a(l)
    srd(a, rA, pWD, 1728 * 1280)
    srd(a, rB, pWO, 640 * 1280)
    a(f"s_lshr_b32 {sSP}, {sT0}, 1")
    a(f"s_lshl_b32 {sSP}, {sSP}, 3")
    a(f"s_add_u32 {sSP}, {sSP}, {sRB}")
    a(f"s_lshl_b32 {sT0}, {sWV}, 2")
    a(f"s_mul_i32 {sT1}, {sWV}, 20")
    for n in range(5):
        a(f"v_add_u32 {t0}, {64*n}, {lane}")
        a(f"v_mul_u32_u24 {t1}, 205, {t0}")
        a(f"v_lshrrev_b32 {t1}, 14, {t1}")
        a(f"v_mul_u32_u24 {t2}, 80, {t1}")
        a(f"v_sub_u32 {t2}, {t0}, {t2}")
        a(f"v_add_u32 {t1}, {sT0}, {t1}")
        a(f"v_and_b32 {t3}, 7, {t1}")
        a(f"v_lshlrev_b32 {t3}, 1, {t3}")
        a(f"v_xor_b32 {t2}, {t2}, {t3}")
        a(f"v_mul_u32_u24 {t1}, 1280, {t1}")
        a(f"v_lshl_add_u32 {vf[n]}, {t2}, 4, {t1}")
        if n % 4: a(f"v_subrev_u32 {vf[n]}, {1024*(n%4)}, {vf[n]}")
    a(f"s_mul_i32 {sM}, {sWV}, 5120")
    def u_dma(buf, typ):
        if typ == 'F':
            a(f"s_mul_i32 {sSO}, {sU}, 40960")
            vv, rr = vf, rA
        else:
            a(f"s_sub_u32 {sT2}, {sU}, 54")
            a(f"s_mul_i32 {sT3}, {sT2}, 52")
            a(f"s_lshr_b32 {sT3}, {sT3}, 8")
            a(f"s_mul_i32 {sSO}, {sT3}, {160*1280 - 5*256}")
            a(f"s_lshl_b32 {sT2}, {sT2}, 8")
            a(f"s_add_u32 {sSO}, {sSO}, {sT2}")
            vv, rr = vat, rB
        a(f"s_add_u32 m0, {sM}, {buf*40960}")
        for n in range(4):
            a(f"buffer_load_dwordx4 {vv[n]}, {rr}, {sSO} offen offset:{n*1024} {NT} lds")
        a(f"s_add_u32 m0, {sM}, {buf*40960 + 4096}")
        a(f"buffer_load_dwordx4 {vv[4]}, {rr}, {sSO} offen {NT} lds")
    def dyn(it, fn):
        if it == 4:
            a(f"s_add_u32 {sU}, {sSP}, 64"); a(f"s_min_u32 {sU}, {sU}, 73"); fn('A'); return
        a(f"s_add_u32 {sU}, {sSP}, {16*it}")
        if it <= 2: fn('F')
        else:
            l1, l2 = a.newlabel('SP'), a.newlabel('SP')
            a(f"s_cmp_ge_u32 {sU}, 54"); a(f"s_cbranch_scc1 {l1}")
            fn('F'); a(f"s_branch {l2}"); a.label(l1); fn('A'); a.label(l2)
    for it in range(3): dyn(it, lambda typ: u_dma(it, typ))
    a(f"v_lshlrev_b32 {t0}, 4, {tid}")
    for i in range(4): a(f"v_mov_b32 {Z4[i]}, 0")
    a(f"s_mul_i32 {sT2}, {sSP}, 13568")
    a(f"s_add_u32 {sT2}, {sT2}, {KVACC}")
    a(f"buffer_store_dwordx4 {Z4}, {t0}, {rWS}, {sT2} offen {ST}")
    a(f"s_add_u32 {sT2}, {sT2}, {13568 - 8192}")
    a(f"buffer_store_dwordx4 {Z4}, {t0}, {rWS}, {sT2} offen {ST}")
    for n in range(5):
        a(f"v_add_u32 {t1}, {4*n}, {vqd}")
        a(f"v_add_u32 {t1}, {sT1}, {t1}")
        a(f"v_and_b32 {t3}, 7, {t1}")
        a(f"v_lshlrev_b32 {t3}, 1, {t3}")
        a(f"v_xor_b32 {t2}, {vl15}, {t3}")
        a(f"v_mul_u32_u24 {t1}, 1280, {t1}")
        a(f"v_lshl_add_u32 {vat[n]}, {t2}, 4, {t1}")
        if n % 4: a(f"v_subrev_u32 {vat[n]}, {1024*(n%4)}, {vat[n]}")
    a(f"v_lshl_add_u32 {t0}, {vqd}, 2, {vr}")
    a(f"v_and_b32 {t1}, 7, {t0}")
    a(f"v_lshlrev_b32 {t1}, 1, {t1}")
    a(f"v_mul_u32_u24 {t0}, 1280, {t0}")
    a(f"v_and_b32 {t2}, 1, {vc}")
    a(f"v_lshl_add_u32 {t0}, {t2}, 3, {t0}")
    a(f"v_lshrrev_b32 {t3}, 1, {vc}")
    a(f"s_mul_i32 {sT0}, {sWV}, 10")
    a(f"v_add_u32 {t4}, {sT0}, {t3}")
    for j in range(5):
        a(f"v_add_u32 {rf[j]}, {2*j}, {t4}")
        a(f"v_xor_b32 {rf[j]}, {rf[j]}, {t1}")
        a(f"v_lshl_add_u32 {rf[j]}, {rf[j]}, 4, {t0}")
    a(f"v_mul_u32_u24 {t0}, 20, {vqd}")
    a(f"v_add_u32 {t0}, {t0}, {vr}")
    a(f"v_lshlrev_b32 {t0}, 8, {t0}")
    a(f"v_lshl_add_u32 {t0}, {t2}, 3, {t0}")
    a(f"s_lshl_b32 {sT0}, {sWV}, 1")
    a(f"v_add_u32 {t4}, {sT0}, {t3}")
    a(f"v_xor_b32 {t4}, {t4}, {t1}")
    a(f"v_lshl_add_u32 {rat[0]}, {t4}, 4, {t0}")
    a(f"v_xor_b32 {rat[1]}, 128, {rat[0]}")
    a(f"v_lshlrev_b32 {vst}, 4, {lane}")
    a(f"v_add_u32 {vst4}, 4096, {vst}")
    def u_proc(buf, typ, F):
        if typ == 'F':
            for j in range(5):
                a(f"v_add_u32 {t0}, {buf*40960}, {rf[j]}")
                for rd in range(2):
                    a(f"ds_read_b64_tr_b16 {F[j][2*rd:2*rd+2]}, {t0} offset:{rd*20480}")
            a(f"s_lshl3_add_u32 {sST}, {sU}, {sWV}")
            a(f"s_mul_i32 {sST}, {sST}, 5120")
            a(f"s_add_u32 {sST}, {sST}, {BP}")
            a("s_waitcnt lgkmcnt(0)")
            for j in range(5):
                if j < 4: a(f"buffer_store_dwordx4 {F[j]}, {vst}, {rWS}, {sST} offen offset:{j*1024} {ST}")
                else: a(f"buffer_store_dwordx4 {F[j]}, {vst4}, {rWS}, {sST} offen {ST}")
        else:
            bases = [(0, 4), (8, 12), (16, 96), (80, 84), (88, 92)]
            a(f"v_add_u32 {t0}, {buf*40960}, {rat[0]}")
            a(f"v_add_u32 {t1}, {buf*40960}, {rat[1]}")
            a(f"v_lshrrev_b32 {t4}, 1, {vqd}"); a(f"v_mul_u32_u24 {t4}, {40*256}, {t4}"); a(f"v_add_u32 {t4}, {t4}, {t0}")
            for s5 in range(5):
                for rd in range(2):
                    b = bases[s5][rd]
                    if s5 == 2: a(f"ds_read_b64_tr_b16 {F[s5][2*rd:2*rd+2]}, {t4} offset:{(16 + 40*rd)*256}")
                    else: a(f"ds_read_b64_tr_b16 {F[s5][2*rd:2*rd+2]}, {t1 if b % 8 else t0} offset:{b*256}")
            a(f"s_sub_u32 {sT2}, {sU}, 54")
            a(f"s_mul_i32 {sT3}, {sT2}, 52")
            a(f"s_lshr_b32 {sT3}, {sT3}, 8")
            a(f"s_mul_i32 {sT0}, {sT3}, 5")
            a(f"s_sub_u32 {sT2}, {sT2}, {sT0}")
            a(f"s_lshl_b32 {sT2}, {sT2}, 3")
            a(f"s_add_u32 {sT2}, {sT2}, {sWV}")
            a(f"s_mul_i32 {sT1}, {sT2}, 52")
            a(f"s_lshr_b32 {sT1}, {sT1}, 8")
            a(f"s_mul_i32 {sST}, {sT1}, 5")
            a(f"s_sub_u32 {sT2}, {sT2}, {sST}")
            a(f"s_add_u32 {sST}, {sT0}, 54")
            a(f"s_lshl3_add_u32 {sST}, {sST}, {sT1}")
            a(f"s_mul_i32 {sST}, {sST}, 5120")
            a(f"s_lshl_b32 {sT2}, {sT2}, 10")
            a(f"s_add_u32 {sST}, {sST}, {sT2}")
            a(f"s_add_u32 {sST}, {sST}, {BP}")
            a("s_waitcnt lgkmcnt(0)")
            for s5 in range(5):
                a(f"buffer_store_dwordx4 {F[s5]}, {vst}, {rWS}, {sST} offen {ST}")
                if s5 < 4: a(f"s_add_u32 {sST}, {sST}, {BS_}")
    vm = VmTrack()
    for t in ['D0']*5 + ['D1']*5 + ['D2']*5 + ['Z']*2: vm.issue(t)
    def sp_signal(k):
        lsk = a.newlabel('SPD')
        a(f"s_cmp_lg_u32 {sWV}, 7"); a(f"s_cbranch_scc1 {lsk}")
        a(f"v_mov_b32 {t2}, 0"); a(f"v_mov_b32 {t3}, 1")
        a("s_mov_b64 exec, 1")
        a(f"buffer_atomic_add {t3}, {t2}, {rDBG}, 0 offen offset:{4*k} sc0 sc1")
        a("s_waitcnt vmcnt(0)")
        a(f"v_cmp_eq_u32 vcc, 15, {t3}")
        a("s_and_b64 exec, exec, vcc")
        a(f"buffer_store_dword {t3}, {t2}, {rDBG}, 0 offen offset:{128 + 4*k} sc1")
        a("s_mov_b64 exec, -1")
        a.label(lsk)
    vSG = V(30)
    def sp_sig_a(k):
        lsk = a.newlabel('SPD')
        a(f"s_cmp_lg_u32 {sWV}, 0"); a(f"s_cbranch_scc1 {lsk}")
        a("v_mov_b32 v29, 0"); a(f"v_mov_b32 {vSG}, 1")
        a("s_mov_b64 exec, 1"); a(f"buffer_atomic_add {vSG}, v29, {rDBG}, 0 offen offset:{4*k} sc0 sc1"); a("s_mov_b64 exec, -1")
        a.label(lsk)
    def sp_sig_b(k, n):
        lsk = a.newlabel('SPD')
        a(f"s_cmp_lg_u32 {sWV}, 0"); a(f"s_cbranch_scc1 {lsk}")
        a(f"s_waitcnt vmcnt({n})")
        a(f"v_cmp_eq_u32 vcc, 15, {vSG}"); a("s_and_b64 exec, vcc, 1")
        a(f"buffer_store_dword {vSG}, v29, {rDBG}, 0 offen offset:{128 + 4*k} sc1"); a("s_mov_b64 exec, -1")
        a.label(lsk)
    for it in range(5):
        n = vm.wait_for(lambda t: t == f'D{it}' or (it == 3 and t == 'S2') or (it == 2 and t == 'S1'))
        a(f"s_waitcnt vmcnt({n})")
        a("s_barrier")
        if OPT['asg']:
            if it in (2, 3): sp_sig_a(0 if it == 2 else 2)
        else:
            if it == 2: sp_signal(0); stamp(a, 1)
            if it == 3: sp_signal(2)
        dyn(it, lambda typ: u_proc(it % 3, typ, FR[it & 1]))
        for _ in range(5): vm.issue(f'S{it}')
        if it == OPT['t2si'] and T2 and OPT['t2s']:
            a(f"s_and_b32 s4, {sWV}, 1"); a(f"s_lshl1_add_u32 s4, {sSP}, s4"); a("s_lshl_b32 s4, s4, 6"); a("s_mul_i32 s4, s4, s5")
            a(f"s_mul_i32 s6, {sBK}, {OPT['t2s']}"); a("s_add_u32 s4, s4, s6")
            a(f"v_add_u32 v21, s4, {vt1}")
            a(f"buffer_load_dword {tdum}, v21, {rTT}, 0 offen"); vm.issue('T')
        if it in (1, 2):
            dyn(it + 2, lambda typ: u_dma(it - 1, typ))
            for _ in range(5): vm.issue(f'D{it+2}')
        if OPT['asg'] and it in (2, 3): sp_sig_b(0 if it == 2 else 2, 10 if it == 2 else 5)
    a("s_waitcnt vmcnt(0)")
    a("s_barrier")
    sp_signal(1)
    stamp(a, 2)
    if OPT['gq'] or OPT['nog'] == 2:
        init_poll(a, t1, 128); flag_store(-1)
    else:
        GW = [V(72 + 4*i, 4) for i in range(5)]
        GX = [[V(96 + (g*5 + i)*4, 4) for i in range(5)] for g in range(4)]
        GA = [V(92 + g) for g in range(4)]
        srd(a, rW, pGW, 1280)
        a(f"v_lshlrev_b32 {t0}, 4, {vl15}")
        for i in range(5): a(f"buffer_load_dwordx4 {GW[i]}, {t0}, {rW}, 0 offen offset:{i*256}")
        a(f"v_mul_u32_u24 {t1}, 1280, {vqd}")
        a(f"v_add_u32 {t0}, {t0}, {t1}")
        a(f"s_lshl_b32 {sT3}, {sSP}, 3")
        a(f"s_add_u32 {sT3}, {sT3}, {sWV}")
        a(f"s_mul_i32 {sT2}, {sT3}, {16*1280}")
        for g in range(4):
            for i in range(5): a(f"buffer_load_dwordx4 {GX[g][i]}, {t0}, {rX}, {sT2} offen offset:{i*256} {OPT['gnt']}")
            if g < 3: a(f"s_add_u32 {sT2}, {sT2}, {4*1280}")
        for g in range(4): a(f"v_mov_b32 {GA[g]}, 0")
        init_poll(a, t1, 128)
        for i in range(5):
            for k in range(4):
                for g in range(4): a(f"v_dot2c_f32_bf16 {GA[g]}, {GX[g][i][k]}, {GW[i][k]}")
        for sh in (8, 4, 2, 1):
            for g in range(4): a(f"v_add_f32_dpp {GA[g]}, {GA[g]}, {GA[g]} row_ror:{sh} row_mask:0xf bank_mask:0xf")
        for g in range(4): a(f"v_mul_f32 {GA[g]}, {LOG2E:#x}, {GA[g]}")
        for g in range(4): a(f"v_min_f32 {GA[g]}, 0x42a00000, {GA[g]}")
        for g in range(4): a(f"v_exp_f32 {GA[g]}, {GA[g]}")
        a(f"v_mov_b32 {t2}, {GA[0]}")
        for g in range(1, 4):
            a(f"v_cmp_eq_u32 vcc, {g}, {vl15}"); a(f"v_cndmask_b32 {t2}, {t2}, {GA[g]}, vcc")
        a(f"v_lshl_add_u32 {t0}, {vl15}, 2, {vqd}")
        a(f"v_lshlrev_b32 {t3}, 2, {t0}")
        a(f"s_lshl_b32 {sT2}, {sT3}, 6"); a(f"s_add_u32 {sT2}, {sT2}, {GOFF}")
        a("s_mov_b32 exec_lo, 0x000f000f"); a("s_mov_b32 exec_hi, 0x000f000f")
        a(f"buffer_store_dword {t2}, {t3}, {rWS}, {sT2} offen {ST}")
        a("s_mov_b64 exec, -1")
        a(f"s_lshr_b32 {sFLAG}, {sT3}, 2"); a(f"s_lshl_b32 {sFLAG}, {sFLAG}, 7"); a(f"s_add_u32 {sFLAG}, {sFLAG}, {FH + 12}")
        flag_store(3)
    a(f"v_mov_b32 {vFQ}, 0")

    vm = VmTrack()
    a(f"s_mov_b32 {sPF}, 7")
    a.label('P2')
    stamp(a, 3)
    a(f"s_bitcmp0_b32 {sPF}, 0"); a("s_cbranch_scc1 P2_E1")
    for l in p2_setup() + poison(V(208, 4)): a(l)
    a.label('P2_E1')
    vG = V(16, 4); vz = V(11); ka = V(12); kw = V(13); vbl = V(15); vcn = V(14)
    ACC = [[V(72 + (tt * 5 + j) * 4, 4) for j in range(5)] for tt in range(4)]
    ARl = [V(152 + 4 * i, 4) for i in range(14)] + [V(248, 4), V(24, 4)]
    AR = [ARl[4*b:4*b+4] for b in range(4)]
    sFHo = S(78)
    rOUT = rX
    INP2[0] = True
    if OPT['noa'] == 1 or OPT['nob']: srd(a, rA, pWS, 0)
    a(f"v_mov_b32 {vz}, 0")
    a(f"v_mov_b32 {vcn}, {CNT}")
    a(f"v_add_u32 {vbl}, {sLC}, {vo}")
    vbl2 = V(23)
    a(f"v_add_u32 {vbl2}, {3*20480}, {vbl}")
    def lrow(row, j):
        return (vbl, row*20480 + j*1024) if row < 3 else (vbl2, (row-3)*20480 + j*1024)
    CG_ = {4:3, 5:4, 6:0, 7:1, 8:2} if OPT['gf'] & 2 else {4:0, 5:1, 6:2, 7:3, 8:4}
    def a_loads(i, tag, vts=None, r=None):
        b = i % NA; r = r or rWS
        if OPT['noa'] == 1: r = rA
        if OPT['noa'] == 3: return []
        if OPT['noa'] == 2: return [f"s_mov_b32 {sT0}, {sAo}"] + [(f"buffer_load_dwordx4 {AR[b][tt]}, {vo}, {r}, {sT0} offen offset:{tt*1024} {LD}", vm.issue(tag))[0] for tt in range(4)]
        l = [f"s_add_u32 {sT0}, {sAo}, {((i*16384 if i < 4 else CA0 + CG_[i]*16384) if vts else GRP[i]*16384)}"]
        for tt in range(4):
            if vts: l.append(f"buffer_load_dwordx4 {AR[b][tt]}, {vts[tt]}, {r}, {sT0} offen {LD}")
            else: l.append(f"buffer_load_dwordx4 {AR[b][tt]}, {vo}, {r}, {sT0} offen offset:{tt*1024} {LD}")
            vm.issue(tag)
        return l
    def b_fromlds(i, row):
        return ["ds_read_b128 %s, %s offset:%d" % ((BR[i % 4][j],) + lrow(row, j)) for j in range(5)]
    def mm(sl, zero, side=[], every=2, bb=None):
        b = sl % 4 if bb is None else bb; ab = sl % NA
        side = list(side)
        for j in range(5):
            for tt in range(4):
                d = ACC[tt][j]
                a(f"v_mfma_f32_16x16x32_bf16 {d}, {BR[b][j]}, {AR[ab][tt]}, {'0' if tt in zero else d}")
                while side and side[0].startswith('s_'): a(side.pop(0))
                if side and tt % every == every - 1: a(side.pop(0))
        for l in side: a(l)
    def g_load():
        a(f"s_lshl_b32 {sT0}, {sR6}, 8"); a(f"s_add_u32 {sT0}, {sT0}, {GOFF}")
        a(f"v_lshlrev_b32 {t0}, 4, {vl15}")
        a(f"buffer_load_dwordx4 {vG}, {t0}, {rWS}, {sT0} offen {LD}")
    def lds_signal(off):
        a(f"v_mov_b32 {t1}, 1")
        a("s_waitcnt lgkmcnt(0)")
        a("s_mov_b64 exec, 1")
        a(f"ds_add_u32 {vcn}, {t1} offset:{off}")
        a("s_mov_b64 exec, -1")
    def lds_wait(off, n):
        L = a.newlabel('LW')
        a.label(L)
        a(f"ds_read_b32 {t1}, {vcn} offset:{off}")
        a("s_waitcnt lgkmcnt(0)")
        a(f"v_readfirstlane_b32 {sT0}, {t1}")
        a(f"s_cmp_ge_u32 {sT0}, {n}")
        a(f"s_cbranch_scc1 {L}d")
        a("s_sleep 1")
        a(f"s_branch {L}")
        a.label(L + 'd')
    vAT = V(29); vFG = V(28)
    PB = V(176, 12); PU = V(152, 20)
    def pq_loads():
        a(f"s_lshl3_add_u32 {sT0}, {sR6}, {sCG}")
        a(f"s_mul_i32 {sT0}, {sT0}, 10240"); a(f"s_add_u32 {sT0}, {sT0}, {PQ}")
        a(f"s_lshl_b32 {sT1}, {sRG}, 11"); a(f"s_add_u32 {sT1}, {sT1}, {sT0}")
        for h in range(2): a(f"buffer_load_dwordx4 {PB[4*h:4*h+4]}, {vo}, {rWS}, {sT1} offen offset:{h*1024} {LD}")
        a(f"s_lshr_b32 {sT1}, {sRG}, 1"); a(f"s_lshl_b32 {sT1}, {sT1}, 10"); a(f"s_add_u32 {sT0}, {sT0}, {sT1}")
        a(f"s_and_b32 {sT1}, {sRG}, 1"); a(f"s_lshl3_add_u32 {sT0}, {sT1}, {sT0}"); a(f"s_add_u32 {sT0}, {sT0}, 8192")
        a(f"buffer_load_dwordx2 {PB[8:10]}, {vo}, {rWS}, {sT0} offen {LD}")
    sQF = S(83)
    a(f"v_readfirstlane_b32 {sQF}, {vFQ}")
    a(f"s_cmp_eq_u32 {sHI}, 1"); a(f"s_cselect_b32 {sQF}, 0, {sQF}")
    a(f"s_cmp_eq_u32 {sQF}, 0"); a("s_cbranch_scc1 P2_NQ")
    pq_loads()
    a.label('P2_NQ')
    a(f"buffer_load_dword {vS2}, {vz}, {rDBG}, 0 offen offset:132 sc1")
    a(f"v_mov_b32 {vAT}, 1"); a(f"v_mov_b32 {t1}, 1")
    B3 = OPT['b23'] == 3
    if B3:
        a(f"s_cmp_lg_u32 {sPF}, 0"); a("s_cbranch_scc1 P2_D0")
        for l in b_reg(vm, 2, 'B'): a(l)
        a("s_waitcnt vmcnt(5) lgkmcnt(0)")
        a("s_branch P2_D1")
        a.label('P2_D0')
    a("s_waitcnt vmcnt(0) lgkmcnt(0)")
    if B3: a.label('P2_D1')
    a("s_mov_b64 exec, 1")
    a(f"ds_add_rtn_u32 {t1}, {vcn}, {t1} offset:16")
    a(f"s_cmp_eq_u32 {sNEED}, -1"); a("s_cbranch_scc1 P2_A2")
    a(f"buffer_atomic_add {vAT}, {vz}, {rWS}, {sFLAG} offen sc0 sc1")
    a.label('P2_A2')
    a("s_mov_b64 exec, -1")
    def go_logic(n, st=True):
        lb = a.newlabel('GO')
        a(f"s_waitcnt vmcnt({n})")
        a(f"v_readfirstlane_b32 {sP[0]}, {vAT}")
        a(f"s_add_u32 {sP[1]}, {sFLAG}, {GOD}")
        a(f"s_cmp_lg_u32 {sP[0]}, {sNEED}")
        a(f"s_cbranch_scc1 {lb}")
        a("s_mov_b64 exec, 1")
        a(f"buffer_store_dword {vAT}, {vz}, {rWS}, {sP[1]} offen sc1")
        a("s_mov_b64 exec, -1")
        a.label(lb)
        if st: stamp(a, 4)
    a(f"s_cmp_eq_u32 {sHI}, 0")
    a("s_cbranch_scc1 P2_C")
    if B3:
        a(f"s_cmp_lg_u32 {sPF}, 0"); a("s_cbranch_scc1 P2_D2")
        for l in b_reg(vm, 3, 'B'): a(l)
        go_logic(5)
        a("s_branch P2_D3")
        a.label('P2_D2')
    go_logic(0)
    if B3: a.label('P2_D3')
    a("s_setprio 0")
    init_check(vS2, 132)
    if OPT['bt']:
        a("s_lshr_b32 s4, s2, 6"); a(f"s_lshl2_add_u32 s4, s4, {sRG}"); a(f"s_mul_i32 s4, s4, {65*128}")
        a(f"s_mul_i32 s5, {sCG}, {74*5120}"); a("s_add_u32 s4, s4, s5"); a(f"s_add_u32 s4, s4, {BP + 48*5120}")
        a(f"v_lshlrev_b32 {t2}, 7, {lane}")
        a(f"buffer_load_dword {t3}, {t2}, {rWS}, s4 offen sc1")
    a(f"s_cmp_lt_u32 {sRG}, 2"); a(f"s_cselect_b32 {rB[2]}, {WSZ}, 0")
    a(f"s_cmp_lt_u32 {sPF}, 6"); a("s_cbranch_scc1 P2_E2")
    for b in range(4):
        for l in b_reg(vm, b, 'B'): a(l)
    lds_wait(16, 8)
    for k in range(4):
        for l in b_row(vm, sBg, GRP[GL[k]], LR[k]): a(l)
    a.label('P2_E2')
    if OPT['b23'] in (1, 2):
        a(f"s_cmp_lg_u32 {sPF}, 0"); a("s_cbranch_scc1 P2_E4")
        for l in (b_reg(vm, 2, 'B') if OPT['b23'] == 1 else []) + b_reg(vm, 3, 'B'): a(l)
        a.label('P2_E4')
    lds_wait(16, 8)
    for k in range(3):
        if OPT['ep'] and k == OPT['ep'] - 1: a(f"buffer_load_dword {t4}, {vz}, {rWS}, {sFHo} offen sc1")
        for l in b_row(vm, sBg, k, CR[k], None, 54*BS_): a(l)
    if OPT['bx']:
        for l in b_reg(vm, 5, 'B', None, GRP[5], 0, 4): a(l)
    if OPT['ep']: a(f"s_waitcnt vmcnt({5*(4 - OPT['ep'])})"); a(f"v_readfirstlane_b32 s82, {t4}")
    a(f"s_cmp_eq_u32 {sPF}, 4"); a("s_cbranch_scc1 P2_GK")
    NG = 10
    for variant in (0, 1):
        GLv = GL if variant == 0 else []
        if variant == 1: a.label('P2_GK')
        if OPT['at']:
            a(f"s_mul_i32 {sT1}, {sR6}, {74*4096}"); a(f"s_lshl2_add_u32 {sT2}, {sCG}, {sRG}"); a(f"s_mul_i32 {sT2}, {sT2}, {54*128}"); a(f"s_add_u32 {sT1}, {sT1}, {sT2}")
            a(f"v_lshlrev_b32 {t2}, 7, {lane}")
        if OPT['at'] == 3: vpoll(a, vz, sFHo, 0, t1, f"s_mov_b32 exec_hi, 0x3fffff\nbuffer_load_dword {t3}, {t2}, {rWS}, {sT1} offen sc1\ns_mov_b32 exec_hi, -1", OPT['tsl'])
        elif OPT['noh'] and OPT['ep']: pass
        elif OPT['noh']: a("s_waitcnt vmcnt(0)")
        else:
            if OPT['ep']: a("s_cmp_lg_u32 s82, 0"); a(f"s_cbranch_scc1 HS{variant}")
            vpoll(a, vz, sFHo, 0, t1)
            if OPT['ep']: a.label(f'HS{variant}')
        lds_signal(20)
        a(f"s_setprio {OPT['gprio']}")
        vm = VmTrack()
        stamp(a, 5)
        if OPT['at'] == 1:
            a("s_mov_b32 exec_hi, 0x3fffff"); a(f"buffer_load_dword {t3}, {t2}, {rWS}, {sT1} offen sc1"); a("s_mov_b32 exec_hi, -1")
        if OPT['stamp'] == 4: a("s_memtime s[92:93]")
        LA = OPT['la']
        pend = []
        for s in range(LA + 1):
            if OPT['stp'] and s: a(f"s_setprio {3 - s}")
            for l in a_loads(s, ('A', s)): a(l)
            if OPT['at'] == 2 and s == 0:
                a("s_mov_b32 exec_hi, 0x3fffff"); a(f"buffer_load_dword {t3}, {t2}, {rWS}, {sT1} offen sc1"); a("s_mov_b32 exec_hi, -1"); vm.issue('T')
        for s in range(NG - 1):
            n = vm.wait_for(lambda t: t in (('A', s), ('B', s)))
            a(f"s_waitcnt vmcnt({n})" + (f" lgkmcnt({5*sum(1 for x in (s+1, s+2) if x in GLv)})" if s in GLv else ""))
            if s == 0 and OPT['ep']: lds_signal(24)
            if s == 0: stamp(a, 6)
            if OPT['stamp'] == 4:
                a("s_waitcnt lgkmcnt(0)")
                a(f"v_writelane_b32 v255, s92, {40 + s}")
                a("s_memtime s[92:93]")
            side = []
            if OPT['fair'] and s in eval(OPT['fg']): a(f"s_setprio {eval(OPT['fg'])[s]}")
            if 1 <= s and s + LA < NG:
                side += a_loads(s + LA, ('A', s + LA), None, rB if GRP[s + LA] == 13 else None)
            if 1 <= s and s + 3 < NG:
                rr = rB if GRP[s + 3] == 13 else None
                if OPT['bx'] and s + 3 == 5: pass
                elif s + 3 in GLv: side += b_fromlds(s + 3, LR[GLv.index(s + 3)])
                elif OPT['spr'] and variant == 0:
                    bl = b_reg(VmTrack(), s + 3, 'x', rr, GRP[s + 3])
                    side += bl[0:4]; [vm.issue(('B', s + 3)) for _ in range(3)]
                    pend = [(bl[0], bl[4:6], s + 3)]
                    mm(s, [], side); continue
                else: side += b_reg(vm, s + 3, ('B', s + 3), rr, GRP[s + 3])
            if pend:
                p0, pl, ps = pend.pop(); side += [p0] + pl; [vm.issue(('B', ps)) for _ in range(2)]
            mm(s, range(4) if s == 0 else [], side, 2, 4 if OPT['bx'] and s == 5 else None)
        if variant == 0: a("s_branch P2_GL")
    a.label('P2_GL')
    a("s_waitcnt vmcnt(0) lgkmcnt(0)")
    if OPT['stamp'] == 4:
        a(f"v_writelane_b32 v255, s92, {49}"); a("s_memtime s[92:93]"); a("s_waitcnt lgkmcnt(0)"); a(f"v_writelane_b32 v255, s92, {50}")
    for tt in range(4):
        for j in range(5):
            d = ACC[tt][j]
            a(f"v_mfma_f32_16x16x32_bf16 {d}, {BR[1][j]}, {AR[9 % NA][tt]}, {d}")
            if tt >= 2: a("ds_write_b128 %s, %s offset:%d" % (lrow(tt, j)[0], ACC[tt-2][j], lrow(tt, j)[1]))
    for tt in (2, 3):
        for j in range(5): a("ds_write_b128 %s, %s offset:%d" % (lrow(tt+2, j)[0], ACC[tt][j], lrow(tt+2, j)[1]))
    lds_signal(4)
    stamp(a, 10)
    a("s_branch P2_FIN")
    a.label('P2_C')
    P = V(72, 20)
    a("s_setprio 3")
    if OPT['noc']:
        go_logic(0)
        srd(a, rOUT, pOUT, 2048 * 1280)
        for i in range(4):
            a(f"s_add_u32 {sT0}, {sRG}, {i}"); a(f"s_and_b32 {sT0}, {sT0}, 3"); a(f"s_lshl_b32 {sT0}, {sT0}, 10")
            a(f"v_add_u32 {V(16+i)}, {sT0}, {vo}")
        init_check(vS2, 132)
        a("s_mov_b32 s81, 0"); a(f"s_cmp_eq_u32 {sPF}, 0"); a("s_cselect_b32 s81, 2, s81"); a(f"s_cmp_eq_u32 {sPF}, 4"); a("s_cselect_b32 s81, 4, s81")
        a("s_branch P2_NOC")
    a(f"s_cmp_lg_u32 {sQF}, 0"); a("s_cbranch_scc1 P2_C1")
    go_logic(0)
    a(f"s_mov_b32 {sNEED}, -1")
    vpoll(a, vz, sFHo, 4, t1)
    pq_loads()
    a("s_waitcnt vmcnt(0)")
    a.label('P2_C1')
    a(f"buffer_load_dword {vFG}, {vz}, {rWS}, {sFHo} offen offset:12 sc1")
    GV = [V(22), V(252), V(10), V(8)]
    GLd = [t3, V(188), V(189), V(190)]
    srd(a, rOUT, pOUT, 2048 * 1280)
    a(f"v_lshl_add_u32 {kw}, {vr}, 2, {vqd}")
    a(f"v_lshlrev_b32 {kw}, 6, {kw}")
    a(f"v_lshl_add_u32 {kw}, {vc}, 3, {kw}")
    a(f"s_mul_i32 {sT0}, {sRG}, 3088"); a(f"s_add_u32 {sT0}, {sT0}, {KVB}")
    a(f"v_add_u32 {kw}, {sT0}, {kw}")
    a(f"v_mul_u32_u24 {t4}, 3088, {vqd}")
    a(f"v_lshl_add_u32 {t4}, {vr}, 6, {t4}")
    a(f"v_add_u32 {t4}, {KVB}, {t4}")
    a(f"v_mov_b32 {ka}, {ZERO + 8}")
    a(f"v_cmp_eq_u32 vcc, {vc}, {vqd}")
    a(f"v_cndmask_b32 {ka}, {ka}, {t4}, vcc")
    VT = [V(16), V(17), V(18), V(19)]
    for i in range(4):
        a(f"s_add_u32 {sT0}, {sRG}, {i}"); a(f"s_and_b32 {sT0}, {sT0}, 3"); a(f"s_lshl_b32 {sT0}, {sT0}, 10")
        a(f"v_add_u32 {VT[i]}, {sT0}, {vo}")
    for i in range(10):
        a(f"v_lshlrev_b32 {PU[2*i]}, 16, {PB[i]}")
        a(f"v_and_b32 {PU[2*i+1]}, 0xffff0000, {PB[i]}")
    gl = (f"s_waitcnt vmcnt(1)\nv_readfirstlane_b32 {sP[0]}, {vAT}\ns_add_u32 {sP[1]}, {sFLAG}, {GOD}\ns_cmp_lg_u32 {sP[0]}, {sNEED}\ns_cbranch_scc1 GOC\n"
          f"s_mov_b64 exec, 1\nbuffer_store_dword {vAT}, {vz}, {rWS}, {sP[1]} offen sc1\ns_mov_b64 exec, -1\nGOC:")
    softmax_unit(a, PU, V(92, 40), V(132, 4), V(136, 4), P, ["s_nop 0"] * 19 + [gl])
    a("s_waitcnt vmcnt(0)")
    a(f"v_cmp_ne_u32 vcc, 0, {vFG}"); a("s_nop 0"); a("s_cbranch_vccnz P2_GOK")
    if not OPT['nog']: vpoll(a, vz, sFHo, 12, t1)
    a.label('P2_GOK')
    a(f"v_lshlrev_b32 {t0}, 2, {vl15}")
    a(f"s_lshl2_add_u32 {sT0}, {sR6}, {sRG}")
    a(f"s_lshl_b32 {sT0}, {sT0}, 6"); a(f"s_add_u32 {sT0}, {sT0}, {GOFF}")
    a(f"buffer_load_dword {t3}, {t0}, {rWS}, {sT0} offen {LD}")
    stamp(a, 5)
    init_check(vS2, 132)
    lds_wait(16, 8)
    a(f"s_lshl_b32 {sT2}, {sCG}, 7"); a(f"s_add_u32 {sT2}, {sT2}, {FK + GOD}")
    a(f"s_lshl_b32 {sT3}, {sCG}, 2"); a(f"s_add_u32 {sT3}, {sT3}, {sRG}")
    a(f"s_mul_i32 {sT3}, {sT3}, 6144"); a(f"s_add_u32 {sT3}, {sT3}, {KVACC}")
    sNB = S(81)
    def cb(i): return b_reg(vm, i, 'B') if i < 4 else b_reg(vm, 7, 'B', None, 3, CB0, 4) if OPT['bx'] else b_row(vm, sBo, i - 4, CR[i - 4], None, CB0)
    if OPT['b23']: a(f"s_cmp_eq_u32 {sPF}, 0"); a("s_cbranch_scc1 P2_K2")
    a(f"s_cmp_lt_u32 {sPF}, 6"); a("s_cbranch_scc1 P2_K4")
    for i in range(4):
        if OPT['b23'] and i == (2 if OPT['b23'] == 1 else 3): a.label('P2_K2')
        a(f"s_mov_b32 {sNB}, {i}")
        a(f"buffer_load_dword {t1}, {vz}, {rWS}, {sT2} offen sc1")
        a("s_waitcnt vmcnt(0)")
        a(f"v_cmp_ne_u32 vcc, 0, {t1}"); a("s_nop 0"); a("s_cbranch_vccnz P2_KGO")
        for l in cb(i): a(l)
    a.label('P2_K4')
    a(f"s_mov_b32 {sNB}, 4")
    if OPT['bx']:
        a(f"buffer_load_dword {t1}, {vz}, {rWS}, {sT2} offen sc1")
        a("s_waitcnt vmcnt(0)")
        a(f"v_cmp_ne_u32 vcc, 0, {t1}"); a("s_nop 0"); a("s_cbranch_vccnz P2_KGO")
        for l in cb(4): a(l)
        a(f"s_mov_b32 {sNB}, 5")
    if not OPT['nok']: vpoll(a, vz, sT2, 0, t1)
    else: a("s_waitcnt vmcnt(0)")
    a.label('P2_KGO')
    stamp(a, 6)
    KL = [V(92 + 4 * i, 4) for i in range(6)]
    a(f"s_mov_b32 {sTO}, 0x80000")
    a("s_mov_b32 s82, 0x41000000")
    a.label('KVRETRY')
    for i in range(6):
        if i < 4: a(f"buffer_load_dwordx4 {KL[i]}, {vo}, {rWS}, {sT3} offen offset:{i*1024} {LD}")
        else: a(f"buffer_load_dwordx4 {KL[i]}, {vo4}, {rWS}, {sT3} offen offset:{(i-4)*1024} {LD}")
    for i in range(6):
        a(f"s_waitcnt vmcnt({5-i})")
        a(f"v_cvt_pk_bf16_f32 {KL[i][0]}, {KL[i][0]}, {KL[i][1]}")
        a(f"v_cvt_pk_bf16_f32 {KL[i][1]}, {KL[i][2]}, {KL[i][3]}")
        a(f"ds_write_b64 {kw}, {KL[i][0:2]} offset:{(i % 3)*1024 + (i // 3)*32}")
    a(f"v_min3_f32 {t1}, {KL[0][3]}, {KL[1][3]}, {KL[3][3]}")
    a(f"v_min_f32 {t4}, {KL[2][3]}, {KL[5][3]}")
    a(f"v_min_f32 {t1}, {t1}, {KL[4][3]}")
    a(f"v_cmp_neq_f32 vcc, s82, {t4}")
    a(f"v_cmp_neq_f32 {sP}, s82, {t1}")
    a("s_and_b32 s4, vcc_lo, 0x00880088"); a("s_and_b32 s5, vcc_hi, 0x00880088"); a("s_or_b32 s4, s4, s5")
    a(f"s_or_b32 s5, {sP[0]}, {sP[1]}"); a("s_and_b32 s5, s5, 0x88888888"); a("s_or_b32 s4, s4, s5")
    a("s_branch KVOK" if OPT['nok'] else "s_cbranch_scc0 KVOK")
    a("s_waitcnt lgkmcnt(0)")
    a("s_sleep 4")
    a(f"s_sub_u32 {sTO}, {sTO}, 1")
    a("s_cbranch_scc0 KVRETRY")
    a.label('KVOK')
    lds_signal(0)
    lds_wait(0, 4)
    stamp(a, 16)
    AFl = [V(92 + 4 * i, 4) for i in range(15)]
    D = [V(152 + 4 * t, 4) for t in range(6)]
    O = V(176, 12)
    order = [5, 0, 1, 2, 3, 4]
    fr = [(t, s) for s in range(5) for t in order]
    def rdl(k):
        t, s_ = fr[k]
        return [f"ds_read_b64_tr_b16 {AFl[k % 15][2*r_:2*r_+2]}, {ka} offset:{s_*512 + r_*256 + (t*8 if t < 3 else t*8 + 8)}" for r_ in range(2)]
    AH = 7
    for k in range(AH):
        for l in rdl(k): a(l)
    def fin(t):
        for h in range(4): a(f"v_mul_f32 {D[t][h]}, {D[t][h]}, {t2}")
        a(f"v_cvt_pk_bf16_f32 {O[2*t]}, {D[t][0]}, {D[t][1]}")
        a(f"v_cvt_pk_bf16_f32 {O[2*t+1]}, {D[t][2]}, {D[t][3]}")
    for k in range(30):
        t, s_ = fr[k]
        a(f"s_waitcnt lgkmcnt({2 * min(AH - 1, 29 - k)})")
        a(f"v_mfma_f32_16x16x32_bf16 {D[t]}, {AFl[k % 15]}, {P[4*s_:4*s_+4]}, {'0' if s_ == 0 else D[t]}")
        if k + AH < 30:
            for l in rdl(k + AH): a(l)
        if OPT['sent'] and k == OPT['oh1']:
            a(f"s_sub_u32 {sFLAG}, {sFHo}, {GOD - 8}"); a(f"s_mov_b32 {sNEED}, 31"); a(f"v_mov_b32 {vAT}, 1")
            a("s_mov_b64 exec, 1"); a(f"buffer_atomic_add {vAT}, {vz}, {rWS}, {sFLAG} offen sc0 sc1"); a("s_mov_b64 exec, -1")
    stamp(a, 19)
    a(f"v_add_f32 {t2}, 0x358637bd, {D[5][0]}")
    a(f"v_rcp_f32 {t2}, {t2}")
    a(f"v_mul_f32 {t2}, {t2}, {t3}")
    fin(0); fin(1)
    a(f"buffer_store_dwordx4 {O[0:4]}, {vo}, {rWS}, {sO1} offen {ST}")
    fin(2); fin(3)
    a(f"buffer_store_dwordx4 {O[4:8]}, {vo4}, {rWS}, {sO1} offen {ST}")
    fin(4)
    a(f"v_mov_b32 {O[10]}, {O[8]}"); a(f"v_mov_b32 {O[11]}, {O[9]}")
    a(f"v_permlane32_swap_b32 {O[8]}, {O[10]}"); a(f"v_permlane32_swap_b32 {O[9]}, {O[11]}")
    a("s_mov_b32 exec_hi, 0")
    a(f"buffer_store_dwordx4 {O[8:12]}, {vo}, {rWS}, {sO2} offen {ST}")
    a("s_mov_b32 exec_hi, -1")
    stamp(a, 17)
    NBA = OPT['nba'] and not OPT['sent']
    if NBA:
        a(f"s_sub_u32 {sFLAG}, {sFHo}, {GOD - 8}"); a(f"s_mov_b32 {sNEED}, 31"); a(f"v_mov_b32 {vAT}, 1")
        a(f"ds_read_b32 {t1}, {vcn} offset:20"); a("s_waitcnt lgkmcnt(0)"); a(f"v_readfirstlane_b32 {sT0}, {t1}")
        a(f"s_and_b32 {sT0}, {sT0}, {sNB}")
        a(f"s_cmp_eq_u32 {sT0}, 4"); a("s_cbranch_scc1 P2_NB1")
        arrive(a, sFLAG, 31, t0, t1)
        a(f"s_mov_b32 {sNEED}, -1")
        a.label('P2_NB1')
    elif not OPT['sent']:
        a(f"s_sub_u32 {sT2}, {sFHo}, {GOD - 8}")
        arrive(a, sT2, 31, t0, t1)
    else: go_logic(3, False)
    stamp(a, 7)
    if OPT['noc']: a.label('P2_NOC')
    for i in range(5 if OPT['bx'] else 4):
        lb = a.newlabel('CB')
        a(f"s_cmp_gt_u32 {sNB}, {i}"); a(f"s_cbranch_scc1 {lb}")
        for l in cb(i): a(l)
        a.label(lb)
    XB = [V(28), V(13), V(30)]; XW = V(31); GB = V(12)
    if OPT['bx']: XB = [V(1), V(13), V(8)]; XW = V(9)
    for q in range(1, 4):
        a(f"s_sub_u32 {sT0}, {sRG}, {q}"); a(f"s_and_b32 {sT0}, {sT0}, 3"); a(f"s_mul_i32 {sT0}, {sT0}, 5120")
        a(f"s_add_u32 {sT0}, {sT0}, {CR[q-1]*20480}")
        a(f"v_add_u32 {XB[q-1]}, {sT0}, {vo}")
    a(f"v_add_u32 {XW}, {6*20480}, {vbl}")
    def crow(k, j): return (vbl, CR[k]*20480 + j*1024) if k < 2 else (XW, j*1024)
    a(f"s_add_u32 {sT0}, {sRG}, 2"); a(f"s_mul_i32 {sT0}, {sT0}, 20480"); a(f"v_add_u32 {GB}, {sT0}, {vo}")
    a(f"v_mul_u32_u24 {t0}, 1280, {vl15}")
    a(f"v_lshl_add_u32 {t0}, {vqd}, 3, {t0}")
    a(f"s_lshl_b32 {sT2}, {sR6}, 2"); a(f"s_add_u32 {sT2}, {sT2}, {sRG}"); a(f"s_mul_i32 {sT2}, {sT2}, {16*1280}")
    a(f"s_mul_i32 {sT3}, {sCG}, 160"); a(f"s_add_u32 {sT2}, {sT2}, {sT3}")
    a(f"v_add_f32 {V(22)}, 1.0, {t3}"); a(f"v_rcp_f32 {V(22)}, {V(22)}")
    a(f"v_mul_u32_u24 {t3}, 1280, {vl15}"); a(f"v_and_b32 {t4}, 1, {vqd}"); a(f"v_lshl_add_u32 {t3}, {t4}, 5, {t3}")
    a(f"v_lshrrev_b32 {t4}, 1, {vqd}"); a(f"v_lshl_add_u32 {t3}, {t4}, 4, {t3}")
    lds_wait(20, 4)
    a(f"s_setprio {OPT['cprio']}")
    if OPT['stamp'] == 4: a("s_memtime s[92:93]")
    vm = VmTrack()
    for s in range(OPT['la'] + 1):
        if OPT['stp'] == 2 and s: a(f"s_setprio {max(1, 3 - s)}")
        for l in a_loads(s, ('A', s), VT): a(l)
        if NBA and s == 1:
            a(f"s_cmp_eq_u32 {sNEED}, -1"); a("s_cbranch_scc1 P2_NB2")
            a("s_waitcnt vmcnt(8)")
            a("s_mov_b64 exec, 1"); a(f"buffer_atomic_add {vAT}, {vz}, {rWS}, {sFLAG} offen sc0 sc1"); a("s_mov_b64 exec, -1")
            a.label('P2_NB2')
    GT = [BR[1], BR[2], BR[3], AR[1] + [AR[2][0]]]
    if OPT['bx']: GT = [BR[1], BR[3], BR[2], BR[4]]
    nextA = OPT['la'] + 1
    OC = OPT['oc']
    for s in range(9):
        n = vm.wait_for(lambda t: t in (('A', s), ('B', s)) or (s == OC and t == 'of'))
        if s == 1 and OPT['ep']: lds_wait(24, 4)
        if s == 8:
            lds_wait(4, 4)
            stamp(a, 8)
            for w in range(2):
                for j in range(5): a(f"ds_read_b128 {GT[w][j]}, {GB} offset:{w*5120 + j*1024}")
        a(f"s_waitcnt vmcnt({n})" + (" lgkmcnt(0)" if s == (6 if OPT['gf'] & 2 else 4) else ""))
        if OPT['stamp'] == 4:
            a("s_waitcnt lgkmcnt(0)")
            a(f"v_writelane_b32 v255, s92, {40 + s}")
            a("s_memtime s[92:93]")
        if NBA and s == 1: go_logic(n, False)
        if s == OC:
            stamp(a, 18)
            a(f"v_cmp_ne_u32 vcc, 0, {t2}"); a("s_nop 0"); a("s_cbranch_vccnz P2_OOK")
            if not OPT['noc']: vpoll(a, vz, sFHo, 8, t2)
            a.label('P2_OOK')
            a(f"s_mov_b32 {sTO}, 0x40000")
            stamp(a, 9)
        if OPT['sent'] and s >= 4:
            a.label(f'VER{s}')
            regs = [AR[s % NA][tt][k] for tt in range(4) for k in range(4)]
            a(f"v_max3_u32 {t4}, {regs[0]}, {regs[1]}, {regs[2]}")
            a(f"v_max3_u32 {t1}, {regs[3]}, {regs[4]}, {regs[5]}")
            for k in (6, 10):
                a(f"v_max3_u32 {t4}, {t4}, {regs[k]}, {regs[k+1]}"); a(f"v_max3_u32 {t1}, {t1}, {regs[k+2]}, {regs[k+3]}")
            a(f"v_max3_u32 {t4}, {t4}, {regs[14]}, {regs[15]}")
            a(f"v_max_u32 {t4}, {t4}, {t1}")
            a(f"v_cmp_eq_u32 vcc, -1, {t4}")
            a("s_nop 0")
            a(f"s_cbranch_vccnz RET{s}")
            a.label(f'VOK{s}')
        side = []
        if OPT['fair'] and s in eval(OPT['fc']): a(f"s_setprio {eval(OPT['fc'])[s]}")
        if s == OC - 1:
            side.append(f"buffer_load_dword {t2}, {vz}, {rWS}, {sFHo} offen offset:8 sc1"); vm.issue('of')
        while s >= 1 and nextA <= s + OPT['la'] and nextA < 9 and (nextA < 4 or s >= OC):
            side += a_loads(nextA, ('A', nextA), VT); nextA += 1
        if 1 <= s <= 5:
            g_ = CG_[s + 3]
            if OPT['bx'] and s + 3 == 7: pass
            elif g_ < 3: side += ["ds_read_b128 %s, %s offset:%d" % ((BR[(s+3)%4][j],) + crow(g_, j)) for j in range(5)]
            else: side += b_reg(vm, s + 3, ('B', s + 3), None, g_, CB0)
        if s < 8: mm(s, range(4) if s == 0 else [], side, 1 if len([x for x in side if not x.startswith('s_')]) > 10 else 2, 4 if OPT['bx'] and s == 7 else None)
        else:
            for tt in (1, 2, 3, 0):
                for j in range(5):
                    d = ACC[tt][j]
                    a(f"v_mfma_f32_16x16x32_bf16 {d}, {BR[0][j]}, {AR[8 % NA][tt]}, {d}")
                    if tt in (1, 2): a(f"ds_read_b128 {GT[tt+1][j]}, {GB} offset:{(tt+1)*5120 + j*1024}")
                    pt = {1: None, 2: None, 3: 1, 0: 2}[tt]
                    if pt: a("ds_write_b128 %s, %s offset:%d" % (crow(pt-1, j)[0], ACC[pt][j], crow(pt-1, j)[1]))
            for j in range(5): a("ds_write_b128 %s, %s offset:%d" % (crow(2, j)[0], ACC[3][j], crow(2, j)[1]))
    if OPT['stamp'] == 4:
        a("s_waitcnt lgkmcnt(0)"); a(f"v_writelane_b32 v255, s92, {49}"); a("s_memtime s[92:93]"); a("s_waitcnt lgkmcnt(0)"); a(f"v_writelane_b32 v255, s92, {50}")
    a("s_waitcnt lgkmcnt(15)")
    for j in range(5):
        for h in range(2):
            sl = slice(2*h, 2*h+2)
            a(f"v_pk_add_f32 {GT[0][j][sl]}, {GT[0][j][sl]}, {GT[1][j][sl]}")
            a(f"v_pk_add_f32 {GT[2][j][sl]}, {GT[2][j][sl]}, {GT[3][j][sl]}")
    stamp(a, 10)
    lds_signal(8)
    for j in range(5):
        for h in range(2):
            sl = slice(2*h, 2*h+2)
            a(f"v_pk_add_f32 {GT[0][j][sl]}, {GT[0][j][sl]}, {GT[2][j][sl]}")
            a(f"v_pk_add_f32 {ACC[0][j][sl]}, {GT[0][j][sl]}, {ACC[0][j][sl]}")
    lds_wait(8, 4)
    RD = [ACC[1], ACC[2], ACC[3]]
    if OPT['fin'] == 0:
        for q in range(3):
            for j in range(5): a(f"ds_read_b128 {RD[q][j]}, {XB[q]} offset:{j*1024}")
        for q in range(3):
            a(f"s_waitcnt lgkmcnt({10 - 5*q})")
            for j in range(5):
                for h in range(2): a(f"v_pk_add_f32 {ACC[0][j][2*h:2*h+2]}, {ACC[0][j][2*h:2*h+2]}, {RD[q][j][2*h:2*h+2]}")
                if q == 2:
                    for h in range(2): a(f"v_pk_mul_f32 {ACC[0][j][2*h:2*h+2]}, {ACC[0][j][2*h:2*h+2]}, {V(22, 2)} op_sel_hi:[1,0]")
                    a(f"v_cvt_pk_bf16_f32 {ACC[1][j][0]}, {ACC[0][j][0]}, {ACC[0][j][1]}")
                    a(f"v_cvt_pk_bf16_f32 {ACC[1][j][1]}, {ACC[0][j][2]}, {ACC[0][j][3]}")
                    a(f"buffer_store_dwordx2 {ACC[1][j][0:2]}, {t0}, {rOUT}, {sT2} offen offset:{j*32} {OPT['ost']}")
    else:
        for j in range(5):
            for q in range(3): a(f"ds_read_b128 {RD[q][j]}, {XB[q]} offset:{j*1024}")
        OUTR = [GT[1][0], GT[1][1], GT[1][2]]
        for j in range(5):
            a(f"s_waitcnt lgkmcnt({12 - 3*j})")
            for h in range(2):
                sl = slice(2*h, 2*h+2)
                a(f"v_pk_add_f32 {RD[0][j][sl]}, {RD[0][j][sl]}, {RD[1][j][sl]}")
                a(f"v_pk_add_f32 {ACC[0][j][sl]}, {ACC[0][j][sl]}, {RD[2][j][sl]}")
            for h in range(2):
                sl = slice(2*h, 2*h+2)
                a(f"v_pk_add_f32 {ACC[0][j][sl]}, {ACC[0][j][sl]}, {RD[0][j][sl]}")
            for h in range(2): a(f"v_pk_mul_f32 {ACC[0][j][2*h:2*h+2]}, {ACC[0][j][2*h:2*h+2]}, {V(22, 2)} op_sel_hi:[1,0]")
            o_ = OUTR[j // 2]
            a(f"v_cvt_pk_bf16_f32 {o_[2*(j%2)]}, {ACC[0][j][0]}, {ACC[0][j][1]}")
            a(f"v_cvt_pk_bf16_f32 {o_[2*(j%2)+1]}, {ACC[0][j][2]}, {ACC[0][j][3]}")
            if j % 2 == 1:
                a(f"v_permlane16_swap_b32 {o_[0]}, {o_[2]}"); a(f"v_permlane16_swap_b32 {o_[1]}, {o_[3]}")
                a(f"buffer_store_dwordx4 {o_}, {t3}, {rOUT}, {sT2} offen offset:{(j-1)*32} {OPT['ost']}")
            if j == 4: a(f"buffer_store_dwordx2 {o_[0:2]}, {t0}, {rOUT}, {sT2} offen offset:128 {OPT['ost']}")
    a.label('P2_FIN')
    if OPT['stamp'] or OPT['pad']:
        a("s_waitcnt vmcnt(0)")
        stamp(a, 11)
    stamp_flush(a)
    if OPT['pad']:
        if OPT['padwg'] < 999: a(f"s_cmp_lg_u32 s2, {OPT['padwg']}"); a(f"s_cbranch_scc1 {END}")
        a.label('PADL')
        a("s_sleep 1"); a("s_memrealtime s[12:13]"); a("s_waitcnt lgkmcnt(0)"); a("s_sub_u32 s12, s12, s10")
        a(f"s_cmp_lt_u32 s12, {OPT['pad']*100}"); a("s_cbranch_scc1 PADL")
    a.label(END)
    a.label('K_LAST')
    a("s_endpgm")
    if OPT['sent']:
        for s in range(4, 9):
            a.label(f'RET{s}')
            a(f"s_sub_u32 {sTO}, {sTO}, 1")
            a(f"s_cselect_b32 {sTO}, 0, {sTO}")
            a(f"s_cbranch_scc1 VOK{s}")
            a(f"s_sleep {OPT['rsl']}")
            for l in a_loads(s, 'r', VT): a(l)
            a("s_waitcnt vmcnt(0)")
            a(f"s_branch VER{s}")

def build():
    hdr = open(f'cdna_kernels/{NAME}.s.ref').read().split('; Override launch')[0]
    name = NAME + '_kernel'
    out = hdr + "; @launch grid=(256,1,1) block=(512,1,1) lds=163840\n"
    out += '.amdgcn_target "amdgcn-amd-amdhsa--gfx950"\n.text\n'
    a = Asm(); kernel(a)
    out += f".globl {name}\n.p2align 8\n.type {name},@function\n{name}:\n" + a.finalize()
    print('instrs', len(a.ins), 'nops', a.nnop, file=sys.stderr)
    out += f""".section .rodata,"a"
.p2align 6
.amdhsa_kernel {name}
  .amdhsa_next_free_vgpr 256
  .amdhsa_next_free_sgpr 102
  .amdhsa_accum_offset 256
  .amdhsa_group_segment_fixed_size 0
  .amdhsa_kernarg_size 96
  .amdhsa_user_sgpr_count 2
  .amdhsa_user_sgpr_kernarg_segment_ptr 1
  .amdhsa_system_sgpr_workgroup_id_x 1
.end_amdhsa_kernel
"""
    return out

if __name__ == '__main__':
    outp = sys.argv[1]
    for o in sys.argv[2:]:
        k, v = o.split('=', 1); OPT[k] = int(v) if v.isdigit() else v
    open(outp, 'w').write(build())
```

```python
import sys
sys.path.insert(0, 'gen')
from asmlib import *
NAME = 'gated_mix__linear_kernel_hedgehog__swiglu_ffn__prompt'
AP = 0; BP = 0xA00000; PQ = 0xD00000; KVACC = 0x1200000; FH = 0x1230000; FK = 0x1232000; FP = 0x1234000; ZEND = 0x1235000
GOFF = 0x1240000; DUMMY = 0x1250000; STAMP = 0x1300000; WSZ = 0x1600000
LOG2E = 0x3fb8aa3b; NLOG2E = 0xbfb8aa3b
OPT = dict(stamp=0, touch=2, bs="{'p0':(0,2),'p1':(2,5),3:(5,8),7:(8,10)}", pp=0, spnt='nt', rot2=0, slp=3, early=1, btouch=0, atf='sc1', cpf=12, nobar=18, chk=12, sent=0, krs=4, kf=0, two=0, ilh=5, ill=4, nog=0, asg=0, ksp=0, gnt='', tfl='', bx=0, ep=0, map2=1, hd=0, gq=0, lbt=0, tw=0, trim=1, nba=0, la=3, spr=0, fin=1, stp=0, nob=0, noc=0, nok=0, noh=0, t2si=2, swp=1, gf=0, b23=1, tlb=0, padwg=999, padev=0, fair=1, fg='{0:2,5:1,7:3}', fc='{0:1,4:0}', npk=0, eprio=2, gprio=3, oc=2, oord=1, noa=0, pj=18, t2s=0, x0e=1, sb1=1, sb2=1, t2pos=1, pad=0, bt=0, tsl=4, rsl=8, cprio2=0, at=0, kh=0, cprio=3, oh1=19, gdel=0, fill=0, spst='sc1', t2a='[0]', t2b='[2]', t2f='{0:(5,6),1:(4,3),2:(7,4),3:(6,5),5:(9,6),6:(8,3)}', t2q='{}', xfl='', wfl='', il=4, qbar=0, prio=0, dbgt=0, ost='nt')
ST = 'sc1'; LD = 'sc1'

pX, pQKV, pPHI, pWO, pBX, pWG, pWU, pWD = [S(16 + 2 * i, 2) for i in range(8)]
pGW, pOUT, pDBG, pWS = [S(32 + 2 * i, 2) for i in range(4)]
sWV = S(3)
rX, rW, rWS, rA, rB = S(40, 4), S(44, 4), S(48, 4), S(52, 4), S(56, 4)
sC = S(60, 2)
rDBG = S(84, 4)
sFLAG = S(88); sTO = S(89); sNEED = S(7)
GOD = 0x1000
sP = S(14, 2)
XSLOT = 32768; WB = 98304
GWB = 159744; CNT = 161024; ZERO = 161280; KVB = 147456

def srd(a, d, base, size):
    a(f"s_mov_b32 {d[0]}, {base[0]}")
    a(f"s_and_b32 {d[1]}, {base[1]}, 0xffff")
    a(f"s_mov_b32 {d[2]}, {size}")
    a(f"s_mov_b32 {d[3]}, 0x20000")

def sstamp(a, j):
    if OPT['stamp'] != 3: return
    if j > 0: a(f"v_writelane_b32 v255, s92, {40 + j - 1}")
    a("s_memtime s[92:93]")
def stamp(a, idx):
    if OPT['pad'] and OPT['padev'] == idx:
        a("s_memrealtime s[10:11]"); a("s_waitcnt lgkmcnt(0)")
    if not OPT['stamp']: return
    if OPT['stamp'] >= 2 and idx not in (2, 3, 5, 11): return
    a("s_memrealtime s[90:91]")
    a("s_memtime s[92:93]")
    a("s_waitcnt lgkmcnt(0)")
    a(f"v_writelane_b32 v255, s90, {2*idx}")
    a(f"v_writelane_b32 v255, s92, {2*idx+1}")
def stamp_flush(a):
    if not OPT['stamp']: return
    if OPT['dbgt']:
        a("s_not_b32 s90, s10"); a("v_writelane_b32 v255, s90, 0")
        a("v_lshlrev_b32 v254, 1, v0"); a("v_add_u32 v254, 8, v254")
        a("s_mov_b32 exec_lo, 0x05555555"); a("s_mov_b32 exec_hi, 0")
        a(f"buffer_atomic_umax v255, v254, {rDBG}, 0 offen sc1")
        a("s_mov_b64 exec, -1")
        return
    a("v_writelane_b32 v255, s10, 0"); a("v_writelane_b32 v255, s12, 1")
    a("s_lshl_b32 s90, s2, 3")
    a(f"s_add_u32 s90, s90, {sWV}")
    a("s_lshl_b32 s90, s90, 8")
    a(f"s_add_u32 s90, s90, {STAMP + 0x80000}")
    a("v_lshlrev_b32 v254, 2, v0")
    a(f"buffer_store_dword v255, v254, {rWS}, s90 offen")

def vpoll(a, vzero, soff, off, tmp, extra=None, slp=None):
    L, D = a.newlabel('POLL'), a.newlabel('POLLD')
    a(f"s_mov_b32 {sTO}, 0x80000")
    a.label(L)
    if extra: a(extra)
    a(f"buffer_load_dword {tmp}, {vzero}, {rWS}, {soff} offen offset:{off} sc1")
    a("s_waitcnt vmcnt(0)")
    a(f"v_cmp_eq_u32 vcc, 0, {tmp}")
    a("s_nop 0")
    a(f"s_cbranch_vccz {D}")
    a(f"s_sleep {slp or OPT['slp']}")
    a(f"s_sub_u32 {sTO}, {sTO}, 1")
    a(f"s_cbranch_scc0 {L}")
    a.label(D)
def arrive(a, soff, need, z, one, nyounger=0):
    D = a.newlabel('ARR')
    a(f"v_mov_b32 {z}, 0"); a(f"v_mov_b32 {one}, 1")
    a(f"s_waitcnt vmcnt({nyounger})")
    a("s_mov_b64 exec, 1")
    a(f"buffer_atomic_add {one}, {z}, {rWS}, {soff} offen sc0 sc1")
    a("s_waitcnt vmcnt(0)")
    a(f"v_readfirstlane_b32 {sP[0]}, {one}")
    a(f"s_add_u32 {sP[1]}, {soff}, {GOD}")
    a(f"s_cmp_lg_u32 {sP[0]}, {need}")
    a(f"s_cbranch_scc1 {D}")
    a(f"buffer_store_dword {one}, {z}, {rWS}, {sP[1]} offen sc1")
    a.label(D)
    a("s_mov_b64 exec, -1")
def init_poll(a, reg, off):
    L, D = a.newlabel('POLL'), a.newlabel('POLLD')
    a(f"s_mov_b32 {sTO}, 0x80000")
    a.label(L)
    a(f"v_mov_b32 {reg}, 0")
    a(f"buffer_load_dword {reg}, {reg}, {rDBG}, 0 offen offset:{off} sc1")
    a("s_waitcnt vmcnt(0)")
    a(f"v_readfirstlane_b32 {sP[0]}, {reg}")
    a(f"s_cmp_lg_u32 {sP[0]}, 0")
    a(f"s_cbranch_scc1 {D}")
    a("s_sleep 2")
    a(f"s_sub_u32 {sTO}, {sTO}, 1")
    a(f"s_cbranch_scc0 {L}")
    a.label(D)

def softmax_unit(a, P, E, M, T, O, side=None):
    side = list(side or [])
    a(f"v_max3_f32 {M[0]}, {P[0]}, {P[1]}, {P[2]}")
    a(f"v_min3_f32 {M[2]}, {P[0]}, {P[1]}, {P[2]}")
    for i in range(3, 19, 2):
        a(f"v_max3_f32 {M[0]}, {M[0]}, {P[i]}, {P[i+1]}")
        a(f"v_min3_f32 {M[2]}, {M[2]}, {P[i]}, {P[i+1]}")
    a(f"v_max_f32 {M[0]}, {M[0]}, {P[19]}")
    a(f"v_min_f32 {M[2]}, {M[2]}, {P[19]}")
    a(f"v_mul_f32 {M[0]}, {sC[0]}, {M[0]}")
    a(f"v_mul_f32 {M[2]}, {sC[0]}, {M[2]}")
    for i in range(0, 20, 2):
        a(f"v_pk_fma_f32 {E[i:i+2]}, {P[i:i+2]}, {sC}, {M[0:2]} op_sel_hi:[1,1,0] neg_lo:[0,0,1] neg_hi:[0,0,1]")
        a(f"v_pk_fma_f32 {E[20+i:22+i]}, {P[i:i+2]}, {sC}, {M[2:4]} op_sel_hi:[1,1,0] neg_lo:[1,0,0] neg_hi:[1,0,0]")
    for i in range(40):
        a(f"v_exp_f32 {E[i]}, {E[i]}")
        if side and i % 2 == 1:
            x = side.pop(0)
            if x != "s_nop 0": a(x)
    for l in side: a(l)
    a(f"v_pk_add_f32 {T[0:2]}, {E[0:2]}, {E[2:4]}")
    a(f"v_pk_add_f32 {T[2:4]}, {E[20:22]}, {E[22:24]}")
    for i in range(4, 20, 2):
        a(f"v_pk_add_f32 {T[0:2]}, {T[0:2]}, {E[i:i+2]}")
        a(f"v_pk_add_f32 {T[2:4]}, {T[2:4]}, {E[20+i:22+i]}")
    a(f"v_add_f32 {T[0]}, {T[0]}, {T[1]}")
    a(f"v_add_f32 {T[2]}, {T[2]}, {T[3]}")
    a(f"v_rcp_f32 {T[0]}, {T[0]}")
    a(f"v_rcp_f32 {T[2]}, {T[2]}")
    for i in range(0, 20, 2):
        a(f"v_pk_mul_f32 {E[i:i+2]}, {E[i:i+2]}, {T[0:2]} op_sel_hi:[1,0]")
        a(f"v_pk_mul_f32 {E[20+i:22+i]}, {E[20+i:22+i]}, {T[2:4]} op_sel_hi:[1,0]")
    for i in range(20):
        a(f"v_cvt_pk_bf16_f32 {O[i]}, {E[2*i]}, {E[2*i+1]}")

def kernel(a):
    END = 'K_END'
    BS = eval(OPT['bs'])
    a("s_cmp_ge_u32 s2, 256")
    a(f"s_cbranch_scc1 {END}")
    if OPT['stamp']:
        a("s_memrealtime s[10:11]"); a("s_memtime s[12:13]"); a("v_mov_b32 v255, 0")
    if OPT['pad']: a("s_memrealtime s[10:11]")
    a("s_load_dwordx16 s[16:31], s[0:1], 0")
    a("s_load_dwordx8 s[32:39], s[0:1], 64")
    lane = V(0)
    tid, t0, t1, t2, t3, t4 = V(1), V(2), V(3), V(4), V(5), V(6)
    vqd, vr, vc, vl15 = V(7), V(8), V(9), V(10)
    vx = [V(11 + i) for i in range(4)]
    xa = [[V(15), V(16)], [V(17), V(18)]]
    tdum = V(19); ta = V(32, 2); tb = V(34, 2)
    R0 = 24
    sTY, sRB, sXK, sWK, sM, sT0, sT1, sT2, sT3, sRG, sHI, sID, sMW, sC8, sR4 = [S(62 + i) for i in range(15)]
    a(f"v_lshrrev_b32 {t0}, 6, v0")
    a(f"v_mov_b32 {tid}, v0")
    a(f"v_readfirstlane_b32 {sWV}, {t0}")
    a(f"v_and_b32 {lane}, 63, v0")
    a(f"s_bfe_u32 {sC8}, s2, 0x30003")
    a(f"s_lshr_b32 {sR4}, s2, 6")
    a(f"s_and_b32 {sRB}, s2, 1")
    a(f"s_lshl_b32 {sRB}, {sRB}, 2")
    a(f"s_add_u32 {sRB}, {sRB}, {sR4}")
    a(f"s_bfe_u32 {sT0}, s2, 0x20001")
    a(f"s_and_b32 {sRG}, {sWV}, 3")
    a(f"s_lshr_b32 {sHI}, {sWV}, 2")
    a(f"v_lshrrev_b32 {vqd}, 4, {lane}")
    a(f"v_bfe_u32 {vr}, {lane}, 2, 2")
    a(f"v_and_b32 {vc}, 3, {lane}")
    a(f"v_and_b32 {vl15}, 15, {lane}")
    a(f"v_lshrrev_b32 {t0}, 3, {lane}")
    a(f"v_mul_u32_u24 {t0}, 1280, {t0}")
    a(f"v_and_b32 {t1}, 7, {lane}")
    a(f"v_xor_b32 {t1}, {t1}, {vqd}")
    a(f"v_lshl_add_u32 {vx[0]}, {t1}, 4, {t0}")
    a(f"v_xor_b32 {t1}, 4, {t1}")
    a(f"v_lshl_add_u32 {vx[1]}, {t1}, 4, {t0}")
    a(f"v_add_u32 {vx[1]}, {8*1280-1024}, {vx[1]}")
    a(f"v_add_u32 {vx[2]}, {16*1280-2048}, {vx[0]}")
    a(f"v_add_u32 {vx[3]}, {16*1280-2048}, {vx[1]}")
    a(f"s_mul_i32 {sXK}, {sRB}, {256*1280}")
    a(f"s_mul_i32 {sT1}, {sWV}, {32*1280}")
    a(f"s_add_u32 {sXK}, {sXK}, {sT1}")
    a(f"s_lshl_b32 {sM}, {sWV}, 12")
    sXA, sXB = S(6), S(7)
    if OPT['swp']:
        a(f"s_add_u32 {sTY}, {sC8}, {sR4}"); a(f"s_and_b32 {sTY}, {sTY}, 1")
        a(f"s_lshl_b32 {sT1}, {sTY}, 7"); a(f"s_add_u32 {sXK}, {sXK}, {sT1}")
    a(f"v_lshlrev_b32 {t2}, 3, {tid}")
    a(f"v_min_u32 {t2}, {163840 - CNT - 8}, {t2}")
    a(f"v_add_u32 {t2}, {CNT}, {t2}")
    a(f"v_mov_b32 {ta[0]}, 0"); a(f"v_mov_b32 {ta[1]}, 0")
    a(f"ds_write_b64 {t2}, {ta}")
    a(f"s_mul_i32 {sID}, {sT0}, 9"); a(f"s_add_u32 {sID}, {sID}, 1"); a(f"s_lshr_b32 {sID}, {sID}, 1")
    a(f"s_add_u32 {sID}, {sID}, {sC8}"); a(f"s_sub_u32 {sID}, {sID}, 3")
    a(f"s_and_b32 {sT1}, {sT0}, 1"); a(f"s_add_u32 {sT1}, {sT1}, {sC8}")
    a(f"s_mov_b32 {sC[0]}, {LOG2E:#x}")
    a(f"s_mov_b32 {sC[1]}, {LOG2E:#x}")
    sU1, sU2, sBK = S(100), S(101), S(95)
    vt1, vt2 = V(22), V(23)
    T2 = OPT['touch'] >= 2; T3 = OPT['touch'] == 3
    rTT = S(96, 4)
    def t2_all(b0):
        return [f"s_mul_i32 s4, {sBK}, {b0}", f"s_add_u32 s4, s4, {sU2}",
                f"v_add_u32 v21, s4, {vt2}", f"s_mov_b64 exec, 0xff\nbuffer_load_dword {tdum}, v21, {rTT}, 0 offen\ns_mov_b64 exec, -1"]
    OOL = []
    def t2_one(b, c8v):
        lb = a.newlabel('T2')
        body = (f"s_mul_i32 s4, {sBK}, {b}\ns_add_u32 s4, s4, {sU1}\nv_add_u32 v3, s4, {vt1}\n" + ("s_mov_b32 exec_hi, 0\n", "s_mov_b64 exec, 0xffff\n", "s_mov_b64 exec, 0xff\n")[OPT['hd']] +
                f"buffer_load_dword {tdum}, v3, {rTT}, 0 offen\ns_mov_b64 exec, -1\n")
        if OPT['trim']:
            OOL.append(f"{lb}o:\n" + body + f"s_branch {lb}")
            return [f"s_cmp_eq_u32 {'s94' if OPT['hd'] else sC8}, {c8v}\ns_cbranch_scc1 {lb}o\n{lb}:"]
        return [f"s_cmp_lg_u32 {sC8}, {c8v}\ns_cbranch_scc1 {lb}\n" + body + f"{lb}:"]
    if T2:
        a(f"s_lshr_b32 s9, {sWV}, 1")
        a(f"s_mov_b32 {rTT[2]}, {2048*1280}"); a(f"s_movk_i32 {sBK}, 128")
        a("s_cmp_eq_u32 s9, 1")
        a(f"s_cselect_b32 {rTT[2]}, {640*3840}, {rTT[2]}"); a(f"s_cselect_b32 {sBK}, {64*3840}, {sBK}")
        a("s_cmp_ge_u32 s9, 2")
        a(f"s_cselect_b32 {rTT[2]}, {640*3456}, {rTT[2]}"); a(f"s_cselect_b32 {sBK}, {64*3456}, {sBK}")
        a(f"s_mov_b32 {rTT[3]}, 0x20000")
        a("s_cmp_eq_u32 s9, 0")
        a("s_movk_i32 s7, 128"); a("s_cselect_b32 s5, 1280, s7"); a("s_cselect_b32 s6, 640, s7"); a("s_cselect_b32 s7, 512, 0")
        a(f"v_mul_u32_u24 {vt1}, s5, {lane}")
        a(f"v_mul_u32_u24 {vt2}, s6, {lane}")
        a(f"v_and_b32 {t0}, 1, {lane}"); a(f"v_mul_u32_u24 {t0}, s7, {t0}"); a(f"v_sub_u32 {vt2}, {vt2}, {t0}")
        a(f"s_and_b32 s4, {sWV}, 1")
        a(f"s_lshl1_add_u32 {sU2}, s2, s4"); a(f"s_lshl_b32 {sU2}, {sU2}, 3"); a(f"s_mul_i32 {sU2}, {sU2}, s6")
        a(f"s_and_b32 {sU1}, s2, 7"); a(f"s_lshl2_add_u32 {sU1}, {sU1}, {sR4}")
        a(f"s_lshl1_add_u32 {sU1}, {sU1}, s4")
        if OPT['hd'] == 1:
            a(f"s_and_b32 s4, {sC8}, 1"); a(f"s_lshl1_add_u32 {sU1}, {sU1}, s4"); a(f"s_lshl_b32 {sU1}, {sU1}, 4")
            a(f"s_add_u32 s94, {sC8}, 1"); a("s_lshr_b32 s94, s94, 1")
        elif OPT['hd'] == 2:
            a(f"s_and_b32 s4, {sC8}, 3"); a(f"s_lshl2_add_u32 {sU1}, {sU1}, s4"); a(f"s_lshl_b32 {sU1}, {sU1}, 3")
            a(f"s_add_u32 s94, {sC8}, 1"); a("s_lshr_b32 s94, s94, 2")
        else: a(f"s_lshl_b32 {sU1}, {sU1}, 5")
        a(f"s_mul_i32 {sU1}, {sU1}, s5")
        a(f"v_add_u32 {t4}, {sU2}, {vt2}")
        if eval(OPT['t2a'])[0]:
            a(f"s_mul_i32 s4, {sBK}, {eval(OPT['t2a'])[0]}"); a(f"v_add_u32 {t4}, s4, {t4}")
    a(f"s_mov_b32 {rX[2]}, {2048*1280}"); a(f"s_mov_b32 {rX[3]}, 0x20000")
    a(f"s_mov_b32 m0, {sM}")
    a("s_waitcnt lgkmcnt(0)")
    if T2:
        a("s_cmp_eq_u32 s9, 1"); a(f"s_cselect_b64 {rTT[0:2]}, {pQKV}, {pX}")
        a("s_cmp_eq_u32 s9, 2"); a(f"s_cselect_b64 {rTT[0:2]}, {pWG}, {rTT[0:2]}")
        a("s_cmp_eq_u32 s9, 3"); a(f"s_cselect_b64 {rTT[0:2]}, {pWU}, {rTT[0:2]}")
        a(f"s_and_b32 {rTT[1]}, {rTT[1]}, 0xffff")
        a("s_mov_b64 exec, 0xff"); a(f"buffer_load_dword {tdum}, {t4}, {rTT}, 0 offen"); a("s_mov_b64 exec, -1")
        for b0 in eval(OPT['t2a'])[1:]:
            for l in t2_all(b0): a(l)
    a(f"s_mov_b32 {rX[0]}, {pX[0]}"); a(f"s_and_b32 {rX[1]}, {pX[1]}, 0xffff")
    if OPT['x0e']:
        a(f"s_cmp_eq_u32 {sT1}, 8"); a("s_cbranch_scc1 NOX0")
        if OPT['sb1']: a("s_barrier")
        for n in range(4): a(f"buffer_load_dwordx4 {vx[n]}, {rX}, {sXK} offen offset:{n*1024} lds")
        a.label("NOX0")
    srd(a, rWS, pWS, WSZ)
    srd(a, rDBG, pDBG, 256)
    if OPT['tlb']:
        a(f"s_cmp_lg_u32 {sWV}, 6"); a("s_cbranch_scc1 NOTLB")
        srd(a, rA, pOUT, 2048 * 1280)
        a(f"v_lshlrev_b32 {t0}, {OPT['tlb']}, {lane}")
        a("s_lshl_b32 s6, s2, 7"); a(f"v_add_u32 {t0}, s6, {t0}")
        a(f"v_min_u32 {t1}, {0x1250000}, {t0}")
        a(f"buffer_load_dword v31, {t1}, {rWS}, 0 offen")
        a(f"buffer_load_dword v31, {t0}, {rA}, 0 offen")
        a.label("NOTLB")
    if OPT['cpf']:
        a(f"s_cmp_lg_u32 {sWV}, 7"); a("s_cbranch_scc1 NOCPF")
        a("s_getpc_b64 s[90:91]")
        a.label("CPF_PC")
        a("s_lshr_b32 s6, s2, 3"); a(f"s_mul_i32 s6, s6, {OPT['cpf']*128}")
        a(f"v_lshlrev_b32 {t0}, 7, {lane}"); a(f"v_add_u32 {t0}, s6, {t0}")
        a(f"v_min_u32 {t0}, K_LAST-CPF_PC, {t0}")
        a(f"s_mov_b64 exec, {(1 << OPT['cpf']) - 1:#x}")
        a(f"global_load_dword v31, {t0}, s[90:91]")
        a("s_mov_b64 exec, -1")
        a.label("NOCPF")
    if OPT['swp']: a(f"s_lshl_b32 s4, {sTY}, 8"); a(f"s_sub_u32 {sXA}, 128, s4"); a(f"s_add_u32 {sXB}, s4, 128")
    a(f"s_cmp_lt_u32 {sC8}, 3")
    a("s_cbranch_scc1 R_QKV")
    a(f"s_cmp_eq_u32 {sT1}, 8")
    a("s_cbranch_scc1 R_SPARE")

    def x_dma(vm, blk, half):
        if blk == 0 and OPT['x0e']:
            vm.issue(('X', 0)); vm.issue(('X', 0)); return []
        l = [f"s_add_u32 m0, {sM}, {(blk % 3) * XSLOT}"]
        if half == 0 and blk > 0: l.append(f"s_add_u32 {sXK}, {sXK}, {(sXA if blk % 2 else sXB) if OPT['swp'] else 128}")
        for n in (2 * half, 2 * half + 1):
            l.append(f"buffer_load_dwordx4 {vx[n]}, {rX}, {sXK} offen offset:{n*1024} {OPT['xfl']} lds")
            vm.issue(('X', blk))
        return l
    def x_addr_setup():
        a(f"v_lshrrev_b32 {t0}, 1, {vl15}")
        a(f"v_xor_b32 {t0}, {t0}, {vqd}")
        a(f"v_lshlrev_b32 {t0}, 4, {t0}")
        a(f"v_lshl_add_u32 {t0}, {vl15}, 7, {t0}")
        a(f"s_lshl_b32 {sT0}, {sRG}, 13")
        a(f"v_add_u32 {xa[0][0]}, {sT0}, {t0}")
        a(f"v_xor_b32 {xa[0][1]}, 64, {xa[0][0]}")
        a(f"v_add_u32 {xa[1][0]}, 0x10000, {xa[0][0]}")
        a(f"v_add_u32 {xa[1][1]}, 0x10000, {xa[0][1]}")
    def x_reads(XF, step):
        blk, kk = step // 2, step % 2
        sl = blk % 3
        return [f"ds_read_b128 {XF[tt]}, {xa[sl // 2][kk]} offset:{(sl % 2) * XSLOT + tt * 2048}" for tt in range(4)]
    def burst(vm, b0, b1):
        if OPT['touch'] not in (1, 3): return []
        l = []
        for st, reg in ((0, ta), (5, tb)):
            lo, hi = max(b0, st) - st, min(b1, st + 5) - st
            if lo >= hi: continue
            m = ((1 << (12 * hi)) - 1) & ~((1 << (12 * lo)) - 1)
            l += [f"s_mov_b32 exec_lo, {m & 0xffffffff:#x}", f"s_mov_b32 exec_hi, {m >> 32:#x}", f"global_load_dword {tdum}, {reg}, off"]
            vm.issue('T')
        l.append("s_mov_b64 exec, -1")
        return l
    def touch_setup(pw0, pw1, rowbytes, off0, off1, seg):
        if OPT['touch'] not in (1, 3): return
        l12, bi = tb[0], tb[1]; tinc = V(36)
        a(f"v_mul_u32_u24 {bi}, 43, {lane}"); a(f"v_lshrrev_b32 {bi}, 9, {bi}")
        a(f"v_mul_u32_u24 {l12}, 12, {bi}"); a(f"v_sub_u32 {l12}, {lane}, {l12}")
        a(f"s_lshl_b32 {sT2}, {sRB}, 3"); a(f"s_add_u32 {sT2}, {sT2}, {sC8}"); a(f"s_lshl_b32 {sT2}, {sT2}, 3"); a(f"s_add_u32 {sT2}, {sT2}, {sWV}")
        a(f"s_mul_i32 {sT2}, {sT2}, {4*1280}")
        a(f"v_mul_u32_u24 {t0}, 1280, {l12}")
        a(f"v_add_u32 {t0}, {sT2}, {t0}")
        a(f"s_lshl_b32 {sT0}, {sR4}, 3"); a(f"s_add_u32 {sT0}, {sT0}, {sWV}"); a(f"s_mul_i32 {sT0}, {sT0}, {2*rowbytes}")
        a(f"v_subrev_u32 {t1}, 4, {l12}")
        a(f"v_bfe_u32 {t2}, {t1}, 2, 1")
        a(f"v_mul_u32_u24 {t2}, {rowbytes}, {t2}")
        a(f"v_and_b32 {t3}, 1, {t1}")
        a(f"v_mul_u32_u24 {t3}, {seg-4}, {t3}")
        a(f"v_add3_u32 {t2}, {t2}, {t3}, {sT0}")
        a(f"v_and_b32 {t3}, 2, {t1}")
        a(f"v_cmp_eq_u32 vcc, 0, {t3}")
        a(f"v_mov_b32 {t3}, {off1}"); a(f"v_mov_b32 {t4}, {off0}")
        a(f"v_cndmask_b32 {t3}, {t3}, {t4}, vcc")
        a(f"v_add_u32 {t2}, {t2}, {t3}")
        a(f"v_mov_b32 {t3}, {pw1[0]}"); a(f"v_mov_b32 {t4}, {pw0[0]}"); a(f"v_cndmask_b32 {ta[0]}, {t3}, {t4}, vcc")
        a(f"v_mov_b32 {t3}, {pw1[1]}"); a(f"v_mov_b32 {t4}, {pw0[1]}"); a(f"v_cndmask_b32 {ta[1]}, {t3}, {t4}, vcc")
        a(f"v_cmp_gt_u32 vcc, 4, {l12}")
        a(f"v_mov_b32 {t3}, {pX[0]}"); a(f"v_mov_b32 {t4}, {pX[1]}")
        a(f"v_cndmask_b32 {t2}, {t2}, {t0}, vcc")
        a(f"v_cndmask_b32 {ta[0]}, {ta[0]}, {t3}, vcc")
        a(f"v_cndmask_b32 {ta[1]}, {ta[1]}, {t4}, vcc")
        a(f"v_mov_b32 {t3}, {64*rowbytes}"); a(f"v_mov_b32 {t4}, 128"); a(f"v_cndmask_b32 {tinc}, {t3}, {t4}, vcc")
        a(f"v_mad_u32_u24 {t2}, {tinc}, {bi}, {t2}")
        a(f"v_add_co_u32 {ta[0]}, vcc, {ta[0]}, {t2}")
        a(f"v_mul_u32_u24 {t2}, 5, {tinc}")
        a(f"v_addc_co_u32 {ta[1]}, vcc, 0, {ta[1]}, vcc")
        a(f"v_add_co_u32 {tb[0]}, vcc, {ta[0]}, {t2}")
        a(f"v_addc_co_u32 {tb[1]}, vcc, 0, {ta[1]}, vcc")
    HALF = [None]
    def step_body(mains, lblk, pre=[]):
        for l in pre: a(l)
        if not lblk:
            for m in mains: a(m)
            return
        if OPT['pp'] == 2:
            rds = [l for l in lblk if l.startswith('ds_read')]; oth = [l for l in lblk if not l.startswith('ds_read')]
            l1, l2 = a.newlabel('PP'), a.newlabel('PP')
            if oth:
                a(f"s_cmp_eq_u32 {sHI}, 0"); a(f"s_cbranch_scc1 {l1}")
                for l in oth: a(l)
                a.label(l1)
            k = 0
            for i, m in enumerate(mains):
                a(m)
                while k < len(rds) and k < (i + 1) * max(1, -(-len(rds) // len(mains))):
                    a(rds[k]); k += 1
            if oth:
                a(f"s_cmp_eq_u32 {sHI}, 0"); a(f"s_cbranch_scc0 {l2}")
                for l in oth: a(l)
                a.label(l2)
        elif OPT['pp']:
            l1, l2 = a.newlabel('PP'), a.newlabel('PP')
            a(f"s_cmp_eq_u32 {sHI}, 0"); a(f"s_cbranch_scc1 {l1}")
            for l in lblk: l() if callable(l) else a(l)
            a.label(l1)
            for m in mains: a(m)
            a(f"s_cmp_eq_u32 {sHI}, 0"); a(f"s_cbranch_scc0 {l2}")
            for l in lblk: l() if callable(l) else a(l)
            a.label(l2)
        else:
            rds = [l for l in lblk if l.startswith('ds_read')]; oth = [l for l in lblk if not l.startswith('ds_read')]
            units = []; cur = []
            for l in oth:
                cur.append(l)
                if 'buffer_' in l or 'ds_write' in l: units.append(cur); cur = []
            if cur: units.append(cur)
            n = len(mains); mode = OPT['il']
            if HALF[0] == 'hi': mode = OPT['ilh']
            if HALF[0] == 'lo': mode = OPT['ill']
            pos = {}
            if mode == 5:
                for l in oth: a(l)
                for k, r in enumerate(rds): pos.setdefault(min(n - 1, k * min(n, len(rds)) // len(rds) if len(rds) > n else k), []).append(r)
            elif mode == 6:
                for l in rds + oth: a(l)
            elif mode == 7:
                for k, r in enumerate(rds): pos.setdefault(min(n - 1, k * min(n, len(rds)) // len(rds) if len(rds) > n else k), []).append(r)
                pos.setdefault(n - 1, []).extend(oth)
            elif mode == 8:
                for l in oth + rds[:8]: a(l)
                for k, r in enumerate(rds[8:]): pos.setdefault(min(n - 1, k), []).append(r)
            if mode >= 5: pass
            elif mode == 0:
                seq = [[r] for r in rds] + units
                for k, u in enumerate(seq): pos.setdefault(min(n - 1, k * n // max(len(seq), n)), []).extend(u)
            elif mode == 1:
                for k, u in enumerate(units): pos.setdefault(min(n - 1, 2 * k), []).extend(u)
                for k, r in enumerate(rds): pos.setdefault(min(n - 1, k * min(n, len(rds)) // len(rds) if len(rds) > n else k), []).append(r)
            elif mode == 2:
                for k, r in enumerate(rds): pos.setdefault(min(n - 1, k // 2), []).append(r)
                for k, u in enumerate(units): pos.setdefault(min(n - 1, len(rds) // 2 + 2 * k), []).extend(u)
            elif mode == 3:
                for k, u in enumerate(units): pos.setdefault(min(n - 1, 1 + k * (2 * n // 3) // max(1, len(units))), []).extend(u)
                for k, r in enumerate(rds): pos.setdefault(min(n - 1, k * min(n, len(rds)) // len(rds) if len(rds) > n else k), []).append(r)
            elif mode == 4:
                k = 0
                for i in range(n):
                    while k < len(lblk) and k < (i + 1) * len(lblk) // n + 1:
                        pos.setdefault(i, []).append(lblk[k]); k += 1
            for i, m in enumerate(mains):
                a(m)
                for l in pos.get(i, []): a(l)
    def init_check_issue(reg, off=128):
        return [f"v_mov_b32 {reg}, 0", f"buffer_load_dword {reg}, {reg}, {rDBG}, 0 offen offset:{off} sc1"]
    def init_check(reg, off=128, ool=False):
        ok = a.newlabel('INITOK')
        a(f"v_readfirstlane_b32 {sP[0]}, {reg}")
        if ool and OPT['trim']:
            a(f"s_cmp_eq_u32 {sP[0]}, 0"); a(f"s_cbranch_scc1 {ok}o"); a.label(ok)
            b = Asm(); b.uid = a.uid + 1000; init_poll(b, reg, off); a.uid += 5
            OOL.append(f"{ok}o:\n" + "\n".join(x.text for x in b.ins) + f"\ns_branch {ok}")
            return
        a(f"s_cmp_lg_u32 {sP[0]}, 0")
        a(f"s_cbranch_scc1 {ok}")
        init_poll(a, reg, off)
        a.label(ok)
    sR6, sCG, sAo, sBg, sBo, sLC, sH2, sRX = [S((16 if OPT['trim'] else 94) + i) for i in range(8)]
    vo, vo4 = V(20), V(21)
    vS2 = V(30)
    sO1, sO2 = S(79), S(80)
    BRb = [208, 228, 32, 52]
    BR = [[V(BRb[b] + 4 * j, 4) for j in range(5)] for b in range(4)]
    BR.append([V(200, 4), V(204, 4), V(248, 4), V(24, 4), V(28, 4)])
    NA = 3 if OPT['bx'] else 4
    GL = [4, 6, 7, 9]; LR = [2, 5, 3, 4]; CR = [0, 1, 6]
    GRP = {0:0, 1:1, 2:2, 3:3, 4:8, 6:9, 7:10, 9:11, 5:12, 8:13}
    if OPT['gf'] & 1:
        GL = [6, 7, 8, 9]; GRP = {0:0, 1:1, 2:2, 3:3, 6:8, 7:9, 8:10, 9:11, 4:12, 5:13}
    INP2 = [False]
    BS_ = 40960; GS_ = 4 * BS_
    CB0 = 38 * BS_; CA0 = 38 * 4096
    def p2_setup():
        if OPT['map2'] == 2:
            hd = [f"s_bfe_u32 {sR6}, s2, 0x10002", "s_lshr_b32 s4, s2, 4", f"s_lshl4_add_u32 {sR6}, {sR6}, s4",
                  f"s_lshr_b32 {sCG}, s2, 3", "s_lshr_b32 s4, s2, 6", f"s_add_u32 {sCG}, {sCG}, s4", f"s_and_b32 {sCG}, {sCG}, 1", "s_and_b32 s4, s2, 3", f"s_lshl1_add_u32 {sCG}, s4, {sCG}"]
        elif OPT['map2']:
            hd = [f"s_bfe_u32 {sR6}, s2, 0x20001", "s_lshr_b32 s4, s2, 5", f"s_lshl3_add_u32 {sR6}, {sR6}, s4",
                  f"s_lshr_b32 {sCG}, s2, 3", "s_lshr_b32 s4, s2, 6", f"s_add_u32 {sCG}, {sCG}, s4", f"s_and_b32 {sCG}, {sCG}, 3", "s_and_b32 s4, s2, 1", f"s_lshl2_add_u32 {sCG}, s4, {sCG}"]
        else:
            hd = [f"s_and_b32 {sR6}, s2, 7", f"s_lshl_b32 {sR6}, {sR6}, 2", "s_lshr_b32 s4, s2, 6", f"s_add_u32 {sR6}, {sR6}, s4",
             f"s_bfe_u32 {sCG}, s2, 0x30003", f"s_lshl1_add_u32 {sCG}, s4, {sCG}", f"s_and_b32 {sCG}, {sCG}, 7"]
        return hd + [f"v_lshlrev_b32 {vo}, 4, {lane}", f"v_add_u32 {vo4}, 4096, {vo}",
             f"s_lshl3_add_u32 {sBg}, {sRG}, {sCG}", f"s_mul_i32 {sBg}, {sBg}, 5120", f"s_add_u32 {sBg}, {sBg}, {BP}",
             f"s_mov_b32 {rB[0]}, {pWS[0]}", f"s_and_b32 {rB[1]}, {pWS[1]}, 0xffff", f"s_mul_i32 {rB[2]}, {sHI}, {WSZ}", f"s_mov_b32 {rB[3]}, 0x20000",
             f"s_mul_i32 {sLC}, {sRG}, 5120", f"s_mul_i32 {sH2}, {sHI}, {GS_}", f"s_mul_i32 {sRX}, {sHI}, 20480",
             f"s_xor_b32 s4, {sHI}, 1", f"s_mul_i32 {sBo}, s4, {16*BS_}", f"s_add_u32 {sBo}, {sBo}, {sBg}",
             f"s_mul_i32 {sAo}, {sR6}, 74", f"s_mul_i32 s4, s4, 16", f"s_add_u32 {sAo}, {sAo}, s4", f"s_add_u32 {sAo}, {sAo}, {sRG}", f"s_lshl_b32 {sAo}, {sAo}, 12",
             f"s_lshr_b32 s4, {sCG}, 1", "s_mul_i32 s4, s4, 5", f"s_mul_i32 {sO2}, {sR6}, 74", f"s_add_u32 {sO2}, {sO2}, s4", f"s_add_u32 {sO2}, {sO2}, 54",
             f"s_lshl2_add_u32 {sO2}, {sO2}, {sRG}", f"s_lshl_b32 {sO2}, {sO2}, 10", f"s_and_b32 s4, {sCG}, 1", f"s_mul_i32 {sO1}, s4, {3*4096}",
             f"s_add_u32 {sO1}, {sO1}, {sO2}", "s_lshl_b32 s4, s4, 9", f"s_add_u32 {sO2}, {sO2}, s4", f"s_add_u32 {sO2}, {sO2}, 8192",
             f"s_lshl_b32 s78, {sR6}, 7", f"s_add_u32 s78, s78, {FH + GOD}"]
    vFQ = V(31)
    def q_flag_issue(): return [f"v_mov_b32 {vFQ}, 0", f"buffer_load_dword {vFQ}, {vFQ}, {rWS}, s78 offen offset:4 sc1"]
    def pq_list(x, y):
        PB_ = V(176, 12)
        return [f"s_lshl3_add_u32 {x}, {sR6}, {sCG}", f"s_mul_i32 {x}, {x}, 10240", f"s_add_u32 {x}, {x}, {PQ}", f"s_lshl_b32 {y}, {sRG}, 11", f"s_add_u32 {y}, {y}, {x}"] + \
               [f"buffer_load_dwordx4 {PB_[4*h:4*h+4]}, {vo}, {rWS}, {y} offen offset:{h*1024} {LD}" for h in range(2)] + \
               [f"s_lshr_b32 {y}, {sRG}, 1", f"s_lshl_b32 {y}, {y}, 10", f"s_add_u32 {x}, {x}, {y}", f"s_and_b32 {y}, {sRG}, 1", f"s_lshl3_add_u32 {x}, {y}, {x}", f"s_add_u32 {x}, {x}, 8192",
                f"buffer_load_dwordx2 {PB_[8:10]}, {vo}, {rWS}, {x} offen {LD}"]
    sKQ = S(77)
    def poison(R4):
        if not OPT['sent']: return []
        lb = a.newlabel('PO')
        return [f"s_cmp_eq_u32 {sHI}, 1\ns_cbranch_scc1 {lb}\n" + "\n".join(f"v_mov_b32 {R4[i]}, -1" for i in range(4)) +
                f"\nbuffer_store_dwordx4 {R4}, {vo}, {rWS}, {sO1} offen {ST}\nbuffer_store_dwordx4 {R4}, {vo4}, {rWS}, {sO1} offen {ST}"
                f"\ns_mov_b32 exec_hi, 0\nbuffer_store_dwordx4 {R4}, {vo}, {rWS}, {sO2} offen {ST}\ns_mov_b32 exec_hi, -1\n{lb}:"]
    def b_reg(vm, i, tag, r=None, grp=None, ext=0, buf=None):
        b = i % 4 if buf is None else buf; r = r or rWS; grp = i if grp is None else grp
        if INP2[0] and OPT['nob'] == 1: r = rA
        if INP2[0] and OPT['nob'] == 2: return []
        l = [f"s_add_u32 s4, {sBo}, {grp*GS_ + ext}"]
        for j in range(5):
            if j < 4: l.append(f"buffer_load_dwordx4 {BR[b][j]}, {vo}, {r}, s4 offen offset:{j*1024} {LD}")
            else: l.append(f"buffer_load_dwordx4 {BR[b][j]}, {vo4}, {r}, s4 offen {LD}")
            vm.issue(tag)
        return l
    def b_row(vm, base, grp, row, extra=None, ext=0, hi3=False):
        l = [f"s_add_u32 s4, {base}, {grp*GS_ + ext}", f"s_add_u32 s5, {sLC}, {row*20480}"]
        if hi3: l += [f"s_add_u32 s4, s4, {sH2}", f"s_mul_i32 s6, {sRX}, 3", "s_add_u32 s5, s5, s6"]
        if extra: l += [f"s_add_u32 s4, s4, {sH2}", f"s_add_u32 s5, s5, {extra}"]
        l.append("s_mov_b32 m0, s5")
        if INP2[0] and OPT['nob'] == 2: return []
        for j in range(4):
            l.append(f"buffer_load_dwordx4 {vo}, {rWS}, s4 offen offset:{j*1024} {LD} lds"); vm.issue('BL')
        l.append("s_add_u32 m0, s5, 4096")
        l.append(f"buffer_load_dwordx4 {vo4}, {rWS}, s4 offen {LD} lds"); vm.issue('BL')
        return l
    def b_row_half(vm, k):
        l = [f"s_add_u32 s4, {sBg}, {GRP[GL[k]]*20480}", f"s_add_u32 s5, {sLC}, {LR[k]*20480}", f"s_add_u32 s4, s4, {sH2}", f"s_add_u32 m0, s5, {sH2}"]
        for j in range(3):
            l.append(f"buffer_load_dwordx4 {vo}, {rWS}, s4 offen offset:{j*1024} {LD} lds"); vm.issue('BL')
        return l
    sPF = S(8)
    def flag_store(need):
        a(f"s_mov_b32 {sNEED}, {need}")

    vw = [V(R0), V(R0 + 1)]; wa = [V(R0 + 2), V(R0 + 3), V(R0 + 4)]; vchk = V(R0 + 5)
    FB = [32, 72]
    XF = [[V(FB[b] + 4 * tt, 4) for tt in range(4)] for b in range(2)]
    WF = [[V(FB[b] + 16 + 4 * c, 4) for c in range(6)] for b in range(2)]
    ACC = [[V(112 + (c * 4 + tt) * 4, 4) for tt in range(4)] for c in range(6)]
    vm = VmTrack()
    a(f"s_mul_i32 {sT3}, {sID}, 192")
    touch_setup(pWG, pWU, 3456, sT3, sT3, 192)
    for l in burst(vm, *BS['p0']): a(l)
    a(f"s_bitcmp1_b32 {sWV}, 0")
    a(f"s_cselect_b32 {rW[0]}, {pWU[0]}, {pWG[0]}")
    a(f"s_cselect_b32 {rW[1]}, {pWU[1]}, {pWG[1]}")
    a(f"s_and_b32 {rW[1]}, {rW[1]}, 0xffff")
    a(f"s_mov_b32 {rW[2]}, {640*3456}")
    a(f"s_mov_b32 {rW[3]}, 0x20000")
    a(f"s_bfe_u32 {sT0}, {sWV}, 0x10001")
    a(f"s_lshl_b32 {sT1}, {sT0}, 1")
    for n in range(2):
        a(f"v_add_u32 {t0}, {64*n}, {lane}")
        a(f"v_mul_u32_u24 {t1}, 43, {t0}")
        a(f"v_lshrrev_b32 {t1}, 9, {t1}")
        a(f"v_mul_u32_u24 {t2}, 12, {t1}")
        a(f"v_sub_u32 {t2}, {t0}, {t2}")
        a(f"v_lshrrev_b32 {t3}, 2, {t2}")
        a(f"v_cmp_eq_u32 vcc, 1, {t3}")
        a(f"v_mov_b32 {t3}, {sT1}")
        a(f"v_mov_b32 {t4}, {sT0}")
        a(f"v_cndmask_b32 {t3}, {t3}, {t4}, vcc")
        a(f"v_xor_b32 {t2}, {t2}, {t3}")
        a(f"v_mul_u32_u24 {t1}, 3456, {t1}")
        a(f"v_lshl_add_u32 {vw[n]}, {t2}, 4, {t1}")
        if n: a(f"v_subrev_u32 {vw[n]}, 1024, {vw[n]}")
    a(f"s_lshr_b32 {sT0}, {sWV}, 1")
    a(f"s_mul_i32 {sWK}, {sT0}, {8*3456}")
    a(f"s_add_u32 {sWK}, {sWK}, {sT3}")
    a(f"s_mul_i32 {sMW}, {sT0}, 1536")
    a(f"s_and_b32 {sT1}, {sWV}, 1")
    a(f"s_mul_i32 {sT1}, {sT1}, 6144")
    a(f"s_add_u32 {sMW}, {sMW}, {sT1}")
    sW2 = S(54, 2)
    if OPT['swp']:
        a(f"s_mul_i32 {sT1}, {sTY}, {2*110592}"); a(f"s_add_u32 {sWK}, {sWK}, {sT1}"); a(f"s_lshl_b32 {sT1}, {sT1}, 1")
        a(f"s_sub_u32 {sW2[0]}, 110592, {sT1}"); a(f"s_add_u32 {sW2[1]}, {sT1}, 110592")
    def w_dma(step):
        l = [f"s_add_u32 m0, {sMW}, {WB + (step % 5) * 12288}"] + ([f"s_add_u32 {sWK}, {sWK}, {(110592 if step % 2 or not OPT['swp'] else (sW2[0] if step % 4 == 2 else sW2[1]))}"] if step else []) + [
             f"buffer_load_dwordx4 {vw[0]}, {rW}, {sWK} offen {OPT['wfl']} lds",
             "s_mov_b32 exec_hi, 0\n"
             f"buffer_load_dwordx4 {vw[1]}, {rW}, {sWK} offen offset:1024 {OPT['wfl']} lds\n"
             "s_mov_b32 exec_hi, -1"]
        vm.issue(('W', step)); vm.issue(('W', step))
        return l
    if OPT['sb1'] and not OPT['x0e']: a("s_barrier")
    for l in x_dma(vm, 0, 0) + x_dma(vm, 0, 1) + w_dma(0) + w_dma(1): a(l)
    x_addr_setup()
    a(f"v_lshl_add_u32 {t0}, {vqd}, 3, {vr}")
    a(f"v_mul_u32_u24 {t0}, 192, {t0}")
    a(f"v_add_u32 {t0}, {WB}, {t0}")
    a(f"v_and_b32 {t1}, 1, {vqd}")
    a(f"v_lshlrev_b32 {t2}, 5, {t1}")
    a(f"v_lshl_add_u32 {t2}, {vc}, 3, {t2}")
    a(f"s_lshl_b32 {sT0}, {sHI}, 7")
    a(f"v_add3_u32 {wa[0]}, {t0}, {t2}, {sT0}")
    a(f"v_xor_b32 {wa[1]}, 32, {wa[0]}")
    a(f"v_and_b32 {t2}, 2, {vc}")
    a(f"v_add_u32 {t2}, {sHI}, {t2}")
    a(f"v_xor_b32 {t2}, {t2}, {t1}")
    a(f"v_lshlrev_b32 {t2}, 4, {t2}")
    a(f"v_and_b32 {t3}, 1, {vc}")
    a(f"v_lshl_add_u32 {t2}, {t3}, 3, {t2}")
    a(f"v_add3_u32 {wa[2]}, {t0}, {t2}, 64")
    def w_reads(WFb, step):
        return [f"ds_read_b64_tr_b16 {WFb[m*3+i][2*rd:2*rd+2]}, {wa[i]} offset:{(step % 5) * 12288 + m * 6144 + rd * 768}"
                for m in range(2) for i in range(3) for rd in range(2)]
    def t2b_emit():
        if T2:
            for b0 in eval(OPT['t2b']):
                for l in t2_all(b0): a(l)
                vm.issue('T')
    if OPT['t2pos'] == 1:
        if OPT['sb2']: a("s_barrier")
        t2b_emit()
    if OPT['trim']:
        for l in p2_setup(): a(l)
    n = vm.wait_for(lambda t: t in (('X', 0), ('W', 0)))
    a(f"s_waitcnt vmcnt({n})")
    a("s_barrier")
    stamp(a, 1)
    for l in x_reads(XF[0], 0) + w_reads(WF[0], 0): a(l)
    if OPT['fill'] == 0:
        for l in x_dma(vm, 1, 0) + x_dma(vm, 1, 1) + w_dma(2): a(l)
        if OPT['t2pos'] == 2: t2b_emit()
    fq = []
    for st in range(2, 20):
        if st % 2 == 0:
            b = st // 2
            fq += [('X', b, 0, max(0, 2*(b-3)+1)), ('X', b, 1, max(0, 2*(b-3)+1))]
        fq.append(('W', st, 0, max(0, st - 5)))
    def ffn_loop():
        hq = None; LBT = []
        for j in range(20):
            cur, nxt = j & 1, (j & 1) ^ 1
            CHK = OPT['chk']
            NB = OPT['nobar']
            if j < NB:
                n = vm.wait_for(lambda t: t in (('X', (j + 1) // 2), ('W', j + 1)) or (j == CHK and t == 'chk') or (j == 16 and t == 'chk2') or (j == NB - 1 and t[0] in 'XW'))
                a(f"s_waitcnt vmcnt({n}) lgkmcnt(0)")
                if j == CHK: init_check(vchk, 128, True)
                if j == 16: init_check(vS2, 136, True)
                a("s_barrier")
            else:
                a("s_waitcnt lgkmcnt(0)")
            sstamp(a, j)
            mains = [f"v_mfma_f32_16x16x32_bf16 {ACC[c][tt]}, {WF[cur][c]}, {XF[cur][tt]}, {'0' if j == 0 else ACC[c][tt]}" for c in range(6) for tt in range(4)]
            pre = burst(vm, *BS[j]) if j in BS else []
            lblk = []
            if j < 19:
                lblk += x_reads(XF[nxt], j + 1) + w_reads(WF[nxt], j + 1)
                if OPT['fill']:
                    cnt = OPT['fill'] + (1 if j == 0 else 0)
                    while cnt and fq and fq[0][3] <= j:
                        it = fq.pop(0); cnt -= 1
                        lblk += x_dma(vm, it[1], it[2]) if it[0] == 'X' else w_dma(it[1])
                if j == 0 and not OPT['fill']: lblk += w_dma(3) + x_dma(vm, 2, 0) + x_dma(vm, 2, 1) + w_dma(4)
                xb = (j - 1) // 2 + 3 if j >= 1 else 99
                if xb <= 9 and not OPT['fill']: lblk += x_dma(vm, xb, (j - 1) % 2)
                if T2 and j in eval(OPT['t2f']): lblk += t2_one(*eval(OPT['t2f'])[j])
                if j == CHK - 2: lblk += init_check_issue(vchk); vm.issue('chk')
                if j + 5 <= 19 and not OPT['fill']: lblk += w_dma(j + 5)
                if j == 10 and not OPT['trim']: lblk += p2_setup()
                if j == OPT['pj']: lblk += poison(V(248, 4))
                if OPT['lbt'] and j == OPT['lbt']: LBT = [f"s_bfe_u32 s4, {sC8}, 0x10001", f"s_lshl3_add_u32 s4, s4, {sWV}", f"s_mul_i32 s4, s4, {65*128}", f"s_mul_i32 s5, {sCG}, {74*5120}",
                         "s_add_u32 s4, s4, s5", f"s_add_u32 s4, s4, {BP + 48*5120}", f"v_lshlrev_b32 v3, 7, {lane}", f"buffer_load_dword {tdum}, v3, {rWS}, s4 offen sc1"]
                else: LBT = []
                if j == CHK: hq = b_reg(VmTrack(), 0, 'B') + b_reg(VmTrack(), 1, 'B'); hq = [hq[0:3], hq[3:5], [hq[5]] + hq[6:8], hq[8:10], hq[10:12]]
                JJ = [CHK, CHK + 1, CHK + 2, 15, 18]
                if j in JJ:
                    q = JJ.index(j)
                    if not hq[q][0].startswith('s_'): lblk.append(f"s_add_u32 s4, {sBo}, {0 if q < 3 else GS_}")
                    lblk += hq[q]; vm.issue('B'); vm.issue('B')
                if j == 14: lblk += init_check_issue(vS2, 136); vm.issue('chk2')
                if j == 16: lblk += b_row(vm, sBg, GRP[GL[0]], LR[0], None, 0, True)
                if j == 17: lblk += b_row(vm, sBg, GRP[GL[2]], LR[2], sRX)
            else:
                if OPT['b23'] == 0: lblk += b_reg(vm, 2, 'B') + b_reg(vm, 3, 'B')
                if OPT['b23'] == 2: lblk += b_reg(vm, 2, 'B')
            if j < 19: lblk += LBT
            step_body(mains, lblk, pre)
    if OPT['two'] & 1:
        q0 = list(vm.q)
        a(f"s_cmp_eq_u32 {sHI}, 1"); a("s_cbranch_scc1 ffn_loop_HI")
        HALF[0] = 'lo'; ffn_loop(); a("s_branch ffn_loop_J"); a.label('ffn_loop_HI')
        vm.q = q0; HALF[0] = 'hi'; ffn_loop(); a.label('ffn_loop_J'); HALF[0] = None
    else: ffn_loop()
    stamp(a, 2)
    a(f"s_setprio {OPT['eprio']}")
    sN = S(82, 2)
    a(f"s_mov_b32 {sN[0]}, {NLOG2E:#x}")
    a(f"s_mov_b32 {sN[1]}, {NLOG2E:#x}")
    a(f"s_lshl_b32 {sT3}, {sRB}, 2")
    a(f"s_add_u32 {sT3}, {sT3}, {sRG}")
    a(f"s_mul_i32 {sT0}, {sT3}, 74")
    a(f"s_mul_i32 {sT1}, {sID}, 3")
    a(f"s_add_u32 {sT0}, {sT0}, {sT1}")
    a(f"s_lshl_b32 {sT0}, {sT0}, 12")
    a(f"s_lshl_b32 {sT1}, {sHI}, 13")
    a(f"s_add_u32 {sT1}, {sT0}, {sT1}")
    a(f"s_lshl_b32 {sT2}, {sHI}, 9")
    a(f"s_add_u32 {sT2}, {sT2}, {sT0}")
    a(f"s_add_u32 {sT2}, {sT2}, 4096")
    a(f"s_lshl_b32 {sFLAG}, {sT3}, 7")
    a(f"s_add_u32 {sFLAG}, {sFLAG}, {FH}")
    a(f"v_lshlrev_b32 {t0}, 4, {lane}")
    a(f"v_and_b32 {t1}, 31, {lane}")
    a(f"v_lshlrev_b32 {t1}, 4, {t1}")
    a(f"v_lshrrev_b32 {t2}, 5, {lane}")
    a(f"v_lshl_add_u32 {t1}, {t2}, 10, {t1}")
    tmp = [V(FB[1] + 4 * i, 4) for i in range(2)]
    outs = [V(FB[1] + 8 + 4 * i, 4) for i in range(6)]
    cnt_ = [0]
    def silu2(G0, U0, G1, U1, o):
        GU = ((G0, U0, tmp[0]), (G1, U1, tmp[1]))
        pk = cnt_[0] >= OPT['npk']; cnt_[0] += 1
        for G, U, T in GU:
            if pk:
                for h in range(2): a(f"v_pk_mul_f32 {T[2*h:2*h+2]}, {G[2*h:2*h+2]}, {sN}")
            else:
                for k in range(4): a(f"v_mul_f32 {T[k]}, {sN[0]}, {G[k]}")
        for G, U, T in GU:
            for k in range(4): a(f"v_exp_f32 {T[k]}, {T[k]}")
        for G, U, T in GU:
            if pk:
                for h in range(2): a(f"v_pk_mul_f32 {G[2*h:2*h+2]}, {G[2*h:2*h+2]}, {U[2*h:2*h+2]}")
            else:
                for k in range(4): a(f"v_mul_f32 {G[k]}, {G[k]}, {U[k]}")
        for G, U, T in GU:
            if pk:
                for h in range(2): a(f"v_pk_add_f32 {T[2*h:2*h+2]}, {T[2*h:2*h+2]}, 1.0 op_sel_hi:[1,0]")
            else:
                for k in range(4): a(f"v_add_f32 {T[k]}, 1.0, {T[k]}")
        for G, U, T in GU:
            for k in range(4): a(f"v_rcp_f32 {T[k]}, {T[k]}")
        for G, U, T in GU:
            if pk:
                for h in range(2): a(f"v_pk_mul_f32 {G[2*h:2*h+2]}, {G[2*h:2*h+2]}, {T[2*h:2*h+2]}")
            else:
                for k in range(4): a(f"v_mul_f32 {G[k]}, {G[k]}, {T[k]}")
        for q, (G, U, T) in enumerate(GU):
            for h in range(2): a(f"v_cvt_pk_bf16_f32 {o[2*q+h]}, {G[2*h]}, {G[2*h+1]}")
    for tt in range(4):
        o = outs[tt]
        silu2(ACC[0][tt], ACC[3][tt], ACC[1][tt], ACC[4][tt], o)
        a(f"buffer_store_dwordx4 {o}, {t0}, {rWS}, {sT1} offen offset:{tt*1024} {ST}")
    for l in q_flag_issue(): a(l)
    for tp in range(2):
        o = outs[4 + tp]
        silu2(ACC[2][2*tp], ACC[5][2*tp], ACC[2][2*tp+1], ACC[5][2*tp+1], o)
        a(f"v_permlane32_swap_b32 {o[0]}, {o[2]}")
        a(f"v_permlane32_swap_b32 {o[1]}, {o[3]}")
        a(f"buffer_store_dwordx4 {o}, {t1}, {rWS}, {sT2} offen offset:{tp*2048} {ST}")
    flag_store(35)
    a("s_waitcnt vmcnt(2)")
    a(f"s_mov_b32 {sPF}, 0"); a(f"s_mov_b32 {sKQ}, 0")
    a("s_branch P2")

    for l in OOL: a(l)
    OOL.clear()
    a.label('R_QKV')
    vm = VmTrack()
    vw = [V(R0), V(R0 + 1), V(R0 + 2)]; wa = V(R0 + 3); pa = V(R0 + 4); vchk = V(R0 + 5); vgw = V(R0 + 6)
    FB = [32, 68]
    XF = [[V(FB[b] + 4 * tt, 4) for tt in range(4)] for b in range(2)]
    WF = [[V(FB[b] + 16 + 4 * c, 4) for c in range(5)] for b in range(2)]
    ACC = [V(104 + 20 * tt, 20) for tt in range(4)]
    pf4 = [V(32 + 4 * i, 4) for i in range(9)] + [V(196, 4)]
    pf2 = [V(200, 2), V(202, 2), V(204, 2), V(206, 2), V(248, 2)]
    PF = [[pf4[2 * t], pf4[2 * t + 1], pf2[t]] for t in range(5)]
    WP = V(184, 4); GWF = V(188, 4); GA = V(192, 4)
    sC0, sC1, sLo, sHi2, sISQ, sHB, sGD = [S(77 + i) for i in range(7)]
    PHW = 135168; PHB = 0; VVB = 90112; PS = 352
    srd(a, rW, pQKV, 640 * 3840)
    srd(a, rA, pPHI, 32 * 800)
    a(f"s_lshl_b32 {sID}, {sT0}, 1"); a(f"s_add_u32 {sID}, {sID}, {sC8}")
    a(f"s_mul_i32 {sC0}, {sID}, 160")
    a(f"s_add_u32 {sC1}, {sC0}, 2560")
    a(f"s_add_u32 {sC0}, {sC0}, 1280")
    a(f"s_lshl_b32 {sHB}, {sID}, 2")
    a(f"s_mul_i32 {sT1}, {sT0}, 320")
    a(f"s_add_u32 {sT2}, {sT1}, 160")
    a(f"s_lshl_b32 {sT3}, {sT0}, 3")
    a(f"s_cmp_eq_u32 {sC8}, 2")
    a(f"s_cselect_b32 {sC0}, {sT1}, {sC0}")
    a(f"s_cselect_b32 {sC1}, {sT2}, {sC1}")
    a(f"s_cselect_b32 {sHB}, {sT3}, {sHB}")
    a(f"s_cselect_b32 {sISQ}, 1, 0")
    a(f"s_bitcmp1_b32 {sWV}, 0")
    a(f"s_cselect_b32 {sLo}, {sC1}, {sC0}")
    a(f"s_cselect_b32 {sHi2}, {sC0}, {sC1}")
    a(f"s_sub_u32 {sHi2}, {sHi2}, 160")
    touch_setup(pQKV, pQKV, 3840, sC0, sC1, 160)
    for l in burst(vm, *BS['p0']): a(l)
    for n in range(3):
        a(f"v_add_u32 {t0}, {64*n}, {lane}")
        a(f"v_mul_u32_u24 {t1}, 205, {t0}")
        a(f"v_lshrrev_b32 {t1}, 12, {t1}")
        a(f"v_mul_u32_u24 {t2}, 20, {t1}")
        a(f"v_sub_u32 {t2}, {t0}, {t2}")
        a(f"v_cmp_le_u32 vcc, 10, {t2}")
        a(f"v_mov_b32 {t3}, {sLo}")
        a(f"v_mov_b32 {t4}, {sHi2}")
        a(f"v_cndmask_b32 {t3}, {t3}, {t4}, vcc")
        a(f"v_mul_u32_u24 {t1}, 3840, {t1}")
        a(f"v_lshl_add_u32 {t1}, {t2}, 4, {t1}")
        a(f"v_add_u32 {vw[n]}, {t1}, {t3}")
        if n: a(f"v_subrev_u32 {vw[n]}, {1024*n}, {vw[n]}")
    a(f"s_mul_i32 {sWK}, {sWV}, {8*3840}")
    a(f"s_mul_i32 {sMW}, {sWV}, 2560")
    sW3 = [S(83), S(9)]
    if OPT['swp']:
        a(f"s_mul_i32 {sT1}, {sTY}, 245760"); a(f"s_add_u32 {sWK}, {sWK}, {sT1}"); a(f"s_lshl_b32 {sT1}, {sT1}, 1")
        a(f"s_sub_u32 {sW3[0]}, 245760, {sT1}"); a(f"s_add_u32 {sW3[1]}, {sT1}, 245760")
    def w_dma2(blk):
        l = [f"s_add_u32 m0, {sMW}, {WB + (blk % 3) * 20480}"] + ([f"s_add_u32 {sWK}, {sWK}, {(sW3[0] if blk % 2 else sW3[1]) if OPT['swp'] else 245760}"] if blk else []) + [
             f"buffer_load_dwordx4 {vw[0]}, {rW}, {sWK} offen {OPT['wfl']} lds",
             f"buffer_load_dwordx4 {vw[1]}, {rW}, {sWK} offen offset:1024 {OPT['wfl']} lds",
             "s_mov_b32 exec_hi, 0\n"
             f"buffer_load_dwordx4 {vw[2]}, {rW}, {sWK} offen offset:2048 {OPT['wfl']} lds\n"
             "s_mov_b32 exec_hi, -1"]
        for _ in range(3): vm.issue(('W', blk))
        return l
    a(f"v_lshlrev_b32 {t0}, 4, {tid}")
    a(f"s_mul_i32 {sT0}, {sHB}, 800")
    a(f"v_add_u32 {t0}, {sT0}, {t0}")
    a(f"buffer_load_dwordx4 {WP}, {t0}, {rA}, 0 offen"); vm.issue(('P', 0))
    if OPT['sb1'] and not OPT['x0e']: a("s_barrier")
    for l in x_dma(vm, 0, 0) + x_dma(vm, 0, 1) + w_dma2(0): a(l)
    x_addr_setup()
    a(f"v_lshl_add_u32 {t0}, {vqd}, 3, {vr}")
    a(f"v_mul_u32_u24 {t0}, 320, {t0}")
    a(f"v_and_b32 {t1}, 1, {vqd}")
    a(f"v_xor_b32 {t1}, {sHI}, {t1}")
    a(f"v_mul_u32_u24 {t1}, 160, {t1}")
    a(f"v_mul_u32_u24 {t2}, 40, {vc}")
    a(f"v_add3_u32 {t0}, {t0}, {t1}, {t2}")
    a(f"v_add_u32 {wa}, {WB}, {t0}")
    a(f"s_and_b32 {sT0}, {sHI}, {sISQ}")
    a(f"s_mul_i32 {sT0}, {sT0}, 3200")
    a(f"s_add_u32 {sT0}, {sT0}, {PHW}")
    a(f"v_mul_u32_u24 {t0}, 800, {vqd}")
    a(f"v_add_u32 {t0}, {sT0}, {t0}")
    a(f"v_mov_b32 {t1}, {ZERO}")
    a(f"v_cmp_eq_u32 vcc, {vc}, {vqd}")
    a(f"v_cndmask_b32 {t0}, {t1}, {t0}, vcc")
    a(f"v_mul_u32_u24 {t1}, 40, {vr}")
    a(f"v_add_u32 {pa}, {t0}, {t1}")
    def w_reads2(WFb, step):
        blk, kk = step // 2, step % 2
        return [f"ds_read_b64_tr_b16 {WFb[t][2*rd:2*rd+2]}, {wa} offset:{(blk % 3) * 20480 + kk * 10240 + rd * 1280 + 8 * t}" for t in range(5) for rd in range(2)]
    def t2b_emit():
        if T2:
            for b0 in eval(OPT['t2b']):
                for l in t2_all(b0): a(l)
                vm.issue('T')
    if OPT['t2pos'] == 1:
        if OPT['sb2']: a("s_barrier")
        t2b_emit()
    if OPT['trim']:
        for l in p2_setup(): a(l)
    n = vm.wait_for(lambda t: t in (('X', 0), ('W', 0)))
    a(f"s_waitcnt vmcnt({n})")
    a("s_barrier")
    stamp(a, 1)
    for l in x_reads(XF[0], 0) + w_reads2(WF[0], 0): a(l)
    if OPT['fill'] == 0:
        for l in x_dma(vm, 1, 0) + x_dma(vm, 1, 1) + w_dma2(1): a(l)
        if OPT['t2pos'] == 2: t2b_emit()
    fq = []
    for b in range(1, 10):
        fq += [('X', b, max(0, 2*(b-3)+1)), ('W', b, max(0, 2*(b-3)+1))]
    def qkv_loop():
        hq = None; LBT = []
        for j in range(20):
            cur, nxt = j & 1, (j & 1) ^ 1
            if j % 2 == 1:
                if j < 19:
                    n = vm.wait_for(lambda t: t in (('X', (j + 1) // 2), ('W', (j + 1) // 2)) or (j == 17 and t == 'chk'))
                    a(f"s_waitcnt vmcnt({n}) lgkmcnt(0)")
                else: a("s_waitcnt lgkmcnt(0)")
                if j == 17: init_check(vchk, 128, True)
                a("s_barrier")
            else:
                a("s_waitcnt lgkmcnt(0)")
                if OPT['pp'] or OPT['qbar']: a("s_barrier")
            sstamp(a, j)
            mains = [f"v_mfma_f32_16x16x32_bf16 {ACC[tt][4*t:4*t+4]}, {WF[cur][t]}, {XF[cur][tt]}, {'0' if j == 0 else ACC[tt][4*t:4*t+4]}" for t in range(5) for tt in range(4)]
            pre = burst(vm, *BS[j]) if j in BS else []
            lblk = []
            if j < 19:
                lblk += x_reads(XF[nxt], j + 1) + w_reads2(WF[nxt], j + 1)
                if OPT['fill']:
                    cnt = 2 if j in (0, 1, 3, 5) else 1
                    while cnt and fq and fq[0][2] <= j:
                        it = fq.pop(0); cnt -= 1
                        lblk += x_dma(vm, it[1], 0) + x_dma(vm, it[1], 1) if it[0] == 'X' else w_dma2(it[1])
                if j == 0 and not OPT['fill']: lblk += x_dma(vm, 2, 0) + x_dma(vm, 2, 1) + w_dma2(2)
                xb = (j - 1) // 2 + 3 if j >= 1 else 99
                if xb <= 9 and not OPT['fill']:
                    if j % 2 == 1: lblk += x_dma(vm, xb, 0) + x_dma(vm, xb, 1)
                    else: lblk += w_dma2(xb)
                if T2 and j in eval(OPT['t2q']): lblk += t2_one(*eval(OPT['t2q'])[j])
                if OPT['tw'] and j == 2:
                    sh = OPT['tw']; npg = (0x1250000 >> sh) + 1
                    lanes = min(64, -(-npg // 32)); ninst = -(-npg // (32 * lanes))
                    body = f"s_lshl3_add_u32 s4, {sR4}, {sWV}\ns_mul_i32 s4, s4, {lanes}\nv_add_u32 v3, s4, {lane}\nv_lshlrev_b32 v3, {sh}, v3\ns_mov_b64 exec, {hex((1 << lanes) - 1) if lanes < 32 else -1}\n"
                    for i in range(ninst):
                        body += f"buffer_load_dword {tdum}, v3, {rWS}, 0 offen offset:3968\nv_add_u32 v3, {32*lanes << sh}, v3\n"
                    body += "s_mov_b64 exec, -1\n"
                    OOL.append("TWo:\n" + body + "s_branch TWb")
                    lblk += [f"s_cmp_eq_u32 {sC8}, 2\ns_cbranch_scc1 TWo\nTWb:"]
                if j == 15: lblk += init_check_issue(vchk); vm.issue('chk')
                if j == 17:
                    lblk += [f"v_lshlrev_b32 {t0}, 4, {tid}", f"v_add_u32 {t0}, {PHW}, {t0}", f"ds_write_b128 {t0}, {WP}"]
                if j == 10 and not OPT['trim']: lblk += p2_setup()
                if j == 17: lblk += poison(V(208, 4))

            else:
                for t in range(5):
                    for s in range(3):
                        for r_ in range(2 if s < 2 else 1):
                            lblk.append(f"ds_read_b64_tr_b16 {PF[t][s][2*r_:2*r_+2]}, {pa} offset:{s*320 + r_*160 + t*8}")
            step_body(mains, lblk, pre)
    if OPT['two'] & 2:
        q0 = list(vm.q)
        a(f"s_cmp_eq_u32 {sHI}, 1"); a("s_cbranch_scc1 qkv_loop_HI")
        HALF[0] = 'lo'; qkv_loop(); a("s_branch qkv_loop_J"); a.label('qkv_loop_HI')
        vm.q = q0; HALF[0] = 'hi'; qkv_loop(); a.label('qkv_loop_J'); HALF[0] = None
    else: qkv_loop()
    stamp(a, 2)
    a("s_setprio 2")
    QB = V(68, 40); P = V(108, 20); E = V(128, 40); O = V(168, 20); M = V(250, 4); T = V(188, 4); ONE = V(192, 2)
    sCNT = S(8); sOUT = S(9)
    def cvt_tile(dst, tt):
        for i in range(10): a(f"v_cvt_pk_bf16_f32 {dst[i]}, {ACC[tt][2*i]}, {ACC[tt][2*i+1]}")
    def pk_list(q, P=P):
        l = []
        for s_ in range(3):
            for t in range(5):
                d = P[4*t:4*t+4]
                if s_ < 2: l.append(f"v_mfma_f32_16x16x32_bf16 {d}, {PF[t][s_]}, {q[4*s_:4*s_+4]}, {'0' if s_ == 0 else d}")
                else: l.append(f"v_mfma_f32_16x16x16_bf16 {d}, {PF[t][s_]}, {q[8:10]}, {d}")
        return l
    a(f"s_lshl_b32 {sT3}, {sRB}, 2")
    a(f"s_add_u32 {sT3}, {sT3}, {sRG}")
    a(f"s_cmp_eq_u32 {sISQ}, 0")
    a("s_cbranch_scc1 R_KV")
    for tt in range(4): cvt_tile(QB[10*tt:10*tt+10], tt)
    a("s_waitcnt lgkmcnt(0)")
    PT = [V(108 + 20*i, 20) for i in range(4)]
    a(f"s_lshr_b32 {sT1}, {sHB}, 2")
    a(f"s_add_u32 {sT1}, {sT1}, {sHI}")
    a(f"s_lshl_b32 {sOUT}, {sT3}, 3")
    a(f"s_add_u32 {sOUT}, {sOUT}, {sT1}")
    a(f"s_mul_i32 {sOUT}, {sOUT}, 10240")
    a(f"s_add_u32 {sOUT}, {sOUT}, {PQ}")
    a(f"s_add_u32 {sT0}, {sOUT}, 8192")
    a(f"s_lshl_b32 {sFLAG}, {sT3}, 7")
    a(f"s_add_u32 {sFLAG}, {sFLAG}, {FH + 4}")
    QO = [V(208 + 8*i, 8) for i in range(4)]; QT = [V(240, 4), V(244, 4)]
    def q_out(tt):
        l = [f"v_cvt_pk_bf16_f32 {QO[tt][i] if i < 8 else QT[tt//2][2*(tt%2) + i - 8]}, {PT[tt][2*i]}, {PT[tt][2*i+1]}" for i in range(10)]
        for h in range(2): l.append(f"buffer_store_dwordx4 {QO[tt][4*h:4*h+4]}, {vo if tt < 2 else vo4}, {rWS}, {sOUT} offen offset:{(tt%2)*2048 + h*1024} {ST}")
        if tt % 2: l.append(f"buffer_store_dwordx4 {QT[tt//2]}, {vo}, {rWS}, {sT0} offen offset:{(tt//2)*1024} {ST}")
        return l
    for tt in range(4):
        side = q_out(tt - 1) if tt else []
        for i, l in enumerate(pk_list(QB[10*tt:10*tt+10], PT[tt])):
            a(l)
            if i >= 2 and side: a(side.pop(0))
    for l in q_out(3): a(l)
    if OPT['gq']:
        GW = [V(72 + 4*i, 4) for i in range(5)]
        GX = [[V(96 + (g*5 + i)*4, 4) for i in range(5)] for g in range(2)]
        GA = [V(92), V(93)]
        srd(a, rW, pGW, 1280)
        a(f"v_lshlrev_b32 {t0}, 4, {vl15}")
        for i in range(5): a(f"buffer_load_dwordx4 {GW[i]}, {t0}, {rW}, 0 offen offset:{i*256}")
        a(f"v_mul_u32_u24 {t1}, 1280, {vqd}"); a(f"v_add_u32 {t0}, {t0}, {t1}")
        a(f"s_lshr_b32 {sT3}, {sHB}, 3"); a(f"s_lshl2_add_u32 {sT3}, {sRB}, {sT3}")
        a(f"s_lshl3_add_u32 {sT1}, {sT3}, {sWV}")
        a(f"s_mul_i32 {sT2}, {sT1}, {8*1280}")
        for g in range(2):
            for i in range(5): a(f"buffer_load_dwordx4 {GX[g][i]}, {t0}, {rX}, {sT2} offen offset:{i*256}")
            if g == 0: a(f"s_add_u32 {sT2}, {sT2}, {4*1280}")
        for g in range(2): a(f"v_mov_b32 {GA[g]}, 0")
        arrive(a, sFLAG, 7, t2, t3, 15)
        for i in range(5):
            for k in range(4):
                for g in range(2): a(f"v_dot2c_f32_bf16 {GA[g]}, {GX[g][i][k]}, {GW[i][k]}")
        for sh in (8, 4, 2, 1):
            for g in range(2): a(f"v_add_f32_dpp {GA[g]}, {GA[g]}, {GA[g]} row_ror:{sh} row_mask:0xf bank_mask:0xf")
        a(f"v_cmp_eq_u32 vcc, 1, {vl15}"); a(f"v_cndmask_b32 {t2}, {GA[0]}, {GA[1]}, vcc")
        a(f"v_mul_f32 {t2}, {LOG2E:#x}, {t2}"); a(f"v_min_f32 {t2}, 0x42a00000, {t2}"); a(f"v_exp_f32 {t2}, {t2}")
        a(f"v_lshl_add_u32 {t0}, {vl15}, 2, {vqd}"); a(f"v_lshlrev_b32 {t3}, 2, {t0}")
        a(f"s_lshl_b32 {sT2}, {sT1}, 5"); a(f"s_add_u32 {sT2}, {sT2}, {GOFF}")
        a("s_mov_b32 exec_lo, 0x00030003"); a("s_mov_b32 exec_hi, 0x00030003")
        a(f"buffer_store_dword {t2}, {t3}, {rWS}, {sT2} offen {ST}")
        a("s_mov_b64 exec, -1")
        a(f"s_lshl_b32 {sFLAG}, {sT3}, 7"); a(f"s_add_u32 {sFLAG}, {sFLAG}, {FH + 12}")
    flag_store(7)
    a(f"v_mov_b32 {vFQ}, 0")
    a(f"s_mov_b32 {sPF}, 6"); a(f"s_mov_b32 {sKQ}, 0")
    a("s_branch P2")
    a.label('R_KV')
    a(f"s_lshl_b32 {sT1}, {sRG}, 1"); a(f"s_add_u32 {sT0}, {sT1}, 1"); a(f"s_mul_i32 {sT0}, {sT0}, {32*PS}")
    a(f"v_add_u32 {t0}, {sT0}, {vo}")
    a(f"s_mov_b32 {sCNT}, 2")
    a(f"s_cmp_eq_u32 {sHI}, 1")
    a("s_cbranch_scc1 R_V")
    if OPT['trim']:
        cvt_tile(QB[0:10], 0)
        cvt_tile(QB[20:30], 2); cvt_tile(QB[30:40], 3)
        a("s_waitcnt lgkmcnt(0)")
        for i in range(5): a(f"ds_write_b128 {t0}, {QB[20+4*i:24+4*i]} offset:{i*1024}")
        cv = [f"v_cvt_pk_bf16_f32 {QB[10+i]}, {ACC[1][2*i]}, {ACC[1][2*i+1]}" for i in range(10)]
        a(cv.pop(0)); a(cv.pop(0))
        for i, l in enumerate(pk_list(QB[0:10])):
            a(l)
            if cv: a(cv.pop(0))
            if i == 8: a("s_waitcnt lgkmcnt(0)"); a("s_barrier")
    else:
        cvt_tile(QB[0:10], 0)
        cvt_tile(QB[20:30], 2); cvt_tile(QB[30:40], 3)
        for i in range(5): a(f"ds_write_b128 {t0}, {QB[20+4*i:24+4*i]} offset:{i*1024}")
        cvt_tile(QB[10:20], 1)
        a("s_waitcnt lgkmcnt(0)")
        a("s_barrier")
        for l in pk_list(QB[0:10]): a(l)
    a("s_branch R_KV2")
    a.label('R_V')
    VBt = {3: V(88, 10), 0: V(98, 10), 1: V(168, 10), 2: V(178, 10)}
    for tt in (3, 0, 1, 2): cvt_tile(VBt[tt], tt)
    a(f"s_mul_i32 {sT2}, {sRG}, {64*176}")
    a(f"s_add_u32 {sT2}, {sT2}, {VVB}")
    a(f"v_mul_u32_u24 {t2}, 176, {vl15}")
    a(f"v_add_u32 {t1}, {sT2}, {t2}")
    a(f"v_mul_u32_u24 {t3}, 40, {vqd}")
    a(f"v_add_u32 {t2}, {t1}, {t3}")
    a(f"v_mov_b32 {ONE[0]}, 0x3f80")
    a(f"v_mov_b32 {ONE[1]}, 0")
    a("s_barrier")
    for i in range(5): a(f"ds_read_b128 {QB[4*i:4*i+4]}, {t0} offset:{i*1024}")
    side = []
    for tt in (3, 0, 1, 2):
        for i in range(5): side.append(f"ds_write_b64 {t2}, {VBt[tt][2*i:2*i+2]} offset:{tt*2816 + 8*i}")
        side.append(f"ds_write_b64 {t1}, {ONE} offset:{tt*2816 + 160}")
    for i in range(9): a(side.pop(0))
    a("s_waitcnt lgkmcnt(9)")
    for l in pk_list(QB[0:10]): a(l); a(side.pop(0))
    a.label('R_KV2')
    a(f"s_add_u32 {sT1}, {sT1}, {sHI}"); a(f"s_mul_i32 {sT1}, {sT1}, {32*PS}")
    a(f"v_mul_u32_u24 {t4}, {PS}, {vl15}")
    a(f"v_mul_u32_u24 {t3}, 80, {vqd}")
    a(f"v_add3_u32 {t4}, {t4}, {t3}, {sT1}")
    stamp(a, 12)
    for u in range(2):
        if u == 0:
            bl = b_reg(vm, 0, 'B') + b_reg(vm, 1, 'B'); pl = pk_list(QB[10:20])
            sd = [pl[i] + ("\n" + bl[i] if i < len(bl) else "") for i in range(15)]
        else:
            if OPT['kf']:
                for l in q_flag_issue(): a(l)
            sd = b_reg(vm, 2, 'B') + b_reg(vm, 3, 'B')
        if OPT['ksp']:
            b_ = Asm()
            softmax_unit(b_, P, E, M, T, O, (pl if u == 0 else []) + ["s_waitcnt lgkmcnt(0)"])
            ld = bl if u == 0 else sd
            ins = [x.text for x in b_.ins]; step_ = len(ins) // 11; q_ = list(ld)
            for n_, x in enumerate(ins):
                a(x)
                if n_ % step_ == step_ - 1 and q_:
                    if q_[0].startswith('s_'): a(q_.pop(0))
                    a(q_.pop(0))
            for x in q_: a(x)
        else: softmax_unit(a, P, E, M, T, O, sd + ["s_waitcnt lgkmcnt(0)"])
        for s_ in range(5): a(f"ds_write_b128 {t4}, {O[4*s_:4*s_+4]} offset:{PHB + u*16*PS + 16*s_}")
    a(f"v_lshl_add_u32 {t0}, {vqd}, 2, {vr}")
    a(f"v_mul_u32_u24 {t1}, {PS}, {t0}")
    a(f"s_mul_i32 {sT0}, {sRG}, 80")
    a(f"v_lshl_add_u32 {t1}, {vc}, 3, {t1}")
    a(f"v_add_u32 {t1}, {sT0}, {t1}")
    a(f"v_add_u32 {t2}, {128*PS}, {t1}")
    a(f"v_mul_u32_u24 {t0}, 176, {t0}")
    a(f"s_mul_i32 {sT0}, {sRG}, 40")
    a(f"s_mul_i32 {sT1}, {sHI}, 24")
    a(f"s_add_u32 {sT0}, {sT0}, {sT1}")
    a(f"v_lshl_add_u32 {t3}, {vc}, 3, {sT0}")
    a(f"v_mul_u32_u24 {t4}, {sHI}, {vc}")
    a(f"v_cmp_lt_u32 vcc, 1, {t4}")
    a(f"v_mov_b32 {t4}, 160")
    a(f"v_cndmask_b32 {t3}, {t3}, {t4}, vcc")
    a(f"v_add_u32 {t3}, {VVB}, {t3}")
    a(f"v_add_u32 {t3}, {t0}, {t3}")
    stamp(a, 13)
    a("s_waitcnt lgkmcnt(0)")
    a("s_barrier")
    stamp(a, 14)
    a(f"s_lshl_b32 {sFLAG}, {sID}, 7"); a(f"s_add_u32 {sFLAG}, {sFLAG}, {FK}")
    def k_hint():
        a("v_mov_b32 v29, 1"); a("v_mov_b32 v11, 0")
        a(f"s_cmp_lg_u32 {sWV}, 7"); a("s_cbranch_scc1 KH1")
        a("s_mov_b64 exec, 1"); a(f"buffer_atomic_add v29, v11, {rWS}, {sFLAG} offen sc0 sc1"); a("s_mov_b64 exec, -1")
        a.label('KH1')
    if OPT['kf']:
        a("s_waitcnt vmcnt(10)")
        a(f"v_readfirstlane_b32 {sKQ}, {vFQ}")
        a(f"s_cmp_eq_u32 {sHI}, 1"); a(f"s_cselect_b32 {sKQ}, 0, {sKQ}")
        if OPT['kf'] & 4: a(f"s_mov_b32 {sKQ}, 0")
        a(f"s_cmp_eq_u32 {sKQ}, 0"); a("s_cbranch_scc1 KF0")
        for l in pq_list('s4', 's5'): a(l)
        a.label('KF0')
    if OPT['kh'] == 0: k_hint()
    if not OPT['kf']:
        for l in q_flag_issue(): a(l)
    KA = [[V(72 + (b*4 + f)*4, 4) for f in range(4)] for b in range(3)]
    KD = [V(128 + 4*f, 4) for f in range(3)]
    def kv_reads(b, s):
        l = []
        for rd in range(2):
            l.append(f"ds_read_b64_tr_b16 {KA[b][3][2*rd:2*rd+2]}, {t3} offset:{s*5632 + rd*2816}")
        for f in range(3):
            for rd in range(2):
                l.append(f"ds_read_b64_tr_b16 {KA[b][f][2*rd:2*rd+2]}, {t1 if s < 4 else t2} offset:{(s % 4)*32*PS + rd*16*PS + f*32}")
        return l
    allr = [l for s in range(8) for l in kv_reads(s % 3, s)]
    pos = 0
    for s in range(8):
        for f in range(3):
            needr = s * 8 + 2 + 2 * (f + 1)
            lim = min(len(allr), needr + 12, (s + 2) * 8 + (2 + 2 * f if False else 0) + 8 - 8 + 0) if False else min(len(allr), needr + 12)
            lim = min(lim, (s + 3) * 8)
            while pos < lim: a(allr[pos]); pos += 1
            a(f"s_waitcnt lgkmcnt({pos - needr})")
            a(f"v_mfma_f32_16x16x32_bf16 {KD[f]}, {KA[s%3][f]}, {KA[s%3][3]}, {'0' if s == 0 else KD[f]}")
    stamp(a, 15)
    a(f"s_add_u32 {sT0}, {sHB}, {sRG}")
    a(f"s_lshl_b32 {sT0}, {sT0}, 1")
    a(f"s_add_u32 {sT0}, {sT0}, {sHI}")
    a(f"s_mul_i32 {sT0}, {sT0}, 3072")
    a(f"s_add_u32 {sT0}, {sT0}, {KVACC}")
    if OPT['kh'] == 1: k_hint()
    def k_go(n):
        a(f"s_cmp_lg_u32 {sWV}, 7"); a("s_cbranch_scc1 KH2")
        a(f"s_waitcnt vmcnt({n})")
        a("v_cmp_eq_u32 vcc, 7, v29"); a(f"s_add_u32 s4, {sFLAG}, {GOD}"); a("s_and_b64 exec, vcc, 1")
        a(f"buffer_store_dword v29, v11, {rWS}, s4 offen sc1"); a("s_mov_b64 exec, -1")
        a.label('KH2')
    if OPT['kh'] == 0: k_go(0)
    a(f"v_lshlrev_b32 {t2}, 2, {lane}")
    a(f"v_cmp_eq_u32 vcc, 15, {vl15}")
    for f in range(3):
        for j in range(4): a(f"v_cndmask_b32 {KD[f][j]}, {KD[f][j]}, 1.0, vcc")
    for f in range(3):
        if f == 2: a("s_mov_b32 exec_hi, 0")
        for j in range(4):
            a(f"buffer_atomic_add_f32 {KD[f][j]}, {t2}, {rWS}, {sT0} offen offset:{f*1024 + j*256} {OPT['atf']}")
    a("s_mov_b32 exec_hi, -1")
    if OPT['kh'] == 1: k_go(12)
    a("s_waitcnt vmcnt(12)")
    flag_store(7 if OPT['kh'] == 2 else -1)
    a(f"s_mov_b32 {sPF}, 4")
    a("s_branch P2")

    for l in OOL: a(l)
    OOL.clear()
    a.label('R_SPARE')
    sSP, sU, sSO, sST = S(77), S(78), S(79), S(80)
    va = Alloc('v', 176, 250)
    vf = [va() for _ in range(5)]; vat = [va() for _ in range(5)]
    rf = [va() for _ in range(5)]; rat = [va(), va()]
    vst = va(); vst4 = va()
    FR = [[va(4) for _ in range(5)] for b in range(2)]
    Z4 = va(4)
    NT = OPT['spnt']
    if T2:
        for b0 in eval(OPT['t2b']):
            for l in t2_all(b0): a(l)
    srd(a, rA, pWD, 1728 * 1280)
    srd(a, rB, pWO, 640 * 1280)
    a(f"s_lshr_b32 {sSP}, {sT0}, 1")
    a(f"s_lshl_b32 {sSP}, {sSP}, 3")
    a(f"s_add_u32 {sSP}, {sSP}, {sRB}")
    a(f"s_lshl_b32 {sT0}, {sWV}, 2")
    a(f"s_mul_i32 {sT1}, {sWV}, 20")
    for n in range(5):
        a(f"v_add_u32 {t0}, {64*n}, {lane}")
        a(f"v_mul_u32_u24 {t1}, 205, {t0}")
        a(f"v_lshrrev_b32 {t1}, 14, {t1}")
        a(f"v_mul_u32_u24 {t2}, 80, {t1}")
        a(f"v_sub_u32 {t2}, {t0}, {t2}")
        a(f"v_add_u32 {t1}, {sT0}, {t1}")
        a(f"v_and_b32 {t3}, 7, {t1}")
        a(f"v_lshlrev_b32 {t3}, 1, {t3}")
        a(f"v_xor_b32 {t2}, {t2}, {t3}")
        a(f"v_mul_u32_u24 {t1}, 1280, {t1}")
        a(f"v_lshl_add_u32 {vf[n]}, {t2}, 4, {t1}")
        if n % 4: a(f"v_subrev_u32 {vf[n]}, {1024*(n%4)}, {vf[n]}")
    a(f"s_mul_i32 {sM}, {sWV}, 5120")
    def u_dma(buf, typ):
        if typ == 'F':
            a(f"s_mul_i32 {sSO}, {sU}, 40960")
            vv, rr = vf, rA
        else:
            a(f"s_sub_u32 {sT2}, {sU}, 54")
            a(f"s_mul_i32 {sT3}, {sT2}, 52")
            a(f"s_lshr_b32 {sT3}, {sT3}, 8")
            a(f"s_mul_i32 {sSO}, {sT3}, {160*1280 - 5*256}")
            a(f"s_lshl_b32 {sT2}, {sT2}, 8")
            a(f"s_add_u32 {sSO}, {sSO}, {sT2}")
            vv, rr = vat, rB
        a(f"s_add_u32 m0, {sM}, {buf*40960}")
        for n in range(4):
            a(f"buffer_load_dwordx4 {vv[n]}, {rr}, {sSO} offen offset:{n*1024} {NT} lds")
        a(f"s_add_u32 m0, {sM}, {buf*40960 + 4096}")
        a(f"buffer_load_dwordx4 {vv[4]}, {rr}, {sSO} offen {NT} lds")
    def dyn(it, fn):
        if it == 4:
            a(f"s_add_u32 {sU}, {sSP}, 64"); a(f"s_min_u32 {sU}, {sU}, 73"); fn('A'); return
        a(f"s_add_u32 {sU}, {sSP}, {16*it}")
        if it <= 2: fn('F')
        else:
            l1, l2 = a.newlabel('SP'), a.newlabel('SP')
            a(f"s_cmp_ge_u32 {sU}, 54"); a(f"s_cbranch_scc1 {l1}")
            fn('F'); a(f"s_branch {l2}"); a.label(l1); fn('A'); a.label(l2)
    for it in range(3): dyn(it, lambda typ: u_dma(it, typ))
    a(f"v_lshlrev_b32 {t0}, 4, {tid}")
    for i in range(4): a(f"v_mov_b32 {Z4[i]}, 0")
    a(f"s_mul_i32 {sT2}, {sSP}, 13568")
    a(f"s_add_u32 {sT2}, {sT2}, {KVACC}")
    a(f"buffer_store_dwordx4 {Z4}, {t0}, {rWS}, {sT2} offen {ST}")
    a(f"s_add_u32 {sT2}, {sT2}, {13568 - 8192}")
    a(f"buffer_store_dwordx4 {Z4}, {t0}, {rWS}, {sT2} offen {ST}")
    for n in range(5):
        a(f"v_add_u32 {t1}, {4*n}, {vqd}")
        a(f"v_add_u32 {t1}, {sT1}, {t1}")
        a(f"v_and_b32 {t3}, 7, {t1}")
        a(f"v_lshlrev_b32 {t3}, 1, {t3}")
        a(f"v_xor_b32 {t2}, {vl15}, {t3}")
        a(f"v_mul_u32_u24 {t1}, 1280, {t1}")
        a(f"v_lshl_add_u32 {vat[n]}, {t2}, 4, {t1}")
        if n % 4: a(f"v_subrev_u32 {vat[n]}, {1024*(n%4)}, {vat[n]}")
    a(f"v_lshl_add_u32 {t0}, {vqd}, 2, {vr}")
    a(f"v_and_b32 {t1}, 7, {t0}")
    a(f"v_lshlrev_b32 {t1}, 1, {t1}")
    a(f"v_mul_u32_u24 {t0}, 1280, {t0}")
    a(f"v_and_b32 {t2}, 1, {vc}")
    a(f"v_lshl_add_u32 {t0}, {t2}, 3, {t0}")
    a(f"v_lshrrev_b32 {t3}, 1, {vc}")
    a(f"s_mul_i32 {sT0}, {sWV}, 10")
    a(f"v_add_u32 {t4}, {sT0}, {t3}")
    for j in range(5):
        a(f"v_add_u32 {rf[j]}, {2*j}, {t4}")
        a(f"v_xor_b32 {rf[j]}, {rf[j]}, {t1}")
        a(f"v_lshl_add_u32 {rf[j]}, {rf[j]}, 4, {t0}")
    a(f"v_mul_u32_u24 {t0}, 20, {vqd}")
    a(f"v_add_u32 {t0}, {t0}, {vr}")
    a(f"v_lshlrev_b32 {t0}, 8, {t0}")
    a(f"v_lshl_add_u32 {t0}, {t2}, 3, {t0}")
    a(f"s_lshl_b32 {sT0}, {sWV}, 1")
    a(f"v_add_u32 {t4}, {sT0}, {t3}")
    a(f"v_xor_b32 {t4}, {t4}, {t1}")
    a(f"v_lshl_add_u32 {rat[0]}, {t4}, 4, {t0}")
    a(f"v_xor_b32 {rat[1]}, 128, {rat[0]}")
    a(f"v_lshlrev_b32 {vst}, 4, {lane}")
    a(f"v_add_u32 {vst4}, 4096, {vst}")
    def u_proc(buf, typ, F):
        if typ == 'F':
            for j in range(5):
                a(f"v_add_u32 {t0}, {buf*40960}, {rf[j]}")
                for rd in range(2):
                    a(f"ds_read_b64_tr_b16 {F[j][2*rd:2*rd+2]}, {t0} offset:{rd*20480}")
            a(f"s_lshl3_add_u32 {sST}, {sU}, {sWV}")
            a(f"s_mul_i32 {sST}, {sST}, 5120")
            a(f"s_add_u32 {sST}, {sST}, {BP}")
            a("s_waitcnt lgkmcnt(0)")
            for j in range(5):
                if j < 4: a(f"buffer_store_dwordx4 {F[j]}, {vst}, {rWS}, {sST} offen offset:{j*1024} {ST}")
                else: a(f"buffer_store_dwordx4 {F[j]}, {vst4}, {rWS}, {sST} offen {ST}")
        else:
            bases = [(0, 4), (8, 12), (16, 96), (80, 84), (88, 92)]
            a(f"v_add_u32 {t0}, {buf*40960}, {rat[0]}")
            a(f"v_add_u32 {t1}, {buf*40960}, {rat[1]}")
            a(f"v_lshrrev_b32 {t4}, 1, {vqd}"); a(f"v_mul_u32_u24 {t4}, {40*256}, {t4}"); a(f"v_add_u32 {t4}, {t4}, {t0}")
            for s5 in range(5):
                for rd in range(2):
                    b = bases[s5][rd]
                    if s5 == 2: a(f"ds_read_b64_tr_b16 {F[s5][2*rd:2*rd+2]}, {t4} offset:{(16 + 40*rd)*256}")
                    else: a(f"ds_read_b64_tr_b16 {F[s5][2*rd:2*rd+2]}, {t1 if b % 8 else t0} offset:{b*256}")
            a(f"s_sub_u32 {sT2}, {sU}, 54")
            a(f"s_mul_i32 {sT3}, {sT2}, 52")
            a(f"s_lshr_b32 {sT3}, {sT3}, 8")
            a(f"s_mul_i32 {sT0}, {sT3}, 5")
            a(f"s_sub_u32 {sT2}, {sT2}, {sT0}")
            a(f"s_lshl_b32 {sT2}, {sT2}, 3")
            a(f"s_add_u32 {sT2}, {sT2}, {sWV}")
            a(f"s_mul_i32 {sT1}, {sT2}, 52")
            a(f"s_lshr_b32 {sT1}, {sT1}, 8")
            a(f"s_mul_i32 {sST}, {sT1}, 5")
            a(f"s_sub_u32 {sT2}, {sT2}, {sST}")
            a(f"s_add_u32 {sST}, {sT0}, 54")
            a(f"s_lshl3_add_u32 {sST}, {sST}, {sT1}")
            a(f"s_mul_i32 {sST}, {sST}, 5120")
            a(f"s_lshl_b32 {sT2}, {sT2}, 10")
            a(f"s_add_u32 {sST}, {sST}, {sT2}")
            a(f"s_add_u32 {sST}, {sST}, {BP}")
            a("s_waitcnt lgkmcnt(0)")
            for s5 in range(5):
                a(f"buffer_store_dwordx4 {F[s5]}, {vst}, {rWS}, {sST} offen {ST}")
                if s5 < 4: a(f"s_add_u32 {sST}, {sST}, {BS_}")
    vm = VmTrack()
    for t in ['D0']*5 + ['D1']*5 + ['D2']*5 + ['Z']*2: vm.issue(t)
    def sp_signal(k):
        lsk = a.newlabel('SPD')
        a(f"s_cmp_lg_u32 {sWV}, 7"); a(f"s_cbranch_scc1 {lsk}")
        a(f"v_mov_b32 {t2}, 0"); a(f"v_mov_b32 {t3}, 1")
        a("s_mov_b64 exec, 1")
        a(f"buffer_atomic_add {t3}, {t2}, {rDBG}, 0 offen offset:{4*k} sc0 sc1")
        a("s_waitcnt vmcnt(0)")
        a(f"v_cmp_eq_u32 vcc, 15, {t3}")
        a("s_and_b64 exec, exec, vcc")
        a(f"buffer_store_dword {t3}, {t2}, {rDBG}, 0 offen offset:{128 + 4*k} sc1")
        a("s_mov_b64 exec, -1")
        a.label(lsk)
    vSG = V(30)
    def sp_sig_a(k):
        lsk = a.newlabel('SPD')
        a(f"s_cmp_lg_u32 {sWV}, 0"); a(f"s_cbranch_scc1 {lsk}")
        a("v_mov_b32 v29, 0"); a(f"v_mov_b32 {vSG}, 1")
        a("s_mov_b64 exec, 1"); a(f"buffer_atomic_add {vSG}, v29, {rDBG}, 0 offen offset:{4*k} sc0 sc1"); a("s_mov_b64 exec, -1")
        a.label(lsk)
    def sp_sig_b(k, n):
        lsk = a.newlabel('SPD')
        a(f"s_cmp_lg_u32 {sWV}, 0"); a(f"s_cbranch_scc1 {lsk}")
        a(f"s_waitcnt vmcnt({n})")
        a(f"v_cmp_eq_u32 vcc, 15, {vSG}"); a("s_and_b64 exec, vcc, 1")
        a(f"buffer_store_dword {vSG}, v29, {rDBG}, 0 offen offset:{128 + 4*k} sc1"); a("s_mov_b64 exec, -1")
        a.label(lsk)
    for it in range(5):
        n = vm.wait_for(lambda t: t == f'D{it}' or (it == 3 and t == 'S2') or (it == 2 and t == 'S1'))
        a(f"s_waitcnt vmcnt({n})")
        a("s_barrier")
        if OPT['asg']:
            if it in (2, 3): sp_sig_a(0 if it == 2 else 2)
        else:
            if it == 2: sp_signal(0); stamp(a, 1)
            if it == 3: sp_signal(2)
        dyn(it, lambda typ: u_proc(it % 3, typ, FR[it & 1]))
        for _ in range(5): vm.issue(f'S{it}')
        if it == OPT['t2si'] and T2 and OPT['t2s']:
            a(f"s_and_b32 s4, {sWV}, 1"); a(f"s_lshl1_add_u32 s4, {sSP}, s4"); a("s_lshl_b32 s4, s4, 6"); a("s_mul_i32 s4, s4, s5")
            a(f"s_mul_i32 s6, {sBK}, {OPT['t2s']}"); a("s_add_u32 s4, s4, s6")
            a(f"v_add_u32 v21, s4, {vt1}")
            a(f"buffer_load_dword {tdum}, v21, {rTT}, 0 offen"); vm.issue('T')
        if it in (1, 2):
            dyn(it + 2, lambda typ: u_dma(it - 1, typ))
            for _ in range(5): vm.issue(f'D{it+2}')
        if OPT['asg'] and it in (2, 3): sp_sig_b(0 if it == 2 else 2, 10 if it == 2 else 5)
    a("s_waitcnt vmcnt(0)")
    a("s_barrier")
    sp_signal(1)
    stamp(a, 2)
    if OPT['gq'] or OPT['nog'] == 2:
        init_poll(a, t1, 128); flag_store(-1)
    else:
        GW = [V(72 + 4*i, 4) for i in range(5)]
        GX = [[V(96 + (g*5 + i)*4, 4) for i in range(5)] for g in range(4)]
        GA = [V(92 + g) for g in range(4)]
        srd(a, rW, pGW, 1280)
        a(f"v_lshlrev_b32 {t0}, 4, {vl15}")
        for i in range(5): a(f"buffer_load_dwordx4 {GW[i]}, {t0}, {rW}, 0 offen offset:{i*256}")
        a(f"v_mul_u32_u24 {t1}, 1280, {vqd}")
        a(f"v_add_u32 {t0}, {t0}, {t1}")
        a(f"s_lshl_b32 {sT3}, {sSP}, 3")
        a(f"s_add_u32 {sT3}, {sT3}, {sWV}")
        a(f"s_mul_i32 {sT2}, {sT3}, {16*1280}")
        for g in range(4):
            for i in range(5): a(f"buffer_load_dwordx4 {GX[g][i]}, {t0}, {rX}, {sT2} offen offset:{i*256} {OPT['gnt']}")
            if g < 3: a(f"s_add_u32 {sT2}, {sT2}, {4*1280}")
        for g in range(4): a(f"v_mov_b32 {GA[g]}, 0")
        init_poll(a, t1, 128)
        for i in range(5):
            for k in range(4):
                for g in range(4): a(f"v_dot2c_f32_bf16 {GA[g]}, {GX[g][i][k]}, {GW[i][k]}")
        for sh in (8, 4, 2, 1):
            for g in range(4): a(f"v_add_f32_dpp {GA[g]}, {GA[g]}, {GA[g]} row_ror:{sh} row_mask:0xf bank_mask:0xf")
        for g in range(4): a(f"v_mul_f32 {GA[g]}, {LOG2E:#x}, {GA[g]}")
        for g in range(4): a(f"v_min_f32 {GA[g]}, 0x42a00000, {GA[g]}")
        for g in range(4): a(f"v_exp_f32 {GA[g]}, {GA[g]}")
        a(f"v_mov_b32 {t2}, {GA[0]}")
        for g in range(1, 4):
            a(f"v_cmp_eq_u32 vcc, {g}, {vl15}"); a(f"v_cndmask_b32 {t2}, {t2}, {GA[g]}, vcc")
        a(f"v_lshl_add_u32 {t0}, {vl15}, 2, {vqd}")
        a(f"v_lshlrev_b32 {t3}, 2, {t0}")
        a(f"s_lshl_b32 {sT2}, {sT3}, 6"); a(f"s_add_u32 {sT2}, {sT2}, {GOFF}")
        a("s_mov_b32 exec_lo, 0x000f000f"); a("s_mov_b32 exec_hi, 0x000f000f")
        a(f"buffer_store_dword {t2}, {t3}, {rWS}, {sT2} offen {ST}")
        a("s_mov_b64 exec, -1")
        a(f"s_lshr_b32 {sFLAG}, {sT3}, 2"); a(f"s_lshl_b32 {sFLAG}, {sFLAG}, 7"); a(f"s_add_u32 {sFLAG}, {sFLAG}, {FH + 12}")
        flag_store(3)
    a(f"v_mov_b32 {vFQ}, 0")

    vm = VmTrack()
    a(f"s_mov_b32 {sPF}, 7"); a(f"s_mov_b32 {sKQ}, 0")
    a.label('P2')
    stamp(a, 3)
    a(f"s_bitcmp0_b32 {sPF}, 0"); a("s_cbranch_scc1 P2_E1")
    for l in p2_setup() + poison(V(208, 4)): a(l)
    a.label('P2_E1')
    vG = V(16, 4); vz = V(11); ka = V(12); kw = V(13); vbl = V(15); vcn = V(14)
    ACC = [[V(72 + (tt * 5 + j) * 4, 4) for j in range(5)] for tt in range(4)]
    ARl = [V(152 + 4 * i, 4) for i in range(14)] + [V(248, 4), V(24, 4)]
    AR = [ARl[4*b:4*b+4] for b in range(4)]
    sFHo = S(78)
    rOUT = rX
    INP2[0] = True
    if OPT['noa'] == 1 or OPT['nob']: srd(a, rA, pWS, 0)
    a(f"v_mov_b32 {vz}, 0")
    a(f"v_mov_b32 {vcn}, {CNT}")
    a(f"v_add_u32 {vbl}, {sLC}, {vo}")
    vbl2 = V(23)
    a(f"v_add_u32 {vbl2}, {3*20480}, {vbl}")
    def lrow(row, j):
        return (vbl, row*20480 + j*1024) if row < 3 else (vbl2, (row-3)*20480 + j*1024)
    CG_ = {4:3, 5:4, 6:0, 7:1, 8:2} if OPT['gf'] & 2 else {4:0, 5:1, 6:2, 7:3, 8:4}
    def a_loads(i, tag, vts=None, r=None):
        b = i % NA; r = r or rWS
        if OPT['noa'] == 1: r = rA
        if OPT['noa'] == 3: return []
        if OPT['noa'] == 2: return [f"s_mov_b32 {sT0}, {sAo}"] + [(f"buffer_load_dwordx4 {AR[b][tt]}, {vo}, {r}, {sT0} offen offset:{tt*1024} {LD}", vm.issue(tag))[0] for tt in range(4)]
        l = [f"s_add_u32 {sT0}, {sAo}, {((i*16384 if i < 4 else CA0 + CG_[i]*16384) if vts else GRP[i]*16384)}"]
        for tt in range(4):
            if vts: l.append(f"buffer_load_dwordx4 {AR[b][tt]}, {vts[tt]}, {r}, {sT0} offen {LD}")
            else: l.append(f"buffer_load_dwordx4 {AR[b][tt]}, {vo}, {r}, {sT0} offen offset:{tt*1024} {LD}")
            vm.issue(tag)
        return l
    def b_fromlds(i, row):
        return ["ds_read_b128 %s, %s offset:%d" % ((BR[i % 4][j],) + lrow(row, j)) for j in range(5)]
    def mm(sl, zero, side=[], every=2, bb=None):
        b = sl % 4 if bb is None else bb; ab = sl % NA
        side = list(side)
        for j in range(5):
            for tt in range(4):
                d = ACC[tt][j]
                a(f"v_mfma_f32_16x16x32_bf16 {d}, {BR[b][j]}, {AR[ab][tt]}, {'0' if tt in zero else d}")
                while side and side[0].startswith('s_'): a(side.pop(0))
                if side and tt % every == every - 1: a(side.pop(0))
        for l in side: a(l)
    def g_load():
        a(f"s_lshl_b32 {sT0}, {sR6}, 8"); a(f"s_add_u32 {sT0}, {sT0}, {GOFF}")
        a(f"v_lshlrev_b32 {t0}, 4, {vl15}")
        a(f"buffer_load_dwordx4 {vG}, {t0}, {rWS}, {sT0} offen {LD}")
    def lds_signal(off):
        a(f"v_mov_b32 {t1}, 1")
        a("s_waitcnt lgkmcnt(0)")
        a("s_mov_b64 exec, 1")
        a(f"ds_add_u32 {vcn}, {t1} offset:{off}")
        a("s_mov_b64 exec, -1")
    def lds_wait(off, n):
        L = a.newlabel('LW')
        a.label(L)
        a(f"ds_read_b32 {t1}, {vcn} offset:{off}")
        a("s_waitcnt lgkmcnt(0)")
        a(f"v_readfirstlane_b32 {sT0}, {t1}")
        a(f"s_cmp_ge_u32 {sT0}, {n}")
        a(f"s_cbranch_scc1 {L}d")
        a("s_sleep 1")
        a(f"s_branch {L}")
        a.label(L + 'd')
    vAT = V(29); vFG = V(28)
    PB = V(176, 12); PU = V(152, 20)
    def pq_loads():
        a(f"s_lshl3_add_u32 {sT0}, {sR6}, {sCG}")
        a(f"s_mul_i32 {sT0}, {sT0}, 10240"); a(f"s_add_u32 {sT0}, {sT0}, {PQ}")
        a(f"s_lshl_b32 {sT1}, {sRG}, 11"); a(f"s_add_u32 {sT1}, {sT1}, {sT0}")
        for h in range(2): a(f"buffer_load_dwordx4 {PB[4*h:4*h+4]}, {vo}, {rWS}, {sT1} offen offset:{h*1024} {LD}")
        a(f"s_lshr_b32 {sT1}, {sRG}, 1"); a(f"s_lshl_b32 {sT1}, {sT1}, 10"); a(f"s_add_u32 {sT0}, {sT0}, {sT1}")
        a(f"s_and_b32 {sT1}, {sRG}, 1"); a(f"s_lshl3_add_u32 {sT0}, {sT1}, {sT0}"); a(f"s_add_u32 {sT0}, {sT0}, 8192")
        a(f"buffer_load_dwordx2 {PB[8:10]}, {vo}, {rWS}, {sT0} offen {LD}")
    sQF = S(83)
    if OPT['kf']:
        a(f"v_mov_b32 {t1}, 1"); a("s_waitcnt lgkmcnt(0)")
        a("s_mov_b64 exec, 1"); a(f"ds_add_u32 {vcn}, {t1} offset:16"); a("s_mov_b64 exec, -1")
        a(f"s_cmp_eq_u32 {sKQ}, 0"); a("s_cbranch_scc1 KF1")
        a(f"buffer_load_dword {vS2}, {vz}, {rDBG}, 0 offen offset:132 sc1")
        a("s_setprio 3"); a("s_branch P2_C1")
        a.label('KF1')
    a(f"v_readfirstlane_b32 {sQF}, {vFQ}")
    a(f"s_cmp_eq_u32 {sHI}, 1"); a(f"s_cselect_b32 {sQF}, 0, {sQF}")
    a(f"s_cmp_eq_u32 {sQF}, 0"); a("s_cbranch_scc1 P2_NQ")
    pq_loads()
    a.label('P2_NQ')
    a(f"buffer_load_dword {vS2}, {vz}, {rDBG}, 0 offen offset:132 sc1")
    a(f"v_mov_b32 {vAT}, 1"); a(f"v_mov_b32 {t1}, 1")
    B3 = OPT['b23'] == 3
    if B3:
        a(f"s_cmp_lg_u32 {sPF}, 0"); a("s_cbranch_scc1 P2_D0")
        for l in b_reg(vm, 2, 'B'): a(l)
        a("s_waitcnt vmcnt(5) lgkmcnt(0)")
        a("s_branch P2_D1")
        a.label('P2_D0')
    a("s_waitcnt vmcnt(0) lgkmcnt(0)")
    if B3: a.label('P2_D1')
    a("s_mov_b64 exec, 1")
    if not OPT['kf']: a(f"ds_add_rtn_u32 {t1}, {vcn}, {t1} offset:16")
    a(f"s_cmp_eq_u32 {sNEED}, -1"); a("s_cbranch_scc1 P2_A2")
    if OPT['kh'] == 2:
        a(f"s_cmp_lg_u32 {sPF}, 4"); a("s_cbranch_scc1 P2_A1")
        a("s_waitcnt lgkmcnt(0)")
        a(f"v_cmp_eq_u32 vcc, 7, {t1}")
        a("s_and_b64 exec, exec, vcc")
        a("s_cbranch_execz P2_A2")
        a.label('P2_A1')
    a(f"buffer_atomic_add {vAT}, {vz}, {rWS}, {sFLAG} offen sc0 sc1")
    a.label('P2_A2')
    a("s_mov_b64 exec, -1")
    def go_logic(n, st=True):
        lb = a.newlabel('GO')
        a(f"s_waitcnt vmcnt({n})")
        a(f"v_readfirstlane_b32 {sP[0]}, {vAT}")
        a(f"s_add_u32 {sP[1]}, {sFLAG}, {GOD}")
        a(f"s_cmp_lg_u32 {sP[0]}, {sNEED}")
        a(f"s_cbranch_scc1 {lb}")
        a("s_mov_b64 exec, 1")
        a(f"buffer_store_dword {vAT}, {vz}, {rWS}, {sP[1]} offen sc1")
        a("s_mov_b64 exec, -1")
        a.label(lb)
        if st: stamp(a, 4)
    a(f"s_cmp_eq_u32 {sHI}, 0")
    a("s_cbranch_scc1 P2_C")
    if B3:
        a(f"s_cmp_lg_u32 {sPF}, 0"); a("s_cbranch_scc1 P2_D2")
        for l in b_reg(vm, 3, 'B'): a(l)
        go_logic(5)
        a("s_branch P2_D3")
        a.label('P2_D2')
    go_logic(0)
    if B3: a.label('P2_D3')
    a("s_setprio 0")
    init_check(vS2, 132)
    if OPT['bt']:
        a("s_lshr_b32 s4, s2, 6"); a(f"s_lshl2_add_u32 s4, s4, {sRG}"); a(f"s_mul_i32 s4, s4, {65*128}")
        a(f"s_mul_i32 s5, {sCG}, {74*5120}"); a("s_add_u32 s4, s4, s5"); a(f"s_add_u32 s4, s4, {BP + 48*5120}")
        a(f"v_lshlrev_b32 {t2}, 7, {lane}")
        a(f"buffer_load_dword {t3}, {t2}, {rWS}, s4 offen sc1")
    a(f"s_cmp_lt_u32 {sRG}, 2"); a(f"s_cselect_b32 {rB[2]}, {WSZ}, 0")
    a(f"s_cmp_lt_u32 {sPF}, 6"); a("s_cbranch_scc1 P2_E2")
    for b in range(4):
        for l in b_reg(vm, b, 'B'): a(l)
    lds_wait(16, 8)
    for k in range(4):
        for l in b_row(vm, sBg, GRP[GL[k]], LR[k]): a(l)
    a.label('P2_E2')
    if OPT['b23'] in (1, 2):
        a(f"s_cmp_lg_u32 {sPF}, 0"); a("s_cbranch_scc1 P2_E4")
        for l in (b_reg(vm, 2, 'B') if OPT['b23'] == 1 else []) + b_reg(vm, 3, 'B'): a(l)
        a.label('P2_E4')
    lds_wait(16, 8)
    for k in range(3):
        if OPT['ep'] and k == OPT['ep'] - 1: a(f"buffer_load_dword {t4}, {vz}, {rWS}, {sFHo} offen sc1")
        for l in b_row(vm, sBg, k, CR[k], None, 54*BS_): a(l)
    if OPT['bx']:
        for l in b_reg(vm, 5, 'B', None, GRP[5], 0, 4): a(l)
    if OPT['ep']: a(f"s_waitcnt vmcnt({5*(4 - OPT['ep'])})"); a(f"v_readfirstlane_b32 s82, {t4}")
    a(f"s_cmp_eq_u32 {sPF}, 4"); a("s_cbranch_scc1 P2_GK")
    NG = 10
    for variant in (0, 1):
        GLv = GL if variant == 0 else []
        if variant == 1: a.label('P2_GK')
        if OPT['at']:
            a(f"s_mul_i32 {sT1}, {sR6}, {74*4096}"); a(f"s_lshl2_add_u32 {sT2}, {sCG}, {sRG}"); a(f"s_mul_i32 {sT2}, {sT2}, {54*128}"); a(f"s_add_u32 {sT1}, {sT1}, {sT2}")
            a(f"v_lshlrev_b32 {t2}, 7, {lane}")
        if OPT['at'] == 3: vpoll(a, vz, sFHo, 0, t1, f"s_mov_b32 exec_hi, 0x3fffff\nbuffer_load_dword {t3}, {t2}, {rWS}, {sT1} offen sc1\ns_mov_b32 exec_hi, -1", OPT['tsl'])
        elif OPT['noh'] and OPT['ep']: pass
        elif OPT['noh']: a("s_waitcnt vmcnt(0)")
        else:
            if OPT['ep']: a("s_cmp_lg_u32 s82, 0"); a(f"s_cbranch_scc1 HS{variant}")
            vpoll(a, vz, sFHo, 0, t1)
            if OPT['ep']: a.label(f'HS{variant}')
        lds_signal(20)
        a(f"s_setprio {OPT['gprio']}")
        vm = VmTrack()
        stamp(a, 5)
        if OPT['at'] == 1:
            a("s_mov_b32 exec_hi, 0x3fffff"); a(f"buffer_load_dword {t3}, {t2}, {rWS}, {sT1} offen sc1"); a("s_mov_b32 exec_hi, -1")
        if OPT['stamp'] == 4: a("s_memtime s[92:93]")
        LA = OPT['la']
        pend = []
        for s in range(LA + 1):
            if OPT['stp'] and s: a(f"s_setprio {3 - s}")
            for l in a_loads(s, ('A', s)): a(l)
            if OPT['at'] == 2 and s == 0:
                a("s_mov_b32 exec_hi, 0x3fffff"); a(f"buffer_load_dword {t3}, {t2}, {rWS}, {sT1} offen sc1"); a("s_mov_b32 exec_hi, -1"); vm.issue('T')
        for s in range(NG - 1):
            n = vm.wait_for(lambda t: t in (('A', s), ('B', s)))
            a(f"s_waitcnt vmcnt({n})" + (f" lgkmcnt({5*sum(1 for x in (s+1, s+2) if x in GLv)})" if s in GLv else ""))
            if s == 0 and OPT['ep']: lds_signal(24)
            if s == 0: stamp(a, 6)
            if OPT['stamp'] == 4:
                a("s_waitcnt lgkmcnt(0)")
                a(f"v_writelane_b32 v255, s92, {40 + s}")
                a("s_memtime s[92:93]")
            side = []
            if OPT['fair'] and s in eval(OPT['fg']): a(f"s_setprio {eval(OPT['fg'])[s]}")
            if 1 <= s and s + LA < NG:
                side += a_loads(s + LA, ('A', s + LA), None, rB if GRP[s + LA] == 13 else None)
            if 1 <= s and s + 3 < NG:
                rr = rB if GRP[s + 3] == 13 else None
                if OPT['bx'] and s + 3 == 5: pass
                elif s + 3 in GLv: side += b_fromlds(s + 3, LR[GLv.index(s + 3)])
                elif OPT['spr'] and variant == 0:
                    bl = b_reg(VmTrack(), s + 3, 'x', rr, GRP[s + 3])
                    side += bl[0:4]; [vm.issue(('B', s + 3)) for _ in range(3)]
                    pend = [(bl[0], bl[4:6], s + 3)]
                    mm(s, [], side); continue
                else: side += b_reg(vm, s + 3, ('B', s + 3), rr, GRP[s + 3])
            if pend:
                p0, pl, ps = pend.pop(); side += [p0] + pl; [vm.issue(('B', ps)) for _ in range(2)]
            mm(s, range(4) if s == 0 else [], side, 2, 4 if OPT['bx'] and s == 5 else None)
        if variant == 0: a("s_branch P2_GL")
    a.label('P2_GL')
    a("s_waitcnt vmcnt(0) lgkmcnt(0)")
    if OPT['stamp'] == 4:
        a(f"v_writelane_b32 v255, s92, {49}"); a("s_memtime s[92:93]"); a("s_waitcnt lgkmcnt(0)"); a(f"v_writelane_b32 v255, s92, {50}")
    for tt in range(4):
        for j in range(5):
            d = ACC[tt][j]
            a(f"v_mfma_f32_16x16x32_bf16 {d}, {BR[1][j]}, {AR[9 % NA][tt]}, {d}")
            if tt >= 2: a("ds_write_b128 %s, %s offset:%d" % (lrow(tt, j)[0], ACC[tt-2][j], lrow(tt, j)[1]))
    for tt in (2, 3):
        for j in range(5): a("ds_write_b128 %s, %s offset:%d" % (lrow(tt+2, j)[0], ACC[tt][j], lrow(tt+2, j)[1]))
    lds_signal(4)
    stamp(a, 10)
    a("s_branch P2_FIN")
    a.label('P2_C')
    P = V(72, 20)
    a("s_setprio 3")
    if OPT['noc']:
        go_logic(0)
        srd(a, rOUT, pOUT, 2048 * 1280)
        for i in range(4):
            a(f"s_add_u32 {sT0}, {sRG}, {i}"); a(f"s_and_b32 {sT0}, {sT0}, 3"); a(f"s_lshl_b32 {sT0}, {sT0}, 10")
            a(f"v_add_u32 {V(16+i)}, {sT0}, {vo}")
        init_check(vS2, 132)
        a("s_mov_b32 s81, 0"); a(f"s_cmp_eq_u32 {sPF}, 0"); a("s_cselect_b32 s81, 2, s81"); a(f"s_cmp_eq_u32 {sPF}, 4"); a("s_cselect_b32 s81, 4, s81")
        a("s_branch P2_NOC")
    a(f"s_cmp_lg_u32 {sQF}, 0"); a("s_cbranch_scc1 P2_C1")
    go_logic(0)
    a(f"s_mov_b32 {sNEED}, -1")
    vpoll(a, vz, sFHo, 4, t1)
    pq_loads()
    a("s_waitcnt vmcnt(0)")
    a.label('P2_C1')
    a(f"buffer_load_dword {vFG}, {vz}, {rWS}, {sFHo} offen offset:12 sc1")
    if OPT['kf']:
        a(f"s_lshl_b32 {sT2}, {sCG}, 7"); a(f"s_add_u32 {sT2}, {sT2}, {FK + GOD}")
    GV = [V(22), V(252), V(10), V(8)]
    GLd = [t3, V(188), V(189), V(190)]
    srd(a, rOUT, pOUT, 2048 * 1280)
    a(f"v_lshl_add_u32 {kw}, {vr}, 2, {vqd}")
    a(f"v_lshlrev_b32 {kw}, 6, {kw}")
    a(f"v_lshl_add_u32 {kw}, {vc}, 3, {kw}")
    a(f"s_mul_i32 {sT0}, {sRG}, 3088"); a(f"s_add_u32 {sT0}, {sT0}, {KVB}")
    a(f"v_add_u32 {kw}, {sT0}, {kw}")
    a(f"v_mul_u32_u24 {t4}, 3088, {vqd}")
    a(f"v_lshl_add_u32 {t4}, {vr}, 6, {t4}")
    a(f"v_add_u32 {t4}, {KVB}, {t4}")
    a(f"v_mov_b32 {ka}, {ZERO + 8}")
    a(f"v_cmp_eq_u32 vcc, {vc}, {vqd}")
    a(f"v_cndmask_b32 {ka}, {ka}, {t4}, vcc")
    VT = [V(16), V(17), V(18), V(19)]
    for i in range(4):
        a(f"s_add_u32 {sT0}, {sRG}, {i}"); a(f"s_and_b32 {sT0}, {sT0}, 3"); a(f"s_lshl_b32 {sT0}, {sT0}, 10")
        a(f"v_add_u32 {VT[i]}, {sT0}, {vo}")
    for i in range(10):
        a(f"v_lshlrev_b32 {PU[2*i]}, 16, {PB[i]}")
        a(f"v_and_b32 {PU[2*i+1]}, 0xffff0000, {PB[i]}")
    gl = ((f"s_cmp_eq_u32 {sNEED}, -1\ns_cbranch_scc1 GOC\n" if OPT['kf'] else "") + f"s_waitcnt vmcnt(1)\nv_readfirstlane_b32 {sP[0]}, {vAT}\ns_add_u32 {sP[1]}, {sFLAG}, {GOD}\ns_cmp_lg_u32 {sP[0]}, {sNEED}\ns_cbranch_scc1 GOC\n"
          f"s_mov_b64 exec, 1\nbuffer_store_dword {vAT}, {vz}, {rWS}, {sP[1]} offen sc1\ns_mov_b64 exec, -1\nGOC:" + (f"\nbuffer_load_dword {vFQ}, {vz}, {rWS}, {sT2} offen sc1" if OPT['kf'] & 2 else ""))
    softmax_unit(a, PU, V(92, 40), V(132, 4), V(136, 4), P, ["s_nop 0"] * 19 + [gl])
    a("s_waitcnt vmcnt(0)")
    a(f"v_cmp_ne_u32 vcc, 0, {vFG}"); a("s_nop 0"); a("s_cbranch_vccnz P2_GOK")
    if not OPT['nog']: vpoll(a, vz, sFHo, 12, t1)
    a.label('P2_GOK')
    a(f"v_lshlrev_b32 {t0}, 2, {vl15}")
    a(f"s_lshl2_add_u32 {sT0}, {sR6}, {sRG}")
    a(f"s_lshl_b32 {sT0}, {sT0}, 6"); a(f"s_add_u32 {sT0}, {sT0}, {GOFF}")
    a(f"buffer_load_dword {t3}, {t0}, {rWS}, {sT0} offen {LD}")
    stamp(a, 5)
    init_check(vS2, 132)
    lds_wait(16, 8)
    a(f"s_lshl_b32 {sT2}, {sCG}, 7"); a(f"s_add_u32 {sT2}, {sT2}, {FK + GOD}")
    a(f"s_lshl_b32 {sT3}, {sCG}, 2"); a(f"s_add_u32 {sT3}, {sT3}, {sRG}")
    a(f"s_mul_i32 {sT3}, {sT3}, 6144"); a(f"s_add_u32 {sT3}, {sT3}, {KVACC}")
    sNB = S(81)
    def cb(i): return b_reg(vm, i, 'B') if i < 4 else b_reg(vm, 7, 'B', None, 3, CB0, 4) if OPT['bx'] else b_row(vm, sBo, i - 4, CR[i - 4], None, CB0)
    if OPT['kf'] & 2:
        a(f"s_mov_b32 {sNB}, 0"); a(f"s_cmp_eq_u32 {sPF}, 0"); a(f"s_cselect_b32 {sNB}, 2, {sNB}"); a(f"s_cmp_eq_u32 {sPF}, 4"); a(f"s_cselect_b32 {sNB}, 4, {sNB}")
        a(f"v_cmp_ne_u32 vcc, 0, {vFQ}"); a("s_nop 0"); a("s_cbranch_vccnz P2_KGO")
    if OPT['b23']: a(f"s_cmp_eq_u32 {sPF}, 0"); a("s_cbranch_scc1 P2_K2")
    a(f"s_cmp_lt_u32 {sPF}, 6"); a("s_cbranch_scc1 P2_K4")
    for i in range(4):
        if OPT['b23'] and i == (2 if OPT['b23'] == 1 else 3): a.label('P2_K2')
        a(f"s_mov_b32 {sNB}, {i}")
        a(f"buffer_load_dword {t1}, {vz}, {rWS}, {sT2} offen sc1")
        a("s_waitcnt vmcnt(0)")
        a(f"v_cmp_ne_u32 vcc, 0, {t1}"); a("s_nop 0"); a("s_cbranch_vccnz P2_KGO")
        for l in cb(i): a(l)
    a.label('P2_K4')
    a(f"s_mov_b32 {sNB}, 4")
    if OPT['bx']:
        a(f"buffer_load_dword {t1}, {vz}, {rWS}, {sT2} offen sc1")
        a("s_waitcnt vmcnt(0)")
        a(f"v_cmp_ne_u32 vcc, 0, {t1}"); a("s_nop 0"); a("s_cbranch_vccnz P2_KGO")
        for l in cb(4): a(l)
        a(f"s_mov_b32 {sNB}, 5")
    if not OPT['nok']: vpoll(a, vz, sT2, 0, t1)
    else: a("s_waitcnt vmcnt(0)")
    a.label('P2_KGO')
    stamp(a, 6)
    KL = [V(92 + 4 * i, 4) for i in range(6)]
    a(f"s_mov_b32 {sTO}, 0x80000")
    a("s_mov_b32 s82, 0x41000000")
    a.label('KVRETRY')
    for i in range(6):
        if i < 4: a(f"buffer_load_dwordx4 {KL[i]}, {vo}, {rWS}, {sT3} offen offset:{i*1024} {LD}")
        else: a(f"buffer_load_dwordx4 {KL[i]}, {vo4}, {rWS}, {sT3} offen offset:{(i-4)*1024} {LD}")
    for i in range(6):
        a(f"s_waitcnt vmcnt({5-i})")
        a(f"v_cvt_pk_bf16_f32 {KL[i][0]}, {KL[i][0]}, {KL[i][1]}")
        a(f"v_cvt_pk_bf16_f32 {KL[i][1]}, {KL[i][2]}, {KL[i][3]}")
        a(f"ds_write_b64 {kw}, {KL[i][0:2]} offset:{(i % 3)*1024 + (i // 3)*32}")
    a(f"v_min3_f32 {t1}, {KL[0][3]}, {KL[1][3]}, {KL[3][3]}")
    a(f"v_min_f32 {t4}, {KL[2][3]}, {KL[5][3]}")
    a(f"v_min_f32 {t1}, {t1}, {KL[4][3]}")
    a(f"v_cmp_neq_f32 vcc, s82, {t4}")
    a(f"v_cmp_neq_f32 {sP}, s82, {t1}")
    a("s_and_b32 s4, vcc_lo, 0x00880088"); a("s_and_b32 s5, vcc_hi, 0x00880088"); a("s_or_b32 s4, s4, s5")
    a(f"s_or_b32 s5, {sP[0]}, {sP[1]}"); a("s_and_b32 s5, s5, 0x88888888"); a("s_or_b32 s4, s4, s5")
    a("s_branch KVOK" if OPT['nok'] else "s_cbranch_scc0 KVOK")
    a("s_waitcnt lgkmcnt(0)")
    a(f"s_sleep {OPT['krs']}")
    a(f"s_sub_u32 {sTO}, {sTO}, 1")
    a("s_cbranch_scc0 KVRETRY")
    a.label('KVOK')
    lds_signal(0)
    lds_wait(0, 4)
    stamp(a, 16)
    AFl = [V(92 + 4 * i, 4) for i in range(15)]
    D = [V(152 + 4 * t, 4) for t in range(6)]
    O = V(176, 12)
    order = [5, 0, 1, 2, 3, 4]
    fr = [(t, s) for s in range(5) for t in order]
    def rdl(k):
        t, s_ = fr[k]
        return [f"ds_read_b64_tr_b16 {AFl[k % 15][2*r_:2*r_+2]}, {ka} offset:{s_*512 + r_*256 + (t*8 if t < 3 else t*8 + 8)}" for r_ in range(2)]
    AH = 7
    for k in range(AH):
        for l in rdl(k): a(l)
    def fin(t):
        for h in range(4): a(f"v_mul_f32 {D[t][h]}, {D[t][h]}, {t2}")
        a(f"v_cvt_pk_bf16_f32 {O[2*t]}, {D[t][0]}, {D[t][1]}")
        a(f"v_cvt_pk_bf16_f32 {O[2*t+1]}, {D[t][2]}, {D[t][3]}")
    for k in range(30):
        t, s_ = fr[k]
        a(f"s_waitcnt lgkmcnt({2 * min(AH - 1, 29 - k)})")
        a(f"v_mfma_f32_16x16x32_bf16 {D[t]}, {AFl[k % 15]}, {P[4*s_:4*s_+4]}, {'0' if s_ == 0 else D[t]}")
        if k + AH < 30:
            for l in rdl(k + AH): a(l)
        if OPT['sent'] and k == OPT['oh1']:
            a(f"s_sub_u32 {sFLAG}, {sFHo}, {GOD - 8}"); a(f"s_mov_b32 {sNEED}, 31"); a(f"v_mov_b32 {vAT}, 1")
            a("s_mov_b64 exec, 1"); a(f"buffer_atomic_add {vAT}, {vz}, {rWS}, {sFLAG} offen sc0 sc1"); a("s_mov_b64 exec, -1")
    stamp(a, 19)
    a(f"v_add_f32 {t2}, 0x358637bd, {D[5][0]}")
    a(f"v_rcp_f32 {t2}, {t2}")
    a(f"v_mul_f32 {t2}, {t2}, {t3}")
    fin(0); fin(1)
    a(f"buffer_store_dwordx4 {O[0:4]}, {vo}, {rWS}, {sO1} offen {ST}")
    fin(2); fin(3)
    a(f"buffer_store_dwordx4 {O[4:8]}, {vo4}, {rWS}, {sO1} offen {ST}")
    fin(4)
    a(f"v_mov_b32 {O[10]}, {O[8]}"); a(f"v_mov_b32 {O[11]}, {O[9]}")
    a(f"v_permlane32_swap_b32 {O[8]}, {O[10]}"); a(f"v_permlane32_swap_b32 {O[9]}, {O[11]}")
    a("s_mov_b32 exec_hi, 0")
    a(f"buffer_store_dwordx4 {O[8:12]}, {vo}, {rWS}, {sO2} offen {ST}")
    a("s_mov_b32 exec_hi, -1")
    stamp(a, 17)
    NBA = OPT['nba'] and not OPT['sent']
    if NBA:
        a(f"s_sub_u32 {sFLAG}, {sFHo}, {GOD - 8}"); a(f"s_mov_b32 {sNEED}, 31"); a(f"v_mov_b32 {vAT}, 1")
        a(f"ds_read_b32 {t1}, {vcn} offset:20"); a("s_waitcnt lgkmcnt(0)"); a(f"v_readfirstlane_b32 {sT0}, {t1}")
        a(f"s_and_b32 {sT0}, {sT0}, {sNB}")
        a(f"s_cmp_eq_u32 {sT0}, 4"); a("s_cbranch_scc1 P2_NB1")
        arrive(a, sFLAG, 31, t0, t1)
        a(f"s_mov_b32 {sNEED}, -1")
        a.label('P2_NB1')
    elif not OPT['sent']:
        a(f"s_sub_u32 {sT2}, {sFHo}, {GOD - 8}")
        arrive(a, sT2, 31, t0, t1)
    else: go_logic(3, False)
    stamp(a, 7)
    if OPT['noc']: a.label('P2_NOC')
    for i in range(5 if OPT['bx'] else 4):
        lb = a.newlabel('CB')
        a(f"s_cmp_gt_u32 {sNB}, {i}"); a(f"s_cbranch_scc1 {lb}")
        for l in cb(i): a(l)
        a.label(lb)
    XB = [V(28), V(13), V(30)]; XW = V(31); GB = V(12)
    if OPT['bx']: XB = [V(1), V(13), V(8)]; XW = V(9)
    for q in range(1, 4):
        a(f"s_sub_u32 {sT0}, {sRG}, {q}"); a(f"s_and_b32 {sT0}, {sT0}, 3"); a(f"s_mul_i32 {sT0}, {sT0}, 5120")
        a(f"s_add_u32 {sT0}, {sT0}, {CR[q-1]*20480}")
        a(f"v_add_u32 {XB[q-1]}, {sT0}, {vo}")
    a(f"v_add_u32 {XW}, {6*20480}, {vbl}")
    def crow(k, j): return (vbl, CR[k]*20480 + j*1024) if k < 2 else (XW, j*1024)
    a(f"s_add_u32 {sT0}, {sRG}, 2"); a(f"s_mul_i32 {sT0}, {sT0}, 20480"); a(f"v_add_u32 {GB}, {sT0}, {vo}")
    a(f"v_mul_u32_u24 {t0}, 1280, {vl15}")
    a(f"v_lshl_add_u32 {t0}, {vqd}, 3, {t0}")
    a(f"s_lshl_b32 {sT2}, {sR6}, 2"); a(f"s_add_u32 {sT2}, {sT2}, {sRG}"); a(f"s_mul_i32 {sT2}, {sT2}, {16*1280}")
    a(f"s_mul_i32 {sT3}, {sCG}, 160"); a(f"s_add_u32 {sT2}, {sT2}, {sT3}")
    a(f"v_add_f32 {V(22)}, 1.0, {t3}"); a(f"v_rcp_f32 {V(22)}, {V(22)}")
    a(f"v_mul_u32_u24 {t3}, 1280, {vl15}"); a(f"v_and_b32 {t4}, 1, {vqd}"); a(f"v_lshl_add_u32 {t3}, {t4}, 5, {t3}")
    a(f"v_lshrrev_b32 {t4}, 1, {vqd}"); a(f"v_lshl_add_u32 {t3}, {t4}, 4, {t3}")
    lds_wait(20, 4)
    a(f"s_setprio {OPT['cprio']}")
    if OPT['stamp'] == 4: a("s_memtime s[92:93]")
    vm = VmTrack()
    for s in range(OPT['la'] + 1):
        if OPT['stp'] == 2 and s: a(f"s_setprio {max(1, 3 - s)}")
        for l in a_loads(s, ('A', s), VT): a(l)
        if NBA and s == 1:
            a(f"s_cmp_eq_u32 {sNEED}, -1"); a("s_cbranch_scc1 P2_NB2")
            a("s_waitcnt vmcnt(8)")
            a("s_mov_b64 exec, 1"); a(f"buffer_atomic_add {vAT}, {vz}, {rWS}, {sFLAG} offen sc0 sc1"); a("s_mov_b64 exec, -1")
            a.label('P2_NB2')
    GT = [BR[1], BR[2], BR[3], AR[1] + [AR[2][0]]]
    if OPT['bx']: GT = [BR[1], BR[3], BR[2], BR[4]]
    nextA = OPT['la'] + 1
    OC = OPT['oc']
    for s in range(9):
        n = vm.wait_for(lambda t: t in (('A', s), ('B', s)) or (s == OC and t == 'of'))
        if s == 1 and OPT['ep']: lds_wait(24, 4)
        if s == 8:
            lds_wait(4, 4)
            stamp(a, 8)
            for w in range(2):
                for j in range(5): a(f"ds_read_b128 {GT[w][j]}, {GB} offset:{w*5120 + j*1024}")
        a(f"s_waitcnt vmcnt({n})" + (" lgkmcnt(0)" if s == (6 if OPT['gf'] & 2 else 4) else ""))
        if OPT['stamp'] == 4:
            a("s_waitcnt lgkmcnt(0)")
            a(f"v_writelane_b32 v255, s92, {40 + s}")
            a("s_memtime s[92:93]")
        if NBA and s == 1: go_logic(n, False)
        if s == OC:
            stamp(a, 18)
            a(f"v_cmp_ne_u32 vcc, 0, {t2}"); a("s_nop 0"); a("s_cbranch_vccnz P2_OOK")
            if not OPT['noc']: vpoll(a, vz, sFHo, 8, t2)
            a.label('P2_OOK')
            a(f"s_mov_b32 {sTO}, 0x40000")
            stamp(a, 9)
        if OPT['sent'] and s >= 4:
            a.label(f'VER{s}')
            regs = [AR[s % NA][tt][k] for tt in range(4) for k in range(4)]
            a(f"v_max3_u32 {t4}, {regs[0]}, {regs[1]}, {regs[2]}")
            a(f"v_max3_u32 {t1}, {regs[3]}, {regs[4]}, {regs[5]}")
            for k in (6, 10):
                a(f"v_max3_u32 {t4}, {t4}, {regs[k]}, {regs[k+1]}"); a(f"v_max3_u32 {t1}, {t1}, {regs[k+2]}, {regs[k+3]}")
            a(f"v_max3_u32 {t4}, {t4}, {regs[14]}, {regs[15]}")
            a(f"v_max_u32 {t4}, {t4}, {t1}")
            a(f"v_cmp_eq_u32 vcc, -1, {t4}")
            a("s_nop 0")
            a(f"s_cbranch_vccnz RET{s}")
            a.label(f'VOK{s}')
        side = []
        if OPT['fair'] and s in eval(OPT['fc']): a(f"s_setprio {eval(OPT['fc'])[s]}")
        if s == OC - 1:
            side.append(f"buffer_load_dword {t2}, {vz}, {rWS}, {sFHo} offen offset:8 sc1"); vm.issue('of')
        while s >= 1 and nextA <= s + OPT['la'] and nextA < 9 and (nextA < 4 or s >= OC):
            side += a_loads(nextA, ('A', nextA), VT); nextA += 1
        if 1 <= s <= 5:
            g_ = CG_[s + 3]
            if OPT['bx'] and s + 3 == 7: pass
            elif g_ < 3: side += ["ds_read_b128 %s, %s offset:%d" % ((BR[(s+3)%4][j],) + crow(g_, j)) for j in range(5)]
            else: side += b_reg(vm, s + 3, ('B', s + 3), None, g_, CB0)
        if s < 8: mm(s, range(4) if s == 0 else [], side, 1 if len([x for x in side if not x.startswith('s_')]) > 10 else 2, 4 if OPT['bx'] and s == 7 else None)
        else:
            for tt in (1, 2, 3, 0):
                for j in range(5):
                    d = ACC[tt][j]
                    a(f"v_mfma_f32_16x16x32_bf16 {d}, {BR[0][j]}, {AR[8 % NA][tt]}, {d}")
                    if tt in (1, 2): a(f"ds_read_b128 {GT[tt+1][j]}, {GB} offset:{(tt+1)*5120 + j*1024}")
                    pt = {1: None, 2: None, 3: 1, 0: 2}[tt]
                    if pt: a("ds_write_b128 %s, %s offset:%d" % (crow(pt-1, j)[0], ACC[pt][j], crow(pt-1, j)[1]))
            for j in range(5): a("ds_write_b128 %s, %s offset:%d" % (crow(2, j)[0], ACC[3][j], crow(2, j)[1]))
    if OPT['stamp'] == 4:
        a("s_waitcnt lgkmcnt(0)"); a(f"v_writelane_b32 v255, s92, {49}"); a("s_memtime s[92:93]"); a("s_waitcnt lgkmcnt(0)"); a(f"v_writelane_b32 v255, s92, {50}")
    a("s_waitcnt lgkmcnt(15)")
    for j in range(5):
        for h in range(2):
            sl = slice(2*h, 2*h+2)
            a(f"v_pk_add_f32 {GT[0][j][sl]}, {GT[0][j][sl]}, {GT[1][j][sl]}")
            a(f"v_pk_add_f32 {GT[2][j][sl]}, {GT[2][j][sl]}, {GT[3][j][sl]}")
    stamp(a, 10)
    lds_signal(8)
    for j in range(5):
        for h in range(2):
            sl = slice(2*h, 2*h+2)
            a(f"v_pk_add_f32 {GT[0][j][sl]}, {GT[0][j][sl]}, {GT[2][j][sl]}")
            a(f"v_pk_add_f32 {ACC[0][j][sl]}, {GT[0][j][sl]}, {ACC[0][j][sl]}")
    lds_wait(8, 4)
    RD = [ACC[1], ACC[2], ACC[3]]
    if OPT['fin'] == 0:
        for q in range(3):
            for j in range(5): a(f"ds_read_b128 {RD[q][j]}, {XB[q]} offset:{j*1024}")
        for q in range(3):
            a(f"s_waitcnt lgkmcnt({10 - 5*q})")
            for j in range(5):
                for h in range(2): a(f"v_pk_add_f32 {ACC[0][j][2*h:2*h+2]}, {ACC[0][j][2*h:2*h+2]}, {RD[q][j][2*h:2*h+2]}")
                if q == 2:
                    for h in range(2): a(f"v_pk_mul_f32 {ACC[0][j][2*h:2*h+2]}, {ACC[0][j][2*h:2*h+2]}, {V(22, 2)} op_sel_hi:[1,0]")
                    a(f"v_cvt_pk_bf16_f32 {ACC[1][j][0]}, {ACC[0][j][0]}, {ACC[0][j][1]}")
                    a(f"v_cvt_pk_bf16_f32 {ACC[1][j][1]}, {ACC[0][j][2]}, {ACC[0][j][3]}")
                    a(f"buffer_store_dwordx2 {ACC[1][j][0:2]}, {t0}, {rOUT}, {sT2} offen offset:{j*32} {OPT['ost']}")
    else:
        for j in range(5):
            for q in range(3): a(f"ds_read_b128 {RD[q][j]}, {XB[q]} offset:{j*1024}")
        OUTR = [GT[1][0], GT[1][1], GT[1][2]]
        for j in range(5):
            a(f"s_waitcnt lgkmcnt({12 - 3*j})")
            for h in range(2):
                sl = slice(2*h, 2*h+2)
                a(f"v_pk_add_f32 {RD[0][j][sl]}, {RD[0][j][sl]}, {RD[1][j][sl]}")
                a(f"v_pk_add_f32 {ACC[0][j][sl]}, {ACC[0][j][sl]}, {RD[2][j][sl]}")
            for h in range(2):
                sl = slice(2*h, 2*h+2)
                a(f"v_pk_add_f32 {ACC[0][j][sl]}, {ACC[0][j][sl]}, {RD[0][j][sl]}")
            for h in range(2): a(f"v_pk_mul_f32 {ACC[0][j][2*h:2*h+2]}, {ACC[0][j][2*h:2*h+2]}, {V(22, 2)} op_sel_hi:[1,0]")
            o_ = OUTR[j // 2]
            a(f"v_cvt_pk_bf16_f32 {o_[2*(j%2)]}, {ACC[0][j][0]}, {ACC[0][j][1]}")
            a(f"v_cvt_pk_bf16_f32 {o_[2*(j%2)+1]}, {ACC[0][j][2]}, {ACC[0][j][3]}")
            if j % 2 == 1:
                a(f"v_permlane16_swap_b32 {o_[0]}, {o_[2]}"); a(f"v_permlane16_swap_b32 {o_[1]}, {o_[3]}")
                a(f"buffer_store_dwordx4 {o_}, {t3}, {rOUT}, {sT2} offen offset:{(j-1)*32} {OPT['ost']}")
            if j == 4: a(f"buffer_store_dwordx2 {o_[0:2]}, {t0}, {rOUT}, {sT2} offen offset:128 {OPT['ost']}")
    a.label('P2_FIN')
    if OPT['stamp'] or OPT['pad']:
        a("s_waitcnt vmcnt(0)")
        stamp(a, 11)
    stamp_flush(a)
    if OPT['pad']:
        if OPT['padwg'] < 999: a(f"s_cmp_lg_u32 s2, {OPT['padwg']}"); a(f"s_cbranch_scc1 {END}")
        a.label('PADL')
        a("s_sleep 1"); a("s_memrealtime s[12:13]"); a("s_waitcnt lgkmcnt(0)"); a("s_sub_u32 s12, s12, s10")
        a(f"s_cmp_lt_u32 s12, {OPT['pad']*100}"); a("s_cbranch_scc1 PADL")
    a.label(END)
    a.label('K_LAST')
    a("s_endpgm")
    if OPT['sent']:
        for s in range(4, 9):
            a.label(f'RET{s}')
            a(f"s_sub_u32 {sTO}, {sTO}, 1")
            a(f"s_cselect_b32 {sTO}, 0, {sTO}")
            a(f"s_cbranch_scc1 VOK{s}")
            a(f"s_sleep {OPT['rsl']}")
            for l in a_loads(s, 'r', VT): a(l)
            a("s_waitcnt vmcnt(0)")
            a(f"s_branch VER{s}")

def build():
    hdr = open(f'cdna_kernels/{NAME}.s.ref').read().split('; Override launch')[0]
    name = NAME + '_kernel'
    out = hdr + "; @launch grid=(256,1,1) block=(512,1,1) lds=163840\n"
    out += '.amdgcn_target "amdgcn-amd-amdhsa--gfx950"\n.text\n'
    a = Asm(); kernel(a)
    out += f".globl {name}\n.p2align 8\n.type {name},@function\n{name}:\n" + a.finalize()
    print('instrs', len(a.ins), 'nops', a.nnop, file=sys.stderr)
    out += f""".section .rodata,"a"
.p2align 6
.amdhsa_kernel {name}
  .amdhsa_next_free_vgpr 256
  .amdhsa_next_free_sgpr 102
  .amdhsa_accum_offset 256
  .amdhsa_group_segment_fixed_size 0
  .amdhsa_kernarg_size 96
  .amdhsa_user_sgpr_count 2
  .amdhsa_user_sgpr_kernarg_segment_ptr 1
  .amdhsa_system_sgpr_workgroup_id_x 1
.end_amdhsa_kernel
"""
    return out

if __name__ == '__main__':
    outp = sys.argv[1]
    for o in sys.argv[2:]:
        k, v = o.split('=', 1); OPT[k] = int(v) if v.isdigit() else v
    open(outp, 'w').write(build())
```

```python
import sys
sys.path.insert(0, 'gen')
from asmlib import *
NAME = 'gated_mix__linear_kernel_hedgehog__swiglu_ffn__prompt'
AP = 0; BP = 0xA00000; PQ = 0xD00000; KVACC = 0x1200000; FH = 0x1230000; FK = 0x1232000; FP = 0x1234000; ZEND = 0x1235000
GOFF = 0x1240000; DUMMY = 0x1250000; STAMP = 0x1300000; WSZ = 0x1600000
LOG2E = 0x3fb8aa3b; NLOG2E = 0xbfb8aa3b
OPT = dict(stamp=0, touch=2, bs="{'p0':(0,2),'p1':(2,5),3:(5,8),7:(8,10)}", pp=0, spnt='nt', rot2=0, slp=1, early=1, btouch=0, atf='sc1', cpf=12, nobar=18, chk=12, sent=0, two=0, ilh=5, ill=4, nog=0, asg=0, ksp=0, gnt='', tfl='', bx=0, ep=0, map2=1, hd=0, gq=0, lbt=0, tw=0, trim=1, nba=0, la=3, spr=0, fin=1, stp=0, nob=0, noc=0, nok=0, noh=0, t2si=2, swp=1, gf=0, b23=1, tlb=0, padwg=999, padev=0, fair=1, fg='{0:2,5:1,7:3}', fc='{0:1,4:0}', npk=0, eprio=2, gprio=3, oc=2, oord=1, noa=0, pj=18, t2s=0, x0e=1, sb1=1, sb2=1, t2pos=1, pad=0, bt=0, tsl=4, rsl=8, cprio2=0, at=0, kh=0, cprio=3, oh1=19, gdel=0, fill=0, spst='sc1', t2a='[0]', t2b='[2]', t2f='{0:(5,6),1:(4,3),2:(7,4),3:(6,5),5:(9,6),6:(8,3)}', t2q='{}', xfl='', wfl='', il=4, qbar=0, prio=0, dbgt=0, ost='nt')
ST = 'sc1'; LD = 'sc1'

pX, pQKV, pPHI, pWO, pBX, pWG, pWU, pWD = [S(16 + 2 * i, 2) for i in range(8)]
pGW, pOUT, pDBG, pWS = [S(32 + 2 * i, 2) for i in range(4)]
sWV = S(3)
rX, rW, rWS, rA, rB = S(40, 4), S(44, 4), S(48, 4), S(52, 4), S(56, 4)
sC = S(60, 2)
rDBG = S(84, 4)
sFLAG = S(88); sTO = S(89); sNEED = S(7)
GOD = 0x1000
sP = S(14, 2)
XSLOT = 32768; WB = 98304
GWB = 159744; CNT = 161024; ZERO = 161280; KVB = 147456

def srd(a, d, base, size):
    a(f"s_mov_b32 {d[0]}, {base[0]}")
    a(f"s_and_b32 {d[1]}, {base[1]}, 0xffff")
    a(f"s_mov_b32 {d[2]}, {size}")
    a(f"s_mov_b32 {d[3]}, 0x20000")

def sstamp(a, j):
    if OPT['stamp'] != 3: return
    if j > 0: a(f"v_writelane_b32 v255, s92, {40 + j - 1}")
    a("s_memtime s[92:93]")
def stamp(a, idx):
    if OPT['pad'] and OPT['padev'] == idx:
        a("s_memrealtime s[10:11]"); a("s_waitcnt lgkmcnt(0)")
    if not OPT['stamp']: return
    if OPT['stamp'] >= 2 and idx not in (2, 3, 5, 11): return
    a("s_memrealtime s[90:91]")
    a("s_memtime s[92:93]")
    a("s_waitcnt lgkmcnt(0)")
    a(f"v_writelane_b32 v255, s90, {2*idx}")
    a(f"v_writelane_b32 v255, s92, {2*idx+1}")
def stamp_flush(a):
    if not OPT['stamp']: return
    if OPT['dbgt']:
        a("s_not_b32 s90, s10"); a("v_writelane_b32 v255, s90, 0")
        a("v_lshlrev_b32 v254, 1, v0"); a("v_add_u32 v254, 8, v254")
        a("s_mov_b32 exec_lo, 0x05555555"); a("s_mov_b32 exec_hi, 0")
        a(f"buffer_atomic_umax v255, v254, {rDBG}, 0 offen sc1")
        a("s_mov_b64 exec, -1")
        return
    a("v_writelane_b32 v255, s10, 0"); a("v_writelane_b32 v255, s12, 1")
    a("s_lshl_b32 s90, s2, 3")
    a(f"s_add_u32 s90, s90, {sWV}")
    a("s_lshl_b32 s90, s90, 8")
    a(f"s_add_u32 s90, s90, {STAMP + 0x80000}")
    a("v_lshlrev_b32 v254, 2, v0")
    a(f"buffer_store_dword v255, v254, {rWS}, s90 offen")

def vpoll(a, vzero, soff, off, tmp, extra=None, slp=None):
    L, D = a.newlabel('POLL'), a.newlabel('POLLD')
    a(f"s_mov_b32 {sTO}, 0x80000")
    a.label(L)
    if extra: a(extra)
    a(f"buffer_load_dword {tmp}, {vzero}, {rWS}, {soff} offen offset:{off} sc1")
    a("s_waitcnt vmcnt(0)")
    a(f"v_cmp_eq_u32 vcc, 0, {tmp}")
    a("s_nop 0")
    a(f"s_cbranch_vccz {D}")
    a(f"s_sleep {slp or OPT['slp']}")
    a(f"s_sub_u32 {sTO}, {sTO}, 1")
    a(f"s_cbranch_scc0 {L}")
    a.label(D)
def arrive(a, soff, need, z, one, nyounger=0):
    D = a.newlabel('ARR')
    a(f"v_mov_b32 {z}, 0"); a(f"v_mov_b32 {one}, 1")
    a(f"s_waitcnt vmcnt({nyounger})")
    a("s_mov_b64 exec, 1")
    a(f"buffer_atomic_add {one}, {z}, {rWS}, {soff} offen sc0 sc1")
    a("s_waitcnt vmcnt(0)")
    a(f"v_readfirstlane_b32 {sP[0]}, {one}")
    a(f"s_add_u32 {sP[1]}, {soff}, {GOD}")
    a(f"s_cmp_lg_u32 {sP[0]}, {need}")
    a(f"s_cbranch_scc1 {D}")
    a(f"buffer_store_dword {one}, {z}, {rWS}, {sP[1]} offen sc1")
    a.label(D)
    a("s_mov_b64 exec, -1")
def init_poll(a, reg, off):
    L, D = a.newlabel('POLL'), a.newlabel('POLLD')
    a(f"s_mov_b32 {sTO}, 0x80000")
    a.label(L)
    a(f"v_mov_b32 {reg}, 0")
    a(f"buffer_load_dword {reg}, {reg}, {rDBG}, 0 offen offset:{off} sc1")
    a("s_waitcnt vmcnt(0)")
    a(f"v_readfirstlane_b32 {sP[0]}, {reg}")
    a(f"s_cmp_lg_u32 {sP[0]}, 0")
    a(f"s_cbranch_scc1 {D}")
    a("s_sleep 2")
    a(f"s_sub_u32 {sTO}, {sTO}, 1")
    a(f"s_cbranch_scc0 {L}")
    a.label(D)

def softmax_unit(a, P, E, M, T, O, side=None):
    side = list(side or [])
    a(f"v_max3_f32 {M[0]}, {P[0]}, {P[1]}, {P[2]}")
    a(f"v_min3_f32 {M[2]}, {P[0]}, {P[1]}, {P[2]}")
    for i in range(3, 19, 2):
        a(f"v_max3_f32 {M[0]}, {M[0]}, {P[i]}, {P[i+1]}")
        a(f"v_min3_f32 {M[2]}, {M[2]}, {P[i]}, {P[i+1]}")
    a(f"v_max_f32 {M[0]}, {M[0]}, {P[19]}")
    a(f"v_min_f32 {M[2]}, {M[2]}, {P[19]}")
    a(f"v_mul_f32 {M[0]}, {sC[0]}, {M[0]}")
    a(f"v_mul_f32 {M[2]}, {sC[0]}, {M[2]}")
    for i in range(0, 20, 2):
        a(f"v_pk_fma_f32 {E[i:i+2]}, {P[i:i+2]}, {sC}, {M[0:2]} op_sel_hi:[1,1,0] neg_lo:[0,0,1] neg_hi:[0,0,1]")
        a(f"v_pk_fma_f32 {E[20+i:22+i]}, {P[i:i+2]}, {sC}, {M[2:4]} op_sel_hi:[1,1,0] neg_lo:[1,0,0] neg_hi:[1,0,0]")
    for i in range(40):
        a(f"v_exp_f32 {E[i]}, {E[i]}")
        if side and i % 2 == 1:
            x = side.pop(0)
            if x != "s_nop 0": a(x)
    for l in side: a(l)
    a(f"v_pk_add_f32 {T[0:2]}, {E[0:2]}, {E[2:4]}")
    a(f"v_pk_add_f32 {T[2:4]}, {E[20:22]}, {E[22:24]}")
    for i in range(4, 20, 2):
        a(f"v_pk_add_f32 {T[0:2]}, {T[0:2]}, {E[i:i+2]}")
        a(f"v_pk_add_f32 {T[2:4]}, {T[2:4]}, {E[20+i:22+i]}")
    a(f"v_add_f32 {T[0]}, {T[0]}, {T[1]}")
    a(f"v_add_f32 {T[2]}, {T[2]}, {T[3]}")
    a(f"v_rcp_f32 {T[0]}, {T[0]}")
    a(f"v_rcp_f32 {T[2]}, {T[2]}")
    for i in range(0, 20, 2):
        a(f"v_pk_mul_f32 {E[i:i+2]}, {E[i:i+2]}, {T[0:2]} op_sel_hi:[1,0]")
        a(f"v_pk_mul_f32 {E[20+i:22+i]}, {E[20+i:22+i]}, {T[2:4]} op_sel_hi:[1,0]")
    for i in range(20):
        a(f"v_cvt_pk_bf16_f32 {O[i]}, {E[2*i]}, {E[2*i+1]}")

def kernel(a):
    END = 'K_END'
    BS = eval(OPT['bs'])
    a("s_cmp_ge_u32 s2, 256")
    a(f"s_cbranch_scc1 {END}")
    if OPT['stamp']:
        a("s_memrealtime s[10:11]"); a("s_memtime s[12:13]"); a("v_mov_b32 v255, 0")
    if OPT['pad']: a("s_memrealtime s[10:11]")
    a("s_load_dwordx16 s[16:31], s[0:1], 0")
    a("s_load_dwordx8 s[32:39], s[0:1], 64")
    lane = V(0)
    tid, t0, t1, t2, t3, t4 = V(1), V(2), V(3), V(4), V(5), V(6)
    vqd, vr, vc, vl15 = V(7), V(8), V(9), V(10)
    vx = [V(11 + i) for i in range(4)]
    xa = [[V(15), V(16)], [V(17), V(18)]]
    tdum = V(19); ta = V(32, 2); tb = V(34, 2)
    R0 = 24
    sTY, sRB, sXK, sWK, sM, sT0, sT1, sT2, sT3, sRG, sHI, sID, sMW, sC8, sR4 = [S(62 + i) for i in range(15)]
    a(f"v_lshrrev_b32 {t0}, 6, v0")
    a(f"v_mov_b32 {tid}, v0")
    a(f"v_readfirstlane_b32 {sWV}, {t0}")
    a(f"v_and_b32 {lane}, 63, v0")
    a(f"s_bfe_u32 {sC8}, s2, 0x30003")
    a(f"s_lshr_b32 {sR4}, s2, 6")
    a(f"s_and_b32 {sRB}, s2, 1")
    a(f"s_lshl_b32 {sRB}, {sRB}, 2")
    a(f"s_add_u32 {sRB}, {sRB}, {sR4}")
    a(f"s_bfe_u32 {sT0}, s2, 0x20001")
    a(f"s_and_b32 {sRG}, {sWV}, 3")
    a(f"s_lshr_b32 {sHI}, {sWV}, 2")
    a(f"v_lshrrev_b32 {vqd}, 4, {lane}")
    a(f"v_bfe_u32 {vr}, {lane}, 2, 2")
    a(f"v_and_b32 {vc}, 3, {lane}")
    a(f"v_and_b32 {vl15}, 15, {lane}")
    a(f"v_lshrrev_b32 {t0}, 3, {lane}")
    a(f"v_mul_u32_u24 {t0}, 1280, {t0}")
    a(f"v_and_b32 {t1}, 7, {lane}")
    a(f"v_xor_b32 {t1}, {t1}, {vqd}")
    a(f"v_lshl_add_u32 {vx[0]}, {t1}, 4, {t0}")
    a(f"v_xor_b32 {t1}, 4, {t1}")
    a(f"v_lshl_add_u32 {vx[1]}, {t1}, 4, {t0}")
    a(f"v_add_u32 {vx[1]}, {8*1280-1024}, {vx[1]}")
    a(f"v_add_u32 {vx[2]}, {16*1280-2048}, {vx[0]}")
    a(f"v_add_u32 {vx[3]}, {16*1280-2048}, {vx[1]}")
    a(f"s_mul_i32 {sXK}, {sRB}, {256*1280}")
    a(f"s_mul_i32 {sT1}, {sWV}, {32*1280}")
    a(f"s_add_u32 {sXK}, {sXK}, {sT1}")
    a(f"s_lshl_b32 {sM}, {sWV}, 12")
    sXA, sXB = S(6), S(7)
    if OPT['swp']:
        a(f"s_add_u32 {sTY}, {sC8}, {sR4}"); a(f"s_and_b32 {sTY}, {sTY}, 1")
        a(f"s_lshl_b32 {sT1}, {sTY}, 7"); a(f"s_add_u32 {sXK}, {sXK}, {sT1}")
    a(f"v_lshlrev_b32 {t2}, 3, {tid}")
    a(f"v_min_u32 {t2}, {163840 - CNT - 8}, {t2}")
    a(f"v_add_u32 {t2}, {CNT}, {t2}")
    a(f"v_mov_b32 {ta[0]}, 0"); a(f"v_mov_b32 {ta[1]}, 0")
    a(f"ds_write_b64 {t2}, {ta}")
    a(f"s_mul_i32 {sID}, {sT0}, 9"); a(f"s_add_u32 {sID}, {sID}, 1"); a(f"s_lshr_b32 {sID}, {sID}, 1")
    a(f"s_add_u32 {sID}, {sID}, {sC8}"); a(f"s_sub_u32 {sID}, {sID}, 3")
    a(f"s_and_b32 {sT1}, {sT0}, 1"); a(f"s_add_u32 {sT1}, {sT1}, {sC8}")
    a(f"s_mov_b32 {sC[0]}, {LOG2E:#x}")
    a(f"s_mov_b32 {sC[1]}, {LOG2E:#x}")
    sU1, sU2, sBK = S(100), S(101), S(95)
    vt1, vt2 = V(22), V(23)
    T2 = OPT['touch'] >= 2; T3 = OPT['touch'] == 3
    rTT = S(96, 4)
    def t2_all(b0):
        return [f"s_mul_i32 s4, {sBK}, {b0}", f"s_add_u32 s4, s4, {sU2}",
                f"v_add_u32 v21, s4, {vt2}", f"s_mov_b64 exec, 0xff\nbuffer_load_dword {tdum}, v21, {rTT}, 0 offen\ns_mov_b64 exec, -1"]
    OOL = []
    def t2_one(b, c8v):
        lb = a.newlabel('T2')
        body = (f"s_mul_i32 s4, {sBK}, {b}\ns_add_u32 s4, s4, {sU1}\nv_add_u32 v3, s4, {vt1}\n" + ("s_mov_b32 exec_hi, 0\n", "s_mov_b64 exec, 0xffff\n", "s_mov_b64 exec, 0xff\n")[OPT['hd']] +
                f"buffer_load_dword {tdum}, v3, {rTT}, 0 offen\ns_mov_b64 exec, -1\n")
        if OPT['trim']:
            OOL.append(f"{lb}o:\n" + body + f"s_branch {lb}")
            return [f"s_cmp_eq_u32 {'s94' if OPT['hd'] else sC8}, {c8v}\ns_cbranch_scc1 {lb}o\n{lb}:"]
        return [f"s_cmp_lg_u32 {sC8}, {c8v}\ns_cbranch_scc1 {lb}\n" + body + f"{lb}:"]
    if T2:
        a(f"s_lshr_b32 s9, {sWV}, 1")
        a(f"s_mov_b32 {rTT[2]}, {2048*1280}"); a(f"s_movk_i32 {sBK}, 128")
        a("s_cmp_eq_u32 s9, 1")
        a(f"s_cselect_b32 {rTT[2]}, {640*3840}, {rTT[2]}"); a(f"s_cselect_b32 {sBK}, {64*3840}, {sBK}")
        a("s_cmp_ge_u32 s9, 2")
        a(f"s_cselect_b32 {rTT[2]}, {640*3456}, {rTT[2]}"); a(f"s_cselect_b32 {sBK}, {64*3456}, {sBK}")
        a(f"s_mov_b32 {rTT[3]}, 0x20000")
        a("s_cmp_eq_u32 s9, 0")
        a("s_movk_i32 s7, 128"); a("s_cselect_b32 s5, 1280, s7"); a("s_cselect_b32 s6, 640, s7"); a("s_cselect_b32 s7, 512, 0")
        a(f"v_mul_u32_u24 {vt1}, s5, {lane}")
        a(f"v_mul_u32_u24 {vt2}, s6, {lane}")
        a(f"v_and_b32 {t0}, 1, {lane}"); a(f"v_mul_u32_u24 {t0}, s7, {t0}"); a(f"v_sub_u32 {vt2}, {vt2}, {t0}")
        a(f"s_and_b32 s4, {sWV}, 1")
        a(f"s_lshl1_add_u32 {sU2}, s2, s4"); a(f"s_lshl_b32 {sU2}, {sU2}, 3"); a(f"s_mul_i32 {sU2}, {sU2}, s6")
        a(f"s_and_b32 {sU1}, s2, 7"); a(f"s_lshl2_add_u32 {sU1}, {sU1}, {sR4}")
        a(f"s_lshl1_add_u32 {sU1}, {sU1}, s4")
        if OPT['hd'] == 1:
            a(f"s_and_b32 s4, {sC8}, 1"); a(f"s_lshl1_add_u32 {sU1}, {sU1}, s4"); a(f"s_lshl_b32 {sU1}, {sU1}, 4")
            a(f"s_add_u32 s94, {sC8}, 1"); a("s_lshr_b32 s94, s94, 1")
        elif OPT['hd'] == 2:
            a(f"s_and_b32 s4, {sC8}, 3"); a(f"s_lshl2_add_u32 {sU1}, {sU1}, s4"); a(f"s_lshl_b32 {sU1}, {sU1}, 3")
            a(f"s_add_u32 s94, {sC8}, 1"); a("s_lshr_b32 s94, s94, 2")
        else: a(f"s_lshl_b32 {sU1}, {sU1}, 5")
        a(f"s_mul_i32 {sU1}, {sU1}, s5")
        a(f"v_add_u32 {t4}, {sU2}, {vt2}")
        if eval(OPT['t2a'])[0]:
            a(f"s_mul_i32 s4, {sBK}, {eval(OPT['t2a'])[0]}"); a(f"v_add_u32 {t4}, s4, {t4}")
    a(f"s_mov_b32 {rX[2]}, {2048*1280}"); a(f"s_mov_b32 {rX[3]}, 0x20000")
    a(f"s_mov_b32 m0, {sM}")
    a("s_waitcnt lgkmcnt(0)")
    if T2:
        a("s_cmp_eq_u32 s9, 1"); a(f"s_cselect_b64 {rTT[0:2]}, {pQKV}, {pX}")
        a("s_cmp_eq_u32 s9, 2"); a(f"s_cselect_b64 {rTT[0:2]}, {pWG}, {rTT[0:2]}")
        a("s_cmp_eq_u32 s9, 3"); a(f"s_cselect_b64 {rTT[0:2]}, {pWU}, {rTT[0:2]}")
        a(f"s_and_b32 {rTT[1]}, {rTT[1]}, 0xffff")
        a("s_mov_b64 exec, 0xff"); a(f"buffer_load_dword {tdum}, {t4}, {rTT}, 0 offen"); a("s_mov_b64 exec, -1")
        for b0 in eval(OPT['t2a'])[1:]:
            for l in t2_all(b0): a(l)
    a(f"s_mov_b32 {rX[0]}, {pX[0]}"); a(f"s_and_b32 {rX[1]}, {pX[1]}, 0xffff")
    if OPT['x0e']:
        a(f"s_cmp_eq_u32 {sT1}, 8"); a("s_cbranch_scc1 NOX0")
        if OPT['sb1']: a("s_barrier")
        for n in range(4): a(f"buffer_load_dwordx4 {vx[n]}, {rX}, {sXK} offen offset:{n*1024} lds")
        a.label("NOX0")
    srd(a, rWS, pWS, WSZ)
    srd(a, rDBG, pDBG, 256)
    if OPT['tlb']:
        a(f"s_cmp_lg_u32 {sWV}, 6"); a("s_cbranch_scc1 NOTLB")
        srd(a, rA, pOUT, 2048 * 1280)
        a(f"v_lshlrev_b32 {t0}, {OPT['tlb']}, {lane}")
        a("s_lshl_b32 s6, s2, 7"); a(f"v_add_u32 {t0}, s6, {t0}")
        a(f"v_min_u32 {t1}, {0x1250000}, {t0}")
        a(f"buffer_load_dword v31, {t1}, {rWS}, 0 offen")
        a(f"buffer_load_dword v31, {t0}, {rA}, 0 offen")
        a.label("NOTLB")
    if OPT['cpf']:
        a(f"s_cmp_lg_u32 {sWV}, 7"); a("s_cbranch_scc1 NOCPF")
        a("s_getpc_b64 s[90:91]")
        a.label("CPF_PC")
        a("s_lshr_b32 s6, s2, 3"); a(f"s_mul_i32 s6, s6, {OPT['cpf']*128}")
        a(f"v_lshlrev_b32 {t0}, 7, {lane}"); a(f"v_add_u32 {t0}, s6, {t0}")
        a(f"v_min_u32 {t0}, K_LAST-CPF_PC, {t0}")
        a(f"s_mov_b64 exec, {(1 << OPT['cpf']) - 1:#x}")
        a(f"global_load_dword v31, {t0}, s[90:91]")
        a("s_mov_b64 exec, -1")
        a.label("NOCPF")
    if OPT['swp']: a(f"s_lshl_b32 s4, {sTY}, 8"); a(f"s_sub_u32 {sXA}, 128, s4"); a(f"s_add_u32 {sXB}, s4, 128")
    a(f"s_cmp_lt_u32 {sC8}, 3")
    a("s_cbranch_scc1 R_QKV")
    a(f"s_cmp_eq_u32 {sT1}, 8")
    a("s_cbranch_scc1 R_SPARE")

    def x_dma(vm, blk, half):
        if blk == 0 and OPT['x0e']:
            vm.issue(('X', 0)); vm.issue(('X', 0)); return []
        l = [f"s_add_u32 m0, {sM}, {(blk % 3) * XSLOT}"]
        if half == 0 and blk > 0: l.append(f"s_add_u32 {sXK}, {sXK}, {(sXA if blk % 2 else sXB) if OPT['swp'] else 128}")
        for n in (2 * half, 2 * half + 1):
            l.append(f"buffer_load_dwordx4 {vx[n]}, {rX}, {sXK} offen offset:{n*1024} {OPT['xfl']} lds")
            vm.issue(('X', blk))
        return l
    def x_addr_setup():
        a(f"v_lshrrev_b32 {t0}, 1, {vl15}")
        a(f"v_xor_b32 {t0}, {t0}, {vqd}")
        a(f"v_lshlrev_b32 {t0}, 4, {t0}")
        a(f"v_lshl_add_u32 {t0}, {vl15}, 7, {t0}")
        a(f"s_lshl_b32 {sT0}, {sRG}, 13")
        a(f"v_add_u32 {xa[0][0]}, {sT0}, {t0}")
        a(f"v_xor_b32 {xa[0][1]}, 64, {xa[0][0]}")
        a(f"v_add_u32 {xa[1][0]}, 0x10000, {xa[0][0]}")
        a(f"v_add_u32 {xa[1][1]}, 0x10000, {xa[0][1]}")
    def x_reads(XF, step):
        blk, kk = step // 2, step % 2
        sl = blk % 3
        return [f"ds_read_b128 {XF[tt]}, {xa[sl // 2][kk]} offset:{(sl % 2) * XSLOT + tt * 2048}" for tt in range(4)]
    def burst(vm, b0, b1):
        if OPT['touch'] not in (1, 3): return []
        l = []
        for st, reg in ((0, ta), (5, tb)):
            lo, hi = max(b0, st) - st, min(b1, st + 5) - st
            if lo >= hi: continue
            m = ((1 << (12 * hi)) - 1) & ~((1 << (12 * lo)) - 1)
            l += [f"s_mov_b32 exec_lo, {m & 0xffffffff:#x}", f"s_mov_b32 exec_hi, {m >> 32:#x}", f"global_load_dword {tdum}, {reg}, off"]
            vm.issue('T')
        l.append("s_mov_b64 exec, -1")
        return l
    def touch_setup(pw0, pw1, rowbytes, off0, off1, seg):
        if OPT['touch'] not in (1, 3): return
        l12, bi = tb[0], tb[1]; tinc = V(36)
        a(f"v_mul_u32_u24 {bi}, 43, {lane}"); a(f"v_lshrrev_b32 {bi}, 9, {bi}")
        a(f"v_mul_u32_u24 {l12}, 12, {bi}"); a(f"v_sub_u32 {l12}, {lane}, {l12}")
        a(f"s_lshl_b32 {sT2}, {sRB}, 3"); a(f"s_add_u32 {sT2}, {sT2}, {sC8}"); a(f"s_lshl_b32 {sT2}, {sT2}, 3"); a(f"s_add_u32 {sT2}, {sT2}, {sWV}")
        a(f"s_mul_i32 {sT2}, {sT2}, {4*1280}")
        a(f"v_mul_u32_u24 {t0}, 1280, {l12}")
        a(f"v_add_u32 {t0}, {sT2}, {t0}")
        a(f"s_lshl_b32 {sT0}, {sR4}, 3"); a(f"s_add_u32 {sT0}, {sT0}, {sWV}"); a(f"s_mul_i32 {sT0}, {sT0}, {2*rowbytes}")
        a(f"v_subrev_u32 {t1}, 4, {l12}")
        a(f"v_bfe_u32 {t2}, {t1}, 2, 1")
        a(f"v_mul_u32_u24 {t2}, {rowbytes}, {t2}")
        a(f"v_and_b32 {t3}, 1, {t1}")
        a(f"v_mul_u32_u24 {t3}, {seg-4}, {t3}")
        a(f"v_add3_u32 {t2}, {t2}, {t3}, {sT0}")
        a(f"v_and_b32 {t3}, 2, {t1}")
        a(f"v_cmp_eq_u32 vcc, 0, {t3}")
        a(f"v_mov_b32 {t3}, {off1}"); a(f"v_mov_b32 {t4}, {off0}")
        a(f"v_cndmask_b32 {t3}, {t3}, {t4}, vcc")
        a(f"v_add_u32 {t2}, {t2}, {t3}")
        a(f"v_mov_b32 {t3}, {pw1[0]}"); a(f"v_mov_b32 {t4}, {pw0[0]}"); a(f"v_cndmask_b32 {ta[0]}, {t3}, {t4}, vcc")
        a(f"v_mov_b32 {t3}, {pw1[1]}"); a(f"v_mov_b32 {t4}, {pw0[1]}"); a(f"v_cndmask_b32 {ta[1]}, {t3}, {t4}, vcc")
        a(f"v_cmp_gt_u32 vcc, 4, {l12}")
        a(f"v_mov_b32 {t3}, {pX[0]}"); a(f"v_mov_b32 {t4}, {pX[1]}")
        a(f"v_cndmask_b32 {t2}, {t2}, {t0}, vcc")
        a(f"v_cndmask_b32 {ta[0]}, {ta[0]}, {t3}, vcc")
        a(f"v_cndmask_b32 {ta[1]}, {ta[1]}, {t4}, vcc")
        a(f"v_mov_b32 {t3}, {64*rowbytes}"); a(f"v_mov_b32 {t4}, 128"); a(f"v_cndmask_b32 {tinc}, {t3}, {t4}, vcc")
        a(f"v_mad_u32_u24 {t2}, {tinc}, {bi}, {t2}")
        a(f"v_add_co_u32 {ta[0]}, vcc, {ta[0]}, {t2}")
        a(f"v_mul_u32_u24 {t2}, 5, {tinc}")
        a(f"v_addc_co_u32 {ta[1]}, vcc, 0, {ta[1]}, vcc")
        a(f"v_add_co_u32 {tb[0]}, vcc, {ta[0]}, {t2}")
        a(f"v_addc_co_u32 {tb[1]}, vcc, 0, {ta[1]}, vcc")
    HALF = [None]
    def step_body(mains, lblk, pre=[]):
        for l in pre: a(l)
        if not lblk:
            for m in mains: a(m)
            return
        if OPT['pp'] == 2:
            rds = [l for l in lblk if l.startswith('ds_read')]; oth = [l for l in lblk if not l.startswith('ds_read')]
            l1, l2 = a.newlabel('PP'), a.newlabel('PP')
            if oth:
                a(f"s_cmp_eq_u32 {sHI}, 0"); a(f"s_cbranch_scc1 {l1}")
                for l in oth: a(l)
                a.label(l1)
            k = 0
            for i, m in enumerate(mains):
                a(m)
                while k < len(rds) and k < (i + 1) * max(1, -(-len(rds) // len(mains))):
                    a(rds[k]); k += 1
            if oth:
                a(f"s_cmp_eq_u32 {sHI}, 0"); a(f"s_cbranch_scc0 {l2}")
                for l in oth: a(l)
                a.label(l2)
        elif OPT['pp']:
            l1, l2 = a.newlabel('PP'), a.newlabel('PP')
            a(f"s_cmp_eq_u32 {sHI}, 0"); a(f"s_cbranch_scc1 {l1}")
            for l in lblk: l() if callable(l) else a(l)
            a.label(l1)
            for m in mains: a(m)
            a(f"s_cmp_eq_u32 {sHI}, 0"); a(f"s_cbranch_scc0 {l2}")
            for l in lblk: l() if callable(l) else a(l)
            a.label(l2)
        else:
            rds = [l for l in lblk if l.startswith('ds_read')]; oth = [l for l in lblk if not l.startswith('ds_read')]
            units = []; cur = []
            for l in oth:
                cur.append(l)
                if 'buffer_' in l or 'ds_write' in l: units.append(cur); cur = []
            if cur: units.append(cur)
            n = len(mains); mode = OPT['il']
            if HALF[0] == 'hi': mode = OPT['ilh']
            if HALF[0] == 'lo': mode = OPT['ill']
            pos = {}
            if mode == 5:
                for l in oth: a(l)
                for k, r in enumerate(rds): pos.setdefault(min(n - 1, k * min(n, len(rds)) // len(rds) if len(rds) > n else k), []).append(r)
            elif mode == 6:
                for l in rds + oth: a(l)
            elif mode == 7:
                for k, r in enumerate(rds): pos.setdefault(min(n - 1, k * min(n, len(rds)) // len(rds) if len(rds) > n else k), []).append(r)
                pos.setdefault(n - 1, []).extend(oth)
            elif mode == 8:
                for l in oth + rds[:8]: a(l)
                for k, r in enumerate(rds[8:]): pos.setdefault(min(n - 1, k), []).append(r)
            if mode >= 5: pass
            elif mode == 0:
                seq = [[r] for r in rds] + units
                for k, u in enumerate(seq): pos.setdefault(min(n - 1, k * n // max(len(seq), n)), []).extend(u)
            elif mode == 1:
                for k, u in enumerate(units): pos.setdefault(min(n - 1, 2 * k), []).extend(u)
                for k, r in enumerate(rds): pos.setdefault(min(n - 1, k * min(n, len(rds)) // len(rds) if len(rds) > n else k), []).append(r)
            elif mode == 2:
                for k, r in enumerate(rds): pos.setdefault(min(n - 1, k // 2), []).append(r)
                for k, u in enumerate(units): pos.setdefault(min(n - 1, len(rds) // 2 + 2 * k), []).extend(u)
            elif mode == 3:
                for k, u in enumerate(units): pos.setdefault(min(n - 1, 1 + k * (2 * n // 3) // max(1, len(units))), []).extend(u)
                for k, r in enumerate(rds): pos.setdefault(min(n - 1, k * min(n, len(rds)) // len(rds) if len(rds) > n else k), []).append(r)
            elif mode == 4:
                k = 0
                for i in range(n):
                    while k < len(lblk) and k < (i + 1) * len(lblk) // n + 1:
                        pos.setdefault(i, []).append(lblk[k]); k += 1
            for i, m in enumerate(mains):
                a(m)
                for l in pos.get(i, []): a(l)
    def init_check_issue(reg, off=128):
        return [f"v_mov_b32 {reg}, 0", f"buffer_load_dword {reg}, {reg}, {rDBG}, 0 offen offset:{off} sc1"]
    def init_check(reg, off=128, ool=False):
        ok = a.newlabel('INITOK')
        a(f"v_readfirstlane_b32 {sP[0]}, {reg}")
        if ool and OPT['trim']:
            a(f"s_cmp_eq_u32 {sP[0]}, 0"); a(f"s_cbranch_scc1 {ok}o"); a.label(ok)
            b = Asm(); b.uid = a.uid + 1000; init_poll(b, reg, off); a.uid += 5
            OOL.append(f"{ok}o:\n" + "\n".join(x.text for x in b.ins) + f"\ns_branch {ok}")
            return
        a(f"s_cmp_lg_u32 {sP[0]}, 0")
        a(f"s_cbranch_scc1 {ok}")
        init_poll(a, reg, off)
        a.label(ok)
    sR6, sCG, sAo, sBg, sBo, sLC, sH2, sRX = [S((16 if OPT['trim'] else 94) + i) for i in range(8)]
    vo, vo4 = V(20), V(21)
    vS2 = V(30)
    sO1, sO2 = S(79), S(80)
    BRb = [208, 228, 32, 52]
    BR = [[V(BRb[b] + 4 * j, 4) for j in range(5)] for b in range(4)]
    BR.append([V(200, 4), V(204, 4), V(248, 4), V(24, 4), V(28, 4)])
    NA = 3 if OPT['bx'] else 4
    GL = [4, 6, 7, 9]; LR = [2, 5, 3, 4]; CR = [0, 1, 6]
    GRP = {0:0, 1:1, 2:2, 3:3, 4:8, 6:9, 7:10, 9:11, 5:12, 8:13}
    if OPT['gf'] & 1:
        GL = [6, 7, 8, 9]; GRP = {0:0, 1:1, 2:2, 3:3, 6:8, 7:9, 8:10, 9:11, 4:12, 5:13}
    INP2 = [False]
    BS_ = 40960; GS_ = 4 * BS_
    CB0 = 38 * BS_; CA0 = 38 * 4096
    def p2_setup():
        if OPT['map2'] == 2:
            hd = [f"s_bfe_u32 {sR6}, s2, 0x10002", "s_lshr_b32 s4, s2, 4", f"s_lshl4_add_u32 {sR6}, {sR6}, s4",
                  f"s_lshr_b32 {sCG}, s2, 3", "s_lshr_b32 s4, s2, 6", f"s_add_u32 {sCG}, {sCG}, s4", f"s_and_b32 {sCG}, {sCG}, 1", "s_and_b32 s4, s2, 3", f"s_lshl1_add_u32 {sCG}, s4, {sCG}"]
        elif OPT['map2']:
            hd = [f"s_bfe_u32 {sR6}, s2, 0x20001", "s_lshr_b32 s4, s2, 5", f"s_lshl3_add_u32 {sR6}, {sR6}, s4",
                  f"s_lshr_b32 {sCG}, s2, 3", "s_lshr_b32 s4, s2, 6", f"s_add_u32 {sCG}, {sCG}, s4", f"s_and_b32 {sCG}, {sCG}, 3", "s_and_b32 s4, s2, 1", f"s_lshl2_add_u32 {sCG}, s4, {sCG}"]
        else:
            hd = [f"s_and_b32 {sR6}, s2, 7", f"s_lshl_b32 {sR6}, {sR6}, 2", "s_lshr_b32 s4, s2, 6", f"s_add_u32 {sR6}, {sR6}, s4",
             f"s_bfe_u32 {sCG}, s2, 0x30003", f"s_lshl1_add_u32 {sCG}, s4, {sCG}", f"s_and_b32 {sCG}, {sCG}, 7"]
        return hd + [f"v_lshlrev_b32 {vo}, 4, {lane}", f"v_add_u32 {vo4}, 4096, {vo}",
             f"s_lshl3_add_u32 {sBg}, {sRG}, {sCG}", f"s_mul_i32 {sBg}, {sBg}, 5120", f"s_add_u32 {sBg}, {sBg}, {BP}",
             f"s_mov_b32 {rB[0]}, {pWS[0]}", f"s_and_b32 {rB[1]}, {pWS[1]}, 0xffff", f"s_mul_i32 {rB[2]}, {sHI}, {WSZ}", f"s_mov_b32 {rB[3]}, 0x20000",
             f"s_mul_i32 {sLC}, {sRG}, 5120", f"s_mul_i32 {sH2}, {sHI}, {GS_}", f"s_mul_i32 {sRX}, {sHI}, 20480",
             f"s_xor_b32 s4, {sHI}, 1", f"s_mul_i32 {sBo}, s4, {16*BS_}", f"s_add_u32 {sBo}, {sBo}, {sBg}",
             f"s_mul_i32 {sAo}, {sR6}, 74", f"s_mul_i32 s4, s4, 16", f"s_add_u32 {sAo}, {sAo}, s4", f"s_add_u32 {sAo}, {sAo}, {sRG}", f"s_lshl_b32 {sAo}, {sAo}, 12",
             f"s_lshr_b32 s4, {sCG}, 1", "s_mul_i32 s4, s4, 5", f"s_mul_i32 {sO2}, {sR6}, 74", f"s_add_u32 {sO2}, {sO2}, s4", f"s_add_u32 {sO2}, {sO2}, 54",
             f"s_lshl2_add_u32 {sO2}, {sO2}, {sRG}", f"s_lshl_b32 {sO2}, {sO2}, 10", f"s_and_b32 s4, {sCG}, 1", f"s_mul_i32 {sO1}, s4, {3*4096}",
             f"s_add_u32 {sO1}, {sO1}, {sO2}", "s_lshl_b32 s4, s4, 9", f"s_add_u32 {sO2}, {sO2}, s4", f"s_add_u32 {sO2}, {sO2}, 8192",
             f"s_lshl_b32 s78, {sR6}, 7", f"s_add_u32 s78, s78, {FH + GOD}"]
    vFQ = V(31)
    def q_flag_issue(): return [f"v_mov_b32 {vFQ}, 0", f"buffer_load_dword {vFQ}, {vFQ}, {rWS}, s78 offen offset:4 sc1"]
    def poison(R4):
        if not OPT['sent']: return []
        lb = a.newlabel('PO')
        return [f"s_cmp_eq_u32 {sHI}, 1\ns_cbranch_scc1 {lb}\n" + "\n".join(f"v_mov_b32 {R4[i]}, -1" for i in range(4)) +
                f"\nbuffer_store_dwordx4 {R4}, {vo}, {rWS}, {sO1} offen {ST}\nbuffer_store_dwordx4 {R4}, {vo4}, {rWS}, {sO1} offen {ST}"
                f"\ns_mov_b32 exec_hi, 0\nbuffer_store_dwordx4 {R4}, {vo}, {rWS}, {sO2} offen {ST}\ns_mov_b32 exec_hi, -1\n{lb}:"]
    def b_reg(vm, i, tag, r=None, grp=None, ext=0, buf=None):
        b = i % 4 if buf is None else buf; r = r or rWS; grp = i if grp is None else grp
        if INP2[0] and OPT['nob'] == 1: r = rA
        if INP2[0] and OPT['nob'] == 2: return []
        l = [f"s_add_u32 s4, {sBo}, {grp*GS_ + ext}"]
        for j in range(5):
            if j < 4: l.append(f"buffer_load_dwordx4 {BR[b][j]}, {vo}, {r}, s4 offen offset:{j*1024} {LD}")
            else: l.append(f"buffer_load_dwordx4 {BR[b][j]}, {vo4}, {r}, s4 offen {LD}")
            vm.issue(tag)
        return l
    def b_row(vm, base, grp, row, extra=None, ext=0, hi3=False):
        l = [f"s_add_u32 s4, {base}, {grp*GS_ + ext}", f"s_add_u32 s5, {sLC}, {row*20480}"]
        if hi3: l += [f"s_add_u32 s4, s4, {sH2}", f"s_mul_i32 s6, {sRX}, 3", "s_add_u32 s5, s5, s6"]
        if extra: l += [f"s_add_u32 s4, s4, {sH2}", f"s_add_u32 s5, s5, {extra}"]
        l.append("s_mov_b32 m0, s5")
        if INP2[0] and OPT['nob'] == 2: return []
        for j in range(4):
            l.append(f"buffer_load_dwordx4 {vo}, {rWS}, s4 offen offset:{j*1024} {LD} lds"); vm.issue('BL')
        l.append("s_add_u32 m0, s5, 4096")
        l.append(f"buffer_load_dwordx4 {vo4}, {rWS}, s4 offen {LD} lds"); vm.issue('BL')
        return l
    def b_row_half(vm, k):
        l = [f"s_add_u32 s4, {sBg}, {GRP[GL[k]]*20480}", f"s_add_u32 s5, {sLC}, {LR[k]*20480}", f"s_add_u32 s4, s4, {sH2}", f"s_add_u32 m0, s5, {sH2}"]
        for j in range(3):
            l.append(f"buffer_load_dwordx4 {vo}, {rWS}, s4 offen offset:{j*1024} {LD} lds"); vm.issue('BL')
        return l
    sPF = S(8)
    def flag_store(need):
        a(f"s_mov_b32 {sNEED}, {need}")

    vw = [V(R0), V(R0 + 1)]; wa = [V(R0 + 2), V(R0 + 3), V(R0 + 4)]; vchk = V(R0 + 5)
    FB = [32, 72]
    XF = [[V(FB[b] + 4 * tt, 4) for tt in range(4)] for b in range(2)]
    WF = [[V(FB[b] + 16 + 4 * c, 4) for c in range(6)] for b in range(2)]
    ACC = [[V(112 + (c * 4 + tt) * 4, 4) for tt in range(4)] for c in range(6)]
    vm = VmTrack()
    a(f"s_mul_i32 {sT3}, {sID}, 192")
    touch_setup(pWG, pWU, 3456, sT3, sT3, 192)
    for l in burst(vm, *BS['p0']): a(l)
    a(f"s_bitcmp1_b32 {sWV}, 0")
    a(f"s_cselect_b32 {rW[0]}, {pWU[0]}, {pWG[0]}")
    a(f"s_cselect_b32 {rW[1]}, {pWU[1]}, {pWG[1]}")
    a(f"s_and_b32 {rW[1]}, {rW[1]}, 0xffff")
    a(f"s_mov_b32 {rW[2]}, {640*3456}")
    a(f"s_mov_b32 {rW[3]}, 0x20000")
    a(f"s_bfe_u32 {sT0}, {sWV}, 0x10001")
    a(f"s_lshl_b32 {sT1}, {sT0}, 1")
    for n in range(2):
        a(f"v_add_u32 {t0}, {64*n}, {lane}")
        a(f"v_mul_u32_u24 {t1}, 43, {t0}")
        a(f"v_lshrrev_b32 {t1}, 9, {t1}")
        a(f"v_mul_u32_u24 {t2}, 12, {t1}")
        a(f"v_sub_u32 {t2}, {t0}, {t2}")
        a(f"v_lshrrev_b32 {t3}, 2, {t2}")
        a(f"v_cmp_eq_u32 vcc, 1, {t3}")
        a(f"v_mov_b32 {t3}, {sT1}")
        a(f"v_mov_b32 {t4}, {sT0}")
        a(f"v_cndmask_b32 {t3}, {t3}, {t4}, vcc")
        a(f"v_xor_b32 {t2}, {t2}, {t3}")
        a(f"v_mul_u32_u24 {t1}, 3456, {t1}")
        a(f"v_lshl_add_u32 {vw[n]}, {t2}, 4, {t1}")
        if n: a(f"v_subrev_u32 {vw[n]}, 1024, {vw[n]}")
    a(f"s_lshr_b32 {sT0}, {sWV}, 1")
    a(f"s_mul_i32 {sWK}, {sT0}, {8*3456}")
    a(f"s_add_u32 {sWK}, {sWK}, {sT3}")
    a(f"s_mul_i32 {sMW}, {sT0}, 1536")
    a(f"s_and_b32 {sT1}, {sWV}, 1")
    a(f"s_mul_i32 {sT1}, {sT1}, 6144")
    a(f"s_add_u32 {sMW}, {sMW}, {sT1}")
    sW2 = S(54, 2)
    if OPT['swp']:
        a(f"s_mul_i32 {sT1}, {sTY}, {2*110592}"); a(f"s_add_u32 {sWK}, {sWK}, {sT1}"); a(f"s_lshl_b32 {sT1}, {sT1}, 1")
        a(f"s_sub_u32 {sW2[0]}, 110592, {sT1}"); a(f"s_add_u32 {sW2[1]}, {sT1}, 110592")
    def w_dma(step):
        l = [f"s_add_u32 m0, {sMW}, {WB + (step % 5) * 12288}"] + ([f"s_add_u32 {sWK}, {sWK}, {(110592 if step % 2 or not OPT['swp'] else (sW2[0] if step % 4 == 2 else sW2[1]))}"] if step else []) + [
             f"buffer_load_dwordx4 {vw[0]}, {rW}, {sWK} offen {OPT['wfl']} lds",
             "s_mov_b32 exec_hi, 0\n"
             f"buffer_load_dwordx4 {vw[1]}, {rW}, {sWK} offen offset:1024 {OPT['wfl']} lds\n"
             "s_mov_b32 exec_hi, -1"]
        vm.issue(('W', step)); vm.issue(('W', step))
        return l
    if OPT['sb1'] and not OPT['x0e']: a("s_barrier")
    for l in x_dma(vm, 0, 0) + x_dma(vm, 0, 1) + w_dma(0) + w_dma(1): a(l)
    x_addr_setup()
    a(f"v_lshl_add_u32 {t0}, {vqd}, 3, {vr}")
    a(f"v_mul_u32_u24 {t0}, 192, {t0}")
    a(f"v_add_u32 {t0}, {WB}, {t0}")
    a(f"v_and_b32 {t1}, 1, {vqd}")
    a(f"v_lshlrev_b32 {t2}, 5, {t1}")
    a(f"v_lshl_add_u32 {t2}, {vc}, 3, {t2}")
    a(f"s_lshl_b32 {sT0}, {sHI}, 7")
    a(f"v_add3_u32 {wa[0]}, {t0}, {t2}, {sT0}")
    a(f"v_xor_b32 {wa[1]}, 32, {wa[0]}")
    a(f"v_and_b32 {t2}, 2, {vc}")
    a(f"v_add_u32 {t2}, {sHI}, {t2}")
    a(f"v_xor_b32 {t2}, {t2}, {t1}")
    a(f"v_lshlrev_b32 {t2}, 4, {t2}")
    a(f"v_and_b32 {t3}, 1, {vc}")
    a(f"v_lshl_add_u32 {t2}, {t3}, 3, {t2}")
    a(f"v_add3_u32 {wa[2]}, {t0}, {t2}, 64")
    def w_reads(WFb, step):
        return [f"ds_read_b64_tr_b16 {WFb[m*3+i][2*rd:2*rd+2]}, {wa[i]} offset:{(step % 5) * 12288 + m * 6144 + rd * 768}"
                for m in range(2) for i in range(3) for rd in range(2)]
    def t2b_emit():
        if T2:
            for b0 in eval(OPT['t2b']):
                for l in t2_all(b0): a(l)
                vm.issue('T')
    if OPT['t2pos'] == 1:
        if OPT['sb2']: a("s_barrier")
        t2b_emit()
    if OPT['trim']:
        for l in p2_setup(): a(l)
    n = vm.wait_for(lambda t: t in (('X', 0), ('W', 0)))
    a(f"s_waitcnt vmcnt({n})")
    a("s_barrier")
    stamp(a, 1)
    for l in x_reads(XF[0], 0) + w_reads(WF[0], 0): a(l)
    if OPT['fill'] == 0:
        for l in x_dma(vm, 1, 0) + x_dma(vm, 1, 1) + w_dma(2): a(l)
        if OPT['t2pos'] == 2: t2b_emit()
    fq = []
    for st in range(2, 20):
        if st % 2 == 0:
            b = st // 2
            fq += [('X', b, 0, max(0, 2*(b-3)+1)), ('X', b, 1, max(0, 2*(b-3)+1))]
        fq.append(('W', st, 0, max(0, st - 5)))
    def ffn_loop():
        hq = None; LBT = []
        for j in range(20):
            cur, nxt = j & 1, (j & 1) ^ 1
            CHK = OPT['chk']
            NB = OPT['nobar']
            if j < NB:
                n = vm.wait_for(lambda t: t in (('X', (j + 1) // 2), ('W', j + 1)) or (j == CHK and t == 'chk') or (j == 16 and t == 'chk2') or (j == NB - 1 and t[0] in 'XW'))
                a(f"s_waitcnt vmcnt({n}) lgkmcnt(0)")
                if j == CHK: init_check(vchk, 128, True)
                if j == 16: init_check(vS2, 136, True)
                a("s_barrier")
            else:
                a("s_waitcnt lgkmcnt(0)")
            sstamp(a, j)
            mains = [f"v_mfma_f32_16x16x32_bf16 {ACC[c][tt]}, {WF[cur][c]}, {XF[cur][tt]}, {'0' if j == 0 else ACC[c][tt]}" for c in range(6) for tt in range(4)]
            pre = burst(vm, *BS[j]) if j in BS else []
            lblk = []
            if j < 19:
                lblk += x_reads(XF[nxt], j + 1) + w_reads(WF[nxt], j + 1)
                if OPT['fill']:
                    cnt = OPT['fill'] + (1 if j == 0 else 0)
                    while cnt and fq and fq[0][3] <= j:
                        it = fq.pop(0); cnt -= 1
                        lblk += x_dma(vm, it[1], it[2]) if it[0] == 'X' else w_dma(it[1])
                if j == 0 and not OPT['fill']: lblk += w_dma(3) + x_dma(vm, 2, 0) + x_dma(vm, 2, 1) + w_dma(4)
                xb = (j - 1) // 2 + 3 if j >= 1 else 99
                if xb <= 9 and not OPT['fill']: lblk += x_dma(vm, xb, (j - 1) % 2)
                if T2 and j in eval(OPT['t2f']): lblk += t2_one(*eval(OPT['t2f'])[j])
                if j == CHK - 2: lblk += init_check_issue(vchk); vm.issue('chk')
                if j + 5 <= 19 and not OPT['fill']: lblk += w_dma(j + 5)
                if j == 10 and not OPT['trim']: lblk += p2_setup()
                if j == OPT['pj']: lblk += poison(V(248, 4))
                if OPT['lbt'] and j == OPT['lbt']: LBT = [f"s_bfe_u32 s4, {sC8}, 0x10001", f"s_lshl3_add_u32 s4, s4, {sWV}", f"s_mul_i32 s4, s4, {65*128}", f"s_mul_i32 s5, {sCG}, {74*5120}",
                         "s_add_u32 s4, s4, s5", f"s_add_u32 s4, s4, {BP + 48*5120}", f"v_lshlrev_b32 v3, 7, {lane}", f"buffer_load_dword {tdum}, v3, {rWS}, s4 offen sc1"]
                else: LBT = []
                if j == CHK: hq = b_reg(VmTrack(), 0, 'B') + b_reg(VmTrack(), 1, 'B'); hq = [hq[0:3], hq[3:5], [hq[5]] + hq[6:8], hq[8:10], hq[10:12]]
                JJ = [CHK, CHK + 1, CHK + 2, 15, 18]
                if j in JJ:
                    q = JJ.index(j)
                    if not hq[q][0].startswith('s_'): lblk.append(f"s_add_u32 s4, {sBo}, {0 if q < 3 else GS_}")
                    lblk += hq[q]; vm.issue('B'); vm.issue('B')
                if j == 14: lblk += init_check_issue(vS2, 136); vm.issue('chk2')
                if j == 16: lblk += b_row(vm, sBg, GRP[GL[0]], LR[0], None, 0, True)
                if j == 17: lblk += b_row(vm, sBg, GRP[GL[2]], LR[2], sRX)
            else:
                if OPT['b23'] == 0: lblk += b_reg(vm, 2, 'B') + b_reg(vm, 3, 'B')
                if OPT['b23'] == 2: lblk += b_reg(vm, 2, 'B')
            if j < 19: lblk += LBT
            step_body(mains, lblk, pre)
    if OPT['two'] & 1:
        q0 = list(vm.q)
        a(f"s_cmp_eq_u32 {sHI}, 1"); a("s_cbranch_scc1 ffn_loop_HI")
        HALF[0] = 'lo'; ffn_loop(); a("s_branch ffn_loop_J"); a.label('ffn_loop_HI')
        vm.q = q0; HALF[0] = 'hi'; ffn_loop(); a.label('ffn_loop_J'); HALF[0] = None
    else: ffn_loop()
    stamp(a, 2)
    a(f"s_setprio {OPT['eprio']}")
    sN = S(82, 2)
    a(f"s_mov_b32 {sN[0]}, {NLOG2E:#x}")
    a(f"s_mov_b32 {sN[1]}, {NLOG2E:#x}")
    a(f"s_lshl_b32 {sT3}, {sRB}, 2")
    a(f"s_add_u32 {sT3}, {sT3}, {sRG}")
    a(f"s_mul_i32 {sT0}, {sT3}, 74")
    a(f"s_mul_i32 {sT1}, {sID}, 3")
    a(f"s_add_u32 {sT0}, {sT0}, {sT1}")
    a(f"s_lshl_b32 {sT0}, {sT0}, 12")
    a(f"s_lshl_b32 {sT1}, {sHI}, 13")
    a(f"s_add_u32 {sT1}, {sT0}, {sT1}")
    a(f"s_lshl_b32 {sT2}, {sHI}, 9")
    a(f"s_add_u32 {sT2}, {sT2}, {sT0}")
    a(f"s_add_u32 {sT2}, {sT2}, 4096")
    a(f"s_lshl_b32 {sFLAG}, {sT3}, 7")
    a(f"s_add_u32 {sFLAG}, {sFLAG}, {FH}")
    a(f"v_lshlrev_b32 {t0}, 4, {lane}")
    a(f"v_and_b32 {t1}, 31, {lane}")
    a(f"v_lshlrev_b32 {t1}, 4, {t1}")
    a(f"v_lshrrev_b32 {t2}, 5, {lane}")
    a(f"v_lshl_add_u32 {t1}, {t2}, 10, {t1}")
    tmp = [V(FB[1] + 4 * i, 4) for i in range(2)]
    outs = [V(FB[1] + 8 + 4 * i, 4) for i in range(6)]
    cnt_ = [0]
    def silu2(G0, U0, G1, U1, o):
        GU = ((G0, U0, tmp[0]), (G1, U1, tmp[1]))
        pk = cnt_[0] >= OPT['npk']; cnt_[0] += 1
        for G, U, T in GU:
            if pk:
                for h in range(2): a(f"v_pk_mul_f32 {T[2*h:2*h+2]}, {G[2*h:2*h+2]}, {sN}")
            else:
                for k in range(4): a(f"v_mul_f32 {T[k]}, {sN[0]}, {G[k]}")
        for G, U, T in GU:
            for k in range(4): a(f"v_exp_f32 {T[k]}, {T[k]}")
        for G, U, T in GU:
            if pk:
                for h in range(2): a(f"v_pk_mul_f32 {G[2*h:2*h+2]}, {G[2*h:2*h+2]}, {U[2*h:2*h+2]}")
            else:
                for k in range(4): a(f"v_mul_f32 {G[k]}, {G[k]}, {U[k]}")
        for G, U, T in GU:
            if pk:
                for h in range(2): a(f"v_pk_add_f32 {T[2*h:2*h+2]}, {T[2*h:2*h+2]}, 1.0 op_sel_hi:[1,0]")
            else:
                for k in range(4): a(f"v_add_f32 {T[k]}, 1.0, {T[k]}")
        for G, U, T in GU:
            for k in range(4): a(f"v_rcp_f32 {T[k]}, {T[k]}")
        for G, U, T in GU:
            if pk:
                for h in range(2): a(f"v_pk_mul_f32 {G[2*h:2*h+2]}, {G[2*h:2*h+2]}, {T[2*h:2*h+2]}")
            else:
                for k in range(4): a(f"v_mul_f32 {G[k]}, {G[k]}, {T[k]}")
        for q, (G, U, T) in enumerate(GU):
            for h in range(2): a(f"v_cvt_pk_bf16_f32 {o[2*q+h]}, {G[2*h]}, {G[2*h+1]}")
    for tt in range(4):
        o = outs[tt]
        silu2(ACC[0][tt], ACC[3][tt], ACC[1][tt], ACC[4][tt], o)
        a(f"buffer_store_dwordx4 {o}, {t0}, {rWS}, {sT1} offen offset:{tt*1024} {ST}")
    for l in q_flag_issue(): a(l)
    for tp in range(2):
        o = outs[4 + tp]
        silu2(ACC[2][2*tp], ACC[5][2*tp], ACC[2][2*tp+1], ACC[5][2*tp+1], o)
        a(f"v_permlane32_swap_b32 {o[0]}, {o[2]}")
        a(f"v_permlane32_swap_b32 {o[1]}, {o[3]}")
        a(f"buffer_store_dwordx4 {o}, {t1}, {rWS}, {sT2} offen offset:{tp*2048} {ST}")
    flag_store(35)
    a("s_waitcnt vmcnt(2)")
    a(f"s_mov_b32 {sPF}, 0")
    a("s_branch P2")

    for l in OOL: a(l)
    OOL.clear()
    a.label('R_QKV')
    vm = VmTrack()
    vw = [V(R0), V(R0 + 1), V(R0 + 2)]; wa = V(R0 + 3); pa = V(R0 + 4); vchk = V(R0 + 5); vgw = V(R0 + 6)
    FB = [32, 68]
    XF = [[V(FB[b] + 4 * tt, 4) for tt in range(4)] for b in range(2)]
    WF = [[V(FB[b] + 16 + 4 * c, 4) for c in range(5)] for b in range(2)]
    ACC = [V(104 + 20 * tt, 20) for tt in range(4)]
    pf4 = [V(32 + 4 * i, 4) for i in range(9)] + [V(196, 4)]
    pf2 = [V(200, 2), V(202, 2), V(204, 2), V(206, 2), V(248, 2)]
    PF = [[pf4[2 * t], pf4[2 * t + 1], pf2[t]] for t in range(5)]
    WP = V(184, 4); GWF = V(188, 4); GA = V(192, 4)
    sC0, sC1, sLo, sHi2, sISQ, sHB, sGD = [S(77 + i) for i in range(7)]
    PHW = 135168; PHB = 0; VVB = 90112; PS = 352
    srd(a, rW, pQKV, 640 * 3840)
    srd(a, rA, pPHI, 32 * 800)
    a(f"s_lshl_b32 {sID}, {sT0}, 1"); a(f"s_add_u32 {sID}, {sID}, {sC8}")
    a(f"s_mul_i32 {sC0}, {sID}, 160")
    a(f"s_add_u32 {sC1}, {sC0}, 2560")
    a(f"s_add_u32 {sC0}, {sC0}, 1280")
    a(f"s_lshl_b32 {sHB}, {sID}, 2")
    a(f"s_mul_i32 {sT1}, {sT0}, 320")
    a(f"s_add_u32 {sT2}, {sT1}, 160")
    a(f"s_lshl_b32 {sT3}, {sT0}, 3")
    a(f"s_cmp_eq_u32 {sC8}, 2")
    a(f"s_cselect_b32 {sC0}, {sT1}, {sC0}")
    a(f"s_cselect_b32 {sC1}, {sT2}, {sC1}")
    a(f"s_cselect_b32 {sHB}, {sT3}, {sHB}")
    a(f"s_cselect_b32 {sISQ}, 1, 0")
    a(f"s_bitcmp1_b32 {sWV}, 0")
    a(f"s_cselect_b32 {sLo}, {sC1}, {sC0}")
    a(f"s_cselect_b32 {sHi2}, {sC0}, {sC1}")
    a(f"s_sub_u32 {sHi2}, {sHi2}, 160")
    touch_setup(pQKV, pQKV, 3840, sC0, sC1, 160)
    for l in burst(vm, *BS['p0']): a(l)
    for n in range(3):
        a(f"v_add_u32 {t0}, {64*n}, {lane}")
        a(f"v_mul_u32_u24 {t1}, 205, {t0}")
        a(f"v_lshrrev_b32 {t1}, 12, {t1}")
        a(f"v_mul_u32_u24 {t2}, 20, {t1}")
        a(f"v_sub_u32 {t2}, {t0}, {t2}")
        a(f"v_cmp_le_u32 vcc, 10, {t2}")
        a(f"v_mov_b32 {t3}, {sLo}")
        a(f"v_mov_b32 {t4}, {sHi2}")
        a(f"v_cndmask_b32 {t3}, {t3}, {t4}, vcc")
        a(f"v_mul_u32_u24 {t1}, 3840, {t1}")
        a(f"v_lshl_add_u32 {t1}, {t2}, 4, {t1}")
        a(f"v_add_u32 {vw[n]}, {t1}, {t3}")
        if n: a(f"v_subrev_u32 {vw[n]}, {1024*n}, {vw[n]}")
    a(f"s_mul_i32 {sWK}, {sWV}, {8*3840}")
    a(f"s_mul_i32 {sMW}, {sWV}, 2560")
    sW3 = [S(83), S(9)]
    if OPT['swp']:
        a(f"s_mul_i32 {sT1}, {sTY}, 245760"); a(f"s_add_u32 {sWK}, {sWK}, {sT1}"); a(f"s_lshl_b32 {sT1}, {sT1}, 1")
        a(f"s_sub_u32 {sW3[0]}, 245760, {sT1}"); a(f"s_add_u32 {sW3[1]}, {sT1}, 245760")
    def w_dma2(blk):
        l = [f"s_add_u32 m0, {sMW}, {WB + (blk % 3) * 20480}"] + ([f"s_add_u32 {sWK}, {sWK}, {(sW3[0] if blk % 2 else sW3[1]) if OPT['swp'] else 245760}"] if blk else []) + [
             f"buffer_load_dwordx4 {vw[0]}, {rW}, {sWK} offen {OPT['wfl']} lds",
             f"buffer_load_dwordx4 {vw[1]}, {rW}, {sWK} offen offset:1024 {OPT['wfl']} lds",
             "s_mov_b32 exec_hi, 0\n"
             f"buffer_load_dwordx4 {vw[2]}, {rW}, {sWK} offen offset:2048 {OPT['wfl']} lds\n"
             "s_mov_b32 exec_hi, -1"]
        for _ in range(3): vm.issue(('W', blk))
        return l
    a(f"v_lshlrev_b32 {t0}, 4, {tid}")
    a(f"s_mul_i32 {sT0}, {sHB}, 800")
    a(f"v_add_u32 {t0}, {sT0}, {t0}")
    a(f"buffer_load_dwordx4 {WP}, {t0}, {rA}, 0 offen"); vm.issue(('P', 0))
    if OPT['sb1'] and not OPT['x0e']: a("s_barrier")
    for l in x_dma(vm, 0, 0) + x_dma(vm, 0, 1) + w_dma2(0): a(l)
    x_addr_setup()
    a(f"v_lshl_add_u32 {t0}, {vqd}, 3, {vr}")
    a(f"v_mul_u32_u24 {t0}, 320, {t0}")
    a(f"v_and_b32 {t1}, 1, {vqd}")
    a(f"v_xor_b32 {t1}, {sHI}, {t1}")
    a(f"v_mul_u32_u24 {t1}, 160, {t1}")
    a(f"v_mul_u32_u24 {t2}, 40, {vc}")
    a(f"v_add3_u32 {t0}, {t0}, {t1}, {t2}")
    a(f"v_add_u32 {wa}, {WB}, {t0}")
    a(f"s_and_b32 {sT0}, {sHI}, {sISQ}")
    a(f"s_mul_i32 {sT0}, {sT0}, 3200")
    a(f"s_add_u32 {sT0}, {sT0}, {PHW}")
    a(f"v_mul_u32_u24 {t0}, 800, {vqd}")
    a(f"v_add_u32 {t0}, {sT0}, {t0}")
    a(f"v_mov_b32 {t1}, {ZERO}")
    a(f"v_cmp_eq_u32 vcc, {vc}, {vqd}")
    a(f"v_cndmask_b32 {t0}, {t1}, {t0}, vcc")
    a(f"v_mul_u32_u24 {t1}, 40, {vr}")
    a(f"v_add_u32 {pa}, {t0}, {t1}")
    def w_reads2(WFb, step):
        blk, kk = step // 2, step % 2
        return [f"ds_read_b64_tr_b16 {WFb[t][2*rd:2*rd+2]}, {wa} offset:{(blk % 3) * 20480 + kk * 10240 + rd * 1280 + 8 * t}" for t in range(5) for rd in range(2)]
    def t2b_emit():
        if T2:
            for b0 in eval(OPT['t2b']):
                for l in t2_all(b0): a(l)
                vm.issue('T')
    if OPT['t2pos'] == 1:
        if OPT['sb2']: a("s_barrier")
        t2b_emit()
    if OPT['trim']:
        for l in p2_setup(): a(l)
    n = vm.wait_for(lambda t: t in (('X', 0), ('W', 0)))
    a(f"s_waitcnt vmcnt({n})")
    a("s_barrier")
    stamp(a, 1)
    for l in x_reads(XF[0], 0) + w_reads2(WF[0], 0): a(l)
    if OPT['fill'] == 0:
        for l in x_dma(vm, 1, 0) + x_dma(vm, 1, 1) + w_dma2(1): a(l)
        if OPT['t2pos'] == 2: t2b_emit()
    fq = []
    for b in range(1, 10):
        fq += [('X', b, max(0, 2*(b-3)+1)), ('W', b, max(0, 2*(b-3)+1))]
    def qkv_loop():
        hq = None; LBT = []
        for j in range(20):
            cur, nxt = j & 1, (j & 1) ^ 1
            if j % 2 == 1:
                if j < 19:
                    n = vm.wait_for(lambda t: t in (('X', (j + 1) // 2), ('W', (j + 1) // 2)) or (j == 17 and t == 'chk'))
                    a(f"s_waitcnt vmcnt({n}) lgkmcnt(0)")
                else: a("s_waitcnt lgkmcnt(0)")
                if j == 17: init_check(vchk, 128, True)
                a("s_barrier")
            else:
                a("s_waitcnt lgkmcnt(0)")
                if OPT['pp'] or OPT['qbar']: a("s_barrier")
            sstamp(a, j)
            mains = [f"v_mfma_f32_16x16x32_bf16 {ACC[tt][4*t:4*t+4]}, {WF[cur][t]}, {XF[cur][tt]}, {'0' if j == 0 else ACC[tt][4*t:4*t+4]}" for t in range(5) for tt in range(4)]
            pre = burst(vm, *BS[j]) if j in BS else []
            lblk = []
            if j < 19:
                lblk += x_reads(XF[nxt], j + 1) + w_reads2(WF[nxt], j + 1)
                if OPT['fill']:
                    cnt = 2 if j in (0, 1, 3, 5) else 1
                    while cnt and fq and fq[0][2] <= j:
                        it = fq.pop(0); cnt -= 1
                        lblk += x_dma(vm, it[1], 0) + x_dma(vm, it[1], 1) if it[0] == 'X' else w_dma2(it[1])
                if j == 0 and not OPT['fill']: lblk += x_dma(vm, 2, 0) + x_dma(vm, 2, 1) + w_dma2(2)
                xb = (j - 1) // 2 + 3 if j >= 1 else 99
                if xb <= 9 and not OPT['fill']:
                    if j % 2 == 1: lblk += x_dma(vm, xb, 0) + x_dma(vm, xb, 1)
                    else: lblk += w_dma2(xb)
                if T2 and j in eval(OPT['t2q']): lblk += t2_one(*eval(OPT['t2q'])[j])
                if OPT['tw'] and j == 2:
                    sh = OPT['tw']; npg = (0x1250000 >> sh) + 1
                    lanes = min(64, -(-npg // 32)); ninst = -(-npg // (32 * lanes))
                    body = f"s_lshl3_add_u32 s4, {sR4}, {sWV}\ns_mul_i32 s4, s4, {lanes}\nv_add_u32 v3, s4, {lane}\nv_lshlrev_b32 v3, {sh}, v3\ns_mov_b64 exec, {hex((1 << lanes) - 1) if lanes < 32 else -1}\n"
                    for i in range(ninst):
                        body += f"buffer_load_dword {tdum}, v3, {rWS}, 0 offen offset:3968\nv_add_u32 v3, {32*lanes << sh}, v3\n"
                    body += "s_mov_b64 exec, -1\n"
                    OOL.append("TWo:\n" + body + "s_branch TWb")
                    lblk += [f"s_cmp_eq_u32 {sC8}, 2\ns_cbranch_scc1 TWo\nTWb:"]
                if j == 15: lblk += init_check_issue(vchk); vm.issue('chk')
                if j == 17:
                    lblk += [f"v_lshlrev_b32 {t0}, 4, {tid}", f"v_add_u32 {t0}, {PHW}, {t0}", f"ds_write_b128 {t0}, {WP}"]
                if j == 10 and not OPT['trim']: lblk += p2_setup()
                if j == 17: lblk += poison(V(208, 4))

            else:
                for t in range(5):
                    for s in range(3):
                        for r_ in range(2 if s < 2 else 1):
                            lblk.append(f"ds_read_b64_tr_b16 {PF[t][s][2*r_:2*r_+2]}, {pa} offset:{s*320 + r_*160 + t*8}")
            step_body(mains, lblk, pre)
    if OPT['two'] & 2:
        q0 = list(vm.q)
        a(f"s_cmp_eq_u32 {sHI}, 1"); a("s_cbranch_scc1 qkv_loop_HI")
        HALF[0] = 'lo'; qkv_loop(); a("s_branch qkv_loop_J"); a.label('qkv_loop_HI')
        vm.q = q0; HALF[0] = 'hi'; qkv_loop(); a.label('qkv_loop_J'); HALF[0] = None
    else: qkv_loop()
    stamp(a, 2)
    a("s_setprio 2")
    QB = V(68, 40); P = V(108, 20); E = V(128, 40); O = V(168, 20); M = V(250, 4); T = V(188, 4); ONE = V(192, 2)
    sCNT = S(8); sOUT = S(9)
    def cvt_tile(dst, tt):
        for i in range(10): a(f"v_cvt_pk_bf16_f32 {dst[i]}, {ACC[tt][2*i]}, {ACC[tt][2*i+1]}")
    def pk_list(q, P=P):
        l = []
        for s_ in range(3):
            for t in range(5):
                d = P[4*t:4*t+4]
                if s_ < 2: l.append(f"v_mfma_f32_16x16x32_bf16 {d}, {PF[t][s_]}, {q[4*s_:4*s_+4]}, {'0' if s_ == 0 else d}")
                else: l.append(f"v_mfma_f32_16x16x16_bf16 {d}, {PF[t][s_]}, {q[8:10]}, {d}")
        return l
    a(f"s_lshl_b32 {sT3}, {sRB}, 2")
    a(f"s_add_u32 {sT3}, {sT3}, {sRG}")
    a(f"s_cmp_eq_u32 {sISQ}, 0")
    a("s_cbranch_scc1 R_KV")
    for tt in range(4): cvt_tile(QB[10*tt:10*tt+10], tt)
    a("s_waitcnt lgkmcnt(0)")
    PT = [V(108 + 20*i, 20) for i in range(4)]
    a(f"s_lshr_b32 {sT1}, {sHB}, 2")
    a(f"s_add_u32 {sT1}, {sT1}, {sHI}")
    a(f"s_lshl_b32 {sOUT}, {sT3}, 3")
    a(f"s_add_u32 {sOUT}, {sOUT}, {sT1}")
    a(f"s_mul_i32 {sOUT}, {sOUT}, 10240")
    a(f"s_add_u32 {sOUT}, {sOUT}, {PQ}")
    a(f"s_add_u32 {sT0}, {sOUT}, 8192")
    a(f"s_lshl_b32 {sFLAG}, {sT3}, 7")
    a(f"s_add_u32 {sFLAG}, {sFLAG}, {FH + 4}")
    QO = [V(208 + 8*i, 8) for i in range(4)]; QT = [V(240, 4), V(244, 4)]
    def q_out(tt):
        l = [f"v_cvt_pk_bf16_f32 {QO[tt][i] if i < 8 else QT[tt//2][2*(tt%2) + i - 8]}, {PT[tt][2*i]}, {PT[tt][2*i+1]}" for i in range(10)]
        for h in range(2): l.append(f"buffer_store_dwordx4 {QO[tt][4*h:4*h+4]}, {vo if tt < 2 else vo4}, {rWS}, {sOUT} offen offset:{(tt%2)*2048 + h*1024} {ST}")
        if tt % 2: l.append(f"buffer_store_dwordx4 {QT[tt//2]}, {vo}, {rWS}, {sT0} offen offset:{(tt//2)*1024} {ST}")
        return l
    for tt in range(4):
        side = q_out(tt - 1) if tt else []
        for i, l in enumerate(pk_list(QB[10*tt:10*tt+10], PT[tt])):
            a(l)
            if i >= 2 and side: a(side.pop(0))
    for l in q_out(3): a(l)
    if OPT['gq']:
        GW = [V(72 + 4*i, 4) for i in range(5)]
        GX = [[V(96 + (g*5 + i)*4, 4) for i in range(5)] for g in range(2)]
        GA = [V(92), V(93)]
        srd(a, rW, pGW, 1280)
        a(f"v_lshlrev_b32 {t0}, 4, {vl15}")
        for i in range(5): a(f"buffer_load_dwordx4 {GW[i]}, {t0}, {rW}, 0 offen offset:{i*256}")
        a(f"v_mul_u32_u24 {t1}, 1280, {vqd}"); a(f"v_add_u32 {t0}, {t0}, {t1}")
        a(f"s_lshr_b32 {sT3}, {sHB}, 3"); a(f"s_lshl2_add_u32 {sT3}, {sRB}, {sT3}")
        a(f"s_lshl3_add_u32 {sT1}, {sT3}, {sWV}")
        a(f"s_mul_i32 {sT2}, {sT1}, {8*1280}")
        for g in range(2):
            for i in range(5): a(f"buffer_load_dwordx4 {GX[g][i]}, {t0}, {rX}, {sT2} offen offset:{i*256}")
            if g == 0: a(f"s_add_u32 {sT2}, {sT2}, {4*1280}")
        for g in range(2): a(f"v_mov_b32 {GA[g]}, 0")
        arrive(a, sFLAG, 7, t2, t3, 15)
        for i in range(5):
            for k in range(4):
                for g in range(2): a(f"v_dot2c_f32_bf16 {GA[g]}, {GX[g][i][k]}, {GW[i][k]}")
        for sh in (8, 4, 2, 1):
            for g in range(2): a(f"v_add_f32_dpp {GA[g]}, {GA[g]}, {GA[g]} row_ror:{sh} row_mask:0xf bank_mask:0xf")
        a(f"v_cmp_eq_u32 vcc, 1, {vl15}"); a(f"v_cndmask_b32 {t2}, {GA[0]}, {GA[1]}, vcc")
        a(f"v_mul_f32 {t2}, {LOG2E:#x}, {t2}"); a(f"v_min_f32 {t2}, 0x42a00000, {t2}"); a(f"v_exp_f32 {t2}, {t2}")
        a(f"v_lshl_add_u32 {t0}, {vl15}, 2, {vqd}"); a(f"v_lshlrev_b32 {t3}, 2, {t0}")
        a(f"s_lshl_b32 {sT2}, {sT1}, 5"); a(f"s_add_u32 {sT2}, {sT2}, {GOFF}")
        a("s_mov_b32 exec_lo, 0x00030003"); a("s_mov_b32 exec_hi, 0x00030003")
        a(f"buffer_store_dword {t2}, {t3}, {rWS}, {sT2} offen {ST}")
        a("s_mov_b64 exec, -1")
        a(f"s_lshl_b32 {sFLAG}, {sT3}, 7"); a(f"s_add_u32 {sFLAG}, {sFLAG}, {FH + 12}")
    flag_store(7)
    a(f"v_mov_b32 {vFQ}, 0")
    a(f"s_mov_b32 {sPF}, 6")
    a("s_branch P2")
    a.label('R_KV')
    a(f"s_lshl_b32 {sT1}, {sRG}, 1"); a(f"s_add_u32 {sT0}, {sT1}, 1"); a(f"s_mul_i32 {sT0}, {sT0}, {32*PS}")
    a(f"v_add_u32 {t0}, {sT0}, {vo}")
    a(f"s_mov_b32 {sCNT}, 2")
    a(f"s_cmp_eq_u32 {sHI}, 1")
    a("s_cbranch_scc1 R_V")
    if OPT['trim']:
        cvt_tile(QB[0:10], 0)
        cvt_tile(QB[20:30], 2); cvt_tile(QB[30:40], 3)
        a("s_waitcnt lgkmcnt(0)")
        for i in range(5): a(f"ds_write_b128 {t0}, {QB[20+4*i:24+4*i]} offset:{i*1024}")
        cv = [f"v_cvt_pk_bf16_f32 {QB[10+i]}, {ACC[1][2*i]}, {ACC[1][2*i+1]}" for i in range(10)]
        a(cv.pop(0)); a(cv.pop(0))
        for i, l in enumerate(pk_list(QB[0:10])):
            a(l)
            if cv: a(cv.pop(0))
            if i == 8: a("s_waitcnt lgkmcnt(0)"); a("s_barrier")
    else:
        cvt_tile(QB[0:10], 0)
        cvt_tile(QB[20:30], 2); cvt_tile(QB[30:40], 3)
        for i in range(5): a(f"ds_write_b128 {t0}, {QB[20+4*i:24+4*i]} offset:{i*1024}")
        cvt_tile(QB[10:20], 1)
        a("s_waitcnt lgkmcnt(0)")
        a("s_barrier")
        for l in pk_list(QB[0:10]): a(l)
    a("s_branch R_KV2")
    a.label('R_V')
    VBt = {3: V(88, 10), 0: V(98, 10), 1: V(168, 10), 2: V(178, 10)}
    for tt in (3, 0, 1, 2): cvt_tile(VBt[tt], tt)
    a(f"s_mul_i32 {sT2}, {sRG}, {64*176}")
    a(f"s_add_u32 {sT2}, {sT2}, {VVB}")
    a(f"v_mul_u32_u24 {t2}, 176, {vl15}")
    a(f"v_add_u32 {t1}, {sT2}, {t2}")
    a(f"v_mul_u32_u24 {t3}, 40, {vqd}")
    a(f"v_add_u32 {t2}, {t1}, {t3}")
    a(f"v_mov_b32 {ONE[0]}, 0x3f80")
    a(f"v_mov_b32 {ONE[1]}, 0")
    a("s_barrier")
    for i in range(5): a(f"ds_read_b128 {QB[4*i:4*i+4]}, {t0} offset:{i*1024}")
    side = []
    for tt in (3, 0, 1, 2):
        for i in range(5): side.append(f"ds_write_b64 {t2}, {VBt[tt][2*i:2*i+2]} offset:{tt*2816 + 8*i}")
        side.append(f"ds_write_b64 {t1}, {ONE} offset:{tt*2816 + 160}")
    for i in range(9): a(side.pop(0))
    a("s_waitcnt lgkmcnt(9)")
    for l in pk_list(QB[0:10]): a(l); a(side.pop(0))
    a.label('R_KV2')
    a(f"s_add_u32 {sT1}, {sT1}, {sHI}"); a(f"s_mul_i32 {sT1}, {sT1}, {32*PS}")
    a(f"v_mul_u32_u24 {t4}, {PS}, {vl15}")
    a(f"v_mul_u32_u24 {t3}, 80, {vqd}")
    a(f"v_add3_u32 {t4}, {t4}, {t3}, {sT1}")
    stamp(a, 12)
    for u in range(2):
        if u == 0:
            bl = b_reg(vm, 0, 'B') + b_reg(vm, 1, 'B'); pl = pk_list(QB[10:20])
            sd = [pl[i] + ("\n" + bl[i] if i < len(bl) else "") for i in range(15)]
        else: sd = b_reg(vm, 2, 'B') + b_reg(vm, 3, 'B')
        if OPT['ksp']:
            b_ = Asm()
            softmax_unit(b_, P, E, M, T, O, (pl if u == 0 else []) + ["s_waitcnt lgkmcnt(0)"])
            ld = bl if u == 0 else sd
            ins = [x.text for x in b_.ins]; step_ = len(ins) // 11; q_ = list(ld)
            for n_, x in enumerate(ins):
                a(x)
                if n_ % step_ == step_ - 1 and q_:
                    if q_[0].startswith('s_'): a(q_.pop(0))
                    a(q_.pop(0))
            for x in q_: a(x)
        else: softmax_unit(a, P, E, M, T, O, sd + ["s_waitcnt lgkmcnt(0)"])
        for s_ in range(5): a(f"ds_write_b128 {t4}, {O[4*s_:4*s_+4]} offset:{PHB + u*16*PS + 16*s_}")
    a(f"v_lshl_add_u32 {t0}, {vqd}, 2, {vr}")
    a(f"v_mul_u32_u24 {t1}, {PS}, {t0}")
    a(f"s_mul_i32 {sT0}, {sRG}, 80")
    a(f"v_lshl_add_u32 {t1}, {vc}, 3, {t1}")
    a(f"v_add_u32 {t1}, {sT0}, {t1}")
    a(f"v_add_u32 {t2}, {128*PS}, {t1}")
    a(f"v_mul_u32_u24 {t0}, 176, {t0}")
    a(f"s_mul_i32 {sT0}, {sRG}, 40")
    a(f"s_mul_i32 {sT1}, {sHI}, 24")
    a(f"s_add_u32 {sT0}, {sT0}, {sT1}")
    a(f"v_lshl_add_u32 {t3}, {vc}, 3, {sT0}")
    a(f"v_mul_u32_u24 {t4}, {sHI}, {vc}")
    a(f"v_cmp_lt_u32 vcc, 1, {t4}")
    a(f"v_mov_b32 {t4}, 160")
    a(f"v_cndmask_b32 {t3}, {t3}, {t4}, vcc")
    a(f"v_add_u32 {t3}, {VVB}, {t3}")
    a(f"v_add_u32 {t3}, {t0}, {t3}")
    stamp(a, 13)
    a("s_waitcnt lgkmcnt(0)")
    a("s_barrier")
    stamp(a, 14)
    a(f"s_lshl_b32 {sFLAG}, {sID}, 7"); a(f"s_add_u32 {sFLAG}, {sFLAG}, {FK}")
    def k_hint():
        a("v_mov_b32 v29, 1"); a("v_mov_b32 v11, 0")
        a(f"s_cmp_lg_u32 {sWV}, 7"); a("s_cbranch_scc1 KH1")
        a("s_mov_b64 exec, 1"); a(f"buffer_atomic_add v29, v11, {rWS}, {sFLAG} offen sc0 sc1"); a("s_mov_b64 exec, -1")
        a.label('KH1')
    if OPT['kh'] == 0: k_hint()
    for l in q_flag_issue(): a(l)
    KA = [[V(72 + (b*4 + f)*4, 4) for f in range(4)] for b in range(3)]
    KD = [V(128 + 4*f, 4) for f in range(3)]
    def kv_reads(b, s):
        l = []
        for rd in range(2):
            l.append(f"ds_read_b64_tr_b16 {KA[b][3][2*rd:2*rd+2]}, {t3} offset:{s*5632 + rd*2816}")
        for f in range(3):
            for rd in range(2):
                l.append(f"ds_read_b64_tr_b16 {KA[b][f][2*rd:2*rd+2]}, {t1 if s < 4 else t2} offset:{(s % 4)*32*PS + rd*16*PS + f*32}")
        return l
    allr = [l for s in range(8) for l in kv_reads(s % 3, s)]
    pos = 0
    for s in range(8):
        for f in range(3):
            needr = s * 8 + 2 + 2 * (f + 1)
            lim = min(len(allr), needr + 12, (s + 2) * 8 + (2 + 2 * f if False else 0) + 8 - 8 + 0) if False else min(len(allr), needr + 12)
            lim = min(lim, (s + 3) * 8)
            while pos < lim: a(allr[pos]); pos += 1
            a(f"s_waitcnt lgkmcnt({pos - needr})")
            a(f"v_mfma_f32_16x16x32_bf16 {KD[f]}, {KA[s%3][f]}, {KA[s%3][3]}, {'0' if s == 0 else KD[f]}")
    stamp(a, 15)
    a(f"s_add_u32 {sT0}, {sHB}, {sRG}")
    a(f"s_lshl_b32 {sT0}, {sT0}, 1")
    a(f"s_add_u32 {sT0}, {sT0}, {sHI}")
    a(f"s_mul_i32 {sT0}, {sT0}, 3072")
    a(f"s_add_u32 {sT0}, {sT0}, {KVACC}")
    if OPT['kh'] == 1: k_hint()
    def k_go(n):
        a(f"s_cmp_lg_u32 {sWV}, 7"); a("s_cbranch_scc1 KH2")
        a(f"s_waitcnt vmcnt({n})")
        a("v_cmp_eq_u32 vcc, 7, v29"); a(f"s_add_u32 s4, {sFLAG}, {GOD}"); a("s_and_b64 exec, vcc, 1")
        a(f"buffer_store_dword v29, v11, {rWS}, s4 offen sc1"); a("s_mov_b64 exec, -1")
        a.label('KH2')
    if OPT['kh'] == 0: k_go(0)
    a(f"v_lshlrev_b32 {t2}, 2, {lane}")
    a(f"v_cmp_eq_u32 vcc, 15, {vl15}")
    for f in range(3):
        for j in range(4): a(f"v_cndmask_b32 {KD[f][j]}, {KD[f][j]}, 1.0, vcc")
    for f in range(3):
        if f == 2: a("s_mov_b32 exec_hi, 0")
        for j in range(4):
            a(f"buffer_atomic_add_f32 {KD[f][j]}, {t2}, {rWS}, {sT0} offen offset:{f*1024 + j*256} {OPT['atf']}")
    a("s_mov_b32 exec_hi, -1")
    if OPT['kh'] == 1: k_go(12)
    a("s_waitcnt vmcnt(12)")
    flag_store(-1)
    a(f"s_mov_b32 {sPF}, 4")
    a("s_branch P2")

    for l in OOL: a(l)
    OOL.clear()
    a.label('R_SPARE')
    sSP, sU, sSO, sST = S(77), S(78), S(79), S(80)
    va = Alloc('v', 176, 250)
    vf = [va() for _ in range(5)]; vat = [va() for _ in range(5)]
    rf = [va() for _ in range(5)]; rat = [va(), va()]
    vst = va(); vst4 = va()
    FR = [[va(4) for _ in range(5)] for b in range(2)]
    Z4 = va(4)
    NT = OPT['spnt']
    if T2:
        for b0 in eval(OPT['t2b']):
            for l in t2_all(b0): a(l)
    srd(a, rA, pWD, 1728 * 1280)
    srd(a, rB, pWO, 640 * 1280)
    a(f"s_lshr_b32 {sSP}, {sT0}, 1")
    a(f"s_lshl_b32 {sSP}, {sSP}, 3")
    a(f"s_add_u32 {sSP}, {sSP}, {sRB}")
    a(f"s_lshl_b32 {sT0}, {sWV}, 2")
    a(f"s_mul_i32 {sT1}, {sWV}, 20")
    for n in range(5):
        a(f"v_add_u32 {t0}, {64*n}, {lane}")
        a(f"v_mul_u32_u24 {t1}, 205, {t0}")
        a(f"v_lshrrev_b32 {t1}, 14, {t1}")
        a(f"v_mul_u32_u24 {t2}, 80, {t1}")
        a(f"v_sub_u32 {t2}, {t0}, {t2}")
        a(f"v_add_u32 {t1}, {sT0}, {t1}")
        a(f"v_and_b32 {t3}, 7, {t1}")
        a(f"v_lshlrev_b32 {t3}, 1, {t3}")
        a(f"v_xor_b32 {t2}, {t2}, {t3}")
        a(f"v_mul_u32_u24 {t1}, 1280, {t1}")
        a(f"v_lshl_add_u32 {vf[n]}, {t2}, 4, {t1}")
        if n % 4: a(f"v_subrev_u32 {vf[n]}, {1024*(n%4)}, {vf[n]}")
    a(f"s_mul_i32 {sM}, {sWV}, 5120")
    def u_dma(buf, typ):
        if typ == 'F':
            a(f"s_mul_i32 {sSO}, {sU}, 40960")
            vv, rr = vf, rA
        else:
            a(f"s_sub_u32 {sT2}, {sU}, 54")
            a(f"s_mul_i32 {sT3}, {sT2}, 52")
            a(f"s_lshr_b32 {sT3}, {sT3}, 8")
            a(f"s_mul_i32 {sSO}, {sT3}, {160*1280 - 5*256}")
            a(f"s_lshl_b32 {sT2}, {sT2}, 8")
            a(f"s_add_u32 {sSO}, {sSO}, {sT2}")
            vv, rr = vat, rB
        a(f"s_add_u32 m0, {sM}, {buf*40960}")
        for n in range(4):
            a(f"buffer_load_dwordx4 {vv[n]}, {rr}, {sSO} offen offset:{n*1024} {NT} lds")
        a(f"s_add_u32 m0, {sM}, {buf*40960 + 4096}")
        a(f"buffer_load_dwordx4 {vv[4]}, {rr}, {sSO} offen {NT} lds")
    def dyn(it, fn):
        if it == 4:
            a(f"s_add_u32 {sU}, {sSP}, 64"); a(f"s_min_u32 {sU}, {sU}, 73"); fn('A'); return
        a(f"s_add_u32 {sU}, {sSP}, {16*it}")
        if it <= 2: fn('F')
        else:
            l1, l2 = a.newlabel('SP'), a.newlabel('SP')
            a(f"s_cmp_ge_u32 {sU}, 54"); a(f"s_cbranch_scc1 {l1}")
            fn('F'); a(f"s_branch {l2}"); a.label(l1); fn('A'); a.label(l2)
    for it in range(3): dyn(it, lambda typ: u_dma(it, typ))
    a(f"v_lshlrev_b32 {t0}, 4, {tid}")
    for i in range(4): a(f"v_mov_b32 {Z4[i]}, 0")
    a(f"s_mul_i32 {sT2}, {sSP}, 13568")
    a(f"s_add_u32 {sT2}, {sT2}, {KVACC}")
    a(f"buffer_store_dwordx4 {Z4}, {t0}, {rWS}, {sT2} offen {ST}")
    a(f"s_add_u32 {sT2}, {sT2}, {13568 - 8192}")
    a(f"buffer_store_dwordx4 {Z4}, {t0}, {rWS}, {sT2} offen {ST}")
    for n in range(5):
        a(f"v_add_u32 {t1}, {4*n}, {vqd}")
        a(f"v_add_u32 {t1}, {sT1}, {t1}")
        a(f"v_and_b32 {t3}, 7, {t1}")
        a(f"v_lshlrev_b32 {t3}, 1, {t3}")
        a(f"v_xor_b32 {t2}, {vl15}, {t3}")
        a(f"v_mul_u32_u24 {t1}, 1280, {t1}")
        a(f"v_lshl_add_u32 {vat[n]}, {t2}, 4, {t1}")
        if n % 4: a(f"v_subrev_u32 {vat[n]}, {1024*(n%4)}, {vat[n]}")
    a(f"v_lshl_add_u32 {t0}, {vqd}, 2, {vr}")
    a(f"v_and_b32 {t1}, 7, {t0}")
    a(f"v_lshlrev_b32 {t1}, 1, {t1}")
    a(f"v_mul_u32_u24 {t0}, 1280, {t0}")
    a(f"v_and_b32 {t2}, 1, {vc}")
    a(f"v_lshl_add_u32 {t0}, {t2}, 3, {t0}")
    a(f"v_lshrrev_b32 {t3}, 1, {vc}")
    a(f"s_mul_i32 {sT0}, {sWV}, 10")
    a(f"v_add_u32 {t4}, {sT0}, {t3}")
    for j in range(5):
        a(f"v_add_u32 {rf[j]}, {2*j}, {t4}")
        a(f"v_xor_b32 {rf[j]}, {rf[j]}, {t1}")
        a(f"v_lshl_add_u32 {rf[j]}, {rf[j]}, 4, {t0}")
    a(f"v_mul_u32_u24 {t0}, 20, {vqd}")
    a(f"v_add_u32 {t0}, {t0}, {vr}")
    a(f"v_lshlrev_b32 {t0}, 8, {t0}")
    a(f"v_lshl_add_u32 {t0}, {t2}, 3, {t0}")
    a(f"s_lshl_b32 {sT0}, {sWV}, 1")
    a(f"v_add_u32 {t4}, {sT0}, {t3}")
    a(f"v_xor_b32 {t4}, {t4}, {t1}")
    a(f"v_lshl_add_u32 {rat[0]}, {t4}, 4, {t0}")
    a(f"v_xor_b32 {rat[1]}, 128, {rat[0]}")
    a(f"v_lshlrev_b32 {vst}, 4, {lane}")
    a(f"v_add_u32 {vst4}, 4096, {vst}")
    def u_proc(buf, typ, F):
        if typ == 'F':
            for j in range(5):
                a(f"v_add_u32 {t0}, {buf*40960}, {rf[j]}")
                for rd in range(2):
                    a(f"ds_read_b64_tr_b16 {F[j][2*rd:2*rd+2]}, {t0} offset:{rd*20480}")
            a(f"s_lshl3_add_u32 {sST}, {sU}, {sWV}")
            a(f"s_mul_i32 {sST}, {sST}, 5120")
            a(f"s_add_u32 {sST}, {sST}, {BP}")
            a("s_waitcnt lgkmcnt(0)")
            for j in range(5):
                if j < 4: a(f"buffer_store_dwordx4 {F[j]}, {vst}, {rWS}, {sST} offen offset:{j*1024} {ST}")
                else: a(f"buffer_store_dwordx4 {F[j]}, {vst4}, {rWS}, {sST} offen {ST}")
        else:
            bases = [(0, 4), (8, 12), (16, 96), (80, 84), (88, 92)]
            a(f"v_add_u32 {t0}, {buf*40960}, {rat[0]}")
            a(f"v_add_u32 {t1}, {buf*40960}, {rat[1]}")
            a(f"v_lshrrev_b32 {t4}, 1, {vqd}"); a(f"v_mul_u32_u24 {t4}, {40*256}, {t4}"); a(f"v_add_u32 {t4}, {t4}, {t0}")
            for s5 in range(5):
                for rd in range(2):
                    b = bases[s5][rd]
                    if s5 == 2: a(f"ds_read_b64_tr_b16 {F[s5][2*rd:2*rd+2]}, {t4} offset:{(16 + 40*rd)*256}")
                    else: a(f"ds_read_b64_tr_b16 {F[s5][2*rd:2*rd+2]}, {t1 if b % 8 else t0} offset:{b*256}")
            a(f"s_sub_u32 {sT2}, {sU}, 54")
            a(f"s_mul_i32 {sT3}, {sT2}, 52")
            a(f"s_lshr_b32 {sT3}, {sT3}, 8")
            a(f"s_mul_i32 {sT0}, {sT3}, 5")
            a(f"s_sub_u32 {sT2}, {sT2}, {sT0}")
            a(f"s_lshl_b32 {sT2}, {sT2}, 3")
            a(f"s_add_u32 {sT2}, {sT2}, {sWV}")
            a(f"s_mul_i32 {sT1}, {sT2}, 52")
            a(f"s_lshr_b32 {sT1}, {sT1}, 8")
            a(f"s_mul_i32 {sST}, {sT1}, 5")
            a(f"s_sub_u32 {sT2}, {sT2}, {sST}")
            a(f"s_add_u32 {sST}, {sT0}, 54")
            a(f"s_lshl3_add_u32 {sST}, {sST}, {sT1}")
            a(f"s_mul_i32 {sST}, {sST}, 5120")
            a(f"s_lshl_b32 {sT2}, {sT2}, 10")
            a(f"s_add_u32 {sST}, {sST}, {sT2}")
            a(f"s_add_u32 {sST}, {sST}, {BP}")
            a("s_waitcnt lgkmcnt(0)")
            for s5 in range(5):
                a(f"buffer_store_dwordx4 {F[s5]}, {vst}, {rWS}, {sST} offen {ST}")
                if s5 < 4: a(f"s_add_u32 {sST}, {sST}, {BS_}")
    vm = VmTrack()
    for t in ['D0']*5 + ['D1']*5 + ['D2']*5 + ['Z']*2: vm.issue(t)
    def sp_signal(k):
        lsk = a.newlabel('SPD')
        a(f"s_cmp_lg_u32 {sWV}, 7"); a(f"s_cbranch_scc1 {lsk}")
        a(f"v_mov_b32 {t2}, 0"); a(f"v_mov_b32 {t3}, 1")
        a("s_mov_b64 exec, 1")
        a(f"buffer_atomic_add {t3}, {t2}, {rDBG}, 0 offen offset:{4*k} sc0 sc1")
        a("s_waitcnt vmcnt(0)")
        a(f"v_cmp_eq_u32 vcc, 15, {t3}")
        a("s_and_b64 exec, exec, vcc")
        a(f"buffer_store_dword {t3}, {t2}, {rDBG}, 0 offen offset:{128 + 4*k} sc1")
        a("s_mov_b64 exec, -1")
        a.label(lsk)
    vSG = V(30)
    def sp_sig_a(k):
        lsk = a.newlabel('SPD')
        a(f"s_cmp_lg_u32 {sWV}, 0"); a(f"s_cbranch_scc1 {lsk}")
        a("v_mov_b32 v29, 0"); a(f"v_mov_b32 {vSG}, 1")
        a("s_mov_b64 exec, 1"); a(f"buffer_atomic_add {vSG}, v29, {rDBG}, 0 offen offset:{4*k} sc0 sc1"); a("s_mov_b64 exec, -1")
        a.label(lsk)
    def sp_sig_b(k, n):
        lsk = a.newlabel('SPD')
        a(f"s_cmp_lg_u32 {sWV}, 0"); a(f"s_cbranch_scc1 {lsk}")
        a(f"s_waitcnt vmcnt({n})")
        a(f"v_cmp_eq_u32 vcc, 15, {vSG}"); a("s_and_b64 exec, vcc, 1")
        a(f"buffer_store_dword {vSG}, v29, {rDBG}, 0 offen offset:{128 + 4*k} sc1"); a("s_mov_b64 exec, -1")
        a.label(lsk)
    for it in range(5):
        n = vm.wait_for(lambda t: t == f'D{it}' or (it == 3 and t == 'S2') or (it == 2 and t == 'S1'))
        a(f"s_waitcnt vmcnt({n})")
        a("s_barrier")
        if OPT['asg']:
            if it in (2, 3): sp_sig_a(0 if it == 2 else 2)
        else:
            if it == 2: sp_signal(0); stamp(a, 1)
            if it == 3: sp_signal(2)
        dyn(it, lambda typ: u_proc(it % 3, typ, FR[it & 1]))
        for _ in range(5): vm.issue(f'S{it}')
        if it == OPT['t2si'] and T2 and OPT['t2s']:
            a(f"s_and_b32 s4, {sWV}, 1"); a(f"s_lshl1_add_u32 s4, {sSP}, s4"); a("s_lshl_b32 s4, s4, 6"); a("s_mul_i32 s4, s4, s5")
            a(f"s_mul_i32 s6, {sBK}, {OPT['t2s']}"); a("s_add_u32 s4, s4, s6")
            a(f"v_add_u32 v21, s4, {vt1}")
            a(f"buffer_load_dword {tdum}, v21, {rTT}, 0 offen"); vm.issue('T')
        if it in (1, 2):
            dyn(it + 2, lambda typ: u_dma(it - 1, typ))
            for _ in range(5): vm.issue(f'D{it+2}')
        if OPT['asg'] and it in (2, 3): sp_sig_b(0 if it == 2 else 2, 10 if it == 2 else 5)
    a("s_waitcnt vmcnt(0)")
    a("s_barrier")
    sp_signal(1)
    stamp(a, 2)
    if OPT['gq'] or OPT['nog'] == 2:
        init_poll(a, t1, 128); flag_store(-1)
    else:
        GW = [V(72 + 4*i, 4) for i in range(5)]
        GX = [[V(96 + (g*5 + i)*4, 4) for i in range(5)] for g in range(4)]
        GA = [V(92 + g) for g in range(4)]
        srd(a, rW, pGW, 1280)
        a(f"v_lshlrev_b32 {t0}, 4, {vl15}")
        for i in range(5): a(f"buffer_load_dwordx4 {GW[i]}, {t0}, {rW}, 0 offen offset:{i*256}")
        a(f"v_mul_u32_u24 {t1}, 1280, {vqd}")
        a(f"v_add_u32 {t0}, {t0}, {t1}")
        a(f"s_lshl_b32 {sT3}, {sSP}, 3")
        a(f"s_add_u32 {sT3}, {sT3}, {sWV}")
        a(f"s_mul_i32 {sT2}, {sT3}, {16*1280}")
        for g in range(4):
            for i in range(5): a(f"buffer_load_dwordx4 {GX[g][i]}, {t0}, {rX}, {sT2} offen offset:{i*256} {OPT['gnt']}")
            if g < 3: a(f"s_add_u32 {sT2}, {sT2}, {4*1280}")
        for g in range(4): a(f"v_mov_b32 {GA[g]}, 0")
        init_poll(a, t1, 128)
        for i in range(5):
            for k in range(4):
                for g in range(4): a(f"v_dot2c_f32_bf16 {GA[g]}, {GX[g][i][k]}, {GW[i][k]}")
        for sh in (8, 4, 2, 1):
            for g in range(4): a(f"v_add_f32_dpp {GA[g]}, {GA[g]}, {GA[g]} row_ror:{sh} row_mask:0xf bank_mask:0xf")
        for g in range(4): a(f"v_mul_f32 {GA[g]}, {LOG2E:#x}, {GA[g]}")
        for g in range(4): a(f"v_min_f32 {GA[g]}, 0x42a00000, {GA[g]}")
        for g in range(4): a(f"v_exp_f32 {GA[g]}, {GA[g]}")
        a(f"v_mov_b32 {t2}, {GA[0]}")
        for g in range(1, 4):
            a(f"v_cmp_eq_u32 vcc, {g}, {vl15}"); a(f"v_cndmask_b32 {t2}, {t2}, {GA[g]}, vcc")
        a(f"v_lshl_add_u32 {t0}, {vl15}, 2, {vqd}")
        a(f"v_lshlrev_b32 {t3}, 2, {t0}")
        a(f"s_lshl_b32 {sT2}, {sT3}, 6"); a(f"s_add_u32 {sT2}, {sT2}, {GOFF}")
        a("s_mov_b32 exec_lo, 0x000f000f"); a("s_mov_b32 exec_hi, 0x000f000f")
        a(f"buffer_store_dword {t2}, {t3}, {rWS}, {sT2} offen {ST}")
        a("s_mov_b64 exec, -1")
        a(f"s_lshr_b32 {sFLAG}, {sT3}, 2"); a(f"s_lshl_b32 {sFLAG}, {sFLAG}, 7"); a(f"s_add_u32 {sFLAG}, {sFLAG}, {FH + 12}")
        flag_store(3)
    a(f"v_mov_b32 {vFQ}, 0")

    vm = VmTrack()
    a(f"s_mov_b32 {sPF}, 7")
    a.label('P2')
    stamp(a, 3)
    a(f"s_bitcmp0_b32 {sPF}, 0"); a("s_cbranch_scc1 P2_E1")
    for l in p2_setup() + poison(V(208, 4)): a(l)
    a.label('P2_E1')
    vG = V(16, 4); vz = V(11); ka = V(12); kw = V(13); vbl = V(15); vcn = V(14)
    ACC = [[V(72 + (tt * 5 + j) * 4, 4) for j in range(5)] for tt in range(4)]
    ARl = [V(152 + 4 * i, 4) for i in range(14)] + [V(248, 4), V(24, 4)]
    AR = [ARl[4*b:4*b+4] for b in range(4)]
    sFHo = S(78)
    rOUT = rX
    INP2[0] = True
    if OPT['noa'] == 1 or OPT['nob']: srd(a, rA, pWS, 0)
    a(f"v_mov_b32 {vz}, 0")
    a(f"v_mov_b32 {vcn}, {CNT}")
    a(f"v_add_u32 {vbl}, {sLC}, {vo}")
    vbl2 = V(23)
    a(f"v_add_u32 {vbl2}, {3*20480}, {vbl}")
    def lrow(row, j):
        return (vbl, row*20480 + j*1024) if row < 3 else (vbl2, (row-3)*20480 + j*1024)
    CG_ = {4:3, 5:4, 6:0, 7:1, 8:2} if OPT['gf'] & 2 else {4:0, 5:1, 6:2, 7:3, 8:4}
    def a_loads(i, tag, vts=None, r=None):
        b = i % NA; r = r or rWS
        if OPT['noa'] == 1: r = rA
        if OPT['noa'] == 3: return []
        if OPT['noa'] == 2: return [f"s_mov_b32 {sT0}, {sAo}"] + [(f"buffer_load_dwordx4 {AR[b][tt]}, {vo}, {r}, {sT0} offen offset:{tt*1024} {LD}", vm.issue(tag))[0] for tt in range(4)]
        l = [f"s_add_u32 {sT0}, {sAo}, {((i*16384 if i < 4 else CA0 + CG_[i]*16384) if vts else GRP[i]*16384)}"]
        for tt in range(4):
            if vts: l.append(f"buffer_load_dwordx4 {AR[b][tt]}, {vts[tt]}, {r}, {sT0} offen {LD}")
            else: l.append(f"buffer_load_dwordx4 {AR[b][tt]}, {vo}, {r}, {sT0} offen offset:{tt*1024} {LD}")
            vm.issue(tag)
        return l
    def b_fromlds(i, row):
        return ["ds_read_b128 %s, %s offset:%d" % ((BR[i % 4][j],) + lrow(row, j)) for j in range(5)]
    def mm(sl, zero, side=[], every=2, bb=None):
        b = sl % 4 if bb is None else bb; ab = sl % NA
        side = list(side)
        for j in range(5):
            for tt in range(4):
                d = ACC[tt][j]
                a(f"v_mfma_f32_16x16x32_bf16 {d}, {BR[b][j]}, {AR[ab][tt]}, {'0' if tt in zero else d}")
                while side and side[0].startswith('s_'): a(side.pop(0))
                if side and tt % every == every - 1: a(side.pop(0))
        for l in side: a(l)
    def g_load():
        a(f"s_lshl_b32 {sT0}, {sR6}, 8"); a(f"s_add_u32 {sT0}, {sT0}, {GOFF}")
        a(f"v_lshlrev_b32 {t0}, 4, {vl15}")
        a(f"buffer_load_dwordx4 {vG}, {t0}, {rWS}, {sT0} offen {LD}")
    def lds_signal(off):
        a(f"v_mov_b32 {t1}, 1")
        a("s_waitcnt lgkmcnt(0)")
        a("s_mov_b64 exec, 1")
        a(f"ds_add_u32 {vcn}, {t1} offset:{off}")
        a("s_mov_b64 exec, -1")
    def lds_wait(off, n):
        L = a.newlabel('LW')
        a.label(L)
        a(f"ds_read_b32 {t1}, {vcn} offset:{off}")
        a("s_waitcnt lgkmcnt(0)")
        a(f"v_readfirstlane_b32 {sT0}, {t1}")
        a(f"s_cmp_ge_u32 {sT0}, {n}")
        a(f"s_cbranch_scc1 {L}d")
        a("s_sleep 1")
        a(f"s_branch {L}")
        a.label(L + 'd')
    vAT = V(29); vFG = V(28)
    PB = V(176, 12); PU = V(152, 20)
    def pq_loads():
        a(f"s_lshl3_add_u32 {sT0}, {sR6}, {sCG}")
        a(f"s_mul_i32 {sT0}, {sT0}, 10240"); a(f"s_add_u32 {sT0}, {sT0}, {PQ}")
        a(f"s_lshl_b32 {sT1}, {sRG}, 11"); a(f"s_add_u32 {sT1}, {sT1}, {sT0}")
        for h in range(2): a(f"buffer_load_dwordx4 {PB[4*h:4*h+4]}, {vo}, {rWS}, {sT1} offen offset:{h*1024} {LD}")
        a(f"s_lshr_b32 {sT1}, {sRG}, 1"); a(f"s_lshl_b32 {sT1}, {sT1}, 10"); a(f"s_add_u32 {sT0}, {sT0}, {sT1}")
        a(f"s_and_b32 {sT1}, {sRG}, 1"); a(f"s_lshl3_add_u32 {sT0}, {sT1}, {sT0}"); a(f"s_add_u32 {sT0}, {sT0}, 8192")
        a(f"buffer_load_dwordx2 {PB[8:10]}, {vo}, {rWS}, {sT0} offen {LD}")
    sQF = S(83)
    a(f"v_readfirstlane_b32 {sQF}, {vFQ}")
    a(f"s_cmp_eq_u32 {sHI}, 1"); a(f"s_cselect_b32 {sQF}, 0, {sQF}")
    a(f"s_cmp_eq_u32 {sQF}, 0"); a("s_cbranch_scc1 P2_NQ")
    pq_loads()
    a.label('P2_NQ')
    a(f"buffer_load_dword {vS2}, {vz}, {rDBG}, 0 offen offset:132 sc1")
    a(f"v_mov_b32 {vAT}, 1"); a(f"v_mov_b32 {t1}, 1")
    B3 = OPT['b23'] == 3
    if B3:
        a(f"s_cmp_lg_u32 {sPF}, 0"); a("s_cbranch_scc1 P2_D0")
        for l in b_reg(vm, 2, 'B'): a(l)
        a("s_waitcnt vmcnt(5) lgkmcnt(0)")
        a("s_branch P2_D1")
        a.label('P2_D0')
    a("s_waitcnt vmcnt(0) lgkmcnt(0)")
    if B3: a.label('P2_D1')
    a("s_mov_b64 exec, 1")
    a(f"ds_add_rtn_u32 {t1}, {vcn}, {t1} offset:16")
    a(f"s_cmp_eq_u32 {sNEED}, -1"); a("s_cbranch_scc1 P2_A2")
    a(f"buffer_atomic_add {vAT}, {vz}, {rWS}, {sFLAG} offen sc0 sc1")
    a.label('P2_A2')
    a("s_mov_b64 exec, -1")
    def go_logic(n, st=True):
        lb = a.newlabel('GO')
        a(f"s_waitcnt vmcnt({n})")
        a(f"v_readfirstlane_b32 {sP[0]}, {vAT}")
        a(f"s_add_u32 {sP[1]}, {sFLAG}, {GOD}")
        a(f"s_cmp_lg_u32 {sP[0]}, {sNEED}")
        a(f"s_cbranch_scc1 {lb}")
        a("s_mov_b64 exec, 1")
        a(f"buffer_store_dword {vAT}, {vz}, {rWS}, {sP[1]} offen sc1")
        a("s_mov_b64 exec, -1")
        a.label(lb)
        if st: stamp(a, 4)
    a(f"s_cmp_eq_u32 {sHI}, 0")
    a("s_cbranch_scc1 P2_C")
    if B3:
        a(f"s_cmp_lg_u32 {sPF}, 0"); a("s_cbranch_scc1 P2_D2")
        for l in b_reg(vm, 3, 'B'): a(l)
        go_logic(5)
        a("s_branch P2_D3")
        a.label('P2_D2')
    go_logic(0)
    if B3: a.label('P2_D3')
    a("s_setprio 0")
    init_check(vS2, 132)
    if OPT['bt']:
        a("s_lshr_b32 s4, s2, 6"); a(f"s_lshl2_add_u32 s4, s4, {sRG}"); a(f"s_mul_i32 s4, s4, {65*128}")
        a(f"s_mul_i32 s5, {sCG}, {74*5120}"); a("s_add_u32 s4, s4, s5"); a(f"s_add_u32 s4, s4, {BP + 48*5120}")
        a(f"v_lshlrev_b32 {t2}, 7, {lane}")
        a(f"buffer_load_dword {t3}, {t2}, {rWS}, s4 offen sc1")
    a(f"s_cmp_lt_u32 {sRG}, 2"); a(f"s_cselect_b32 {rB[2]}, {WSZ}, 0")
    a(f"s_cmp_lt_u32 {sPF}, 6"); a("s_cbranch_scc1 P2_E2")
    for b in range(4):
        for l in b_reg(vm, b, 'B'): a(l)
    lds_wait(16, 8)
    for k in range(4):
        for l in b_row(vm, sBg, GRP[GL[k]], LR[k]): a(l)
    a.label('P2_E2')
    if OPT['b23'] in (1, 2):
        a(f"s_cmp_lg_u32 {sPF}, 0"); a("s_cbranch_scc1 P2_E4")
        for l in (b_reg(vm, 2, 'B') if OPT['b23'] == 1 else []) + b_reg(vm, 3, 'B'): a(l)
        a.label('P2_E4')
    lds_wait(16, 8)
    for k in range(3):
        if OPT['ep'] and k == OPT['ep'] - 1: a(f"buffer_load_dword {t4}, {vz}, {rWS}, {sFHo} offen sc1")
        for l in b_row(vm, sBg, k, CR[k], None, 54*BS_): a(l)
    if OPT['bx']:
        for l in b_reg(vm, 5, 'B', None, GRP[5], 0, 4): a(l)
    if OPT['ep']: a(f"s_waitcnt vmcnt({5*(4 - OPT['ep'])})"); a(f"v_readfirstlane_b32 s82, {t4}")
    a(f"s_cmp_eq_u32 {sPF}, 4"); a("s_cbranch_scc1 P2_GK")
    NG = 10
    for variant in (0, 1):
        GLv = GL if variant == 0 else []
        if variant == 1: a.label('P2_GK')
        if OPT['at']:
            a(f"s_mul_i32 {sT1}, {sR6}, {74*4096}"); a(f"s_lshl2_add_u32 {sT2}, {sCG}, {sRG}"); a(f"s_mul_i32 {sT2}, {sT2}, {54*128}"); a(f"s_add_u32 {sT1}, {sT1}, {sT2}")
            a(f"v_lshlrev_b32 {t2}, 7, {lane}")
        if OPT['at'] == 3: vpoll(a, vz, sFHo, 0, t1, f"s_mov_b32 exec_hi, 0x3fffff\nbuffer_load_dword {t3}, {t2}, {rWS}, {sT1} offen sc1\ns_mov_b32 exec_hi, -1", OPT['tsl'])
        elif OPT['noh'] and OPT['ep']: pass
        elif OPT['noh']: a("s_waitcnt vmcnt(0)")
        else:
            if OPT['ep']: a("s_cmp_lg_u32 s82, 0"); a(f"s_cbranch_scc1 HS{variant}")
            vpoll(a, vz, sFHo, 0, t1)
            if OPT['ep']: a.label(f'HS{variant}')
        lds_signal(20)
        a(f"s_setprio {OPT['gprio']}")
        vm = VmTrack()
        stamp(a, 5)
        if OPT['at'] == 1:
            a("s_mov_b32 exec_hi, 0x3fffff"); a(f"buffer_load_dword {t3}, {t2}, {rWS}, {sT1} offen sc1"); a("s_mov_b32 exec_hi, -1")
        if OPT['stamp'] == 4: a("s_memtime s[92:93]")
        LA = OPT['la']
        pend = []
        for s in range(LA + 1):
            if OPT['stp'] and s: a(f"s_setprio {3 - s}")
            for l in a_loads(s, ('A', s)): a(l)
            if OPT['at'] == 2 and s == 0:
                a("s_mov_b32 exec_hi, 0x3fffff"); a(f"buffer_load_dword {t3}, {t2}, {rWS}, {sT1} offen sc1"); a("s_mov_b32 exec_hi, -1"); vm.issue('T')
        for s in range(NG - 1):
            n = vm.wait_for(lambda t: t in (('A', s), ('B', s)))
            a(f"s_waitcnt vmcnt({n})" + (f" lgkmcnt({5*sum(1 for x in (s+1, s+2) if x in GLv)})" if s in GLv else ""))
            if s == 0 and OPT['ep']: lds_signal(24)
            if s == 0: stamp(a, 6)
            if OPT['stamp'] == 4:
                a("s_waitcnt lgkmcnt(0)")
                a(f"v_writelane_b32 v255, s92, {40 + s}")
                a("s_memtime s[92:93]")
            side = []
            if OPT['fair'] and s in eval(OPT['fg']): a(f"s_setprio {eval(OPT['fg'])[s]}")
            if 1 <= s and s + LA < NG:
                side += a_loads(s + LA, ('A', s + LA), None, rB if GRP[s + LA] == 13 else None)
            if 1 <= s and s + 3 < NG:
                rr = rB if GRP[s + 3] == 13 else None
                if OPT['bx'] and s + 3 == 5: pass
                elif s + 3 in GLv: side += b_fromlds(s + 3, LR[GLv.index(s + 3)])
                elif OPT['spr'] and variant == 0:
                    bl = b_reg(VmTrack(), s + 3, 'x', rr, GRP[s + 3])
                    side += bl[0:4]; [vm.issue(('B', s + 3)) for _ in range(3)]
                    pend = [(bl[0], bl[4:6], s + 3)]
                    mm(s, [], side); continue
                else: side += b_reg(vm, s + 3, ('B', s + 3), rr, GRP[s + 3])
            if pend:
                p0, pl, ps = pend.pop(); side += [p0] + pl; [vm.issue(('B', ps)) for _ in range(2)]
            mm(s, range(4) if s == 0 else [], side, 2, 4 if OPT['bx'] and s == 5 else None)
        if variant == 0: a("s_branch P2_GL")
    a.label('P2_GL')
    a("s_waitcnt vmcnt(0) lgkmcnt(0)")
    if OPT['stamp'] == 4:
        a(f"v_writelane_b32 v255, s92, {49}"); a("s_memtime s[92:93]"); a("s_waitcnt lgkmcnt(0)"); a(f"v_writelane_b32 v255, s92, {50}")
    for tt in range(4):
        for j in range(5):
            d = ACC[tt][j]
            a(f"v_mfma_f32_16x16x32_bf16 {d}, {BR[1][j]}, {AR[9 % NA][tt]}, {d}")
            if tt >= 2: a("ds_write_b128 %s, %s offset:%d" % (lrow(tt, j)[0], ACC[tt-2][j], lrow(tt, j)[1]))
    for tt in (2, 3):
        for j in range(5): a("ds_write_b128 %s, %s offset:%d" % (lrow(tt+2, j)[0], ACC[tt][j], lrow(tt+2, j)[1]))
    lds_signal(4)
    stamp(a, 10)
    a("s_branch P2_FIN")
    a.label('P2_C')
    P = V(72, 20)
    a("s_setprio 3")
    if OPT['noc']:
        go_logic(0)
        srd(a, rOUT, pOUT, 2048 * 1280)
        for i in range(4):
            a(f"s_add_u32 {sT0}, {sRG}, {i}"); a(f"s_and_b32 {sT0}, {sT0}, 3"); a(f"s_lshl_b32 {sT0}, {sT0}, 10")
            a(f"v_add_u32 {V(16+i)}, {sT0}, {vo}")
        init_check(vS2, 132)
        a("s_mov_b32 s81, 0"); a(f"s_cmp_eq_u32 {sPF}, 0"); a("s_cselect_b32 s81, 2, s81"); a(f"s_cmp_eq_u32 {sPF}, 4"); a("s_cselect_b32 s81, 4, s81")
        a("s_branch P2_NOC")
    a(f"s_cmp_lg_u32 {sQF}, 0"); a("s_cbranch_scc1 P2_C1")
    go_logic(0)
    a(f"s_mov_b32 {sNEED}, -1")
    vpoll(a, vz, sFHo, 4, t1)
    pq_loads()
    a("s_waitcnt vmcnt(0)")
    a.label('P2_C1')
    a(f"buffer_load_dword {vFG}, {vz}, {rWS}, {sFHo} offen offset:12 sc1")
    GV = [V(22), V(252), V(10), V(8)]
    GLd = [t3, V(188), V(189), V(190)]
    srd(a, rOUT, pOUT, 2048 * 1280)
    a(f"v_lshl_add_u32 {kw}, {vr}, 2, {vqd}")
    a(f"v_lshlrev_b32 {kw}, 6, {kw}")
    a(f"v_lshl_add_u32 {kw}, {vc}, 3, {kw}")
    a(f"s_mul_i32 {sT0}, {sRG}, 3088"); a(f"s_add_u32 {sT0}, {sT0}, {KVB}")
    a(f"v_add_u32 {kw}, {sT0}, {kw}")
    a(f"v_mul_u32_u24 {t4}, 3088, {vqd}")
    a(f"v_lshl_add_u32 {t4}, {vr}, 6, {t4}")
    a(f"v_add_u32 {t4}, {KVB}, {t4}")
    a(f"v_mov_b32 {ka}, {ZERO + 8}")
    a(f"v_cmp_eq_u32 vcc, {vc}, {vqd}")
    a(f"v_cndmask_b32 {ka}, {ka}, {t4}, vcc")
    VT = [V(16), V(17), V(18), V(19)]
    for i in range(4):
        a(f"s_add_u32 {sT0}, {sRG}, {i}"); a(f"s_and_b32 {sT0}, {sT0}, 3"); a(f"s_lshl_b32 {sT0}, {sT0}, 10")
        a(f"v_add_u32 {VT[i]}, {sT0}, {vo}")
    for i in range(10):
        a(f"v_lshlrev_b32 {PU[2*i]}, 16, {PB[i]}")
        a(f"v_and_b32 {PU[2*i+1]}, 0xffff0000, {PB[i]}")
    gl = (f"s_waitcnt vmcnt(1)\nv_readfirstlane_b32 {sP[0]}, {vAT}\ns_add_u32 {sP[1]}, {sFLAG}, {GOD}\ns_cmp_lg_u32 {sP[0]}, {sNEED}\ns_cbranch_scc1 GOC\n"
          f"s_mov_b64 exec, 1\nbuffer_store_dword {vAT}, {vz}, {rWS}, {sP[1]} offen sc1\ns_mov_b64 exec, -1\nGOC:")
    softmax_unit(a, PU, V(92, 40), V(132, 4), V(136, 4), P, ["s_nop 0"] * 19 + [gl])
    a("s_waitcnt vmcnt(0)")
    a(f"v_cmp_ne_u32 vcc, 0, {vFG}"); a("s_nop 0"); a("s_cbranch_vccnz P2_GOK")
    if not OPT['nog']: vpoll(a, vz, sFHo, 12, t1)
    a.label('P2_GOK')
    a(f"v_lshlrev_b32 {t0}, 2, {vl15}")
    a(f"s_lshl2_add_u32 {sT0}, {sR6}, {sRG}")
    a(f"s_lshl_b32 {sT0}, {sT0}, 6"); a(f"s_add_u32 {sT0}, {sT0}, {GOFF}")
    a(f"buffer_load_dword {t3}, {t0}, {rWS}, {sT0} offen {LD}")
    stamp(a, 5)
    init_check(vS2, 132)
    lds_wait(16, 8)
    a(f"s_lshl_b32 {sT2}, {sCG}, 7"); a(f"s_add_u32 {sT2}, {sT2}, {FK + GOD}")
    a(f"s_lshl_b32 {sT3}, {sCG}, 2"); a(f"s_add_u32 {sT3}, {sT3}, {sRG}")
    a(f"s_mul_i32 {sT3}, {sT3}, 6144"); a(f"s_add_u32 {sT3}, {sT3}, {KVACC}")
    sNB = S(81)
    def cb(i): return b_reg(vm, i, 'B') if i < 4 else b_reg(vm, 7, 'B', None, 3, CB0, 4) if OPT['bx'] else b_row(vm, sBo, i - 4, CR[i - 4], None, CB0)
    if OPT['b23']: a(f"s_cmp_eq_u32 {sPF}, 0"); a("s_cbranch_scc1 P2_K2")
    a(f"s_cmp_lt_u32 {sPF}, 6"); a("s_cbranch_scc1 P2_K4")
    for i in range(4):
        if OPT['b23'] and i == (2 if OPT['b23'] == 1 else 3): a.label('P2_K2')
        a(f"s_mov_b32 {sNB}, {i}")
        a(f"buffer_load_dword {t1}, {vz}, {rWS}, {sT2} offen sc1")
        a("s_waitcnt vmcnt(0)")
        a(f"v_cmp_ne_u32 vcc, 0, {t1}"); a("s_nop 0"); a("s_cbranch_vccnz P2_KGO")
        for l in cb(i): a(l)
    a.label('P2_K4')
    a(f"s_mov_b32 {sNB}, 4")
    if OPT['bx']:
        a(f"buffer_load_dword {t1}, {vz}, {rWS}, {sT2} offen sc1")
        a("s_waitcnt vmcnt(0)")
        a(f"v_cmp_ne_u32 vcc, 0, {t1}"); a("s_nop 0"); a("s_cbranch_vccnz P2_KGO")
        for l in cb(4): a(l)
        a(f"s_mov_b32 {sNB}, 5")
    if not OPT['nok']: vpoll(a, vz, sT2, 0, t1)
    else: a("s_waitcnt vmcnt(0)")
    a.label('P2_KGO')
    stamp(a, 6)
    KL = [V(92 + 4 * i, 4) for i in range(6)]
    a(f"s_mov_b32 {sTO}, 0x80000")
    a("s_mov_b32 s82, 0x41000000")
    a.label('KVRETRY')
    for i in range(6):
        if i < 4: a(f"buffer_load_dwordx4 {KL[i]}, {vo}, {rWS}, {sT3} offen offset:{i*1024} {LD}")
        else: a(f"buffer_load_dwordx4 {KL[i]}, {vo4}, {rWS}, {sT3} offen offset:{(i-4)*1024} {LD}")
    for i in range(6):
        a(f"s_waitcnt vmcnt({5-i})")
        a(f"v_cvt_pk_bf16_f32 {KL[i][0]}, {KL[i][0]}, {KL[i][1]}")
        a(f"v_cvt_pk_bf16_f32 {KL[i][1]}, {KL[i][2]}, {KL[i][3]}")
        a(f"ds_write_b64 {kw}, {KL[i][0:2]} offset:{(i % 3)*1024 + (i // 3)*32}")
    a(f"v_min3_f32 {t1}, {KL[0][3]}, {KL[1][3]}, {KL[3][3]}")
    a(f"v_min_f32 {t4}, {KL[2][3]}, {KL[5][3]}")
    a(f"v_min_f32 {t1}, {t1}, {KL[4][3]}")
    a(f"v_cmp_neq_f32 vcc, s82, {t4}")
    a(f"v_cmp_neq_f32 {sP}, s82, {t1}")
    a("s_and_b32 s4, vcc_lo, 0x00880088"); a("s_and_b32 s5, vcc_hi, 0x00880088"); a("s_or_b32 s4, s4, s5")
    a(f"s_or_b32 s5, {sP[0]}, {sP[1]}"); a("s_and_b32 s5, s5, 0x88888888"); a("s_or_b32 s4, s4, s5")
    a("s_branch KVOK" if OPT['nok'] else "s_cbranch_scc0 KVOK")
    a("s_waitcnt lgkmcnt(0)")
    a("s_sleep 4")
    a(f"s_sub_u32 {sTO}, {sTO}, 1")
    a("s_cbranch_scc0 KVRETRY")
    a.label('KVOK')
    lds_signal(0)
    lds_wait(0, 4)
    stamp(a, 16)
    AFl = [V(92 + 4 * i, 4) for i in range(15)]
    D = [V(152 + 4 * t, 4) for t in range(6)]
    O = V(176, 12)
    order = [5, 0, 1, 2, 3, 4]
    fr = [(t, s) for s in range(5) for t in order]
    def rdl(k):
        t, s_ = fr[k]
        return [f"ds_read_b64_tr_b16 {AFl[k % 15][2*r_:2*r_+2]}, {ka} offset:{s_*512 + r_*256 + (t*8 if t < 3 else t*8 + 8)}" for r_ in range(2)]
    AH = 7
    for k in range(AH):
        for l in rdl(k): a(l)
    def fin(t):
        for h in range(4): a(f"v_mul_f32 {D[t][h]}, {D[t][h]}, {t2}")
        a(f"v_cvt_pk_bf16_f32 {O[2*t]}, {D[t][0]}, {D[t][1]}")
        a(f"v_cvt_pk_bf16_f32 {O[2*t+1]}, {D[t][2]}, {D[t][3]}")
    for k in range(30):
        t, s_ = fr[k]
        a(f"s_waitcnt lgkmcnt({2 * min(AH - 1, 29 - k)})")
        a(f"v_mfma_f32_16x16x32_bf16 {D[t]}, {AFl[k % 15]}, {P[4*s_:4*s_+4]}, {'0' if s_ == 0 else D[t]}")
        if k + AH < 30:
            for l in rdl(k + AH): a(l)
        if OPT['sent'] and k == OPT['oh1']:
            a(f"s_sub_u32 {sFLAG}, {sFHo}, {GOD - 8}"); a(f"s_mov_b32 {sNEED}, 31"); a(f"v_mov_b32 {vAT}, 1")
            a("s_mov_b64 exec, 1"); a(f"buffer_atomic_add {vAT}, {vz}, {rWS}, {sFLAG} offen sc0 sc1"); a("s_mov_b64 exec, -1")
    stamp(a, 19)
    a(f"v_add_f32 {t2}, 0x358637bd, {D[5][0]}")
    a(f"v_rcp_f32 {t2}, {t2}")
    a(f"v_mul_f32 {t2}, {t2}, {t3}")
    fin(0); fin(1)
    a(f"buffer_store_dwordx4 {O[0:4]}, {vo}, {rWS}, {sO1} offen {ST}")
    fin(2); fin(3)
    a(f"buffer_store_dwordx4 {O[4:8]}, {vo4}, {rWS}, {sO1} offen {ST}")
    fin(4)
    a(f"v_mov_b32 {O[10]}, {O[8]}"); a(f"v_mov_b32 {O[11]}, {O[9]}")
    a(f"v_permlane32_swap_b32 {O[8]}, {O[10]}"); a(f"v_permlane32_swap_b32 {O[9]}, {O[11]}")
    a("s_mov_b32 exec_hi, 0")
    a(f"buffer_store_dwordx4 {O[8:12]}, {vo}, {rWS}, {sO2} offen {ST}")
    a("s_mov_b32 exec_hi, -1")
    stamp(a, 17)
    NBA = OPT['nba'] and not OPT['sent']
    if NBA:
        a(f"s_sub_u32 {sFLAG}, {sFHo}, {GOD - 8}"); a(f"s_mov_b32 {sNEED}, 31"); a(f"v_mov_b32 {vAT}, 1")
        a(f"ds_read_b32 {t1}, {vcn} offset:20"); a("s_waitcnt lgkmcnt(0)"); a(f"v_readfirstlane_b32 {sT0}, {t1}")
        a(f"s_and_b32 {sT0}, {sT0}, {sNB}")
        a(f"s_cmp_eq_u32 {sT0}, 4"); a("s_cbranch_scc1 P2_NB1")
        arrive(a, sFLAG, 31, t0, t1)
        a(f"s_mov_b32 {sNEED}, -1")
        a.label('P2_NB1')
    elif not OPT['sent']:
        a(f"s_sub_u32 {sT2}, {sFHo}, {GOD - 8}")
        arrive(a, sT2, 31, t0, t1)
    else: go_logic(3, False)
    stamp(a, 7)
    if OPT['noc']: a.label('P2_NOC')
    for i in range(5 if OPT['bx'] else 4):
        lb = a.newlabel('CB')
        a(f"s_cmp_gt_u32 {sNB}, {i}"); a(f"s_cbranch_scc1 {lb}")
        for l in cb(i): a(l)
        a.label(lb)
    XB = [V(28), V(13), V(30)]; XW = V(31); GB = V(12)
    if OPT['bx']: XB = [V(1), V(13), V(8)]; XW = V(9)
    for q in range(1, 4):
        a(f"s_sub_u32 {sT0}, {sRG}, {q}"); a(f"s_and_b32 {sT0}, {sT0}, 3"); a(f"s_mul_i32 {sT0}, {sT0}, 5120")
        a(f"s_add_u32 {sT0}, {sT0}, {CR[q-1]*20480}")
        a(f"v_add_u32 {XB[q-1]}, {sT0}, {vo}")
    a(f"v_add_u32 {XW}, {6*20480}, {vbl}")
    def crow(k, j): return (vbl, CR[k]*20480 + j*1024) if k < 2 else (XW, j*1024)
    a(f"s_add_u32 {sT0}, {sRG}, 2"); a(f"s_mul_i32 {sT0}, {sT0}, 20480"); a(f"v_add_u32 {GB}, {sT0}, {vo}")
    a(f"v_mul_u32_u24 {t0}, 1280, {vl15}")
    a(f"v_lshl_add_u32 {t0}, {vqd}, 3, {t0}")
    a(f"s_lshl_b32 {sT2}, {sR6}, 2"); a(f"s_add_u32 {sT2}, {sT2}, {sRG}"); a(f"s_mul_i32 {sT2}, {sT2}, {16*1280}")
    a(f"s_mul_i32 {sT3}, {sCG}, 160"); a(f"s_add_u32 {sT2}, {sT2}, {sT3}")
    a(f"v_add_f32 {V(22)}, 1.0, {t3}"); a(f"v_rcp_f32 {V(22)}, {V(22)}")
    a(f"v_mul_u32_u24 {t3}, 1280, {vl15}"); a(f"v_and_b32 {t4}, 1, {vqd}"); a(f"v_lshl_add_u32 {t3}, {t4}, 5, {t3}")
    a(f"v_lshrrev_b32 {t4}, 1, {vqd}"); a(f"v_lshl_add_u32 {t3}, {t4}, 4, {t3}")
    lds_wait(20, 4)
    a(f"s_setprio {OPT['cprio']}")
    if OPT['stamp'] == 4: a("s_memtime s[92:93]")
    vm = VmTrack()
    for s in range(OPT['la'] + 1):
        if OPT['stp'] == 2 and s: a(f"s_setprio {max(1, 3 - s)}")
        for l in a_loads(s, ('A', s), VT): a(l)
        if NBA and s == 1:
            a(f"s_cmp_eq_u32 {sNEED}, -1"); a("s_cbranch_scc1 P2_NB2")
            a("s_waitcnt vmcnt(8)")
            a("s_mov_b64 exec, 1"); a(f"buffer_atomic_add {vAT}, {vz}, {rWS}, {sFLAG} offen sc0 sc1"); a("s_mov_b64 exec, -1")
            a.label('P2_NB2')
    GT = [BR[1], BR[2], BR[3], AR[1] + [AR[2][0]]]
    if OPT['bx']: GT = [BR[1], BR[3], BR[2], BR[4]]
    nextA = OPT['la'] + 1
    OC = OPT['oc']
    for s in range(9):
        n = vm.wait_for(lambda t: t in (('A', s), ('B', s)) or (s == OC and t == 'of'))
        if s == 1 and OPT['ep']: lds_wait(24, 4)
        if s == 8:
            lds_wait(4, 4)
            stamp(a, 8)
            for w in range(2):
                for j in range(5): a(f"ds_read_b128 {GT[w][j]}, {GB} offset:{w*5120 + j*1024}")
        a(f"s_waitcnt vmcnt({n})" + (" lgkmcnt(0)" if s == (6 if OPT['gf'] & 2 else 4) else ""))
        if OPT['stamp'] == 4:
            a("s_waitcnt lgkmcnt(0)")
            a(f"v_writelane_b32 v255, s92, {40 + s}")
            a("s_memtime s[92:93]")
        if NBA and s == 1: go_logic(n, False)
        if s == OC:
            stamp(a, 18)
            a(f"v_cmp_ne_u32 vcc, 0, {t2}"); a("s_nop 0"); a("s_cbranch_vccnz P2_OOK")
            if not OPT['noc']: vpoll(a, vz, sFHo, 8, t2)
            a.label('P2_OOK')
            a(f"s_mov_b32 {sTO}, 0x40000")
            stamp(a, 9)
        if OPT['sent'] and s >= 4:
            a.label(f'VER{s}')
            regs = [AR[s % NA][tt][k] for tt in range(4) for k in range(4)]
            a(f"v_max3_u32 {t4}, {regs[0]}, {regs[1]}, {regs[2]}")
            a(f"v_max3_u32 {t1}, {regs[3]}, {regs[4]}, {regs[5]}")
            for k in (6, 10):
                a(f"v_max3_u32 {t4}, {t4}, {regs[k]}, {regs[k+1]}"); a(f"v_max3_u32 {t1}, {t1}, {regs[k+2]}, {regs[k+3]}")
            a(f"v_max3_u32 {t4}, {t4}, {regs[14]}, {regs[15]}")
            a(f"v_max_u32 {t4}, {t4}, {t1}")
            a(f"v_cmp_eq_u32 vcc, -1, {t4}")
            a("s_nop 0")
            a(f"s_cbranch_vccnz RET{s}")
            a.label(f'VOK{s}')
        side = []
        if OPT['fair'] and s in eval(OPT['fc']): a(f"s_setprio {eval(OPT['fc'])[s]}")
        if s == OC - 1:
            side.append(f"buffer_load_dword {t2}, {vz}, {rWS}, {sFHo} offen offset:8 sc1"); vm.issue('of')
        while s >= 1 and nextA <= s + OPT['la'] and nextA < 9 and (nextA < 4 or s >= OC):
            side += a_loads(nextA, ('A', nextA), VT); nextA += 1
        if 1 <= s <= 5:
            g_ = CG_[s + 3]
            if OPT['bx'] and s + 3 == 7: pass
            elif g_ < 3: side += ["ds_read_b128 %s, %s offset:%d" % ((BR[(s+3)%4][j],) + crow(g_, j)) for j in range(5)]
            else: side += b_reg(vm, s + 3, ('B', s + 3), None, g_, CB0)
        if s < 8: mm(s, range(4) if s == 0 else [], side, 1 if len([x for x in side if not x.startswith('s_')]) > 10 else 2, 4 if OPT['bx'] and s == 7 else None)
        else:
            for tt in (1, 2, 3, 0):
                for j in range(5):
                    d = ACC[tt][j]
                    a(f"v_mfma_f32_16x16x32_bf16 {d}, {BR[0][j]}, {AR[8 % NA][tt]}, {d}")
                    if tt in (1, 2): a(f"ds_read_b128 {GT[tt+1][j]}, {GB} offset:{(tt+1)*5120 + j*1024}")
                    pt = {1: None, 2: None, 3: 1, 0: 2}[tt]
                    if pt: a("ds_write_b128 %s, %s offset:%d" % (crow(pt-1, j)[0], ACC[pt][j], crow(pt-1, j)[1]))
            for j in range(5): a("ds_write_b128 %s, %s offset:%d" % (crow(2, j)[0], ACC[3][j], crow(2, j)[1]))
    if OPT['stamp'] == 4:
        a("s_waitcnt lgkmcnt(0)"); a(f"v_writelane_b32 v255, s92, {49}"); a("s_memtime s[92:93]"); a("s_waitcnt lgkmcnt(0)"); a(f"v_writelane_b32 v255, s92, {50}")
    a("s_waitcnt lgkmcnt(15)")
    for j in range(5):
        for h in range(2):
            sl = slice(2*h, 2*h+2)
            a(f"v_pk_add_f32 {GT[0][j][sl]}, {GT[0][j][sl]}, {GT[1][j][sl]}")
            a(f"v_pk_add_f32 {GT[2][j][sl]}, {GT[2][j][sl]}, {GT[3][j][sl]}")
    stamp(a, 10)
    lds_signal(8)
    for j in range(5):
        for h in range(2):
            sl = slice(2*h, 2*h+2)
            a(f"v_pk_add_f32 {GT[0][j][sl]}, {GT[0][j][sl]}, {GT[2][j][sl]}")
            a(f"v_pk_add_f32 {ACC[0][j][sl]}, {GT[0][j][sl]}, {ACC[0][j][sl]}")
    lds_wait(8, 4)
    RD = [ACC[1], ACC[2], ACC[3]]
    if OPT['fin'] == 0:
        for q in range(3):
            for j in range(5): a(f"ds_read_b128 {RD[q][j]}, {XB[q]} offset:{j*1024}")
        for q in range(3):
            a(f"s_waitcnt lgkmcnt({10 - 5*q})")
            for j in range(5):
                for h in range(2): a(f"v_pk_add_f32 {ACC[0][j][2*h:2*h+2]}, {ACC[0][j][2*h:2*h+2]}, {RD[q][j][2*h:2*h+2]}")
                if q == 2:
                    for h in range(2): a(f"v_pk_mul_f32 {ACC[0][j][2*h:2*h+2]}, {ACC[0][j][2*h:2*h+2]}, {V(22, 2)} op_sel_hi:[1,0]")
                    a(f"v_cvt_pk_bf16_f32 {ACC[1][j][0]}, {ACC[0][j][0]}, {ACC[0][j][1]}")
                    a(f"v_cvt_pk_bf16_f32 {ACC[1][j][1]}, {ACC[0][j][2]}, {ACC[0][j][3]}")
                    a(f"buffer_store_dwordx2 {ACC[1][j][0:2]}, {t0}, {rOUT}, {sT2} offen offset:{j*32} {OPT['ost']}")
    else:
        for j in range(5):
            for q in range(3): a(f"ds_read_b128 {RD[q][j]}, {XB[q]} offset:{j*1024}")
        OUTR = [GT[1][0], GT[1][1], GT[1][2]]
        for j in range(5):
            a(f"s_waitcnt lgkmcnt({12 - 3*j})")
            for h in range(2):
                sl = slice(2*h, 2*h+2)
                a(f"v_pk_add_f32 {RD[0][j][sl]}, {RD[0][j][sl]}, {RD[1][j][sl]}")
                a(f"v_pk_add_f32 {ACC[0][j][sl]}, {ACC[0][j][sl]}, {RD[2][j][sl]}")
            for h in range(2):
                sl = slice(2*h, 2*h+2)
                a(f"v_pk_add_f32 {ACC[0][j][sl]}, {ACC[0][j][sl]}, {RD[0][j][sl]}")
            for h in range(2): a(f"v_pk_mul_f32 {ACC[0][j][2*h:2*h+2]}, {ACC[0][j][2*h:2*h+2]}, {V(22, 2)} op_sel_hi:[1,0]")
            o_ = OUTR[j // 2]
            a(f"v_cvt_pk_bf16_f32 {o_[2*(j%2)]}, {ACC[0][j][0]}, {ACC[0][j][1]}")
            a(f"v_cvt_pk_bf16_f32 {o_[2*(j%2)+1]}, {ACC[0][j][2]}, {ACC[0][j][3]}")
            if j % 2 == 1:
                a(f"v_permlane16_swap_b32 {o_[0]}, {o_[2]}"); a(f"v_permlane16_swap_b32 {o_[1]}, {o_[3]}")
                a(f"buffer_store_dwordx4 {o_}, {t3}, {rOUT}, {sT2} offen offset:{(j-1)*32} {OPT['ost']}")
            if j == 4: a(f"buffer_store_dwordx2 {o_[0:2]}, {t0}, {rOUT}, {sT2} offen offset:128 {OPT['ost']}")
    a.label('P2_FIN')
    if OPT['stamp'] or OPT['pad']:
        a("s_waitcnt vmcnt(0)")
        stamp(a, 11)
    stamp_flush(a)
    if OPT['pad']:
        if OPT['padwg'] < 999: a(f"s_cmp_lg_u32 s2, {OPT['padwg']}"); a(f"s_cbranch_scc1 {END}")
        a.label('PADL')
        a("s_sleep 1"); a("s_memrealtime s[12:13]"); a("s_waitcnt lgkmcnt(0)"); a("s_sub_u32 s12, s12, s10")
        a(f"s_cmp_lt_u32 s12, {OPT['pad']*100}"); a("s_cbranch_scc1 PADL")
    a.label(END)
    a.label('K_LAST')
    a("s_endpgm")
    if OPT['sent']:
        for s in range(4, 9):
            a.label(f'RET{s}')
            a(f"s_sub_u32 {sTO}, {sTO}, 1")
            a(f"s_cselect_b32 {sTO}, 0, {sTO}")
            a(f"s_cbranch_scc1 VOK{s}")
            a(f"s_sleep {OPT['rsl']}")
            for l in a_loads(s, 'r', VT): a(l)
            a("s_waitcnt vmcnt(0)")
            a(f"s_branch VER{s}")

def build():
    hdr = open(f'cdna_kernels/{NAME}.s.ref').read().split('; Override launch')[0]
    name = NAME + '_kernel'
    out = hdr + "; @launch grid=(256,1,1) block=(512,1,1) lds=163840\n"
    out += '.amdgcn_target "amdgcn-amd-amdhsa--gfx950"\n.text\n'
    a = Asm(); kernel(a)
    out += f".globl {name}\n.p2align 8\n.type {name},@function\n{name}:\n" + a.finalize()
    print('instrs', len(a.ins), 'nops', a.nnop, file=sys.stderr)
    out += f""".section .rodata,"a"
.p2align 6
.amdhsa_kernel {name}
  .amdhsa_next_free_vgpr 256
  .amdhsa_next_free_sgpr 102
  .amdhsa_accum_offset 256
  .amdhsa_group_segment_fixed_size 0
  .amdhsa_kernarg_size 96
  .amdhsa_user_sgpr_count 2
  .amdhsa_user_sgpr_kernarg_segment_ptr 1
  .amdhsa_system_sgpr_workgroup_id_x 1
.end_amdhsa_kernel
"""
    return out

if __name__ == '__main__':
    outp = sys.argv[1]
    for o in sys.argv[2:]:
        k, v = o.split('=', 1); OPT[k] = int(v) if v.isdigit() else v
    open(outp, 'w').write(build())
```

```python
import sys
sys.path.insert(0, 'gen')
from asmlib import *
NAME = 'gated_mix__linear_kernel_hedgehog__swiglu_ffn__prompt'
AP = 0; BP = 0xA00000; PQ = 0xD00000; KVACC = 0x1200000; FH = 0x1230000; FK = 0x1232000; FP = 0x1234000; ZEND = 0x1235000
GOFF = 0x1240000; DUMMY = 0x1250000; STAMP = 0x1300000; WSZ = 0x1600000
LOG2E = 0x3fb8aa3b; NLOG2E = 0xbfb8aa3b
OPT = dict(stamp=0, touch=2, bs="{'p0':(0,2),'p1':(2,5),3:(5,8),7:(8,10)}", pp=0, spnt='nt', rot2=0, slp=3, early=1, btouch=0, atf='sc1', cpf=12, nobar=18, chk=12, sent=0, krs=4, kf=0, two=0, ilh=5, ill=4, nog=0, asg=0, ksp=0, gnt='', tfl='', bx=0, ep=0, map2=1, hd=0, gq=0, lbt=0, tw=0, trim=1, nba=0, la=3, spr=0, fin=1, stp=0, nob=0, noc=0, nok=0, noh=0, t2si=2, swp=1, gf=0, b23=1, tlb=0, padwg=999, padev=0, fair=1, fg='{0:2,5:1,7:3}', fc='{0:1,4:0}', npk=0, eprio=2, gprio=3, oc=2, oord=1, noa=0, pj=18, t2s=0, x0e=1, sb1=1, sb2=1, t2pos=1, pad=0, bt=0, tsl=4, rsl=8, cprio2=0, at=0, kh=0, cprio=3, oh1=19, gdel=0, fill=0, spst='sc1', t2a='[0]', t2b='[2]', t2f='{0:(5,6),1:(4,3),2:(7,4),3:(6,5),5:(9,6),6:(8,3)}', t2q='{}', xfl='', wfl='', il=4, qbar=0, prio=0, dbgt=0, ost='nt')
ST = 'sc1'; LD = 'sc1'

pX, pQKV, pPHI, pWO, pBX, pWG, pWU, pWD = [S(16 + 2 * i, 2) for i in range(8)]
pGW, pOUT, pDBG, pWS = [S(32 + 2 * i, 2) for i in range(4)]
sWV = S(3)
rX, rW, rWS, rA, rB = S(40, 4), S(44, 4), S(48, 4), S(52, 4), S(56, 4)
sC = S(60, 2)
rDBG = S(84, 4)
sFLAG = S(88); sTO = S(89); sNEED = S(7)
GOD = 0x1000
sP = S(14, 2)
XSLOT = 32768; WB = 98304
GWB = 159744; CNT = 161024; ZERO = 161280; KVB = 147456

def srd(a, d, base, size):
    a(f"s_mov_b32 {d[0]}, {base[0]}")
    a(f"s_and_b32 {d[1]}, {base[1]}, 0xffff")
    a(f"s_mov_b32 {d[2]}, {size}")
    a(f"s_mov_b32 {d[3]}, 0x20000")

def sstamp(a, j):
    if OPT['stamp'] != 3: return
    if j > 0: a(f"v_writelane_b32 v255, s92, {40 + j - 1}")
    a("s_memtime s[92:93]")
def stamp(a, idx):
    if OPT['pad'] and OPT['padev'] == idx:
        a("s_memrealtime s[10:11]"); a("s_waitcnt lgkmcnt(0)")
    if not OPT['stamp']: return
    if OPT['stamp'] >= 2 and idx not in (2, 3, 5, 11): return
    a("s_memrealtime s[90:91]")
    a("s_memtime s[92:93]")
    a("s_waitcnt lgkmcnt(0)")
    a(f"v_writelane_b32 v255, s90, {2*idx}")
    a(f"v_writelane_b32 v255, s92, {2*idx+1}")
def stamp_flush(a):
    if not OPT['stamp']: return
    if OPT['dbgt']:
        a("s_not_b32 s90, s10"); a("v_writelane_b32 v255, s90, 0")
        a("v_lshlrev_b32 v254, 1, v0"); a("v_add_u32 v254, 8, v254")
        a("s_mov_b32 exec_lo, 0x05555555"); a("s_mov_b32 exec_hi, 0")
        a(f"buffer_atomic_umax v255, v254, {rDBG}, 0 offen sc1")
        a("s_mov_b64 exec, -1")
        return
    a("v_writelane_b32 v255, s10, 0"); a("v_writelane_b32 v255, s12, 1")
    a("s_lshl_b32 s90, s2, 3")
    a(f"s_add_u32 s90, s90, {sWV}")
    a("s_lshl_b32 s90, s90, 8")
    a(f"s_add_u32 s90, s90, {STAMP + 0x80000}")
    a("v_lshlrev_b32 v254, 2, v0")
    a(f"buffer_store_dword v255, v254, {rWS}, s90 offen")

def vpoll(a, vzero, soff, off, tmp, extra=None, slp=None):
    L, D = a.newlabel('POLL'), a.newlabel('POLLD')
    a(f"s_mov_b32 {sTO}, 0x80000")
    a.label(L)
    if extra: a(extra)
    a(f"buffer_load_dword {tmp}, {vzero}, {rWS}, {soff} offen offset:{off} sc1")
    a("s_waitcnt vmcnt(0)")
    a(f"v_cmp_eq_u32 vcc, 0, {tmp}")
    a("s_nop 0")
    a(f"s_cbranch_vccz {D}")
    a(f"s_sleep {slp or OPT['slp']}")
    a(f"s_sub_u32 {sTO}, {sTO}, 1")
    a(f"s_cbranch_scc0 {L}")
    a.label(D)
def arrive(a, soff, need, z, one, nyounger=0):
    D = a.newlabel('ARR')
    a(f"v_mov_b32 {z}, 0"); a(f"v_mov_b32 {one}, 1")
    a(f"s_waitcnt vmcnt({nyounger})")
    a("s_mov_b64 exec, 1")
    a(f"buffer_atomic_add {one}, {z}, {rWS}, {soff} offen sc0 sc1")
    a("s_waitcnt vmcnt(0)")
    a(f"v_readfirstlane_b32 {sP[0]}, {one}")
    a(f"s_add_u32 {sP[1]}, {soff}, {GOD}")
    a(f"s_cmp_lg_u32 {sP[0]}, {need}")
    a(f"s_cbranch_scc1 {D}")
    a(f"buffer_store_dword {one}, {z}, {rWS}, {sP[1]} offen sc1")
    a.label(D)
    a("s_mov_b64 exec, -1")
def init_poll(a, reg, off):
    L, D = a.newlabel('POLL'), a.newlabel('POLLD')
    a(f"s_mov_b32 {sTO}, 0x80000")
    a.label(L)
    a(f"v_mov_b32 {reg}, 0")
    a(f"buffer_load_dword {reg}, {reg}, {rDBG}, 0 offen offset:{off} sc1")
    a("s_waitcnt vmcnt(0)")
    a(f"v_readfirstlane_b32 {sP[0]}, {reg}")
    a(f"s_cmp_lg_u32 {sP[0]}, 0")
    a(f"s_cbranch_scc1 {D}")
    a("s_sleep 2")
    a(f"s_sub_u32 {sTO}, {sTO}, 1")
    a(f"s_cbranch_scc0 {L}")
    a.label(D)

def softmax_unit(a, P, E, M, T, O, side=None):
    side = list(side or [])
    a(f"v_max3_f32 {M[0]}, {P[0]}, {P[1]}, {P[2]}")
    a(f"v_min3_f32 {M[2]}, {P[0]}, {P[1]}, {P[2]}")
    for i in range(3, 19, 2):
        a(f"v_max3_f32 {M[0]}, {M[0]}, {P[i]}, {P[i+1]}")
        a(f"v_min3_f32 {M[2]}, {M[2]}, {P[i]}, {P[i+1]}")
    a(f"v_max_f32 {M[0]}, {M[0]}, {P[19]}")
    a(f"v_min_f32 {M[2]}, {M[2]}, {P[19]}")
    a(f"v_mul_f32 {M[0]}, {sC[0]}, {M[0]}")
    a(f"v_mul_f32 {M[2]}, {sC[0]}, {M[2]}")
    for i in range(0, 20, 2):
        a(f"v_pk_fma_f32 {E[i:i+2]}, {P[i:i+2]}, {sC}, {M[0:2]} op_sel_hi:[1,1,0] neg_lo:[0,0,1] neg_hi:[0,0,1]")
        a(f"v_pk_fma_f32 {E[20+i:22+i]}, {P[i:i+2]}, {sC}, {M[2:4]} op_sel_hi:[1,1,0] neg_lo:[1,0,0] neg_hi:[1,0,0]")
    for i in range(40):
        a(f"v_exp_f32 {E[i]}, {E[i]}")
        if side and i % 2 == 1:
            x = side.pop(0)
            if x != "s_nop 0": a(x)
    for l in side: a(l)
    a(f"v_pk_add_f32 {T[0:2]}, {E[0:2]}, {E[2:4]}")
    a(f"v_pk_add_f32 {T[2:4]}, {E[20:22]}, {E[22:24]}")
    for i in range(4, 20, 2):
        a(f"v_pk_add_f32 {T[0:2]}, {T[0:2]}, {E[i:i+2]}")
        a(f"v_pk_add_f32 {T[2:4]}, {T[2:4]}, {E[20+i:22+i]}")
    a(f"v_add_f32 {T[0]}, {T[0]}, {T[1]}")
    a(f"v_add_f32 {T[2]}, {T[2]}, {T[3]}")
    a(f"v_rcp_f32 {T[0]}, {T[0]}")
    a(f"v_rcp_f32 {T[2]}, {T[2]}")
    for i in range(0, 20, 2):
        a(f"v_pk_mul_f32 {E[i:i+2]}, {E[i:i+2]}, {T[0:2]} op_sel_hi:[1,0]")
        a(f"v_pk_mul_f32 {E[20+i:22+i]}, {E[20+i:22+i]}, {T[2:4]} op_sel_hi:[1,0]")
    for i in range(20):
        a(f"v_cvt_pk_bf16_f32 {O[i]}, {E[2*i]}, {E[2*i+1]}")

def kernel(a):
    END = 'K_END'
    BS = eval(OPT['bs'])
    a("s_cmp_ge_u32 s2, 256")
    a(f"s_cbranch_scc1 {END}")
    if OPT['stamp']:
        a("s_memrealtime s[10:11]"); a("s_memtime s[12:13]"); a("v_mov_b32 v255, 0")
    if OPT['pad']: a("s_memrealtime s[10:11]")
    a("s_load_dwordx16 s[16:31], s[0:1], 0")
    a("s_load_dwordx8 s[32:39], s[0:1], 64")
    lane = V(0)
    tid, t0, t1, t2, t3, t4 = V(1), V(2), V(3), V(4), V(5), V(6)
    vqd, vr, vc, vl15 = V(7), V(8), V(9), V(10)
    vx = [V(11 + i) for i in range(4)]
    xa = [[V(15), V(16)], [V(17), V(18)]]
    tdum = V(19); ta = V(32, 2); tb = V(34, 2)
    R0 = 24
    sTY, sRB, sXK, sWK, sM, sT0, sT1, sT2, sT3, sRG, sHI, sID, sMW, sC8, sR4 = [S(62 + i) for i in range(15)]
    a(f"v_lshrrev_b32 {t0}, 6, v0")
    a(f"v_mov_b32 {tid}, v0")
    a(f"v_readfirstlane_b32 {sWV}, {t0}")
    a(f"v_and_b32 {lane}, 63, v0")
    a(f"s_bfe_u32 {sC8}, s2, 0x30003")
    a(f"s_lshr_b32 {sR4}, s2, 6")
    a(f"s_and_b32 {sRB}, s2, 1")
    a(f"s_lshl_b32 {sRB}, {sRB}, 2")
    a(f"s_add_u32 {sRB}, {sRB}, {sR4}")
    a(f"s_bfe_u32 {sT0}, s2, 0x20001")
    a(f"s_and_b32 {sRG}, {sWV}, 3")
    a(f"s_lshr_b32 {sHI}, {sWV}, 2")
    a(f"v_lshrrev_b32 {vqd}, 4, {lane}")
    a(f"v_bfe_u32 {vr}, {lane}, 2, 2")
    a(f"v_and_b32 {vc}, 3, {lane}")
    a(f"v_and_b32 {vl15}, 15, {lane}")
    a(f"v_lshrrev_b32 {t0}, 3, {lane}")
    a(f"v_mul_u32_u24 {t0}, 1280, {t0}")
    a(f"v_and_b32 {t1}, 7, {lane}")
    a(f"v_xor_b32 {t1}, {t1}, {vqd}")
    a(f"v_lshl_add_u32 {vx[0]}, {t1}, 4, {t0}")
    a(f"v_xor_b32 {t1}, 4, {t1}")
    a(f"v_lshl_add_u32 {vx[1]}, {t1}, 4, {t0}")
    a(f"v_add_u32 {vx[1]}, {8*1280-1024}, {vx[1]}")
    a(f"v_add_u32 {vx[2]}, {16*1280-2048}, {vx[0]}")
    a(f"v_add_u32 {vx[3]}, {16*1280-2048}, {vx[1]}")
    a(f"s_mul_i32 {sXK}, {sRB}, {256*1280}")
    a(f"s_mul_i32 {sT1}, {sWV}, {32*1280}")
    a(f"s_add_u32 {sXK}, {sXK}, {sT1}")
    a(f"s_lshl_b32 {sM}, {sWV}, 12")
    sXA, sXB = S(6), S(7)
    if OPT['swp']:
        a(f"s_add_u32 {sTY}, {sC8}, {sR4}"); a(f"s_and_b32 {sTY}, {sTY}, 1")
        a(f"s_lshl_b32 {sT1}, {sTY}, 7"); a(f"s_add_u32 {sXK}, {sXK}, {sT1}")
    a(f"v_lshlrev_b32 {t2}, 3, {tid}")
    a(f"v_min_u32 {t2}, {163840 - CNT - 8}, {t2}")
    a(f"v_add_u32 {t2}, {CNT}, {t2}")
    a(f"v_mov_b32 {ta[0]}, 0"); a(f"v_mov_b32 {ta[1]}, 0")
    a(f"ds_write_b64 {t2}, {ta}")
    a(f"s_mul_i32 {sID}, {sT0}, 9"); a(f"s_add_u32 {sID}, {sID}, 1"); a(f"s_lshr_b32 {sID}, {sID}, 1")
    a(f"s_add_u32 {sID}, {sID}, {sC8}"); a(f"s_sub_u32 {sID}, {sID}, 3")
    a(f"s_and_b32 {sT1}, {sT0}, 1"); a(f"s_add_u32 {sT1}, {sT1}, {sC8}")
    a(f"s_mov_b32 {sC[0]}, {LOG2E:#x}")
    a(f"s_mov_b32 {sC[1]}, {LOG2E:#x}")
    sU1, sU2, sBK = S(100), S(101), S(95)
    vt1, vt2 = V(22), V(23)
    T2 = OPT['touch'] >= 2; T3 = OPT['touch'] == 3
    rTT = S(96, 4)
    def t2_all(b0):
        return [f"s_mul_i32 s4, {sBK}, {b0}", f"s_add_u32 s4, s4, {sU2}",
                f"v_add_u32 v21, s4, {vt2}", f"s_mov_b64 exec, 0xff\nbuffer_load_dword {tdum}, v21, {rTT}, 0 offen\ns_mov_b64 exec, -1"]
    OOL = []
    def t2_one(b, c8v):
        lb = a.newlabel('T2')
        body = (f"s_mul_i32 s4, {sBK}, {b}\ns_add_u32 s4, s4, {sU1}\nv_add_u32 v3, s4, {vt1}\n" + ("s_mov_b32 exec_hi, 0\n", "s_mov_b64 exec, 0xffff\n", "s_mov_b64 exec, 0xff\n")[OPT['hd']] +
                f"buffer_load_dword {tdum}, v3, {rTT}, 0 offen\ns_mov_b64 exec, -1\n")
        if OPT['trim']:
            OOL.append(f"{lb}o:\n" + body + f"s_branch {lb}")
            return [f"s_cmp_eq_u32 {'s94' if OPT['hd'] else sC8}, {c8v}\ns_cbranch_scc1 {lb}o\n{lb}:"]
        return [f"s_cmp_lg_u32 {sC8}, {c8v}\ns_cbranch_scc1 {lb}\n" + body + f"{lb}:"]
    if T2:
        a(f"s_lshr_b32 s9, {sWV}, 1")
        a(f"s_mov_b32 {rTT[2]}, {2048*1280}"); a(f"s_movk_i32 {sBK}, 128")
        a("s_cmp_eq_u32 s9, 1")
        a(f"s_cselect_b32 {rTT[2]}, {640*3840}, {rTT[2]}"); a(f"s_cselect_b32 {sBK}, {64*3840}, {sBK}")
        a("s_cmp_ge_u32 s9, 2")
        a(f"s_cselect_b32 {rTT[2]}, {640*3456}, {rTT[2]}"); a(f"s_cselect_b32 {sBK}, {64*3456}, {sBK}")
        a(f"s_mov_b32 {rTT[3]}, 0x20000")
        a("s_cmp_eq_u32 s9, 0")
        a("s_movk_i32 s7, 128"); a("s_cselect_b32 s5, 1280, s7"); a("s_cselect_b32 s6, 640, s7"); a("s_cselect_b32 s7, 512, 0")
        a(f"v_mul_u32_u24 {vt1}, s5, {lane}")
        a(f"v_mul_u32_u24 {vt2}, s6, {lane}")
        a(f"v_and_b32 {t0}, 1, {lane}"); a(f"v_mul_u32_u24 {t0}, s7, {t0}"); a(f"v_sub_u32 {vt2}, {vt2}, {t0}")
        a(f"s_and_b32 s4, {sWV}, 1")
        a(f"s_lshl1_add_u32 {sU2}, s2, s4"); a(f"s_lshl_b32 {sU2}, {sU2}, 3"); a(f"s_mul_i32 {sU2}, {sU2}, s6")
        a(f"s_and_b32 {sU1}, s2, 7"); a(f"s_lshl2_add_u32 {sU1}, {sU1}, {sR4}")
        a(f"s_lshl1_add_u32 {sU1}, {sU1}, s4")
        if OPT['hd'] == 1:
            a(f"s_and_b32 s4, {sC8}, 1"); a(f"s_lshl1_add_u32 {sU1}, {sU1}, s4"); a(f"s_lshl_b32 {sU1}, {sU1}, 4")
            a(f"s_add_u32 s94, {sC8}, 1"); a("s_lshr_b32 s94, s94, 1")
        elif OPT['hd'] == 2:
            a(f"s_and_b32 s4, {sC8}, 3"); a(f"s_lshl2_add_u32 {sU1}, {sU1}, s4"); a(f"s_lshl_b32 {sU1}, {sU1}, 3")
            a(f"s_add_u32 s94, {sC8}, 1"); a("s_lshr_b32 s94, s94, 2")
        else: a(f"s_lshl_b32 {sU1}, {sU1}, 5")
        a(f"s_mul_i32 {sU1}, {sU1}, s5")
        a(f"v_add_u32 {t4}, {sU2}, {vt2}")
        if eval(OPT['t2a'])[0]:
            a(f"s_mul_i32 s4, {sBK}, {eval(OPT['t2a'])[0]}"); a(f"v_add_u32 {t4}, s4, {t4}")
    a(f"s_mov_b32 {rX[2]}, {2048*1280}"); a(f"s_mov_b32 {rX[3]}, 0x20000")
    a(f"s_mov_b32 m0, {sM}")
    a("s_waitcnt lgkmcnt(0)")
    if T2:
        a("s_cmp_eq_u32 s9, 1"); a(f"s_cselect_b64 {rTT[0:2]}, {pQKV}, {pX}")
        a("s_cmp_eq_u32 s9, 2"); a(f"s_cselect_b64 {rTT[0:2]}, {pWG}, {rTT[0:2]}")
        a("s_cmp_eq_u32 s9, 3"); a(f"s_cselect_b64 {rTT[0:2]}, {pWU}, {rTT[0:2]}")
        a(f"s_and_b32 {rTT[1]}, {rTT[1]}, 0xffff")
        a("s_mov_b64 exec, 0xff"); a(f"buffer_load_dword {tdum}, {t4}, {rTT}, 0 offen"); a("s_mov_b64 exec, -1")
        for b0 in eval(OPT['t2a'])[1:]:
            for l in t2_all(b0): a(l)
    a(f"s_mov_b32 {rX[0]}, {pX[0]}"); a(f"s_and_b32 {rX[1]}, {pX[1]}, 0xffff")
    if OPT['x0e']:
        a(f"s_cmp_eq_u32 {sT1}, 8"); a("s_cbranch_scc1 NOX0")
        if OPT['sb1']: a("s_barrier")
        for n in range(4): a(f"buffer_load_dwordx4 {vx[n]}, {rX}, {sXK} offen offset:{n*1024} lds")
        a.label("NOX0")
    srd(a, rWS, pWS, WSZ)
    srd(a, rDBG, pDBG, 256)
    if OPT['tlb']:
        a(f"s_cmp_lg_u32 {sWV}, 6"); a("s_cbranch_scc1 NOTLB")
        srd(a, rA, pOUT, 2048 * 1280)
        a(f"v_lshlrev_b32 {t0}, {OPT['tlb']}, {lane}")
        a("s_lshl_b32 s6, s2, 7"); a(f"v_add_u32 {t0}, s6, {t0}")
        a(f"v_min_u32 {t1}, {0x1250000}, {t0}")
        a(f"buffer_load_dword v31, {t1}, {rWS}, 0 offen")
        a(f"buffer_load_dword v31, {t0}, {rA}, 0 offen")
        a.label("NOTLB")
    if OPT['cpf']:
        a(f"s_cmp_lg_u32 {sWV}, 7"); a("s_cbranch_scc1 NOCPF")
        a("s_getpc_b64 s[90:91]")
        a.label("CPF_PC")
        a("s_lshr_b32 s6, s2, 3"); a(f"s_mul_i32 s6, s6, {OPT['cpf']*128}")
        a(f"v_lshlrev_b32 {t0}, 7, {lane}"); a(f"v_add_u32 {t0}, s6, {t0}")
        a(f"v_min_u32 {t0}, K_LAST-CPF_PC, {t0}")
        a(f"s_mov_b64 exec, {(1 << OPT['cpf']) - 1:#x}")
        a(f"global_load_dword v31, {t0}, s[90:91]")
        a("s_mov_b64 exec, -1")
        a.label("NOCPF")
    if OPT['swp']: a(f"s_lshl_b32 s4, {sTY}, 8"); a(f"s_sub_u32 {sXA}, 128, s4"); a(f"s_add_u32 {sXB}, s4, 128")
    a(f"s_cmp_lt_u32 {sC8}, 3")
    a("s_cbranch_scc1 R_QKV")
    a(f"s_cmp_eq_u32 {sT1}, 8")
    a("s_cbranch_scc1 R_SPARE")

    def x_dma(vm, blk, half):
        if blk == 0 and OPT['x0e']:
            vm.issue(('X', 0)); vm.issue(('X', 0)); return []
        l = [f"s_add_u32 m0, {sM}, {(blk % 3) * XSLOT}"]
        if half == 0 and blk > 0: l.append(f"s_add_u32 {sXK}, {sXK}, {(sXA if blk % 2 else sXB) if OPT['swp'] else 128}")
        for n in (2 * half, 2 * half + 1):
            l.append(f"buffer_load_dwordx4 {vx[n]}, {rX}, {sXK} offen offset:{n*1024} {OPT['xfl']} lds")
            vm.issue(('X', blk))
        return l
    def x_addr_setup():
        a(f"v_lshrrev_b32 {t0}, 1, {vl15}")
        a(f"v_xor_b32 {t0}, {t0}, {vqd}")
        a(f"v_lshlrev_b32 {t0}, 4, {t0}")
        a(f"v_lshl_add_u32 {t0}, {vl15}, 7, {t0}")
        a(f"s_lshl_b32 {sT0}, {sRG}, 13")
        a(f"v_add_u32 {xa[0][0]}, {sT0}, {t0}")
        a(f"v_xor_b32 {xa[0][1]}, 64, {xa[0][0]}")
        a(f"v_add_u32 {xa[1][0]}, 0x10000, {xa[0][0]}")
        a(f"v_add_u32 {xa[1][1]}, 0x10000, {xa[0][1]}")
    def x_reads(XF, step):
        blk, kk = step // 2, step % 2
        sl = blk % 3
        return [f"ds_read_b128 {XF[tt]}, {xa[sl // 2][kk]} offset:{(sl % 2) * XSLOT + tt * 2048}" for tt in range(4)]
    def burst(vm, b0, b1):
        if OPT['touch'] not in (1, 3): return []
        l = []
        for st, reg in ((0, ta), (5, tb)):
            lo, hi = max(b0, st) - st, min(b1, st + 5) - st
            if lo >= hi: continue
            m = ((1 << (12 * hi)) - 1) & ~((1 << (12 * lo)) - 1)
            l += [f"s_mov_b32 exec_lo, {m & 0xffffffff:#x}", f"s_mov_b32 exec_hi, {m >> 32:#x}", f"global_load_dword {tdum}, {reg}, off"]
            vm.issue('T')
        l.append("s_mov_b64 exec, -1")
        return l
    def touch_setup(pw0, pw1, rowbytes, off0, off1, seg):
        if OPT['touch'] not in (1, 3): return
        l12, bi = tb[0], tb[1]; tinc = V(36)
        a(f"v_mul_u32_u24 {bi}, 43, {lane}"); a(f"v_lshrrev_b32 {bi}, 9, {bi}")
        a(f"v_mul_u32_u24 {l12}, 12, {bi}"); a(f"v_sub_u32 {l12}, {lane}, {l12}")
        a(f"s_lshl_b32 {sT2}, {sRB}, 3"); a(f"s_add_u32 {sT2}, {sT2}, {sC8}"); a(f"s_lshl_b32 {sT2}, {sT2}, 3"); a(f"s_add_u32 {sT2}, {sT2}, {sWV}")
        a(f"s_mul_i32 {sT2}, {sT2}, {4*1280}")
        a(f"v_mul_u32_u24 {t0}, 1280, {l12}")
        a(f"v_add_u32 {t0}, {sT2}, {t0}")
        a(f"s_lshl_b32 {sT0}, {sR4}, 3"); a(f"s_add_u32 {sT0}, {sT0}, {sWV}"); a(f"s_mul_i32 {sT0}, {sT0}, {2*rowbytes}")
        a(f"v_subrev_u32 {t1}, 4, {l12}")
        a(f"v_bfe_u32 {t2}, {t1}, 2, 1")
        a(f"v_mul_u32_u24 {t2}, {rowbytes}, {t2}")
        a(f"v_and_b32 {t3}, 1, {t1}")
        a(f"v_mul_u32_u24 {t3}, {seg-4}, {t3}")
        a(f"v_add3_u32 {t2}, {t2}, {t3}, {sT0}")
        a(f"v_and_b32 {t3}, 2, {t1}")
        a(f"v_cmp_eq_u32 vcc, 0, {t3}")
        a(f"v_mov_b32 {t3}, {off1}"); a(f"v_mov_b32 {t4}, {off0}")
        a(f"v_cndmask_b32 {t3}, {t3}, {t4}, vcc")
        a(f"v_add_u32 {t2}, {t2}, {t3}")
        a(f"v_mov_b32 {t3}, {pw1[0]}"); a(f"v_mov_b32 {t4}, {pw0[0]}"); a(f"v_cndmask_b32 {ta[0]}, {t3}, {t4}, vcc")
        a(f"v_mov_b32 {t3}, {pw1[1]}"); a(f"v_mov_b32 {t4}, {pw0[1]}"); a(f"v_cndmask_b32 {ta[1]}, {t3}, {t4}, vcc")
        a(f"v_cmp_gt_u32 vcc, 4, {l12}")
        a(f"v_mov_b32 {t3}, {pX[0]}"); a(f"v_mov_b32 {t4}, {pX[1]}")
        a(f"v_cndmask_b32 {t2}, {t2}, {t0}, vcc")
        a(f"v_cndmask_b32 {ta[0]}, {ta[0]}, {t3}, vcc")
        a(f"v_cndmask_b32 {ta[1]}, {ta[1]}, {t4}, vcc")
        a(f"v_mov_b32 {t3}, {64*rowbytes}"); a(f"v_mov_b32 {t4}, 128"); a(f"v_cndmask_b32 {tinc}, {t3}, {t4}, vcc")
        a(f"v_mad_u32_u24 {t2}, {tinc}, {bi}, {t2}")
        a(f"v_add_co_u32 {ta[0]}, vcc, {ta[0]}, {t2}")
        a(f"v_mul_u32_u24 {t2}, 5, {tinc}")
        a(f"v_addc_co_u32 {ta[1]}, vcc, 0, {ta[1]}, vcc")
        a(f"v_add_co_u32 {tb[0]}, vcc, {ta[0]}, {t2}")
        a(f"v_addc_co_u32 {tb[1]}, vcc, 0, {ta[1]}, vcc")
    HALF = [None]
    def step_body(mains, lblk, pre=[]):
        for l in pre: a(l)
        if not lblk:
            for m in mains: a(m)
            return
        if OPT['pp'] == 2:
            rds = [l for l in lblk if l.startswith('ds_read')]; oth = [l for l in lblk if not l.startswith('ds_read')]
            l1, l2 = a.newlabel('PP'), a.newlabel('PP')
            if oth:
                a(f"s_cmp_eq_u32 {sHI}, 0"); a(f"s_cbranch_scc1 {l1}")
                for l in oth: a(l)
                a.label(l1)
            k = 0
            for i, m in enumerate(mains):
                a(m)
                while k < len(rds) and k < (i + 1) * max(1, -(-len(rds) // len(mains))):
                    a(rds[k]); k += 1
            if oth:
                a(f"s_cmp_eq_u32 {sHI}, 0"); a(f"s_cbranch_scc0 {l2}")
                for l in oth: a(l)
                a.label(l2)
        elif OPT['pp']:
            l1, l2 = a.newlabel('PP'), a.newlabel('PP')
            a(f"s_cmp_eq_u32 {sHI}, 0"); a(f"s_cbranch_scc1 {l1}")
            for l in lblk: l() if callable(l) else a(l)
            a.label(l1)
            for m in mains: a(m)
            a(f"s_cmp_eq_u32 {sHI}, 0"); a(f"s_cbranch_scc0 {l2}")
            for l in lblk: l() if callable(l) else a(l)
            a.label(l2)
        else:
            rds = [l for l in lblk if l.startswith('ds_read')]; oth = [l for l in lblk if not l.startswith('ds_read')]
            units = []; cur = []
            for l in oth:
                cur.append(l)
                if 'buffer_' in l or 'ds_write' in l: units.append(cur); cur = []
            if cur: units.append(cur)
            n = len(mains); mode = OPT['il']
            if HALF[0] == 'hi': mode = OPT['ilh']
            if HALF[0] == 'lo': mode = OPT['ill']
            pos = {}
            if mode == 5:
                for l in oth: a(l)
                for k, r in enumerate(rds): pos.setdefault(min(n - 1, k * min(n, len(rds)) // len(rds) if len(rds) > n else k), []).append(r)
            elif mode == 6:
                for l in rds + oth: a(l)
            elif mode == 7:
                for k, r in enumerate(rds): pos.setdefault(min(n - 1, k * min(n, len(rds)) // len(rds) if len(rds) > n else k), []).append(r)
                pos.setdefault(n - 1, []).extend(oth)
            elif mode == 8:
                for l in oth + rds[:8]: a(l)
                for k, r in enumerate(rds[8:]): pos.setdefault(min(n - 1, k), []).append(r)
            if mode >= 5: pass
            elif mode == 0:
                seq = [[r] for r in rds] + units
                for k, u in enumerate(seq): pos.setdefault(min(n - 1, k * n // max(len(seq), n)), []).extend(u)
            elif mode == 1:
                for k, u in enumerate(units): pos.setdefault(min(n - 1, 2 * k), []).extend(u)
                for k, r in enumerate(rds): pos.setdefault(min(n - 1, k * min(n, len(rds)) // len(rds) if len(rds) > n else k), []).append(r)
            elif mode == 2:
                for k, r in enumerate(rds): pos.setdefault(min(n - 1, k // 2), []).append(r)
                for k, u in enumerate(units): pos.setdefault(min(n - 1, len(rds) // 2 + 2 * k), []).extend(u)
            elif mode == 3:
                for k, u in enumerate(units): pos.setdefault(min(n - 1, 1 + k * (2 * n // 3) // max(1, len(units))), []).extend(u)
                for k, r in enumerate(rds): pos.setdefault(min(n - 1, k * min(n, len(rds)) // len(rds) if len(rds) > n else k), []).append(r)
            elif mode == 4:
                k = 0
                for i in range(n):
                    while k < len(lblk) and k < (i + 1) * len(lblk) // n + 1:
                        pos.setdefault(i, []).append(lblk[k]); k += 1
            for i, m in enumerate(mains):
                a(m)
                for l in pos.get(i, []): a(l)
    def init_check_issue(reg, off=128):
        return [f"v_mov_b32 {reg}, 0", f"buffer_load_dword {reg}, {reg}, {rDBG}, 0 offen offset:{off} sc1"]
    def init_check(reg, off=128, ool=False):
        ok = a.newlabel('INITOK')
        a(f"v_readfirstlane_b32 {sP[0]}, {reg}")
        if ool and OPT['trim']:
            a(f"s_cmp_eq_u32 {sP[0]}, 0"); a(f"s_cbranch_scc1 {ok}o"); a.label(ok)
            b = Asm(); b.uid = a.uid + 1000; init_poll(b, reg, off); a.uid += 5
            OOL.append(f"{ok}o:\n" + "\n".join(x.text for x in b.ins) + f"\ns_branch {ok}")
            return
        a(f"s_cmp_lg_u32 {sP[0]}, 0")
        a(f"s_cbranch_scc1 {ok}")
        init_poll(a, reg, off)
        a.label(ok)
    sR6, sCG, sAo, sBg, sBo, sLC, sH2, sRX = [S((16 if OPT['trim'] else 94) + i) for i in range(8)]
    vo, vo4 = V(20), V(21)
    vS2 = V(30)
    sO1, sO2 = S(79), S(80)
    BRb = [208, 228, 32, 52]
    BR = [[V(BRb[b] + 4 * j, 4) for j in range(5)] for b in range(4)]
    BR.append([V(200, 4), V(204, 4), V(248, 4), V(24, 4), V(28, 4)])
    NA = 3 if OPT['bx'] else 4
    GL = [4, 6, 7, 9]; LR = [2, 5, 3, 4]; CR = [0, 1, 6]
    GRP = {0:0, 1:1, 2:2, 3:3, 4:8, 6:9, 7:10, 9:11, 5:12, 8:13}
    if OPT['gf'] & 1:
        GL = [6, 7, 8, 9]; GRP = {0:0, 1:1, 2:2, 3:3, 6:8, 7:9, 8:10, 9:11, 4:12, 5:13}
    INP2 = [False]
    BS_ = 40960; GS_ = 4 * BS_
    CB0 = 38 * BS_; CA0 = 38 * 4096
    def p2_setup():
        if OPT['map2'] == 2:
            hd = [f"s_bfe_u32 {sR6}, s2, 0x10002", "s_lshr_b32 s4, s2, 4", f"s_lshl4_add_u32 {sR6}, {sR6}, s4",
                  f"s_lshr_b32 {sCG}, s2, 3", "s_lshr_b32 s4, s2, 6", f"s_add_u32 {sCG}, {sCG}, s4", f"s_and_b32 {sCG}, {sCG}, 1", "s_and_b32 s4, s2, 3", f"s_lshl1_add_u32 {sCG}, s4, {sCG}"]
        elif OPT['map2']:
            hd = [f"s_bfe_u32 {sR6}, s2, 0x20001", "s_lshr_b32 s4, s2, 5", f"s_lshl3_add_u32 {sR6}, {sR6}, s4",
                  f"s_lshr_b32 {sCG}, s2, 3", "s_lshr_b32 s4, s2, 6", f"s_add_u32 {sCG}, {sCG}, s4", f"s_and_b32 {sCG}, {sCG}, 3", "s_and_b32 s4, s2, 1", f"s_lshl2_add_u32 {sCG}, s4, {sCG}"]
        else:
            hd = [f"s_and_b32 {sR6}, s2, 7", f"s_lshl_b32 {sR6}, {sR6}, 2", "s_lshr_b32 s4, s2, 6", f"s_add_u32 {sR6}, {sR6}, s4",
             f"s_bfe_u32 {sCG}, s2, 0x30003", f"s_lshl1_add_u32 {sCG}, s4, {sCG}", f"s_and_b32 {sCG}, {sCG}, 7"]
        return hd + [f"v_lshlrev_b32 {vo}, 4, {lane}", f"v_add_u32 {vo4}, 4096, {vo}",
             f"s_lshl3_add_u32 {sBg}, {sRG}, {sCG}", f"s_mul_i32 {sBg}, {sBg}, 5120", f"s_add_u32 {sBg}, {sBg}, {BP}",
             f"s_mov_b32 {rB[0]}, {pWS[0]}", f"s_and_b32 {rB[1]}, {pWS[1]}, 0xffff", f"s_mul_i32 {rB[2]}, {sHI}, {WSZ}", f"s_mov_b32 {rB[3]}, 0x20000",
             f"s_mul_i32 {sLC}, {sRG}, 5120", f"s_mul_i32 {sH2}, {sHI}, {GS_}", f"s_mul_i32 {sRX}, {sHI}, 20480",
             f"s_xor_b32 s4, {sHI}, 1", f"s_mul_i32 {sBo}, s4, {16*BS_}", f"s_add_u32 {sBo}, {sBo}, {sBg}",
             f"s_mul_i32 {sAo}, {sR6}, 74", f"s_mul_i32 s4, s4, 16", f"s_add_u32 {sAo}, {sAo}, s4", f"s_add_u32 {sAo}, {sAo}, {sRG}", f"s_lshl_b32 {sAo}, {sAo}, 12",
             f"s_lshr_b32 s4, {sCG}, 1", "s_mul_i32 s4, s4, 5", f"s_mul_i32 {sO2}, {sR6}, 74", f"s_add_u32 {sO2}, {sO2}, s4", f"s_add_u32 {sO2}, {sO2}, 54",
             f"s_lshl2_add_u32 {sO2}, {sO2}, {sRG}", f"s_lshl_b32 {sO2}, {sO2}, 10", f"s_and_b32 s4, {sCG}, 1", f"s_mul_i32 {sO1}, s4, {3*4096}",
             f"s_add_u32 {sO1}, {sO1}, {sO2}", "s_lshl_b32 s4, s4, 9", f"s_add_u32 {sO2}, {sO2}, s4", f"s_add_u32 {sO2}, {sO2}, 8192",
             f"s_lshl_b32 s78, {sR6}, 7", f"s_add_u32 s78, s78, {FH + GOD}"]
    vFQ = V(31)
    def q_flag_issue(): return [f"v_mov_b32 {vFQ}, 0", f"buffer_load_dword {vFQ}, {vFQ}, {rWS}, s78 offen offset:4 sc1"]
    def pq_list(x, y):
        PB_ = V(176, 12)
        return [f"s_lshl3_add_u32 {x}, {sR6}, {sCG}", f"s_mul_i32 {x}, {x}, 10240", f"s_add_u32 {x}, {x}, {PQ}", f"s_lshl_b32 {y}, {sRG}, 11", f"s_add_u32 {y}, {y}, {x}"] + \
               [f"buffer_load_dwordx4 {PB_[4*h:4*h+4]}, {vo}, {rWS}, {y} offen offset:{h*1024} {LD}" for h in range(2)] + \
               [f"s_lshr_b32 {y}, {sRG}, 1", f"s_lshl_b32 {y}, {y}, 10", f"s_add_u32 {x}, {x}, {y}", f"s_and_b32 {y}, {sRG}, 1", f"s_lshl3_add_u32 {x}, {y}, {x}", f"s_add_u32 {x}, {x}, 8192",
                f"buffer_load_dwordx2 {PB_[8:10]}, {vo}, {rWS}, {x} offen {LD}"]
    sKQ = S(77)
    def poison(R4):
        if not OPT['sent']: return []
        lb = a.newlabel('PO')
        return [f"s_cmp_eq_u32 {sHI}, 1\ns_cbranch_scc1 {lb}\n" + "\n".join(f"v_mov_b32 {R4[i]}, -1" for i in range(4)) +
                f"\nbuffer_store_dwordx4 {R4}, {vo}, {rWS}, {sO1} offen {ST}\nbuffer_store_dwordx4 {R4}, {vo4}, {rWS}, {sO1} offen {ST}"
                f"\ns_mov_b32 exec_hi, 0\nbuffer_store_dwordx4 {R4}, {vo}, {rWS}, {sO2} offen {ST}\ns_mov_b32 exec_hi, -1\n{lb}:"]
    def b_reg(vm, i, tag, r=None, grp=None, ext=0, buf=None):
        b = i % 4 if buf is None else buf; r = r or rWS; grp = i if grp is None else grp
        if INP2[0] and OPT['nob'] == 1: r = rA
        if INP2[0] and OPT['nob'] == 2: return []
        l = [f"s_add_u32 s4, {sBo}, {grp*GS_ + ext}"]
        for j in range(5):
            if j < 4: l.append(f"buffer_load_dwordx4 {BR[b][j]}, {vo}, {r}, s4 offen offset:{j*1024} {LD}")
            else: l.append(f"buffer_load_dwordx4 {BR[b][j]}, {vo4}, {r}, s4 offen {LD}")
            vm.issue(tag)
        return l
    def b_row(vm, base, grp, row, extra=None, ext=0, hi3=False):
        l = [f"s_add_u32 s4, {base}, {grp*GS_ + ext}", f"s_add_u32 s5, {sLC}, {row*20480}"]
        if hi3: l += [f"s_add_u32 s4, s4, {sH2}", f"s_mul_i32 s6, {sRX}, 3", "s_add_u32 s5, s5, s6"]
        if extra: l += [f"s_add_u32 s4, s4, {sH2}", f"s_add_u32 s5, s5, {extra}"]
        l.append("s_mov_b32 m0, s5")
        if INP2[0] and OPT['nob'] == 2: return []
        for j in range(4):
            l.append(f"buffer_load_dwordx4 {vo}, {rWS}, s4 offen offset:{j*1024} {LD} lds"); vm.issue('BL')
        l.append("s_add_u32 m0, s5, 4096")
        l.append(f"buffer_load_dwordx4 {vo4}, {rWS}, s4 offen {LD} lds"); vm.issue('BL')
        return l
    def b_row_half(vm, k):
        l = [f"s_add_u32 s4, {sBg}, {GRP[GL[k]]*20480}", f"s_add_u32 s5, {sLC}, {LR[k]*20480}", f"s_add_u32 s4, s4, {sH2}", f"s_add_u32 m0, s5, {sH2}"]
        for j in range(3):
            l.append(f"buffer_load_dwordx4 {vo}, {rWS}, s4 offen offset:{j*1024} {LD} lds"); vm.issue('BL')
        return l
    sPF = S(8)
    def flag_store(need):
        a(f"s_mov_b32 {sNEED}, {need}")

    vw = [V(R0), V(R0 + 1)]; wa = [V(R0 + 2), V(R0 + 3), V(R0 + 4)]; vchk = V(R0 + 5)
    FB = [32, 72]
    XF = [[V(FB[b] + 4 * tt, 4) for tt in range(4)] for b in range(2)]
    WF = [[V(FB[b] + 16 + 4 * c, 4) for c in range(6)] for b in range(2)]
    ACC = [[V(112 + (c * 4 + tt) * 4, 4) for tt in range(4)] for c in range(6)]
    vm = VmTrack()
    a(f"s_mul_i32 {sT3}, {sID}, 192")
    touch_setup(pWG, pWU, 3456, sT3, sT3, 192)
    for l in burst(vm, *BS['p0']): a(l)
    a(f"s_bitcmp1_b32 {sWV}, 0")
    a(f"s_cselect_b32 {rW[0]}, {pWU[0]}, {pWG[0]}")
    a(f"s_cselect_b32 {rW[1]}, {pWU[1]}, {pWG[1]}")
    a(f"s_and_b32 {rW[1]}, {rW[1]}, 0xffff")
    a(f"s_mov_b32 {rW[2]}, {640*3456}")
    a(f"s_mov_b32 {rW[3]}, 0x20000")
    a(f"s_bfe_u32 {sT0}, {sWV}, 0x10001")
    a(f"s_lshl_b32 {sT1}, {sT0}, 1")
    for n in range(2):
        a(f"v_add_u32 {t0}, {64*n}, {lane}")
        a(f"v_mul_u32_u24 {t1}, 43, {t0}")
        a(f"v_lshrrev_b32 {t1}, 9, {t1}")
        a(f"v_mul_u32_u24 {t2}, 12, {t1}")
        a(f"v_sub_u32 {t2}, {t0}, {t2}")
        a(f"v_lshrrev_b32 {t3}, 2, {t2}")
        a(f"v_cmp_eq_u32 vcc, 1, {t3}")
        a(f"v_mov_b32 {t3}, {sT1}")
        a(f"v_mov_b32 {t4}, {sT0}")
        a(f"v_cndmask_b32 {t3}, {t3}, {t4}, vcc")
        a(f"v_xor_b32 {t2}, {t2}, {t3}")
        a(f"v_mul_u32_u24 {t1}, 3456, {t1}")
        a(f"v_lshl_add_u32 {vw[n]}, {t2}, 4, {t1}")
        if n: a(f"v_subrev_u32 {vw[n]}, 1024, {vw[n]}")
    a(f"s_lshr_b32 {sT0}, {sWV}, 1")
    a(f"s_mul_i32 {sWK}, {sT0}, {8*3456}")
    a(f"s_add_u32 {sWK}, {sWK}, {sT3}")
    a(f"s_mul_i32 {sMW}, {sT0}, 1536")
    a(f"s_and_b32 {sT1}, {sWV}, 1")
    a(f"s_mul_i32 {sT1}, {sT1}, 6144")
    a(f"s_add_u32 {sMW}, {sMW}, {sT1}")
    sW2 = S(54, 2)
    if OPT['swp']:
        a(f"s_mul_i32 {sT1}, {sTY}, {2*110592}"); a(f"s_add_u32 {sWK}, {sWK}, {sT1}"); a(f"s_lshl_b32 {sT1}, {sT1}, 1")
        a(f"s_sub_u32 {sW2[0]}, 110592, {sT1}"); a(f"s_add_u32 {sW2[1]}, {sT1}, 110592")
    def w_dma(step):
        l = [f"s_add_u32 m0, {sMW}, {WB + (step % 5) * 12288}"] + ([f"s_add_u32 {sWK}, {sWK}, {(110592 if step % 2 or not OPT['swp'] else (sW2[0] if step % 4 == 2 else sW2[1]))}"] if step else []) + [
             f"buffer_load_dwordx4 {vw[0]}, {rW}, {sWK} offen {OPT['wfl']} lds",
             "s_mov_b32 exec_hi, 0\n"
             f"buffer_load_dwordx4 {vw[1]}, {rW}, {sWK} offen offset:1024 {OPT['wfl']} lds\n"
             "s_mov_b32 exec_hi, -1"]
        vm.issue(('W', step)); vm.issue(('W', step))
        return l
    if OPT['sb1'] and not OPT['x0e']: a("s_barrier")
    for l in x_dma(vm, 0, 0) + x_dma(vm, 0, 1) + w_dma(0) + w_dma(1): a(l)
    x_addr_setup()
    a(f"v_lshl_add_u32 {t0}, {vqd}, 3, {vr}")
    a(f"v_mul_u32_u24 {t0}, 192, {t0}")
    a(f"v_add_u32 {t0}, {WB}, {t0}")
    a(f"v_and_b32 {t1}, 1, {vqd}")
    a(f"v_lshlrev_b32 {t2}, 5, {t1}")
    a(f"v_lshl_add_u32 {t2}, {vc}, 3, {t2}")
    a(f"s_lshl_b32 {sT0}, {sHI}, 7")
    a(f"v_add3_u32 {wa[0]}, {t0}, {t2}, {sT0}")
    a(f"v_xor_b32 {wa[1]}, 32, {wa[0]}")
    a(f"v_and_b32 {t2}, 2, {vc}")
    a(f"v_add_u32 {t2}, {sHI}, {t2}")
    a(f"v_xor_b32 {t2}, {t2}, {t1}")
    a(f"v_lshlrev_b32 {t2}, 4, {t2}")
    a(f"v_and_b32 {t3}, 1, {vc}")
    a(f"v_lshl_add_u32 {t2}, {t3}, 3, {t2}")
    a(f"v_add3_u32 {wa[2]}, {t0}, {t2}, 64")
    def w_reads(WFb, step):
        return [f"ds_read_b64_tr_b16 {WFb[m*3+i][2*rd:2*rd+2]}, {wa[i]} offset:{(step % 5) * 12288 + m * 6144 + rd * 768}"
                for m in range(2) for i in range(3) for rd in range(2)]
    def t2b_emit():
        if T2:
            for b0 in eval(OPT['t2b']):
                for l in t2_all(b0): a(l)
                vm.issue('T')
    if OPT['t2pos'] == 1:
        if OPT['sb2']: a("s_barrier")
        t2b_emit()
    if OPT['trim']:
        for l in p2_setup(): a(l)
    n = vm.wait_for(lambda t: t in (('X', 0), ('W', 0)))
    a(f"s_waitcnt vmcnt({n})")
    a("s_barrier")
    stamp(a, 1)
    for l in x_reads(XF[0], 0) + w_reads(WF[0], 0): a(l)
    if OPT['fill'] == 0:
        for l in x_dma(vm, 1, 0) + x_dma(vm, 1, 1) + w_dma(2): a(l)
        if OPT['t2pos'] == 2: t2b_emit()
    fq = []
    for st in range(2, 20):
        if st % 2 == 0:
            b = st // 2
            fq += [('X', b, 0, max(0, 2*(b-3)+1)), ('X', b, 1, max(0, 2*(b-3)+1))]
        fq.append(('W', st, 0, max(0, st - 5)))
    def ffn_loop():
        hq = None; LBT = []
        for j in range(20):
            cur, nxt = j & 1, (j & 1) ^ 1
            CHK = OPT['chk']
            NB = OPT['nobar']
            if j < NB:
                n = vm.wait_for(lambda t: t in (('X', (j + 1) // 2), ('W', j + 1)) or (j == CHK and t == 'chk') or (j == 16 and t == 'chk2') or (j == NB - 1 and t[0] in 'XW'))
                a(f"s_waitcnt vmcnt({n}) lgkmcnt(0)")
                if j == CHK: init_check(vchk, 128, True)
                if j == 16: init_check(vS2, 136, True)
                a("s_barrier")
            else:
                a("s_waitcnt lgkmcnt(0)")
            sstamp(a, j)
            mains = [f"v_mfma_f32_16x16x32_bf16 {ACC[c][tt]}, {WF[cur][c]}, {XF[cur][tt]}, {'0' if j == 0 else ACC[c][tt]}" for c in range(6) for tt in range(4)]
            pre = burst(vm, *BS[j]) if j in BS else []
            lblk = []
            if j < 19:
                lblk += x_reads(XF[nxt], j + 1) + w_reads(WF[nxt], j + 1)
                if OPT['fill']:
                    cnt = OPT['fill'] + (1 if j == 0 else 0)
                    while cnt and fq and fq[0][3] <= j:
                        it = fq.pop(0); cnt -= 1
                        lblk += x_dma(vm, it[1], it[2]) if it[0] == 'X' else w_dma(it[1])
                if j == 0 and not OPT['fill']: lblk += w_dma(3) + x_dma(vm, 2, 0) + x_dma(vm, 2, 1) + w_dma(4)
                xb = (j - 1) // 2 + 3 if j >= 1 else 99
                if xb <= 9 and not OPT['fill']: lblk += x_dma(vm, xb, (j - 1) % 2)
                if T2 and j in eval(OPT['t2f']): lblk += t2_one(*eval(OPT['t2f'])[j])
                if j == CHK - 2: lblk += init_check_issue(vchk); vm.issue('chk')
                if j + 5 <= 19 and not OPT['fill']: lblk += w_dma(j + 5)
                if j == 10 and not OPT['trim']: lblk += p2_setup()
                if j == OPT['pj']: lblk += poison(V(248, 4))
                if OPT['lbt'] and j == OPT['lbt']: LBT = [f"s_bfe_u32 s4, {sC8}, 0x10001", f"s_lshl3_add_u32 s4, s4, {sWV}", f"s_mul_i32 s4, s4, {65*128}", f"s_mul_i32 s5, {sCG}, {74*5120}",
                         "s_add_u32 s4, s4, s5", f"s_add_u32 s4, s4, {BP + 48*5120}", f"v_lshlrev_b32 v3, 7, {lane}", f"buffer_load_dword {tdum}, v3, {rWS}, s4 offen sc1"]
                else: LBT = []
                if j == CHK: hq = b_reg(VmTrack(), 0, 'B') + b_reg(VmTrack(), 1, 'B'); hq = [hq[0:3], hq[3:5], [hq[5]] + hq[6:8], hq[8:10], hq[10:12]]
                JJ = [CHK, CHK + 1, CHK + 2, 15, 18]
                if j in JJ:
                    q = JJ.index(j)
                    if not hq[q][0].startswith('s_'): lblk.append(f"s_add_u32 s4, {sBo}, {0 if q < 3 else GS_}")
                    lblk += hq[q]; vm.issue('B'); vm.issue('B')
                if j == 14: lblk += init_check_issue(vS2, 136); vm.issue('chk2')
                if j == 16: lblk += b_row(vm, sBg, GRP[GL[0]], LR[0], None, 0, True)
                if j == 17: lblk += b_row(vm, sBg, GRP[GL[2]], LR[2], sRX)
            else:
                if OPT['b23'] == 0: lblk += b_reg(vm, 2, 'B') + b_reg(vm, 3, 'B')
                if OPT['b23'] == 2: lblk += b_reg(vm, 2, 'B')
            if j < 19: lblk += LBT
            step_body(mains, lblk, pre)
    if OPT['two'] & 1:
        q0 = list(vm.q)
        a(f"s_cmp_eq_u32 {sHI}, 1"); a("s_cbranch_scc1 ffn_loop_HI")
        HALF[0] = 'lo'; ffn_loop(); a("s_branch ffn_loop_J"); a.label('ffn_loop_HI')
        vm.q = q0; HALF[0] = 'hi'; ffn_loop(); a.label('ffn_loop_J'); HALF[0] = None
    else: ffn_loop()
    stamp(a, 2)
    a(f"s_setprio {OPT['eprio']}")
    sN = S(82, 2)
    a(f"s_mov_b32 {sN[0]}, {NLOG2E:#x}")
    a(f"s_mov_b32 {sN[1]}, {NLOG2E:#x}")
    a(f"s_lshl_b32 {sT3}, {sRB}, 2")
    a(f"s_add_u32 {sT3}, {sT3}, {sRG}")
    a(f"s_mul_i32 {sT0}, {sT3}, 74")
    a(f"s_mul_i32 {sT1}, {sID}, 3")
    a(f"s_add_u32 {sT0}, {sT0}, {sT1}")
    a(f"s_lshl_b32 {sT0}, {sT0}, 12")
    a(f"s_lshl_b32 {sT1}, {sHI}, 13")
    a(f"s_add_u32 {sT1}, {sT0}, {sT1}")
    a(f"s_lshl_b32 {sT2}, {sHI}, 9")
    a(f"s_add_u32 {sT2}, {sT2}, {sT0}")
    a(f"s_add_u32 {sT2}, {sT2}, 4096")
    a(f"s_lshl_b32 {sFLAG}, {sT3}, 7")
    a(f"s_add_u32 {sFLAG}, {sFLAG}, {FH}")
    a(f"v_lshlrev_b32 {t0}, 4, {lane}")
    a(f"v_and_b32 {t1}, 31, {lane}")
    a(f"v_lshlrev_b32 {t1}, 4, {t1}")
    a(f"v_lshrrev_b32 {t2}, 5, {lane}")
    a(f"v_lshl_add_u32 {t1}, {t2}, 10, {t1}")
    tmp = [V(FB[1] + 4 * i, 4) for i in range(2)]
    outs = [V(FB[1] + 8 + 4 * i, 4) for i in range(6)]
    cnt_ = [0]
    def silu2(G0, U0, G1, U1, o):
        GU = ((G0, U0, tmp[0]), (G1, U1, tmp[1]))
        pk = cnt_[0] >= OPT['npk']; cnt_[0] += 1
        for G, U, T in GU:
            if pk:
                for h in range(2): a(f"v_pk_mul_f32 {T[2*h:2*h+2]}, {G[2*h:2*h+2]}, {sN}")
            else:
                for k in range(4): a(f"v_mul_f32 {T[k]}, {sN[0]}, {G[k]}")
        for G, U, T in GU:
            for k in range(4): a(f"v_exp_f32 {T[k]}, {T[k]}")
        for G, U, T in GU:
            if pk:
                for h in range(2): a(f"v_pk_mul_f32 {G[2*h:2*h+2]}, {G[2*h:2*h+2]}, {U[2*h:2*h+2]}")
            else:
                for k in range(4): a(f"v_mul_f32 {G[k]}, {G[k]}, {U[k]}")
        for G, U, T in GU:
            if pk:
                for h in range(2): a(f"v_pk_add_f32 {T[2*h:2*h+2]}, {T[2*h:2*h+2]}, 1.0 op_sel_hi:[1,0]")
            else:
                for k in range(4): a(f"v_add_f32 {T[k]}, 1.0, {T[k]}")
        for G, U, T in GU:
            for k in range(4): a(f"v_rcp_f32 {T[k]}, {T[k]}")
        for G, U, T in GU:
            if pk:
                for h in range(2): a(f"v_pk_mul_f32 {G[2*h:2*h+2]}, {G[2*h:2*h+2]}, {T[2*h:2*h+2]}")
            else:
                for k in range(4): a(f"v_mul_f32 {G[k]}, {G[k]}, {T[k]}")
        for q, (G, U, T) in enumerate(GU):
            for h in range(2): a(f"v_cvt_pk_bf16_f32 {o[2*q+h]}, {G[2*h]}, {G[2*h+1]}")
    for tt in range(4):
        o = outs[tt]
        silu2(ACC[0][tt], ACC[3][tt], ACC[1][tt], ACC[4][tt], o)
        a(f"buffer_store_dwordx4 {o}, {t0}, {rWS}, {sT1} offen offset:{tt*1024} {ST}")
    for l in q_flag_issue(): a(l)
    for tp in range(2):
        o = outs[4 + tp]
        silu2(ACC[2][2*tp], ACC[5][2*tp], ACC[2][2*tp+1], ACC[5][2*tp+1], o)
        a(f"v_permlane32_swap_b32 {o[0]}, {o[2]}")
        a(f"v_permlane32_swap_b32 {o[1]}, {o[3]}")
        a(f"buffer_store_dwordx4 {o}, {t1}, {rWS}, {sT2} offen offset:{tp*2048} {ST}")
    flag_store(35)
    a("s_waitcnt vmcnt(2)")
    a(f"s_mov_b32 {sPF}, 0"); a(f"s_mov_b32 {sKQ}, 0")
    a("s_branch P2")

    for l in OOL: a(l)
    OOL.clear()
    a.label('R_QKV')
    vm = VmTrack()
    vw = [V(R0), V(R0 + 1), V(R0 + 2)]; wa = V(R0 + 3); pa = V(R0 + 4); vchk = V(R0 + 5); vgw = V(R0 + 6)
    FB = [32, 68]
    XF = [[V(FB[b] + 4 * tt, 4) for tt in range(4)] for b in range(2)]
    WF = [[V(FB[b] + 16 + 4 * c, 4) for c in range(5)] for b in range(2)]
    ACC = [V(104 + 20 * tt, 20) for tt in range(4)]
    pf4 = [V(32 + 4 * i, 4) for i in range(9)] + [V(196, 4)]
    pf2 = [V(200, 2), V(202, 2), V(204, 2), V(206, 2), V(248, 2)]
    PF = [[pf4[2 * t], pf4[2 * t + 1], pf2[t]] for t in range(5)]
    WP = V(184, 4); GWF = V(188, 4); GA = V(192, 4)
    sC0, sC1, sLo, sHi2, sISQ, sHB, sGD = [S(77 + i) for i in range(7)]
    PHW = 135168; PHB = 0; VVB = 90112; PS = 352
    srd(a, rW, pQKV, 640 * 3840)
    srd(a, rA, pPHI, 32 * 800)
    a(f"s_lshl_b32 {sID}, {sT0}, 1"); a(f"s_add_u32 {sID}, {sID}, {sC8}")
    a(f"s_mul_i32 {sC0}, {sID}, 160")
    a(f"s_add_u32 {sC1}, {sC0}, 2560")
    a(f"s_add_u32 {sC0}, {sC0}, 1280")
    a(f"s_lshl_b32 {sHB}, {sID}, 2")
    a(f"s_mul_i32 {sT1}, {sT0}, 320")
    a(f"s_add_u32 {sT2}, {sT1}, 160")
    a(f"s_lshl_b32 {sT3}, {sT0}, 3")
    a(f"s_cmp_eq_u32 {sC8}, 2")
    a(f"s_cselect_b32 {sC0}, {sT1}, {sC0}")
    a(f"s_cselect_b32 {sC1}, {sT2}, {sC1}")
    a(f"s_cselect_b32 {sHB}, {sT3}, {sHB}")
    a(f"s_cselect_b32 {sISQ}, 1, 0")
    a(f"s_bitcmp1_b32 {sWV}, 0")
    a(f"s_cselect_b32 {sLo}, {sC1}, {sC0}")
    a(f"s_cselect_b32 {sHi2}, {sC0}, {sC1}")
    a(f"s_sub_u32 {sHi2}, {sHi2}, 160")
    touch_setup(pQKV, pQKV, 3840, sC0, sC1, 160)
    for l in burst(vm, *BS['p0']): a(l)
    for n in range(3):
        a(f"v_add_u32 {t0}, {64*n}, {lane}")
        a(f"v_mul_u32_u24 {t1}, 205, {t0}")
        a(f"v_lshrrev_b32 {t1}, 12, {t1}")
        a(f"v_mul_u32_u24 {t2}, 20, {t1}")
        a(f"v_sub_u32 {t2}, {t0}, {t2}")
        a(f"v_cmp_le_u32 vcc, 10, {t2}")
        a(f"v_mov_b32 {t3}, {sLo}")
        a(f"v_mov_b32 {t4}, {sHi2}")
        a(f"v_cndmask_b32 {t3}, {t3}, {t4}, vcc")
        a(f"v_mul_u32_u24 {t1}, 3840, {t1}")
        a(f"v_lshl_add_u32 {t1}, {t2}, 4, {t1}")
        a(f"v_add_u32 {vw[n]}, {t1}, {t3}")
        if n: a(f"v_subrev_u32 {vw[n]}, {1024*n}, {vw[n]}")
    a(f"s_mul_i32 {sWK}, {sWV}, {8*3840}")
    a(f"s_mul_i32 {sMW}, {sWV}, 2560")
    sW3 = [S(83), S(9)]
    if OPT['swp']:
        a(f"s_mul_i32 {sT1}, {sTY}, 245760"); a(f"s_add_u32 {sWK}, {sWK}, {sT1}"); a(f"s_lshl_b32 {sT1}, {sT1}, 1")
        a(f"s_sub_u32 {sW3[0]}, 245760, {sT1}"); a(f"s_add_u32 {sW3[1]}, {sT1}, 245760")
    def w_dma2(blk):
        l = [f"s_add_u32 m0, {sMW}, {WB + (blk % 3) * 20480}"] + ([f"s_add_u32 {sWK}, {sWK}, {(sW3[0] if blk % 2 else sW3[1]) if OPT['swp'] else 245760}"] if blk else []) + [
             f"buffer_load_dwordx4 {vw[0]}, {rW}, {sWK} offen {OPT['wfl']} lds",
             f"buffer_load_dwordx4 {vw[1]}, {rW}, {sWK} offen offset:1024 {OPT['wfl']} lds",
             "s_mov_b32 exec_hi, 0\n"
             f"buffer_load_dwordx4 {vw[2]}, {rW}, {sWK} offen offset:2048 {OPT['wfl']} lds\n"
             "s_mov_b32 exec_hi, -1"]
        for _ in range(3): vm.issue(('W', blk))
        return l
    a(f"v_lshlrev_b32 {t0}, 4, {tid}")
    a(f"s_mul_i32 {sT0}, {sHB}, 800")
    a(f"v_add_u32 {t0}, {sT0}, {t0}")
    a(f"buffer_load_dwordx4 {WP}, {t0}, {rA}, 0 offen"); vm.issue(('P', 0))
    if OPT['sb1'] and not OPT['x0e']: a("s_barrier")
    for l in x_dma(vm, 0, 0) + x_dma(vm, 0, 1) + w_dma2(0): a(l)
    x_addr_setup()
    a(f"v_lshl_add_u32 {t0}, {vqd}, 3, {vr}")
    a(f"v_mul_u32_u24 {t0}, 320, {t0}")
    a(f"v_and_b32 {t1}, 1, {vqd}")
    a(f"v_xor_b32 {t1}, {sHI}, {t1}")
    a(f"v_mul_u32_u24 {t1}, 160, {t1}")
    a(f"v_mul_u32_u24 {t2}, 40, {vc}")
    a(f"v_add3_u32 {t0}, {t0}, {t1}, {t2}")
    a(f"v_add_u32 {wa}, {WB}, {t0}")
    a(f"s_and_b32 {sT0}, {sHI}, {sISQ}")
    a(f"s_mul_i32 {sT0}, {sT0}, 3200")
    a(f"s_add_u32 {sT0}, {sT0}, {PHW}")
    a(f"v_mul_u32_u24 {t0}, 800, {vqd}")
    a(f"v_add_u32 {t0}, {sT0}, {t0}")
    a(f"v_mov_b32 {t1}, {ZERO}")
    a(f"v_cmp_eq_u32 vcc, {vc}, {vqd}")
    a(f"v_cndmask_b32 {t0}, {t1}, {t0}, vcc")
    a(f"v_mul_u32_u24 {t1}, 40, {vr}")
    a(f"v_add_u32 {pa}, {t0}, {t1}")
    def w_reads2(WFb, step):
        blk, kk = step // 2, step % 2
        return [f"ds_read_b64_tr_b16 {WFb[t][2*rd:2*rd+2]}, {wa} offset:{(blk % 3) * 20480 + kk * 10240 + rd * 1280 + 8 * t}" for t in range(5) for rd in range(2)]
    def t2b_emit():
        if T2:
            for b0 in eval(OPT['t2b']):
                for l in t2_all(b0): a(l)
                vm.issue('T')
    if OPT['t2pos'] == 1:
        if OPT['sb2']: a("s_barrier")
        t2b_emit()
    if OPT['trim']:
        for l in p2_setup(): a(l)
    n = vm.wait_for(lambda t: t in (('X', 0), ('W', 0)))
    a(f"s_waitcnt vmcnt({n})")
    a("s_barrier")
    stamp(a, 1)
    for l in x_reads(XF[0], 0) + w_reads2(WF[0], 0): a(l)
    if OPT['fill'] == 0:
        for l in x_dma(vm, 1, 0) + x_dma(vm, 1, 1) + w_dma2(1): a(l)
        if OPT['t2pos'] == 2: t2b_emit()
    fq = []
    for b in range(1, 10):
        fq += [('X', b, max(0, 2*(b-3)+1)), ('W', b, max(0, 2*(b-3)+1))]
    def qkv_loop():
        hq = None; LBT = []
        for j in range(20):
            cur, nxt = j & 1, (j & 1) ^ 1
            if j % 2 == 1:
                if j < 19:
                    n = vm.wait_for(lambda t: t in (('X', (j + 1) // 2), ('W', (j + 1) // 2)) or (j == 17 and t == 'chk'))
                    a(f"s_waitcnt vmcnt({n}) lgkmcnt(0)")
                else: a("s_waitcnt lgkmcnt(0)")
                if j == 17: init_check(vchk, 128, True)
                a("s_barrier")
            else:
                a("s_waitcnt lgkmcnt(0)")
                if OPT['pp'] or OPT['qbar']: a("s_barrier")
            sstamp(a, j)
            mains = [f"v_mfma_f32_16x16x32_bf16 {ACC[tt][4*t:4*t+4]}, {WF[cur][t]}, {XF[cur][tt]}, {'0' if j == 0 else ACC[tt][4*t:4*t+4]}" for t in range(5) for tt in range(4)]
            pre = burst(vm, *BS[j]) if j in BS else []
            lblk = []
            if j < 19:
                lblk += x_reads(XF[nxt], j + 1) + w_reads2(WF[nxt], j + 1)
                if OPT['fill']:
                    cnt = 2 if j in (0, 1, 3, 5) else 1
                    while cnt and fq and fq[0][2] <= j:
                        it = fq.pop(0); cnt -= 1
                        lblk += x_dma(vm, it[1], 0) + x_dma(vm, it[1], 1) if it[0] == 'X' else w_dma2(it[1])
                if j == 0 and not OPT['fill']: lblk += x_dma(vm, 2, 0) + x_dma(vm, 2, 1) + w_dma2(2)
                xb = (j - 1) // 2 + 3 if j >= 1 else 99
                if xb <= 9 and not OPT['fill']:
                    if j % 2 == 1: lblk += x_dma(vm, xb, 0) + x_dma(vm, xb, 1)
                    else: lblk += w_dma2(xb)
                if T2 and j in eval(OPT['t2q']): lblk += t2_one(*eval(OPT['t2q'])[j])
                if OPT['tw'] and j == 2:
                    sh = OPT['tw']; npg = (0x1250000 >> sh) + 1
                    lanes = min(64, -(-npg // 32)); ninst = -(-npg // (32 * lanes))
                    body = f"s_lshl3_add_u32 s4, {sR4}, {sWV}\ns_mul_i32 s4, s4, {lanes}\nv_add_u32 v3, s4, {lane}\nv_lshlrev_b32 v3, {sh}, v3\ns_mov_b64 exec, {hex((1 << lanes) - 1) if lanes < 32 else -1}\n"
                    for i in range(ninst):
                        body += f"buffer_load_dword {tdum}, v3, {rWS}, 0 offen offset:3968\nv_add_u32 v3, {32*lanes << sh}, v3\n"
                    body += "s_mov_b64 exec, -1\n"
                    OOL.append("TWo:\n" + body + "s_branch TWb")
                    lblk += [f"s_cmp_eq_u32 {sC8}, 2\ns_cbranch_scc1 TWo\nTWb:"]
                if j == 15: lblk += init_check_issue(vchk); vm.issue('chk')
                if j == 17:
                    lblk += [f"v_lshlrev_b32 {t0}, 4, {tid}", f"v_add_u32 {t0}, {PHW}, {t0}", f"ds_write_b128 {t0}, {WP}"]
                if j == 10 and not OPT['trim']: lblk += p2_setup()
                if j == 17: lblk += poison(V(208, 4))

            else:
                for t in range(5):
                    for s in range(3):
                        for r_ in range(2 if s < 2 else 1):
                            lblk.append(f"ds_read_b64_tr_b16 {PF[t][s][2*r_:2*r_+2]}, {pa} offset:{s*320 + r_*160 + t*8}")
            step_body(mains, lblk, pre)
    if OPT['two'] & 2:
        q0 = list(vm.q)
        a(f"s_cmp_eq_u32 {sHI}, 1"); a("s_cbranch_scc1 qkv_loop_HI")
        HALF[0] = 'lo'; qkv_loop(); a("s_branch qkv_loop_J"); a.label('qkv_loop_HI')
        vm.q = q0; HALF[0] = 'hi'; qkv_loop(); a.label('qkv_loop_J'); HALF[0] = None
    else: qkv_loop()
    stamp(a, 2)
    a("s_setprio 2")
    QB = V(68, 40); P = V(108, 20); E = V(128, 40); O = V(168, 20); M = V(250, 4); T = V(188, 4); ONE = V(192, 2)
    sCNT = S(8); sOUT = S(9)
    def cvt_tile(dst, tt):
        for i in range(10): a(f"v_cvt_pk_bf16_f32 {dst[i]}, {ACC[tt][2*i]}, {ACC[tt][2*i+1]}")
    def pk_list(q, P=P):
        l = []
        for s_ in range(3):
            for t in range(5):
                d = P[4*t:4*t+4]
                if s_ < 2: l.append(f"v_mfma_f32_16x16x32_bf16 {d}, {PF[t][s_]}, {q[4*s_:4*s_+4]}, {'0' if s_ == 0 else d}")
                else: l.append(f"v_mfma_f32_16x16x16_bf16 {d}, {PF[t][s_]}, {q[8:10]}, {d}")
        return l
    a(f"s_lshl_b32 {sT3}, {sRB}, 2")
    a(f"s_add_u32 {sT3}, {sT3}, {sRG}")
    a(f"s_cmp_eq_u32 {sISQ}, 0")
    a("s_cbranch_scc1 R_KV")
    for tt in range(4): cvt_tile(QB[10*tt:10*tt+10], tt)
    a("s_waitcnt lgkmcnt(0)")
    PT = [V(108 + 20*i, 20) for i in range(4)]
    a(f"s_lshr_b32 {sT1}, {sHB}, 2")
    a(f"s_add_u32 {sT1}, {sT1}, {sHI}")
    a(f"s_lshl_b32 {sOUT}, {sT3}, 3")
    a(f"s_add_u32 {sOUT}, {sOUT}, {sT1}")
    a(f"s_mul_i32 {sOUT}, {sOUT}, 10240")
    a(f"s_add_u32 {sOUT}, {sOUT}, {PQ}")
    a(f"s_add_u32 {sT0}, {sOUT}, 8192")
    a(f"s_lshl_b32 {sFLAG}, {sT3}, 7")
    a(f"s_add_u32 {sFLAG}, {sFLAG}, {FH + 4}")
    QO = [V(208 + 8*i, 8) for i in range(4)]; QT = [V(240, 4), V(244, 4)]
    def q_out(tt):
        l = [f"v_cvt_pk_bf16_f32 {QO[tt][i] if i < 8 else QT[tt//2][2*(tt%2) + i - 8]}, {PT[tt][2*i]}, {PT[tt][2*i+1]}" for i in range(10)]
        for h in range(2): l.append(f"buffer_store_dwordx4 {QO[tt][4*h:4*h+4]}, {vo if tt < 2 else vo4}, {rWS}, {sOUT} offen offset:{(tt%2)*2048 + h*1024} {ST}")
        if tt % 2: l.append(f"buffer_store_dwordx4 {QT[tt//2]}, {vo}, {rWS}, {sT0} offen offset:{(tt//2)*1024} {ST}")
        return l
    for tt in range(4):
        side = q_out(tt - 1) if tt else []
        for i, l in enumerate(pk_list(QB[10*tt:10*tt+10], PT[tt])):
            a(l)
            if i >= 2 and side: a(side.pop(0))
    for l in q_out(3): a(l)
    if OPT['gq']:
        GW = [V(72 + 4*i, 4) for i in range(5)]
        GX = [[V(96 + (g*5 + i)*4, 4) for i in range(5)] for g in range(2)]
        GA = [V(92), V(93)]
        srd(a, rW, pGW, 1280)
        a(f"v_lshlrev_b32 {t0}, 4, {vl15}")
        for i in range(5): a(f"buffer_load_dwordx4 {GW[i]}, {t0}, {rW}, 0 offen offset:{i*256}")
        a(f"v_mul_u32_u24 {t1}, 1280, {vqd}"); a(f"v_add_u32 {t0}, {t0}, {t1}")
        a(f"s_lshr_b32 {sT3}, {sHB}, 3"); a(f"s_lshl2_add_u32 {sT3}, {sRB}, {sT3}")
        a(f"s_lshl3_add_u32 {sT1}, {sT3}, {sWV}")
        a(f"s_mul_i32 {sT2}, {sT1}, {8*1280}")
        for g in range(2):
            for i in range(5): a(f"buffer_load_dwordx4 {GX[g][i]}, {t0}, {rX}, {sT2} offen offset:{i*256}")
            if g == 0: a(f"s_add_u32 {sT2}, {sT2}, {4*1280}")
        for g in range(2): a(f"v_mov_b32 {GA[g]}, 0")
        arrive(a, sFLAG, 7, t2, t3, 15)
        for i in range(5):
            for k in range(4):
                for g in range(2): a(f"v_dot2c_f32_bf16 {GA[g]}, {GX[g][i][k]}, {GW[i][k]}")
        for sh in (8, 4, 2, 1):
            for g in range(2): a(f"v_add_f32_dpp {GA[g]}, {GA[g]}, {GA[g]} row_ror:{sh} row_mask:0xf bank_mask:0xf")
        a(f"v_cmp_eq_u32 vcc, 1, {vl15}"); a(f"v_cndmask_b32 {t2}, {GA[0]}, {GA[1]}, vcc")
        a(f"v_mul_f32 {t2}, {LOG2E:#x}, {t2}"); a(f"v_min_f32 {t2}, 0x42a00000, {t2}"); a(f"v_exp_f32 {t2}, {t2}")
        a(f"v_lshl_add_u32 {t0}, {vl15}, 2, {vqd}"); a(f"v_lshlrev_b32 {t3}, 2, {t0}")
        a(f"s_lshl_b32 {sT2}, {sT1}, 5"); a(f"s_add_u32 {sT2}, {sT2}, {GOFF}")
        a("s_mov_b32 exec_lo, 0x00030003"); a("s_mov_b32 exec_hi, 0x00030003")
        a(f"buffer_store_dword {t2}, {t3}, {rWS}, {sT2} offen {ST}")
        a("s_mov_b64 exec, -1")
        a(f"s_lshl_b32 {sFLAG}, {sT3}, 7"); a(f"s_add_u32 {sFLAG}, {sFLAG}, {FH + 12}")
    flag_store(7)
    a(f"v_mov_b32 {vFQ}, 0")
    a(f"s_mov_b32 {sPF}, 6"); a(f"s_mov_b32 {sKQ}, 0")
    a("s_branch P2")
    a.label('R_KV')
    a(f"s_lshl_b32 {sT1}, {sRG}, 1"); a(f"s_add_u32 {sT0}, {sT1}, 1"); a(f"s_mul_i32 {sT0}, {sT0}, {32*PS}")
    a(f"v_add_u32 {t0}, {sT0}, {vo}")
    a(f"s_mov_b32 {sCNT}, 2")
    a(f"s_cmp_eq_u32 {sHI}, 1")
    a("s_cbranch_scc1 R_V")
    if OPT['trim']:
        cvt_tile(QB[0:10], 0)
        cvt_tile(QB[20:30], 2); cvt_tile(QB[30:40], 3)
        a("s_waitcnt lgkmcnt(0)")
        for i in range(5): a(f"ds_write_b128 {t0}, {QB[20+4*i:24+4*i]} offset:{i*1024}")
        cv = [f"v_cvt_pk_bf16_f32 {QB[10+i]}, {ACC[1][2*i]}, {ACC[1][2*i+1]}" for i in range(10)]
        a(cv.pop(0)); a(cv.pop(0))
        for i, l in enumerate(pk_list(QB[0:10])):
            a(l)
            if cv: a(cv.pop(0))
            if i == 8: a("s_waitcnt lgkmcnt(0)"); a("s_barrier")
    else:
        cvt_tile(QB[0:10], 0)
        cvt_tile(QB[20:30], 2); cvt_tile(QB[30:40], 3)
        for i in range(5): a(f"ds_write_b128 {t0}, {QB[20+4*i:24+4*i]} offset:{i*1024}")
        cvt_tile(QB[10:20], 1)
        a("s_waitcnt lgkmcnt(0)")
        a("s_barrier")
        for l in pk_list(QB[0:10]): a(l)
    a("s_branch R_KV2")
    a.label('R_V')
    VBt = {3: V(88, 10), 0: V(98, 10), 1: V(168, 10), 2: V(178, 10)}
    for tt in (3, 0, 1, 2): cvt_tile(VBt[tt], tt)
    a(f"s_mul_i32 {sT2}, {sRG}, {64*176}")
    a(f"s_add_u32 {sT2}, {sT2}, {VVB}")
    a(f"v_mul_u32_u24 {t2}, 176, {vl15}")
    a(f"v_add_u32 {t1}, {sT2}, {t2}")
    a(f"v_mul_u32_u24 {t3}, 40, {vqd}")
    a(f"v_add_u32 {t2}, {t1}, {t3}")
    a(f"v_mov_b32 {ONE[0]}, 0x3f80")
    a(f"v_mov_b32 {ONE[1]}, 0")
    a("s_barrier")
    for i in range(5): a(f"ds_read_b128 {QB[4*i:4*i+4]}, {t0} offset:{i*1024}")
    side = []
    for tt in (3, 0, 1, 2):
        for i in range(5): side.append(f"ds_write_b64 {t2}, {VBt[tt][2*i:2*i+2]} offset:{tt*2816 + 8*i}")
        side.append(f"ds_write_b64 {t1}, {ONE} offset:{tt*2816 + 160}")
    for i in range(9): a(side.pop(0))
    a("s_waitcnt lgkmcnt(9)")
    for l in pk_list(QB[0:10]): a(l); a(side.pop(0))
    a.label('R_KV2')
    a(f"s_add_u32 {sT1}, {sT1}, {sHI}"); a(f"s_mul_i32 {sT1}, {sT1}, {32*PS}")
    a(f"v_mul_u32_u24 {t4}, {PS}, {vl15}")
    a(f"v_mul_u32_u24 {t3}, 80, {vqd}")
    a(f"v_add3_u32 {t4}, {t4}, {t3}, {sT1}")
    stamp(a, 12)
    for u in range(2):
        if u == 0:
            bl = b_reg(vm, 0, 'B') + b_reg(vm, 1, 'B'); pl = pk_list(QB[10:20])
            sd = [pl[i] + ("\n" + bl[i] if i < len(bl) else "") for i in range(15)]
        else:
            if OPT['kf']:
                for l in q_flag_issue(): a(l)
            sd = b_reg(vm, 2, 'B') + b_reg(vm, 3, 'B')
        if OPT['ksp']:
            b_ = Asm()
            softmax_unit(b_, P, E, M, T, O, (pl if u == 0 else []) + ["s_waitcnt lgkmcnt(0)"])
            ld = bl if u == 0 else sd
            ins = [x.text for x in b_.ins]; step_ = len(ins) // 11; q_ = list(ld)
            for n_, x in enumerate(ins):
                a(x)
                if n_ % step_ == step_ - 1 and q_:
                    if q_[0].startswith('s_'): a(q_.pop(0))
                    a(q_.pop(0))
            for x in q_: a(x)
        else: softmax_unit(a, P, E, M, T, O, sd + ["s_waitcnt lgkmcnt(0)"])
        for s_ in range(5): a(f"ds_write_b128 {t4}, {O[4*s_:4*s_+4]} offset:{PHB + u*16*PS + 16*s_}")
    a(f"v_lshl_add_u32 {t0}, {vqd}, 2, {vr}")
    a(f"v_mul_u32_u24 {t1}, {PS}, {t0}")
    a(f"s_mul_i32 {sT0}, {sRG}, 80")
    a(f"v_lshl_add_u32 {t1}, {vc}, 3, {t1}")
    a(f"v_add_u32 {t1}, {sT0}, {t1}")
    a(f"v_add_u32 {t2}, {128*PS}, {t1}")
    a(f"v_mul_u32_u24 {t0}, 176, {t0}")
    a(f"s_mul_i32 {sT0}, {sRG}, 40")
    a(f"s_mul_i32 {sT1}, {sHI}, 24")
    a(f"s_add_u32 {sT0}, {sT0}, {sT1}")
    a(f"v_lshl_add_u32 {t3}, {vc}, 3, {sT0}")
    a(f"v_mul_u32_u24 {t4}, {sHI}, {vc}")
    a(f"v_cmp_lt_u32 vcc, 1, {t4}")
    a(f"v_mov_b32 {t4}, 160")
    a(f"v_cndmask_b32 {t3}, {t3}, {t4}, vcc")
    a(f"v_add_u32 {t3}, {VVB}, {t3}")
    a(f"v_add_u32 {t3}, {t0}, {t3}")
    stamp(a, 13)
    a("s_waitcnt lgkmcnt(0)")
    a("s_barrier")
    stamp(a, 14)
    a(f"s_lshl_b32 {sFLAG}, {sID}, 7"); a(f"s_add_u32 {sFLAG}, {sFLAG}, {FK}")
    def k_hint():
        a("v_mov_b32 v29, 1"); a("v_mov_b32 v11, 0")
        a(f"s_cmp_lg_u32 {sWV}, 7"); a("s_cbranch_scc1 KH1")
        a("s_mov_b64 exec, 1"); a(f"buffer_atomic_add v29, v11, {rWS}, {sFLAG} offen sc0 sc1"); a("s_mov_b64 exec, -1")
        a.label('KH1')
    if OPT['kf']:
        a("s_waitcnt vmcnt(10)")
        a(f"v_readfirstlane_b32 {sKQ}, {vFQ}")
        a(f"s_cmp_eq_u32 {sHI}, 1"); a(f"s_cselect_b32 {sKQ}, 0, {sKQ}")
        if OPT['kf'] & 4: a(f"s_mov_b32 {sKQ}, 0")
        a(f"s_cmp_eq_u32 {sKQ}, 0"); a("s_cbranch_scc1 KF0")
        for l in pq_list('s4', 's5'): a(l)
        a.label('KF0')
    if OPT['kh'] == 0: k_hint()
    if not OPT['kf']:
        for l in q_flag_issue(): a(l)
    KA = [[V(72 + (b*4 + f)*4, 4) for f in range(4)] for b in range(3)]
    KD = [V(128 + 4*f, 4) for f in range(3)]
    def kv_reads(b, s):
        l = []
        for rd in range(2):
            l.append(f"ds_read_b64_tr_b16 {KA[b][3][2*rd:2*rd+2]}, {t3} offset:{s*5632 + rd*2816}")
        for f in range(3):
            for rd in range(2):
                l.append(f"ds_read_b64_tr_b16 {KA[b][f][2*rd:2*rd+2]}, {t1 if s < 4 else t2} offset:{(s % 4)*32*PS + rd*16*PS + f*32}")
        return l
    allr = [l for s in range(8) for l in kv_reads(s % 3, s)]
    pos = 0
    for s in range(8):
        for f in range(3):
            needr = s * 8 + 2 + 2 * (f + 1)
            lim = min(len(allr), needr + 12, (s + 2) * 8 + (2 + 2 * f if False else 0) + 8 - 8 + 0) if False else min(len(allr), needr + 12)
            lim = min(lim, (s + 3) * 8)
            while pos < lim: a(allr[pos]); pos += 1
            a(f"s_waitcnt lgkmcnt({pos - needr})")
            a(f"v_mfma_f32_16x16x32_bf16 {KD[f]}, {KA[s%3][f]}, {KA[s%3][3]}, {'0' if s == 0 else KD[f]}")
    stamp(a, 15)
    a(f"s_add_u32 {sT0}, {sHB}, {sRG}")
    a(f"s_lshl_b32 {sT0}, {sT0}, 1")
    a(f"s_add_u32 {sT0}, {sT0}, {sHI}")
    a(f"s_mul_i32 {sT0}, {sT0}, 3072")
    a(f"s_add_u32 {sT0}, {sT0}, {KVACC}")
    if OPT['kh'] == 1: k_hint()
    def k_go(n):
        a(f"s_cmp_lg_u32 {sWV}, 7"); a("s_cbranch_scc1 KH2")
        a(f"s_waitcnt vmcnt({n})")
        a("v_cmp_eq_u32 vcc, 7, v29"); a(f"s_add_u32 s4, {sFLAG}, {GOD}"); a("s_and_b64 exec, vcc, 1")
        a(f"buffer_store_dword v29, v11, {rWS}, s4 offen sc1"); a("s_mov_b64 exec, -1")
        a.label('KH2')
    if OPT['kh'] == 0: k_go(0)
    a(f"v_lshlrev_b32 {t2}, 2, {lane}")
    a(f"v_cmp_eq_u32 vcc, 15, {vl15}")
    for f in range(3):
        for j in range(4): a(f"v_cndmask_b32 {KD[f][j]}, {KD[f][j]}, 1.0, vcc")
    for f in range(3):
        if f == 2: a("s_mov_b32 exec_hi, 0")
        for j in range(4):
            a(f"buffer_atomic_add_f32 {KD[f][j]}, {t2}, {rWS}, {sT0} offen offset:{f*1024 + j*256} {OPT['atf']}")
    a("s_mov_b32 exec_hi, -1")
    if OPT['kh'] == 1: k_go(12)
    a("s_waitcnt vmcnt(12)")
    flag_store(7 if OPT['kh'] == 2 else -1)
    a(f"s_mov_b32 {sPF}, 4")
    a("s_branch P2")

    for l in OOL: a(l)
    OOL.clear()
    a.label('R_SPARE')
    sSP, sU, sSO, sST = S(77), S(78), S(79), S(80)
    va = Alloc('v', 176, 250)
    vf = [va() for _ in range(5)]; vat = [va() for _ in range(5)]
    rf = [va() for _ in range(5)]; rat = [va(), va()]
    vst = va(); vst4 = va()
    FR = [[va(4) for _ in range(5)] for b in range(2)]
    Z4 = va(4)
    NT = OPT['spnt']
    if T2:
        for b0 in eval(OPT['t2b']):
            for l in t2_all(b0): a(l)
    srd(a, rA, pWD, 1728 * 1280)
    srd(a, rB, pWO, 640 * 1280)
    a(f"s_lshr_b32 {sSP}, {sT0}, 1")
    a(f"s_lshl_b32 {sSP}, {sSP}, 3")
    a(f"s_add_u32 {sSP}, {sSP}, {sRB}")
    a(f"s_lshl_b32 {sT0}, {sWV}, 2")
    a(f"s_mul_i32 {sT1}, {sWV}, 20")
    for n in range(5):
        a(f"v_add_u32 {t0}, {64*n}, {lane}")
        a(f"v_mul_u32_u24 {t1}, 205, {t0}")
        a(f"v_lshrrev_b32 {t1}, 14, {t1}")
        a(f"v_mul_u32_u24 {t2}, 80, {t1}")
        a(f"v_sub_u32 {t2}, {t0}, {t2}")
        a(f"v_add_u32 {t1}, {sT0}, {t1}")
        a(f"v_and_b32 {t3}, 7, {t1}")
        a(f"v_lshlrev_b32 {t3}, 1, {t3}")
        a(f"v_xor_b32 {t2}, {t2}, {t3}")
        a(f"v_mul_u32_u24 {t1}, 1280, {t1}")
        a(f"v_lshl_add_u32 {vf[n]}, {t2}, 4, {t1}")
        if n % 4: a(f"v_subrev_u32 {vf[n]}, {1024*(n%4)}, {vf[n]}")
    a(f"s_mul_i32 {sM}, {sWV}, 5120")
    def u_dma(buf, typ):
        if typ == 'F':
            a(f"s_mul_i32 {sSO}, {sU}, 40960")
            vv, rr = vf, rA
        else:
            a(f"s_sub_u32 {sT2}, {sU}, 54")
            a(f"s_mul_i32 {sT3}, {sT2}, 52")
            a(f"s_lshr_b32 {sT3}, {sT3}, 8")
            a(f"s_mul_i32 {sSO}, {sT3}, {160*1280 - 5*256}")
            a(f"s_lshl_b32 {sT2}, {sT2}, 8")
            a(f"s_add_u32 {sSO}, {sSO}, {sT2}")
            vv, rr = vat, rB
        a(f"s_add_u32 m0, {sM}, {buf*40960}")
        for n in range(4):
            a(f"buffer_load_dwordx4 {vv[n]}, {rr}, {sSO} offen offset:{n*1024} {NT} lds")
        a(f"s_add_u32 m0, {sM}, {buf*40960 + 4096}")
        a(f"buffer_load_dwordx4 {vv[4]}, {rr}, {sSO} offen {NT} lds")
    def dyn(it, fn):
        if it == 4:
            a(f"s_add_u32 {sU}, {sSP}, 64"); a(f"s_min_u32 {sU}, {sU}, 73"); fn('A'); return
        a(f"s_add_u32 {sU}, {sSP}, {16*it}")
        if it <= 2: fn('F')
        else:
            l1, l2 = a.newlabel('SP'), a.newlabel('SP')
            a(f"s_cmp_ge_u32 {sU}, 54"); a(f"s_cbranch_scc1 {l1}")
            fn('F'); a(f"s_branch {l2}"); a.label(l1); fn('A'); a.label(l2)
    for it in range(3): dyn(it, lambda typ: u_dma(it, typ))
    a(f"v_lshlrev_b32 {t0}, 4, {tid}")
    for i in range(4): a(f"v_mov_b32 {Z4[i]}, 0")
    a(f"s_mul_i32 {sT2}, {sSP}, 13568")
    a(f"s_add_u32 {sT2}, {sT2}, {KVACC}")
    a(f"buffer_store_dwordx4 {Z4}, {t0}, {rWS}, {sT2} offen {ST}")
    a(f"s_add_u32 {sT2}, {sT2}, {13568 - 8192}")
    a(f"buffer_store_dwordx4 {Z4}, {t0}, {rWS}, {sT2} offen {ST}")
    for n in range(5):
        a(f"v_add_u32 {t1}, {4*n}, {vqd}")
        a(f"v_add_u32 {t1}, {sT1}, {t1}")
        a(f"v_and_b32 {t3}, 7, {t1}")
        a(f"v_lshlrev_b32 {t3}, 1, {t3}")
        a(f"v_xor_b32 {t2}, {vl15}, {t3}")
        a(f"v_mul_u32_u24 {t1}, 1280, {t1}")
        a(f"v_lshl_add_u32 {vat[n]}, {t2}, 4, {t1}")
        if n % 4: a(f"v_subrev_u32 {vat[n]}, {1024*(n%4)}, {vat[n]}")
    a(f"v_lshl_add_u32 {t0}, {vqd}, 2, {vr}")
    a(f"v_and_b32 {t1}, 7, {t0}")
    a(f"v_lshlrev_b32 {t1}, 1, {t1}")
    a(f"v_mul_u32_u24 {t0}, 1280, {t0}")
    a(f"v_and_b32 {t2}, 1, {vc}")
    a(f"v_lshl_add_u32 {t0}, {t2}, 3, {t0}")
    a(f"v_lshrrev_b32 {t3}, 1, {vc}")
    a(f"s_mul_i32 {sT0}, {sWV}, 10")
    a(f"v_add_u32 {t4}, {sT0}, {t3}")
    for j in range(5):
        a(f"v_add_u32 {rf[j]}, {2*j}, {t4}")
        a(f"v_xor_b32 {rf[j]}, {rf[j]}, {t1}")
        a(f"v_lshl_add_u32 {rf[j]}, {rf[j]}, 4, {t0}")
    a(f"v_mul_u32_u24 {t0}, 20, {vqd}")
    a(f"v_add_u32 {t0}, {t0}, {vr}")
    a(f"v_lshlrev_b32 {t0}, 8, {t0}")
    a(f"v_lshl_add_u32 {t0}, {t2}, 3, {t0}")
    a(f"s_lshl_b32 {sT0}, {sWV}, 1")
    a(f"v_add_u32 {t4}, {sT0}, {t3}")
    a(f"v_xor_b32 {t4}, {t4}, {t1}")
    a(f"v_lshl_add_u32 {rat[0]}, {t4}, 4, {t0}")
    a(f"v_xor_b32 {rat[1]}, 128, {rat[0]}")
    a(f"v_lshlrev_b32 {vst}, 4, {lane}")
    a(f"v_add_u32 {vst4}, 4096, {vst}")
    def u_proc(buf, typ, F):
        if typ == 'F':
            for j in range(5):
                a(f"v_add_u32 {t0}, {buf*40960}, {rf[j]}")
                for rd in range(2):
                    a(f"ds_read_b64_tr_b16 {F[j][2*rd:2*rd+2]}, {t0} offset:{rd*20480}")
            a(f"s_lshl3_add_u32 {sST}, {sU}, {sWV}")
            a(f"s_mul_i32 {sST}, {sST}, 5120")
            a(f"s_add_u32 {sST}, {sST}, {BP}")
            a("s_waitcnt lgkmcnt(0)")
            for j in range(5):
                if j < 4: a(f"buffer_store_dwordx4 {F[j]}, {vst}, {rWS}, {sST} offen offset:{j*1024} {ST}")
                else: a(f"buffer_store_dwordx4 {F[j]}, {vst4}, {rWS}, {sST} offen {ST}")
        else:
            bases = [(0, 4), (8, 12), (16, 96), (80, 84), (88, 92)]
            a(f"v_add_u32 {t0}, {buf*40960}, {rat[0]}")
            a(f"v_add_u32 {t1}, {buf*40960}, {rat[1]}")
            a(f"v_lshrrev_b32 {t4}, 1, {vqd}"); a(f"v_mul_u32_u24 {t4}, {40*256}, {t4}"); a(f"v_add_u32 {t4}, {t4}, {t0}")
            for s5 in range(5):
                for rd in range(2):
                    b = bases[s5][rd]
                    if s5 == 2: a(f"ds_read_b64_tr_b16 {F[s5][2*rd:2*rd+2]}, {t4} offset:{(16 + 40*rd)*256}")
                    else: a(f"ds_read_b64_tr_b16 {F[s5][2*rd:2*rd+2]}, {t1 if b % 8 else t0} offset:{b*256}")
            a(f"s_sub_u32 {sT2}, {sU}, 54")
            a(f"s_mul_i32 {sT3}, {sT2}, 52")
            a(f"s_lshr_b32 {sT3}, {sT3}, 8")
            a(f"s_mul_i32 {sT0}, {sT3}, 5")
            a(f"s_sub_u32 {sT2}, {sT2}, {sT0}")
            a(f"s_lshl_b32 {sT2}, {sT2}, 3")
            a(f"s_add_u32 {sT2}, {sT2}, {sWV}")
            a(f"s_mul_i32 {sT1}, {sT2}, 52")
            a(f"s_lshr_b32 {sT1}, {sT1}, 8")
            a(f"s_mul_i32 {sST}, {sT1}, 5")
            a(f"s_sub_u32 {sT2}, {sT2}, {sST}")
            a(f"s_add_u32 {sST}, {sT0}, 54")
            a(f"s_lshl3_add_u32 {sST}, {sST}, {sT1}")
            a(f"s_mul_i32 {sST}, {sST}, 5120")
            a(f"s_lshl_b32 {sT2}, {sT2}, 10")
            a(f"s_add_u32 {sST}, {sST}, {sT2}")
            a(f"s_add_u32 {sST}, {sST}, {BP}")
            a("s_waitcnt lgkmcnt(0)")
            for s5 in range(5):
                a(f"buffer_store_dwordx4 {F[s5]}, {vst}, {rWS}, {sST} offen {ST}")
                if s5 < 4: a(f"s_add_u32 {sST}, {sST}, {BS_}")
    vm = VmTrack()
    for t in ['D0']*5 + ['D1']*5 + ['D2']*5 + ['Z']*2: vm.issue(t)
    def sp_signal(k):
        lsk = a.newlabel('SPD')
        a(f"s_cmp_lg_u32 {sWV}, 7"); a(f"s_cbranch_scc1 {lsk}")
        a(f"v_mov_b32 {t2}, 0"); a(f"v_mov_b32 {t3}, 1")
        a("s_mov_b64 exec, 1")
        a(f"buffer_atomic_add {t3}, {t2}, {rDBG}, 0 offen offset:{4*k} sc0 sc1")
        a("s_waitcnt vmcnt(0)")
        a(f"v_cmp_eq_u32 vcc, 15, {t3}")
        a("s_and_b64 exec, exec, vcc")
        a(f"buffer_store_dword {t3}, {t2}, {rDBG}, 0 offen offset:{128 + 4*k} sc1")
        a("s_mov_b64 exec, -1")
        a.label(lsk)
    vSG = V(30)
    def sp_sig_a(k):
        lsk = a.newlabel('SPD')
        a(f"s_cmp_lg_u32 {sWV}, 0"); a(f"s_cbranch_scc1 {lsk}")
        a("v_mov_b32 v29, 0"); a(f"v_mov_b32 {vSG}, 1")
        a("s_mov_b64 exec, 1"); a(f"buffer_atomic_add {vSG}, v29, {rDBG}, 0 offen offset:{4*k} sc0 sc1"); a("s_mov_b64 exec, -1")
        a.label(lsk)
    def sp_sig_b(k, n):
        lsk = a.newlabel('SPD')
        a(f"s_cmp_lg_u32 {sWV}, 0"); a(f"s_cbranch_scc1 {lsk}")
        a(f"s_waitcnt vmcnt({n})")
        a(f"v_cmp_eq_u32 vcc, 15, {vSG}"); a("s_and_b64 exec, vcc, 1")
        a(f"buffer_store_dword {vSG}, v29, {rDBG}, 0 offen offset:{128 + 4*k} sc1"); a("s_mov_b64 exec, -1")
        a.label(lsk)
    for it in range(5):
        n = vm.wait_for(lambda t: t == f'D{it}' or (it == 3 and t == 'S2') or (it == 2 and t == 'S1'))
        a(f"s_waitcnt vmcnt({n})")
        a("s_barrier")
        if OPT['asg']:
            if it in (2, 3): sp_sig_a(0 if it == 2 else 2)
        else:
            if it == 2: sp_signal(0); stamp(a, 1)
            if it == 3: sp_signal(2)
        dyn(it, lambda typ: u_proc(it % 3, typ, FR[it & 1]))
        for _ in range(5): vm.issue(f'S{it}')
        if it == OPT['t2si'] and T2 and OPT['t2s']:
            a(f"s_and_b32 s4, {sWV}, 1"); a(f"s_lshl1_add_u32 s4, {sSP}, s4"); a("s_lshl_b32 s4, s4, 6"); a("s_mul_i32 s4, s4, s5")
            a(f"s_mul_i32 s6, {sBK}, {OPT['t2s']}"); a("s_add_u32 s4, s4, s6")
            a(f"v_add_u32 v21, s4, {vt1}")
            a(f"buffer_load_dword {tdum}, v21, {rTT}, 0 offen"); vm.issue('T')
        if it in (1, 2):
            dyn(it + 2, lambda typ: u_dma(it - 1, typ))
            for _ in range(5): vm.issue(f'D{it+2}')
        if OPT['asg'] and it in (2, 3): sp_sig_b(0 if it == 2 else 2, 10 if it == 2 else 5)
    a("s_waitcnt vmcnt(0)")
    a("s_barrier")
    sp_signal(1)
    stamp(a, 2)
    if OPT['gq'] or OPT['nog'] == 2:
        init_poll(a, t1, 128); flag_store(-1)
    else:
        GW = [V(72 + 4*i, 4) for i in range(5)]
        GX = [[V(96 + (g*5 + i)*4, 4) for i in range(5)] for g in range(4)]
        GA = [V(92 + g) for g in range(4)]
        srd(a, rW, pGW, 1280)
        a(f"v_lshlrev_b32 {t0}, 4, {vl15}")
        for i in range(5): a(f"buffer_load_dwordx4 {GW[i]}, {t0}, {rW}, 0 offen offset:{i*256}")
        a(f"v_mul_u32_u24 {t1}, 1280, {vqd}")
        a(f"v_add_u32 {t0}, {t0}, {t1}")
        a(f"s_lshl_b32 {sT3}, {sSP}, 3")
        a(f"s_add_u32 {sT3}, {sT3}, {sWV}")
        a(f"s_mul_i32 {sT2}, {sT3}, {16*1280}")
        for g in range(4):
            for i in range(5): a(f"buffer_load_dwordx4 {GX[g][i]}, {t0}, {rX}, {sT2} offen offset:{i*256} {OPT['gnt']}")
            if g < 3: a(f"s_add_u32 {sT2}, {sT2}, {4*1280}")
        for g in range(4): a(f"v_mov_b32 {GA[g]}, 0")
        init_poll(a, t1, 128)
        for i in range(5):
            for k in range(4):
                for g in range(4): a(f"v_dot2c_f32_bf16 {GA[g]}, {GX[g][i][k]}, {GW[i][k]}")
        for sh in (8, 4, 2, 1):
            for g in range(4): a(f"v_add_f32_dpp {GA[g]}, {GA[g]}, {GA[g]} row_ror:{sh} row_mask:0xf bank_mask:0xf")
        for g in range(4): a(f"v_mul_f32 {GA[g]}, {LOG2E:#x}, {GA[g]}")
        for g in range(4): a(f"v_min_f32 {GA[g]}, 0x42a00000, {GA[g]}")
        for g in range(4): a(f"v_exp_f32 {GA[g]}, {GA[g]}")
        a(f"v_mov_b32 {t2}, {GA[0]}")
        for g in range(1, 4):
            a(f"v_cmp_eq_u32 vcc, {g}, {vl15}"); a(f"v_cndmask_b32 {t2}, {t2}, {GA[g]}, vcc")
        a(f"v_lshl_add_u32 {t0}, {vl15}, 2, {vqd}")
        a(f"v_lshlrev_b32 {t3}, 2, {t0}")
        a(f"s_lshl_b32 {sT2}, {sT3}, 6"); a(f"s_add_u32 {sT2}, {sT2}, {GOFF}")
        a("s_mov_b32 exec_lo, 0x000f000f"); a("s_mov_b32 exec_hi, 0x000f000f")
        a(f"buffer_store_dword {t2}, {t3}, {rWS}, {sT2} offen {ST}")
        a("s_mov_b64 exec, -1")
        a(f"s_lshr_b32 {sFLAG}, {sT3}, 2"); a(f"s_lshl_b32 {sFLAG}, {sFLAG}, 7"); a(f"s_add_u32 {sFLAG}, {sFLAG}, {FH + 12}")
        flag_store(3)
    a(f"v_mov_b32 {vFQ}, 0")

    vm = VmTrack()
    a(f"s_mov_b32 {sPF}, 7"); a(f"s_mov_b32 {sKQ}, 0")
    a.label('P2')
    stamp(a, 3)
    a(f"s_bitcmp0_b32 {sPF}, 0"); a("s_cbranch_scc1 P2_E1")
    for l in p2_setup() + poison(V(208, 4)): a(l)
    a.label('P2_E1')
    vG = V(16, 4); vz = V(11); ka = V(12); kw = V(13); vbl = V(15); vcn = V(14)
    ACC = [[V(72 + (tt * 5 + j) * 4, 4) for j in range(5)] for tt in range(4)]
    ARl = [V(152 + 4 * i, 4) for i in range(14)] + [V(248, 4), V(24, 4)]
    AR = [ARl[4*b:4*b+4] for b in range(4)]
    sFHo = S(78)
    rOUT = rX
    INP2[0] = True
    if OPT['noa'] == 1 or OPT['nob']: srd(a, rA, pWS, 0)
    a(f"v_mov_b32 {vz}, 0")
    a(f"v_mov_b32 {vcn}, {CNT}")
    a(f"v_add_u32 {vbl}, {sLC}, {vo}")
    vbl2 = V(23)
    a(f"v_add_u32 {vbl2}, {3*20480}, {vbl}")
    def lrow(row, j):
        return (vbl, row*20480 + j*1024) if row < 3 else (vbl2, (row-3)*20480 + j*1024)
    CG_ = {4:3, 5:4, 6:0, 7:1, 8:2} if OPT['gf'] & 2 else {4:0, 5:1, 6:2, 7:3, 8:4}
    def a_loads(i, tag, vts=None, r=None):
        b = i % NA; r = r or rWS
        if OPT['noa'] == 1: r = rA
        if OPT['noa'] == 3: return []
        if OPT['noa'] == 2: return [f"s_mov_b32 {sT0}, {sAo}"] + [(f"buffer_load_dwordx4 {AR[b][tt]}, {vo}, {r}, {sT0} offen offset:{tt*1024} {LD}", vm.issue(tag))[0] for tt in range(4)]
        l = [f"s_add_u32 {sT0}, {sAo}, {((i*16384 if i < 4 else CA0 + CG_[i]*16384) if vts else GRP[i]*16384)}"]
        for tt in range(4):
            if vts: l.append(f"buffer_load_dwordx4 {AR[b][tt]}, {vts[tt]}, {r}, {sT0} offen {LD}")
            else: l.append(f"buffer_load_dwordx4 {AR[b][tt]}, {vo}, {r}, {sT0} offen offset:{tt*1024} {LD}")
            vm.issue(tag)
        return l
    def b_fromlds(i, row):
        return ["ds_read_b128 %s, %s offset:%d" % ((BR[i % 4][j],) + lrow(row, j)) for j in range(5)]
    def mm(sl, zero, side=[], every=2, bb=None):
        b = sl % 4 if bb is None else bb; ab = sl % NA
        side = list(side)
        for j in range(5):
            for tt in range(4):
                d = ACC[tt][j]
                a(f"v_mfma_f32_16x16x32_bf16 {d}, {BR[b][j]}, {AR[ab][tt]}, {'0' if tt in zero else d}")
                while side and side[0].startswith('s_'): a(side.pop(0))
                if side and tt % every == every - 1: a(side.pop(0))
        for l in side: a(l)
    def g_load():
        a(f"s_lshl_b32 {sT0}, {sR6}, 8"); a(f"s_add_u32 {sT0}, {sT0}, {GOFF}")
        a(f"v_lshlrev_b32 {t0}, 4, {vl15}")
        a(f"buffer_load_dwordx4 {vG}, {t0}, {rWS}, {sT0} offen {LD}")
    def lds_signal(off):
        a(f"v_mov_b32 {t1}, 1")
        a("s_waitcnt lgkmcnt(0)")
        a("s_mov_b64 exec, 1")
        a(f"ds_add_u32 {vcn}, {t1} offset:{off}")
        a("s_mov_b64 exec, -1")
    def lds_wait(off, n):
        L = a.newlabel('LW')
        a.label(L)
        a(f"ds_read_b32 {t1}, {vcn} offset:{off}")
        a("s_waitcnt lgkmcnt(0)")
        a(f"v_readfirstlane_b32 {sT0}, {t1}")
        a(f"s_cmp_ge_u32 {sT0}, {n}")
        a(f"s_cbranch_scc1 {L}d")
        a("s_sleep 1")
        a(f"s_branch {L}")
        a.label(L + 'd')
    vAT = V(29); vFG = V(28)
    PB = V(176, 12); PU = V(152, 20)
    def pq_loads():
        a(f"s_lshl3_add_u32 {sT0}, {sR6}, {sCG}")
        a(f"s_mul_i32 {sT0}, {sT0}, 10240"); a(f"s_add_u32 {sT0}, {sT0}, {PQ}")
        a(f"s_lshl_b32 {sT1}, {sRG}, 11"); a(f"s_add_u32 {sT1}, {sT1}, {sT0}")
        for h in range(2): a(f"buffer_load_dwordx4 {PB[4*h:4*h+4]}, {vo}, {rWS}, {sT1} offen offset:{h*1024} {LD}")
        a(f"s_lshr_b32 {sT1}, {sRG}, 1"); a(f"s_lshl_b32 {sT1}, {sT1}, 10"); a(f"s_add_u32 {sT0}, {sT0}, {sT1}")
        a(f"s_and_b32 {sT1}, {sRG}, 1"); a(f"s_lshl3_add_u32 {sT0}, {sT1}, {sT0}"); a(f"s_add_u32 {sT0}, {sT0}, 8192")
        a(f"buffer_load_dwordx2 {PB[8:10]}, {vo}, {rWS}, {sT0} offen {LD}")
    sQF = S(83)
    if OPT['kf']:
        a(f"v_mov_b32 {t1}, 1"); a("s_waitcnt lgkmcnt(0)")
        a("s_mov_b64 exec, 1"); a(f"ds_add_u32 {vcn}, {t1} offset:16"); a("s_mov_b64 exec, -1")
        a(f"s_cmp_eq_u32 {sKQ}, 0"); a("s_cbranch_scc1 KF1")
        a(f"buffer_load_dword {vS2}, {vz}, {rDBG}, 0 offen offset:132 sc1")
        a("s_setprio 3"); a("s_branch P2_C1")
        a.label('KF1')
    a(f"v_readfirstlane_b32 {sQF}, {vFQ}")
    a(f"s_cmp_eq_u32 {sHI}, 1"); a(f"s_cselect_b32 {sQF}, 0, {sQF}")
    a(f"s_cmp_eq_u32 {sQF}, 0"); a("s_cbranch_scc1 P2_NQ")
    pq_loads()
    a.label('P2_NQ')
    a(f"buffer_load_dword {vS2}, {vz}, {rDBG}, 0 offen offset:132 sc1")
    a(f"v_mov_b32 {vAT}, 1"); a(f"v_mov_b32 {t1}, 1")
    B3 = OPT['b23'] == 3
    if B3:
        a(f"s_cmp_lg_u32 {sPF}, 0"); a("s_cbranch_scc1 P2_D0")
        for l in b_reg(vm, 2, 'B'): a(l)
        a("s_waitcnt vmcnt(5) lgkmcnt(0)")
        a("s_branch P2_D1")
        a.label('P2_D0')
    a("s_waitcnt vmcnt(0) lgkmcnt(0)")
    if B3: a.label('P2_D1')
    a("s_mov_b64 exec, 1")
    if not OPT['kf']: a(f"ds_add_rtn_u32 {t1}, {vcn}, {t1} offset:16")
    a(f"s_cmp_eq_u32 {sNEED}, -1"); a("s_cbranch_scc1 P2_A2")
    if OPT['kh'] == 2:
        a(f"s_cmp_lg_u32 {sPF}, 4"); a("s_cbranch_scc1 P2_A1")
        a("s_waitcnt lgkmcnt(0)")
        a(f"v_cmp_eq_u32 vcc, 7, {t1}")
        a("s_and_b64 exec, exec, vcc")
        a("s_cbranch_execz P2_A2")
        a.label('P2_A1')
    a(f"buffer_atomic_add {vAT}, {vz}, {rWS}, {sFLAG} offen sc0 sc1")
    a.label('P2_A2')
    a("s_mov_b64 exec, -1")
    def go_logic(n, st=True):
        lb = a.newlabel('GO')
        a(f"s_waitcnt vmcnt({n})")
        a(f"v_readfirstlane_b32 {sP[0]}, {vAT}")
        a(f"s_add_u32 {sP[1]}, {sFLAG}, {GOD}")
        a(f"s_cmp_lg_u32 {sP[0]}, {sNEED}")
        a(f"s_cbranch_scc1 {lb}")
        a("s_mov_b64 exec, 1")
        a(f"buffer_store_dword {vAT}, {vz}, {rWS}, {sP[1]} offen sc1")
        a("s_mov_b64 exec, -1")
        a.label(lb)
        if st: stamp(a, 4)
    a(f"s_cmp_eq_u32 {sHI}, 0")
    a("s_cbranch_scc1 P2_C")
    if B3:
        a(f"s_cmp_lg_u32 {sPF}, 0"); a("s_cbranch_scc1 P2_D2")
        for l in b_reg(vm, 3, 'B'): a(l)
        go_logic(5)
        a("s_branch P2_D3")
        a.label('P2_D2')
    go_logic(0)
    if B3: a.label('P2_D3')
    a("s_setprio 0")
    init_check(vS2, 132)
    if OPT['bt']:
        a("s_lshr_b32 s4, s2, 6"); a(f"s_lshl2_add_u32 s4, s4, {sRG}"); a(f"s_mul_i32 s4, s4, {65*128}")
        a(f"s_mul_i32 s5, {sCG}, {74*5120}"); a("s_add_u32 s4, s4, s5"); a(f"s_add_u32 s4, s4, {BP + 48*5120}")
        a(f"v_lshlrev_b32 {t2}, 7, {lane}")
        a(f"buffer_load_dword {t3}, {t2}, {rWS}, s4 offen sc1")
    a(f"s_cmp_lt_u32 {sRG}, 2"); a(f"s_cselect_b32 {rB[2]}, {WSZ}, 0")
    a(f"s_cmp_lt_u32 {sPF}, 6"); a("s_cbranch_scc1 P2_E2")
    for b in range(4):
        for l in b_reg(vm, b, 'B'): a(l)
    lds_wait(16, 8)
    for k in range(4):
        for l in b_row(vm, sBg, GRP[GL[k]], LR[k]): a(l)
    a.label('P2_E2')
    if OPT['b23'] in (1, 2):
        a(f"s_cmp_lg_u32 {sPF}, 0"); a("s_cbranch_scc1 P2_E4")
        for l in (b_reg(vm, 2, 'B') if OPT['b23'] == 1 else []) + b_reg(vm, 3, 'B'): a(l)
        a.label('P2_E4')
    lds_wait(16, 8)
    for k in range(3):
        if OPT['ep'] and k == OPT['ep'] - 1: a(f"buffer_load_dword {t4}, {vz}, {rWS}, {sFHo} offen sc1")
        for l in b_row(vm, sBg, k, CR[k], None, 54*BS_): a(l)
    if OPT['bx']:
        for l in b_reg(vm, 5, 'B', None, GRP[5], 0, 4): a(l)
    if OPT['ep']: a(f"s_waitcnt vmcnt({5*(4 - OPT['ep'])})"); a(f"v_readfirstlane_b32 s82, {t4}")
    a(f"s_cmp_eq_u32 {sPF}, 4"); a("s_cbranch_scc1 P2_GK")
    NG = 10
    for variant in (0, 1):
        GLv = GL if variant == 0 else []
        if variant == 1: a.label('P2_GK')
        if OPT['at']:
            a(f"s_mul_i32 {sT1}, {sR6}, {74*4096}"); a(f"s_lshl2_add_u32 {sT2}, {sCG}, {sRG}"); a(f"s_mul_i32 {sT2}, {sT2}, {54*128}"); a(f"s_add_u32 {sT1}, {sT1}, {sT2}")
            a(f"v_lshlrev_b32 {t2}, 7, {lane}")
        if OPT['at'] == 3: vpoll(a, vz, sFHo, 0, t1, f"s_mov_b32 exec_hi, 0x3fffff\nbuffer_load_dword {t3}, {t2}, {rWS}, {sT1} offen sc1\ns_mov_b32 exec_hi, -1", OPT['tsl'])
        elif OPT['noh'] and OPT['ep']: pass
        elif OPT['noh']: a("s_waitcnt vmcnt(0)")
        else:
            if OPT['ep']: a("s_cmp_lg_u32 s82, 0"); a(f"s_cbranch_scc1 HS{variant}")
            vpoll(a, vz, sFHo, 0, t1)
            if OPT['ep']: a.label(f'HS{variant}')
        lds_signal(20)
        a(f"s_setprio {OPT['gprio']}")
        vm = VmTrack()
        stamp(a, 5)
        if OPT['at'] == 1:
            a("s_mov_b32 exec_hi, 0x3fffff"); a(f"buffer_load_dword {t3}, {t2}, {rWS}, {sT1} offen sc1"); a("s_mov_b32 exec_hi, -1")
        if OPT['stamp'] == 4: a("s_memtime s[92:93]")
        LA = OPT['la']
        pend = []
        for s in range(LA + 1):
            if OPT['stp'] and s: a(f"s_setprio {3 - s}")
            for l in a_loads(s, ('A', s)): a(l)
            if OPT['at'] == 2 and s == 0:
                a("s_mov_b32 exec_hi, 0x3fffff"); a(f"buffer_load_dword {t3}, {t2}, {rWS}, {sT1} offen sc1"); a("s_mov_b32 exec_hi, -1"); vm.issue('T')
        for s in range(NG - 1):
            n = vm.wait_for(lambda t: t in (('A', s), ('B', s)))
            a(f"s_waitcnt vmcnt({n})" + (f" lgkmcnt({5*sum(1 for x in (s+1, s+2) if x in GLv)})" if s in GLv else ""))
            if s == 0 and OPT['ep']: lds_signal(24)
            if s == 0: stamp(a, 6)
            if OPT['stamp'] == 4:
                a("s_waitcnt lgkmcnt(0)")
                a(f"v_writelane_b32 v255, s92, {40 + s}")
                a("s_memtime s[92:93]")
            side = []
            if OPT['fair'] and s in eval(OPT['fg']): a(f"s_setprio {eval(OPT['fg'])[s]}")
            if 1 <= s and s + LA < NG:
                side += a_loads(s + LA, ('A', s + LA), None, rB if GRP[s + LA] == 13 else None)
            if 1 <= s and s + 3 < NG:
                rr = rB if GRP[s + 3] == 13 else None
                if OPT['bx'] and s + 3 == 5: pass
                elif s + 3 in GLv: side += b_fromlds(s + 3, LR[GLv.index(s + 3)])
                elif OPT['spr'] and variant == 0:
                    bl = b_reg(VmTrack(), s + 3, 'x', rr, GRP[s + 3])
                    side += bl[0:4]; [vm.issue(('B', s + 3)) for _ in range(3)]
                    pend = [(bl[0], bl[4:6], s + 3)]
                    mm(s, [], side); continue
                else: side += b_reg(vm, s + 3, ('B', s + 3), rr, GRP[s + 3])
            if pend:
                p0, pl, ps = pend.pop(); side += [p0] + pl; [vm.issue(('B', ps)) for _ in range(2)]
            mm(s, range(4) if s == 0 else [], side, 2, 4 if OPT['bx'] and s == 5 else None)
        if variant == 0: a("s_branch P2_GL")
    a.label('P2_GL')
    a("s_waitcnt vmcnt(0) lgkmcnt(0)")
    if OPT['stamp'] == 4:
        a(f"v_writelane_b32 v255, s92, {49}"); a("s_memtime s[92:93]"); a("s_waitcnt lgkmcnt(0)"); a(f"v_writelane_b32 v255, s92, {50}")
    for tt in range(4):
        for j in range(5):
            d = ACC[tt][j]
            a(f"v_mfma_f32_16x16x32_bf16 {d}, {BR[1][j]}, {AR[9 % NA][tt]}, {d}")
            if tt >= 2: a("ds_write_b128 %s, %s offset:%d" % (lrow(tt, j)[0], ACC[tt-2][j], lrow(tt, j)[1]))
    for tt in (2, 3):
        for j in range(5): a("ds_write_b128 %s, %s offset:%d" % (lrow(tt+2, j)[0], ACC[tt][j], lrow(tt+2, j)[1]))
    lds_signal(4)
    stamp(a, 10)
    a("s_branch P2_FIN")
    a.label('P2_C')
    P = V(72, 20)
    a("s_setprio 3")
    if OPT['noc']:
        go_logic(0)
        srd(a, rOUT, pOUT, 2048 * 1280)
        for i in range(4):
            a(f"s_add_u32 {sT0}, {sRG}, {i}"); a(f"s_and_b32 {sT0}, {sT0}, 3"); a(f"s_lshl_b32 {sT0}, {sT0}, 10")
            a(f"v_add_u32 {V(16+i)}, {sT0}, {vo}")
        init_check(vS2, 132)
        a("s_mov_b32 s81, 0"); a(f"s_cmp_eq_u32 {sPF}, 0"); a("s_cselect_b32 s81, 2, s81"); a(f"s_cmp_eq_u32 {sPF}, 4"); a("s_cselect_b32 s81, 4, s81")
        a("s_branch P2_NOC")
    a(f"s_cmp_lg_u32 {sQF}, 0"); a("s_cbranch_scc1 P2_C1")
    go_logic(0)
    a(f"s_mov_b32 {sNEED}, -1")
    vpoll(a, vz, sFHo, 4, t1)
    pq_loads()
    a("s_waitcnt vmcnt(0)")
    a.label('P2_C1')
    a(f"buffer_load_dword {vFG}, {vz}, {rWS}, {sFHo} offen offset:12 sc1")
    if OPT['kf']:
        a(f"s_lshl_b32 {sT2}, {sCG}, 7"); a(f"s_add_u32 {sT2}, {sT2}, {FK + GOD}")
    GV = [V(22), V(252), V(10), V(8)]
    GLd = [t3, V(188), V(189), V(190)]
    srd(a, rOUT, pOUT, 2048 * 1280)
    a(f"v_lshl_add_u32 {kw}, {vr}, 2, {vqd}")
    a(f"v_lshlrev_b32 {kw}, 6, {kw}")
    a(f"v_lshl_add_u32 {kw}, {vc}, 3, {kw}")
    a(f"s_mul_i32 {sT0}, {sRG}, 3088"); a(f"s_add_u32 {sT0}, {sT0}, {KVB}")
    a(f"v_add_u32 {kw}, {sT0}, {kw}")
    a(f"v_mul_u32_u24 {t4}, 3088, {vqd}")
    a(f"v_lshl_add_u32 {t4}, {vr}, 6, {t4}")
    a(f"v_add_u32 {t4}, {KVB}, {t4}")
    a(f"v_mov_b32 {ka}, {ZERO + 8}")
    a(f"v_cmp_eq_u32 vcc, {vc}, {vqd}")
    a(f"v_cndmask_b32 {ka}, {ka}, {t4}, vcc")
    VT = [V(16), V(17), V(18), V(19)]
    for i in range(4):
        a(f"s_add_u32 {sT0}, {sRG}, {i}"); a(f"s_and_b32 {sT0}, {sT0}, 3"); a(f"s_lshl_b32 {sT0}, {sT0}, 10")
        a(f"v_add_u32 {VT[i]}, {sT0}, {vo}")
    for i in range(10):
        a(f"v_lshlrev_b32 {PU[2*i]}, 16, {PB[i]}")
        a(f"v_and_b32 {PU[2*i+1]}, 0xffff0000, {PB[i]}")
    gl = ((f"s_cmp_eq_u32 {sNEED}, -1\ns_cbranch_scc1 GOC\n" if OPT['kf'] else "") + f"s_waitcnt vmcnt(1)\nv_readfirstlane_b32 {sP[0]}, {vAT}\ns_add_u32 {sP[1]}, {sFLAG}, {GOD}\ns_cmp_lg_u32 {sP[0]}, {sNEED}\ns_cbranch_scc1 GOC\n"
          f"s_mov_b64 exec, 1\nbuffer_store_dword {vAT}, {vz}, {rWS}, {sP[1]} offen sc1\ns_mov_b64 exec, -1\nGOC:" + (f"\nbuffer_load_dword {vFQ}, {vz}, {rWS}, {sT2} offen sc1" if OPT['kf'] & 2 else ""))
    softmax_unit(a, PU, V(92, 40), V(132, 4), V(136, 4), P, ["s_nop 0"] * 19 + [gl])
    a("s_waitcnt vmcnt(0)")
    a(f"v_cmp_ne_u32 vcc, 0, {vFG}"); a("s_nop 0"); a("s_cbranch_vccnz P2_GOK")
    if not OPT['nog']: vpoll(a, vz, sFHo, 12, t1)
    a.label('P2_GOK')
    a(f"v_lshlrev_b32 {t0}, 2, {vl15}")
    a(f"s_lshl2_add_u32 {sT0}, {sR6}, {sRG}")
    a(f"s_lshl_b32 {sT0}, {sT0}, 6"); a(f"s_add_u32 {sT0}, {sT0}, {GOFF}")
    a(f"buffer_load_dword {t3}, {t0}, {rWS}, {sT0} offen {LD}")
    stamp(a, 5)
    init_check(vS2, 132)
    lds_wait(16, 8)
    a(f"s_lshl_b32 {sT2}, {sCG}, 7"); a(f"s_add_u32 {sT2}, {sT2}, {FK + GOD}")
    a(f"s_lshl_b32 {sT3}, {sCG}, 2"); a(f"s_add_u32 {sT3}, {sT3}, {sRG}")
    a(f"s_mul_i32 {sT3}, {sT3}, 6144"); a(f"s_add_u32 {sT3}, {sT3}, {KVACC}")
    sNB = S(81)
    def cb(i): return b_reg(vm, i, 'B') if i < 4 else b_reg(vm, 7, 'B', None, 3, CB0, 4) if OPT['bx'] else b_row(vm, sBo, i - 4, CR[i - 4], None, CB0)
    if OPT['kf'] & 2:
        a(f"s_mov_b32 {sNB}, 0"); a(f"s_cmp_eq_u32 {sPF}, 0"); a(f"s_cselect_b32 {sNB}, 2, {sNB}"); a(f"s_cmp_eq_u32 {sPF}, 4"); a(f"s_cselect_b32 {sNB}, 4, {sNB}")
        a(f"v_cmp_ne_u32 vcc, 0, {vFQ}"); a("s_nop 0"); a("s_cbranch_vccnz P2_KGO")
    if OPT['b23']: a(f"s_cmp_eq_u32 {sPF}, 0"); a("s_cbranch_scc1 P2_K2")
    a(f"s_cmp_lt_u32 {sPF}, 6"); a("s_cbranch_scc1 P2_K4")
    for i in range(4):
        if OPT['b23'] and i == (2 if OPT['b23'] == 1 else 3): a.label('P2_K2')
        a(f"s_mov_b32 {sNB}, {i}")
        a(f"buffer_load_dword {t1}, {vz}, {rWS}, {sT2} offen sc1")
        a("s_waitcnt vmcnt(0)")
        a(f"v_cmp_ne_u32 vcc, 0, {t1}"); a("s_nop 0"); a("s_cbranch_vccnz P2_KGO")
        for l in cb(i): a(l)
    a.label('P2_K4')
    a(f"s_mov_b32 {sNB}, 4")
    if OPT['bx']:
        a(f"buffer_load_dword {t1}, {vz}, {rWS}, {sT2} offen sc1")
        a("s_waitcnt vmcnt(0)")
        a(f"v_cmp_ne_u32 vcc, 0, {t1}"); a("s_nop 0"); a("s_cbranch_vccnz P2_KGO")
        for l in cb(4): a(l)
        a(f"s_mov_b32 {sNB}, 5")
    if not OPT['nok']: vpoll(a, vz, sT2, 0, t1)
    else: a("s_waitcnt vmcnt(0)")
    a.label('P2_KGO')
    stamp(a, 6)
    KL = [V(92 + 4 * i, 4) for i in range(6)]
    a(f"s_mov_b32 {sTO}, 0x80000")
    a("s_mov_b32 s82, 0x41000000")
    a.label('KVRETRY')
    for i in range(6):
        if i < 4: a(f"buffer_load_dwordx4 {KL[i]}, {vo}, {rWS}, {sT3} offen offset:{i*1024} {LD}")
        else: a(f"buffer_load_dwordx4 {KL[i]}, {vo4}, {rWS}, {sT3} offen offset:{(i-4)*1024} {LD}")
    for i in range(6):
        a(f"s_waitcnt vmcnt({5-i})")
        a(f"v_cvt_pk_bf16_f32 {KL[i][0]}, {KL[i][0]}, {KL[i][1]}")
        a(f"v_cvt_pk_bf16_f32 {KL[i][1]}, {KL[i][2]}, {KL[i][3]}")
        a(f"ds_write_b64 {kw}, {KL[i][0:2]} offset:{(i % 3)*1024 + (i // 3)*32}")
    a(f"v_min3_f32 {t1}, {KL[0][3]}, {KL[1][3]}, {KL[3][3]}")
    a(f"v_min_f32 {t4}, {KL[2][3]}, {KL[5][3]}")
    a(f"v_min_f32 {t1}, {t1}, {KL[4][3]}")
    a(f"v_cmp_neq_f32 vcc, s82, {t4}")
    a(f"v_cmp_neq_f32 {sP}, s82, {t1}")
    a("s_and_b32 s4, vcc_lo, 0x00880088"); a("s_and_b32 s5, vcc_hi, 0x00880088"); a("s_or_b32 s4, s4, s5")
    a(f"s_or_b32 s5, {sP[0]}, {sP[1]}"); a("s_and_b32 s5, s5, 0x88888888"); a("s_or_b32 s4, s4, s5")
    a("s_branch KVOK" if OPT['nok'] else "s_cbranch_scc0 KVOK")
    a("s_waitcnt lgkmcnt(0)")
    a(f"s_sleep {OPT['krs']}")
    a(f"s_sub_u32 {sTO}, {sTO}, 1")
    a("s_cbranch_scc0 KVRETRY")
    a.label('KVOK')
    lds_signal(0)
    lds_wait(0, 4)
    stamp(a, 16)
    AFl = [V(92 + 4 * i, 4) for i in range(15)]
    D = [V(152 + 4 * t, 4) for t in range(6)]
    O = V(176, 12)
    order = [5, 0, 1, 2, 3, 4]
    fr = [(t, s) for s in range(5) for t in order]
    def rdl(k):
        t, s_ = fr[k]
        return [f"ds_read_b64_tr_b16 {AFl[k % 15][2*r_:2*r_+2]}, {ka} offset:{s_*512 + r_*256 + (t*8 if t < 3 else t*8 + 8)}" for r_ in range(2)]
    AH = 7
    for k in range(AH):
        for l in rdl(k): a(l)
    def fin(t):
        for h in range(4): a(f"v_mul_f32 {D[t][h]}, {D[t][h]}, {t2}")
        a(f"v_cvt_pk_bf16_f32 {O[2*t]}, {D[t][0]}, {D[t][1]}")
        a(f"v_cvt_pk_bf16_f32 {O[2*t+1]}, {D[t][2]}, {D[t][3]}")
    for k in range(30):
        t, s_ = fr[k]
        a(f"s_waitcnt lgkmcnt({2 * min(AH - 1, 29 - k)})")
        a(f"v_mfma_f32_16x16x32_bf16 {D[t]}, {AFl[k % 15]}, {P[4*s_:4*s_+4]}, {'0' if s_ == 0 else D[t]}")
        if k + AH < 30:
            for l in rdl(k + AH): a(l)
        if OPT['sent'] and k == OPT['oh1']:
            a(f"s_sub_u32 {sFLAG}, {sFHo}, {GOD - 8}"); a(f"s_mov_b32 {sNEED}, 31"); a(f"v_mov_b32 {vAT}, 1")
            a("s_mov_b64 exec, 1"); a(f"buffer_atomic_add {vAT}, {vz}, {rWS}, {sFLAG} offen sc0 sc1"); a("s_mov_b64 exec, -1")
    stamp(a, 19)
    a(f"v_add_f32 {t2}, 0x358637bd, {D[5][0]}")
    a(f"v_rcp_f32 {t2}, {t2}")
    a(f"v_mul_f32 {t2}, {t2}, {t3}")
    fin(0); fin(1)
    a(f"buffer_store_dwordx4 {O[0:4]}, {vo}, {rWS}, {sO1} offen {ST}")
    fin(2); fin(3)
    a(f"buffer_store_dwordx4 {O[4:8]}, {vo4}, {rWS}, {sO1} offen {ST}")
    fin(4)
    a(f"v_mov_b32 {O[10]}, {O[8]}"); a(f"v_mov_b32 {O[11]}, {O[9]}")
    a(f"v_permlane32_swap_b32 {O[8]}, {O[10]}"); a(f"v_permlane32_swap_b32 {O[9]}, {O[11]}")
    a("s_mov_b32 exec_hi, 0")
    a(f"buffer_store_dwordx4 {O[8:12]}, {vo}, {rWS}, {sO2} offen {ST}")
    a("s_mov_b32 exec_hi, -1")
    stamp(a, 17)
    NBA = OPT['nba'] and not OPT['sent']
    if NBA:
        a(f"s_sub_u32 {sFLAG}, {sFHo}, {GOD - 8}"); a(f"s_mov_b32 {sNEED}, 31"); a(f"v_mov_b32 {vAT}, 1")
        a(f"ds_read_b32 {t1}, {vcn} offset:20"); a("s_waitcnt lgkmcnt(0)"); a(f"v_readfirstlane_b32 {sT0}, {t1}")
        a(f"s_and_b32 {sT0}, {sT0}, {sNB}")
        a(f"s_cmp_eq_u32 {sT0}, 4"); a("s_cbranch_scc1 P2_NB1")
        arrive(a, sFLAG, 31, t0, t1)
        a(f"s_mov_b32 {sNEED}, -1")
        a.label('P2_NB1')
    elif not OPT['sent']:
        a(f"s_sub_u32 {sT2}, {sFHo}, {GOD - 8}")
        arrive(a, sT2, 31, t0, t1)
    else: go_logic(3, False)
    stamp(a, 7)
    if OPT['noc']: a.label('P2_NOC')
    for i in range(5 if OPT['bx'] else 4):
        lb = a.newlabel('CB')
        a(f"s_cmp_gt_u32 {sNB}, {i}"); a(f"s_cbranch_scc1 {lb}")
        for l in cb(i): a(l)
        a.label(lb)
    XB = [V(28), V(13), V(30)]; XW = V(31); GB = V(12)
    if OPT['bx']: XB = [V(1), V(13), V(8)]; XW = V(9)
    for q in range(1, 4):
        a(f"s_sub_u32 {sT0}, {sRG}, {q}"); a(f"s_and_b32 {sT0}, {sT0}, 3"); a(f"s_mul_i32 {sT0}, {sT0}, 5120")
        a(f"s_add_u32 {sT0}, {sT0}, {CR[q-1]*20480}")
        a(f"v_add_u32 {XB[q-1]}, {sT0}, {vo}")
    a(f"v_add_u32 {XW}, {6*20480}, {vbl}")
    def crow(k, j): return (vbl, CR[k]*20480 + j*1024) if k < 2 else (XW, j*1024)
    a(f"s_add_u32 {sT0}, {sRG}, 2"); a(f"s_mul_i32 {sT0}, {sT0}, 20480"); a(f"v_add_u32 {GB}, {sT0}, {vo}")
    a(f"v_mul_u32_u24 {t0}, 1280, {vl15}")
    a(f"v_lshl_add_u32 {t0}, {vqd}, 3, {t0}")
    a(f"s_lshl_b32 {sT2}, {sR6}, 2"); a(f"s_add_u32 {sT2}, {sT2}, {sRG}"); a(f"s_mul_i32 {sT2}, {sT2}, {16*1280}")
    a(f"s_mul_i32 {sT3}, {sCG}, 160"); a(f"s_add_u32 {sT2}, {sT2}, {sT3}")
    a(f"v_add_f32 {V(22)}, 1.0, {t3}"); a(f"v_rcp_f32 {V(22)}, {V(22)}")
    a(f"v_mul_u32_u24 {t3}, 1280, {vl15}"); a(f"v_and_b32 {t4}, 1, {vqd}"); a(f"v_lshl_add_u32 {t3}, {t4}, 5, {t3}")
    a(f"v_lshrrev_b32 {t4}, 1, {vqd}"); a(f"v_lshl_add_u32 {t3}, {t4}, 4, {t3}")
    lds_wait(20, 4)
    a(f"s_setprio {OPT['cprio']}")
    if OPT['stamp'] == 4: a("s_memtime s[92:93]")
    vm = VmTrack()
    for s in range(OPT['la'] + 1):
        if OPT['stp'] == 2 and s: a(f"s_setprio {max(1, 3 - s)}")
        for l in a_loads(s, ('A', s), VT): a(l)
        if NBA and s == 1:
            a(f"s_cmp_eq_u32 {sNEED}, -1"); a("s_cbranch_scc1 P2_NB2")
            a("s_waitcnt vmcnt(8)")
            a("s_mov_b64 exec, 1"); a(f"buffer_atomic_add {vAT}, {vz}, {rWS}, {sFLAG} offen sc0 sc1"); a("s_mov_b64 exec, -1")
            a.label('P2_NB2')
    GT = [BR[1], BR[2], BR[3], AR[1] + [AR[2][0]]]
    if OPT['bx']: GT = [BR[1], BR[3], BR[2], BR[4]]
    nextA = OPT['la'] + 1
    OC = OPT['oc']
    for s in range(9):
        n = vm.wait_for(lambda t: t in (('A', s), ('B', s)) or (s == OC and t == 'of'))
        if s == 1 and OPT['ep']: lds_wait(24, 4)
        if s == 8:
            lds_wait(4, 4)
            stamp(a, 8)
            for w in range(2):
                for j in range(5): a(f"ds_read_b128 {GT[w][j]}, {GB} offset:{w*5120 + j*1024}")
        a(f"s_waitcnt vmcnt({n})" + (" lgkmcnt(0)" if s == (6 if OPT['gf'] & 2 else 4) else ""))
        if OPT['stamp'] == 4:
            a("s_waitcnt lgkmcnt(0)")
            a(f"v_writelane_b32 v255, s92, {40 + s}")
            a("s_memtime s[92:93]")
        if NBA and s == 1: go_logic(n, False)
        if s == OC:
            stamp(a, 18)
            a(f"v_cmp_ne_u32 vcc, 0, {t2}"); a("s_nop 0"); a("s_cbranch_vccnz P2_OOK")
            if not OPT['noc']: vpoll(a, vz, sFHo, 8, t2)
            a.label('P2_OOK')
            a(f"s_mov_b32 {sTO}, 0x40000")
            stamp(a, 9)
        if OPT['sent'] and s >= 4:
            a.label(f'VER{s}')
            regs = [AR[s % NA][tt][k] for tt in range(4) for k in range(4)]
            a(f"v_max3_u32 {t4}, {regs[0]}, {regs[1]}, {regs[2]}")
            a(f"v_max3_u32 {t1}, {regs[3]}, {regs[4]}, {regs[5]}")
            for k in (6, 10):
                a(f"v_max3_u32 {t4}, {t4}, {regs[k]}, {regs[k+1]}"); a(f"v_max3_u32 {t1}, {t1}, {regs[k+2]}, {regs[k+3]}")
            a(f"v_max3_u32 {t4}, {t4}, {regs[14]}, {regs[15]}")
            a(f"v_max_u32 {t4}, {t4}, {t1}")
            a(f"v_cmp_eq_u32 vcc, -1, {t4}")
            a("s_nop 0")
            a(f"s_cbranch_vccnz RET{s}")
            a.label(f'VOK{s}')
        side = []
        if OPT['fair'] and s in eval(OPT['fc']): a(f"s_setprio {eval(OPT['fc'])[s]}")
        if s == OC - 1:
            side.append(f"buffer_load_dword {t2}, {vz}, {rWS}, {sFHo} offen offset:8 sc1"); vm.issue('of')
        while s >= 1 and nextA <= s + OPT['la'] and nextA < 9 and (nextA < 4 or s >= OC):
            side += a_loads(nextA, ('A', nextA), VT); nextA += 1
        if 1 <= s <= 5:
            g_ = CG_[s + 3]
            if OPT['bx'] and s + 3 == 7: pass
            elif g_ < 3: side += ["ds_read_b128 %s, %s offset:%d" % ((BR[(s+3)%4][j],) + crow(g_, j)) for j in range(5)]
            else: side += b_reg(vm, s + 3, ('B', s + 3), None, g_, CB0)
        if s < 8: mm(s, range(4) if s == 0 else [], side, 1 if len([x for x in side if not x.startswith('s_')]) > 10 else 2, 4 if OPT['bx'] and s == 7 else None)
        else:
            for tt in (1, 2, 3, 0):
                for j in range(5):
                    d = ACC[tt][j]
                    a(f"v_mfma_f32_16x16x32_bf16 {d}, {BR[0][j]}, {AR[8 % NA][tt]}, {d}")
                    if tt in (1, 2): a(f"ds_read_b128 {GT[tt+1][j]}, {GB} offset:{(tt+1)*5120 + j*1024}")
                    pt = {1: None, 2: None, 3: 1, 0: 2}[tt]
                    if pt: a("ds_write_b128 %s, %s offset:%d" % (crow(pt-1, j)[0], ACC[pt][j], crow(pt-1, j)[1]))
            for j in range(5): a("ds_write_b128 %s, %s offset:%d" % (crow(2, j)[0], ACC[3][j], crow(2, j)[1]))
    if OPT['stamp'] == 4:
        a("s_waitcnt lgkmcnt(0)"); a(f"v_writelane_b32 v255, s92, {49}"); a("s_memtime s[92:93]"); a("s_waitcnt lgkmcnt(0)"); a(f"v_writelane_b32 v255, s92, {50}")
    a("s_waitcnt lgkmcnt(15)")
    for j in range(5):
        for h in range(2):
            sl = slice(2*h, 2*h+2)
            a(f"v_pk_add_f32 {GT[0][j][sl]}, {GT[0][j][sl]}, {GT[1][j][sl]}")
            a(f"v_pk_add_f32 {GT[2][j][sl]}, {GT[2][j][sl]}, {GT[3][j][sl]}")
    stamp(a, 10)
    lds_signal(8)
    for j in range(5):
        for h in range(2):
            sl = slice(2*h, 2*h+2)
            a(f"v_pk_add_f32 {GT[0][j][sl]}, {GT[0][j][sl]}, {GT[2][j][sl]}")
            a(f"v_pk_add_f32 {ACC[0][j][sl]}, {GT[0][j][sl]}, {ACC[0][j][sl]}")
    lds_wait(8, 4)
    RD = [ACC[1], ACC[2], ACC[3]]
    if OPT['fin'] == 0:
        for q in range(3):
            for j in range(5): a(f"ds_read_b128 {RD[q][j]}, {XB[q]} offset:{j*1024}")
        for q in range(3):
            a(f"s_waitcnt lgkmcnt({10 - 5*q})")
            for j in range(5):
                for h in range(2): a(f"v_pk_add_f32 {ACC[0][j][2*h:2*h+2]}, {ACC[0][j][2*h:2*h+2]}, {RD[q][j][2*h:2*h+2]}")
                if q == 2:
                    for h in range(2): a(f"v_pk_mul_f32 {ACC[0][j][2*h:2*h+2]}, {ACC[0][j][2*h:2*h+2]}, {V(22, 2)} op_sel_hi:[1,0]")
                    a(f"v_cvt_pk_bf16_f32 {ACC[1][j][0]}, {ACC[0][j][0]}, {ACC[0][j][1]}")
                    a(f"v_cvt_pk_bf16_f32 {ACC[1][j][1]}, {ACC[0][j][2]}, {ACC[0][j][3]}")
                    a(f"buffer_store_dwordx2 {ACC[1][j][0:2]}, {t0}, {rOUT}, {sT2} offen offset:{j*32} {OPT['ost']}")
    else:
        for j in range(5):
            for q in range(3): a(f"ds_read_b128 {RD[q][j]}, {XB[q]} offset:{j*1024}")
        OUTR = [GT[1][0], GT[1][1], GT[1][2]]
        for j in range(5):
            a(f"s_waitcnt lgkmcnt({12 - 3*j})")
            for h in range(2):
                sl = slice(2*h, 2*h+2)
                a(f"v_pk_add_f32 {RD[0][j][sl]}, {RD[0][j][sl]}, {RD[1][j][sl]}")
                a(f"v_pk_add_f32 {ACC[0][j][sl]}, {ACC[0][j][sl]}, {RD[2][j][sl]}")
            for h in range(2):
                sl = slice(2*h, 2*h+2)
                a(f"v_pk_add_f32 {ACC[0][j][sl]}, {ACC[0][j][sl]}, {RD[0][j][sl]}")
            for h in range(2): a(f"v_pk_mul_f32 {ACC[0][j][2*h:2*h+2]}, {ACC[0][j][2*h:2*h+2]}, {V(22, 2)} op_sel_hi:[1,0]")
            o_ = OUTR[j // 2]
            a(f"v_cvt_pk_bf16_f32 {o_[2*(j%2)]}, {ACC[0][j][0]}, {ACC[0][j][1]}")
            a(f"v_cvt_pk_bf16_f32 {o_[2*(j%2)+1]}, {ACC[0][j][2]}, {ACC[0][j][3]}")
            if j % 2 == 1:
                a(f"v_permlane16_swap_b32 {o_[0]}, {o_[2]}"); a(f"v_permlane16_swap_b32 {o_[1]}, {o_[3]}")
                a(f"buffer_store_dwordx4 {o_}, {t3}, {rOUT}, {sT2} offen offset:{(j-1)*32} {OPT['ost']}")
            if j == 4: a(f"buffer_store_dwordx2 {o_[0:2]}, {t0}, {rOUT}, {sT2} offen offset:128 {OPT['ost']}")
    a.label('P2_FIN')
    if OPT['stamp'] or OPT['pad']:
        a("s_waitcnt vmcnt(0)")
        stamp(a, 11)
    stamp_flush(a)
    if OPT['pad']:
        if OPT['padwg'] < 999: a(f"s_cmp_lg_u32 s2, {OPT['padwg']}"); a(f"s_cbranch_scc1 {END}")
        a.label('PADL')
        a("s_sleep 1"); a("s_memrealtime s[12:13]"); a("s_waitcnt lgkmcnt(0)"); a("s_sub_u32 s12, s12, s10")
        a(f"s_cmp_lt_u32 s12, {OPT['pad']*100}"); a("s_cbranch_scc1 PADL")
    a.label(END)
    a.label('K_LAST')
    a("s_endpgm")
    if OPT['sent']:
        for s in range(4, 9):
            a.label(f'RET{s}')
            a(f"s_sub_u32 {sTO}, {sTO}, 1")
            a(f"s_cselect_b32 {sTO}, 0, {sTO}")
            a(f"s_cbranch_scc1 VOK{s}")
            a(f"s_sleep {OPT['rsl']}")
            for l in a_loads(s, 'r', VT): a(l)
            a("s_waitcnt vmcnt(0)")
            a(f"s_branch VER{s}")

def build():
    hdr = open(f'cdna_kernels/{NAME}.s.ref').read().split('; Override launch')[0]
    name = NAME + '_kernel'
    out = hdr + "; @launch grid=(256,1,1) block=(512,1,1) lds=163840\n"
    out += """; Generated by my own generator script (gen/gen6.py). One fused persistent launch, 256 workgroups x 8 waves:
;  phase 1 roles: FFN tiles (256x(96+96), silu*up -> h), Q tiles (q@w_phi), KV tiles (k@w_phi, dual softmax, kv/z via fp32 atomics),
;                 helper workgroups (zero flags, re-tile w_down/wo into MFMA fragment order, gate logits)
;  phase 2: o = e^z * (phi_q kv)/(phi_q z + eps), out = (1-g) * ([h|o] @ [w_down;wo]); hand-offs: sc1 stores/loads + counters in d_ws/d_debug
"""
    out += '.amdgcn_target "amdgcn-amd-amdhsa--gfx950"\n.text\n'
    a = Asm(); kernel(a)
    out += f".globl {name}\n.p2align 8\n.type {name},@function\n{name}:\n" + a.finalize()
    print('instrs', len(a.ins), 'nops', a.nnop, file=sys.stderr)
    out += f""".section .rodata,"a"
.p2align 6
.amdhsa_kernel {name}
  .amdhsa_next_free_vgpr 256
  .amdhsa_next_free_sgpr 102
  .amdhsa_accum_offset 256
  .amdhsa_group_segment_fixed_size 0
  .amdhsa_kernarg_size 96
  .amdhsa_user_sgpr_count 2
  .amdhsa_user_sgpr_kernarg_segment_ptr 1
  .amdhsa_system_sgpr_workgroup_id_x 1
.end_amdhsa_kernel
"""
    return out

if __name__ == '__main__':
    outp = sys.argv[1]
    for o in sys.argv[2:]:
        k, v = o.split('=', 1); OPT[k] = int(v) if v.isdigit() else v
    open(outp, 'w').write(build())
```
